```python
import torch

def _softmax(x, axis=-1):
    return torch.softmax(x, dim=axis)
def _gelu(x):
    return torch.nn.functional.gelu(x, approximate="tanh")
def _silu(x):
    return torch.nn.functional.silu(x)
def _sigmoid(x):
    return torch.sigmoid(x)
def _layernorm(x, axis=-1, eps=1e-5):
    m = x.mean(dim=axis, keepdim=True)
    v = x.var(dim=axis, keepdim=True, unbiased=False)
    return (x - m) / torch.sqrt(v + eps)
def _scatter_add(tgt, idx, src, axis=0):
    return tgt.clone().index_add_(axis, idx, src)
def _segment_sum(src, seg, n):
    out = torch.zeros((n,) + src.shape[1:], dtype=src.dtype)
    return out.index_add_(0, seg, src)
def _pad(x, pw):
    flat = tuple(v for pair in reversed(pw) for v in pair)
    return torch.nn.functional.pad(x, flat)

kernel_name = 'gather_scatter__cheap_equivariant_egnn__graph'

def setup_inputs():

    _w = (lambda a: (lambda t: t.to(torch.bfloat16) if t.is_floating_point() else t)(torch.as_tensor(a)))
    N, deg, D, De = 12500, 64, 64, max(16, 1)
    E = N * deg
    return {
        "h": _w((lambda *s: torch.randn(*s, dtype=torch.bfloat16) * 0.1)(N, D)),
        "pos": _w((lambda *s: torch.randn(*s, dtype=torch.bfloat16) * 0.8)(N, 3)),
        "e_attr": _w((lambda *s: torch.randn(*s, dtype=torch.bfloat16) * 0.8)(E, De)),
        "src": _w((lambda lo, hi, *s: torch.randint(lo, hi, s))(0, N, E).to(torch.int64)),
        "dst": _w((lambda lo, hi, *s: torch.randint(lo, hi, s))(0, N, E).to(torch.int64)),
        "w_e": _w(0.1 * (lambda *s: torch.randn(*s, dtype=torch.bfloat16) * 0.8)(2 * D + 1 + De, D)),
        "w_x": _w(0.1 * (lambda *s: torch.randn(*s, dtype=torch.bfloat16) * 0.1)(D, 1)),
        "w_h": _w(0.1 * (lambda *s: torch.randn(*s, dtype=torch.bfloat16) * 0.1)(2 * D, D)),
    }

def reference(h, pos, e_attr, src, dst, w_e, w_x, w_h):
    N, D = h.shape[0], h.shape[1]
    diff = pos[dst] - pos[src]
    dist2 = torch.sum(diff * diff, axis=-1, keepdims=True)
    e_in = torch.concatenate([h[dst], h[src], dist2, e_attr], axis=-1)
    m_ij = _silu(e_in @ w_e)
    coord_scale = m_ij @ w_x
    pos_new = pos + _segment_sum(diff * coord_scale, dst, N)
    m_i = _segment_sum(m_ij, dst, N)
    h_new = h + _silu(torch.concatenate([h, m_i], axis=-1) @ w_h)
    return h_new, pos_new
```

```python
class Regs:
    def __init__(self, start, limit, prefix):
        self.next = start; self.limit = limit; self.prefix = prefix; self.names = {}
    def alloc(self, name, n=1, align=1):
        a = max(align, 1)
        self.next = (self.next + a - 1)//a*a
        base = self.next
        self.next += n
        assert self.next <= self.limit, f"out of {self.prefix} regs at {name}"
        self.names[name] = (base, n)
        return R(self.prefix, base, n)
class R:
    def __init__(self, p, base, n): self.p=p; self.base=base; self.n=n
    def __getitem__(self, i):
        if isinstance(i, slice):
            st = i.start or 0; en = i.stop if i.stop is not None else self.n
            assert 0 <= st < en <= self.n, (st,en,self.n)
            return R(self.p, self.base+st, en-st)
        assert 0 <= i < self.n, (i,self.n)
        return R(self.p, self.base+i, 1)
    def __str__(self):
        if self.n == 1: return f"{self.p}{self.base}"
        return f"{self.p}[{self.base}:{self.base+self.n-1}]"
    def __format__(self, spec): return str(self)
class Asm:
    def __init__(self): self.lines=[]
    def __call__(self, s=""):
        for l in s.split("\n"):
            self.lines.append("  "+l.strip() if l.strip() and not l.strip().endswith(":") else l.strip())
    def label(self, l): self.lines.append(l+":")
    def c(self, s): self.lines.append("  ; "+s)
    def nop(self, n):
        while n > 0:
            k = min(n, 16); self.lines.append(f"  s_nop {k-1}"); n -= k
    def text(self): return "\n".join(self.lines)+"\n"
```

```python
import sys, struct
from asmlib import *

N=12500; E=800000; CH=3136; NSRC=256; NBIN=256
KW=703687442
LOG2E=1.4426950408889634; LN2=0.6931471805599453
def f2u(x): return struct.unpack('<I',struct.pack('<f',x))[0]
NEG_LOG2E=f2u(-LOG2E); NEG_LN2=f2u(-LN2)
SENT=0xFFFFFFFF; MARK=0xFFFFFFFE
CELLS=0; WOPS=NBIN*NSRC*128; WS_BYTES=WOPS+36*1024
P_W2=0; P_W4=8; P_W1=10; P_WH=18; P_WD=34; P_WX=35
OUT_BYTES=N*64*2+N*3*2; OUT_POS=N*64*2
CAP=576; CAPX=672
L_OH=0; L_CNT=128; L_NRES=160; L_RES=256; L_POS=1280; POS_SZ=74*1024
L_L0=L_POS+POS_SZ; L_L1=L_L0+8*CAPX*4; L_A2=L_L1+8*CAPX*2; L_HST=L_A2+8*2048; LDS2=L_HST+8*4096
assert LDS2<=163840, LDS2
LDS1=1024+32768+64

def srd(a, s, lo, hi, size):
    a(f"s_mov_b32 {s[0]}, {lo}")
    a(f"s_and_b32 {s[1]}, {hi}, 0xffff")
    a(f"s_mov_b32 {s[2]}, {size}")
    a(f"s_mov_b32 {s[3]}, 0x20000")

def S(i,n=1): return R('s',i,n)
def V(i,n=1): return R('v',i,n)

def gen_k1(a, opt):
    a.label("egnn_sort_kernel")
    sSRC=S(4,4); sDST=S(8,4); sWS=S(12,4); sW=S(16,4)
    sWave=S(33); sK=S(34); s3125=S(35)
    a("s_cmp_ge_u32 s2, 256")
    a("s_cbranch_scc1 K1_END")
    a("s_load_dwordx4 s[20:23], s[0:1], 24")
    a("s_load_dwordx2 s[24:25], s[0:1], 80")
    a("s_load_dwordx4 s[28:31], s[0:1], 40")
    a("s_load_dwordx2 s[26:27], s[0:1], 56")
    a.c("LDS init: image = sentinel, counters = 0")
    a("v_lshlrev_b32 v1, 5, v0")
    for i in range(4,8): a(f"v_mov_b32 v{i}, -1")
    a("ds_write_b128 v1, v[4:7] offset:1024")
    a("ds_write_b128 v1, v[4:7] offset:1040")
    a("v_and_b32 v2, 0xff, v0")
    a("v_lshlrev_b32 v2, 2, v2")
    a("v_mov_b32 v3, 0")
    a("ds_write_b32 v2, v3")
    a("v_lshrrev_b32 v2, 6, v0")
    a(f"s_mov_b32 {sK}, {KW}")
    a(f"v_readfirstlane_b32 {sWave}, v2")
    a(f"s_mov_b32 {s3125}, 3125")
    a("s_waitcnt lgkmcnt(0)")
    srd(a,sSRC,"s20","s21",E*4)
    srd(a,sDST,"s22","s23",E*4)
    srd(a,sWS,"s24","s25",WS_BYTES)
    a(f"s_cmp_gt_u32 {sWave}, 12")
    a("s_cbranch_scc1 K1_NOLOAD")
    a(f"s_mul_i32 s36, s2, {CH*4}")
    a("v_lshl_add_u32 v2, v0, 4, s36")
    a(f"buffer_load_dwordx4 v[8:11], v2, {sDST}, 0 offen nt")
    a(f"buffer_load_dwordx4 v[12:15], v2, {sSRC}, 0 offen nt")
    a(f"s_mov_b32 s37, {E*4}")
    a(f"v_cmp_gt_u32 vcc, {CH//4}, v0")
    a("v_cmp_gt_u32 s[38:39], s37, v2")
    a("s_nop 1")
    a("s_and_b64 s[40:41], vcc, s[38:39]")
    a("s_barrier")
    a.c("append edges")
    a("s_mov_b64 exec, s[40:41]")
    a("s_cbranch_execz K1_APPEND_DONE")
    a("v_mov_b32 v16, 511")
    a("v_mov_b32 v17, 1")
    a("v_mov_b32 v18, 32768")
    a("s_waitcnt vmcnt(0)")
    for u in range(4):
        d=f"v{8+u}"; s=f"v{12+u}"; W=f"v{20+u}"; B=f"v{24+u}"; Rr=f"v{28+u}"; RK=f"v{32+u}"
        a(f"v_mul_hi_u32 {W}, {d}, {sK}")
        a(f"v_lshl_or_b32 v38, v0, 2, {u}")
        a(f"v_mad_u32_u24 v36, {W}, {s3125}, v16")
        a(f"v_lshrrev_b32 {B}, 1, {W}")
        a(f"v_lshrrev_b32 v36, 9, v36")
        a(f"v_and_b32 {B}, 0x3fc, {B}")
        a(f"v_sub_u32 v36, {d}, v36")
        a(f"ds_add_rtn_u32 {RK}, {B}, v17")
        a(f"v_and_b32 v37, 7, {W}")
        a(f"v_lshl_or_b32 v36, v37, 3, v36")
        a(f"v_lshl_or_b32 {Rr}, {s}, 12, v38")
        a(f"v_lshl_or_b32 {Rr}, v36, 26, {Rr}")
    for u in range(4):
        B=f"v{24+u}"; Rr=f"v{28+u}"; RK=f"v{32+u}"
        a("s_waitcnt lgkmcnt(3)")
        a(f"v_cmp_gt_u32 vcc, 32, {RK}")
        a(f"v_lshlrev_b32 v36, 5, {B}")
        a(f"v_lshl_add_u32 v36, {RK}, 2, v36")
        a(f"v_cndmask_b32 v36, v18, v36, vcc")
        a(f"ds_write_b32 v36, {Rr} offset:1024")
    a.label("K1_APPEND_DONE")
    a("s_mov_b64 exec, -1")
    a("s_branch K1_JOIN")
    a.label("K1_NOLOAD")
    a("s_barrier")
    a(f"s_cmp_lg_u32 {sWave}, 15")
    a("s_cbranch_scc1 K1_JOIN")
    a("s_cmp_ge_u32 s2, 36")
    a("s_cbranch_scc1 K1_JOIN")
    a.c("weight operand piece s2")
    a("v_and_b32 v1, 63, v0")
    a("v_and_b32 v2, 31, v0")
    a("v_lshrrev_b32 v3, 5, v1")
    a("s_cmp_ge_u32 s2, 34")
    a("s_cbranch_scc1 K1_WSPECIAL")
    a("s_and_b32 s43, s2, 1")
    a(f"s_mov_b32 s44, {NEG_LOG2E}")
    srd(a,sW,"s28","s29",145*128)
    a("s_lshr_b32 s45, s2, 1")
    a("s_lshl_b32 s42, s45, 4")
    a("s_add_u32 s42, s42, 64")
    a("s_cmp_lt_u32 s2, 8")
    a("s_cbranch_scc1 K1_WGO")
    a("s_mov_b32 s42, 129")
    a("s_cmp_lt_u32 s2, 10")
    a("s_cbranch_scc1 K1_WGO")
    a("s_mov_b32 s44, 1.0")
    a("s_sub_u32 s45, s2, 10")
    a("s_lshr_b32 s45, s45, 1")
    a("s_lshl_b32 s42, s45, 4")
    a("s_cmp_lt_u32 s2, 18")
    a("s_cbranch_scc1 K1_WGO")
    srd(a,sW,"s26","s27",128*128)
    a("s_sub_u32 s45, s2, 18")
    a("s_lshr_b32 s45, s45, 1")
    a("s_lshl_b32 s42, s45, 4")
    a.label("K1_WGO")
    a("v_lshl_add_u32 v4, v3, 3, s42")
    a("v_lshlrev_b32 v4, 7, v4")
    a("s_lshl_b32 s45, s43, 5")
    a("v_add_u32 v5, s45, v2")
    a("v_lshl_add_u32 v4, v5, 1, v4")
    for t in range(8): a(f"v_mov_b32 v{8+t}, 0")
    for t in range(8): a(f"buffer_load_short_d16_hi v{8+t}, v4, {sW}, 0 offen offset:{t*128}")
    a("s_waitcnt vmcnt(0)")
    for t in range(8): a(f"v_mul_f32 v{8+t}, s44, v{8+t}")
    for r in range(4): a(f"v_cvt_pk_bf16_f32 v{20+r}, v{8+2*r}, v{9+2*r}")
    a("s_lshl_b32 s45, s2, 10")
    a(f"s_add_u32 s45, s45, {WOPS}")
    a("v_lshlrev_b32 v5, 4, v1")
    a(f"buffer_store_dwordx4 v[20:23], v5, {sWS}, s45 offen")
    a("s_branch K1_JOIN")
    a.label("K1_WSPECIAL")
    a("s_cmp_eq_u32 s2, 35")
    a("s_cbranch_scc1 K1_WX")
    srd(a,sW,"s28","s29",145*128)
    a("v_lshlrev_b32 v4, 1, v2")
    a("v_mov_b32 v8, 0")
    a("v_mov_b32 v9, 0")
    a(f"s_mov_b32 s45, {128*128}")
    a(f"buffer_load_short_d16_hi v8, v4, {sW}, s45 offen")
    a(f"buffer_load_short_d16_hi v9, v4, {sW}, s45 offen offset:64")
    a(f"s_mov_b32 s44, {NEG_LOG2E}")
    a("v_cmp_lt_u32 vcc, 31, v1")
    a("s_waitcnt vmcnt(0)")
    for x in range(2):
        v=f"v{8+x}"
        a(f"v_mul_f32 {v}, s44, {v}")
        a(f"v_cvt_pk_bf16_f32 v10, {v}, {v}")
        a(f"v_and_b32 v10, 0xffff0000, v10")
        a(f"v_sub_f32 v11, {v}, v10")
        a(f"v_cvt_pk_bf16_f32 v11, v11, v11")
        a(f"v_and_b32 v11, 0xffff0000, v11")
        a(f"s_nop 0")
        a(f"v_cndmask_b32 v{12+x}, v10, v11, vcc")
    a(f"s_mov_b32 s45, {WOPS+P_WD*1024}")
    a("v_lshlrev_b32 v5, 2, v1")
    a(f"buffer_store_dword v12, v5, {sWS}, s45 offen")
    a(f"buffer_store_dword v13, v5, {sWS}, s45 offen offset:256")
    a("s_branch K1_JOIN")
    a.label("K1_WX")
    srd(a,sW,"s30","s31",128)
    a("v_lshlrev_b32 v4, 1, v2")
    a("v_mov_b32 v8, 0")
    a("v_mov_b32 v9, 0")
    a(f"buffer_load_short_d16_hi v8, v4, {sW}, 0 offen")
    a(f"buffer_load_short_d16_hi v9, v4, {sW}, 0 offen offset:64")
    a(f"s_mov_b32 s44, {NEG_LN2}")
    a("s_waitcnt vmcnt(0)")
    a("v_mul_f32 v8, s44, v8")
    a("v_mul_f32 v9, s44, v9")
    a(f"s_mov_b32 s45, {WOPS+P_WX*1024}")
    a("v_lshlrev_b32 v5, 2, v1")
    a(f"buffer_store_dword v8, v5, {sWS}, s45 offen")
    a(f"buffer_store_dword v9, v5, {sWS}, s45 offen offset:256")
    a.label("K1_JOIN")
    a("s_waitcnt lgkmcnt(0)")
    a("s_barrier")
    a.c("copy image out: pieces t and t+1024 (16 B each)")
    a("v_lshlrev_b32 v1, 4, v0")
    a("v_lshrrev_b32 v2, 3, v0")
    a("v_lshlrev_b32 v3, 2, v2")
    a("ds_read_b128 v[4:7], v1 offset:1024")
    a(f"ds_read_b128 v[8:11], v1 offset:{1024+16384}")
    a("ds_read_b32 v12, v3")
    a("ds_read_b32 v13, v3 offset:512")
    a("v_and_b32 v14, 7, v0")
    a("v_cmp_eq_u32 vcc, 0, v14")
    a("v_mov_b32 v15, -1")
    a("v_lshlrev_b32 v16, 15, v2")
    a("v_cndmask_b32_e64 v17, -1, -2, vcc")
    a("v_lshl_add_u32 v16, v14, 4, v16")
    a("s_lshl_b32 s36, s2, 7")
    a(f"s_add_u32 s37, s36, {128*32768}")
    a("s_waitcnt lgkmcnt(0)")
    for k,(d,c,so) in enumerate(((4,12,"s36"),(8,13,"s37"))):
        a(f"v_cmp_lt_u32 vcc, 32, v{c}")
        a("s_nop 1")
        a(f"v_cndmask_b32 v{d}, v{d}, v17, vcc")
        for i in range(1,4): a(f"v_cndmask_b32 v{d+i}, v{d+i}, v15, vcc")
        a(f"buffer_store_dwordx4 v[{d}:{d+3}], v16, {sWS}, {so} offen")
    a.label("K1_END")
    a("s_endpgm")

def gen_k2(a, opt):
    DBG=opt.get('dbg',0)
    a.label("egnn_main_kernel")
    sH=S(4,4); sE=S(8,4); sW=S(12,4); sO=S(16,4); sP=S(20,4); sS=S(24,4); sD=S(28,4)
    sWave=S(32); sN0=S(33); sNJ=S(34); sN06=S(35); sNT=S(36); sT=S(37); sMode=S(38); sChunk=S(39)
    sMaskE=S(40); s128=S(41); sK=S(42); s3125=S(43); sFirst=S(44); sCnt=S(45); sTmp=S(46); sTmp2=S(47)
    sM0=S(48,4); sSave=S(52,2); sAny=S(54,2); sNR=S(56); sI=S(57); sC=S(58); sWsrc=S(59); sMark=S(60); s168=S(61); sHST=S(62); sTmp3=S(63)
    sMask=[S(64+2*i,2) for i in range(16)]
    vr=Regs(1,256,'v')
    vL=vr.alloc('lane')
    W2=vr.alloc('W2',32,4); WE=vr.alloc('WE',8,4); WA=vr.alloc('WA',8,4); D2=vr.alloc('D2',32,4)
    D1=vr.alloc('D1',32,4); HA=vr.alloc('HA',16,4); T=vr.alloc('T',16,4); M=vr.alloc('M',16,4)
    A2R=vr.alloc('A2R',8,4); EA=[vr.alloc('EA0',4,4),vr.alloc('EA1',4,4)]; OH=vr.alloc('OH',4,4)
    vHA=vr.alloc('vHA',4); vKD=vr.alloc('vKD',4); vTR=vr.alloc('vTR'); vE64=vr.alloc('vE64'); vHOFF=vr.alloc('vHOFF')
    vZ=vr.alloc('vZ',2,2); aL0=vr.alloc('aL0'); aL1s=vr.alloc('aL1s'); aL1d=vr.alloc('aL1d')
    LE=[vr.alloc('LE0'),vr.alloc('LE1')]; aA2=vr.alloc('aA2'); aA2n=vr.alloc('aA2n')
    SD=vr.alloc('SD',2,2); SS=vr.alloc('SS'); PS=vr.alloc('PS',3); PD=vr.alloc('PD',3)
    E01=vr.alloc('E01',2,2); DX=vr.alloc('DX',3); DD=vr.alloc('DD'); AD=vr.alloc('AD',4); vJ=vr.alloc('vJ'); vT0=vr.alloc('vT0'); vT1=vr.alloc('vT1'); vT2=vr.alloc('vT2'); vT3=vr.alloc('vT3')
    vOne=vr.alloc('vOne'); v511=vr.alloc('v511')
    nv=vr.next
    REC=D1[0:16]; WAD=D1[16:32]; RK=HA
    W1=D2
    HW=T
    WD=M[0:2]

    a("s_cmp_ge_u32 s2, 256")
    a("s_cbranch_scc1 K2_END")
    a("s_load_dwordx4 s[64:67], s[0:1], 0")
    a("s_load_dwordx2 s[68:69], s[0:1], 16")
    a("s_load_dwordx4 s[72:75], s[0:1], 24")
    a("s_load_dwordx2 s[70:71], s[0:1], 64")
    a("s_load_dwordx2 s[76:77], s[0:1], 80")
    if DBG:
        a("s_load_dwordx2 s[96:97], s[0:1], 72")
        a("s_memrealtime s[98:99]")
    a(f"v_and_b32 {vL}, 63, v0")
    a(f"v_lshrrev_b32 {vT0}, 6, v0")
    a(f"s_mov_b32 {sMaskE}, 0xffffffe0")
    a(f"v_readfirstlane_b32 {sWave}, {vT0}")
    a(f"s_mov_b32 {s128}, 128")
    a(f"s_mov_b32 {sK}, {KW}")
    a(f"s_mov_b32 {s3125}, 3125")
    a(f"s_mov_b32 {sMark}, {MARK}")
    a(f"s_mov_b32 {s168}, 168")
    a(f"s_mov_b32 {sFirst}, 1")
    a(f"s_mov_b32 {sMode}, 0")
    a(f"s_mov_b32 {sChunk}, 0")
    a(f"v_mov_b32 {vOne}, 1")
    a(f"v_mov_b32 {v511}, 511")
    a(f"v_mov_b32 {vZ[0]}, 0")
    a(f"v_mov_b32 {vZ[1]}, 0")
    for i in range(3):
        a(f"v_mov_b32 {PS[i]}, 0"); a(f"v_mov_b32 {PD[i]}, 0")
    a(f"s_lshl_b32 {sTmp}, s2, 3")
    a(f"s_add_u32 {sTmp}, {sTmp}, {sWave}")
    a(f"s_mul_i32 {sN0}, {sTmp}, 3125")
    a(f"s_add_u32 {sNJ}, {sN0}, {3125+511}")
    a(f"s_add_u32 {sN0}, {sN0}, 511")
    a(f"s_lshr_b32 {sN0}, {sN0}, 9")
    a(f"s_lshr_b32 {sNJ}, {sNJ}, 9")
    a(f"s_sub_u32 {sNJ}, {sNJ}, {sN0}")
    a(f"s_mul_i32 {sN06}, {sN0}, 6")
    a(f"s_lshl_b32 {sHST}, {sWave}, 12")
    a(f"s_add_u32 {sHST}, {sHST}, {L_HST}")
    for i in range(4): a(f"s_add_u32 {sM0[i]}, {sHST}, {1024*i}")
    a.c("LDS init: A2 matrix zero (2KB/wave), counters, onehot table")
    a(f"s_lshl_b32 {sTmp}, {sWave}, 11")
    a(f"s_add_u32 {sTmp}, {sTmp}, {L_A2}")
    for i in range(4): a(f"v_mov_b32 {T[i]}, 0")
    a(f"v_lshl_add_u32 {vT0}, {vL}, 5, {sTmp}")
    a(f"ds_write_b128 {vT0}, {T[0:4]}")
    a(f"ds_write_b128 {vT0}, {T[0:4]} offset:16")
    a(f"v_and_b32 {vT1}, 31, {vL}")
    a(f"v_lshl_add_u32 {vE64}, {vT1}, 6, {sTmp}")
    a(f"v_lshrrev_b32 {vT2}, 5, {vL}")
    a(f"v_lshlrev_b32 {vHOFF}, 4, {vT2}")
    a(f"v_bfe_u32 {vT0}, {vL}, 2, 2")
    a(f"v_lshl_add_u32 {vT0}, {vT2}, 2, {vT0}")
    a(f"v_lshl_add_u32 {vTR}, {vT0}, 6, {sTmp}")
    a(f"v_bfe_u32 {vT0}, {vL}, 4, 1")
    a(f"v_lshl_add_u32 {vTR}, {vT0}, 5, {vTR}")
    a(f"v_and_b32 {vT0}, 3, {vL}")
    a(f"v_lshl_add_u32 {vTR}, {vT0}, 3, {vTR}")
    a(f"v_and_b32 {vT0}, 3, {vT1}")
    a(f"v_bfe_u32 {vT3}, {vT1}, 4, 1")
    a(f"v_lshl_or_b32 {vT3}, {vT3}, 2, {vT0}")
    a(f"v_lshlrev_b32 {vT0}, 3, {vT0}")
    a(f"v_lshrrev_b32 {vJ}, 2, {vT1}")
    a(f"v_add_u32 {vT0}, {vT0}, {vJ}")
    a(f"v_lshl_add_u32 {vT0}, {vT0}, 7, {sHST}")
    for s_ in range(4):
        a(f"v_add_u32 {vJ}, {2*s_}, {vT2}")
        a(f"v_xor_b32 {vJ}, {vJ}, {vT3}")
        a(f"v_lshl_add_u32 {vHA[s_]}, {vJ}, 4, {vT0}")
    a(f"v_and_b32 {vT0}, 7, {vL}")
    a(f"v_lshlrev_b32 {vT3}, 2, {vT2}")
    a(f"v_xor_b32 {vT0}, {vT0}, {vT3}")
    for i in range(4):
        a(f"v_xor_b32 {vJ}, {i}, {vT0}")
        a(f"v_lshlrev_b32 {vKD[i]}, 4, {vJ}")
    a(f"s_cmp_lg_u32 {sWave}, 0")
    a("s_cbranch_scc1 K2_INIT_DONE")
    a(f"v_lshrrev_b32 {vT0}, 2, {vL}")
    a(f"v_and_b32 {vT1}, 3, {vL}")
    a(f"v_lshlrev_b32 {vT3}, 1, {vT1}")
    a(f"v_mov_b32 {vJ}, 0")
    a(f"v_cmp_eq_u32 vcc, {vT0}, {vT3}")
    a(f"v_mov_b32 {AD[0]}, 0x3f80")
    a(f"v_mov_b32 {AD[1]}, 0x3f800000")
    a(f"v_cndmask_b32 {vJ}, {vJ}, {AD[0]}, vcc")
    a(f"v_add_u32 {vT3}, 1, {vT3}")
    a(f"v_cmp_eq_u32 vcc, {vT0}, {vT3}")
    a("s_nop 1")
    a(f"v_cndmask_b32 {vJ}, {vJ}, {AD[1]}, vcc")
    a(f"v_cmp_eq_u32 vcc, 6, {vT0}")
    a(f"v_mov_b32 {AD[2]}, 0")
    a("s_nop 0")
    a(f"v_cndmask_b32 {AD[2]}, {AD[2]}, {AD[1]}, vcc")
    a(f"v_cmp_eq_u32 vcc, 3, {vT1}")
    a("s_nop 1")
    a(f"v_cndmask_b32 {vJ}, {vJ}, {AD[2]}, vcc")
    a(f"v_cmp_lt_u32 vcc, 31, {vL}")
    a(f"v_lshlrev_b32 {vT0}, 2, {vL}")
    a("s_nop 0")
    a(f"v_cndmask_b32 {vJ}, {vJ}, {vZ[0]}, vcc")
    a(f"ds_write_b32 {vT0}, {vJ}")
    a.label("K2_INIT_DONE")
    a("s_waitcnt lgkmcnt(0)")
    srd(a,sH,"s64","s65",N*128)
    srd(a,sP,"s66","s67",N*6)
    srd(a,sE,"s68","s69",E*32)
    srd(a,sO,"s70","s71",OUT_BYTES)
    srd(a,sS,"s72","s73",E*4)
    srd(a,sD,"s74","s75",E*4)
    srd(a,sW,"s76","s77",WS_BYTES)
    a.c("cells loads: 16 dwords per lane")
    a(f"s_lshl_b32 {sTmp}, s2, 15")
    a(f"s_lshl_b32 {sTmp2}, {sWave}, 8")
    a(f"s_add_u32 {sTmp}, {sTmp}, {sTmp2}")
    a(f"v_lshl_add_u32 {vT0}, {vL}, 2, {sTmp}")
    for s_ in range(16):
        if s_%2==0: a(f"s_mov_b32 {sTmp}, {CELLS+(s_//2)*4096}")
        a(f"buffer_load_dword {REC[s_]}, {vT0}, {sW}, {sTmp} offen offset:{(s_%2)*2048}")
    a.c("pos table -> LDS (10 DMA per wave)")
    a(f"v_lshlrev_b32 {vT1}, 4, {vL}")
    a(f"s_lshl_b32 {sTmp2}, {sWave}, 10")
    for k in range(10):
        if k<9:
            a(f"s_add_u32 {sTmp}, {sTmp2}, {k*8192}")
        else:
            a(f"s_cmp_lt_u32 {sWave}, 2")
            a(f"s_cselect_b32 {sTmp}, 8192, 0")
            a(f"s_add_u32 {sTmp}, {sTmp}, {8*8192}")
            a(f"s_add_u32 {sTmp}, {sTmp}, {sTmp2}")
        a(f"s_add_u32 {sTmp3}, {sTmp}, {L_POS}")
        a(f"s_mov_b32 m0, {sTmp3}")
        a("s_nop 0")
        a(f"buffer_load_dwordx4 {vT1}, {sP}, {sTmp} offen lds")
    a.c("W1 operands, window h rows, WD, W2, W4")
    for p in range(8):
        s_,x=p>>1,p&1
        a(f"s_mov_b32 {sTmp}, {WOPS+(P_W1+p)*1024}")
        a(f"buffer_load_dwordx4 {W1[(s_*2+x)*4:(s_*2+x)*4+4]}, {vT1}, {sW}, {sTmp} offen")
    a(f"v_bfe_u32 {vT0}, {vL}, 3, 1")
    a(f"v_and_b32 {vT2}, 3, {vL}")
    a(f"v_lshl_add_u32 {vT0}, {vT0}, 2, {vT2}")
    a(f"s_sub_u32 {sTmp}, {sNJ}, 1")
    a(f"v_min_u32 {vT0}, {sTmp}, {vT0}")
    a(f"v_add_u32 {vT0}, {sN0}, {vT0}")
    a(f"v_lshl_add_u32 {vT0}, {vT0}, 7, {vHOFF}")
    for s_ in range(4):
        a(f"buffer_load_dwordx4 {HW[4*s_:4*s_+4]}, {vT0}, {sH}, 0 offen offset:{32*s_}")
    a(f"v_lshlrev_b32 {vT2}, 2, {vL}")
    a(f"s_mov_b32 {sTmp}, {WOPS+P_WD*1024}")
    a(f"buffer_load_dword {WD[0]}, {vT2}, {sW}, {sTmp} offen")
    a(f"buffer_load_dword {WD[1]}, {vT2}, {sW}, {sTmp} offen offset:256")
    for p in range(8):
        a(f"s_mov_b32 {sTmp}, {WOPS+(P_W2+p)*1024}")
        a(f"buffer_load_dwordx4 {W2[p*4:p*4+4]}, {vT1}, {sW}, {sTmp} offen")
    for p in range(2):
        a(f"s_mov_b32 {sTmp}, {WOPS+(P_W4+p)*1024}")
        a(f"buffer_load_dwordx4 {WE[p*4:p*4+4]}, {vT1}, {sW}, {sTmp} offen")
    a("s_barrier")
    a.c("append cell records to the window lists")
    a("s_waitcnt vmcnt(34)")
    a(f"s_mov_b64 {sAny}, 0")
    for s_ in range(16):
        a(f"v_cmp_gt_u32 {sMask[s_]}, {sMark}, {REC[s_]}")
        a(f"v_cmp_eq_u32 vcc, {sMark}, {REC[s_]}")
        a(f"v_lshrrev_b32 {WAD[s_]}, 27, {REC[s_]}")
        a(f"v_and_b32 {WAD[s_]}, 0x1c, {WAD[s_]}")
        a(f"s_or_b64 {sAny}, {sAny}, vcc")
    for s_ in range(16):
        a(f"s_mov_b64 exec, {sMask[s_]}")
        a(f"ds_add_rtn_u32 {RK[s_]}, {WAD[s_]}, {vOne} offset:{L_CNT}")
        if s_==7: a("s_waitcnt lgkmcnt(4)")
    a("s_mov_b64 exec, -1")
    a(f"s_lshl_b32 {sTmp}, {sWave}, 1")
    a(f"v_lshrrev_b32 {vT0}, 5, {vL}")
    a(f"v_add_u32 {vT0}, {sTmp}, {vT0}")
    a(f"v_mul_u32_u24 {vT0}, {CH}, {vT0}")
    a(f"v_mov_b32 {vT1}, {L_L0}")
    a(f"v_mov_b32 {vT2}, {L_L1}")
    a("s_waitcnt lgkmcnt(0)")
    for s_ in range(16):
        a(f"s_mov_b64 exec, {sMask[s_]}")
        a(f"s_mov_b32 {sTmp}, {s_*16*CH}")
        a(f"v_min_u32 {RK[s_]}, {CAPX-1}, {RK[s_]}")
        a(f"v_and_b32 {vT3}, 0xfff, {REC[s_]}")
        a(f"v_mad_u32_u24 {RK[s_]}, {WAD[s_]}, {s168}, {RK[s_]}")
        a(f"v_add3_u32 {vT3}, {vT3}, {vT0}, {sTmp}")
        a(f"v_bfe_u32 {vJ}, {REC[s_]}, 26, 3")
        a(f"v_lshl_add_u32 {AD[0]}, {RK[s_]}, 2, {vT1}")
        a(f"v_lshl_or_b32 {vT3}, {vT3}, 5, {vJ}")
        a(f"v_lshl_add_u32 {AD[1]}, {RK[s_]}, 1, {vT2}")
        a(f"v_bfe_u32 {vJ}, {REC[s_]}, 12, 14")
        a(f"ds_write_b32 {AD[0]}, {vT3}")
        a(f"ds_write_b16 {AD[1]}, {vJ}")
    a("s_mov_b64 exec, -1")
    a.c("overflowed cells -> rescan list (rare)")
    a(f"s_cmp_eq_u64 {sAny}, 0")
    a("s_cbranch_scc1 K2_NOMARK")
    a(f"v_lshrrev_b32 {vT0}, 5, {vL}")
    a(f"s_lshl_b32 {sTmp}, {sWave}, 1")
    a(f"v_add_u32 {vT0}, {sTmp}, {vT0}")
    a(f"v_mov_b32 {vT1}, {L_NRES}")
    for s_ in range(16):
        a(f"v_cmp_eq_u32 vcc, {sMark}, {REC[s_]}")
        a(f"s_and_saveexec_b64 {sSave}, vcc")
        a(f"s_cbranch_execz K2_MK{s_}")
        a(f"ds_add_rtn_u32 {vT2}, {vT1}, {vOne}")
        a(f"v_add_u32 {vT3}, {16*s_}, {vT0}")
        a("s_waitcnt lgkmcnt(0)")
        a(f"v_lshlrev_b32 {vT2}, 2, {vT2}")
        a(f"ds_write_b32 {vT2}, {vT3} offset:{L_RES}")
        a.label(f"K2_MK{s_}")
        a(f"s_mov_b64 exec, {sSave}")
    a.label("K2_NOMARK")
    a("s_waitcnt vmcnt(24) lgkmcnt(0)")
    a("s_barrier")
    a.c("rescan?")
    a(f"v_mov_b32 {vT0}, {L_NRES}")
    a(f"ds_read_b32 {vT1}, {vT0}")
    a("s_waitcnt lgkmcnt(0)")
    a(f"v_readfirstlane_b32 {sNR}, {vT1}")
    a("s_nop 3")
    a(f"s_min_u32 {sNR}, {sNR}, 256")
    a(f"s_cmp_eq_u32 {sNR}, 0")
    a("s_cbranch_scc1 K2_CHECK")
    a(f"s_mov_b32 {sI}, 0")
    a.label("K2_RESCAN_I")
    a(f"s_lshl_b32 {sTmp}, {sI}, 2")
    a(f"s_add_u32 {sTmp}, {sTmp}, {L_RES}")
    a(f"v_mov_b32 {vT0}, {sTmp}")
    a(f"ds_read_b32 {vT1}, {vT0}")
    a("s_waitcnt lgkmcnt(0)")
    a(f"v_readfirstlane_b32 {sWsrc}, {vT1}")
    a("s_nop 3")
    a(f"s_min_u32 {sWsrc}, {sWsrc}, 255")
    a(f"s_mov_b32 {sC}, 0")
    a.label("K2_RESCAN_C")
    def append_raw(lim_local):
        a(f"v_lshlrev_b32 {vT1}, 2, {vT0}")
        a(f"buffer_load_dword {AD[0]}, {vT1}, {sD}, 0 offen")
        a(f"buffer_load_dword {AD[1]}, {vT1}, {sS}, 0 offen")
        a("s_waitcnt vmcnt(0)")
        a(f"v_mul_hi_u32 {vT2}, {AD[0]}, {sK}")
        a(f"v_lshrrev_b32 {vT3}, 3, {vT2}")
        a(f"v_cmp_eq_u32 vcc, s2, {vT3}")
        a("s_nop 1")
        a(f"s_and_b64 vcc, vcc, {sAny}")
        a(f"s_and_saveexec_b64 {sSave}, vcc")
        a(f"s_cbranch_execz {lim_local}")
        a(f"v_mad_u32_u24 {vT3}, {vT2}, {s3125}, {v511}")
        a(f"v_and_b32 {vT2}, 7, {vT2}")
        a(f"v_lshrrev_b32 {vT3}, 9, {vT3}")
        a(f"v_lshlrev_b32 {vT2}, 2, {vT2}")
        a(f"v_sub_u32 {vT3}, {AD[0]}, {vT3}")
        a(f"ds_add_rtn_u32 {AD[2]}, {vT2}, {vOne} offset:{L_CNT}")
        a(f"v_lshl_or_b32 {vT0}, {vT0}, 5, {vT3}")
        a("s_waitcnt lgkmcnt(0)")
        a(f"v_min_u32 {AD[2]}, {CAPX-1}, {AD[2]}")
        a(f"v_mad_u32_u24 {AD[2]}, {vT2}, {s168}, {AD[2]}")
        a(f"v_mov_b32 {vT2}, {L_L0}")
        a(f"v_mov_b32 {vT3}, {L_L1}")
        a(f"v_lshl_add_u32 {vT2}, {AD[2]}, 2, {vT2}")
        a(f"v_lshl_add_u32 {vT3}, {AD[2]}, 1, {vT3}")
        a(f"ds_write_b32 {vT2}, {vT0}")
        a(f"ds_write_b16 {vT3}, {AD[1]}")
        a.label(lim_local)
        a(f"s_mov_b64 exec, {sSave}")
    a(f"s_lshl_b32 {sTmp}, {sC}, 9")
    a(f"v_add_u32 {vT1}, {sTmp}, v0")
    a(f"s_mul_i32 {sTmp2}, {sWsrc}, {CH}")
    a(f"v_add_u32 {vT0}, {sTmp2}, {vT1}")
    a(f"v_cmp_gt_u32 vcc, {CH}, {vT1}")
    a(f"s_mov_b32 {sTmp}, {E}")
    a(f"v_cmp_gt_u32 {sAny}, {sTmp}, {vT0}")
    a("s_nop 1")
    a(f"s_and_b64 {sAny}, {sAny}, vcc")
    append_raw("K2_RA1")
    a(f"s_add_u32 {sC}, {sC}, 1")
    a(f"s_cmp_lt_u32 {sC}, 7")
    a("s_cbranch_scc1 K2_RESCAN_C")
    a(f"s_add_u32 {sI}, {sI}, 1")
    a(f"s_cmp_lt_u32 {sI}, {sNR}")
    a("s_cbranch_scc1 K2_RESCAN_I")
    a("s_waitcnt lgkmcnt(0)")
    a("s_barrier")
    a.label("K2_CHECK")
    a(f"v_and_b32 {vT0}, 7, {vL}")
    a(f"v_lshlrev_b32 {vT0}, 2, {vT0}")
    a(f"ds_read_b32 {vT1}, {vT0} offset:{L_CNT}")
    a("s_waitcnt lgkmcnt(0)")
    a(f"v_cmp_lt_u32 vcc, {CAP}, {vT1}")
    a(f"v_readlane_b32 {sCnt}, {vT1}, {sWave}")
    a("s_nop 3")
    a("s_cmp_eq_u64 vcc, 0")
    a("s_cbranch_scc1 K2_MAIN")
    a.c("generic (slow) mode: raw scan of all edges, 512 per round")
    a(f"s_mov_b32 {sMode}, 1")
    a.label("K2_GEN")
    a("s_barrier")
    a(f"s_cmp_lg_u32 {sWave}, 0")
    a("s_cbranch_scc1 K2_GEN1")
    a(f"v_and_b32 {vT0}, 7, {vL}")
    a(f"v_lshlrev_b32 {vT0}, 2, {vT0}")
    a(f"ds_write_b32 {vT0}, {vZ[0]} offset:{L_CNT}")
    a("s_waitcnt lgkmcnt(0)")
    a.label("K2_GEN1")
    a("s_barrier")
    a(f"s_lshl_b32 {sTmp}, {sChunk}, 9")
    a(f"v_add_u32 {vT0}, {sTmp}, v0")
    a(f"s_mov_b32 {sTmp}, {E}")
    a(f"v_cmp_gt_u32 {sAny}, {sTmp}, {vT0}")
    a("s_nop 1")
    append_raw("K2_RA2")
    a("s_waitcnt lgkmcnt(0)")
    a("s_barrier")
    a(f"s_lshl_b32 {sTmp}, {sWave}, 2")
    a(f"v_mov_b32 {vT0}, {sTmp}")
    a(f"ds_read_b32 {vT1}, {vT0} offset:{L_CNT}")
    a("s_waitcnt lgkmcnt(0)")
    a(f"v_readfirstlane_b32 {sCnt}, {vT1}")
    a("s_nop 3")
    a.label("K2_MAIN")
    a(f"s_min_u32 {sCnt}, {sCnt}, {CAP}")
    a(f"s_add_u32 {sNT}, {sCnt}, 31")
    a(f"s_lshr_b32 {sNT}, {sNT}, 5")
    a(f"s_mul_i32 {sTmp}, {sWave}, {CAPX*4}")
    a(f"s_add_u32 {sTmp}, {sTmp}, {L_L0}")
    a(f"s_mul_i32 {sTmp2}, {sWave}, {CAPX*2}")
    a(f"s_add_u32 {sTmp2}, {sTmp2}, {L_L1}")
    a(f"v_add_u32 {vT0}, {sCnt}, {vL}")
    a(f"v_lshl_add_u32 {vT1}, {vT0}, 2, {sTmp}")
    a(f"v_lshl_add_u32 {vT2}, {vT0}, 1, {sTmp2}")
    a(f"v_mov_b32 {vT3}, 7")
    a(f"ds_write_b32 {vT1}, {vT3}")
    a(f"ds_write_b16 {vT2}, {vZ[0]}")
    a("s_mov_b32 exec_hi, 0")
    a(f"ds_write_b32 {vT1}, {vT3} offset:256")
    a(f"ds_write_b16 {vT2}, {vZ[0]} offset:128")
    a("s_mov_b64 exec, -1")
    a(f"v_and_b32 {vT0}, 31, {vL}")
    a(f"v_lshl_add_u32 {aL0}, {vT0}, 2, {sTmp}")
    a(f"v_lshl_add_u32 {aL1s}, {vT0}, 1, {sTmp2}")
    a(f"v_lshrrev_b32 {vT0}, 3, {vL}")
    a(f"v_lshl_add_u32 {aL1d}, {vT0}, 3, {sTmp2}")
    a(f"ds_read_b32 {LE[0]}, {aL0}")
    a(f"ds_read_b32 {LE[1]}, {aL0} offset:128")
    a(f"ds_read_b64 {SD}, {aL1d}")
    a(f"ds_read_u16 {SS}, {aL1s}")
    a("s_waitcnt lgkmcnt(0)")
    def issue_E(p):
        a(f"v_and_or_b32 {vT0}, {LE[p]}, {sMaskE}, {vHOFF}")
        a(f"buffer_load_dwordx4 {EA[p]}, {vT0}, {sE}, 0 offen{' nt' if opt.get('e_nt',0) else ''}")
    def calc_H():
        for i in range(4):
            a(f"v_mad_u32_u16 {AD[i]}, {SD[i>>1]}, {s128}, {vKD[i]}"+(" op_sel:[1,0,0,0]" if i&1 else ""))
    def issue_H(i):
        a(f"s_mov_b32 m0, {sM0[i]}")
        a("s_nop 0")
        a(f"buffer_load_dwordx4 {AD[i]}, {sH}, 0 offen lds")
    issue_E(0)
    calc_H()
    for i in range(4): issue_H(i)
    issue_E(1)
    a.c("one-time: window operand A' and D2 init")
    a(f"s_cmp_eq_u32 {sFirst}, 0")
    a("s_cbranch_scc1 K2_NOSETUP")
    a(f"s_mov_b32 {sFirst}, 0")
    a("s_waitcnt vmcnt(16)")
    for x in range(2):
        for s_ in range(4):
            c = "0" if s_==0 else f"{D1[16*x:16*x+16]}"
            a(f"v_mfma_f32_32x32x16_bf16 {D1[16*x:16*x+16]}, {HW[4*s_:4*s_+4]}, {W1[(s_*2+x)*4:(s_*2+x)*4+4]}, {c}")
    a.nop(16)
    a(f"s_mov_b32 {sTmp}, {NEG_LOG2E}")
    a(f"v_cmp_lt_u32 vcc, 31, {vL}")
    a(f"v_mov_b32 {vJ}, 0xffff")
    for x in range(2):
        for r in range(4):
            q0,q1=D1[16*x+2*r],D1[16*x+2*r+1]
            a(f"v_mul_f32 {q0}, {sTmp}, {q0}")
            a(f"v_mul_f32 {q1}, {sTmp}, {q1}")
            a(f"v_cvt_pk_bf16_f32 {vT0}, {q0}, {q1}")
            a(f"v_lshlrev_b32 {vT1}, 16, {vT0}")
            a(f"v_and_b32 {vT2}, 0xffff0000, {vT0}")
            a(f"v_sub_f32 {vT1}, {q0}, {vT1}")
            a(f"v_sub_f32 {vT2}, {q1}, {vT2}")
            a(f"v_cvt_pk_bf16_f32 {vT1}, {vT1}, {vT2}")
            a(f"v_cndmask_b32 {WA[4*x+r]}, {vT0}, {vT1}, vcc")
        a(f"v_bfi_b32 {WA[4*x+3]}, {vJ}, {WA[4*x+3]}, {WD[x]}")
    for i in range(32): a(f"v_mov_b32 {D2[i]}, 0")
    a.label("K2_NOSETUP")
    a(f"s_cmp_eq_u32 {sNT}, 0")
    a("s_cbranch_scc1 K2_MAIN_EXIT0")
    def P_addr(le):
        a(f"v_and_b32 {vJ}, 7, {le}")
        a(f"v_mul_u32_u24 {vT1}, 6, {SS}")
        a(f"v_mad_u32_u24 {vT2}, {vJ}, 6, {sN06}")
        a(f"v_lshlrev_b32 {vT3}, 4, {vJ}")
        a(f"v_lshl_add_u32 {aA2n}, {vJ}, 3, {vE64}")
    def P_reads():
        for c in range(3): a(f"ds_read_u16_d16_hi {PS[c]}, {vT1} offset:{L_POS+2*c}")
        for c in range(3): a(f"ds_read_u16_d16_hi {PD[c]}, {vT2} offset:{L_POS+2*c}")
        a(f"ds_read_b128 {OH}, {vT3} offset:{L_OH}")
    def P_calc():
        for c in range(3): a(f"v_sub_f32 {DX[c]}, {PD[c]}, {PS[c]}")
        a(f"v_mul_f32 {DD}, {DX[0]}, {DX[0]}")
        a(f"v_cvt_pk_bf16_f32 {E01[0]}, 1.0, {DX[0]}")
        a(f"v_fmac_f32 {DD}, {DX[1]}, {DX[1]}")
        a(f"v_cvt_pk_bf16_f32 {E01[1]}, {DX[1]}, {DX[2]}")
        a(f"v_fmac_f32 {DD}, {DX[2]}, {DX[2]}")
        a(f"v_mov_b32 {aA2}, {aA2n}")
        a(f"ds_write_b64 {aA2n}, {E01}")
        a(f"v_cvt_pk_bf16_f32 {OH[3]}, {OH[3]}, {DD}")
    P_addr(LE[0]); P_reads()
    a("s_waitcnt lgkmcnt(0)")
    P_calc()
    a(f"s_mov_b32 {sT}, 0")
    a("s_waitcnt vmcnt(6)")
    def mfma(d,A,B,c): a(f"v_mfma_f32_32x32x16_bf16 {d}, {A}, {B}, {c}")
    Da,Db=D1[0:16],D1[16:32]
    def silu(Dx,Mx,mid=None):
        for i in range(16): a(f"v_exp_f32 {T[i]}, {Dx[i]}")
        if mid: mid()
        for i in range(16): a(f"v_add_f32 {T[i]}, 1.0, {T[i]}")
        for i in range(16): a(f"v_rcp_f32 {T[i]}, {T[i]}")
        for i in range(16): a(f"v_mul_f32 {T[i]}, {Dx[i]}, {T[i]}")
        for i in range(8): a(f"v_cvt_pk_bf16_f32 {Mx[i]}, {T[2*i]}, {T[2*i+1]}")
    def tile(p):
        a("s_waitcnt vmcnt(1)")
        for s_ in range(4): a(f"ds_read_b128 {HA[4*s_:4*s_+4]}, {vHA[s_]}")
        a(f"ds_read_b64 {SD}, {aL1d} offset:{64*(p+1)}")
        a(f"ds_read_u16 {SS}, {aL1s} offset:{64*(p+1)}")
        mfma(Da,OH,WA[0:4],"0")
        mfma(Db,OH,WA[4:8],"0")
        mfma(Da,EA[p],WE[0:4],Da)
        mfma(Db,EA[p],WE[4:8],Db)
        a(f"ds_read_b32 {LE[p]}, {aL0} offset:{128*(p+2)}")
        a("s_waitcnt lgkmcnt(3)")
        mfma(Da,HA[0:4],W2[0:4],Da)
        a("s_waitcnt lgkmcnt(0)")
        calc_H()
        mfma(Da,HA[4:8],W2[8:12],Da)
        issue_H(0); issue_H(1)
        mfma(Da,HA[8:12],W2[16:20],Da)
        issue_H(2); issue_H(3)
        mfma(Da,HA[12:16],W2[24:28],Da)
        issue_E(p)
        P_addr(LE[1-p])
        mfma(Db,HA[0:4],W2[4:8],Db)
        P_reads()
        mfma(Db,HA[4:8],W2[12:16],Db)
        for k in range(4): a(f"ds_read_b64_tr_b16 {A2R[2*k:2*k+2]}, {vTR} offset:{512*k}")
        a(f"ds_write_b64 {aA2}, {vZ}")
        mfma(Db,HA[8:12],W2[20:24],Db)
        mfma(Db,HA[12:16],W2[28:32],Db)
        def mid():
            a("s_waitcnt lgkmcnt(0)")
            P_calc()
        silu(Da,M[0:8],mid)
        a.nop(2)
        mfma(D2[0:16],A2R[0:4],M[0:4],D2[0:16])
        mfma(D2[0:16],A2R[4:8],M[4:8],D2[0:16])
        silu(Db,M[8:16])
        a.nop(2)
        mfma(D2[16:32],A2R[0:4],M[8:12],D2[16:32])
        mfma(D2[16:32],A2R[4:8],M[12:16],D2[16:32])
    a(".p2align 6")
    a.label("K2_LOOP")
    tile(0)
    a(f"s_add_u32 {sT}, {sT}, 1")
    a(f"s_cmp_ge_u32 {sT}, {sNT}")
    a("s_cbranch_scc1 K2_MAIN_EXIT")
    tile(1)
    a(f"v_add_u32 {aL0}, 256, {aL0}")
    a(f"v_add_u32 {aL1s}, 128, {aL1s}")
    a(f"v_add_u32 {aL1d}, 128, {aL1d}")
    a(f"s_add_u32 {sT}, {sT}, 1")
    a(f"s_cmp_lt_u32 {sT}, {sNT}")
    a("s_cbranch_scc1 K2_LOOP")
    a.label("K2_MAIN_EXIT")
    a(f"ds_write_b64 {aA2}, {vZ}")
    a.label("K2_MAIN_EXIT0")
    a("s_waitcnt vmcnt(0) lgkmcnt(0)")
    a(f"s_cmp_eq_u32 {sMode}, 0")
    a("s_cbranch_scc1 K2_EPI")
    a(f"s_add_u32 {sChunk}, {sChunk}, 1")
    a(f"s_cmp_lt_u32 {sChunk}, {(E+511)//512}")
    a("s_cbranch_scc1 K2_GEN")
    a.label("K2_EPI")
    WHa=W2; WHb=[T,M]
    a(f"v_lshlrev_b32 {vT1}, 4, {vL}")
    for p in range(16):
        s_,x=p>>1,p&1
        dst = W2[p*4:p*4+4] if p<8 else (T[(p-8)*4:(p-8)*4+4] if p<12 else M[(p-12)*4:(p-12)*4+4])
        a(f"s_mov_b32 {sTmp}, {WOPS+(P_WH+p)*1024}")
        a(f"buffer_load_dwordx4 {dst}, {vT1}, {sW}, {sTmp} offen")
    a(f"v_and_b32 {vT0}, 7, {vL}")
    a(f"s_sub_u32 {sTmp}, {sNJ}, 1")
    a(f"v_min_u32 {vT2}, {sTmp}, {vT0}")
    a(f"v_add_u32 {vT2}, {sN0}, {vT2}")
    a(f"v_lshl_add_u32 {vT2}, {vT2}, 7, {vHOFF}")
    for s_ in range(4):
        a(f"buffer_load_dwordx4 {HA[4*s_:4*s_+4]}, {vT2}, {sH}, 0 offen offset:{32*s_}")
    a(f"v_lshlrev_b32 {vT2}, 2, {vL}")
    a(f"s_mov_b32 {sTmp}, {WOPS+P_WX*1024}")
    a(f"buffer_load_dword {DX[0]}, {vT2}, {sW}, {sTmp} offen")
    a(f"buffer_load_dword {DX[1]}, {vT2}, {sW}, {sTmp} offen offset:256")
    HV=WA
    a(f"v_lshrrev_b32 {vT2}, 5, {vL}")
    a(f"v_lshlrev_b32 {vT2}, 2, {vT2}")
    a(f"v_add_u32 {vT3}, {sN0}, {vT2}")
    a(f"v_and_b32 {vJ}, 31, {vL}")
    a(f"v_lshlrev_b32 {vT3}, 7, {vT3}")
    a(f"v_lshl_add_u32 {aL0}, {vJ}, 1, {vT3}")
    for i in range(8): a(f"v_mov_b32 {HV[i]}, 0")
    for x in range(2):
        for q in range(4):
            a(f"buffer_load_short_d16_hi {HV[4*x+q]}, {aL0}, {sH}, 0 offen offset:{q*128+x*64}")
    a.nop(8)
    a(f"s_mov_b32 {sTmp}, {NEG_LN2}")
    a(f"v_lshrrev_b32 {vT2}, 5, {vL}")
    a(f"v_lshlrev_b32 {vT2}, 7, {vT2}")
    a(f"v_lshl_add_u32 {vT2}, {vJ}, 1, {vT2}")
    a(f"v_add_u32 {vT2}, {sHST}, {vT2}")
    for qq in range(4):
        a(f"v_mul_f32 {AD[0]}, {sTmp}, {D2[4*qq]}")
        a(f"v_mul_f32 {AD[1]}, {sTmp}, {D2[16+4*qq]}")
        a(f"v_cvt_pk_bf16_f32 {AD[2]}, {AD[0]}, {AD[1]}")
        a(f"ds_write_b16 {vT2}, {AD[2]} offset:{qq*256}")
        a(f"ds_write_b16_d16_hi {vT2}, {AD[2]} offset:{qq*256+64}")
    a(f"v_lshl_add_u32 {vT0}, {vT0}, 7, {vHOFF}")
    a(f"v_add_u32 {vT0}, {sHST}, {vT0}")
    MA=[EA[0],EA[1],A2R[0:4],A2R[4:8]]
    for s_ in range(4): a(f"ds_read_b128 {MA[s_]}, {vT0} offset:{32*s_}")
    a("s_waitcnt vmcnt(8)")
    PP=D1
    for qq in range(4):
        for c in range(1,4):
            r=PP[qq*3+c-1]
            a(f"v_mul_f32 {r}, {DX[0]}, {D2[4*qq+c]}")
            a(f"v_fmac_f32 {r}, {DX[1]}, {D2[16+4*qq+c]}")
    for sh in (1,2,4,8):
        for i in range(12): a(f"v_add_f32_dpp {PP[i]}, {PP[i]}, {PP[i]} row_shr:{sh} row_mask:0xf bank_mask:0xf bound_ctrl:0")
    for i in range(12): a(f"v_add_f32_dpp {PP[i]}, {PP[i]}, {PP[i]} row_bcast:15 row_mask:0xa bank_mask:0xf")
    a(f"v_lshrrev_b32 {vT2}, 5, {vL}")
    a(f"v_lshlrev_b32 {vT2}, 4, {vT2}")
    a(f"s_add_u32 {sTmp}, {sHST}, 2048")
    a(f"v_add_u32 {vT2}, {sTmp}, {vT2}")
    a("s_mov_b32 exec_lo, 0x80000000")
    a("s_mov_b32 exec_hi, 0x80000000")
    for qq in range(4):
        for c in range(3):
            a(f"ds_write_b32 {vT2}, {PP[qq*3+c]} offset:{qq*32+c*4}")
    a("s_mov_b64 exec, -1")
    a(f"v_mul_u32_u24 {vT2}, 86, {vL}")
    a(f"v_lshrrev_b32 {vT2}, 8, {vT2}")
    a(f"v_mul_u32_u24 {vT3}, 3, {vT2}")
    a(f"v_sub_u32 {vT3}, {vL}, {vT3}")
    a(f"v_lshlrev_b32 {vT2}, 4, {vT2}")
    a(f"v_lshl_add_u32 {vT2}, {vT3}, 2, {vT2}")
    a(f"v_add_u32 {vT2}, {sTmp}, {vT2}")
    a(f"v_min_u32 {vT2}, {LDS2-4}, {vT2}")
    a(f"ds_read_b32 {AD[0]}, {vT2}")
    a(f"v_lshl_add_u32 {vT3}, {vL}, 1, {sN06}")
    a(f"v_min_u32 {vT2}, {POS_SZ-2}, {vT3}")
    a(f"ds_read_u16_d16_hi {PS[0]}, {vT2} offset:{L_POS}")
    a(f"s_mul_i32 {sTmp}, {sNJ}, 3")
    a(f"v_cmp_gt_u32 vcc, {sTmp}, {vL}")
    a(f"v_add_u32 {vT3}, {OUT_POS}, {vT3}")
    a(f"v_mov_b32 {vT2}, 0x40000000")
    a("s_waitcnt lgkmcnt(0)")
    a(f"v_cndmask_b32 {vT3}, {vT2}, {vT3}, vcc")
    a(f"v_add_f32 {AD[0]}, {AD[0]}, {PS[0]}")
    a(f"v_cvt_pk_bf16_f32 {AD[0]}, {AD[0]}, {AD[0]}")
    a(f"buffer_store_short {AD[0]}, {vT3}, {sO}, 0 offen")
    a("s_waitcnt vmcnt(1)")
    for x in range(2):
        for s_ in range(8):
            p=2*s_+x
            B = W2[p*4:p*4+4] if p<8 else (T[(p-8)*4:(p-8)*4+4] if p<12 else M[(p-12)*4:(p-12)*4+4])
            A_ = HA[4*s_:4*s_+4] if s_<4 else MA[s_-4]
            c = "0" if s_==0 else f"{D1[16*x:16*x+16]}"
            a(f"v_mfma_f32_32x32x16_bf16 {D1[16*x:16*x+16]}, {A_}, {B}, {c}")
    a.nop(16)
    a(f"s_mov_b32 {sTmp}, {NEG_LOG2E}")
    X=[D1[q] for q in range(4)]+[D1[16+q] for q in range(4)]
    TT=[D2[i] for i in range(8)]
    for i in range(8): a(f"v_mul_f32 {TT[i]}, {sTmp}, {X[i]}")
    for i in range(8): a(f"v_exp_f32 {TT[i]}, {TT[i]}")
    for i in range(8): a(f"v_add_f32 {TT[i]}, 1.0, {TT[i]}")
    for i in range(8): a(f"v_rcp_f32 {TT[i]}, {TT[i]}")
    a("s_nop 0")
    for i in range(8): a(f"v_fma_f32 {TT[i]}, {X[i]}, {TT[i]}, {HV[i]}")
    a(f"v_lshrrev_b32 {vT2}, 5, {vL}")
    a(f"v_lshlrev_b32 {vT2}, 2, {vT2}")
    a(f"v_mov_b32 {vT3}, 0x40000000")
    for q in range(4):
        a(f"v_add_u32 {vT1}, {q}, {vT2}")
        a(f"v_cmp_gt_u32 vcc, {sNJ}, {vT1}")
        a(f"v_cvt_pk_bf16_f32 {AD[0]}, {TT[q]}, {TT[4+q]}")
        a("s_nop 0")
        a(f"v_cndmask_b32 {vT1}, {vT3}, {aL0}, vcc")
        a(f"buffer_store_short {AD[0]}, {vT1}, {sO}, 0 offen offset:{q*128}")
        a(f"buffer_store_short_d16_hi {AD[0]}, {vT1}, {sO}, 0 offen offset:{q*128+64}")
        a("s_nop 1")
    if DBG:
        a("s_waitcnt vmcnt(0)")
        a("s_memrealtime s[100:101]")
    a.label("K2_END")
    a("s_endpgm")
    return nv

HEADER='''; Kernarg layout (88 bytes, ptrs only): h, pos, e_attr, src, dst, w_e, w_x, w_h, out, debug, ws
; @launch kernel=egnn_sort_kernel grid=(256,1,1) block=(1024,1,1) lds={lds1}
; @launch kernel=egnn_main_kernel grid=(256,1,1) block=(512,1,1) lds={lds2}
.amdgcn_target "amdgcn-amd-amdhsa--gfx950"
.text
'''
def kd(name,nv,ns):
    acc=(nv+3)//4*4
    return f'''.amdhsa_kernel {name}
  .amdhsa_next_free_vgpr {acc}
  .amdhsa_next_free_sgpr {ns}
  .amdhsa_accum_offset {acc}
  .amdhsa_group_segment_fixed_size 0
  .amdhsa_kernarg_size 88
  .amdhsa_user_sgpr_count 2
  .amdhsa_user_sgpr_kernarg_segment_ptr 1
  .amdhsa_system_sgpr_workgroup_id_x 1
  .amdhsa_float_denorm_mode_32 3
.end_amdhsa_kernel
'''
def build(opt):
    out=HEADER.format(lds1=LDS1,lds2=LDS2)
    a=Asm();
    a.lines.append(".globl egnn_sort_kernel\n.p2align 8\n.type egnn_sort_kernel,@function")
    gen_k1(a,opt)
    a.lines.append(".globl egnn_main_kernel\n.p2align 8\n.type egnn_main_kernel,@function")
    nv=gen_k2(a,opt)
    out+=a.text()
    out+='.section .rodata,"a"\n.p2align 6\n'+kd("egnn_sort_kernel",40,102)+'.p2align 6\n'+kd("egnn_main_kernel",256 if nv>128 else nv,102)
    return out,nv
if __name__=="__main__":
    opt={}
    for arg in sys.argv[2:]:
        k,v=arg.split('='); opt[k]=int(v)
    txt,nv=build(opt)
    open(sys.argv[1],'w').write(txt)
    print("K2 vgprs:",nv,"LDS2",LDS2,"lines",txt.count("\n"))
```

```python
import sys, struct
from asmlib import *

N=12500; E=800000; CH=3136; NSRC=256; NBIN=256
KW=703687442
LOG2E=1.4426950408889634; LN2=0.6931471805599453
def f2u(x): return struct.unpack('<I',struct.pack('<f',x))[0]
NEG_LOG2E=f2u(-LOG2E); NEG_LN2=f2u(-LN2)
SENT=0xFFFFFFFF; MARK=0xFFFFFFFE
CELLS=0; WOPS=NBIN*NSRC*128; WS_BYTES=WOPS+36*1024
P_W2=0; P_W4=8; P_W1=10; P_WH=18; P_WD=34; P_WX=35
OUT_BYTES=N*64*2+N*3*2; OUT_POS=N*64*2
CAP=576; CAPX=672
L_OH=0; L_CNT=128; L_NRES=160; L_RES=256; L_POS=1280; POS_SZ=74*1024
L_L0=L_POS+POS_SZ; L_L1=L_L0+8*CAPX*4; L_A2=L_L1+8*CAPX*2; L_HST=L_A2+8*2048; LDS2=L_HST+8*4096
assert LDS2<=163840, LDS2
LDS1=1024+32768+64

def WSB(opt): return (32*1024*1024 if opt.get('dbg',0) else WS_BYTES)
def srd(a, s, lo, hi, size):
    a(f"s_mov_b32 {s[0]}, {lo}")
    a(f"s_and_b32 {s[1]}, {hi}, 0xffff")
    a(f"s_mov_b32 {s[2]}, {size}")
    a(f"s_mov_b32 {s[3]}, 0x20000")

DBG_OFF=16*1024*1024
def stamp(a,opt,reg):
    if not opt.get('dbg',0): return
    a("s_memrealtime s[100:101]")
    a("s_waitcnt lgkmcnt(0)")
    a(f"s_mov_b32 {reg}, s100")
def stamp_store(a,opt,regs,base,wave,vt,vt2,sws,stmp):
    if not opt.get('dbg',0): return
    a(f"s_lshl_b32 {stmp}, s2, 4")
    a(f"s_add_u32 {stmp}, {stmp}, {wave}")
    a(f"s_lshl_b32 {stmp}, {stmp}, 6")
    a(f"s_add_u32 {stmp}, {stmp}, {base}")
    a(f"s_mov_b32 exec_lo, 1")
    a(f"s_mov_b32 exec_hi, 0")
    a(f"v_mov_b32 {vt2}, 0")
    for i,r in enumerate(regs):
        a(f"v_mov_b32 {vt}, {r}")
        a(f"buffer_store_dword {vt}, {vt2}, {sws}, {stmp} offen offset:{4*i}")
        a("s_nop 1")
    a("s_waitcnt vmcnt(0)")
def S(i,n=1): return R('s',i,n)
def V(i,n=1): return R('v',i,n)

def gen_k1(a, opt):
    a.label("egnn_sort_kernel")
    sSRC=S(4,4); sDST=S(8,4); sWS=S(12,4); sW=S(16,4)
    sWave=S(33); sK=S(34); s3125=S(35)
    a("s_cmp_ge_u32 s2, 256")
    a("s_cbranch_scc1 K1_END")
    a("s_load_dwordx4 s[20:23], s[0:1], 24")
    a("s_load_dwordx2 s[24:25], s[0:1], 80")
    a("s_load_dwordx4 s[28:31], s[0:1], 40")
    a("s_load_dwordx2 s[26:27], s[0:1], 56")
    stamp(a,opt,"s50")
    a.c("LDS init: image = sentinel, counters = 0")
    a("v_lshlrev_b32 v1, 5, v0")
    for i in range(4,8): a(f"v_mov_b32 v{i}, -1")
    a("ds_write_b128 v1, v[4:7] offset:1024")
    a("ds_write_b128 v1, v[4:7] offset:1040")
    a("v_and_b32 v2, 0xff, v0")
    a("v_lshlrev_b32 v2, 2, v2")
    a("v_mov_b32 v3, 0")
    a("ds_write_b32 v2, v3")
    a("v_lshrrev_b32 v2, 6, v0")
    a(f"s_mov_b32 {sK}, {KW}")
    a(f"v_readfirstlane_b32 {sWave}, v2")
    a(f"s_mov_b32 {s3125}, 3125")
    a("s_waitcnt lgkmcnt(0)")
    srd(a,sSRC,"s20","s21",E*4)
    srd(a,sDST,"s22","s23",E*4)
    srd(a,sWS,"s24","s25",WSB(opt))
    a("s_mov_b32 s51, 0")
    a(f"s_cmp_gt_u32 {sWave}, 12")
    a("s_cbranch_scc1 K1_NOLOAD")
    a(f"s_mul_i32 s36, s2, {CH*4}")
    a("v_lshl_add_u32 v2, v0, 4, s36")
    a(f"buffer_load_dwordx4 v[8:11], v2, {sDST}, 0 offen nt")
    a(f"buffer_load_dwordx4 v[12:15], v2, {sSRC}, 0 offen nt")
    a(f"s_mov_b32 s37, {E*4}")
    a(f"v_cmp_gt_u32 vcc, {CH//4}, v0")
    a("v_cmp_gt_u32 s[38:39], s37, v2")
    a("s_nop 1")
    a("s_and_b64 s[40:41], vcc, s[38:39]")
    a("s_barrier")
    a.c("append edges")
    a("s_mov_b64 exec, s[40:41]")
    a("s_cbranch_execz K1_APPEND_DONE")
    a("v_mov_b32 v16, 511")
    a("v_mov_b32 v17, 1")
    a("v_mov_b32 v18, 32768")
    a("s_waitcnt vmcnt(0)")
    stamp(a,opt,"s51")
    for u in range(4):
        d=f"v{8+u}"; s=f"v{12+u}"; W=f"v{20+u}"; B=f"v{24+u}"; Rr=f"v{28+u}"; RK=f"v{32+u}"
        a(f"v_mul_hi_u32 {W}, {d}, {sK}")
        a(f"v_lshl_or_b32 v38, v0, 2, {u}")
        a(f"v_mad_u32_u24 v36, {W}, {s3125}, v16")
        a(f"v_lshrrev_b32 {B}, 1, {W}")
        a(f"v_lshrrev_b32 v36, 9, v36")
        a(f"v_and_b32 {B}, 0x3fc, {B}")
        a(f"v_sub_u32 v36, {d}, v36")
        a(f"ds_add_rtn_u32 {RK}, {B}, v17")
        a(f"v_and_b32 v37, 7, {W}")
        a(f"v_lshl_or_b32 v36, v37, 3, v36")
        a(f"v_lshl_or_b32 {Rr}, {s}, 12, v38")
        a(f"v_lshl_or_b32 {Rr}, v36, 26, {Rr}")
    for u in range(4):
        B=f"v{24+u}"; Rr=f"v{28+u}"; RK=f"v{32+u}"
        a("s_waitcnt lgkmcnt(3)")
        a(f"v_cmp_gt_u32 vcc, 32, {RK}")
        a(f"v_lshlrev_b32 v36, 5, {B}")
        a(f"v_lshl_add_u32 v36, {RK}, 2, v36")
        a(f"v_cndmask_b32 v36, v18, v36, vcc")
        a(f"ds_write_b32 v36, {Rr} offset:1024")
    a.label("K1_APPEND_DONE")
    a("s_mov_b64 exec, -1")
    a("s_branch K1_JOIN")
    a.label("K1_NOLOAD")
    a("s_barrier")
    a(f"s_cmp_lg_u32 {sWave}, 15")
    a("s_cbranch_scc1 K1_JOIN")
    a("s_cmp_ge_u32 s2, 36")
    a("s_cbranch_scc1 K1_JOIN")
    a.c("weight operand piece s2")
    a("v_and_b32 v1, 63, v0")
    a("v_and_b32 v2, 31, v0")
    a("v_lshrrev_b32 v3, 5, v1")
    a("s_cmp_ge_u32 s2, 34")
    a("s_cbranch_scc1 K1_WSPECIAL")
    a("s_and_b32 s43, s2, 1")
    a(f"s_mov_b32 s44, {NEG_LOG2E}")
    srd(a,sW,"s28","s29",145*128)
    a("s_lshr_b32 s45, s2, 1")
    a("s_lshl_b32 s42, s45, 4")
    a("s_add_u32 s42, s42, 64")
    a("s_cmp_lt_u32 s2, 8")
    a("s_cbranch_scc1 K1_WGO")
    a("s_mov_b32 s42, 129")
    a("s_cmp_lt_u32 s2, 10")
    a("s_cbranch_scc1 K1_WGO")
    a("s_mov_b32 s44, 1.0")
    a("s_sub_u32 s45, s2, 10")
    a("s_lshr_b32 s45, s45, 1")
    a("s_lshl_b32 s42, s45, 4")
    a("s_cmp_lt_u32 s2, 18")
    a("s_cbranch_scc1 K1_WGO")
    srd(a,sW,"s26","s27",128*128)
    a("s_sub_u32 s45, s2, 18")
    a("s_lshr_b32 s45, s45, 1")
    a("s_lshl_b32 s42, s45, 4")
    a.label("K1_WGO")
    a("v_lshl_add_u32 v4, v3, 3, s42")
    a("v_lshlrev_b32 v4, 7, v4")
    a("s_lshl_b32 s45, s43, 5")
    a("v_add_u32 v5, s45, v2")
    a("v_lshl_add_u32 v4, v5, 1, v4")
    for t in range(8): a(f"v_mov_b32 v{8+t}, 0")
    for t in range(8): a(f"buffer_load_short_d16_hi v{8+t}, v4, {sW}, 0 offen offset:{t*128}")
    a("s_waitcnt vmcnt(0)")
    for t in range(8): a(f"v_mul_f32 v{8+t}, s44, v{8+t}")
    for r in range(4): a(f"v_cvt_pk_bf16_f32 v{20+r}, v{8+2*r}, v{9+2*r}")
    a("s_lshl_b32 s45, s2, 10")
    a(f"s_add_u32 s45, s45, {WOPS}")
    a("v_lshlrev_b32 v5, 4, v1")
    a(f"buffer_store_dwordx4 v[20:23], v5, {sWS}, s45 offen")
    a("s_branch K1_JOIN")
    a.label("K1_WSPECIAL")
    a("s_cmp_eq_u32 s2, 35")
    a("s_cbranch_scc1 K1_WX")
    srd(a,sW,"s28","s29",145*128)
    a("v_lshlrev_b32 v4, 1, v2")
    a("v_mov_b32 v8, 0")
    a("v_mov_b32 v9, 0")
    a(f"s_mov_b32 s45, {128*128}")
    a(f"buffer_load_short_d16_hi v8, v4, {sW}, s45 offen")
    a(f"buffer_load_short_d16_hi v9, v4, {sW}, s45 offen offset:64")
    a(f"s_mov_b32 s44, {NEG_LOG2E}")
    a("v_cmp_lt_u32 vcc, 31, v1")
    a("s_waitcnt vmcnt(0)")
    for x in range(2):
        v=f"v{8+x}"
        a(f"v_mul_f32 {v}, s44, {v}")
        a(f"v_cvt_pk_bf16_f32 v10, {v}, {v}")
        a(f"v_and_b32 v10, 0xffff0000, v10")
        a(f"v_sub_f32 v11, {v}, v10")
        a(f"v_cvt_pk_bf16_f32 v11, v11, v11")
        a(f"v_and_b32 v11, 0xffff0000, v11")
        a(f"s_nop 0")
        a(f"v_cndmask_b32 v{12+x}, v10, v11, vcc")
    a(f"s_mov_b32 s45, {WOPS+P_WD*1024}")
    a("v_lshlrev_b32 v5, 2, v1")
    a(f"buffer_store_dword v12, v5, {sWS}, s45 offen")
    a(f"buffer_store_dword v13, v5, {sWS}, s45 offen offset:256")
    a("s_branch K1_JOIN")
    a.label("K1_WX")
    srd(a,sW,"s30","s31",128)
    a("v_lshlrev_b32 v4, 1, v2")
    a("v_mov_b32 v8, 0")
    a("v_mov_b32 v9, 0")
    a(f"buffer_load_short_d16_hi v8, v4, {sW}, 0 offen")
    a(f"buffer_load_short_d16_hi v9, v4, {sW}, 0 offen offset:64")
    a(f"s_mov_b32 s44, {NEG_LN2}")
    a("s_waitcnt vmcnt(0)")
    a("v_mul_f32 v8, s44, v8")
    a("v_mul_f32 v9, s44, v9")
    a(f"s_mov_b32 s45, {WOPS+P_WX*1024}")
    a("v_lshlrev_b32 v5, 2, v1")
    a(f"buffer_store_dword v8, v5, {sWS}, s45 offen")
    a(f"buffer_store_dword v9, v5, {sWS}, s45 offen offset:256")
    a.label("K1_JOIN")
    a("s_waitcnt lgkmcnt(0)")
    a("s_barrier")
    stamp(a,opt,"s52")
    a.c("copy image out: pieces t and t+1024 (16 B each)")
    a("v_lshlrev_b32 v1, 4, v0")
    a("v_lshrrev_b32 v2, 3, v0")
    a("v_lshlrev_b32 v3, 2, v2")
    a("ds_read_b128 v[4:7], v1 offset:1024")
    a(f"ds_read_b128 v[8:11], v1 offset:{1024+16384}")
    a("ds_read_b32 v12, v3")
    a("ds_read_b32 v13, v3 offset:512")
    a("v_and_b32 v14, 7, v0")
    a("v_cmp_eq_u32 vcc, 0, v14")
    a("v_mov_b32 v15, -1")
    a("v_lshlrev_b32 v16, 15, v2")
    a("v_cndmask_b32_e64 v17, -1, -2, vcc")
    a("v_lshl_add_u32 v16, v14, 4, v16")
    a("s_lshl_b32 s36, s2, 7")
    a(f"s_add_u32 s37, s36, {128*32768}")
    a("s_waitcnt lgkmcnt(0)")
    for k,(d,c,so) in enumerate(((4,12,"s36"),(8,13,"s37"))):
        a(f"v_cmp_lt_u32 vcc, 32, v{c}")
        a("s_nop 1")
        a(f"v_cndmask_b32 v{d}, v{d}, v17, vcc")
        for i in range(1,4): a(f"v_cndmask_b32 v{d+i}, v{d+i}, v15, vcc")
        a(f"buffer_store_dwordx4 v[{d}:{d+3}], v16, {sWS}, {so} offen"+["",""," nt"," sc1"," sc0 sc1"][opt.get('k1st',1)])
    if opt.get('dbg',0):
        a("s_waitcnt vmcnt(0)")
        stamp(a,opt,"s53")
        if opt.get('dbg2',0):
            a("s_load_dwordx2 s[46:47], s[0:1], 72")
            a("s_waitcnt lgkmcnt(0)")
            srd(a,S(56,4),"s46","s47",256)
            a("s_cmp_lg_u32 s2, 0")
            a("s_cbranch_scc1 K1_NODBG")
            a(f"s_cmp_lg_u32 {sWave}, 0")
            a("s_cbranch_scc1 K1_NODBG")
            a("v_mov_b32 v2, 0")
            a("v_mov_b32 v1, s50")
            a("buffer_store_dword v1, v2, s[56:59], 0 offen")
            a("s_nop 1")
            a("v_mov_b32 v1, s53")
            a("buffer_store_dword v1, v2, s[56:59], 0 offen offset:4")
            a("s_waitcnt vmcnt(0)")
            a.label("K1_NODBG")
        stamp_store(a,opt,["s50","s51","s52","s53"],DBG_OFF,sWave,"v1","v2",sWS,"s45")
    a.label("K1_END")
    a("s_endpgm")

def gen_k2(a, opt):
    DBG=opt.get('dbg',0)
    a.label("egnn_main_kernel")
    sH=S(4,4); sE=S(8,4); sW=S(12,4); sO=S(16,4); sP=S(20,4); sS=S(24,4); sD=S(28,4)
    sWave=S(32); sN0=S(33); sNJ=S(34); sN06=S(35); sNT=S(36); sT=S(37); sMode=S(38); sChunk=S(39)
    sMaskE=S(40); s128=S(41); sK=S(42); s3125=S(43); sFirst=S(44); sCnt=S(45); sTmp=S(46); sTmp2=S(47)
    sM0=S(48,4); sSave=S(52,2); sAny=S(54,2); sNR=S(56); sI=S(57); sC=S(58); sWsrc=S(59); sMark=S(60); s168=S(61); sHST=S(62); sTmp3=S(63)
    sMask=[S(64+2*i,2) for i in range(16)]
    vr=Regs(1,256,'v')
    vL=vr.alloc('lane')
    W2=vr.alloc('W2',32,4); WE=vr.alloc('WE',8,4); WA=vr.alloc('WA',8,4); D2=vr.alloc('D2',32,4)
    D1=vr.alloc('D1',32,4); HA=vr.alloc('HA',16,4); T=vr.alloc('T',16,4); M=vr.alloc('M',16,4)
    A2R=vr.alloc('A2R',8,4); EA=[vr.alloc('EA0',4,4),vr.alloc('EA1',4,4)]; OH=vr.alloc('OH',4,4)
    vHA=vr.alloc('vHA',4); vKD=vr.alloc('vKD',4); vTR=vr.alloc('vTR'); vE64=vr.alloc('vE64'); vHOFF=vr.alloc('vHOFF')
    vZ=vr.alloc('vZ',2,2); aL0=vr.alloc('aL0'); aL1s=vr.alloc('aL1s'); aL1d=vr.alloc('aL1d')
    LE=[vr.alloc('LE0'),vr.alloc('LE1')]; aA2=vr.alloc('aA2'); aA2n=vr.alloc('aA2n')
    SD=vr.alloc('SD',2,2); SS=vr.alloc('SS'); PS=vr.alloc('PS',3); PD=vr.alloc('PD',3)
    E01=vr.alloc('E01',2,2); DX=vr.alloc('DX',3); DD=vr.alloc('DD'); AD=vr.alloc('AD',4); vJ=vr.alloc('vJ'); vT0=vr.alloc('vT0'); vT1=vr.alloc('vT1'); vT2=vr.alloc('vT2'); vT3=vr.alloc('vT3')
    vOne=vr.alloc('vOne'); v511=vr.alloc('v511')
    nv=vr.next
    REC=D1[0:16]; WAD=D1[16:32]; RK=HA
    W1=D2
    HW=T
    WD=M[0:2]

    a("s_cmp_ge_u32 s2, 256")
    a("s_cbranch_scc1 K2_END")
    a("s_load_dwordx4 s[64:67], s[0:1], 0")
    a("s_load_dwordx2 s[68:69], s[0:1], 16")
    a("s_load_dwordx4 s[72:75], s[0:1], 24")
    a("s_load_dwordx2 s[70:71], s[0:1], 64")
    a("s_load_dwordx2 s[76:77], s[0:1], 80")
    stamp(a,opt,"s96")
    a(f"v_and_b32 {vL}, 63, v0")
    a(f"v_lshrrev_b32 {vT0}, 6, v0")
    a(f"s_mov_b32 {sMaskE}, {'0' if opt.get('noE',0) else '0xffffffe0'}")
    a(f"v_readfirstlane_b32 {sWave}, {vT0}")
    a(f"s_mov_b32 {s128}, {0 if opt.get('noH',0) else 128}")
    a(f"s_mov_b32 {sK}, {KW}")
    a(f"s_mov_b32 {s3125}, 3125")
    a(f"s_mov_b32 {sMark}, {MARK}")
    a(f"s_mov_b32 {s168}, 168")
    a(f"s_mov_b32 {sFirst}, 1")
    a(f"s_mov_b32 {sMode}, 0")
    a(f"s_mov_b32 {sChunk}, 0")
    a(f"v_mov_b32 {vOne}, 1")
    a(f"v_mov_b32 {v511}, 511")
    a(f"v_mov_b32 {vZ[0]}, 0")
    a(f"v_mov_b32 {vZ[1]}, 0")
    for i in range(3):
        a(f"v_mov_b32 {PS[i]}, 0"); a(f"v_mov_b32 {PD[i]}, 0")
    a(f"s_lshl_b32 {sTmp}, s2, 3")
    a(f"s_add_u32 {sTmp}, {sTmp}, {sWave}")
    a(f"s_mul_i32 {sN0}, {sTmp}, 3125")
    a(f"s_add_u32 {sNJ}, {sN0}, {3125+511}")
    a(f"s_add_u32 {sN0}, {sN0}, 511")
    a(f"s_lshr_b32 {sN0}, {sN0}, 9")
    a(f"s_lshr_b32 {sNJ}, {sNJ}, 9")
    a(f"s_sub_u32 {sNJ}, {sNJ}, {sN0}")
    a(f"s_mul_i32 {sN06}, {sN0}, 6")
    a(f"s_lshl_b32 {sHST}, {sWave}, 12")
    a(f"s_add_u32 {sHST}, {sHST}, {L_HST}")
    for i in range(4): a(f"s_add_u32 {sM0[i]}, {sHST}, {1024*i}")
    a.c("LDS init: A2 matrix zero (2KB/wave), counters, onehot table")
    a(f"s_lshl_b32 {sTmp}, {sWave}, 11")
    a(f"s_add_u32 {sTmp}, {sTmp}, {L_A2}")
    for i in range(4): a(f"v_mov_b32 {T[i]}, 0")
    a(f"v_lshl_add_u32 {vT0}, {vL}, 5, {sTmp}")
    a(f"ds_write_b128 {vT0}, {T[0:4]}")
    a(f"ds_write_b128 {vT0}, {T[0:4]} offset:16")
    a(f"v_and_b32 {vT1}, 31, {vL}")
    a(f"v_lshl_add_u32 {vE64}, {vT1}, 6, {sTmp}")
    a(f"v_lshrrev_b32 {vT2}, 5, {vL}")
    a(f"v_lshlrev_b32 {vHOFF}, 4, {vT2}")
    a(f"v_bfe_u32 {vT0}, {vL}, 2, 2")
    a(f"v_lshl_add_u32 {vT0}, {vT2}, 2, {vT0}")
    a(f"v_lshl_add_u32 {vTR}, {vT0}, 6, {sTmp}")
    a(f"v_bfe_u32 {vT0}, {vL}, 4, 1")
    a(f"v_lshl_add_u32 {vTR}, {vT0}, 5, {vTR}")
    a(f"v_and_b32 {vT0}, 3, {vL}")
    a(f"v_lshl_add_u32 {vTR}, {vT0}, 3, {vTR}")
    a(f"v_and_b32 {vT0}, 3, {vT1}")
    a(f"v_bfe_u32 {vT3}, {vT1}, 4, 1")
    a(f"v_lshl_or_b32 {vT3}, {vT3}, 2, {vT0}")
    a(f"v_lshlrev_b32 {vT0}, 3, {vT0}")
    a(f"v_lshrrev_b32 {vJ}, 2, {vT1}")
    a(f"v_add_u32 {vT0}, {vT0}, {vJ}")
    a(f"v_lshl_add_u32 {vT0}, {vT0}, 7, {sHST}")
    for s_ in range(4):
        a(f"v_add_u32 {vJ}, {2*s_}, {vT2}")
        a(f"v_xor_b32 {vJ}, {vJ}, {vT3}")
        a(f"v_lshl_add_u32 {vHA[s_]}, {vJ}, 4, {vT0}")
    a(f"v_and_b32 {vT0}, 7, {vL}")
    a(f"v_lshlrev_b32 {vT3}, 2, {vT2}")
    a(f"v_xor_b32 {vT0}, {vT0}, {vT3}")
    for i in range(4):
        a(f"v_xor_b32 {vJ}, {i}, {vT0}")
        a(f"v_lshlrev_b32 {vKD[i]}, 4, {vJ}")
    a(f"s_cmp_lg_u32 {sWave}, 0")
    a("s_cbranch_scc1 K2_INIT_DONE")
    a(f"v_lshrrev_b32 {vT0}, 2, {vL}")
    a(f"v_and_b32 {vT1}, 3, {vL}")
    a(f"v_lshlrev_b32 {vT3}, 1, {vT1}")
    a(f"v_mov_b32 {vJ}, 0")
    a(f"v_cmp_eq_u32 vcc, {vT0}, {vT3}")
    a(f"v_mov_b32 {AD[0]}, 0x3f80")
    a(f"v_mov_b32 {AD[1]}, 0x3f800000")
    a(f"v_cndmask_b32 {vJ}, {vJ}, {AD[0]}, vcc")
    a(f"v_add_u32 {vT3}, 1, {vT3}")
    a(f"v_cmp_eq_u32 vcc, {vT0}, {vT3}")
    a("s_nop 1")
    a(f"v_cndmask_b32 {vJ}, {vJ}, {AD[1]}, vcc")
    a(f"v_cmp_eq_u32 vcc, 6, {vT0}")
    a(f"v_mov_b32 {AD[2]}, 0")
    a("s_nop 0")
    a(f"v_cndmask_b32 {AD[2]}, {AD[2]}, {AD[1]}, vcc")
    a(f"v_cmp_eq_u32 vcc, 3, {vT1}")
    a("s_nop 1")
    a(f"v_cndmask_b32 {vJ}, {vJ}, {AD[2]}, vcc")
    a(f"v_cmp_lt_u32 vcc, 31, {vL}")
    a(f"v_lshlrev_b32 {vT0}, 2, {vL}")
    a("s_nop 0")
    a(f"v_cndmask_b32 {vJ}, {vJ}, {vZ[0]}, vcc")
    a(f"ds_write_b32 {vT0}, {vJ}")
    a.label("K2_INIT_DONE")
    a("s_waitcnt lgkmcnt(0)")
    srd(a,sH,"s64","s65",N*128)
    srd(a,sP,"s66","s67",N*6)
    srd(a,sE,"s68","s69",E*32)
    srd(a,sO,"s70","s71",OUT_BYTES)
    srd(a,sS,"s72","s73",E*4)
    srd(a,sD,"s74","s75",E*4)
    srd(a,sW,"s76","s77",WSB(opt))
    a.c("cells loads: 16 dwords per lane")
    a(f"s_lshl_b32 {sTmp}, s2, 15")
    a(f"s_lshl_b32 {sTmp2}, {sWave}, 8")
    a(f"s_add_u32 {sTmp}, {sTmp}, {sTmp2}")
    a(f"v_lshl_add_u32 {vT0}, {vL}, 2, {sTmp}")
    for s_ in range(16):
        if s_%2==0: a(f"s_mov_b32 {sTmp}, {CELLS+(s_//2)*4096}")
        a(f"buffer_load_dword {REC[s_]}, {vT0}, {sW}, {sTmp} offen offset:{(s_%2)*2048}")
    a.c("pos table -> LDS (10 DMA per wave)")
    a(f"v_lshlrev_b32 {vT1}, 4, {vL}")
    a(f"s_lshl_b32 {sTmp2}, {sWave}, 10")
    for k in range(10):
        if k<9:
            a(f"s_add_u32 {sTmp}, {sTmp2}, {k*8192}")
        else:
            a(f"s_cmp_lt_u32 {sWave}, 2")
            a(f"s_cselect_b32 {sTmp}, 8192, 0")
            a(f"s_add_u32 {sTmp}, {sTmp}, {8*8192}")
            a(f"s_add_u32 {sTmp}, {sTmp}, {sTmp2}")
        a(f"s_add_u32 {sTmp3}, {sTmp}, {L_POS}")
        a(f"s_mov_b32 m0, {sTmp3}")
        a("s_nop 0")
        a(f"buffer_load_dwordx4 {vT1}, {sP}, {sTmp} offen lds")
    a.c("W1 operands, window h rows, WD, W2, W4")
    for p in range(8):
        s_,x=p>>1,p&1
        a(f"s_mov_b32 {sTmp}, {WOPS+(P_W1+p)*1024}")
        a(f"buffer_load_dwordx4 {W1[(s_*2+x)*4:(s_*2+x)*4+4]}, {vT1}, {sW}, {sTmp} offen")
    a(f"v_bfe_u32 {vT0}, {vL}, 3, 1")
    a(f"v_and_b32 {vT2}, 3, {vL}")
    a(f"v_lshl_add_u32 {vT0}, {vT0}, 2, {vT2}")
    a(f"s_sub_u32 {sTmp}, {sNJ}, 1")
    a(f"v_min_u32 {vT0}, {sTmp}, {vT0}")
    a(f"v_add_u32 {vT0}, {sN0}, {vT0}")
    a(f"v_lshl_add_u32 {vT0}, {vT0}, 7, {vHOFF}")
    for s_ in range(4):
        a(f"buffer_load_dwordx4 {HW[4*s_:4*s_+4]}, {vT0}, {sH}, 0 offen offset:{32*s_}")
    a(f"v_lshlrev_b32 {vT2}, 2, {vL}")
    a(f"s_mov_b32 {sTmp}, {WOPS+P_WD*1024}")
    a(f"buffer_load_dword {WD[0]}, {vT2}, {sW}, {sTmp} offen")
    a(f"buffer_load_dword {WD[1]}, {vT2}, {sW}, {sTmp} offen offset:256")
    for p in range(8):
        a(f"s_mov_b32 {sTmp}, {WOPS+(P_W2+p)*1024}")
        a(f"buffer_load_dwordx4 {W2[p*4:p*4+4]}, {vT1}, {sW}, {sTmp} offen")
    for p in range(2):
        a(f"s_mov_b32 {sTmp}, {WOPS+(P_W4+p)*1024}")
        a(f"buffer_load_dwordx4 {WE[p*4:p*4+4]}, {vT1}, {sW}, {sTmp} offen")
    a("s_barrier")
    a.c("append cell records to the window lists")
    a("s_waitcnt vmcnt(34)")
    stamp(a,opt,"s97")
    a(f"s_mov_b64 {sAny}, 0")
    for s_ in range(16):
        a(f"v_cmp_gt_u32 {sMask[s_]}, {sMark}, {REC[s_]}")
        a(f"v_cmp_eq_u32 vcc, {sMark}, {REC[s_]}")
        a(f"v_lshrrev_b32 {WAD[s_]}, 27, {REC[s_]}")
        a(f"v_and_b32 {WAD[s_]}, 0x1c, {WAD[s_]}")
        a(f"s_or_b64 {sAny}, {sAny}, vcc")
    for s_ in range(16):
        a(f"s_mov_b64 exec, {sMask[s_]}")
        a(f"ds_add_rtn_u32 {RK[s_]}, {WAD[s_]}, {vOne} offset:{L_CNT}")
        if s_==7: a("s_waitcnt lgkmcnt(4)")
    a("s_mov_b64 exec, -1")
    a(f"s_lshl_b32 {sTmp}, {sWave}, 1")
    a(f"v_lshrrev_b32 {vT0}, 5, {vL}")
    a(f"v_add_u32 {vT0}, {sTmp}, {vT0}")
    a(f"v_mul_u32_u24 {vT0}, {CH}, {vT0}")
    a(f"v_mov_b32 {vT1}, {L_L0}")
    a(f"v_mov_b32 {vT2}, {L_L1}")
    a("s_waitcnt lgkmcnt(0)")
    for s_ in range(16):
        a(f"s_mov_b64 exec, {sMask[s_]}")
        a(f"s_mov_b32 {sTmp}, {s_*16*CH}")
        a(f"v_min_u32 {RK[s_]}, {CAPX-1}, {RK[s_]}")
        a(f"v_and_b32 {vT3}, 0xfff, {REC[s_]}")
        a(f"v_mad_u32_u24 {RK[s_]}, {WAD[s_]}, {s168}, {RK[s_]}")
        a(f"v_add3_u32 {vT3}, {vT3}, {vT0}, {sTmp}")
        a(f"v_bfe_u32 {vJ}, {REC[s_]}, 26, 3")
        a(f"v_lshl_add_u32 {AD[0]}, {RK[s_]}, 2, {vT1}")
        a(f"v_lshl_or_b32 {vT3}, {vT3}, 5, {vJ}")
        a(f"v_lshl_add_u32 {AD[1]}, {RK[s_]}, 1, {vT2}")
        a(f"v_bfe_u32 {vJ}, {REC[s_]}, 12, 14")
        a(f"ds_write_b32 {AD[0]}, {vT3}")
        a(f"ds_write_b16 {AD[1]}, {vJ}")
    a("s_mov_b64 exec, -1")
    a.c("overflowed cells -> rescan list (rare)")
    a(f"s_cmp_eq_u64 {sAny}, 0")
    a("s_cbranch_scc1 K2_NOMARK")
    a(f"v_lshrrev_b32 {vT0}, 5, {vL}")
    a(f"s_lshl_b32 {sTmp}, {sWave}, 1")
    a(f"v_add_u32 {vT0}, {sTmp}, {vT0}")
    a(f"v_mov_b32 {vT1}, {L_NRES}")
    for s_ in range(16):
        a(f"v_cmp_eq_u32 vcc, {sMark}, {REC[s_]}")
        a(f"s_and_saveexec_b64 {sSave}, vcc")
        a(f"s_cbranch_execz K2_MK{s_}")
        a(f"ds_add_rtn_u32 {vT2}, {vT1}, {vOne}")
        a(f"v_add_u32 {vT3}, {16*s_}, {vT0}")
        a("s_waitcnt lgkmcnt(0)")
        a(f"v_lshlrev_b32 {vT2}, 2, {vT2}")
        a(f"ds_write_b32 {vT2}, {vT3} offset:{L_RES}")
        a.label(f"K2_MK{s_}")
        a(f"s_mov_b64 exec, {sSave}")
    a.label("K2_NOMARK")
    a("s_waitcnt vmcnt(24) lgkmcnt(0)")
    stamp(a,opt,"s98")
    a("s_barrier")
    stamp(a,opt,"s99")
    a.c("rescan?")
    a(f"v_mov_b32 {vT0}, {L_NRES}")
    a(f"ds_read_b32 {vT1}, {vT0}")
    a("s_waitcnt lgkmcnt(0)")
    a(f"v_readfirstlane_b32 {sNR}, {vT1}")
    a("s_nop 3")
    a(f"s_min_u32 {sNR}, {sNR}, 256")
    a(f"s_cmp_eq_u32 {sNR}, 0")
    a("s_cbranch_scc1 K2_CHECK")
    a(f"s_mov_b32 {sI}, 0")
    a.label("K2_RESCAN_I")
    a(f"s_lshl_b32 {sTmp}, {sI}, 2")
    a(f"s_add_u32 {sTmp}, {sTmp}, {L_RES}")
    a(f"v_mov_b32 {vT0}, {sTmp}")
    a(f"ds_read_b32 {vT1}, {vT0}")
    a("s_waitcnt lgkmcnt(0)")
    a(f"v_readfirstlane_b32 {sWsrc}, {vT1}")
    a("s_nop 3")
    a(f"s_min_u32 {sWsrc}, {sWsrc}, 255")
    a(f"s_mov_b32 {sC}, 0")
    a.label("K2_RESCAN_C")
    def append_raw(lim_local):
        a(f"v_lshlrev_b32 {vT1}, 2, {vT0}")
        a(f"buffer_load_dword {AD[0]}, {vT1}, {sD}, 0 offen")
        a(f"buffer_load_dword {AD[1]}, {vT1}, {sS}, 0 offen")
        a("s_waitcnt vmcnt(0)")
        a(f"v_mul_hi_u32 {vT2}, {AD[0]}, {sK}")
        a(f"v_lshrrev_b32 {vT3}, 3, {vT2}")
        a(f"v_cmp_eq_u32 vcc, s2, {vT3}")
        a("s_nop 1")
        a(f"s_and_b64 vcc, vcc, {sAny}")
        a(f"s_and_saveexec_b64 {sSave}, vcc")
        a(f"s_cbranch_execz {lim_local}")
        a(f"v_mad_u32_u24 {vT3}, {vT2}, {s3125}, {v511}")
        a(f"v_and_b32 {vT2}, 7, {vT2}")
        a(f"v_lshrrev_b32 {vT3}, 9, {vT3}")
        a(f"v_lshlrev_b32 {vT2}, 2, {vT2}")
        a(f"v_sub_u32 {vT3}, {AD[0]}, {vT3}")
        a(f"ds_add_rtn_u32 {AD[2]}, {vT2}, {vOne} offset:{L_CNT}")
        a(f"v_lshl_or_b32 {vT0}, {vT0}, 5, {vT3}")
        a("s_waitcnt lgkmcnt(0)")
        a(f"v_min_u32 {AD[2]}, {CAPX-1}, {AD[2]}")
        a(f"v_mad_u32_u24 {AD[2]}, {vT2}, {s168}, {AD[2]}")
        a(f"v_mov_b32 {vT2}, {L_L0}")
        a(f"v_mov_b32 {vT3}, {L_L1}")
        a(f"v_lshl_add_u32 {vT2}, {AD[2]}, 2, {vT2}")
        a(f"v_lshl_add_u32 {vT3}, {AD[2]}, 1, {vT3}")
        a(f"ds_write_b32 {vT2}, {vT0}")
        a(f"ds_write_b16 {vT3}, {AD[1]}")
        a.label(lim_local)
        a(f"s_mov_b64 exec, {sSave}")
    a(f"s_lshl_b32 {sTmp}, {sC}, 9")
    a(f"v_add_u32 {vT1}, {sTmp}, v0")
    a(f"s_mul_i32 {sTmp2}, {sWsrc}, {CH}")
    a(f"v_add_u32 {vT0}, {sTmp2}, {vT1}")
    a(f"v_cmp_gt_u32 vcc, {CH}, {vT1}")
    a(f"s_mov_b32 {sTmp}, {E}")
    a(f"v_cmp_gt_u32 {sAny}, {sTmp}, {vT0}")
    a("s_nop 1")
    a(f"s_and_b64 {sAny}, {sAny}, vcc")
    append_raw("K2_RA1")
    a(f"s_add_u32 {sC}, {sC}, 1")
    a(f"s_cmp_lt_u32 {sC}, 7")
    a("s_cbranch_scc1 K2_RESCAN_C")
    a(f"s_add_u32 {sI}, {sI}, 1")
    a(f"s_cmp_lt_u32 {sI}, {sNR}")
    a("s_cbranch_scc1 K2_RESCAN_I")
    a("s_waitcnt lgkmcnt(0)")
    a("s_barrier")
    a.label("K2_CHECK")
    a(f"v_and_b32 {vT0}, 7, {vL}")
    a(f"v_lshlrev_b32 {vT0}, 2, {vT0}")
    a(f"ds_read_b32 {vT1}, {vT0} offset:{L_CNT}")
    a("s_waitcnt lgkmcnt(0)")
    a(f"v_cmp_lt_u32 vcc, {CAP}, {vT1}")
    a(f"v_readlane_b32 {sCnt}, {vT1}, {sWave}")
    a("s_nop 3")
    a("s_cmp_eq_u64 vcc, 0")
    a("s_cbranch_scc1 K2_MAIN")
    a.c("generic (slow) mode: raw scan of all edges, 512 per round")
    a(f"s_mov_b32 {sMode}, 1")
    a.label("K2_GEN")
    a("s_barrier")
    a(f"s_cmp_lg_u32 {sWave}, 0")
    a("s_cbranch_scc1 K2_GEN1")
    a(f"v_and_b32 {vT0}, 7, {vL}")
    a(f"v_lshlrev_b32 {vT0}, 2, {vT0}")
    a(f"ds_write_b32 {vT0}, {vZ[0]} offset:{L_CNT}")
    a("s_waitcnt lgkmcnt(0)")
    a.label("K2_GEN1")
    a("s_barrier")
    a(f"s_lshl_b32 {sTmp}, {sChunk}, 9")
    a(f"v_add_u32 {vT0}, {sTmp}, v0")
    a(f"s_mov_b32 {sTmp}, {E}")
    a(f"v_cmp_gt_u32 {sAny}, {sTmp}, {vT0}")
    a("s_nop 1")
    append_raw("K2_RA2")
    a("s_waitcnt lgkmcnt(0)")
    a("s_barrier")
    a(f"s_lshl_b32 {sTmp}, {sWave}, 2")
    a(f"v_mov_b32 {vT0}, {sTmp}")
    a(f"ds_read_b32 {vT1}, {vT0} offset:{L_CNT}")
    a("s_waitcnt lgkmcnt(0)")
    a(f"v_readfirstlane_b32 {sCnt}, {vT1}")
    a("s_nop 3")
    a.label("K2_MAIN")
    a(f"s_min_u32 {sCnt}, {sCnt}, {CAP}")
    a(f"s_add_u32 {sNT}, {sCnt}, 31")
    a(f"s_lshr_b32 {sNT}, {sNT}, 5")
    a(f"s_mul_i32 {sTmp}, {sWave}, {CAPX*4}")
    a(f"s_add_u32 {sTmp}, {sTmp}, {L_L0}")
    a(f"s_mul_i32 {sTmp2}, {sWave}, {CAPX*2}")
    a(f"s_add_u32 {sTmp2}, {sTmp2}, {L_L1}")
    a(f"v_add_u32 {vT0}, {sCnt}, {vL}")
    a(f"v_lshl_add_u32 {vT1}, {vT0}, 2, {sTmp}")
    a(f"v_lshl_add_u32 {vT2}, {vT0}, 1, {sTmp2}")
    a(f"v_mov_b32 {vT3}, 7")
    a(f"ds_write_b32 {vT1}, {vT3}")
    a(f"ds_write_b16 {vT2}, {vZ[0]}")
    a("s_mov_b32 exec_hi, 0")
    a(f"ds_write_b32 {vT1}, {vT3} offset:256")
    a(f"ds_write_b16 {vT2}, {vZ[0]} offset:128")
    a("s_mov_b64 exec, -1")
    a(f"v_and_b32 {vT0}, 31, {vL}")
    a(f"v_lshl_add_u32 {aL0}, {vT0}, 2, {sTmp}")
    a(f"v_lshl_add_u32 {aL1s}, {vT0}, 1, {sTmp2}")
    a(f"v_lshrrev_b32 {vT0}, 3, {vL}")
    a(f"v_lshl_add_u32 {aL1d}, {vT0}, 3, {sTmp2}")
    a(f"ds_read_b32 {LE[0]}, {aL0}")
    a(f"ds_read_b32 {LE[1]}, {aL0} offset:128")
    a(f"ds_read_b64 {SD}, {aL1d}")
    a(f"ds_read_u16 {SS}, {aL1s}")
    a("s_waitcnt lgkmcnt(0)")
    def issue_E(p):
        a(f"v_and_or_b32 {vT0}, {LE[p]}, {sMaskE}, {vHOFF}")
        a(f"buffer_load_dwordx4 {EA[p]}, {vT0}, {sE}, 0 offen{' nt' if opt.get('e_nt',0) else ''}")
    def calc_H():
        for i in range(4):
            a(f"v_mad_u32_u16 {AD[i]}, {SD[i>>1]}, {s128}, {vKD[i]}"+(" op_sel:[1,0,0,0]" if i&1 else ""))
    def issue_H(i):
        a(f"s_mov_b32 m0, {sM0[i]}")
        a("s_nop 0")
        a(f"buffer_load_dwordx4 {AD[i]}, {sH}, 0 offen lds")
    issue_E(0)
    calc_H()
    for i in range(4): issue_H(i)
    issue_E(1)
    a.c("one-time: window operand A' and D2 init")
    a(f"s_cmp_eq_u32 {sFirst}, 0")
    a("s_cbranch_scc1 K2_NOSETUP")
    a(f"s_mov_b32 {sFirst}, 0")
    a("s_waitcnt vmcnt(16)")
    for x in range(2):
        for s_ in range(4):
            c = "0" if s_==0 else f"{D1[16*x:16*x+16]}"
            a(f"v_mfma_f32_32x32x16_bf16 {D1[16*x:16*x+16]}, {HW[4*s_:4*s_+4]}, {W1[(s_*2+x)*4:(s_*2+x)*4+4]}, {c}")
    a.nop(16)
    a(f"s_mov_b32 {sTmp}, {NEG_LOG2E}")
    a(f"v_cmp_lt_u32 vcc, 31, {vL}")
    a(f"v_mov_b32 {vJ}, 0xffff")
    for x in range(2):
        for r in range(4):
            q0,q1=D1[16*x+2*r],D1[16*x+2*r+1]
            a(f"v_mul_f32 {q0}, {sTmp}, {q0}")
            a(f"v_mul_f32 {q1}, {sTmp}, {q1}")
            a(f"v_cvt_pk_bf16_f32 {vT0}, {q0}, {q1}")
            a(f"v_lshlrev_b32 {vT1}, 16, {vT0}")
            a(f"v_and_b32 {vT2}, 0xffff0000, {vT0}")
            a(f"v_sub_f32 {vT1}, {q0}, {vT1}")
            a(f"v_sub_f32 {vT2}, {q1}, {vT2}")
            a(f"v_cvt_pk_bf16_f32 {vT1}, {vT1}, {vT2}")
            a(f"v_cndmask_b32 {WA[4*x+r]}, {vT0}, {vT1}, vcc")
        a(f"v_bfi_b32 {WA[4*x+3]}, {vJ}, {WA[4*x+3]}, {WD[x]}")
    for i in range(32): a(f"v_mov_b32 {D2[i]}, 0")
    a.label("K2_NOSETUP")
    a(f"s_cmp_eq_u32 {sNT}, 0")
    a("s_cbranch_scc1 K2_MAIN_EXIT0")
    def P_addr(le):
        a(f"v_and_b32 {vJ}, 7, {le}")
        a(f"v_mul_u32_u24 {vT1}, 6, {SS}")
        a(f"v_mad_u32_u24 {vT2}, {vJ}, 6, {sN06}")
        a(f"v_lshlrev_b32 {vT3}, 4, {vJ}")
        a(f"v_lshl_add_u32 {aA2n}, {vJ}, 3, {vE64}")
    def P_reads():
        for c in range(3): a(f"ds_read_u16_d16_hi {PS[c]}, {vT1} offset:{L_POS+2*c}")
        for c in range(3): a(f"ds_read_u16_d16_hi {PD[c]}, {vT2} offset:{L_POS+2*c}")
        a(f"ds_read_b128 {OH}, {vT3} offset:{L_OH}")
    def P_calc():
        for c in range(3): a(f"v_sub_f32 {DX[c]}, {PD[c]}, {PS[c]}")
        a(f"v_mul_f32 {DD}, {DX[0]}, {DX[0]}")
        a(f"v_cvt_pk_bf16_f32 {E01[0]}, 1.0, {DX[0]}")
        a(f"v_fmac_f32 {DD}, {DX[1]}, {DX[1]}")
        a(f"v_cvt_pk_bf16_f32 {E01[1]}, {DX[1]}, {DX[2]}")
        a(f"v_fmac_f32 {DD}, {DX[2]}, {DX[2]}")
        a(f"v_mov_b32 {aA2}, {aA2n}")
        a(f"ds_write_b64 {aA2n}, {E01}")
        a(f"v_cvt_pk_bf16_f32 {OH[3]}, {OH[3]}, {DD}")
    P_addr(LE[0]); P_reads()
    a("s_waitcnt lgkmcnt(0)")
    P_calc()
    a(f"s_mov_b32 {sT}, 0")
    a("s_waitcnt vmcnt(6)")
    stamp(a,opt,"s64")
    if DBG:
        a("s_memtime s[68:69]")
        a("s_waitcnt lgkmcnt(0)")
    def mfma(d,A,B,c): a(f"v_mfma_f32_32x32x16_bf16 {d}, {A}, {B}, {c}")
    Da,Db=D1[0:16],D1[16:32]
    def silu(Dx,Mx,mid=None):
        for i in range(16): a(f"v_exp_f32 {T[i]}, {Dx[i]}")
        if mid: mid()
        for i in range(16): a(f"v_add_f32 {T[i]}, 1.0, {T[i]}")
        for i in range(16): a(f"v_rcp_f32 {T[i]}, {T[i]}")
        for i in range(16): a(f"v_mul_f32 {T[i]}, {Dx[i]}, {T[i]}")
        for i in range(8): a(f"v_cvt_pk_bf16_f32 {Mx[i]}, {T[2*i]}, {T[2*i+1]}")
    def tile(p):
        a("s_waitcnt vmcnt(1)")
        for s_ in range(4): a(f"ds_read_b128 {HA[4*s_:4*s_+4]}, {vHA[s_]}")
        a(f"ds_read_b64 {SD}, {aL1d} offset:{64*(p+1)}")
        a(f"ds_read_u16 {SS}, {aL1s} offset:{64*(p+1)}")
        mfma(Da,OH,WA[0:4],"0")
        mfma(Db,OH,WA[4:8],"0")
        mfma(Da,EA[p],WE[0:4],Da)
        mfma(Db,EA[p],WE[4:8],Db)
        a(f"ds_read_b32 {LE[p]}, {aL0} offset:{128*(p+2)}")
        a("s_waitcnt lgkmcnt(3)")
        mfma(Da,HA[0:4],W2[0:4],Da)
        a("s_waitcnt lgkmcnt(0)")
        calc_H()
        mfma(Da,HA[4:8],W2[8:12],Da)
        issue_H(0); issue_H(1)
        mfma(Da,HA[8:12],W2[16:20],Da)
        issue_H(2); issue_H(3)
        mfma(Da,HA[12:16],W2[24:28],Da)
        issue_E(p)
        P_addr(LE[1-p])
        mfma(Db,HA[0:4],W2[4:8],Db)
        P_reads()
        mfma(Db,HA[4:8],W2[12:16],Db)
        for k in range(4): a(f"ds_read_b64_tr_b16 {A2R[2*k:2*k+2]}, {vTR} offset:{512*k}")
        a(f"ds_write_b64 {aA2}, {vZ}")
        mfma(Db,HA[8:12],W2[20:24],Db)
        mfma(Db,HA[12:16],W2[28:32],Db)
        def mid():
            a("s_waitcnt lgkmcnt(0)")
            P_calc()
        silu(Da,M[0:8],mid)
        a.nop(2)
        mfma(D2[0:16],A2R[0:4],M[0:4],D2[0:16])
        mfma(D2[0:16],A2R[4:8],M[4:8],D2[0:16])
        silu(Db,M[8:16])
        a.nop(2)
        mfma(D2[16:32],A2R[0:4],M[8:12],D2[16:32])
        mfma(D2[16:32],A2R[4:8],M[12:16],D2[16:32])
    a(".p2align 6")
    a.label("K2_LOOP")
    tile(0)
    a(f"s_add_u32 {sT}, {sT}, 1")
    a(f"s_cmp_ge_u32 {sT}, {sNT}")
    a("s_cbranch_scc1 K2_MAIN_EXIT")
    tile(1)
    a(f"v_add_u32 {aL0}, 256, {aL0}")
    a(f"v_add_u32 {aL1s}, 128, {aL1s}")
    a(f"v_add_u32 {aL1d}, 128, {aL1d}")
    a(f"s_add_u32 {sT}, {sT}, 1")
    a(f"s_cmp_lt_u32 {sT}, {sNT}")
    a("s_cbranch_scc1 K2_LOOP")
    a.label("K2_MAIN_EXIT")
    a(f"ds_write_b64 {aA2}, {vZ}")
    a.label("K2_MAIN_EXIT0")
    stamp(a,opt,"s65")
    if DBG:
        a("s_memtime s[70:71]")
        a("s_waitcnt lgkmcnt(0)")
        a("s_sub_u32 s68, s70, s68")
    a("s_waitcnt vmcnt(0) lgkmcnt(0)")
    a(f"s_cmp_eq_u32 {sMode}, 0")
    a("s_cbranch_scc1 K2_EPI")
    a(f"s_add_u32 {sChunk}, {sChunk}, 1")
    a(f"s_cmp_lt_u32 {sChunk}, {(E+511)//512}")
    a("s_cbranch_scc1 K2_GEN")
    a.label("K2_EPI")
    WHa=W2; WHb=[T,M]
    a(f"v_lshlrev_b32 {vT1}, 4, {vL}")
    for p in range(16):
        s_,x=p>>1,p&1
        dst = W2[p*4:p*4+4] if p<8 else (T[(p-8)*4:(p-8)*4+4] if p<12 else M[(p-12)*4:(p-12)*4+4])
        a(f"s_mov_b32 {sTmp}, {WOPS+(P_WH+p)*1024}")
        a(f"buffer_load_dwordx4 {dst}, {vT1}, {sW}, {sTmp} offen")
    a(f"v_and_b32 {vT0}, 7, {vL}")
    a(f"s_sub_u32 {sTmp}, {sNJ}, 1")
    a(f"v_min_u32 {vT2}, {sTmp}, {vT0}")
    a(f"v_add_u32 {vT2}, {sN0}, {vT2}")
    a(f"v_lshl_add_u32 {vT2}, {vT2}, 7, {vHOFF}")
    for s_ in range(4):
        a(f"buffer_load_dwordx4 {HA[4*s_:4*s_+4]}, {vT2}, {sH}, 0 offen offset:{32*s_}")
    a(f"v_lshlrev_b32 {vT2}, 2, {vL}")
    a(f"s_mov_b32 {sTmp}, {WOPS+P_WX*1024}")
    a(f"buffer_load_dword {DX[0]}, {vT2}, {sW}, {sTmp} offen")
    a(f"buffer_load_dword {DX[1]}, {vT2}, {sW}, {sTmp} offen offset:256")
    HV=WA
    a(f"v_lshrrev_b32 {vT2}, 5, {vL}")
    a(f"v_lshlrev_b32 {vT2}, 2, {vT2}")
    a(f"v_add_u32 {vT3}, {sN0}, {vT2}")
    a(f"v_and_b32 {vJ}, 31, {vL}")
    a(f"v_lshlrev_b32 {vT3}, 7, {vT3}")
    a(f"v_lshl_add_u32 {aL0}, {vJ}, 1, {vT3}")
    for i in range(8): a(f"v_mov_b32 {HV[i]}, 0")
    for x in range(2):
        for q in range(4):
            a(f"buffer_load_short_d16_hi {HV[4*x+q]}, {aL0}, {sH}, 0 offen offset:{q*128+x*64}")
    a.nop(8)
    a(f"s_mov_b32 {sTmp}, {NEG_LN2}")
    a(f"v_lshrrev_b32 {vT2}, 5, {vL}")
    a(f"v_lshlrev_b32 {vT2}, 7, {vT2}")
    a(f"v_lshl_add_u32 {vT2}, {vJ}, 1, {vT2}")
    a(f"v_add_u32 {vT2}, {sHST}, {vT2}")
    for qq in range(4):
        a(f"v_mul_f32 {AD[0]}, {sTmp}, {D2[4*qq]}")
        a(f"v_mul_f32 {AD[1]}, {sTmp}, {D2[16+4*qq]}")
        a(f"v_cvt_pk_bf16_f32 {AD[2]}, {AD[0]}, {AD[1]}")
        a(f"ds_write_b16 {vT2}, {AD[2]} offset:{qq*256}")
        a(f"ds_write_b16_d16_hi {vT2}, {AD[2]} offset:{qq*256+64}")
    a(f"v_lshl_add_u32 {vT0}, {vT0}, 7, {vHOFF}")
    a(f"v_add_u32 {vT0}, {sHST}, {vT0}")
    MA=[EA[0],EA[1],A2R[0:4],A2R[4:8]]
    for s_ in range(4): a(f"ds_read_b128 {MA[s_]}, {vT0} offset:{32*s_}")
    a("s_waitcnt vmcnt(8)")
    PP=D1
    for qq in range(4):
        for c in range(1,4):
            r=PP[qq*3+c-1]
            a(f"v_mul_f32 {r}, {DX[0]}, {D2[4*qq+c]}")
            a(f"v_fmac_f32 {r}, {DX[1]}, {D2[16+4*qq+c]}")
    for sh in (1,2,4,8):
        for i in range(12): a(f"v_add_f32_dpp {PP[i]}, {PP[i]}, {PP[i]} row_shr:{sh} row_mask:0xf bank_mask:0xf bound_ctrl:0")
    for i in range(12): a(f"v_add_f32_dpp {PP[i]}, {PP[i]}, {PP[i]} row_bcast:15 row_mask:0xa bank_mask:0xf")
    a(f"v_lshrrev_b32 {vT2}, 5, {vL}")
    a(f"v_lshlrev_b32 {vT2}, 4, {vT2}")
    a(f"s_add_u32 {sTmp}, {sHST}, 2048")
    a(f"v_add_u32 {vT2}, {sTmp}, {vT2}")
    a("s_mov_b32 exec_lo, 0x80000000")
    a("s_mov_b32 exec_hi, 0x80000000")
    for qq in range(4):
        for c in range(3):
            a(f"ds_write_b32 {vT2}, {PP[qq*3+c]} offset:{qq*32+c*4}")
    a("s_mov_b64 exec, -1")
    a(f"v_mul_u32_u24 {vT2}, 86, {vL}")
    a(f"v_lshrrev_b32 {vT2}, 8, {vT2}")
    a(f"v_mul_u32_u24 {vT3}, 3, {vT2}")
    a(f"v_sub_u32 {vT3}, {vL}, {vT3}")
    a(f"v_lshlrev_b32 {vT2}, 4, {vT2}")
    a(f"v_lshl_add_u32 {vT2}, {vT3}, 2, {vT2}")
    a(f"v_add_u32 {vT2}, {sTmp}, {vT2}")
    a(f"v_min_u32 {vT2}, {LDS2-4}, {vT2}")
    a(f"ds_read_b32 {AD[0]}, {vT2}")
    a(f"v_lshl_add_u32 {vT3}, {vL}, 1, {sN06}")
    a(f"v_min_u32 {vT2}, {POS_SZ-2}, {vT3}")
    a(f"ds_read_u16_d16_hi {PS[0]}, {vT2} offset:{L_POS}")
    a(f"s_mul_i32 {sTmp}, {sNJ}, 3")
    a(f"v_cmp_gt_u32 vcc, {sTmp}, {vL}")
    a(f"v_add_u32 {vT3}, {OUT_POS}, {vT3}")
    a(f"v_mov_b32 {vT2}, 0x40000000")
    a("s_waitcnt lgkmcnt(0)")
    a(f"v_cndmask_b32 {vT3}, {vT2}, {vT3}, vcc")
    a(f"v_add_f32 {AD[0]}, {AD[0]}, {PS[0]}")
    a(f"v_cvt_pk_bf16_f32 {AD[0]}, {AD[0]}, {AD[0]}")
    a(f"buffer_store_short {AD[0]}, {vT3}, {sO}, 0 offen")
    a("s_waitcnt vmcnt(1)")
    for x in range(2):
        for s_ in range(8):
            p=2*s_+x
            B = W2[p*4:p*4+4] if p<8 else (T[(p-8)*4:(p-8)*4+4] if p<12 else M[(p-12)*4:(p-12)*4+4])
            A_ = HA[4*s_:4*s_+4] if s_<4 else MA[s_-4]
            c = "0" if s_==0 else f"{D1[16*x:16*x+16]}"
            a(f"v_mfma_f32_32x32x16_bf16 {D1[16*x:16*x+16]}, {A_}, {B}, {c}")
    a.nop(16)
    a(f"s_mov_b32 {sTmp}, {NEG_LOG2E}")
    X=[D1[q] for q in range(4)]+[D1[16+q] for q in range(4)]
    TT=[D2[i] for i in range(8)]
    for i in range(8): a(f"v_mul_f32 {TT[i]}, {sTmp}, {X[i]}")
    for i in range(8): a(f"v_exp_f32 {TT[i]}, {TT[i]}")
    for i in range(8): a(f"v_add_f32 {TT[i]}, 1.0, {TT[i]}")
    for i in range(8): a(f"v_rcp_f32 {TT[i]}, {TT[i]}")
    a("s_nop 0")
    for i in range(8): a(f"v_fma_f32 {TT[i]}, {X[i]}, {TT[i]}, {HV[i]}")
    a(f"v_lshrrev_b32 {vT2}, 5, {vL}")
    a(f"v_lshlrev_b32 {vT2}, 2, {vT2}")
    a(f"v_mov_b32 {vT3}, 0x40000000")
    for q in range(4):
        a(f"v_add_u32 {vT1}, {q}, {vT2}")
        a(f"v_cmp_gt_u32 vcc, {sNJ}, {vT1}")
        a(f"v_cvt_pk_bf16_f32 {AD[0]}, {TT[q]}, {TT[4+q]}")
        a("s_nop 0")
        a(f"v_cndmask_b32 {vT1}, {vT3}, {aL0}, vcc")
        a(f"buffer_store_short {AD[0]}, {vT1}, {sO}, 0 offen offset:{q*128}")
        a(f"buffer_store_short_d16_hi {AD[0]}, {vT1}, {sO}, 0 offen offset:{q*128+64}")
        a("s_nop 1")
    if DBG:
        a("s_waitcnt vmcnt(0)")
        stamp(a,opt,"s66")
        a(f"s_mov_b32 s67, {sNT}")
        if opt.get('dbg2',0):
            a("s_load_dwordx2 s[72:73], s[0:1], 72")
            a("s_waitcnt lgkmcnt(0)")
            a("s_sub_u32 s72, s72, 512")
            a("s_subb_u32 s73, s73, 0")
            srd(a,S(76,4),"s72","s73",256)
            a("s_mov_b32 s80, 8")
            a("s_cmp_eq_u32 s2, 0")
            a("s_cbranch_scc1 K2_DBG_A")
            a("s_mov_b32 s80, 36")
            a("s_cmp_lg_u32 s2, 200")
            a("s_cbranch_scc1 K2_NODBG")
            a.label("K2_DBG_A")
            a(f"s_cmp_lg_u32 {sWave}, 0")
            a("s_cbranch_scc1 K2_NODBG")
            a(f"v_mov_b32 {vT1}, 0")
            for i,r in enumerate(["s96","s97","s98","s99","s64","s65","s66"]):
                a(f"v_mov_b32 {vT0}, {r}")
                a(f"buffer_store_dword {vT0}, {vT1}, s[76:79], s80 offen offset:{4*i}")
                a("s_nop 1")
            a("s_waitcnt vmcnt(0)")
            a.label("K2_NODBG")
        stamp_store(a,opt,["s96","s97","s98","s99","s64","s65","s66","s67","s68"],DBG_OFF+1024*1024,sWave,vT0,vT1,sW,sTmp)
    a.label("K2_END")
    a("s_endpgm")
    return nv

HEADER='''; Kernarg layout (88 bytes, ptrs only): h, pos, e_attr, src, dst, w_e, w_x, w_h, out, debug, ws
; @launch kernel=egnn_sort_kernel grid=(256,1,1) block=(1024,1,1) lds={lds1}
; @launch kernel=egnn_main_kernel grid=(256,1,1) block=(512,1,1) lds={lds2}
.amdgcn_target "amdgcn-amd-amdhsa--gfx950"
.text
'''
def kd(name,nv,ns):
    acc=(nv+3)//4*4
    return f'''.amdhsa_kernel {name}
  .amdhsa_next_free_vgpr {acc}
  .amdhsa_next_free_sgpr {ns}
  .amdhsa_accum_offset {acc}
  .amdhsa_group_segment_fixed_size 0
  .amdhsa_kernarg_size 88
  .amdhsa_user_sgpr_count 2
  .amdhsa_user_sgpr_kernarg_segment_ptr 1
  .amdhsa_system_sgpr_workgroup_id_x 1
  .amdhsa_float_denorm_mode_32 3
.end_amdhsa_kernel
'''
def build(opt):
    out=HEADER.format(lds1=LDS1,lds2=LDS2)
    a=Asm();
    a.lines.append(".globl egnn_sort_kernel\n.p2align 8\n.type egnn_sort_kernel,@function")
    gen_k1(a,opt)
    a.lines.append(".globl egnn_main_kernel\n.p2align 8\n.type egnn_main_kernel,@function")
    nv=gen_k2(a,opt)
    out+=a.text()
    out+='.section .rodata,"a"\n.p2align 6\n'+kd("egnn_sort_kernel",40,102)+'.p2align 6\n'+kd("egnn_main_kernel",256 if nv>128 else nv,102)
    return out,nv
if __name__=="__main__":
    opt={}
    for arg in sys.argv[2:]:
        k,v=arg.split('='); opt[k]=int(v)
    txt,nv=build(opt)
    open(sys.argv[1],'w').write(txt)
    print("K2 vgprs:",nv,"LDS2",LDS2,"lines",txt.count("\n"))
```

```python
import sys, struct
from asmlib import *

N=12500; E=800000; CH=3136; NSRC=256; NBIN=256
KW=703687442
LOG2E=1.4426950408889634; LN2=0.6931471805599453
def f2u(x): return struct.unpack('<I',struct.pack('<f',x))[0]
NEG_LOG2E=f2u(-LOG2E); NEG_LN2=f2u(-LN2)
SENT=0xFFFFFFFF; MARK=0xFFFFFFFE
CELLS=0; WOPS=NBIN*NSRC*128; WS_BYTES=WOPS+36*1024
P_W2=0; P_W4=8; P_W1=10; P_WH=18; P_WD=34; P_WX=35
OUT_BYTES=N*64*2+N*3*2; OUT_POS=N*64*2
CAP=576; CAPX=672
L_OH=0; L_CNT=128; L_NRES=160; L_RES=256; L_POS=1280; POS_SZ=74*1024
L_L0=L_POS+POS_SZ; L_L1=L_L0+8*CAPX*4; L_A2=L_L1+8*CAPX*2; L_HST=L_A2+8*2048; LDS2=L_HST+8*4096
assert LDS2<=163840, LDS2
LDS1=1024+32768+64

def WSB(opt): return (32*1024*1024 if opt.get('dbg',0) else WS_BYTES)
def srd(a, s, lo, hi, size):
    a(f"s_mov_b32 {s[0]}, {lo}")
    a(f"s_and_b32 {s[1]}, {hi}, 0xffff")
    a(f"s_mov_b32 {s[2]}, {size}")
    a(f"s_mov_b32 {s[3]}, 0x20000")

DBG_OFF=16*1024*1024
def stamp(a,opt,reg):
    if not opt.get('dbg',0): return
    a("s_memrealtime s[100:101]")
    a("s_waitcnt lgkmcnt(0)")
    a(f"s_mov_b32 {reg}, s100")
def stamp_store(a,opt,regs,base,wave,vt,vt2,sws,stmp):
    if not opt.get('dbg',0): return
    a(f"s_lshl_b32 {stmp}, s2, 4")
    a(f"s_add_u32 {stmp}, {stmp}, {wave}")
    a(f"s_lshl_b32 {stmp}, {stmp}, 6")
    a(f"s_add_u32 {stmp}, {stmp}, {base}")
    a(f"s_mov_b32 exec_lo, 1")
    a(f"s_mov_b32 exec_hi, 0")
    a(f"v_mov_b32 {vt2}, 0")
    for i,r in enumerate(regs):
        a(f"v_mov_b32 {vt}, {r}")
        a(f"buffer_store_dword {vt}, {vt2}, {sws}, {stmp} offen offset:{4*i}")
        a("s_nop 1")
    a("s_waitcnt vmcnt(0)")
def S(i,n=1): return R('s',i,n)
def V(i,n=1): return R('v',i,n)

def gen_k1(a, opt):
    a.label("egnn_sort_kernel")
    sSRC=S(4,4); sDST=S(8,4); sWS=S(12,4); sW=S(16,4)
    sWave=S(33); sK=S(34); s3125=S(35)
    a("s_cmp_ge_u32 s2, 256")
    a("s_cbranch_scc1 K1_END")
    a("s_load_dwordx4 s[20:23], s[0:1], 24")
    a("s_load_dwordx2 s[24:25], s[0:1], 80")
    a("s_load_dwordx4 s[28:31], s[0:1], 40")
    a("s_load_dwordx2 s[26:27], s[0:1], 56")
    stamp(a,opt,"s50")
    a.c("LDS init: image = sentinel, counters = 0")
    a("v_lshlrev_b32 v1, 5, v0")
    for i in range(4,8): a(f"v_mov_b32 v{i}, -1")
    a("ds_write_b128 v1, v[4:7] offset:1024")
    a("ds_write_b128 v1, v[4:7] offset:1040")
    a("v_and_b32 v2, 0xff, v0")
    a("v_lshlrev_b32 v2, 2, v2")
    a("v_mov_b32 v3, 0")
    a("ds_write_b32 v2, v3")
    a("v_lshrrev_b32 v2, 6, v0")
    a(f"s_mov_b32 {sK}, {KW}")
    a(f"v_readfirstlane_b32 {sWave}, v2")
    a(f"s_mov_b32 {s3125}, 3125")
    a("s_waitcnt lgkmcnt(0)")
    srd(a,sSRC,"s20","s21",E*4)
    srd(a,sDST,"s22","s23",E*4)
    srd(a,sWS,"s24","s25",WSB(opt))
    a("s_mov_b32 s51, 0")
    a(f"s_cmp_gt_u32 {sWave}, 12")
    a("s_cbranch_scc1 K1_NOLOAD")
    a(f"s_mul_i32 s36, s2, {CH*4}")
    a("v_lshl_add_u32 v2, v0, 4, s36")
    a(f"buffer_load_dwordx4 v[8:11], v2, {sDST}, 0 offen nt")
    a(f"buffer_load_dwordx4 v[12:15], v2, {sSRC}, 0 offen nt")
    a(f"s_mov_b32 s37, {E*4}")
    a(f"v_cmp_gt_u32 vcc, {CH//4}, v0")
    a("v_cmp_gt_u32 s[38:39], s37, v2")
    a("s_nop 1")
    a("s_and_b64 s[40:41], vcc, s[38:39]")
    a("s_barrier")
    a.c("append edges")
    a("s_mov_b64 exec, s[40:41]")
    a("s_cbranch_execz K1_APPEND_DONE")
    a("v_mov_b32 v16, 511")
    a("v_mov_b32 v17, 1")
    a("v_mov_b32 v18, 32768")
    a("s_waitcnt vmcnt(0)")
    stamp(a,opt,"s51")
    for u in range(4):
        d=f"v{8+u}"; s=f"v{12+u}"; W=f"v{20+u}"; B=f"v{24+u}"; Rr=f"v{28+u}"; RK=f"v{32+u}"
        a(f"v_mul_hi_u32 {W}, {d}, {sK}")
        a(f"v_lshl_or_b32 v38, v0, 2, {u}")
        a(f"v_mad_u32_u24 v36, {W}, {s3125}, v16")
        a(f"v_lshrrev_b32 {B}, 1, {W}")
        a(f"v_lshrrev_b32 v36, 9, v36")
        a(f"v_and_b32 {B}, 0x3fc, {B}")
        a(f"v_sub_u32 v36, {d}, v36")
        a(f"ds_add_rtn_u32 {RK}, {B}, v17")
        a(f"v_and_b32 v37, 7, {W}")
        a(f"v_lshl_or_b32 v36, v37, 3, v36")
        a(f"v_lshl_or_b32 {Rr}, {s}, 12, v38")
        a(f"v_lshl_or_b32 {Rr}, v36, 26, {Rr}")
    for u in range(4):
        B=f"v{24+u}"; Rr=f"v{28+u}"; RK=f"v{32+u}"
        a("s_waitcnt lgkmcnt(3)")
        a(f"v_cmp_gt_u32 vcc, 32, {RK}")
        a(f"v_lshlrev_b32 v36, 5, {B}")
        a(f"v_lshl_add_u32 v36, {RK}, 2, v36")
        a(f"v_cndmask_b32 v36, v18, v36, vcc")
        a(f"ds_write_b32 v36, {Rr} offset:1024")
    a.label("K1_APPEND_DONE")
    a("s_mov_b64 exec, -1")
    a("s_branch K1_JOIN")
    a.label("K1_NOLOAD")
    a("s_barrier")
    a(f"s_cmp_lg_u32 {sWave}, 15")
    a("s_cbranch_scc1 K1_JOIN")
    a("s_cmp_ge_u32 s2, 36")
    a("s_cbranch_scc1 K1_JOIN")
    a.c("weight operand piece s2")
    a("v_and_b32 v1, 63, v0")
    a("v_and_b32 v2, 31, v0")
    a("v_lshrrev_b32 v3, 5, v1")
    a("s_cmp_ge_u32 s2, 34")
    a("s_cbranch_scc1 K1_WSPECIAL")
    a("s_and_b32 s43, s2, 1")
    a(f"s_mov_b32 s44, {NEG_LOG2E}")
    srd(a,sW,"s28","s29",145*128)
    a("s_lshr_b32 s45, s2, 1")
    a("s_lshl_b32 s42, s45, 4")
    a("s_add_u32 s42, s42, 64")
    a("s_cmp_lt_u32 s2, 8")
    a("s_cbranch_scc1 K1_WGO")
    a("s_mov_b32 s42, 129")
    a("s_cmp_lt_u32 s2, 10")
    a("s_cbranch_scc1 K1_WGO")
    a("s_mov_b32 s44, 1.0")
    a("s_sub_u32 s45, s2, 10")
    a("s_lshr_b32 s45, s45, 1")
    a("s_lshl_b32 s42, s45, 4")
    a("s_cmp_lt_u32 s2, 18")
    a("s_cbranch_scc1 K1_WGO")
    srd(a,sW,"s26","s27",128*128)
    a("s_sub_u32 s45, s2, 18")
    a("s_lshr_b32 s45, s45, 1")
    a("s_lshl_b32 s42, s45, 4")
    a.label("K1_WGO")
    a("v_lshl_add_u32 v4, v3, 3, s42")
    a("v_lshlrev_b32 v4, 7, v4")
    a("s_lshl_b32 s45, s43, 5")
    a("v_add_u32 v5, s45, v2")
    a("v_lshl_add_u32 v4, v5, 1, v4")
    for t in range(8): a(f"v_mov_b32 v{8+t}, 0")
    for t in range(8): a(f"buffer_load_short_d16_hi v{8+t}, v4, {sW}, 0 offen offset:{t*128}")
    a("s_waitcnt vmcnt(0)")
    for t in range(8): a(f"v_mul_f32 v{8+t}, s44, v{8+t}")
    for r in range(4): a(f"v_cvt_pk_bf16_f32 v{20+r}, v{8+2*r}, v{9+2*r}")
    a("s_lshl_b32 s45, s2, 10")
    a(f"s_add_u32 s45, s45, {WOPS}")
    a("v_lshlrev_b32 v5, 4, v1")
    a(f"buffer_store_dwordx4 v[20:23], v5, {sWS}, s45 offen")
    a("s_branch K1_JOIN")
    a.label("K1_WSPECIAL")
    a("s_cmp_eq_u32 s2, 35")
    a("s_cbranch_scc1 K1_WX")
    srd(a,sW,"s28","s29",145*128)
    a("v_lshlrev_b32 v4, 1, v2")
    a("v_mov_b32 v8, 0")
    a("v_mov_b32 v9, 0")
    a(f"s_mov_b32 s45, {128*128}")
    a(f"buffer_load_short_d16_hi v8, v4, {sW}, s45 offen")
    a(f"buffer_load_short_d16_hi v9, v4, {sW}, s45 offen offset:64")
    a(f"s_mov_b32 s44, {NEG_LOG2E}")
    a("v_cmp_lt_u32 vcc, 31, v1")
    a("s_waitcnt vmcnt(0)")
    for x in range(2):
        v=f"v{8+x}"
        a(f"v_mul_f32 {v}, s44, {v}")
        a(f"v_cvt_pk_bf16_f32 v10, {v}, {v}")
        a(f"v_and_b32 v10, 0xffff0000, v10")
        a(f"v_sub_f32 v11, {v}, v10")
        a(f"v_cvt_pk_bf16_f32 v11, v11, v11")
        a(f"v_and_b32 v11, 0xffff0000, v11")
        a(f"s_nop 0")
        a(f"v_cndmask_b32 v{12+x}, v10, v11, vcc")
    a(f"s_mov_b32 s45, {WOPS+P_WD*1024}")
    a("v_lshlrev_b32 v5, 2, v1")
    a(f"buffer_store_dword v12, v5, {sWS}, s45 offen")
    a(f"buffer_store_dword v13, v5, {sWS}, s45 offen offset:256")
    a("s_branch K1_JOIN")
    a.label("K1_WX")
    srd(a,sW,"s30","s31",128)
    a("v_lshlrev_b32 v4, 1, v2")
    a("v_mov_b32 v8, 0")
    a("v_mov_b32 v9, 0")
    a(f"buffer_load_short_d16_hi v8, v4, {sW}, 0 offen")
    a(f"buffer_load_short_d16_hi v9, v4, {sW}, 0 offen offset:64")
    a(f"s_mov_b32 s44, {NEG_LN2}")
    a("s_waitcnt vmcnt(0)")
    a("v_mul_f32 v8, s44, v8")
    a("v_mul_f32 v9, s44, v9")
    a(f"s_mov_b32 s45, {WOPS+P_WX*1024}")
    a("v_lshlrev_b32 v5, 2, v1")
    a(f"buffer_store_dword v8, v5, {sWS}, s45 offen")
    a(f"buffer_store_dword v9, v5, {sWS}, s45 offen offset:256")
    a.label("K1_JOIN")
    a("s_waitcnt lgkmcnt(0)")
    a("s_barrier")
    stamp(a,opt,"s52")
    a.c("copy image out: pieces t and t+1024 (16 B each)")
    a("v_lshlrev_b32 v1, 4, v0")
    a("v_lshrrev_b32 v2, 3, v0")
    a("v_lshlrev_b32 v3, 2, v2")
    a("ds_read_b128 v[4:7], v1 offset:1024")
    a(f"ds_read_b128 v[8:11], v1 offset:{1024+16384}")
    a("ds_read_b32 v12, v3")
    a("ds_read_b32 v13, v3 offset:512")
    a("v_and_b32 v14, 7, v0")
    a("v_cmp_eq_u32 vcc, 0, v14")
    a("v_mov_b32 v15, -1")
    a("v_lshlrev_b32 v16, 15, v2")
    a("v_cndmask_b32_e64 v17, -1, -2, vcc")
    a("v_lshl_add_u32 v16, v14, 4, v16")
    a("s_lshl_b32 s36, s2, 7")
    a(f"s_add_u32 s37, s36, {128*32768}")
    a("s_waitcnt lgkmcnt(0)")
    for k,(d,c,so) in enumerate(((4,12,"s36"),(8,13,"s37"))):
        a(f"v_cmp_lt_u32 vcc, 32, v{c}")
        a("s_nop 1")
        a(f"v_cndmask_b32 v{d}, v{d}, v17, vcc")
        for i in range(1,4): a(f"v_cndmask_b32 v{d+i}, v{d+i}, v15, vcc")
        a(f"buffer_store_dwordx4 v[{d}:{d+3}], v16, {sWS}, {so} offen"+["",""," nt"," sc1"," sc0 sc1"][opt.get('k1st',1)])
    if opt.get('dbg',0):
        a("s_waitcnt vmcnt(0)")
        stamp(a,opt,"s53")
        if opt.get('dbg2',0):
            a("s_load_dwordx2 s[46:47], s[0:1], 72")
            a("s_waitcnt lgkmcnt(0)")
            srd(a,S(56,4),"s46","s47",256)
            a("s_cmp_lg_u32 s2, 0")
            a("s_cbranch_scc1 K1_NODBG")
            a(f"s_cmp_lg_u32 {sWave}, 0")
            a("s_cbranch_scc1 K1_NODBG")
            a("v_mov_b32 v2, 0")
            a("v_mov_b32 v1, s50")
            a("buffer_store_dword v1, v2, s[56:59], 0 offen")
            a("s_nop 1")
            a("v_mov_b32 v1, s53")
            a("buffer_store_dword v1, v2, s[56:59], 0 offen offset:4")
            a("s_waitcnt vmcnt(0)")
            a.label("K1_NODBG")
        stamp_store(a,opt,["s50","s51","s52","s53"],DBG_OFF,sWave,"v1","v2",sWS,"s45")
    a.label("K1_END")
    a("s_endpgm")

def gen_k2(a, opt):
    DBG=opt.get('dbg',0)
    a.label("egnn_main_kernel")
    sH=S(4,4); sE=S(8,4); sW=S(12,4); sO=S(16,4); sP=S(20,4); sS=S(24,4); sD=S(28,4)
    sWave=S(32); sN0=S(33); sNJ=S(34); sN06=S(35); sNT=S(36); sT=S(37); sMode=S(38); sChunk=S(39)
    sMaskE=S(40); s128=S(41); sK=S(42); s3125=S(43); sFirst=S(44); sCnt=S(45); sTmp=S(46); sTmp2=S(47)
    sM0=S(48,4); sSave=S(52,2); sAny=S(54,2); sNR=S(56); sI=S(57); sC=S(58); sWsrc=S(59); sMark=S(60); s168=S(61); sHST=S(62); sTmp3=S(63)
    sMask=[S(64+2*i,2) for i in range(16)]
    vr=Regs(1,256,'v')
    vL=vr.alloc('lane')
    W2=vr.alloc('W2',32,4); WE=vr.alloc('WE',8,4); WA=vr.alloc('WA',8,4); D2=vr.alloc('D2',32,4)
    D1=vr.alloc('D1',32,4); HA=vr.alloc('HA',16,4); T=vr.alloc('T',16,4); M=vr.alloc('M',16,4)
    A2R=vr.alloc('A2R',8,4); EA=[vr.alloc('EA0',4,4),vr.alloc('EA1',4,4)]; OH=vr.alloc('OH',4,4)
    vHA=vr.alloc('vHA',4); vKD=vr.alloc('vKD',4); vTR=vr.alloc('vTR'); vE64=vr.alloc('vE64'); vHOFF=vr.alloc('vHOFF')
    vZ=vr.alloc('vZ',2,2); aL0=vr.alloc('aL0'); aL1s=vr.alloc('aL1s'); aL1d=vr.alloc('aL1d')
    LE=[vr.alloc('LE0'),vr.alloc('LE1')]; aA2=vr.alloc('aA2'); aA2n=vr.alloc('aA2n')
    SD=vr.alloc('SD',2,2); SS=vr.alloc('SS'); PS=vr.alloc('PS',3); PD=vr.alloc('PD',3)
    E01=vr.alloc('E01',2,2); DX=vr.alloc('DX',3); DD=vr.alloc('DD'); AD=vr.alloc('AD',4); vJ=vr.alloc('vJ'); vT0=vr.alloc('vT0'); vT1=vr.alloc('vT1'); vT2=vr.alloc('vT2'); vT3=vr.alloc('vT3')
    vOne=vr.alloc('vOne'); v511=vr.alloc('v511')
    nv=vr.next
    REC=D1[0:16]; WAD=D1[16:32]; RK=HA
    W1=D2
    HW=T
    WD=M[0:2]

    a("s_cmp_ge_u32 s2, 256")
    a("s_cbranch_scc1 K2_END")
    a("s_load_dwordx4 s[64:67], s[0:1], 0")
    a("s_load_dwordx2 s[68:69], s[0:1], 16")
    a("s_load_dwordx4 s[72:75], s[0:1], 24")
    a("s_load_dwordx2 s[70:71], s[0:1], 64")
    a("s_load_dwordx2 s[76:77], s[0:1], 80")
    stamp(a,opt,"s96")
    a(f"v_and_b32 {vL}, 63, v0")
    a(f"v_lshrrev_b32 {vT0}, 6, v0")
    a(f"s_mov_b32 {sMaskE}, {'0' if opt.get('noE',0) else '0xffffffe0'}")
    a(f"v_readfirstlane_b32 {sWave}, {vT0}")
    a(f"s_mov_b32 {s128}, {0 if opt.get('noH',0) else 128}")
    a(f"s_mov_b32 {sK}, {KW}")
    a(f"s_mov_b32 {s3125}, 3125")
    a(f"s_mov_b32 {sMark}, {MARK}")
    a(f"s_mov_b32 {s168}, 168")
    a(f"s_mov_b32 {sFirst}, 1")
    a(f"s_mov_b32 {sMode}, 0")
    a(f"s_mov_b32 {sChunk}, 0")
    a(f"v_mov_b32 {vOne}, 1")
    a(f"v_mov_b32 {v511}, 511")
    a(f"v_mov_b32 {vZ[0]}, 0")
    a(f"v_mov_b32 {vZ[1]}, 0")
    for i in range(3):
        a(f"v_mov_b32 {PS[i]}, 0"); a(f"v_mov_b32 {PD[i]}, 0")
    a(f"s_lshl_b32 {sTmp}, s2, 3")
    a(f"s_add_u32 {sTmp}, {sTmp}, {sWave}")
    a(f"s_mul_i32 {sN0}, {sTmp}, 3125")
    a(f"s_add_u32 {sNJ}, {sN0}, {3125+511}")
    a(f"s_add_u32 {sN0}, {sN0}, 511")
    a(f"s_lshr_b32 {sN0}, {sN0}, 9")
    a(f"s_lshr_b32 {sNJ}, {sNJ}, 9")
    a(f"s_sub_u32 {sNJ}, {sNJ}, {sN0}")
    a(f"s_mul_i32 {sN06}, {sN0}, 6")
    a(f"s_lshl_b32 {sHST}, {sWave}, 12")
    a(f"s_add_u32 {sHST}, {sHST}, {L_HST}")
    for i in range(4): a(f"s_add_u32 {sM0[i]}, {sHST}, {1024*i}")
    a.c("LDS init: A2 matrix zero (2KB/wave), counters, onehot table")
    a(f"s_lshl_b32 {sTmp}, {sWave}, 11")
    a(f"s_add_u32 {sTmp}, {sTmp}, {L_A2}")
    for i in range(4): a(f"v_mov_b32 {T[i]}, 0")
    a(f"v_lshl_add_u32 {vT0}, {vL}, 5, {sTmp}")
    a(f"ds_write_b128 {vT0}, {T[0:4]}")
    a(f"ds_write_b128 {vT0}, {T[0:4]} offset:16")
    a(f"v_and_b32 {vT1}, 31, {vL}")
    a(f"v_lshl_add_u32 {vE64}, {vT1}, 6, {sTmp}")
    a(f"v_lshrrev_b32 {vT2}, 5, {vL}")
    a(f"v_lshlrev_b32 {vHOFF}, 4, {vT2}")
    a(f"v_bfe_u32 {vT0}, {vL}, 2, 2")
    a(f"v_lshl_add_u32 {vT0}, {vT2}, 2, {vT0}")
    a(f"v_lshl_add_u32 {vTR}, {vT0}, 6, {sTmp}")
    a(f"v_bfe_u32 {vT0}, {vL}, 4, 1")
    a(f"v_lshl_add_u32 {vTR}, {vT0}, 5, {vTR}")
    a(f"v_and_b32 {vT0}, 3, {vL}")
    a(f"v_lshl_add_u32 {vTR}, {vT0}, 3, {vTR}")
    a(f"v_and_b32 {vT0}, 3, {vT1}")
    a(f"v_bfe_u32 {vT3}, {vT1}, 4, 1")
    a(f"v_lshl_or_b32 {vT3}, {vT3}, 2, {vT0}")
    a(f"v_lshlrev_b32 {vT0}, 3, {vT0}")
    a(f"v_lshrrev_b32 {vJ}, 2, {vT1}")
    a(f"v_add_u32 {vT0}, {vT0}, {vJ}")
    a(f"v_lshl_add_u32 {vT0}, {vT0}, 7, {sHST}")
    for s_ in range(4):
        a(f"v_add_u32 {vJ}, {2*s_}, {vT2}")
        a(f"v_xor_b32 {vJ}, {vJ}, {vT3}")
        a(f"v_lshl_add_u32 {vHA[s_]}, {vJ}, 4, {vT0}")
    a(f"v_and_b32 {vT0}, 7, {vL}")
    a(f"v_lshlrev_b32 {vT3}, 2, {vT2}")
    a(f"v_xor_b32 {vT0}, {vT0}, {vT3}")
    for i in range(4):
        a(f"v_xor_b32 {vJ}, {i}, {vT0}")
        a(f"v_lshlrev_b32 {vKD[i]}, 4, {vJ}")
    a(f"s_cmp_lg_u32 {sWave}, 0")
    a("s_cbranch_scc1 K2_INIT_DONE")
    a(f"v_lshrrev_b32 {vT0}, 2, {vL}")
    a(f"v_and_b32 {vT1}, 3, {vL}")
    a(f"v_lshlrev_b32 {vT3}, 1, {vT1}")
    a(f"v_mov_b32 {vJ}, 0")
    a(f"v_cmp_eq_u32 vcc, {vT0}, {vT3}")
    a(f"v_mov_b32 {AD[0]}, 0x3f80")
    a(f"v_mov_b32 {AD[1]}, 0x3f800000")
    a(f"v_cndmask_b32 {vJ}, {vJ}, {AD[0]}, vcc")
    a(f"v_add_u32 {vT3}, 1, {vT3}")
    a(f"v_cmp_eq_u32 vcc, {vT0}, {vT3}")
    a("s_nop 1")
    a(f"v_cndmask_b32 {vJ}, {vJ}, {AD[1]}, vcc")
    a(f"v_cmp_eq_u32 vcc, 6, {vT0}")
    a(f"v_mov_b32 {AD[2]}, 0")
    a("s_nop 0")
    a(f"v_cndmask_b32 {AD[2]}, {AD[2]}, {AD[1]}, vcc")
    a(f"v_cmp_eq_u32 vcc, 3, {vT1}")
    a("s_nop 1")
    a(f"v_cndmask_b32 {vJ}, {vJ}, {AD[2]}, vcc")
    a(f"v_cmp_lt_u32 vcc, 31, {vL}")
    a(f"v_lshlrev_b32 {vT0}, 2, {vL}")
    a("s_nop 0")
    a(f"v_cndmask_b32 {vJ}, {vJ}, {vZ[0]}, vcc")
    a(f"ds_write_b32 {vT0}, {vJ}")
    a.label("K2_INIT_DONE")
    a("s_waitcnt lgkmcnt(0)")
    srd(a,sH,"s64","s65",N*128)
    srd(a,sP,"s66","s67",N*6)
    srd(a,sE,"s68","s69",E*32)
    srd(a,sO,"s70","s71",OUT_BYTES)
    srd(a,sS,"s72","s73",E*4)
    srd(a,sD,"s74","s75",E*4)
    srd(a,sW,"s76","s77",WSB(opt))
    a.c("cells loads: 16 dwords per lane")
    a(f"s_lshl_b32 {sTmp}, s2, 15")
    a(f"s_lshl_b32 {sTmp2}, {sWave}, 8")
    a(f"s_add_u32 {sTmp}, {sTmp}, {sTmp2}")
    a(f"v_lshl_add_u32 {vT0}, {vL}, 2, {sTmp}")
    for s_ in range(16):
        if s_%2==0: a(f"s_mov_b32 {sTmp}, {CELLS+(s_//2)*4096}")
        a(f"buffer_load_dword {REC[s_]}, {vT0}, {sW}, {sTmp} offen offset:{(s_%2)*2048}")
    a.c("pos table -> LDS (10 DMA per wave)")
    a(f"v_lshlrev_b32 {vT1}, 4, {vL}")
    a(f"s_lshl_b32 {sTmp2}, {sWave}, 10")
    for k in range(10):
        if k<9:
            a(f"s_add_u32 {sTmp}, {sTmp2}, {k*8192}")
        else:
            a(f"s_cmp_lt_u32 {sWave}, 2")
            a(f"s_cselect_b32 {sTmp}, 8192, 0")
            a(f"s_add_u32 {sTmp}, {sTmp}, {8*8192}")
            a(f"s_add_u32 {sTmp}, {sTmp}, {sTmp2}")
        a(f"s_add_u32 {sTmp3}, {sTmp}, {L_POS}")
        a(f"s_mov_b32 m0, {sTmp3}")
        a("s_nop 0")
        a(f"buffer_load_dwordx4 {vT1}, {sP}, {sTmp} offen lds")
    a.c("W1 operands, window h rows, WD, W2, W4")
    for p in range(8):
        s_,x=p>>1,p&1
        a(f"s_mov_b32 {sTmp}, {WOPS+(P_W1+p)*1024}")
        a(f"buffer_load_dwordx4 {W1[(s_*2+x)*4:(s_*2+x)*4+4]}, {vT1}, {sW}, {sTmp} offen")
    a(f"v_bfe_u32 {vT0}, {vL}, 3, 1")
    a(f"v_and_b32 {vT2}, 3, {vL}")
    a(f"v_lshl_add_u32 {vT0}, {vT0}, 2, {vT2}")
    a(f"s_sub_u32 {sTmp}, {sNJ}, 1")
    a(f"v_min_u32 {vT0}, {sTmp}, {vT0}")
    a(f"v_add_u32 {vT0}, {sN0}, {vT0}")
    a(f"v_lshl_add_u32 {vT0}, {vT0}, 7, {vHOFF}")
    for s_ in range(4):
        a(f"buffer_load_dwordx4 {HW[4*s_:4*s_+4]}, {vT0}, {sH}, 0 offen offset:{32*s_}")
    a(f"v_lshlrev_b32 {vT2}, 2, {vL}")
    a(f"s_mov_b32 {sTmp}, {WOPS+P_WD*1024}")
    a(f"buffer_load_dword {WD[0]}, {vT2}, {sW}, {sTmp} offen")
    a(f"buffer_load_dword {WD[1]}, {vT2}, {sW}, {sTmp} offen offset:256")
    for p in range(8):
        a(f"s_mov_b32 {sTmp}, {WOPS+(P_W2+p)*1024}")
        a(f"buffer_load_dwordx4 {W2[p*4:p*4+4]}, {vT1}, {sW}, {sTmp} offen")
    for p in range(2):
        a(f"s_mov_b32 {sTmp}, {WOPS+(P_W4+p)*1024}")
        a(f"buffer_load_dwordx4 {WE[p*4:p*4+4]}, {vT1}, {sW}, {sTmp} offen")
    a("s_barrier")
    a.c("append cell records to the window lists")
    a("s_waitcnt vmcnt(34)")
    stamp(a,opt,"s97")
    a(f"s_mov_b64 {sAny}, 0")
    for s_ in range(16):
        a(f"v_cmp_gt_u32 {sMask[s_]}, {sMark}, {REC[s_]}")
        a(f"v_cmp_eq_u32 vcc, {sMark}, {REC[s_]}")
        a(f"v_lshrrev_b32 {WAD[s_]}, 27, {REC[s_]}")
        a(f"v_and_b32 {WAD[s_]}, 0x1c, {WAD[s_]}")
        a(f"s_or_b64 {sAny}, {sAny}, vcc")
    for s_ in range(16):
        a(f"s_mov_b64 exec, {sMask[s_]}")
        a(f"ds_add_rtn_u32 {RK[s_]}, {WAD[s_]}, {vOne} offset:{L_CNT}")
        if s_==7: a("s_waitcnt lgkmcnt(4)")
    a("s_mov_b64 exec, -1")
    a(f"s_lshl_b32 {sTmp}, {sWave}, 1")
    a(f"v_lshrrev_b32 {vT0}, 5, {vL}")
    a(f"v_add_u32 {vT0}, {sTmp}, {vT0}")
    a(f"v_mul_u32_u24 {vT0}, {CH}, {vT0}")
    a(f"v_mov_b32 {vT1}, {L_L0}")
    a(f"v_mov_b32 {vT2}, {L_L1}")
    a("s_waitcnt lgkmcnt(0)")
    for s_ in range(16):
        a(f"s_mov_b64 exec, {sMask[s_]}")
        a(f"s_mov_b32 {sTmp}, {s_*16*CH}")
        a(f"v_min_u32 {RK[s_]}, {CAPX-1}, {RK[s_]}")
        a(f"v_and_b32 {vT3}, 0xfff, {REC[s_]}")
        a(f"v_mad_u32_u24 {RK[s_]}, {WAD[s_]}, {s168}, {RK[s_]}")
        a(f"v_add3_u32 {vT3}, {vT3}, {vT0}, {sTmp}")
        a(f"v_bfe_u32 {vJ}, {REC[s_]}, 26, 3")
        a(f"v_lshl_add_u32 {AD[0]}, {RK[s_]}, 2, {vT1}")
        a(f"v_lshl_or_b32 {vT3}, {vT3}, 5, {vJ}")
        a(f"v_lshl_add_u32 {AD[1]}, {RK[s_]}, 1, {vT2}")
        a(f"v_bfe_u32 {vJ}, {REC[s_]}, 12, 14")
        a(f"ds_write_b32 {AD[0]}, {vT3}")
        a(f"ds_write_b16 {AD[1]}, {vJ}")
    a("s_mov_b64 exec, -1")
    a.c("overflowed cells -> rescan list (rare)")
    a(f"s_cmp_eq_u64 {sAny}, 0")
    a("s_cbranch_scc1 K2_NOMARK")
    a(f"v_lshrrev_b32 {vT0}, 5, {vL}")
    a(f"s_lshl_b32 {sTmp}, {sWave}, 1")
    a(f"v_add_u32 {vT0}, {sTmp}, {vT0}")
    a(f"v_mov_b32 {vT1}, {L_NRES}")
    for s_ in range(16):
        a(f"v_cmp_eq_u32 vcc, {sMark}, {REC[s_]}")
        a(f"s_and_saveexec_b64 {sSave}, vcc")
        a(f"s_cbranch_execz K2_MK{s_}")
        a(f"ds_add_rtn_u32 {vT2}, {vT1}, {vOne}")
        a(f"v_add_u32 {vT3}, {16*s_}, {vT0}")
        a("s_waitcnt lgkmcnt(0)")
        a(f"v_lshlrev_b32 {vT2}, 2, {vT2}")
        a(f"ds_write_b32 {vT2}, {vT3} offset:{L_RES}")
        a.label(f"K2_MK{s_}")
        a(f"s_mov_b64 exec, {sSave}")
    a.label("K2_NOMARK")
    a("s_waitcnt vmcnt(24) lgkmcnt(0)")
    stamp(a,opt,"s98")
    a("s_barrier")
    stamp(a,opt,"s99")
    a.c("rescan?")
    a(f"v_mov_b32 {vT0}, {L_NRES}")
    a(f"ds_read_b32 {vT1}, {vT0}")
    a("s_waitcnt lgkmcnt(0)")
    a(f"v_readfirstlane_b32 {sNR}, {vT1}")
    a("s_nop 3")
    a(f"s_min_u32 {sNR}, {sNR}, 256")
    a(f"s_cmp_eq_u32 {sNR}, 0")
    a("s_cbranch_scc1 K2_CHECK")
    a(f"s_mov_b32 {sI}, 0")
    a.label("K2_RESCAN_I")
    a(f"s_lshl_b32 {sTmp}, {sI}, 2")
    a(f"s_add_u32 {sTmp}, {sTmp}, {L_RES}")
    a(f"v_mov_b32 {vT0}, {sTmp}")
    a(f"ds_read_b32 {vT1}, {vT0}")
    a("s_waitcnt lgkmcnt(0)")
    a(f"v_readfirstlane_b32 {sWsrc}, {vT1}")
    a("s_nop 3")
    a(f"s_min_u32 {sWsrc}, {sWsrc}, 255")
    a(f"s_mov_b32 {sC}, 0")
    a.label("K2_RESCAN_C")
    def append_raw(lim_local):
        a(f"v_lshlrev_b32 {vT1}, 2, {vT0}")
        a(f"buffer_load_dword {AD[0]}, {vT1}, {sD}, 0 offen")
        a(f"buffer_load_dword {AD[1]}, {vT1}, {sS}, 0 offen")
        a("s_waitcnt vmcnt(0)")
        a(f"v_mul_hi_u32 {vT2}, {AD[0]}, {sK}")
        a(f"v_lshrrev_b32 {vT3}, 3, {vT2}")
        a(f"v_cmp_eq_u32 vcc, s2, {vT3}")
        a("s_nop 1")
        a(f"s_and_b64 vcc, vcc, {sAny}")
        a(f"s_and_saveexec_b64 {sSave}, vcc")
        a(f"s_cbranch_execz {lim_local}")
        a(f"v_mad_u32_u24 {vT3}, {vT2}, {s3125}, {v511}")
        a(f"v_and_b32 {vT2}, 7, {vT2}")
        a(f"v_lshrrev_b32 {vT3}, 9, {vT3}")
        a(f"v_lshlrev_b32 {vT2}, 2, {vT2}")
        a(f"v_sub_u32 {vT3}, {AD[0]}, {vT3}")
        a(f"ds_add_rtn_u32 {AD[2]}, {vT2}, {vOne} offset:{L_CNT}")
        a(f"v_lshl_or_b32 {vT0}, {vT0}, 5, {vT3}")
        a("s_waitcnt lgkmcnt(0)")
        a(f"v_min_u32 {AD[2]}, {CAPX-1}, {AD[2]}")
        a(f"v_mad_u32_u24 {AD[2]}, {vT2}, {s168}, {AD[2]}")
        a(f"v_mov_b32 {vT2}, {L_L0}")
        a(f"v_mov_b32 {vT3}, {L_L1}")
        a(f"v_lshl_add_u32 {vT2}, {AD[2]}, 2, {vT2}")
        a(f"v_lshl_add_u32 {vT3}, {AD[2]}, 1, {vT3}")
        a(f"ds_write_b32 {vT2}, {vT0}")
        a(f"ds_write_b16 {vT3}, {AD[1]}")
        a.label(lim_local)
        a(f"s_mov_b64 exec, {sSave}")
    a(f"s_lshl_b32 {sTmp}, {sC}, 9")
    a(f"v_add_u32 {vT1}, {sTmp}, v0")
    a(f"s_mul_i32 {sTmp2}, {sWsrc}, {CH}")
    a(f"v_add_u32 {vT0}, {sTmp2}, {vT1}")
    a(f"v_cmp_gt_u32 vcc, {CH}, {vT1}")
    a(f"s_mov_b32 {sTmp}, {E}")
    a(f"v_cmp_gt_u32 {sAny}, {sTmp}, {vT0}")
    a("s_nop 1")
    a(f"s_and_b64 {sAny}, {sAny}, vcc")
    append_raw("K2_RA1")
    a(f"s_add_u32 {sC}, {sC}, 1")
    a(f"s_cmp_lt_u32 {sC}, 7")
    a("s_cbranch_scc1 K2_RESCAN_C")
    a(f"s_add_u32 {sI}, {sI}, 1")
    a(f"s_cmp_lt_u32 {sI}, {sNR}")
    a("s_cbranch_scc1 K2_RESCAN_I")
    a("s_waitcnt lgkmcnt(0)")
    a("s_barrier")
    a.label("K2_CHECK")
    a(f"v_and_b32 {vT0}, 7, {vL}")
    a(f"v_lshlrev_b32 {vT0}, 2, {vT0}")
    a(f"ds_read_b32 {vT1}, {vT0} offset:{L_CNT}")
    a("s_waitcnt lgkmcnt(0)")
    a(f"v_cmp_lt_u32 vcc, {CAP}, {vT1}")
    a(f"v_readlane_b32 {sCnt}, {vT1}, {sWave}")
    a("s_nop 3")
    a("s_cmp_eq_u64 vcc, 0")
    a("s_cbranch_scc1 K2_MAIN")
    a.c("generic (slow) mode: raw scan of all edges, 512 per round")
    a(f"s_mov_b32 {sMode}, 1")
    a.label("K2_GEN")
    a("s_barrier")
    a(f"s_cmp_lg_u32 {sWave}, 0")
    a("s_cbranch_scc1 K2_GEN1")
    a(f"v_and_b32 {vT0}, 7, {vL}")
    a(f"v_lshlrev_b32 {vT0}, 2, {vT0}")
    a(f"ds_write_b32 {vT0}, {vZ[0]} offset:{L_CNT}")
    a("s_waitcnt lgkmcnt(0)")
    a.label("K2_GEN1")
    a("s_barrier")
    a(f"s_lshl_b32 {sTmp}, {sChunk}, 9")
    a(f"v_add_u32 {vT0}, {sTmp}, v0")
    a(f"s_mov_b32 {sTmp}, {E}")
    a(f"v_cmp_gt_u32 {sAny}, {sTmp}, {vT0}")
    a("s_nop 1")
    append_raw("K2_RA2")
    a("s_waitcnt lgkmcnt(0)")
    a("s_barrier")
    a(f"s_lshl_b32 {sTmp}, {sWave}, 2")
    a(f"v_mov_b32 {vT0}, {sTmp}")
    a(f"ds_read_b32 {vT1}, {vT0} offset:{L_CNT}")
    a("s_waitcnt lgkmcnt(0)")
    a(f"v_readfirstlane_b32 {sCnt}, {vT1}")
    a("s_nop 3")
    a.label("K2_MAIN")
    a(f"s_min_u32 {sCnt}, {sCnt}, {CAP}")
    a(f"s_add_u32 {sNT}, {sCnt}, 31")
    a(f"s_lshr_b32 {sNT}, {sNT}, 5")
    a(f"s_mul_i32 {sTmp}, {sWave}, {CAPX*4}")
    a(f"s_add_u32 {sTmp}, {sTmp}, {L_L0}")
    a(f"s_mul_i32 {sTmp2}, {sWave}, {CAPX*2}")
    a(f"s_add_u32 {sTmp2}, {sTmp2}, {L_L1}")
    a(f"v_add_u32 {vT0}, {sCnt}, {vL}")
    a(f"v_lshl_add_u32 {vT1}, {vT0}, 2, {sTmp}")
    a(f"v_lshl_add_u32 {vT2}, {vT0}, 1, {sTmp2}")
    a(f"v_mov_b32 {vT3}, 7")
    a(f"ds_write_b32 {vT1}, {vT3}")
    a(f"ds_write_b16 {vT2}, {vZ[0]}")
    a("s_mov_b32 exec_hi, 0")
    a(f"ds_write_b32 {vT1}, {vT3} offset:256")
    a(f"ds_write_b16 {vT2}, {vZ[0]} offset:128")
    a("s_mov_b64 exec, -1")
    a(f"v_and_b32 {vT0}, 31, {vL}")
    a(f"v_lshl_add_u32 {aL0}, {vT0}, 2, {sTmp}")
    a(f"v_lshl_add_u32 {aL1s}, {vT0}, 1, {sTmp2}")
    a(f"v_lshrrev_b32 {vT0}, 3, {vL}")
    a(f"v_lshl_add_u32 {aL1d}, {vT0}, 3, {sTmp2}")
    a(f"ds_read_b32 {LE[0]}, {aL0}")
    a(f"ds_read_b32 {LE[1]}, {aL0} offset:128")
    a(f"ds_read_b64 {SD}, {aL1d}")
    a(f"ds_read_u16 {SS}, {aL1s}")
    a("s_waitcnt lgkmcnt(0)")
    def issue_E(p):
        a(f"v_and_or_b32 {vT0}, {LE[p]}, {sMaskE}, {vHOFF}")
        a(f"buffer_load_dwordx4 {EA[p]}, {vT0}, {sE}, 0 offen{' nt' if opt.get('e_nt',0) else ''}")
    def calc_H():
        for i in range(4):
            a(f"v_mad_u32_u16 {AD[i]}, {SD[i>>1]}, {s128}, {vKD[i]}"+(" op_sel:[1,0,0,0]" if i&1 else ""))
    def issue_H(i):
        a(f"s_mov_b32 m0, {sM0[i]}")
        a("s_nop 0")
        a(f"buffer_load_dwordx4 {AD[i]}, {sH}, 0 offen lds")
    issue_E(0)
    calc_H()
    for i in range(4): issue_H(i)
    issue_E(1)
    a.c("one-time: window operand A' and D2 init")
    a(f"s_cmp_eq_u32 {sFirst}, 0")
    a("s_cbranch_scc1 K2_NOSETUP")
    a(f"s_mov_b32 {sFirst}, 0")
    a("s_waitcnt vmcnt(16)")
    for x in range(2):
        for s_ in range(4):
            c = "0" if s_==0 else f"{D1[16*x:16*x+16]}"
            a(f"v_mfma_f32_32x32x16_bf16 {D1[16*x:16*x+16]}, {HW[4*s_:4*s_+4]}, {W1[(s_*2+x)*4:(s_*2+x)*4+4]}, {c}")
    a.nop(16)
    a(f"s_mov_b32 {sTmp}, {NEG_LOG2E}")
    a(f"v_cmp_lt_u32 vcc, 31, {vL}")
    a(f"v_mov_b32 {vJ}, 0xffff")
    for x in range(2):
        for r in range(4):
            q0,q1=D1[16*x+2*r],D1[16*x+2*r+1]
            a(f"v_mul_f32 {q0}, {sTmp}, {q0}")
            a(f"v_mul_f32 {q1}, {sTmp}, {q1}")
            a(f"v_cvt_pk_bf16_f32 {vT0}, {q0}, {q1}")
            a(f"v_lshlrev_b32 {vT1}, 16, {vT0}")
            a(f"v_and_b32 {vT2}, 0xffff0000, {vT0}")
            a(f"v_sub_f32 {vT1}, {q0}, {vT1}")
            a(f"v_sub_f32 {vT2}, {q1}, {vT2}")
            a(f"v_cvt_pk_bf16_f32 {vT1}, {vT1}, {vT2}")
            a(f"v_cndmask_b32 {WA[4*x+r]}, {vT0}, {vT1}, vcc")
        a(f"v_bfi_b32 {WA[4*x+3]}, {vJ}, {WA[4*x+3]}, {WD[x]}")
    for i in range(32): a(f"v_mov_b32 {D2[i]}, 0")
    a.label("K2_NOSETUP")
    a(f"s_cmp_eq_u32 {sNT}, 0")
    a("s_cbranch_scc1 K2_MAIN_EXIT0")
    def P_addr(le):
        a(f"v_and_b32 {vJ}, 7, {le}")
        a(f"v_mul_u32_u24 {vT1}, 6, {SS}")
        a(f"v_mad_u32_u24 {vT2}, {vJ}, 6, {sN06}")
        a(f"v_lshlrev_b32 {vT3}, 4, {vJ}")
        a(f"v_lshl_add_u32 {aA2n}, {vJ}, 3, {vE64}")
    def P_reads():
        for c in range(3): a(f"ds_read_u16_d16_hi {PS[c]}, {vT1} offset:{L_POS+2*c}")
        for c in range(3): a(f"ds_read_u16_d16_hi {PD[c]}, {vT2} offset:{L_POS+2*c}")
        a(f"ds_read_b128 {OH}, {vT3} offset:{L_OH}")
    def P_calc():
        for c in range(3): a(f"v_sub_f32 {DX[c]}, {PD[c]}, {PS[c]}")
        a(f"v_mul_f32 {DD}, {DX[0]}, {DX[0]}")
        a(f"v_cvt_pk_bf16_f32 {E01[0]}, 1.0, {DX[0]}")
        a(f"v_fmac_f32 {DD}, {DX[1]}, {DX[1]}")
        a(f"v_cvt_pk_bf16_f32 {E01[1]}, {DX[1]}, {DX[2]}")
        a(f"v_fmac_f32 {DD}, {DX[2]}, {DX[2]}")
        a(f"v_mov_b32 {aA2}, {aA2n}")
        a(f"ds_write_b64 {aA2n}, {E01}")
        a(f"v_cvt_pk_bf16_f32 {OH[3]}, {OH[3]}, {DD}")
    P_addr(LE[0]); P_reads()
    a("s_waitcnt lgkmcnt(0)")
    P_calc()
    a(f"s_mov_b32 {sT}, 0")
    a("s_waitcnt vmcnt(6)")
    stamp(a,opt,"s64")
    if DBG:
        a("s_memtime s[68:69]")
        a("s_waitcnt lgkmcnt(0)")
    def mfma(d,A,B,c): a(f"v_mfma_f32_32x32x16_bf16 {d}, {A}, {B}, {c}")
    Da,Db=D1[0:16],D1[16:32]
    def silu(Dx,Mx,mid=None):
        for i in range(16): a(f"v_exp_f32 {T[i]}, {Dx[i]}")
        if mid: mid()
        for i in range(16): a(f"v_add_f32 {T[i]}, 1.0, {T[i]}")
        for i in range(16): a(f"v_rcp_f32 {T[i]}, {T[i]}")
        for i in range(16): a(f"v_mul_f32 {T[i]}, {Dx[i]}, {T[i]}")
        for i in range(8): a(f"v_cvt_pk_bf16_f32 {Mx[i]}, {T[2*i]}, {T[2*i+1]}")
    def tile(p):
        a("s_waitcnt vmcnt(1)")
        for s_ in range(4): a(f"ds_read_b128 {HA[4*s_:4*s_+4]}, {vHA[s_]}")
        a(f"ds_read_b64 {SD}, {aL1d} offset:{64*(p+1)}")
        a(f"ds_read_u16 {SS}, {aL1s} offset:{64*(p+1)}")
        mfma(Da,OH,WA[0:4],"0")
        mfma(Db,OH,WA[4:8],"0")
        mfma(Da,EA[p],WE[0:4],Da)
        mfma(Db,EA[p],WE[4:8],Db)
        a(f"ds_read_b32 {LE[p]}, {aL0} offset:{128*(p+2)}")
        a("s_waitcnt lgkmcnt(3)")
        mfma(Da,HA[0:4],W2[0:4],Da)
        a("s_waitcnt lgkmcnt(0)")
        calc_H()
        mfma(Da,HA[4:8],W2[8:12],Da)
        issue_H(0); issue_H(1)
        mfma(Da,HA[8:12],W2[16:20],Da)
        issue_H(2); issue_H(3)
        mfma(Da,HA[12:16],W2[24:28],Da)
        issue_E(p)
        P_addr(LE[1-p])
        mfma(Db,HA[0:4],W2[4:8],Db)
        P_reads()
        mfma(Db,HA[4:8],W2[12:16],Db)
        for k in range(4): a(f"ds_read_b64_tr_b16 {A2R[2*k:2*k+2]}, {vTR} offset:{512*k}")
        a(f"ds_write_b64 {aA2}, {vZ}")
        mfma(Db,HA[8:12],W2[20:24],Db)
        mfma(Db,HA[12:16],W2[28:32],Db)
        def mid():
            a("s_waitcnt lgkmcnt(0)")
            P_calc()
        silu(Da,M[0:8],mid)
        a.nop(2)
        mfma(D2[0:16],A2R[0:4],M[0:4],D2[0:16])
        mfma(D2[0:16],A2R[4:8],M[4:8],D2[0:16])
        silu(Db,M[8:16])
        a.nop(2)
        mfma(D2[16:32],A2R[0:4],M[8:12],D2[16:32])
        mfma(D2[16:32],A2R[4:8],M[12:16],D2[16:32])
    a(".p2align 6")
    a.label("K2_LOOP")
    tile(0)
    a(f"s_add_u32 {sT}, {sT}, 1")
    a(f"s_cmp_ge_u32 {sT}, {sNT}")
    a("s_cbranch_scc1 K2_MAIN_EXIT")
    tile(1)
    a(f"v_add_u32 {aL0}, 256, {aL0}")
    a(f"v_add_u32 {aL1s}, 128, {aL1s}")
    a(f"v_add_u32 {aL1d}, 128, {aL1d}")
    a(f"s_add_u32 {sT}, {sT}, 1")
    a(f"s_cmp_lt_u32 {sT}, {sNT}")
    a("s_cbranch_scc1 K2_LOOP")
    a.label("K2_MAIN_EXIT")
    a(f"ds_write_b64 {aA2}, {vZ}")
    a.label("K2_MAIN_EXIT0")
    stamp(a,opt,"s65")
    if DBG:
        a("s_memtime s[70:71]")
        a("s_waitcnt lgkmcnt(0)")
        a("s_sub_u32 s68, s70, s68")
    a("s_waitcnt vmcnt(0) lgkmcnt(0)")
    a(f"s_cmp_eq_u32 {sMode}, 0")
    a("s_cbranch_scc1 K2_EPI")
    a(f"s_add_u32 {sChunk}, {sChunk}, 1")
    a(f"s_cmp_lt_u32 {sChunk}, {(E+511)//512}")
    a("s_cbranch_scc1 K2_GEN")
    a.label("K2_EPI")
    WHa=W2; WHb=[T,M]
    a(f"v_lshlrev_b32 {vT1}, 4, {vL}")
    for p in range(16):
        s_,x=p>>1,p&1
        dst = W2[p*4:p*4+4] if p<8 else (T[(p-8)*4:(p-8)*4+4] if p<12 else M[(p-12)*4:(p-12)*4+4])
        a(f"s_mov_b32 {sTmp}, {WOPS+(P_WH+p)*1024}")
        a(f"buffer_load_dwordx4 {dst}, {vT1}, {sW}, {sTmp} offen")
    a(f"v_and_b32 {vT0}, 7, {vL}")
    a(f"s_sub_u32 {sTmp}, {sNJ}, 1")
    a(f"v_min_u32 {vT2}, {sTmp}, {vT0}")
    a(f"v_add_u32 {vT2}, {sN0}, {vT2}")
    a(f"v_lshl_add_u32 {vT2}, {vT2}, 7, {vHOFF}")
    for s_ in range(4):
        a(f"buffer_load_dwordx4 {HA[4*s_:4*s_+4]}, {vT2}, {sH}, 0 offen offset:{32*s_}")
    a(f"v_lshlrev_b32 {vT2}, 2, {vL}")
    a(f"s_mov_b32 {sTmp}, {WOPS+P_WX*1024}")
    a(f"buffer_load_dword {DX[0]}, {vT2}, {sW}, {sTmp} offen")
    a(f"buffer_load_dword {DX[1]}, {vT2}, {sW}, {sTmp} offen offset:256")
    HV=WA
    a(f"v_lshrrev_b32 {vT2}, 5, {vL}")
    a(f"v_lshlrev_b32 {vT2}, 2, {vT2}")
    a(f"v_add_u32 {vT3}, {sN0}, {vT2}")
    a(f"v_and_b32 {vJ}, 31, {vL}")
    a(f"v_lshlrev_b32 {vT3}, 7, {vT3}")
    a(f"v_lshl_add_u32 {aL0}, {vJ}, 1, {vT3}")
    for i in range(8): a(f"v_mov_b32 {HV[i]}, 0")
    for x in range(2):
        for q in range(4):
            a(f"buffer_load_short_d16_hi {HV[4*x+q]}, {aL0}, {sH}, 0 offen offset:{q*128+x*64}")
    a.nop(8)
    a(f"s_mov_b32 {sTmp}, {NEG_LN2}")
    a(f"v_lshrrev_b32 {vT2}, 5, {vL}")
    a(f"v_lshlrev_b32 {vT2}, 7, {vT2}")
    a(f"v_lshl_add_u32 {vT2}, {vJ}, 1, {vT2}")
    a(f"v_add_u32 {vT2}, {sHST}, {vT2}")
    for qq in range(4):
        a(f"v_mul_f32 {AD[0]}, {sTmp}, {D2[4*qq]}")
        a(f"v_mul_f32 {AD[1]}, {sTmp}, {D2[16+4*qq]}")
        a(f"v_cvt_pk_bf16_f32 {AD[2]}, {AD[0]}, {AD[1]}")
        a(f"ds_write_b16 {vT2}, {AD[2]} offset:{qq*256}")
        a(f"ds_write_b16_d16_hi {vT2}, {AD[2]} offset:{qq*256+64}")
    a(f"v_lshl_add_u32 {vT0}, {vT0}, 7, {vHOFF}")
    a(f"v_add_u32 {vT0}, {sHST}, {vT0}")
    MA=[EA[0],EA[1],A2R[0:4],A2R[4:8]]
    for s_ in range(4): a(f"ds_read_b128 {MA[s_]}, {vT0} offset:{32*s_}")
    a("s_waitcnt vmcnt(8)")
    PP=D1
    for qq in range(4):
        for c in range(1,4):
            r=PP[qq*3+c-1]
            a(f"v_mul_f32 {r}, {DX[0]}, {D2[4*qq+c]}")
            a(f"v_fmac_f32 {r}, {DX[1]}, {D2[16+4*qq+c]}")
    for sh in (1,2,4,8):
        for i in range(12): a(f"v_add_f32_dpp {PP[i]}, {PP[i]}, {PP[i]} row_shr:{sh} row_mask:0xf bank_mask:0xf bound_ctrl:0")
    for i in range(12): a(f"v_add_f32_dpp {PP[i]}, {PP[i]}, {PP[i]} row_bcast:15 row_mask:0xa bank_mask:0xf")
    a(f"v_lshrrev_b32 {vT2}, 5, {vL}")
    a(f"v_lshlrev_b32 {vT2}, 4, {vT2}")
    a(f"s_add_u32 {sTmp}, {sHST}, 2048")
    a(f"v_add_u32 {vT2}, {sTmp}, {vT2}")
    a("s_mov_b32 exec_lo, 0x80000000")
    a("s_mov_b32 exec_hi, 0x80000000")
    for qq in range(4):
        for c in range(3):
            a(f"ds_write_b32 {vT2}, {PP[qq*3+c]} offset:{qq*32+c*4}")
    a("s_mov_b64 exec, -1")
    a(f"v_mul_u32_u24 {vT2}, 86, {vL}")
    a(f"v_lshrrev_b32 {vT2}, 8, {vT2}")
    a(f"v_mul_u32_u24 {vT3}, 3, {vT2}")
    a(f"v_sub_u32 {vT3}, {vL}, {vT3}")
    a(f"v_lshlrev_b32 {vT2}, 4, {vT2}")
    a(f"v_lshl_add_u32 {vT2}, {vT3}, 2, {vT2}")
    a(f"v_add_u32 {vT2}, {sTmp}, {vT2}")
    a(f"v_min_u32 {vT2}, {LDS2-4}, {vT2}")
    a(f"ds_read_b32 {AD[0]}, {vT2}")
    a(f"v_lshl_add_u32 {vT3}, {vL}, 1, {sN06}")
    a(f"v_min_u32 {vT2}, {POS_SZ-2}, {vT3}")
    a(f"ds_read_u16_d16_hi {PS[0]}, {vT2} offset:{L_POS}")
    a(f"s_mul_i32 {sTmp}, {sNJ}, 3")
    a(f"v_cmp_gt_u32 vcc, {sTmp}, {vL}")
    a(f"v_add_u32 {vT3}, {OUT_POS}, {vT3}")
    a(f"v_mov_b32 {vT2}, 0x40000000")
    a("s_waitcnt lgkmcnt(0)")
    a(f"v_cndmask_b32 {vT3}, {vT2}, {vT3}, vcc")
    a(f"v_add_f32 {AD[0]}, {AD[0]}, {PS[0]}")
    a(f"v_cvt_pk_bf16_f32 {AD[0]}, {AD[0]}, {AD[0]}")
    a(f"buffer_store_short {AD[0]}, {vT3}, {sO}, 0 offen")
    a("s_waitcnt vmcnt(1)")
    for x in range(2):
        for s_ in range(8):
            p=2*s_+x
            B = W2[p*4:p*4+4] if p<8 else (T[(p-8)*4:(p-8)*4+4] if p<12 else M[(p-12)*4:(p-12)*4+4])
            A_ = HA[4*s_:4*s_+4] if s_<4 else MA[s_-4]
            c = "0" if s_==0 else f"{D1[16*x:16*x+16]}"
            a(f"v_mfma_f32_32x32x16_bf16 {D1[16*x:16*x+16]}, {A_}, {B}, {c}")
    a.nop(16)
    a(f"s_mov_b32 {sTmp}, {NEG_LOG2E}")
    X=[D1[q] for q in range(4)]+[D1[16+q] for q in range(4)]
    TT=[D2[i] for i in range(8)]
    for i in range(8): a(f"v_mul_f32 {TT[i]}, {sTmp}, {X[i]}")
    for i in range(8): a(f"v_exp_f32 {TT[i]}, {TT[i]}")
    for i in range(8): a(f"v_add_f32 {TT[i]}, 1.0, {TT[i]}")
    for i in range(8): a(f"v_rcp_f32 {TT[i]}, {TT[i]}")
    a("s_nop 0")
    for i in range(8): a(f"v_fma_f32 {TT[i]}, {X[i]}, {TT[i]}, {HV[i]}")
    a(f"v_lshrrev_b32 {vT2}, 5, {vL}")
    a(f"v_lshlrev_b32 {vT2}, 2, {vT2}")
    a(f"v_mov_b32 {vT3}, 0x40000000")
    for q in range(4):
        a(f"v_add_u32 {vT1}, {q}, {vT2}")
        a(f"v_cmp_gt_u32 vcc, {sNJ}, {vT1}")
        a(f"v_cvt_pk_bf16_f32 {AD[0]}, {TT[q]}, {TT[4+q]}")
        a("s_nop 0")
        a(f"v_cndmask_b32 {vT1}, {vT3}, {aL0}, vcc")
        a(f"buffer_store_short {AD[0]}, {vT1}, {sO}, 0 offen offset:{q*128}")
        a(f"buffer_store_short_d16_hi {AD[0]}, {vT1}, {sO}, 0 offen offset:{q*128+64}")
        a("s_nop 1")
    if DBG:
        a("s_waitcnt vmcnt(0)")
        stamp(a,opt,"s66")
        a(f"s_mov_b32 s67, {sNT}")
        if opt.get('dbg2',0):
            a("s_load_dwordx2 s[72:73], s[0:1], 72")
            a("s_waitcnt lgkmcnt(0)")
            srd(a,S(76,4),"s72","s73",256)
            a("s_mov_b32 s80, 8")
            a("s_cmp_eq_u32 s2, 0")
            a("s_cbranch_scc1 K2_DBG_A")
            a("s_mov_b32 s80, 36")
            a("s_cmp_lg_u32 s2, 200")
            a("s_cbranch_scc1 K2_NODBG")
            a.label("K2_DBG_A")
            a(f"s_cmp_lg_u32 {sWave}, 0")
            a("s_cbranch_scc1 K2_NODBG")
            a(f"v_mov_b32 {vT1}, 0")
            a(f"s_mov_b32 s81, {DBG_OFF}")
            a(f"buffer_load_dword {vT2}, {vT1}, {sW}, s81 offen")
            a(f"buffer_load_dword {vT3}, {vT1}, {sW}, s81 offen offset:12")
            a("s_waitcnt vmcnt(0)")
            a(f"buffer_store_dword {vT2}, {vT1}, s[76:79], 0 offen")
            a(f"buffer_store_dword {vT3}, {vT1}, s[76:79], 0 offen offset:4")
            for i,r in enumerate(["s96","s97","s98","s99","s64","s65","s66"]):
                a(f"v_mov_b32 {vT0}, {r}")
                a(f"buffer_store_dword {vT0}, {vT1}, s[76:79], s80 offen offset:{4*i}")
                a("s_nop 1")
            a("s_waitcnt vmcnt(0)")
            a.label("K2_NODBG")
        stamp_store(a,opt,["s96","s97","s98","s99","s64","s65","s66","s67","s68"],DBG_OFF+1024*1024,sWave,vT0,vT1,sW,sTmp)
    a.label("K2_END")
    a("s_endpgm")
    return nv

HEADER='''; Kernarg layout (88 bytes, ptrs only): h, pos, e_attr, src, dst, w_e, w_x, w_h, out, debug, ws
; @launch kernel=egnn_sort_kernel grid=(256,1,1) block=(1024,1,1) lds={lds1}
; @launch kernel=egnn_main_kernel grid=(256,1,1) block=(512,1,1) lds={lds2}
.amdgcn_target "amdgcn-amd-amdhsa--gfx950"
.text
'''
def kd(name,nv,ns):
    acc=(nv+3)//4*4
    return f'''.amdhsa_kernel {name}
  .amdhsa_next_free_vgpr {acc}
  .amdhsa_next_free_sgpr {ns}
  .amdhsa_accum_offset {acc}
  .amdhsa_group_segment_fixed_size 0
  .amdhsa_kernarg_size 88
  .amdhsa_user_sgpr_count 2
  .amdhsa_user_sgpr_kernarg_segment_ptr 1
  .amdhsa_system_sgpr_workgroup_id_x 1
  .amdhsa_float_denorm_mode_32 3
.end_amdhsa_kernel
'''
def build(opt):
    out=HEADER.format(lds1=LDS1,lds2=LDS2)
    a=Asm();
    a.lines.append(".globl egnn_sort_kernel\n.p2align 8\n.type egnn_sort_kernel,@function")
    gen_k1(a,opt)
    a.lines.append(".globl egnn_main_kernel\n.p2align 8\n.type egnn_main_kernel,@function")
    nv=gen_k2(a,opt)
    out+=a.text()
    out+='.section .rodata,"a"\n.p2align 6\n'+kd("egnn_sort_kernel",40,102)+'.p2align 6\n'+kd("egnn_main_kernel",256 if nv>128 else nv,102)
    return out,nv
if __name__=="__main__":
    opt={}
    for arg in sys.argv[2:]:
        k,v=arg.split('='); opt[k]=int(v)
    txt,nv=build(opt)
    open(sys.argv[1],'w').write(txt)
    print("K2 vgprs:",nv,"LDS2",LDS2,"lines",txt.count("\n"))
```

```python
import sys, struct
from asmlib import *

N=12500; E=800000; CH=3136; NSRC=256; NBIN=256; NPW=49
KW=703687442
LOG2E=1.4426950408889634; LN2=0.6931471805599453
def f2u(x): return struct.unpack('<I',struct.pack('<f',x))[0]
NEG_LOG2E=f2u(-LOG2E); NEG_LN2=f2u(-LN2)
SENT=0xFFFFFFFF; MARK=0xFFFFFFFE
CELLS=0; BPT=NBIN*NSRC*128; FLG=BPT+N*128+((-N*128)%4096); WS_BYTES=FLG+4096
OUT_BYTES=N*64*2+N*3*2; OUT_POS=N*64*2
CAP=576; CAPX=704
L_OH=0; L_CNT=128; L_NRES=160; L_WIN=192; L_RES=256; L_POS=1280; POS_SZ=74*1024
L_L0=L_POS+POS_SZ; L_L1=L_L0+8*CAPX*4; L_A2=L_L1+8*CAPX*2; L_HST=L_A2+8*2048; LDS2=L_HST+8*4096
assert LDS2<=163840, LDS2
L_RAWW=L_L0; L_BST=L_L0+19*1024; assert L_BST+2*32*144<=L_A2
DBG_OFF=16*1024*1024

def WSB(opt): return (32*1024*1024 if opt.get('dbg',0) else WS_BYTES)
def srd(a, s, lo, hi, size):
    a(f"s_mov_b32 {s[0]}, {lo}")
    a(f"s_and_b32 {s[1]}, {hi}, 0xffff")
    a(f"s_mov_b32 {s[2]}, {size}")
    a(f"s_mov_b32 {s[3]}, 0x20000")
VDBG="v255"
def stamp(a,opt,idx):
    if not opt.get('dbg',0): return
    a("s_memrealtime s[100:101]")
    a("s_waitcnt lgkmcnt(0)")
    a(f"v_writelane_b32 {VDBG}, s100, {idx}")
def S(i,n=1): return R('s',i,n)
def V(i,n=1): return R('v',i,n)
def mfma(a,d,A,B,c): a(f"v_mfma_f32_32x32x16_bf16 {d}, {A}, {B}, {c}")

KNAME="gather_scatter__cheap_equivariant_egnn__graph_kernel"
def gen(a, opt):
    DBG=opt.get('dbg',0)
    PRIO=opt.get('prio',1)
    ST=" sc1"; LD=" sc1" if opt.get('ld_sc1',1) else ""
    HLD=" sc1" if opt.get('h_sc1',1) else ""
    a.label(KNAME)
    sB=S(4,4); sE=S(8,4); sW=S(12,4); sO=S(16,4); sP=S(20,4); sS=S(24,4); sD=S(28,4)
    sWave=S(32); sN0=S(33); sNJ=S(34); sN06=S(35); sNT=S(36); sT=S(37); sMode=S(38); sChunk=S(39)
    sMaskE=S(40); s128=S(41); sK=S(42); s3125=S(43); sLim=S(44); sCnt=S(45); sTmp=S(46); sTmp2=S(47)
    sM0=S(48,4); sSave=S(52,2); sAny=S(54,2); sNR=S(56); sI=S(57); sC=S(58); sWsrc=S(59); sMark=S(60); sCAPq=S(61); sHST=S(62); sTmp3=S(63)
    sMask=[S(64+2*i,2) for i in range(16)]
    sWin=S(96); sNonce=S(98); sPoll=S(99)
    sT4=S(84,4); sT4b=S(88,4); sT4c=S(92,4)
    sHs=S(68,4); sWx=S(72,4)
    vr=Regs(1,256,'v')
    vL=vr.alloc('lane')
    WE=vr.alloc('WE',8,4); WA=vr.alloc('WA',8,4); ID=vr.alloc('ID',8,4); D2=vr.alloc('D2',32,4)
    D1=vr.alloc('D1',32,4); HA=vr.alloc('HA',16,4); T=vr.alloc('T',16,4); M=vr.alloc('M',8,4)
    A2R=vr.alloc('A2R',8,4); EA=[vr.alloc('EA0',4,4),vr.alloc('EA1',4,4)]; OH=vr.alloc('OH',4,4)
    WH=vr.alloc('WH',32,4)
    vHA=vr.alloc('vHA',4); vKD=vr.alloc('vKD',4); vTR=vr.alloc('vTR'); vE64=vr.alloc('vE64'); vHOFF=vr.alloc('vHOFF')
    vZ=vr.alloc('vZ',2,2); aL0=vr.alloc('aL0'); aL1s=vr.alloc('aL1s'); aL1d=vr.alloc('aL1d')
    LE=[vr.alloc('LE0'),vr.alloc('LE1')]; aA2=[vr.alloc('aA2_0'),vr.alloc('aA2_1')]
    SD=vr.alloc('SD',2,2); SS=vr.alloc('SS'); PS=vr.alloc('PS',3); PD=vr.alloc('PD',3)
    E01=vr.alloc('E01',2,2); DX=vr.alloc('DX',3); DD=vr.alloc('DD'); AD=vr.alloc('AD',4); vJ=vr.alloc('vJ')
    aE=vr.alloc('aE'); aPS=vr.alloc('aPS'); aPD=vr.alloc('aPD'); aOH=vr.alloc('aOH')
    vT0=vr.alloc('vT0'); vT1=vr.alloc('vT1'); vT2=vr.alloc('vT2'); vT3=vr.alloc('vT3')
    vOne=vr.alloc('vOne'); v511=vr.alloc('v511'); vTRW=vr.alloc('vTRW'); vL16=vr.alloc('vL16')
    nv=vr.next
    HW=T
    def geometry(win):
        a(f"s_lshl_b32 {sTmp}, s2, 3")
        a(f"s_add_u32 {sTmp}, {sTmp}, {win}")
        a(f"s_mul_i32 {sN0}, {sTmp}, 3125")
        a(f"s_add_u32 {sNJ}, {sN0}, {3125+511}")
        a(f"s_add_u32 {sN0}, {sN0}, 511")
        a(f"s_lshr_b32 {sN0}, {sN0}, 9")
        a(f"s_lshr_b32 {sNJ}, {sNJ}, 9")
        a(f"s_sub_u32 {sNJ}, {sNJ}, {sN0}")
        a(f"s_mul_i32 {sN06}, {sN0}, 6")
    def dma(vaddr,srd_,soff,ldsbase_const=None,ldsreg=None):
        pass

    a("s_cmp_ge_u32 s2, 256")
    a("s_cbranch_scc1 K_END")
    a("s_load_dwordx4 s[64:67], s[0:1], 0")
    a("s_load_dwordx4 s[68:71], s[0:1], 16")
    a("s_load_dwordx4 s[72:75], s[0:1], 32")
    a("s_load_dwordx4 s[76:79], s[0:1], 64")
    a("s_load_dwordx2 s[80:81], s[0:1], 80")
    a(f"v_and_b32 {vL}, 63, v0")
    a(f"v_lshrrev_b32 {vT0}, 6, v0")
    a(f"s_mov_b32 {sMaskE}, {'0' if opt.get('noE',0) else '0xffffffe0'}")
    a(f"v_readfirstlane_b32 {sWave}, {vT0}")
    a(f"s_mov_b32 {s128}, {0 if opt.get('noH',0) else 128}")
    a(f"s_mov_b32 {sK}, {KW}")
    a(f"s_mov_b32 {s3125}, 3125")
    a(f"s_mov_b32 {sMark}, {MARK}")
    a(f"s_mov_b32 {sCAPq}, {CAPX//4}")
    a(f"s_mov_b32 {sMode}, 0")
    a(f"s_mov_b32 {sChunk}, 0")
    a(f"v_mov_b32 {vOne}, 1")
    a(f"v_mov_b32 {v511}, 511")
    a(f"v_mov_b32 {vZ[0]}, 0")
    a(f"v_mov_b32 {vZ[1]}, 0")
    a(f"v_lshlrev_b32 {vL16}, 4, {vL}")
    a(f"v_mov_b32 {aL1s}, 0x40000000")
    a(f"v_lshrrev_b32 {vT2}, 5, {vL}")
    a(f"v_lshlrev_b32 {vHOFF}, 4, {vT2}")
    a(f"v_bfe_u32 {vT0}, {vL}, 2, 2")
    a(f"v_lshl_add_u32 {vT0}, {vT2}, 3, {vT0}")
    a(f"v_lshlrev_b32 {vTRW}, 7, {vT0}")
    a(f"v_bfe_u32 {vT0}, {vL}, 4, 1")
    a(f"v_lshl_add_u32 {vTRW}, {vT0}, 5, {vTRW}")
    a(f"v_and_b32 {vT0}, 3, {vL}")
    a(f"v_lshl_add_u32 {vTRW}, {vT0}, 3, {vTRW}")
    a.c("LDS init: cell image = sentinel, counters = 0")
    for i in range(4): a(f"v_mov_b32 {HA[i]}, -1")
    a(f"v_lshlrev_b32 {vT0}, 6, v0")
    a(f"v_add_u32 {vT0}, {L_HST}, {vT0}")
    for i in range(4): a(f"ds_write_b128 {vT0}, {HA[0:4]} offset:{16*i}")
    a(f"v_and_b32 {vT0}, 0xff, v0")
    a(f"v_lshlrev_b32 {vT0}, 2, {vT0}")
    a(f"ds_write_b32 {vT0}, {vZ[0]} offset:{L_RES}")
    geometry(sWave)
    a("s_waitcnt lgkmcnt(0)")
    stamp(a,opt,0)
    srd(a,sD,"s72","s73",E*4)
    srd(a,sS,"s70","s71",E*4)
    srd(a,sT4,"s64","s65",N*128)
    srd(a,sT4b,"s74","s75",145*128)
    srd(a,sW,"s80","s81",WSB(opt))
    a(f"s_cmp_gt_u32 {sWave}, 4")
    a("s_cbranch_scc1 K_S_NOTEDGE")
    a.c("edge waves 0..4: ten edges per thread")
    a(f"s_mul_i32 {sTmp}, s2, {CH*4}")
    a(f"v_mul_u32_u24 {vT0}, 40, v0")
    a(f"v_add_u32 {vT0}, {sTmp}, {vT0}")
    DS_=D1[0:10]; SR_=D1[12:22]
    a(f"buffer_load_dwordx4 {D1[0:4]}, {vT0}, {sD}, 0 offen nt")
    a(f"buffer_load_dwordx4 {D1[4:8]}, {vT0}, {sD}, 0 offen offset:16 nt")
    a(f"buffer_load_dwordx2 {D1[8:10]}, {vT0}, {sD}, 0 offen offset:32 nt")
    a(f"buffer_load_dwordx4 {D1[12:16]}, {vT0}, {sS}, 0 offen nt")
    a(f"buffer_load_dwordx4 {D1[16:20]}, {vT0}, {sS}, 0 offen offset:16 nt")
    a(f"buffer_load_dwordx2 {D1[20:22]}, {vT0}, {sS}, 0 offen offset:32 nt")
    a("s_branch K_S_COMMON")
    a.label("K_S_NOTEDGE")
    a(f"s_cmp_eq_u32 {sWave}, 7")
    a("s_cbranch_scc1 K_S_W7")
    a.c("waves 5,6: private raw W2 copy + h rows for the source-node table")
    a(f"s_sub_u32 {sI}, {sWave}, 5")
    a(f"s_lshl_b32 {sC}, {sI}, 13")
    a(f"s_add_u32 {sC}, {sC}, {L_A2}")
    for i in range(8):
        a(f"s_add_u32 {sTmp}, {sC}, {i*1024}")
        a(f"s_mov_b32 m0, {sTmp}")
        a(f"s_mov_b32 {sTmp2}, {8192+i*1024}")
        a(f"buffer_load_dwordx4 {vL16}, {sT4b}, {sTmp2} offen lds")
    a(f"s_mul_i32 {sTmp}, s2, {NPW}")
    a(f"s_lshl_b32 {sTmp2}, {sI}, 5")
    a(f"s_add_u32 {sTmp}, {sTmp}, {sTmp2}")
    a(f"v_and_b32 {vT0}, 31, {vL}")
    a(f"v_add_u32 {vT0}, {sTmp}, {vT0}")
    a(f"v_lshl_add_u32 {vT0}, {vT0}, 7, {vHOFF}")
    for s_ in range(4): a(f"buffer_load_dwordx4 {HA[4*s_:4*s_+4]}, {vT0}, {sT4}, 0 offen offset:{32*s_}")
    a("s_branch K_S_COMMON")
    a.label("K_S_W7")
    a.c("wave 7: raw w_e -> LDS, one-hot table, counters")
    for i in range(19):
        a(f"s_mov_b32 {sTmp}, {L_RAWW+i*1024}")
        a(f"s_mov_b32 m0, {sTmp}")
        a(f"s_mov_b32 {sTmp2}, {i*1024}")
        a(f"buffer_load_dwordx4 {vL16}, {sT4b}, {sTmp2} offen lds")
    a(f"v_lshrrev_b32 {vT0}, 2, {vL}")
    a(f"v_and_b32 {vT1}, 3, {vL}")
    a(f"v_lshlrev_b32 {vT3}, 1, {vT1}")
    a(f"v_mov_b32 {vJ}, 0")
    a(f"v_cmp_eq_u32 vcc, {vT0}, {vT3}")
    a(f"v_mov_b32 {AD[0]}, 0x3f80")
    a(f"v_mov_b32 {AD[1]}, 0x3f800000")
    a(f"v_cndmask_b32 {vJ}, {vJ}, {AD[0]}, vcc")
    a(f"v_add_u32 {vT3}, 1, {vT3}")
    a(f"v_cmp_eq_u32 vcc, {vT0}, {vT3}")
    a("s_nop 1")
    a(f"v_cndmask_b32 {vJ}, {vJ}, {AD[1]}, vcc")
    a(f"v_cmp_eq_u32 vcc, 6, {vT0}")
    a(f"v_mov_b32 {AD[2]}, 0")
    a("s_nop 0")
    a(f"v_cndmask_b32 {AD[2]}, {AD[2]}, {AD[1]}, vcc")
    a(f"v_cmp_eq_u32 vcc, 3, {vT1}")
    a("s_nop 1")
    a(f"v_cndmask_b32 {vJ}, {vJ}, {AD[2]}, vcc")
    a(f"v_cmp_lt_u32 vcc, 31, {vL}")
    a(f"v_lshlrev_b32 {vT0}, 2, {vL}")
    a("s_nop 0")
    a(f"v_cndmask_b32 {vJ}, {vJ}, {vZ[0]}, vcc")
    a(f"ds_write_b32 {vT0}, {vJ}")
    a.label("K_S_COMMON")
    a.c("h rows of the natural window (A operand of h@W1)")
    a(f"v_bfe_u32 {vT0}, {vL}, 3, 1")
    a(f"v_and_b32 {vT2}, 3, {vL}")
    a(f"v_lshl_add_u32 {vT0}, {vT0}, 2, {vT2}")
    a(f"s_sub_u32 {sTmp}, {sNJ}, 1")
    a(f"v_min_u32 {vT0}, {sTmp}, {vT0}")
    a(f"v_add_u32 {vT0}, {sN0}, {vT0}")
    a(f"v_lshl_add_u32 {vT0}, {vT0}, 7, {vHOFF}")
    for s_ in range(4):
        a(f"buffer_load_dwordx4 {HW[4*s_:4*s_+4]}, {vT0}, {sT4}, 0 offen offset:{32*s_}")
    srd(a,sP,"s66","s67",N*6)
    srd(a,sE,"s68","s69",E*32)
    srd(a,sO,"s76","s77",OUT_BYTES)
    srd(a,sT4c,"s78","s79",256)
    a(f"s_add_u32 {sB[0]}, s80, {BPT}")
    a(f"s_addc_u32 {sB[1]}, s81, 0")
    a(f"s_and_b32 {sB[1]}, {sB[1]}, 0xffff")
    a(f"s_mov_b32 {sB[2]}, {N*128}")
    a(f"s_mov_b32 {sB[3]}, 0x20000")
    a.c("workgroup 0 publishes this launch's hand-off tag")
    a(f"s_or_b32 {sTmp}, s2, {sWave}")
    a(f"s_cmp_lg_u32 {sTmp}, 0")
    a("s_cbranch_scc1 K_S_NOTAG")
    a("s_memrealtime s[100:101]")
    a("s_waitcnt lgkmcnt(0)")
    a("s_or_b32 s100, s100, 1")
    a(f"v_mov_b32 {vT0}, s100")
    a(f"buffer_store_dword {vT0}, {vZ[0]}, {sT4c}, 0 offen sc1")
    a.label("K_S_NOTAG")
    a("s_waitcnt lgkmcnt(0)")
    a("s_barrier")
    a(f"s_cmp_gt_u32 {sWave}, 4")
    a("s_cbranch_scc1 K_S_NOAPP")
    a.c("bin the ten edges")
    a(f"s_mul_i32 {sTmp}, s2, {CH}")
    a(f"s_sub_u32 {sLim}, {E}, {sTmp}")
    a(f"s_min_u32 {sLim}, {sLim}, {CH}")
    a(f"v_mul_u32_u24 {vT0}, 10, v0")
    B4=D2[0:10]; RC=D2[10:20]; RK1=D2[20:30]
    for u in range(10):
        a(f"v_add_u32 {vT1}, {u}, {vT0}")
        a(f"v_cmp_gt_u32 {sMask[u]}, {sLim}, {vT1}")
    a("s_waitcnt vmcnt(4)")
    stamp(a,opt,1)
    for u in range(10):
        d=DS_[u]; s_=SR_[u]
        a(f"v_mul_hi_u32 {vT2}, {d}, {sK}")
        a(f"v_add_u32 {vT1}, {u}, {vT0}")
        a(f"v_mad_u32_u24 {vT3}, {vT2}, {s3125}, {v511}")
        a(f"v_lshrrev_b32 {B4[u]}, 1, {vT2}")
        a(f"v_lshrrev_b32 {vT3}, 9, {vT3}")
        a(f"v_and_b32 {B4[u]}, 0x3fc, {B4[u]}")
        a(f"v_sub_u32 {vT3}, {d}, {vT3}")
        a(f"s_mov_b64 exec, {sMask[u]}")
        a(f"ds_add_rtn_u32 {RK1[u]}, {B4[u]}, {vOne} offset:{L_RES}")
        a("s_mov_b64 exec, -1")
        a(f"v_and_b32 {vT2}, 7, {vT2}")
        a(f"v_lshl_or_b32 {vT3}, {vT2}, 3, {vT3}")
        a(f"v_lshl_or_b32 {RC[u]}, {s_}, 12, {vT1}")
        a(f"v_lshl_or_b32 {RC[u]}, {vT3}, 26, {RC[u]}")
    a(f"v_mov_b32 {vT3}, {L_HST}")
    a(f"v_mov_b32 {vJ}, {L_NRES+4}")
    a("s_waitcnt lgkmcnt(0)")
    for u in range(10):
        a(f"v_cmp_gt_u32 vcc, 32, {RK1[u]}")
        a(f"v_lshl_add_u32 {vT1}, {B4[u]}, 5, {vT3}")
        a(f"v_lshl_add_u32 {vT1}, {RK1[u]}, 2, {vT1}")
        a(f"v_cndmask_b32 {vT1}, {vJ}, {vT1}, vcc")
        a(f"s_mov_b64 exec, {sMask[u]}")
        a(f"ds_write_b32 {vT1}, {RC[u]}")
        a("s_mov_b64 exec, -1")
    a("s_waitcnt vmcnt(0)")
    a("s_branch K_S_JOIN")
    a.label("K_S_NOAPP")
    a(f"s_cmp_eq_u32 {sWave}, 7")
    a("s_cbranch_scc1 K_S_W7B")
    a.c("source-node table B' = -log2e * h @ W2 for 32 nodes")
    a(f"v_add_u32 {vT0}, {sC}, {vTRW}")
    a("s_waitcnt vmcnt(4)")
    for s_ in range(4):
        for x in range(2):
            for th in range(2):
                r=(s_*2+x)*4+2*th
                a(f"ds_read_b64_tr_b16 {D1[r:r+2]}, {vT0} offset:{s_*2048+th*512+x*64}")
    a("s_waitcnt lgkmcnt(0)")
    for x in range(2):
        for s_ in range(4):
            r=(s_*2+x)*4
            mfma(a,D2[16*x:16*x+16],D1[r:r+4],HA[4*s_:4*s_+4],"0" if s_==0 else D2[16*x:16*x+16])
    a(f"s_mul_i32 {sTmp}, {sI}, {32*144}")
    a(f"s_add_u32 {sTmp}, {sTmp}, {L_BST}")
    a(f"v_and_b32 {vT1}, 31, {vL}")
    a(f"v_mul_u32_u24 {vT1}, 144, {vT1}")
    a(f"v_lshrrev_b32 {vT2}, 5, {vL}")
    a(f"v_lshl_add_u32 {vT1}, {vT2}, 3, {vT1}")
    a(f"v_add_u32 {vT1}, {sTmp}, {vT1}")
    a(f"v_lshrrev_b32 {vT2}, 3, {vL}")
    a(f"v_mul_u32_u24 {vT3}, 144, {vT2}")
    a(f"v_and_b32 {vJ}, 7, {vL}")
    a(f"v_lshl_add_u32 {vT3}, {vJ}, 4, {vT3}")
    a(f"v_add_u32 {vT3}, {sTmp}, {vT3}")
    a(f"s_mov_b32 {sTmp2}, {NEG_LOG2E}")
    a.nop(4)
    for x in range(2):
        for q in range(16): a(f"v_mul_f32 {D2[16*x+q]}, {sTmp2}, {D2[16*x+q]}")
        for qq in range(4):
            b=16*x+4*qq
            a(f"v_cvt_pk_bf16_f32 {E01[0]}, {D2[b]}, {D2[b+1]}")
            a(f"v_cvt_pk_bf16_f32 {E01[1]}, {D2[b+2]}, {D2[b+3]}")
            a(f"ds_write_b64 {vT1}, {E01} offset:{x*64+qq*16}")
            a("s_nop 0")
    for i in range(4): a(f"ds_read_b128 {D1[4*i:4*i+4]}, {vT3} offset:{i*8*144}")
    a(f"s_lshl_b32 {sTmp2}, {sI}, 5")
    a(f"v_add_u32 {vT2}, {sTmp2}, {vT2}")
    a(f"s_mul_i32 {sTmp}, s2, {NPW}")
    a(f"v_add_u32 {vT0}, {sTmp}, {vT2}")
    a(f"v_lshlrev_b32 {vT1}, 7, {vT0}")
    a(f"v_lshl_add_u32 {vT1}, {vJ}, 4, {vT1}")
    a(f"v_mov_b32 {vJ}, 0x40000000")
    a("s_waitcnt lgkmcnt(0)")
    for i in range(4):
        a(f"v_add_u32 {vT3}, {8*i}, {vT2}")
        a(f"v_cmp_gt_u32 vcc, {NPW}, {vT3}")
        a(f"v_add_u32 {AD[0]}, {1024*i}, {vT1}")
        a("s_nop 0")
        a(f"v_cndmask_b32 {AD[0]}, {vJ}, {AD[0]}, vcc")
        a(f"buffer_store_dwordx4 {D1[4*i:4*i+4]}, {AD[0]}, {sB}, 0 offen{ST}")
    a("s_waitcnt vmcnt(4)")
    a("s_branch K_S_JOIN")
    a.label("K_S_W7B")
    a("s_waitcnt vmcnt(0)")
    a.label("K_S_JOIN")
    a("s_waitcnt lgkmcnt(0)")
    a("s_barrier")
    stamp(a,opt,2)
    a.c("copy the cell image out: four 16 B pieces per thread")
    a(f"v_lshlrev_b32 {vT0}, 4, v0")
    a(f"v_add_u32 {vT0}, {L_HST}, {vT0}")
    a(f"v_lshrrev_b32 {vT1}, 3, v0")
    a(f"v_lshlrev_b32 {vT2}, 2, {vT1}")
    for k in range(4):
        a(f"ds_read_b128 {D1[4*k:4*k+4]}, {vT0} offset:{8192*k}")
        a(f"ds_read_b32 {D1[16+k]}, {vT2} offset:{L_RES+256*k}")
    a(f"v_and_b32 {vT3}, 7, v0")
    a(f"v_cmp_eq_u32 vcc, 0, {vT3}")
    a(f"v_mov_b32 {vJ}, -1")
    a(f"v_lshlrev_b32 {vT1}, 15, {vT1}")
    a(f"v_cndmask_b32_e64 {AD[1]}, -1, -2, vcc")
    a(f"v_lshl_add_u32 {vT1}, {vT3}, 4, {vT1}")
    a(f"s_lshl_b32 {sTmp}, s2, 7")
    a("s_waitcnt lgkmcnt(0)")
    for k in range(4):
        a(f"v_cmp_lt_u32 vcc, 32, {D1[16+k]}")
        a(f"s_add_u32 {sTmp2}, {sTmp}, {k*64*32768}")
        a("s_nop 0")
        a(f"v_cndmask_b32 {D1[4*k]}, {D1[4*k]}, {AD[1]}, vcc")
        for i in range(1,4): a(f"v_cndmask_b32 {D1[4*k+i]}, {D1[4*k+i]}, {vJ}, vcc")
        a(f"buffer_store_dwordx4 {D1[4*k:4*k+4]}, {vT1}, {sW}, {sTmp2} offen{ST}")
    a.c("wave 0 fetches the hand-off tag meanwhile")
    a(f"s_cmp_lg_u32 {sWave}, 0")
    a("s_cbranch_scc1 K_S_NOTAG2")
    a(f"buffer_load_dword {aE}, {vZ[0]}, {sT4c}, 0 offen sc1")
    a.label("K_S_NOTAG2")
    a.c("operands from raw w_e: W1 (for A'), W4', wd'")
    W1=D2
    a(f"v_add_u32 {vT0}, {L_RAWW}, {vTRW}")
    for s_ in range(4):
        for x in range(2):
            for th in range(2):
                r=(s_*2+x)*4+2*th
                a(f"ds_read_b64_tr_b16 {W1[r:r+2]}, {vT0} offset:{s_*2048+th*512+x*64}")
    W4R=HA[0:8]
    for x in range(2):
        for th in range(2):
            a(f"ds_read_b64_tr_b16 {W4R[4*x+2*th:4*x+2*th+2]}, {vT0} offset:{129*128+th*512+x*64}")
    WD=M[0:2]
    a(f"v_mov_b32 {WD[0]}, 0")
    a(f"v_mov_b32 {WD[1]}, 0")
    a(f"v_and_b32 {vT1}, 31, {vL}")
    a(f"v_lshlrev_b32 {vT2}, 1, {vT1}")
    a(f"v_add_u32 {vT2}, {L_RAWW+128*128}, {vT2}")
    a(f"ds_read_u16_d16_hi {WD[0]}, {vT2}")
    a(f"ds_read_u16_d16_hi {WD[1]}, {vT2} offset:64")
    a("s_waitcnt lgkmcnt(0)")
    for x in range(2):
        for s_ in range(4):
            mfma(a,D1[16*x:16*x+16],HW[4*s_:4*s_+4],W1[(s_*2+x)*4:(s_*2+x)*4+4],"0" if s_==0 else D1[16*x:16*x+16])
    a(f"s_mov_b32 {sTmp}, {NEG_LOG2E}")
    for i in range(8):
        a(f"v_lshlrev_b32 {vT0}, 16, {W4R[i]}")
        a(f"v_and_b32 {vT2}, 0xffff0000, {W4R[i]}")
        a(f"v_mul_f32 {vT0}, {sTmp}, {vT0}")
        a(f"v_mul_f32 {vT2}, {sTmp}, {vT2}")
        a(f"v_cvt_pk_bf16_f32 {WE[i]}, {vT0}, {vT2}")
    a(f"v_cmp_lt_u32 vcc, 31, {vL}")
    for x in range(2):
        a(f"v_mul_f32 {WD[x]}, {sTmp}, {WD[x]}")
        a(f"v_cvt_pk_bf16_f32 {vT0}, {WD[x]}, {WD[x]}")
        a(f"v_and_b32 {vT0}, 0xffff0000, {vT0}")
        a(f"v_sub_f32 {vT2}, {WD[x]}, {vT0}")
        a(f"v_cvt_pk_bf16_f32 {vT2}, {vT2}, {vT2}")
        a(f"v_and_b32 {vT2}, 0xffff0000, {vT2}")
        a(f"v_cndmask_b32 {WD[x]}, {vT0}, {vT2}, vcc")
    a(f"v_lshrrev_b32 {vT2}, 5, {vL}")
    a(f"v_lshlrev_b32 {vT0}, 3, {vT2}")
    a(f"v_sub_u32 {vT0}, {vT1}, {vT0}")
    a(f"v_mov_b32 {AD[2]}, 0x3f80")
    a(f"v_mov_b32 {AD[3]}, 0x3f800000")
    for sp in range(2):
        for r in range(4):
            k0=16*sp+2*r
            a(f"v_cmp_eq_u32 vcc, {k0}, {vT0}")
            a(f"v_cmp_eq_u32 {sSave}, {k0+1}, {vT0}")
            a("s_nop 0")
            a(f"v_cndmask_b32 {ID[4*sp+r]}, {vZ[0]}, {AD[2]}, vcc")
            a(f"v_cndmask_b32 {ID[4*sp+r]}, {ID[4*sp+r]}, {AD[3]}, {sSave}")
    a(f"v_cmp_lt_u32 vcc, 31, {vL}")
    a(f"v_mov_b32 {vJ}, 0xffff")
    for x in range(2):
        for r in range(4):
            q0,q1=D1[16*x+2*r],D1[16*x+2*r+1]
            a(f"v_mul_f32 {q0}, {sTmp}, {q0}")
            a(f"v_mul_f32 {q1}, {sTmp}, {q1}")
            a(f"v_cvt_pk_bf16_f32 {vT0}, {q0}, {q1}")
            a(f"v_lshlrev_b32 {vT1}, 16, {vT0}")
            a(f"v_and_b32 {vT2}, 0xffff0000, {vT0}")
            a(f"v_sub_f32 {vT1}, {q0}, {vT1}")
            a(f"v_sub_f32 {vT2}, {q1}, {vT2}")
            a(f"v_cvt_pk_bf16_f32 {vT1}, {vT1}, {vT2}")
            a(f"v_cndmask_b32 {WA[4*x+r]}, {vT0}, {vT1}, vcc")
        a(f"v_bfi_b32 {WA[4*x+3]}, {vJ}, {WA[4*x+3]}, {WD[x]}")
    a(f"s_lshl_b32 {sTmp}, {sWave}, 11")
    a(f"s_add_u32 {sTmp}, {sTmp}, {L_A2}")
    a(f"v_lshl_add_u32 {vT0}, {vL}, 5, {sTmp}")
    a(f"ds_write_b128 {vT0}, {WA[0:4]}")
    a(f"ds_write_b128 {vT0}, {WA[4:8]} offset:16")
    for i in range(32): a(f"v_mov_b32 {D2[i]}, 0")
    for i in range(3):
        a(f"v_mov_b32 {PS[i]}, 0"); a(f"v_mov_b32 {PD[i]}, 0")
    a("s_waitcnt vmcnt(0) lgkmcnt(0)")
    a("s_barrier")
    stamp(a,opt,3)
    a(f"s_cmp_lg_u32 {sWave}, 0")
    a("s_cbranch_scc1 K_G_LOADERS")
    a.c("wave 0: signal this workgroup's hand-off, then wait for all 256")
    a(f"s_mov_b32 {sPoll}, 0")
    a.label("K_G_TAG")
    a(f"v_readfirstlane_b32 {sNonce}, {aE}")
    a("s_nop 3")
    a(f"s_cmp_lg_u32 {sNonce}, 0")
    a("s_cbranch_scc1 K_G_HAVETAG")
    a(f"s_add_u32 {sPoll}, {sPoll}, 1")
    a(f"s_cmp_gt_u32 {sPoll}, 200000")
    a("s_cbranch_scc1 K_G_HAVETAG")
    a("s_sleep 2")
    a(f"buffer_load_dword {aE}, {vZ[0]}, {sT4c}, 0 offen sc1")
    a("s_waitcnt vmcnt(0)")
    a("s_branch K_G_TAG")
    a.label("K_G_HAVETAG")
    a(f"s_lshl_b32 {sTmp}, s2, 4")
    a(f"s_add_u32 {sTmp}, {sTmp}, {FLG}")
    a(f"v_mov_b32 {vT0}, {sNonce}")
    a(f"buffer_store_dword {vT0}, {vZ[0]}, {sW}, {sTmp} offen sc1")
    a(f"s_mov_b32 {sTmp2}, {FLG}")
    a.label("K_G_POLL")
    for k in range(4): a(f"buffer_load_dword {AD[k]}, {vL16}, {sW}, {sTmp2} offen offset:{1024*k} sc1")
    a("s_waitcnt vmcnt(0)")
    a(f"v_cmp_eq_u32 {sAny}, {sNonce}, {AD[0]}")
    a(f"v_cmp_eq_u32 {sSave}, {sNonce}, {AD[1]}")
    a(f"v_cmp_eq_u32 vcc, {sNonce}, {AD[2]}")
    a("s_nop 1")
    a(f"s_and_b64 {sAny}, {sAny}, {sSave}")
    a(f"v_cmp_eq_u32 {sSave}, {sNonce}, {AD[3]}")
    a(f"s_and_b64 {sAny}, {sAny}, vcc")
    a("s_nop 1")
    a(f"s_and_b64 {sAny}, {sAny}, {sSave}")
    a(f"s_cmp_eq_u64 {sAny}, -1")
    a("s_cbranch_scc1 K_G_DONE")
    a(f"s_add_u32 {sPoll}, {sPoll}, 1")
    a(f"s_cmp_lt_u32 {sPoll}, 200000")
    a("s_cbranch_scc1 K_G_POLL")
    a("s_branch K_G_DONE")
    a.label("K_G_LOADERS")
    a.c("waves 1..7: raw w_h -> staging area, first part of the pos table")
    a("s_load_dwordx2 s[64:65], s[0:1], 56")
    a(f"s_sub_u32 {sI}, {sWave}, 1")
    a("s_waitcnt lgkmcnt(0)")
    srd(a,sT4b,"s64","s65",128*128)
    for k in range(3):
        a(f"s_add_u32 {sTmp}, {sI}, {7*k}")
        a(f"s_min_u32 {sTmp}, {sTmp}, 15")
        a(f"s_lshl_b32 {sTmp}, {sTmp}, 10")
        a(f"s_add_u32 {sTmp2}, {sTmp}, {L_HST}")
        a(f"s_mov_b32 m0, {sTmp2}")
        a("s_nop 0")
        a(f"buffer_load_dwordx4 {vL16}, {sT4b}, {sTmp} offen lds")
    def pos_dma(piece_sreg):
        a(f"s_lshl_b32 {sTmp}, {piece_sreg}, 10")
        a(f"s_add_u32 {sTmp2}, {sTmp}, {L_POS}")
        a(f"s_mov_b32 m0, {sTmp2}")
        a("s_nop 0")
        a(f"buffer_load_dwordx4 {vL16}, {sP}, {sTmp} offen lds")
    for k in range(6):
        a(f"s_add_u32 {sTmp3}, {sI}, {7*k}")
        pos_dma(sTmp3)
    a("s_waitcnt vmcnt(0)")
    a.label("K_G_DONE")
    a("s_barrier")
    stamp(a,opt,4)
    REC=D1[0:16]; WAD=D1[16:32]; RK=HA
    a.c("cell records of this bin: 16 dwords per lane")
    a(f"s_lshl_b32 {sTmp}, s2, 15")
    a(f"s_lshl_b32 {sTmp2}, {sWave}, 8")
    a(f"s_add_u32 {sTmp}, {sTmp}, {sTmp2}")
    a(f"v_lshl_add_u32 {vT0}, {vL}, 2, {sTmp}")
    for s_ in range(16):
        if s_%2==0: a(f"s_mov_b32 {sTmp}, {CELLS+(s_//2)*4096}")
        a(f"buffer_load_dword {REC[s_]}, {vT0}, {sW}, {sTmp} offen offset:{(s_%2)*2048}{LD}")
    a.c("node-update weights (transposed reads of raw w_h), waves 0..3 use them")
    a(f"s_and_b32 {sTmp}, {sWave}, 1")
    a(f"s_lshl_b32 {sTmp}, {sTmp}, 6")
    a(f"s_add_u32 {sTmp}, {sTmp}, {L_HST}")
    a(f"v_add_u32 {vT1}, {sTmp}, {vTRW}")
    for s_ in range(8):
        for th in range(2):
            a(f"ds_read_b64_tr_b16 {WH[4*s_+2*th:4*s_+2*th+2]}, {vT1} offset:{s_*2048+th*512}")
            if (2*s_+th)==7: a("s_waitcnt lgkmcnt(4)")
    a("s_waitcnt vmcnt(0)")
    stamp(a,opt,5)
    a(f"s_mov_b64 {sAny}, 0")
    for s_ in range(16):
        a(f"v_cmp_gt_u32 {sMask[s_]}, {sMark}, {REC[s_]}")
        a(f"v_cmp_eq_u32 vcc, {sMark}, {REC[s_]}")
        a(f"v_lshrrev_b32 {WAD[s_]}, 27, {REC[s_]}")
        a(f"v_and_b32 {WAD[s_]}, 0x1c, {WAD[s_]}")
        a(f"s_or_b64 {sAny}, {sAny}, vcc")
    for s_ in range(16):
        a(f"s_mov_b64 exec, {sMask[s_]}")
        a(f"ds_add_rtn_u32 {RK[s_]}, {WAD[s_]}, {vOne} offset:{L_CNT}")
        if s_==7: a("s_waitcnt lgkmcnt(4)")
    a("s_mov_b64 exec, -1")
    a(f"s_lshl_b32 {sTmp}, {sWave}, 1")
    a(f"v_lshrrev_b32 {vT0}, 5, {vL}")
    a(f"v_add_u32 {vT0}, {sTmp}, {vT0}")
    a(f"v_mul_u32_u24 {vT0}, {CH}, {vT0}")
    a(f"v_mov_b32 {vT1}, {L_L0}")
    a(f"v_mov_b32 {vT2}, {L_L1}")
    a("s_waitcnt lgkmcnt(0)")
    for s_ in range(16):
        if s_%4==0:
            a(f"s_add_u32 {sTmp3}, {sWave}, {42+8*(s_//4)}")
            a(f"s_min_u32 {sTmp3}, {sTmp3}, 73")
            a(f"s_lshl_b32 {sTmp3}, {sTmp3}, 10")
            a(f"s_add_u32 {sI}, {sTmp3}, {L_POS}")
            a(f"s_mov_b32 m0, {sI}")
            a("s_nop 0")
            a(f"buffer_load_dwordx4 {vL16}, {sP}, {sTmp3} offen lds")
        a(f"s_mov_b64 exec, {sMask[s_]}")
        a(f"s_mov_b32 {sTmp}, {s_*16*CH}")
        a(f"v_min_u32 {RK[s_]}, {CAPX-1}, {RK[s_]}")
        a(f"v_and_b32 {vT3}, 0xfff, {REC[s_]}")
        a(f"v_mad_u32_u24 {RK[s_]}, {WAD[s_]}, {sCAPq}, {RK[s_]}")
        a(f"v_add3_u32 {vT3}, {vT3}, {vT0}, {sTmp}")
        a(f"v_bfe_u32 {vJ}, {REC[s_]}, 26, 3")
        a(f"v_lshl_add_u32 {AD[0]}, {RK[s_]}, 2, {vT1}")
        a(f"v_lshl_or_b32 {vT3}, {vT3}, 5, {vJ}")
        a(f"v_lshl_add_u32 {AD[1]}, {RK[s_]}, 1, {vT2}")
        a(f"v_bfe_u32 {vJ}, {REC[s_]}, 12, 14")
        a(f"ds_write_b32 {AD[0]}, {vT3}")
        a(f"ds_write_b16 {AD[1]}, {vJ}")
        a("s_mov_b64 exec, -1") if s_%4==3 else None
    a("s_mov_b64 exec, -1")
    a.c("overflowed cells -> rescan list (rare)")
    a(f"s_cmp_eq_u64 {sAny}, 0")
    a("s_cbranch_scc1 K2_NOMARK")
    a(f"v_lshrrev_b32 {vT0}, 5, {vL}")
    a(f"s_lshl_b32 {sTmp}, {sWave}, 1")
    a(f"v_add_u32 {vT0}, {sTmp}, {vT0}")
    a(f"v_mov_b32 {vT1}, {L_NRES}")
    for s_ in range(16):
        a(f"v_cmp_eq_u32 vcc, {sMark}, {REC[s_]}")
        a(f"s_and_saveexec_b64 {sSave}, vcc")
        a(f"s_cbranch_execz K2_MK{s_}")
        a(f"ds_add_rtn_u32 {vT2}, {vT1}, {vOne}")
        a(f"v_add_u32 {vT3}, {16*s_}, {vT0}")
        a("s_waitcnt lgkmcnt(0)")
        a(f"v_lshlrev_b32 {vT2}, 2, {vT2}")
        a(f"ds_write_b32 {vT2}, {vT3} offset:{L_RES}")
        a.label(f"K2_MK{s_}")
        a(f"s_mov_b64 exec, {sSave}")
    a.label("K2_NOMARK")
    a("s_load_dwordx2 s[64:65], s[0:1], 0")
    a("s_load_dwordx2 s[66:67], s[0:1], 48")
    a("s_waitcnt vmcnt(0) lgkmcnt(0)")
    srd(a,sHs,"s64","s65",N*128)
    srd(a,sWx,"s66","s67",128)
    stamp(a,opt,6)
    a("s_barrier")
    stamp(a,opt,7)
    a.c("rescan?")
    a(f"v_mov_b32 {vT0}, {L_NRES}")
    a(f"ds_read_b32 {vT1}, {vT0}")
    a(f"v_and_b32 {vT0}, 7, {vL}")
    a(f"v_lshlrev_b32 {vT0}, 2, {vT0}")
    a(f"ds_read_b32 {vT2}, {vT0} offset:{L_CNT}")
    a("s_waitcnt lgkmcnt(0)")
    a(f"v_readfirstlane_b32 {sNR}, {vT1}")
    a("s_nop 3")
    a(f"s_min_u32 {sNR}, {sNR}, 256")
    a(f"s_cmp_eq_u32 {sNR}, 0")
    a("s_cbranch_scc1 K2_CHECK")
    a(f"s_mov_b32 {sI}, 0")
    a.label("K2_RESCAN_I")
    a(f"s_lshl_b32 {sTmp}, {sI}, 2")
    a(f"s_add_u32 {sTmp}, {sTmp}, {L_RES}")
    a(f"v_mov_b32 {vT0}, {sTmp}")
    a(f"ds_read_b32 {vT1}, {vT0}")
    a("s_waitcnt lgkmcnt(0)")
    a(f"v_readfirstlane_b32 {sWsrc}, {vT1}")
    a("s_nop 3")
    a(f"s_min_u32 {sWsrc}, {sWsrc}, 255")
    a(f"s_mov_b32 {sC}, 0")
    a.label("K2_RESCAN_C")
    def append_raw(lim_local):
        a(f"v_lshlrev_b32 {vT1}, 2, {vT0}")
        a(f"buffer_load_dword {AD[0]}, {vT1}, {sD}, 0 offen")
        a(f"buffer_load_dword {AD[1]}, {vT1}, {sS}, 0 offen")
        a("s_waitcnt vmcnt(0)")
        a(f"v_mul_hi_u32 {vT2}, {AD[0]}, {sK}")
        a(f"v_lshrrev_b32 {vT3}, 3, {vT2}")
        a(f"v_cmp_eq_u32 vcc, s2, {vT3}")
        a("s_nop 1")
        a(f"s_and_b64 vcc, vcc, {sAny}")
        a(f"s_and_saveexec_b64 {sSave}, vcc")
        a(f"s_cbranch_execz {lim_local}")
        a(f"v_mad_u32_u24 {vT3}, {vT2}, {s3125}, {v511}")
        a(f"v_and_b32 {vT2}, 7, {vT2}")
        a(f"v_lshrrev_b32 {vT3}, 9, {vT3}")
        a(f"v_lshlrev_b32 {vT2}, 2, {vT2}")
        a(f"v_sub_u32 {vT3}, {AD[0]}, {vT3}")
        a(f"ds_add_rtn_u32 {AD[2]}, {vT2}, {vOne} offset:{L_CNT}")
        a(f"v_lshl_or_b32 {vT0}, {vT0}, 5, {vT3}")
        a("s_waitcnt lgkmcnt(0)")
        a(f"v_min_u32 {AD[2]}, {CAPX-1}, {AD[2]}")
        a(f"v_mad_u32_u24 {AD[2]}, {vT2}, {sCAPq}, {AD[2]}")
        a(f"v_mov_b32 {vT2}, {L_L0}")
        a(f"v_mov_b32 {vT3}, {L_L1}")
        a(f"v_lshl_add_u32 {vT2}, {AD[2]}, 2, {vT2}")
        a(f"v_lshl_add_u32 {vT3}, {AD[2]}, 1, {vT3}")
        a(f"ds_write_b32 {vT2}, {vT0}")
        a(f"ds_write_b16 {vT3}, {AD[1]}")
        a.label(lim_local)
        a(f"s_mov_b64 exec, {sSave}")
    a(f"s_lshl_b32 {sTmp}, {sC}, 9")
    a(f"v_add_u32 {vT1}, {sTmp}, v0")
    a(f"s_mul_i32 {sTmp2}, {sWsrc}, {CH}")
    a(f"v_add_u32 {vT0}, {sTmp2}, {vT1}")
    a(f"v_cmp_gt_u32 vcc, {CH}, {vT1}")
    a(f"s_mov_b32 {sTmp}, {E}")
    a(f"v_cmp_gt_u32 {sAny}, {sTmp}, {vT0}")
    a("s_nop 1")
    a(f"s_and_b64 {sAny}, {sAny}, vcc")
    append_raw("K2_RA1")
    a(f"s_add_u32 {sC}, {sC}, 1")
    a(f"s_cmp_lt_u32 {sC}, 7")
    a("s_cbranch_scc1 K2_RESCAN_C")
    a(f"s_add_u32 {sI}, {sI}, 1")
    a(f"s_cmp_lt_u32 {sI}, {sNR}")
    a("s_cbranch_scc1 K2_RESCAN_I")
    a("s_waitcnt lgkmcnt(0)")
    a("s_barrier")
    a(f"v_and_b32 {vT0}, 7, {vL}")
    a(f"v_lshlrev_b32 {vT0}, 2, {vT0}")
    a(f"ds_read_b32 {vT2}, {vT0} offset:{L_CNT}")
    a("s_waitcnt lgkmcnt(0)")
    a.label("K2_CHECK")
    a.c("window assignment: SIMD partners (v, v+4) get the windows of rank (v, 7-v) by size")
    a(f"v_cmp_lt_u32 {sAny}, {CAP}, {vT2}" if False else f"v_cmp_lt_u32 vcc, {CAP}, {vT2}")
    a(f"v_and_b32 {vT0}, 7, {vL}")
    a(f"v_min_u32 {vT1}, 0xffffff, {vT2}")
    a(f"s_mov_b64 {sAny}, vcc")
    a(f"v_lshl_or_b32 {vT1}, {vT1}, 3, {vT0}")
    a(f"v_mov_b32 {vT3}, 0")
    for i in range(8):
        a(f"v_readlane_b32 {sTmp}, {vT1}, {i}")
        a("s_nop 1")
        a(f"v_cmp_gt_u32 vcc, {sTmp}, {vT1}")
        a("s_nop 1")
        a(f"v_addc_co_u32 {vT3}, vcc, 0, {vT3}, vcc")
    a(f"s_sub_u32 {sTmp}, 11, {sWave}")
    a(f"s_cmp_lt_u32 {sWave}, 4")
    a(f"s_cselect_b32 {sTmp}, {sWave}, {sTmp}")
    a(f"v_cmp_eq_u32 vcc, {sTmp}, {vT3}")
    a("s_nop 3")
    a(f"s_ff1_i32_b32 {sWin}, vcc_lo")
    a(f"s_and_b32 {sWin}, {sWin}, 7")
    if opt.get('nobal',0): a(f"s_mov_b32 {sWin}, {sWave}")
    a(f"v_readlane_b32 {sCnt}, {vT2}, {sWin}")
    geometry(sWin)
    a(f"v_sub_u32 {vT1}, 11, {vT3}")
    a(f"v_cmp_gt_u32 vcc, 4, {vT3}")
    a(f"v_and_b32 {vT0}, 7, {vL}")
    a(f"s_lshl_b32 {sTmp}, s2, 3")
    a(f"v_cndmask_b32 {vT1}, {vT1}, {vT3}, vcc")
    if opt.get('nobal',0): a(f"v_mov_b32 {vT1}, {vT0}")
    a(f"v_add_u32 {vT0}, {sTmp}, {vT0}")
    a(f"v_mad_u32_u24 {E01[0]}, {vT0}, {s3125}, {v511}")
    a(f"v_add_u32 {E01[1]}, 3125, {E01[0]}")
    a(f"v_lshrrev_b32 {E01[0]}, 9, {E01[0]}")
    a(f"v_lshrrev_b32 {E01[1]}, 9, {E01[1]}")
    a(f"v_lshlrev_b32 {vT1}, 3, {vT1}")
    a(f"v_sub_u32 {E01[1]}, {E01[1]}, {E01[0]}")
    a(f"ds_write_b64 {vT1}, {E01} offset:{L_WIN}")
    a(f"s_lshl_b32 {sTmp}, {sWin}, 11")
    a(f"s_add_u32 {sTmp}, {sTmp}, {L_A2}")
    a(f"v_lshl_add_u32 {vT0}, {vL}, 5, {sTmp}")
    a(f"ds_read_b128 {WA[0:4]}, {vT0}")
    a(f"ds_read_b128 {WA[4:8]}, {vT0} offset:16")
    for i in range(4): a(f"v_mov_b32 {T[i]}, 0")
    a(f"ds_write_b128 {vT0}, {T[0:4]}")
    a(f"ds_write_b128 {vT0}, {T[0:4]} offset:16")
    a(f"v_and_b32 {vT1}, 31, {vL}")
    a(f"v_lshrrev_b32 {vT2}, 5, {vL}")
    a(f"v_lshl_add_u32 {vE64}, {vT1}, 6, {sTmp}")
    a(f"v_bfe_u32 {vT0}, {vL}, 2, 2")
    a(f"v_lshl_add_u32 {vT0}, {vT2}, 2, {vT0}")
    a(f"v_lshl_add_u32 {vTR}, {vT0}, 6, {sTmp}")
    a(f"v_bfe_u32 {vT0}, {vL}, 4, 1")
    a(f"v_lshl_add_u32 {vTR}, {vT0}, 5, {vTR}")
    a(f"v_and_b32 {vT0}, 3, {vL}")
    a(f"v_lshl_add_u32 {vTR}, {vT0}, 3, {vTR}")
    a(f"s_lshl_b32 {sHST}, {sWave}, 12")
    a(f"s_add_u32 {sHST}, {sHST}, {L_HST}")
    for i in range(4): a(f"s_add_u32 {sM0[i]}, {sHST}, {1024*i}")
    a(f"v_and_b32 {vT0}, 3, {vT1}")
    a(f"v_bfe_u32 {vT3}, {vT1}, 4, 1")
    a(f"v_lshl_or_b32 {vT3}, {vT3}, 2, {vT0}")
    a(f"v_lshlrev_b32 {vT0}, 3, {vT0}")
    a(f"v_lshrrev_b32 {vJ}, 2, {vT1}")
    a(f"v_add_u32 {vT0}, {vT0}, {vJ}")
    a(f"v_lshl_add_u32 {vT0}, {vT0}, 7, {sHST}")
    for s_ in range(4):
        a(f"v_add_u32 {vJ}, {2*s_}, {vT2}")
        a(f"v_xor_b32 {vJ}, {vJ}, {vT3}")
        a(f"v_lshl_add_u32 {vHA[s_]}, {vJ}, 4, {vT0}")
    a(f"v_and_b32 {vT0}, 7, {vL}")
    a(f"v_lshlrev_b32 {vT3}, 2, {vT2}")
    a(f"v_xor_b32 {vT0}, {vT0}, {vT3}")
    for i in range(4):
        a(f"v_xor_b32 {vJ}, {i}, {vT0}")
        a(f"v_lshlrev_b32 {vKD[i]}, 4, {vJ}")
    a(f"s_cmp_eq_u64 {sAny}, 0")
    a("s_cbranch_scc1 K2_MAIN")
    a.c("generic (slow) mode: raw scan of all edges, 512 per round")
    a(f"s_mov_b32 {sMode}, 1")
    a.label("K2_GEN")
    a("s_barrier")
    a(f"s_cmp_lg_u32 {sWave}, 0")
    a("s_cbranch_scc1 K2_GEN1")
    a(f"v_and_b32 {vT0}, 7, {vL}")
    a(f"v_lshlrev_b32 {vT0}, 2, {vT0}")
    a(f"ds_write_b32 {vT0}, {vZ[0]} offset:{L_CNT}")
    a("s_waitcnt lgkmcnt(0)")
    a.label("K2_GEN1")
    a("s_barrier")
    a(f"s_lshl_b32 {sTmp}, {sChunk}, 9")
    a(f"v_add_u32 {vT0}, {sTmp}, v0")
    a(f"s_mov_b32 {sTmp}, {E}")
    a(f"v_cmp_gt_u32 {sAny}, {sTmp}, {vT0}")
    a("s_nop 1")
    append_raw("K2_RA2")
    a("s_waitcnt lgkmcnt(0)")
    a("s_barrier")
    a(f"s_lshl_b32 {sTmp}, {sWin}, 2")
    a(f"v_mov_b32 {vT0}, {sTmp}")
    a(f"ds_read_b32 {vT1}, {vT0} offset:{L_CNT}")
    a("s_waitcnt lgkmcnt(0)")
    a(f"v_readfirstlane_b32 {sCnt}, {vT1}")
    a("s_nop 3")
    a.label("K2_MAIN")
    a(f"s_min_u32 {sCnt}, {sCnt}, {CAP}")
    a(f"s_add_u32 {sNT}, {sCnt}, 31")
    a(f"s_lshr_b32 {sNT}, {sNT}, 5")
    a(f"s_cmp_eq_u32 {sNT}, 0")
    a("s_cbranch_scc1 K2_MAIN_DONE")
    a(f"s_mul_i32 {sTmp}, {sWin}, {CAPX*4}")
    a(f"s_add_u32 {sTmp}, {sTmp}, {L_L0}")
    a(f"s_mul_i32 {sTmp2}, {sWin}, {CAPX*2}")
    a(f"s_add_u32 {sTmp2}, {sTmp2}, {L_L1}")
    a(f"v_add_u32 {vT0}, {sCnt}, {vL}")
    a(f"v_lshl_add_u32 {vT1}, {vT0}, 2, {sTmp}")
    a(f"v_lshl_add_u32 {vT2}, {vT0}, 1, {sTmp2}")
    a(f"v_mov_b32 {vT3}, 7")
    a(f"ds_write_b32 {vT1}, {vT3}")
    a(f"ds_write_b16 {vT2}, {vZ[0]}")
    a(f"ds_write_b32 {vT1}, {vT3} offset:256")
    a(f"ds_write_b16 {vT2}, {vZ[0]} offset:128")
    a(f"v_and_b32 {vT0}, 31, {vL}")
    a(f"v_lshl_add_u32 {aL0}, {vT0}, 2, {sTmp}")
    a(f"v_lshl_add_u32 {aL1s}, {vT0}, 1, {sTmp2}")
    a(f"v_lshrrev_b32 {vT0}, 3, {vL}")
    a(f"v_lshl_add_u32 {aL1d}, {vT0}, 3, {sTmp2}")
    a(f"ds_read_b32 {vT3}, {aL0}")
    a(f"ds_read_b32 {LE[1]}, {aL0} offset:128")
    a(f"ds_read_b32 {LE[0]}, {aL0} offset:256")
    a(f"ds_read_b64 {SD}, {aL1d}")
    a(f"ds_read_u16 {SS}, {aL1s}")
    a("s_waitcnt lgkmcnt(0)")
    ENT=' nt' if opt.get('e_nt',0) else ''
    def E_addr(le): a(f"v_and_or_b32 {aE}, {le}, {sMaskE}, {vHOFF}")
    def E_load(p): a(f"buffer_load_dwordx4 {EA[p]}, {aE}, {sE}, 0 offen{ENT}")
    def H_addr():
        for i in range(4):
            a(f"v_mad_u32_u16 {AD[i]}, {SD[i>>1]}, {s128}, {vKD[i]}"+(" op_sel:[1,0,0,0]" if i&1 else ""))
    def H_load(i):
        a(f"s_mov_b32 m0, {sM0[i]}")
        a("s_nop 0")
        a(f"buffer_load_dwordx4 {AD[i]}, {sB}, 0 offen{HLD} lds")
    def P_addr(le,par):
        a(f"v_and_b32 {vJ}, 7, {le}")
        a(f"v_mul_u32_u24 {aPS}, 6, {SS}")
        a(f"v_mad_u32_u24 {aPD}, {vJ}, 6, {sN06}")
        a(f"v_lshlrev_b32 {aOH}, 4, {vJ}")
        a(f"v_lshl_add_u32 {aA2[par]}, {vJ}, 3, {vE64}")
    def P_reads():
        for c in range(3): a(f"ds_read_u16_d16_hi {PS[c]}, {aPS} offset:{L_POS+2*c}")
        for c in range(3): a(f"ds_read_u16_d16_hi {PD[c]}, {aPD} offset:{L_POS+2*c}")
        a(f"ds_read_b128 {OH}, {aOH} offset:{L_OH}")
    def P_calc_list(par):
        return [f"v_sub_f32 {DX[0]}, {PD[0]}, {PS[0]}", f"v_sub_f32 {DX[1]}, {PD[1]}, {PS[1]}", f"v_sub_f32 {DX[2]}, {PD[2]}, {PS[2]}",
                f"v_mul_f32 {DD}, {DX[0]}, {DX[0]}", f"v_fmac_f32 {DD}, {DX[1]}, {DX[1]}", f"v_fmac_f32 {DD}, {DX[2]}, {DX[2]}",
                f"v_cvt_pk_bf16_f32 {E01[0]}, 1.0, {DX[0]}", f"v_cvt_pk_bf16_f32 {E01[1]}, {DX[1]}, {DX[2]}",
                f"v_cvt_pk_bf16_f32 {OH[3]}, {OH[3]}, {DD}",
                f"ds_write_b64 {aA2[par]}, {E01}"]
    E_addr(vT3); E_load(0)
    H_addr()
    for i in range(4): H_load(i)
    E_addr(LE[1]); E_load(1)
    P_addr(vT3,0); P_reads()
    a(f"ds_read_b64 {SD}, {aL1d} offset:64")
    a(f"ds_read_u16 {SS}, {aL1s} offset:64")
    for i in range(16): a(f"v_mov_b32 {T[i]}, 0")
    for i in range(8): a(f"v_mov_b32 {A2R[i]}, 0")
    a("s_waitcnt lgkmcnt(0)")
    for ins in P_calc_list(0): a(ins)
    H_addr()
    P_addr(LE[1],1)
    E_addr(LE[0])
    a("s_waitcnt vmcnt(1)")
    for s_ in range(4): a(f"ds_read_b128 {HA[4*s_:4*s_+4]}, {vHA[s_]}")
    Da,Db=D1[0:16],D1[16:32]
    mfma(a,Da,OH,WA[0:4],"0")
    mfma(a,Da,EA[0],WE[0:4],Da)
    a("s_waitcnt lgkmcnt(0)")
    for i in range(4): H_load(i)
    mfma(a,Da,HA[0:4],ID[0:4],Da)
    mfma(a,Da,HA[4:8],ID[4:8],Da)
    a(f"s_mov_b32 {sT}, 0")
    stamp(a,opt,8)
    if DBG:
        a("s_memtime s[80:81]")
        a("s_waitcnt lgkmcnt(0)")
    a.nop(12)
    def prio(p):
        if PRIO: a(f"s_setprio {p}")
    def Tsec(kind,x,p):
        Dx=D1[16*x:16*x+16]; o=1-x; Do=D1[16*o:16*o+16]; D2o=D2[16*o:16*o+16]
        prio(1)
        if kind=='X':
            ea = EA[p] if x==0 else EA[1-p]
            mfma(a,Do,OH,WA[4*o:4*o+4],"0")
            for i in range(8): a(f"v_cvt_pk_bf16_f32 {M[i]}, {T[2*i]}, {T[2*i+1]}")
            mfma(a,Do,ea,WE[4*o:4*o+4],Do)
            for i in range(16):
                if i==6:
                    if x==1: a("s_waitcnt lgkmcnt(2)")
                    mfma(a,D2o,A2R[0:4],M[0:4],D2o)
                a(f"v_exp_f32 {T[i]}, {Dx[i]}")
        else:
            hb = HA[8:16] if x==0 else HA[0:8]
            for i in range(16):
                if i==0: mfma(a,Do,hb[0:4],ID[0:4],Do)
                if i==5: mfma(a,Do,hb[4:8],ID[4:8],Do)
                if i==10: mfma(a,D2o,A2R[4:8],M[4:8],D2o)
                a(f"v_rcp_f32 {T[i]}, {T[i]}")
        prio(0)
    def tile(p):
        q=1-p
        Tsec('X',0,p)
        E_load(p)
        P_reads()
        a(f"ds_read_b64 {SD}, {aL1d} offset:{64*(p+2)}")
        for i in range(16): a(f"v_add_f32 {T[i]}, 1.0, {T[i]}")
        Tsec('R',0,p)
        a("s_waitcnt vmcnt(1) lgkmcnt(0)")
        for s_ in range(4): a(f"ds_read_b128 {HA[4*s_:4*s_+4]}, {vHA[s_]}")
        for k in range(4): a(f"ds_read_b64_tr_b16 {A2R[2*k:2*k+2]}, {vTR} offset:{512*k}")
        a(f"ds_write_b64 {aA2[p]}, {vZ}")
        pc=P_calc_list(q)
        for ins in pc[:6]: a(ins)
        H_addr()
        for i in range(16): a(f"v_mul_f32 {T[i]}, {Da[i]}, {T[i]}")
        for ins in pc[6:]: a(ins)
        Tsec('X',1,p)
        a("s_waitcnt lgkmcnt(0)")
        for i in range(4): H_load(i)
        a(f"ds_read_b32 {LE[q]}, {aL0} offset:{128*(p+3)}")
        a(f"ds_read_u16 {SS}, {aL1s} offset:{64*(p+2)}")
        for i in range(16): a(f"v_add_f32 {T[i]}, 1.0, {T[i]}")
        Tsec('R',1,p)
        a("s_waitcnt lgkmcnt(0)")
        E_addr(LE[q])
        P_addr(LE[p],p)
        if p==1:
            a(f"v_add_u32 {aL0}, 256, {aL0}")
            a(f"v_add_u32 {aL1s}, 128, {aL1s}")
            a(f"v_add_u32 {aL1d}, 128, {aL1d}")
        for i in range(16): a(f"v_mul_f32 {T[i]}, {Db[i]}, {T[i]}")
    def drain(par):
        for i in range(8): a(f"v_cvt_pk_bf16_f32 {M[i]}, {T[2*i]}, {T[2*i+1]}")
        a(f"ds_write_b64 {aA2[par]}, {vZ}")
        a("s_nop 0")
        mfma(a,D2[16:32],A2R[0:4],M[0:4],D2[16:32])
        mfma(a,D2[16:32],A2R[4:8],M[4:8],D2[16:32])
    a(".p2align 6")
    a.label("K2_LOOP")
    tile(0)
    a(f"s_add_u32 {sT}, {sT}, 1")
    a(f"s_cmp_ge_u32 {sT}, {sNT}")
    a("s_cbranch_scc1 K2_EXIT_ODD")
    tile(1)
    a(f"s_add_u32 {sT}, {sT}, 1")
    a(f"s_cmp_lt_u32 {sT}, {sNT}")
    a("s_cbranch_scc1 K2_LOOP")
    drain(0)
    a("s_branch K2_MAIN_DONE")
    a.label("K2_EXIT_ODD")
    drain(1)
    a.label("K2_MAIN_DONE")
    stamp(a,opt,9)
    if DBG:
        a("s_memtime s[82:83]")
        a("s_waitcnt lgkmcnt(0)")
        a("s_sub_u32 s80, s82, s80")
        a(f"v_writelane_b32 {VDBG}, s80, 12")
        a(f"v_writelane_b32 {VDBG}, {sNT}, 11")
    a("s_waitcnt vmcnt(0) lgkmcnt(0)")
    a(f"s_cmp_eq_u32 {sMode}, 0")
    a("s_cbranch_scc1 K2_EPI")
    a(f"s_add_u32 {sChunk}, {sChunk}, 1")
    a(f"s_cmp_lt_u32 {sChunk}, {(E+511)//512}")
    a("s_cbranch_scc1 K2_GEN")
    a.label("K2_EPI")
    a.c("segment sums of this window: m_i (bf16) -> own staging rows")
    a(f"v_and_b32 {vJ}, 31, {vL}")
    a(f"v_lshlrev_b32 {vT2}, 2, {vL}")
    a(f"v_lshlrev_b32 {vT3}, 1, {vJ}")
    a(f"v_mov_b32 {DX[0]}, 0")
    a(f"v_mov_b32 {DX[1]}, 0")
    a(f"buffer_load_short_d16_hi {DX[0]}, {vT3}, {sWx}, 0 offen")
    a(f"buffer_load_short_d16_hi {DX[1]}, {vT3}, {sWx}, 0 offen offset:64")
    a(f"s_mov_b32 {sTmp}, {NEG_LN2}")
    a(f"v_lshrrev_b32 {vT2}, 5, {vL}")
    a(f"v_lshlrev_b32 {vT2}, 7, {vT2}")
    a(f"v_lshl_add_u32 {vT2}, {vJ}, 1, {vT2}")
    a(f"v_add_u32 {vT2}, {sHST}, {vT2}")
    a.nop(6)
    for qq in range(4):
        a(f"v_mul_f32 {AD[0]}, {sTmp}, {D2[4*qq]}")
        a(f"v_mul_f32 {AD[1]}, {sTmp}, {D2[16+4*qq]}")
        a(f"v_cvt_pk_bf16_f32 {AD[2]}, {AD[0]}, {AD[1]}")
        a(f"ds_write_b16 {vT2}, {AD[2]} offset:{qq*256}")
        a(f"ds_write_b16_d16_hi {vT2}, {AD[2]} offset:{qq*256+64}")
    a.c("job waves 0..3: row tile r = v>>1 (rows = staging wave 4r + (m>>3), node m&7), feature half x = v&1")
    a(f"s_cmp_gt_u32 {sWave}, 3")
    a("s_cbranch_scc1 K2_EPI_NOJOB")
    a(f"s_lshr_b32 {sTmp2}, {sWave}, 1")
    a(f"s_lshl_b32 {sTmp2}, {sTmp2}, 2")
    a(f"v_bfe_u32 {vT0}, {vL}, 3, 2")
    a(f"v_add_u32 {vT0}, {sTmp2}, {vT0}")
    a(f"v_lshlrev_b32 {vT1}, 3, {vT0}")
    a(f"ds_read_b64 {SD}, {vT1} offset:{L_WIN}")
    a(f"v_and_b32 {vJ}, 7, {vL}")
    a(f"v_lshlrev_b32 {aL1d}, 12, {vT0}")
    a(f"v_lshl_add_u32 {aL1d}, {vJ}, 7, {aL1d}")
    a(f"v_add_u32 {aL1d}, {L_HST}, {aL1d}")
    a(f"v_add_u32 {aL1d}, {aL1d}, {vHOFF}")
    a("s_waitcnt lgkmcnt(0)")
    a(f"v_cmp_lt_u32 vcc, {vJ}, {SD[1]}")
    a(f"v_add_u32 {vT1}, -1, {SD[1]}")
    a(f"v_min_u32 {vT1}, {vT1}, {vJ}")
    a(f"v_add_u32 {vT1}, {SD[0]}, {vT1}")
    a(f"v_lshlrev_b32 {vT1}, 7, {vT1}")
    a(f"v_add_u32 {vT0}, {vT1}, {vHOFF}")
    for s_ in range(4):
        a(f"buffer_load_dwordx4 {HA[4*s_:4*s_+4]}, {vT0}, {sHs}, 0 offen offset:{32*s_}")
    a(f"s_and_b32 {sTmp2}, {sWave}, 1")
    a(f"s_lshl_b32 {sTmp2}, {sTmp2}, 6")
    a(f"v_lshrrev_b32 {vT0}, 1, {vHOFF}")
    a(f"v_add3_u32 {aL0}, {vT1}, {vT0}, {sTmp2}")
    for qq in range(4):
        a(f"buffer_load_dwordx2 {M[2*qq:2*qq+2]}, {aL0}, {sHs}, 0 offen offset:{16*qq}")
    a(f"v_mov_b32 {vT0}, 0x40000000")
    a(f"v_cndmask_b32 {aL1s}, {vT0}, {aL0}, vcc")
    a.label("K2_EPI_NOJOB")
    a.c("coordinate update of this window")
    a(f"s_mov_b32 {sTmp}, {NEG_LN2}")
    a("s_waitcnt vmcnt(0)")
    a(f"v_mul_f32 {DX[0]}, {sTmp}, {DX[0]}")
    a(f"v_mul_f32 {DX[1]}, {sTmp}, {DX[1]}")
    PP=T
    for qq in range(4):
        for c in range(1,4):
            r=PP[qq*3+c-1]
            a(f"v_mul_f32 {r}, {DX[0]}, {D2[4*qq+c]}")
            a(f"v_fmac_f32 {r}, {DX[1]}, {D2[16+4*qq+c]}")
    for sh in (1,2,4,8):
        for i in range(12): a(f"v_add_f32_dpp {PP[i]}, {PP[i]}, {PP[i]} row_shr:{sh} row_mask:0xf bank_mask:0xf bound_ctrl:0")
    for i in range(12): a(f"v_add_f32_dpp {PP[i]}, {PP[i]}, {PP[i]} row_bcast:15 row_mask:0xa bank_mask:0xf")
    a(f"v_lshrrev_b32 {vT2}, 5, {vL}")
    a(f"v_lshlrev_b32 {vT2}, 4, {vT2}")
    a(f"s_add_u32 {sTmp}, {sHST}, 2048")
    a(f"v_add_u32 {vT2}, {sTmp}, {vT2}")
    a("s_mov_b32 exec_lo, 0x80000000")
    a("s_mov_b32 exec_hi, 0x80000000")
    for qq in range(4):
        for c in range(3):
            a(f"ds_write_b32 {vT2}, {PP[qq*3+c]} offset:{qq*32+c*4}")
    a("s_mov_b64 exec, -1")
    a(f"v_mul_u32_u24 {vT2}, 86, {vL}")
    a(f"v_lshrrev_b32 {vT2}, 8, {vT2}")
    a(f"v_mul_u32_u24 {vT3}, 3, {vT2}")
    a(f"v_sub_u32 {vT3}, {vL}, {vT3}")
    a(f"v_lshlrev_b32 {vT2}, 4, {vT2}")
    a(f"v_lshl_add_u32 {vT2}, {vT3}, 2, {vT2}")
    a(f"v_add_u32 {vT2}, {sTmp}, {vT2}")
    a(f"v_min_u32 {vT2}, {LDS2-4}, {vT2}")
    a(f"ds_read_b32 {AD[0]}, {vT2}")
    a(f"v_lshl_add_u32 {vT3}, {vL}, 1, {sN06}")
    a(f"v_min_u32 {vT2}, {POS_SZ-2}, {vT3}")
    a(f"ds_read_u16_d16_hi {PS[0]}, {vT2} offset:{L_POS}")
    a(f"s_mul_i32 {sTmp}, {sNJ}, 3")
    a(f"v_cmp_gt_u32 vcc, {sTmp}, {vL}")
    a(f"v_add_u32 {vT3}, {OUT_POS}, {vT3}")
    a(f"v_mov_b32 {vT2}, 0x40000000")
    a("s_waitcnt lgkmcnt(0)")
    a(f"v_cndmask_b32 {vT3}, {vT2}, {vT3}, vcc")
    a(f"v_add_f32 {AD[0]}, {AD[0]}, {PS[0]}")
    a(f"v_cvt_pk_bf16_f32 {AD[0]}, {AD[0]}, {AD[0]}")
    a(f"buffer_store_short {AD[0]}, {vT3}, {sO}, 0 offen")
    stamp(a,opt,10)
    a("s_barrier")
    a(f"s_cmp_gt_u32 {sWave}, 3")
    a("s_cbranch_scc1 K2_FIN")
    MA=[EA[0],EA[1],A2R[0:4],A2R[4:8]]
    for s_ in range(4): a(f"ds_read_b128 {MA[s_]}, {aL1d} offset:{32*s_}")
    for s_ in range(4):
        mfma(a,D1[0:16],WH[4*s_:4*s_+4],HA[4*s_:4*s_+4],"0" if s_==0 else D1[0:16])
    a("s_waitcnt lgkmcnt(0)")
    for s_ in range(4):
        mfma(a,D1[0:16],WH[16+4*s_:20+4*s_],MA[s_],D1[0:16])
    HV=D2[0:16]
    for qq in range(4):
        a(f"v_lshlrev_b32 {HV[4*qq]}, 16, {M[2*qq]}")
        a(f"v_and_b32 {HV[4*qq+1]}, 0xffff0000, {M[2*qq]}")
        a(f"v_lshlrev_b32 {HV[4*qq+2]}, 16, {M[2*qq+1]}")
        a(f"v_and_b32 {HV[4*qq+3]}, 0xffff0000, {M[2*qq+1]}")
    a(f"s_mov_b32 {sTmp}, {NEG_LOG2E}")
    a.nop(12)
    X=D1[0:16]
    for i in range(16): a(f"v_mul_f32 {T[i]}, {sTmp}, {X[i]}")
    for i in range(16): a(f"v_exp_f32 {T[i]}, {T[i]}")
    for i in range(16): a(f"v_add_f32 {T[i]}, 1.0, {T[i]}")
    for i in range(16): a(f"v_rcp_f32 {T[i]}, {T[i]}")
    a("s_nop 0")
    for i in range(16): a(f"v_fma_f32 {T[i]}, {X[i]}, {T[i]}, {HV[i]}")
    for qq in range(4):
        a(f"v_cvt_pk_bf16_f32 {M[2*qq]}, {T[4*qq]}, {T[4*qq+1]}")
        a(f"v_cvt_pk_bf16_f32 {M[2*qq+1]}, {T[4*qq+2]}, {T[4*qq+3]}")
        a(f"buffer_store_dwordx2 {M[2*qq:2*qq+2]}, {aL1s}, {sO}, 0 offen offset:{16*qq}")
    a.label("K2_FIN")
    if DBG:
        a("s_waitcnt vmcnt(0)")
        stamp(a,opt,13)
        a(f"s_lshl_b32 {sTmp}, s2, 4")
        a(f"s_add_u32 {sTmp}, {sTmp}, {sWave}")
        a(f"s_lshl_b32 {sTmp}, {sTmp}, 6")
        a(f"s_add_u32 {sTmp}, {sTmp}, {DBG_OFF}")
        a(f"v_lshlrev_b32 {vT0}, 2, {vL}")
        a("s_mov_b32 exec_lo, 0xffff")
        a("s_mov_b32 exec_hi, 0")
        a(f"buffer_store_dword {VDBG}, {vT0}, {sW}, {sTmp} offen")
        a("s_waitcnt vmcnt(0)")
    a.label("K_END")
    a("s_endpgm")
    return nv

HEADER='''; Kernarg layout (88 bytes, ptrs only): h, pos, e_attr, src, dst, w_e, w_x, w_h, out, debug, ws
; @launch grid=(256,1,1) block=(512,1,1) lds={lds2}
.amdgcn_target "amdgcn-amd-amdhsa--gfx950"
.text
.globl {k}
.p2align 8
.type {k},@function
'''
def kd(name,nv,ns):
    acc=(nv+3)//4*4
    return f'''.amdhsa_kernel {name}
  .amdhsa_next_free_vgpr {acc}
  .amdhsa_next_free_sgpr {ns}
  .amdhsa_accum_offset {acc}
  .amdhsa_group_segment_fixed_size 0
  .amdhsa_kernarg_size 88
  .amdhsa_user_sgpr_count 2
  .amdhsa_user_sgpr_kernarg_segment_ptr 1
  .amdhsa_system_sgpr_workgroup_id_x 1
  .amdhsa_float_denorm_mode_32 3
.end_amdhsa_kernel
'''
def build(opt):
    out=HEADER.format(lds2=LDS2,k=KNAME)
    a=Asm()
    nv=gen(a,opt)
    assert nv<=255
    out+=a.text()
    out+='.section .rodata,"a"\n.p2align 6\n'+kd(KNAME,256,102)
    return out,nv
if __name__=="__main__":
    opt={}
    for arg in sys.argv[2:]:
        k,v=arg.split('='); opt[k]=int(v)
    txt,nv=build(opt)
    open(sys.argv[1],'w').write(txt)
    print("vgprs:",nv,"LDS",LDS2,"lines",txt.count("\n"),"WS",WS_BYTES)
```

```python
import sys, struct
from asmlib import *

N=12500; E=800000; CH=3136; NSRC=256; NBIN=256; NPW=49
KW=703687442
LOG2E=1.4426950408889634; LN2=0.6931471805599453
def f2u(x): return struct.unpack('<I',struct.pack('<f',x))[0]
NEG_LOG2E=f2u(-LOG2E); NEG_LN2=f2u(-LN2)
SENT=0xFFFFFFFF; MARK=0xFFFFFFFE
CELLS=0; BPT=NBIN*NSRC*128; FLG=BPT+N*128+((-N*128)%4096); WS_BYTES=FLG+4096
OUT_BYTES=N*64*2+N*3*2; OUT_POS=N*64*2
CAP=576; CAPX=704
L_OH=0; L_CNT=128; L_NRES=160; L_WIN=192; L_RES=256; L_POS=1280; POS_SZ=74*1024
L_L0=L_POS+POS_SZ; L_L1=L_L0+8*CAPX*4; L_A2=L_L1+8*CAPX*2; L_HST=L_A2+8*2048; LDS2=L_HST+8*4096
assert LDS2<=163840, LDS2
L_RAWW=L_L0; L_BST=L_L0+19*1024; assert L_BST+2*32*144<=L_A2
DBG_OFF=16*1024*1024

def WSB(opt): return (32*1024*1024 if opt.get('dbg',0) else WS_BYTES)
def srd(a, s, lo, hi, size):
    a(f"s_mov_b32 {s[0]}, {lo}")
    a(f"s_and_b32 {s[1]}, {hi}, 0xffff")
    a(f"s_mov_b32 {s[2]}, {size}")
    a(f"s_mov_b32 {s[3]}, 0x20000")
VDBG="v255"
def stamp(a,opt,idx):
    if not opt.get('dbg',0): return
    a("s_memrealtime s[100:101]")
    a("s_waitcnt lgkmcnt(0)")
    a(f"v_writelane_b32 {VDBG}, s100, {idx}")
def S(i,n=1): return R('s',i,n)
def V(i,n=1): return R('v',i,n)
def mfma(a,d,A,B,c): a(f"v_mfma_f32_32x32x16_bf16 {d}, {A}, {B}, {c}")

NPOS1=40
KNAME="gather_scatter__cheap_equivariant_egnn__graph_kernel"
def gen(a, opt):
    DBG=opt.get('dbg',0)
    PRIO=opt.get('prio',1)
    ST=" sc1"; LD=" sc1" if opt.get('ld_sc1',1) else ""
    HLD=" sc1" if opt.get('h_sc1',1) else ""
    a.label(KNAME)
    sB=S(4,4); sE=S(8,4); sW=S(12,4); sO=S(16,4); sP=S(20,4); sS=S(24,4); sD=S(28,4)
    sWave=S(32); sN0=S(33); sNJ=S(34); sN06=S(35); sNT=S(36); sT=S(37); sMode=S(38); sChunk=S(39)
    sMaskE=S(40); s128=S(41); sK=S(42); s3125=S(43); sLim=S(44); sCnt=S(45); sTmp=S(46); sTmp2=S(47)
    sM0=S(48,4); sSave=S(52,2); sAny=S(54,2); sNR=S(56); sI=S(57); sC=S(58); sWsrc=S(59); sMark=S(60); sCAPq=S(61); sHST=S(62); sTmp3=S(63)
    sMask=[S(64+2*i,2) for i in range(16)]
    sWin=S(96); sNonce=S(98); sPoll=S(99)
    sT4=S(84,4); sT4b=S(88,4); sT4c=S(92,4)
    sHw=S(48,4)
    sHs=S(68,4); sWx=S(72,4)
    vr=Regs(1,256,'v')
    vL=vr.alloc('lane')
    WE=vr.alloc('WE',8,4); WA=vr.alloc('WA',8,4); ID=vr.alloc('ID',8,4); D2=vr.alloc('D2',32,4)
    D1=vr.alloc('D1',32,4); HA=vr.alloc('HA',16,4); T=vr.alloc('T',16,4); M=vr.alloc('M',8,4)
    A2R=vr.alloc('A2R',8,4); EA=[vr.alloc('EA0',4,4),vr.alloc('EA1',4,4)]; OH=vr.alloc('OH',4,4)
    WH=vr.alloc('WH',32,4); ONE=vr.alloc('ONE',4,4)
    vHA=vr.alloc('vHA',4); vKD=vr.alloc('vKD',4); vTR=vr.alloc('vTR'); vE64=vr.alloc('vE64'); vHOFF=vr.alloc('vHOFF')
    vZ=vr.alloc('vZ',2,2); aL0=vr.alloc('aL0'); aL1s=vr.alloc('aL1s'); aL1d=vr.alloc('aL1d')
    LE=[vr.alloc('LE0'),vr.alloc('LE1')]; aA2=[vr.alloc('aA2_0'),vr.alloc('aA2_1')]
    SD=vr.alloc('SD',2,2); SS=vr.alloc('SS'); PS=vr.alloc('PS',3); PD=vr.alloc('PD',3)
    E01=vr.alloc('E01',2,2); DX=vr.alloc('DX',3); DD=vr.alloc('DD'); AD=vr.alloc('AD',4); vJ=vr.alloc('vJ')
    aE=vr.alloc('aE'); aPS=vr.alloc('aPS'); aPD=vr.alloc('aPD'); aOH=vr.alloc('aOH')
    vT0=vr.alloc('vT0'); vT1=vr.alloc('vT1'); vT2=vr.alloc('vT2'); vT3=vr.alloc('vT3')
    vOne=vr.alloc('vOne'); v511=vr.alloc('v511'); vTRW=vr.alloc('vTRW'); vL16=vr.alloc('vL16'); WX=vr.alloc('WX',2); vDUM=vr.alloc('vDUM')
    nv=vr.next
    HW=T
    def geometry(win):
        a(f"s_lshl_b32 {sTmp}, s2, 3")
        a(f"s_add_u32 {sTmp}, {sTmp}, {win}")
        a(f"s_mul_i32 {sN0}, {sTmp}, 3125")
        a(f"s_add_u32 {sNJ}, {sN0}, {3125+511}")
        a(f"s_add_u32 {sN0}, {sN0}, 511")
        a(f"s_lshr_b32 {sN0}, {sN0}, 9")
        a(f"s_lshr_b32 {sNJ}, {sNJ}, 9")
        a(f"s_sub_u32 {sNJ}, {sNJ}, {sN0}")
        a(f"s_mul_i32 {sN06}, {sN0}, 6")
    def dma(vaddr,srd_,soff,ldsbase_const=None,ldsreg=None):
        pass

    def load_hwin():
        a.c("h rows of the natural window (A operand of h@W1; needed after barrier C)")
        a(f"v_bfe_u32 {vT0}, {vL}, 3, 1")
        a(f"v_and_b32 {vT2}, 3, {vL}")
        a(f"v_lshl_add_u32 {vT0}, {vT0}, 2, {vT2}")
        a(f"s_sub_u32 {sTmp}, {sNJ}, 1")
        a(f"v_min_u32 {vT0}, {sTmp}, {vT0}")
        a(f"v_add_u32 {vT0}, {sN0}, {vT0}")
        a(f"v_lshl_add_u32 {vT0}, {vT0}, 7, {vHOFF}")
        for s_ in range(4):
            a(f"buffer_load_dwordx4 {HW[4*s_:4*s_+4]}, {vT0}, {sHw}, 0 offen offset:{32*s_}")
    a("s_cmp_ge_u32 s2, 256")
    a("s_cbranch_scc1 K_END")
    a("s_load_dwordx4 s[64:67], s[0:1], 0")
    a("s_load_dwordx4 s[68:71], s[0:1], 16")
    a("s_load_dwordx4 s[72:75], s[0:1], 32")
    a("s_load_dwordx4 s[76:79], s[0:1], 64")
    a("s_load_dwordx2 s[80:81], s[0:1], 80")
    a(f"v_and_b32 {vL}, 63, v0")
    a(f"v_lshrrev_b32 {vT0}, 6, v0")
    a(f"v_lshlrev_b32 {vL16}, 4, {vL}")
    a(f"v_readfirstlane_b32 {sWave}, {vT0}")
    a(f"v_lshrrev_b32 {vT2}, 5, {vL}")
    a(f"v_lshlrev_b32 {vHOFF}, 4, {vT2}")
    a(f"v_mov_b32 {vZ[0]}, 0")
    a(f"v_mov_b32 {vZ[1]}, 0")
    geometry(sWave)
    a("s_waitcnt lgkmcnt(0)")
    stamp(a,opt,0)
    srd(a,sD,"s72","s73",E*4)
    srd(a,sS,"s70","s71",E*4)
    srd(a,sT4,"s64","s65",N*128)
    srd(a,sHw,"s64","s65",N*128)
    srd(a,sT4b,"s74","s75",145*128)
    a(f"s_cmp_gt_u32 {sWave}, 3")
    a("s_cbranch_scc1 K_S_NOTEDGE")
    a.c("edge waves 0..3: twelve edges per lane, local edge = 768v + 256k + 4l + u")
    a(f"s_mul_i32 {sTmp}, s2, {CH*4}")
    a(f"s_mul_i32 {sTmp2}, {sWave}, {768*4}")
    a(f"s_add_u32 {sTmp}, {sTmp}, {sTmp2}")
    a(f"v_add_u32 {vT0}, {sTmp}, {vL16}")
    DS_=D1[0:12]; SR_=D1[12:24]
    for k in range(3): a(f"buffer_load_dwordx4 {D1[4*k:4*k+4]}, {vT0}, {sD}, 0 offen offset:{1024*k} nt")
    for k in range(3): a(f"buffer_load_dwordx4 {D1[12+4*k:16+4*k]}, {vT0}, {sS}, 0 offen offset:{1024*k} nt")
    a("s_branch K_S_COMMON")
    a.label("K_S_NOTEDGE")
    a(f"s_cmp_eq_u32 {sWave}, 7")
    a("s_cbranch_scc1 K_S_W7")
    a(f"s_cmp_lg_u32 {sWave}, 4")
    a("s_cbranch_scc1 K_S_W56")
    a.c("wave 4: this workgroup's share of the L2 warm-up of pos and w_h (speed only)")
    a("s_load_dwordx2 s[82:83], s[0:1], 56")
    srd(a,sP,"s66","s67",N*6)
    a(f"s_lshr_b32 {sTmp}, s2, 3")
    a(f"s_and_b32 {sTmp}, {sTmp}, 31")
    a(f"s_mul_i32 {sTmp2}, {sTmp}, {19*128}")
    a(f"v_lshlrev_b32 {vT0}, 7, {vL}")
    a(f"v_add_u32 {vT1}, {sTmp2}, {vT0}")
    a(f"v_cmp_gt_u32 vcc, 19, {vL}")
    a(f"v_mov_b32 {vT2}, 0x40000000")
    a("s_waitcnt lgkmcnt(0)")
    a(f"v_cndmask_b32 {vT1}, {vT2}, {vT1}, vcc")
    a(f"buffer_load_dword {AD[0]}, {vT1}, {sP}, 0 offen")
    srd(a,sT4b,"s82","s83",128*128)
    a(f"s_lshl_b32 {sTmp2}, {sTmp}, 9")
    a(f"v_add_u32 {vT1}, {sTmp2}, {vT0}")
    a(f"v_cmp_gt_u32 vcc, 4, {vL}")
    a("s_nop 1")
    a(f"v_cndmask_b32 {vT1}, {vT2}, {vT1}, vcc")
    a(f"buffer_load_dword {AD[1]}, {vT1}, {sT4b}, 0 offen")
    load_hwin()
    a("s_branch K_S_COMMON")
    a.label("K_S_W56")
    a.c("waves 5,6: private raw W2 copy + h rows for the source-node table")
    a(f"s_sub_u32 {sI}, {sWave}, 5")
    a(f"s_lshl_b32 {sC}, {sI}, 13")
    a(f"s_add_u32 {sC}, {sC}, {L_A2}")
    for i in range(8):
        a(f"s_add_u32 {sTmp}, {sC}, {i*1024}")
        a(f"s_mov_b32 m0, {sTmp}")
        a(f"s_mov_b32 {sTmp2}, {8192+i*1024}")
        a(f"buffer_load_dwordx4 {vL16}, {sT4b}, {sTmp2} offen lds")
    a(f"s_mul_i32 {sTmp}, s2, {NPW}")
    a(f"s_lshl_b32 {sTmp2}, {sI}, 5")
    a(f"s_add_u32 {sTmp}, {sTmp}, {sTmp2}")
    a(f"v_and_b32 {vT0}, 31, {vL}")
    a(f"v_add_u32 {vT0}, {sTmp}, {vT0}")
    a(f"v_lshl_add_u32 {vT0}, {vT0}, 7, {vHOFF}")
    for s_ in range(4): a(f"buffer_load_dwordx4 {HA[4*s_:4*s_+4]}, {vT0}, {sT4}, 0 offen offset:{32*s_}")
    a("s_branch K_S_COMMON")
    a.label("K_S_W7")
    a.c("wave 7: the last 64 edges, raw w_e -> LDS, one-hot table, counters")
    a(f"s_mul_i32 {sTmp}, s2, {CH*4}")
    a(f"s_add_u32 {sTmp}, {sTmp}, {3072*4}")
    a(f"v_lshl_add_u32 {vT0}, {vL}, 2, {sTmp}")
    a(f"buffer_load_dword {D1[0]}, {vT0}, {sD}, 0 offen nt")
    a(f"buffer_load_dword {D1[12]}, {vT0}, {sS}, 0 offen nt")
    a(f"v_lshrrev_b32 {vT0}, 2, {vL}")
    a(f"v_and_b32 {vT1}, 3, {vL}")
    a(f"v_lshlrev_b32 {vT3}, 1, {vT1}")
    a(f"v_mov_b32 {vJ}, 0")
    a(f"v_cmp_eq_u32 vcc, {vT0}, {vT3}")
    a(f"v_mov_b32 {AD[0]}, 0x3f80")
    a(f"v_mov_b32 {AD[1]}, 0x3f800000")
    a(f"v_cndmask_b32 {vJ}, {vJ}, {AD[0]}, vcc")
    a(f"v_add_u32 {vT3}, 1, {vT3}")
    a(f"v_cmp_eq_u32 vcc, {vT0}, {vT3}")
    a("s_nop 1")
    a(f"v_cndmask_b32 {vJ}, {vJ}, {AD[1]}, vcc")
    a(f"v_cmp_eq_u32 vcc, 6, {vT0}")
    a(f"v_mov_b32 {AD[2]}, 0")
    a("s_nop 0")
    a(f"v_cndmask_b32 {AD[2]}, {AD[2]}, {AD[1]}, vcc")
    a(f"v_cmp_eq_u32 vcc, 3, {vT1}")
    a("s_nop 1")
    a(f"v_cndmask_b32 {vJ}, {vJ}, {AD[2]}, vcc")
    a(f"v_cmp_lt_u32 vcc, 31, {vL}")
    a(f"v_lshlrev_b32 {vT0}, 2, {vL}")
    a("s_nop 0")
    a(f"v_cndmask_b32 {vJ}, {vJ}, {vZ[0]}, vcc")
    a(f"ds_write_b32 {vT0}, {vJ}")
    a.label("K_S_COMMON")
    a(f"s_mov_b32 {sMaskE}, {'0' if opt.get('noE',0) else '0xffffffe0'}")
    a(f"s_mov_b32 {s128}, {0 if opt.get('noH',0) else 128}")
    a(f"s_mov_b32 {sK}, {KW}")
    a(f"s_mov_b32 {s3125}, 3125")
    a(f"s_mov_b32 {sMark}, {MARK}")
    a(f"s_mov_b32 {sCAPq}, {CAPX//4}")
    a(f"s_mov_b32 {sMode}, 0")
    a(f"s_mov_b32 {sChunk}, 0")
    a(f"v_mov_b32 {vOne}, 1")
    a(f"v_mov_b32 {v511}, 511")
    a(f"v_mov_b32 {aL1s}, 0x40000000")
    a(f"v_lshrrev_b32 {vT2}, 5, {vL}")
    a(f"v_bfe_u32 {vT0}, {vL}, 2, 2")
    a(f"v_lshl_add_u32 {vT0}, {vT2}, 3, {vT0}")
    a(f"v_lshlrev_b32 {vTRW}, 7, {vT0}")
    a(f"v_bfe_u32 {vT0}, {vL}, 4, 1")
    a(f"v_lshl_add_u32 {vTRW}, {vT0}, 5, {vTRW}")
    a(f"v_and_b32 {vT0}, 3, {vL}")
    a(f"v_lshl_add_u32 {vTRW}, {vT0}, 3, {vTRW}")
    a.c("LDS init: cell image = sentinel, counters = 0")
    for i in range(4): a(f"v_mov_b32 {WH[i]}, -1")
    a(f"v_lshlrev_b32 {vT0}, 6, v0")
    a(f"v_add_u32 {vT0}, {L_HST}, {vT0}")
    for i in range(4): a(f"ds_write_b128 {vT0}, {WH[0:4]} offset:{16*i}")
    a(f"v_and_b32 {vT0}, 0xff, v0")
    a(f"v_lshlrev_b32 {vT0}, 2, {vT0}")
    a(f"ds_write_b32 {vT0}, {vZ[0]} offset:{L_RES}")
    srd(a,sW,"s80","s81",WSB(opt))
    srd(a,sP,"s66","s67",N*6)
    srd(a,sE,"s68","s69",E*32)
    srd(a,sO,"s76","s77",OUT_BYTES)
    srd(a,sT4c,"s78","s79",256)
    a(f"s_add_u32 {sB[0]}, s80, {BPT}")
    a(f"s_addc_u32 {sB[1]}, s81, 0")
    a(f"s_and_b32 {sB[1]}, {sB[1]}, 0xffff")
    a(f"s_mov_b32 {sB[2]}, {N*128}")
    a(f"s_mov_b32 {sB[3]}, 0x20000")
    a.c("workgroup 0 publishes this launch's hand-off tag")
    a(f"s_or_b32 {sTmp}, s2, {sWave}")
    a(f"s_cmp_lg_u32 {sTmp}, 0")
    a("s_cbranch_scc1 K_S_NOTAG")
    a("s_memrealtime s[100:101]")
    a("s_waitcnt lgkmcnt(0)")
    a("s_or_b32 s100, s100, 1")
    a(f"v_mov_b32 {vT0}, s100")
    a(f"buffer_store_dword {vT0}, {vZ[0]}, {sT4c}, 0 offen sc1")
    a.label("K_S_NOTAG")
    a("s_waitcnt lgkmcnt(0)")
    a("s_barrier")
    a(f"s_mul_i32 {sTmp}, s2, {CH}")
    a(f"s_sub_u32 {sLim}, {E}, {sTmp}")
    a(f"s_min_u32 {sLim}, {sLim}, {CH}")
    B4=D2[0:12]; RC=HA[0:12]; RK1=D2[12:24]
    def bin_edges(nrec, el_of, waitcnt, masked):
        if masked:
            for u in range(nrec):
                el_of(u,vT1)
                a(f"v_cmp_gt_u32 {sMask[u]}, {sLim}, {vT1}")
        a(f"s_waitcnt vmcnt({waitcnt})")
        stamp(a,opt,1)
        for u in range(nrec):
            d=DS_[u]; s_=SR_[u]
            a(f"v_mul_hi_u32 {vT2}, {d}, {sK}")
            el_of(u,vT1)
            a(f"v_lshl_or_b32 {RC[u]}, {s_}, 12, {vT1}")
            a(f"v_lshrrev_b32 {B4[u]}, 1, {vT2}")
            a(f"v_mad_u32_u24 {vT3}, {vT2}, {s3125}, {v511}")
            a(f"v_and_b32 {B4[u]}, 0x3fc, {B4[u]}")
            a(f"v_lshrrev_b32 {vT3}, 9, {vT3}")
            if masked: a(f"s_mov_b64 exec, {sMask[u]}")
            a(f"ds_add_rtn_u32 {RK1[u]}, {B4[u]}, {vOne} offset:{L_RES}")
            if masked: a("s_mov_b64 exec, -1")
            a(f"v_sub_u32 {vT3}, {d}, {vT3}")
            a(f"v_and_b32 {vT2}, 7, {vT2}")
            a(f"v_lshl_or_b32 {vT3}, {vT2}, 3, {vT3}")
            a(f"v_lshl_or_b32 {RC[u]}, {vT3}, 26, {RC[u]}")
        a(f"v_mov_b32 {vT3}, {L_HST}")
        a(f"v_mov_b32 {vJ}, {L_NRES+4}")
        for u in range(nrec):
            if not masked: a(f"s_waitcnt lgkmcnt({nrec-1})")
            elif u==0: a("s_waitcnt lgkmcnt(0)")
            a(f"v_cmp_gt_u32 vcc, 32, {RK1[u]}")
            a(f"v_lshlrev_b32 {vT1}, 3, {RK1[u]}")
            a(f"v_lshrrev_b32 {vT2}, 2, {RK1[u]}")
            a(f"v_and_b32 {vT1}, 0x78, {vT1}")
            a(f"v_lshl_add_u32 {AD[0]}, {B4[u]}, 5, {vT3}")
            a(f"v_and_or_b32 {vT1}, {vT2}, 4, {vT1}")
            a(f"v_add_u32 {vT1}, {vT1}, {AD[0]}")
            a(f"v_cndmask_b32 {vT1}, {vJ}, {vT1}, vcc")
            if masked: a(f"s_mov_b64 exec, {sMask[u]}")
            a(f"ds_write_b32 {vT1}, {RC[u]}")
            if masked: a("s_mov_b64 exec, -1")
    a(f"s_cmp_gt_u32 {sWave}, 3")
    a("s_cbranch_scc1 K_S_NOAPP")
    a.c("bin the twelve edges")
    a(f"s_mul_i32 {sTmp}, {sWave}, 768")
    a(f"v_lshl_add_u32 {vT0}, {vL}, 2, {sTmp}")
    a(f"s_cmp_lt_u32 {sLim}, {CH}")
    a("s_cbranch_scc1 K_S_APPM")
    bin_edges(12, lambda u,r: a(f"v_add_u32 {r}, {256*(u>>2)+(u&3)}, {vT0}"), 0, False)
    load_hwin()
    a("s_branch K_S_JOIN")
    a.label("K_S_APPM")
    bin_edges(12, lambda u,r: a(f"v_add_u32 {r}, {256*(u>>2)+(u&3)}, {vT0}"), 0, True)
    load_hwin()
    a("s_branch K_S_JOIN")
    a.label("K_S_NOAPP")
    a(f"s_cmp_eq_u32 {sWave}, 7")
    a("s_cbranch_scc1 K_S_W7B")
    a(f"s_cmp_eq_u32 {sWave}, 4")
    a("s_cbranch_scc1 K_S_W4B")
    a.c("source-node table B' = -log2e * h @ W2 for 32 nodes")
    a(f"v_add_u32 {vT0}, {sC}, {vTRW}")
    a("s_waitcnt vmcnt(0)")
    for s_ in range(4):
        for x in range(2):
            for th in range(2):
                r=(s_*2+x)*4+2*th
                a(f"ds_read_b64_tr_b16 {D1[r:r+2]}, {vT0} offset:{s_*2048+th*512+x*64}")
    a("s_waitcnt lgkmcnt(0)")
    for x in range(2):
        for s_ in range(4):
            r=(s_*2+x)*4
            mfma(a,D2[16*x:16*x+16],D1[r:r+4],HA[4*s_:4*s_+4],"0" if s_==0 else D2[16*x:16*x+16])
    a(f"s_mul_i32 {sTmp}, {sI}, {32*144}")
    a(f"s_add_u32 {sTmp}, {sTmp}, {L_BST}")
    a(f"v_and_b32 {vT1}, 31, {vL}")
    a(f"v_mul_u32_u24 {vT1}, 144, {vT1}")
    a(f"v_lshrrev_b32 {vT2}, 5, {vL}")
    a(f"v_lshl_add_u32 {vT1}, {vT2}, 3, {vT1}")
    a(f"v_add_u32 {vT1}, {sTmp}, {vT1}")
    a(f"v_lshrrev_b32 {vT2}, 3, {vL}")
    a(f"v_mul_u32_u24 {vT3}, 144, {vT2}")
    a(f"v_and_b32 {vJ}, 7, {vL}")
    a(f"v_lshl_add_u32 {vT3}, {vJ}, 4, {vT3}")
    a(f"v_add_u32 {vT3}, {sTmp}, {vT3}")
    a(f"s_mov_b32 {sTmp2}, {NEG_LOG2E}")
    a.nop(4)
    for x in range(2):
        for q in range(16): a(f"v_mul_f32 {D2[16*x+q]}, {sTmp2}, {D2[16*x+q]}")
        for qq in range(4):
            b=16*x+4*qq
            a(f"v_cvt_pk_bf16_f32 {E01[0]}, {D2[b]}, {D2[b+1]}")
            a(f"v_cvt_pk_bf16_f32 {E01[1]}, {D2[b+2]}, {D2[b+3]}")
            a(f"ds_write_b64 {vT1}, {E01} offset:{x*64+qq*16}")
            a("s_nop 0")
    for i in range(4): a(f"ds_read_b128 {D1[4*i:4*i+4]}, {vT3} offset:{i*8*144}")
    a(f"s_lshl_b32 {sTmp2}, {sI}, 5")
    a(f"v_add_u32 {vT2}, {sTmp2}, {vT2}")
    a(f"s_mul_i32 {sTmp}, s2, {NPW}")
    a(f"v_add_u32 {vT0}, {sTmp}, {vT2}")
    a(f"v_lshlrev_b32 {vT1}, 7, {vT0}")
    a(f"v_lshl_add_u32 {vT1}, {vJ}, 4, {vT1}")
    a(f"v_mov_b32 {vJ}, 0x40000000")
    a("s_waitcnt lgkmcnt(0)")
    for i in range(4):
        a(f"v_add_u32 {vT3}, {8*i}, {vT2}")
        a(f"v_cmp_gt_u32 vcc, {NPW}, {vT3}")
        a(f"v_add_u32 {AD[0]}, {1024*i}, {vT1}")
        a("s_nop 0")
        a(f"v_cndmask_b32 {AD[0]}, {vJ}, {AD[0]}, vcc")
        a(f"buffer_store_dwordx4 {D1[4*i:4*i+4]}, {AD[0]}, {sB}, 0 offen{ST}")
    load_hwin()
    a("s_branch K_S_JOIN")
    a.label("K_S_W7B")
    a(f"v_add_u32 {vT0}, 3072, {vL}")
    bin_edges(1, lambda u,r: a(f"v_mov_b32 {r}, {vT0}"), 0, True)
    for i in range(19):
        a(f"s_mov_b32 {sTmp}, {L_RAWW+i*1024}")
        a(f"s_mov_b32 m0, {sTmp}")
        a(f"s_mov_b32 {sTmp2}, {i*1024}")
        a(f"buffer_load_dwordx4 {vL16}, {sT4b}, {sTmp2} offen lds")
    load_hwin()
    a("s_branch K_S_JOIN")
    a.label("K_S_W4B")
    a.c("wave 4: pos table -> LDS (first part); its own first loads have landed, so the start-up burst is over")
    a("s_waitcnt vmcnt(0)")
    def pos_dma_const(i):
        a(f"s_mov_b32 {sTmp2}, {L_POS+i*1024}")
        a(f"s_mov_b32 m0, {sTmp2}")
        a(f"s_mov_b32 {sTmp}, {i*1024}")
        a(f"buffer_load_dwordx4 {vL16}, {sP}, {sTmp} offen lds")
    for i in range(NPOS1): pos_dma_const(i)
    a.label("K_S_JOIN")
    a("s_waitcnt lgkmcnt(0)")
    stamp(a,opt,14)
    a("s_barrier")
    stamp(a,opt,2)
    a.c("wave 0 fetches the hand-off tag meanwhile")
    a(f"s_cmp_lg_u32 {sWave}, 0")
    a("s_cbranch_scc1 K_S_NOTAG2")
    a(f"buffer_load_dword {aE}, {vZ[0]}, {sT4c}, 0 offen sc1")
    a.label("K_S_NOTAG2")
    a(f"s_cmp_gt_u32 {sWave}, 3")
    a("s_cbranch_scc1 K_S_NOCOPY")
    a.c("waves 0..3 copy the cell image out: eight 16 B pieces per thread")
    a(f"v_lshlrev_b32 {vT0}, 4, v0")
    a(f"v_add_u32 {vT0}, {L_HST}, {vT0}")
    a(f"v_lshrrev_b32 {vT1}, 3, v0")
    a(f"v_lshlrev_b32 {vT2}, 2, {vT1}")
    CP=[D1[4*k:4*k+4] for k in range(8)]
    for k in range(8):
        a(f"ds_read_b128 {CP[k]}, {vT0} offset:{4096*k}")
        if k==6: a("s_waitcnt lgkmcnt(6)")
    for k in range(8):
        a(f"ds_read_b32 {D2[k]}, {vT2} offset:{L_RES+128*k}")
    a(f"v_and_b32 {vT3}, 7, v0")
    a(f"v_cmp_eq_u32 vcc, 0, {vT3}")
    a(f"v_mov_b32 {vJ}, -1")
    a(f"v_lshlrev_b32 {vT1}, 15, {vT1}")
    a(f"v_cndmask_b32_e64 {AD[1]}, -1, -2, vcc")
    a(f"v_lshl_add_u32 {vT1}, {vT3}, 4, {vT1}")
    a(f"s_lshl_b32 {sTmp}, s2, 7")
    a("s_waitcnt lgkmcnt(0)")
    for k in range(8):
        a(f"v_cmp_lt_u32 vcc, 32, {D2[k]}")
        a(f"s_add_u32 {sTmp2}, {sTmp}, {k*32*32768}")
        a("s_nop 0")
        a(f"v_cndmask_b32 {CP[k][0]}, {CP[k][0]}, {AD[1]}, vcc")
        for i in range(1,4): a(f"v_cndmask_b32 {CP[k][i]}, {CP[k][i]}, {vJ}, vcc")
        a(f"buffer_store_dwordx4 {CP[k]}, {vT1}, {sW}, {sTmp2} offen{ST}")
    a("s_branch K_S_COPIED")
    a.label("K_S_NOCOPY")
    a(f"s_cmp_lg_u32 {sWave}, 4")
    a("s_cbranch_scc1 K_S_COPIED")
    for i in range(NPOS1,74): pos_dma_const(i)
    if opt.get('mallpf',0):
        a.c("stream this workgroup's e_attr chunk once (results unused): later gathers find it on-die")
        a(f"s_mul_i32 {sTmp}, s2, {CH*32}")
        a(f"v_lshlrev_b32 {vT0}, 7, {vL}")
        a(f"v_add_u32 {vT0}, {sTmp}, {vT0}")
        for k in range(opt.get('mallpf',0)):
            a(f"s_mov_b32 {sTmp2}, {k*8192}")
            a(f"buffer_load_dword {vDUM}, {vT0}, {sE}, {sTmp2} offen")
    a("s_branch K_S_NOWAIT")
    a.label("K_S_COPIED")
    a("s_waitcnt vmcnt(0) lgkmcnt(0)")
    a.label("K_S_NOWAIT")
    stamp(a,opt,15)
    a("s_barrier")
    stamp(a,opt,3)
    a(f"s_cmp_lg_u32 {sWave}, 0")
    a("s_cbranch_scc1 K_G_LOADERS")
    a.c("wave 0: signal this workgroup's hand-off")
    a(f"s_mov_b32 {sPoll}, 0")
    a.label("K_G_TAG")
    a(f"v_readfirstlane_b32 {sNonce}, {aE}")
    a("s_nop 3")
    a(f"s_cmp_lg_u32 {sNonce}, 0")
    a("s_cbranch_scc1 K_G_HAVETAG")
    a(f"s_add_u32 {sPoll}, {sPoll}, 1")
    a(f"s_cmp_gt_u32 {sPoll}, 200000")
    a("s_cbranch_scc1 K_G_HAVETAG")
    a("s_sleep 2")
    a(f"buffer_load_dword {aE}, {vZ[0]}, {sT4c}, 0 offen sc1")
    a("s_waitcnt vmcnt(0)")
    a("s_branch K_G_TAG")
    a.label("K_G_HAVETAG")
    a(f"s_lshl_b32 {sTmp}, s2, 4")
    a(f"s_add_u32 {sTmp}, {sTmp}, {FLG}")
    a(f"v_mov_b32 {vT0}, {sNonce}")
    a(f"buffer_store_dword {vT0}, {vZ[0]}, {sW}, {sTmp} offen sc1")
    a("s_branch K_G_SETUP")
    a.label("K_G_LOADERS")
    a.c("waves 1..3, 5..7: raw w_h -> staging area")
    a(f"s_cmp_eq_u32 {sWave}, 4")
    a("s_cbranch_scc1 K_G_SETUP")
    a("s_load_dwordx2 s[64:65], s[0:1], 56")
    a(f"s_sub_u32 {sI}, {sWave}, 1")
    a(f"s_sub_u32 {sTmp}, {sWave}, 2")
    a(f"s_cmp_lt_u32 {sWave}, 4")
    a(f"s_cselect_b32 {sI}, {sI}, {sTmp}")
    a("s_waitcnt lgkmcnt(0)")
    srd(a,sT4b,"s64","s65",128*128)
    for k in range(3):
        a(f"s_add_u32 {sTmp}, {sI}, {6*k}")
        a(f"s_min_u32 {sTmp}, {sTmp}, 15")
        a(f"s_lshl_b32 {sTmp}, {sTmp}, 10")
        a(f"s_add_u32 {sTmp2}, {sTmp}, {L_HST}")
        a(f"s_mov_b32 m0, {sTmp2}")
        a("s_nop 0")
        a(f"buffer_load_dwordx4 {vL16}, {sT4b}, {sTmp} offen lds")
    a.label("K_G_SETUP")
    a.c("operands from raw w_e: W1 (for A'), W4', wd'")
    W1=D2
    a(f"v_add_u32 {vT0}, {L_RAWW}, {vTRW}")
    for s_ in range(4):
        for x in range(2):
            for th in range(2):
                r=(s_*2+x)*4+2*th
                a(f"ds_read_b64_tr_b16 {W1[r:r+2]}, {vT0} offset:{s_*2048+th*512+x*64}")
    W4R=HA[0:8]
    for x in range(2):
        for th in range(2):
            a(f"ds_read_b64_tr_b16 {W4R[4*x+2*th:4*x+2*th+2]}, {vT0} offset:{129*128+th*512+x*64}")
    WD=M[0:2]
    a(f"v_mov_b32 {WD[0]}, 0")
    a(f"v_mov_b32 {WD[1]}, 0")
    a(f"v_and_b32 {vT1}, 31, {vL}")
    a(f"v_lshlrev_b32 {vT2}, 1, {vT1}")
    a(f"v_add_u32 {vT2}, {L_RAWW+128*128}, {vT2}")
    a(f"ds_read_u16_d16_hi {WD[0]}, {vT2}")
    a(f"ds_read_u16_d16_hi {WD[1]}, {vT2} offset:64")
    a("s_waitcnt lgkmcnt(0)")
    for x in range(2):
        for s_ in range(4):
            mfma(a,D1[16*x:16*x+16],HW[4*s_:4*s_+4],W1[(s_*2+x)*4:(s_*2+x)*4+4],"0" if s_==0 else D1[16*x:16*x+16])
    a(f"s_mov_b32 {sTmp}, {NEG_LOG2E}")
    for i in range(8):
        a(f"v_lshlrev_b32 {vT0}, 16, {W4R[i]}")
        a(f"v_and_b32 {vT2}, 0xffff0000, {W4R[i]}")
        a(f"v_mul_f32 {vT0}, {sTmp}, {vT0}")
        a(f"v_mul_f32 {vT2}, {sTmp}, {vT2}")
        a(f"v_cvt_pk_bf16_f32 {WE[i]}, {vT0}, {vT2}")
    a(f"v_cmp_lt_u32 vcc, 31, {vL}")
    for x in range(2):
        a(f"v_mul_f32 {WD[x]}, {sTmp}, {WD[x]}")
        a(f"v_cvt_pk_bf16_f32 {vT0}, {WD[x]}, {WD[x]}")
        a(f"v_and_b32 {vT0}, 0xffff0000, {vT0}")
        a(f"v_sub_f32 {vT2}, {WD[x]}, {vT0}")
        a(f"v_cvt_pk_bf16_f32 {vT2}, {vT2}, {vT2}")
        a(f"v_and_b32 {vT2}, 0xffff0000, {vT2}")
        a(f"v_cndmask_b32 {WD[x]}, {vT0}, {vT2}, vcc")
    a(f"v_lshrrev_b32 {vT2}, 5, {vL}")
    a(f"v_lshlrev_b32 {vT0}, 3, {vT2}")
    a(f"v_sub_u32 {vT0}, {vT1}, {vT0}")
    a(f"v_mov_b32 {AD[2]}, 0x3f80")
    a(f"v_mov_b32 {AD[3]}, 0x3f800000")
    for sp in range(2):
        for r in range(4):
            k0=16*sp+2*r
            a(f"v_cmp_eq_u32 vcc, {k0}, {vT0}")
            a(f"v_cmp_eq_u32 {sSave}, {k0+1}, {vT0}")
            a("s_nop 0")
            a(f"v_cndmask_b32 {ID[4*sp+r]}, {vZ[0]}, {AD[2]}, vcc")
            a(f"v_cndmask_b32 {ID[4*sp+r]}, {ID[4*sp+r]}, {AD[3]}, {sSave}")
    a(f"v_cmp_lt_u32 vcc, 31, {vL}")
    a(f"v_mov_b32 {vJ}, 0xffff")
    for i in range(1,4): a(f"v_mov_b32 {ONE[i]}, 0")
    a(f"v_cndmask_b32 {ONE[0]}, {AD[2]}, {vZ[0]}, vcc")
    for x in range(2):
        for r in range(4):
            q0,q1=D1[16*x+2*r],D1[16*x+2*r+1]
            a(f"v_mul_f32 {q0}, {sTmp}, {q0}")
            a(f"v_mul_f32 {q1}, {sTmp}, {q1}")
            a(f"v_cvt_pk_bf16_f32 {vT0}, {q0}, {q1}")
            a(f"v_lshlrev_b32 {vT1}, 16, {vT0}")
            a(f"v_and_b32 {vT2}, 0xffff0000, {vT0}")
            a(f"v_sub_f32 {vT1}, {q0}, {vT1}")
            a(f"v_sub_f32 {vT2}, {q1}, {vT2}")
            a(f"v_cvt_pk_bf16_f32 {vT1}, {vT1}, {vT2}")
            a(f"v_cndmask_b32 {WA[4*x+r]}, {vT0}, {vT1}, vcc")
        a(f"v_bfi_b32 {WA[4*x+3]}, {vJ}, {WA[4*x+3]}, {WD[x]}")
    a(f"s_lshl_b32 {sTmp}, {sWave}, 11")
    a(f"s_add_u32 {sTmp}, {sTmp}, {L_A2}")
    a(f"v_lshl_add_u32 {vT0}, {vL}, 5, {sTmp}")
    a(f"ds_write_b128 {vT0}, {WA[0:4]}")
    a(f"ds_write_b128 {vT0}, {WA[4:8]} offset:16")
    for i in range(32): a(f"v_mov_b32 {D2[i]}, 0")
    for i in range(3):
        a(f"v_mov_b32 {PS[i]}, 0"); a(f"v_mov_b32 {PD[i]}, 0")
    a(f"s_cmp_lg_u32 {sWave}, 0")
    a("s_cbranch_scc1 K_G_WAIT")
    a.c("wave 0: wait for all 256 hand-offs")
    a(f"s_mov_b32 {sTmp2}, {FLG}")
    a.label("K_G_POLL")
    for k in range(4): a(f"buffer_load_dword {AD[k]}, {vL16}, {sW}, {sTmp2} offen offset:{1024*k} sc1")
    a("s_waitcnt vmcnt(0)")
    a(f"v_cmp_eq_u32 {sAny}, {sNonce}, {AD[0]}")
    a(f"v_cmp_eq_u32 {sSave}, {sNonce}, {AD[1]}")
    a(f"v_cmp_eq_u32 vcc, {sNonce}, {AD[2]}")
    a("s_nop 1")
    a(f"s_and_b64 {sAny}, {sAny}, {sSave}")
    a(f"v_cmp_eq_u32 {sSave}, {sNonce}, {AD[3]}")
    a(f"s_and_b64 {sAny}, {sAny}, vcc")
    a("s_nop 1")
    a(f"s_and_b64 {sAny}, {sAny}, {sSave}")
    a(f"s_cmp_eq_u64 {sAny}, -1")
    a("s_cbranch_scc1 K_G_WAIT")
    a(f"s_add_u32 {sPoll}, {sPoll}, 1")
    a(f"s_cmp_lt_u32 {sPoll}, 200000")
    a("s_cbranch_scc1 K_G_POLL")
    a.label("K_G_WAIT")
    if opt.get('mallpf',0):
        a(f"s_cmp_eq_u32 {sWave}, 4")
        a("s_cbranch_scc1 K_G_WAIT4")
    a("s_waitcnt vmcnt(0) lgkmcnt(0)")
    if opt.get('mallpf',0):
        a("s_branch K_G_WAITED")
        a.label("K_G_WAIT4")
        a(f"s_waitcnt vmcnt({opt.get('mallpf',0)}) lgkmcnt(0)")
        a.label("K_G_WAITED")
    a("s_barrier")
    stamp(a,opt,4)
    RECP=D1[0:16]; REC=[RECP[2*i] for i in range(8)]+[RECP[2*i+1] for i in range(8)]; WAD=D1[16:32]; RK=HA
    a.c("cell records of this bin: pair s holds slots m and 16+m (m = l&15) of cell 32s+4v+(l>>4)")
    a(f"s_lshl_b32 {sTmp}, s2, 15")
    a(f"s_lshl_b32 {sTmp2}, {sWave}, 9")
    a(f"s_add_u32 {sTmp}, {sTmp}, {sTmp2}")
    a(f"v_lshl_add_u32 {vT0}, {vL}, 3, {sTmp}")
    for s_ in range(8):
        a(f"s_mov_b32 {sTmp}, {CELLS+s_*4096}")
        a(f"buffer_load_dwordx2 {RECP[2*s_:2*s_+2]}, {vT0}, {sW}, {sTmp} offen{LD}")
    a(f"v_lshlrev_b32 {vT2}, 1, {vL}")
    a(f"v_and_b32 {vT2}, 62, {vT2}")
    a("s_load_dwordx2 s[98:99], s[0:1], 48")
    a.c("node-update weights (transposed reads of raw w_h), waves 0..3 use them")
    a(f"s_and_b32 {sTmp}, {sWave}, 1")
    a(f"s_lshl_b32 {sTmp}, {sTmp}, 6")
    a(f"s_add_u32 {sTmp}, {sTmp}, {L_HST}")
    a(f"v_add_u32 {vT1}, {sTmp}, {vTRW}")
    for s_ in range(8):
        for th in range(2):
            a(f"ds_read_b64_tr_b16 {WH[4*s_+2*th:4*s_+2*th+2]}, {vT1} offset:{s_*2048+th*512}")
            if (2*s_+th)==7: a("s_waitcnt lgkmcnt(0)")
    srd(a,sT4,"s98","s99",128)
    a(f"v_mov_b32 {WX[0]}, 0")
    a(f"v_mov_b32 {WX[1]}, 0")
    a(f"buffer_load_short_d16_hi {WX[0]}, {vT2}, {sT4}, 0 offen")
    a(f"buffer_load_short_d16_hi {WX[1]}, {vT2}, {sT4}, 0 offen offset:64")
    a("s_waitcnt vmcnt(2)")
    stamp(a,opt,5)
    a(f"s_mov_b64 {sAny}, 0")
    for s_ in range(16):
        a(f"v_cmp_gt_u32 {sMask[s_]}, {sMark}, {REC[s_]}")
        if s_<8:
            a(f"v_cmp_eq_u32 vcc, {sMark}, {REC[s_]}")
        a(f"v_lshrrev_b32 {WAD[s_]}, 27, {REC[s_]}")
        a(f"v_and_b32 {WAD[s_]}, 0x1c, {WAD[s_]}")
        if s_<8: a(f"s_or_b64 {sAny}, {sAny}, vcc")
    order=[x for p in range(8) for x in (p,8+p)]
    for n_,s_ in enumerate(order):
        a(f"s_mov_b64 exec, {sMask[s_]}")
        if s_>=8: a(f"s_cbranch_execz K2_A{s_}")
        a(f"ds_add_rtn_u32 {RK[s_]}, {WAD[s_]}, {vOne} offset:{L_CNT}")
        if s_>=8: a.label(f"K2_A{s_}")
        if n_==7:
            a("s_waitcnt lgkmcnt(4)")
    a("s_mov_b64 exec, -1")
    a(f"s_lshl_b32 {sTmp}, {sWave}, 2")
    a(f"v_lshrrev_b32 {vT0}, 4, {vL}")
    a(f"v_add_u32 {vT0}, {sTmp}, {vT0}")
    a(f"v_mul_u32_u24 {vT0}, {CH}, {vT0}")
    a(f"v_mov_b32 {vT1}, {L_L0}")
    a(f"v_mov_b32 {vT2}, {L_L1}")
    a("s_waitcnt lgkmcnt(0)")
    for s_ in order:
        a(f"s_mov_b64 exec, {sMask[s_]}")
        if s_>=8: a(f"s_cbranch_execz K2_B{s_}")
        a(f"s_mov_b32 {sTmp}, {(s_&7)*32*CH}")
        a(f"v_min_u32 {RK[s_]}, {CAPX-1}, {RK[s_]}")
        a(f"v_and_b32 {vT3}, 0xfff, {REC[s_]}")
        a(f"v_mad_u32_u24 {RK[s_]}, {WAD[s_]}, {sCAPq}, {RK[s_]}")
        a(f"v_add3_u32 {vT3}, {vT3}, {vT0}, {sTmp}")
        a(f"v_bfe_u32 {vJ}, {REC[s_]}, 26, 3")
        a(f"v_lshl_add_u32 {AD[0]}, {RK[s_]}, 2, {vT1}")
        a(f"v_lshl_or_b32 {vT3}, {vT3}, 5, {vJ}")
        a(f"v_lshl_add_u32 {AD[1]}, {RK[s_]}, 1, {vT2}")
        a(f"v_bfe_u32 {vJ}, {REC[s_]}, 12, 14")
        a(f"ds_write_b32 {AD[0]}, {vT3}")
        a(f"ds_write_b16 {AD[1]}, {vJ}")
        if s_>=8: a.label(f"K2_B{s_}")
    a("s_mov_b64 exec, -1")
    NE=opt.get('epf',1)
    if NE:
        a.c("L2 warm-up of the e_attr lines of the first records (speed only; results are never read)")
        a(f"s_lshl_b32 {sTmp}, {sWave}, 2")
        a(f"v_lshrrev_b32 {vT0}, 4, {vL}")
        a(f"v_add_u32 {vT0}, {sTmp}, {vT0}")
        a(f"v_mul_u32_u24 {vT0}, {CH}, {vT0}")
        a(f"v_mov_b32 {vT2}, 0x2000000")
        for k in range(NE):
            a(f"v_cmp_gt_u32 vcc, {sMark}, {REC[k]}")
            a(f"v_and_b32 {vT1}, 0xfff, {REC[k]}")
            a(f"s_mov_b32 {sTmp}, {k*32*CH}")
            a(f"v_add3_u32 {vT1}, {vT1}, {vT0}, {sTmp}")
            a(f"v_cndmask_b32 {vT1}, {vT2}, {vT1}, vcc")
            a(f"v_lshlrev_b32 {vT1}, 5, {vT1}")
            a(f"buffer_load_dword {vDUM}, {vT1}, {sE}, 0 offen")
    a.c("overflowed cells -> rescan list (rare)")
    a(f"s_cmp_eq_u64 {sAny}, 0")
    a("s_cbranch_scc1 K2_NOMARK")
    a(f"v_lshrrev_b32 {vT0}, 4, {vL}")
    a(f"s_lshl_b32 {sTmp}, {sWave}, 2")
    a(f"v_add_u32 {vT0}, {sTmp}, {vT0}")
    a(f"v_mov_b32 {vT1}, {L_NRES}")
    for s_ in range(8):
        a(f"v_cmp_eq_u32 vcc, {sMark}, {REC[s_]}")
        a(f"s_and_saveexec_b64 {sSave}, vcc")
        a(f"s_cbranch_execz K2_MK{s_}")
        a(f"ds_add_rtn_u32 {vT2}, {vT1}, {vOne}")
        a(f"v_add_u32 {vT3}, {32*s_}, {vT0}")
        a("s_waitcnt lgkmcnt(0)")
        a(f"v_lshlrev_b32 {vT2}, 2, {vT2}")
        a(f"ds_write_b32 {vT2}, {vT3} offset:{L_RES}")
        a.label(f"K2_MK{s_}")
        a(f"s_mov_b64 exec, {sSave}")
    a.label("K2_NOMARK")
    a("s_load_dwordx2 s[64:65], s[0:1], 0")
    a(f"s_waitcnt vmcnt({opt.get('epf',1)}) lgkmcnt(0)")
    srd(a,sHs,"s64","s65",N*128)
    a(f"s_mov_b32 {sTmp}, {NEG_LN2}")
    a(f"v_mul_f32 {WX[0]}, {sTmp}, {WX[0]}")
    a(f"v_mul_f32 {WX[1]}, {sTmp}, {WX[1]}")
    stamp(a,opt,6)
    a("s_barrier")
    stamp(a,opt,7)
    a.c("rescan?")
    a(f"v_mov_b32 {vT0}, {L_NRES}")
    a(f"ds_read_b32 {vT1}, {vT0}")
    a(f"v_and_b32 {vT0}, 7, {vL}")
    a(f"v_lshlrev_b32 {vT0}, 2, {vT0}")
    a(f"ds_read_b32 {vT2}, {vT0} offset:{L_CNT}")
    a("s_waitcnt lgkmcnt(0)")
    a(f"v_readfirstlane_b32 {sNR}, {vT1}")
    a("s_nop 3")
    a(f"s_min_u32 {sNR}, {sNR}, 256")
    a(f"s_cmp_eq_u32 {sNR}, 0")
    a("s_cbranch_scc1 K2_CHECK")
    a(f"s_mov_b32 {sI}, 0")
    a.label("K2_RESCAN_I")
    a(f"s_lshl_b32 {sTmp}, {sI}, 2")
    a(f"s_add_u32 {sTmp}, {sTmp}, {L_RES}")
    a(f"v_mov_b32 {vT0}, {sTmp}")
    a(f"ds_read_b32 {vT1}, {vT0}")
    a("s_waitcnt lgkmcnt(0)")
    a(f"v_readfirstlane_b32 {sWsrc}, {vT1}")
    a("s_nop 3")
    a(f"s_min_u32 {sWsrc}, {sWsrc}, 255")
    a(f"s_mov_b32 {sC}, 0")
    a.label("K2_RESCAN_C")
    def append_raw(lim_local):
        a(f"v_lshlrev_b32 {vT1}, 2, {vT0}")
        a(f"buffer_load_dword {AD[0]}, {vT1}, {sD}, 0 offen")
        a(f"buffer_load_dword {AD[1]}, {vT1}, {sS}, 0 offen")
        a("s_waitcnt vmcnt(0)")
        a(f"v_mul_hi_u32 {vT2}, {AD[0]}, {sK}")
        a(f"v_lshrrev_b32 {vT3}, 3, {vT2}")
        a(f"v_cmp_eq_u32 vcc, s2, {vT3}")
        a("s_nop 1")
        a(f"s_and_b64 vcc, vcc, {sAny}")
        a(f"s_and_saveexec_b64 {sSave}, vcc")
        a(f"s_cbranch_execz {lim_local}")
        a(f"v_mad_u32_u24 {vT3}, {vT2}, {s3125}, {v511}")
        a(f"v_and_b32 {vT2}, 7, {vT2}")
        a(f"v_lshrrev_b32 {vT3}, 9, {vT3}")
        a(f"v_lshlrev_b32 {vT2}, 2, {vT2}")
        a(f"v_sub_u32 {vT3}, {AD[0]}, {vT3}")
        a(f"ds_add_rtn_u32 {AD[2]}, {vT2}, {vOne} offset:{L_CNT}")
        a(f"v_lshl_or_b32 {vT0}, {vT0}, 5, {vT3}")
        a("s_waitcnt lgkmcnt(0)")
        a(f"v_min_u32 {AD[2]}, {CAPX-1}, {AD[2]}")
        a(f"v_mad_u32_u24 {AD[2]}, {vT2}, {sCAPq}, {AD[2]}")
        a(f"v_mov_b32 {vT2}, {L_L0}")
        a(f"v_mov_b32 {vT3}, {L_L1}")
        a(f"v_lshl_add_u32 {vT2}, {AD[2]}, 2, {vT2}")
        a(f"v_lshl_add_u32 {vT3}, {AD[2]}, 1, {vT3}")
        a(f"ds_write_b32 {vT2}, {vT0}")
        a(f"ds_write_b16 {vT3}, {AD[1]}")
        a.label(lim_local)
        a(f"s_mov_b64 exec, {sSave}")
    a(f"s_lshl_b32 {sTmp}, {sC}, 9")
    a(f"v_add_u32 {vT1}, {sTmp}, v0")
    a(f"s_mul_i32 {sTmp2}, {sWsrc}, {CH}")
    a(f"v_add_u32 {vT0}, {sTmp2}, {vT1}")
    a(f"v_cmp_gt_u32 vcc, {CH}, {vT1}")
    a(f"s_mov_b32 {sTmp}, {E}")
    a(f"v_cmp_gt_u32 {sAny}, {sTmp}, {vT0}")
    a("s_nop 1")
    a(f"s_and_b64 {sAny}, {sAny}, vcc")
    append_raw("K2_RA1")
    a(f"s_add_u32 {sC}, {sC}, 1")
    a(f"s_cmp_lt_u32 {sC}, 7")
    a("s_cbranch_scc1 K2_RESCAN_C")
    a(f"s_add_u32 {sI}, {sI}, 1")
    a(f"s_cmp_lt_u32 {sI}, {sNR}")
    a("s_cbranch_scc1 K2_RESCAN_I")
    a("s_waitcnt lgkmcnt(0)")
    a("s_barrier")
    a(f"v_and_b32 {vT0}, 7, {vL}")
    a(f"v_lshlrev_b32 {vT0}, 2, {vT0}")
    a(f"ds_read_b32 {vT2}, {vT0} offset:{L_CNT}")
    a("s_waitcnt lgkmcnt(0)")
    a.label("K2_CHECK")
    a.c("window assignment: SIMD partners (v, v+4) get the windows of rank (v, 7-v) by size")
    a(f"v_cmp_lt_u32 {sAny}, {CAP}, {vT2}" if False else f"v_cmp_lt_u32 vcc, {CAP}, {vT2}")
    a(f"v_and_b32 {vT0}, 7, {vL}")
    a(f"v_min_u32 {vT1}, 0xffffff, {vT2}")
    a(f"s_mov_b64 {sAny}, vcc")
    a(f"v_lshl_or_b32 {vT1}, {vT1}, 3, {vT0}")
    a(f"v_mov_b32 {vT3}, 0")
    for i in range(8):
        a(f"v_readlane_b32 {sTmp}, {vT1}, {i}")
        a("s_nop 1")
        a(f"v_cmp_gt_u32 vcc, {sTmp}, {vT1}")
        a("s_nop 1")
        a(f"v_addc_co_u32 {vT3}, vcc, 0, {vT3}, vcc")
    a(f"s_sub_u32 {sTmp}, 11, {sWave}")
    a(f"s_cmp_lt_u32 {sWave}, 4")
    a(f"s_cselect_b32 {sTmp}, {sWave}, {sTmp}")
    a(f"v_cmp_eq_u32 vcc, {sTmp}, {vT3}")
    a("s_nop 3")
    a(f"s_ff1_i32_b32 {sWin}, vcc_lo")
    a(f"s_and_b32 {sWin}, {sWin}, 7")
    if opt.get('nobal',0): a(f"s_mov_b32 {sWin}, {sWave}")
    a(f"v_readlane_b32 {sCnt}, {vT2}, {sWin}")
    geometry(sWin)
    a(f"s_lshl_b32 {sTmp}, {sWin}, 11")
    a(f"s_add_u32 {sTmp}, {sTmp}, {L_A2}")
    a(f"v_lshl_add_u32 {vT0}, {vL}, 5, {sTmp}")
    a(f"ds_read_b128 {WA[0:4]}, {vT0}")
    a(f"ds_read_b128 {WA[4:8]}, {vT0} offset:16")
    for i in range(4): a(f"v_mov_b32 {T[i]}, 0")
    a(f"ds_write_b128 {vT0}, {T[0:4]}")
    a(f"ds_write_b128 {vT0}, {T[0:4]} offset:16")
    a(f"v_and_b32 {vT1}, 31, {vL}")
    a(f"v_lshrrev_b32 {vT2}, 5, {vL}")
    a(f"v_lshl_add_u32 {vE64}, {vT1}, 6, {sTmp}")
    a(f"v_bfe_u32 {vT0}, {vL}, 2, 2")
    a(f"v_lshl_add_u32 {vT0}, {vT2}, 2, {vT0}")
    a(f"v_lshl_add_u32 {vTR}, {vT0}, 6, {sTmp}")
    a(f"v_bfe_u32 {vT0}, {vL}, 4, 1")
    a(f"v_lshl_add_u32 {vTR}, {vT0}, 5, {vTR}")
    a(f"v_and_b32 {vT0}, 3, {vL}")
    a(f"v_lshl_add_u32 {vTR}, {vT0}, 3, {vTR}")
    a(f"s_lshl_b32 {sHST}, {sWave}, 12")
    a(f"s_add_u32 {sHST}, {sHST}, {L_HST}")
    for i in range(4): a(f"s_add_u32 {sM0[i]}, {sHST}, {1024*i}")
    a(f"v_and_b32 {vT0}, 3, {vT1}")
    a(f"v_bfe_u32 {vT3}, {vT1}, 4, 1")
    a(f"v_lshl_or_b32 {vT3}, {vT3}, 2, {vT0}")
    a(f"v_lshlrev_b32 {vT0}, 3, {vT0}")
    a(f"v_lshrrev_b32 {vJ}, 2, {vT1}")
    a(f"v_add_u32 {vT0}, {vT0}, {vJ}")
    a(f"v_lshl_add_u32 {vT0}, {vT0}, 7, {sHST}")
    for s_ in range(4):
        a(f"v_add_u32 {vJ}, {2*s_}, {vT2}")
        a(f"v_xor_b32 {vJ}, {vJ}, {vT3}")
        a(f"v_lshl_add_u32 {vHA[s_]}, {vJ}, 4, {vT0}")
    a(f"v_and_b32 {vT0}, 7, {vL}")
    a(f"v_lshlrev_b32 {vT3}, 2, {vT2}")
    a(f"v_xor_b32 {vT0}, {vT0}, {vT3}")
    for i in range(4):
        a(f"v_xor_b32 {vJ}, {i}, {vT0}")
        a(f"v_lshlrev_b32 {vKD[i]}, 4, {vJ}")
    a(f"s_cmp_eq_u64 {sAny}, 0")
    a("s_cbranch_scc1 K2_MAIN")
    a.c("generic (slow) mode: raw scan of all edges, 512 per round")
    a(f"s_mov_b32 {sMode}, 1")
    a.label("K2_GEN")
    a("s_barrier")
    a(f"s_cmp_lg_u32 {sWave}, 0")
    a("s_cbranch_scc1 K2_GEN1")
    a(f"v_and_b32 {vT0}, 7, {vL}")
    a(f"v_lshlrev_b32 {vT0}, 2, {vT0}")
    a(f"ds_write_b32 {vT0}, {vZ[0]} offset:{L_CNT}")
    a("s_waitcnt lgkmcnt(0)")
    a.label("K2_GEN1")
    a("s_barrier")
    a(f"s_lshl_b32 {sTmp}, {sChunk}, 9")
    a(f"v_add_u32 {vT0}, {sTmp}, v0")
    a(f"s_mov_b32 {sTmp}, {E}")
    a(f"v_cmp_gt_u32 {sAny}, {sTmp}, {vT0}")
    a("s_nop 1")
    append_raw("K2_RA2")
    a("s_waitcnt lgkmcnt(0)")
    a("s_barrier")
    a(f"s_lshl_b32 {sTmp}, {sWin}, 2")
    a(f"v_mov_b32 {vT0}, {sTmp}")
    a(f"ds_read_b32 {vT1}, {vT0} offset:{L_CNT}")
    a("s_waitcnt lgkmcnt(0)")
    a(f"v_readfirstlane_b32 {sCnt}, {vT1}")
    a("s_nop 3")
    a.label("K2_MAIN")
    a(f"s_min_u32 {sCnt}, {sCnt}, {CAP}")
    a(f"s_add_u32 {sNT}, {sCnt}, 31")
    a(f"s_lshr_b32 {sNT}, {sNT}, 5")
    a(f"s_cmp_eq_u32 {sNT}, 0")
    a("s_cbranch_scc1 K2_MAIN_DONE")
    a(f"s_mul_i32 {sTmp}, {sWin}, {CAPX*4}")
    a(f"s_add_u32 {sTmp}, {sTmp}, {L_L0}")
    a(f"s_mul_i32 {sTmp2}, {sWin}, {CAPX*2}")
    a(f"s_add_u32 {sTmp2}, {sTmp2}, {L_L1}")
    a(f"v_add_u32 {vT0}, {sCnt}, {vL}")
    a(f"v_lshl_add_u32 {vT1}, {vT0}, 2, {sTmp}")
    a(f"v_lshl_add_u32 {vT2}, {vT0}, 1, {sTmp2}")
    a(f"v_mov_b32 {vT3}, 7")
    a(f"ds_write_b32 {vT1}, {vT3}")
    a(f"ds_write_b16 {vT2}, {vZ[0]}")
    a(f"ds_write_b32 {vT1}, {vT3} offset:256")
    a(f"ds_write_b16 {vT2}, {vZ[0]} offset:128")
    a(f"v_and_b32 {vT0}, 31, {vL}")
    a(f"v_lshl_add_u32 {aL0}, {vT0}, 2, {sTmp}")
    a(f"v_lshl_add_u32 {aL1s}, {vT0}, 1, {sTmp2}")
    a(f"v_lshrrev_b32 {vT0}, 3, {vL}")
    a(f"v_lshl_add_u32 {aL1d}, {vT0}, 3, {sTmp2}")
    a(f"ds_read_b32 {vT3}, {aL0}")
    a(f"ds_read_b32 {LE[1]}, {aL0} offset:128")
    a(f"ds_read_b32 {LE[0]}, {aL0} offset:256")
    a(f"ds_read_b64 {SD}, {aL1d}")
    a(f"ds_read_u16 {SS}, {aL1s}")
    a("s_waitcnt lgkmcnt(0)")
    ENT=['',' nt',' sc1',' sc0 sc1',' sc0',' sc0 nt',' sc1 nt',' sc0 sc1 nt'][opt.get('e_nt',0)]
    def E_addr(le): a(f"v_and_or_b32 {aE}, {le}, {sMaskE}, {vHOFF}")
    def E_load(p): a(f"buffer_load_dwordx4 {EA[p]}, {aE}, {sE}, 0 offen{ENT}")
    def H_addr():
        if opt.get('hmask',0):
            a(f"v_and_b32 {SD[0]}, 0x03ff03ff, {SD[0]}"); a(f"v_and_b32 {SD[1]}, 0x03ff03ff, {SD[1]}")
        for i in range(4):
            a(f"v_mad_u32_u16 {AD[i]}, {SD[i>>1]}, {s128}, {vKD[i]}"+(" op_sel:[1,0,0,0]" if i&1 else ""))
    def H_load(i):
        a(f"s_mov_b32 m0, {sM0[i]}")
        a("s_nop 0")
        a(f"buffer_load_dwordx4 {AD[i]}, {sB}, 0 offen{HLD} lds")
    def P_addr(le,par):
        a(f"v_and_b32 {vJ}, 7, {le}")
        a(f"v_mul_u32_u24 {aPS}, 6, {SS}")
        a(f"v_mad_u32_u24 {aPD}, {vJ}, 6, {sN06}")
        a(f"v_lshlrev_b32 {aOH}, 4, {vJ}")
        a(f"v_lshl_add_u32 {aA2[par]}, {vJ}, 3, {vE64}")
    def P_reads():
        for c in range(3): a(f"ds_read_u16_d16_hi {PS[c]}, {aPS} offset:{L_POS+2*c}")
        for c in range(3): a(f"ds_read_u16_d16_hi {PD[c]}, {aPD} offset:{L_POS+2*c}")
        a(f"ds_read_b128 {OH}, {aOH} offset:{L_OH}")
    def P_calc_list(par):
        return [f"v_sub_f32 {DX[0]}, {PD[0]}, {PS[0]}", f"v_sub_f32 {DX[1]}, {PD[1]}, {PS[1]}", f"v_sub_f32 {DX[2]}, {PD[2]}, {PS[2]}",
                f"v_mul_f32 {DD}, {DX[0]}, {DX[0]}", f"v_fmac_f32 {DD}, {DX[1]}, {DX[1]}", f"v_fmac_f32 {DD}, {DX[2]}, {DX[2]}",
                f"v_cvt_pk_bf16_f32 {E01[0]}, 1.0, {DX[0]}", f"v_cvt_pk_bf16_f32 {E01[1]}, {DX[1]}, {DX[2]}",
                f"v_cvt_pk_bf16_f32 {OH[3]}, {OH[3]}, {DD}",
                f"ds_write_b64 {aA2[par]}, {E01}"]
    E_addr(vT3); E_load(0)
    H_addr()
    for i in range(4): H_load(i)
    E_addr(LE[1]); E_load(1)
    P_addr(vT3,0); P_reads()
    a(f"ds_read_b64 {SD}, {aL1d} offset:64")
    a(f"ds_read_u16 {SS}, {aL1s} offset:64")
    for i in range(16): a(f"v_mov_b32 {T[i]}, 0")
    for i in range(8): a(f"v_mov_b32 {A2R[i]}, 0")
    a("s_waitcnt lgkmcnt(0)")
    for ins in P_calc_list(0): a(ins)
    H_addr()
    P_addr(LE[1],1)
    E_addr(LE[0])
    a("s_waitcnt vmcnt(1)")
    for s_ in range(4): a(f"ds_read_b128 {HA[4*s_:4*s_+4]}, {vHA[s_]}")
    Da,Db=D1[0:16],D1[16:32]
    mfma(a,Da,OH,WA[0:4],"0")
    mfma(a,Da,EA[0],WE[0:4],Da)
    a("s_waitcnt lgkmcnt(0)")
    for i in range(4): H_load(i)
    mfma(a,Da,HA[0:4],ID[0:4],Da)
    mfma(a,Da,HA[4:8],ID[4:8],Da)
    a(f"s_mov_b32 {sT}, 0")
    stamp(a,opt,8)
    if DBG:
        a("s_memtime s[80:81]")
        a("s_waitcnt lgkmcnt(0)")
    a.nop(12)
    MADD=opt.get('madd',1)
    def prio(p):
        if PRIO: a(f"s_setprio {p}")
    def Tsec(kind,x,p):
        Dx=D1[16*x:16*x+16]; o=1-x; Do=D1[16*o:16*o+16]; D2o=D2[16*o:16*o+16]
        prio(1)
        if kind=='X':
            ea = EA[p] if x==0 else EA[1-p]
            mfma(a,Do,OH,WA[4*o:4*o+4],"0")
            for i in range(8): a(f"v_cvt_pk_bf16_f32 {M[i]}, {T[2*i]}, {T[2*i+1]}")
            mfma(a,Do,ea,WE[4*o:4*o+4],Do)
            for i in range(16):
                if i==6:
                    if x==1: a("s_waitcnt lgkmcnt(2)")
                    mfma(a,D2o,A2R[0:4],M[0:4],D2o)
                a(f"v_exp_f32 {T[i]}, {Dx[i]}")
            if MADD:
                a("s_nop 1")
                mfma(a,T,ONE,ONE,T)
        else:
            hb = HA[8:16] if x==0 else HA[0:8]
            for i in range(16):
                if i==0: mfma(a,Do,hb[0:4],ID[0:4],Do)
                if i==5: mfma(a,Do,hb[4:8],ID[4:8],Do)
                if i==10: mfma(a,D2o,A2R[4:8],M[4:8],D2o)
                a(f"v_rcp_f32 {T[i]}, {T[i]}")
        prio(0)
    def tile(p):
        q=1-p
        Tsec('X',0,p)
        if not opt.get('e_late',0): E_load(p)
        else: a("s_nop 0")
        P_reads()
        a(f"ds_read_b64 {SD}, {aL1d} offset:{64*(p+2)}")
        if not MADD:
            for i in range(16): a(f"v_add_f32 {T[i]}, 1.0, {T[i]}")
        else:
            a.nop(2)
        Tsec('R',0,p)
        a(f"s_waitcnt vmcnt({0 if opt.get('e_late',0) else 1}) lgkmcnt(0)")
        for s_ in range(4): a(f"ds_read_b128 {HA[4*s_:4*s_+4]}, {vHA[s_]}")
        for k in range(4): a(f"ds_read_b64_tr_b16 {A2R[2*k:2*k+2]}, {vTR} offset:{512*k}")
        a(f"ds_write_b64 {aA2[p]}, {vZ}")
        pc=P_calc_list(q)
        for ins in pc[:6]: a(ins)
        H_addr()
        for i in range(16): a(f"v_mul_f32 {T[i]}, {Da[i]}, {T[i]}")
        for ins in pc[6:]: a(ins)
        Tsec('X',1,p)
        a("s_waitcnt lgkmcnt(0)")
        if opt.get('e_late',0)==1: E_load(p)
        for i in range(4): H_load(i)
        a(f"ds_read_b32 {LE[q]}, {aL0} offset:{128*(p+3)}")
        a(f"ds_read_u16 {SS}, {aL1s} offset:{64*(p+2)}")
        if not MADD:
            for i in range(16): a(f"v_add_f32 {T[i]}, 1.0, {T[i]}")
        Tsec('R',1,p)
        a("s_waitcnt lgkmcnt(0)")
        E_addr(LE[q])
        P_addr(LE[p],p)
        if p==1:
            a(f"v_add_u32 {aL0}, 256, {aL0}")
            a(f"v_add_u32 {aL1s}, 128, {aL1s}")
            a(f"v_add_u32 {aL1d}, 128, {aL1d}")
        for i in range(16): a(f"v_mul_f32 {T[i]}, {Db[i]}, {T[i]}")
    def drain(par):
        for i in range(8): a(f"v_cvt_pk_bf16_f32 {M[i]}, {T[2*i]}, {T[2*i+1]}")
        a(f"ds_write_b64 {aA2[par]}, {vZ}")
        a("s_nop 0")
        mfma(a,D2[16:32],A2R[0:4],M[0:4],D2[16:32])
        mfma(a,D2[16:32],A2R[4:8],M[4:8],D2[16:32])
    a(".p2align 6")
    a.label("K2_LOOP")
    tile(0)
    a(f"s_add_u32 {sT}, {sT}, 1")
    a(f"s_cmp_ge_u32 {sT}, {sNT}")
    a("s_cbranch_scc1 K2_EXIT_ODD")
    tile(1)
    a(f"s_add_u32 {sT}, {sT}, 1")
    a(f"s_cmp_lt_u32 {sT}, {sNT}")
    a("s_cbranch_scc1 K2_LOOP")
    drain(0)
    a("s_branch K2_MAIN_DONE")
    a.label("K2_EXIT_ODD")
    drain(1)
    a.label("K2_MAIN_DONE")
    stamp(a,opt,9)
    if DBG:
        a("s_memtime s[82:83]")
        a("s_waitcnt lgkmcnt(0)")
        a("s_sub_u32 s80, s82, s80")
        a(f"v_writelane_b32 {VDBG}, s80, 12")
        a(f"v_writelane_b32 {VDBG}, {sNT}, 11")
    a(f"s_cmp_eq_u32 {sMode}, 0")
    a("s_cbranch_scc1 K2_EPI")
    a("s_waitcnt vmcnt(0) lgkmcnt(0)")
    a(f"s_add_u32 {sChunk}, {sChunk}, 1")
    a(f"s_cmp_lt_u32 {sChunk}, {(E+511)//512}")
    a("s_cbranch_scc1 K2_GEN")
    a.label("K2_EPI")
    a.c("segment sums of this window: m_i (bf16) -> rows of this window's (now idle) A2 slice")
    a(f"s_lshl_b32 {sHST}, {sWin}, 11")
    a(f"s_add_u32 {sHST}, {sHST}, {L_A2}")
    a(f"v_and_b32 {vJ}, 31, {vL}")
    a(f"s_mov_b32 {sTmp}, {NEG_LN2}")
    a(f"v_lshrrev_b32 {vT2}, 5, {vL}")
    a(f"v_lshlrev_b32 {vT2}, 7, {vT2}")
    a(f"v_lshl_add_u32 {vT2}, {vJ}, 1, {vT2}")
    a(f"v_add_u32 {vT2}, {sHST}, {vT2}")
    a.nop(8)
    for qq in range(4):
        a(f"v_mul_f32 {AD[0]}, {sTmp}, {D2[4*qq]}")
        a(f"v_mul_f32 {AD[1]}, {sTmp}, {D2[16+4*qq]}")
        a(f"v_cvt_pk_bf16_f32 {AD[2]}, {AD[0]}, {AD[1]}")
        a(f"ds_write_b16 {vT2}, {AD[2]} offset:{qq*256}")
        a(f"ds_write_b16_d16_hi {vT2}, {AD[2]} offset:{qq*256+64}")
    a.c("job waves 0..3: row tile r = v>>1 (rows = window 4r + (m>>3), node m&7), feature half x = v&1")
    a(f"s_cmp_gt_u32 {sWave}, 3")
    a("s_cbranch_scc1 K2_EPI_NOJOB")
    a(f"s_lshr_b32 {sTmp2}, {sWave}, 1")
    a(f"s_lshl_b32 {sTmp2}, {sTmp2}, 2")
    a(f"v_bfe_u32 {vT0}, {vL}, 3, 2")
    a(f"v_add_u32 {vT0}, {sTmp2}, {vT0}")
    a(f"v_and_b32 {vJ}, 7, {vL}")
    a(f"v_lshlrev_b32 {aL1d}, 11, {vT0}")
    a(f"v_lshl_add_u32 {aL1d}, {vJ}, 7, {aL1d}")
    a(f"v_add_u32 {aL1d}, {L_A2}, {aL1d}")
    a(f"v_add_u32 {aL1d}, {aL1d}, {vHOFF}")
    a(f"s_lshl_b32 {sTmp2}, s2, 3")
    a(f"v_add_u32 {vT0}, {sTmp2}, {vT0}")
    a(f"v_mad_u32_u24 {SD[0]}, {vT0}, {s3125}, {v511}")
    a(f"v_add_u32 {SD[1]}, 3125, {SD[0]}")
    a(f"v_lshrrev_b32 {SD[0]}, 9, {SD[0]}")
    a(f"v_lshrrev_b32 {SD[1]}, 9, {SD[1]}")
    a(f"v_sub_u32 {SD[1]}, {SD[1]}, {SD[0]}")
    a(f"v_cmp_lt_u32 vcc, {vJ}, {SD[1]}")
    a(f"v_add_u32 {vT1}, -1, {SD[1]}")
    a(f"v_min_u32 {vT1}, {vT1}, {vJ}")
    a(f"v_add_u32 {vT1}, {SD[0]}, {vT1}")
    a(f"v_lshlrev_b32 {vT1}, 7, {vT1}")
    a(f"v_add_u32 {vT0}, {vT1}, {vHOFF}")
    for s_ in range(4):
        a(f"buffer_load_dwordx4 {HA[4*s_:4*s_+4]}, {vT0}, {sHs}, 0 offen offset:{32*s_}")
    a(f"s_and_b32 {sTmp2}, {sWave}, 1")
    a(f"s_lshl_b32 {sTmp2}, {sTmp2}, 6")
    a(f"v_lshrrev_b32 {vT0}, 1, {vHOFF}")
    a(f"v_add3_u32 {aL0}, {vT1}, {vT0}, {sTmp2}")
    for qq in range(4):
        a(f"buffer_load_dwordx2 {M[2*qq:2*qq+2]}, {aL0}, {sHs}, 0 offen offset:{16*qq}")
    a(f"v_mov_b32 {vT0}, 0x40000000")
    a(f"v_cndmask_b32 {aL1s}, {vT0}, {aL0}, vcc")
    a.label("K2_EPI_NOJOB")
    a.c("coordinate update of this window")
    PP=T
    for qq in range(4):
        for c in range(1,4):
            r=PP[qq*3+c-1]
            a(f"v_mul_f32 {r}, {WX[0]}, {D2[4*qq+c]}")
            a(f"v_fmac_f32 {r}, {WX[1]}, {D2[16+4*qq+c]}")
    for sh in (1,2,4,8):
        for i in range(12): a(f"v_add_f32_dpp {PP[i]}, {PP[i]}, {PP[i]} row_shr:{sh} row_mask:0xf bank_mask:0xf bound_ctrl:0")
    for i in range(12): a(f"v_add_f32_dpp {PP[i]}, {PP[i]}, {PP[i]} row_bcast:15 row_mask:0xa bank_mask:0xf")
    a(f"v_lshrrev_b32 {vT2}, 5, {vL}")
    a(f"v_lshlrev_b32 {vT2}, 4, {vT2}")
    a(f"s_add_u32 {sTmp}, {sHST}, 1024")
    a(f"v_add_u32 {vT2}, {sTmp}, {vT2}")
    a("s_mov_b32 exec_lo, 0x80000000")
    a("s_mov_b32 exec_hi, 0x80000000")
    for qq in range(4):
        for c in range(3):
            a(f"ds_write_b32 {vT2}, {PP[qq*3+c]} offset:{qq*32+c*4}")
    a("s_mov_b64 exec, -1")
    a(f"v_mul_u32_u24 {vT2}, 86, {vL}")
    a(f"v_lshrrev_b32 {vT2}, 8, {vT2}")
    a(f"v_mul_u32_u24 {vT3}, 3, {vT2}")
    a(f"v_sub_u32 {vT3}, {vL}, {vT3}")
    a(f"v_lshlrev_b32 {vT2}, 4, {vT2}")
    a(f"v_lshl_add_u32 {vT2}, {vT3}, 2, {vT2}")
    a(f"v_add_u32 {vT2}, {sTmp}, {vT2}")
    a(f"v_min_u32 {vT2}, {LDS2-4}, {vT2}")
    a(f"ds_read_b32 {AD[0]}, {vT2}")
    a(f"v_lshl_add_u32 {vT3}, {vL}, 1, {sN06}")
    a(f"v_min_u32 {vT2}, {POS_SZ-2}, {vT3}")
    a(f"ds_read_u16_d16_hi {PS[0]}, {vT2} offset:{L_POS}")
    a(f"s_mul_i32 {sTmp}, {sNJ}, 3")
    a(f"v_cmp_gt_u32 vcc, {sTmp}, {vL}")
    a(f"v_add_u32 {vT3}, {OUT_POS}, {vT3}")
    a(f"v_mov_b32 {vT2}, 0x40000000")
    a("s_waitcnt lgkmcnt(0)")
    a(f"v_cndmask_b32 {vT3}, {vT2}, {vT3}, vcc")
    a(f"v_add_f32 {AD[0]}, {AD[0]}, {PS[0]}")
    a(f"v_cvt_pk_bf16_f32 {AD[0]}, {AD[0]}, {AD[0]}")
    a(f"buffer_store_short {AD[0]}, {vT3}, {sO}, 0 offen")
    HV=D2[0:16]
    a(f"s_cmp_gt_u32 {sWave}, 3")
    a("s_cbranch_scc1 K2_EPI_NOJOB2")
    a("s_waitcnt vmcnt(1)")
    for s_ in range(4):
        mfma(a,D1[0:16],WH[4*s_:4*s_+4],HA[4*s_:4*s_+4],"0" if s_==0 else D1[0:16])
    for qq in range(4):
        a(f"v_lshlrev_b32 {HV[4*qq]}, 16, {M[2*qq]}")
        a(f"v_and_b32 {HV[4*qq+1]}, 0xffff0000, {M[2*qq]}")
        a(f"v_lshlrev_b32 {HV[4*qq+2]}, 16, {M[2*qq+1]}")
        a(f"v_and_b32 {HV[4*qq+3]}, 0xffff0000, {M[2*qq+1]}")
    a.label("K2_EPI_NOJOB2")
    stamp(a,opt,10)
    a("s_barrier")
    a(f"s_cmp_gt_u32 {sWave}, 3")
    a("s_cbranch_scc1 K2_FIN")
    MA=[EA[0],EA[1],A2R[0:4],A2R[4:8]]
    for s_ in range(4): a(f"ds_read_b128 {MA[s_]}, {aL1d} offset:{32*s_}")
    for s_ in range(4):
        a(f"s_waitcnt lgkmcnt({3-s_})")
        mfma(a,D1[0:16],WH[16+4*s_:20+4*s_],MA[s_],D1[0:16])
    a(f"s_mov_b32 {sTmp}, {NEG_LOG2E}")
    a.nop(14)
    X=D1[0:16]
    for i in range(16): a(f"v_mul_f32 {T[i]}, {sTmp}, {X[i]}")
    for i in range(16): a(f"v_exp_f32 {T[i]}, {T[i]}")
    for i in range(16): a(f"v_add_f32 {T[i]}, 1.0, {T[i]}")
    for i in range(16): a(f"v_rcp_f32 {T[i]}, {T[i]}")
    a("s_nop 0")
    for i in range(16): a(f"v_fma_f32 {T[i]}, {X[i]}, {T[i]}, {HV[i]}")
    for qq in range(4):
        a(f"v_cvt_pk_bf16_f32 {M[2*qq]}, {T[4*qq]}, {T[4*qq+1]}")
        a(f"v_cvt_pk_bf16_f32 {M[2*qq+1]}, {T[4*qq+2]}, {T[4*qq+3]}")
        a(f"buffer_store_dwordx2 {M[2*qq:2*qq+2]}, {aL1s}, {sO}, 0 offen offset:{16*qq}")
    a.label("K2_FIN")
    if DBG:
        a("s_waitcnt vmcnt(0)")
        stamp(a,opt,13)
        a(f"s_lshl_b32 {sTmp}, s2, 4")
        a(f"s_add_u32 {sTmp}, {sTmp}, {sWave}")
        a(f"s_lshl_b32 {sTmp}, {sTmp}, 6")
        a(f"s_add_u32 {sTmp}, {sTmp}, {DBG_OFF}")
        a(f"v_lshlrev_b32 {vT0}, 2, {vL}")
        a("s_mov_b32 exec_lo, 0xffff")
        a("s_mov_b32 exec_hi, 0")
        a(f"buffer_store_dword {VDBG}, {vT0}, {sW}, {sTmp} offen")
        a("s_waitcnt vmcnt(0)")
    a.label("K_END")
    a("s_endpgm")
    return nv

HEADER='''; Kernarg layout (88 bytes, ptrs only): h, pos, e_attr, src, dst, w_e, w_x, w_h, out, debug, ws
; @launch grid=(256,1,1) block=(512,1,1) lds={lds2}
.amdgcn_target "amdgcn-amd-amdhsa--gfx950"
.text
.globl {k}
.p2align 8
.type {k},@function
'''
def kd(name,nv,ns):
    acc=(nv+3)//4*4
    return f'''.amdhsa_kernel {name}
  .amdhsa_next_free_vgpr {acc}
  .amdhsa_next_free_sgpr {ns}
  .amdhsa_accum_offset {acc}
  .amdhsa_group_segment_fixed_size 0
  .amdhsa_kernarg_size 88
  .amdhsa_user_sgpr_count 2
  .amdhsa_user_sgpr_kernarg_segment_ptr 1
  .amdhsa_system_sgpr_workgroup_id_x 1
  .amdhsa_float_denorm_mode_32 3
.end_amdhsa_kernel
'''
def build(opt):
    out=HEADER.format(lds2=LDS2,k=KNAME)
    a=Asm()
    nv=gen(a,opt)
    assert nv<=255
    out+=a.text()
    out+='.section .rodata,"a"\n.p2align 6\n'+kd(KNAME,256,102)
    return out,nv
if __name__=="__main__":
    opt={}
    for arg in sys.argv[2:]:
        k,v=arg.split('='); opt[k]=int(v)
    txt,nv=build(opt)
    open(sys.argv[1],'w').write(txt)
    print("vgprs:",nv,"LDS",LDS2,"lines",txt.count("\n"),"WS",WS_BYTES)
```

```python
import sys, struct
from asmlib import *

N=12500; E=800000; CH=3136; NSRC=256; NBIN=256; NPW=49
KW=703687442
LOG2E=1.4426950408889634; LN2=0.6931471805599453
def f2u(x): return struct.unpack('<I',struct.pack('<f',x))[0]
NEG_LOG2E=f2u(-LOG2E); NEG_LN2=f2u(-LN2)
SENT=0xFFFFFFFF; MARK=0xFFFFFFFE
CELLS=0; BPT=NBIN*NSRC*128; FLG=BPT+N*128+((-N*128)%4096); FLG2=FLG+4096; WS_BYTES=FLG2+8192
OUT_BYTES=N*64*2+N*3*2; OUT_POS=N*64*2
CAP=576; CAPX=704
L_OH=0; L_CNT=128; L_NRES=160; L_WIN=192; L_RES=256; L_POS=1280; POS_SZ=74*1024
L_L0=L_POS+POS_SZ; L_L1=L_L0+8*CAPX*4; L_A2=L_L1+8*CAPX*2; L_HST=L_A2+8*2048; LDS2=L_HST+8*4096
assert LDS2<=163840, LDS2
L_RAWW=L_L0; L_BST=L_L0+19*1024; assert L_BST+2*32*144<=L_A2
DBG_OFF=16*1024*1024

def WSB(opt): return (32*1024*1024 if opt.get('dbg',0) else WS_BYTES)
def srd(a, s, lo, hi, size):
    a(f"s_mov_b32 {s[0]}, {lo}")
    a(f"s_and_b32 {s[1]}, {hi}, 0xffff")
    a(f"s_mov_b32 {s[2]}, {size}")
    a(f"s_mov_b32 {s[3]}, 0x20000")
VDBG="v255"
def stamp(a,opt,idx):
    if not opt.get('dbg',0): return
    a("s_memrealtime s[100:101]")
    a("s_waitcnt lgkmcnt(0)")
    a(f"v_writelane_b32 {VDBG}, s100, {idx}")
def S(i,n=1): return R('s',i,n)
def V(i,n=1): return R('v',i,n)
def mfma(a,d,A,B,c): a(f"v_mfma_f32_32x32x16_bf16 {d}, {A}, {B}, {c}")

NPOS1=24
KNAME="gather_scatter__cheap_equivariant_egnn__graph_kernel"
def gen(a, opt):
    DBG=opt.get('dbg',0)
    PRIO=opt.get('prio',1)
    ST=" sc1"; LD=" sc1" if opt.get('ld_sc1',1) else ""
    HLD=" sc1" if opt.get('h_sc1',1) else ""
    OST=[""," nt"," sc1"," sc0 sc1"][opt.get('ost',0)]
    a.label(KNAME)
    sB=S(4,4); sE=S(8,4); sW=S(12,4); sO=S(16,4); sP=S(20,4); sS=S(24,4); sD=S(28,4)
    sWave=S(32); sN0=S(33); sNJ=S(34); sN06=S(35); sNT=S(36); sT=S(37); sMode=S(38); sChunk=S(39)
    sMaskE=S(40); s128=S(41); sK=S(42); s3125=S(43); sLim=S(44); sCAP=S(44); sCnt=S(45); sTmp=S(46); sTmp2=S(47)
    sM0=S(48,4); sSave=S(52,2); sAny=S(54,2); sNR=S(56); sI=S(57); sC=S(58); sWsrc=S(59); sMark=S(60); sCAPq=S(61); sHST=S(62); sTmp3=S(63)
    sMask=[S(64+2*i,2) for i in range(16)]
    sRot=S(39+0) if False else S(37)
    sWin=S(96); sTgt=S(97); sNonce=S(98); sPoll=S(99)
    sT4=S(84,4); sT4b=S(88,4); sT4c=S(92,4)
    sHw=S(48,4)
    sHs=S(68,4); sWx=S(72,4)
    vr=Regs(1,256,'v')
    vL=vr.alloc('lane')
    WE=vr.alloc('WE',8,4); WA=vr.alloc('WA',8,4); ID=vr.alloc('ID',8,4); D2=vr.alloc('D2',32,4)
    D1=vr.alloc('D1',32,4); HA=vr.alloc('HA',16,4); T=vr.alloc('T',16,4); M=vr.alloc('M',8,4)
    A2R=vr.alloc('A2R',8,4); EA=[vr.alloc('EA0',4,4),vr.alloc('EA1',4,4)]; OH=vr.alloc('OH',4,4)
    WH=vr.alloc('WH',32,4); ONE=vr.alloc('ONE',4,4)
    vHA=vr.alloc('vHA',4); vKD=vr.alloc('vKD',4); vTR=vr.alloc('vTR'); vE64=vr.alloc('vE64'); vHOFF=vr.alloc('vHOFF')
    vZ=vr.alloc('vZ',2,2); aL0=vr.alloc('aL0'); aL1s=vr.alloc('aL1s'); aL1d=vr.alloc('aL1d')
    LE=[vr.alloc('LE0'),vr.alloc('LE1')]; aA2=[vr.alloc('aA2_0'),vr.alloc('aA2_1')]
    SD=vr.alloc('SD',2,2); SS=vr.alloc('SS'); PS=vr.alloc('PS',3); PD=vr.alloc('PD',3)
    E01=vr.alloc('E01',2,2); DX=vr.alloc('DX',3); DD=vr.alloc('DD'); AD=vr.alloc('AD',4); vJ=vr.alloc('vJ')
    aE=vr.alloc('aE'); aPS=vr.alloc('aPS'); aPD=vr.alloc('aPD'); aOH=vr.alloc('aOH')
    vT0=vr.alloc('vT0'); vT1=vr.alloc('vT1'); vT2=vr.alloc('vT2'); vT3=vr.alloc('vT3')
    vOne=vr.alloc('vOne'); v511=vr.alloc('v511'); vTRW=vr.alloc('vTRW'); vL16=vr.alloc('vL16'); WX=vr.alloc('WX',2); vDUM=vr.alloc('vDUM')
    nv=vr.next
    HW=T
    def geometry(win):
        a(f"s_lshl_b32 {sTmp}, s2, 3")
        a(f"s_add_u32 {sTmp}, {sTmp}, {win}")
        a(f"s_mul_i32 {sN0}, {sTmp}, 3125")
        a(f"s_add_u32 {sNJ}, {sN0}, {3125+511}")
        a(f"s_add_u32 {sN0}, {sN0}, 511")
        a(f"s_lshr_b32 {sN0}, {sN0}, 9")
        a(f"s_lshr_b32 {sNJ}, {sNJ}, 9")
        a(f"s_sub_u32 {sNJ}, {sNJ}, {sN0}")
        a(f"s_mul_i32 {sN06}, {sN0}, 6")
    def dma(vaddr,srd_,soff,ldsbase_const=None,ldsreg=None):
        pass

    def load_hwin():
        a.c("h rows of the natural window (A operand of h@W1; needed after barrier C)")
        a(f"v_bfe_u32 {vT0}, {vL}, 3, 1")
        a(f"v_and_b32 {vT2}, 3, {vL}")
        a(f"v_lshl_add_u32 {vT0}, {vT0}, 2, {vT2}")
        a(f"s_sub_u32 {sTmp}, {sNJ}, 1")
        a(f"v_min_u32 {vT0}, {sTmp}, {vT0}")
        a(f"v_add_u32 {vT0}, {sN0}, {vT0}")
        a(f"v_lshl_add_u32 {vT0}, {vT0}, 7, {vHOFF}")
        for s_ in range(4):
            a(f"buffer_load_dwordx4 {HW[4*s_:4*s_+4]}, {vT0}, {sHw}, 0 offen offset:{32*s_}")
    a("s_cmp_ge_u32 s2, 256")
    a("s_cbranch_scc1 K_END")
    a("s_load_dwordx4 s[64:67], s[0:1], 0")
    a("s_load_dwordx4 s[68:71], s[0:1], 16")
    a("s_load_dwordx4 s[72:75], s[0:1], 32")
    a("s_load_dwordx4 s[76:79], s[0:1], 64")
    a("s_load_dwordx2 s[80:81], s[0:1], 80")
    a(f"v_and_b32 {vL}, 63, v0")
    a(f"v_lshrrev_b32 {vT0}, 6, v0")
    a(f"v_lshlrev_b32 {vL16}, 4, {vL}")
    a(f"v_readfirstlane_b32 {sWave}, {vT0}")
    if opt.get('cpf',1):
        a.c("pull this workgroup's share of the kernel's own code into L2 (read only, speed only)")
        NL=opt.get('cpf_lines',8)
        a("s_getpc_b64 s[84:85]")
        a.label("K_PC")
        a("s_and_b32 s85, s85, 0xffff")
        a("s_mov_b32 s86, K_CODE_END-K_PC")
        a("s_mov_b32 s87, 0x20000")
        a(f"s_lshr_b32 {sTmp}, s2, 3")
        a(f"s_and_b32 {sTmp}, {sTmp}, 31")
        a(f"s_mul_i32 {sTmp}, {sTmp}, {NL*128}")
        a(f"v_lshlrev_b32 {vT1}, 7, {vL}")
        a(f"v_add_u32 {vT1}, {sTmp}, {vT1}")
        a(f"s_cmp_lg_u32 {sWave}, 3")
        a("s_cbranch_scc1 K_NOCPF")
        a(f"s_mov_b32 exec_lo, {(1<<NL)-1}")
        a("s_mov_b32 exec_hi, 0")
        a(f"buffer_load_dword {vDUM}, {vT1}, s[84:87], 0 offen")
        a("s_mov_b64 exec, -1")
        a.label("K_NOCPF")
    a(f"v_lshrrev_b32 {vT2}, 5, {vL}")
    a(f"v_lshlrev_b32 {vHOFF}, 4, {vT2}")
    a(f"v_mov_b32 {vZ[0]}, 0")
    a(f"v_mov_b32 {vZ[1]}, 0")
    geometry(sWave)
    a(f"s_mul_i32 {sTmp}, s2, {CH*4}")
    a(f"s_mul_i32 {sTmp2}, {sWave}, {384*4}")
    a(f"s_add_u32 {sTmp}, {sTmp}, {sTmp2}")
    a(f"v_lshl_add_u32 {vT0}, {vL}, 3, {sTmp}")
    a("s_waitcnt lgkmcnt(0)")
    stamp(a,opt,0)
    srd(a,sD,"s72","s73",E*4)
    srd(a,sS,"s70","s71",E*4)
    a.c("every wave: six edges per lane, local edge = 384v + 128k + 2l + u; wave 7 also takes edges 3072 + l")
    DS_=D1[0:7]; SR_=D1[8:15]
    for k in range(3): a(f"buffer_load_dwordx2 {D1[2*k:2*k+2]}, {vT0}, {sD}, 0 offen offset:{512*k} nt")
    for k in range(3): a(f"buffer_load_dwordx2 {D1[8+2*k:10+2*k]}, {vT0}, {sS}, 0 offen offset:{512*k} nt")
    srd(a,sT4,"s64","s65",N*128)
    srd(a,sHw,"s64","s65",N*128)
    srd(a,sT4b,"s74","s75",145*128)
    a(f"s_cmp_eq_u32 {sWave}, 7")
    a("s_cbranch_scc1 K_S_W7")
    a(f"s_cmp_eq_u32 {sWave}, 4")
    a("s_cbranch_scc1 K_S_W4")
    a(f"s_cmp_lt_u32 {sWave}, 5")
    a("s_cbranch_scc1 K_S_COMMON")
    a.c("waves 5,6: private raw W2 copy + h rows for the source-node table")
    a(f"s_sub_u32 {sI}, {sWave}, 5")
    a(f"s_lshl_b32 {sC}, {sI}, 13")
    a(f"s_add_u32 {sC}, {sC}, {L_A2}")
    for i in range(8):
        a(f"s_add_u32 {sTmp}, {sC}, {i*1024}")
        a(f"s_mov_b32 m0, {sTmp}")
        a(f"s_mov_b32 {sTmp2}, {8192+i*1024}")
        a(f"buffer_load_dwordx4 {vL16}, {sT4b}, {sTmp2} offen lds")
    a(f"s_mul_i32 {sTmp}, s2, {NPW}")
    a(f"s_lshl_b32 {sTmp2}, {sI}, 5")
    a(f"s_add_u32 {sTmp}, {sTmp}, {sTmp2}")
    a(f"v_and_b32 {vT0}, 31, {vL}")
    a(f"v_add_u32 {vT0}, {sTmp}, {vT0}")
    a(f"v_lshl_add_u32 {vT0}, {vT0}, 7, {vHOFF}")
    for s_ in range(4): a(f"buffer_load_dwordx4 {HA[4*s_:4*s_+4]}, {vT0}, {sT4}, 0 offen offset:{32*s_}")
    a("s_branch K_S_COMMON")
    a.label("K_S_W4")
    a.c("wave 4: this workgroup's share of the L2 warm-up of pos and w_h (speed only)")
    a("s_load_dwordx2 s[82:83], s[0:1], 56")
    srd(a,sP,"s66","s67",N*6)
    a(f"s_lshr_b32 {sTmp}, s2, 3")
    a(f"s_and_b32 {sTmp}, {sTmp}, 31")
    a(f"s_mul_i32 {sTmp2}, {sTmp}, {19*128}")
    a(f"v_lshlrev_b32 {vT0}, 7, {vL}")
    a(f"v_add_u32 {vT1}, {sTmp2}, {vT0}")
    a(f"v_cmp_gt_u32 vcc, 19, {vL}")
    a(f"v_mov_b32 {vT2}, 0x40000000")
    a("s_waitcnt lgkmcnt(0)")
    a(f"v_cndmask_b32 {vT1}, {vT2}, {vT1}, vcc")
    a(f"buffer_load_dword {vDUM}, {vT1}, {sP}, 0 offen")
    srd(a,sT4b,"s82","s83",128*128)
    a(f"s_lshl_b32 {sTmp2}, {sTmp}, 9")
    a(f"v_add_u32 {vT1}, {sTmp2}, {vT0}")
    a(f"v_cmp_gt_u32 vcc, 4, {vL}")
    a("s_nop 1")
    a(f"v_cndmask_b32 {vT1}, {vT2}, {vT1}, vcc")
    a(f"buffer_load_dword {vDUM}, {vT1}, {sT4b}, 0 offen")
    a("s_branch K_S_COMMON")
    a.label("K_S_W7")
    a.c("wave 7: the last 64 edges, one-hot table, counters")
    a(f"s_mul_i32 {sTmp}, s2, {CH*4}")
    a(f"s_add_u32 {sTmp}, {sTmp}, {3072*4}")
    a(f"v_lshl_add_u32 {vT0}, {vL}, 2, {sTmp}")
    a(f"buffer_load_dword {D1[6]}, {vT0}, {sD}, 0 offen nt")
    a(f"buffer_load_dword {D1[14]}, {vT0}, {sS}, 0 offen nt")
    a(f"v_lshrrev_b32 {vT0}, 2, {vL}")
    a(f"v_and_b32 {vT1}, 3, {vL}")
    a(f"v_lshlrev_b32 {vT3}, 1, {vT1}")
    a(f"v_mov_b32 {vJ}, 0")
    a(f"v_cmp_eq_u32 vcc, {vT0}, {vT3}")
    a(f"v_mov_b32 {AD[0]}, 0x3f80")
    a(f"v_mov_b32 {AD[1]}, 0x3f800000")
    a(f"v_cndmask_b32 {vJ}, {vJ}, {AD[0]}, vcc")
    a(f"v_add_u32 {vT3}, 1, {vT3}")
    a(f"v_cmp_eq_u32 vcc, {vT0}, {vT3}")
    a("s_nop 1")
    a(f"v_cndmask_b32 {vJ}, {vJ}, {AD[1]}, vcc")
    a(f"v_cmp_eq_u32 vcc, 6, {vT0}")
    a(f"v_mov_b32 {AD[2]}, 0")
    a("s_nop 0")
    a(f"v_cndmask_b32 {AD[2]}, {AD[2]}, {AD[1]}, vcc")
    a(f"v_cmp_eq_u32 vcc, 3, {vT1}")
    a("s_nop 1")
    a(f"v_cndmask_b32 {vJ}, {vJ}, {AD[2]}, vcc")
    a(f"v_cmp_lt_u32 vcc, 31, {vL}")
    a(f"v_lshlrev_b32 {vT0}, 2, {vL}")
    a("s_nop 0")
    a(f"v_cndmask_b32 {vJ}, {vJ}, {vZ[0]}, vcc")
    a(f"ds_write_b32 {vT0}, {vJ}")
    a.label("K_S_COMMON")
    a(f"s_mov_b32 {sMaskE}, {'0' if opt.get('noE',0) else '0xffffffe0'}")
    a(f"s_mov_b32 {s128}, {0 if opt.get('noH',0) else 128}")
    a(f"s_mov_b32 {sK}, {KW}")
    a(f"s_mov_b32 {s3125}, 3125")
    a(f"s_mov_b32 {sMark}, {MARK}")
    a(f"s_mov_b32 {sCAPq}, {CAPX//4}")
    a(f"s_mov_b32 {sMode}, 0")
    a(f"s_mov_b32 {sChunk}, 0")
    a(f"v_mov_b32 {vOne}, 1")
    a(f"v_mov_b32 {v511}, 511")
    a(f"v_mov_b32 {aL1s}, 0x40000000")
    a(f"v_lshrrev_b32 {vT2}, 5, {vL}")
    a(f"v_bfe_u32 {vT0}, {vL}, 2, 2")
    a(f"v_lshl_add_u32 {vT0}, {vT2}, 3, {vT0}")
    a(f"v_lshlrev_b32 {vTRW}, 7, {vT0}")
    a(f"v_bfe_u32 {vT0}, {vL}, 4, 1")
    a(f"v_lshl_add_u32 {vTRW}, {vT0}, 5, {vTRW}")
    a(f"v_and_b32 {vT0}, 3, {vL}")
    a(f"v_lshl_add_u32 {vTRW}, {vT0}, 3, {vTRW}")
    a.c("LDS init: cell image = sentinel, counters = 0")
    for i in range(4): a(f"v_mov_b32 {WH[i]}, -1")
    a(f"v_lshlrev_b32 {vT0}, 6, v0")
    a(f"v_add_u32 {vT0}, {L_HST}, {vT0}")
    for i in range(4): a(f"ds_write_b128 {vT0}, {WH[0:4]} offset:{16*i}")
    a(f"v_and_b32 {vT0}, 0xff, v0")
    a(f"v_lshlrev_b32 {vT0}, 2, {vT0}")
    a(f"ds_write_b32 {vT0}, {vZ[0]} offset:{L_RES}")
    srd(a,sW,"s80","s81",WSB(opt))
    srd(a,sP,"s66","s67",N*6)
    srd(a,sE,"s68","s69",E*32)
    srd(a,sO,"s76","s77",OUT_BYTES)
    srd(a,sT4c,"s78","s79",256)
    a(f"s_add_u32 {sB[0]}, s80, {BPT}")
    a(f"s_addc_u32 {sB[1]}, s81, 0")
    a(f"s_and_b32 {sB[1]}, {sB[1]}, 0xffff")
    a(f"s_mov_b32 {sB[2]}, {N*128}")
    a(f"s_mov_b32 {sB[3]}, 0x20000")
    a.c("workgroup 0 publishes this launch's hand-off tag")
    a(f"s_or_b32 {sTmp}, s2, {sWave}")
    a(f"s_cmp_lg_u32 {sTmp}, 0")
    a("s_cbranch_scc1 K_S_NOTAG")
    a("s_memrealtime s[100:101]")
    a("s_waitcnt lgkmcnt(0)")
    a("s_or_b32 s100, s100, 1")
    a(f"v_mov_b32 {vT0}, s100")
    a(f"buffer_store_dword {vT0}, {vZ[0]}, {sT4c}, 0 offen sc1")
    a.label("K_S_NOTAG")
    a("s_waitcnt lgkmcnt(0)")
    a("s_barrier")
    a(f"s_mul_i32 {sTmp}, s2, {CH}")
    a(f"s_sub_u32 {sLim}, {E}, {sTmp}")
    a(f"s_min_u32 {sLim}, {sLim}, {CH}")
    B4=D2[0:7]; RC=M[0:7]; RK1=D2[8:15]
    def bin_edges(nrec, el_of, waitcnt, masked):
        if masked:
            for u in range(nrec):
                el_of(u,vT1)
                a(f"v_cmp_gt_u32 {sMask[u]}, {sLim}, {vT1}")
        if waitcnt is not None: a(f"s_waitcnt vmcnt({waitcnt})")
        stamp(a,opt,1)
        for u in range(nrec):
            d=DS_[u]; s_=SR_[u]
            a(f"v_mul_hi_u32 {vT2}, {d}, {sK}")
            el_of(u,vT1)
            a(f"v_lshl_or_b32 {RC[u]}, {s_}, 12, {vT1}")
            a(f"v_lshrrev_b32 {B4[u]}, 1, {vT2}")
            a(f"v_mad_u32_u24 {vT3}, {vT2}, {s3125}, {v511}")
            a(f"v_and_b32 {B4[u]}, 0x3fc, {B4[u]}")
            a(f"v_lshrrev_b32 {vT3}, 9, {vT3}")
            if masked: a(f"s_mov_b64 exec, {sMask[u]}")
            a(f"ds_add_rtn_u32 {RK1[u]}, {B4[u]}, {vOne} offset:{L_RES}")
            if masked: a("s_mov_b64 exec, -1")
            a(f"v_sub_u32 {vT3}, {d}, {vT3}")
            a(f"v_and_b32 {vT2}, 7, {vT2}")
            a(f"v_lshl_or_b32 {vT3}, {vT2}, 3, {vT3}")
            a(f"v_lshl_or_b32 {RC[u]}, {vT3}, 26, {RC[u]}")
        a(f"v_mov_b32 {vT3}, {L_HST}")
        a(f"v_mov_b32 {vJ}, {L_NRES+4}")
        for u in range(nrec):
            if not masked: a(f"s_waitcnt lgkmcnt({nrec-1})")
            elif u==0: a("s_waitcnt lgkmcnt(0)")
            a(f"v_cmp_gt_u32 vcc, 32, {RK1[u]}")
            a(f"v_lshlrev_b32 {vT1}, 3, {RK1[u]}")
            a(f"v_lshrrev_b32 {vT2}, 2, {RK1[u]}")
            a(f"v_and_b32 {vT1}, 0x78, {vT1}")
            a(f"v_lshl_add_u32 {AD[0]}, {B4[u]}, 5, {vT3}")
            a(f"v_and_or_b32 {vT1}, {vT2}, 4, {vT1}")
            a(f"v_add_u32 {vT1}, {vT1}, {AD[0]}")
            a(f"v_cndmask_b32 {vT1}, {vJ}, {vT1}, vcc")
            if masked: a(f"s_mov_b64 exec, {sMask[u]}")
            a(f"ds_write_b32 {vT1}, {RC[u]}")
            if masked: a("s_mov_b64 exec, -1")
    a.c("wait for this wave's edges (younger loads: 12 for waves 5,6; 2 for wave 4; the tag store of workgroup 0)")
    a(f"s_mul_i32 {sTmp}, {sWave}, 384")
    a(f"v_lshl_add_u32 {vT0}, {vL}, 1, {sTmp}")
    a(f"s_cmp_eq_u32 {sWave}, 4")
    a("s_cbranch_scc1 K_S_WT4")
    a(f"s_sub_u32 {sTmp}, {sWave}, 5")
    a(f"s_cmp_lt_u32 {sTmp}, 2")
    a("s_cbranch_scc1 K_S_WT56")
    a("s_waitcnt vmcnt(0)")
    a("s_branch K_S_WTD")
    a.label("K_S_WT4")
    a("s_waitcnt vmcnt(2)")
    a("s_branch K_S_WTD")
    a.label("K_S_WT56")
    a("s_waitcnt vmcnt(12)")
    a.label("K_S_WTD")
    def el6(u,r): a(f"v_add_u32 {r}, {128*(u>>1)+(u&1)}, {vT0}")
    def el7(u,r):
        if u<6: el6(u,r)
        else: a(f"v_add_u32 {r}, 3072, {vL}")
    a(f"s_cmp_lt_u32 {sLim}, {CH}")
    a("s_cbranch_scc1 K_S_APPM")
    a(f"s_cmp_eq_u32 {sWave}, 7")
    a("s_cbranch_scc1 K_S_APP7")
    bin_edges(6, el6, None, False)
    a("s_branch K_S_APPD")
    a.label("K_S_APP7")
    bin_edges(7, el7, None, False)
    a("s_branch K_S_APPD")
    a.label("K_S_APPM")
    a(f"s_cmp_eq_u32 {sWave}, 7")
    a("s_cbranch_scc1 K_S_APPM7")
    bin_edges(6, el6, None, True)
    a("s_branch K_S_APPD")
    a.label("K_S_APPM7")
    bin_edges(7, el7, None, True)
    a.label("K_S_APPD")
    load_hwin()
    a(f"s_cmp_lg_u32 {sWave}, 7")
    a("s_cbranch_scc1 K_S_NORAW")
    a.c("wave 7: raw w_e -> LDS (needed after barrier C)")
    for i in range(19):
        a(f"s_mov_b32 {sTmp}, {L_RAWW+i*1024}")
        a(f"s_mov_b32 m0, {sTmp}")
        a(f"s_mov_b32 {sTmp2}, {i*1024}")
        a(f"buffer_load_dwordx4 {vL16}, {sT4b}, {sTmp2} offen lds")
    a.label("K_S_NORAW")
    a.c("waves 0, 5, 6 fetch the hand-off tag")
    a(f"s_lshl_b32 {sTmp}, 1, {sWave}")
    a(f"s_and_b32 {sTmp}, {sTmp}, 0x61")
    a("s_cbranch_scc0 K_S_NOTAG2")
    a(f"buffer_load_dword {aE}, {vZ[0]}, {sT4c}, 0 offen sc1")
    a.label("K_S_NOTAG2")
    a("s_waitcnt lgkmcnt(0)")
    stamp(a,opt,14) if not opt.get('dbgfill',0) else None
    a("s_barrier")
    stamp(a,opt,2)
    def setup_static():
        a(f"v_and_b32 {vT1}, 31, {vL}")
        a(f"v_lshrrev_b32 {vT2}, 5, {vL}")
        a(f"v_lshlrev_b32 {vT0}, 3, {vT2}")
        a(f"v_sub_u32 {vT0}, {vT1}, {vT0}")
        a(f"v_mov_b32 {AD[2]}, 0x3f80")
        a(f"v_mov_b32 {AD[3]}, 0x3f800000")
        for sp in range(2):
            for r in range(4):
                k0=16*sp+2*r
                a(f"v_cmp_eq_u32 vcc, {k0}, {vT0}")
                a(f"v_cmp_eq_u32 {sSave}, {k0+1}, {vT0}")
                a("s_nop 0")
                a(f"v_cndmask_b32 {ID[4*sp+r]}, {vZ[0]}, {AD[2]}, vcc")
                a(f"v_cndmask_b32 {ID[4*sp+r]}, {ID[4*sp+r]}, {AD[3]}, {sSave}")
        a(f"v_cmp_lt_u32 vcc, 31, {vL}")
        a("s_nop 1")
        for i in range(1,4): a(f"v_mov_b32 {ONE[i]}, 0")
        a(f"v_cndmask_b32 {ONE[0]}, {AD[2]}, {vZ[0]}, vcc")
        for i in range(3):
            a(f"v_mov_b32 {PS[i]}, 0"); a(f"v_mov_b32 {PD[i]}, 0")
        a.c("static per-lane addresses of the main loop (window offsets are added after the assignment)")
        a(f"v_and_b32 {vT1}, 31, {vL}")
        a(f"v_lshrrev_b32 {vT2}, 5, {vL}")
        a(f"v_mov_b32 {vT3}, {L_A2}")
        a(f"v_lshl_add_u32 {vE64}, {vT1}, 6, {vT3}")
        a(f"v_bfe_u32 {vT0}, {vL}, 2, 2")
        a(f"v_lshl_add_u32 {vT0}, {vT2}, 2, {vT0}")
        a(f"v_lshl_add_u32 {vTR}, {vT0}, 6, {vT3}")
        a(f"v_bfe_u32 {vT0}, {vL}, 4, 1")
        a(f"v_lshl_add_u32 {vTR}, {vT0}, 5, {vTR}")
        a(f"v_and_b32 {vT0}, 3, {vL}")
        a(f"v_lshl_add_u32 {vTR}, {vT0}, 3, {vTR}")
        a(f"s_lshl_b32 {sHST}, {sWave}, 12")
        a(f"s_add_u32 {sHST}, {sHST}, {L_HST}")
        for i in range(4): a(f"s_add_u32 {sM0[i]}, {sHST}, {1024*i}")
        a(f"v_and_b32 {vT0}, 3, {vT1}")
        a(f"v_bfe_u32 {vT3}, {vT1}, 4, 1")
        a(f"v_lshl_or_b32 {vT3}, {vT3}, 2, {vT0}")
        a(f"v_lshlrev_b32 {vT0}, 3, {vT0}")
        a(f"v_lshrrev_b32 {vJ}, 2, {vT1}")
        a(f"v_add_u32 {vT0}, {vT0}, {vJ}")
        a(f"v_lshl_add_u32 {vT0}, {vT0}, 7, {sHST}")
        for s_ in range(4):
            a(f"v_add_u32 {vJ}, {2*s_}, {vT2}")
            a(f"v_xor_b32 {vJ}, {vJ}, {vT3}")
            a(f"v_lshl_add_u32 {vHA[s_]}, {vJ}, 4, {vT0}")
        a(f"v_and_b32 {vT0}, 7, {vL}")
        a(f"v_lshlrev_b32 {vT3}, 2, {vT2}")
        a(f"v_xor_b32 {vT0}, {vT0}, {vT3}")
        for i in range(4):
            a(f"v_xor_b32 {vJ}, {i}, {vT0}")
            a(f"v_lshlrev_b32 {vKD[i]}, 4, {vJ}")
        a(f"s_mov_b32 {sCAP}, {CAP}")
        a(f"s_sub_u32 {sTgt}, 11, {sWave}")
        a(f"s_cmp_lt_u32 {sWave}, 4")
        a(f"s_cselect_b32 {sTgt}, {sWave}, {sTgt}")
        a(f"v_lshrrev_b32 {aPS}, 3, {vL}")
        a(f"v_and_b32 {aPD}, 7, {vL}")
        a(f"v_lshlrev_b32 {aOH}, 2, {aPS}")
        a(f"v_lshlrev_b32 {SS}, 2, {aPD}")
    a(f"s_cmp_gt_u32 {sWave}, 3")
    a("s_cbranch_scc1 K_S_NOCOPY")
    a.c("waves 0..3 copy the cell image out: eight 16 B pieces per thread")
    a(f"v_lshlrev_b32 {vT0}, 4, v0")
    a(f"v_add_u32 {vT0}, {L_HST}, {vT0}")
    a(f"v_lshrrev_b32 {vT1}, 3, v0")
    a(f"v_lshlrev_b32 {vT2}, 2, {vT1}")
    CP=[D1[4*k:4*k+4] for k in range(8)]
    for k in range(4):
        a(f"ds_read_b128 {CP[k]}, {vT0} offset:{4096*k}")
        a(f"ds_read_b32 {D2[k]}, {vT2} offset:{L_RES+128*k}")
    a(f"v_and_b32 {vT3}, 7, v0")
    a(f"v_cmp_eq_u32 vcc, 0, {vT3}")
    a(f"v_mov_b32 {vJ}, -1")
    a(f"v_lshlrev_b32 {vT1}, 15, {vT1}")
    a(f"v_cndmask_b32_e64 {AD[1]}, -1, -2, vcc")
    a(f"v_lshl_add_u32 {vT1}, {vT3}, 4, {vT1}")
    a(f"s_lshl_b32 {sTmp}, s2, 7")
    for k in range(8):
        if k<4:
            a(f"ds_read_b128 {CP[k+4]}, {vT0} offset:{4096*(k+4)}")
            a(f"ds_read_b32 {D2[k+4]}, {vT2} offset:{L_RES+128*(k+4)}")
            a("s_waitcnt lgkmcnt(8)")
        else:
            a(f"s_waitcnt lgkmcnt({2*(7-k)})")
        a(f"v_cmp_lt_u32 vcc, 32, {D2[k]}")
        a(f"s_add_u32 {sTmp2}, {sTmp}, {k*32*32768}")
        a("s_nop 0")
        a(f"v_cndmask_b32 {CP[k][0]}, {CP[k][0]}, {AD[1]}, vcc")
        for i in range(1,4): a(f"v_cndmask_b32 {CP[k][i]}, {CP[k][i]}, {vJ}, vcc")
        a(f"buffer_store_dwordx4 {CP[k]}, {vT1}, {sW}, {sTmp2} offen{ST}")
    a("s_branch K_S_STATIC")
    a.label("K_S_NOCOPY")
    a(f"s_sub_u32 {sTmp}, {sWave}, 5")
    a(f"s_cmp_lt_u32 {sTmp}, 2")
    a("s_cbranch_scc0 K_S_POS")
    a.c("waves 5,6: source-node table B' = -log2e * h @ W2 for 32 nodes")
    a(f"v_add_u32 {vT0}, {sC}, {vTRW}")
    a("s_waitcnt vmcnt(5)")
    for s_ in range(4):
        for x in range(2):
            for th in range(2):
                r=(s_*2+x)*4+2*th
                a(f"ds_read_b64_tr_b16 {D1[r:r+2]}, {vT0} offset:{s_*2048+th*512+x*64}")
    a("s_waitcnt lgkmcnt(0)")
    for x in range(2):
        for s_ in range(4):
            r=(s_*2+x)*4
            mfma(a,D2[16*x:16*x+16],D1[r:r+4],HA[4*s_:4*s_+4],"0" if s_==0 else D2[16*x:16*x+16])
    a(f"s_mul_i32 {sTmp}, {sI}, {32*144}")
    a(f"s_add_u32 {sTmp}, {sTmp}, {L_BST}")
    a(f"v_and_b32 {vT1}, 31, {vL}")
    a(f"v_mul_u32_u24 {vT1}, 144, {vT1}")
    a(f"v_lshrrev_b32 {vT2}, 5, {vL}")
    a(f"v_lshl_add_u32 {vT1}, {vT2}, 3, {vT1}")
    a(f"v_add_u32 {vT1}, {sTmp}, {vT1}")
    a(f"v_lshrrev_b32 {vT2}, 3, {vL}")
    a(f"v_mul_u32_u24 {vT3}, 144, {vT2}")
    a(f"v_and_b32 {vJ}, 7, {vL}")
    a(f"v_lshl_add_u32 {vT3}, {vJ}, 4, {vT3}")
    a(f"v_add_u32 {vT3}, {sTmp}, {vT3}")
    a(f"s_mov_b32 {sTmp2}, {NEG_LOG2E}")
    a.nop(4)
    for x in range(2):
        for q in range(16): a(f"v_mul_f32 {D2[16*x+q]}, {sTmp2}, {D2[16*x+q]}")
        for qq in range(4):
            b=16*x+4*qq
            a(f"v_cvt_pk_bf16_f32 {E01[0]}, {D2[b]}, {D2[b+1]}")
            a(f"v_cvt_pk_bf16_f32 {E01[1]}, {D2[b+2]}, {D2[b+3]}")
            a(f"ds_write_b64 {vT1}, {E01} offset:{x*64+qq*16}")
            a("s_nop 0")
    for i in range(4): a(f"ds_read_b128 {D1[4*i:4*i+4]}, {vT3} offset:{i*8*144}")
    a(f"s_lshl_b32 {sTmp2}, {sI}, 5")
    a(f"v_add_u32 {vT2}, {sTmp2}, {vT2}")
    a(f"s_mul_i32 {sTmp}, s2, {NPW}")
    a(f"v_add_u32 {vT0}, {sTmp}, {vT2}")
    a(f"v_lshlrev_b32 {vT1}, 7, {vT0}")
    a(f"v_lshl_add_u32 {vT1}, {vJ}, 4, {vT1}")
    a(f"v_mov_b32 {vJ}, 0x40000000")
    a("s_waitcnt lgkmcnt(0)")
    for i in range(4):
        a(f"v_add_u32 {vT3}, {8*i}, {vT2}")
        a(f"v_cmp_gt_u32 vcc, {NPW}, {vT3}")
        a(f"v_add_u32 {AD[0]}, {1024*i}, {vT1}")
        a("s_nop 0")
        a(f"v_cndmask_b32 {AD[0]}, {vJ}, {AD[0]}, vcc")
        a(f"buffer_store_dwordx4 {D1[4*i:4*i+4]}, {AD[0]}, {sB}, 0 offen{ST}")
    a("s_waitcnt vmcnt(4)")
    a("s_branch K_S_STATIC")
    a.label("K_S_POS")
    a.label("K_S_STATIC")
    setup_static()
    a.c("waves 0..3: every cell store has left; waves 4, 7: raw w_e / window rows landed; waves 5, 6 signal their rows later")
    a(f"s_sub_u32 {sTmp}, {sWave}, 5")
    a(f"s_cmp_lt_u32 {sTmp}, 2")
    a("s_cbranch_scc1 K_S_PREC")
    a("s_waitcnt vmcnt(0)")
    a.label("K_S_PREC")
    a("s_waitcnt lgkmcnt(0)")
    stamp(a,opt,15) if not opt.get('dbgfill',0) else None
    a("s_barrier")
    stamp(a,opt,3)
    def have_tag(lbl):
        a(f"s_mov_b32 {sPoll}, 0")
        a.label(lbl)
        a(f"v_readfirstlane_b32 {sNonce}, {aE}")
        a("s_nop 3")
        a(f"s_cmp_lg_u32 {sNonce}, 0")
        a(f"s_cbranch_scc1 {lbl}_OK")
        a(f"s_add_u32 {sPoll}, {sPoll}, 1")
        a(f"s_cmp_gt_u32 {sPoll}, 200000")
        a(f"s_cbranch_scc1 {lbl}_OK")
        a("s_sleep 2")
        a(f"buffer_load_dword {aE}, {vZ[0]}, {sT4c}, 0 offen sc1")
        a("s_waitcnt vmcnt(0)")
        a(f"s_branch {lbl}")
        a.label(f"{lbl}_OK")
    a(f"s_cmp_lg_u32 {sWave}, 0")
    a("s_cbranch_scc1 K_G_NOT0")
    a.c("wave 0: signal this workgroup's cells, publish the tag to the workgroup")
    have_tag("K_G_TAG")
    a(f"s_lshl_b32 {sTmp}, s2, 4")
    a(f"s_add_u32 {sTmp}, {sTmp}, {FLG}")
    a(f"v_mov_b32 {vT0}, {sNonce}")
    a(f"buffer_store_dword {vT0}, {vZ[0]}, {sW}, {sTmp} offen sc1")
    a(f"ds_write_b32 {vZ[0]}, {vT0} offset:{L_NRES+8}")
    a("s_branch K_G_SETUP")
    a.label("K_G_NOT0")
    a(f"s_cmp_lt_u32 {sWave}, 4")
    a("s_cbranch_scc1 K_G_WH")
    a(f"s_sub_u32 {sTmp}, {sWave}, 5")
    a(f"s_cmp_lt_u32 {sTmp}, 2")
    a("s_cbranch_scc1 K_G_SETUP")
    a.c("waves 4, 7: pos table -> LDS (37 pieces each)")
    a(f"s_cmp_eq_u32 {sWave}, 7")
    a(f"s_cselect_b32 {sI}, {37*1024}, 0")
    for i in range(37):
        a(f"s_add_u32 {sTmp}, {sI}, {i*1024}")
        a(f"s_add_u32 {sTmp2}, {sTmp}, {L_POS}")
        a(f"s_mov_b32 m0, {sTmp2}")
        a("s_nop 0")
        a(f"buffer_load_dwordx4 {vL16}, {sP}, {sTmp} offen lds")
    a("s_branch K_G_SETUP")
    a.label("K_G_WH")
    a.c("waves 1..3: raw w_h -> staging area")
    a("s_load_dwordx2 s[64:65], s[0:1], 56")
    a(f"s_sub_u32 {sI}, {sWave}, 1")
    a("s_waitcnt lgkmcnt(0)")
    srd(a,sT4b,"s64","s65",128*128)
    for k in range(6):
        a(f"s_add_u32 {sTmp}, {sI}, {3*k}")
        a(f"s_min_u32 {sTmp}, {sTmp}, 15")
        a(f"s_lshl_b32 {sTmp}, {sTmp}, 10")
        a(f"s_add_u32 {sTmp2}, {sTmp}, {L_HST}")
        a(f"s_mov_b32 m0, {sTmp2}")
        a("s_nop 0")
        a(f"buffer_load_dwordx4 {vL16}, {sT4b}, {sTmp} offen lds")
    a.label("K_G_SETUP")
    a.c("operands from raw w_e: W1 (for A'), W4', wd'")
    W1=D2
    a(f"v_add_u32 {vT0}, {L_RAWW}, {vTRW}")
    for s_ in range(4):
        for x in range(2):
            for th in range(2):
                r=(s_*2+x)*4+2*th
                a(f"ds_read_b64_tr_b16 {W1[r:r+2]}, {vT0} offset:{s_*2048+th*512+x*64}")
    W4R=HA[0:8]
    for x in range(2):
        for th in range(2):
            a(f"ds_read_b64_tr_b16 {W4R[4*x+2*th:4*x+2*th+2]}, {vT0} offset:{129*128+th*512+x*64}")
    WD=M[0:2]
    a(f"v_mov_b32 {WD[0]}, 0")
    a(f"v_mov_b32 {WD[1]}, 0")
    a(f"v_and_b32 {vT1}, 31, {vL}")
    a(f"v_lshlrev_b32 {vT2}, 1, {vT1}")
    a(f"v_add_u32 {vT2}, {L_RAWW+128*128}, {vT2}")
    a(f"ds_read_u16_d16_hi {WD[0]}, {vT2}")
    a(f"ds_read_u16_d16_hi {WD[1]}, {vT2} offset:64")
    a("s_waitcnt lgkmcnt(0)")
    for x in range(2):
        for s_ in range(4):
            mfma(a,D1[16*x:16*x+16],HW[4*s_:4*s_+4],W1[(s_*2+x)*4:(s_*2+x)*4+4],"0" if s_==0 else D1[16*x:16*x+16])
    a(f"s_mov_b32 {sTmp}, {NEG_LOG2E}")
    for i in range(8):
        a(f"v_lshlrev_b32 {vT0}, 16, {W4R[i]}")
        a(f"v_and_b32 {vT2}, 0xffff0000, {W4R[i]}")
        a(f"v_mul_f32 {vT0}, {sTmp}, {vT0}")
        a(f"v_mul_f32 {vT2}, {sTmp}, {vT2}")
        a(f"v_cvt_pk_bf16_f32 {WE[i]}, {vT0}, {vT2}")
    a(f"v_cmp_lt_u32 vcc, 31, {vL}")
    for x in range(2):
        a(f"v_mul_f32 {WD[x]}, {sTmp}, {WD[x]}")
        a(f"v_cvt_pk_bf16_f32 {vT0}, {WD[x]}, {WD[x]}")
        a(f"v_and_b32 {vT0}, 0xffff0000, {vT0}")
        a(f"v_sub_f32 {vT2}, {WD[x]}, {vT0}")
        a(f"v_cvt_pk_bf16_f32 {vT2}, {vT2}, {vT2}")
        a(f"v_and_b32 {vT2}, 0xffff0000, {vT2}")
        a(f"v_cndmask_b32 {WD[x]}, {vT0}, {vT2}, vcc")
    a(f"s_cmp_lg_u32 {sWave}, 0")
    a("s_cbranch_scc1 K_G_NOEARLY")
    a(f"s_mov_b32 {sTmp2}, {FLG}")
    for k in range(4): a(f"buffer_load_dword {AD[k]}, {vL16}, {sW}, {sTmp2} offen offset:{1024*k} sc1")
    a.label("K_G_NOEARLY")
    a(f"v_cmp_lt_u32 vcc, 31, {vL}")
    a(f"v_mov_b32 {vJ}, 0xffff")
    for x in range(2):
        for r in range(4):
            q0,q1=D1[16*x+2*r],D1[16*x+2*r+1]
            a(f"v_mul_f32 {q0}, {sTmp}, {q0}")
            a(f"v_mul_f32 {q1}, {sTmp}, {q1}")
            a(f"v_cvt_pk_bf16_f32 {vT0}, {q0}, {q1}")
            a(f"v_lshlrev_b32 {vT1}, 16, {vT0}")
            a(f"v_and_b32 {vT2}, 0xffff0000, {vT0}")
            a(f"v_sub_f32 {vT1}, {q0}, {vT1}")
            a(f"v_sub_f32 {vT2}, {q1}, {vT2}")
            a(f"v_cvt_pk_bf16_f32 {vT1}, {vT1}, {vT2}")
            a(f"v_cndmask_b32 {WA[4*x+r]}, {vT0}, {vT1}, vcc")
        a(f"v_bfi_b32 {WA[4*x+3]}, {vJ}, {WA[4*x+3]}, {WD[x]}")
    a(f"s_lshl_b32 {sTmp}, {sWave}, 11")
    a(f"s_add_u32 {sTmp}, {sTmp}, {L_A2}")
    a(f"v_lshl_add_u32 {vT0}, {vL}, 5, {sTmp}")
    a(f"ds_write_b128 {vT0}, {WA[0:4]}")
    a(f"ds_write_b128 {vT0}, {WA[4:8]} offset:16")
    for i in range(32): a(f"v_mov_b32 {D2[i]}, 0")
    a(f"s_sub_u32 {sTmp}, {sWave}, 5")
    a(f"s_cmp_lt_u32 {sTmp}, 2")
    a("s_cbranch_scc0 K_G_NOFLG2")
    a.c("waves 5,6: their rows have left -> signal them")
    a("s_waitcnt vmcnt(0)")
    have_tag("K_G_TAG2")
    a(f"s_lshl_b32 {sTmp}, s2, 1")
    a(f"s_add_u32 {sTmp}, {sTmp}, {sWave}")
    a(f"s_sub_u32 {sTmp}, {sTmp}, 5")
    a(f"s_lshl_b32 {sTmp}, {sTmp}, 4")
    a(f"s_add_u32 {sTmp}, {sTmp}, {FLG2}")
    a(f"v_mov_b32 {vT0}, {sNonce}")
    a(f"buffer_store_dword {vT0}, {vZ[0]}, {sW}, {sTmp} offen sc1")
    a.label("K_G_NOFLG2")
    a(f"s_cmp_lg_u32 {sWave}, 0")
    a("s_cbranch_scc1 K_G_WAIT")
    a.c("wave 0: wait for all 256 hand-offs (the first round of flag loads is already in flight)")
    a(f"s_mov_b32 {sTmp2}, {FLG}")
    a("s_branch K_G_POLL1")
    a.label("K_G_POLL")
    for k in range(4): a(f"buffer_load_dword {AD[k]}, {vL16}, {sW}, {sTmp2} offen offset:{1024*k} sc1")
    a.label("K_G_POLL1")
    a("s_waitcnt vmcnt(0)")
    a(f"v_cmp_eq_u32 {sAny}, {sNonce}, {AD[0]}")
    a(f"v_cmp_eq_u32 {sSave}, {sNonce}, {AD[1]}")
    a(f"v_cmp_eq_u32 vcc, {sNonce}, {AD[2]}")
    a("s_nop 1")
    a(f"s_and_b64 {sAny}, {sAny}, {sSave}")
    a(f"v_cmp_eq_u32 {sSave}, {sNonce}, {AD[3]}")
    a(f"s_and_b64 {sAny}, {sAny}, vcc")
    a("s_nop 1")
    a(f"s_and_b64 {sAny}, {sAny}, {sSave}")
    a(f"s_cmp_eq_u64 {sAny}, -1")
    a("s_cbranch_scc1 K_G_WAIT")
    a(f"s_add_u32 {sPoll}, {sPoll}, 1")
    a(f"s_cmp_lt_u32 {sPoll}, 200000")
    a("s_cbranch_scc1 K_G_POLL")
    a.label("K_G_WAIT")
    a.c("waves 4 and 7 keep their pos pieces in flight: their cell loads return behind them")
    a(f"s_lshl_b32 {sTmp}, 1, {sWave}")
    a(f"s_and_b32 {sTmp}, {sTmp}, 0x90")
    a("s_cbranch_scc1 K_G_WAIT47")
    a("s_waitcnt vmcnt(0)")
    a.label("K_G_WAIT47")
    a("s_waitcnt lgkmcnt(0)")
    for _ in range(opt.get('delay',0)): a("s_sleep 32")
    a("s_barrier")
    stamp(a,opt,4)
    RECP=D1[0:16]; REC=[RECP[2*i] for i in range(8)]+[RECP[2*i+1] for i in range(8)]; WAD=D1[16:32]; RK=HA
    a.c("cell records of this bin: pair s holds slots m and 16+m (m = l&15) of cell 32s+4v+(l>>4)")
    a(f"s_lshl_b32 {sTmp}, s2, 15")
    a(f"s_lshl_b32 {sTmp2}, {sWave}, 9")
    a(f"s_add_u32 {sTmp}, {sTmp}, {sTmp2}")
    a(f"v_lshl_add_u32 {vT0}, {vL}, 3, {sTmp}")
    ROT=opt.get('rot',0)
    if ROT==1: a(f"s_getreg_b32 {sRot}, hwreg(HW_REG_XCC_ID, 0, 4)")
    elif ROT==2: a(f"s_and_b32 {sRot}, s2, 7")
    elif ROT==3:
        a(f"s_getreg_b32 {sRot}, hwreg(HW_REG_XCC_ID, 0, 4)")
        a(f"s_and_b32 {sRot}, {sRot}, 3")
        a(f"s_lshl_b32 {sRot}, {sRot}, 1")
    else: a(f"s_mov_b32 {sRot}, 0")
    def pair_index(dst,s_):
        a(f"s_add_u32 {dst}, {sRot}, {s_}")
        a(f"s_and_b32 {dst}, {dst}, 7")
    for s_ in range(8):
        pair_index(sTmp,s_)
        a(f"s_lshl_b32 {sTmp}, {sTmp}, 12")
        a(f"buffer_load_dwordx2 {RECP[2*s_:2*s_+2]}, {vT0}, {sW}, {sTmp} offen{LD}")
    a(f"v_lshlrev_b32 {vT2}, 1, {vL}")
    a(f"v_and_b32 {vT2}, 62, {vT2}")
    a("s_load_dwordx2 s[98:99], s[0:1], 48")
    a.c("node-update weights (transposed reads of raw w_h), waves 0..3 use them")
    a(f"s_and_b32 {sTmp}, {sWave}, 1")
    a(f"s_lshl_b32 {sTmp}, {sTmp}, 6")
    a(f"s_add_u32 {sTmp}, {sTmp}, {L_HST}")
    a(f"v_add_u32 {vT1}, {sTmp}, {vTRW}")
    for s_ in range(8):
        for th in range(2):
            a(f"ds_read_b64_tr_b16 {WH[4*s_+2*th:4*s_+2*th+2]}, {vT1} offset:{s_*2048+th*512}")
            if (2*s_+th)==7: a("s_waitcnt lgkmcnt(0)")
    srd(a,sT4,"s98","s99",128)
    a(f"v_mov_b32 {WX[0]}, 0")
    a(f"v_mov_b32 {WX[1]}, 0")
    a(f"buffer_load_short_d16_hi {WX[0]}, {vT2}, {sT4}, 0 offen")
    a(f"buffer_load_short_d16_hi {WX[1]}, {vT2}, {sT4}, 0 offen offset:64")
    a("s_waitcnt vmcnt(2)")
    stamp(a,opt,5)
    a(f"s_mov_b64 {sAny}, 0")
    for s_ in range(16):
        a(f"v_cmp_gt_u32 {sMask[s_]}, {sMark}, {REC[s_]}")
        if s_<8:
            a(f"v_cmp_eq_u32 vcc, {sMark}, {REC[s_]}")
        a(f"v_lshrrev_b32 {WAD[s_]}, 27, {REC[s_]}")
        a(f"v_and_b32 {WAD[s_]}, 0x1c, {WAD[s_]}")
        if s_<8: a(f"s_or_b64 {sAny}, {sAny}, vcc")
    order=[x for p in range(8) for x in (p,8+p)]
    for n_,s_ in enumerate(order):
        a(f"s_mov_b64 exec, {sMask[s_]}")
        if s_>=8: a(f"s_cbranch_execz K2_A{s_}")
        a(f"ds_add_rtn_u32 {RK[s_]}, {WAD[s_]}, {vOne} offset:{L_CNT}")
        if s_>=8: a.label(f"K2_A{s_}")
        if n_==7:
            a("s_waitcnt lgkmcnt(4)")
    a("s_mov_b64 exec, -1")
    FL=A2R
    def flg2_loads():
        a(f"s_mov_b32 {sTmp2}, {FLG2}")
        for k in range(4): a(f"buffer_load_dword {FL[k]}, {vL16}, {sW}, {sTmp2} offen offset:{1024*k} sc1")
        a(f"s_mov_b32 {sTmp2}, {FLG2+4096}")
        for k in range(4): a(f"buffer_load_dword {FL[4+k]}, {vL16}, {sW}, {sTmp2} offen offset:{1024*k} sc1")
    a(f"s_cmp_lg_u32 {sWave}, 1")
    a("s_cbranch_scc1 K2_NOF2A")
    a.c("wave 1: flags of the source-node table (checked before barrier 2)")
    flg2_loads()
    a(f"ds_read_b32 {aE}, {vZ[0]} offset:{L_NRES+8}")
    a.label("K2_NOF2A")
    a(f"s_lshl_b32 {sTmp}, {sWave}, 2")
    a(f"v_lshrrev_b32 {vT0}, 4, {vL}")
    a(f"v_add_u32 {vT0}, {sTmp}, {vT0}")
    a(f"v_mul_u32_u24 {vT0}, {CH}, {vT0}")
    a(f"v_mov_b32 {vT1}, {L_L0}")
    a(f"v_mov_b32 {vT2}, {L_L1}")
    a("s_waitcnt lgkmcnt(0)")
    for s_ in order:
        a(f"s_mov_b64 exec, {sMask[s_]}")
        if s_>=8: a(f"s_cbranch_execz K2_B{s_}")
        pair_index(sTmp,s_&7)
        a(f"s_mul_i32 {sTmp}, {sTmp}, {32*CH}")
        a(f"v_min_u32 {RK[s_]}, {CAPX-1}, {RK[s_]}")
        a(f"v_and_b32 {vT3}, 0xfff, {REC[s_]}")
        a(f"v_mad_u32_u24 {RK[s_]}, {WAD[s_]}, {sCAPq}, {RK[s_]}")
        a(f"v_add3_u32 {vT3}, {vT3}, {vT0}, {sTmp}")
        a(f"v_bfe_u32 {vJ}, {REC[s_]}, 26, 3")
        a(f"v_lshl_add_u32 {AD[0]}, {RK[s_]}, 2, {vT1}")
        a(f"v_lshl_or_b32 {vT3}, {vT3}, 5, {vJ}")
        a(f"v_lshl_add_u32 {AD[1]}, {RK[s_]}, 1, {vT2}")
        a(f"v_bfe_u32 {vJ}, {REC[s_]}, 12, 14")
        a(f"ds_write_b32 {AD[0]}, {vT3}")
        a(f"ds_write_b16 {AD[1]}, {vJ}")
        if s_>=8: a.label(f"K2_B{s_}")
    a("s_mov_b64 exec, -1")
    NE=opt.get('epf',0)
    if NE:
        a.c("L2 warm-up of the e_attr lines of the first records (speed only; results are never read)")
        a(f"s_lshl_b32 {sTmp}, {sWave}, 2")
        a(f"v_lshrrev_b32 {vT0}, 4, {vL}")
        a(f"v_add_u32 {vT0}, {sTmp}, {vT0}")
        a(f"v_mul_u32_u24 {vT0}, {CH}, {vT0}")
        a(f"v_mov_b32 {vT2}, 0x2000000")
        for k in range(NE):
            a(f"v_cmp_gt_u32 vcc, {sMark}, {REC[k]}")
            a(f"v_and_b32 {vT1}, 0xfff, {REC[k]}")
            pair_index(sTmp,k)
            a(f"s_mul_i32 {sTmp}, {sTmp}, {32*CH}")
            a(f"v_add3_u32 {vT1}, {vT1}, {vT0}, {sTmp}")
            a(f"v_cndmask_b32 {vT1}, {vT2}, {vT1}, vcc")
            a(f"v_lshlrev_b32 {vT1}, 5, {vT1}")
            a(f"buffer_load_dword {vDUM}, {vT1}, {sE}, 0 offen")
    a.c("overflowed cells -> rescan list (rare)")
    a(f"s_cmp_eq_u64 {sAny}, 0")
    a("s_cbranch_scc1 K2_NOMARK")
    a(f"v_lshrrev_b32 {vT0}, 4, {vL}")
    a(f"s_lshl_b32 {sTmp}, {sWave}, 2")
    a(f"v_add_u32 {vT0}, {sTmp}, {vT0}")
    a(f"v_mov_b32 {vT1}, {L_NRES}")
    for s_ in range(8):
        a(f"v_cmp_eq_u32 vcc, {sMark}, {REC[s_]}")
        a(f"s_and_saveexec_b64 {sSave}, vcc")
        a(f"s_cbranch_execz K2_MK{s_}")
        a(f"ds_add_rtn_u32 {vT2}, {vT1}, {vOne}")
        pair_index(sTmp,s_)
        a(f"s_lshl_b32 {sTmp}, {sTmp}, 5")
        a(f"v_add_u32 {vT3}, {sTmp}, {vT0}")
        a("s_waitcnt lgkmcnt(0)")
        a(f"v_lshlrev_b32 {vT2}, 2, {vT2}")
        a(f"ds_write_b32 {vT2}, {vT3} offset:{L_RES}")
        a.label(f"K2_MK{s_}")
        a(f"s_mov_b64 exec, {sSave}")
    a.label("K2_NOMARK")
    a("s_load_dwordx2 s[64:65], s[0:1], 0")
    a("s_waitcnt vmcnt(0) lgkmcnt(0)")
    a(f"s_cmp_lg_u32 {sWave}, 1")
    a("s_cbranch_scc1 K2_NOF2B")
    a(f"v_readfirstlane_b32 {sNonce}, {aE}")
    a(f"s_mov_b32 {sPoll}, 0")
    a.label("K2_F2CHK")
    a(f"v_cmp_eq_u32 {sAny}, {sNonce}, {FL[0]}")
    for k in range(1,8):
        a(f"v_cmp_eq_u32 vcc, {sNonce}, {FL[k]}")
        a("s_nop 1")
        a(f"s_and_b64 {sAny}, {sAny}, vcc")
    a(f"s_cmp_eq_u64 {sAny}, -1")
    a("s_cbranch_scc1 K2_NOF2B")
    a(f"s_add_u32 {sPoll}, {sPoll}, 1")
    a(f"s_cmp_gt_u32 {sPoll}, 200000")
    a("s_cbranch_scc1 K2_NOF2B")
    flg2_loads()
    a("s_waitcnt vmcnt(0)")
    a("s_branch K2_F2CHK")
    a.label("K2_NOF2B")
    srd(a,sHs,"s64","s65",N*128)
    a(f"s_mov_b32 {sTmp}, {NEG_LN2}")
    a(f"v_mul_f32 {WX[0]}, {sTmp}, {WX[0]}")
    a(f"v_mul_f32 {WX[1]}, {sTmp}, {WX[1]}")
    stamp(a,opt,6)
    a("s_barrier")
    stamp(a,opt,7)
    a.c("window sizes (lane = pair i,k) and the rescan count")
    a(f"v_mov_b32 {vT0}, {L_NRES}")
    a(f"ds_read_b32 {vT1}, {vT0}")
    a(f"ds_read_b32 {vT2}, {aOH} offset:{L_CNT}")
    a(f"ds_read_b32 {vT3}, {SS} offset:{L_CNT}")
    a("s_waitcnt lgkmcnt(0)")
    a(f"v_readfirstlane_b32 {sNR}, {vT1}")
    a(f"v_min_u32 {vT0}, 0xffffff, {vT2}")
    a(f"v_min_u32 {vJ}, 0xffffff, {vT3}")
    a(f"s_cmp_eq_u32 {sNR}, 0")
    a("s_cbranch_scc1 K2_CHECK")
    a(f"s_min_u32 {sNR}, {sNR}, 256")
    a(f"s_mov_b32 {sI}, 0")
    a.label("K2_RESCAN_I")
    a(f"s_lshl_b32 {sTmp}, {sI}, 2")
    a(f"s_add_u32 {sTmp}, {sTmp}, {L_RES}")
    a(f"v_mov_b32 {vT0}, {sTmp}")
    a(f"ds_read_b32 {vT1}, {vT0}")
    a("s_waitcnt lgkmcnt(0)")
    a(f"v_readfirstlane_b32 {sWsrc}, {vT1}")
    a("s_nop 3")
    a(f"s_min_u32 {sWsrc}, {sWsrc}, 255")
    a(f"s_mov_b32 {sC}, 0")
    a.label("K2_RESCAN_C")
    def append_raw(lim_local):
        a(f"v_lshlrev_b32 {vT1}, 2, {vT0}")
        a(f"buffer_load_dword {AD[0]}, {vT1}, {sD}, 0 offen")
        a(f"buffer_load_dword {AD[1]}, {vT1}, {sS}, 0 offen")
        a("s_waitcnt vmcnt(0)")
        a(f"v_mul_hi_u32 {vT2}, {AD[0]}, {sK}")
        a(f"v_lshrrev_b32 {vT3}, 3, {vT2}")
        a(f"v_cmp_eq_u32 vcc, s2, {vT3}")
        a("s_nop 1")
        a(f"s_and_b64 vcc, vcc, {sAny}")
        a(f"s_and_saveexec_b64 {sSave}, vcc")
        a(f"s_cbranch_execz {lim_local}")
        a(f"v_mad_u32_u24 {vT3}, {vT2}, {s3125}, {v511}")
        a(f"v_and_b32 {vT2}, 7, {vT2}")
        a(f"v_lshrrev_b32 {vT3}, 9, {vT3}")
        a(f"v_lshlrev_b32 {vT2}, 2, {vT2}")
        a(f"v_sub_u32 {vT3}, {AD[0]}, {vT3}")
        a(f"ds_add_rtn_u32 {AD[2]}, {vT2}, {vOne} offset:{L_CNT}")
        a(f"v_lshl_or_b32 {vT0}, {vT0}, 5, {vT3}")
        a("s_waitcnt lgkmcnt(0)")
        a(f"v_min_u32 {AD[2]}, {CAPX-1}, {AD[2]}")
        a(f"v_mad_u32_u24 {AD[2]}, {vT2}, {sCAPq}, {AD[2]}")
        a(f"v_mov_b32 {vT2}, {L_L0}")
        a(f"v_mov_b32 {vT3}, {L_L1}")
        a(f"v_lshl_add_u32 {vT2}, {AD[2]}, 2, {vT2}")
        a(f"v_lshl_add_u32 {vT3}, {AD[2]}, 1, {vT3}")
        a(f"ds_write_b32 {vT2}, {vT0}")
        a(f"ds_write_b16 {vT3}, {AD[1]}")
        a.label(lim_local)
        a(f"s_mov_b64 exec, {sSave}")
    a(f"s_lshl_b32 {sTmp}, {sC}, 9")
    a(f"v_add_u32 {vT1}, {sTmp}, v0")
    a(f"s_mul_i32 {sTmp2}, {sWsrc}, {CH}")
    a(f"v_add_u32 {vT0}, {sTmp2}, {vT1}")
    a(f"v_cmp_gt_u32 vcc, {CH}, {vT1}")
    a(f"s_mov_b32 {sTmp}, {E}")
    a(f"v_cmp_gt_u32 {sAny}, {sTmp}, {vT0}")
    a("s_nop 1")
    a(f"s_and_b64 {sAny}, {sAny}, vcc")
    append_raw("K2_RA1")
    a(f"s_add_u32 {sC}, {sC}, 1")
    a(f"s_cmp_lt_u32 {sC}, 7")
    a("s_cbranch_scc1 K2_RESCAN_C")
    a(f"s_add_u32 {sI}, {sI}, 1")
    a(f"s_cmp_lt_u32 {sI}, {sNR}")
    a("s_cbranch_scc1 K2_RESCAN_I")
    a("s_waitcnt lgkmcnt(0)")
    a("s_barrier")
    a(f"ds_read_b32 {vT2}, {aOH} offset:{L_CNT}")
    a(f"ds_read_b32 {vT3}, {SS} offset:{L_CNT}")
    a("s_waitcnt lgkmcnt(0)")
    a(f"v_min_u32 {vT0}, 0xffffff, {vT2}")
    a(f"v_min_u32 {vJ}, 0xffffff, {vT3}")
    a.label("K2_CHECK")
    a.c("window assignment by size rank")
    a(f"v_lshl_or_b32 {vT0}, {vT0}, 3, {aPS}")
    a(f"v_lshl_or_b32 {vJ}, {vJ}, 3, {aPD}")
    a(f"v_cmp_lt_u32 {sAny}, {sCAP}, {vT3}")
    a(f"v_cmp_gt_u32 vcc, {vJ}, {vT0}")
    a(f"s_mov_b32 {sWin}, 0")
    a("s_nop 2")
    for i in range(8):
        a(f"s_bfe_u32 {sTmp}, {'vcc_lo' if i<4 else 'vcc_hi'}, {(8<<16)|(8*(i&3))}")
        a(f"s_bcnt1_i32_b32 {sTmp}, {sTmp}")
        a(f"s_cmp_eq_u32 {sTmp}, {sTgt}")
        a(f"s_cselect_b32 {sWin}, {i}, {sWin}")
    if opt.get('nobal',0): a(f"s_mov_b32 {sWin}, {sWave}")
    a(f"s_lshl_b32 {sTmp}, {sWin}, 3")
    a(f"v_readlane_b32 {sCnt}, {vT2}, {sTmp}")
    geometry(sWin)
    a(f"s_lshl_b32 {sTmp}, {sWin}, 11")
    a(f"v_add_u32 {vE64}, {sTmp}, {vE64}")
    a(f"v_add_u32 {vTR}, {sTmp}, {vTR}")
    a(f"s_add_u32 {sTmp}, {sTmp}, {L_A2}")
    a(f"v_lshl_add_u32 {vT0}, {vL}, 5, {sTmp}")
    a(f"ds_read_b128 {WA[0:4]}, {vT0}")
    a(f"ds_read_b128 {WA[4:8]}, {vT0} offset:16")
    for i in range(4): a(f"v_mov_b32 {A2R[i]}, 0")
    a(f"ds_write_b128 {vT0}, {A2R[0:4]}")
    a(f"ds_write_b128 {vT0}, {A2R[0:4]} offset:16")
    a(f"s_cmp_eq_u64 {sAny}, 0")
    a("s_cbranch_scc1 K2_MAIN")
    a.c("generic (slow) mode: raw scan of all edges, 512 per round")
    a(f"s_mov_b32 {sMode}, 1")
    a.label("K2_GEN")
    a("s_barrier")
    a(f"s_cmp_lg_u32 {sWave}, 0")
    a("s_cbranch_scc1 K2_GEN1")
    a(f"v_and_b32 {vT0}, 7, {vL}")
    a(f"v_lshlrev_b32 {vT0}, 2, {vT0}")
    a(f"ds_write_b32 {vT0}, {vZ[0]} offset:{L_CNT}")
    a("s_waitcnt lgkmcnt(0)")
    a.label("K2_GEN1")
    a("s_barrier")
    a(f"s_lshl_b32 {sTmp}, {sChunk}, 9")
    a(f"v_add_u32 {vT0}, {sTmp}, v0")
    a(f"s_mov_b32 {sTmp}, {E}")
    a(f"v_cmp_gt_u32 {sAny}, {sTmp}, {vT0}")
    a("s_nop 1")
    append_raw("K2_RA2")
    a("s_waitcnt lgkmcnt(0)")
    a("s_barrier")
    a(f"s_lshl_b32 {sTmp}, {sWin}, 2")
    a(f"v_mov_b32 {vT0}, {sTmp}")
    a(f"ds_read_b32 {vT1}, {vT0} offset:{L_CNT}")
    a("s_waitcnt lgkmcnt(0)")
    a(f"v_readfirstlane_b32 {sCnt}, {vT1}")
    a("s_nop 3")
    a.label("K2_MAIN")
    if opt.get('dbgfill',0): stamp(a,opt,14)
    a(f"s_min_u32 {sCnt}, {sCnt}, {CAP}")
    a(f"s_add_u32 {sNT}, {sCnt}, 31")
    a(f"s_lshr_b32 {sNT}, {sNT}, 5")
    a(f"s_cmp_eq_u32 {sNT}, 0")
    a("s_cbranch_scc1 K2_MAIN_DONE")
    a(f"s_mul_i32 {sTmp}, {sWin}, {CAPX*4}")
    a(f"s_add_u32 {sTmp}, {sTmp}, {L_L0}")
    a(f"s_mul_i32 {sTmp2}, {sWin}, {CAPX*2}")
    a(f"s_add_u32 {sTmp2}, {sTmp2}, {L_L1}")
    a(f"v_and_b32 {vT0}, 31, {vL}")
    a(f"v_lshl_add_u32 {aL0}, {vT0}, 2, {sTmp}")
    a(f"v_lshl_add_u32 {aL1s}, {vT0}, 1, {sTmp2}")
    a(f"v_lshrrev_b32 {vT0}, 3, {vL}")
    a(f"v_lshl_add_u32 {aL1d}, {vT0}, 3, {sTmp2}")
    def pad():
        a(f"v_add_u32 {vT0}, {sCnt}, {vL}")
        a(f"v_lshl_add_u32 {vT1}, {vT0}, 2, {sTmp}")
        a(f"v_lshl_add_u32 {vT2}, {vT0}, 1, {sTmp2}")
        a(f"v_mov_b32 {vJ}, 7")
        a(f"ds_write_b32 {vT1}, {vJ}")
        a(f"ds_write_b16 {vT2}, {vZ[0]}")
        a(f"ds_write_b32 {vT1}, {vJ} offset:256")
        a(f"ds_write_b16 {vT2}, {vZ[0]} offset:128")
    def first_reads():
        a(f"ds_read_b32 {vT3}, {aL0}")
        a(f"ds_read_b64 {SD}, {aL1d}")
        a(f"ds_read_b32 {LE[1]}, {aL0} offset:128")
        a(f"ds_read_b32 {LE[0]}, {aL0} offset:256")
        a(f"ds_read_u16 {SS}, {aL1s}")
    a(f"s_cmp_ge_u32 {sCnt}, 96")
    a("s_cbranch_scc1 K2_FILL_BIG")
    pad()
    first_reads()
    a("s_waitcnt lgkmcnt(0)")
    a("s_branch K2_FILL")
    a.label("K2_FILL_BIG")
    first_reads()
    pad()
    a("s_waitcnt lgkmcnt(4)")
    a.label("K2_FILL")
    ENT=['',' nt',' sc1',' sc0 sc1',' sc0',' sc0 nt',' sc1 nt',' sc0 sc1 nt'][opt.get('e_nt',0)]
    def E_addr(le): a(f"v_and_or_b32 {aE}, {le}, {sMaskE}, {vHOFF}")
    def E_load(p): a(f"buffer_load_dwordx4 {EA[p]}, {aE}, {sE}, 0 offen{ENT}")
    def H_addr():
        if opt.get('hmask',0):
            a(f"v_and_b32 {SD[0]}, 0x03ff03ff, {SD[0]}"); a(f"v_and_b32 {SD[1]}, 0x03ff03ff, {SD[1]}")
        for i in range(4):
            a(f"v_mad_u32_u16 {AD[i]}, {SD[i>>1]}, {s128}, {vKD[i]}"+(" op_sel:[1,0,0,0]" if i&1 else ""))
    def H_load(i):
        a(f"s_mov_b32 m0, {sM0[i]}")
        a("s_nop 0")
        a(f"buffer_load_dwordx4 {AD[i]}, {sB}, 0 offen{HLD} lds")
    def P_addr(le,par):
        a(f"v_and_b32 {vJ}, 7, {le}")
        a(f"v_mul_u32_u24 {aPS}, 6, {SS}")
        a(f"v_mad_u32_u24 {aPD}, {vJ}, 6, {sN06}")
        a(f"v_lshlrev_b32 {aOH}, 4, {vJ}")
        a(f"v_lshl_add_u32 {aA2[par]}, {vJ}, 3, {vE64}")
    def P_reads():
        for c in range(3): a(f"ds_read_u16_d16_hi {PS[c]}, {aPS} offset:{L_POS+2*c}")
        for c in range(3): a(f"ds_read_u16_d16_hi {PD[c]}, {aPD} offset:{L_POS+2*c}")
        a(f"ds_read_b128 {OH}, {aOH} offset:{L_OH}")
    def P_calc_list(par):
        return [f"v_sub_f32 {DX[0]}, {PD[0]}, {PS[0]}", f"v_sub_f32 {DX[1]}, {PD[1]}, {PS[1]}", f"v_sub_f32 {DX[2]}, {PD[2]}, {PS[2]}",
                f"v_mul_f32 {DD}, {DX[0]}, {DX[0]}", f"v_fmac_f32 {DD}, {DX[1]}, {DX[1]}", f"v_fmac_f32 {DD}, {DX[2]}, {DX[2]}",
                f"v_cvt_pk_bf16_f32 {E01[0]}, 1.0, {DX[0]}", f"v_cvt_pk_bf16_f32 {E01[1]}, {DX[1]}, {DX[2]}",
                f"v_cvt_pk_bf16_f32 {OH[3]}, {OH[3]}, {DD}",
                f"ds_write_b64 {aA2[par]}, {E01}"]
    E_addr(vT3); E_load(0)
    H_addr()
    for i in range(4): H_load(i)
    E_addr(LE[1]); E_load(1)
    if opt.get('dbgfill',0): stamp(a,opt,15)
    P_addr(vT3,0); P_reads()
    a(f"ds_read_b64 {SD}, {aL1d} offset:64")
    a(f"ds_read_u16 {SS}, {aL1s} offset:64")
    for i in range(16): a(f"v_mov_b32 {T[i]}, 0")
    for i in range(8): a(f"v_mov_b32 {A2R[i]}, 0")
    a("s_waitcnt lgkmcnt(0)")
    for ins in P_calc_list(0): a(ins)
    H_addr()
    P_addr(LE[1],1)
    E_addr(LE[0])
    a("s_waitcnt vmcnt(1)")
    for s_ in range(4): a(f"ds_read_b128 {HA[4*s_:4*s_+4]}, {vHA[s_]}")
    Da,Db=D1[0:16],D1[16:32]
    mfma(a,Da,OH,WA[0:4],"0")
    mfma(a,Da,EA[0],WE[0:4],Da)
    a("s_waitcnt lgkmcnt(0)")
    for i in range(4): H_load(i)
    mfma(a,Da,HA[0:4],ID[0:4],Da)
    mfma(a,Da,HA[4:8],ID[4:8],Da)
    a(f"s_mov_b32 {sT}, 0")
    stamp(a,opt,8)
    if DBG:
        a("s_memtime s[80:81]")
        a("s_waitcnt lgkmcnt(0)")
    a.nop(12)
    MADD=opt.get('madd',1)
    def prio(p):
        if PRIO: a(f"s_setprio {p}")
    def Tsec(kind,x,p):
        Dx=D1[16*x:16*x+16]; o=1-x; Do=D1[16*o:16*o+16]; D2o=D2[16*o:16*o+16]
        prio(1)
        if kind=='X':
            ea = EA[p] if x==0 else EA[1-p]
            mfma(a,Do,OH,WA[4*o:4*o+4],"0")
            for i in range(8): a(f"v_cvt_pk_bf16_f32 {M[i]}, {T[2*i]}, {T[2*i+1]}")
            mfma(a,Do,ea,WE[4*o:4*o+4],Do)
            for i in range(16):
                if i==6:
                    if x==1: a("s_waitcnt lgkmcnt(2)")
                    mfma(a,D2o,A2R[0:4],M[0:4],D2o)
                a(f"v_exp_f32 {T[i]}, {Dx[i]}")
            if MADD:
                a("s_nop 1")
                mfma(a,T,ONE,ONE,T)
        else:
            hb = HA[8:16] if x==0 else HA[0:8]
            for i in range(16):
                if i==0: mfma(a,Do,hb[0:4],ID[0:4],Do)
                if i==5: mfma(a,Do,hb[4:8],ID[4:8],Do)
                if i==10: mfma(a,D2o,A2R[4:8],M[4:8],D2o)
                a(f"v_rcp_f32 {T[i]}, {T[i]}")
        prio(0)
    def tile(p):
        q=1-p
        Tsec('X',0,p)
        if not opt.get('e_late',0): E_load(p)
        else: a("s_nop 0")
        P_reads()
        a(f"ds_read_b64 {SD}, {aL1d} offset:{64*(p+2)}")
        if not MADD:
            for i in range(16): a(f"v_add_f32 {T[i]}, 1.0, {T[i]}")
        else:
            a.nop(2)
        Tsec('R',0,p)
        a(f"s_waitcnt vmcnt({0 if opt.get('e_late',0) else 1}) lgkmcnt(0)")
        for s_ in range(4): a(f"ds_read_b128 {HA[4*s_:4*s_+4]}, {vHA[s_]}")
        for k in range(4): a(f"ds_read_b64_tr_b16 {A2R[2*k:2*k+2]}, {vTR} offset:{512*k}")
        a(f"ds_write_b64 {aA2[p]}, {vZ}")
        pc=P_calc_list(q)
        for ins in pc[:6]: a(ins)
        H_addr()
        for i in range(16): a(f"v_mul_f32 {T[i]}, {Da[i]}, {T[i]}")
        for ins in pc[6:]: a(ins)
        Tsec('X',1,p)
        a("s_waitcnt lgkmcnt(0)")
        if opt.get('e_late',0)==1: E_load(p)
        for i in range(4): H_load(i)
        a(f"ds_read_b32 {LE[q]}, {aL0} offset:{128*(p+3)}")
        a(f"ds_read_u16 {SS}, {aL1s} offset:{64*(p+2)}")
        if not MADD:
            for i in range(16): a(f"v_add_f32 {T[i]}, 1.0, {T[i]}")
        Tsec('R',1,p)
        a("s_waitcnt lgkmcnt(0)")
        E_addr(LE[q])
        P_addr(LE[p],p)
        if p==1:
            a(f"v_add_u32 {aL0}, 256, {aL0}")
            a(f"v_add_u32 {aL1s}, 128, {aL1s}")
            a(f"v_add_u32 {aL1d}, 128, {aL1d}")
        for i in range(16): a(f"v_mul_f32 {T[i]}, {Db[i]}, {T[i]}")
    def drain(par):
        for i in range(8): a(f"v_cvt_pk_bf16_f32 {M[i]}, {T[2*i]}, {T[2*i+1]}")
        a(f"ds_write_b64 {aA2[par]}, {vZ}")
        a("s_nop 0")
        mfma(a,D2[16:32],A2R[0:4],M[0:4],D2[16:32])
        mfma(a,D2[16:32],A2R[4:8],M[4:8],D2[16:32])
    a(".p2align 6")
    a.label("K2_LOOP")
    tile(0)
    a(f"s_add_u32 {sT}, {sT}, 1")
    a(f"s_cmp_ge_u32 {sT}, {sNT}")
    a("s_cbranch_scc1 K2_EXIT_ODD")
    tile(1)
    a(f"s_add_u32 {sT}, {sT}, 1")
    a(f"s_cmp_lt_u32 {sT}, {sNT}")
    a("s_cbranch_scc1 K2_LOOP")
    drain(0)
    a("s_branch K2_MAIN_DONE")
    a.label("K2_EXIT_ODD")
    drain(1)
    a.label("K2_MAIN_DONE")
    stamp(a,opt,9)
    if DBG:
        a("s_memtime s[82:83]")
        a("s_waitcnt lgkmcnt(0)")
        a("s_sub_u32 s80, s82, s80")
        a(f"v_writelane_b32 {VDBG}, s80, 12")
        a(f"v_writelane_b32 {VDBG}, {sNT}, 11")
    a(f"s_cmp_eq_u32 {sMode}, 0")
    a("s_cbranch_scc1 K2_EPI")
    a("s_waitcnt vmcnt(0) lgkmcnt(0)")
    a(f"s_add_u32 {sChunk}, {sChunk}, 1")
    a(f"s_cmp_lt_u32 {sChunk}, {(E+511)//512}")
    a("s_cbranch_scc1 K2_GEN")
    a.label("K2_EPI")
    a.c("segment sums of this window: m_i (bf16) -> rows of this window's (now idle) A2 slice")
    a(f"s_lshl_b32 {sHST}, {sWin}, 11")
    a(f"s_add_u32 {sHST}, {sHST}, {L_A2}")
    a(f"v_and_b32 {vJ}, 31, {vL}")
    a(f"s_mov_b32 {sTmp}, {NEG_LN2}")
    a(f"v_lshrrev_b32 {vT2}, 5, {vL}")
    a(f"v_lshlrev_b32 {vT2}, 7, {vT2}")
    a(f"v_lshl_add_u32 {vT2}, {vJ}, 1, {vT2}")
    a(f"v_add_u32 {vT2}, {sHST}, {vT2}")
    a.nop(8)
    for qq in range(4):
        a(f"v_mul_f32 {AD[0]}, {sTmp}, {D2[4*qq]}")
        a(f"v_mul_f32 {AD[1]}, {sTmp}, {D2[16+4*qq]}")
        a(f"v_cvt_pk_bf16_f32 {AD[2]}, {AD[0]}, {AD[1]}")
        a(f"ds_write_b16 {vT2}, {AD[2]} offset:{qq*256}")
        a(f"ds_write_b16_d16_hi {vT2}, {AD[2]} offset:{qq*256+64}")
    def pos_part():
        a.c("coordinate update of this window")
        PP=T
        for qq in range(4):
            for c in range(1,4):
                r=PP[qq*3+c-1]
                a(f"v_mul_f32 {r}, {WX[0]}, {D2[4*qq+c]}")
                a(f"v_fmac_f32 {r}, {WX[1]}, {D2[16+4*qq+c]}")
        for sh in (1,2,4,8):
            for i in range(12): a(f"v_add_f32_dpp {PP[i]}, {PP[i]}, {PP[i]} row_shr:{sh} row_mask:0xf bank_mask:0xf bound_ctrl:0")
        for i in range(12): a(f"v_add_f32_dpp {PP[i]}, {PP[i]}, {PP[i]} row_bcast:15 row_mask:0xa bank_mask:0xf")
        a(f"v_lshrrev_b32 {vT2}, 5, {vL}")
        a(f"v_lshlrev_b32 {vT2}, 4, {vT2}")
        a(f"s_add_u32 {sTmp}, {sHST}, 1024")
        a(f"v_add_u32 {vT2}, {sTmp}, {vT2}")
        a("s_mov_b32 exec_lo, 0x80000000")
        a("s_mov_b32 exec_hi, 0x80000000")
        for qq in range(4):
            for c in range(3):
                a(f"ds_write_b32 {vT2}, {PP[qq*3+c]} offset:{qq*32+c*4}")
        a("s_mov_b64 exec, -1")
        a(f"v_mul_u32_u24 {vT2}, 86, {vL}")
        a(f"v_lshrrev_b32 {vT2}, 8, {vT2}")
        a(f"v_mul_u32_u24 {vT3}, 3, {vT2}")
        a(f"v_sub_u32 {vT3}, {vL}, {vT3}")
        a(f"v_lshlrev_b32 {vT2}, 4, {vT2}")
        a(f"v_lshl_add_u32 {vT2}, {vT3}, 2, {vT2}")
        a(f"v_add_u32 {vT2}, {sTmp}, {vT2}")
        a(f"v_min_u32 {vT2}, {LDS2-4}, {vT2}")
        a(f"ds_read_b32 {AD[0]}, {vT2}")
        a(f"v_lshl_add_u32 {vT3}, {vL}, 1, {sN06}")
        a(f"v_min_u32 {vT2}, {POS_SZ-2}, {vT3}")
        a(f"ds_read_u16_d16_hi {PS[0]}, {vT2} offset:{L_POS}")
        a(f"s_mul_i32 {sTmp}, {sNJ}, 3")
        a(f"v_cmp_gt_u32 vcc, {sTmp}, {vL}")
        a(f"v_add_u32 {vT3}, {OUT_POS}, {vT3}")
        a(f"v_mov_b32 {vT2}, 0x40000000")
        a("s_waitcnt lgkmcnt(0)")
        a(f"v_cndmask_b32 {vT3}, {vT2}, {vT3}, vcc")
        a(f"v_add_f32 {AD[0]}, {AD[0]}, {PS[0]}")
        a(f"v_cvt_pk_bf16_f32 {AD[0]}, {AD[0]}, {AD[0]}")
        a(f"buffer_store_short {AD[0]}, {vT3}, {sO}, 0 offen{OST}")
    a.c("job waves 4..7: row tile r = (v-4)>>1 (rows = window 4r + (m>>3), node m&7), feature half x = v&1")
    a(f"s_cmp_lt_u32 {sWave}, 4")
    a("s_cbranch_scc1 K2_EPI_NOJOB")
    a(f"s_sub_u32 {sTmp2}, {sWave}, 4")
    a(f"s_lshr_b32 {sTmp2}, {sTmp2}, 1")
    a(f"s_lshl_b32 {sTmp2}, {sTmp2}, 2")
    a(f"v_bfe_u32 {vT0}, {vL}, 3, 2")
    a(f"v_add_u32 {vT0}, {sTmp2}, {vT0}")
    a(f"v_and_b32 {vJ}, 7, {vL}")
    a(f"v_lshlrev_b32 {aL1d}, 11, {vT0}")
    a(f"v_lshl_add_u32 {aL1d}, {vJ}, 7, {aL1d}")
    a(f"v_add_u32 {aL1d}, {L_A2}, {aL1d}")
    a(f"v_add_u32 {aL1d}, {aL1d}, {vHOFF}")
    a(f"s_lshl_b32 {sTmp2}, s2, 3")
    a(f"v_add_u32 {vT0}, {sTmp2}, {vT0}")
    a(f"v_mad_u32_u24 {SD[0]}, {vT0}, {s3125}, {v511}")
    a(f"v_add_u32 {SD[1]}, 3125, {SD[0]}")
    a(f"v_lshrrev_b32 {SD[0]}, 9, {SD[0]}")
    a(f"v_lshrrev_b32 {SD[1]}, 9, {SD[1]}")
    a(f"v_sub_u32 {SD[1]}, {SD[1]}, {SD[0]}")
    a(f"v_cmp_lt_u32 vcc, {vJ}, {SD[1]}")
    a(f"v_add_u32 {vT1}, -1, {SD[1]}")
    a(f"v_min_u32 {vT1}, {vT1}, {vJ}")
    a(f"v_add_u32 {vT1}, {SD[0]}, {vT1}")
    a(f"v_lshlrev_b32 {vT1}, 7, {vT1}")
    a(f"v_add_u32 {vT0}, {vT1}, {vHOFF}")
    for s_ in range(4):
        a(f"buffer_load_dwordx4 {HA[4*s_:4*s_+4]}, {vT0}, {sHs}, 0 offen offset:{32*s_}")
    a(f"s_and_b32 {sTmp2}, {sWave}, 1")
    a(f"s_lshl_b32 {sTmp2}, {sTmp2}, 6")
    a(f"v_lshrrev_b32 {vT0}, 1, {vHOFF}")
    a(f"v_add3_u32 {aL0}, {vT1}, {vT0}, {sTmp2}")
    for qq in range(4):
        a(f"buffer_load_dwordx2 {M[2*qq:2*qq+2]}, {aL0}, {sHs}, 0 offen offset:{16*qq}")
    a(f"v_mov_b32 {vT0}, 0x40000000")
    a(f"v_cndmask_b32 {aL1s}, {vT0}, {aL0}, vcc")
    pos_part()
    HV=D2[0:16]
    a("s_waitcnt vmcnt(1)")
    for s_ in range(4):
        mfma(a,D1[0:16],WH[4*s_:4*s_+4],HA[4*s_:4*s_+4],"0" if s_==0 else D1[0:16])
    for qq in range(4):
        a(f"v_lshlrev_b32 {HV[4*qq]}, 16, {M[2*qq]}")
        a(f"v_and_b32 {HV[4*qq+1]}, 0xffff0000, {M[2*qq]}")
        a(f"v_lshlrev_b32 {HV[4*qq+2]}, 16, {M[2*qq+1]}")
        a(f"v_and_b32 {HV[4*qq+3]}, 0xffff0000, {M[2*qq+1]}")
    stamp(a,opt,10)
    a("s_barrier")
    MA=[EA[0],EA[1],A2R[0:4],A2R[4:8]]
    for s_ in range(4): a(f"ds_read_b128 {MA[s_]}, {aL1d} offset:{32*s_}")
    for s_ in range(4):
        a(f"s_waitcnt lgkmcnt({3-s_})")
        mfma(a,D1[0:16],WH[16+4*s_:20+4*s_],MA[s_],D1[0:16])
    a(f"s_mov_b32 {sTmp}, {NEG_LOG2E}")
    a.nop(14)
    X=D1[0:16]
    for i in range(16): a(f"v_mul_f32 {T[i]}, {sTmp}, {X[i]}")
    for i in range(16): a(f"v_exp_f32 {T[i]}, {T[i]}")
    for i in range(16): a(f"v_add_f32 {T[i]}, 1.0, {T[i]}")
    for i in range(16): a(f"v_rcp_f32 {T[i]}, {T[i]}")
    a("s_nop 0")
    for i in range(16): a(f"v_fma_f32 {T[i]}, {X[i]}, {T[i]}, {HV[i]}")
    for qq in range(4):
        a(f"v_cvt_pk_bf16_f32 {M[2*qq]}, {T[4*qq]}, {T[4*qq+1]}")
        a(f"v_cvt_pk_bf16_f32 {M[2*qq+1]}, {T[4*qq+2]}, {T[4*qq+3]}")
        a(f"buffer_store_dwordx2 {M[2*qq:2*qq+2]}, {aL1s}, {sO}, 0 offen offset:{16*qq}{OST}")
    a("s_branch K2_FIN")
    a.label("K2_EPI_NOJOB")
    a("s_waitcnt lgkmcnt(0)")
    stamp(a,opt,10)
    a("s_barrier")
    pos_part()
    a.label("K2_FIN")
    if DBG:
        a("s_waitcnt vmcnt(0)")
        stamp(a,opt,13)
        a(f"s_lshl_b32 {sTmp}, s2, 4")
        a(f"s_add_u32 {sTmp}, {sTmp}, {sWave}")
        a(f"s_lshl_b32 {sTmp}, {sTmp}, 6")
        a(f"s_add_u32 {sTmp}, {sTmp}, {DBG_OFF}")
        a(f"v_lshlrev_b32 {vT0}, 2, {vL}")
        a("s_mov_b32 exec_lo, 0xffff")
        a("s_mov_b32 exec_hi, 0")
        a(f"buffer_store_dword {VDBG}, {vT0}, {sW}, {sTmp} offen")
        a("s_waitcnt vmcnt(0)")
    a.label("K_END")
    a("s_endpgm")
    a.label("K_CODE_END")
    return nv

HEADER='''; Kernarg layout (88 bytes, ptrs only): h, pos, e_attr, src, dst, w_e, w_x, w_h, out, debug, ws
; @launch grid=(256,1,1) block=(512,1,1) lds={lds2}
.amdgcn_target "amdgcn-amd-amdhsa--gfx950"
.text
.globl {k}
.p2align 8
.type {k},@function
'''
def kd(name,nv,ns):
    acc=(nv+3)//4*4
    return f'''.amdhsa_kernel {name}
  .amdhsa_next_free_vgpr {acc}
  .amdhsa_next_free_sgpr {ns}
  .amdhsa_accum_offset {acc}
  .amdhsa_group_segment_fixed_size 0
  .amdhsa_kernarg_size 88
  .amdhsa_user_sgpr_count 2
  .amdhsa_user_sgpr_kernarg_segment_ptr 1
  .amdhsa_system_sgpr_workgroup_id_x 1
  .amdhsa_float_denorm_mode_32 3
.end_amdhsa_kernel
'''
def build(opt):
    out=HEADER.format(lds2=LDS2,k=KNAME)
    a=Asm()
    nv=gen(a,opt)
    assert nv<=255
    out+=a.text()
    out+='.section .rodata,"a"\n.p2align 6\n'+kd(KNAME,256,102)
    return out,nv
if __name__=="__main__":
    opt={}
    for arg in sys.argv[2:]:
        k,v=arg.split('='); opt[k]=int(v)
    txt,nv=build(opt)
    open(sys.argv[1],'w').write(txt)
    print("vgprs:",nv,"LDS",LDS2,"lines",txt.count("\n"),"WS",WS_BYTES)
```

```python
import sys, struct
from asmlib import *

N=12500; E=800000; CH=3136; NSRC=256; NBIN=256; NPW=49
KW=703687442
LOG2E=1.4426950408889634; LN2=0.6931471805599453
def f2u(x): return struct.unpack('<I',struct.pack('<f',x))[0]
NEG_LOG2E=f2u(-LOG2E); NEG_LN2=f2u(-LN2)
SENT=0xFFFFFFFF; MARK=0xFFFFFFFE
CELLS=0; BPT=NBIN*NSRC*128; FLG=BPT+N*128+((-N*128)%4096); FLG2=FLG+4096; WS_BYTES=FLG2+8192
OUT_BYTES=N*64*2+N*3*2; OUT_POS=N*64*2
CAP=576; CAPX=704
L_OH=0; L_CNT=128; L_NRES=160; L_WIN=192; L_RES=256; L_POS=1280; POS_SZ=74*1024
L_L0=L_POS+POS_SZ; L_L1=L_L0+8*CAPX*4; L_A2=L_L1+8*CAPX*2; L_HST=L_A2+8*2048; LDS2=L_HST+8*4096
assert LDS2<=163840, LDS2
L_RAWW=L_L0; L_BST=L_L0+19*1024; assert L_BST+2*32*144<=L_A2
DBG_OFF=16*1024*1024

def WSB(opt): return (32*1024*1024 if opt.get('dbg',0) else WS_BYTES)
def srd(a, s, lo, hi, size):
    a(f"s_mov_b32 {s[0]}, {lo}")
    a(f"s_and_b32 {s[1]}, {hi}, 0xffff")
    a(f"s_mov_b32 {s[2]}, {size}")
    a(f"s_mov_b32 {s[3]}, 0x20000")
VDBG="v255"
def stamp(a,opt,idx):
    if not opt.get('dbg',0): return
    a("s_memrealtime s[100:101]")
    a("s_waitcnt lgkmcnt(0)")
    a(f"v_writelane_b32 {VDBG}, s100, {idx}")
def S(i,n=1): return R('s',i,n)
def V(i,n=1): return R('v',i,n)
def mfma(a,d,A,B,c): a(f"v_mfma_f32_32x32x16_bf16 {d}, {A}, {B}, {c}")

NPOS1=24
KNAME="gather_scatter__cheap_equivariant_egnn__graph_kernel"
def gen(a, opt):
    DBG=opt.get('dbg',0)
    PRIO=opt.get('prio',1)
    ST=" sc1"; LD=" sc1" if opt.get('ld_sc1',1) else ""
    HLD=" sc1" if opt.get('h_sc1',1) else ""
    OST=[""," nt"," sc1"," sc0 sc1"][opt.get('ost',0)]
    a.label(KNAME)
    sB=S(4,4); sE=S(8,4); sW=S(12,4); sO=S(16,4); sP=S(20,4); sS=S(24,4); sD=S(28,4)
    sWave=S(32); sN0=S(33); sNJ=S(34); sN06=S(35); sNT=S(36); sT=S(37); sMode=S(38); sChunk=S(39)
    sMaskE=S(40); s128=S(41); sK=S(42); s3125=S(43); sLim=S(44); sCAP=S(44); sCnt=S(45); sTmp=S(46); sTmp2=S(47)
    sM0=S(48,4); sSave=S(52,2); sAny=S(54,2); sNR=S(56); sI=S(57); sC=S(58); sWsrc=S(59); sMark=S(60); sCAPq=S(61); sHST=S(62); sTmp3=S(63)
    sMask=[S(64+2*i,2) for i in range(16)]
    sRot=S(39+0) if False else S(37)
    sWin=S(96); sTgt=S(97); sNonce=S(98); sPoll=S(99)
    sT4=S(84,4); sT4b=S(88,4); sT4c=S(92,4)
    sHw=S(48,4)
    sHs=S(68,4); sWx=S(72,4)
    vr=Regs(1,256,'v')
    vL=vr.alloc('lane')
    WE=vr.alloc('WE',8,4); WA=vr.alloc('WA',8,4); ID=vr.alloc('ID',8,4); D2=vr.alloc('D2',32,4)
    D1=vr.alloc('D1',32,4); HA=vr.alloc('HA',16,4); T=vr.alloc('T',16,4); M=vr.alloc('M',8,4)
    A2R=vr.alloc('A2R',8,4); EA=[vr.alloc('EA0',4,4),vr.alloc('EA1',4,4)]; OH=vr.alloc('OH',4,4)
    WH=vr.alloc('WH',32,4); ONE=vr.alloc('ONE',4,4)
    vHA=vr.alloc('vHA',4); vKD=vr.alloc('vKD',4); vTR=vr.alloc('vTR'); vE64=vr.alloc('vE64'); vHOFF=vr.alloc('vHOFF')
    vZ=vr.alloc('vZ',2,2); aL0=vr.alloc('aL0'); aL1s=vr.alloc('aL1s'); aL1d=vr.alloc('aL1d')
    LE=[vr.alloc('LE0'),vr.alloc('LE1')]; aA2=[vr.alloc('aA2_0'),vr.alloc('aA2_1')]
    SD=vr.alloc('SD',2,2); SS=vr.alloc('SS'); PS=vr.alloc('PS',3); PD=vr.alloc('PD',3)
    E01=vr.alloc('E01',2,2); DX=vr.alloc('DX',3); DD=vr.alloc('DD'); AD=vr.alloc('AD',4); vJ=vr.alloc('vJ')
    aE=vr.alloc('aE'); aPS=vr.alloc('aPS'); aPD=vr.alloc('aPD'); aOH=vr.alloc('aOH')
    vT0=vr.alloc('vT0'); vT1=vr.alloc('vT1'); vT2=vr.alloc('vT2'); vT3=vr.alloc('vT3')
    vOne=vr.alloc('vOne'); v511=vr.alloc('v511'); vTRW=vr.alloc('vTRW'); vL16=vr.alloc('vL16'); WX=vr.alloc('WX',2); vDUM=vr.alloc('vDUM')
    nv=vr.next
    HW=T
    def geometry(win):
        a(f"s_lshl_b32 {sTmp}, s2, 3")
        a(f"s_add_u32 {sTmp}, {sTmp}, {win}")
        a(f"s_mul_i32 {sN0}, {sTmp}, 3125")
        a(f"s_add_u32 {sNJ}, {sN0}, {3125+511}")
        a(f"s_add_u32 {sN0}, {sN0}, 511")
        a(f"s_lshr_b32 {sN0}, {sN0}, 9")
        a(f"s_lshr_b32 {sNJ}, {sNJ}, 9")
        a(f"s_sub_u32 {sNJ}, {sNJ}, {sN0}")
        a(f"s_mul_i32 {sN06}, {sN0}, 6")
    def dma(vaddr,srd_,soff,ldsbase_const=None,ldsreg=None):
        pass

    def load_hwin():
        a.c("h rows of the natural window (A operand of h@W1; needed after barrier C)")
        a(f"v_bfe_u32 {vT0}, {vL}, 3, 1")
        a(f"v_and_b32 {vT2}, 3, {vL}")
        a(f"v_lshl_add_u32 {vT0}, {vT0}, 2, {vT2}")
        a(f"s_sub_u32 {sTmp}, {sNJ}, 1")
        a(f"v_min_u32 {vT0}, {sTmp}, {vT0}")
        a(f"v_add_u32 {vT0}, {sN0}, {vT0}")
        a(f"v_lshl_add_u32 {vT0}, {vT0}, 7, {vHOFF}")
        for s_ in range(4):
            a(f"buffer_load_dwordx4 {HW[4*s_:4*s_+4]}, {vT0}, {sHw}, 0 offen offset:{32*s_}")
    a("s_cmp_ge_u32 s2, 256")
    a("s_cbranch_scc1 K_END")
    a("s_load_dwordx4 s[64:67], s[0:1], 0")
    a("s_load_dwordx4 s[68:71], s[0:1], 16")
    a("s_load_dwordx4 s[72:75], s[0:1], 32")
    a("s_load_dwordx4 s[76:79], s[0:1], 64")
    a("s_load_dwordx2 s[80:81], s[0:1], 80")
    a(f"v_and_b32 {vL}, 63, v0")
    a(f"v_lshrrev_b32 {vT0}, 6, v0")
    a(f"v_lshlrev_b32 {vL16}, 4, {vL}")
    a(f"v_readfirstlane_b32 {sWave}, {vT0}")
    if opt.get('cpf',1):
        a.c("pull this workgroup's share of the kernel's own code into L2 (read only, speed only)")
        NL=opt.get('cpf_lines',8)
        a("s_getpc_b64 s[84:85]")
        a.label("K_PC")
        a("s_and_b32 s85, s85, 0xffff")
        a("s_mov_b32 s86, K_CODE_END-K_PC")
        a("s_mov_b32 s87, 0x20000")
        a(f"s_lshr_b32 {sTmp}, s2, 3")
        a(f"s_and_b32 {sTmp}, {sTmp}, 31")
        a(f"s_mul_i32 {sTmp}, {sTmp}, {NL*128}")
        a(f"v_lshlrev_b32 {vT1}, 7, {vL}")
        a(f"v_add_u32 {vT1}, {sTmp}, {vT1}")
        a(f"s_cmp_lg_u32 {sWave}, 3")
        a("s_cbranch_scc1 K_NOCPF")
        a(f"s_mov_b32 exec_lo, {(1<<NL)-1}")
        a("s_mov_b32 exec_hi, 0")
        a(f"buffer_load_dword {vDUM}, {vT1}, s[84:87], 0 offen")
        a("s_mov_b64 exec, -1")
        a.label("K_NOCPF")
    a(f"v_lshrrev_b32 {vT2}, 5, {vL}")
    a(f"v_lshlrev_b32 {vHOFF}, 4, {vT2}")
    a(f"v_mov_b32 {vZ[0]}, 0")
    a(f"v_mov_b32 {vZ[1]}, 0")
    geometry(sWave)
    a(f"s_mul_i32 {sTmp}, s2, {CH*4}")
    a(f"s_mul_i32 {sTmp2}, {sWave}, {384*4}")
    a(f"s_add_u32 {sTmp}, {sTmp}, {sTmp2}")
    a(f"v_lshl_add_u32 {vT0}, {vL}, 3, {sTmp}")
    a("s_waitcnt lgkmcnt(0)")
    stamp(a,opt,0)
    srd(a,sD,"s72","s73",E*4)
    srd(a,sS,"s70","s71",E*4)
    a.c("every wave: six edges per lane, local edge = 384v + 128k + 2l + u; wave 7 also takes edges 3072 + l")
    DS_=D1[0:7]; SR_=D1[8:15]
    for k in range(3): a(f"buffer_load_dwordx2 {D1[2*k:2*k+2]}, {vT0}, {sD}, 0 offen offset:{512*k} nt")
    for k in range(3): a(f"buffer_load_dwordx2 {D1[8+2*k:10+2*k]}, {vT0}, {sS}, 0 offen offset:{512*k} nt")
    srd(a,sT4,"s64","s65",N*128)
    srd(a,sHw,"s64","s65",N*128)
    srd(a,sT4b,"s74","s75",145*128)
    a(f"s_cmp_eq_u32 {sWave}, 7")
    a("s_cbranch_scc1 K_S_W7")
    a(f"s_cmp_eq_u32 {sWave}, 4")
    a("s_cbranch_scc1 K_S_W4")
    a(f"s_cmp_lt_u32 {sWave}, 5")
    a("s_cbranch_scc1 K_S_COMMON")
    a.c("waves 5,6: private raw W2 copy + h rows for the source-node table")
    a(f"s_sub_u32 {sI}, {sWave}, 5")
    a(f"s_lshl_b32 {sC}, {sI}, 13")
    a(f"s_add_u32 {sC}, {sC}, {L_A2}")
    for i in range(8):
        a(f"s_add_u32 {sTmp}, {sC}, {i*1024}")
        a(f"s_mov_b32 m0, {sTmp}")
        a(f"s_mov_b32 {sTmp2}, {8192+i*1024}")
        a(f"buffer_load_dwordx4 {vL16}, {sT4b}, {sTmp2} offen lds")
    a(f"s_mul_i32 {sTmp}, s2, {NPW}")
    a(f"s_lshl_b32 {sTmp2}, {sI}, 5")
    a(f"s_add_u32 {sTmp}, {sTmp}, {sTmp2}")
    a(f"v_and_b32 {vT0}, 31, {vL}")
    a(f"v_add_u32 {vT0}, {sTmp}, {vT0}")
    a(f"v_lshl_add_u32 {vT0}, {vT0}, 7, {vHOFF}")
    for s_ in range(4): a(f"buffer_load_dwordx4 {HA[4*s_:4*s_+4]}, {vT0}, {sT4}, 0 offen offset:{32*s_}")
    a("s_branch K_S_COMMON")
    a.label("K_S_W4")
    a.c("wave 4: this workgroup's share of the L2 warm-up of pos and w_h (speed only)")
    a("s_load_dwordx2 s[82:83], s[0:1], 56")
    srd(a,sP,"s66","s67",N*6)
    a(f"s_lshr_b32 {sTmp}, s2, 3")
    a(f"s_and_b32 {sTmp}, {sTmp}, 31")
    a(f"s_mul_i32 {sTmp2}, {sTmp}, {19*128}")
    a(f"v_lshlrev_b32 {vT0}, 7, {vL}")
    a(f"v_add_u32 {vT1}, {sTmp2}, {vT0}")
    a(f"v_cmp_gt_u32 vcc, 19, {vL}")
    a(f"v_mov_b32 {vT2}, 0x40000000")
    a("s_waitcnt lgkmcnt(0)")
    a(f"v_cndmask_b32 {vT1}, {vT2}, {vT1}, vcc")
    a(f"buffer_load_dword {vDUM}, {vT1}, {sP}, 0 offen")
    srd(a,sT4b,"s82","s83",128*128)
    a(f"s_lshl_b32 {sTmp2}, {sTmp}, 9")
    a(f"v_add_u32 {vT1}, {sTmp2}, {vT0}")
    a(f"v_cmp_gt_u32 vcc, 4, {vL}")
    a("s_nop 1")
    a(f"v_cndmask_b32 {vT1}, {vT2}, {vT1}, vcc")
    a(f"buffer_load_dword {vDUM}, {vT1}, {sT4b}, 0 offen")
    a("s_branch K_S_COMMON")
    a.label("K_S_W7")
    a.c("wave 7: the last 64 edges, one-hot table, counters")
    a(f"s_mul_i32 {sTmp}, s2, {CH*4}")
    a(f"s_add_u32 {sTmp}, {sTmp}, {3072*4}")
    a(f"v_lshl_add_u32 {vT0}, {vL}, 2, {sTmp}")
    a(f"buffer_load_dword {D1[6]}, {vT0}, {sD}, 0 offen nt")
    a(f"buffer_load_dword {D1[14]}, {vT0}, {sS}, 0 offen nt")
    a(f"v_lshrrev_b32 {vT0}, 2, {vL}")
    a(f"v_and_b32 {vT1}, 3, {vL}")
    a(f"v_lshlrev_b32 {vT3}, 1, {vT1}")
    a(f"v_mov_b32 {vJ}, 0")
    a(f"v_cmp_eq_u32 vcc, {vT0}, {vT3}")
    a(f"v_mov_b32 {AD[0]}, 0x3f80")
    a(f"v_mov_b32 {AD[1]}, 0x3f800000")
    a(f"v_cndmask_b32 {vJ}, {vJ}, {AD[0]}, vcc")
    a(f"v_add_u32 {vT3}, 1, {vT3}")
    a(f"v_cmp_eq_u32 vcc, {vT0}, {vT3}")
    a("s_nop 1")
    a(f"v_cndmask_b32 {vJ}, {vJ}, {AD[1]}, vcc")
    a(f"v_cmp_eq_u32 vcc, 6, {vT0}")
    a(f"v_mov_b32 {AD[2]}, 0")
    a("s_nop 0")
    a(f"v_cndmask_b32 {AD[2]}, {AD[2]}, {AD[1]}, vcc")
    a(f"v_cmp_eq_u32 vcc, 3, {vT1}")
    a("s_nop 1")
    a(f"v_cndmask_b32 {vJ}, {vJ}, {AD[2]}, vcc")
    a(f"v_cmp_lt_u32 vcc, 31, {vL}")
    a(f"v_lshlrev_b32 {vT0}, 2, {vL}")
    a("s_nop 0")
    a(f"v_cndmask_b32 {vJ}, {vJ}, {vZ[0]}, vcc")
    a(f"ds_write_b32 {vT0}, {vJ}")
    a.label("K_S_COMMON")
    a(f"s_mov_b32 {sMaskE}, {'0' if opt.get('noE',0) else '0xffffffe0'}")
    a(f"s_mov_b32 {s128}, {0 if opt.get('noH',0) else 128}")
    a(f"s_mov_b32 {sK}, {KW}")
    a(f"s_mov_b32 {s3125}, 3125")
    a(f"s_mov_b32 {sMark}, {MARK}")
    a(f"s_mov_b32 {sCAPq}, {CAPX//4}")
    a(f"s_mov_b32 {sMode}, 0")
    a(f"s_mov_b32 {sChunk}, 0")
    a(f"v_mov_b32 {vOne}, 1")
    a(f"v_mov_b32 {v511}, 511")
    a(f"v_mov_b32 {aL1s}, 0x40000000")
    a(f"v_lshrrev_b32 {vT2}, 5, {vL}")
    a(f"v_bfe_u32 {vT0}, {vL}, 2, 2")
    a(f"v_lshl_add_u32 {vT0}, {vT2}, 3, {vT0}")
    a(f"v_lshlrev_b32 {vTRW}, 7, {vT0}")
    a(f"v_bfe_u32 {vT0}, {vL}, 4, 1")
    a(f"v_lshl_add_u32 {vTRW}, {vT0}, 5, {vTRW}")
    a(f"v_and_b32 {vT0}, 3, {vL}")
    a(f"v_lshl_add_u32 {vTRW}, {vT0}, 3, {vTRW}")
    a.c("LDS init: cell image = sentinel, counters = 0")
    for i in range(4): a(f"v_mov_b32 {WH[i]}, -1")
    a(f"v_lshlrev_b32 {vT0}, 6, v0")
    a(f"v_add_u32 {vT0}, {L_HST}, {vT0}")
    for i in range(4): a(f"ds_write_b128 {vT0}, {WH[0:4]} offset:{16*i}")
    a(f"v_and_b32 {vT0}, 0xff, v0")
    a(f"v_lshlrev_b32 {vT0}, 2, {vT0}")
    a(f"ds_write_b32 {vT0}, {vZ[0]} offset:{L_RES}")
    srd(a,sW,"s80","s81",WSB(opt))
    srd(a,sP,"s66","s67",N*6)
    srd(a,sE,"s68","s69",E*32)
    srd(a,sO,"s76","s77",OUT_BYTES)
    srd(a,sT4c,"s78","s79",256)
    a(f"s_add_u32 {sB[0]}, s80, {BPT}")
    a(f"s_addc_u32 {sB[1]}, s81, 0")
    a(f"s_and_b32 {sB[1]}, {sB[1]}, 0xffff")
    a(f"s_mov_b32 {sB[2]}, {N*128}")
    a(f"s_mov_b32 {sB[3]}, 0x20000")
    if opt.get('tlb',0):
        a.c("wave 2 touches one line per 2 MiB of the buffers used later (address translation warm-up, speed only)")
        a(f"s_cmp_lg_u32 {sWave}, 2")
        a("s_cbranch_scc1 K_NOTLB")
        a(f"v_lshlrev_b32 {vT0}, 21, {vL}")
        a(f"v_mov_b32 {vT1}, 0x40000000")
        a(f"v_cmp_gt_u32 vcc, 13, {vL}")
        a("s_nop 1")
        a(f"v_cndmask_b32 {vT0}, {vT1}, {vT0}, vcc")
        a(f"buffer_load_dword {vDUM}, {vT0}, {sE}, 0 offen")
        a(f"buffer_load_dword {vDUM}, {vT0}, {sW}, 0 offen")
        a(f"buffer_load_dword {vDUM}, {vT0}, {sO}, 0 offen")
        a.label("K_NOTLB")
    a.c("workgroup 0 publishes this launch's hand-off tag")
    a(f"s_or_b32 {sTmp}, s2, {sWave}")
    a(f"s_cmp_lg_u32 {sTmp}, 0")
    a("s_cbranch_scc1 K_S_NOTAG")
    a("s_memrealtime s[100:101]")
    a("s_waitcnt lgkmcnt(0)")
    a("s_or_b32 s100, s100, 1")
    a(f"v_mov_b32 {vT0}, s100")
    a(f"buffer_store_dword {vT0}, {vZ[0]}, {sT4c}, 0 offen sc1")
    a.label("K_S_NOTAG")
    a("s_waitcnt lgkmcnt(0)")
    a("s_barrier")
    a(f"s_mul_i32 {sTmp}, s2, {CH}")
    a(f"s_sub_u32 {sLim}, {E}, {sTmp}")
    a(f"s_min_u32 {sLim}, {sLim}, {CH}")
    B4=D2[0:7]; RC=M[0:7]; RK1=D2[8:15]
    def bin_edges(nrec, el_of, waitcnt, masked):
        if masked:
            for u in range(nrec):
                el_of(u,vT1)
                a(f"v_cmp_gt_u32 {sMask[u]}, {sLim}, {vT1}")
        if waitcnt is not None: a(f"s_waitcnt vmcnt({waitcnt})")
        stamp(a,opt,1)
        for u in range(nrec):
            d=DS_[u]; s_=SR_[u]
            a(f"v_mul_hi_u32 {vT2}, {d}, {sK}")
            el_of(u,vT1)
            a(f"v_lshl_or_b32 {RC[u]}, {s_}, 12, {vT1}")
            a(f"v_lshrrev_b32 {B4[u]}, 1, {vT2}")
            a(f"v_mad_u32_u24 {vT3}, {vT2}, {s3125}, {v511}")
            a(f"v_and_b32 {B4[u]}, 0x3fc, {B4[u]}")
            a(f"v_lshrrev_b32 {vT3}, 9, {vT3}")
            if masked: a(f"s_mov_b64 exec, {sMask[u]}")
            a(f"ds_add_rtn_u32 {RK1[u]}, {B4[u]}, {vOne} offset:{L_RES}")
            if masked: a("s_mov_b64 exec, -1")
            a(f"v_sub_u32 {vT3}, {d}, {vT3}")
            a(f"v_and_b32 {vT2}, 7, {vT2}")
            a(f"v_lshl_or_b32 {vT3}, {vT2}, 3, {vT3}")
            a(f"v_lshl_or_b32 {RC[u]}, {vT3}, 26, {RC[u]}")
        a(f"v_mov_b32 {vT3}, {L_HST}")
        a(f"v_mov_b32 {vJ}, {L_NRES+4}")
        for u in range(nrec):
            if not masked: a(f"s_waitcnt lgkmcnt({nrec-1})")
            elif u==0: a("s_waitcnt lgkmcnt(0)")
            a(f"v_cmp_gt_u32 vcc, 32, {RK1[u]}")
            a(f"v_lshlrev_b32 {vT1}, 3, {RK1[u]}")
            a(f"v_lshrrev_b32 {vT2}, 2, {RK1[u]}")
            a(f"v_and_b32 {vT1}, 0x78, {vT1}")
            a(f"v_lshl_add_u32 {AD[0]}, {B4[u]}, 5, {vT3}")
            a(f"v_and_or_b32 {vT1}, {vT2}, 4, {vT1}")
            a(f"v_add_u32 {vT1}, {vT1}, {AD[0]}")
            a(f"v_cndmask_b32 {vT1}, {vJ}, {vT1}, vcc")
            if masked: a(f"s_mov_b64 exec, {sMask[u]}")
            a(f"ds_write_b32 {vT1}, {RC[u]}")
            if masked: a("s_mov_b64 exec, -1")
    a.c("wait for this wave's edges (younger loads: 12 for waves 5,6; 2 for wave 4; the tag store of workgroup 0)")
    a(f"s_mul_i32 {sTmp}, {sWave}, 384")
    a(f"v_lshl_add_u32 {vT0}, {vL}, 1, {sTmp}")
    a(f"s_cmp_eq_u32 {sWave}, 4")
    a("s_cbranch_scc1 K_S_WT4")
    a(f"s_sub_u32 {sTmp}, {sWave}, 5")
    a(f"s_cmp_lt_u32 {sTmp}, 2")
    a("s_cbranch_scc1 K_S_WT56")
    a("s_waitcnt vmcnt(0)")
    a("s_branch K_S_WTD")
    a.label("K_S_WT4")
    a("s_waitcnt vmcnt(2)")
    a("s_branch K_S_WTD")
    a.label("K_S_WT56")
    a("s_waitcnt vmcnt(12)")
    a.label("K_S_WTD")
    def el6(u,r): a(f"v_add_u32 {r}, {128*(u>>1)+(u&1)}, {vT0}")
    def el7(u,r):
        if u<6: el6(u,r)
        else: a(f"v_add_u32 {r}, 3072, {vL}")
    a(f"s_cmp_lt_u32 {sLim}, {CH}")
    a("s_cbranch_scc1 K_S_APPM")
    a(f"s_cmp_eq_u32 {sWave}, 7")
    a("s_cbranch_scc1 K_S_APP7")
    bin_edges(6, el6, None, False)
    a("s_branch K_S_APPD")
    a.label("K_S_APP7")
    bin_edges(7, el7, None, False)
    a("s_branch K_S_APPD")
    a.label("K_S_APPM")
    a(f"s_cmp_eq_u32 {sWave}, 7")
    a("s_cbranch_scc1 K_S_APPM7")
    bin_edges(6, el6, None, True)
    a("s_branch K_S_APPD")
    a.label("K_S_APPM7")
    bin_edges(7, el7, None, True)
    a.label("K_S_APPD")
    load_hwin()
    a(f"s_cmp_lg_u32 {sWave}, 7")
    a("s_cbranch_scc1 K_S_NORAW")
    a.c("wave 7: raw w_e -> LDS (needed after barrier C)")
    for i in range(19):
        a(f"s_mov_b32 {sTmp}, {L_RAWW+i*1024}")
        a(f"s_mov_b32 m0, {sTmp}")
        a(f"s_mov_b32 {sTmp2}, {i*1024}")
        a(f"buffer_load_dwordx4 {vL16}, {sT4b}, {sTmp2} offen lds")
    a.label("K_S_NORAW")
    a.c("waves 0, 5, 6 fetch the hand-off tag")
    a(f"s_lshl_b32 {sTmp}, 1, {sWave}")
    a(f"s_and_b32 {sTmp}, {sTmp}, 0x61")
    a("s_cbranch_scc0 K_S_NOTAG2")
    a(f"buffer_load_dword {aE}, {vZ[0]}, {sT4c}, 0 offen sc1")
    a.label("K_S_NOTAG2")
    a("s_waitcnt lgkmcnt(0)")
    stamp(a,opt,14) if not opt.get('dbgfill',0) else None
    a("s_barrier")
    stamp(a,opt,2)
    def setup_static():
        a(f"v_and_b32 {vT1}, 31, {vL}")
        a(f"v_lshrrev_b32 {vT2}, 5, {vL}")
        a(f"v_lshlrev_b32 {vT0}, 3, {vT2}")
        a(f"v_sub_u32 {vT0}, {vT1}, {vT0}")
        a(f"v_mov_b32 {AD[2]}, 0x3f80")
        a(f"v_mov_b32 {AD[3]}, 0x3f800000")
        for sp in range(2):
            for r in range(4):
                k0=16*sp+2*r
                a(f"v_cmp_eq_u32 vcc, {k0}, {vT0}")
                a(f"v_cmp_eq_u32 {sSave}, {k0+1}, {vT0}")
                a("s_nop 0")
                a(f"v_cndmask_b32 {ID[4*sp+r]}, {vZ[0]}, {AD[2]}, vcc")
                a(f"v_cndmask_b32 {ID[4*sp+r]}, {ID[4*sp+r]}, {AD[3]}, {sSave}")
        a(f"v_cmp_lt_u32 vcc, 31, {vL}")
        a("s_nop 1")
        for i in range(1,4): a(f"v_mov_b32 {ONE[i]}, 0")
        a(f"v_cndmask_b32 {ONE[0]}, {AD[2]}, {vZ[0]}, vcc")
        for i in range(3):
            a(f"v_mov_b32 {PS[i]}, 0"); a(f"v_mov_b32 {PD[i]}, 0")
        a.c("static per-lane addresses of the main loop (window offsets are added after the assignment)")
        a(f"v_and_b32 {vT1}, 31, {vL}")
        a(f"v_lshrrev_b32 {vT2}, 5, {vL}")
        a(f"v_mov_b32 {vT3}, {L_A2}")
        a(f"v_lshl_add_u32 {vE64}, {vT1}, 6, {vT3}")
        a(f"v_bfe_u32 {vT0}, {vL}, 2, 2")
        a(f"v_lshl_add_u32 {vT0}, {vT2}, 2, {vT0}")
        a(f"v_lshl_add_u32 {vTR}, {vT0}, 6, {vT3}")
        a(f"v_bfe_u32 {vT0}, {vL}, 4, 1")
        a(f"v_lshl_add_u32 {vTR}, {vT0}, 5, {vTR}")
        a(f"v_and_b32 {vT0}, 3, {vL}")
        a(f"v_lshl_add_u32 {vTR}, {vT0}, 3, {vTR}")
        a(f"s_lshl_b32 {sHST}, {sWave}, 12")
        a(f"s_add_u32 {sHST}, {sHST}, {L_HST}")
        for i in range(4): a(f"s_add_u32 {sM0[i]}, {sHST}, {1024*i}")
        a(f"v_and_b32 {vT0}, 3, {vT1}")
        a(f"v_bfe_u32 {vT3}, {vT1}, 4, 1")
        a(f"v_lshl_or_b32 {vT3}, {vT3}, 2, {vT0}")
        a(f"v_lshlrev_b32 {vT0}, 3, {vT0}")
        a(f"v_lshrrev_b32 {vJ}, 2, {vT1}")
        a(f"v_add_u32 {vT0}, {vT0}, {vJ}")
        a(f"v_lshl_add_u32 {vT0}, {vT0}, 7, {sHST}")
        for s_ in range(4):
            a(f"v_add_u32 {vJ}, {2*s_}, {vT2}")
            a(f"v_xor_b32 {vJ}, {vJ}, {vT3}")
            a(f"v_lshl_add_u32 {vHA[s_]}, {vJ}, 4, {vT0}")
        a(f"v_and_b32 {vT0}, 7, {vL}")
        a(f"v_lshlrev_b32 {vT3}, 2, {vT2}")
        a(f"v_xor_b32 {vT0}, {vT0}, {vT3}")
        for i in range(4):
            a(f"v_xor_b32 {vJ}, {i}, {vT0}")
            a(f"v_lshlrev_b32 {vKD[i]}, 4, {vJ}")
        a(f"s_mov_b32 {sCAP}, {CAP}")
        a(f"s_sub_u32 {sTgt}, 11, {sWave}")
        a(f"s_cmp_lt_u32 {sWave}, 4")
        a(f"s_cselect_b32 {sTgt}, {sWave}, {sTgt}")
        a(f"v_lshrrev_b32 {aPS}, 3, {vL}")
        a(f"v_and_b32 {aPD}, 7, {vL}")
        a(f"v_lshlrev_b32 {aOH}, 2, {aPS}")
        a(f"v_lshlrev_b32 {SS}, 2, {aPD}")
    a(f"s_cmp_gt_u32 {sWave}, 3")
    a("s_cbranch_scc1 K_S_NOCOPY")
    a.c("waves 0..3 copy the cell image out: eight 16 B pieces per thread")
    a(f"v_lshlrev_b32 {vT0}, 4, v0")
    a(f"v_add_u32 {vT0}, {L_HST}, {vT0}")
    a(f"v_lshrrev_b32 {vT1}, 3, v0")
    a(f"v_lshlrev_b32 {vT2}, 2, {vT1}")
    CP=[D1[4*k:4*k+4] for k in range(8)]
    for k in range(4):
        a(f"ds_read_b128 {CP[k]}, {vT0} offset:{4096*k}")
        a(f"ds_read_b32 {D2[k]}, {vT2} offset:{L_RES+128*k}")
    a(f"v_and_b32 {vT3}, 7, v0")
    a(f"v_cmp_eq_u32 vcc, 0, {vT3}")
    a(f"v_mov_b32 {vJ}, -1")
    a(f"v_lshlrev_b32 {vT1}, 15, {vT1}")
    a(f"v_cndmask_b32_e64 {AD[1]}, -1, -2, vcc")
    a(f"v_lshl_add_u32 {vT1}, {vT3}, 4, {vT1}")
    a(f"s_lshl_b32 {sTmp}, s2, 7")
    for k in range(8):
        if k<4:
            a(f"ds_read_b128 {CP[k+4]}, {vT0} offset:{4096*(k+4)}")
            a(f"ds_read_b32 {D2[k+4]}, {vT2} offset:{L_RES+128*(k+4)}")
            a("s_waitcnt lgkmcnt(8)")
        else:
            a(f"s_waitcnt lgkmcnt({2*(7-k)})")
        a(f"v_cmp_lt_u32 vcc, 32, {D2[k]}")
        a(f"s_add_u32 {sTmp2}, {sTmp}, {k*32*32768}")
        a("s_nop 0")
        a(f"v_cndmask_b32 {CP[k][0]}, {CP[k][0]}, {AD[1]}, vcc")
        for i in range(1,4): a(f"v_cndmask_b32 {CP[k][i]}, {CP[k][i]}, {vJ}, vcc")
        a(f"buffer_store_dwordx4 {CP[k]}, {vT1}, {sW}, {sTmp2} offen{ST}")
    a("s_branch K_S_STATIC")
    a.label("K_S_NOCOPY")
    a(f"s_sub_u32 {sTmp}, {sWave}, 5")
    a(f"s_cmp_lt_u32 {sTmp}, 2")
    a("s_cbranch_scc0 K_S_POS")
    a.c("waves 5,6: source-node table B' = -log2e * h @ W2 for 32 nodes")
    a(f"v_add_u32 {vT0}, {sC}, {vTRW}")
    a("s_waitcnt vmcnt(5)")
    for s_ in range(4):
        for x in range(2):
            for th in range(2):
                r=(s_*2+x)*4+2*th
                a(f"ds_read_b64_tr_b16 {D1[r:r+2]}, {vT0} offset:{s_*2048+th*512+x*64}")
    a("s_waitcnt lgkmcnt(0)")
    for x in range(2):
        for s_ in range(4):
            r=(s_*2+x)*4
            mfma(a,D2[16*x:16*x+16],D1[r:r+4],HA[4*s_:4*s_+4],"0" if s_==0 else D2[16*x:16*x+16])
    a(f"s_mul_i32 {sTmp}, {sI}, {32*144}")
    a(f"s_add_u32 {sTmp}, {sTmp}, {L_BST}")
    a(f"v_and_b32 {vT1}, 31, {vL}")
    a(f"v_mul_u32_u24 {vT1}, 144, {vT1}")
    a(f"v_lshrrev_b32 {vT2}, 5, {vL}")
    a(f"v_lshl_add_u32 {vT1}, {vT2}, 3, {vT1}")
    a(f"v_add_u32 {vT1}, {sTmp}, {vT1}")
    a(f"v_lshrrev_b32 {vT2}, 3, {vL}")
    a(f"v_mul_u32_u24 {vT3}, 144, {vT2}")
    a(f"v_and_b32 {vJ}, 7, {vL}")
    a(f"v_lshl_add_u32 {vT3}, {vJ}, 4, {vT3}")
    a(f"v_add_u32 {vT3}, {sTmp}, {vT3}")
    a(f"s_mov_b32 {sTmp2}, {NEG_LOG2E}")
    a.nop(4)
    for x in range(2):
        for q in range(16): a(f"v_mul_f32 {D2[16*x+q]}, {sTmp2}, {D2[16*x+q]}")
        for qq in range(4):
            b=16*x+4*qq
            a(f"v_cvt_pk_bf16_f32 {E01[0]}, {D2[b]}, {D2[b+1]}")
            a(f"v_cvt_pk_bf16_f32 {E01[1]}, {D2[b+2]}, {D2[b+3]}")
            a(f"ds_write_b64 {vT1}, {E01} offset:{x*64+qq*16}")
            a("s_nop 0")
    for i in range(4): a(f"ds_read_b128 {D1[4*i:4*i+4]}, {vT3} offset:{i*8*144}")
    a(f"s_lshl_b32 {sTmp2}, {sI}, 5")
    a(f"v_add_u32 {vT2}, {sTmp2}, {vT2}")
    a(f"s_mul_i32 {sTmp}, s2, {NPW}")
    a(f"v_add_u32 {vT0}, {sTmp}, {vT2}")
    a(f"v_lshlrev_b32 {vT1}, 7, {vT0}")
    a(f"v_lshl_add_u32 {vT1}, {vJ}, 4, {vT1}")
    a(f"v_mov_b32 {vJ}, 0x40000000")
    a("s_waitcnt lgkmcnt(0)")
    for i in range(4):
        a(f"v_add_u32 {vT3}, {8*i}, {vT2}")
        a(f"v_cmp_gt_u32 vcc, {NPW}, {vT3}")
        a(f"v_add_u32 {AD[0]}, {1024*i}, {vT1}")
        a("s_nop 0")
        a(f"v_cndmask_b32 {AD[0]}, {vJ}, {AD[0]}, vcc")
        a(f"buffer_store_dwordx4 {D1[4*i:4*i+4]}, {AD[0]}, {sB}, 0 offen{ST}")
    a("s_waitcnt vmcnt(4)")
    a("s_branch K_S_STATIC")
    a.label("K_S_POS")
    a.label("K_S_STATIC")
    setup_static()
    a.c("waves 0..3: every cell store has left; waves 4, 7: raw w_e / window rows landed; waves 5, 6 signal their rows later")
    a(f"s_sub_u32 {sTmp}, {sWave}, 5")
    a(f"s_cmp_lt_u32 {sTmp}, 2")
    a("s_cbranch_scc1 K_S_PREC")
    a("s_waitcnt vmcnt(0)")
    a.label("K_S_PREC")
    a("s_waitcnt lgkmcnt(0)")
    stamp(a,opt,15) if not opt.get('dbgfill',0) else None
    a("s_barrier")
    stamp(a,opt,3)
    def have_tag(lbl):
        a(f"s_mov_b32 {sPoll}, 0")
        a.label(lbl)
        a(f"v_readfirstlane_b32 {sNonce}, {aE}")
        a("s_nop 3")
        a(f"s_cmp_lg_u32 {sNonce}, 0")
        a(f"s_cbranch_scc1 {lbl}_OK")
        a(f"s_add_u32 {sPoll}, {sPoll}, 1")
        a(f"s_cmp_gt_u32 {sPoll}, 200000")
        a(f"s_cbranch_scc1 {lbl}_OK")
        a("s_sleep 2")
        a(f"buffer_load_dword {aE}, {vZ[0]}, {sT4c}, 0 offen sc1")
        a("s_waitcnt vmcnt(0)")
        a(f"s_branch {lbl}")
        a.label(f"{lbl}_OK")
    a(f"s_cmp_lg_u32 {sWave}, 0")
    a("s_cbranch_scc1 K_G_NOT0")
    a.c("wave 0: signal this workgroup's cells, publish the tag to the workgroup")
    have_tag("K_G_TAG")
    a(f"s_lshl_b32 {sTmp}, s2, 4")
    a(f"s_add_u32 {sTmp}, {sTmp}, {FLG}")
    a(f"v_mov_b32 {vT0}, {sNonce}")
    a(f"buffer_store_dword {vT0}, {vZ[0]}, {sW}, {sTmp} offen sc1")
    a(f"ds_write_b32 {vZ[0]}, {vT0} offset:{L_NRES+8}")
    a("s_branch K_G_SETUP")
    a.label("K_G_NOT0")
    a(f"s_cmp_lt_u32 {sWave}, 4")
    a("s_cbranch_scc1 K_G_WH")
    a(f"s_sub_u32 {sTmp}, {sWave}, 5")
    a(f"s_cmp_lt_u32 {sTmp}, 2")
    a("s_cbranch_scc1 K_G_SETUP")
    a.c("waves 4, 7: pos table -> LDS (37 pieces each)")
    a(f"s_cmp_eq_u32 {sWave}, 7")
    a(f"s_cselect_b32 {sI}, {37*1024}, 0")
    for i in range(37):
        a(f"s_add_u32 {sTmp}, {sI}, {i*1024}")
        a(f"s_add_u32 {sTmp2}, {sTmp}, {L_POS}")
        a(f"s_mov_b32 m0, {sTmp2}")
        a("s_nop 0")
        a(f"buffer_load_dwordx4 {vL16}, {sP}, {sTmp} offen lds")
    a("s_branch K_G_SETUP")
    a.label("K_G_WH")
    a.c("waves 1..3: raw w_h -> staging area")
    a("s_load_dwordx2 s[64:65], s[0:1], 56")
    a(f"s_sub_u32 {sI}, {sWave}, 1")
    a("s_waitcnt lgkmcnt(0)")
    srd(a,sT4b,"s64","s65",128*128)
    for k in range(6):
        a(f"s_add_u32 {sTmp}, {sI}, {3*k}")
        a(f"s_min_u32 {sTmp}, {sTmp}, 15")
        a(f"s_lshl_b32 {sTmp}, {sTmp}, 10")
        a(f"s_add_u32 {sTmp2}, {sTmp}, {L_HST}")
        a(f"s_mov_b32 m0, {sTmp2}")
        a("s_nop 0")
        a(f"buffer_load_dwordx4 {vL16}, {sT4b}, {sTmp} offen lds")
    a.label("K_G_SETUP")
    a.c("operands from raw w_e: W1 (for A'), W4', wd'")
    W1=D2
    a(f"v_add_u32 {vT0}, {L_RAWW}, {vTRW}")
    for s_ in range(4):
        for x in range(2):
            for th in range(2):
                r=(s_*2+x)*4+2*th
                a(f"ds_read_b64_tr_b16 {W1[r:r+2]}, {vT0} offset:{s_*2048+th*512+x*64}")
    W4R=HA[0:8]
    for x in range(2):
        for th in range(2):
            a(f"ds_read_b64_tr_b16 {W4R[4*x+2*th:4*x+2*th+2]}, {vT0} offset:{129*128+th*512+x*64}")
    WD=M[0:2]
    a(f"v_mov_b32 {WD[0]}, 0")
    a(f"v_mov_b32 {WD[1]}, 0")
    a(f"v_and_b32 {vT1}, 31, {vL}")
    a(f"v_lshlrev_b32 {vT2}, 1, {vT1}")
    a(f"v_add_u32 {vT2}, {L_RAWW+128*128}, {vT2}")
    a(f"ds_read_u16_d16_hi {WD[0]}, {vT2}")
    a(f"ds_read_u16_d16_hi {WD[1]}, {vT2} offset:64")
    a("s_waitcnt lgkmcnt(0)")
    for x in range(2):
        for s_ in range(4):
            mfma(a,D1[16*x:16*x+16],HW[4*s_:4*s_+4],W1[(s_*2+x)*4:(s_*2+x)*4+4],"0" if s_==0 else D1[16*x:16*x+16])
    a(f"s_mov_b32 {sTmp}, {NEG_LOG2E}")
    for i in range(8):
        a(f"v_lshlrev_b32 {vT0}, 16, {W4R[i]}")
        a(f"v_and_b32 {vT2}, 0xffff0000, {W4R[i]}")
        a(f"v_mul_f32 {vT0}, {sTmp}, {vT0}")
        a(f"v_mul_f32 {vT2}, {sTmp}, {vT2}")
        a(f"v_cvt_pk_bf16_f32 {WE[i]}, {vT0}, {vT2}")
    a(f"v_cmp_lt_u32 vcc, 31, {vL}")
    for x in range(2):
        a(f"v_mul_f32 {WD[x]}, {sTmp}, {WD[x]}")
        a(f"v_cvt_pk_bf16_f32 {vT0}, {WD[x]}, {WD[x]}")
        a(f"v_and_b32 {vT0}, 0xffff0000, {vT0}")
        a(f"v_sub_f32 {vT2}, {WD[x]}, {vT0}")
        a(f"v_cvt_pk_bf16_f32 {vT2}, {vT2}, {vT2}")
        a(f"v_and_b32 {vT2}, 0xffff0000, {vT2}")
        a(f"v_cndmask_b32 {WD[x]}, {vT0}, {vT2}, vcc")
    a(f"s_cmp_lg_u32 {sWave}, 0")
    a("s_cbranch_scc1 K_G_NOEARLY")
    a(f"s_mov_b32 {sTmp2}, {FLG}")
    for k in range(4): a(f"buffer_load_dword {AD[k]}, {vL16}, {sW}, {sTmp2} offen offset:{1024*k} sc1")
    a.label("K_G_NOEARLY")
    a(f"v_cmp_lt_u32 vcc, 31, {vL}")
    a(f"v_mov_b32 {vJ}, 0xffff")
    for x in range(2):
        for r in range(4):
            q0,q1=D1[16*x+2*r],D1[16*x+2*r+1]
            a(f"v_mul_f32 {q0}, {sTmp}, {q0}")
            a(f"v_mul_f32 {q1}, {sTmp}, {q1}")
            a(f"v_cvt_pk_bf16_f32 {vT0}, {q0}, {q1}")
            a(f"v_lshlrev_b32 {vT1}, 16, {vT0}")
            a(f"v_and_b32 {vT2}, 0xffff0000, {vT0}")
            a(f"v_sub_f32 {vT1}, {q0}, {vT1}")
            a(f"v_sub_f32 {vT2}, {q1}, {vT2}")
            a(f"v_cvt_pk_bf16_f32 {vT1}, {vT1}, {vT2}")
            a(f"v_cndmask_b32 {WA[4*x+r]}, {vT0}, {vT1}, vcc")
        a(f"v_bfi_b32 {WA[4*x+3]}, {vJ}, {WA[4*x+3]}, {WD[x]}")
    a(f"s_lshl_b32 {sTmp}, {sWave}, 11")
    a(f"s_add_u32 {sTmp}, {sTmp}, {L_A2}")
    a(f"v_lshl_add_u32 {vT0}, {vL}, 5, {sTmp}")
    a(f"ds_write_b128 {vT0}, {WA[0:4]}")
    a(f"ds_write_b128 {vT0}, {WA[4:8]} offset:16")
    for i in range(32): a(f"v_mov_b32 {D2[i]}, 0")
    a(f"s_sub_u32 {sTmp}, {sWave}, 5")
    a(f"s_cmp_lt_u32 {sTmp}, 2")
    a("s_cbranch_scc0 K_G_NOFLG2")
    a.c("waves 5,6: their rows have left -> signal them")
    a("s_waitcnt vmcnt(0)")
    have_tag("K_G_TAG2")
    a(f"s_lshl_b32 {sTmp}, s2, 1")
    a(f"s_add_u32 {sTmp}, {sTmp}, {sWave}")
    a(f"s_sub_u32 {sTmp}, {sTmp}, 5")
    a(f"s_lshl_b32 {sTmp}, {sTmp}, 4")
    a(f"s_add_u32 {sTmp}, {sTmp}, {FLG2}")
    a(f"v_mov_b32 {vT0}, {sNonce}")
    a(f"buffer_store_dword {vT0}, {vZ[0]}, {sW}, {sTmp} offen sc1")
    a.label("K_G_NOFLG2")
    a(f"s_cmp_lg_u32 {sWave}, 0")
    a("s_cbranch_scc1 K_G_WAIT")
    a.c("wave 0: wait for all 256 hand-offs (the first round of flag loads is already in flight)")
    a(f"s_mov_b32 {sTmp2}, {FLG}")
    a("s_branch K_G_POLL1")
    a.label("K_G_POLL")
    for k in range(4): a(f"buffer_load_dword {AD[k]}, {vL16}, {sW}, {sTmp2} offen offset:{1024*k} sc1")
    a.label("K_G_POLL1")
    a("s_waitcnt vmcnt(0)")
    a(f"v_cmp_eq_u32 {sAny}, {sNonce}, {AD[0]}")
    a(f"v_cmp_eq_u32 {sSave}, {sNonce}, {AD[1]}")
    a(f"v_cmp_eq_u32 vcc, {sNonce}, {AD[2]}")
    a("s_nop 1")
    a(f"s_and_b64 {sAny}, {sAny}, {sSave}")
    a(f"v_cmp_eq_u32 {sSave}, {sNonce}, {AD[3]}")
    a(f"s_and_b64 {sAny}, {sAny}, vcc")
    a("s_nop 1")
    a(f"s_and_b64 {sAny}, {sAny}, {sSave}")
    a(f"s_cmp_eq_u64 {sAny}, -1")
    a("s_cbranch_scc1 K_G_WAIT")
    a(f"s_add_u32 {sPoll}, {sPoll}, 1")
    a(f"s_cmp_lt_u32 {sPoll}, 200000")
    a("s_cbranch_scc1 K_G_POLL")
    a.label("K_G_WAIT")
    a.c("waves 4 and 7 keep their pos pieces in flight: their cell loads return behind them")
    a(f"s_lshl_b32 {sTmp}, 1, {sWave}")
    a(f"s_and_b32 {sTmp}, {sTmp}, 0x90")
    a("s_cbranch_scc1 K_G_WAIT47")
    a("s_waitcnt vmcnt(0)")
    a.label("K_G_WAIT47")
    a("s_waitcnt lgkmcnt(0)")
    for _ in range(opt.get('delay',0)): a("s_sleep 32")
    a("s_barrier")
    stamp(a,opt,4)
    RECP=D1[0:16]; REC=[RECP[2*i] for i in range(8)]+[RECP[2*i+1] for i in range(8)]; WAD=D1[16:32]; RK=HA
    a.c("cell records of this bin: pair s holds slots m and 16+m (m = l&15) of cell 32s+4v+(l>>4)")
    a(f"s_lshl_b32 {sTmp}, s2, 15")
    a(f"s_lshl_b32 {sTmp2}, {sWave}, 9")
    a(f"s_add_u32 {sTmp}, {sTmp}, {sTmp2}")
    a(f"v_lshl_add_u32 {vT0}, {vL}, 3, {sTmp}")
    ROT=opt.get('rot',0)
    if ROT==1: a(f"s_getreg_b32 {sRot}, hwreg(HW_REG_XCC_ID, 0, 4)")
    elif ROT==2: a(f"s_and_b32 {sRot}, s2, 7")
    elif ROT==3:
        a(f"s_getreg_b32 {sRot}, hwreg(HW_REG_XCC_ID, 0, 4)")
        a(f"s_and_b32 {sRot}, {sRot}, 3")
        a(f"s_lshl_b32 {sRot}, {sRot}, 1")
    else: a(f"s_mov_b32 {sRot}, 0")
    def pair_index(dst,s_):
        a(f"s_add_u32 {dst}, {sRot}, {s_}")
        a(f"s_and_b32 {dst}, {dst}, 7")
    for s_ in range(8):
        pair_index(sTmp,s_)
        a(f"s_lshl_b32 {sTmp}, {sTmp}, 12")
        a(f"buffer_load_dwordx2 {RECP[2*s_:2*s_+2]}, {vT0}, {sW}, {sTmp} offen{LD}")
    a(f"v_lshlrev_b32 {vT2}, 1, {vL}")
    a(f"v_and_b32 {vT2}, 62, {vT2}")
    a("s_load_dwordx2 s[98:99], s[0:1], 48")
    a.c("node-update weights (transposed reads of raw w_h), waves 0..3 use them")
    a(f"s_and_b32 {sTmp}, {sWave}, 1")
    a(f"s_lshl_b32 {sTmp}, {sTmp}, 6")
    a(f"s_add_u32 {sTmp}, {sTmp}, {L_HST}")
    a(f"v_add_u32 {vT1}, {sTmp}, {vTRW}")
    for s_ in range(8):
        for th in range(2):
            a(f"ds_read_b64_tr_b16 {WH[4*s_+2*th:4*s_+2*th+2]}, {vT1} offset:{s_*2048+th*512}")
            if (2*s_+th)==7: a("s_waitcnt lgkmcnt(0)")
    srd(a,sT4,"s98","s99",128)
    a(f"v_mov_b32 {WX[0]}, 0")
    a(f"v_mov_b32 {WX[1]}, 0")
    a(f"buffer_load_short_d16_hi {WX[0]}, {vT2}, {sT4}, 0 offen")
    a(f"buffer_load_short_d16_hi {WX[1]}, {vT2}, {sT4}, 0 offen offset:64")
    a("s_waitcnt vmcnt(2)")
    stamp(a,opt,5)
    a(f"s_mov_b64 {sAny}, 0")
    for s_ in range(16):
        a(f"v_cmp_gt_u32 {sMask[s_]}, {sMark}, {REC[s_]}")
        if s_<8:
            a(f"v_cmp_eq_u32 vcc, {sMark}, {REC[s_]}")
        a(f"v_lshrrev_b32 {WAD[s_]}, 27, {REC[s_]}")
        a(f"v_and_b32 {WAD[s_]}, 0x1c, {WAD[s_]}")
        if s_<8: a(f"s_or_b64 {sAny}, {sAny}, vcc")
    order=[x for p in range(8) for x in (p,8+p)]
    for n_,s_ in enumerate(order):
        a(f"s_mov_b64 exec, {sMask[s_]}")
        if s_>=8: a(f"s_cbranch_execz K2_A{s_}")
        a(f"ds_add_rtn_u32 {RK[s_]}, {WAD[s_]}, {vOne} offset:{L_CNT}")
        if s_>=8: a.label(f"K2_A{s_}")
        if n_==7:
            a("s_waitcnt lgkmcnt(4)")
    a("s_mov_b64 exec, -1")
    FL=A2R
    def flg2_loads():
        a(f"s_mov_b32 {sTmp2}, {FLG2}")
        for k in range(4): a(f"buffer_load_dword {FL[k]}, {vL16}, {sW}, {sTmp2} offen offset:{1024*k} sc1")
        a(f"s_mov_b32 {sTmp2}, {FLG2+4096}")
        for k in range(4): a(f"buffer_load_dword {FL[4+k]}, {vL16}, {sW}, {sTmp2} offen offset:{1024*k} sc1")
    a(f"s_cmp_lg_u32 {sWave}, 1")
    a("s_cbranch_scc1 K2_NOF2A")
    a.c("wave 1: flags of the source-node table (checked before barrier 2)")
    flg2_loads()
    a(f"ds_read_b32 {aE}, {vZ[0]} offset:{L_NRES+8}")
    a.label("K2_NOF2A")
    a(f"s_lshl_b32 {sTmp}, {sWave}, 2")
    a(f"v_lshrrev_b32 {vT0}, 4, {vL}")
    a(f"v_add_u32 {vT0}, {sTmp}, {vT0}")
    a(f"v_mul_u32_u24 {vT0}, {CH}, {vT0}")
    a(f"v_mov_b32 {vT1}, {L_L0}")
    a(f"v_mov_b32 {vT2}, {L_L1}")
    a("s_waitcnt lgkmcnt(0)")
    for s_ in order:
        a(f"s_mov_b64 exec, {sMask[s_]}")
        if s_>=8: a(f"s_cbranch_execz K2_B{s_}")
        pair_index(sTmp,s_&7)
        a(f"s_mul_i32 {sTmp}, {sTmp}, {32*CH}")
        a(f"v_min_u32 {RK[s_]}, {CAPX-1}, {RK[s_]}")
        a(f"v_and_b32 {vT3}, 0xfff, {REC[s_]}")
        a(f"v_mad_u32_u24 {RK[s_]}, {WAD[s_]}, {sCAPq}, {RK[s_]}")
        a(f"v_add3_u32 {vT3}, {vT3}, {vT0}, {sTmp}")
        a(f"v_bfe_u32 {vJ}, {REC[s_]}, 26, 3")
        a(f"v_lshl_add_u32 {AD[0]}, {RK[s_]}, 2, {vT1}")
        a(f"v_lshl_or_b32 {vT3}, {vT3}, 5, {vJ}")
        a(f"v_lshl_add_u32 {AD[1]}, {RK[s_]}, 1, {vT2}")
        a(f"v_bfe_u32 {vJ}, {REC[s_]}, 12, 14")
        a(f"ds_write_b32 {AD[0]}, {vT3}")
        a(f"ds_write_b16 {AD[1]}, {vJ}")
        if s_>=8: a.label(f"K2_B{s_}")
    a("s_mov_b64 exec, -1")
    NE=opt.get('epf',0)
    if NE:
        a.c("L2 warm-up of the e_attr lines of the first records (speed only; results are never read)")
        a(f"s_lshl_b32 {sTmp}, {sWave}, 2")
        a(f"v_lshrrev_b32 {vT0}, 4, {vL}")
        a(f"v_add_u32 {vT0}, {sTmp}, {vT0}")
        a(f"v_mul_u32_u24 {vT0}, {CH}, {vT0}")
        a(f"v_mov_b32 {vT2}, 0x2000000")
        for k in range(NE):
            a(f"v_cmp_gt_u32 vcc, {sMark}, {REC[k]}")
            a(f"v_and_b32 {vT1}, 0xfff, {REC[k]}")
            pair_index(sTmp,k)
            a(f"s_mul_i32 {sTmp}, {sTmp}, {32*CH}")
            a(f"v_add3_u32 {vT1}, {vT1}, {vT0}, {sTmp}")
            a(f"v_cndmask_b32 {vT1}, {vT2}, {vT1}, vcc")
            a(f"v_lshlrev_b32 {vT1}, 5, {vT1}")
            a(f"buffer_load_dword {vDUM}, {vT1}, {sE}, 0 offen")
    a.c("overflowed cells -> rescan list (rare)")
    a(f"s_cmp_eq_u64 {sAny}, 0")
    a("s_cbranch_scc1 K2_NOMARK")
    a(f"v_lshrrev_b32 {vT0}, 4, {vL}")
    a(f"s_lshl_b32 {sTmp}, {sWave}, 2")
    a(f"v_add_u32 {vT0}, {sTmp}, {vT0}")
    a(f"v_mov_b32 {vT1}, {L_NRES}")
    for s_ in range(8):
        a(f"v_cmp_eq_u32 vcc, {sMark}, {REC[s_]}")
        a(f"s_and_saveexec_b64 {sSave}, vcc")
        a(f"s_cbranch_execz K2_MK{s_}")
        a(f"ds_add_rtn_u32 {vT2}, {vT1}, {vOne}")
        pair_index(sTmp,s_)
        a(f"s_lshl_b32 {sTmp}, {sTmp}, 5")
        a(f"v_add_u32 {vT3}, {sTmp}, {vT0}")
        a("s_waitcnt lgkmcnt(0)")
        a(f"v_lshlrev_b32 {vT2}, 2, {vT2}")
        a(f"ds_write_b32 {vT2}, {vT3} offset:{L_RES}")
        a.label(f"K2_MK{s_}")
        a(f"s_mov_b64 exec, {sSave}")
    a.label("K2_NOMARK")
    a("s_load_dwordx2 s[64:65], s[0:1], 0")
    a("s_waitcnt vmcnt(0) lgkmcnt(0)")
    a(f"s_cmp_lg_u32 {sWave}, 1")
    a("s_cbranch_scc1 K2_NOF2B")
    a(f"v_readfirstlane_b32 {sNonce}, {aE}")
    a(f"s_mov_b32 {sPoll}, 0")
    a.label("K2_F2CHK")
    a(f"v_cmp_eq_u32 {sAny}, {sNonce}, {FL[0]}")
    for k in range(1,8):
        a(f"v_cmp_eq_u32 vcc, {sNonce}, {FL[k]}")
        a("s_nop 1")
        a(f"s_and_b64 {sAny}, {sAny}, vcc")
    a(f"s_cmp_eq_u64 {sAny}, -1")
    a("s_cbranch_scc1 K2_NOF2B")
    a(f"s_add_u32 {sPoll}, {sPoll}, 1")
    a(f"s_cmp_gt_u32 {sPoll}, 200000")
    a("s_cbranch_scc1 K2_NOF2B")
    flg2_loads()
    a("s_waitcnt vmcnt(0)")
    a("s_branch K2_F2CHK")
    a.label("K2_NOF2B")
    srd(a,sHs,"s64","s65",N*128)
    a(f"s_mov_b32 {sTmp}, {NEG_LN2}")
    a(f"v_mul_f32 {WX[0]}, {sTmp}, {WX[0]}")
    a(f"v_mul_f32 {WX[1]}, {sTmp}, {WX[1]}")
    stamp(a,opt,6)
    a("s_barrier")
    stamp(a,opt,7)
    a.c("window sizes (lane = pair i,k) and the rescan count")
    a(f"v_mov_b32 {vT0}, {L_NRES}")
    a(f"ds_read_b32 {vT1}, {vT0}")
    a(f"ds_read_b32 {vT2}, {aOH} offset:{L_CNT}")
    a(f"ds_read_b32 {vT3}, {SS} offset:{L_CNT}")
    a("s_waitcnt lgkmcnt(0)")
    a(f"v_readfirstlane_b32 {sNR}, {vT1}")
    a(f"v_min_u32 {vT0}, 0xffffff, {vT2}")
    a(f"v_min_u32 {vJ}, 0xffffff, {vT3}")
    a(f"s_cmp_eq_u32 {sNR}, 0")
    a("s_cbranch_scc1 K2_CHECK")
    a(f"s_min_u32 {sNR}, {sNR}, 256")
    a(f"s_mov_b32 {sI}, 0")
    a.label("K2_RESCAN_I")
    a(f"s_lshl_b32 {sTmp}, {sI}, 2")
    a(f"s_add_u32 {sTmp}, {sTmp}, {L_RES}")
    a(f"v_mov_b32 {vT0}, {sTmp}")
    a(f"ds_read_b32 {vT1}, {vT0}")
    a("s_waitcnt lgkmcnt(0)")
    a(f"v_readfirstlane_b32 {sWsrc}, {vT1}")
    a("s_nop 3")
    a(f"s_min_u32 {sWsrc}, {sWsrc}, 255")
    a(f"s_mov_b32 {sC}, 0")
    a.label("K2_RESCAN_C")
    def append_raw(lim_local):
        a(f"v_lshlrev_b32 {vT1}, 2, {vT0}")
        a(f"buffer_load_dword {AD[0]}, {vT1}, {sD}, 0 offen")
        a(f"buffer_load_dword {AD[1]}, {vT1}, {sS}, 0 offen")
        a("s_waitcnt vmcnt(0)")
        a(f"v_mul_hi_u32 {vT2}, {AD[0]}, {sK}")
        a(f"v_lshrrev_b32 {vT3}, 3, {vT2}")
        a(f"v_cmp_eq_u32 vcc, s2, {vT3}")
        a("s_nop 1")
        a(f"s_and_b64 vcc, vcc, {sAny}")
        a(f"s_and_saveexec_b64 {sSave}, vcc")
        a(f"s_cbranch_execz {lim_local}")
        a(f"v_mad_u32_u24 {vT3}, {vT2}, {s3125}, {v511}")
        a(f"v_and_b32 {vT2}, 7, {vT2}")
        a(f"v_lshrrev_b32 {vT3}, 9, {vT3}")
        a(f"v_lshlrev_b32 {vT2}, 2, {vT2}")
        a(f"v_sub_u32 {vT3}, {AD[0]}, {vT3}")
        a(f"ds_add_rtn_u32 {AD[2]}, {vT2}, {vOne} offset:{L_CNT}")
        a(f"v_lshl_or_b32 {vT0}, {vT0}, 5, {vT3}")
        a("s_waitcnt lgkmcnt(0)")
        a(f"v_min_u32 {AD[2]}, {CAPX-1}, {AD[2]}")
        a(f"v_mad_u32_u24 {AD[2]}, {vT2}, {sCAPq}, {AD[2]}")
        a(f"v_mov_b32 {vT2}, {L_L0}")
        a(f"v_mov_b32 {vT3}, {L_L1}")
        a(f"v_lshl_add_u32 {vT2}, {AD[2]}, 2, {vT2}")
        a(f"v_lshl_add_u32 {vT3}, {AD[2]}, 1, {vT3}")
        a(f"ds_write_b32 {vT2}, {vT0}")
        a(f"ds_write_b16 {vT3}, {AD[1]}")
        a.label(lim_local)
        a(f"s_mov_b64 exec, {sSave}")
    a(f"s_lshl_b32 {sTmp}, {sC}, 9")
    a(f"v_add_u32 {vT1}, {sTmp}, v0")
    a(f"s_mul_i32 {sTmp2}, {sWsrc}, {CH}")
    a(f"v_add_u32 {vT0}, {sTmp2}, {vT1}")
    a(f"v_cmp_gt_u32 vcc, {CH}, {vT1}")
    a(f"s_mov_b32 {sTmp}, {E}")
    a(f"v_cmp_gt_u32 {sAny}, {sTmp}, {vT0}")
    a("s_nop 1")
    a(f"s_and_b64 {sAny}, {sAny}, vcc")
    append_raw("K2_RA1")
    a(f"s_add_u32 {sC}, {sC}, 1")
    a(f"s_cmp_lt_u32 {sC}, 7")
    a("s_cbranch_scc1 K2_RESCAN_C")
    a(f"s_add_u32 {sI}, {sI}, 1")
    a(f"s_cmp_lt_u32 {sI}, {sNR}")
    a("s_cbranch_scc1 K2_RESCAN_I")
    a("s_waitcnt lgkmcnt(0)")
    a("s_barrier")
    a(f"ds_read_b32 {vT2}, {aOH} offset:{L_CNT}")
    a(f"ds_read_b32 {vT3}, {SS} offset:{L_CNT}")
    a("s_waitcnt lgkmcnt(0)")
    a(f"v_min_u32 {vT0}, 0xffffff, {vT2}")
    a(f"v_min_u32 {vJ}, 0xffffff, {vT3}")
    a.label("K2_CHECK")
    a.c("window assignment by size rank")
    a(f"v_lshl_or_b32 {vT0}, {vT0}, 3, {aPS}")
    a(f"v_lshl_or_b32 {vJ}, {vJ}, 3, {aPD}")
    a(f"v_cmp_lt_u32 {sAny}, {sCAP}, {vT3}")
    a(f"v_cmp_gt_u32 vcc, {vJ}, {vT0}")
    a(f"s_mov_b32 {sWin}, 0")
    a("s_nop 2")
    for i in range(8):
        a(f"s_bfe_u32 {sTmp}, {'vcc_lo' if i<4 else 'vcc_hi'}, {(8<<16)|(8*(i&3))}")
        a(f"s_bcnt1_i32_b32 {sTmp}, {sTmp}")
        a(f"s_cmp_eq_u32 {sTmp}, {sTgt}")
        a(f"s_cselect_b32 {sWin}, {i}, {sWin}")
    if opt.get('nobal',0): a(f"s_mov_b32 {sWin}, {sWave}")
    a(f"s_lshl_b32 {sTmp}, {sWin}, 3")
    a(f"v_readlane_b32 {sCnt}, {vT2}, {sTmp}")
    geometry(sWin)
    a(f"s_lshl_b32 {sTmp}, {sWin}, 11")
    a(f"v_add_u32 {vE64}, {sTmp}, {vE64}")
    a(f"v_add_u32 {vTR}, {sTmp}, {vTR}")
    a(f"s_add_u32 {sTmp}, {sTmp}, {L_A2}")
    a(f"v_lshl_add_u32 {vT0}, {vL}, 5, {sTmp}")
    a(f"ds_read_b128 {WA[0:4]}, {vT0}")
    a(f"ds_read_b128 {WA[4:8]}, {vT0} offset:16")
    for i in range(4): a(f"v_mov_b32 {A2R[i]}, 0")
    a(f"ds_write_b128 {vT0}, {A2R[0:4]}")
    a(f"ds_write_b128 {vT0}, {A2R[0:4]} offset:16")
    a(f"s_cmp_eq_u64 {sAny}, 0")
    a("s_cbranch_scc1 K2_MAIN")
    a.c("generic (slow) mode: raw scan of all edges, 512 per round")
    a(f"s_mov_b32 {sMode}, 1")
    a.label("K2_GEN")
    a("s_barrier")
    a(f"s_cmp_lg_u32 {sWave}, 0")
    a("s_cbranch_scc1 K2_GEN1")
    a(f"v_and_b32 {vT0}, 7, {vL}")
    a(f"v_lshlrev_b32 {vT0}, 2, {vT0}")
    a(f"ds_write_b32 {vT0}, {vZ[0]} offset:{L_CNT}")
    a("s_waitcnt lgkmcnt(0)")
    a.label("K2_GEN1")
    a("s_barrier")
    a(f"s_lshl_b32 {sTmp}, {sChunk}, 9")
    a(f"v_add_u32 {vT0}, {sTmp}, v0")
    a(f"s_mov_b32 {sTmp}, {E}")
    a(f"v_cmp_gt_u32 {sAny}, {sTmp}, {vT0}")
    a("s_nop 1")
    append_raw("K2_RA2")
    a("s_waitcnt lgkmcnt(0)")
    a("s_barrier")
    a(f"s_lshl_b32 {sTmp}, {sWin}, 2")
    a(f"v_mov_b32 {vT0}, {sTmp}")
    a(f"ds_read_b32 {vT1}, {vT0} offset:{L_CNT}")
    a("s_waitcnt lgkmcnt(0)")
    a(f"v_readfirstlane_b32 {sCnt}, {vT1}")
    a("s_nop 3")
    a.label("K2_MAIN")
    if opt.get('dbgfill',0): stamp(a,opt,14)
    a(f"s_min_u32 {sCnt}, {sCnt}, {CAP}")
    a(f"s_add_u32 {sNT}, {sCnt}, 31")
    a(f"s_lshr_b32 {sNT}, {sNT}, 5")
    a(f"s_cmp_eq_u32 {sNT}, 0")
    a("s_cbranch_scc1 K2_MAIN_DONE")
    a(f"s_mul_i32 {sTmp}, {sWin}, {CAPX*4}")
    a(f"s_add_u32 {sTmp}, {sTmp}, {L_L0}")
    a(f"s_mul_i32 {sTmp2}, {sWin}, {CAPX*2}")
    a(f"s_add_u32 {sTmp2}, {sTmp2}, {L_L1}")
    a(f"v_and_b32 {vT0}, 31, {vL}")
    a(f"v_lshl_add_u32 {aL0}, {vT0}, 2, {sTmp}")
    a(f"v_lshl_add_u32 {aL1s}, {vT0}, 1, {sTmp2}")
    a(f"v_lshrrev_b32 {vT0}, 3, {vL}")
    a(f"v_lshl_add_u32 {aL1d}, {vT0}, 3, {sTmp2}")
    def pad():
        a(f"v_add_u32 {vT0}, {sCnt}, {vL}")
        a(f"v_lshl_add_u32 {vT1}, {vT0}, 2, {sTmp}")
        a(f"v_lshl_add_u32 {vT2}, {vT0}, 1, {sTmp2}")
        a(f"v_mov_b32 {vJ}, 7")
        a(f"ds_write_b32 {vT1}, {vJ}")
        a(f"ds_write_b16 {vT2}, {vZ[0]}")
        a(f"ds_write_b32 {vT1}, {vJ} offset:256")
        a(f"ds_write_b16 {vT2}, {vZ[0]} offset:128")
    def first_reads():
        a(f"ds_read_b32 {vT3}, {aL0}")
        a(f"ds_read_b64 {SD}, {aL1d}")
        a(f"ds_read_b32 {LE[1]}, {aL0} offset:128")
        a(f"ds_read_b32 {LE[0]}, {aL0} offset:256")
        a(f"ds_read_u16 {SS}, {aL1s}")
    a(f"s_cmp_ge_u32 {sCnt}, 96")
    a("s_cbranch_scc1 K2_FILL_BIG")
    pad()
    first_reads()
    a("s_waitcnt lgkmcnt(0)")
    a("s_branch K2_FILL")
    a.label("K2_FILL_BIG")
    first_reads()
    pad()
    a("s_waitcnt lgkmcnt(4)")
    a.label("K2_FILL")
    ENT=['',' nt',' sc1',' sc0 sc1',' sc0',' sc0 nt',' sc1 nt',' sc0 sc1 nt'][opt.get('e_nt',0)]
    def E_addr(le): a(f"v_and_or_b32 {aE}, {le}, {sMaskE}, {vHOFF}")
    def E_load(p): a(f"buffer_load_dwordx4 {EA[p]}, {aE}, {sE}, 0 offen{ENT}")
    def H_addr():
        if opt.get('hmask',0):
            a(f"v_and_b32 {SD[0]}, 0x03ff03ff, {SD[0]}"); a(f"v_and_b32 {SD[1]}, 0x03ff03ff, {SD[1]}")
        for i in range(4):
            a(f"v_mad_u32_u16 {AD[i]}, {SD[i>>1]}, {s128}, {vKD[i]}"+(" op_sel:[1,0,0,0]" if i&1 else ""))
    def H_load(i):
        a(f"s_mov_b32 m0, {sM0[i]}")
        a("s_nop 0")
        a(f"buffer_load_dwordx4 {AD[i]}, {sB}, 0 offen{HLD} lds")
    def P_addr(le,par):
        a(f"v_and_b32 {vJ}, 7, {le}")
        a(f"v_mul_u32_u24 {aPS}, 6, {SS}")
        a(f"v_mad_u32_u24 {aPD}, {vJ}, 6, {sN06}")
        a(f"v_lshlrev_b32 {aOH}, 4, {vJ}")
        a(f"v_lshl_add_u32 {aA2[par]}, {vJ}, 3, {vE64}")
    def P_reads():
        for c in range(3): a(f"ds_read_u16_d16_hi {PS[c]}, {aPS} offset:{L_POS+2*c}")
        for c in range(3): a(f"ds_read_u16_d16_hi {PD[c]}, {aPD} offset:{L_POS+2*c}")
        a(f"ds_read_b128 {OH}, {aOH} offset:{L_OH}")
    def P_calc_list(par):
        return [f"v_sub_f32 {DX[0]}, {PD[0]}, {PS[0]}", f"v_sub_f32 {DX[1]}, {PD[1]}, {PS[1]}", f"v_sub_f32 {DX[2]}, {PD[2]}, {PS[2]}",
                f"v_mul_f32 {DD}, {DX[0]}, {DX[0]}", f"v_fmac_f32 {DD}, {DX[1]}, {DX[1]}", f"v_fmac_f32 {DD}, {DX[2]}, {DX[2]}",
                f"v_cvt_pk_bf16_f32 {E01[0]}, 1.0, {DX[0]}", f"v_cvt_pk_bf16_f32 {E01[1]}, {DX[1]}, {DX[2]}",
                f"v_cvt_pk_bf16_f32 {OH[3]}, {OH[3]}, {DD}",
                f"ds_write_b64 {aA2[par]}, {E01}"]
    E_addr(vT3); E_load(0)
    H_addr()
    for i in range(4): H_load(i)
    E_addr(LE[1]); E_load(1)
    if opt.get('dbgfill',0): stamp(a,opt,15)
    P_addr(vT3,0); P_reads()
    a(f"ds_read_b64 {SD}, {aL1d} offset:64")
    a(f"ds_read_u16 {SS}, {aL1s} offset:64")
    for i in range(16): a(f"v_mov_b32 {T[i]}, 0")
    for i in range(8): a(f"v_mov_b32 {A2R[i]}, 0")
    a("s_waitcnt lgkmcnt(0)")
    for ins in P_calc_list(0): a(ins)
    H_addr()
    P_addr(LE[1],1)
    E_addr(LE[0])
    a("s_waitcnt vmcnt(1)")
    for s_ in range(4): a(f"ds_read_b128 {HA[4*s_:4*s_+4]}, {vHA[s_]}")
    Da,Db=D1[0:16],D1[16:32]
    mfma(a,Da,OH,WA[0:4],"0")
    mfma(a,Da,EA[0],WE[0:4],Da)
    a("s_waitcnt lgkmcnt(0)")
    for i in range(4): H_load(i)
    mfma(a,Da,HA[0:4],ID[0:4],Da)
    mfma(a,Da,HA[4:8],ID[4:8],Da)
    a(f"s_mov_b32 {sT}, 0")
    stamp(a,opt,8)
    if DBG:
        a("s_memtime s[80:81]")
        a("s_waitcnt lgkmcnt(0)")
    a.nop(12)
    MADD=opt.get('madd',1)
    def prio(p):
        if PRIO: a(f"s_setprio {p}")
    def Tsec(kind,x,p):
        Dx=D1[16*x:16*x+16]; o=1-x; Do=D1[16*o:16*o+16]; D2o=D2[16*o:16*o+16]
        prio(1)
        if kind=='X':
            ea = EA[p] if x==0 else EA[1-p]
            mfma(a,Do,OH,WA[4*o:4*o+4],"0")
            for i in range(8): a(f"v_cvt_pk_bf16_f32 {M[i]}, {T[2*i]}, {T[2*i+1]}")
            mfma(a,Do,ea,WE[4*o:4*o+4],Do)
            for i in range(16):
                if i==6:
                    if x==1: a("s_waitcnt lgkmcnt(2)")
                    mfma(a,D2o,A2R[0:4],M[0:4],D2o)
                a(f"v_exp_f32 {T[i]}, {Dx[i]}")
            if MADD:
                a("s_nop 1")
                mfma(a,T,ONE,ONE,T)
        else:
            hb = HA[8:16] if x==0 else HA[0:8]
            for i in range(16):
                if i==0: mfma(a,Do,hb[0:4],ID[0:4],Do)
                if i==5: mfma(a,Do,hb[4:8],ID[4:8],Do)
                if i==10: mfma(a,D2o,A2R[4:8],M[4:8],D2o)
                a(f"v_rcp_f32 {T[i]}, {T[i]}")
        prio(0)
    def tile(p):
        q=1-p
        Tsec('X',0,p)
        if not opt.get('e_late',0): E_load(p)
        else: a("s_nop 0")
        P_reads()
        a(f"ds_read_b64 {SD}, {aL1d} offset:{64*(p+2)}")
        if not MADD:
            for i in range(16): a(f"v_add_f32 {T[i]}, 1.0, {T[i]}")
        else:
            a.nop(2)
        Tsec('R',0,p)
        a(f"s_waitcnt vmcnt({0 if opt.get('e_late',0) else 1}) lgkmcnt(0)")
        for s_ in range(4): a(f"ds_read_b128 {HA[4*s_:4*s_+4]}, {vHA[s_]}")
        for k in range(4): a(f"ds_read_b64_tr_b16 {A2R[2*k:2*k+2]}, {vTR} offset:{512*k}")
        a(f"ds_write_b64 {aA2[p]}, {vZ}")
        pc=P_calc_list(q)
        for ins in pc[:6]: a(ins)
        H_addr()
        for i in range(16): a(f"v_mul_f32 {T[i]}, {Da[i]}, {T[i]}")
        for ins in pc[6:]: a(ins)
        Tsec('X',1,p)
        a("s_waitcnt lgkmcnt(0)")
        if opt.get('e_late',0)==1: E_load(p)
        for i in range(4): H_load(i)
        a(f"ds_read_b32 {LE[q]}, {aL0} offset:{128*(p+3)}")
        a(f"ds_read_u16 {SS}, {aL1s} offset:{64*(p+2)}")
        if not MADD:
            for i in range(16): a(f"v_add_f32 {T[i]}, 1.0, {T[i]}")
        Tsec('R',1,p)
        a("s_waitcnt lgkmcnt(0)")
        E_addr(LE[q])
        P_addr(LE[p],p)
        if p==1:
            a(f"v_add_u32 {aL0}, 256, {aL0}")
            a(f"v_add_u32 {aL1s}, 128, {aL1s}")
            a(f"v_add_u32 {aL1d}, 128, {aL1d}")
        for i in range(16): a(f"v_mul_f32 {T[i]}, {Db[i]}, {T[i]}")
    def drain(par):
        for i in range(8): a(f"v_cvt_pk_bf16_f32 {M[i]}, {T[2*i]}, {T[2*i+1]}")
        a(f"ds_write_b64 {aA2[par]}, {vZ}")
        a("s_nop 0")
        mfma(a,D2[16:32],A2R[0:4],M[0:4],D2[16:32])
        mfma(a,D2[16:32],A2R[4:8],M[4:8],D2[16:32])
    a(".p2align 6")
    a.label("K2_LOOP")
    tile(0)
    a(f"s_add_u32 {sT}, {sT}, 1")
    a(f"s_cmp_ge_u32 {sT}, {sNT}")
    a("s_cbranch_scc1 K2_EXIT_ODD")
    tile(1)
    a(f"s_add_u32 {sT}, {sT}, 1")
    a(f"s_cmp_lt_u32 {sT}, {sNT}")
    a("s_cbranch_scc1 K2_LOOP")
    drain(0)
    a("s_branch K2_MAIN_DONE")
    a.label("K2_EXIT_ODD")
    drain(1)
    a.label("K2_MAIN_DONE")
    stamp(a,opt,9)
    if DBG:
        a("s_memtime s[82:83]")
        a("s_waitcnt lgkmcnt(0)")
        a("s_sub_u32 s80, s82, s80")
        a(f"v_writelane_b32 {VDBG}, s80, 12")
        a(f"v_writelane_b32 {VDBG}, {sNT}, 11")
    a(f"s_cmp_eq_u32 {sMode}, 0")
    a("s_cbranch_scc1 K2_EPI")
    a("s_waitcnt vmcnt(0) lgkmcnt(0)")
    a(f"s_add_u32 {sChunk}, {sChunk}, 1")
    a(f"s_cmp_lt_u32 {sChunk}, {(E+511)//512}")
    a("s_cbranch_scc1 K2_GEN")
    a.label("K2_EPI")
    a.c("segment sums of this window: m_i (bf16) -> rows of this window's (now idle) A2 slice")
    a(f"s_lshl_b32 {sHST}, {sWin}, 11")
    a(f"s_add_u32 {sHST}, {sHST}, {L_A2}")
    a(f"v_and_b32 {vJ}, 31, {vL}")
    a(f"s_mov_b32 {sTmp}, {NEG_LN2}")
    a(f"v_lshrrev_b32 {vT2}, 5, {vL}")
    a(f"v_lshlrev_b32 {vT2}, 7, {vT2}")
    a(f"v_lshl_add_u32 {vT2}, {vJ}, 1, {vT2}")
    a(f"v_add_u32 {vT2}, {sHST}, {vT2}")
    a.nop(8)
    for qq in range(4):
        a(f"v_mul_f32 {AD[0]}, {sTmp}, {D2[4*qq]}")
        a(f"v_mul_f32 {AD[1]}, {sTmp}, {D2[16+4*qq]}")
        a(f"v_cvt_pk_bf16_f32 {AD[2]}, {AD[0]}, {AD[1]}")
        a(f"ds_write_b16 {vT2}, {AD[2]} offset:{qq*256}")
        a(f"ds_write_b16_d16_hi {vT2}, {AD[2]} offset:{qq*256+64}")
    def pos_part():
        a.c("coordinate update of this window")
        PP=T
        for qq in range(4):
            for c in range(1,4):
                r=PP[qq*3+c-1]
                a(f"v_mul_f32 {r}, {WX[0]}, {D2[4*qq+c]}")
                a(f"v_fmac_f32 {r}, {WX[1]}, {D2[16+4*qq+c]}")
        for sh in (1,2,4,8):
            for i in range(12): a(f"v_add_f32_dpp {PP[i]}, {PP[i]}, {PP[i]} row_shr:{sh} row_mask:0xf bank_mask:0xf bound_ctrl:0")
        for i in range(12): a(f"v_add_f32_dpp {PP[i]}, {PP[i]}, {PP[i]} row_bcast:15 row_mask:0xa bank_mask:0xf")
        a(f"v_lshrrev_b32 {vT2}, 5, {vL}")
        a(f"v_lshlrev_b32 {vT2}, 4, {vT2}")
        a(f"s_add_u32 {sTmp}, {sHST}, 1024")
        a(f"v_add_u32 {vT2}, {sTmp}, {vT2}")
        a("s_mov_b32 exec_lo, 0x80000000")
        a("s_mov_b32 exec_hi, 0x80000000")
        for qq in range(4):
            for c in range(3):
                a(f"ds_write_b32 {vT2}, {PP[qq*3+c]} offset:{qq*32+c*4}")
        a("s_mov_b64 exec, -1")
        a(f"v_mul_u32_u24 {vT2}, 86, {vL}")
        a(f"v_lshrrev_b32 {vT2}, 8, {vT2}")
        a(f"v_mul_u32_u24 {vT3}, 3, {vT2}")
        a(f"v_sub_u32 {vT3}, {vL}, {vT3}")
        a(f"v_lshlrev_b32 {vT2}, 4, {vT2}")
        a(f"v_lshl_add_u32 {vT2}, {vT3}, 2, {vT2}")
        a(f"v_add_u32 {vT2}, {sTmp}, {vT2}")
        a(f"v_min_u32 {vT2}, {LDS2-4}, {vT2}")
        a(f"ds_read_b32 {AD[0]}, {vT2}")
        a(f"v_lshl_add_u32 {vT3}, {vL}, 1, {sN06}")
        a(f"v_min_u32 {vT2}, {POS_SZ-2}, {vT3}")
        a(f"ds_read_u16_d16_hi {PS[0]}, {vT2} offset:{L_POS}")
        a(f"s_mul_i32 {sTmp}, {sNJ}, 3")
        a(f"v_cmp_gt_u32 vcc, {sTmp}, {vL}")
        a(f"v_add_u32 {vT3}, {OUT_POS}, {vT3}")
        a(f"v_mov_b32 {vT2}, 0x40000000")
        a("s_waitcnt lgkmcnt(0)")
        a(f"v_cndmask_b32 {vT3}, {vT2}, {vT3}, vcc")
        a(f"v_add_f32 {AD[0]}, {AD[0]}, {PS[0]}")
        a(f"v_cvt_pk_bf16_f32 {AD[0]}, {AD[0]}, {AD[0]}")
        a(f"buffer_store_short {AD[0]}, {vT3}, {sO}, 0 offen{OST}")
    a.c("job waves 4..7: row tile r = (v-4)>>1 (rows = window 4r + (m>>3), node m&7), feature half x = v&1")
    a(f"s_cmp_lt_u32 {sWave}, 4")
    a("s_cbranch_scc1 K2_EPI_NOJOB")
    a(f"s_sub_u32 {sTmp2}, {sWave}, 4")
    a(f"s_lshr_b32 {sTmp2}, {sTmp2}, 1")
    a(f"s_lshl_b32 {sTmp2}, {sTmp2}, 2")
    a(f"v_bfe_u32 {vT0}, {vL}, 3, 2")
    a(f"v_add_u32 {vT0}, {sTmp2}, {vT0}")
    a(f"v_and_b32 {vJ}, 7, {vL}")
    a(f"v_lshlrev_b32 {aL1d}, 11, {vT0}")
    a(f"v_lshl_add_u32 {aL1d}, {vJ}, 7, {aL1d}")
    a(f"v_add_u32 {aL1d}, {L_A2}, {aL1d}")
    a(f"v_add_u32 {aL1d}, {aL1d}, {vHOFF}")
    a(f"s_lshl_b32 {sTmp2}, s2, 3")
    a(f"v_add_u32 {vT0}, {sTmp2}, {vT0}")
    a(f"v_mad_u32_u24 {SD[0]}, {vT0}, {s3125}, {v511}")
    a(f"v_add_u32 {SD[1]}, 3125, {SD[0]}")
    a(f"v_lshrrev_b32 {SD[0]}, 9, {SD[0]}")
    a(f"v_lshrrev_b32 {SD[1]}, 9, {SD[1]}")
    a(f"v_sub_u32 {SD[1]}, {SD[1]}, {SD[0]}")
    a(f"v_cmp_lt_u32 vcc, {vJ}, {SD[1]}")
    a(f"v_add_u32 {vT1}, -1, {SD[1]}")
    a(f"v_min_u32 {vT1}, {vT1}, {vJ}")
    a(f"v_add_u32 {vT1}, {SD[0]}, {vT1}")
    a(f"v_lshlrev_b32 {vT1}, 7, {vT1}")
    a(f"v_add_u32 {vT0}, {vT1}, {vHOFF}")
    for s_ in range(4):
        a(f"buffer_load_dwordx4 {HA[4*s_:4*s_+4]}, {vT0}, {sHs}, 0 offen offset:{32*s_}")
    a(f"s_and_b32 {sTmp2}, {sWave}, 1")
    a(f"s_lshl_b32 {sTmp2}, {sTmp2}, 6")
    a(f"v_lshrrev_b32 {vT0}, 1, {vHOFF}")
    a(f"v_add3_u32 {aL0}, {vT1}, {vT0}, {sTmp2}")
    for qq in range(4):
        a(f"buffer_load_dwordx2 {M[2*qq:2*qq+2]}, {aL0}, {sHs}, 0 offen offset:{16*qq}")
    a(f"v_mov_b32 {vT0}, 0x40000000")
    a(f"v_cndmask_b32 {aL1s}, {vT0}, {aL0}, vcc")
    pos_part()
    HV=D2[0:16]
    a("s_waitcnt vmcnt(1)")
    for s_ in range(4):
        mfma(a,D1[0:16],WH[4*s_:4*s_+4],HA[4*s_:4*s_+4],"0" if s_==0 else D1[0:16])
    for qq in range(4):
        a(f"v_lshlrev_b32 {HV[4*qq]}, 16, {M[2*qq]}")
        a(f"v_and_b32 {HV[4*qq+1]}, 0xffff0000, {M[2*qq]}")
        a(f"v_lshlrev_b32 {HV[4*qq+2]}, 16, {M[2*qq+1]}")
        a(f"v_and_b32 {HV[4*qq+3]}, 0xffff0000, {M[2*qq+1]}")
    stamp(a,opt,10)
    a("s_barrier")
    MA=[EA[0],EA[1],A2R[0:4],A2R[4:8]]
    for s_ in range(4): a(f"ds_read_b128 {MA[s_]}, {aL1d} offset:{32*s_}")
    for s_ in range(4):
        a(f"s_waitcnt lgkmcnt({3-s_})")
        mfma(a,D1[0:16],WH[16+4*s_:20+4*s_],MA[s_],D1[0:16])
    a(f"s_mov_b32 {sTmp}, {NEG_LOG2E}")
    a.nop(14)
    X=D1[0:16]
    for i in range(16): a(f"v_mul_f32 {T[i]}, {sTmp}, {X[i]}")
    for i in range(16): a(f"v_exp_f32 {T[i]}, {T[i]}")
    for i in range(16): a(f"v_add_f32 {T[i]}, 1.0, {T[i]}")
    for i in range(16): a(f"v_rcp_f32 {T[i]}, {T[i]}")
    a("s_nop 0")
    for i in range(16): a(f"v_fma_f32 {T[i]}, {X[i]}, {T[i]}, {HV[i]}")
    for qq in range(4):
        a(f"v_cvt_pk_bf16_f32 {M[2*qq]}, {T[4*qq]}, {T[4*qq+1]}")
        a(f"v_cvt_pk_bf16_f32 {M[2*qq+1]}, {T[4*qq+2]}, {T[4*qq+3]}")
        a(f"buffer_store_dwordx2 {M[2*qq:2*qq+2]}, {aL1s}, {sO}, 0 offen offset:{16*qq}{OST}")
    a("s_branch K2_FIN")
    a.label("K2_EPI_NOJOB")
    a("s_waitcnt lgkmcnt(0)")
    stamp(a,opt,10)
    a("s_barrier")
    pos_part()
    a.label("K2_FIN")
    if DBG:
        a("s_waitcnt vmcnt(0)")
        stamp(a,opt,13)
        a(f"s_lshl_b32 {sTmp}, s2, 4")
        a(f"s_add_u32 {sTmp}, {sTmp}, {sWave}")
        a(f"s_lshl_b32 {sTmp}, {sTmp}, 6")
        a(f"s_add_u32 {sTmp}, {sTmp}, {DBG_OFF}")
        a(f"v_lshlrev_b32 {vT0}, 2, {vL}")
        a("s_mov_b32 exec_lo, 0xffff")
        a("s_mov_b32 exec_hi, 0")
        a(f"buffer_store_dword {VDBG}, {vT0}, {sW}, {sTmp} offen")
        a("s_waitcnt vmcnt(0)")
    a.label("K_END")
    a("s_endpgm")
    a.label("K_CODE_END")
    return nv

HEADER='''; Kernarg layout (88 bytes, ptrs only): h, pos, e_attr, src, dst, w_e, w_x, w_h, out, debug, ws
; @launch grid=(256,1,1) block=(512,1,1) lds={lds2}
.amdgcn_target "amdgcn-amd-amdhsa--gfx950"
.text
.globl {k}
.p2align 8
.type {k},@function
'''
def kd(name,nv,ns):
    acc=(nv+3)//4*4
    return f'''.amdhsa_kernel {name}
  .amdhsa_next_free_vgpr {acc}
  .amdhsa_next_free_sgpr {ns}
  .amdhsa_accum_offset {acc}
  .amdhsa_group_segment_fixed_size 0
  .amdhsa_kernarg_size 88
  .amdhsa_user_sgpr_count 2
  .amdhsa_user_sgpr_kernarg_segment_ptr 1
  .amdhsa_system_sgpr_workgroup_id_x 1
  .amdhsa_float_denorm_mode_32 3
.end_amdhsa_kernel
'''
def build(opt):
    out=HEADER.format(lds2=LDS2,k=KNAME)
    a=Asm()
    nv=gen(a,opt)
    assert nv<=255
    out+=a.text()
    out+='.section .rodata,"a"\n.p2align 6\n'+kd(KNAME,256,102)
    return out,nv
if __name__=="__main__":
    opt={}
    for arg in sys.argv[2:]:
        k,v=arg.split('='); opt[k]=int(v)
    txt,nv=build(opt)
    open(sys.argv[1],'w').write(txt)
    print("vgprs:",nv,"LDS",LDS2,"lines",txt.count("\n"),"WS",WS_BYTES)
```

```python
import sys, struct
from asmlib import *

N=12500; E=800000; CH=3136; NSRC=256; NBIN=256; NPW=49
KW=703687442
LOG2E=1.4426950408889634; LN2=0.6931471805599453
def f2u(x): return struct.unpack('<I',struct.pack('<f',x))[0]
NEG_LOG2E=f2u(-LOG2E); NEG_LN2=f2u(-LN2)
SENT=0xFFFFFFFF; MARK=0xFFFFFFFE
CELLS=0; BPT=NBIN*NSRC*128; FLG=BPT+N*128+((-N*128)%4096); FLG2=FLG+4096; WS_BYTES=FLG2+8192
OUT_BYTES=N*64*2+N*3*2; OUT_POS=N*64*2
CAP=576; CAPX=704
L_OH=0; L_CNT=128; L_NRES=160; L_WIN=192; L_RES=256; L_POS=1280; POS_SZ=74*1024
L_L0=L_POS+POS_SZ; L_L1=L_L0+8*CAPX*4; L_A2=L_L1+8*CAPX*2; L_HST=L_A2+8*2048; LDS2=L_HST+8*4096
assert LDS2<=163840, LDS2
L_RAWW=L_L0; L_BST=L_L0+19*1024; assert L_BST+2*32*144<=L_A2
DBG_OFF=16*1024*1024

def WSB(opt): return (32*1024*1024 if opt.get('dbg',0) else WS_BYTES)
def srd(a, s, lo, hi, size):
    a(f"s_mov_b32 {s[0]}, {lo}")
    a(f"s_and_b32 {s[1]}, {hi}, 0xffff")
    a(f"s_mov_b32 {s[2]}, {size}")
    a(f"s_mov_b32 {s[3]}, 0x20000")
VDBG="v255"
def stamp(a,opt,idx):
    if not opt.get('dbg',0): return
    a("s_memrealtime s[100:101]")
    a("s_waitcnt lgkmcnt(0)")
    a(f"v_writelane_b32 {VDBG}, s100, {idx}")
def S(i,n=1): return R('s',i,n)
def V(i,n=1): return R('v',i,n)
def mfma(a,d,A,B,c): a(f"v_mfma_f32_32x32x16_bf16 {d}, {A}, {B}, {c}")

NPOS1=24
KNAME="gather_scatter__cheap_equivariant_egnn__graph_kernel"
def gen(a, opt):
    DBG=opt.get('dbg',0)
    PRIO=opt.get('prio',1)
    ST=" sc1"; LD=" sc1" if opt.get('ld_sc1',1) else ""
    HLD=" sc1" if opt.get('h_sc1',1) else ""
    OST=[""," nt"," sc1"," sc0 sc1"][opt.get('ost',0)]
    a.label(KNAME)
    sB=S(4,4); sE=S(8,4); sW=S(12,4); sO=S(16,4); sP=S(20,4); sS=S(24,4); sD=S(28,4)
    sWave=S(32); sN0=S(33); sNJ=S(34); sN06=S(35); sNT=S(36); sT=S(37); sMode=S(38); sChunk=S(39)
    sMaskE=S(40); s128=S(41); sK=S(42); s3125=S(43); sLim=S(44); sCAP=S(44); sCnt=S(45); sTmp=S(46); sTmp2=S(47)
    sM0=S(48,4); sSave=S(52,2); sAny=S(54,2); sNR=S(56); sI=S(57); sC=S(58); sWsrc=S(59); sMark=S(60); sCAPq=S(61); sHST=S(62); sTmp3=S(63)
    sMask=[S(64+2*i,2) for i in range(16)]
    sRot=S(39+0) if False else S(37)
    sWin=S(96); sTgt=S(97); sNonce=S(98); sPoll=S(99)
    sT4=S(84,4); sT4b=S(88,4); sT4c=S(92,4)
    sHw=S(48,4)
    sHs=S(68,4); sWx=S(72,4)
    vr=Regs(1,256,'v')
    vL=vr.alloc('lane')
    WE=vr.alloc('WE',8,4); WA=vr.alloc('WA',8,4); ID=vr.alloc('ID',8,4); D2=vr.alloc('D2',32,4)
    D1=vr.alloc('D1',32,4); HA=vr.alloc('HA',16,4); T=vr.alloc('T',16,4); M=vr.alloc('M',8,4)
    A2R=vr.alloc('A2R',8,4); EA=[vr.alloc('EA0',4,4),vr.alloc('EA1',4,4)]; OH=vr.alloc('OH',4,4)
    WH=vr.alloc('WH',32,4); ONE=vr.alloc('ONE',4,4)
    vHA=vr.alloc('vHA',4); vKD=vr.alloc('vKD',4); vTR=vr.alloc('vTR'); vE64=vr.alloc('vE64'); vHOFF=vr.alloc('vHOFF')
    vZ=vr.alloc('vZ',2,2); aL0=vr.alloc('aL0'); aL1s=vr.alloc('aL1s'); aL1d=vr.alloc('aL1d')
    LE=[vr.alloc('LE0'),vr.alloc('LE1')]; aA2=[vr.alloc('aA2_0'),vr.alloc('aA2_1')]
    SD=vr.alloc('SD',2,2); SS=vr.alloc('SS'); PS=vr.alloc('PS',3); PD=vr.alloc('PD',3)
    E01=vr.alloc('E01',2,2); DX=vr.alloc('DX',3); DD=vr.alloc('DD'); AD=vr.alloc('AD',4); vJ=vr.alloc('vJ')
    aE=vr.alloc('aE'); aPS=vr.alloc('aPS'); aPD=vr.alloc('aPD'); aOH=vr.alloc('aOH')
    vT0=vr.alloc('vT0'); vT1=vr.alloc('vT1'); vT2=vr.alloc('vT2'); vT3=vr.alloc('vT3')
    vOne=vr.alloc('vOne'); v511=vr.alloc('v511'); vTRW=vr.alloc('vTRW'); vL16=vr.alloc('vL16'); WX=vr.alloc('WX',2); vDUM=vr.alloc('vDUM')
    nv=vr.next
    HW=T
    def geometry(win):
        a(f"s_lshl_b32 {sTmp}, s2, 3")
        a(f"s_add_u32 {sTmp}, {sTmp}, {win}")
        a(f"s_mul_i32 {sN0}, {sTmp}, 3125")
        a(f"s_add_u32 {sNJ}, {sN0}, {3125+511}")
        a(f"s_add_u32 {sN0}, {sN0}, 511")
        a(f"s_lshr_b32 {sN0}, {sN0}, 9")
        a(f"s_lshr_b32 {sNJ}, {sNJ}, 9")
        a(f"s_sub_u32 {sNJ}, {sNJ}, {sN0}")
        a(f"s_mul_i32 {sN06}, {sN0}, 6")
    def dma(vaddr,srd_,soff,ldsbase_const=None,ldsreg=None):
        pass

    def load_hwin():
        a.c("h rows of the natural window (A operand of h@W1; needed after barrier C)")
        a(f"v_bfe_u32 {vT0}, {vL}, 3, 1")
        a(f"v_and_b32 {vT2}, 3, {vL}")
        a(f"v_lshl_add_u32 {vT0}, {vT0}, 2, {vT2}")
        a(f"s_sub_u32 {sTmp}, {sNJ}, 1")
        a(f"v_min_u32 {vT0}, {sTmp}, {vT0}")
        a(f"v_add_u32 {vT0}, {sN0}, {vT0}")
        a(f"v_lshl_add_u32 {vT0}, {vT0}, 7, {vHOFF}")
        for s_ in range(4):
            a(f"buffer_load_dwordx4 {HW[4*s_:4*s_+4]}, {vT0}, {sHw}, 0 offen offset:{32*s_}")
    a("s_cmp_ge_u32 s2, 256")
    a("s_cbranch_scc1 K_END")
    a("s_load_dwordx4 s[64:67], s[0:1], 0")
    a("s_load_dwordx4 s[68:71], s[0:1], 16")
    a("s_load_dwordx4 s[72:75], s[0:1], 32")
    a("s_load_dwordx4 s[76:79], s[0:1], 64")
    a("s_load_dwordx2 s[80:81], s[0:1], 80")
    a(f"v_and_b32 {vL}, 63, v0")
    a(f"v_lshrrev_b32 {vT0}, 6, v0")
    a(f"v_lshlrev_b32 {vL16}, 4, {vL}")
    a(f"v_readfirstlane_b32 {sWave}, {vT0}")
    if opt.get('cpf',1):
        a.c("pull this workgroup's share of the kernel's own code into L2 (read only, speed only)")
        NL=opt.get('cpf_lines',8)
        a("s_getpc_b64 s[84:85]")
        a.label("K_PC")
        a("s_and_b32 s85, s85, 0xffff")
        a("s_mov_b32 s86, K_CODE_END-K_PC")
        a("s_mov_b32 s87, 0x20000")
        if opt.get('cpf',1)==1:
            a(f"s_lshr_b32 {sTmp}, s2, 3")
            a(f"s_and_b32 {sTmp}, {sTmp}, 31")
            a(f"s_mul_i32 {sTmp}, {sTmp}, {NL*128}")
            a(f"v_lshlrev_b32 {vT1}, 7, {vL}")
            a(f"v_add_u32 {vT1}, {sTmp}, {vT1}")
            a(f"s_cmp_lg_u32 {sWave}, 3")
            a("s_cbranch_scc1 K_NOCPF")
            a(f"s_mov_b32 exec_lo, {(1<<NL)-1}")
            a("s_mov_b32 exec_hi, 0")
            a(f"buffer_load_dword {vDUM}, {vT1}, s[84:87], 0 offen")
            a("s_mov_b64 exec, -1")
        elif opt.get('cpf',1)==2:
            a(f"s_mul_i32 {sTmp}, {sWave}, {24*128}")
            a(f"v_lshlrev_b32 {vT1}, 7, {vL}")
            a(f"v_add_u32 {vT1}, {sTmp}, {vT1}")
            a(f"s_mov_b32 exec_lo, {(1<<24)-1}")
            a("s_mov_b32 exec_hi, 0")
            a(f"buffer_load_dword {vDUM}, {vT1}, s[84:87], 0 offen")
            a("s_mov_b64 exec, -1")
        elif opt.get('cpf',1)==3:
            a(f"s_lshr_b32 {sTmp}, s2, 3")
            a(f"s_and_b32 {sTmp}, {sTmp}, 3")
            a(f"s_mul_i32 {sTmp}, {sTmp}, {48*128}")
            a(f"v_lshlrev_b32 {vT1}, 7, {vL}")
            a(f"v_add_u32 {vT1}, {sTmp}, {vT1}")
            a(f"s_cmp_lg_u32 {sWave}, 3")
            a("s_cbranch_scc1 K_NOCPF")
            a("s_mov_b32 exec_hi, 0xffff")
            a(f"buffer_load_dword {vDUM}, {vT1}, s[84:87], 0 offen")
            a("s_mov_b64 exec, -1")
        a.label("K_NOCPF")
    a(f"v_lshrrev_b32 {vT2}, 5, {vL}")
    a(f"v_lshlrev_b32 {vHOFF}, 4, {vT2}")
    a(f"v_mov_b32 {vZ[0]}, 0")
    a(f"v_mov_b32 {vZ[1]}, 0")
    geometry(sWave)
    a(f"s_mul_i32 {sTmp}, s2, {CH*4}")
    a(f"s_mul_i32 {sTmp2}, {sWave}, {384*4}")
    a(f"s_add_u32 {sTmp}, {sTmp}, {sTmp2}")
    a(f"v_lshl_add_u32 {vT0}, {vL}, 3, {sTmp}")
    a("s_waitcnt lgkmcnt(0)")
    stamp(a,opt,0)
    srd(a,sD,"s72","s73",E*4)
    srd(a,sS,"s70","s71",E*4)
    a.c("every wave: six edges per lane, local edge = 384v + 128k + 2l + u; wave 7 also takes edges 3072 + l")
    DS_=D1[0:7]; SR_=D1[8:15]
    for k in range(3): a(f"buffer_load_dwordx2 {D1[2*k:2*k+2]}, {vT0}, {sD}, 0 offen offset:{512*k} nt")
    for k in range(3): a(f"buffer_load_dwordx2 {D1[8+2*k:10+2*k]}, {vT0}, {sS}, 0 offen offset:{512*k} nt")
    srd(a,sT4,"s64","s65",N*128)
    srd(a,sHw,"s64","s65",N*128)
    srd(a,sT4b,"s74","s75",145*128)
    a(f"s_cmp_eq_u32 {sWave}, 7")
    a("s_cbranch_scc1 K_S_W7")
    a(f"s_cmp_eq_u32 {sWave}, 4")
    a("s_cbranch_scc1 K_S_W4")
    a(f"s_cmp_lt_u32 {sWave}, 5")
    a("s_cbranch_scc1 K_S_COMMON")
    a.c("waves 5,6: private raw W2 copy + h rows for the source-node table")
    a(f"s_sub_u32 {sI}, {sWave}, 5")
    a(f"s_lshl_b32 {sC}, {sI}, 13")
    a(f"s_add_u32 {sC}, {sC}, {L_A2}")
    for i in range(8):
        a(f"s_add_u32 {sTmp}, {sC}, {i*1024}")
        a(f"s_mov_b32 m0, {sTmp}")
        a(f"s_mov_b32 {sTmp2}, {8192+i*1024}")
        a(f"buffer_load_dwordx4 {vL16}, {sT4b}, {sTmp2} offen lds")
    a(f"s_mul_i32 {sTmp}, s2, {NPW}")
    a(f"s_lshl_b32 {sTmp2}, {sI}, 5")
    a(f"s_add_u32 {sTmp}, {sTmp}, {sTmp2}")
    a(f"v_and_b32 {vT0}, 31, {vL}")
    a(f"v_add_u32 {vT0}, {sTmp}, {vT0}")
    a(f"v_lshl_add_u32 {vT0}, {vT0}, 7, {vHOFF}")
    for s_ in range(4): a(f"buffer_load_dwordx4 {HA[4*s_:4*s_+4]}, {vT0}, {sT4}, 0 offen offset:{32*s_}")
    a("s_branch K_S_COMMON")
    a.label("K_S_W4")
    a.c("wave 4: this workgroup's share of the L2 warm-up of pos and w_h (speed only)")
    a("s_load_dwordx2 s[82:83], s[0:1], 56")
    srd(a,sP,"s66","s67",N*6)
    a(f"s_lshr_b32 {sTmp}, s2, 3")
    a(f"s_and_b32 {sTmp}, {sTmp}, 31")
    a(f"s_mul_i32 {sTmp2}, {sTmp}, {19*128}")
    a(f"v_lshlrev_b32 {vT0}, 7, {vL}")
    a(f"v_add_u32 {vT1}, {sTmp2}, {vT0}")
    a(f"v_cmp_gt_u32 vcc, 19, {vL}")
    a(f"v_mov_b32 {vT2}, 0x40000000")
    a("s_waitcnt lgkmcnt(0)")
    a(f"v_cndmask_b32 {vT1}, {vT2}, {vT1}, vcc")
    a(f"buffer_load_dword {vDUM}, {vT1}, {sP}, 0 offen")
    srd(a,sT4b,"s82","s83",128*128)
    a(f"s_lshl_b32 {sTmp2}, {sTmp}, 9")
    a(f"v_add_u32 {vT1}, {sTmp2}, {vT0}")
    a(f"v_cmp_gt_u32 vcc, 4, {vL}")
    a("s_nop 1")
    a(f"v_cndmask_b32 {vT1}, {vT2}, {vT1}, vcc")
    a(f"buffer_load_dword {vDUM}, {vT1}, {sT4b}, 0 offen")
    a("s_branch K_S_COMMON")
    a.label("K_S_W7")
    a.c("wave 7: the last 64 edges, one-hot table, counters")
    a(f"s_mul_i32 {sTmp}, s2, {CH*4}")
    a(f"s_add_u32 {sTmp}, {sTmp}, {3072*4}")
    a(f"v_lshl_add_u32 {vT0}, {vL}, 2, {sTmp}")
    a(f"buffer_load_dword {D1[6]}, {vT0}, {sD}, 0 offen nt")
    a(f"buffer_load_dword {D1[14]}, {vT0}, {sS}, 0 offen nt")
    a(f"v_lshrrev_b32 {vT0}, 2, {vL}")
    a(f"v_and_b32 {vT1}, 3, {vL}")
    a(f"v_lshlrev_b32 {vT3}, 1, {vT1}")
    a(f"v_mov_b32 {vJ}, 0")
    a(f"v_cmp_eq_u32 vcc, {vT0}, {vT3}")
    a(f"v_mov_b32 {AD[0]}, 0x3f80")
    a(f"v_mov_b32 {AD[1]}, 0x3f800000")
    a(f"v_cndmask_b32 {vJ}, {vJ}, {AD[0]}, vcc")
    a(f"v_add_u32 {vT3}, 1, {vT3}")
    a(f"v_cmp_eq_u32 vcc, {vT0}, {vT3}")
    a("s_nop 1")
    a(f"v_cndmask_b32 {vJ}, {vJ}, {AD[1]}, vcc")
    a(f"v_cmp_eq_u32 vcc, 6, {vT0}")
    a(f"v_mov_b32 {AD[2]}, 0")
    a("s_nop 0")
    a(f"v_cndmask_b32 {AD[2]}, {AD[2]}, {AD[1]}, vcc")
    a(f"v_cmp_eq_u32 vcc, 3, {vT1}")
    a("s_nop 1")
    a(f"v_cndmask_b32 {vJ}, {vJ}, {AD[2]}, vcc")
    a(f"v_cmp_lt_u32 vcc, 31, {vL}")
    a(f"v_lshlrev_b32 {vT0}, 2, {vL}")
    a("s_nop 0")
    a(f"v_cndmask_b32 {vJ}, {vJ}, {vZ[0]}, vcc")
    a(f"ds_write_b32 {vT0}, {vJ}")
    a.label("K_S_COMMON")
    a(f"s_mov_b32 {sMaskE}, {'0' if opt.get('noE',0) else '0xffffffe0'}")
    a(f"s_mov_b32 {s128}, {0 if opt.get('noH',0) else 128}")
    a(f"s_mov_b32 {sK}, {KW}")
    a(f"s_mov_b32 {s3125}, 3125")
    a(f"s_mov_b32 {sMark}, {MARK}")
    a(f"s_mov_b32 {sCAPq}, {CAPX//4}")
    a(f"s_mov_b32 {sMode}, 0")
    a(f"s_mov_b32 {sChunk}, 0")
    a(f"v_mov_b32 {vOne}, 1")
    a(f"v_mov_b32 {v511}, 511")
    a(f"v_mov_b32 {aL1s}, 0x40000000")
    a(f"v_lshrrev_b32 {vT2}, 5, {vL}")
    a(f"v_bfe_u32 {vT0}, {vL}, 2, 2")
    a(f"v_lshl_add_u32 {vT0}, {vT2}, 3, {vT0}")
    a(f"v_lshlrev_b32 {vTRW}, 7, {vT0}")
    a(f"v_bfe_u32 {vT0}, {vL}, 4, 1")
    a(f"v_lshl_add_u32 {vTRW}, {vT0}, 5, {vTRW}")
    a(f"v_and_b32 {vT0}, 3, {vL}")
    a(f"v_lshl_add_u32 {vTRW}, {vT0}, 3, {vTRW}")
    a.c("LDS init: cell image = sentinel, counters = 0")
    for i in range(4): a(f"v_mov_b32 {WH[i]}, -1")
    a(f"v_lshlrev_b32 {vT0}, 6, v0")
    a(f"v_add_u32 {vT0}, {L_HST}, {vT0}")
    for i in range(4): a(f"ds_write_b128 {vT0}, {WH[0:4]} offset:{16*i}")
    a(f"v_and_b32 {vT0}, 0xff, v0")
    a(f"v_lshlrev_b32 {vT0}, 2, {vT0}")
    a(f"ds_write_b32 {vT0}, {vZ[0]} offset:{L_RES}")
    srd(a,sW,"s80","s81",WSB(opt))
    srd(a,sP,"s66","s67",N*6)
    srd(a,sE,"s68","s69",E*32)
    srd(a,sO,"s76","s77",OUT_BYTES)
    srd(a,sT4c,"s78","s79",256)
    a(f"s_add_u32 {sB[0]}, s80, {BPT}")
    a(f"s_addc_u32 {sB[1]}, s81, 0")
    a(f"s_and_b32 {sB[1]}, {sB[1]}, 0xffff")
    a(f"s_mov_b32 {sB[2]}, {N*128}")
    a(f"s_mov_b32 {sB[3]}, 0x20000")
    if opt.get('tlb',0):
        a.c("wave 2 touches one line per 2 MiB of the buffers used later (address translation warm-up, speed only)")
        a(f"s_cmp_lg_u32 {sWave}, 2")
        a("s_cbranch_scc1 K_NOTLB")
        a(f"v_lshlrev_b32 {vT0}, 21, {vL}")
        a(f"v_mov_b32 {vT1}, 0x40000000")
        a(f"v_cmp_gt_u32 vcc, 13, {vL}")
        a("s_nop 1")
        a(f"v_cndmask_b32 {vT0}, {vT1}, {vT0}, vcc")
        a(f"buffer_load_dword {vDUM}, {vT0}, {sE}, 0 offen")
        a(f"buffer_load_dword {vDUM}, {vT0}, {sW}, 0 offen")
        a(f"buffer_load_dword {vDUM}, {vT0}, {sO}, 0 offen")
        a.label("K_NOTLB")
    a.c("workgroup 0 publishes this launch's hand-off tag")
    a(f"s_or_b32 {sTmp}, s2, {sWave}")
    a(f"s_cmp_lg_u32 {sTmp}, 0")
    a("s_cbranch_scc1 K_S_NOTAG")
    a("s_memrealtime s[100:101]")
    a("s_waitcnt lgkmcnt(0)")
    a("s_or_b32 s100, s100, 1")
    a(f"v_mov_b32 {vT0}, s100")
    a(f"buffer_store_dword {vT0}, {vZ[0]}, {sT4c}, 0 offen sc1")
    a.label("K_S_NOTAG")
    a("s_waitcnt lgkmcnt(0)")
    a("s_barrier")
    a(f"s_mul_i32 {sTmp}, s2, {CH}")
    a(f"s_sub_u32 {sLim}, {E}, {sTmp}")
    a(f"s_min_u32 {sLim}, {sLim}, {CH}")
    B4=D2[0:7]; RC=M[0:7]; RK1=D2[8:15]
    def bin_edges(nrec, el_of, waitcnt, masked):
        if masked:
            for u in range(nrec):
                el_of(u,vT1)
                a(f"v_cmp_gt_u32 {sMask[u]}, {sLim}, {vT1}")
        if waitcnt is not None: a(f"s_waitcnt vmcnt({waitcnt})")
        stamp(a,opt,1)
        for u in range(nrec):
            d=DS_[u]; s_=SR_[u]
            a(f"v_mul_hi_u32 {vT2}, {d}, {sK}")
            el_of(u,vT1)
            a(f"v_lshl_or_b32 {RC[u]}, {s_}, 12, {vT1}")
            a(f"v_lshrrev_b32 {B4[u]}, 1, {vT2}")
            a(f"v_mad_u32_u24 {vT3}, {vT2}, {s3125}, {v511}")
            a(f"v_and_b32 {B4[u]}, 0x3fc, {B4[u]}")
            a(f"v_lshrrev_b32 {vT3}, 9, {vT3}")
            if masked: a(f"s_mov_b64 exec, {sMask[u]}")
            a(f"ds_add_rtn_u32 {RK1[u]}, {B4[u]}, {vOne} offset:{L_RES}")
            if masked: a("s_mov_b64 exec, -1")
            a(f"v_sub_u32 {vT3}, {d}, {vT3}")
            a(f"v_and_b32 {vT2}, 7, {vT2}")
            a(f"v_lshl_or_b32 {vT3}, {vT2}, 3, {vT3}")
            a(f"v_lshl_or_b32 {RC[u]}, {vT3}, 26, {RC[u]}")
        a(f"v_mov_b32 {vT3}, {L_HST}")
        a(f"v_mov_b32 {vJ}, {L_NRES+4}")
        for u in range(nrec):
            if not masked: a(f"s_waitcnt lgkmcnt({nrec-1})")
            elif u==0: a("s_waitcnt lgkmcnt(0)")
            a(f"v_cmp_gt_u32 vcc, 32, {RK1[u]}")
            a(f"v_lshlrev_b32 {vT1}, 3, {RK1[u]}")
            a(f"v_lshrrev_b32 {vT2}, 2, {RK1[u]}")
            a(f"v_and_b32 {vT1}, 0x78, {vT1}")
            a(f"v_lshl_add_u32 {AD[0]}, {B4[u]}, 5, {vT3}")
            a(f"v_and_or_b32 {vT1}, {vT2}, 4, {vT1}")
            a(f"v_add_u32 {vT1}, {vT1}, {AD[0]}")
            a(f"v_cndmask_b32 {vT1}, {vJ}, {vT1}, vcc")
            if masked: a(f"s_mov_b64 exec, {sMask[u]}")
            a(f"ds_write_b32 {vT1}, {RC[u]}")
            if masked: a("s_mov_b64 exec, -1")
    a.c("wait for this wave's edges (younger loads: 12 for waves 5,6; 2 for wave 4; the tag store of workgroup 0)")
    a(f"s_mul_i32 {sTmp}, {sWave}, 384")
    a(f"v_lshl_add_u32 {vT0}, {vL}, 1, {sTmp}")
    a(f"s_cmp_eq_u32 {sWave}, 4")
    a("s_cbranch_scc1 K_S_WT4")
    a(f"s_sub_u32 {sTmp}, {sWave}, 5")
    a(f"s_cmp_lt_u32 {sTmp}, 2")
    a("s_cbranch_scc1 K_S_WT56")
    if opt.get('tlb',0):
        a(f"s_cmp_eq_u32 {sWave}, 2")
        a("s_cbranch_scc1 K_S_WT2")
    a("s_waitcnt vmcnt(0)")
    a("s_branch K_S_WTD")
    if opt.get('tlb',0):
        a.label("K_S_WT2")
        a("s_waitcnt vmcnt(3)")
        a("s_branch K_S_WTD")
    a.label("K_S_WT4")
    a("s_waitcnt vmcnt(2)")
    a("s_branch K_S_WTD")
    a.label("K_S_WT56")
    a("s_waitcnt vmcnt(12)")
    a.label("K_S_WTD")
    def el6(u,r): a(f"v_add_u32 {r}, {128*(u>>1)+(u&1)}, {vT0}")
    def el7(u,r):
        if u<6: el6(u,r)
        else: a(f"v_add_u32 {r}, 3072, {vL}")
    a(f"s_cmp_lt_u32 {sLim}, {CH}")
    a("s_cbranch_scc1 K_S_APPM")
    a(f"s_cmp_eq_u32 {sWave}, 7")
    a("s_cbranch_scc1 K_S_APP7")
    bin_edges(6, el6, None, False)
    a("s_branch K_S_APPD")
    a.label("K_S_APP7")
    bin_edges(7, el7, None, False)
    a("s_branch K_S_APPD")
    a.label("K_S_APPM")
    a(f"s_cmp_eq_u32 {sWave}, 7")
    a("s_cbranch_scc1 K_S_APPM7")
    bin_edges(6, el6, None, True)
    a("s_branch K_S_APPD")
    a.label("K_S_APPM7")
    bin_edges(7, el7, None, True)
    a.label("K_S_APPD")
    load_hwin()
    a(f"s_cmp_lg_u32 {sWave}, 7")
    a("s_cbranch_scc1 K_S_NORAW")
    a.c("wave 7: raw w_e -> LDS (needed after barrier C)")
    for i in range(19):
        a(f"s_mov_b32 {sTmp}, {L_RAWW+i*1024}")
        a(f"s_mov_b32 m0, {sTmp}")
        a(f"s_mov_b32 {sTmp2}, {i*1024}")
        a(f"buffer_load_dwordx4 {vL16}, {sT4b}, {sTmp2} offen lds")
    a.label("K_S_NORAW")
    a.c("waves 0, 5, 6 fetch the hand-off tag")
    a(f"s_lshl_b32 {sTmp}, 1, {sWave}")
    a(f"s_and_b32 {sTmp}, {sTmp}, 0x61")
    a("s_cbranch_scc0 K_S_NOTAG2")
    a(f"buffer_load_dword {aE}, {vZ[0]}, {sT4c}, 0 offen sc1")
    a.label("K_S_NOTAG2")
    a("s_waitcnt lgkmcnt(0)")
    stamp(a,opt,14) if not opt.get('dbgfill',0) else None
    a("s_barrier")
    stamp(a,opt,2)
    def setup_static():
        a(f"v_and_b32 {vT1}, 31, {vL}")
        a(f"v_lshrrev_b32 {vT2}, 5, {vL}")
        a(f"v_lshlrev_b32 {vT0}, 3, {vT2}")
        a(f"v_sub_u32 {vT0}, {vT1}, {vT0}")
        a(f"v_mov_b32 {AD[2]}, 0x3f80")
        a(f"v_mov_b32 {AD[3]}, 0x3f800000")
        for sp in range(2):
            for r in range(4):
                k0=16*sp+2*r
                a(f"v_cmp_eq_u32 vcc, {k0}, {vT0}")
                a(f"v_cmp_eq_u32 {sSave}, {k0+1}, {vT0}")
                a("s_nop 0")
                a(f"v_cndmask_b32 {ID[4*sp+r]}, {vZ[0]}, {AD[2]}, vcc")
                a(f"v_cndmask_b32 {ID[4*sp+r]}, {ID[4*sp+r]}, {AD[3]}, {sSave}")
        a(f"v_cmp_lt_u32 vcc, 31, {vL}")
        a("s_nop 1")
        for i in range(1,4): a(f"v_mov_b32 {ONE[i]}, 0")
        a(f"v_cndmask_b32 {ONE[0]}, {AD[2]}, {vZ[0]}, vcc")
        for i in range(3):
            a(f"v_mov_b32 {PS[i]}, 0"); a(f"v_mov_b32 {PD[i]}, 0")
        a.c("static per-lane addresses of the main loop (window offsets are added after the assignment)")
        a(f"v_and_b32 {vT1}, 31, {vL}")
        a(f"v_lshrrev_b32 {vT2}, 5, {vL}")
        a(f"v_mov_b32 {vT3}, {L_A2}")
        a(f"v_lshl_add_u32 {vE64}, {vT1}, 6, {vT3}")
        a(f"v_bfe_u32 {vT0}, {vL}, 2, 2")
        a(f"v_lshl_add_u32 {vT0}, {vT2}, 2, {vT0}")
        a(f"v_lshl_add_u32 {vTR}, {vT0}, 6, {vT3}")
        a(f"v_bfe_u32 {vT0}, {vL}, 4, 1")
        a(f"v_lshl_add_u32 {vTR}, {vT0}, 5, {vTR}")
        a(f"v_and_b32 {vT0}, 3, {vL}")
        a(f"v_lshl_add_u32 {vTR}, {vT0}, 3, {vTR}")
        a(f"s_lshl_b32 {sHST}, {sWave}, 12")
        a(f"s_add_u32 {sHST}, {sHST}, {L_HST}")
        for i in range(4): a(f"s_add_u32 {sM0[i]}, {sHST}, {1024*i}")
        a(f"v_and_b32 {vT0}, 3, {vT1}")
        a(f"v_bfe_u32 {vT3}, {vT1}, 4, 1")
        a(f"v_lshl_or_b32 {vT3}, {vT3}, 2, {vT0}")
        a(f"v_lshlrev_b32 {vT0}, 3, {vT0}")
        a(f"v_lshrrev_b32 {vJ}, 2, {vT1}")
        a(f"v_add_u32 {vT0}, {vT0}, {vJ}")
        a(f"v_lshl_add_u32 {vT0}, {vT0}, 7, {sHST}")
        for s_ in range(4):
            a(f"v_add_u32 {vJ}, {2*s_}, {vT2}")
            a(f"v_xor_b32 {vJ}, {vJ}, {vT3}")
            a(f"v_lshl_add_u32 {vHA[s_]}, {vJ}, 4, {vT0}")
        a(f"v_and_b32 {vT0}, 7, {vL}")
        a(f"v_lshlrev_b32 {vT3}, 2, {vT2}")
        a(f"v_xor_b32 {vT0}, {vT0}, {vT3}")
        for i in range(4):
            a(f"v_xor_b32 {vJ}, {i}, {vT0}")
            a(f"v_lshlrev_b32 {vKD[i]}, 4, {vJ}")
        a(f"s_mov_b32 {sCAP}, {CAP}")
        a(f"s_sub_u32 {sTgt}, 11, {sWave}")
        a(f"s_cmp_lt_u32 {sWave}, 4")
        a(f"s_cselect_b32 {sTgt}, {sWave}, {sTgt}")
        a(f"v_lshrrev_b32 {aPS}, 3, {vL}")
        a(f"v_and_b32 {aPD}, 7, {vL}")
        a(f"v_lshlrev_b32 {aOH}, 2, {aPS}")
        a(f"v_lshlrev_b32 {SS}, 2, {aPD}")
    a(f"s_cmp_gt_u32 {sWave}, 3")
    a("s_cbranch_scc1 K_S_NOCOPY")
    a.c("waves 0..3 copy the cell image out: eight 16 B pieces per thread")
    a(f"v_lshlrev_b32 {vT0}, 4, v0")
    a(f"v_add_u32 {vT0}, {L_HST}, {vT0}")
    a(f"v_lshrrev_b32 {vT1}, 3, v0")
    a(f"v_lshlrev_b32 {vT2}, 2, {vT1}")
    CP=[D1[4*k:4*k+4] for k in range(8)]
    for k in range(4):
        a(f"ds_read_b128 {CP[k]}, {vT0} offset:{4096*k}")
        a(f"ds_read_b32 {D2[k]}, {vT2} offset:{L_RES+128*k}")
    a(f"v_and_b32 {vT3}, 7, v0")
    a(f"v_cmp_eq_u32 vcc, 0, {vT3}")
    a(f"v_mov_b32 {vJ}, -1")
    a(f"v_lshlrev_b32 {vT1}, 15, {vT1}")
    a(f"v_cndmask_b32_e64 {AD[1]}, -1, -2, vcc")
    a(f"v_lshl_add_u32 {vT1}, {vT3}, 4, {vT1}")
    a(f"s_lshl_b32 {sTmp}, s2, 7")
    for k in range(8):
        if k<4:
            a(f"ds_read_b128 {CP[k+4]}, {vT0} offset:{4096*(k+4)}")
            a(f"ds_read_b32 {D2[k+4]}, {vT2} offset:{L_RES+128*(k+4)}")
            a("s_waitcnt lgkmcnt(8)")
        else:
            a(f"s_waitcnt lgkmcnt({2*(7-k)})")
        a(f"v_cmp_lt_u32 vcc, 32, {D2[k]}")
        a(f"s_add_u32 {sTmp2}, {sTmp}, {k*32*32768}")
        a("s_nop 0")
        a(f"v_cndmask_b32 {CP[k][0]}, {CP[k][0]}, {AD[1]}, vcc")
        for i in range(1,4): a(f"v_cndmask_b32 {CP[k][i]}, {CP[k][i]}, {vJ}, vcc")
        a(f"buffer_store_dwordx4 {CP[k]}, {vT1}, {sW}, {sTmp2} offen{ST}")
    a("s_branch K_S_STATIC")
    a.label("K_S_NOCOPY")
    a(f"s_sub_u32 {sTmp}, {sWave}, 5")
    a(f"s_cmp_lt_u32 {sTmp}, 2")
    a("s_cbranch_scc0 K_S_POS")
    a.c("waves 5,6: source-node table B' = -log2e * h @ W2 for 32 nodes")
    a(f"v_add_u32 {vT0}, {sC}, {vTRW}")
    a("s_waitcnt vmcnt(5)")
    for s_ in range(4):
        for x in range(2):
            for th in range(2):
                r=(s_*2+x)*4+2*th
                a(f"ds_read_b64_tr_b16 {D1[r:r+2]}, {vT0} offset:{s_*2048+th*512+x*64}")
    a("s_waitcnt lgkmcnt(0)")
    for x in range(2):
        for s_ in range(4):
            r=(s_*2+x)*4
            mfma(a,D2[16*x:16*x+16],D1[r:r+4],HA[4*s_:4*s_+4],"0" if s_==0 else D2[16*x:16*x+16])
    a(f"s_mul_i32 {sTmp}, {sI}, {32*144}")
    a(f"s_add_u32 {sTmp}, {sTmp}, {L_BST}")
    a(f"v_and_b32 {vT1}, 31, {vL}")
    a(f"v_mul_u32_u24 {vT1}, 144, {vT1}")
    a(f"v_lshrrev_b32 {vT2}, 5, {vL}")
    a(f"v_lshl_add_u32 {vT1}, {vT2}, 3, {vT1}")
    a(f"v_add_u32 {vT1}, {sTmp}, {vT1}")
    a(f"v_lshrrev_b32 {vT2}, 3, {vL}")
    a(f"v_mul_u32_u24 {vT3}, 144, {vT2}")
    a(f"v_and_b32 {vJ}, 7, {vL}")
    a(f"v_lshl_add_u32 {vT3}, {vJ}, 4, {vT3}")
    a(f"v_add_u32 {vT3}, {sTmp}, {vT3}")
    a(f"s_mov_b32 {sTmp2}, {NEG_LOG2E}")
    a.nop(4)
    for x in range(2):
        for q in range(16): a(f"v_mul_f32 {D2[16*x+q]}, {sTmp2}, {D2[16*x+q]}")
        for qq in range(4):
            b=16*x+4*qq
            a(f"v_cvt_pk_bf16_f32 {E01[0]}, {D2[b]}, {D2[b+1]}")
            a(f"v_cvt_pk_bf16_f32 {E01[1]}, {D2[b+2]}, {D2[b+3]}")
            a(f"ds_write_b64 {vT1}, {E01} offset:{x*64+qq*16}")
            a("s_nop 0")
    for i in range(4): a(f"ds_read_b128 {D1[4*i:4*i+4]}, {vT3} offset:{i*8*144}")
    a(f"s_lshl_b32 {sTmp2}, {sI}, 5")
    a(f"v_add_u32 {vT2}, {sTmp2}, {vT2}")
    a(f"s_mul_i32 {sTmp}, s2, {NPW}")
    a(f"v_add_u32 {vT0}, {sTmp}, {vT2}")
    a(f"v_lshlrev_b32 {vT1}, 7, {vT0}")
    a(f"v_lshl_add_u32 {vT1}, {vJ}, 4, {vT1}")
    a(f"v_mov_b32 {vJ}, 0x40000000")
    a("s_waitcnt lgkmcnt(0)")
    for i in range(4):
        a(f"v_add_u32 {vT3}, {8*i}, {vT2}")
        a(f"v_cmp_gt_u32 vcc, {NPW}, {vT3}")
        a(f"v_add_u32 {AD[0]}, {1024*i}, {vT1}")
        a("s_nop 0")
        a(f"v_cndmask_b32 {AD[0]}, {vJ}, {AD[0]}, vcc")
        a(f"buffer_store_dwordx4 {D1[4*i:4*i+4]}, {AD[0]}, {sB}, 0 offen{ST}")
    a("s_waitcnt vmcnt(4)")
    a("s_branch K_S_STATIC")
    a.label("K_S_POS")
    a.label("K_S_STATIC")
    setup_static()
    a.c("waves 0..3: every cell store has left; waves 4, 7: raw w_e / window rows landed; waves 5, 6 signal their rows later")
    a(f"s_sub_u32 {sTmp}, {sWave}, 5")
    a(f"s_cmp_lt_u32 {sTmp}, 2")
    a("s_cbranch_scc1 K_S_PREC")
    a("s_waitcnt vmcnt(0)")
    a.label("K_S_PREC")
    a("s_waitcnt lgkmcnt(0)")
    stamp(a,opt,15) if not opt.get('dbgfill',0) else None
    a("s_barrier")
    stamp(a,opt,3)
    def have_tag(lbl):
        a(f"s_mov_b32 {sPoll}, 0")
        a.label(lbl)
        a(f"v_readfirstlane_b32 {sNonce}, {aE}")
        a("s_nop 3")
        a(f"s_cmp_lg_u32 {sNonce}, 0")
        a(f"s_cbranch_scc1 {lbl}_OK")
        a(f"s_add_u32 {sPoll}, {sPoll}, 1")
        a(f"s_cmp_gt_u32 {sPoll}, 200000")
        a(f"s_cbranch_scc1 {lbl}_OK")
        a("s_sleep 2")
        a(f"buffer_load_dword {aE}, {vZ[0]}, {sT4c}, 0 offen sc1")
        a("s_waitcnt vmcnt(0)")
        a(f"s_branch {lbl}")
        a.label(f"{lbl}_OK")
    a(f"s_cmp_lg_u32 {sWave}, 0")
    a("s_cbranch_scc1 K_G_NOT0")
    a.c("wave 0: signal this workgroup's cells, publish the tag to the workgroup")
    have_tag("K_G_TAG")
    a(f"s_lshl_b32 {sTmp}, s2, 4")
    a(f"s_add_u32 {sTmp}, {sTmp}, {FLG}")
    a(f"v_mov_b32 {vT0}, {sNonce}")
    a(f"buffer_store_dword {vT0}, {vZ[0]}, {sW}, {sTmp} offen sc1")
    a(f"ds_write_b32 {vZ[0]}, {vT0} offset:{L_NRES+8}")
    a("s_branch K_G_SETUP")
    a.label("K_G_NOT0")
    a(f"s_cmp_lt_u32 {sWave}, 4")
    a("s_cbranch_scc1 K_G_WH")
    a(f"s_sub_u32 {sTmp}, {sWave}, 5")
    a(f"s_cmp_lt_u32 {sTmp}, 2")
    a("s_cbranch_scc1 K_G_SETUP")
    a.c("waves 4, 7: pos table -> LDS (37 pieces each)")
    a(f"s_cmp_eq_u32 {sWave}, 7")
    a(f"s_cselect_b32 {sI}, {37*1024}, 0")
    for i in range(37):
        a(f"s_add_u32 {sTmp}, {sI}, {i*1024}")
        a(f"s_add_u32 {sTmp2}, {sTmp}, {L_POS}")
        a(f"s_mov_b32 m0, {sTmp2}")
        a("s_nop 0")
        a(f"buffer_load_dwordx4 {vL16}, {sP}, {sTmp} offen lds")
    a("s_branch K_G_SETUP")
    a.label("K_G_WH")
    a.c("waves 1..3: raw w_h -> staging area")
    a("s_load_dwordx2 s[64:65], s[0:1], 56")
    a(f"s_sub_u32 {sI}, {sWave}, 1")
    a("s_waitcnt lgkmcnt(0)")
    srd(a,sT4b,"s64","s65",128*128)
    for k in range(6):
        a(f"s_add_u32 {sTmp}, {sI}, {3*k}")
        a(f"s_min_u32 {sTmp}, {sTmp}, 15")
        a(f"s_lshl_b32 {sTmp}, {sTmp}, 10")
        a(f"s_add_u32 {sTmp2}, {sTmp}, {L_HST}")
        a(f"s_mov_b32 m0, {sTmp2}")
        a("s_nop 0")
        a(f"buffer_load_dwordx4 {vL16}, {sT4b}, {sTmp} offen lds")
    a.label("K_G_SETUP")
    a.c("operands from raw w_e: W1 (for A'), W4', wd'")
    W1=D2
    a(f"v_add_u32 {vT0}, {L_RAWW}, {vTRW}")
    for s_ in range(4):
        for x in range(2):
            for th in range(2):
                r=(s_*2+x)*4+2*th
                a(f"ds_read_b64_tr_b16 {W1[r:r+2]}, {vT0} offset:{s_*2048+th*512+x*64}")
    W4R=HA[0:8]
    for x in range(2):
        for th in range(2):
            a(f"ds_read_b64_tr_b16 {W4R[4*x+2*th:4*x+2*th+2]}, {vT0} offset:{129*128+th*512+x*64}")
    WD=M[0:2]
    a(f"v_mov_b32 {WD[0]}, 0")
    a(f"v_mov_b32 {WD[1]}, 0")
    a(f"v_and_b32 {vT1}, 31, {vL}")
    a(f"v_lshlrev_b32 {vT2}, 1, {vT1}")
    a(f"v_add_u32 {vT2}, {L_RAWW+128*128}, {vT2}")
    a(f"ds_read_u16_d16_hi {WD[0]}, {vT2}")
    a(f"ds_read_u16_d16_hi {WD[1]}, {vT2} offset:64")
    a("s_waitcnt lgkmcnt(0)")
    for x in range(2):
        for s_ in range(4):
            mfma(a,D1[16*x:16*x+16],HW[4*s_:4*s_+4],W1[(s_*2+x)*4:(s_*2+x)*4+4],"0" if s_==0 else D1[16*x:16*x+16])
    a(f"s_mov_b32 {sTmp}, {NEG_LOG2E}")
    for i in range(8):
        a(f"v_lshlrev_b32 {vT0}, 16, {W4R[i]}")
        a(f"v_and_b32 {vT2}, 0xffff0000, {W4R[i]}")
        a(f"v_mul_f32 {vT0}, {sTmp}, {vT0}")
        a(f"v_mul_f32 {vT2}, {sTmp}, {vT2}")
        a(f"v_cvt_pk_bf16_f32 {WE[i]}, {vT0}, {vT2}")
    a(f"v_cmp_lt_u32 vcc, 31, {vL}")
    for x in range(2):
        a(f"v_mul_f32 {WD[x]}, {sTmp}, {WD[x]}")
        a(f"v_cvt_pk_bf16_f32 {vT0}, {WD[x]}, {WD[x]}")
        a(f"v_and_b32 {vT0}, 0xffff0000, {vT0}")
        a(f"v_sub_f32 {vT2}, {WD[x]}, {vT0}")
        a(f"v_cvt_pk_bf16_f32 {vT2}, {vT2}, {vT2}")
        a(f"v_and_b32 {vT2}, 0xffff0000, {vT2}")
        a(f"v_cndmask_b32 {WD[x]}, {vT0}, {vT2}, vcc")
    a(f"s_cmp_lg_u32 {sWave}, 0")
    a("s_cbranch_scc1 K_G_NOEARLY")
    a(f"s_mov_b32 {sTmp2}, {FLG}")
    for k in range(4): a(f"buffer_load_dword {AD[k]}, {vL16}, {sW}, {sTmp2} offen offset:{1024*k} sc1")
    a.label("K_G_NOEARLY")
    a(f"v_cmp_lt_u32 vcc, 31, {vL}")
    a(f"v_mov_b32 {vJ}, 0xffff")
    for x in range(2):
        for r in range(4):
            q0,q1=D1[16*x+2*r],D1[16*x+2*r+1]
            a(f"v_mul_f32 {q0}, {sTmp}, {q0}")
            a(f"v_mul_f32 {q1}, {sTmp}, {q1}")
            a(f"v_cvt_pk_bf16_f32 {vT0}, {q0}, {q1}")
            a(f"v_lshlrev_b32 {vT1}, 16, {vT0}")
            a(f"v_and_b32 {vT2}, 0xffff0000, {vT0}")
            a(f"v_sub_f32 {vT1}, {q0}, {vT1}")
            a(f"v_sub_f32 {vT2}, {q1}, {vT2}")
            a(f"v_cvt_pk_bf16_f32 {vT1}, {vT1}, {vT2}")
            a(f"v_cndmask_b32 {WA[4*x+r]}, {vT0}, {vT1}, vcc")
        a(f"v_bfi_b32 {WA[4*x+3]}, {vJ}, {WA[4*x+3]}, {WD[x]}")
    a(f"s_lshl_b32 {sTmp}, {sWave}, 11")
    a(f"s_add_u32 {sTmp}, {sTmp}, {L_A2}")
    a(f"v_lshl_add_u32 {vT0}, {vL}, 5, {sTmp}")
    a(f"ds_write_b128 {vT0}, {WA[0:4]}")
    a(f"ds_write_b128 {vT0}, {WA[4:8]} offset:16")
    for i in range(32): a(f"v_mov_b32 {D2[i]}, 0")
    a(f"s_sub_u32 {sTmp}, {sWave}, 5")
    a(f"s_cmp_lt_u32 {sTmp}, 2")
    a("s_cbranch_scc0 K_G_NOFLG2")
    a.c("waves 5,6: their rows have left -> signal them")
    a("s_waitcnt vmcnt(0)")
    have_tag("K_G_TAG2")
    a(f"s_lshl_b32 {sTmp}, s2, 1")
    a(f"s_add_u32 {sTmp}, {sTmp}, {sWave}")
    a(f"s_sub_u32 {sTmp}, {sTmp}, 5")
    a(f"s_lshl_b32 {sTmp}, {sTmp}, 4")
    a(f"s_add_u32 {sTmp}, {sTmp}, {FLG2}")
    a(f"v_mov_b32 {vT0}, {sNonce}")
    a(f"buffer_store_dword {vT0}, {vZ[0]}, {sW}, {sTmp} offen sc1")
    a.label("K_G_NOFLG2")
    a(f"s_cmp_lg_u32 {sWave}, 0")
    a("s_cbranch_scc1 K_G_WAIT")
    a.c("wave 0: wait for all 256 hand-offs (the first round of flag loads is already in flight)")
    a(f"s_mov_b32 {sTmp2}, {FLG}")
    a("s_branch K_G_POLL1")
    a.label("K_G_POLL")
    for k in range(4): a(f"buffer_load_dword {AD[k]}, {vL16}, {sW}, {sTmp2} offen offset:{1024*k} sc1")
    a.label("K_G_POLL1")
    a("s_waitcnt vmcnt(0)")
    a(f"v_cmp_eq_u32 {sAny}, {sNonce}, {AD[0]}")
    a(f"v_cmp_eq_u32 {sSave}, {sNonce}, {AD[1]}")
    a(f"v_cmp_eq_u32 vcc, {sNonce}, {AD[2]}")
    a("s_nop 1")
    a(f"s_and_b64 {sAny}, {sAny}, {sSave}")
    a(f"v_cmp_eq_u32 {sSave}, {sNonce}, {AD[3]}")
    a(f"s_and_b64 {sAny}, {sAny}, vcc")
    a("s_nop 1")
    a(f"s_and_b64 {sAny}, {sAny}, {sSave}")
    a(f"s_cmp_eq_u64 {sAny}, -1")
    a("s_cbranch_scc1 K_G_WAIT")
    a(f"s_add_u32 {sPoll}, {sPoll}, 1")
    a(f"s_cmp_lt_u32 {sPoll}, 200000")
    a("s_cbranch_scc1 K_G_POLL")
    a.label("K_G_WAIT")
    a.c("waves 4 and 7 keep their pos pieces in flight: their cell loads return behind them")
    a(f"s_lshl_b32 {sTmp}, 1, {sWave}")
    a(f"s_and_b32 {sTmp}, {sTmp}, 0x90")
    a("s_cbranch_scc1 K_G_WAIT47")
    a("s_waitcnt vmcnt(0)")
    a.label("K_G_WAIT47")
    a("s_waitcnt lgkmcnt(0)")
    for _ in range(opt.get('delay',0)): a("s_sleep 32")
    a("s_barrier")
    stamp(a,opt,4)
    RECP=D1[0:16]; REC=[RECP[2*i] for i in range(8)]+[RECP[2*i+1] for i in range(8)]; WAD=D1[16:32]; RK=HA
    a.c("cell records of this bin: pair s holds slots m and 16+m (m = l&15) of cell 32s+4v+(l>>4)")
    a(f"s_lshl_b32 {sTmp}, s2, 15")
    a(f"s_lshl_b32 {sTmp2}, {sWave}, 9")
    a(f"s_add_u32 {sTmp}, {sTmp}, {sTmp2}")
    a(f"v_lshl_add_u32 {vT0}, {vL}, 3, {sTmp}")
    ROT=opt.get('rot',0)
    if ROT==1: a(f"s_getreg_b32 {sRot}, hwreg(HW_REG_XCC_ID, 0, 4)")
    elif ROT==2: a(f"s_and_b32 {sRot}, s2, 7")
    elif ROT==3:
        a(f"s_getreg_b32 {sRot}, hwreg(HW_REG_XCC_ID, 0, 4)")
        a(f"s_and_b32 {sRot}, {sRot}, 3")
        a(f"s_lshl_b32 {sRot}, {sRot}, 1")
    else: a(f"s_mov_b32 {sRot}, 0")
    def pair_index(dst,s_):
        a(f"s_add_u32 {dst}, {sRot}, {s_}")
        a(f"s_and_b32 {dst}, {dst}, 7")
    for s_ in range(8):
        pair_index(sTmp,s_)
        a(f"s_lshl_b32 {sTmp}, {sTmp}, 12")
        a(f"buffer_load_dwordx2 {RECP[2*s_:2*s_+2]}, {vT0}, {sW}, {sTmp} offen{LD}")
    a(f"v_lshlrev_b32 {vT2}, 1, {vL}")
    a(f"v_and_b32 {vT2}, 62, {vT2}")
    a("s_load_dwordx2 s[98:99], s[0:1], 48")
    a.c("node-update weights (transposed reads of raw w_h), waves 0..3 use them")
    a(f"s_and_b32 {sTmp}, {sWave}, 1")
    a(f"s_lshl_b32 {sTmp}, {sTmp}, 6")
    a(f"s_add_u32 {sTmp}, {sTmp}, {L_HST}")
    a(f"v_add_u32 {vT1}, {sTmp}, {vTRW}")
    for s_ in range(8):
        for th in range(2):
            a(f"ds_read_b64_tr_b16 {WH[4*s_+2*th:4*s_+2*th+2]}, {vT1} offset:{s_*2048+th*512}")
            if (2*s_+th)==7: a("s_waitcnt lgkmcnt(0)")
    srd(a,sT4,"s98","s99",128)
    a(f"v_mov_b32 {WX[0]}, 0")
    a(f"v_mov_b32 {WX[1]}, 0")
    a(f"buffer_load_short_d16_hi {WX[0]}, {vT2}, {sT4}, 0 offen")
    a(f"buffer_load_short_d16_hi {WX[1]}, {vT2}, {sT4}, 0 offen offset:64")
    a("s_waitcnt vmcnt(2)")
    stamp(a,opt,5)
    a(f"s_mov_b64 {sAny}, 0")
    for s_ in range(16):
        a(f"v_cmp_gt_u32 {sMask[s_]}, {sMark}, {REC[s_]}")
        if s_<8:
            a(f"v_cmp_eq_u32 vcc, {sMark}, {REC[s_]}")
        a(f"v_lshrrev_b32 {WAD[s_]}, 27, {REC[s_]}")
        a(f"v_and_b32 {WAD[s_]}, 0x1c, {WAD[s_]}")
        if s_<8: a(f"s_or_b64 {sAny}, {sAny}, vcc")
    order=[x for p in range(8) for x in (p,8+p)]
    for n_,s_ in enumerate(order):
        a(f"s_mov_b64 exec, {sMask[s_]}")
        if s_>=8: a(f"s_cbranch_execz K2_A{s_}")
        a(f"ds_add_rtn_u32 {RK[s_]}, {WAD[s_]}, {vOne} offset:{L_CNT}")
        if s_>=8: a.label(f"K2_A{s_}")
        if n_==7:
            a("s_waitcnt lgkmcnt(4)")
    a("s_mov_b64 exec, -1")
    FL=A2R
    def flg2_loads():
        a(f"s_mov_b32 {sTmp2}, {FLG2}")
        for k in range(4): a(f"buffer_load_dword {FL[k]}, {vL16}, {sW}, {sTmp2} offen offset:{1024*k} sc1")
        a(f"s_mov_b32 {sTmp2}, {FLG2+4096}")
        for k in range(4): a(f"buffer_load_dword {FL[4+k]}, {vL16}, {sW}, {sTmp2} offen offset:{1024*k} sc1")
    a(f"s_cmp_lg_u32 {sWave}, 1")
    a("s_cbranch_scc1 K2_NOF2A")
    a.c("wave 1: flags of the source-node table (checked before barrier 2)")
    flg2_loads()
    a(f"ds_read_b32 {aE}, {vZ[0]} offset:{L_NRES+8}")
    a.label("K2_NOF2A")
    a(f"s_lshl_b32 {sTmp}, {sWave}, 2")
    a(f"v_lshrrev_b32 {vT0}, 4, {vL}")
    a(f"v_add_u32 {vT0}, {sTmp}, {vT0}")
    a(f"v_mul_u32_u24 {vT0}, {CH}, {vT0}")
    a(f"v_mov_b32 {vT1}, {L_L0}")
    a(f"v_mov_b32 {vT2}, {L_L1}")
    a("s_waitcnt lgkmcnt(0)")
    for s_ in order:
        a(f"s_mov_b64 exec, {sMask[s_]}")
        if s_>=8: a(f"s_cbranch_execz K2_B{s_}")
        pair_index(sTmp,s_&7)
        a(f"s_mul_i32 {sTmp}, {sTmp}, {32*CH}")
        a(f"v_min_u32 {RK[s_]}, {CAPX-1}, {RK[s_]}")
        a(f"v_and_b32 {vT3}, 0xfff, {REC[s_]}")
        a(f"v_mad_u32_u24 {RK[s_]}, {WAD[s_]}, {sCAPq}, {RK[s_]}")
        a(f"v_add3_u32 {vT3}, {vT3}, {vT0}, {sTmp}")
        a(f"v_bfe_u32 {vJ}, {REC[s_]}, 26, 3")
        a(f"v_lshl_add_u32 {AD[0]}, {RK[s_]}, 2, {vT1}")
        a(f"v_lshl_or_b32 {vT3}, {vT3}, 5, {vJ}")
        a(f"v_lshl_add_u32 {AD[1]}, {RK[s_]}, 1, {vT2}")
        a(f"v_bfe_u32 {vJ}, {REC[s_]}, 12, 14")
        a(f"ds_write_b32 {AD[0]}, {vT3}")
        a(f"ds_write_b16 {AD[1]}, {vJ}")
        if s_>=8: a.label(f"K2_B{s_}")
    a("s_mov_b64 exec, -1")
    NE=opt.get('epf',0)
    if NE:
        a.c("L2 warm-up of the e_attr lines of the first records (speed only; results are never read)")
        a(f"s_lshl_b32 {sTmp}, {sWave}, 2")
        a(f"v_lshrrev_b32 {vT0}, 4, {vL}")
        a(f"v_add_u32 {vT0}, {sTmp}, {vT0}")
        a(f"v_mul_u32_u24 {vT0}, {CH}, {vT0}")
        a(f"v_mov_b32 {vT2}, 0x2000000")
        for k in range(NE):
            a(f"v_cmp_gt_u32 vcc, {sMark}, {REC[k]}")
            a(f"v_and_b32 {vT1}, 0xfff, {REC[k]}")
            pair_index(sTmp,k)
            a(f"s_mul_i32 {sTmp}, {sTmp}, {32*CH}")
            a(f"v_add3_u32 {vT1}, {vT1}, {vT0}, {sTmp}")
            a(f"v_cndmask_b32 {vT1}, {vT2}, {vT1}, vcc")
            a(f"v_lshlrev_b32 {vT1}, 5, {vT1}")
            a(f"buffer_load_dword {vDUM}, {vT1}, {sE}, 0 offen")
    a.c("overflowed cells -> rescan list (rare)")
    a(f"s_cmp_eq_u64 {sAny}, 0")
    a("s_cbranch_scc1 K2_NOMARK")
    a(f"v_lshrrev_b32 {vT0}, 4, {vL}")
    a(f"s_lshl_b32 {sTmp}, {sWave}, 2")
    a(f"v_add_u32 {vT0}, {sTmp}, {vT0}")
    a(f"v_mov_b32 {vT1}, {L_NRES}")
    for s_ in range(8):
        a(f"v_cmp_eq_u32 vcc, {sMark}, {REC[s_]}")
        a(f"s_and_saveexec_b64 {sSave}, vcc")
        a(f"s_cbranch_execz K2_MK{s_}")
        a(f"ds_add_rtn_u32 {vT2}, {vT1}, {vOne}")
        pair_index(sTmp,s_)
        a(f"s_lshl_b32 {sTmp}, {sTmp}, 5")
        a(f"v_add_u32 {vT3}, {sTmp}, {vT0}")
        a("s_waitcnt lgkmcnt(0)")
        a(f"v_lshlrev_b32 {vT2}, 2, {vT2}")
        a(f"ds_write_b32 {vT2}, {vT3} offset:{L_RES}")
        a.label(f"K2_MK{s_}")
        a(f"s_mov_b64 exec, {sSave}")
    a.label("K2_NOMARK")
    a("s_load_dwordx2 s[64:65], s[0:1], 0")
    a("s_waitcnt vmcnt(0) lgkmcnt(0)")
    a(f"s_cmp_lg_u32 {sWave}, 1")
    a("s_cbranch_scc1 K2_NOF2B")
    a(f"v_readfirstlane_b32 {sNonce}, {aE}")
    a(f"s_mov_b32 {sPoll}, 0")
    a.label("K2_F2CHK")
    a(f"v_cmp_eq_u32 {sAny}, {sNonce}, {FL[0]}")
    for k in range(1,8):
        a(f"v_cmp_eq_u32 vcc, {sNonce}, {FL[k]}")
        a("s_nop 1")
        a(f"s_and_b64 {sAny}, {sAny}, vcc")
    a(f"s_cmp_eq_u64 {sAny}, -1")
    a("s_cbranch_scc1 K2_NOF2B")
    a(f"s_add_u32 {sPoll}, {sPoll}, 1")
    a(f"s_cmp_gt_u32 {sPoll}, 200000")
    a("s_cbranch_scc1 K2_NOF2B")
    flg2_loads()
    a("s_waitcnt vmcnt(0)")
    a("s_branch K2_F2CHK")
    a.label("K2_NOF2B")
    srd(a,sHs,"s64","s65",N*128)
    a(f"s_mov_b32 {sTmp}, {NEG_LN2}")
    a(f"v_mul_f32 {WX[0]}, {sTmp}, {WX[0]}")
    a(f"v_mul_f32 {WX[1]}, {sTmp}, {WX[1]}")
    stamp(a,opt,6)
    a("s_barrier")
    stamp(a,opt,7)
    a.c("window sizes (lane = pair i,k) and the rescan count")
    a(f"v_mov_b32 {vT0}, {L_NRES}")
    a(f"ds_read_b32 {vT1}, {vT0}")
    a(f"ds_read_b32 {vT2}, {aOH} offset:{L_CNT}")
    a(f"ds_read_b32 {vT3}, {SS} offset:{L_CNT}")
    a("s_waitcnt lgkmcnt(0)")
    a(f"v_readfirstlane_b32 {sNR}, {vT1}")
    a(f"v_min_u32 {vT0}, 0xffffff, {vT2}")
    a(f"v_min_u32 {vJ}, 0xffffff, {vT3}")
    a(f"s_cmp_eq_u32 {sNR}, 0")
    a("s_cbranch_scc1 K2_CHECK")
    a(f"s_min_u32 {sNR}, {sNR}, 256")
    a(f"s_mov_b32 {sI}, 0")
    a.label("K2_RESCAN_I")
    a(f"s_lshl_b32 {sTmp}, {sI}, 2")
    a(f"s_add_u32 {sTmp}, {sTmp}, {L_RES}")
    a(f"v_mov_b32 {vT0}, {sTmp}")
    a(f"ds_read_b32 {vT1}, {vT0}")
    a("s_waitcnt lgkmcnt(0)")
    a(f"v_readfirstlane_b32 {sWsrc}, {vT1}")
    a("s_nop 3")
    a(f"s_min_u32 {sWsrc}, {sWsrc}, 255")
    a(f"s_mov_b32 {sC}, 0")
    a.label("K2_RESCAN_C")
    def append_raw(lim_local):
        a(f"v_lshlrev_b32 {vT1}, 2, {vT0}")
        a(f"buffer_load_dword {AD[0]}, {vT1}, {sD}, 0 offen")
        a(f"buffer_load_dword {AD[1]}, {vT1}, {sS}, 0 offen")
        a("s_waitcnt vmcnt(0)")
        a(f"v_mul_hi_u32 {vT2}, {AD[0]}, {sK}")
        a(f"v_lshrrev_b32 {vT3}, 3, {vT2}")
        a(f"v_cmp_eq_u32 vcc, s2, {vT3}")
        a("s_nop 1")
        a(f"s_and_b64 vcc, vcc, {sAny}")
        a(f"s_and_saveexec_b64 {sSave}, vcc")
        a(f"s_cbranch_execz {lim_local}")
        a(f"v_mad_u32_u24 {vT3}, {vT2}, {s3125}, {v511}")
        a(f"v_and_b32 {vT2}, 7, {vT2}")
        a(f"v_lshrrev_b32 {vT3}, 9, {vT3}")
        a(f"v_lshlrev_b32 {vT2}, 2, {vT2}")
        a(f"v_sub_u32 {vT3}, {AD[0]}, {vT3}")
        a(f"ds_add_rtn_u32 {AD[2]}, {vT2}, {vOne} offset:{L_CNT}")
        a(f"v_lshl_or_b32 {vT0}, {vT0}, 5, {vT3}")
        a("s_waitcnt lgkmcnt(0)")
        a(f"v_min_u32 {AD[2]}, {CAPX-1}, {AD[2]}")
        a(f"v_mad_u32_u24 {AD[2]}, {vT2}, {sCAPq}, {AD[2]}")
        a(f"v_mov_b32 {vT2}, {L_L0}")
        a(f"v_mov_b32 {vT3}, {L_L1}")
        a(f"v_lshl_add_u32 {vT2}, {AD[2]}, 2, {vT2}")
        a(f"v_lshl_add_u32 {vT3}, {AD[2]}, 1, {vT3}")
        a(f"ds_write_b32 {vT2}, {vT0}")
        a(f"ds_write_b16 {vT3}, {AD[1]}")
        a.label(lim_local)
        a(f"s_mov_b64 exec, {sSave}")
    a(f"s_lshl_b32 {sTmp}, {sC}, 9")
    a(f"v_add_u32 {vT1}, {sTmp}, v0")
    a(f"s_mul_i32 {sTmp2}, {sWsrc}, {CH}")
    a(f"v_add_u32 {vT0}, {sTmp2}, {vT1}")
    a(f"v_cmp_gt_u32 vcc, {CH}, {vT1}")
    a(f"s_mov_b32 {sTmp}, {E}")
    a(f"v_cmp_gt_u32 {sAny}, {sTmp}, {vT0}")
    a("s_nop 1")
    a(f"s_and_b64 {sAny}, {sAny}, vcc")
    append_raw("K2_RA1")
    a(f"s_add_u32 {sC}, {sC}, 1")
    a(f"s_cmp_lt_u32 {sC}, 7")
    a("s_cbranch_scc1 K2_RESCAN_C")
    a(f"s_add_u32 {sI}, {sI}, 1")
    a(f"s_cmp_lt_u32 {sI}, {sNR}")
    a("s_cbranch_scc1 K2_RESCAN_I")
    a("s_waitcnt lgkmcnt(0)")
    a("s_barrier")
    a(f"ds_read_b32 {vT2}, {aOH} offset:{L_CNT}")
    a(f"ds_read_b32 {vT3}, {SS} offset:{L_CNT}")
    a("s_waitcnt lgkmcnt(0)")
    a(f"v_min_u32 {vT0}, 0xffffff, {vT2}")
    a(f"v_min_u32 {vJ}, 0xffffff, {vT3}")
    a.label("K2_CHECK")
    a.c("window assignment by size rank")
    a(f"v_lshl_or_b32 {vT0}, {vT0}, 3, {aPS}")
    a(f"v_lshl_or_b32 {vJ}, {vJ}, 3, {aPD}")
    a(f"v_cmp_lt_u32 {sAny}, {sCAP}, {vT3}")
    a(f"v_cmp_gt_u32 vcc, {vJ}, {vT0}")
    a(f"s_mov_b32 {sWin}, 0")
    a("s_nop 2")
    for i in range(8):
        a(f"s_bfe_u32 {sTmp}, {'vcc_lo' if i<4 else 'vcc_hi'}, {(8<<16)|(8*(i&3))}")
        a(f"s_bcnt1_i32_b32 {sTmp}, {sTmp}")
        a(f"s_cmp_eq_u32 {sTmp}, {sTgt}")
        a(f"s_cselect_b32 {sWin}, {i}, {sWin}")
    if opt.get('nobal',0): a(f"s_mov_b32 {sWin}, {sWave}")
    a(f"s_lshl_b32 {sTmp}, {sWin}, 3")
    a(f"v_readlane_b32 {sCnt}, {vT2}, {sTmp}")
    geometry(sWin)
    a(f"s_lshl_b32 {sTmp}, {sWin}, 11")
    a(f"v_add_u32 {vE64}, {sTmp}, {vE64}")
    a(f"v_add_u32 {vTR}, {sTmp}, {vTR}")
    a(f"s_add_u32 {sTmp}, {sTmp}, {L_A2}")
    a(f"v_lshl_add_u32 {vT0}, {vL}, 5, {sTmp}")
    a(f"ds_read_b128 {WA[0:4]}, {vT0}")
    a(f"ds_read_b128 {WA[4:8]}, {vT0} offset:16")
    for i in range(4): a(f"v_mov_b32 {A2R[i]}, 0")
    a(f"ds_write_b128 {vT0}, {A2R[0:4]}")
    a(f"ds_write_b128 {vT0}, {A2R[0:4]} offset:16")
    a(f"s_cmp_eq_u64 {sAny}, 0")
    a("s_cbranch_scc1 K2_MAIN")
    a.c("generic (slow) mode: raw scan of all edges, 512 per round")
    a(f"s_mov_b32 {sMode}, 1")
    a.label("K2_GEN")
    a("s_barrier")
    a(f"s_cmp_lg_u32 {sWave}, 0")
    a("s_cbranch_scc1 K2_GEN1")
    a(f"v_and_b32 {vT0}, 7, {vL}")
    a(f"v_lshlrev_b32 {vT0}, 2, {vT0}")
    a(f"ds_write_b32 {vT0}, {vZ[0]} offset:{L_CNT}")
    a("s_waitcnt lgkmcnt(0)")
    a.label("K2_GEN1")
    a("s_barrier")
    a(f"s_lshl_b32 {sTmp}, {sChunk}, 9")
    a(f"v_add_u32 {vT0}, {sTmp}, v0")
    a(f"s_mov_b32 {sTmp}, {E}")
    a(f"v_cmp_gt_u32 {sAny}, {sTmp}, {vT0}")
    a("s_nop 1")
    append_raw("K2_RA2")
    a("s_waitcnt lgkmcnt(0)")
    a("s_barrier")
    a(f"s_lshl_b32 {sTmp}, {sWin}, 2")
    a(f"v_mov_b32 {vT0}, {sTmp}")
    a(f"ds_read_b32 {vT1}, {vT0} offset:{L_CNT}")
    a("s_waitcnt lgkmcnt(0)")
    a(f"v_readfirstlane_b32 {sCnt}, {vT1}")
    a("s_nop 3")
    a.label("K2_MAIN")
    if opt.get('dbgfill',0): stamp(a,opt,14)
    a(f"s_min_u32 {sCnt}, {sCnt}, {CAP}")
    a(f"s_add_u32 {sNT}, {sCnt}, 31")
    a(f"s_lshr_b32 {sNT}, {sNT}, 5")
    a(f"s_cmp_eq_u32 {sNT}, 0")
    a("s_cbranch_scc1 K2_MAIN_DONE")
    a(f"s_mul_i32 {sTmp}, {sWin}, {CAPX*4}")
    a(f"s_add_u32 {sTmp}, {sTmp}, {L_L0}")
    a(f"s_mul_i32 {sTmp2}, {sWin}, {CAPX*2}")
    a(f"s_add_u32 {sTmp2}, {sTmp2}, {L_L1}")
    a(f"v_and_b32 {vT0}, 31, {vL}")
    a(f"v_lshl_add_u32 {aL0}, {vT0}, 2, {sTmp}")
    a(f"v_lshl_add_u32 {aL1s}, {vT0}, 1, {sTmp2}")
    a(f"v_lshrrev_b32 {vT0}, 3, {vL}")
    a(f"v_lshl_add_u32 {aL1d}, {vT0}, 3, {sTmp2}")
    def pad():
        a(f"v_add_u32 {vT0}, {sCnt}, {vL}")
        a(f"v_lshl_add_u32 {vT1}, {vT0}, 2, {sTmp}")
        a(f"v_lshl_add_u32 {vT2}, {vT0}, 1, {sTmp2}")
        a(f"v_mov_b32 {vJ}, 7")
        a(f"ds_write_b32 {vT1}, {vJ}")
        a(f"ds_write_b16 {vT2}, {vZ[0]}")
        a(f"ds_write_b32 {vT1}, {vJ} offset:256")
        a(f"ds_write_b16 {vT2}, {vZ[0]} offset:128")
    def first_reads():
        a(f"ds_read_b32 {vT3}, {aL0}")
        a(f"ds_read_b64 {SD}, {aL1d}")
        a(f"ds_read_b32 {LE[1]}, {aL0} offset:128")
        a(f"ds_read_b32 {LE[0]}, {aL0} offset:256")
        a(f"ds_read_u16 {SS}, {aL1s}")
    a(f"s_cmp_ge_u32 {sCnt}, 96")
    a("s_cbranch_scc1 K2_FILL_BIG")
    pad()
    first_reads()
    a("s_waitcnt lgkmcnt(0)")
    a("s_branch K2_FILL")
    a.label("K2_FILL_BIG")
    first_reads()
    pad()
    a("s_waitcnt lgkmcnt(4)")
    a.label("K2_FILL")
    ENT=['',' nt',' sc1',' sc0 sc1',' sc0',' sc0 nt',' sc1 nt',' sc0 sc1 nt'][opt.get('e_nt',0)]
    def E_addr(le): a(f"v_and_or_b32 {aE}, {le}, {sMaskE}, {vHOFF}")
    def E_load(p): a(f"buffer_load_dwordx4 {EA[p]}, {aE}, {sE}, 0 offen{ENT}")
    def H_addr():
        if opt.get('hmask',0):
            a(f"v_and_b32 {SD[0]}, 0x03ff03ff, {SD[0]}"); a(f"v_and_b32 {SD[1]}, 0x03ff03ff, {SD[1]}")
        for i in range(4):
            a(f"v_mad_u32_u16 {AD[i]}, {SD[i>>1]}, {s128}, {vKD[i]}"+(" op_sel:[1,0,0,0]" if i&1 else ""))
    def H_load(i):
        a(f"s_mov_b32 m0, {sM0[i]}")
        a("s_nop 0")
        a(f"buffer_load_dwordx4 {AD[i]}, {sB}, 0 offen{HLD} lds")
    def P_addr(le,par):
        a(f"v_and_b32 {vJ}, 7, {le}")
        a(f"v_mul_u32_u24 {aPS}, 6, {SS}")
        a(f"v_mad_u32_u24 {aPD}, {vJ}, 6, {sN06}")
        a(f"v_lshlrev_b32 {aOH}, 4, {vJ}")
        a(f"v_lshl_add_u32 {aA2[par]}, {vJ}, 3, {vE64}")
    def P_reads():
        for c in range(3): a(f"ds_read_u16_d16_hi {PS[c]}, {aPS} offset:{L_POS+2*c}")
        for c in range(3): a(f"ds_read_u16_d16_hi {PD[c]}, {aPD} offset:{L_POS+2*c}")
        a(f"ds_read_b128 {OH}, {aOH} offset:{L_OH}")
    def P_calc_list(par):
        return [f"v_sub_f32 {DX[0]}, {PD[0]}, {PS[0]}", f"v_sub_f32 {DX[1]}, {PD[1]}, {PS[1]}", f"v_sub_f32 {DX[2]}, {PD[2]}, {PS[2]}",
                f"v_mul_f32 {DD}, {DX[0]}, {DX[0]}", f"v_fmac_f32 {DD}, {DX[1]}, {DX[1]}", f"v_fmac_f32 {DD}, {DX[2]}, {DX[2]}",
                f"v_cvt_pk_bf16_f32 {E01[0]}, 1.0, {DX[0]}", f"v_cvt_pk_bf16_f32 {E01[1]}, {DX[1]}, {DX[2]}",
                f"v_cvt_pk_bf16_f32 {OH[3]}, {OH[3]}, {DD}",
                f"ds_write_b64 {aA2[par]}, {E01}"]
    E_addr(vT3); E_load(0)
    H_addr()
    for i in range(4): H_load(i)
    E_addr(LE[1]); E_load(1)
    if opt.get('dbgfill',0): stamp(a,opt,15)
    P_addr(vT3,0); P_reads()
    a(f"ds_read_b64 {SD}, {aL1d} offset:64")
    a(f"ds_read_u16 {SS}, {aL1s} offset:64")
    for i in range(16): a(f"v_mov_b32 {T[i]}, 0")
    for i in range(8): a(f"v_mov_b32 {A2R[i]}, 0")
    a("s_waitcnt lgkmcnt(0)")
    for ins in P_calc_list(0): a(ins)
    H_addr()
    P_addr(LE[1],1)
    E_addr(LE[0])
    a("s_waitcnt vmcnt(1)")
    for s_ in range(4): a(f"ds_read_b128 {HA[4*s_:4*s_+4]}, {vHA[s_]}")
    Da,Db=D1[0:16],D1[16:32]
    mfma(a,Da,OH,WA[0:4],"0")
    mfma(a,Da,EA[0],WE[0:4],Da)
    a("s_waitcnt lgkmcnt(0)")
    for i in range(4): H_load(i)
    mfma(a,Da,HA[0:4],ID[0:4],Da)
    mfma(a,Da,HA[4:8],ID[4:8],Da)
    a(f"s_mov_b32 {sT}, 0")
    stamp(a,opt,8)
    if DBG:
        a("s_memtime s[80:81]")
        a("s_waitcnt lgkmcnt(0)")
    a.nop(12)
    MADD=opt.get('madd',1)
    def prio(p):
        if PRIO: a(f"s_setprio {p}")
    def Tsec(kind,x,p):
        Dx=D1[16*x:16*x+16]; o=1-x; Do=D1[16*o:16*o+16]; D2o=D2[16*o:16*o+16]
        prio(1)
        if kind=='X':
            ea = EA[p] if x==0 else EA[1-p]
            mfma(a,Do,OH,WA[4*o:4*o+4],"0")
            for i in range(8): a(f"v_cvt_pk_bf16_f32 {M[i]}, {T[2*i]}, {T[2*i+1]}")
            mfma(a,Do,ea,WE[4*o:4*o+4],Do)
            for i in range(16):
                if i==6:
                    if x==1: a("s_waitcnt lgkmcnt(2)")
                    mfma(a,D2o,A2R[0:4],M[0:4],D2o)
                a(f"v_exp_f32 {T[i]}, {Dx[i]}")
            if MADD:
                a("s_nop 1")
                mfma(a,T,ONE,ONE,T)
        else:
            hb = HA[8:16] if x==0 else HA[0:8]
            for i in range(16):
                if i==0: mfma(a,Do,hb[0:4],ID[0:4],Do)
                if i==5: mfma(a,Do,hb[4:8],ID[4:8],Do)
                if i==10: mfma(a,D2o,A2R[4:8],M[4:8],D2o)
                a(f"v_rcp_f32 {T[i]}, {T[i]}")
        prio(0)
    def tile(p):
        q=1-p
        Tsec('X',0,p)
        if not opt.get('e_late',0): E_load(p)
        else: a("s_nop 0")
        P_reads()
        a(f"ds_read_b64 {SD}, {aL1d} offset:{64*(p+2)}")
        if not MADD:
            for i in range(16): a(f"v_add_f32 {T[i]}, 1.0, {T[i]}")
        else:
            a.nop(2)
        Tsec('R',0,p)
        a(f"s_waitcnt vmcnt({0 if opt.get('e_late',0) else 1}) lgkmcnt(0)")
        for s_ in range(4): a(f"ds_read_b128 {HA[4*s_:4*s_+4]}, {vHA[s_]}")
        for k in range(4): a(f"ds_read_b64_tr_b16 {A2R[2*k:2*k+2]}, {vTR} offset:{512*k}")
        a(f"ds_write_b64 {aA2[p]}, {vZ}")
        pc=P_calc_list(q)
        for ins in pc[:6]: a(ins)
        H_addr()
        for i in range(16): a(f"v_mul_f32 {T[i]}, {Da[i]}, {T[i]}")
        for ins in pc[6:]: a(ins)
        Tsec('X',1,p)
        a("s_waitcnt lgkmcnt(0)")
        if opt.get('e_late',0)==1: E_load(p)
        for i in range(4): H_load(i)
        a(f"ds_read_b32 {LE[q]}, {aL0} offset:{128*(p+3)}")
        a(f"ds_read_u16 {SS}, {aL1s} offset:{64*(p+2)}")
        if not MADD:
            for i in range(16): a(f"v_add_f32 {T[i]}, 1.0, {T[i]}")
        Tsec('R',1,p)
        a("s_waitcnt lgkmcnt(0)")
        E_addr(LE[q])
        P_addr(LE[p],p)
        if p==1:
            a(f"v_add_u32 {aL0}, 256, {aL0}")
            a(f"v_add_u32 {aL1s}, 128, {aL1s}")
            a(f"v_add_u32 {aL1d}, 128, {aL1d}")
        for i in range(16): a(f"v_mul_f32 {T[i]}, {Db[i]}, {T[i]}")
    def drain(par):
        for i in range(8): a(f"v_cvt_pk_bf16_f32 {M[i]}, {T[2*i]}, {T[2*i+1]}")
        a(f"ds_write_b64 {aA2[par]}, {vZ}")
        a("s_nop 0")
        mfma(a,D2[16:32],A2R[0:4],M[0:4],D2[16:32])
        mfma(a,D2[16:32],A2R[4:8],M[4:8],D2[16:32])
    a(".p2align 6")
    a.label("K2_LOOP")
    tile(0)
    a(f"s_add_u32 {sT}, {sT}, 1")
    a(f"s_cmp_ge_u32 {sT}, {sNT}")
    a("s_cbranch_scc1 K2_EXIT_ODD")
    tile(1)
    a(f"s_add_u32 {sT}, {sT}, 1")
    a(f"s_cmp_lt_u32 {sT}, {sNT}")
    a("s_cbranch_scc1 K2_LOOP")
    drain(0)
    a("s_branch K2_MAIN_DONE")
    a.label("K2_EXIT_ODD")
    drain(1)
    a.label("K2_MAIN_DONE")
    stamp(a,opt,9)
    if DBG:
        a("s_memtime s[82:83]")
        a("s_waitcnt lgkmcnt(0)")
        a("s_sub_u32 s80, s82, s80")
        a(f"v_writelane_b32 {VDBG}, s80, 12")
        a(f"v_writelane_b32 {VDBG}, {sNT}, 11")
    a(f"s_cmp_eq_u32 {sMode}, 0")
    a("s_cbranch_scc1 K2_EPI")
    a("s_waitcnt vmcnt(0) lgkmcnt(0)")
    a(f"s_add_u32 {sChunk}, {sChunk}, 1")
    a(f"s_cmp_lt_u32 {sChunk}, {(E+511)//512}")
    a("s_cbranch_scc1 K2_GEN")
    a.label("K2_EPI")
    a.c("segment sums of this window: m_i (bf16) -> rows of this window's (now idle) A2 slice")
    a(f"s_lshl_b32 {sHST}, {sWin}, 11")
    a(f"s_add_u32 {sHST}, {sHST}, {L_A2}")
    a(f"v_and_b32 {vJ}, 31, {vL}")
    a(f"s_mov_b32 {sTmp}, {NEG_LN2}")
    a(f"v_lshrrev_b32 {vT2}, 5, {vL}")
    a(f"v_lshlrev_b32 {vT2}, 7, {vT2}")
    a(f"v_lshl_add_u32 {vT2}, {vJ}, 1, {vT2}")
    a(f"v_add_u32 {vT2}, {sHST}, {vT2}")
    a.nop(8)
    for qq in range(4):
        a(f"v_mul_f32 {AD[0]}, {sTmp}, {D2[4*qq]}")
        a(f"v_mul_f32 {AD[1]}, {sTmp}, {D2[16+4*qq]}")
        a(f"v_cvt_pk_bf16_f32 {AD[2]}, {AD[0]}, {AD[1]}")
        a(f"ds_write_b16 {vT2}, {AD[2]} offset:{qq*256}")
        a(f"ds_write_b16_d16_hi {vT2}, {AD[2]} offset:{qq*256+64}")
    def pos_part():
        a.c("coordinate update of this window")
        PP=T
        for qq in range(4):
            for c in range(1,4):
                r=PP[qq*3+c-1]
                a(f"v_mul_f32 {r}, {WX[0]}, {D2[4*qq+c]}")
                a(f"v_fmac_f32 {r}, {WX[1]}, {D2[16+4*qq+c]}")
        for sh in (1,2,4,8):
            for i in range(12): a(f"v_add_f32_dpp {PP[i]}, {PP[i]}, {PP[i]} row_shr:{sh} row_mask:0xf bank_mask:0xf bound_ctrl:0")
        for i in range(12): a(f"v_add_f32_dpp {PP[i]}, {PP[i]}, {PP[i]} row_bcast:15 row_mask:0xa bank_mask:0xf")
        a(f"v_lshrrev_b32 {vT2}, 5, {vL}")
        a(f"v_lshlrev_b32 {vT2}, 4, {vT2}")
        a(f"s_add_u32 {sTmp}, {sHST}, 1024")
        a(f"v_add_u32 {vT2}, {sTmp}, {vT2}")
        a("s_mov_b32 exec_lo, 0x80000000")
        a("s_mov_b32 exec_hi, 0x80000000")
        for qq in range(4):
            for c in range(3):
                a(f"ds_write_b32 {vT2}, {PP[qq*3+c]} offset:{qq*32+c*4}")
        a("s_mov_b64 exec, -1")
        a(f"v_mul_u32_u24 {vT2}, 86, {vL}")
        a(f"v_lshrrev_b32 {vT2}, 8, {vT2}")
        a(f"v_mul_u32_u24 {vT3}, 3, {vT2}")
        a(f"v_sub_u32 {vT3}, {vL}, {vT3}")
        a(f"v_lshlrev_b32 {vT2}, 4, {vT2}")
        a(f"v_lshl_add_u32 {vT2}, {vT3}, 2, {vT2}")
        a(f"v_add_u32 {vT2}, {sTmp}, {vT2}")
        a(f"v_min_u32 {vT2}, {LDS2-4}, {vT2}")
        a(f"ds_read_b32 {AD[0]}, {vT2}")
        a(f"v_lshl_add_u32 {vT3}, {vL}, 1, {sN06}")
        a(f"v_min_u32 {vT2}, {POS_SZ-2}, {vT3}")
        a(f"ds_read_u16_d16_hi {PS[0]}, {vT2} offset:{L_POS}")
        a(f"s_mul_i32 {sTmp}, {sNJ}, 3")
        a(f"v_cmp_gt_u32 vcc, {sTmp}, {vL}")
        a(f"v_add_u32 {vT3}, {OUT_POS}, {vT3}")
        a(f"v_mov_b32 {vT2}, 0x40000000")
        a("s_waitcnt lgkmcnt(0)")
        a(f"v_cndmask_b32 {vT3}, {vT2}, {vT3}, vcc")
        a(f"v_add_f32 {AD[0]}, {AD[0]}, {PS[0]}")
        a(f"v_cvt_pk_bf16_f32 {AD[0]}, {AD[0]}, {AD[0]}")
        a(f"buffer_store_short {AD[0]}, {vT3}, {sO}, 0 offen{OST}")
    a.c("job waves 4..7: row tile r = (v-4)>>1 (rows = window 4r + (m>>3), node m&7), feature half x = v&1")
    a(f"s_cmp_lt_u32 {sWave}, 4")
    a("s_cbranch_scc1 K2_EPI_NOJOB")
    a(f"s_sub_u32 {sTmp2}, {sWave}, 4")
    a(f"s_lshr_b32 {sTmp2}, {sTmp2}, 1")
    a(f"s_lshl_b32 {sTmp2}, {sTmp2}, 2")
    a(f"v_bfe_u32 {vT0}, {vL}, 3, 2")
    a(f"v_add_u32 {vT0}, {sTmp2}, {vT0}")
    a(f"v_and_b32 {vJ}, 7, {vL}")
    a(f"v_lshlrev_b32 {aL1d}, 11, {vT0}")
    a(f"v_lshl_add_u32 {aL1d}, {vJ}, 7, {aL1d}")
    a(f"v_add_u32 {aL1d}, {L_A2}, {aL1d}")
    a(f"v_add_u32 {aL1d}, {aL1d}, {vHOFF}")
    a(f"s_lshl_b32 {sTmp2}, s2, 3")
    a(f"v_add_u32 {vT0}, {sTmp2}, {vT0}")
    a(f"v_mad_u32_u24 {SD[0]}, {vT0}, {s3125}, {v511}")
    a(f"v_add_u32 {SD[1]}, 3125, {SD[0]}")
    a(f"v_lshrrev_b32 {SD[0]}, 9, {SD[0]}")
    a(f"v_lshrrev_b32 {SD[1]}, 9, {SD[1]}")
    a(f"v_sub_u32 {SD[1]}, {SD[1]}, {SD[0]}")
    a(f"v_cmp_lt_u32 vcc, {vJ}, {SD[1]}")
    a(f"v_add_u32 {vT1}, -1, {SD[1]}")
    a(f"v_min_u32 {vT1}, {vT1}, {vJ}")
    a(f"v_add_u32 {vT1}, {SD[0]}, {vT1}")
    a(f"v_lshlrev_b32 {vT1}, 7, {vT1}")
    a(f"v_add_u32 {vT0}, {vT1}, {vHOFF}")
    for s_ in range(4):
        a(f"buffer_load_dwordx4 {HA[4*s_:4*s_+4]}, {vT0}, {sHs}, 0 offen offset:{32*s_}")
    a(f"s_and_b32 {sTmp2}, {sWave}, 1")
    a(f"s_lshl_b32 {sTmp2}, {sTmp2}, 6")
    a(f"v_lshrrev_b32 {vT0}, 1, {vHOFF}")
    a(f"v_add3_u32 {aL0}, {vT1}, {vT0}, {sTmp2}")
    for qq in range(4):
        a(f"buffer_load_dwordx2 {M[2*qq:2*qq+2]}, {aL0}, {sHs}, 0 offen offset:{16*qq}")
    a(f"v_mov_b32 {vT0}, 0x40000000")
    a(f"v_cndmask_b32 {aL1s}, {vT0}, {aL0}, vcc")
    pos_part()
    HV=D2[0:16]
    a("s_waitcnt vmcnt(1)")
    for s_ in range(4):
        mfma(a,D1[0:16],WH[4*s_:4*s_+4],HA[4*s_:4*s_+4],"0" if s_==0 else D1[0:16])
    for qq in range(4):
        a(f"v_lshlrev_b32 {HV[4*qq]}, 16, {M[2*qq]}")
        a(f"v_and_b32 {HV[4*qq+1]}, 0xffff0000, {M[2*qq]}")
        a(f"v_lshlrev_b32 {HV[4*qq+2]}, 16, {M[2*qq+1]}")
        a(f"v_and_b32 {HV[4*qq+3]}, 0xffff0000, {M[2*qq+1]}")
    stamp(a,opt,10)
    a("s_barrier")
    MA=[EA[0],EA[1],A2R[0:4],A2R[4:8]]
    for s_ in range(4): a(f"ds_read_b128 {MA[s_]}, {aL1d} offset:{32*s_}")
    for s_ in range(4):
        a(f"s_waitcnt lgkmcnt({3-s_})")
        mfma(a,D1[0:16],WH[16+4*s_:20+4*s_],MA[s_],D1[0:16])
    a(f"s_mov_b32 {sTmp}, {NEG_LOG2E}")
    a.nop(14)
    X=D1[0:16]
    for i in range(16): a(f"v_mul_f32 {T[i]}, {sTmp}, {X[i]}")
    for i in range(16): a(f"v_exp_f32 {T[i]}, {T[i]}")
    for i in range(16): a(f"v_add_f32 {T[i]}, 1.0, {T[i]}")
    for i in range(16): a(f"v_rcp_f32 {T[i]}, {T[i]}")
    a("s_nop 0")
    for i in range(16): a(f"v_fma_f32 {T[i]}, {X[i]}, {T[i]}, {HV[i]}")
    for qq in range(4):
        a(f"v_cvt_pk_bf16_f32 {M[2*qq]}, {T[4*qq]}, {T[4*qq+1]}")
        a(f"v_cvt_pk_bf16_f32 {M[2*qq+1]}, {T[4*qq+2]}, {T[4*qq+3]}")
        a(f"buffer_store_dwordx2 {M[2*qq:2*qq+2]}, {aL1s}, {sO}, 0 offen offset:{16*qq}{OST}")
    a("s_branch K2_FIN")
    a.label("K2_EPI_NOJOB")
    a("s_waitcnt lgkmcnt(0)")
    stamp(a,opt,10)
    a("s_barrier")
    pos_part()
    a.label("K2_FIN")
    if DBG:
        a("s_waitcnt vmcnt(0)")
        stamp(a,opt,13)
        a(f"s_lshl_b32 {sTmp}, s2, 4")
        a(f"s_add_u32 {sTmp}, {sTmp}, {sWave}")
        a(f"s_lshl_b32 {sTmp}, {sTmp}, 6")
        a(f"s_add_u32 {sTmp}, {sTmp}, {DBG_OFF}")
        a(f"v_lshlrev_b32 {vT0}, 2, {vL}")
        a("s_mov_b32 exec_lo, 0xffff")
        a("s_mov_b32 exec_hi, 0")
        a(f"buffer_store_dword {VDBG}, {vT0}, {sW}, {sTmp} offen")
        a("s_waitcnt vmcnt(0)")
    a.label("K_END")
    a("s_endpgm")
    a.label("K_CODE_END")
    return nv

HEADER='''; Kernarg layout (88 bytes, ptrs only): h, pos, e_attr, src, dst, w_e, w_x, w_h, out, debug, ws
; @launch grid=(256,1,1) block=(512,1,1) lds={lds2}
.amdgcn_target "amdgcn-amd-amdhsa--gfx950"
.text
.globl {k}
.p2align 8
.type {k},@function
'''
def kd(name,nv,ns):
    acc=(nv+3)//4*4
    return f'''.amdhsa_kernel {name}
  .amdhsa_next_free_vgpr {acc}
  .amdhsa_next_free_sgpr {ns}
  .amdhsa_accum_offset {acc}
  .amdhsa_group_segment_fixed_size 0
  .amdhsa_kernarg_size 88
  .amdhsa_user_sgpr_count 2
  .amdhsa_user_sgpr_kernarg_segment_ptr 1
  .amdhsa_system_sgpr_workgroup_id_x 1
  .amdhsa_float_denorm_mode_32 3
.end_amdhsa_kernel
'''
def build(opt):
    out=HEADER.format(lds2=LDS2,k=KNAME)
    a=Asm()
    nv=gen(a,opt)
    assert nv<=255
    out+=a.text()
    out+='.section .rodata,"a"\n.p2align 6\n'+kd(KNAME,256,102)
    return out,nv
if __name__=="__main__":
    opt={}
    for arg in sys.argv[2:]:
        k,v=arg.split('='); opt[k]=int(v)
    txt,nv=build(opt)
    open(sys.argv[1],'w').write(txt)
    print("vgprs:",nv,"LDS",LDS2,"lines",txt.count("\n"),"WS",WS_BYTES)
```

```python
import sys, struct
from asmlib import *

N=12500; E=800000; CH=3136; NSRC=256; NBIN=256; NPW=49
KW=703687442
LOG2E=1.4426950408889634; LN2=0.6931471805599453
def f2u(x): return struct.unpack('<I',struct.pack('<f',x))[0]
NEG_LOG2E=f2u(-LOG2E); NEG_LN2=f2u(-LN2)
SENT=0xFFFFFFFF; MARK=0xFFFFFFFE
CELLS=0; BPT=NBIN*NSRC*128; FLG=BPT+N*128+((-N*128)%4096); FLG2=FLG+4096; WS_BYTES=FLG2+8192
OUT_BYTES=N*64*2+N*3*2; OUT_POS=N*64*2
CAP=576; CAPX=704
L_OH=0; L_CNT=128; L_NRES=160; L_WIN=192; L_RES=256; L_POS=1280; POS_SZ=74*1024
L_L0=L_POS+POS_SZ; L_L1=L_L0+8*CAPX*4; L_A2=L_L1+8*CAPX*2; L_HST=L_A2+8*2048; LDS2=L_HST+8*4096
assert LDS2<=163840, LDS2
L_RAWW=L_L0; L_BST=L_L0+19*1024; assert L_BST+2*32*144<=L_A2
DBG_OFF=16*1024*1024

def WSB(opt): return (32*1024*1024 if opt.get('dbg',0) else WS_BYTES)
def srd(a, s, lo, hi, size):
    a(f"s_mov_b32 {s[0]}, {lo}")
    a(f"s_and_b32 {s[1]}, {hi}, 0xffff")
    a(f"s_mov_b32 {s[2]}, {size}")
    a(f"s_mov_b32 {s[3]}, 0x20000")
VDBG="v255"
def stamp(a,opt,idx):
    if not opt.get('dbg',0): return
    a("s_memrealtime s[100:101]")
    a("s_waitcnt lgkmcnt(0)")
    a(f"v_writelane_b32 {VDBG}, s100, {idx}")
def S(i,n=1): return R('s',i,n)
def V(i,n=1): return R('v',i,n)
def mfma(a,d,A,B,c): a(f"v_mfma_f32_32x32x16_bf16 {d}, {A}, {B}, {c}")

NPOS1=24
KNAME="gather_scatter__cheap_equivariant_egnn__graph_kernel"
def gen(a, opt):
    DBG=opt.get('dbg',0)
    PRIO=opt.get('prio',1)
    ST=" sc1"; LD=" sc1" if opt.get('ld_sc1',1) else ""
    HLD=[""," sc1"," sc0 sc1"," sc1 nt"," sc0 sc1 nt"][opt.get('h_sc1',1)]
    OST=[""," nt"," sc1"," sc0 sc1"][opt.get('ost',0)]
    a.label(KNAME)
    sB=S(4,4); sE=S(8,4); sW=S(12,4); sO=S(16,4); sP=S(20,4); sS=S(24,4); sD=S(28,4)
    sWave=S(32); sN0=S(33); sNJ=S(34); sN06=S(35); sNT=S(36); sT=S(37); sMode=S(38); sChunk=S(39)
    sMaskE=S(40); s128=S(41); sK=S(42); s3125=S(43); sLim=S(44); sCAP=S(44); sCnt=S(45); sTmp=S(46); sTmp2=S(47)
    sM0=S(48,4); sSave=S(52,2); sAny=S(54,2); sNR=S(56); sI=S(57); sC=S(58); sWsrc=S(59); sMark=S(60); sCAPq=S(61); sHST=S(62); sTmp3=S(63)
    sMask=[S(64+2*i,2) for i in range(16)]
    sRot=S(39+0) if False else S(37)
    sWin=S(96); sTgt=S(97); sNonce=S(98); sPoll=S(99)
    sT4=S(84,4); sT4b=S(88,4); sT4c=S(92,4)
    sHw=S(48,4)
    sHs=S(68,4); sWx=S(72,4)
    vr=Regs(1,256,'v')
    vL=vr.alloc('lane')
    WE=vr.alloc('WE',8,4); WA=vr.alloc('WA',8,4); ID=vr.alloc('ID',8,4); D2=vr.alloc('D2',32,4)
    D1=vr.alloc('D1',32,4); HA=vr.alloc('HA',16,4); T=vr.alloc('T',16,4); M=vr.alloc('M',8,4)
    A2R=vr.alloc('A2R',8,4); EA=[vr.alloc('EA0',4,4),vr.alloc('EA1',4,4)]; OH=vr.alloc('OH',4,4)
    WH=vr.alloc('WH',32,4); ONE=vr.alloc('ONE',4,4)
    vHA=vr.alloc('vHA',4); vKD=vr.alloc('vKD',4); vTR=vr.alloc('vTR'); vE64=vr.alloc('vE64'); vHOFF=vr.alloc('vHOFF')
    vZ=vr.alloc('vZ',2,2); aL0=vr.alloc('aL0'); aL1s=vr.alloc('aL1s'); aL1d=vr.alloc('aL1d')
    LE=[vr.alloc('LE0'),vr.alloc('LE1')]; aA2=[vr.alloc('aA2_0'),vr.alloc('aA2_1')]
    SD=vr.alloc('SD',2,2); SS=vr.alloc('SS'); PS=vr.alloc('PS',3); PD=vr.alloc('PD',3)
    E01=vr.alloc('E01',2,2); DX=vr.alloc('DX',3); DD=vr.alloc('DD'); AD=vr.alloc('AD',4); vJ=vr.alloc('vJ')
    aE=vr.alloc('aE'); aPS=vr.alloc('aPS'); aPD=vr.alloc('aPD'); aOH=vr.alloc('aOH')
    vT0=vr.alloc('vT0'); vT1=vr.alloc('vT1'); vT2=vr.alloc('vT2'); vT3=vr.alloc('vT3')
    vOne=vr.alloc('vOne'); v511=vr.alloc('v511'); vTRW=vr.alloc('vTRW'); vL16=vr.alloc('vL16'); WX=vr.alloc('WX',2); vDUM=vr.alloc('vDUM')
    nv=vr.next
    HW=T
    def geometry(win):
        a(f"s_lshl_b32 {sTmp}, s2, 3")
        a(f"s_add_u32 {sTmp}, {sTmp}, {win}")
        a(f"s_mul_i32 {sN0}, {sTmp}, 3125")
        a(f"s_add_u32 {sNJ}, {sN0}, {3125+511}")
        a(f"s_add_u32 {sN0}, {sN0}, 511")
        a(f"s_lshr_b32 {sN0}, {sN0}, 9")
        a(f"s_lshr_b32 {sNJ}, {sNJ}, 9")
        a(f"s_sub_u32 {sNJ}, {sNJ}, {sN0}")
        a(f"s_mul_i32 {sN06}, {sN0}, 6")
    def dma(vaddr,srd_,soff,ldsbase_const=None,ldsreg=None):
        pass

    def load_hwin():
        a.c("h rows of the natural window (A operand of h@W1; needed after barrier C)")
        a(f"v_bfe_u32 {vT0}, {vL}, 3, 1")
        a(f"v_and_b32 {vT2}, 3, {vL}")
        a(f"v_lshl_add_u32 {vT0}, {vT0}, 2, {vT2}")
        a(f"s_sub_u32 {sTmp}, {sNJ}, 1")
        a(f"v_min_u32 {vT0}, {sTmp}, {vT0}")
        a(f"v_add_u32 {vT0}, {sN0}, {vT0}")
        a(f"v_lshl_add_u32 {vT0}, {vT0}, 7, {vHOFF}")
        for s_ in range(4):
            a(f"buffer_load_dwordx4 {HW[4*s_:4*s_+4]}, {vT0}, {sHw}, 0 offen offset:{32*s_}")
    a("s_cmp_ge_u32 s2, 256")
    a("s_cbranch_scc1 K_END")
    a("s_load_dwordx4 s[64:67], s[0:1], 0")
    a("s_load_dwordx4 s[68:71], s[0:1], 16")
    a("s_load_dwordx4 s[72:75], s[0:1], 32")
    a("s_load_dwordx4 s[76:79], s[0:1], 64")
    a("s_load_dwordx2 s[80:81], s[0:1], 80")
    a(f"v_and_b32 {vL}, 63, v0")
    a(f"v_lshrrev_b32 {vT0}, 6, v0")
    a(f"v_lshlrev_b32 {vL16}, 4, {vL}")
    a(f"v_readfirstlane_b32 {sWave}, {vT0}")
    if opt.get('cpf',1):
        a.c("pull this workgroup's share of the kernel's own code into L2 (read only, speed only)")
        NL=opt.get('cpf_lines',8)
        a("s_getpc_b64 s[84:85]")
        a.label("K_PC")
        a("s_and_b32 s85, s85, 0xffff")
        a("s_mov_b32 s86, K_CODE_END-K_PC")
        a("s_mov_b32 s87, 0x20000")
        if opt.get('cpf',1)==1:
            a(f"s_lshr_b32 {sTmp}, s2, 3")
            a(f"s_and_b32 {sTmp}, {sTmp}, 31")
            a(f"s_mul_i32 {sTmp}, {sTmp}, {NL*128}")
            a(f"v_lshlrev_b32 {vT1}, 7, {vL}")
            a(f"v_add_u32 {vT1}, {sTmp}, {vT1}")
            a(f"s_cmp_lg_u32 {sWave}, 3")
            a("s_cbranch_scc1 K_NOCPF")
            a(f"s_mov_b32 exec_lo, {(1<<NL)-1}")
            a("s_mov_b32 exec_hi, 0")
            a(f"buffer_load_dword {vDUM}, {vT1}, s[84:87], 0 offen")
            a("s_mov_b64 exec, -1")
        elif opt.get('cpf',1)==2:
            a(f"s_mul_i32 {sTmp}, {sWave}, {24*128}")
            a(f"v_lshlrev_b32 {vT1}, 7, {vL}")
            a(f"v_add_u32 {vT1}, {sTmp}, {vT1}")
            a(f"s_mov_b32 exec_lo, {(1<<24)-1}")
            a("s_mov_b32 exec_hi, 0")
            a(f"buffer_load_dword {vDUM}, {vT1}, s[84:87], 0 offen")
            a("s_mov_b64 exec, -1")
        elif opt.get('cpf',1)==3:
            a(f"s_lshr_b32 {sTmp}, s2, 3")
            a(f"s_and_b32 {sTmp}, {sTmp}, 3")
            a(f"s_mul_i32 {sTmp}, {sTmp}, {48*128}")
            a(f"v_lshlrev_b32 {vT1}, 7, {vL}")
            a(f"v_add_u32 {vT1}, {sTmp}, {vT1}")
            a(f"s_cmp_lg_u32 {sWave}, 3")
            a("s_cbranch_scc1 K_NOCPF")
            a("s_mov_b32 exec_hi, 0xffff")
            a(f"buffer_load_dword {vDUM}, {vT1}, s[84:87], 0 offen")
            a("s_mov_b64 exec, -1")
        a.label("K_NOCPF")
    a(f"v_lshrrev_b32 {vT2}, 5, {vL}")
    a(f"v_lshlrev_b32 {vHOFF}, 4, {vT2}")
    a(f"v_mov_b32 {vZ[0]}, 0")
    a(f"v_mov_b32 {vZ[1]}, 0")
    geometry(sWave)
    a(f"s_mul_i32 {sTmp}, s2, {CH*4}")
    a(f"s_mul_i32 {sTmp2}, {sWave}, {384*4}")
    a(f"s_add_u32 {sTmp}, {sTmp}, {sTmp2}")
    a(f"v_lshl_add_u32 {vT0}, {vL}, 3, {sTmp}")
    a("s_waitcnt lgkmcnt(0)")
    stamp(a,opt,0)
    srd(a,sD,"s72","s73",E*4)
    srd(a,sS,"s70","s71",E*4)
    a.c("every wave: six edges per lane, local edge = 384v + 128k + 2l + u; wave 7 also takes edges 3072 + l")
    DS_=D1[0:7]; SR_=D1[8:15]
    for k in range(3): a(f"buffer_load_dwordx2 {D1[2*k:2*k+2]}, {vT0}, {sD}, 0 offen offset:{512*k} nt")
    for k in range(3): a(f"buffer_load_dwordx2 {D1[8+2*k:10+2*k]}, {vT0}, {sS}, 0 offen offset:{512*k} nt")
    srd(a,sT4,"s64","s65",N*128)
    srd(a,sHw,"s64","s65",N*128)
    srd(a,sT4b,"s74","s75",145*128)
    a(f"s_cmp_eq_u32 {sWave}, 7")
    a("s_cbranch_scc1 K_S_W7")
    a(f"s_cmp_eq_u32 {sWave}, 4")
    a("s_cbranch_scc1 K_S_W4")
    a(f"s_cmp_lt_u32 {sWave}, 5")
    a("s_cbranch_scc1 K_S_COMMON")
    a.c("waves 5,6: private raw W2 copy + h rows for the source-node table")
    a(f"s_sub_u32 {sI}, {sWave}, 5")
    a(f"s_lshl_b32 {sC}, {sI}, 13")
    a(f"s_add_u32 {sC}, {sC}, {L_A2}")
    for i in range(8):
        a(f"s_add_u32 {sTmp}, {sC}, {i*1024}")
        a(f"s_mov_b32 m0, {sTmp}")
        a(f"s_mov_b32 {sTmp2}, {8192+i*1024}")
        a(f"buffer_load_dwordx4 {vL16}, {sT4b}, {sTmp2} offen lds")
    a(f"s_mul_i32 {sTmp}, s2, {NPW}")
    a(f"s_lshl_b32 {sTmp2}, {sI}, 5")
    a(f"s_add_u32 {sTmp}, {sTmp}, {sTmp2}")
    a(f"v_and_b32 {vT0}, 31, {vL}")
    a(f"v_add_u32 {vT0}, {sTmp}, {vT0}")
    a(f"v_lshl_add_u32 {vT0}, {vT0}, 7, {vHOFF}")
    for s_ in range(4): a(f"buffer_load_dwordx4 {HA[4*s_:4*s_+4]}, {vT0}, {sT4}, 0 offen offset:{32*s_}")
    a("s_branch K_S_COMMON")
    a.label("K_S_W4")
    a.c("wave 4: this workgroup's share of the L2 warm-up of pos and w_h (speed only)")
    a("s_load_dwordx2 s[82:83], s[0:1], 56")
    srd(a,sP,"s66","s67",N*6)
    a(f"s_lshr_b32 {sTmp}, s2, 3")
    a(f"s_and_b32 {sTmp}, {sTmp}, 31")
    a(f"s_mul_i32 {sTmp2}, {sTmp}, {19*128}")
    a(f"v_lshlrev_b32 {vT0}, 7, {vL}")
    a(f"v_add_u32 {vT1}, {sTmp2}, {vT0}")
    a(f"v_cmp_gt_u32 vcc, 19, {vL}")
    a(f"v_mov_b32 {vT2}, 0x40000000")
    a("s_waitcnt lgkmcnt(0)")
    a(f"v_cndmask_b32 {vT1}, {vT2}, {vT1}, vcc")
    a(f"buffer_load_dword {vDUM}, {vT1}, {sP}, 0 offen")
    srd(a,sT4b,"s82","s83",128*128)
    a(f"s_lshl_b32 {sTmp2}, {sTmp}, 9")
    a(f"v_add_u32 {vT1}, {sTmp2}, {vT0}")
    a(f"v_cmp_gt_u32 vcc, 4, {vL}")
    a("s_nop 1")
    a(f"v_cndmask_b32 {vT1}, {vT2}, {vT1}, vcc")
    a(f"buffer_load_dword {vDUM}, {vT1}, {sT4b}, 0 offen")
    a("s_branch K_S_COMMON")
    a.label("K_S_W7")
    a.c("wave 7: the last 64 edges, one-hot table, counters")
    a(f"s_mul_i32 {sTmp}, s2, {CH*4}")
    a(f"s_add_u32 {sTmp}, {sTmp}, {3072*4}")
    a(f"v_lshl_add_u32 {vT0}, {vL}, 2, {sTmp}")
    a(f"buffer_load_dword {D1[6]}, {vT0}, {sD}, 0 offen nt")
    a(f"buffer_load_dword {D1[14]}, {vT0}, {sS}, 0 offen nt")
    a(f"v_lshrrev_b32 {vT0}, 2, {vL}")
    a(f"v_and_b32 {vT1}, 3, {vL}")
    a(f"v_lshlrev_b32 {vT3}, 1, {vT1}")
    a(f"v_mov_b32 {vJ}, 0")
    a(f"v_cmp_eq_u32 vcc, {vT0}, {vT3}")
    a(f"v_mov_b32 {AD[0]}, 0x3f80")
    a(f"v_mov_b32 {AD[1]}, 0x3f800000")
    a(f"v_cndmask_b32 {vJ}, {vJ}, {AD[0]}, vcc")
    a(f"v_add_u32 {vT3}, 1, {vT3}")
    a(f"v_cmp_eq_u32 vcc, {vT0}, {vT3}")
    a("s_nop 1")
    a(f"v_cndmask_b32 {vJ}, {vJ}, {AD[1]}, vcc")
    a(f"v_cmp_eq_u32 vcc, 6, {vT0}")
    a(f"v_mov_b32 {AD[2]}, 0")
    a("s_nop 0")
    a(f"v_cndmask_b32 {AD[2]}, {AD[2]}, {AD[1]}, vcc")
    a(f"v_cmp_eq_u32 vcc, 3, {vT1}")
    a("s_nop 1")
    a(f"v_cndmask_b32 {vJ}, {vJ}, {AD[2]}, vcc")
    a(f"v_cmp_lt_u32 vcc, 31, {vL}")
    a(f"v_lshlrev_b32 {vT0}, 2, {vL}")
    a("s_nop 0")
    a(f"v_cndmask_b32 {vJ}, {vJ}, {vZ[0]}, vcc")
    a(f"ds_write_b32 {vT0}, {vJ}")
    a.label("K_S_COMMON")
    a(f"s_mov_b32 {sMaskE}, {'0' if opt.get('noE',0) else '0xffffffe0'}")
    a(f"s_mov_b32 {s128}, {0 if opt.get('noH',0) else 128}")
    a(f"s_mov_b32 {sK}, {KW}")
    a(f"s_mov_b32 {s3125}, 3125")
    a(f"s_mov_b32 {sMark}, {MARK}")
    a(f"s_mov_b32 {sCAPq}, {CAPX//4}")
    a(f"s_mov_b32 {sMode}, 0")
    a(f"s_mov_b32 {sChunk}, 0")
    a(f"v_mov_b32 {vOne}, 1")
    a(f"v_mov_b32 {v511}, 511")
    a(f"v_mov_b32 {aL1s}, 0x40000000")
    a(f"v_lshrrev_b32 {vT2}, 5, {vL}")
    a(f"v_bfe_u32 {vT0}, {vL}, 2, 2")
    a(f"v_lshl_add_u32 {vT0}, {vT2}, 3, {vT0}")
    a(f"v_lshlrev_b32 {vTRW}, 7, {vT0}")
    a(f"v_bfe_u32 {vT0}, {vL}, 4, 1")
    a(f"v_lshl_add_u32 {vTRW}, {vT0}, 5, {vTRW}")
    a(f"v_and_b32 {vT0}, 3, {vL}")
    a(f"v_lshl_add_u32 {vTRW}, {vT0}, 3, {vTRW}")
    a.c("LDS init: cell image = sentinel, counters = 0")
    for i in range(4): a(f"v_mov_b32 {WH[i]}, -1")
    a(f"v_lshlrev_b32 {vT0}, 6, v0")
    a(f"v_add_u32 {vT0}, {L_HST}, {vT0}")
    for i in range(4): a(f"ds_write_b128 {vT0}, {WH[0:4]} offset:{16*i}")
    a(f"v_and_b32 {vT0}, 0xff, v0")
    a(f"v_lshlrev_b32 {vT0}, 2, {vT0}")
    a(f"ds_write_b32 {vT0}, {vZ[0]} offset:{L_RES}")
    srd(a,sW,"s80","s81",WSB(opt))
    srd(a,sP,"s66","s67",N*6)
    srd(a,sE,"s68","s69",E*32)
    srd(a,sO,"s76","s77",OUT_BYTES)
    srd(a,sT4c,"s78","s79",256)
    a(f"s_add_u32 {sB[0]}, s80, {BPT}")
    a(f"s_addc_u32 {sB[1]}, s81, 0")
    a(f"s_and_b32 {sB[1]}, {sB[1]}, 0xffff")
    a(f"s_mov_b32 {sB[2]}, {N*128}")
    a(f"s_mov_b32 {sB[3]}, 0x20000")
    if opt.get('tlb',0):
        a.c("wave 2 touches one line per 2 MiB of the buffers used later (address translation warm-up, speed only)")
        a(f"s_cmp_lg_u32 {sWave}, 2")
        a("s_cbranch_scc1 K_NOTLB")
        a(f"v_lshlrev_b32 {vT0}, 21, {vL}")
        a(f"v_mov_b32 {vT1}, 0x40000000")
        a(f"v_cmp_gt_u32 vcc, 13, {vL}")
        a("s_nop 1")
        a(f"v_cndmask_b32 {vT0}, {vT1}, {vT0}, vcc")
        a(f"buffer_load_dword {vDUM}, {vT0}, {sE}, 0 offen")
        a(f"buffer_load_dword {vDUM}, {vT0}, {sW}, 0 offen")
        a(f"buffer_load_dword {vDUM}, {vT0}, {sO}, 0 offen")
        a.label("K_NOTLB")
    a.c("workgroup 0 publishes this launch's hand-off tag")
    a(f"s_or_b32 {sTmp}, s2, {sWave}")
    a(f"s_cmp_lg_u32 {sTmp}, 0")
    a("s_cbranch_scc1 K_S_NOTAG")
    a("s_memrealtime s[100:101]")
    a("s_waitcnt lgkmcnt(0)")
    a("s_or_b32 s100, s100, 1")
    a(f"v_mov_b32 {vT0}, s100")
    a(f"buffer_store_dword {vT0}, {vZ[0]}, {sT4c}, 0 offen sc1")
    a.label("K_S_NOTAG")
    a("s_waitcnt lgkmcnt(0)")
    a("s_barrier")
    a(f"s_mul_i32 {sTmp}, s2, {CH}")
    a(f"s_sub_u32 {sLim}, {E}, {sTmp}")
    a(f"s_min_u32 {sLim}, {sLim}, {CH}")
    B4=D2[0:7]; RC=M[0:7]; RK1=D2[8:15]
    def bin_edges(nrec, el_of, waitcnt, masked):
        if masked:
            for u in range(nrec):
                el_of(u,vT1)
                a(f"v_cmp_gt_u32 {sMask[u]}, {sLim}, {vT1}")
        if waitcnt is not None: a(f"s_waitcnt vmcnt({waitcnt})")
        stamp(a,opt,1)
        for u in range(nrec):
            d=DS_[u]; s_=SR_[u]
            a(f"v_mul_hi_u32 {vT2}, {d}, {sK}")
            el_of(u,vT1)
            a(f"v_lshl_or_b32 {RC[u]}, {s_}, 12, {vT1}")
            a(f"v_lshrrev_b32 {B4[u]}, 1, {vT2}")
            a(f"v_mad_u32_u24 {vT3}, {vT2}, {s3125}, {v511}")
            a(f"v_and_b32 {B4[u]}, 0x3fc, {B4[u]}")
            a(f"v_lshrrev_b32 {vT3}, 9, {vT3}")
            if masked: a(f"s_mov_b64 exec, {sMask[u]}")
            a(f"ds_add_rtn_u32 {RK1[u]}, {B4[u]}, {vOne} offset:{L_RES}")
            if masked: a("s_mov_b64 exec, -1")
            a(f"v_sub_u32 {vT3}, {d}, {vT3}")
            a(f"v_and_b32 {vT2}, 7, {vT2}")
            a(f"v_lshl_or_b32 {vT3}, {vT2}, 3, {vT3}")
            a(f"v_lshl_or_b32 {RC[u]}, {vT3}, 26, {RC[u]}")
        a(f"v_mov_b32 {vT3}, {L_HST}")
        a(f"v_mov_b32 {vJ}, {L_NRES+4}")
        for u in range(nrec):
            if not masked: a(f"s_waitcnt lgkmcnt({nrec-1})")
            elif u==0: a("s_waitcnt lgkmcnt(0)")
            a(f"v_cmp_gt_u32 vcc, 32, {RK1[u]}")
            a(f"v_lshlrev_b32 {vT1}, 3, {RK1[u]}")
            a(f"v_lshrrev_b32 {vT2}, 2, {RK1[u]}")
            a(f"v_and_b32 {vT1}, 0x78, {vT1}")
            a(f"v_lshl_add_u32 {AD[0]}, {B4[u]}, 5, {vT3}")
            a(f"v_and_or_b32 {vT1}, {vT2}, 4, {vT1}")
            a(f"v_add_u32 {vT1}, {vT1}, {AD[0]}")
            a(f"v_cndmask_b32 {vT1}, {vJ}, {vT1}, vcc")
            if masked: a(f"s_mov_b64 exec, {sMask[u]}")
            a(f"ds_write_b32 {vT1}, {RC[u]}")
            if masked: a("s_mov_b64 exec, -1")
    a.c("wait for this wave's edges (younger loads: 12 for waves 5,6; 2 for wave 4; the tag store of workgroup 0)")
    a(f"s_mul_i32 {sTmp}, {sWave}, 384")
    a(f"v_lshl_add_u32 {vT0}, {vL}, 1, {sTmp}")
    a(f"s_cmp_eq_u32 {sWave}, 4")
    a("s_cbranch_scc1 K_S_WT4")
    a(f"s_sub_u32 {sTmp}, {sWave}, 5")
    a(f"s_cmp_lt_u32 {sTmp}, 2")
    a("s_cbranch_scc1 K_S_WT56")
    if opt.get('tlb',0):
        a(f"s_cmp_eq_u32 {sWave}, 2")
        a("s_cbranch_scc1 K_S_WT2")
    a("s_waitcnt vmcnt(0)")
    a("s_branch K_S_WTD")
    if opt.get('tlb',0):
        a.label("K_S_WT2")
        a("s_waitcnt vmcnt(3)")
        a("s_branch K_S_WTD")
    a.label("K_S_WT4")
    a("s_waitcnt vmcnt(2)")
    a("s_branch K_S_WTD")
    a.label("K_S_WT56")
    a("s_waitcnt vmcnt(12)")
    a.label("K_S_WTD")
    def el6(u,r): a(f"v_add_u32 {r}, {128*(u>>1)+(u&1)}, {vT0}")
    def el7(u,r):
        if u<6: el6(u,r)
        else: a(f"v_add_u32 {r}, 3072, {vL}")
    a(f"s_cmp_lt_u32 {sLim}, {CH}")
    a("s_cbranch_scc1 K_S_APPM")
    a(f"s_cmp_eq_u32 {sWave}, 7")
    a("s_cbranch_scc1 K_S_APP7")
    bin_edges(6, el6, None, False)
    a("s_branch K_S_APPD")
    a.label("K_S_APP7")
    bin_edges(7, el7, None, False)
    a("s_branch K_S_APPD")
    a.label("K_S_APPM")
    a(f"s_cmp_eq_u32 {sWave}, 7")
    a("s_cbranch_scc1 K_S_APPM7")
    bin_edges(6, el6, None, True)
    a("s_branch K_S_APPD")
    a.label("K_S_APPM7")
    bin_edges(7, el7, None, True)
    a.label("K_S_APPD")
    load_hwin()
    a(f"s_cmp_lg_u32 {sWave}, 7")
    a("s_cbranch_scc1 K_S_NORAW")
    a.c("wave 7: raw w_e -> LDS (needed after barrier C)")
    for i in range(19):
        a(f"s_mov_b32 {sTmp}, {L_RAWW+i*1024}")
        a(f"s_mov_b32 m0, {sTmp}")
        a(f"s_mov_b32 {sTmp2}, {i*1024}")
        a(f"buffer_load_dwordx4 {vL16}, {sT4b}, {sTmp2} offen lds")
    a.label("K_S_NORAW")
    a.c("waves 0, 5, 6 fetch the hand-off tag")
    a(f"s_lshl_b32 {sTmp}, 1, {sWave}")
    a(f"s_and_b32 {sTmp}, {sTmp}, 0x61")
    a("s_cbranch_scc0 K_S_NOTAG2")
    a(f"buffer_load_dword {aE}, {vZ[0]}, {sT4c}, 0 offen sc1")
    a.label("K_S_NOTAG2")
    a("s_waitcnt lgkmcnt(0)")
    stamp(a,opt,14) if not opt.get('dbgfill',0) else None
    a("s_barrier")
    stamp(a,opt,2)
    def setup_static():
        a(f"v_and_b32 {vT1}, 31, {vL}")
        a(f"v_lshrrev_b32 {vT2}, 5, {vL}")
        a(f"v_lshlrev_b32 {vT0}, 3, {vT2}")
        a(f"v_sub_u32 {vT0}, {vT1}, {vT0}")
        a(f"v_mov_b32 {AD[2]}, 0x3f80")
        a(f"v_mov_b32 {AD[3]}, 0x3f800000")
        for sp in range(2):
            for r in range(4):
                k0=16*sp+2*r
                a(f"v_cmp_eq_u32 vcc, {k0}, {vT0}")
                a(f"v_cmp_eq_u32 {sSave}, {k0+1}, {vT0}")
                a("s_nop 0")
                a(f"v_cndmask_b32 {ID[4*sp+r]}, {vZ[0]}, {AD[2]}, vcc")
                a(f"v_cndmask_b32 {ID[4*sp+r]}, {ID[4*sp+r]}, {AD[3]}, {sSave}")
        a(f"v_cmp_lt_u32 vcc, 31, {vL}")
        a("s_nop 1")
        for i in range(1,4): a(f"v_mov_b32 {ONE[i]}, 0")
        a(f"v_cndmask_b32 {ONE[0]}, {AD[2]}, {vZ[0]}, vcc")
        for i in range(3):
            a(f"v_mov_b32 {PS[i]}, 0"); a(f"v_mov_b32 {PD[i]}, 0")
        a.c("static per-lane addresses of the main loop (window offsets are added after the assignment)")
        a(f"v_and_b32 {vT1}, 31, {vL}")
        a(f"v_lshrrev_b32 {vT2}, 5, {vL}")
        a(f"v_mov_b32 {vT3}, {L_A2}")
        a(f"v_lshl_add_u32 {vE64}, {vT1}, 6, {vT3}")
        a(f"v_bfe_u32 {vT0}, {vL}, 2, 2")
        a(f"v_lshl_add_u32 {vT0}, {vT2}, 2, {vT0}")
        a(f"v_lshl_add_u32 {vTR}, {vT0}, 6, {vT3}")
        a(f"v_bfe_u32 {vT0}, {vL}, 4, 1")
        a(f"v_lshl_add_u32 {vTR}, {vT0}, 5, {vTR}")
        a(f"v_and_b32 {vT0}, 3, {vL}")
        a(f"v_lshl_add_u32 {vTR}, {vT0}, 3, {vTR}")
        a(f"s_lshl_b32 {sHST}, {sWave}, 12")
        a(f"s_add_u32 {sHST}, {sHST}, {L_HST}")
        for i in range(4): a(f"s_add_u32 {sM0[i]}, {sHST}, {1024*i}")
        a(f"v_and_b32 {vT0}, 3, {vT1}")
        a(f"v_bfe_u32 {vT3}, {vT1}, 4, 1")
        a(f"v_lshl_or_b32 {vT3}, {vT3}, 2, {vT0}")
        a(f"v_lshlrev_b32 {vT0}, 3, {vT0}")
        a(f"v_lshrrev_b32 {vJ}, 2, {vT1}")
        a(f"v_add_u32 {vT0}, {vT0}, {vJ}")
        a(f"v_lshl_add_u32 {vT0}, {vT0}, 7, {sHST}")
        for s_ in range(4):
            a(f"v_add_u32 {vJ}, {2*s_}, {vT2}")
            a(f"v_xor_b32 {vJ}, {vJ}, {vT3}")
            a(f"v_lshl_add_u32 {vHA[s_]}, {vJ}, 4, {vT0}")
        a(f"v_and_b32 {vT0}, 7, {vL}")
        a(f"v_lshlrev_b32 {vT3}, 2, {vT2}")
        a(f"v_xor_b32 {vT0}, {vT0}, {vT3}")
        for i in range(4):
            a(f"v_xor_b32 {vJ}, {i}, {vT0}")
            a(f"v_lshlrev_b32 {vKD[i]}, 4, {vJ}")
        a(f"s_mov_b32 {sCAP}, {CAP}")
        a(f"s_sub_u32 {sTgt}, 11, {sWave}")
        a(f"s_cmp_lt_u32 {sWave}, 4")
        a(f"s_cselect_b32 {sTgt}, {sWave}, {sTgt}")
        a(f"v_lshrrev_b32 {aPS}, 3, {vL}")
        a(f"v_and_b32 {aPD}, 7, {vL}")
        a(f"v_lshlrev_b32 {aOH}, 2, {aPS}")
        a(f"v_lshlrev_b32 {SS}, 2, {aPD}")
    a(f"s_cmp_gt_u32 {sWave}, 3")
    a("s_cbranch_scc1 K_S_NOCOPY")
    a.c("waves 0..3 copy the cell image out: eight 16 B pieces per thread")
    a(f"v_lshlrev_b32 {vT0}, 4, v0")
    a(f"v_add_u32 {vT0}, {L_HST}, {vT0}")
    a(f"v_lshrrev_b32 {vT1}, 3, v0")
    a(f"v_lshlrev_b32 {vT2}, 2, {vT1}")
    CP=[D1[4*k:4*k+4] for k in range(8)]
    for k in range(4):
        a(f"ds_read_b128 {CP[k]}, {vT0} offset:{4096*k}")
        a(f"ds_read_b32 {D2[k]}, {vT2} offset:{L_RES+128*k}")
    a(f"v_and_b32 {vT3}, 7, v0")
    a(f"v_cmp_eq_u32 vcc, 0, {vT3}")
    a(f"v_mov_b32 {vJ}, -1")
    a(f"v_lshlrev_b32 {vT1}, 15, {vT1}")
    a(f"v_cndmask_b32_e64 {AD[1]}, -1, -2, vcc")
    a(f"v_lshl_add_u32 {vT1}, {vT3}, 4, {vT1}")
    a(f"s_lshl_b32 {sTmp}, s2, 7")
    for k in range(8):
        if k<4:
            a(f"ds_read_b128 {CP[k+4]}, {vT0} offset:{4096*(k+4)}")
            a(f"ds_read_b32 {D2[k+4]}, {vT2} offset:{L_RES+128*(k+4)}")
            a("s_waitcnt lgkmcnt(8)")
        else:
            a(f"s_waitcnt lgkmcnt({2*(7-k)})")
        a(f"v_cmp_lt_u32 vcc, 32, {D2[k]}")
        a(f"s_add_u32 {sTmp2}, {sTmp}, {k*32*32768}")
        a("s_nop 0")
        a(f"v_cndmask_b32 {CP[k][0]}, {CP[k][0]}, {AD[1]}, vcc")
        for i in range(1,4): a(f"v_cndmask_b32 {CP[k][i]}, {CP[k][i]}, {vJ}, vcc")
        a(f"buffer_store_dwordx4 {CP[k]}, {vT1}, {sW}, {sTmp2} offen{ST}")
    a("s_branch K_S_STATIC")
    a.label("K_S_NOCOPY")
    a(f"s_sub_u32 {sTmp}, {sWave}, 5")
    a(f"s_cmp_lt_u32 {sTmp}, 2")
    a("s_cbranch_scc0 K_S_POS")
    a.c("waves 5,6: source-node table B' = -log2e * h @ W2 for 32 nodes")
    a(f"v_add_u32 {vT0}, {sC}, {vTRW}")
    a("s_waitcnt vmcnt(5)")
    for s_ in range(4):
        for x in range(2):
            for th in range(2):
                r=(s_*2+x)*4+2*th
                a(f"ds_read_b64_tr_b16 {D1[r:r+2]}, {vT0} offset:{s_*2048+th*512+x*64}")
    a("s_waitcnt lgkmcnt(0)")
    for x in range(2):
        for s_ in range(4):
            r=(s_*2+x)*4
            mfma(a,D2[16*x:16*x+16],D1[r:r+4],HA[4*s_:4*s_+4],"0" if s_==0 else D2[16*x:16*x+16])
    a(f"s_mul_i32 {sTmp}, {sI}, {32*144}")
    a(f"s_add_u32 {sTmp}, {sTmp}, {L_BST}")
    a(f"v_and_b32 {vT1}, 31, {vL}")
    a(f"v_mul_u32_u24 {vT1}, 144, {vT1}")
    a(f"v_lshrrev_b32 {vT2}, 5, {vL}")
    a(f"v_lshl_add_u32 {vT1}, {vT2}, 3, {vT1}")
    a(f"v_add_u32 {vT1}, {sTmp}, {vT1}")
    a(f"v_lshrrev_b32 {vT2}, 3, {vL}")
    a(f"v_mul_u32_u24 {vT3}, 144, {vT2}")
    a(f"v_and_b32 {vJ}, 7, {vL}")
    a(f"v_lshl_add_u32 {vT3}, {vJ}, 4, {vT3}")
    a(f"v_add_u32 {vT3}, {sTmp}, {vT3}")
    a(f"s_mov_b32 {sTmp2}, {NEG_LOG2E}")
    a.nop(4)
    for x in range(2):
        for q in range(16): a(f"v_mul_f32 {D2[16*x+q]}, {sTmp2}, {D2[16*x+q]}")
        for qq in range(4):
            b=16*x+4*qq
            a(f"v_cvt_pk_bf16_f32 {E01[0]}, {D2[b]}, {D2[b+1]}")
            a(f"v_cvt_pk_bf16_f32 {E01[1]}, {D2[b+2]}, {D2[b+3]}")
            a(f"ds_write_b64 {vT1}, {E01} offset:{x*64+qq*16}")
            a("s_nop 0")
    for i in range(4): a(f"ds_read_b128 {D1[4*i:4*i+4]}, {vT3} offset:{i*8*144}")
    a(f"s_lshl_b32 {sTmp2}, {sI}, 5")
    a(f"v_add_u32 {vT2}, {sTmp2}, {vT2}")
    a(f"s_mul_i32 {sTmp}, s2, {NPW}")
    a(f"v_add_u32 {vT0}, {sTmp}, {vT2}")
    a(f"v_lshlrev_b32 {vT1}, 7, {vT0}")
    a(f"v_lshl_add_u32 {vT1}, {vJ}, 4, {vT1}")
    a(f"v_mov_b32 {vJ}, 0x40000000")
    a("s_waitcnt lgkmcnt(0)")
    for i in range(4):
        a(f"v_add_u32 {vT3}, {8*i}, {vT2}")
        a(f"v_cmp_gt_u32 vcc, {NPW}, {vT3}")
        a(f"v_add_u32 {AD[0]}, {1024*i}, {vT1}")
        a("s_nop 0")
        a(f"v_cndmask_b32 {AD[0]}, {vJ}, {AD[0]}, vcc")
        a(f"buffer_store_dwordx4 {D1[4*i:4*i+4]}, {AD[0]}, {sB}, 0 offen{ST}")
    a("s_waitcnt vmcnt(4)")
    a("s_branch K_S_STATIC")
    a.label("K_S_POS")
    a.label("K_S_STATIC")
    setup_static()
    a.c("waves 0..3: every cell store has left; waves 4, 7: raw w_e / window rows landed; waves 5, 6 signal their rows later")
    a(f"s_sub_u32 {sTmp}, {sWave}, 5")
    a(f"s_cmp_lt_u32 {sTmp}, 2")
    a("s_cbranch_scc1 K_S_PREC")
    a("s_waitcnt vmcnt(0)")
    a.label("K_S_PREC")
    a("s_waitcnt lgkmcnt(0)")
    stamp(a,opt,15) if not opt.get('dbgfill',0) else None
    a("s_barrier")
    stamp(a,opt,3)
    def have_tag(lbl):
        a(f"s_mov_b32 {sPoll}, 0")
        a.label(lbl)
        a(f"v_readfirstlane_b32 {sNonce}, {aE}")
        a("s_nop 3")
        a(f"s_cmp_lg_u32 {sNonce}, 0")
        a(f"s_cbranch_scc1 {lbl}_OK")
        a(f"s_add_u32 {sPoll}, {sPoll}, 1")
        a(f"s_cmp_gt_u32 {sPoll}, 200000")
        a(f"s_cbranch_scc1 {lbl}_OK")
        a("s_sleep 2")
        a(f"buffer_load_dword {aE}, {vZ[0]}, {sT4c}, 0 offen sc1")
        a("s_waitcnt vmcnt(0)")
        a(f"s_branch {lbl}")
        a.label(f"{lbl}_OK")
    a(f"s_cmp_lg_u32 {sWave}, 0")
    a("s_cbranch_scc1 K_G_NOT0")
    a.c("wave 0: signal this workgroup's cells, publish the tag to the workgroup")
    have_tag("K_G_TAG")
    a(f"s_lshl_b32 {sTmp}, s2, 4")
    a(f"s_add_u32 {sTmp}, {sTmp}, {FLG}")
    a(f"v_mov_b32 {vT0}, {sNonce}")
    a(f"buffer_store_dword {vT0}, {vZ[0]}, {sW}, {sTmp} offen sc1")
    a(f"ds_write_b32 {vZ[0]}, {vT0} offset:{L_NRES+8}")
    a("s_branch K_G_SETUP")
    a.label("K_G_NOT0")
    a(f"s_cmp_lt_u32 {sWave}, 4")
    a("s_cbranch_scc1 K_G_WH")
    a(f"s_sub_u32 {sTmp}, {sWave}, 5")
    a(f"s_cmp_lt_u32 {sTmp}, 2")
    a("s_cbranch_scc1 K_G_SETUP")
    a.c("waves 4, 7: pos table -> LDS (37 pieces each)")
    a(f"s_cmp_eq_u32 {sWave}, 7")
    a(f"s_cselect_b32 {sI}, {37*1024}, 0")
    for i in range(37):
        a(f"s_add_u32 {sTmp}, {sI}, {i*1024}")
        a(f"s_add_u32 {sTmp2}, {sTmp}, {L_POS}")
        a(f"s_mov_b32 m0, {sTmp2}")
        a("s_nop 0")
        a(f"buffer_load_dwordx4 {vL16}, {sP}, {sTmp} offen lds")
    a("s_branch K_G_SETUP")
    a.label("K_G_WH")
    a.c("waves 1..3: raw w_h -> staging area")
    a("s_load_dwordx2 s[64:65], s[0:1], 56")
    a(f"s_sub_u32 {sI}, {sWave}, 1")
    a("s_waitcnt lgkmcnt(0)")
    srd(a,sT4b,"s64","s65",128*128)
    for k in range(6):
        a(f"s_add_u32 {sTmp}, {sI}, {3*k}")
        a(f"s_min_u32 {sTmp}, {sTmp}, 15")
        a(f"s_lshl_b32 {sTmp}, {sTmp}, 10")
        a(f"s_add_u32 {sTmp2}, {sTmp}, {L_HST}")
        a(f"s_mov_b32 m0, {sTmp2}")
        a("s_nop 0")
        a(f"buffer_load_dwordx4 {vL16}, {sT4b}, {sTmp} offen lds")
    a.label("K_G_SETUP")
    a.c("operands from raw w_e: W1 (for A'), W4', wd'")
    W1=D2
    a(f"v_add_u32 {vT0}, {L_RAWW}, {vTRW}")
    for s_ in range(4):
        for x in range(2):
            for th in range(2):
                r=(s_*2+x)*4+2*th
                a(f"ds_read_b64_tr_b16 {W1[r:r+2]}, {vT0} offset:{s_*2048+th*512+x*64}")
    W4R=HA[0:8]
    for x in range(2):
        for th in range(2):
            a(f"ds_read_b64_tr_b16 {W4R[4*x+2*th:4*x+2*th+2]}, {vT0} offset:{129*128+th*512+x*64}")
    WD=M[0:2]
    a(f"v_mov_b32 {WD[0]}, 0")
    a(f"v_mov_b32 {WD[1]}, 0")
    a(f"v_and_b32 {vT1}, 31, {vL}")
    a(f"v_lshlrev_b32 {vT2}, 1, {vT1}")
    a(f"v_add_u32 {vT2}, {L_RAWW+128*128}, {vT2}")
    a(f"ds_read_u16_d16_hi {WD[0]}, {vT2}")
    a(f"ds_read_u16_d16_hi {WD[1]}, {vT2} offset:64")
    a("s_waitcnt lgkmcnt(0)")
    for x in range(2):
        for s_ in range(4):
            mfma(a,D1[16*x:16*x+16],HW[4*s_:4*s_+4],W1[(s_*2+x)*4:(s_*2+x)*4+4],"0" if s_==0 else D1[16*x:16*x+16])
    a(f"s_mov_b32 {sTmp}, {NEG_LOG2E}")
    for i in range(8):
        a(f"v_lshlrev_b32 {vT0}, 16, {W4R[i]}")
        a(f"v_and_b32 {vT2}, 0xffff0000, {W4R[i]}")
        a(f"v_mul_f32 {vT0}, {sTmp}, {vT0}")
        a(f"v_mul_f32 {vT2}, {sTmp}, {vT2}")
        a(f"v_cvt_pk_bf16_f32 {WE[i]}, {vT0}, {vT2}")
    a(f"v_cmp_lt_u32 vcc, 31, {vL}")
    for x in range(2):
        a(f"v_mul_f32 {WD[x]}, {sTmp}, {WD[x]}")
        a(f"v_cvt_pk_bf16_f32 {vT0}, {WD[x]}, {WD[x]}")
        a(f"v_and_b32 {vT0}, 0xffff0000, {vT0}")
        a(f"v_sub_f32 {vT2}, {WD[x]}, {vT0}")
        a(f"v_cvt_pk_bf16_f32 {vT2}, {vT2}, {vT2}")
        a(f"v_and_b32 {vT2}, 0xffff0000, {vT2}")
        a(f"v_cndmask_b32 {WD[x]}, {vT0}, {vT2}, vcc")
    a(f"s_cmp_lg_u32 {sWave}, 0")
    a("s_cbranch_scc1 K_G_NOEARLY")
    a(f"s_mov_b32 {sTmp2}, {FLG}")
    for k in range(4): a(f"buffer_load_dword {AD[k]}, {vL16}, {sW}, {sTmp2} offen offset:{1024*k} sc1")
    a.label("K_G_NOEARLY")
    a(f"v_cmp_lt_u32 vcc, 31, {vL}")
    a(f"v_mov_b32 {vJ}, 0xffff")
    for x in range(2):
        for r in range(4):
            q0,q1=D1[16*x+2*r],D1[16*x+2*r+1]
            a(f"v_mul_f32 {q0}, {sTmp}, {q0}")
            a(f"v_mul_f32 {q1}, {sTmp}, {q1}")
            a(f"v_cvt_pk_bf16_f32 {vT0}, {q0}, {q1}")
            a(f"v_lshlrev_b32 {vT1}, 16, {vT0}")
            a(f"v_and_b32 {vT2}, 0xffff0000, {vT0}")
            a(f"v_sub_f32 {vT1}, {q0}, {vT1}")
            a(f"v_sub_f32 {vT2}, {q1}, {vT2}")
            a(f"v_cvt_pk_bf16_f32 {vT1}, {vT1}, {vT2}")
            a(f"v_cndmask_b32 {WA[4*x+r]}, {vT0}, {vT1}, vcc")
        a(f"v_bfi_b32 {WA[4*x+3]}, {vJ}, {WA[4*x+3]}, {WD[x]}")
    a(f"s_lshl_b32 {sTmp}, {sWave}, 11")
    a(f"s_add_u32 {sTmp}, {sTmp}, {L_A2}")
    a(f"v_lshl_add_u32 {vT0}, {vL}, 5, {sTmp}")
    a(f"ds_write_b128 {vT0}, {WA[0:4]}")
    a(f"ds_write_b128 {vT0}, {WA[4:8]} offset:16")
    for i in range(32): a(f"v_mov_b32 {D2[i]}, 0")
    a(f"s_sub_u32 {sTmp}, {sWave}, 5")
    a(f"s_cmp_lt_u32 {sTmp}, 2")
    a("s_cbranch_scc0 K_G_NOFLG2")
    a.c("waves 5,6: their rows have left -> signal them")
    a("s_waitcnt vmcnt(0)")
    have_tag("K_G_TAG2")
    a(f"s_lshl_b32 {sTmp}, s2, 1")
    a(f"s_add_u32 {sTmp}, {sTmp}, {sWave}")
    a(f"s_sub_u32 {sTmp}, {sTmp}, 5")
    a(f"s_lshl_b32 {sTmp}, {sTmp}, 4")
    a(f"s_add_u32 {sTmp}, {sTmp}, {FLG2}")
    a(f"v_mov_b32 {vT0}, {sNonce}")
    a(f"buffer_store_dword {vT0}, {vZ[0]}, {sW}, {sTmp} offen sc1")
    a.label("K_G_NOFLG2")
    a(f"s_cmp_lg_u32 {sWave}, 0")
    a("s_cbranch_scc1 K_G_WAIT")
    a.c("wave 0: wait for all 256 hand-offs (the first round of flag loads is already in flight)")
    a(f"s_mov_b32 {sTmp2}, {FLG}")
    a("s_branch K_G_POLL1")
    a.label("K_G_POLL")
    for k in range(4): a(f"buffer_load_dword {AD[k]}, {vL16}, {sW}, {sTmp2} offen offset:{1024*k} sc1")
    a.label("K_G_POLL1")
    a("s_waitcnt vmcnt(0)")
    a(f"v_cmp_eq_u32 {sAny}, {sNonce}, {AD[0]}")
    a(f"v_cmp_eq_u32 {sSave}, {sNonce}, {AD[1]}")
    a(f"v_cmp_eq_u32 vcc, {sNonce}, {AD[2]}")
    a("s_nop 1")
    a(f"s_and_b64 {sAny}, {sAny}, {sSave}")
    a(f"v_cmp_eq_u32 {sSave}, {sNonce}, {AD[3]}")
    a(f"s_and_b64 {sAny}, {sAny}, vcc")
    a("s_nop 1")
    a(f"s_and_b64 {sAny}, {sAny}, {sSave}")
    a(f"s_cmp_eq_u64 {sAny}, -1")
    a("s_cbranch_scc1 K_G_WAIT")
    a(f"s_add_u32 {sPoll}, {sPoll}, 1")
    a(f"s_cmp_lt_u32 {sPoll}, 200000")
    a("s_cbranch_scc1 K_G_POLL")
    a.label("K_G_WAIT")
    a.c("waves 4 and 7 keep their pos pieces in flight: their cell loads return behind them")
    a(f"s_lshl_b32 {sTmp}, 1, {sWave}")
    a(f"s_and_b32 {sTmp}, {sTmp}, 0x90")
    a("s_cbranch_scc1 K_G_WAIT47")
    a("s_waitcnt vmcnt(0)")
    a.label("K_G_WAIT47")
    a("s_waitcnt lgkmcnt(0)")
    for _ in range(opt.get('delay',0)): a("s_sleep 32")
    a("s_barrier")
    stamp(a,opt,4)
    RECP=D1[0:16]; REC=[RECP[2*i] for i in range(8)]+[RECP[2*i+1] for i in range(8)]; WAD=D1[16:32]; RK=HA
    a.c("cell records of this bin: pair s holds slots m and 16+m (m = l&15) of cell 32s+4v+(l>>4)")
    a(f"s_lshl_b32 {sTmp}, s2, 15")
    a(f"s_lshl_b32 {sTmp2}, {sWave}, 9")
    a(f"s_add_u32 {sTmp}, {sTmp}, {sTmp2}")
    a(f"v_lshl_add_u32 {vT0}, {vL}, 3, {sTmp}")
    ROT=opt.get('rot',0)
    if ROT==1: a(f"s_getreg_b32 {sRot}, hwreg(HW_REG_XCC_ID, 0, 4)")
    elif ROT==2: a(f"s_and_b32 {sRot}, s2, 7")
    elif ROT==3:
        a(f"s_getreg_b32 {sRot}, hwreg(HW_REG_XCC_ID, 0, 4)")
        a(f"s_and_b32 {sRot}, {sRot}, 3")
        a(f"s_lshl_b32 {sRot}, {sRot}, 1")
    else: a(f"s_mov_b32 {sRot}, 0")
    def pair_index(dst,s_):
        a(f"s_add_u32 {dst}, {sRot}, {s_}")
        a(f"s_and_b32 {dst}, {dst}, 7")
    for s_ in range(8):
        pair_index(sTmp,s_)
        a(f"s_lshl_b32 {sTmp}, {sTmp}, 12")
        a(f"buffer_load_dwordx2 {RECP[2*s_:2*s_+2]}, {vT0}, {sW}, {sTmp} offen{LD}")
    a(f"v_lshlrev_b32 {vT2}, 1, {vL}")
    a(f"v_and_b32 {vT2}, 62, {vT2}")
    a("s_load_dwordx2 s[98:99], s[0:1], 48")
    a.c("node-update weights (transposed reads of raw w_h), waves 0..3 use them")
    a(f"s_and_b32 {sTmp}, {sWave}, 1")
    a(f"s_lshl_b32 {sTmp}, {sTmp}, 6")
    a(f"s_add_u32 {sTmp}, {sTmp}, {L_HST}")
    a(f"v_add_u32 {vT1}, {sTmp}, {vTRW}")
    for s_ in range(8):
        for th in range(2):
            a(f"ds_read_b64_tr_b16 {WH[4*s_+2*th:4*s_+2*th+2]}, {vT1} offset:{s_*2048+th*512}")
            if (2*s_+th)==7: a("s_waitcnt lgkmcnt(0)")
    srd(a,sT4,"s98","s99",128)
    a(f"v_mov_b32 {WX[0]}, 0")
    a(f"v_mov_b32 {WX[1]}, 0")
    a(f"buffer_load_short_d16_hi {WX[0]}, {vT2}, {sT4}, 0 offen")
    a(f"buffer_load_short_d16_hi {WX[1]}, {vT2}, {sT4}, 0 offen offset:64")
    a("s_waitcnt vmcnt(2)")
    stamp(a,opt,5)
    a(f"s_mov_b64 {sAny}, 0")
    for s_ in range(16):
        a(f"v_cmp_gt_u32 {sMask[s_]}, {sMark}, {REC[s_]}")
        if s_<8:
            a(f"v_cmp_eq_u32 vcc, {sMark}, {REC[s_]}")
        a(f"v_lshrrev_b32 {WAD[s_]}, 27, {REC[s_]}")
        a(f"v_and_b32 {WAD[s_]}, 0x1c, {WAD[s_]}")
        if s_<8: a(f"s_or_b64 {sAny}, {sAny}, vcc")
    order=[x for p in range(8) for x in (p,8+p)]
    for n_,s_ in enumerate(order):
        a(f"s_mov_b64 exec, {sMask[s_]}")
        if s_>=8: a(f"s_cbranch_execz K2_A{s_}")
        a(f"ds_add_rtn_u32 {RK[s_]}, {WAD[s_]}, {vOne} offset:{L_CNT}")
        if s_>=8: a.label(f"K2_A{s_}")
        if n_==7:
            a("s_waitcnt lgkmcnt(4)")
    a("s_mov_b64 exec, -1")
    FL=A2R
    def flg2_loads():
        a(f"s_mov_b32 {sTmp2}, {FLG2}")
        for k in range(4): a(f"buffer_load_dword {FL[k]}, {vL16}, {sW}, {sTmp2} offen offset:{1024*k} sc1")
        a(f"s_mov_b32 {sTmp2}, {FLG2+4096}")
        for k in range(4): a(f"buffer_load_dword {FL[4+k]}, {vL16}, {sW}, {sTmp2} offen offset:{1024*k} sc1")
    a(f"s_cmp_lg_u32 {sWave}, 1")
    a("s_cbranch_scc1 K2_NOF2A")
    a.c("wave 1: flags of the source-node table (checked before barrier 2)")
    flg2_loads()
    a(f"ds_read_b32 {aE}, {vZ[0]} offset:{L_NRES+8}")
    a.label("K2_NOF2A")
    a(f"s_lshl_b32 {sTmp}, {sWave}, 2")
    a(f"v_lshrrev_b32 {vT0}, 4, {vL}")
    a(f"v_add_u32 {vT0}, {sTmp}, {vT0}")
    a(f"v_mul_u32_u24 {vT0}, {CH}, {vT0}")
    a(f"v_mov_b32 {vT1}, {L_L0}")
    a(f"v_mov_b32 {vT2}, {L_L1}")
    a("s_waitcnt lgkmcnt(0)")
    for s_ in order:
        a(f"s_mov_b64 exec, {sMask[s_]}")
        if s_>=8: a(f"s_cbranch_execz K2_B{s_}")
        pair_index(sTmp,s_&7)
        a(f"s_mul_i32 {sTmp}, {sTmp}, {32*CH}")
        a(f"v_min_u32 {RK[s_]}, {CAPX-1}, {RK[s_]}")
        a(f"v_and_b32 {vT3}, 0xfff, {REC[s_]}")
        a(f"v_mad_u32_u24 {RK[s_]}, {WAD[s_]}, {sCAPq}, {RK[s_]}")
        a(f"v_add3_u32 {vT3}, {vT3}, {vT0}, {sTmp}")
        a(f"v_bfe_u32 {vJ}, {REC[s_]}, 26, 3")
        a(f"v_lshl_add_u32 {AD[0]}, {RK[s_]}, 2, {vT1}")
        a(f"v_lshl_or_b32 {vT3}, {vT3}, 5, {vJ}")
        a(f"v_lshl_add_u32 {AD[1]}, {RK[s_]}, 1, {vT2}")
        a(f"v_bfe_u32 {vJ}, {REC[s_]}, 12, 14")
        a(f"ds_write_b32 {AD[0]}, {vT3}")
        a(f"ds_write_b16 {AD[1]}, {vJ}")
        if s_>=8: a.label(f"K2_B{s_}")
    a("s_mov_b64 exec, -1")
    NE=opt.get('epf',0)
    if NE:
        a.c("L2 warm-up of the e_attr lines of the first records (speed only; results are never read)")
        a(f"s_lshl_b32 {sTmp}, {sWave}, 2")
        a(f"v_lshrrev_b32 {vT0}, 4, {vL}")
        a(f"v_add_u32 {vT0}, {sTmp}, {vT0}")
        a(f"v_mul_u32_u24 {vT0}, {CH}, {vT0}")
        a(f"v_mov_b32 {vT2}, 0x2000000")
        for k in range(NE):
            a(f"v_cmp_gt_u32 vcc, {sMark}, {REC[k]}")
            a(f"v_and_b32 {vT1}, 0xfff, {REC[k]}")
            pair_index(sTmp,k)
            a(f"s_mul_i32 {sTmp}, {sTmp}, {32*CH}")
            a(f"v_add3_u32 {vT1}, {vT1}, {vT0}, {sTmp}")
            a(f"v_cndmask_b32 {vT1}, {vT2}, {vT1}, vcc")
            a(f"v_lshlrev_b32 {vT1}, 5, {vT1}")
            a(f"buffer_load_dword {vDUM}, {vT1}, {sE}, 0 offen")
    a.c("overflowed cells -> rescan list (rare)")
    a(f"s_cmp_eq_u64 {sAny}, 0")
    a("s_cbranch_scc1 K2_NOMARK")
    a(f"v_lshrrev_b32 {vT0}, 4, {vL}")
    a(f"s_lshl_b32 {sTmp}, {sWave}, 2")
    a(f"v_add_u32 {vT0}, {sTmp}, {vT0}")
    a(f"v_mov_b32 {vT1}, {L_NRES}")
    for s_ in range(8):
        a(f"v_cmp_eq_u32 vcc, {sMark}, {REC[s_]}")
        a(f"s_and_saveexec_b64 {sSave}, vcc")
        a(f"s_cbranch_execz K2_MK{s_}")
        a(f"ds_add_rtn_u32 {vT2}, {vT1}, {vOne}")
        pair_index(sTmp,s_)
        a(f"s_lshl_b32 {sTmp}, {sTmp}, 5")
        a(f"v_add_u32 {vT3}, {sTmp}, {vT0}")
        a("s_waitcnt lgkmcnt(0)")
        a(f"v_lshlrev_b32 {vT2}, 2, {vT2}")
        a(f"ds_write_b32 {vT2}, {vT3} offset:{L_RES}")
        a.label(f"K2_MK{s_}")
        a(f"s_mov_b64 exec, {sSave}")
    a.label("K2_NOMARK")
    a("s_load_dwordx2 s[64:65], s[0:1], 0")
    a("s_waitcnt vmcnt(0) lgkmcnt(0)")
    a(f"s_cmp_lg_u32 {sWave}, 1")
    a("s_cbranch_scc1 K2_NOF2B")
    a(f"v_readfirstlane_b32 {sNonce}, {aE}")
    a(f"s_mov_b32 {sPoll}, 0")
    a("s_nop 1")
    a.label("K2_F2CHK")
    a(f"v_cmp_eq_u32 {sAny}, {sNonce}, {FL[0]}")
    for k in range(1,8):
        a(f"v_cmp_eq_u32 vcc, {sNonce}, {FL[k]}")
        a("s_nop 1")
        a(f"s_and_b64 {sAny}, {sAny}, vcc")
    a(f"s_cmp_eq_u64 {sAny}, -1")
    a("s_cbranch_scc1 K2_NOF2B")
    a(f"s_add_u32 {sPoll}, {sPoll}, 1")
    a(f"s_cmp_gt_u32 {sPoll}, 200000")
    a("s_cbranch_scc1 K2_NOF2B")
    flg2_loads()
    a("s_waitcnt vmcnt(0)")
    a("s_branch K2_F2CHK")
    a.label("K2_NOF2B")
    srd(a,sHs,"s64","s65",N*128)
    a(f"s_mov_b32 {sTmp}, {NEG_LN2}")
    a(f"v_mul_f32 {WX[0]}, {sTmp}, {WX[0]}")
    a(f"v_mul_f32 {WX[1]}, {sTmp}, {WX[1]}")
    stamp(a,opt,6)
    a("s_barrier")
    stamp(a,opt,7)
    a.c("window sizes (lane = pair i,k) and the rescan count")
    a(f"v_mov_b32 {vT0}, {L_NRES}")
    a(f"ds_read_b32 {vT1}, {vT0}")
    a(f"ds_read_b32 {vT2}, {aOH} offset:{L_CNT}")
    a(f"ds_read_b32 {vT3}, {SS} offset:{L_CNT}")
    a("s_waitcnt lgkmcnt(0)")
    a(f"v_readfirstlane_b32 {sNR}, {vT1}")
    a(f"v_min_u32 {vT0}, 0xffffff, {vT2}")
    a(f"v_min_u32 {vJ}, 0xffffff, {vT3}")
    a(f"s_cmp_eq_u32 {sNR}, 0")
    a("s_cbranch_scc1 K2_CHECK")
    a(f"s_min_u32 {sNR}, {sNR}, 256")
    a(f"s_mov_b32 {sI}, 0")
    a.label("K2_RESCAN_I")
    a(f"s_lshl_b32 {sTmp}, {sI}, 2")
    a(f"s_add_u32 {sTmp}, {sTmp}, {L_RES}")
    a(f"v_mov_b32 {vT0}, {sTmp}")
    a(f"ds_read_b32 {vT1}, {vT0}")
    a("s_waitcnt lgkmcnt(0)")
    a(f"v_readfirstlane_b32 {sWsrc}, {vT1}")
    a("s_nop 3")
    a(f"s_min_u32 {sWsrc}, {sWsrc}, 255")
    a(f"s_mov_b32 {sC}, 0")
    a.label("K2_RESCAN_C")
    def append_raw(lim_local):
        a(f"v_lshlrev_b32 {vT1}, 2, {vT0}")
        a(f"buffer_load_dword {AD[0]}, {vT1}, {sD}, 0 offen")
        a(f"buffer_load_dword {AD[1]}, {vT1}, {sS}, 0 offen")
        a("s_waitcnt vmcnt(0)")
        a(f"v_mul_hi_u32 {vT2}, {AD[0]}, {sK}")
        a(f"v_lshrrev_b32 {vT3}, 3, {vT2}")
        a(f"v_cmp_eq_u32 vcc, s2, {vT3}")
        a("s_nop 1")
        a(f"s_and_b64 vcc, vcc, {sAny}")
        a(f"s_and_saveexec_b64 {sSave}, vcc")
        a(f"s_cbranch_execz {lim_local}")
        a(f"v_mad_u32_u24 {vT3}, {vT2}, {s3125}, {v511}")
        a(f"v_and_b32 {vT2}, 7, {vT2}")
        a(f"v_lshrrev_b32 {vT3}, 9, {vT3}")
        a(f"v_lshlrev_b32 {vT2}, 2, {vT2}")
        a(f"v_sub_u32 {vT3}, {AD[0]}, {vT3}")
        a(f"ds_add_rtn_u32 {AD[2]}, {vT2}, {vOne} offset:{L_CNT}")
        a(f"v_lshl_or_b32 {vT0}, {vT0}, 5, {vT3}")
        a("s_waitcnt lgkmcnt(0)")
        a(f"v_min_u32 {AD[2]}, {CAPX-1}, {AD[2]}")
        a(f"v_mad_u32_u24 {AD[2]}, {vT2}, {sCAPq}, {AD[2]}")
        a(f"v_mov_b32 {vT2}, {L_L0}")
        a(f"v_mov_b32 {vT3}, {L_L1}")
        a(f"v_lshl_add_u32 {vT2}, {AD[2]}, 2, {vT2}")
        a(f"v_lshl_add_u32 {vT3}, {AD[2]}, 1, {vT3}")
        a(f"ds_write_b32 {vT2}, {vT0}")
        a(f"ds_write_b16 {vT3}, {AD[1]}")
        a.label(lim_local)
        a(f"s_mov_b64 exec, {sSave}")
    a(f"s_lshl_b32 {sTmp}, {sC}, 9")
    a(f"v_add_u32 {vT1}, {sTmp}, v0")
    a(f"s_mul_i32 {sTmp2}, {sWsrc}, {CH}")
    a(f"v_add_u32 {vT0}, {sTmp2}, {vT1}")
    a(f"v_cmp_gt_u32 vcc, {CH}, {vT1}")
    a(f"s_mov_b32 {sTmp}, {E}")
    a(f"v_cmp_gt_u32 {sAny}, {sTmp}, {vT0}")
    a("s_nop 1")
    a(f"s_and_b64 {sAny}, {sAny}, vcc")
    append_raw("K2_RA1")
    a(f"s_add_u32 {sC}, {sC}, 1")
    a(f"s_cmp_lt_u32 {sC}, 7")
    a("s_cbranch_scc1 K2_RESCAN_C")
    a(f"s_add_u32 {sI}, {sI}, 1")
    a(f"s_cmp_lt_u32 {sI}, {sNR}")
    a("s_cbranch_scc1 K2_RESCAN_I")
    a("s_waitcnt lgkmcnt(0)")
    a("s_barrier")
    a(f"ds_read_b32 {vT2}, {aOH} offset:{L_CNT}")
    a(f"ds_read_b32 {vT3}, {SS} offset:{L_CNT}")
    a("s_waitcnt lgkmcnt(0)")
    a(f"v_min_u32 {vT0}, 0xffffff, {vT2}")
    a(f"v_min_u32 {vJ}, 0xffffff, {vT3}")
    a.label("K2_CHECK")
    a.c("window assignment by size rank")
    a(f"v_lshl_or_b32 {vT0}, {vT0}, 3, {aPS}")
    a(f"v_lshl_or_b32 {vJ}, {vJ}, 3, {aPD}")
    a(f"v_cmp_lt_u32 {sAny}, {sCAP}, {vT3}")
    a(f"v_cmp_gt_u32 vcc, {vJ}, {vT0}")
    a(f"s_mov_b32 {sWin}, 0")
    a("s_nop 2")
    for i in range(8):
        a(f"s_bfe_u32 {sTmp}, {'vcc_lo' if i<4 else 'vcc_hi'}, {(8<<16)|(8*(i&3))}")
        a(f"s_bcnt1_i32_b32 {sTmp}, {sTmp}")
        a(f"s_cmp_eq_u32 {sTmp}, {sTgt}")
        a(f"s_cselect_b32 {sWin}, {i}, {sWin}")
    if opt.get('nobal',0): a(f"s_mov_b32 {sWin}, {sWave}")
    a(f"s_lshl_b32 {sTmp}, {sWin}, 3")
    a(f"v_readlane_b32 {sCnt}, {vT2}, {sTmp}")
    geometry(sWin)
    a(f"s_lshl_b32 {sTmp}, {sWin}, 11")
    a(f"v_add_u32 {vE64}, {sTmp}, {vE64}")
    a(f"v_add_u32 {vTR}, {sTmp}, {vTR}")
    a(f"s_add_u32 {sTmp}, {sTmp}, {L_A2}")
    a(f"v_lshl_add_u32 {vT0}, {vL}, 5, {sTmp}")
    a(f"ds_read_b128 {WA[0:4]}, {vT0}")
    a(f"ds_read_b128 {WA[4:8]}, {vT0} offset:16")
    for i in range(4): a(f"v_mov_b32 {A2R[i]}, 0")
    a(f"ds_write_b128 {vT0}, {A2R[0:4]}")
    a(f"ds_write_b128 {vT0}, {A2R[0:4]} offset:16")
    a(f"s_cmp_eq_u64 {sAny}, 0")
    a("s_cbranch_scc1 K2_MAIN")
    a.c("generic (slow) mode: raw scan of all edges, 512 per round")
    a(f"s_mov_b32 {sMode}, 1")
    a.label("K2_GEN")
    a("s_barrier")
    a(f"s_cmp_lg_u32 {sWave}, 0")
    a("s_cbranch_scc1 K2_GEN1")
    a(f"v_and_b32 {vT0}, 7, {vL}")
    a(f"v_lshlrev_b32 {vT0}, 2, {vT0}")
    a(f"ds_write_b32 {vT0}, {vZ[0]} offset:{L_CNT}")
    a("s_waitcnt lgkmcnt(0)")
    a.label("K2_GEN1")
    a("s_barrier")
    a(f"s_lshl_b32 {sTmp}, {sChunk}, 9")
    a(f"v_add_u32 {vT0}, {sTmp}, v0")
    a(f"s_mov_b32 {sTmp}, {E}")
    a(f"v_cmp_gt_u32 {sAny}, {sTmp}, {vT0}")
    a("s_nop 1")
    append_raw("K2_RA2")
    a("s_waitcnt lgkmcnt(0)")
    a("s_barrier")
    a(f"s_lshl_b32 {sTmp}, {sWin}, 2")
    a(f"v_mov_b32 {vT0}, {sTmp}")
    a(f"ds_read_b32 {vT1}, {vT0} offset:{L_CNT}")
    a("s_waitcnt lgkmcnt(0)")
    a(f"v_readfirstlane_b32 {sCnt}, {vT1}")
    a("s_nop 3")
    a.label("K2_MAIN")
    if opt.get('dbgfill',0): stamp(a,opt,14)
    a(f"s_min_u32 {sCnt}, {sCnt}, {CAP}")
    a(f"s_add_u32 {sNT}, {sCnt}, 31")
    a(f"s_lshr_b32 {sNT}, {sNT}, 5")
    a(f"s_cmp_eq_u32 {sNT}, 0")
    a("s_cbranch_scc1 K2_MAIN_DONE")
    a(f"s_mul_i32 {sTmp}, {sWin}, {CAPX*4}")
    a(f"s_add_u32 {sTmp}, {sTmp}, {L_L0}")
    a(f"s_mul_i32 {sTmp2}, {sWin}, {CAPX*2}")
    a(f"s_add_u32 {sTmp2}, {sTmp2}, {L_L1}")
    a(f"v_and_b32 {vT0}, 31, {vL}")
    a(f"v_lshl_add_u32 {aL0}, {vT0}, 2, {sTmp}")
    a(f"v_lshl_add_u32 {aL1s}, {vT0}, 1, {sTmp2}")
    a(f"v_lshrrev_b32 {vT0}, 3, {vL}")
    a(f"v_lshl_add_u32 {aL1d}, {vT0}, 3, {sTmp2}")
    def pad():
        a(f"v_add_u32 {vT0}, {sCnt}, {vL}")
        a(f"v_lshl_add_u32 {vT1}, {vT0}, 2, {sTmp}")
        a(f"v_lshl_add_u32 {vT2}, {vT0}, 1, {sTmp2}")
        a(f"v_mov_b32 {vJ}, 7")
        a(f"ds_write_b32 {vT1}, {vJ}")
        a(f"ds_write_b16 {vT2}, {vZ[0]}")
        a(f"ds_write_b32 {vT1}, {vJ} offset:256")
        a(f"ds_write_b16 {vT2}, {vZ[0]} offset:128")
    def first_reads():
        a(f"ds_read_b32 {vT3}, {aL0}")
        a(f"ds_read_b64 {SD}, {aL1d}")
        a(f"ds_read_b32 {LE[1]}, {aL0} offset:128")
        a(f"ds_read_b32 {LE[0]}, {aL0} offset:256")
        a(f"ds_read_u16 {SS}, {aL1s}")
    a(f"s_cmp_ge_u32 {sCnt}, 96")
    a("s_cbranch_scc1 K2_FILL_BIG")
    pad()
    first_reads()
    a("s_waitcnt lgkmcnt(0)")
    a("s_branch K2_FILL")
    a.label("K2_FILL_BIG")
    first_reads()
    pad()
    a("s_waitcnt lgkmcnt(4)")
    a.label("K2_FILL")
    ENT=['',' nt',' sc1',' sc0 sc1',' sc0',' sc0 nt',' sc1 nt',' sc0 sc1 nt'][opt.get('e_nt',0)]
    def E_addr(le): a(f"v_and_or_b32 {aE}, {le}, {sMaskE}, {vHOFF}")
    def E_load(p): a(f"buffer_load_dwordx4 {EA[p]}, {aE}, {sE}, 0 offen{ENT}")
    def H_addr():
        if opt.get('hmask',0):
            a(f"v_and_b32 {SD[0]}, 0x03ff03ff, {SD[0]}"); a(f"v_and_b32 {SD[1]}, 0x03ff03ff, {SD[1]}")
        for i in range(4):
            a(f"v_mad_u32_u16 {AD[i]}, {SD[i>>1]}, {s128}, {vKD[i]}"+(" op_sel:[1,0,0,0]" if i&1 else ""))
    def H_load(i):
        a(f"s_mov_b32 m0, {sM0[i]}")
        a("s_nop 0")
        a(f"buffer_load_dwordx4 {AD[i]}, {sB}, 0 offen{HLD} lds")
    def P_addr(le,par):
        a(f"v_and_b32 {vJ}, 7, {le}")
        a(f"v_mul_u32_u24 {aPS}, 6, {SS}")
        a(f"v_mad_u32_u24 {aPD}, {vJ}, 6, {sN06}")
        a(f"v_lshlrev_b32 {aOH}, 4, {vJ}")
        a(f"v_lshl_add_u32 {aA2[par]}, {vJ}, 3, {vE64}")
    def P_reads():
        for c in range(3): a(f"ds_read_u16_d16_hi {PS[c]}, {aPS} offset:{L_POS+2*c}")
        for c in range(3): a(f"ds_read_u16_d16_hi {PD[c]}, {aPD} offset:{L_POS+2*c}")
        a(f"ds_read_b128 {OH}, {aOH} offset:{L_OH}")
    def P_calc_list(par):
        return [f"v_sub_f32 {DX[0]}, {PD[0]}, {PS[0]}", f"v_sub_f32 {DX[1]}, {PD[1]}, {PS[1]}", f"v_sub_f32 {DX[2]}, {PD[2]}, {PS[2]}",
                f"v_mul_f32 {DD}, {DX[0]}, {DX[0]}", f"v_fmac_f32 {DD}, {DX[1]}, {DX[1]}", f"v_fmac_f32 {DD}, {DX[2]}, {DX[2]}",
                f"v_cvt_pk_bf16_f32 {E01[0]}, 1.0, {DX[0]}", f"v_cvt_pk_bf16_f32 {E01[1]}, {DX[1]}, {DX[2]}",
                f"v_cvt_pk_bf16_f32 {OH[3]}, {OH[3]}, {DD}",
                f"ds_write_b64 {aA2[par]}, {E01}"]
    E_addr(vT3); E_load(0)
    H_addr()
    for i in range(4): H_load(i)
    E_addr(LE[1]); E_load(1)
    if opt.get('dbgfill',0): stamp(a,opt,15)
    P_addr(vT3,0); P_reads()
    a(f"ds_read_b64 {SD}, {aL1d} offset:64")
    a(f"ds_read_u16 {SS}, {aL1s} offset:64")
    for i in range(16): a(f"v_mov_b32 {T[i]}, 0")
    for i in range(8): a(f"v_mov_b32 {A2R[i]}, 0")
    a("s_waitcnt lgkmcnt(0)")
    for ins in P_calc_list(0): a(ins)
    H_addr()
    P_addr(LE[1],1)
    E_addr(LE[0])
    a("s_waitcnt vmcnt(1)")
    for s_ in range(4): a(f"ds_read_b128 {HA[4*s_:4*s_+4]}, {vHA[s_]}")
    Da,Db=D1[0:16],D1[16:32]
    mfma(a,Da,OH,WA[0:4],"0")
    mfma(a,Da,EA[0],WE[0:4],Da)
    a("s_waitcnt lgkmcnt(0)")
    for i in range(4): H_load(i)
    mfma(a,Da,HA[0:4],ID[0:4],Da)
    mfma(a,Da,HA[4:8],ID[4:8],Da)
    a(f"s_mov_b32 {sT}, 0")
    stamp(a,opt,8)
    if DBG:
        a("s_memtime s[80:81]")
        a("s_waitcnt lgkmcnt(0)")
    a.nop(12)
    MADD=opt.get('madd',1)
    PB_=[0]
    def prio(p):
        if PRIO: a(f"s_setprio {p+PB_[0] if PB_[0]>=0 else 3}")
    def Tsec(kind,x,p):
        Dx=D1[16*x:16*x+16]; o=1-x; Do=D1[16*o:16*o+16]; D2o=D2[16*o:16*o+16]
        prio(1)
        if kind=='X':
            ea = EA[p] if x==0 else EA[1-p]
            mfma(a,Do,OH,WA[4*o:4*o+4],"0")
            for i in range(8): a(f"v_cvt_pk_bf16_f32 {M[i]}, {T[2*i]}, {T[2*i+1]}")
            mfma(a,Do,ea,WE[4*o:4*o+4],Do)
            for i in range(16):
                if i==6:
                    if x==1: a("s_waitcnt lgkmcnt(2)")
                    mfma(a,D2o,A2R[0:4],M[0:4],D2o)
                a(f"v_exp_f32 {T[i]}, {Dx[i]}")
            if MADD:
                a("s_nop 1")
                mfma(a,T,ONE,ONE,T)
        else:
            hb = HA[8:16] if x==0 else HA[0:8]
            for i in range(16):
                if i==0: mfma(a,Do,hb[0:4],ID[0:4],Do)
                if i==5: mfma(a,Do,hb[4:8],ID[4:8],Do)
                if i==10: mfma(a,D2o,A2R[4:8],M[4:8],D2o)
                a(f"v_rcp_f32 {T[i]}, {T[i]}")
        prio(0)
    def tile(p):
        q=1-p
        Tsec('X',0,p)
        if not opt.get('e_late',0): E_load(p)
        else: a("s_nop 0")
        P_reads()
        a(f"ds_read_b64 {SD}, {aL1d} offset:{64*(p+2)}")
        if not MADD:
            for i in range(16): a(f"v_add_f32 {T[i]}, 1.0, {T[i]}")
        else:
            a.nop(2)
        Tsec('R',0,p)
        a(f"s_waitcnt vmcnt({0 if opt.get('e_late',0) else 1}) lgkmcnt(0)")
        for s_ in range(4): a(f"ds_read_b128 {HA[4*s_:4*s_+4]}, {vHA[s_]}")
        for k in range(4): a(f"ds_read_b64_tr_b16 {A2R[2*k:2*k+2]}, {vTR} offset:{512*k}")
        a(f"ds_write_b64 {aA2[p]}, {vZ}")
        pc=P_calc_list(q)
        for ins in pc[:6]: a(ins)
        H_addr()
        for i in range(16): a(f"v_mul_f32 {T[i]}, {Da[i]}, {T[i]}")
        for ins in pc[6:]: a(ins)
        Tsec('X',1,p)
        a("s_waitcnt lgkmcnt(0)")
        if opt.get('e_late',0)==1: E_load(p)
        for i in range(4): H_load(i)
        a(f"ds_read_b32 {LE[q]}, {aL0} offset:{128*(p+3)}")
        a(f"ds_read_u16 {SS}, {aL1s} offset:{64*(p+2)}")
        if not MADD:
            for i in range(16): a(f"v_add_f32 {T[i]}, 1.0, {T[i]}")
        Tsec('R',1,p)
        a("s_waitcnt lgkmcnt(0)")
        E_addr(LE[q])
        P_addr(LE[p],p)
        if p==1:
            a(f"v_add_u32 {aL0}, 256, {aL0}")
            a(f"v_add_u32 {aL1s}, 128, {aL1s}")
            a(f"v_add_u32 {aL1d}, 128, {aL1d}")
        for i in range(16): a(f"v_mul_f32 {T[i]}, {Db[i]}, {T[i]}")
    def drain(par):
        for i in range(8): a(f"v_cvt_pk_bf16_f32 {M[i]}, {T[2*i]}, {T[2*i+1]}")
        a(f"ds_write_b64 {aA2[par]}, {vZ}")
        a("s_nop 0")
        mfma(a,D2[16:32],A2R[0:4],M[0:4],D2[16:32])
        mfma(a,D2[16:32],A2R[4:8],M[4:8],D2[16:32])
    def main_loop(sfx):
        a(".p2align 6")
        a.label("K2_LOOP"+sfx)
        tile(0)
        a(f"s_add_u32 {sT}, {sT}, 1")
        a(f"s_cmp_ge_u32 {sT}, {sNT}")
        a("s_cbranch_scc1 K2_EXIT_ODD"+sfx)
        tile(1)
        a(f"s_add_u32 {sT}, {sT}, 1")
        a(f"s_cmp_lt_u32 {sT}, {sNT}")
        a("s_cbranch_scc1 K2_LOOP"+sfx)
        drain(0)
        a("s_branch K2_LOOP_DONE")
        a.label("K2_EXIT_ODD"+sfx)
        drain(1)
    HP=opt.get('hiprio',0)
    if HP:
        a(f"s_cmp_lt_u32 {sWave}, 4")
        a("s_cbranch_scc1 K2_LOOP_H")
    main_loop("")
    if HP:
        a("s_branch K2_LOOP_DONE")
        PB_[0]={1:1,2:2,3:-1}[HP]
        main_loop("_H")
        PB_[0]=0
    a.label("K2_LOOP_DONE")
    if PRIO: a("s_setprio 0")
    a.label("K2_MAIN_DONE")
    stamp(a,opt,9)
    if DBG:
        a("s_memtime s[82:83]")
        a("s_waitcnt lgkmcnt(0)")
        a("s_sub_u32 s80, s82, s80")
        a(f"v_writelane_b32 {VDBG}, s80, 12")
        a(f"v_writelane_b32 {VDBG}, {sNT}, 11")
    a(f"s_cmp_eq_u32 {sMode}, 0")
    a("s_cbranch_scc1 K2_EPI")
    a("s_waitcnt vmcnt(0) lgkmcnt(0)")
    a(f"s_add_u32 {sChunk}, {sChunk}, 1")
    a(f"s_cmp_lt_u32 {sChunk}, {(E+511)//512}")
    a("s_cbranch_scc1 K2_GEN")
    a.label("K2_EPI")
    a.c("segment sums of this window: m_i (bf16) -> rows of this window's (now idle) A2 slice")
    a(f"s_lshl_b32 {sHST}, {sWin}, 11")
    a(f"s_add_u32 {sHST}, {sHST}, {L_A2}")
    a(f"v_and_b32 {vJ}, 31, {vL}")
    a(f"s_mov_b32 {sTmp}, {NEG_LN2}")
    a(f"v_lshrrev_b32 {vT2}, 5, {vL}")
    a(f"v_lshlrev_b32 {vT2}, 7, {vT2}")
    a(f"v_lshl_add_u32 {vT2}, {vJ}, 1, {vT2}")
    a(f"v_add_u32 {vT2}, {sHST}, {vT2}")
    a.nop(8)
    for qq in range(4):
        a(f"v_mul_f32 {AD[0]}, {sTmp}, {D2[4*qq]}")
        a(f"v_mul_f32 {AD[1]}, {sTmp}, {D2[16+4*qq]}")
        a(f"v_cvt_pk_bf16_f32 {AD[2]}, {AD[0]}, {AD[1]}")
        a(f"ds_write_b16 {vT2}, {AD[2]} offset:{qq*256}")
        a(f"ds_write_b16_d16_hi {vT2}, {AD[2]} offset:{qq*256+64}")
    def pos_part():
        a.c("coordinate update of this window")
        PP=T
        for qq in range(4):
            for c in range(1,4):
                r=PP[qq*3+c-1]
                a(f"v_mul_f32 {r}, {WX[0]}, {D2[4*qq+c]}")
                a(f"v_fmac_f32 {r}, {WX[1]}, {D2[16+4*qq+c]}")
        for sh in (1,2,4,8):
            for i in range(12): a(f"v_add_f32_dpp {PP[i]}, {PP[i]}, {PP[i]} row_shr:{sh} row_mask:0xf bank_mask:0xf bound_ctrl:0")
        for i in range(12): a(f"v_add_f32_dpp {PP[i]}, {PP[i]}, {PP[i]} row_bcast:15 row_mask:0xa bank_mask:0xf")
        a(f"v_lshrrev_b32 {vT2}, 5, {vL}")
        a(f"v_lshlrev_b32 {vT2}, 4, {vT2}")
        a(f"s_add_u32 {sTmp}, {sHST}, 1024")
        a(f"v_add_u32 {vT2}, {sTmp}, {vT2}")
        a("s_mov_b32 exec_lo, 0x80000000")
        a("s_mov_b32 exec_hi, 0x80000000")
        for qq in range(4):
            for c in range(3):
                a(f"ds_write_b32 {vT2}, {PP[qq*3+c]} offset:{qq*32+c*4}")
        a("s_mov_b64 exec, -1")
        a(f"v_mul_u32_u24 {vT2}, 86, {vL}")
        a(f"v_lshrrev_b32 {vT2}, 8, {vT2}")
        a(f"v_mul_u32_u24 {vT3}, 3, {vT2}")
        a(f"v_sub_u32 {vT3}, {vL}, {vT3}")
        a(f"v_lshlrev_b32 {vT2}, 4, {vT2}")
        a(f"v_lshl_add_u32 {vT2}, {vT3}, 2, {vT2}")
        a(f"v_add_u32 {vT2}, {sTmp}, {vT2}")
        a(f"v_min_u32 {vT2}, {LDS2-4}, {vT2}")
        a(f"ds_read_b32 {AD[0]}, {vT2}")
        a(f"v_lshl_add_u32 {vT3}, {vL}, 1, {sN06}")
        a(f"v_min_u32 {vT2}, {POS_SZ-2}, {vT3}")
        a(f"ds_read_u16_d16_hi {PS[0]}, {vT2} offset:{L_POS}")
        a(f"s_mul_i32 {sTmp}, {sNJ}, 3")
        a(f"v_cmp_gt_u32 vcc, {sTmp}, {vL}")
        a(f"v_add_u32 {vT3}, {OUT_POS}, {vT3}")
        a(f"v_mov_b32 {vT2}, 0x40000000")
        a("s_waitcnt lgkmcnt(0)")
        a(f"v_cndmask_b32 {vT3}, {vT2}, {vT3}, vcc")
        a(f"v_add_f32 {AD[0]}, {AD[0]}, {PS[0]}")
        a(f"v_cvt_pk_bf16_f32 {AD[0]}, {AD[0]}, {AD[0]}")
        a(f"buffer_store_short {AD[0]}, {vT3}, {sO}, 0 offen{OST}")
    a.c("job waves 4..7: row tile r = (v-4)>>1 (rows = window 4r + (m>>3), node m&7), feature half x = v&1")
    a(f"s_cmp_lt_u32 {sWave}, 4")
    a("s_cbranch_scc1 K2_EPI_NOJOB")
    a(f"s_sub_u32 {sTmp2}, {sWave}, 4")
    a(f"s_lshr_b32 {sTmp2}, {sTmp2}, 1")
    a(f"s_lshl_b32 {sTmp2}, {sTmp2}, 2")
    a(f"v_bfe_u32 {vT0}, {vL}, 3, 2")
    a(f"v_add_u32 {vT0}, {sTmp2}, {vT0}")
    a(f"v_and_b32 {vJ}, 7, {vL}")
    a(f"v_lshlrev_b32 {aL1d}, 11, {vT0}")
    a(f"v_lshl_add_u32 {aL1d}, {vJ}, 7, {aL1d}")
    a(f"v_add_u32 {aL1d}, {L_A2}, {aL1d}")
    a(f"v_add_u32 {aL1d}, {aL1d}, {vHOFF}")
    a(f"s_lshl_b32 {sTmp2}, s2, 3")
    a(f"v_add_u32 {vT0}, {sTmp2}, {vT0}")
    a(f"v_mad_u32_u24 {SD[0]}, {vT0}, {s3125}, {v511}")
    a(f"v_add_u32 {SD[1]}, 3125, {SD[0]}")
    a(f"v_lshrrev_b32 {SD[0]}, 9, {SD[0]}")
    a(f"v_lshrrev_b32 {SD[1]}, 9, {SD[1]}")
    a(f"v_sub_u32 {SD[1]}, {SD[1]}, {SD[0]}")
    a(f"v_cmp_lt_u32 vcc, {vJ}, {SD[1]}")
    a(f"v_add_u32 {vT1}, -1, {SD[1]}")
    a(f"v_min_u32 {vT1}, {vT1}, {vJ}")
    a(f"v_add_u32 {vT1}, {SD[0]}, {vT1}")
    a(f"v_lshlrev_b32 {vT1}, 7, {vT1}")
    a(f"v_add_u32 {vT0}, {vT1}, {vHOFF}")
    for s_ in range(4):
        a(f"buffer_load_dwordx4 {HA[4*s_:4*s_+4]}, {vT0}, {sHs}, 0 offen offset:{32*s_}")
    a(f"s_and_b32 {sTmp2}, {sWave}, 1")
    a(f"s_lshl_b32 {sTmp2}, {sTmp2}, 6")
    a(f"v_lshrrev_b32 {vT0}, 1, {vHOFF}")
    a(f"v_add3_u32 {aL0}, {vT1}, {vT0}, {sTmp2}")
    for qq in range(4):
        a(f"buffer_load_dwordx2 {M[2*qq:2*qq+2]}, {aL0}, {sHs}, 0 offen offset:{16*qq}")
    a(f"v_mov_b32 {vT0}, 0x40000000")
    a(f"v_cndmask_b32 {aL1s}, {vT0}, {aL0}, vcc")
    pos_part()
    HV=D2[0:16]
    a("s_waitcnt vmcnt(1)")
    for s_ in range(4):
        mfma(a,D1[0:16],WH[4*s_:4*s_+4],HA[4*s_:4*s_+4],"0" if s_==0 else D1[0:16])
    for qq in range(4):
        a(f"v_lshlrev_b32 {HV[4*qq]}, 16, {M[2*qq]}")
        a(f"v_and_b32 {HV[4*qq+1]}, 0xffff0000, {M[2*qq]}")
        a(f"v_lshlrev_b32 {HV[4*qq+2]}, 16, {M[2*qq+1]}")
        a(f"v_and_b32 {HV[4*qq+3]}, 0xffff0000, {M[2*qq+1]}")
    stamp(a,opt,10)
    a("s_barrier")
    MA=[EA[0],EA[1],A2R[0:4],A2R[4:8]]
    for s_ in range(4): a(f"ds_read_b128 {MA[s_]}, {aL1d} offset:{32*s_}")
    for s_ in range(4):
        a(f"s_waitcnt lgkmcnt({3-s_})")
        mfma(a,D1[0:16],WH[16+4*s_:20+4*s_],MA[s_],D1[0:16])
    a(f"s_mov_b32 {sTmp}, {NEG_LOG2E}")
    a.nop(14)
    X=D1[0:16]
    for i in range(16): a(f"v_mul_f32 {T[i]}, {sTmp}, {X[i]}")
    for i in range(16): a(f"v_exp_f32 {T[i]}, {T[i]}")
    for i in range(16): a(f"v_add_f32 {T[i]}, 1.0, {T[i]}")
    for i in range(16): a(f"v_rcp_f32 {T[i]}, {T[i]}")
    a("s_nop 0")
    for i in range(16): a(f"v_fma_f32 {T[i]}, {X[i]}, {T[i]}, {HV[i]}")
    for qq in range(4):
        a(f"v_cvt_pk_bf16_f32 {M[2*qq]}, {T[4*qq]}, {T[4*qq+1]}")
        a(f"v_cvt_pk_bf16_f32 {M[2*qq+1]}, {T[4*qq+2]}, {T[4*qq+3]}")
        a(f"buffer_store_dwordx2 {M[2*qq:2*qq+2]}, {aL1s}, {sO}, 0 offen offset:{16*qq}{OST}")
    a("s_branch K2_FIN")
    a.label("K2_EPI_NOJOB")
    a("s_waitcnt lgkmcnt(0)")
    stamp(a,opt,10)
    a("s_barrier")
    pos_part()
    a.label("K2_FIN")
    if DBG:
        a("s_waitcnt vmcnt(0)")
        stamp(a,opt,13)
        a(f"s_lshl_b32 {sTmp}, s2, 4")
        a(f"s_add_u32 {sTmp}, {sTmp}, {sWave}")
        a(f"s_lshl_b32 {sTmp}, {sTmp}, 6")
        a(f"s_add_u32 {sTmp}, {sTmp}, {DBG_OFF}")
        a(f"v_lshlrev_b32 {vT0}, 2, {vL}")
        a("s_mov_b32 exec_lo, 0xffff")
        a("s_mov_b32 exec_hi, 0")
        a(f"buffer_store_dword {VDBG}, {vT0}, {sW}, {sTmp} offen")
        a("s_waitcnt vmcnt(0)")
    a.label("K_END")
    a("s_endpgm")
    a.label("K_CODE_END")
    return nv

HEADER='''; Kernarg layout (88 bytes, ptrs only): h, pos, e_attr, src, dst, w_e, w_x, w_h, out, debug, ws
; @launch grid=(256,1,1) block=(512,1,1) lds={lds2}
.amdgcn_target "amdgcn-amd-amdhsa--gfx950"
.text
.globl {k}
.p2align 8
.type {k},@function
'''
def kd(name,nv,ns):
    acc=(nv+3)//4*4
    return f'''.amdhsa_kernel {name}
  .amdhsa_next_free_vgpr {acc}
  .amdhsa_next_free_sgpr {ns}
  .amdhsa_accum_offset {acc}
  .amdhsa_group_segment_fixed_size 0
  .amdhsa_kernarg_size 88
  .amdhsa_user_sgpr_count 2
  .amdhsa_user_sgpr_kernarg_segment_ptr 1
  .amdhsa_system_sgpr_workgroup_id_x 1
  .amdhsa_float_denorm_mode_32 3
.end_amdhsa_kernel
'''
def build(opt):
    out=HEADER.format(lds2=LDS2,k=KNAME)
    a=Asm()
    nv=gen(a,opt)
    assert nv<=255
    out+=a.text()
    out+='.section .rodata,"a"\n.p2align 6\n'+kd(KNAME,256,102)
    return out,nv
if __name__=="__main__":
    opt={}
    for arg in sys.argv[2:]:
        k,v=arg.split('='); opt[k]=int(v)
    txt,nv=build(opt)
    open(sys.argv[1],'w').write(txt)
    print("vgprs:",nv,"LDS",LDS2,"lines",txt.count("\n"),"WS",WS_BYTES)
```

```python
import sys, struct
from asmlib import *

N=12500; E=800000; CH=3136; NSRC=256; NBIN=256; NPW=49
KW=703687442
LOG2E=1.4426950408889634; LN2=0.6931471805599453
def f2u(x): return struct.unpack('<I',struct.pack('<f',x))[0]
NEG_LOG2E=f2u(-LOG2E); NEG_LN2=f2u(-LN2)
SENT=0xFFFFFFFF; MARK=0xFFFFFFFE
CELLS=0; BPT=NBIN*NSRC*128; FLG=BPT+N*128+((-N*128)%4096); FLG2=FLG+4096; WS_BYTES=FLG2+8192
OUT_BYTES=N*64*2+N*3*2; OUT_POS=N*64*2
CAP=576; CAPX=704
L_OH=0; L_CNT=128; L_NRES=160; L_WIN=192; L_RES=256; L_POS=1280; POS_SZ=74*1024
L_L0=L_POS+POS_SZ; L_L1=L_L0+8*CAPX*4; L_A2=L_L1+8*CAPX*2; L_HST=L_A2+8*2048; LDS2=L_HST+8*4096
assert LDS2<=163840, LDS2
L_RAWW=L_L0; L_BST=L_L0+19*1024; assert L_BST+2*32*144<=L_A2
DBG_OFF=16*1024*1024

def WSB(opt): return (32*1024*1024 if opt.get('dbg',0) else WS_BYTES)
def srd(a, s, lo, hi, size):
    a(f"s_mov_b32 {s[0]}, {lo}")
    a(f"s_and_b32 {s[1]}, {hi}, 0xffff")
    a(f"s_mov_b32 {s[2]}, {size}")
    a(f"s_mov_b32 {s[3]}, 0x20000")
VDBG="v255"
def stamp(a,opt,idx):
    if not opt.get('dbg',0): return
    a("s_memrealtime s[100:101]")
    a("s_waitcnt lgkmcnt(0)")
    a(f"v_writelane_b32 {VDBG}, s100, {idx}")
def S(i,n=1): return R('s',i,n)
def V(i,n=1): return R('v',i,n)
def mfma(a,d,A,B,c): a(f"v_mfma_f32_32x32x16_bf16 {d}, {A}, {B}, {c}")

NPOS1=24
KNAME="gather_scatter__cheap_equivariant_egnn__graph_kernel"
def gen(a, opt):
    DBG=opt.get('dbg',0)
    PRIO=opt.get('prio',1)
    ST=" sc1"; LD=" sc1" if opt.get('ld_sc1',1) else ""
    HLD=[""," sc1"," sc0 sc1"," sc1 nt"," sc0 sc1 nt"][opt.get('h_sc1',1)]
    SNT=" nt" if opt.get('snt',0) else ""
    OST=[""," nt"," sc1"," sc0 sc1"][opt.get('ost',0)]
    a.label(KNAME)
    sB=S(4,4); sE=S(8,4); sW=S(12,4); sO=S(16,4); sP=S(20,4); sS=S(24,4); sD=S(28,4)
    sWave=S(32); sN0=S(33); sNJ=S(34); sN06=S(35); sNT=S(36); sT=S(37); sMode=S(38); sChunk=S(39)
    sMaskE=S(40); s128=S(41); sK=S(42); s3125=S(43); sLim=S(44); sCAP=S(44); sCnt=S(45); sTmp=S(46); sTmp2=S(47)
    sM0=S(48,4); sSave=S(52,2); sAny=S(54,2); sNR=S(56); sI=S(57); sC=S(58); sWsrc=S(59); sMark=S(60); sCAPq=S(61); sHST=S(62); sTmp3=S(63)
    sMask=[S(64+2*i,2) for i in range(16)]
    sRot=S(39+0) if False else S(37)
    sWin=S(96); sTgt=S(97); sNonce=S(98); sPoll=S(99)
    sT4=S(84,4); sT4b=S(88,4); sT4c=S(92,4)
    sHw=S(48,4)
    sHs=S(68,4); sWx=S(72,4)
    vr=Regs(1,256,'v')
    vL=vr.alloc('lane')
    WE=vr.alloc('WE',8,4); WA=vr.alloc('WA',8,4); ID=vr.alloc('ID',8,4); D2=vr.alloc('D2',32,4)
    D1=vr.alloc('D1',32,4); HA=vr.alloc('HA',16,4); T=vr.alloc('T',16,4); M=vr.alloc('M',8,4)
    A2R=vr.alloc('A2R',8,4); EA=[vr.alloc('EA0',4,4),vr.alloc('EA1',4,4)]; OH=vr.alloc('OH',4,4)
    WH=vr.alloc('WH',32,4); ONE=vr.alloc('ONE',4,4)
    vHA=vr.alloc('vHA',4); vKD=vr.alloc('vKD',4); vTR=vr.alloc('vTR'); vE64=vr.alloc('vE64'); vHOFF=vr.alloc('vHOFF')
    vZ=vr.alloc('vZ',2,2); aL0=vr.alloc('aL0'); aL1s=vr.alloc('aL1s'); aL1d=vr.alloc('aL1d')
    LE=[vr.alloc('LE0'),vr.alloc('LE1')]; aA2=[vr.alloc('aA2_0'),vr.alloc('aA2_1')]
    SD=vr.alloc('SD',2,2); SS=vr.alloc('SS'); PS=vr.alloc('PS',3); PD=vr.alloc('PD',3)
    E01=vr.alloc('E01',2,2); DX=vr.alloc('DX',3); DD=vr.alloc('DD'); AD=vr.alloc('AD',4); vJ=vr.alloc('vJ')
    aE=vr.alloc('aE'); aPS=vr.alloc('aPS'); aPD=vr.alloc('aPD'); aOH=vr.alloc('aOH')
    vT0=vr.alloc('vT0'); vT1=vr.alloc('vT1'); vT2=vr.alloc('vT2'); vT3=vr.alloc('vT3')
    vOne=vr.alloc('vOne'); v511=vr.alloc('v511'); vTRW=vr.alloc('vTRW'); vL16=vr.alloc('vL16'); WX=vr.alloc('WX',2); vDUM=vr.alloc('vDUM')
    nv=vr.next
    HW=T
    def geometry(win):
        a(f"s_lshl_b32 {sTmp}, s2, 3")
        a(f"s_add_u32 {sTmp}, {sTmp}, {win}")
        a(f"s_mul_i32 {sN0}, {sTmp}, 3125")
        a(f"s_add_u32 {sNJ}, {sN0}, {3125+511}")
        a(f"s_add_u32 {sN0}, {sN0}, 511")
        a(f"s_lshr_b32 {sN0}, {sN0}, 9")
        a(f"s_lshr_b32 {sNJ}, {sNJ}, 9")
        a(f"s_sub_u32 {sNJ}, {sNJ}, {sN0}")
        a(f"s_mul_i32 {sN06}, {sN0}, 6")
    def dma(vaddr,srd_,soff,ldsbase_const=None,ldsreg=None):
        pass

    def load_hwin():
        a.c("h rows of the natural window (A operand of h@W1; needed after barrier C)")
        a(f"v_bfe_u32 {vT0}, {vL}, 3, 1")
        a(f"v_and_b32 {vT2}, 3, {vL}")
        a(f"v_lshl_add_u32 {vT0}, {vT0}, 2, {vT2}")
        a(f"s_sub_u32 {sTmp}, {sNJ}, 1")
        a(f"v_min_u32 {vT0}, {sTmp}, {vT0}")
        a(f"v_add_u32 {vT0}, {sN0}, {vT0}")
        a(f"v_lshl_add_u32 {vT0}, {vT0}, 7, {vHOFF}")
        for s_ in range(4):
            a(f"buffer_load_dwordx4 {HW[4*s_:4*s_+4]}, {vT0}, {sHw}, 0 offen offset:{32*s_}")
    a("s_cmp_ge_u32 s2, 256")
    a("s_cbranch_scc1 K_END")
    a("s_load_dwordx4 s[64:67], s[0:1], 0")
    a("s_load_dwordx4 s[68:71], s[0:1], 16")
    a("s_load_dwordx4 s[72:75], s[0:1], 32")
    a("s_load_dwordx4 s[76:79], s[0:1], 64")
    a("s_load_dwordx2 s[80:81], s[0:1], 80")
    a(f"v_and_b32 {vL}, 63, v0")
    a(f"v_lshrrev_b32 {vT0}, 6, v0")
    a(f"v_lshlrev_b32 {vL16}, 4, {vL}")
    a(f"v_readfirstlane_b32 {sWave}, {vT0}")
    if opt.get('cpf',1):
        a.c("pull this workgroup's share of the kernel's own code into L2 (read only, speed only)")
        NL=opt.get('cpf_lines',8)
        a("s_getpc_b64 s[84:85]")
        a.label("K_PC")
        a("s_and_b32 s85, s85, 0xffff")
        a("s_mov_b32 s86, K_CODE_END-K_PC")
        a("s_mov_b32 s87, 0x20000")
        if opt.get('cpf',1)==1:
            a(f"s_lshr_b32 {sTmp}, s2, 3")
            a(f"s_and_b32 {sTmp}, {sTmp}, 31")
            a(f"s_mul_i32 {sTmp}, {sTmp}, {NL*128}")
            a(f"v_lshlrev_b32 {vT1}, 7, {vL}")
            a(f"v_add_u32 {vT1}, {sTmp}, {vT1}")
            a(f"s_cmp_lg_u32 {sWave}, 3")
            a("s_cbranch_scc1 K_NOCPF")
            a(f"s_mov_b32 exec_lo, {(1<<NL)-1}")
            a("s_mov_b32 exec_hi, 0")
            a(f"buffer_load_dword {vDUM}, {vT1}, s[84:87], 0 offen")
            a("s_mov_b64 exec, -1")
        elif opt.get('cpf',1)==2:
            a(f"s_mul_i32 {sTmp}, {sWave}, {24*128}")
            a(f"v_lshlrev_b32 {vT1}, 7, {vL}")
            a(f"v_add_u32 {vT1}, {sTmp}, {vT1}")
            a(f"s_mov_b32 exec_lo, {(1<<24)-1}")
            a("s_mov_b32 exec_hi, 0")
            a(f"buffer_load_dword {vDUM}, {vT1}, s[84:87], 0 offen")
            a("s_mov_b64 exec, -1")
        elif opt.get('cpf',1)==3:
            a(f"s_lshr_b32 {sTmp}, s2, 3")
            a(f"s_and_b32 {sTmp}, {sTmp}, 3")
            a(f"s_mul_i32 {sTmp}, {sTmp}, {48*128}")
            a(f"v_lshlrev_b32 {vT1}, 7, {vL}")
            a(f"v_add_u32 {vT1}, {sTmp}, {vT1}")
            a(f"s_cmp_lg_u32 {sWave}, 3")
            a("s_cbranch_scc1 K_NOCPF")
            a("s_mov_b32 exec_hi, 0xffff")
            a(f"buffer_load_dword {vDUM}, {vT1}, s[84:87], 0 offen")
            a("s_mov_b64 exec, -1")
        a.label("K_NOCPF")
    a(f"v_lshrrev_b32 {vT2}, 5, {vL}")
    a(f"v_lshlrev_b32 {vHOFF}, 4, {vT2}")
    a(f"v_mov_b32 {vZ[0]}, 0")
    a(f"v_mov_b32 {vZ[1]}, 0")
    geometry(sWave)
    a(f"s_mul_i32 {sTmp}, s2, {CH*4}")
    a(f"s_mul_i32 {sTmp2}, {sWave}, {384*4}")
    a(f"s_add_u32 {sTmp}, {sTmp}, {sTmp2}")
    a(f"v_lshl_add_u32 {vT0}, {vL}, 3, {sTmp}")
    a("s_waitcnt lgkmcnt(0)")
    stamp(a,opt,0)
    srd(a,sD,"s72","s73",E*4)
    srd(a,sS,"s70","s71",E*4)
    a.c("every wave: six edges per lane, local edge = 384v + 128k + 2l + u; wave 7 also takes edges 3072 + l")
    DS_=D1[0:7]; SR_=D1[8:15]
    for k in range(3): a(f"buffer_load_dwordx2 {D1[2*k:2*k+2]}, {vT0}, {sD}, 0 offen offset:{512*k}{SNT}")
    for k in range(3): a(f"buffer_load_dwordx2 {D1[8+2*k:10+2*k]}, {vT0}, {sS}, 0 offen offset:{512*k}{SNT}")
    srd(a,sT4,"s64","s65",N*128)
    srd(a,sHw,"s64","s65",N*128)
    srd(a,sT4b,"s74","s75",145*128)
    a(f"s_cmp_eq_u32 {sWave}, 7")
    a("s_cbranch_scc1 K_S_W7")
    a(f"s_cmp_eq_u32 {sWave}, 4")
    a("s_cbranch_scc1 K_S_W4")
    a(f"s_cmp_lt_u32 {sWave}, 5")
    a("s_cbranch_scc1 K_S_COMMON")
    a.c("waves 5,6: private raw W2 copy + h rows for the source-node table")
    a(f"s_sub_u32 {sI}, {sWave}, 5")
    a(f"s_lshl_b32 {sC}, {sI}, 13")
    a(f"s_add_u32 {sC}, {sC}, {L_A2}")
    for i in range(8):
        a(f"s_add_u32 {sTmp}, {sC}, {i*1024}")
        a(f"s_mov_b32 m0, {sTmp}")
        a(f"s_mov_b32 {sTmp2}, {8192+i*1024}")
        a(f"buffer_load_dwordx4 {vL16}, {sT4b}, {sTmp2} offen lds")
    a(f"s_mul_i32 {sTmp}, s2, {NPW}")
    a(f"s_lshl_b32 {sTmp2}, {sI}, 5")
    a(f"s_add_u32 {sTmp}, {sTmp}, {sTmp2}")
    a(f"v_and_b32 {vT0}, 31, {vL}")
    a(f"v_add_u32 {vT0}, {sTmp}, {vT0}")
    a(f"v_lshl_add_u32 {vT0}, {vT0}, 7, {vHOFF}")
    for s_ in range(4): a(f"buffer_load_dwordx4 {HA[4*s_:4*s_+4]}, {vT0}, {sT4}, 0 offen offset:{32*s_}")
    a("s_branch K_S_COMMON")
    a.label("K_S_W4")
    a.c("wave 4: this workgroup's share of the L2 warm-up of pos and w_h (speed only)")
    a("s_load_dwordx2 s[82:83], s[0:1], 56")
    srd(a,sP,"s66","s67",N*6)
    a(f"s_lshr_b32 {sTmp}, s2, 3")
    a(f"s_and_b32 {sTmp}, {sTmp}, 31")
    a(f"s_mul_i32 {sTmp2}, {sTmp}, {19*128}")
    a(f"v_lshlrev_b32 {vT0}, 7, {vL}")
    a(f"v_add_u32 {vT1}, {sTmp2}, {vT0}")
    a(f"v_cmp_gt_u32 vcc, 19, {vL}")
    a(f"v_mov_b32 {vT2}, 0x40000000")
    a("s_waitcnt lgkmcnt(0)")
    a(f"v_cndmask_b32 {vT1}, {vT2}, {vT1}, vcc")
    a(f"buffer_load_dword {vDUM}, {vT1}, {sP}, 0 offen")
    srd(a,sT4b,"s82","s83",128*128)
    a(f"s_lshl_b32 {sTmp2}, {sTmp}, 9")
    a(f"v_add_u32 {vT1}, {sTmp2}, {vT0}")
    a(f"v_cmp_gt_u32 vcc, 4, {vL}")
    a("s_nop 1")
    a(f"v_cndmask_b32 {vT1}, {vT2}, {vT1}, vcc")
    a(f"buffer_load_dword {vDUM}, {vT1}, {sT4b}, 0 offen")
    a("s_branch K_S_COMMON")
    a.label("K_S_W7")
    a.c("wave 7: the last 64 edges, one-hot table, counters")
    a(f"s_mul_i32 {sTmp}, s2, {CH*4}")
    a(f"s_add_u32 {sTmp}, {sTmp}, {3072*4}")
    a(f"v_lshl_add_u32 {vT0}, {vL}, 2, {sTmp}")
    a(f"buffer_load_dword {D1[6]}, {vT0}, {sD}, 0 offen{SNT}")
    a(f"buffer_load_dword {D1[14]}, {vT0}, {sS}, 0 offen{SNT}")
    a(f"v_lshrrev_b32 {vT0}, 2, {vL}")
    a(f"v_and_b32 {vT1}, 3, {vL}")
    a(f"v_lshlrev_b32 {vT3}, 1, {vT1}")
    a(f"v_mov_b32 {vJ}, 0")
    a(f"v_cmp_eq_u32 vcc, {vT0}, {vT3}")
    a(f"v_mov_b32 {AD[0]}, 0x3f80")
    a(f"v_mov_b32 {AD[1]}, 0x3f800000")
    a(f"v_cndmask_b32 {vJ}, {vJ}, {AD[0]}, vcc")
    a(f"v_add_u32 {vT3}, 1, {vT3}")
    a(f"v_cmp_eq_u32 vcc, {vT0}, {vT3}")
    a("s_nop 1")
    a(f"v_cndmask_b32 {vJ}, {vJ}, {AD[1]}, vcc")
    a(f"v_cmp_eq_u32 vcc, 6, {vT0}")
    a(f"v_mov_b32 {AD[2]}, 0")
    a("s_nop 0")
    a(f"v_cndmask_b32 {AD[2]}, {AD[2]}, {AD[1]}, vcc")
    a(f"v_cmp_eq_u32 vcc, 3, {vT1}")
    a("s_nop 1")
    a(f"v_cndmask_b32 {vJ}, {vJ}, {AD[2]}, vcc")
    a(f"v_cmp_lt_u32 vcc, 31, {vL}")
    a(f"v_lshlrev_b32 {vT0}, 2, {vL}")
    a("s_nop 0")
    a(f"v_cndmask_b32 {vJ}, {vJ}, {vZ[0]}, vcc")
    a(f"ds_write_b32 {vT0}, {vJ}")
    a.label("K_S_COMMON")
    a(f"s_mov_b32 {sMaskE}, {'0' if opt.get('noE',0) else '0xffffffe0'}")
    a(f"s_mov_b32 {s128}, {0 if opt.get('noH',0) else 128}")
    a(f"s_mov_b32 {sK}, {KW}")
    a(f"s_mov_b32 {s3125}, 3125")
    a(f"s_mov_b32 {sMark}, {MARK}")
    a(f"s_mov_b32 {sCAPq}, {CAPX//4}")
    a(f"s_mov_b32 {sMode}, 0")
    a(f"s_mov_b32 {sChunk}, 0")
    a(f"v_mov_b32 {vOne}, 1")
    a(f"v_mov_b32 {v511}, 511")
    a(f"v_mov_b32 {aL1s}, 0x40000000")
    a(f"v_lshrrev_b32 {vT2}, 5, {vL}")
    a(f"v_bfe_u32 {vT0}, {vL}, 2, 2")
    a(f"v_lshl_add_u32 {vT0}, {vT2}, 3, {vT0}")
    a(f"v_lshlrev_b32 {vTRW}, 7, {vT0}")
    a(f"v_bfe_u32 {vT0}, {vL}, 4, 1")
    a(f"v_lshl_add_u32 {vTRW}, {vT0}, 5, {vTRW}")
    a(f"v_and_b32 {vT0}, 3, {vL}")
    a(f"v_lshl_add_u32 {vTRW}, {vT0}, 3, {vTRW}")
    a.c("LDS init: cell image = sentinel, counters = 0")
    for i in range(4): a(f"v_mov_b32 {WH[i]}, -1")
    a(f"v_lshlrev_b32 {vT0}, 6, v0")
    a(f"v_add_u32 {vT0}, {L_HST}, {vT0}")
    for i in range(4): a(f"ds_write_b128 {vT0}, {WH[0:4]} offset:{16*i}")
    a(f"v_and_b32 {vT0}, 0xff, v0")
    a(f"v_lshlrev_b32 {vT0}, 2, {vT0}")
    a(f"ds_write_b32 {vT0}, {vZ[0]} offset:{L_RES}")
    srd(a,sW,"s80","s81",WSB(opt))
    srd(a,sP,"s66","s67",N*6)
    srd(a,sE,"s68","s69",E*32)
    srd(a,sO,"s76","s77",OUT_BYTES)
    srd(a,sT4c,"s78","s79",256)
    a(f"s_add_u32 {sB[0]}, s80, {BPT}")
    a(f"s_addc_u32 {sB[1]}, s81, 0")
    a(f"s_and_b32 {sB[1]}, {sB[1]}, 0xffff")
    a(f"s_mov_b32 {sB[2]}, {N*128}")
    a(f"s_mov_b32 {sB[3]}, 0x20000")
    if opt.get('tlb',0):
        a.c("wave 2 touches one line per 2 MiB of the buffers used later (address translation warm-up, speed only)")
        a(f"s_cmp_lg_u32 {sWave}, 2")
        a("s_cbranch_scc1 K_NOTLB")
        a(f"v_lshlrev_b32 {vT0}, 21, {vL}")
        a(f"v_mov_b32 {vT1}, 0x40000000")
        a(f"v_cmp_gt_u32 vcc, 13, {vL}")
        a("s_nop 1")
        a(f"v_cndmask_b32 {vT0}, {vT1}, {vT0}, vcc")
        a(f"buffer_load_dword {vDUM}, {vT0}, {sE}, 0 offen")
        a(f"buffer_load_dword {vDUM}, {vT0}, {sW}, 0 offen")
        a(f"buffer_load_dword {vDUM}, {vT0}, {sO}, 0 offen")
        a.label("K_NOTLB")
    a.c("workgroup 0 publishes this launch's hand-off tag")
    a(f"s_or_b32 {sTmp}, s2, {sWave}")
    a(f"s_cmp_lg_u32 {sTmp}, 0")
    a("s_cbranch_scc1 K_S_NOTAG")
    a("s_memrealtime s[100:101]")
    a("s_waitcnt lgkmcnt(0)")
    a("s_or_b32 s100, s100, 1")
    a(f"v_mov_b32 {vT0}, s100")
    a(f"buffer_store_dword {vT0}, {vZ[0]}, {sT4c}, 0 offen sc1")
    a.label("K_S_NOTAG")
    a("s_waitcnt lgkmcnt(0)")
    a("s_barrier")
    a(f"s_mul_i32 {sTmp}, s2, {CH}")
    a(f"s_sub_u32 {sLim}, {E}, {sTmp}")
    a(f"s_min_u32 {sLim}, {sLim}, {CH}")
    B4=D2[0:7]; RC=M[0:7]; RK1=D2[8:15]
    def bin_edges(nrec, el_of, waitcnt, masked):
        if masked:
            for u in range(nrec):
                el_of(u,vT1)
                a(f"v_cmp_gt_u32 {sMask[u]}, {sLim}, {vT1}")
        if waitcnt is not None: a(f"s_waitcnt vmcnt({waitcnt})")
        stamp(a,opt,1)
        for u in range(nrec):
            d=DS_[u]; s_=SR_[u]
            a(f"v_mul_hi_u32 {vT2}, {d}, {sK}")
            el_of(u,vT1)
            a(f"v_lshl_or_b32 {RC[u]}, {s_}, 12, {vT1}")
            a(f"v_lshrrev_b32 {B4[u]}, 1, {vT2}")
            a(f"v_mad_u32_u24 {vT3}, {vT2}, {s3125}, {v511}")
            a(f"v_and_b32 {B4[u]}, 0x3fc, {B4[u]}")
            a(f"v_lshrrev_b32 {vT3}, 9, {vT3}")
            if masked: a(f"s_mov_b64 exec, {sMask[u]}")
            a(f"ds_add_rtn_u32 {RK1[u]}, {B4[u]}, {vOne} offset:{L_RES}")
            if masked: a("s_mov_b64 exec, -1")
            a(f"v_sub_u32 {vT3}, {d}, {vT3}")
            a(f"v_and_b32 {vT2}, 7, {vT2}")
            a(f"v_lshl_or_b32 {vT3}, {vT2}, 3, {vT3}")
            a(f"v_lshl_or_b32 {RC[u]}, {vT3}, 26, {RC[u]}")
        a(f"v_mov_b32 {vT3}, {L_HST}")
        a(f"v_mov_b32 {vJ}, {L_NRES+4}")
        for u in range(nrec):
            if not masked: a(f"s_waitcnt lgkmcnt({nrec-1})")
            elif u==0: a("s_waitcnt lgkmcnt(0)")
            a(f"v_cmp_gt_u32 vcc, 32, {RK1[u]}")
            a(f"v_lshlrev_b32 {vT1}, 3, {RK1[u]}")
            a(f"v_lshrrev_b32 {vT2}, 2, {RK1[u]}")
            a(f"v_and_b32 {vT1}, 0x78, {vT1}")
            a(f"v_lshl_add_u32 {AD[0]}, {B4[u]}, 5, {vT3}")
            a(f"v_and_or_b32 {vT1}, {vT2}, 4, {vT1}")
            a(f"v_add_u32 {vT1}, {vT1}, {AD[0]}")
            a(f"v_cndmask_b32 {vT1}, {vJ}, {vT1}, vcc")
            if masked: a(f"s_mov_b64 exec, {sMask[u]}")
            a(f"ds_write_b32 {vT1}, {RC[u]}")
            if masked: a("s_mov_b64 exec, -1")
    a.c("wait for this wave's edges (younger loads: 12 for waves 5,6; 2 for wave 4; the tag store of workgroup 0)")
    a(f"s_mul_i32 {sTmp}, {sWave}, 384")
    a(f"v_lshl_add_u32 {vT0}, {vL}, 1, {sTmp}")
    a(f"s_cmp_eq_u32 {sWave}, 4")
    a("s_cbranch_scc1 K_S_WT4")
    a(f"s_sub_u32 {sTmp}, {sWave}, 5")
    a(f"s_cmp_lt_u32 {sTmp}, 2")
    a("s_cbranch_scc1 K_S_WT56")
    if opt.get('tlb',0):
        a(f"s_cmp_eq_u32 {sWave}, 2")
        a("s_cbranch_scc1 K_S_WT2")
    a("s_waitcnt vmcnt(0)")
    a("s_branch K_S_WTD")
    if opt.get('tlb',0):
        a.label("K_S_WT2")
        a("s_waitcnt vmcnt(3)")
        a("s_branch K_S_WTD")
    a.label("K_S_WT4")
    a("s_waitcnt vmcnt(2)")
    a("s_branch K_S_WTD")
    a.label("K_S_WT56")
    a("s_waitcnt vmcnt(12)")
    a.label("K_S_WTD")
    def el6(u,r): a(f"v_add_u32 {r}, {128*(u>>1)+(u&1)}, {vT0}")
    def el7(u,r):
        if u<6: el6(u,r)
        else: a(f"v_add_u32 {r}, 3072, {vL}")
    a(f"s_cmp_lt_u32 {sLim}, {CH}")
    a("s_cbranch_scc1 K_S_APPM")
    a(f"s_cmp_eq_u32 {sWave}, 7")
    a("s_cbranch_scc1 K_S_APP7")
    bin_edges(6, el6, None, False)
    a("s_branch K_S_APPD")
    a.label("K_S_APP7")
    bin_edges(7, el7, None, False)
    a("s_branch K_S_APPD")
    a.label("K_S_APPM")
    a(f"s_cmp_eq_u32 {sWave}, 7")
    a("s_cbranch_scc1 K_S_APPM7")
    bin_edges(6, el6, None, True)
    a("s_branch K_S_APPD")
    a.label("K_S_APPM7")
    bin_edges(7, el7, None, True)
    a.label("K_S_APPD")
    load_hwin()
    a(f"s_cmp_lg_u32 {sWave}, 7")
    a("s_cbranch_scc1 K_S_NORAW")
    a.c("wave 7: raw w_e -> LDS (needed after barrier C)")
    for i in range(19):
        a(f"s_mov_b32 {sTmp}, {L_RAWW+i*1024}")
        a(f"s_mov_b32 m0, {sTmp}")
        a(f"s_mov_b32 {sTmp2}, {i*1024}")
        a(f"buffer_load_dwordx4 {vL16}, {sT4b}, {sTmp2} offen lds")
    a.label("K_S_NORAW")
    a.c("waves 0, 5, 6 fetch the hand-off tag")
    a(f"s_lshl_b32 {sTmp}, 1, {sWave}")
    a(f"s_and_b32 {sTmp}, {sTmp}, 0x61")
    a("s_cbranch_scc0 K_S_NOTAG2")
    a(f"buffer_load_dword {aE}, {vZ[0]}, {sT4c}, 0 offen sc1")
    a.label("K_S_NOTAG2")
    a("s_waitcnt lgkmcnt(0)")
    stamp(a,opt,14) if not opt.get('dbgfill',0) else None
    a("s_barrier")
    stamp(a,opt,2)
    def setup_static():
        a(f"v_and_b32 {vT1}, 31, {vL}")
        a(f"v_lshrrev_b32 {vT2}, 5, {vL}")
        a(f"v_lshlrev_b32 {vT0}, 3, {vT2}")
        a(f"v_sub_u32 {vT0}, {vT1}, {vT0}")
        a(f"v_mov_b32 {AD[2]}, 0x3f80")
        a(f"v_mov_b32 {AD[3]}, 0x3f800000")
        for sp in range(2):
            for r in range(4):
                k0=16*sp+2*r
                a(f"v_cmp_eq_u32 vcc, {k0}, {vT0}")
                a(f"v_cmp_eq_u32 {sSave}, {k0+1}, {vT0}")
                a("s_nop 0")
                a(f"v_cndmask_b32 {ID[4*sp+r]}, {vZ[0]}, {AD[2]}, vcc")
                a(f"v_cndmask_b32 {ID[4*sp+r]}, {ID[4*sp+r]}, {AD[3]}, {sSave}")
        a(f"v_cmp_lt_u32 vcc, 31, {vL}")
        a("s_nop 1")
        for i in range(1,4): a(f"v_mov_b32 {ONE[i]}, 0")
        a(f"v_cndmask_b32 {ONE[0]}, {AD[2]}, {vZ[0]}, vcc")
        for i in range(3):
            a(f"v_mov_b32 {PS[i]}, 0"); a(f"v_mov_b32 {PD[i]}, 0")
        a.c("static per-lane addresses of the main loop (window offsets are added after the assignment)")
        a(f"v_and_b32 {vT1}, 31, {vL}")
        a(f"v_lshrrev_b32 {vT2}, 5, {vL}")
        a(f"v_mov_b32 {vT3}, {L_A2}")
        a(f"v_lshl_add_u32 {vE64}, {vT1}, 6, {vT3}")
        a(f"v_bfe_u32 {vT0}, {vL}, 2, 2")
        a(f"v_lshl_add_u32 {vT0}, {vT2}, 2, {vT0}")
        a(f"v_lshl_add_u32 {vTR}, {vT0}, 6, {vT3}")
        a(f"v_bfe_u32 {vT0}, {vL}, 4, 1")
        a(f"v_lshl_add_u32 {vTR}, {vT0}, 5, {vTR}")
        a(f"v_and_b32 {vT0}, 3, {vL}")
        a(f"v_lshl_add_u32 {vTR}, {vT0}, 3, {vTR}")
        a(f"s_lshl_b32 {sHST}, {sWave}, 12")
        a(f"s_add_u32 {sHST}, {sHST}, {L_HST}")
        for i in range(4): a(f"s_add_u32 {sM0[i]}, {sHST}, {1024*i}")
        a(f"v_and_b32 {vT0}, 3, {vT1}")
        a(f"v_bfe_u32 {vT3}, {vT1}, 4, 1")
        a(f"v_lshl_or_b32 {vT3}, {vT3}, 2, {vT0}")
        a(f"v_lshlrev_b32 {vT0}, 3, {vT0}")
        a(f"v_lshrrev_b32 {vJ}, 2, {vT1}")
        a(f"v_add_u32 {vT0}, {vT0}, {vJ}")
        a(f"v_lshl_add_u32 {vT0}, {vT0}, 7, {sHST}")
        for s_ in range(4):
            a(f"v_add_u32 {vJ}, {2*s_}, {vT2}")
            a(f"v_xor_b32 {vJ}, {vJ}, {vT3}")
            a(f"v_lshl_add_u32 {vHA[s_]}, {vJ}, 4, {vT0}")
        a(f"v_and_b32 {vT0}, 7, {vL}")
        a(f"v_lshlrev_b32 {vT3}, 2, {vT2}")
        a(f"v_xor_b32 {vT0}, {vT0}, {vT3}")
        for i in range(4):
            a(f"v_xor_b32 {vJ}, {i}, {vT0}")
            a(f"v_lshlrev_b32 {vKD[i]}, 4, {vJ}")
        a(f"s_mov_b32 {sCAP}, {CAP}")
        a(f"s_sub_u32 {sTgt}, 11, {sWave}")
        a(f"s_cmp_lt_u32 {sWave}, 4")
        a(f"s_cselect_b32 {sTgt}, {sWave}, {sTgt}")
        a(f"v_lshrrev_b32 {aPS}, 3, {vL}")
        a(f"v_and_b32 {aPD}, 7, {vL}")
        a(f"v_lshlrev_b32 {aOH}, 2, {aPS}")
        a(f"v_lshlrev_b32 {SS}, 2, {aPD}")
    a(f"s_cmp_gt_u32 {sWave}, 3")
    a("s_cbranch_scc1 K_S_NOCOPY")
    a.c("waves 0..3 copy the cell image out: eight 16 B pieces per thread")
    a(f"v_lshlrev_b32 {vT0}, 4, v0")
    a(f"v_add_u32 {vT0}, {L_HST}, {vT0}")
    a(f"v_lshrrev_b32 {vT1}, 3, v0")
    a(f"v_lshlrev_b32 {vT2}, 2, {vT1}")
    CP=[D1[4*k:4*k+4] for k in range(8)]
    for k in range(4):
        a(f"ds_read_b128 {CP[k]}, {vT0} offset:{4096*k}")
        a(f"ds_read_b32 {D2[k]}, {vT2} offset:{L_RES+128*k}")
    a(f"v_and_b32 {vT3}, 7, v0")
    a(f"v_cmp_eq_u32 vcc, 0, {vT3}")
    a(f"v_mov_b32 {vJ}, -1")
    a(f"v_lshlrev_b32 {vT1}, 15, {vT1}")
    a(f"v_cndmask_b32_e64 {AD[1]}, -1, -2, vcc")
    a(f"v_lshl_add_u32 {vT1}, {vT3}, 4, {vT1}")
    a(f"s_lshl_b32 {sTmp}, s2, 7")
    for k in range(8):
        if k<4:
            a(f"ds_read_b128 {CP[k+4]}, {vT0} offset:{4096*(k+4)}")
            a(f"ds_read_b32 {D2[k+4]}, {vT2} offset:{L_RES+128*(k+4)}")
            a("s_waitcnt lgkmcnt(8)")
        else:
            a(f"s_waitcnt lgkmcnt({2*(7-k)})")
        a(f"v_cmp_lt_u32 vcc, 32, {D2[k]}")
        a(f"s_add_u32 {sTmp2}, {sTmp}, {k*32*32768}")
        a("s_nop 0")
        a(f"v_cndmask_b32 {CP[k][0]}, {CP[k][0]}, {AD[1]}, vcc")
        for i in range(1,4): a(f"v_cndmask_b32 {CP[k][i]}, {CP[k][i]}, {vJ}, vcc")
        a(f"buffer_store_dwordx4 {CP[k]}, {vT1}, {sW}, {sTmp2} offen{ST}")
    a("s_branch K_S_STATIC")
    a.label("K_S_NOCOPY")
    a(f"s_sub_u32 {sTmp}, {sWave}, 5")
    a(f"s_cmp_lt_u32 {sTmp}, 2")
    a("s_cbranch_scc0 K_S_POS")
    a.c("waves 5,6: source-node table B' = -log2e * h @ W2 for 32 nodes")
    a(f"v_add_u32 {vT0}, {sC}, {vTRW}")
    a("s_waitcnt vmcnt(5)")
    for s_ in range(4):
        for x in range(2):
            for th in range(2):
                r=(s_*2+x)*4+2*th
                a(f"ds_read_b64_tr_b16 {D1[r:r+2]}, {vT0} offset:{s_*2048+th*512+x*64}")
    a("s_waitcnt lgkmcnt(0)")
    for x in range(2):
        for s_ in range(4):
            r=(s_*2+x)*4
            mfma(a,D2[16*x:16*x+16],D1[r:r+4],HA[4*s_:4*s_+4],"0" if s_==0 else D2[16*x:16*x+16])
    a(f"s_mul_i32 {sTmp}, {sI}, {32*144}")
    a(f"s_add_u32 {sTmp}, {sTmp}, {L_BST}")
    a(f"v_and_b32 {vT1}, 31, {vL}")
    a(f"v_mul_u32_u24 {vT1}, 144, {vT1}")
    a(f"v_lshrrev_b32 {vT2}, 5, {vL}")
    a(f"v_lshl_add_u32 {vT1}, {vT2}, 3, {vT1}")
    a(f"v_add_u32 {vT1}, {sTmp}, {vT1}")
    a(f"v_lshrrev_b32 {vT2}, 3, {vL}")
    a(f"v_mul_u32_u24 {vT3}, 144, {vT2}")
    a(f"v_and_b32 {vJ}, 7, {vL}")
    a(f"v_lshl_add_u32 {vT3}, {vJ}, 4, {vT3}")
    a(f"v_add_u32 {vT3}, {sTmp}, {vT3}")
    a(f"s_mov_b32 {sTmp2}, {NEG_LOG2E}")
    a.nop(4)
    for x in range(2):
        for q in range(16): a(f"v_mul_f32 {D2[16*x+q]}, {sTmp2}, {D2[16*x+q]}")
        for qq in range(4):
            b=16*x+4*qq
            a(f"v_cvt_pk_bf16_f32 {E01[0]}, {D2[b]}, {D2[b+1]}")
            a(f"v_cvt_pk_bf16_f32 {E01[1]}, {D2[b+2]}, {D2[b+3]}")
            a(f"ds_write_b64 {vT1}, {E01} offset:{x*64+qq*16}")
            a("s_nop 0")
    for i in range(4): a(f"ds_read_b128 {D1[4*i:4*i+4]}, {vT3} offset:{i*8*144}")
    a(f"s_lshl_b32 {sTmp2}, {sI}, 5")
    a(f"v_add_u32 {vT2}, {sTmp2}, {vT2}")
    a(f"s_mul_i32 {sTmp}, s2, {NPW}")
    a(f"v_add_u32 {vT0}, {sTmp}, {vT2}")
    a(f"v_lshlrev_b32 {vT1}, 7, {vT0}")
    a(f"v_lshl_add_u32 {vT1}, {vJ}, 4, {vT1}")
    a(f"v_mov_b32 {vJ}, 0x40000000")
    a("s_waitcnt lgkmcnt(0)")
    for i in range(4):
        a(f"v_add_u32 {vT3}, {8*i}, {vT2}")
        a(f"v_cmp_gt_u32 vcc, {NPW}, {vT3}")
        a(f"v_add_u32 {AD[0]}, {1024*i}, {vT1}")
        a("s_nop 0")
        a(f"v_cndmask_b32 {AD[0]}, {vJ}, {AD[0]}, vcc")
        a(f"buffer_store_dwordx4 {D1[4*i:4*i+4]}, {AD[0]}, {sB}, 0 offen{ST}")
    a("s_waitcnt vmcnt(4)")
    a("s_branch K_S_STATIC")
    a.label("K_S_POS")
    a.label("K_S_STATIC")
    setup_static()
    a.c("waves 0..3: every cell store has left; waves 4, 7: raw w_e / window rows landed; waves 5, 6 signal their rows later")
    a(f"s_sub_u32 {sTmp}, {sWave}, 5")
    a(f"s_cmp_lt_u32 {sTmp}, 2")
    a("s_cbranch_scc1 K_S_PREC")
    a("s_waitcnt vmcnt(0)")
    a.label("K_S_PREC")
    a("s_waitcnt lgkmcnt(0)")
    stamp(a,opt,15) if not opt.get('dbgfill',0) else None
    a("s_barrier")
    stamp(a,opt,3)
    def have_tag(lbl):
        a(f"s_mov_b32 {sPoll}, 0")
        a.label(lbl)
        a(f"v_readfirstlane_b32 {sNonce}, {aE}")
        a("s_nop 3")
        a(f"s_cmp_lg_u32 {sNonce}, 0")
        a(f"s_cbranch_scc1 {lbl}_OK")
        a(f"s_add_u32 {sPoll}, {sPoll}, 1")
        a(f"s_cmp_gt_u32 {sPoll}, 200000")
        a(f"s_cbranch_scc1 {lbl}_OK")
        a("s_sleep 2")
        a(f"buffer_load_dword {aE}, {vZ[0]}, {sT4c}, 0 offen sc1")
        a("s_waitcnt vmcnt(0)")
        a(f"s_branch {lbl}")
        a.label(f"{lbl}_OK")
    a(f"s_cmp_lg_u32 {sWave}, 0")
    a("s_cbranch_scc1 K_G_NOT0")
    a.c("wave 0: signal this workgroup's cells, publish the tag to the workgroup")
    have_tag("K_G_TAG")
    a(f"s_lshl_b32 {sTmp}, s2, 4")
    a(f"s_add_u32 {sTmp}, {sTmp}, {FLG}")
    a(f"v_mov_b32 {vT0}, {sNonce}")
    a(f"buffer_store_dword {vT0}, {vZ[0]}, {sW}, {sTmp} offen sc1")
    a(f"ds_write_b32 {vZ[0]}, {vT0} offset:{L_NRES+8}")
    a("s_branch K_G_SETUP")
    a.label("K_G_NOT0")
    a(f"s_cmp_lt_u32 {sWave}, 4")
    a("s_cbranch_scc1 K_G_WH")
    a(f"s_sub_u32 {sTmp}, {sWave}, 5")
    a(f"s_cmp_lt_u32 {sTmp}, 2")
    a("s_cbranch_scc1 K_G_SETUP")
    a.c("waves 4, 7: pos table -> LDS (37 pieces each)")
    a(f"s_cmp_eq_u32 {sWave}, 7")
    a(f"s_cselect_b32 {sI}, {37*1024}, 0")
    for i in range(37):
        a(f"s_add_u32 {sTmp}, {sI}, {i*1024}")
        a(f"s_add_u32 {sTmp2}, {sTmp}, {L_POS}")
        a(f"s_mov_b32 m0, {sTmp2}")
        a("s_nop 0")
        a(f"buffer_load_dwordx4 {vL16}, {sP}, {sTmp} offen lds")
    a("s_branch K_G_SETUP")
    a.label("K_G_WH")
    a.c("waves 1..3: raw w_h -> staging area")
    a("s_load_dwordx2 s[64:65], s[0:1], 56")
    a(f"s_sub_u32 {sI}, {sWave}, 1")
    a("s_waitcnt lgkmcnt(0)")
    srd(a,sT4b,"s64","s65",128*128)
    for k in range(6):
        a(f"s_add_u32 {sTmp}, {sI}, {3*k}")
        a(f"s_min_u32 {sTmp}, {sTmp}, 15")
        a(f"s_lshl_b32 {sTmp}, {sTmp}, 10")
        a(f"s_add_u32 {sTmp2}, {sTmp}, {L_HST}")
        a(f"s_mov_b32 m0, {sTmp2}")
        a("s_nop 0")
        a(f"buffer_load_dwordx4 {vL16}, {sT4b}, {sTmp} offen lds")
    a.label("K_G_SETUP")
    a.c("operands from raw w_e: W1 (for A'), W4', wd'")
    W1=D2
    a(f"v_add_u32 {vT0}, {L_RAWW}, {vTRW}")
    for s_ in range(4):
        for x in range(2):
            for th in range(2):
                r=(s_*2+x)*4+2*th
                a(f"ds_read_b64_tr_b16 {W1[r:r+2]}, {vT0} offset:{s_*2048+th*512+x*64}")
    W4R=HA[0:8]
    for x in range(2):
        for th in range(2):
            a(f"ds_read_b64_tr_b16 {W4R[4*x+2*th:4*x+2*th+2]}, {vT0} offset:{129*128+th*512+x*64}")
    WD=M[0:2]
    a(f"v_mov_b32 {WD[0]}, 0")
    a(f"v_mov_b32 {WD[1]}, 0")
    a(f"v_and_b32 {vT1}, 31, {vL}")
    a(f"v_lshlrev_b32 {vT2}, 1, {vT1}")
    a(f"v_add_u32 {vT2}, {L_RAWW+128*128}, {vT2}")
    a(f"ds_read_u16_d16_hi {WD[0]}, {vT2}")
    a(f"ds_read_u16_d16_hi {WD[1]}, {vT2} offset:64")
    a("s_waitcnt lgkmcnt(0)")
    for x in range(2):
        for s_ in range(4):
            mfma(a,D1[16*x:16*x+16],HW[4*s_:4*s_+4],W1[(s_*2+x)*4:(s_*2+x)*4+4],"0" if s_==0 else D1[16*x:16*x+16])
    a(f"s_mov_b32 {sTmp}, {NEG_LOG2E}")
    for i in range(8):
        a(f"v_lshlrev_b32 {vT0}, 16, {W4R[i]}")
        a(f"v_and_b32 {vT2}, 0xffff0000, {W4R[i]}")
        a(f"v_mul_f32 {vT0}, {sTmp}, {vT0}")
        a(f"v_mul_f32 {vT2}, {sTmp}, {vT2}")
        a(f"v_cvt_pk_bf16_f32 {WE[i]}, {vT0}, {vT2}")
    a(f"v_cmp_lt_u32 vcc, 31, {vL}")
    for x in range(2):
        a(f"v_mul_f32 {WD[x]}, {sTmp}, {WD[x]}")
        a(f"v_cvt_pk_bf16_f32 {vT0}, {WD[x]}, {WD[x]}")
        a(f"v_and_b32 {vT0}, 0xffff0000, {vT0}")
        a(f"v_sub_f32 {vT2}, {WD[x]}, {vT0}")
        a(f"v_cvt_pk_bf16_f32 {vT2}, {vT2}, {vT2}")
        a(f"v_and_b32 {vT2}, 0xffff0000, {vT2}")
        a(f"v_cndmask_b32 {WD[x]}, {vT0}, {vT2}, vcc")
    a(f"s_cmp_lg_u32 {sWave}, 0")
    a("s_cbranch_scc1 K_G_NOEARLY")
    a(f"s_mov_b32 {sTmp2}, {FLG}")
    for k in range(4): a(f"buffer_load_dword {AD[k]}, {vL16}, {sW}, {sTmp2} offen offset:{1024*k} sc1")
    a.label("K_G_NOEARLY")
    a(f"v_cmp_lt_u32 vcc, 31, {vL}")
    a(f"v_mov_b32 {vJ}, 0xffff")
    for x in range(2):
        for r in range(4):
            q0,q1=D1[16*x+2*r],D1[16*x+2*r+1]
            a(f"v_mul_f32 {q0}, {sTmp}, {q0}")
            a(f"v_mul_f32 {q1}, {sTmp}, {q1}")
            a(f"v_cvt_pk_bf16_f32 {vT0}, {q0}, {q1}")
            a(f"v_lshlrev_b32 {vT1}, 16, {vT0}")
            a(f"v_and_b32 {vT2}, 0xffff0000, {vT0}")
            a(f"v_sub_f32 {vT1}, {q0}, {vT1}")
            a(f"v_sub_f32 {vT2}, {q1}, {vT2}")
            a(f"v_cvt_pk_bf16_f32 {vT1}, {vT1}, {vT2}")
            a(f"v_cndmask_b32 {WA[4*x+r]}, {vT0}, {vT1}, vcc")
        a(f"v_bfi_b32 {WA[4*x+3]}, {vJ}, {WA[4*x+3]}, {WD[x]}")
    a(f"s_lshl_b32 {sTmp}, {sWave}, 11")
    a(f"s_add_u32 {sTmp}, {sTmp}, {L_A2}")
    a(f"v_lshl_add_u32 {vT0}, {vL}, 5, {sTmp}")
    a(f"ds_write_b128 {vT0}, {WA[0:4]}")
    a(f"ds_write_b128 {vT0}, {WA[4:8]} offset:16")
    for i in range(32): a(f"v_mov_b32 {D2[i]}, 0")
    a(f"s_sub_u32 {sTmp}, {sWave}, 5")
    a(f"s_cmp_lt_u32 {sTmp}, 2")
    a("s_cbranch_scc0 K_G_NOFLG2")
    a.c("waves 5,6: their rows have left -> signal them")
    a("s_waitcnt vmcnt(0)")
    have_tag("K_G_TAG2")
    a(f"s_lshl_b32 {sTmp}, s2, 1")
    a(f"s_add_u32 {sTmp}, {sTmp}, {sWave}")
    a(f"s_sub_u32 {sTmp}, {sTmp}, 5")
    a(f"s_lshl_b32 {sTmp}, {sTmp}, 4")
    a(f"s_add_u32 {sTmp}, {sTmp}, {FLG2}")
    a(f"v_mov_b32 {vT0}, {sNonce}")
    a(f"buffer_store_dword {vT0}, {vZ[0]}, {sW}, {sTmp} offen sc1")
    a.label("K_G_NOFLG2")
    a(f"s_cmp_lg_u32 {sWave}, 0")
    a("s_cbranch_scc1 K_G_WAIT")
    a.c("wave 0: wait for all 256 hand-offs (the first round of flag loads is already in flight)")
    a(f"s_mov_b32 {sTmp2}, {FLG}")
    a("s_branch K_G_POLL1")
    a.label("K_G_POLL")
    for k in range(4): a(f"buffer_load_dword {AD[k]}, {vL16}, {sW}, {sTmp2} offen offset:{1024*k} sc1")
    a.label("K_G_POLL1")
    a("s_waitcnt vmcnt(0)")
    a(f"v_cmp_eq_u32 {sAny}, {sNonce}, {AD[0]}")
    a(f"v_cmp_eq_u32 {sSave}, {sNonce}, {AD[1]}")
    a(f"v_cmp_eq_u32 vcc, {sNonce}, {AD[2]}")
    a("s_nop 1")
    a(f"s_and_b64 {sAny}, {sAny}, {sSave}")
    a(f"v_cmp_eq_u32 {sSave}, {sNonce}, {AD[3]}")
    a(f"s_and_b64 {sAny}, {sAny}, vcc")
    a("s_nop 1")
    a(f"s_and_b64 {sAny}, {sAny}, {sSave}")
    a(f"s_cmp_eq_u64 {sAny}, -1")
    a("s_cbranch_scc1 K_G_WAIT")
    a(f"s_add_u32 {sPoll}, {sPoll}, 1")
    a(f"s_cmp_lt_u32 {sPoll}, 200000")
    a("s_cbranch_scc1 K_G_POLL")
    a.label("K_G_WAIT")
    a.c("waves 4 and 7 keep their pos pieces in flight: their cell loads return behind them")
    a(f"s_lshl_b32 {sTmp}, 1, {sWave}")
    a(f"s_and_b32 {sTmp}, {sTmp}, 0x90")
    a("s_cbranch_scc1 K_G_WAIT47")
    a("s_waitcnt vmcnt(0)")
    a.label("K_G_WAIT47")
    a("s_waitcnt lgkmcnt(0)")
    for _ in range(opt.get('delay',0)): a("s_sleep 32")
    a("s_barrier")
    stamp(a,opt,4)
    RECP=D1[0:16]; REC=[RECP[2*i] for i in range(8)]+[RECP[2*i+1] for i in range(8)]; WAD=D1[16:32]; RK=HA
    a.c("cell records of this bin: pair s holds slots m and 16+m (m = l&15) of cell 32s+4v+(l>>4)")
    a(f"s_lshl_b32 {sTmp}, s2, 15")
    a(f"s_lshl_b32 {sTmp2}, {sWave}, 9")
    a(f"s_add_u32 {sTmp}, {sTmp}, {sTmp2}")
    a(f"v_lshl_add_u32 {vT0}, {vL}, 3, {sTmp}")
    ROT=opt.get('rot',0)
    if ROT==1: a(f"s_getreg_b32 {sRot}, hwreg(HW_REG_XCC_ID, 0, 4)")
    elif ROT==2: a(f"s_and_b32 {sRot}, s2, 7")
    elif ROT==3:
        a(f"s_getreg_b32 {sRot}, hwreg(HW_REG_XCC_ID, 0, 4)")
        a(f"s_and_b32 {sRot}, {sRot}, 3")
        a(f"s_lshl_b32 {sRot}, {sRot}, 1")
    else: a(f"s_mov_b32 {sRot}, 0")
    def pair_index(dst,s_):
        a(f"s_add_u32 {dst}, {sRot}, {s_}")
        a(f"s_and_b32 {dst}, {dst}, 7")
    for s_ in range(8):
        pair_index(sTmp,s_)
        a(f"s_lshl_b32 {sTmp}, {sTmp}, 12")
        a(f"buffer_load_dwordx2 {RECP[2*s_:2*s_+2]}, {vT0}, {sW}, {sTmp} offen{LD}")
    a(f"v_lshlrev_b32 {vT2}, 1, {vL}")
    a(f"v_and_b32 {vT2}, 62, {vT2}")
    a("s_load_dwordx2 s[98:99], s[0:1], 48")
    a.c("node-update weights (transposed reads of raw w_h), waves 0..3 use them")
    a(f"s_and_b32 {sTmp}, {sWave}, 1")
    a(f"s_lshl_b32 {sTmp}, {sTmp}, 6")
    a(f"s_add_u32 {sTmp}, {sTmp}, {L_HST}")
    a(f"v_add_u32 {vT1}, {sTmp}, {vTRW}")
    for s_ in range(8):
        for th in range(2):
            a(f"ds_read_b64_tr_b16 {WH[4*s_+2*th:4*s_+2*th+2]}, {vT1} offset:{s_*2048+th*512}")
            if (2*s_+th)==7: a("s_waitcnt lgkmcnt(0)")
    srd(a,sT4,"s98","s99",128)
    a(f"v_mov_b32 {WX[0]}, 0")
    a(f"v_mov_b32 {WX[1]}, 0")
    a(f"buffer_load_short_d16_hi {WX[0]}, {vT2}, {sT4}, 0 offen")
    a(f"buffer_load_short_d16_hi {WX[1]}, {vT2}, {sT4}, 0 offen offset:64")
    a("s_waitcnt vmcnt(2)")
    stamp(a,opt,5)
    a(f"s_mov_b64 {sAny}, 0")
    for s_ in range(16):
        a(f"v_cmp_gt_u32 {sMask[s_]}, {sMark}, {REC[s_]}")
        if s_<8:
            a(f"v_cmp_eq_u32 vcc, {sMark}, {REC[s_]}")
        a(f"v_lshrrev_b32 {WAD[s_]}, 27, {REC[s_]}")
        a(f"v_and_b32 {WAD[s_]}, 0x1c, {WAD[s_]}")
        if s_<8: a(f"s_or_b64 {sAny}, {sAny}, vcc")
    order=[x for p in range(8) for x in (p,8+p)]
    for n_,s_ in enumerate(order):
        a(f"s_mov_b64 exec, {sMask[s_]}")
        if s_>=8: a(f"s_cbranch_execz K2_A{s_}")
        a(f"ds_add_rtn_u32 {RK[s_]}, {WAD[s_]}, {vOne} offset:{L_CNT}")
        if s_>=8: a.label(f"K2_A{s_}")
        if n_==7:
            a("s_waitcnt lgkmcnt(4)")
    a("s_mov_b64 exec, -1")
    FL=A2R
    def flg2_loads():
        a(f"s_mov_b32 {sTmp2}, {FLG2}")
        for k in range(4): a(f"buffer_load_dword {FL[k]}, {vL16}, {sW}, {sTmp2} offen offset:{1024*k} sc1")
        a(f"s_mov_b32 {sTmp2}, {FLG2+4096}")
        for k in range(4): a(f"buffer_load_dword {FL[4+k]}, {vL16}, {sW}, {sTmp2} offen offset:{1024*k} sc1")
    a(f"s_cmp_lg_u32 {sWave}, 1")
    a("s_cbranch_scc1 K2_NOF2A")
    a.c("wave 1: flags of the source-node table (checked before barrier 2)")
    flg2_loads()
    a(f"ds_read_b32 {aE}, {vZ[0]} offset:{L_NRES+8}")
    a.label("K2_NOF2A")
    a(f"s_lshl_b32 {sTmp}, {sWave}, 2")
    a(f"v_lshrrev_b32 {vT0}, 4, {vL}")
    a(f"v_add_u32 {vT0}, {sTmp}, {vT0}")
    a(f"v_mul_u32_u24 {vT0}, {CH}, {vT0}")
    a(f"v_mov_b32 {vT1}, {L_L0}")
    a(f"v_mov_b32 {vT2}, {L_L1}")
    a("s_waitcnt lgkmcnt(0)")
    for s_ in order:
        a(f"s_mov_b64 exec, {sMask[s_]}")
        if s_>=8: a(f"s_cbranch_execz K2_B{s_}")
        pair_index(sTmp,s_&7)
        a(f"s_mul_i32 {sTmp}, {sTmp}, {32*CH}")
        a(f"v_min_u32 {RK[s_]}, {CAPX-1}, {RK[s_]}")
        a(f"v_and_b32 {vT3}, 0xfff, {REC[s_]}")
        a(f"v_mad_u32_u24 {RK[s_]}, {WAD[s_]}, {sCAPq}, {RK[s_]}")
        a(f"v_add3_u32 {vT3}, {vT3}, {vT0}, {sTmp}")
        a(f"v_bfe_u32 {vJ}, {REC[s_]}, 26, 3")
        a(f"v_lshl_add_u32 {AD[0]}, {RK[s_]}, 2, {vT1}")
        a(f"v_lshl_or_b32 {vT3}, {vT3}, 5, {vJ}")
        a(f"v_lshl_add_u32 {AD[1]}, {RK[s_]}, 1, {vT2}")
        a(f"v_bfe_u32 {vJ}, {REC[s_]}, 12, 14")
        a(f"ds_write_b32 {AD[0]}, {vT3}")
        a(f"ds_write_b16 {AD[1]}, {vJ}")
        if s_>=8: a.label(f"K2_B{s_}")
    a("s_mov_b64 exec, -1")
    NE=opt.get('epf',0)
    if NE:
        a.c("L2 warm-up of the e_attr lines of the first records (speed only; results are never read)")
        a(f"s_lshl_b32 {sTmp}, {sWave}, 2")
        a(f"v_lshrrev_b32 {vT0}, 4, {vL}")
        a(f"v_add_u32 {vT0}, {sTmp}, {vT0}")
        a(f"v_mul_u32_u24 {vT0}, {CH}, {vT0}")
        a(f"v_mov_b32 {vT2}, 0x2000000")
        for k in range(NE):
            a(f"v_cmp_gt_u32 vcc, {sMark}, {REC[k]}")
            a(f"v_and_b32 {vT1}, 0xfff, {REC[k]}")
            pair_index(sTmp,k)
            a(f"s_mul_i32 {sTmp}, {sTmp}, {32*CH}")
            a(f"v_add3_u32 {vT1}, {vT1}, {vT0}, {sTmp}")
            a(f"v_cndmask_b32 {vT1}, {vT2}, {vT1}, vcc")
            a(f"v_lshlrev_b32 {vT1}, 5, {vT1}")
            a(f"buffer_load_dword {vDUM}, {vT1}, {sE}, 0 offen")
    a.c("overflowed cells -> rescan list (rare)")
    a(f"s_cmp_eq_u64 {sAny}, 0")
    a("s_cbranch_scc1 K2_NOMARK")
    a(f"v_lshrrev_b32 {vT0}, 4, {vL}")
    a(f"s_lshl_b32 {sTmp}, {sWave}, 2")
    a(f"v_add_u32 {vT0}, {sTmp}, {vT0}")
    a(f"v_mov_b32 {vT1}, {L_NRES}")
    for s_ in range(8):
        a(f"v_cmp_eq_u32 vcc, {sMark}, {REC[s_]}")
        a(f"s_and_saveexec_b64 {sSave}, vcc")
        a(f"s_cbranch_execz K2_MK{s_}")
        a(f"ds_add_rtn_u32 {vT2}, {vT1}, {vOne}")
        pair_index(sTmp,s_)
        a(f"s_lshl_b32 {sTmp}, {sTmp}, 5")
        a(f"v_add_u32 {vT3}, {sTmp}, {vT0}")
        a("s_waitcnt lgkmcnt(0)")
        a(f"v_lshlrev_b32 {vT2}, 2, {vT2}")
        a(f"ds_write_b32 {vT2}, {vT3} offset:{L_RES}")
        a.label(f"K2_MK{s_}")
        a(f"s_mov_b64 exec, {sSave}")
    a.label("K2_NOMARK")
    a("s_load_dwordx2 s[64:65], s[0:1], 0")
    a("s_waitcnt vmcnt(0) lgkmcnt(0)")
    a(f"s_cmp_lg_u32 {sWave}, 1")
    a("s_cbranch_scc1 K2_NOF2B")
    a(f"v_readfirstlane_b32 {sNonce}, {aE}")
    a(f"s_mov_b32 {sPoll}, 0")
    a("s_nop 1")
    a.label("K2_F2CHK")
    a(f"v_cmp_eq_u32 {sAny}, {sNonce}, {FL[0]}")
    for k in range(1,8):
        a(f"v_cmp_eq_u32 vcc, {sNonce}, {FL[k]}")
        a("s_nop 1")
        a(f"s_and_b64 {sAny}, {sAny}, vcc")
    a(f"s_cmp_eq_u64 {sAny}, -1")
    a("s_cbranch_scc1 K2_NOF2B")
    a(f"s_add_u32 {sPoll}, {sPoll}, 1")
    a(f"s_cmp_gt_u32 {sPoll}, 200000")
    a("s_cbranch_scc1 K2_NOF2B")
    flg2_loads()
    a("s_waitcnt vmcnt(0)")
    a("s_branch K2_F2CHK")
    a.label("K2_NOF2B")
    srd(a,sHs,"s64","s65",N*128)
    a(f"s_mov_b32 {sTmp}, {NEG_LN2}")
    a(f"v_mul_f32 {WX[0]}, {sTmp}, {WX[0]}")
    a(f"v_mul_f32 {WX[1]}, {sTmp}, {WX[1]}")
    stamp(a,opt,6)
    a("s_barrier")
    stamp(a,opt,7)
    a.c("window sizes (lane = pair i,k) and the rescan count")
    a(f"v_mov_b32 {vT0}, {L_NRES}")
    a(f"ds_read_b32 {vT1}, {vT0}")
    a(f"ds_read_b32 {vT2}, {aOH} offset:{L_CNT}")
    a(f"ds_read_b32 {vT3}, {SS} offset:{L_CNT}")
    a("s_waitcnt lgkmcnt(0)")
    a(f"v_readfirstlane_b32 {sNR}, {vT1}")
    a(f"v_min_u32 {vT0}, 0xffffff, {vT2}")
    a(f"v_min_u32 {vJ}, 0xffffff, {vT3}")
    a(f"s_cmp_eq_u32 {sNR}, 0")
    a("s_cbranch_scc1 K2_CHECK")
    a(f"s_min_u32 {sNR}, {sNR}, 256")
    a(f"s_mov_b32 {sI}, 0")
    a.label("K2_RESCAN_I")
    a(f"s_lshl_b32 {sTmp}, {sI}, 2")
    a(f"s_add_u32 {sTmp}, {sTmp}, {L_RES}")
    a(f"v_mov_b32 {vT0}, {sTmp}")
    a(f"ds_read_b32 {vT1}, {vT0}")
    a("s_waitcnt lgkmcnt(0)")
    a(f"v_readfirstlane_b32 {sWsrc}, {vT1}")
    a("s_nop 3")
    a(f"s_min_u32 {sWsrc}, {sWsrc}, 255")
    a(f"s_mov_b32 {sC}, 0")
    a.label("K2_RESCAN_C")
    def append_raw(lim_local):
        a(f"v_lshlrev_b32 {vT1}, 2, {vT0}")
        a(f"buffer_load_dword {AD[0]}, {vT1}, {sD}, 0 offen")
        a(f"buffer_load_dword {AD[1]}, {vT1}, {sS}, 0 offen")
        a("s_waitcnt vmcnt(0)")
        a(f"v_mul_hi_u32 {vT2}, {AD[0]}, {sK}")
        a(f"v_lshrrev_b32 {vT3}, 3, {vT2}")
        a(f"v_cmp_eq_u32 vcc, s2, {vT3}")
        a("s_nop 1")
        a(f"s_and_b64 vcc, vcc, {sAny}")
        a(f"s_and_saveexec_b64 {sSave}, vcc")
        a(f"s_cbranch_execz {lim_local}")
        a(f"v_mad_u32_u24 {vT3}, {vT2}, {s3125}, {v511}")
        a(f"v_and_b32 {vT2}, 7, {vT2}")
        a(f"v_lshrrev_b32 {vT3}, 9, {vT3}")
        a(f"v_lshlrev_b32 {vT2}, 2, {vT2}")
        a(f"v_sub_u32 {vT3}, {AD[0]}, {vT3}")
        a(f"ds_add_rtn_u32 {AD[2]}, {vT2}, {vOne} offset:{L_CNT}")
        a(f"v_lshl_or_b32 {vT0}, {vT0}, 5, {vT3}")
        a("s_waitcnt lgkmcnt(0)")
        a(f"v_min_u32 {AD[2]}, {CAPX-1}, {AD[2]}")
        a(f"v_mad_u32_u24 {AD[2]}, {vT2}, {sCAPq}, {AD[2]}")
        a(f"v_mov_b32 {vT2}, {L_L0}")
        a(f"v_mov_b32 {vT3}, {L_L1}")
        a(f"v_lshl_add_u32 {vT2}, {AD[2]}, 2, {vT2}")
        a(f"v_lshl_add_u32 {vT3}, {AD[2]}, 1, {vT3}")
        a(f"ds_write_b32 {vT2}, {vT0}")
        a(f"ds_write_b16 {vT3}, {AD[1]}")
        a.label(lim_local)
        a(f"s_mov_b64 exec, {sSave}")
    a(f"s_lshl_b32 {sTmp}, {sC}, 9")
    a(f"v_add_u32 {vT1}, {sTmp}, v0")
    a(f"s_mul_i32 {sTmp2}, {sWsrc}, {CH}")
    a(f"v_add_u32 {vT0}, {sTmp2}, {vT1}")
    a(f"v_cmp_gt_u32 vcc, {CH}, {vT1}")
    a(f"s_mov_b32 {sTmp}, {E}")
    a(f"v_cmp_gt_u32 {sAny}, {sTmp}, {vT0}")
    a("s_nop 1")
    a(f"s_and_b64 {sAny}, {sAny}, vcc")
    append_raw("K2_RA1")
    a(f"s_add_u32 {sC}, {sC}, 1")
    a(f"s_cmp_lt_u32 {sC}, 7")
    a("s_cbranch_scc1 K2_RESCAN_C")
    a(f"s_add_u32 {sI}, {sI}, 1")
    a(f"s_cmp_lt_u32 {sI}, {sNR}")
    a("s_cbranch_scc1 K2_RESCAN_I")
    a("s_waitcnt lgkmcnt(0)")
    a("s_barrier")
    a(f"ds_read_b32 {vT2}, {aOH} offset:{L_CNT}")
    a(f"ds_read_b32 {vT3}, {SS} offset:{L_CNT}")
    a("s_waitcnt lgkmcnt(0)")
    a(f"v_min_u32 {vT0}, 0xffffff, {vT2}")
    a(f"v_min_u32 {vJ}, 0xffffff, {vT3}")
    a.label("K2_CHECK")
    a.c("window assignment by size rank")
    a(f"v_lshl_or_b32 {vT0}, {vT0}, 3, {aPS}")
    a(f"v_lshl_or_b32 {vJ}, {vJ}, 3, {aPD}")
    a(f"v_cmp_lt_u32 {sAny}, {sCAP}, {vT3}")
    a(f"v_cmp_gt_u32 vcc, {vJ}, {vT0}")
    a(f"s_mov_b32 {sWin}, 0")
    a("s_nop 2")
    for i in range(8):
        a(f"s_bfe_u32 {sTmp}, {'vcc_lo' if i<4 else 'vcc_hi'}, {(8<<16)|(8*(i&3))}")
        a(f"s_bcnt1_i32_b32 {sTmp}, {sTmp}")
        a(f"s_cmp_eq_u32 {sTmp}, {sTgt}")
        a(f"s_cselect_b32 {sWin}, {i}, {sWin}")
    if opt.get('nobal',0): a(f"s_mov_b32 {sWin}, {sWave}")
    a(f"s_lshl_b32 {sTmp}, {sWin}, 3")
    a(f"v_readlane_b32 {sCnt}, {vT2}, {sTmp}")
    geometry(sWin)
    a(f"s_lshl_b32 {sTmp}, {sWin}, 11")
    a(f"v_add_u32 {vE64}, {sTmp}, {vE64}")
    a(f"v_add_u32 {vTR}, {sTmp}, {vTR}")
    a(f"s_add_u32 {sTmp}, {sTmp}, {L_A2}")
    a(f"v_lshl_add_u32 {vT0}, {vL}, 5, {sTmp}")
    a(f"ds_read_b128 {WA[0:4]}, {vT0}")
    a(f"ds_read_b128 {WA[4:8]}, {vT0} offset:16")
    for i in range(4): a(f"v_mov_b32 {A2R[i]}, 0")
    a(f"ds_write_b128 {vT0}, {A2R[0:4]}")
    a(f"ds_write_b128 {vT0}, {A2R[0:4]} offset:16")
    a(f"s_cmp_eq_u64 {sAny}, 0")
    a("s_cbranch_scc1 K2_MAIN")
    a.c("generic (slow) mode: raw scan of all edges, 512 per round")
    a(f"s_mov_b32 {sMode}, 1")
    a.label("K2_GEN")
    a("s_barrier")
    a(f"s_cmp_lg_u32 {sWave}, 0")
    a("s_cbranch_scc1 K2_GEN1")
    a(f"v_and_b32 {vT0}, 7, {vL}")
    a(f"v_lshlrev_b32 {vT0}, 2, {vT0}")
    a(f"ds_write_b32 {vT0}, {vZ[0]} offset:{L_CNT}")
    a("s_waitcnt lgkmcnt(0)")
    a.label("K2_GEN1")
    a("s_barrier")
    a(f"s_lshl_b32 {sTmp}, {sChunk}, 9")
    a(f"v_add_u32 {vT0}, {sTmp}, v0")
    a(f"s_mov_b32 {sTmp}, {E}")
    a(f"v_cmp_gt_u32 {sAny}, {sTmp}, {vT0}")
    a("s_nop 1")
    append_raw("K2_RA2")
    a("s_waitcnt lgkmcnt(0)")
    a("s_barrier")
    a(f"s_lshl_b32 {sTmp}, {sWin}, 2")
    a(f"v_mov_b32 {vT0}, {sTmp}")
    a(f"ds_read_b32 {vT1}, {vT0} offset:{L_CNT}")
    a("s_waitcnt lgkmcnt(0)")
    a(f"v_readfirstlane_b32 {sCnt}, {vT1}")
    a("s_nop 3")
    a.label("K2_MAIN")
    if opt.get('dbgfill',0): stamp(a,opt,14)
    a(f"s_min_u32 {sCnt}, {sCnt}, {CAP}")
    a(f"s_add_u32 {sNT}, {sCnt}, 31")
    a(f"s_lshr_b32 {sNT}, {sNT}, 5")
    a(f"s_cmp_eq_u32 {sNT}, 0")
    a("s_cbranch_scc1 K2_MAIN_DONE")
    a(f"s_mul_i32 {sTmp}, {sWin}, {CAPX*4}")
    a(f"s_add_u32 {sTmp}, {sTmp}, {L_L0}")
    a(f"s_mul_i32 {sTmp2}, {sWin}, {CAPX*2}")
    a(f"s_add_u32 {sTmp2}, {sTmp2}, {L_L1}")
    a(f"v_and_b32 {vT0}, 31, {vL}")
    a(f"v_lshl_add_u32 {aL0}, {vT0}, 2, {sTmp}")
    a(f"v_lshl_add_u32 {aL1s}, {vT0}, 1, {sTmp2}")
    a(f"v_lshrrev_b32 {vT0}, 3, {vL}")
    a(f"v_lshl_add_u32 {aL1d}, {vT0}, 3, {sTmp2}")
    def pad():
        a(f"v_add_u32 {vT0}, {sCnt}, {vL}")
        a(f"v_lshl_add_u32 {vT1}, {vT0}, 2, {sTmp}")
        a(f"v_lshl_add_u32 {vT2}, {vT0}, 1, {sTmp2}")
        a(f"v_mov_b32 {vJ}, 7")
        a(f"ds_write_b32 {vT1}, {vJ}")
        a(f"ds_write_b16 {vT2}, {vZ[0]}")
        a(f"ds_write_b32 {vT1}, {vJ} offset:256")
        a(f"ds_write_b16 {vT2}, {vZ[0]} offset:128")
    def first_reads():
        a(f"ds_read_b32 {vT3}, {aL0}")
        a(f"ds_read_b64 {SD}, {aL1d}")
        a(f"ds_read_b32 {LE[1]}, {aL0} offset:128")
        a(f"ds_read_b32 {LE[0]}, {aL0} offset:256")
        a(f"ds_read_u16 {SS}, {aL1s}")
    a(f"s_cmp_ge_u32 {sCnt}, 96")
    a("s_cbranch_scc1 K2_FILL_BIG")
    pad()
    first_reads()
    a("s_waitcnt lgkmcnt(0)")
    a("s_branch K2_FILL")
    a.label("K2_FILL_BIG")
    first_reads()
    pad()
    a("s_waitcnt lgkmcnt(4)")
    a.label("K2_FILL")
    ENT=['',' nt',' sc1',' sc0 sc1',' sc0',' sc0 nt',' sc1 nt',' sc0 sc1 nt'][opt.get('e_nt',0)]
    def E_addr(le): a(f"v_and_or_b32 {aE}, {le}, {sMaskE}, {vHOFF}")
    def E_load(p): a(f"buffer_load_dwordx4 {EA[p]}, {aE}, {sE}, 0 offen{ENT}")
    def H_addr():
        if opt.get('hmask',0):
            a(f"v_and_b32 {SD[0]}, 0x03ff03ff, {SD[0]}"); a(f"v_and_b32 {SD[1]}, 0x03ff03ff, {SD[1]}")
        for i in range(4):
            a(f"v_mad_u32_u16 {AD[i]}, {SD[i>>1]}, {s128}, {vKD[i]}"+(" op_sel:[1,0,0,0]" if i&1 else ""))
    def H_load(i):
        a(f"s_mov_b32 m0, {sM0[i]}")
        a("s_nop 0")
        a(f"buffer_load_dwordx4 {AD[i]}, {sB}, 0 offen{HLD} lds")
    def P_addr(le,par):
        a(f"v_and_b32 {vJ}, 7, {le}")
        a(f"v_mul_u32_u24 {aPS}, 6, {SS}")
        a(f"v_mad_u32_u24 {aPD}, {vJ}, 6, {sN06}")
        a(f"v_lshlrev_b32 {aOH}, 4, {vJ}")
        a(f"v_lshl_add_u32 {aA2[par]}, {vJ}, 3, {vE64}")
    def P_reads():
        for c in range(3): a(f"ds_read_u16_d16_hi {PS[c]}, {aPS} offset:{L_POS+2*c}")
        for c in range(3): a(f"ds_read_u16_d16_hi {PD[c]}, {aPD} offset:{L_POS+2*c}")
        a(f"ds_read_b128 {OH}, {aOH} offset:{L_OH}")
    def P_calc_list(par):
        return [f"v_sub_f32 {DX[0]}, {PD[0]}, {PS[0]}", f"v_sub_f32 {DX[1]}, {PD[1]}, {PS[1]}", f"v_sub_f32 {DX[2]}, {PD[2]}, {PS[2]}",
                f"v_mul_f32 {DD}, {DX[0]}, {DX[0]}", f"v_fmac_f32 {DD}, {DX[1]}, {DX[1]}", f"v_fmac_f32 {DD}, {DX[2]}, {DX[2]}",
                f"v_cvt_pk_bf16_f32 {E01[0]}, 1.0, {DX[0]}", f"v_cvt_pk_bf16_f32 {E01[1]}, {DX[1]}, {DX[2]}",
                f"v_cvt_pk_bf16_f32 {OH[3]}, {OH[3]}, {DD}",
                f"ds_write_b64 {aA2[par]}, {E01}"]
    E_addr(vT3); E_load(0)
    H_addr()
    for i in range(4): H_load(i)
    E_addr(LE[1]); E_load(1)
    if opt.get('dbgfill',0): stamp(a,opt,15)
    P_addr(vT3,0); P_reads()
    a(f"ds_read_b64 {SD}, {aL1d} offset:64")
    a(f"ds_read_u16 {SS}, {aL1s} offset:64")
    for i in range(16): a(f"v_mov_b32 {T[i]}, 0")
    for i in range(8): a(f"v_mov_b32 {A2R[i]}, 0")
    a("s_waitcnt lgkmcnt(0)")
    for ins in P_calc_list(0): a(ins)
    H_addr()
    P_addr(LE[1],1)
    E_addr(LE[0])
    a("s_waitcnt vmcnt(1)")
    for s_ in range(4): a(f"ds_read_b128 {HA[4*s_:4*s_+4]}, {vHA[s_]}")
    Da,Db=D1[0:16],D1[16:32]
    mfma(a,Da,OH,WA[0:4],"0")
    mfma(a,Da,EA[0],WE[0:4],Da)
    a("s_waitcnt lgkmcnt(0)")
    for i in range(4): H_load(i)
    mfma(a,Da,HA[0:4],ID[0:4],Da)
    mfma(a,Da,HA[4:8],ID[4:8],Da)
    a(f"s_mov_b32 {sT}, 0")
    stamp(a,opt,8)
    if DBG:
        a("s_memtime s[80:81]")
        a("s_waitcnt lgkmcnt(0)")
    a.nop(12)
    MADD=opt.get('madd',1)
    PB_=[0]
    def prio(p):
        if PRIO: a(f"s_setprio {p+PB_[0] if PB_[0]>=0 else 3}")
    def Tsec(kind,x,p):
        Dx=D1[16*x:16*x+16]; o=1-x; Do=D1[16*o:16*o+16]; D2o=D2[16*o:16*o+16]
        prio(1)
        if kind=='X':
            ea = EA[p] if x==0 else EA[1-p]
            mfma(a,Do,OH,WA[4*o:4*o+4],"0")
            for i in range(8): a(f"v_cvt_pk_bf16_f32 {M[i]}, {T[2*i]}, {T[2*i+1]}")
            mfma(a,Do,ea,WE[4*o:4*o+4],Do)
            for i in range(16):
                if i==6:
                    if x==1: a("s_waitcnt lgkmcnt(2)")
                    mfma(a,D2o,A2R[0:4],M[0:4],D2o)
                a(f"v_exp_f32 {T[i]}, {Dx[i]}")
            if MADD:
                a("s_nop 1")
                mfma(a,T,ONE,ONE,T)
        else:
            hb = HA[8:16] if x==0 else HA[0:8]
            for i in range(16):
                if i==0: mfma(a,Do,hb[0:4],ID[0:4],Do)
                if i==5: mfma(a,Do,hb[4:8],ID[4:8],Do)
                if i==10: mfma(a,D2o,A2R[4:8],M[4:8],D2o)
                a(f"v_rcp_f32 {T[i]}, {T[i]}")
        prio(0)
    def tile(p):
        q=1-p
        Tsec('X',0,p)
        if not opt.get('e_late',0): E_load(p)
        else: a("s_nop 0")
        P_reads()
        a(f"ds_read_b64 {SD}, {aL1d} offset:{64*(p+2)}")
        if not MADD:
            for i in range(16): a(f"v_add_f32 {T[i]}, 1.0, {T[i]}")
        else:
            a.nop(2)
        Tsec('R',0,p)
        a(f"s_waitcnt vmcnt({0 if opt.get('e_late',0) else 1}) lgkmcnt(0)")
        for s_ in range(4): a(f"ds_read_b128 {HA[4*s_:4*s_+4]}, {vHA[s_]}")
        for k in range(4): a(f"ds_read_b64_tr_b16 {A2R[2*k:2*k+2]}, {vTR} offset:{512*k}")
        a(f"ds_write_b64 {aA2[p]}, {vZ}")
        pc=P_calc_list(q)
        for ins in pc[:6]: a(ins)
        H_addr()
        for i in range(16): a(f"v_mul_f32 {T[i]}, {Da[i]}, {T[i]}")
        for ins in pc[6:]: a(ins)
        Tsec('X',1,p)
        a("s_waitcnt lgkmcnt(0)")
        if opt.get('e_late',0)==1: E_load(p)
        for i in range(4): H_load(i)
        a(f"ds_read_b32 {LE[q]}, {aL0} offset:{128*(p+3)}")
        a(f"ds_read_u16 {SS}, {aL1s} offset:{64*(p+2)}")
        if not MADD:
            for i in range(16): a(f"v_add_f32 {T[i]}, 1.0, {T[i]}")
        Tsec('R',1,p)
        a("s_waitcnt lgkmcnt(0)")
        E_addr(LE[q])
        P_addr(LE[p],p)
        if p==1:
            a(f"v_add_u32 {aL0}, 256, {aL0}")
            a(f"v_add_u32 {aL1s}, 128, {aL1s}")
            a(f"v_add_u32 {aL1d}, 128, {aL1d}")
        for i in range(16): a(f"v_mul_f32 {T[i]}, {Db[i]}, {T[i]}")
    def drain(par):
        for i in range(8): a(f"v_cvt_pk_bf16_f32 {M[i]}, {T[2*i]}, {T[2*i+1]}")
        a(f"ds_write_b64 {aA2[par]}, {vZ}")
        a("s_nop 0")
        mfma(a,D2[16:32],A2R[0:4],M[0:4],D2[16:32])
        mfma(a,D2[16:32],A2R[4:8],M[4:8],D2[16:32])
    def main_loop(sfx):
        a(".p2align 6")
        a.label("K2_LOOP"+sfx)
        tile(0)
        a(f"s_add_u32 {sT}, {sT}, 1")
        a(f"s_cmp_ge_u32 {sT}, {sNT}")
        a("s_cbranch_scc1 K2_EXIT_ODD"+sfx)
        tile(1)
        a(f"s_add_u32 {sT}, {sT}, 1")
        a(f"s_cmp_lt_u32 {sT}, {sNT}")
        a("s_cbranch_scc1 K2_LOOP"+sfx)
        drain(0)
        a("s_branch K2_LOOP_DONE")
        a.label("K2_EXIT_ODD"+sfx)
        drain(1)
    HP=opt.get('hiprio',0)
    if HP:
        a(f"s_cmp_lt_u32 {sWave}, 4")
        a("s_cbranch_scc1 K2_LOOP_H")
    main_loop("")
    if HP:
        a("s_branch K2_LOOP_DONE")
        PB_[0]={1:1,2:2,3:-1}[HP]
        main_loop("_H")
        PB_[0]=0
    a.label("K2_LOOP_DONE")
    if PRIO: a("s_setprio 0")
    a.label("K2_MAIN_DONE")
    stamp(a,opt,9)
    if DBG:
        a("s_memtime s[82:83]")
        a("s_waitcnt lgkmcnt(0)")
        a("s_sub_u32 s80, s82, s80")
        a(f"v_writelane_b32 {VDBG}, s80, 12")
        a(f"v_writelane_b32 {VDBG}, {sNT}, 11")
    a(f"s_cmp_eq_u32 {sMode}, 0")
    a("s_cbranch_scc1 K2_EPI")
    a("s_waitcnt vmcnt(0) lgkmcnt(0)")
    a(f"s_add_u32 {sChunk}, {sChunk}, 1")
    a(f"s_cmp_lt_u32 {sChunk}, {(E+511)//512}")
    a("s_cbranch_scc1 K2_GEN")
    a.label("K2_EPI")
    a.c("segment sums of this window: m_i (bf16) -> rows of this window's (now idle) A2 slice")
    a(f"s_lshl_b32 {sHST}, {sWin}, 11")
    a(f"s_add_u32 {sHST}, {sHST}, {L_A2}")
    a(f"v_and_b32 {vJ}, 31, {vL}")
    a(f"s_mov_b32 {sTmp}, {NEG_LN2}")
    a(f"v_lshrrev_b32 {vT2}, 5, {vL}")
    a(f"v_lshlrev_b32 {vT2}, 7, {vT2}")
    a(f"v_lshl_add_u32 {vT2}, {vJ}, 1, {vT2}")
    a(f"v_add_u32 {vT2}, {sHST}, {vT2}")
    a.nop(8)
    for qq in range(4):
        a(f"v_mul_f32 {AD[0]}, {sTmp}, {D2[4*qq]}")
        a(f"v_mul_f32 {AD[1]}, {sTmp}, {D2[16+4*qq]}")
        a(f"v_cvt_pk_bf16_f32 {AD[2]}, {AD[0]}, {AD[1]}")
        a(f"ds_write_b16 {vT2}, {AD[2]} offset:{qq*256}")
        a(f"ds_write_b16_d16_hi {vT2}, {AD[2]} offset:{qq*256+64}")
    def pos_part():
        a.c("coordinate update of this window")
        PP=T
        for qq in range(4):
            for c in range(1,4):
                r=PP[qq*3+c-1]
                a(f"v_mul_f32 {r}, {WX[0]}, {D2[4*qq+c]}")
                a(f"v_fmac_f32 {r}, {WX[1]}, {D2[16+4*qq+c]}")
        for sh in (1,2,4,8):
            for i in range(12): a(f"v_add_f32_dpp {PP[i]}, {PP[i]}, {PP[i]} row_shr:{sh} row_mask:0xf bank_mask:0xf bound_ctrl:0")
        for i in range(12): a(f"v_add_f32_dpp {PP[i]}, {PP[i]}, {PP[i]} row_bcast:15 row_mask:0xa bank_mask:0xf")
        a(f"v_lshrrev_b32 {vT2}, 5, {vL}")
        a(f"v_lshlrev_b32 {vT2}, 4, {vT2}")
        a(f"s_add_u32 {sTmp}, {sHST}, 1024")
        a(f"v_add_u32 {vT2}, {sTmp}, {vT2}")
        a("s_mov_b32 exec_lo, 0x80000000")
        a("s_mov_b32 exec_hi, 0x80000000")
        for qq in range(4):
            for c in range(3):
                a(f"ds_write_b32 {vT2}, {PP[qq*3+c]} offset:{qq*32+c*4}")
        a("s_mov_b64 exec, -1")
        a(f"v_mul_u32_u24 {vT2}, 86, {vL}")
        a(f"v_lshrrev_b32 {vT2}, 8, {vT2}")
        a(f"v_mul_u32_u24 {vT3}, 3, {vT2}")
        a(f"v_sub_u32 {vT3}, {vL}, {vT3}")
        a(f"v_lshlrev_b32 {vT2}, 4, {vT2}")
        a(f"v_lshl_add_u32 {vT2}, {vT3}, 2, {vT2}")
        a(f"v_add_u32 {vT2}, {sTmp}, {vT2}")
        a(f"v_min_u32 {vT2}, {LDS2-4}, {vT2}")
        a(f"ds_read_b32 {AD[0]}, {vT2}")
        a(f"v_lshl_add_u32 {vT3}, {vL}, 1, {sN06}")
        a(f"v_min_u32 {vT2}, {POS_SZ-2}, {vT3}")
        a(f"ds_read_u16_d16_hi {PS[0]}, {vT2} offset:{L_POS}")
        a(f"s_mul_i32 {sTmp}, {sNJ}, 3")
        a(f"v_cmp_gt_u32 vcc, {sTmp}, {vL}")
        a(f"v_add_u32 {vT3}, {OUT_POS}, {vT3}")
        a(f"v_mov_b32 {vT2}, 0x40000000")
        a("s_waitcnt lgkmcnt(0)")
        a(f"v_cndmask_b32 {vT3}, {vT2}, {vT3}, vcc")
        a(f"v_add_f32 {AD[0]}, {AD[0]}, {PS[0]}")
        a(f"v_cvt_pk_bf16_f32 {AD[0]}, {AD[0]}, {AD[0]}")
        a(f"buffer_store_short {AD[0]}, {vT3}, {sO}, 0 offen{OST}")
    a.c("job waves 4..7: row tile r = (v-4)>>1 (rows = window 4r + (m>>3), node m&7), feature half x = v&1")
    a(f"s_cmp_lt_u32 {sWave}, 4")
    a("s_cbranch_scc1 K2_EPI_NOJOB")
    a(f"s_sub_u32 {sTmp2}, {sWave}, 4")
    a(f"s_lshr_b32 {sTmp2}, {sTmp2}, 1")
    a(f"s_lshl_b32 {sTmp2}, {sTmp2}, 2")
    a(f"v_bfe_u32 {vT0}, {vL}, 3, 2")
    a(f"v_add_u32 {vT0}, {sTmp2}, {vT0}")
    a(f"v_and_b32 {vJ}, 7, {vL}")
    a(f"v_lshlrev_b32 {aL1d}, 11, {vT0}")
    a(f"v_lshl_add_u32 {aL1d}, {vJ}, 7, {aL1d}")
    a(f"v_add_u32 {aL1d}, {L_A2}, {aL1d}")
    a(f"v_add_u32 {aL1d}, {aL1d}, {vHOFF}")
    a(f"s_lshl_b32 {sTmp2}, s2, 3")
    a(f"v_add_u32 {vT0}, {sTmp2}, {vT0}")
    a(f"v_mad_u32_u24 {SD[0]}, {vT0}, {s3125}, {v511}")
    a(f"v_add_u32 {SD[1]}, 3125, {SD[0]}")
    a(f"v_lshrrev_b32 {SD[0]}, 9, {SD[0]}")
    a(f"v_lshrrev_b32 {SD[1]}, 9, {SD[1]}")
    a(f"v_sub_u32 {SD[1]}, {SD[1]}, {SD[0]}")
    a(f"v_cmp_lt_u32 vcc, {vJ}, {SD[1]}")
    a(f"v_add_u32 {vT1}, -1, {SD[1]}")
    a(f"v_min_u32 {vT1}, {vT1}, {vJ}")
    a(f"v_add_u32 {vT1}, {SD[0]}, {vT1}")
    a(f"v_lshlrev_b32 {vT1}, 7, {vT1}")
    a(f"v_add_u32 {vT0}, {vT1}, {vHOFF}")
    for s_ in range(4):
        a(f"buffer_load_dwordx4 {HA[4*s_:4*s_+4]}, {vT0}, {sHs}, 0 offen offset:{32*s_}")
    a(f"s_and_b32 {sTmp2}, {sWave}, 1")
    a(f"s_lshl_b32 {sTmp2}, {sTmp2}, 6")
    a(f"v_lshrrev_b32 {vT0}, 1, {vHOFF}")
    a(f"v_add3_u32 {aL0}, {vT1}, {vT0}, {sTmp2}")
    for qq in range(4):
        a(f"buffer_load_dwordx2 {M[2*qq:2*qq+2]}, {aL0}, {sHs}, 0 offen offset:{16*qq}")
    a(f"v_mov_b32 {vT0}, 0x40000000")
    a(f"v_cndmask_b32 {aL1s}, {vT0}, {aL0}, vcc")
    pos_part()
    HV=D2[0:16]
    a("s_waitcnt vmcnt(1)")
    for s_ in range(4):
        mfma(a,D1[0:16],WH[4*s_:4*s_+4],HA[4*s_:4*s_+4],"0" if s_==0 else D1[0:16])
    for qq in range(4):
        a(f"v_lshlrev_b32 {HV[4*qq]}, 16, {M[2*qq]}")
        a(f"v_and_b32 {HV[4*qq+1]}, 0xffff0000, {M[2*qq]}")
        a(f"v_lshlrev_b32 {HV[4*qq+2]}, 16, {M[2*qq+1]}")
        a(f"v_and_b32 {HV[4*qq+3]}, 0xffff0000, {M[2*qq+1]}")
    stamp(a,opt,10)
    a("s_barrier")
    MA=[EA[0],EA[1],A2R[0:4],A2R[4:8]]
    for s_ in range(4): a(f"ds_read_b128 {MA[s_]}, {aL1d} offset:{32*s_}")
    for s_ in range(4):
        a(f"s_waitcnt lgkmcnt({3-s_})")
        mfma(a,D1[0:16],WH[16+4*s_:20+4*s_],MA[s_],D1[0:16])
    a(f"s_mov_b32 {sTmp}, {NEG_LOG2E}")
    a.nop(14)
    X=D1[0:16]
    for i in range(16): a(f"v_mul_f32 {T[i]}, {sTmp}, {X[i]}")
    for i in range(16): a(f"v_exp_f32 {T[i]}, {T[i]}")
    for i in range(16): a(f"v_add_f32 {T[i]}, 1.0, {T[i]}")
    for i in range(16): a(f"v_rcp_f32 {T[i]}, {T[i]}")
    a("s_nop 0")
    for i in range(16): a(f"v_fma_f32 {T[i]}, {X[i]}, {T[i]}, {HV[i]}")
    for qq in range(4):
        a(f"v_cvt_pk_bf16_f32 {M[2*qq]}, {T[4*qq]}, {T[4*qq+1]}")
        a(f"v_cvt_pk_bf16_f32 {M[2*qq+1]}, {T[4*qq+2]}, {T[4*qq+3]}")
        a(f"buffer_store_dwordx2 {M[2*qq:2*qq+2]}, {aL1s}, {sO}, 0 offen offset:{16*qq}{OST}")
    a("s_branch K2_FIN")
    a.label("K2_EPI_NOJOB")
    a("s_waitcnt lgkmcnt(0)")
    stamp(a,opt,10)
    a("s_barrier")
    pos_part()
    a.label("K2_FIN")
    if DBG:
        a("s_waitcnt vmcnt(0)")
        stamp(a,opt,13)
        a(f"s_lshl_b32 {sTmp}, s2, 4")
        a(f"s_add_u32 {sTmp}, {sTmp}, {sWave}")
        a(f"s_lshl_b32 {sTmp}, {sTmp}, 6")
        a(f"s_add_u32 {sTmp}, {sTmp}, {DBG_OFF}")
        a(f"v_lshlrev_b32 {vT0}, 2, {vL}")
        a("s_mov_b32 exec_lo, 0xffff")
        a("s_mov_b32 exec_hi, 0")
        a(f"buffer_store_dword {VDBG}, {vT0}, {sW}, {sTmp} offen")
        a("s_waitcnt vmcnt(0)")
    a.label("K_END")
    a("s_endpgm")
    a.label("K_CODE_END")
    return nv

HEADER='''; Kernarg layout (88 bytes, ptrs only): h, pos, e_attr, src, dst, w_e, w_x, w_h, out, debug, ws
; @launch grid=(256,1,1) block=(512,1,1) lds={lds2}
.amdgcn_target "amdgcn-amd-amdhsa--gfx950"
.text
.globl {k}
.p2align 8
.type {k},@function
'''
def kd(name,nv,ns):
    acc=(nv+3)//4*4
    return f'''.amdhsa_kernel {name}
  .amdhsa_next_free_vgpr {acc}
  .amdhsa_next_free_sgpr {ns}
  .amdhsa_accum_offset {acc}
  .amdhsa_group_segment_fixed_size 0
  .amdhsa_kernarg_size 88
  .amdhsa_user_sgpr_count 2
  .amdhsa_user_sgpr_kernarg_segment_ptr 1
  .amdhsa_system_sgpr_workgroup_id_x 1
  .amdhsa_float_denorm_mode_32 3
.end_amdhsa_kernel
'''
def build(opt):
    out=HEADER.format(lds2=LDS2,k=KNAME)
    a=Asm()
    nv=gen(a,opt)
    assert nv<=255
    out+=a.text()
    out+='.section .rodata,"a"\n.p2align 6\n'+kd(KNAME,256,102)
    return out,nv
if __name__=="__main__":
    opt={}
    for arg in sys.argv[2:]:
        k,v=arg.split('='); opt[k]=int(v)
    txt,nv=build(opt)
    open(sys.argv[1],'w').write(txt)
    print("vgprs:",nv,"LDS",LDS2,"lines",txt.count("\n"),"WS",WS_BYTES)
```

```python
import sys, struct
from asmlib import *

N=12500; E=800000; CH=3136; NSRC=256; NBIN=256; NPW=49
KW=703687442
LOG2E=1.4426950408889634; LN2=0.6931471805599453
def f2u(x): return struct.unpack('<I',struct.pack('<f',x))[0]
NEG_LOG2E=f2u(-LOG2E); NEG_LN2=f2u(-LN2)
SENT=0xFFFFFFFF; MARK=0xFFFFFFFE
CELLS=0; BPT=NBIN*NSRC*128; FLG=BPT+N*128+((-N*128)%4096); FLG2=FLG+4096; WS_BYTES=FLG2+8192
OUT_BYTES=N*64*2+N*3*2; OUT_POS=N*64*2
CAP=576; CAPX=704
L_OH=0; L_CNT=128; L_NRES=160; L_WIN=192; L_RES=256; L_POS=1280; POS_SZ=74*1024
L_L0=L_POS+POS_SZ; L_L1=L_L0+8*CAPX*4; L_A2=L_L1+8*CAPX*2; L_HST=L_A2+8*2048; LDS2=L_HST+8*4096
assert LDS2<=163840, LDS2
L_RAWW=L_L0; L_BST=L_L0+19*1024; assert L_BST+2*32*144<=L_A2
DBG_OFF=16*1024*1024

def WSB(opt): return (32*1024*1024 if opt.get('dbg',0) else WS_BYTES)
def srd(a, s, lo, hi, size):
    a(f"s_mov_b32 {s[0]}, {lo}")
    a(f"s_and_b32 {s[1]}, {hi}, 0xffff")
    a(f"s_mov_b32 {s[2]}, {size}")
    a(f"s_mov_b32 {s[3]}, 0x20000")
VDBG="v255"
def stamp(a,opt,idx):
    if not opt.get('dbg',0): return
    a("s_memrealtime s[100:101]")
    a("s_waitcnt lgkmcnt(0)")
    a(f"v_writelane_b32 {VDBG}, s100, {idx}")
def S(i,n=1): return R('s',i,n)
def V(i,n=1): return R('v',i,n)
def mfma(a,d,A,B,c): a(f"v_mfma_f32_32x32x16_bf16 {d}, {A}, {B}, {c}")

NPOS1=24
KNAME="gather_scatter__cheap_equivariant_egnn__graph_kernel"
def gen(a, opt):
    DBG=opt.get('dbg',0)
    PRIO=opt.get('prio',1)
    ST=" sc1"; LD=" sc1" if opt.get('ld_sc1',1) else ""
    HLD=[""," sc1"," sc0 sc1"," sc1 nt"," sc0 sc1 nt"][opt.get('h_sc1',1)]
    SNT=" nt" if opt.get('snt',0) else ""
    OST=[""," nt"," sc1"," sc0 sc1"][opt.get('ost',0)]
    a.label(KNAME)
    sB=S(4,4); sE=S(8,4); sW=S(12,4); sO=S(16,4); sP=S(20,4); sS=S(24,4); sD=S(28,4)
    sWave=S(32); sN0=S(33); sNJ=S(34); sN06=S(35); sNT=S(36); sT=S(37); sMode=S(38); sChunk=S(39)
    sMaskE=S(40); s128=S(41); sK=S(42); s3125=S(43); sLim=S(44); sCAP=S(44); sCnt=S(45); sTmp=S(46); sTmp2=S(47)
    sM0=S(48,4); sSave=S(52,2); sAny=S(54,2); sNR=S(56); sI=S(57); sC=S(58); sWsrc=S(59); sMark=S(60); sCAPq=S(61); sHST=S(62); sTmp3=S(63)
    sMask=[S(64+2*i,2) for i in range(16)]
    sRot=S(39+0) if False else S(37)
    sWin=S(96); sTgt=S(97); sNonce=S(98); sPoll=S(99)
    sT4=S(84,4); sT4b=S(88,4); sT4c=S(92,4)
    sHw=S(48,4)
    sHs=S(68,4); sWx=S(72,4)
    vr=Regs(1,256,'v')
    vL=vr.alloc('lane')
    WE=vr.alloc('WE',8,4); WA=vr.alloc('WA',8,4); ID=vr.alloc('ID',8,4); D2=vr.alloc('D2',32,4)
    D1=vr.alloc('D1',32,4); HA=vr.alloc('HA',16,4); T=vr.alloc('T',16,4); M=vr.alloc('M',8,4)
    A2R=vr.alloc('A2R',8,4); EA=[vr.alloc('EA0',4,4),vr.alloc('EA1',4,4)]; OH=vr.alloc('OH',4,4)
    WH=vr.alloc('WH',32,4); ONE=vr.alloc('ONE',4,4)
    vHA=vr.alloc('vHA',4); vKD=vr.alloc('vKD',4); vTR=vr.alloc('vTR'); vE64=vr.alloc('vE64'); vHOFF=vr.alloc('vHOFF')
    vZ=vr.alloc('vZ',2,2); aL0=vr.alloc('aL0'); aL1s=vr.alloc('aL1s'); aL1d=vr.alloc('aL1d')
    LE=[vr.alloc('LE0'),vr.alloc('LE1')]; aA2=[vr.alloc('aA2_0'),vr.alloc('aA2_1')]
    SD=vr.alloc('SD',2,2); SS=vr.alloc('SS'); PS=vr.alloc('PS',3); PD=vr.alloc('PD',3)
    E01=vr.alloc('E01',2,2); DX=vr.alloc('DX',3); DD=vr.alloc('DD'); AD=vr.alloc('AD',4); vJ=vr.alloc('vJ')
    aE=vr.alloc('aE'); aPS=vr.alloc('aPS'); aPD=vr.alloc('aPD'); aOH=vr.alloc('aOH')
    vT0=vr.alloc('vT0'); vT1=vr.alloc('vT1'); vT2=vr.alloc('vT2'); vT3=vr.alloc('vT3')
    vOne=vr.alloc('vOne'); v511=vr.alloc('v511'); vTRW=vr.alloc('vTRW'); vL16=vr.alloc('vL16'); WX=vr.alloc('WX',2); vDUM=vr.alloc('vDUM')
    nv=vr.next
    HW=T
    def geometry(win):
        a(f"s_lshl_b32 {sTmp}, s2, 3")
        a(f"s_add_u32 {sTmp}, {sTmp}, {win}")
        a(f"s_mul_i32 {sN0}, {sTmp}, 3125")
        a(f"s_add_u32 {sNJ}, {sN0}, {3125+511}")
        a(f"s_add_u32 {sN0}, {sN0}, 511")
        a(f"s_lshr_b32 {sN0}, {sN0}, 9")
        a(f"s_lshr_b32 {sNJ}, {sNJ}, 9")
        a(f"s_sub_u32 {sNJ}, {sNJ}, {sN0}")
        a(f"s_mul_i32 {sN06}, {sN0}, 6")
    def dma(vaddr,srd_,soff,ldsbase_const=None,ldsreg=None):
        pass

    def load_hwin():
        a.c("h rows of the natural window (A operand of h@W1; needed after barrier C)")
        a(f"v_bfe_u32 {vT0}, {vL}, 3, 1")
        a(f"v_and_b32 {vT2}, 3, {vL}")
        a(f"v_lshl_add_u32 {vT0}, {vT0}, 2, {vT2}")
        a(f"s_sub_u32 {sTmp}, {sNJ}, 1")
        a(f"v_min_u32 {vT0}, {sTmp}, {vT0}")
        a(f"v_add_u32 {vT0}, {sN0}, {vT0}")
        a(f"v_lshl_add_u32 {vT0}, {vT0}, 7, {vHOFF}")
        for s_ in range(4):
            a(f"buffer_load_dwordx4 {HW[4*s_:4*s_+4]}, {vT0}, {sHw}, 0 offen offset:{32*s_}")
    a("s_cmp_ge_u32 s2, 256")
    a("s_cbranch_scc1 K_END")
    a("s_load_dwordx4 s[64:67], s[0:1], 0")
    a("s_load_dwordx4 s[68:71], s[0:1], 16")
    a("s_load_dwordx4 s[72:75], s[0:1], 32")
    a("s_load_dwordx4 s[76:79], s[0:1], 64")
    a("s_load_dwordx2 s[80:81], s[0:1], 80")
    a(f"v_and_b32 {vL}, 63, v0")
    a(f"v_lshrrev_b32 {vT0}, 6, v0")
    a(f"v_lshlrev_b32 {vL16}, 4, {vL}")
    a(f"v_readfirstlane_b32 {sWave}, {vT0}")
    if opt.get('cpf',1):
        a.c("pull this workgroup's share of the kernel's own code into L2 (read only, speed only)")
        NL=opt.get('cpf_lines',8)
        a("s_getpc_b64 s[84:85]")
        a.label("K_PC")
        a("s_and_b32 s85, s85, 0xffff")
        a("s_mov_b32 s86, K_CODE_END-K_PC")
        a("s_mov_b32 s87, 0x20000")
        if opt.get('cpf',1)==1:
            a(f"s_lshr_b32 {sTmp}, s2, 3")
            a(f"s_and_b32 {sTmp}, {sTmp}, 31")
            a(f"s_mul_i32 {sTmp}, {sTmp}, {NL*128}")
            a(f"v_lshlrev_b32 {vT1}, 7, {vL}")
            a(f"v_add_u32 {vT1}, {sTmp}, {vT1}")
            a(f"s_cmp_lg_u32 {sWave}, 3")
            a("s_cbranch_scc1 K_NOCPF")
            a(f"s_mov_b32 exec_lo, {(1<<NL)-1}")
            a("s_mov_b32 exec_hi, 0")
            a(f"buffer_load_dword {vDUM}, {vT1}, s[84:87], 0 offen")
            a("s_mov_b64 exec, -1")
        elif opt.get('cpf',1)==2:
            a(f"s_mul_i32 {sTmp}, {sWave}, {24*128}")
            a(f"v_lshlrev_b32 {vT1}, 7, {vL}")
            a(f"v_add_u32 {vT1}, {sTmp}, {vT1}")
            a(f"s_mov_b32 exec_lo, {(1<<24)-1}")
            a("s_mov_b32 exec_hi, 0")
            a(f"buffer_load_dword {vDUM}, {vT1}, s[84:87], 0 offen")
            a("s_mov_b64 exec, -1")
        elif opt.get('cpf',1)==3:
            a(f"s_lshr_b32 {sTmp}, s2, 3")
            a(f"s_and_b32 {sTmp}, {sTmp}, 3")
            a(f"s_mul_i32 {sTmp}, {sTmp}, {48*128}")
            a(f"v_lshlrev_b32 {vT1}, 7, {vL}")
            a(f"v_add_u32 {vT1}, {sTmp}, {vT1}")
            a(f"s_cmp_lg_u32 {sWave}, 3")
            a("s_cbranch_scc1 K_NOCPF")
            a("s_mov_b32 exec_hi, 0xffff")
            a(f"buffer_load_dword {vDUM}, {vT1}, s[84:87], 0 offen")
            a("s_mov_b64 exec, -1")
        a.label("K_NOCPF")
    a(f"v_lshrrev_b32 {vT2}, 5, {vL}")
    a(f"v_lshlrev_b32 {vHOFF}, 4, {vT2}")
    a(f"v_mov_b32 {vZ[0]}, 0")
    a(f"v_mov_b32 {vZ[1]}, 0")
    geometry(sWave)
    a(f"s_mul_i32 {sTmp}, s2, {CH*4}")
    a(f"s_mul_i32 {sTmp2}, {sWave}, {384*4}")
    a(f"s_add_u32 {sTmp}, {sTmp}, {sTmp2}")
    a(f"v_lshl_add_u32 {vT0}, {vL}, 3, {sTmp}")
    a("s_waitcnt lgkmcnt(0)")
    stamp(a,opt,0)
    srd(a,sD,"s72","s73",E*4)
    srd(a,sS,"s70","s71",E*4)
    a.c("every wave: six edges per lane, local edge = 384v + 128k + 2l + u; wave 7 also takes edges 3072 + l")
    DS_=D1[0:7]; SR_=D1[8:15]
    for k in range(3): a(f"buffer_load_dwordx2 {D1[2*k:2*k+2]}, {vT0}, {sD}, 0 offen offset:{512*k}{SNT}")
    for k in range(3): a(f"buffer_load_dwordx2 {D1[8+2*k:10+2*k]}, {vT0}, {sS}, 0 offen offset:{512*k}{SNT}")
    srd(a,sT4,"s64","s65",N*128)
    srd(a,sHw,"s64","s65",N*128)
    srd(a,sT4b,"s74","s75",145*128)
    a(f"s_cmp_eq_u32 {sWave}, 7")
    a("s_cbranch_scc1 K_S_W7")
    a(f"s_cmp_eq_u32 {sWave}, 4")
    a("s_cbranch_scc1 K_S_W4")
    a(f"s_cmp_lt_u32 {sWave}, 5")
    a("s_cbranch_scc1 K_S_COMMON")
    a.c("waves 5,6: private raw W2 copy + h rows for the source-node table")
    a(f"s_sub_u32 {sI}, {sWave}, 5")
    a(f"s_lshl_b32 {sC}, {sI}, 13")
    a(f"s_add_u32 {sC}, {sC}, {L_A2}")
    for i in range(8):
        a(f"s_add_u32 {sTmp}, {sC}, {i*1024}")
        a(f"s_mov_b32 m0, {sTmp}")
        a(f"s_mov_b32 {sTmp2}, {8192+i*1024}")
        a(f"buffer_load_dwordx4 {vL16}, {sT4b}, {sTmp2} offen lds")
    a(f"s_mul_i32 {sTmp}, s2, {NPW}")
    a(f"s_lshl_b32 {sTmp2}, {sI}, 5")
    a(f"s_add_u32 {sTmp}, {sTmp}, {sTmp2}")
    a(f"v_and_b32 {vT0}, 31, {vL}")
    a(f"v_add_u32 {vT0}, {sTmp}, {vT0}")
    a(f"v_lshl_add_u32 {vT0}, {vT0}, 7, {vHOFF}")
    for s_ in range(4): a(f"buffer_load_dwordx4 {HA[4*s_:4*s_+4]}, {vT0}, {sT4}, 0 offen offset:{32*s_}")
    a("s_branch K_S_COMMON")
    a.label("K_S_W4")
    a.c("wave 4: this workgroup's share of the L2 warm-up of pos and w_h (speed only)")
    a("s_load_dwordx2 s[82:83], s[0:1], 56")
    srd(a,sP,"s66","s67",N*6)
    a(f"s_lshr_b32 {sTmp}, s2, 3")
    a(f"s_and_b32 {sTmp}, {sTmp}, 31")
    a(f"s_mul_i32 {sTmp2}, {sTmp}, {19*128}")
    a(f"v_lshlrev_b32 {vT0}, 7, {vL}")
    a(f"v_add_u32 {vT1}, {sTmp2}, {vT0}")
    a(f"v_cmp_gt_u32 vcc, 19, {vL}")
    a(f"v_mov_b32 {vT2}, 0x40000000")
    a("s_waitcnt lgkmcnt(0)")
    a(f"v_cndmask_b32 {vT1}, {vT2}, {vT1}, vcc")
    a(f"buffer_load_dword {vDUM}, {vT1}, {sP}, 0 offen")
    srd(a,sT4b,"s82","s83",128*128)
    a(f"s_lshl_b32 {sTmp2}, {sTmp}, 9")
    a(f"v_add_u32 {vT1}, {sTmp2}, {vT0}")
    a(f"v_cmp_gt_u32 vcc, 4, {vL}")
    a("s_nop 1")
    a(f"v_cndmask_b32 {vT1}, {vT2}, {vT1}, vcc")
    a(f"buffer_load_dword {vDUM}, {vT1}, {sT4b}, 0 offen")
    a("s_branch K_S_COMMON")
    a.label("K_S_W7")
    a.c("wave 7: the last 64 edges, one-hot table, counters")
    a(f"s_mul_i32 {sTmp}, s2, {CH*4}")
    a(f"s_add_u32 {sTmp}, {sTmp}, {3072*4}")
    a(f"v_lshl_add_u32 {vT0}, {vL}, 2, {sTmp}")
    a(f"buffer_load_dword {D1[6]}, {vT0}, {sD}, 0 offen{SNT}")
    a(f"buffer_load_dword {D1[14]}, {vT0}, {sS}, 0 offen{SNT}")
    a(f"v_lshrrev_b32 {vT0}, 2, {vL}")
    a(f"v_and_b32 {vT1}, 3, {vL}")
    a(f"v_lshlrev_b32 {vT3}, 1, {vT1}")
    a(f"v_mov_b32 {vJ}, 0")
    a(f"v_cmp_eq_u32 vcc, {vT0}, {vT3}")
    a(f"v_mov_b32 {AD[0]}, 0x3f80")
    a(f"v_mov_b32 {AD[1]}, 0x3f800000")
    a(f"v_cndmask_b32 {vJ}, {vJ}, {AD[0]}, vcc")
    a(f"v_add_u32 {vT3}, 1, {vT3}")
    a(f"v_cmp_eq_u32 vcc, {vT0}, {vT3}")
    a("s_nop 1")
    a(f"v_cndmask_b32 {vJ}, {vJ}, {AD[1]}, vcc")
    a(f"v_cmp_eq_u32 vcc, 6, {vT0}")
    a(f"v_mov_b32 {AD[2]}, 0")
    a("s_nop 0")
    a(f"v_cndmask_b32 {AD[2]}, {AD[2]}, {AD[1]}, vcc")
    a(f"v_cmp_eq_u32 vcc, 3, {vT1}")
    a("s_nop 1")
    a(f"v_cndmask_b32 {vJ}, {vJ}, {AD[2]}, vcc")
    a(f"v_cmp_lt_u32 vcc, 31, {vL}")
    a(f"v_lshlrev_b32 {vT0}, 2, {vL}")
    a("s_nop 0")
    a(f"v_cndmask_b32 {vJ}, {vJ}, {vZ[0]}, vcc")
    a(f"ds_write_b32 {vT0}, {vJ}")
    a.label("K_S_COMMON")
    a(f"s_mov_b32 {sMaskE}, {'0' if opt.get('noE',0) else '0xffffffe0'}")
    a(f"s_mov_b32 {s128}, {0 if opt.get('noH',0) else 128}")
    a(f"s_mov_b32 {sK}, {KW}")
    a(f"s_mov_b32 {s3125}, 3125")
    a(f"s_mov_b32 {sMark}, {MARK}")
    a(f"s_mov_b32 {sCAPq}, {CAPX//4}")
    a(f"s_mov_b32 {sMode}, 0")
    a(f"s_mov_b32 {sChunk}, 0")
    a(f"v_mov_b32 {vOne}, 1")
    a(f"v_mov_b32 {v511}, 511")
    a(f"v_mov_b32 {aL1s}, 0x40000000")
    a(f"v_lshrrev_b32 {vT2}, 5, {vL}")
    a(f"v_bfe_u32 {vT0}, {vL}, 2, 2")
    a(f"v_lshl_add_u32 {vT0}, {vT2}, 3, {vT0}")
    a(f"v_lshlrev_b32 {vTRW}, 7, {vT0}")
    a(f"v_bfe_u32 {vT0}, {vL}, 4, 1")
    a(f"v_lshl_add_u32 {vTRW}, {vT0}, 5, {vTRW}")
    a(f"v_and_b32 {vT0}, 3, {vL}")
    a(f"v_lshl_add_u32 {vTRW}, {vT0}, 3, {vTRW}")
    a.c("LDS init: cell image = sentinel, counters = 0")
    for i in range(4): a(f"v_mov_b32 {WH[i]}, -1")
    a(f"v_lshlrev_b32 {vT0}, 6, v0")
    a(f"v_add_u32 {vT0}, {L_HST}, {vT0}")
    for i in range(4): a(f"ds_write_b128 {vT0}, {WH[0:4]} offset:{16*i}")
    a(f"v_and_b32 {vT0}, 0xff, v0")
    a(f"v_lshlrev_b32 {vT0}, 2, {vT0}")
    a(f"ds_write_b32 {vT0}, {vZ[0]} offset:{L_RES}")
    srd(a,sW,"s80","s81",WSB(opt))
    srd(a,sP,"s66","s67",N*6)
    srd(a,sE,"s68","s69",E*32)
    srd(a,sO,"s76","s77",OUT_BYTES)
    srd(a,sT4c,"s78","s79",256)
    a(f"s_add_u32 {sB[0]}, s80, {BPT}")
    a(f"s_addc_u32 {sB[1]}, s81, 0")
    a(f"s_and_b32 {sB[1]}, {sB[1]}, 0xffff")
    a(f"s_mov_b32 {sB[2]}, {N*128}")
    a(f"s_mov_b32 {sB[3]}, 0x20000")
    if opt.get('tlb',0):
        a.c("wave 2 touches one line per 2 MiB of the buffers used later (address translation warm-up, speed only)")
        a(f"s_cmp_lg_u32 {sWave}, 2")
        a("s_cbranch_scc1 K_NOTLB")
        a(f"v_lshlrev_b32 {vT0}, 21, {vL}")
        a(f"v_mov_b32 {vT1}, 0x40000000")
        a(f"v_cmp_gt_u32 vcc, 13, {vL}")
        a("s_nop 1")
        a(f"v_cndmask_b32 {vT0}, {vT1}, {vT0}, vcc")
        a(f"buffer_load_dword {vDUM}, {vT0}, {sE}, 0 offen")
        a(f"buffer_load_dword {vDUM}, {vT0}, {sW}, 0 offen")
        a(f"buffer_load_dword {vDUM}, {vT0}, {sO}, 0 offen")
        a.label("K_NOTLB")
    a.c("workgroup 0 publishes this launch's hand-off tag")
    a(f"s_or_b32 {sTmp}, s2, {sWave}")
    a(f"s_cmp_lg_u32 {sTmp}, 0")
    a("s_cbranch_scc1 K_S_NOTAG")
    a("s_memrealtime s[100:101]")
    a("s_waitcnt lgkmcnt(0)")
    a("s_or_b32 s100, s100, 1")
    a(f"v_mov_b32 {vT0}, s100")
    a(f"buffer_store_dword {vT0}, {vZ[0]}, {sT4c}, 0 offen sc1")
    a.label("K_S_NOTAG")
    a("s_waitcnt lgkmcnt(0)")
    a("s_barrier")
    a(f"s_mul_i32 {sTmp}, s2, {CH}")
    a(f"s_sub_u32 {sLim}, {E}, {sTmp}")
    a(f"s_min_u32 {sLim}, {sLim}, {CH}")
    B4=D2[0:7]; RC=M[0:7]; RK1=D2[8:15]
    def bin_edges(nrec, el_of, waitcnt, masked):
        if masked:
            for u in range(nrec):
                el_of(u,vT1)
                a(f"v_cmp_gt_u32 {sMask[u]}, {sLim}, {vT1}")
        if waitcnt is not None: a(f"s_waitcnt vmcnt({waitcnt})")
        stamp(a,opt,1)
        for u in range(nrec):
            d=DS_[u]; s_=SR_[u]
            a(f"v_mul_hi_u32 {vT2}, {d}, {sK}")
            el_of(u,vT1)
            a(f"v_lshl_or_b32 {RC[u]}, {s_}, 12, {vT1}")
            a(f"v_lshrrev_b32 {B4[u]}, 1, {vT2}")
            a(f"v_mad_u32_u24 {vT3}, {vT2}, {s3125}, {v511}")
            a(f"v_and_b32 {B4[u]}, 0x3fc, {B4[u]}")
            a(f"v_lshrrev_b32 {vT3}, 9, {vT3}")
            if masked: a(f"s_mov_b64 exec, {sMask[u]}")
            a(f"ds_add_rtn_u32 {RK1[u]}, {B4[u]}, {vOne} offset:{L_RES}")
            if masked: a("s_mov_b64 exec, -1")
            a(f"v_sub_u32 {vT3}, {d}, {vT3}")
            a(f"v_and_b32 {vT2}, 7, {vT2}")
            a(f"v_lshl_or_b32 {vT3}, {vT2}, 3, {vT3}")
            a(f"v_lshl_or_b32 {RC[u]}, {vT3}, 26, {RC[u]}")
        a(f"v_mov_b32 {vT3}, {L_HST}")
        a(f"v_mov_b32 {vJ}, {L_NRES+4}")
        for u in range(nrec):
            if not masked: a(f"s_waitcnt lgkmcnt({nrec-1})")
            elif u==0: a("s_waitcnt lgkmcnt(0)")
            a(f"v_cmp_gt_u32 vcc, 32, {RK1[u]}")
            a(f"v_lshlrev_b32 {vT1}, 3, {RK1[u]}")
            a(f"v_lshrrev_b32 {vT2}, 2, {RK1[u]}")
            a(f"v_and_b32 {vT1}, 0x78, {vT1}")
            a(f"v_lshl_add_u32 {AD[0]}, {B4[u]}, 5, {vT3}")
            a(f"v_and_or_b32 {vT1}, {vT2}, 4, {vT1}")
            a(f"v_add_u32 {vT1}, {vT1}, {AD[0]}")
            a(f"v_cndmask_b32 {vT1}, {vJ}, {vT1}, vcc")
            if masked: a(f"s_mov_b64 exec, {sMask[u]}")
            a(f"ds_write_b32 {vT1}, {RC[u]}")
            if masked: a("s_mov_b64 exec, -1")
    a.c("wait for this wave's edges (younger loads: 12 for waves 5,6; 2 for wave 4; the tag store of workgroup 0)")
    a(f"s_mul_i32 {sTmp}, {sWave}, 384")
    a(f"v_lshl_add_u32 {vT0}, {vL}, 1, {sTmp}")
    a(f"s_cmp_eq_u32 {sWave}, 4")
    a("s_cbranch_scc1 K_S_WT4")
    a(f"s_sub_u32 {sTmp}, {sWave}, 5")
    a(f"s_cmp_lt_u32 {sTmp}, 2")
    a("s_cbranch_scc1 K_S_WT56")
    if opt.get('tlb',0):
        a(f"s_cmp_eq_u32 {sWave}, 2")
        a("s_cbranch_scc1 K_S_WT2")
    a("s_waitcnt vmcnt(0)")
    a("s_branch K_S_WTD")
    if opt.get('tlb',0):
        a.label("K_S_WT2")
        a("s_waitcnt vmcnt(3)")
        a("s_branch K_S_WTD")
    a.label("K_S_WT4")
    a("s_waitcnt vmcnt(2)")
    a("s_branch K_S_WTD")
    a.label("K_S_WT56")
    a("s_waitcnt vmcnt(12)")
    a.label("K_S_WTD")
    def el6(u,r): a(f"v_add_u32 {r}, {128*(u>>1)+(u&1)}, {vT0}")
    def el7(u,r):
        if u<6: el6(u,r)
        else: a(f"v_add_u32 {r}, 3072, {vL}")
    a(f"s_cmp_lt_u32 {sLim}, {CH}")
    a("s_cbranch_scc1 K_S_APPM")
    a(f"s_cmp_eq_u32 {sWave}, 7")
    a("s_cbranch_scc1 K_S_APP7")
    bin_edges(6, el6, None, False)
    a("s_branch K_S_APPD")
    a.label("K_S_APP7")
    bin_edges(7, el7, None, False)
    a("s_branch K_S_APPD")
    a.label("K_S_APPM")
    a(f"s_cmp_eq_u32 {sWave}, 7")
    a("s_cbranch_scc1 K_S_APPM7")
    bin_edges(6, el6, None, True)
    a("s_branch K_S_APPD")
    a.label("K_S_APPM7")
    bin_edges(7, el7, None, True)
    a.label("K_S_APPD")
    load_hwin()
    a(f"s_cmp_lg_u32 {sWave}, 7")
    a("s_cbranch_scc1 K_S_NORAW")
    a.c("wave 7: raw w_e -> LDS (needed after barrier C)")
    for i in range(19):
        a(f"s_mov_b32 {sTmp}, {L_RAWW+i*1024}")
        a(f"s_mov_b32 m0, {sTmp}")
        a(f"s_mov_b32 {sTmp2}, {i*1024}")
        a(f"buffer_load_dwordx4 {vL16}, {sT4b}, {sTmp2} offen lds")
    a.label("K_S_NORAW")
    a.c("waves 0, 5, 6 fetch the hand-off tag")
    a(f"s_lshl_b32 {sTmp}, 1, {sWave}")
    a(f"s_and_b32 {sTmp}, {sTmp}, 0x61")
    a("s_cbranch_scc0 K_S_NOTAG2")
    a(f"buffer_load_dword {aE}, {vZ[0]}, {sT4c}, 0 offen sc1")
    a.label("K_S_NOTAG2")
    a("s_waitcnt lgkmcnt(0)")
    stamp(a,opt,14) if not opt.get('dbgfill',0) else None
    a("s_barrier")
    stamp(a,opt,2)
    def setup_static():
        a(f"v_and_b32 {vT1}, 31, {vL}")
        a(f"v_lshrrev_b32 {vT2}, 5, {vL}")
        a(f"v_lshlrev_b32 {vT0}, 3, {vT2}")
        a(f"v_sub_u32 {vT0}, {vT1}, {vT0}")
        a(f"v_mov_b32 {AD[2]}, 0x3f80")
        a(f"v_mov_b32 {AD[3]}, 0x3f800000")
        for sp in range(2):
            for r in range(4):
                k0=16*sp+2*r
                a(f"v_cmp_eq_u32 vcc, {k0}, {vT0}")
                a(f"v_cmp_eq_u32 {sSave}, {k0+1}, {vT0}")
                a("s_nop 0")
                a(f"v_cndmask_b32 {ID[4*sp+r]}, {vZ[0]}, {AD[2]}, vcc")
                a(f"v_cndmask_b32 {ID[4*sp+r]}, {ID[4*sp+r]}, {AD[3]}, {sSave}")
        a(f"v_cmp_lt_u32 vcc, 31, {vL}")
        a("s_nop 1")
        for i in range(1,4): a(f"v_mov_b32 {ONE[i]}, 0")
        a(f"v_cndmask_b32 {ONE[0]}, {AD[2]}, {vZ[0]}, vcc")
        for i in range(3):
            a(f"v_mov_b32 {PS[i]}, 0"); a(f"v_mov_b32 {PD[i]}, 0")
        a.c("static per-lane addresses of the main loop (window offsets are added after the assignment)")
        a(f"v_and_b32 {vT1}, 31, {vL}")
        a(f"v_lshrrev_b32 {vT2}, 5, {vL}")
        a(f"v_mov_b32 {vT3}, {L_A2}")
        a(f"v_lshl_add_u32 {vE64}, {vT1}, 6, {vT3}")
        a(f"v_bfe_u32 {vT0}, {vL}, 2, 2")
        a(f"v_lshl_add_u32 {vT0}, {vT2}, 2, {vT0}")
        a(f"v_lshl_add_u32 {vTR}, {vT0}, 6, {vT3}")
        a(f"v_bfe_u32 {vT0}, {vL}, 4, 1")
        a(f"v_lshl_add_u32 {vTR}, {vT0}, 5, {vTR}")
        a(f"v_and_b32 {vT0}, 3, {vL}")
        a(f"v_lshl_add_u32 {vTR}, {vT0}, 3, {vTR}")
        a(f"s_lshl_b32 {sHST}, {sWave}, 12")
        a(f"s_add_u32 {sHST}, {sHST}, {L_HST}")
        for i in range(4): a(f"s_add_u32 {sM0[i]}, {sHST}, {1024*i}")
        a(f"v_and_b32 {vT0}, 3, {vT1}")
        a(f"v_bfe_u32 {vT3}, {vT1}, 4, 1")
        a(f"v_lshl_or_b32 {vT3}, {vT3}, 2, {vT0}")
        a(f"v_lshlrev_b32 {vT0}, 3, {vT0}")
        a(f"v_lshrrev_b32 {vJ}, 2, {vT1}")
        a(f"v_add_u32 {vT0}, {vT0}, {vJ}")
        a(f"v_lshl_add_u32 {vT0}, {vT0}, 7, {sHST}")
        for s_ in range(4):
            a(f"v_add_u32 {vJ}, {2*s_}, {vT2}")
            a(f"v_xor_b32 {vJ}, {vJ}, {vT3}")
            a(f"v_lshl_add_u32 {vHA[s_]}, {vJ}, 4, {vT0}")
        a(f"v_and_b32 {vT0}, 7, {vL}")
        a(f"v_lshlrev_b32 {vT3}, 2, {vT2}")
        a(f"v_xor_b32 {vT0}, {vT0}, {vT3}")
        for i in range(4):
            a(f"v_xor_b32 {vJ}, {i}, {vT0}")
            a(f"v_lshlrev_b32 {vKD[i]}, 4, {vJ}")
        a(f"s_mov_b32 {sCAP}, {CAP}")
        a(f"s_sub_u32 {sTgt}, 11, {sWave}")
        a(f"s_cmp_lt_u32 {sWave}, 4")
        a(f"s_cselect_b32 {sTgt}, {sWave}, {sTgt}")
        a(f"v_lshrrev_b32 {aPS}, 3, {vL}")
        a(f"v_and_b32 {aPD}, 7, {vL}")
        a(f"v_lshlrev_b32 {aOH}, 2, {aPS}")
        a(f"v_lshlrev_b32 {SS}, 2, {aPD}")
    a(f"s_cmp_gt_u32 {sWave}, 3")
    a("s_cbranch_scc1 K_S_NOCOPY")
    a.c("waves 0..3 copy the cell image out: eight 16 B pieces per thread")
    a(f"v_lshlrev_b32 {vT0}, 4, v0")
    a(f"v_add_u32 {vT0}, {L_HST}, {vT0}")
    a(f"v_lshrrev_b32 {vT1}, 3, v0")
    a(f"v_lshlrev_b32 {vT2}, 2, {vT1}")
    CP=[D1[4*k:4*k+4] for k in range(8)]
    for k in range(4):
        a(f"ds_read_b128 {CP[k]}, {vT0} offset:{4096*k}")
        a(f"ds_read_b32 {D2[k]}, {vT2} offset:{L_RES+128*k}")
    a(f"v_and_b32 {vT3}, 7, v0")
    a(f"v_cmp_eq_u32 vcc, 0, {vT3}")
    a(f"v_mov_b32 {vJ}, -1")
    a(f"v_lshlrev_b32 {vT1}, 15, {vT1}")
    a(f"v_cndmask_b32_e64 {AD[1]}, -1, -2, vcc")
    a(f"v_lshl_add_u32 {vT1}, {vT3}, 4, {vT1}")
    a(f"s_lshl_b32 {sTmp}, s2, 7")
    for k in range(8):
        if k<4:
            a(f"ds_read_b128 {CP[k+4]}, {vT0} offset:{4096*(k+4)}")
            a(f"ds_read_b32 {D2[k+4]}, {vT2} offset:{L_RES+128*(k+4)}")
            a("s_waitcnt lgkmcnt(8)")
        else:
            a(f"s_waitcnt lgkmcnt({2*(7-k)})")
        a(f"v_cmp_lt_u32 vcc, 32, {D2[k]}")
        a(f"s_add_u32 {sTmp2}, {sTmp}, {k*32*32768}")
        a("s_nop 0")
        a(f"v_cndmask_b32 {CP[k][0]}, {CP[k][0]}, {AD[1]}, vcc")
        for i in range(1,4): a(f"v_cndmask_b32 {CP[k][i]}, {CP[k][i]}, {vJ}, vcc")
        a(f"buffer_store_dwordx4 {CP[k]}, {vT1}, {sW}, {sTmp2} offen{ST}")
    a("s_branch K_S_STATIC")
    a.label("K_S_NOCOPY")
    a(f"s_sub_u32 {sTmp}, {sWave}, 5")
    a(f"s_cmp_lt_u32 {sTmp}, 2")
    a("s_cbranch_scc0 K_S_POS")
    a.c("waves 5,6: source-node table B' = -log2e * h @ W2 for 32 nodes")
    a(f"v_add_u32 {vT0}, {sC}, {vTRW}")
    a("s_waitcnt vmcnt(5)")
    for s_ in range(4):
        for x in range(2):
            for th in range(2):
                r=(s_*2+x)*4+2*th
                a(f"ds_read_b64_tr_b16 {D1[r:r+2]}, {vT0} offset:{s_*2048+th*512+x*64}")
    a("s_waitcnt lgkmcnt(0)")
    for x in range(2):
        for s_ in range(4):
            r=(s_*2+x)*4
            mfma(a,D2[16*x:16*x+16],D1[r:r+4],HA[4*s_:4*s_+4],"0" if s_==0 else D2[16*x:16*x+16])
    a(f"s_mul_i32 {sTmp}, {sI}, {32*144}")
    a(f"s_add_u32 {sTmp}, {sTmp}, {L_BST}")
    a(f"v_and_b32 {vT1}, 31, {vL}")
    a(f"v_mul_u32_u24 {vT1}, 144, {vT1}")
    a(f"v_lshrrev_b32 {vT2}, 5, {vL}")
    a(f"v_lshl_add_u32 {vT1}, {vT2}, 3, {vT1}")
    a(f"v_add_u32 {vT1}, {sTmp}, {vT1}")
    a(f"v_lshrrev_b32 {vT2}, 3, {vL}")
    a(f"v_mul_u32_u24 {vT3}, 144, {vT2}")
    a(f"v_and_b32 {vJ}, 7, {vL}")
    a(f"v_lshl_add_u32 {vT3}, {vJ}, 4, {vT3}")
    a(f"v_add_u32 {vT3}, {sTmp}, {vT3}")
    a(f"s_mov_b32 {sTmp2}, {NEG_LOG2E}")
    a.nop(4)
    for x in range(2):
        for q in range(16): a(f"v_mul_f32 {D2[16*x+q]}, {sTmp2}, {D2[16*x+q]}")
        for qq in range(4):
            b=16*x+4*qq
            a(f"v_cvt_pk_bf16_f32 {E01[0]}, {D2[b]}, {D2[b+1]}")
            a(f"v_cvt_pk_bf16_f32 {E01[1]}, {D2[b+2]}, {D2[b+3]}")
            a(f"ds_write_b64 {vT1}, {E01} offset:{x*64+qq*16}")
            a("s_nop 0")
    for i in range(4): a(f"ds_read_b128 {D1[4*i:4*i+4]}, {vT3} offset:{i*8*144}")
    a(f"s_lshl_b32 {sTmp2}, {sI}, 5")
    a(f"v_add_u32 {vT2}, {sTmp2}, {vT2}")
    a(f"s_mul_i32 {sTmp}, s2, {NPW}")
    a(f"v_add_u32 {vT0}, {sTmp}, {vT2}")
    a(f"v_lshlrev_b32 {vT1}, 7, {vT0}")
    a(f"v_lshl_add_u32 {vT1}, {vJ}, 4, {vT1}")
    a(f"v_mov_b32 {vJ}, 0x40000000")
    a("s_waitcnt lgkmcnt(0)")
    for i in range(4):
        a(f"v_add_u32 {vT3}, {8*i}, {vT2}")
        a(f"v_cmp_gt_u32 vcc, {NPW}, {vT3}")
        a(f"v_add_u32 {AD[0]}, {1024*i}, {vT1}")
        a("s_nop 0")
        a(f"v_cndmask_b32 {AD[0]}, {vJ}, {AD[0]}, vcc")
        a(f"buffer_store_dwordx4 {D1[4*i:4*i+4]}, {AD[0]}, {sB}, 0 offen{ST}")
    a("s_waitcnt vmcnt(4)")
    a("s_branch K_S_STATIC")
    a.label("K_S_POS")
    a.label("K_S_STATIC")
    setup_static()
    a.c("waves 0..3: every cell store has left; waves 4, 7: raw w_e / window rows landed; waves 5, 6 signal their rows later")
    a(f"s_sub_u32 {sTmp}, {sWave}, 5")
    a(f"s_cmp_lt_u32 {sTmp}, 2")
    a("s_cbranch_scc1 K_S_PREC")
    a("s_waitcnt vmcnt(0)")
    a.label("K_S_PREC")
    a("s_waitcnt lgkmcnt(0)")
    stamp(a,opt,15) if not opt.get('dbgfill',0) else None
    a("s_barrier")
    stamp(a,opt,3)
    def have_tag(lbl):
        a(f"s_mov_b32 {sPoll}, 0")
        a.label(lbl)
        a(f"v_readfirstlane_b32 {sNonce}, {aE}")
        a("s_nop 3")
        a(f"s_cmp_lg_u32 {sNonce}, 0")
        a(f"s_cbranch_scc1 {lbl}_OK")
        a(f"s_add_u32 {sPoll}, {sPoll}, 1")
        a(f"s_cmp_gt_u32 {sPoll}, 200000")
        a(f"s_cbranch_scc1 {lbl}_OK")
        a("s_sleep 2")
        a(f"buffer_load_dword {aE}, {vZ[0]}, {sT4c}, 0 offen sc1")
        a("s_waitcnt vmcnt(0)")
        a(f"s_branch {lbl}")
        a.label(f"{lbl}_OK")
    a(f"s_cmp_lg_u32 {sWave}, 0")
    a("s_cbranch_scc1 K_G_NOT0")
    a.c("wave 0: signal this workgroup's cells, publish the tag to the workgroup")
    have_tag("K_G_TAG")
    a(f"s_lshl_b32 {sTmp}, s2, 4")
    a(f"s_add_u32 {sTmp}, {sTmp}, {FLG}")
    a(f"v_mov_b32 {vT0}, {sNonce}")
    a(f"buffer_store_dword {vT0}, {vZ[0]}, {sW}, {sTmp} offen sc1")
    a(f"ds_write_b32 {vZ[0]}, {vT0} offset:{L_NRES+8}")
    a("s_branch K_G_SETUP")
    a.label("K_G_NOT0")
    a(f"s_cmp_lt_u32 {sWave}, 4")
    a("s_cbranch_scc1 K_G_WH")
    a(f"s_sub_u32 {sTmp}, {sWave}, 5")
    a(f"s_cmp_lt_u32 {sTmp}, 2")
    a("s_cbranch_scc1 K_G_SETUP")
    a.c("waves 4, 7: pos table -> LDS (37 pieces each)")
    a(f"s_cmp_eq_u32 {sWave}, 7")
    a(f"s_cselect_b32 {sI}, {37*1024}, 0")
    for i in range(37):
        a(f"s_add_u32 {sTmp}, {sI}, {i*1024}")
        a(f"s_add_u32 {sTmp2}, {sTmp}, {L_POS}")
        a(f"s_mov_b32 m0, {sTmp2}")
        a("s_nop 0")
        a(f"buffer_load_dwordx4 {vL16}, {sP}, {sTmp} offen lds")
    a("s_branch K_G_SETUP")
    a.label("K_G_WH")
    a.c("waves 1..3: raw w_h -> staging area")
    a("s_load_dwordx2 s[64:65], s[0:1], 56")
    a(f"s_sub_u32 {sI}, {sWave}, 1")
    a("s_waitcnt lgkmcnt(0)")
    srd(a,sT4b,"s64","s65",128*128)
    for k in range(6):
        a(f"s_add_u32 {sTmp}, {sI}, {3*k}")
        a(f"s_min_u32 {sTmp}, {sTmp}, 15")
        a(f"s_lshl_b32 {sTmp}, {sTmp}, 10")
        a(f"s_add_u32 {sTmp2}, {sTmp}, {L_HST}")
        a(f"s_mov_b32 m0, {sTmp2}")
        a("s_nop 0")
        a(f"buffer_load_dwordx4 {vL16}, {sT4b}, {sTmp} offen lds")
    a.label("K_G_SETUP")
    a.c("operands from raw w_e: W1 (for A'), W4', wd'")
    W1=D2
    a(f"v_add_u32 {vT0}, {L_RAWW}, {vTRW}")
    for s_ in range(4):
        for x in range(2):
            for th in range(2):
                r=(s_*2+x)*4+2*th
                a(f"ds_read_b64_tr_b16 {W1[r:r+2]}, {vT0} offset:{s_*2048+th*512+x*64}")
    W4R=HA[0:8]
    for x in range(2):
        for th in range(2):
            a(f"ds_read_b64_tr_b16 {W4R[4*x+2*th:4*x+2*th+2]}, {vT0} offset:{129*128+th*512+x*64}")
    WD=M[0:2]
    a(f"v_mov_b32 {WD[0]}, 0")
    a(f"v_mov_b32 {WD[1]}, 0")
    a(f"v_and_b32 {vT1}, 31, {vL}")
    a(f"v_lshlrev_b32 {vT2}, 1, {vT1}")
    a(f"v_add_u32 {vT2}, {L_RAWW+128*128}, {vT2}")
    a(f"ds_read_u16_d16_hi {WD[0]}, {vT2}")
    a(f"ds_read_u16_d16_hi {WD[1]}, {vT2} offset:64")
    a("s_waitcnt lgkmcnt(0)")
    for x in range(2):
        for s_ in range(4):
            mfma(a,D1[16*x:16*x+16],HW[4*s_:4*s_+4],W1[(s_*2+x)*4:(s_*2+x)*4+4],"0" if s_==0 else D1[16*x:16*x+16])
    a(f"s_mov_b32 {sTmp}, {NEG_LOG2E}")
    for i in range(8):
        a(f"v_lshlrev_b32 {vT0}, 16, {W4R[i]}")
        a(f"v_and_b32 {vT2}, 0xffff0000, {W4R[i]}")
        a(f"v_mul_f32 {vT0}, {sTmp}, {vT0}")
        a(f"v_mul_f32 {vT2}, {sTmp}, {vT2}")
        a(f"v_cvt_pk_bf16_f32 {WE[i]}, {vT0}, {vT2}")
    a(f"v_cmp_lt_u32 vcc, 31, {vL}")
    for x in range(2):
        a(f"v_mul_f32 {WD[x]}, {sTmp}, {WD[x]}")
        a(f"v_cvt_pk_bf16_f32 {vT0}, {WD[x]}, {WD[x]}")
        a(f"v_and_b32 {vT0}, 0xffff0000, {vT0}")
        a(f"v_sub_f32 {vT2}, {WD[x]}, {vT0}")
        a(f"v_cvt_pk_bf16_f32 {vT2}, {vT2}, {vT2}")
        a(f"v_and_b32 {vT2}, 0xffff0000, {vT2}")
        a(f"v_cndmask_b32 {WD[x]}, {vT0}, {vT2}, vcc")
    a(f"s_cmp_lg_u32 {sWave}, 0")
    a("s_cbranch_scc1 K_G_NOEARLY")
    a(f"s_mov_b32 {sTmp2}, {FLG}")
    for k in range(4): a(f"buffer_load_dword {AD[k]}, {vL16}, {sW}, {sTmp2} offen offset:{1024*k} sc1")
    a.label("K_G_NOEARLY")
    a(f"v_cmp_lt_u32 vcc, 31, {vL}")
    a(f"v_mov_b32 {vJ}, 0xffff")
    for x in range(2):
        for r in range(4):
            q0,q1=D1[16*x+2*r],D1[16*x+2*r+1]
            a(f"v_mul_f32 {q0}, {sTmp}, {q0}")
            a(f"v_mul_f32 {q1}, {sTmp}, {q1}")
            a(f"v_cvt_pk_bf16_f32 {vT0}, {q0}, {q1}")
            a(f"v_lshlrev_b32 {vT1}, 16, {vT0}")
            a(f"v_and_b32 {vT2}, 0xffff0000, {vT0}")
            a(f"v_sub_f32 {vT1}, {q0}, {vT1}")
            a(f"v_sub_f32 {vT2}, {q1}, {vT2}")
            a(f"v_cvt_pk_bf16_f32 {vT1}, {vT1}, {vT2}")
            a(f"v_cndmask_b32 {WA[4*x+r]}, {vT0}, {vT1}, vcc")
        a(f"v_bfi_b32 {WA[4*x+3]}, {vJ}, {WA[4*x+3]}, {WD[x]}")
    a(f"s_lshl_b32 {sTmp}, {sWave}, 11")
    a(f"s_add_u32 {sTmp}, {sTmp}, {L_A2}")
    a(f"v_lshl_add_u32 {vT0}, {vL}, 5, {sTmp}")
    a(f"ds_write_b128 {vT0}, {WA[0:4]}")
    a(f"ds_write_b128 {vT0}, {WA[4:8]} offset:16")
    for i in range(32): a(f"v_mov_b32 {D2[i]}, 0")
    a(f"s_sub_u32 {sTmp}, {sWave}, 5")
    a(f"s_cmp_lt_u32 {sTmp}, 2")
    a("s_cbranch_scc0 K_G_NOFLG2")
    a.c("waves 5,6: their rows have left -> signal them")
    a("s_waitcnt vmcnt(0)")
    have_tag("K_G_TAG2")
    a(f"s_lshl_b32 {sTmp}, s2, 1")
    a(f"s_add_u32 {sTmp}, {sTmp}, {sWave}")
    a(f"s_sub_u32 {sTmp}, {sTmp}, 5")
    a(f"s_lshl_b32 {sTmp}, {sTmp}, 4")
    a(f"s_add_u32 {sTmp}, {sTmp}, {FLG2}")
    a(f"v_mov_b32 {vT0}, {sNonce}")
    a(f"buffer_store_dword {vT0}, {vZ[0]}, {sW}, {sTmp} offen sc1")
    a.label("K_G_NOFLG2")
    a(f"s_cmp_lg_u32 {sWave}, 0")
    a("s_cbranch_scc1 K_G_WAIT")
    a.c("wave 0: wait for all 256 hand-offs (the first round of flag loads is already in flight)")
    a(f"s_mov_b32 {sTmp2}, {FLG}")
    a("s_branch K_G_POLL1")
    a.label("K_G_POLL")
    for k in range(4): a(f"buffer_load_dword {AD[k]}, {vL16}, {sW}, {sTmp2} offen offset:{1024*k} sc1")
    a.label("K_G_POLL1")
    a("s_waitcnt vmcnt(0)")
    a(f"v_cmp_eq_u32 {sAny}, {sNonce}, {AD[0]}")
    a(f"v_cmp_eq_u32 {sSave}, {sNonce}, {AD[1]}")
    a(f"v_cmp_eq_u32 vcc, {sNonce}, {AD[2]}")
    a("s_nop 1")
    a(f"s_and_b64 {sAny}, {sAny}, {sSave}")
    a(f"v_cmp_eq_u32 {sSave}, {sNonce}, {AD[3]}")
    a(f"s_and_b64 {sAny}, {sAny}, vcc")
    a("s_nop 1")
    a(f"s_and_b64 {sAny}, {sAny}, {sSave}")
    a(f"s_cmp_eq_u64 {sAny}, -1")
    a("s_cbranch_scc1 K_G_WAIT")
    a(f"s_add_u32 {sPoll}, {sPoll}, 1")
    a(f"s_cmp_lt_u32 {sPoll}, 200000")
    a("s_cbranch_scc1 K_G_POLL")
    a.label("K_G_WAIT")
    a.c("waves 4 and 7 keep their pos pieces in flight: their cell loads return behind them")
    a(f"s_lshl_b32 {sTmp}, 1, {sWave}")
    a(f"s_and_b32 {sTmp}, {sTmp}, 0x90")
    a("s_cbranch_scc1 K_G_WAIT47")
    a("s_waitcnt vmcnt(0)")
    a.label("K_G_WAIT47")
    a("s_waitcnt lgkmcnt(0)")
    for _ in range(opt.get('delay',0)): a("s_sleep 32")
    a("s_barrier")
    stamp(a,opt,4)
    RECP=D1[0:16]; REC=[RECP[2*i] for i in range(8)]+[RECP[2*i+1] for i in range(8)]; WAD=D1[16:32]; RK=HA
    a.c("cell records of this bin: pair s holds slots m and 16+m (m = l&15) of cell 32s+4v+(l>>4)")
    a(f"s_lshl_b32 {sTmp}, s2, 15")
    a(f"s_lshl_b32 {sTmp2}, {sWave}, 9")
    a(f"s_add_u32 {sTmp}, {sTmp}, {sTmp2}")
    a(f"v_lshl_add_u32 {vT0}, {vL}, 3, {sTmp}")
    ROT=opt.get('rot',0)
    if ROT==1: a(f"s_getreg_b32 {sRot}, hwreg(HW_REG_XCC_ID, 0, 4)")
    elif ROT==2: a(f"s_and_b32 {sRot}, s2, 7")
    elif ROT==3:
        a(f"s_getreg_b32 {sRot}, hwreg(HW_REG_XCC_ID, 0, 4)")
        a(f"s_and_b32 {sRot}, {sRot}, 3")
        a(f"s_lshl_b32 {sRot}, {sRot}, 1")
    else: a(f"s_mov_b32 {sRot}, 0")
    def pair_index(dst,s_):
        a(f"s_add_u32 {dst}, {sRot}, {s_}")
        a(f"s_and_b32 {dst}, {dst}, 7")
    for s_ in range(8):
        pair_index(sTmp,s_)
        a(f"s_lshl_b32 {sTmp}, {sTmp}, 12")
        a(f"buffer_load_dwordx2 {RECP[2*s_:2*s_+2]}, {vT0}, {sW}, {sTmp} offen{LD}")
    a(f"v_lshlrev_b32 {vT2}, 1, {vL}")
    a(f"v_and_b32 {vT2}, 62, {vT2}")
    a("s_load_dwordx2 s[98:99], s[0:1], 48")
    a.c("node-update weights (transposed reads of raw w_h), waves 0..3 use them")
    a(f"s_and_b32 {sTmp}, {sWave}, 1")
    a(f"s_lshl_b32 {sTmp}, {sTmp}, 6")
    a(f"s_add_u32 {sTmp}, {sTmp}, {L_HST}")
    a(f"v_add_u32 {vT1}, {sTmp}, {vTRW}")
    for s_ in range(8):
        for th in range(2):
            a(f"ds_read_b64_tr_b16 {WH[4*s_+2*th:4*s_+2*th+2]}, {vT1} offset:{s_*2048+th*512}")
            if (2*s_+th)==7: a("s_waitcnt lgkmcnt(0)")
    srd(a,sT4,"s98","s99",128)
    a(f"v_mov_b32 {WX[0]}, 0")
    a(f"v_mov_b32 {WX[1]}, 0")
    a(f"buffer_load_short_d16_hi {WX[0]}, {vT2}, {sT4}, 0 offen")
    a(f"buffer_load_short_d16_hi {WX[1]}, {vT2}, {sT4}, 0 offen offset:64")
    a("s_waitcnt vmcnt(2)")
    stamp(a,opt,5)
    a(f"s_mov_b64 {sAny}, 0")
    for s_ in range(16):
        a(f"v_cmp_gt_u32 {sMask[s_]}, {sMark}, {REC[s_]}")
        if s_<8:
            a(f"v_cmp_eq_u32 vcc, {sMark}, {REC[s_]}")
        a(f"v_lshrrev_b32 {WAD[s_]}, 27, {REC[s_]}")
        a(f"v_and_b32 {WAD[s_]}, 0x1c, {WAD[s_]}")
        if s_<8: a(f"s_or_b64 {sAny}, {sAny}, vcc")
    order=[x for p in range(8) for x in (p,8+p)]
    for n_,s_ in enumerate(order):
        a(f"s_mov_b64 exec, {sMask[s_]}")
        if s_>=8: a(f"s_cbranch_execz K2_A{s_}")
        a(f"ds_add_rtn_u32 {RK[s_]}, {WAD[s_]}, {vOne} offset:{L_CNT}")
        if s_>=8: a.label(f"K2_A{s_}")
        if n_==7:
            a("s_waitcnt lgkmcnt(4)")
    a("s_mov_b64 exec, -1")
    FL=A2R
    def flg2_loads():
        a(f"s_mov_b32 {sTmp2}, {FLG2}")
        for k in range(4): a(f"buffer_load_dword {FL[k]}, {vL16}, {sW}, {sTmp2} offen offset:{1024*k} sc1")
        a(f"s_mov_b32 {sTmp2}, {FLG2+4096}")
        for k in range(4): a(f"buffer_load_dword {FL[4+k]}, {vL16}, {sW}, {sTmp2} offen offset:{1024*k} sc1")
    a(f"s_cmp_lg_u32 {sWave}, 1")
    a("s_cbranch_scc1 K2_NOF2A")
    a.c("wave 1: flags of the source-node table (checked before barrier 2)")
    flg2_loads()
    a(f"ds_read_b32 {aE}, {vZ[0]} offset:{L_NRES+8}")
    a.label("K2_NOF2A")
    a(f"s_lshl_b32 {sTmp}, {sWave}, 2")
    a(f"v_lshrrev_b32 {vT0}, 4, {vL}")
    a(f"v_add_u32 {vT0}, {sTmp}, {vT0}")
    a(f"v_mul_u32_u24 {vT0}, {CH}, {vT0}")
    a(f"v_mov_b32 {vT1}, {L_L0}")
    a(f"v_mov_b32 {vT2}, {L_L1}")
    a("s_waitcnt lgkmcnt(0)")
    for s_ in order:
        a(f"s_mov_b64 exec, {sMask[s_]}")
        if s_>=8: a(f"s_cbranch_execz K2_B{s_}")
        pair_index(sTmp,s_&7)
        a(f"s_mul_i32 {sTmp}, {sTmp}, {32*CH}")
        a(f"v_min_u32 {RK[s_]}, {CAPX-1}, {RK[s_]}")
        a(f"v_and_b32 {vT3}, 0xfff, {REC[s_]}")
        a(f"v_mad_u32_u24 {RK[s_]}, {WAD[s_]}, {sCAPq}, {RK[s_]}")
        a(f"v_add3_u32 {vT3}, {vT3}, {vT0}, {sTmp}")
        a(f"v_bfe_u32 {vJ}, {REC[s_]}, 26, 3")
        a(f"v_lshl_add_u32 {AD[0]}, {RK[s_]}, 2, {vT1}")
        a(f"v_lshl_or_b32 {vT3}, {vT3}, 5, {vJ}")
        a(f"v_lshl_add_u32 {AD[1]}, {RK[s_]}, 1, {vT2}")
        a(f"v_bfe_u32 {vJ}, {REC[s_]}, 12, 14")
        a(f"ds_write_b32 {AD[0]}, {vT3}")
        a(f"ds_write_b16 {AD[1]}, {vJ}")
        if s_>=8: a.label(f"K2_B{s_}")
    a("s_mov_b64 exec, -1")
    NE=opt.get('epf',0)
    if NE:
        a.c("L2 warm-up of the e_attr lines of the first records (speed only; results are never read)")
        a(f"s_lshl_b32 {sTmp}, {sWave}, 2")
        a(f"v_lshrrev_b32 {vT0}, 4, {vL}")
        a(f"v_add_u32 {vT0}, {sTmp}, {vT0}")
        a(f"v_mul_u32_u24 {vT0}, {CH}, {vT0}")
        a(f"v_mov_b32 {vT2}, 0x2000000")
        for k in range(NE):
            a(f"v_cmp_gt_u32 vcc, {sMark}, {REC[k]}")
            a(f"v_and_b32 {vT1}, 0xfff, {REC[k]}")
            pair_index(sTmp,k)
            a(f"s_mul_i32 {sTmp}, {sTmp}, {32*CH}")
            a(f"v_add3_u32 {vT1}, {vT1}, {vT0}, {sTmp}")
            a(f"v_cndmask_b32 {vT1}, {vT2}, {vT1}, vcc")
            a(f"v_lshlrev_b32 {vT1}, 5, {vT1}")
            a(f"buffer_load_dword {vDUM}, {vT1}, {sE}, 0 offen")
    a.c("overflowed cells -> rescan list (rare)")
    a(f"s_cmp_eq_u64 {sAny}, 0")
    a("s_cbranch_scc1 K2_NOMARK")
    a(f"v_lshrrev_b32 {vT0}, 4, {vL}")
    a(f"s_lshl_b32 {sTmp}, {sWave}, 2")
    a(f"v_add_u32 {vT0}, {sTmp}, {vT0}")
    a(f"v_mov_b32 {vT1}, {L_NRES}")
    for s_ in range(8):
        a(f"v_cmp_eq_u32 vcc, {sMark}, {REC[s_]}")
        a(f"s_and_saveexec_b64 {sSave}, vcc")
        a(f"s_cbranch_execz K2_MK{s_}")
        a(f"ds_add_rtn_u32 {vT2}, {vT1}, {vOne}")
        pair_index(sTmp,s_)
        a(f"s_lshl_b32 {sTmp}, {sTmp}, 5")
        a(f"v_add_u32 {vT3}, {sTmp}, {vT0}")
        a("s_waitcnt lgkmcnt(0)")
        a(f"v_lshlrev_b32 {vT2}, 2, {vT2}")
        a(f"ds_write_b32 {vT2}, {vT3} offset:{L_RES}")
        a.label(f"K2_MK{s_}")
        a(f"s_mov_b64 exec, {sSave}")
    a.label("K2_NOMARK")
    a("s_load_dwordx2 s[64:65], s[0:1], 0")
    a("s_waitcnt vmcnt(0) lgkmcnt(0)")
    a(f"s_cmp_lg_u32 {sWave}, 1")
    a("s_cbranch_scc1 K2_NOF2B")
    a(f"v_readfirstlane_b32 {sNonce}, {aE}")
    a(f"s_mov_b32 {sPoll}, 0")
    a("s_nop 1")
    a.label("K2_F2CHK")
    a(f"v_cmp_eq_u32 {sAny}, {sNonce}, {FL[0]}")
    for k in range(1,8):
        a(f"v_cmp_eq_u32 vcc, {sNonce}, {FL[k]}")
        a("s_nop 1")
        a(f"s_and_b64 {sAny}, {sAny}, vcc")
    a(f"s_cmp_eq_u64 {sAny}, -1")
    a("s_cbranch_scc1 K2_NOF2B")
    a(f"s_add_u32 {sPoll}, {sPoll}, 1")
    a(f"s_cmp_gt_u32 {sPoll}, 200000")
    a("s_cbranch_scc1 K2_NOF2B")
    flg2_loads()
    a("s_waitcnt vmcnt(0)")
    a("s_branch K2_F2CHK")
    a.label("K2_NOF2B")
    srd(a,sHs,"s64","s65",N*128)
    a(f"s_mov_b32 {sTmp}, {NEG_LN2}")
    a(f"v_mul_f32 {WX[0]}, {sTmp}, {WX[0]}")
    a(f"v_mul_f32 {WX[1]}, {sTmp}, {WX[1]}")
    stamp(a,opt,6)
    a("s_barrier")
    stamp(a,opt,7)
    a.c("window sizes (lane = pair i,k) and the rescan count")
    a(f"v_mov_b32 {vT0}, {L_NRES}")
    a(f"ds_read_b32 {vT1}, {vT0}")
    a(f"ds_read_b32 {vT2}, {aOH} offset:{L_CNT}")
    a(f"ds_read_b32 {vT3}, {SS} offset:{L_CNT}")
    a("s_waitcnt lgkmcnt(0)")
    a(f"v_readfirstlane_b32 {sNR}, {vT1}")
    a(f"v_min_u32 {vT0}, 0xffffff, {vT2}")
    a(f"v_min_u32 {vJ}, 0xffffff, {vT3}")
    a(f"s_cmp_eq_u32 {sNR}, 0")
    a("s_cbranch_scc1 K2_CHECK")
    a(f"s_min_u32 {sNR}, {sNR}, 256")
    a(f"s_mov_b32 {sI}, 0")
    a.label("K2_RESCAN_I")
    a(f"s_lshl_b32 {sTmp}, {sI}, 2")
    a(f"s_add_u32 {sTmp}, {sTmp}, {L_RES}")
    a(f"v_mov_b32 {vT0}, {sTmp}")
    a(f"ds_read_b32 {vT1}, {vT0}")
    a("s_waitcnt lgkmcnt(0)")
    a(f"v_readfirstlane_b32 {sWsrc}, {vT1}")
    a("s_nop 3")
    a(f"s_min_u32 {sWsrc}, {sWsrc}, 255")
    a(f"s_mov_b32 {sC}, 0")
    a.label("K2_RESCAN_C")
    def append_raw(lim_local):
        a(f"v_lshlrev_b32 {vT1}, 2, {vT0}")
        a(f"buffer_load_dword {AD[0]}, {vT1}, {sD}, 0 offen")
        a(f"buffer_load_dword {AD[1]}, {vT1}, {sS}, 0 offen")
        a("s_waitcnt vmcnt(0)")
        a(f"v_mul_hi_u32 {vT2}, {AD[0]}, {sK}")
        a(f"v_lshrrev_b32 {vT3}, 3, {vT2}")
        a(f"v_cmp_eq_u32 vcc, s2, {vT3}")
        a("s_nop 1")
        a(f"s_and_b64 vcc, vcc, {sAny}")
        a(f"s_and_saveexec_b64 {sSave}, vcc")
        a(f"s_cbranch_execz {lim_local}")
        a(f"v_mad_u32_u24 {vT3}, {vT2}, {s3125}, {v511}")
        a(f"v_and_b32 {vT2}, 7, {vT2}")
        a(f"v_lshrrev_b32 {vT3}, 9, {vT3}")
        a(f"v_lshlrev_b32 {vT2}, 2, {vT2}")
        a(f"v_sub_u32 {vT3}, {AD[0]}, {vT3}")
        a(f"ds_add_rtn_u32 {AD[2]}, {vT2}, {vOne} offset:{L_CNT}")
        a(f"v_lshl_or_b32 {vT0}, {vT0}, 5, {vT3}")
        a("s_waitcnt lgkmcnt(0)")
        a(f"v_min_u32 {AD[2]}, {CAPX-1}, {AD[2]}")
        a(f"v_mad_u32_u24 {AD[2]}, {vT2}, {sCAPq}, {AD[2]}")
        a(f"v_mov_b32 {vT2}, {L_L0}")
        a(f"v_mov_b32 {vT3}, {L_L1}")
        a(f"v_lshl_add_u32 {vT2}, {AD[2]}, 2, {vT2}")
        a(f"v_lshl_add_u32 {vT3}, {AD[2]}, 1, {vT3}")
        a(f"ds_write_b32 {vT2}, {vT0}")
        a(f"ds_write_b16 {vT3}, {AD[1]}")
        a.label(lim_local)
        a(f"s_mov_b64 exec, {sSave}")
    a(f"s_lshl_b32 {sTmp}, {sC}, 9")
    a(f"v_add_u32 {vT1}, {sTmp}, v0")
    a(f"s_mul_i32 {sTmp2}, {sWsrc}, {CH}")
    a(f"v_add_u32 {vT0}, {sTmp2}, {vT1}")
    a(f"v_cmp_gt_u32 vcc, {CH}, {vT1}")
    a(f"s_mov_b32 {sTmp}, {E}")
    a(f"v_cmp_gt_u32 {sAny}, {sTmp}, {vT0}")
    a("s_nop 1")
    a(f"s_and_b64 {sAny}, {sAny}, vcc")
    append_raw("K2_RA1")
    a(f"s_add_u32 {sC}, {sC}, 1")
    a(f"s_cmp_lt_u32 {sC}, 7")
    a("s_cbranch_scc1 K2_RESCAN_C")
    a(f"s_add_u32 {sI}, {sI}, 1")
    a(f"s_cmp_lt_u32 {sI}, {sNR}")
    a("s_cbranch_scc1 K2_RESCAN_I")
    a("s_waitcnt lgkmcnt(0)")
    a("s_barrier")
    a(f"ds_read_b32 {vT2}, {aOH} offset:{L_CNT}")
    a(f"ds_read_b32 {vT3}, {SS} offset:{L_CNT}")
    a("s_waitcnt lgkmcnt(0)")
    a(f"v_min_u32 {vT0}, 0xffffff, {vT2}")
    a(f"v_min_u32 {vJ}, 0xffffff, {vT3}")
    a.label("K2_CHECK")
    a.c("window assignment by size rank")
    a(f"v_lshl_or_b32 {vT0}, {vT0}, 3, {aPS}")
    a(f"v_lshl_or_b32 {vJ}, {vJ}, 3, {aPD}")
    a(f"v_cmp_lt_u32 {sAny}, {sCAP}, {vT3}")
    a(f"v_cmp_gt_u32 vcc, {vJ}, {vT0}")
    a(f"s_mov_b32 {sWin}, 0")
    a("s_nop 2")
    for i in range(8):
        a(f"s_bfe_u32 {sTmp}, {'vcc_lo' if i<4 else 'vcc_hi'}, {(8<<16)|(8*(i&3))}")
        a(f"s_bcnt1_i32_b32 {sTmp}, {sTmp}")
        a(f"s_cmp_eq_u32 {sTmp}, {sTgt}")
        a(f"s_cselect_b32 {sWin}, {i}, {sWin}")
    if opt.get('nobal',0): a(f"s_mov_b32 {sWin}, {sWave}")
    a(f"s_lshl_b32 {sTmp}, {sWin}, 3")
    a(f"v_readlane_b32 {sCnt}, {vT2}, {sTmp}")
    geometry(sWin)
    a(f"s_lshl_b32 {sTmp}, {sWin}, 11")
    a(f"v_add_u32 {vE64}, {sTmp}, {vE64}")
    a(f"v_add_u32 {vTR}, {sTmp}, {vTR}")
    a(f"s_add_u32 {sTmp}, {sTmp}, {L_A2}")
    a(f"v_lshl_add_u32 {vT0}, {vL}, 5, {sTmp}")
    a(f"ds_read_b128 {WA[0:4]}, {vT0}")
    a(f"ds_read_b128 {WA[4:8]}, {vT0} offset:16")
    for i in range(4): a(f"v_mov_b32 {A2R[i]}, 0")
    a(f"ds_write_b128 {vT0}, {A2R[0:4]}")
    a(f"ds_write_b128 {vT0}, {A2R[0:4]} offset:16")
    a(f"s_cmp_eq_u64 {sAny}, 0")
    a("s_cbranch_scc1 K2_MAIN")
    a.c("generic (slow) mode: raw scan of all edges, 512 per round")
    a(f"s_mov_b32 {sMode}, 1")
    a.label("K2_GEN")
    a("s_barrier")
    a(f"s_cmp_lg_u32 {sWave}, 0")
    a("s_cbranch_scc1 K2_GEN1")
    a(f"v_and_b32 {vT0}, 7, {vL}")
    a(f"v_lshlrev_b32 {vT0}, 2, {vT0}")
    a(f"ds_write_b32 {vT0}, {vZ[0]} offset:{L_CNT}")
    a("s_waitcnt lgkmcnt(0)")
    a.label("K2_GEN1")
    a("s_barrier")
    a(f"s_lshl_b32 {sTmp}, {sChunk}, 9")
    a(f"v_add_u32 {vT0}, {sTmp}, v0")
    a(f"s_mov_b32 {sTmp}, {E}")
    a(f"v_cmp_gt_u32 {sAny}, {sTmp}, {vT0}")
    a("s_nop 1")
    append_raw("K2_RA2")
    a("s_waitcnt lgkmcnt(0)")
    a("s_barrier")
    a(f"s_lshl_b32 {sTmp}, {sWin}, 2")
    a(f"v_mov_b32 {vT0}, {sTmp}")
    a(f"ds_read_b32 {vT1}, {vT0} offset:{L_CNT}")
    a("s_waitcnt lgkmcnt(0)")
    a(f"v_readfirstlane_b32 {sCnt}, {vT1}")
    a("s_nop 3")
    a.label("K2_MAIN")
    if opt.get('dbgfill',0): stamp(a,opt,14)
    a(f"s_min_u32 {sCnt}, {sCnt}, {CAP}")
    a(f"s_add_u32 {sNT}, {sCnt}, 31")
    a(f"s_lshr_b32 {sNT}, {sNT}, 5")
    a(f"s_cmp_eq_u32 {sNT}, 0")
    a("s_cbranch_scc1 K2_MAIN_DONE")
    a(f"s_mul_i32 {sTmp}, {sWin}, {CAPX*4}")
    a(f"s_add_u32 {sTmp}, {sTmp}, {L_L0}")
    a(f"s_mul_i32 {sTmp2}, {sWin}, {CAPX*2}")
    a(f"s_add_u32 {sTmp2}, {sTmp2}, {L_L1}")
    a(f"v_and_b32 {vT0}, 31, {vL}")
    a(f"v_lshl_add_u32 {aL0}, {vT0}, 2, {sTmp}")
    a(f"v_lshl_add_u32 {aL1s}, {vT0}, 1, {sTmp2}")
    a(f"v_lshrrev_b32 {vT0}, 3, {vL}")
    a(f"v_lshl_add_u32 {aL1d}, {vT0}, 3, {sTmp2}")
    def pad():
        a(f"v_add_u32 {vT0}, {sCnt}, {vL}")
        a(f"v_lshl_add_u32 {vT1}, {vT0}, 2, {sTmp}")
        a(f"v_lshl_add_u32 {vT2}, {vT0}, 1, {sTmp2}")
        a(f"v_mov_b32 {vJ}, 7")
        a(f"ds_write_b32 {vT1}, {vJ}")
        a(f"ds_write_b16 {vT2}, {vZ[0]}")
        a(f"ds_write_b32 {vT1}, {vJ} offset:256")
        a(f"ds_write_b16 {vT2}, {vZ[0]} offset:128")
    def first_reads():
        a(f"ds_read_b32 {vT3}, {aL0}")
        a(f"ds_read_b64 {SD}, {aL1d}")
        a(f"ds_read_b32 {LE[1]}, {aL0} offset:128")
        a(f"ds_read_b32 {LE[0]}, {aL0} offset:256")
        a(f"ds_read_u16 {SS}, {aL1s}")
    a(f"s_cmp_ge_u32 {sCnt}, 96")
    a("s_cbranch_scc1 K2_FILL_BIG")
    pad()
    first_reads()
    a("s_waitcnt lgkmcnt(0)")
    a("s_branch K2_FILL")
    a.label("K2_FILL_BIG")
    first_reads()
    pad()
    a("s_waitcnt lgkmcnt(4)")
    a.label("K2_FILL")
    ENT=['',' nt',' sc1',' sc0 sc1',' sc0',' sc0 nt',' sc1 nt',' sc0 sc1 nt'][opt.get('e_nt',0)]
    def E_addr(le): a(f"v_and_or_b32 {aE}, {le}, {sMaskE}, {vHOFF}")
    def E_load(p): a(f"buffer_load_dwordx4 {EA[p]}, {aE}, {sE}, 0 offen{ENT}")
    def H_addr():
        if opt.get('hmask',0):
            a(f"v_and_b32 {SD[0]}, 0x03ff03ff, {SD[0]}"); a(f"v_and_b32 {SD[1]}, 0x03ff03ff, {SD[1]}")
        for i in range(4):
            a(f"v_mad_u32_u16 {AD[i]}, {SD[i>>1]}, {s128}, {vKD[i]}"+(" op_sel:[1,0,0,0]" if i&1 else ""))
    def H_load(i):
        a(f"s_mov_b32 m0, {sM0[i]}")
        a("s_nop 0")
        a(f"buffer_load_dwordx4 {AD[i]}, {sB}, 0 offen{HLD} lds")
    def P_addr(le,par):
        a(f"v_and_b32 {vJ}, 7, {le}")
        a(f"v_mul_u32_u24 {aPS}, 6, {SS}")
        a(f"v_mad_u32_u24 {aPD}, {vJ}, 6, {sN06}")
        a(f"v_lshlrev_b32 {aOH}, 4, {vJ}")
        a(f"v_lshl_add_u32 {aA2[par]}, {vJ}, 3, {vE64}")
    def P_reads():
        for c in range(3): a(f"ds_read_u16_d16_hi {PS[c]}, {aPS} offset:{L_POS+2*c}")
        for c in range(3): a(f"ds_read_u16_d16_hi {PD[c]}, {aPD} offset:{L_POS+2*c}")
        a(f"ds_read_b128 {OH}, {aOH} offset:{L_OH}")
    def P_calc_list(par):
        return [f"v_sub_f32 {DX[0]}, {PD[0]}, {PS[0]}", f"v_sub_f32 {DX[1]}, {PD[1]}, {PS[1]}", f"v_sub_f32 {DX[2]}, {PD[2]}, {PS[2]}",
                f"v_mul_f32 {DD}, {DX[0]}, {DX[0]}", f"v_fmac_f32 {DD}, {DX[1]}, {DX[1]}", f"v_fmac_f32 {DD}, {DX[2]}, {DX[2]}",
                f"v_cvt_pk_bf16_f32 {E01[0]}, 1.0, {DX[0]}", f"v_cvt_pk_bf16_f32 {E01[1]}, {DX[1]}, {DX[2]}",
                f"v_cvt_pk_bf16_f32 {OH[3]}, {OH[3]}, {DD}",
                f"ds_write_b64 {aA2[par]}, {E01}"]
    E_addr(vT3); E_load(0)
    H_addr()
    for i in range(4): H_load(i)
    E_addr(LE[1]); E_load(1)
    if opt.get('dbgfill',0): stamp(a,opt,15)
    P_addr(vT3,0); P_reads()
    a(f"ds_read_b64 {SD}, {aL1d} offset:64")
    a(f"ds_read_u16 {SS}, {aL1s} offset:64")
    for i in range(16): a(f"v_mov_b32 {T[i]}, 0")
    for i in range(8): a(f"v_mov_b32 {A2R[i]}, 0")
    a("s_waitcnt lgkmcnt(0)")
    for ins in P_calc_list(0): a(ins)
    H_addr()
    P_addr(LE[1],1)
    E_addr(LE[0])
    a("s_waitcnt vmcnt(1)")
    for s_ in range(4): a(f"ds_read_b128 {HA[4*s_:4*s_+4]}, {vHA[s_]}")
    Da,Db=D1[0:16],D1[16:32]
    mfma(a,Da,OH,WA[0:4],"0")
    mfma(a,Da,EA[0],WE[0:4],Da)
    a("s_waitcnt lgkmcnt(0)")
    for i in range(4): H_load(i)
    mfma(a,Da,HA[0:4],ID[0:4],Da)
    mfma(a,Da,HA[4:8],ID[4:8],Da)
    a(f"s_mov_b32 {sT}, 0")
    stamp(a,opt,8)
    if DBG:
        a("s_memtime s[80:81]")
        a("s_waitcnt lgkmcnt(0)")
    a.nop(12)
    MADD=opt.get('madd',1)
    PB_=[0]; MF=[False]
    def prio(p):
        if PRIO: a(f"s_setprio {p+PB_[0] if PB_[0]>=0 else 3}")
    def Tsec(kind,x,p):
        Dx=D1[16*x:16*x+16]; o=1-x; Do=D1[16*o:16*o+16]; D2o=D2[16*o:16*o+16]
        prio(1)
        if kind=='X':
            ea = EA[p] if x==0 else EA[1-p]
            mfma(a,Do,OH,WA[4*o:4*o+4],"0")
            for i in range(8): a(f"v_cvt_pk_bf16_f32 {M[i]}, {T[2*i]}, {T[2*i+1]}")
            mfma(a,Do,ea,WE[4*o:4*o+4],Do)
            for i in range(16):
                if i==6:
                    if x==1: a("s_waitcnt lgkmcnt(2)")
                    mfma(a,D2o,A2R[0:4],M[0:4],D2o)
                a(f"v_exp_f32 {T[i]}, {Dx[i]}")
            if MADD:
                a("s_nop 1")
                mfma(a,T,ONE,ONE,T)
        else:
            hb = HA[8:16] if x==0 else HA[0:8]
            for i in range(16):
                if i==0: mfma(a,Do,hb[0:4],ID[0:4],Do)
                if i==5: mfma(a,Do,hb[4:8],ID[4:8],Do)
                if i==10: mfma(a,D2o,A2R[4:8],M[4:8],D2o)
                a(f"v_rcp_f32 {T[i]}, {T[i]}")
        prio(0)
    def tile(p):
        q=1-p
        Tsec('X',0,p)
        if not opt.get('e_late',0): E_load(p)
        else: a("s_nop 0")
        P_reads()
        a(f"ds_read_b64 {SD}, {aL1d} offset:{64*(p+2)}")
        if not MADD:
            for i in range(16): a(f"v_add_f32 {T[i]}, 1.0, {T[i]}")
        else:
            a.nop(2)
        Tsec('R',0,p)
        def mulsA():
            for i in range(16): a(f"v_mul_f32 {T[i]}, {Da[i]}, {T[i]}")
        if MF[0]: mulsA()
        a(f"s_waitcnt vmcnt({0 if opt.get('e_late',0) else 1}) lgkmcnt(0)")
        for s_ in range(4): a(f"ds_read_b128 {HA[4*s_:4*s_+4]}, {vHA[s_]}")
        for k in range(4): a(f"ds_read_b64_tr_b16 {A2R[2*k:2*k+2]}, {vTR} offset:{512*k}")
        a(f"ds_write_b64 {aA2[p]}, {vZ}")
        pc=P_calc_list(q)
        for ins in pc[:6]: a(ins)
        H_addr()
        if not MF[0]: mulsA()
        for ins in pc[6:]: a(ins)
        if MF[0]: a("s_nop 0")
        Tsec('X',1,p)
        a("s_waitcnt lgkmcnt(0)")
        if opt.get('e_late',0)==1: E_load(p)
        for i in range(4): H_load(i)
        a(f"ds_read_b32 {LE[q]}, {aL0} offset:{128*(p+3)}")
        a(f"ds_read_u16 {SS}, {aL1s} offset:{64*(p+2)}")
        if not MADD:
            for i in range(16): a(f"v_add_f32 {T[i]}, 1.0, {T[i]}")
        Tsec('R',1,p)
        def mulsB():
            for i in range(16): a(f"v_mul_f32 {T[i]}, {Db[i]}, {T[i]}")
        if MF[0]: mulsB()
        a("s_waitcnt lgkmcnt(0)")
        E_addr(LE[q])
        P_addr(LE[p],p)
        if p==1:
            a(f"v_add_u32 {aL0}, 256, {aL0}")
            a(f"v_add_u32 {aL1s}, 128, {aL1s}")
            a(f"v_add_u32 {aL1d}, 128, {aL1d}")
        if not MF[0]: mulsB()
    def drain(par):
        for i in range(8): a(f"v_cvt_pk_bf16_f32 {M[i]}, {T[2*i]}, {T[2*i+1]}")
        a(f"ds_write_b64 {aA2[par]}, {vZ}")
        a("s_nop 0")
        mfma(a,D2[16:32],A2R[0:4],M[0:4],D2[16:32])
        mfma(a,D2[16:32],A2R[4:8],M[4:8],D2[16:32])
    def main_loop(sfx):
        a(".p2align 6")
        a.label("K2_LOOP"+sfx)
        tile(0)
        a(f"s_add_u32 {sT}, {sT}, 1")
        a(f"s_cmp_ge_u32 {sT}, {sNT}")
        a("s_cbranch_scc1 K2_EXIT_ODD"+sfx)
        tile(1)
        a(f"s_add_u32 {sT}, {sT}, 1")
        a(f"s_cmp_lt_u32 {sT}, {sNT}")
        a("s_cbranch_scc1 K2_LOOP"+sfx)
        drain(0)
        a("s_branch K2_LOOP_DONE")
        a.label("K2_EXIT_ODD"+sfx)
        drain(1)
    HP=opt.get('mfirst',0)
    if HP==1:
        a.c("the younger partner (waves 4..7) opens its plain sections with the multiplies, so both partners' multiplies pair up")
        a(f"s_cmp_ge_u32 {sWave}, 4")
        a("s_cbranch_scc1 K2_LOOP_H")
    if HP==2: MF[0]=True
    main_loop("")
    if HP==1:
        a("s_branch K2_LOOP_DONE")
        MF[0]=True
        main_loop("_H")
        MF[0]=False
    a.label("K2_LOOP_DONE")
    if PRIO: a("s_setprio 0")
    a.label("K2_MAIN_DONE")
    stamp(a,opt,9)
    if DBG:
        a("s_memtime s[82:83]")
        a("s_waitcnt lgkmcnt(0)")
        a("s_sub_u32 s80, s82, s80")
        a(f"v_writelane_b32 {VDBG}, s80, 12")
        a(f"v_writelane_b32 {VDBG}, {sNT}, 11")
    a(f"s_cmp_eq_u32 {sMode}, 0")
    a("s_cbranch_scc1 K2_EPI")
    a("s_waitcnt vmcnt(0) lgkmcnt(0)")
    a(f"s_add_u32 {sChunk}, {sChunk}, 1")
    a(f"s_cmp_lt_u32 {sChunk}, {(E+511)//512}")
    a("s_cbranch_scc1 K2_GEN")
    a.label("K2_EPI")
    a.c("segment sums of this window: m_i (bf16) -> rows of this window's (now idle) A2 slice")
    a(f"s_lshl_b32 {sHST}, {sWin}, 11")
    a(f"s_add_u32 {sHST}, {sHST}, {L_A2}")
    a(f"v_and_b32 {vJ}, 31, {vL}")
    a(f"s_mov_b32 {sTmp}, {NEG_LN2}")
    a(f"v_lshrrev_b32 {vT2}, 5, {vL}")
    a(f"v_lshlrev_b32 {vT2}, 7, {vT2}")
    a(f"v_lshl_add_u32 {vT2}, {vJ}, 1, {vT2}")
    a(f"v_add_u32 {vT2}, {sHST}, {vT2}")
    a.nop(8)
    for qq in range(4):
        a(f"v_mul_f32 {AD[0]}, {sTmp}, {D2[4*qq]}")
        a(f"v_mul_f32 {AD[1]}, {sTmp}, {D2[16+4*qq]}")
        a(f"v_cvt_pk_bf16_f32 {AD[2]}, {AD[0]}, {AD[1]}")
        a(f"ds_write_b16 {vT2}, {AD[2]} offset:{qq*256}")
        a(f"ds_write_b16_d16_hi {vT2}, {AD[2]} offset:{qq*256+64}")
    def pos_part():
        a.c("coordinate update of this window")
        PP=T
        for qq in range(4):
            for c in range(1,4):
                r=PP[qq*3+c-1]
                a(f"v_mul_f32 {r}, {WX[0]}, {D2[4*qq+c]}")
                a(f"v_fmac_f32 {r}, {WX[1]}, {D2[16+4*qq+c]}")
        for sh in (1,2,4,8):
            for i in range(12): a(f"v_add_f32_dpp {PP[i]}, {PP[i]}, {PP[i]} row_shr:{sh} row_mask:0xf bank_mask:0xf bound_ctrl:0")
        for i in range(12): a(f"v_add_f32_dpp {PP[i]}, {PP[i]}, {PP[i]} row_bcast:15 row_mask:0xa bank_mask:0xf")
        a(f"v_lshrrev_b32 {vT2}, 5, {vL}")
        a(f"v_lshlrev_b32 {vT2}, 4, {vT2}")
        a(f"s_add_u32 {sTmp}, {sHST}, 1024")
        a(f"v_add_u32 {vT2}, {sTmp}, {vT2}")
        a("s_mov_b32 exec_lo, 0x80000000")
        a("s_mov_b32 exec_hi, 0x80000000")
        for qq in range(4):
            for c in range(3):
                a(f"ds_write_b32 {vT2}, {PP[qq*3+c]} offset:{qq*32+c*4}")
        a("s_mov_b64 exec, -1")
        a(f"v_mul_u32_u24 {vT2}, 86, {vL}")
        a(f"v_lshrrev_b32 {vT2}, 8, {vT2}")
        a(f"v_mul_u32_u24 {vT3}, 3, {vT2}")
        a(f"v_sub_u32 {vT3}, {vL}, {vT3}")
        a(f"v_lshlrev_b32 {vT2}, 4, {vT2}")
        a(f"v_lshl_add_u32 {vT2}, {vT3}, 2, {vT2}")
        a(f"v_add_u32 {vT2}, {sTmp}, {vT2}")
        a(f"v_min_u32 {vT2}, {LDS2-4}, {vT2}")
        a(f"ds_read_b32 {AD[0]}, {vT2}")
        a(f"v_lshl_add_u32 {vT3}, {vL}, 1, {sN06}")
        a(f"v_min_u32 {vT2}, {POS_SZ-2}, {vT3}")
        a(f"ds_read_u16_d16_hi {PS[0]}, {vT2} offset:{L_POS}")
        a(f"s_mul_i32 {sTmp}, {sNJ}, 3")
        a(f"v_cmp_gt_u32 vcc, {sTmp}, {vL}")
        a(f"v_add_u32 {vT3}, {OUT_POS}, {vT3}")
        a(f"v_mov_b32 {vT2}, 0x40000000")
        a("s_waitcnt lgkmcnt(0)")
        a(f"v_cndmask_b32 {vT3}, {vT2}, {vT3}, vcc")
        a(f"v_add_f32 {AD[0]}, {AD[0]}, {PS[0]}")
        a(f"v_cvt_pk_bf16_f32 {AD[0]}, {AD[0]}, {AD[0]}")
        a(f"buffer_store_short {AD[0]}, {vT3}, {sO}, 0 offen{OST}")
    a.c("job waves 4..7: row tile r = (v-4)>>1 (rows = window 4r + (m>>3), node m&7), feature half x = v&1")
    a(f"s_cmp_lt_u32 {sWave}, 4")
    a("s_cbranch_scc1 K2_EPI_NOJOB")
    a(f"s_sub_u32 {sTmp2}, {sWave}, 4")
    a(f"s_lshr_b32 {sTmp2}, {sTmp2}, 1")
    a(f"s_lshl_b32 {sTmp2}, {sTmp2}, 2")
    a(f"v_bfe_u32 {vT0}, {vL}, 3, 2")
    a(f"v_add_u32 {vT0}, {sTmp2}, {vT0}")
    a(f"v_and_b32 {vJ}, 7, {vL}")
    a(f"v_lshlrev_b32 {aL1d}, 11, {vT0}")
    a(f"v_lshl_add_u32 {aL1d}, {vJ}, 7, {aL1d}")
    a(f"v_add_u32 {aL1d}, {L_A2}, {aL1d}")
    a(f"v_add_u32 {aL1d}, {aL1d}, {vHOFF}")
    a(f"s_lshl_b32 {sTmp2}, s2, 3")
    a(f"v_add_u32 {vT0}, {sTmp2}, {vT0}")
    a(f"v_mad_u32_u24 {SD[0]}, {vT0}, {s3125}, {v511}")
    a(f"v_add_u32 {SD[1]}, 3125, {SD[0]}")
    a(f"v_lshrrev_b32 {SD[0]}, 9, {SD[0]}")
    a(f"v_lshrrev_b32 {SD[1]}, 9, {SD[1]}")
    a(f"v_sub_u32 {SD[1]}, {SD[1]}, {SD[0]}")
    a(f"v_cmp_lt_u32 vcc, {vJ}, {SD[1]}")
    a(f"v_add_u32 {vT1}, -1, {SD[1]}")
    a(f"v_min_u32 {vT1}, {vT1}, {vJ}")
    a(f"v_add_u32 {vT1}, {SD[0]}, {vT1}")
    a(f"v_lshlrev_b32 {vT1}, 7, {vT1}")
    a(f"v_add_u32 {vT0}, {vT1}, {vHOFF}")
    for s_ in range(4):
        a(f"buffer_load_dwordx4 {HA[4*s_:4*s_+4]}, {vT0}, {sHs}, 0 offen offset:{32*s_}")
    a(f"s_and_b32 {sTmp2}, {sWave}, 1")
    a(f"s_lshl_b32 {sTmp2}, {sTmp2}, 6")
    a(f"v_lshrrev_b32 {vT0}, 1, {vHOFF}")
    a(f"v_add3_u32 {aL0}, {vT1}, {vT0}, {sTmp2}")
    for qq in range(4):
        a(f"buffer_load_dwordx2 {M[2*qq:2*qq+2]}, {aL0}, {sHs}, 0 offen offset:{16*qq}")
    a(f"v_mov_b32 {vT0}, 0x40000000")
    a(f"v_cndmask_b32 {aL1s}, {vT0}, {aL0}, vcc")
    pos_part()
    HV=D2[0:16]
    a("s_waitcnt vmcnt(1)")
    for s_ in range(4):
        mfma(a,D1[0:16],WH[4*s_:4*s_+4],HA[4*s_:4*s_+4],"0" if s_==0 else D1[0:16])
    for qq in range(4):
        a(f"v_lshlrev_b32 {HV[4*qq]}, 16, {M[2*qq]}")
        a(f"v_and_b32 {HV[4*qq+1]}, 0xffff0000, {M[2*qq]}")
        a(f"v_lshlrev_b32 {HV[4*qq+2]}, 16, {M[2*qq+1]}")
        a(f"v_and_b32 {HV[4*qq+3]}, 0xffff0000, {M[2*qq+1]}")
    stamp(a,opt,10)
    a("s_barrier")
    MA=[EA[0],EA[1],A2R[0:4],A2R[4:8]]
    for s_ in range(4): a(f"ds_read_b128 {MA[s_]}, {aL1d} offset:{32*s_}")
    for s_ in range(4):
        a(f"s_waitcnt lgkmcnt({3-s_})")
        mfma(a,D1[0:16],WH[16+4*s_:20+4*s_],MA[s_],D1[0:16])
    a(f"s_mov_b32 {sTmp}, {NEG_LOG2E}")
    a.nop(14)
    X=D1[0:16]
    for i in range(16): a(f"v_mul_f32 {T[i]}, {sTmp}, {X[i]}")
    for i in range(16): a(f"v_exp_f32 {T[i]}, {T[i]}")
    for i in range(16): a(f"v_add_f32 {T[i]}, 1.0, {T[i]}")
    for i in range(16): a(f"v_rcp_f32 {T[i]}, {T[i]}")
    a("s_nop 0")
    for i in range(16): a(f"v_fma_f32 {T[i]}, {X[i]}, {T[i]}, {HV[i]}")
    for qq in range(4):
        a(f"v_cvt_pk_bf16_f32 {M[2*qq]}, {T[4*qq]}, {T[4*qq+1]}")
        a(f"v_cvt_pk_bf16_f32 {M[2*qq+1]}, {T[4*qq+2]}, {T[4*qq+3]}")
        a(f"buffer_store_dwordx2 {M[2*qq:2*qq+2]}, {aL1s}, {sO}, 0 offen offset:{16*qq}{OST}")
    a("s_branch K2_FIN")
    a.label("K2_EPI_NOJOB")
    a("s_waitcnt lgkmcnt(0)")
    stamp(a,opt,10)
    a("s_barrier")
    pos_part()
    a.label("K2_FIN")
    if DBG:
        a("s_waitcnt vmcnt(0)")
        stamp(a,opt,13)
        a(f"s_lshl_b32 {sTmp}, s2, 4")
        a(f"s_add_u32 {sTmp}, {sTmp}, {sWave}")
        a(f"s_lshl_b32 {sTmp}, {sTmp}, 6")
        a(f"s_add_u32 {sTmp}, {sTmp}, {DBG_OFF}")
        a(f"v_lshlrev_b32 {vT0}, 2, {vL}")
        a("s_mov_b32 exec_lo, 0xffff")
        a("s_mov_b32 exec_hi, 0")
        a(f"buffer_store_dword {VDBG}, {vT0}, {sW}, {sTmp} offen")
        a("s_waitcnt vmcnt(0)")
    a.label("K_END")
    a("s_endpgm")
    a.label("K_CODE_END")
    return nv

HEADER='''; Kernarg layout (88 bytes, ptrs only): h, pos, e_attr, src, dst, w_e, w_x, w_h, out, debug, ws
; @launch grid=(256,1,1) block=(512,1,1) lds={lds2}
.amdgcn_target "amdgcn-amd-amdhsa--gfx950"
.text
.globl {k}
.p2align 8
.type {k},@function
'''
def kd(name,nv,ns):
    acc=(nv+3)//4*4
    return f'''.amdhsa_kernel {name}
  .amdhsa_next_free_vgpr {acc}
  .amdhsa_next_free_sgpr {ns}
  .amdhsa_accum_offset {acc}
  .amdhsa_group_segment_fixed_size 0
  .amdhsa_kernarg_size 88
  .amdhsa_user_sgpr_count 2
  .amdhsa_user_sgpr_kernarg_segment_ptr 1
  .amdhsa_system_sgpr_workgroup_id_x 1
  .amdhsa_float_denorm_mode_32 3
.end_amdhsa_kernel
'''
def build(opt):
    out=HEADER.format(lds2=LDS2,k=KNAME)
    a=Asm()
    nv=gen(a,opt)
    assert nv<=255
    out+=a.text()
    out+='.section .rodata,"a"\n.p2align 6\n'+kd(KNAME,256,102)
    return out,nv
if __name__=="__main__":
    opt={}
    for arg in sys.argv[2:]:
        k,v=arg.split('='); opt[k]=int(v)
    txt,nv=build(opt)
    open(sys.argv[1],'w').write(txt)
    print("vgprs:",nv,"LDS",LDS2,"lines",txt.count("\n"),"WS",WS_BYTES)
```

```python
import sys, struct
from asmlib import *

N=12500; E=800000; CH=3136; NSRC=256; NBIN=256; NPW=49
KW=703687442
LOG2E=1.4426950408889634; LN2=0.6931471805599453
def f2u(x): return struct.unpack('<I',struct.pack('<f',x))[0]
NEG_LOG2E=f2u(-LOG2E); NEG_LN2=f2u(-LN2)
SENT=0xFFFFFFFF; MARK=0xFFFFFFFE
CELLS=0; BPT=NBIN*NSRC*128; FLG=BPT+N*128+((-N*128)%4096); FLG2=FLG+4096; WS_BYTES=FLG2+8192
OUT_BYTES=N*64*2+N*3*2; OUT_POS=N*64*2
CAP=576; CAPX=704
L_OH=0; L_CNT=128; L_NRES=160; L_WIN=192; L_RES=256; L_POS=1280; POS_SZ=74*1024
L_L0=L_POS+POS_SZ; L_L1=L_L0+8*CAPX*4; L_A2=L_L1+8*CAPX*2; L_HST=L_A2+8*2048; LDS2=L_HST+8*4096
assert LDS2<=163840, LDS2
L_RAWW=L_L0; L_BST=L_L0+19*1024; assert L_BST+2*32*144<=L_A2
DBG_OFF=16*1024*1024

def WSB(opt): return (32*1024*1024 if opt.get('dbg',0) else WS_BYTES)
def srd(a, s, lo, hi, size):
    a(f"s_mov_b32 {s[0]}, {lo}")
    a(f"s_and_b32 {s[1]}, {hi}, 0xffff")
    a(f"s_mov_b32 {s[2]}, {size}")
    a(f"s_mov_b32 {s[3]}, 0x20000")
VDBG="v255"
def stamp(a,opt,idx):
    if not opt.get('dbg',0): return
    a("s_memrealtime s[100:101]")
    a("s_waitcnt lgkmcnt(0)")
    a(f"v_writelane_b32 {VDBG}, s100, {idx}")
def S(i,n=1): return R('s',i,n)
def V(i,n=1): return R('v',i,n)
def mfma(a,d,A,B,c): a(f"v_mfma_f32_32x32x16_bf16 {d}, {A}, {B}, {c}")

NPOS1=24
KNAME="gather_scatter__cheap_equivariant_egnn__graph_kernel"
def gen(a, opt):
    DBG=opt.get('dbg',0)
    PRIO=opt.get('prio',1)
    ST=" sc1"; LD=" sc1" if opt.get('ld_sc1',1) else ""
    HLD=[""," sc1"," sc0 sc1"," sc1 nt"," sc0 sc1 nt"][opt.get('h_sc1',1)]
    SNT=" nt" if opt.get('snt',0) else ""
    OST=[""," nt"," sc1"," sc0 sc1"][opt.get('ost',0)]
    a.label(KNAME)
    sB=S(4,4); sE=S(8,4); sW=S(12,4); sO=S(16,4); sP=S(20,4); sS=S(24,4); sD=S(28,4)
    sWave=S(32); sN0=S(33); sNJ=S(34); sN06=S(35); sNT=S(36); sT=S(37); sMode=S(38); sChunk=S(39)
    sMaskE=S(40); s128=S(41); sK=S(42); s3125=S(43); sLim=S(44); sCAP=S(44); sCnt=S(45); sTmp=S(46); sTmp2=S(47)
    sM0=S(48,4); sSave=S(52,2); sAny=S(54,2); sNR=S(56); sI=S(57); sC=S(58); sWsrc=S(59); sMark=S(60); sCAPq=S(61); sHST=S(62); sTmp3=S(63)
    sMask=[S(64+2*i,2) for i in range(16)]
    sTagOff=S(36)
    sRot=S(39+0) if False else S(37)
    sWin=S(96); sTgt=S(97); sNonce=S(98); sPoll=S(99)
    sT4=S(84,4); sT4b=S(88,4); sT4c=S(92,4)
    sHw=S(48,4)
    sHs=S(68,4); sWx=S(72,4)
    vr=Regs(1,256,'v')
    vL=vr.alloc('lane')
    WE=vr.alloc('WE',8,4); WA=vr.alloc('WA',8,4); ID=vr.alloc('ID',8,4); D2=vr.alloc('D2',32,4)
    D1=vr.alloc('D1',32,4); HA=vr.alloc('HA',16,4); T=vr.alloc('T',16,4); M=vr.alloc('M',8,4)
    A2R=vr.alloc('A2R',8,4); EA=[vr.alloc('EA0',4,4),vr.alloc('EA1',4,4)]; OH=vr.alloc('OH',4,4)
    WH=vr.alloc('WH',32,4); ONE=vr.alloc('ONE',4,4)
    vHA=vr.alloc('vHA',4); vKD=vr.alloc('vKD',4); vTR=vr.alloc('vTR'); vE64=vr.alloc('vE64'); vHOFF=vr.alloc('vHOFF')
    vZ=vr.alloc('vZ',2,2); aL0=vr.alloc('aL0'); aL1s=vr.alloc('aL1s'); aL1d=vr.alloc('aL1d')
    LE=[vr.alloc('LE0'),vr.alloc('LE1')]; aA2=[vr.alloc('aA2_0'),vr.alloc('aA2_1')]
    SD=vr.alloc('SD',2,2); SS=vr.alloc('SS'); PS=vr.alloc('PS',3); PD=vr.alloc('PD',3)
    E01=vr.alloc('E01',2,2); DX=vr.alloc('DX',3); DD=vr.alloc('DD'); AD=vr.alloc('AD',4); vJ=vr.alloc('vJ')
    aE=vr.alloc('aE'); aPS=vr.alloc('aPS'); aPD=vr.alloc('aPD'); aOH=vr.alloc('aOH')
    vT0=vr.alloc('vT0'); vT1=vr.alloc('vT1'); vT2=vr.alloc('vT2'); vT3=vr.alloc('vT3')
    vOne=vr.alloc('vOne'); v511=vr.alloc('v511'); vTRW=vr.alloc('vTRW'); vL16=vr.alloc('vL16'); WX=vr.alloc('WX',2); vDUM=vr.alloc('vDUM')
    nv=vr.next
    HW=T
    def geometry(win):
        a(f"s_lshl_b32 {sTmp}, s2, 3")
        a(f"s_add_u32 {sTmp}, {sTmp}, {win}")
        a(f"s_mul_i32 {sN0}, {sTmp}, 3125")
        a(f"s_add_u32 {sNJ}, {sN0}, {3125+511}")
        a(f"s_add_u32 {sN0}, {sN0}, 511")
        a(f"s_lshr_b32 {sN0}, {sN0}, 9")
        a(f"s_lshr_b32 {sNJ}, {sNJ}, 9")
        a(f"s_sub_u32 {sNJ}, {sNJ}, {sN0}")
        a(f"s_mul_i32 {sN06}, {sN0}, 6")
    def dma(vaddr,srd_,soff,ldsbase_const=None,ldsreg=None):
        pass

    def load_hwin():
        a.c("h rows of the natural window (A operand of h@W1; needed after barrier C)")
        a(f"v_bfe_u32 {vT0}, {vL}, 3, 1")
        a(f"v_and_b32 {vT2}, 3, {vL}")
        a(f"v_lshl_add_u32 {vT0}, {vT0}, 2, {vT2}")
        a(f"s_sub_u32 {sTmp}, {sNJ}, 1")
        a(f"v_min_u32 {vT0}, {sTmp}, {vT0}")
        a(f"v_add_u32 {vT0}, {sN0}, {vT0}")
        a(f"v_lshl_add_u32 {vT0}, {vT0}, 7, {vHOFF}")
        for s_ in range(4):
            a(f"buffer_load_dwordx4 {HW[4*s_:4*s_+4]}, {vT0}, {sHw}, 0 offen offset:{32*s_}")
    a("s_cmp_ge_u32 s2, 256")
    a("s_cbranch_scc1 K_END")
    a("s_load_dwordx4 s[64:67], s[0:1], 0")
    a("s_load_dwordx4 s[68:71], s[0:1], 16")
    a("s_load_dwordx4 s[72:75], s[0:1], 32")
    a("s_load_dwordx4 s[76:79], s[0:1], 64")
    a("s_load_dwordx2 s[80:81], s[0:1], 80")
    a(f"v_and_b32 {vL}, 63, v0")
    a(f"v_lshrrev_b32 {vT0}, 6, v0")
    a(f"v_lshlrev_b32 {vL16}, 4, {vL}")
    a(f"v_readfirstlane_b32 {sWave}, {vT0}")
    if opt.get('cpf',1):
        a.c("pull this workgroup's share of the kernel's own code into L2 (read only, speed only)")
        NL=opt.get('cpf_lines',8)
        a("s_getpc_b64 s[84:85]")
        a.label("K_PC")
        a("s_and_b32 s85, s85, 0xffff")
        a("s_mov_b32 s86, K_CODE_END-K_PC")
        a("s_mov_b32 s87, 0x20000")
        if opt.get('cpf',1)==1:
            a(f"s_lshr_b32 {sTmp}, s2, 3")
            a(f"s_and_b32 {sTmp}, {sTmp}, 31")
            a(f"s_mul_i32 {sTmp}, {sTmp}, {NL*128}")
            a(f"v_lshlrev_b32 {vT1}, 7, {vL}")
            a(f"v_add_u32 {vT1}, {sTmp}, {vT1}")
            a(f"s_cmp_lg_u32 {sWave}, 3")
            a("s_cbranch_scc1 K_NOCPF")
            a(f"s_mov_b32 exec_lo, {(1<<NL)-1}")
            a("s_mov_b32 exec_hi, 0")
            a(f"buffer_load_dword {vDUM}, {vT1}, s[84:87], 0 offen")
            a("s_mov_b64 exec, -1")
        elif opt.get('cpf',1)==2:
            a(f"s_mul_i32 {sTmp}, {sWave}, {24*128}")
            a(f"v_lshlrev_b32 {vT1}, 7, {vL}")
            a(f"v_add_u32 {vT1}, {sTmp}, {vT1}")
            a(f"s_mov_b32 exec_lo, {(1<<24)-1}")
            a("s_mov_b32 exec_hi, 0")
            a(f"buffer_load_dword {vDUM}, {vT1}, s[84:87], 0 offen")
            a("s_mov_b64 exec, -1")
        elif opt.get('cpf',1)==3:
            a(f"s_lshr_b32 {sTmp}, s2, 3")
            a(f"s_and_b32 {sTmp}, {sTmp}, 3")
            a(f"s_mul_i32 {sTmp}, {sTmp}, {48*128}")
            a(f"v_lshlrev_b32 {vT1}, 7, {vL}")
            a(f"v_add_u32 {vT1}, {sTmp}, {vT1}")
            a(f"s_cmp_lg_u32 {sWave}, 3")
            a("s_cbranch_scc1 K_NOCPF")
            a("s_mov_b32 exec_hi, 0xffff")
            a(f"buffer_load_dword {vDUM}, {vT1}, s[84:87], 0 offen")
            a("s_mov_b64 exec, -1")
        a.label("K_NOCPF")
    a(f"v_lshrrev_b32 {vT2}, 5, {vL}")
    a(f"v_lshlrev_b32 {vHOFF}, 4, {vT2}")
    a(f"v_mov_b32 {vZ[0]}, 0")
    a(f"v_mov_b32 {vZ[1]}, 0")
    geometry(sWave)
    a(f"s_mul_i32 {sTmp}, s2, {CH*4}")
    a(f"s_mul_i32 {sTmp2}, {sWave}, {384*4}")
    a(f"s_add_u32 {sTmp}, {sTmp}, {sTmp2}")
    a(f"v_lshl_add_u32 {vT0}, {vL}, 3, {sTmp}")
    a("s_waitcnt lgkmcnt(0)")
    stamp(a,opt,0)
    srd(a,sD,"s72","s73",E*4)
    srd(a,sS,"s70","s71",E*4)
    a.c("every wave: six edges per lane, local edge = 384v + 128k + 2l + u; wave 7 also takes edges 3072 + l")
    DS_=D1[0:7]; SR_=D1[8:15]
    for k in range(3): a(f"buffer_load_dwordx2 {D1[2*k:2*k+2]}, {vT0}, {sD}, 0 offen offset:{512*k}{SNT}")
    for k in range(3): a(f"buffer_load_dwordx2 {D1[8+2*k:10+2*k]}, {vT0}, {sS}, 0 offen offset:{512*k}{SNT}")
    srd(a,sT4,"s64","s65",N*128)
    srd(a,sHw,"s64","s65",N*128)
    srd(a,sT4b,"s74","s75",145*128)
    a(f"s_cmp_eq_u32 {sWave}, 7")
    a("s_cbranch_scc1 K_S_W7")
    a(f"s_cmp_eq_u32 {sWave}, 4")
    a("s_cbranch_scc1 K_S_W4")
    a(f"s_cmp_lt_u32 {sWave}, 5")
    a("s_cbranch_scc1 K_S_COMMON")
    a.c("waves 5,6: private raw W2 copy + h rows for the source-node table")
    a(f"s_sub_u32 {sI}, {sWave}, 5")
    a(f"s_lshl_b32 {sC}, {sI}, 13")
    a(f"s_add_u32 {sC}, {sC}, {L_A2}")
    for i in range(8):
        a(f"s_add_u32 {sTmp}, {sC}, {i*1024}")
        a(f"s_mov_b32 m0, {sTmp}")
        a(f"s_mov_b32 {sTmp2}, {8192+i*1024}")
        a(f"buffer_load_dwordx4 {vL16}, {sT4b}, {sTmp2} offen lds")
    a(f"s_mul_i32 {sTmp}, s2, {NPW}")
    a(f"s_lshl_b32 {sTmp2}, {sI}, 5")
    a(f"s_add_u32 {sTmp}, {sTmp}, {sTmp2}")
    a(f"v_and_b32 {vT0}, 31, {vL}")
    a(f"v_add_u32 {vT0}, {sTmp}, {vT0}")
    a(f"v_lshl_add_u32 {vT0}, {vT0}, 7, {vHOFF}")
    for s_ in range(4): a(f"buffer_load_dwordx4 {HA[4*s_:4*s_+4]}, {vT0}, {sT4}, 0 offen offset:{32*s_}")
    a("s_branch K_S_COMMON")
    a.label("K_S_W4")
    a.c("wave 4: this workgroup's share of the L2 warm-up of pos and w_h (speed only)")
    a("s_load_dwordx2 s[82:83], s[0:1], 56")
    srd(a,sP,"s66","s67",N*6)
    a(f"s_lshr_b32 {sTmp}, s2, 3")
    a(f"s_and_b32 {sTmp}, {sTmp}, 31")
    a(f"s_mul_i32 {sTmp2}, {sTmp}, {19*128}")
    a(f"v_lshlrev_b32 {vT0}, 7, {vL}")
    a(f"v_add_u32 {vT1}, {sTmp2}, {vT0}")
    a(f"v_cmp_gt_u32 vcc, 19, {vL}")
    a(f"v_mov_b32 {vT2}, 0x40000000")
    a("s_waitcnt lgkmcnt(0)")
    a(f"v_cndmask_b32 {vT1}, {vT2}, {vT1}, vcc")
    a(f"buffer_load_dword {vDUM}, {vT1}, {sP}, 0 offen")
    srd(a,sT4b,"s82","s83",128*128)
    a(f"s_lshl_b32 {sTmp2}, {sTmp}, 9")
    a(f"v_add_u32 {vT1}, {sTmp2}, {vT0}")
    a(f"v_cmp_gt_u32 vcc, 4, {vL}")
    a("s_nop 1")
    a(f"v_cndmask_b32 {vT1}, {vT2}, {vT1}, vcc")
    a(f"buffer_load_dword {vDUM}, {vT1}, {sT4b}, 0 offen")
    a("s_branch K_S_COMMON")
    a.label("K_S_W7")
    a.c("wave 7: the last 64 edges, one-hot table, counters")
    a(f"s_mul_i32 {sTmp}, s2, {CH*4}")
    a(f"s_add_u32 {sTmp}, {sTmp}, {3072*4}")
    a(f"v_lshl_add_u32 {vT0}, {vL}, 2, {sTmp}")
    a(f"buffer_load_dword {D1[6]}, {vT0}, {sD}, 0 offen{SNT}")
    a(f"buffer_load_dword {D1[14]}, {vT0}, {sS}, 0 offen{SNT}")
    a(f"v_lshrrev_b32 {vT0}, 2, {vL}")
    a(f"v_and_b32 {vT1}, 3, {vL}")
    a(f"v_lshlrev_b32 {vT3}, 1, {vT1}")
    a(f"v_mov_b32 {vJ}, 0")
    a(f"v_cmp_eq_u32 vcc, {vT0}, {vT3}")
    a(f"v_mov_b32 {AD[0]}, 0x3f80")
    a(f"v_mov_b32 {AD[1]}, 0x3f800000")
    a(f"v_cndmask_b32 {vJ}, {vJ}, {AD[0]}, vcc")
    a(f"v_add_u32 {vT3}, 1, {vT3}")
    a(f"v_cmp_eq_u32 vcc, {vT0}, {vT3}")
    a("s_nop 1")
    a(f"v_cndmask_b32 {vJ}, {vJ}, {AD[1]}, vcc")
    a(f"v_cmp_eq_u32 vcc, 6, {vT0}")
    a(f"v_mov_b32 {AD[2]}, 0")
    a("s_nop 0")
    a(f"v_cndmask_b32 {AD[2]}, {AD[2]}, {AD[1]}, vcc")
    a(f"v_cmp_eq_u32 vcc, 3, {vT1}")
    a("s_nop 1")
    a(f"v_cndmask_b32 {vJ}, {vJ}, {AD[2]}, vcc")
    a(f"v_cmp_lt_u32 vcc, 31, {vL}")
    a(f"v_lshlrev_b32 {vT0}, 2, {vL}")
    a("s_nop 0")
    a(f"v_cndmask_b32 {vJ}, {vJ}, {vZ[0]}, vcc")
    a(f"ds_write_b32 {vT0}, {vJ}")
    a.label("K_S_COMMON")
    a(f"s_mov_b32 {sMaskE}, {'0' if opt.get('noE',0) else '0xffffffe0'}")
    a(f"s_mov_b32 {s128}, {0 if opt.get('noH',0) else 128}")
    a(f"s_mov_b32 {sK}, {KW}")
    a(f"s_mov_b32 {s3125}, 3125")
    a(f"s_mov_b32 {sMark}, {MARK}")
    a(f"s_mov_b32 {sCAPq}, {CAPX//4}")
    a(f"s_mov_b32 {sMode}, 0")
    a(f"s_mov_b32 {sChunk}, 0")
    a(f"v_mov_b32 {vOne}, 1")
    a(f"v_mov_b32 {v511}, 511")
    a(f"v_mov_b32 {aL1s}, 0x40000000")
    a(f"v_lshrrev_b32 {vT2}, 5, {vL}")
    a(f"v_bfe_u32 {vT0}, {vL}, 2, 2")
    a(f"v_lshl_add_u32 {vT0}, {vT2}, 3, {vT0}")
    a(f"v_lshlrev_b32 {vTRW}, 7, {vT0}")
    a(f"v_bfe_u32 {vT0}, {vL}, 4, 1")
    a(f"v_lshl_add_u32 {vTRW}, {vT0}, 5, {vTRW}")
    a(f"v_and_b32 {vT0}, 3, {vL}")
    a(f"v_lshl_add_u32 {vTRW}, {vT0}, 3, {vTRW}")
    a.c("LDS init: cell image = sentinel, counters = 0")
    for i in range(4): a(f"v_mov_b32 {WH[i]}, -1")
    a(f"v_lshlrev_b32 {vT0}, 6, v0")
    a(f"v_add_u32 {vT0}, {L_HST}, {vT0}")
    for i in range(4): a(f"ds_write_b128 {vT0}, {WH[0:4]} offset:{16*i}")
    a(f"v_and_b32 {vT0}, 0xff, v0")
    a(f"v_lshlrev_b32 {vT0}, 2, {vT0}")
    a(f"ds_write_b32 {vT0}, {vZ[0]} offset:{L_RES}")
    srd(a,sW,"s80","s81",WSB(opt))
    srd(a,sP,"s66","s67",N*6)
    srd(a,sE,"s68","s69",E*32)
    srd(a,sO,"s76","s77",OUT_BYTES)
    srd(a,sT4c,"s78","s79",256)
    a(f"s_add_u32 {sB[0]}, s80, {BPT}")
    a(f"s_addc_u32 {sB[1]}, s81, 0")
    a(f"s_and_b32 {sB[1]}, {sB[1]}, 0xffff")
    a(f"s_mov_b32 {sB[2]}, {N*128}")
    a(f"s_mov_b32 {sB[3]}, 0x20000")
    if opt.get('tlb',0):
        a.c("wave 2 touches one line per 2 MiB of the buffers used later (address translation warm-up, speed only)")
        a(f"s_cmp_lg_u32 {sWave}, 2")
        a("s_cbranch_scc1 K_NOTLB")
        a(f"v_lshlrev_b32 {vT0}, 21, {vL}")
        a(f"v_mov_b32 {vT1}, 0x40000000")
        a(f"v_cmp_gt_u32 vcc, 13, {vL}")
        a("s_nop 1")
        a(f"v_cndmask_b32 {vT0}, {vT1}, {vT0}, vcc")
        a(f"buffer_load_dword {vDUM}, {vT0}, {sE}, 0 offen")
        a(f"buffer_load_dword {vDUM}, {vT0}, {sW}, 0 offen")
        a(f"buffer_load_dword {vDUM}, {vT0}, {sO}, 0 offen")
        a.label("K_NOTLB")
    a.c("workgroup 0 publishes this launch's hand-off tag")
    a(f"s_or_b32 {sTmp}, s2, {sWave}")
    a(f"s_cmp_lg_u32 {sTmp}, 0")
    a("s_cbranch_scc1 K_S_NOTAG")
    a("s_memrealtime s[100:101]")
    a("s_waitcnt lgkmcnt(0)")
    a("s_or_b32 s100, s100, 1")
    a(f"v_mov_b32 {vT0}, s100")
    a(f"buffer_store_dword {vT0}, {vZ[0]}, {sT4c}, 0 offen sc1")
    a(f"buffer_store_dword {vT0}, {vZ[0]}, {sT4c}, 0 offen offset:128 sc1")
    a.label("K_S_NOTAG")
    a("s_waitcnt lgkmcnt(0)")
    a("s_barrier")
    a(f"s_mul_i32 {sTmp}, s2, {CH}")
    a(f"s_sub_u32 {sLim}, {E}, {sTmp}")
    a(f"s_min_u32 {sLim}, {sLim}, {CH}")
    B4=D2[0:7]; RC=M[0:7]; RK1=D2[8:15]
    def bin_edges(nrec, el_of, waitcnt, masked):
        if masked:
            for u in range(nrec):
                el_of(u,vT1)
                a(f"v_cmp_gt_u32 {sMask[u]}, {sLim}, {vT1}")
        if waitcnt is not None: a(f"s_waitcnt vmcnt({waitcnt})")
        stamp(a,opt,1)
        for u in range(nrec):
            d=DS_[u]; s_=SR_[u]
            a(f"v_mul_hi_u32 {vT2}, {d}, {sK}")
            el_of(u,vT1)
            a(f"v_lshl_or_b32 {RC[u]}, {s_}, 12, {vT1}")
            a(f"v_lshrrev_b32 {B4[u]}, 1, {vT2}")
            a(f"v_mad_u32_u24 {vT3}, {vT2}, {s3125}, {v511}")
            a(f"v_and_b32 {B4[u]}, 0x3fc, {B4[u]}")
            a(f"v_lshrrev_b32 {vT3}, 9, {vT3}")
            if masked: a(f"s_mov_b64 exec, {sMask[u]}")
            a(f"ds_add_rtn_u32 {RK1[u]}, {B4[u]}, {vOne} offset:{L_RES}")
            if masked: a("s_mov_b64 exec, -1")
            a(f"v_sub_u32 {vT3}, {d}, {vT3}")
            a(f"v_and_b32 {vT2}, 7, {vT2}")
            a(f"v_lshl_or_b32 {vT3}, {vT2}, 3, {vT3}")
            a(f"v_lshl_or_b32 {RC[u]}, {vT3}, 26, {RC[u]}")
        a(f"v_mov_b32 {vT3}, {L_HST}")
        a(f"v_mov_b32 {vJ}, {L_NRES+4}")
        for u in range(nrec):
            if not masked: a(f"s_waitcnt lgkmcnt({nrec-1})")
            elif u==0: a("s_waitcnt lgkmcnt(0)")
            a(f"v_cmp_gt_u32 vcc, 32, {RK1[u]}")
            a(f"v_lshlrev_b32 {vT1}, 3, {RK1[u]}")
            a(f"v_lshrrev_b32 {vT2}, 2, {RK1[u]}")
            a(f"v_and_b32 {vT1}, 0x78, {vT1}")
            a(f"v_lshl_add_u32 {AD[0]}, {B4[u]}, 5, {vT3}")
            a(f"v_and_or_b32 {vT1}, {vT2}, 4, {vT1}")
            a(f"v_add_u32 {vT1}, {vT1}, {AD[0]}")
            a(f"v_cndmask_b32 {vT1}, {vJ}, {vT1}, vcc")
            if masked: a(f"s_mov_b64 exec, {sMask[u]}")
            a(f"ds_write_b32 {vT1}, {RC[u]}")
            if masked: a("s_mov_b64 exec, -1")
    a.c("wait for this wave's edges (younger loads: 12 for waves 5,6; 2 for wave 4; the tag store of workgroup 0)")
    a(f"s_mul_i32 {sTmp}, {sWave}, 384")
    a(f"v_lshl_add_u32 {vT0}, {vL}, 1, {sTmp}")
    a(f"s_cmp_eq_u32 {sWave}, 4")
    a("s_cbranch_scc1 K_S_WT4")
    a(f"s_sub_u32 {sTmp}, {sWave}, 5")
    a(f"s_cmp_lt_u32 {sTmp}, 2")
    a("s_cbranch_scc1 K_S_WT56")
    if opt.get('tlb',0):
        a(f"s_cmp_eq_u32 {sWave}, 2")
        a("s_cbranch_scc1 K_S_WT2")
    a("s_waitcnt vmcnt(0)")
    a("s_branch K_S_WTD")
    if opt.get('tlb',0):
        a.label("K_S_WT2")
        a("s_waitcnt vmcnt(3)")
        a("s_branch K_S_WTD")
    a.label("K_S_WT4")
    a("s_waitcnt vmcnt(2)")
    a("s_branch K_S_WTD")
    a.label("K_S_WT56")
    a("s_waitcnt vmcnt(12)")
    a.label("K_S_WTD")
    a.c("wave 0 fetches the hand-off tag (one of its two copies); it is needed when the cell stores have left")
    a(f"s_and_b32 {sTagOff}, s2, 1")
    a(f"s_lshl_b32 {sTagOff}, {sTagOff}, 7")
    a(f"s_cmp_lg_u32 {sWave}, 0")
    a("s_cbranch_scc1 K_S_NOTAG1")
    a(f"buffer_load_dword {aE}, {vZ[0]}, {sT4c}, {sTagOff} offen sc1")
    a.label("K_S_NOTAG1")
    def el6(u,r): a(f"v_add_u32 {r}, {128*(u>>1)+(u&1)}, {vT0}")
    def el7(u,r):
        if u<6: el6(u,r)
        else: a(f"v_add_u32 {r}, 3072, {vL}")
    a(f"s_cmp_lt_u32 {sLim}, {CH}")
    a("s_cbranch_scc1 K_S_APPM")
    a(f"s_cmp_eq_u32 {sWave}, 7")
    a("s_cbranch_scc1 K_S_APP7")
    bin_edges(6, el6, None, False)
    a("s_branch K_S_APPD")
    a.label("K_S_APP7")
    bin_edges(7, el7, None, False)
    a("s_branch K_S_APPD")
    a.label("K_S_APPM")
    a(f"s_cmp_eq_u32 {sWave}, 7")
    a("s_cbranch_scc1 K_S_APPM7")
    bin_edges(6, el6, None, True)
    a("s_branch K_S_APPD")
    a.label("K_S_APPM7")
    bin_edges(7, el7, None, True)
    a.label("K_S_APPD")
    load_hwin()
    a(f"s_cmp_lg_u32 {sWave}, 7")
    a("s_cbranch_scc1 K_S_NORAW")
    a.c("wave 7: raw w_e -> LDS (needed after barrier C)")
    for i in range(19):
        a(f"s_mov_b32 {sTmp}, {L_RAWW+i*1024}")
        a(f"s_mov_b32 m0, {sTmp}")
        a(f"s_mov_b32 {sTmp2}, {i*1024}")
        a(f"buffer_load_dwordx4 {vL16}, {sT4b}, {sTmp2} offen lds")
    a.label("K_S_NORAW")
    a("s_waitcnt lgkmcnt(0)")
    stamp(a,opt,14) if not opt.get('dbgfill',0) else None
    a("s_barrier")
    stamp(a,opt,2)
    def setup_static():
        a(f"v_and_b32 {vT1}, 31, {vL}")
        a(f"v_lshrrev_b32 {vT2}, 5, {vL}")
        a(f"v_lshlrev_b32 {vT0}, 3, {vT2}")
        a(f"v_sub_u32 {vT0}, {vT1}, {vT0}")
        a(f"v_mov_b32 {AD[2]}, 0x3f80")
        a(f"v_mov_b32 {AD[3]}, 0x3f800000")
        for sp in range(2):
            for r in range(4):
                k0=16*sp+2*r
                a(f"v_cmp_eq_u32 vcc, {k0}, {vT0}")
                a(f"v_cmp_eq_u32 {sSave}, {k0+1}, {vT0}")
                a("s_nop 0")
                a(f"v_cndmask_b32 {ID[4*sp+r]}, {vZ[0]}, {AD[2]}, vcc")
                a(f"v_cndmask_b32 {ID[4*sp+r]}, {ID[4*sp+r]}, {AD[3]}, {sSave}")
        a(f"v_cmp_lt_u32 vcc, 31, {vL}")
        a("s_nop 1")
        for i in range(1,4): a(f"v_mov_b32 {ONE[i]}, 0")
        a(f"v_cndmask_b32 {ONE[0]}, {AD[2]}, {vZ[0]}, vcc")
        for i in range(3):
            a(f"v_mov_b32 {PS[i]}, 0"); a(f"v_mov_b32 {PD[i]}, 0")
        a.c("static per-lane addresses of the main loop (window offsets are added after the assignment)")
        a(f"v_and_b32 {vT1}, 31, {vL}")
        a(f"v_lshrrev_b32 {vT2}, 5, {vL}")
        a(f"v_mov_b32 {vT3}, {L_A2}")
        a(f"v_lshl_add_u32 {vE64}, {vT1}, 6, {vT3}")
        a(f"v_bfe_u32 {vT0}, {vL}, 2, 2")
        a(f"v_lshl_add_u32 {vT0}, {vT2}, 2, {vT0}")
        a(f"v_lshl_add_u32 {vTR}, {vT0}, 6, {vT3}")
        a(f"v_bfe_u32 {vT0}, {vL}, 4, 1")
        a(f"v_lshl_add_u32 {vTR}, {vT0}, 5, {vTR}")
        a(f"v_and_b32 {vT0}, 3, {vL}")
        a(f"v_lshl_add_u32 {vTR}, {vT0}, 3, {vTR}")
        a(f"s_lshl_b32 {sHST}, {sWave}, 12")
        a(f"s_add_u32 {sHST}, {sHST}, {L_HST}")
        for i in range(4): a(f"s_add_u32 {sM0[i]}, {sHST}, {1024*i}")
        a(f"v_and_b32 {vT0}, 3, {vT1}")
        a(f"v_bfe_u32 {vT3}, {vT1}, 4, 1")
        a(f"v_lshl_or_b32 {vT3}, {vT3}, 2, {vT0}")
        a(f"v_lshlrev_b32 {vT0}, 3, {vT0}")
        a(f"v_lshrrev_b32 {vJ}, 2, {vT1}")
        a(f"v_add_u32 {vT0}, {vT0}, {vJ}")
        a(f"v_lshl_add_u32 {vT0}, {vT0}, 7, {sHST}")
        for s_ in range(4):
            a(f"v_add_u32 {vJ}, {2*s_}, {vT2}")
            a(f"v_xor_b32 {vJ}, {vJ}, {vT3}")
            a(f"v_lshl_add_u32 {vHA[s_]}, {vJ}, 4, {vT0}")
        a(f"v_and_b32 {vT0}, 7, {vL}")
        a(f"v_lshlrev_b32 {vT3}, 2, {vT2}")
        a(f"v_xor_b32 {vT0}, {vT0}, {vT3}")
        for i in range(4):
            a(f"v_xor_b32 {vJ}, {i}, {vT0}")
            a(f"v_lshlrev_b32 {vKD[i]}, 4, {vJ}")
        a(f"s_mov_b32 {sCAP}, {CAP}")
        a(f"s_sub_u32 {sTgt}, 11, {sWave}")
        a(f"s_cmp_lt_u32 {sWave}, 4")
        a(f"s_cselect_b32 {sTgt}, {sWave}, {sTgt}")
        a(f"v_lshrrev_b32 {aPS}, 3, {vL}")
        a(f"v_and_b32 {aPD}, 7, {vL}")
        a(f"v_lshlrev_b32 {aOH}, 2, {aPS}")
        a(f"v_lshlrev_b32 {SS}, 2, {aPD}")
    a(f"s_cmp_gt_u32 {sWave}, 3")
    a("s_cbranch_scc1 K_S_NOCOPY")
    a.c("waves 0..3 copy the cell image out: eight 16 B pieces per thread")
    a(f"v_lshlrev_b32 {vT0}, 4, v0")
    a(f"v_add_u32 {vT0}, {L_HST}, {vT0}")
    a(f"v_lshrrev_b32 {vT1}, 3, v0")
    a(f"v_lshlrev_b32 {vT2}, 2, {vT1}")
    CP=[D1[4*k:4*k+4] for k in range(8)]
    for k in range(4):
        a(f"ds_read_b128 {CP[k]}, {vT0} offset:{4096*k}")
        a(f"ds_read_b32 {D2[k]}, {vT2} offset:{L_RES+128*k}")
    a(f"v_and_b32 {vT3}, 7, v0")
    a(f"v_cmp_eq_u32 vcc, 0, {vT3}")
    a(f"v_mov_b32 {vJ}, -1")
    CT=opt.get('ctrans',0)
    a(f"v_lshlrev_b32 {vT1}, {7 if CT else 15}, {vT1}")
    a(f"v_cndmask_b32_e64 {AD[1]}, -1, -2, vcc")
    a(f"v_lshl_add_u32 {vT1}, {vT3}, 4, {vT1}")
    a(f"s_lshl_b32 {sTmp}, s2, {15 if CT else 7}")
    for k in range(8):
        if k<4:
            a(f"ds_read_b128 {CP[k+4]}, {vT0} offset:{4096*(k+4)}")
            a(f"ds_read_b32 {D2[k+4]}, {vT2} offset:{L_RES+128*(k+4)}")
            a("s_waitcnt lgkmcnt(8)")
        else:
            a(f"s_waitcnt lgkmcnt({2*(7-k)})")
        a(f"v_cmp_lt_u32 vcc, 32, {D2[k]}")
        a(f"s_add_u32 {sTmp2}, {sTmp}, {k*32*(128 if CT else 32768)}")
        a("s_nop 0")
        a(f"v_cndmask_b32 {CP[k][0]}, {CP[k][0]}, {AD[1]}, vcc")
        for i in range(1,4): a(f"v_cndmask_b32 {CP[k][i]}, {CP[k][i]}, {vJ}, vcc")
        a(f"buffer_store_dwordx4 {CP[k]}, {vT1}, {sW}, {sTmp2} offen{ST}")
    a("s_branch K_S_STATIC")
    a.label("K_S_NOCOPY")
    a(f"s_sub_u32 {sTmp}, {sWave}, 5")
    a(f"s_cmp_lt_u32 {sTmp}, 2")
    a("s_cbranch_scc0 K_S_POS")
    a.c("waves 5,6: source-node table B' = -log2e * h @ W2 for 32 nodes")
    a(f"v_add_u32 {vT0}, {sC}, {vTRW}")
    a("s_waitcnt vmcnt(4)")
    for s_ in range(4):
        for x in range(2):
            for th in range(2):
                r=(s_*2+x)*4+2*th
                a(f"ds_read_b64_tr_b16 {D1[r:r+2]}, {vT0} offset:{s_*2048+th*512+x*64}")
    a("s_waitcnt lgkmcnt(0)")
    for x in range(2):
        for s_ in range(4):
            r=(s_*2+x)*4
            mfma(a,D2[16*x:16*x+16],D1[r:r+4],HA[4*s_:4*s_+4],"0" if s_==0 else D2[16*x:16*x+16])
    a(f"s_mul_i32 {sTmp}, {sI}, {32*144}")
    a(f"s_add_u32 {sTmp}, {sTmp}, {L_BST}")
    a(f"v_and_b32 {vT1}, 31, {vL}")
    a(f"v_mul_u32_u24 {vT1}, 144, {vT1}")
    a(f"v_lshrrev_b32 {vT2}, 5, {vL}")
    a(f"v_lshl_add_u32 {vT1}, {vT2}, 3, {vT1}")
    a(f"v_add_u32 {vT1}, {sTmp}, {vT1}")
    a(f"v_lshrrev_b32 {vT2}, 3, {vL}")
    a(f"v_mul_u32_u24 {vT3}, 144, {vT2}")
    a(f"v_and_b32 {vJ}, 7, {vL}")
    a(f"v_lshl_add_u32 {vT3}, {vJ}, 4, {vT3}")
    a(f"v_add_u32 {vT3}, {sTmp}, {vT3}")
    a(f"s_mov_b32 {sTmp2}, {NEG_LOG2E}")
    a.nop(4)
    for x in range(2):
        for q in range(16): a(f"v_mul_f32 {D2[16*x+q]}, {sTmp2}, {D2[16*x+q]}")
        for qq in range(4):
            b=16*x+4*qq
            a(f"v_cvt_pk_bf16_f32 {E01[0]}, {D2[b]}, {D2[b+1]}")
            a(f"v_cvt_pk_bf16_f32 {E01[1]}, {D2[b+2]}, {D2[b+3]}")
            a(f"ds_write_b64 {vT1}, {E01} offset:{x*64+qq*16}")
            a("s_nop 0")
    for i in range(4): a(f"ds_read_b128 {D1[4*i:4*i+4]}, {vT3} offset:{i*8*144}")
    a(f"s_lshl_b32 {sTmp2}, {sI}, 5")
    a(f"v_add_u32 {vT2}, {sTmp2}, {vT2}")
    a(f"s_mul_i32 {sTmp}, s2, {NPW}")
    a(f"v_add_u32 {vT0}, {sTmp}, {vT2}")
    a(f"v_lshlrev_b32 {vT1}, 7, {vT0}")
    a(f"v_lshl_add_u32 {vT1}, {vJ}, 4, {vT1}")
    a(f"v_mov_b32 {vJ}, 0x40000000")
    a("s_waitcnt lgkmcnt(0)")
    for i in range(4):
        a(f"v_add_u32 {vT3}, {8*i}, {vT2}")
        a(f"v_cmp_gt_u32 vcc, {NPW}, {vT3}")
        a(f"v_add_u32 {AD[0]}, {1024*i}, {vT1}")
        a("s_nop 0")
        a(f"v_cndmask_b32 {AD[0]}, {vJ}, {AD[0]}, vcc")
        a(f"buffer_store_dwordx4 {D1[4*i:4*i+4]}, {AD[0]}, {sB}, 0 offen{ST}")
    a("s_waitcnt vmcnt(4)")
    a("s_branch K_S_STATIC")
    a.label("K_S_POS")
    a.label("K_S_STATIC")
    setup_static()
    a.c("waves 0..3: every cell store has left; waves 4, 7: raw w_e / window rows landed; waves 5, 6 signal their rows later")
    a(f"s_sub_u32 {sTmp}, {sWave}, 5")
    a(f"s_cmp_lt_u32 {sTmp}, 2")
    a("s_cbranch_scc1 K_S_PREC")
    a("s_waitcnt vmcnt(0)")
    def have_tag(lbl):
        a(f"s_mov_b32 {sPoll}, 0")
        a.label(lbl)
        a(f"v_readfirstlane_b32 {sNonce}, {aE}")
        a("s_memrealtime s[100:101]")
        a("s_waitcnt lgkmcnt(0)")
        a(f"s_sub_u32 {sTmp}, s100, {sNonce}")
        a(f"s_add_u32 {sTmp}, {sTmp}, 1")
        a(f"s_cmp_lt_u32 {sTmp}, 2500")
        a(f"s_cselect_b32 {sTmp}, {sNonce}, 0")
        a(f"s_cmp_lg_u32 {sTmp}, 0")
        a(f"s_cbranch_scc1 {lbl}_OK")
        a(f"s_add_u32 {sPoll}, {sPoll}, 1")
        a(f"s_cmp_gt_u32 {sPoll}, 200000")
        a(f"s_cbranch_scc1 {lbl}_OK")
        a(f"s_cmp_gt_u32 {sPoll}, 1000")
        a(f"s_cselect_b32 {sTmp}, {sNonce}, 0")
        a(f"s_cmp_lg_u32 {sTmp}, 0")
        a(f"s_cbranch_scc1 {lbl}_OK")
        a("s_sleep 2")
        a(f"buffer_load_dword {aE}, {vZ[0]}, {sT4c}, {sTagOff} offen sc1")
        a("s_waitcnt vmcnt(0)")
        a(f"s_branch {lbl}")
        a.label(f"{lbl}_OK")
    a(f"s_cmp_lg_u32 {sWave}, 0")
    a("s_cbranch_scc1 K_S_PREC")
    have_tag("K_G_TAG")
    a(f"v_mov_b32 {vT0}, {sNonce}")
    a(f"ds_write_b32 {vZ[0]}, {vT0} offset:{L_NRES+8}")
    a.label("K_S_PREC")
    a("s_waitcnt lgkmcnt(0)")
    stamp(a,opt,15) if not opt.get('dbgfill',0) else None
    a("s_barrier")
    stamp(a,opt,3)
    a(f"s_cmp_lg_u32 {sWave}, 0")
    a("s_cbranch_scc1 K_G_NOT0")
    a.c("wave 0: signal this workgroup's cells")
    a(f"s_lshl_b32 {sTmp}, s2, 4")
    a(f"s_add_u32 {sTmp}, {sTmp}, {FLG}")
    a(f"v_mov_b32 {vT0}, {sNonce}")
    a(f"buffer_store_dword {vT0}, {vZ[0]}, {sW}, {sTmp} offen sc1")
    a("s_branch K_G_SETUP")
    a.label("K_G_NOT0")
    a(f"s_cmp_lt_u32 {sWave}, 4")
    a("s_cbranch_scc1 K_G_WH")
    a(f"s_sub_u32 {sTmp}, {sWave}, 5")
    a(f"s_cmp_lt_u32 {sTmp}, 2")
    a("s_cbranch_scc1 K_G_SETUP")
    a.c("waves 4, 7: pos table -> LDS (37 pieces each)")
    a(f"s_cmp_eq_u32 {sWave}, 7")
    a(f"s_cselect_b32 {sI}, {37*1024}, 0")
    for i in range(37):
        a(f"s_add_u32 {sTmp}, {sI}, {i*1024}")
        a(f"s_add_u32 {sTmp2}, {sTmp}, {L_POS}")
        a(f"s_mov_b32 m0, {sTmp2}")
        a("s_nop 0")
        a(f"buffer_load_dwordx4 {vL16}, {sP}, {sTmp} offen lds")
    a("s_branch K_G_SETUP")
    a.label("K_G_WH")
    a.c("waves 1..3: raw w_h -> staging area")
    a("s_load_dwordx2 s[64:65], s[0:1], 56")
    a(f"s_sub_u32 {sI}, {sWave}, 1")
    a("s_waitcnt lgkmcnt(0)")
    srd(a,sT4b,"s64","s65",128*128)
    for k in range(6):
        a(f"s_add_u32 {sTmp}, {sI}, {3*k}")
        a(f"s_min_u32 {sTmp}, {sTmp}, 15")
        a(f"s_lshl_b32 {sTmp}, {sTmp}, 10")
        a(f"s_add_u32 {sTmp2}, {sTmp}, {L_HST}")
        a(f"s_mov_b32 m0, {sTmp2}")
        a("s_nop 0")
        a(f"buffer_load_dwordx4 {vL16}, {sT4b}, {sTmp} offen lds")
    a.label("K_G_SETUP")
    a.c("operands from raw w_e: W1 (for A'), W4', wd'")
    W1=D2
    a(f"v_add_u32 {vT0}, {L_RAWW}, {vTRW}")
    for s_ in range(4):
        for x in range(2):
            for th in range(2):
                r=(s_*2+x)*4+2*th
                a(f"ds_read_b64_tr_b16 {W1[r:r+2]}, {vT0} offset:{s_*2048+th*512+x*64}")
    W4R=HA[0:8]
    for x in range(2):
        for th in range(2):
            a(f"ds_read_b64_tr_b16 {W4R[4*x+2*th:4*x+2*th+2]}, {vT0} offset:{129*128+th*512+x*64}")
    WD=M[0:2]
    a(f"v_mov_b32 {WD[0]}, 0")
    a(f"v_mov_b32 {WD[1]}, 0")
    a(f"v_and_b32 {vT1}, 31, {vL}")
    a(f"v_lshlrev_b32 {vT2}, 1, {vT1}")
    a(f"v_add_u32 {vT2}, {L_RAWW+128*128}, {vT2}")
    a(f"ds_read_u16_d16_hi {WD[0]}, {vT2}")
    a(f"ds_read_u16_d16_hi {WD[1]}, {vT2} offset:64")
    a("s_waitcnt lgkmcnt(0)")
    for x in range(2):
        for s_ in range(4):
            mfma(a,D1[16*x:16*x+16],HW[4*s_:4*s_+4],W1[(s_*2+x)*4:(s_*2+x)*4+4],"0" if s_==0 else D1[16*x:16*x+16])
    a(f"s_mov_b32 {sTmp}, {NEG_LOG2E}")
    for i in range(8):
        a(f"v_lshlrev_b32 {vT0}, 16, {W4R[i]}")
        a(f"v_and_b32 {vT2}, 0xffff0000, {W4R[i]}")
        a(f"v_mul_f32 {vT0}, {sTmp}, {vT0}")
        a(f"v_mul_f32 {vT2}, {sTmp}, {vT2}")
        a(f"v_cvt_pk_bf16_f32 {WE[i]}, {vT0}, {vT2}")
    a(f"v_cmp_lt_u32 vcc, 31, {vL}")
    for x in range(2):
        a(f"v_mul_f32 {WD[x]}, {sTmp}, {WD[x]}")
        a(f"v_cvt_pk_bf16_f32 {vT0}, {WD[x]}, {WD[x]}")
        a(f"v_and_b32 {vT0}, 0xffff0000, {vT0}")
        a(f"v_sub_f32 {vT2}, {WD[x]}, {vT0}")
        a(f"v_cvt_pk_bf16_f32 {vT2}, {vT2}, {vT2}")
        a(f"v_and_b32 {vT2}, 0xffff0000, {vT2}")
        a(f"v_cndmask_b32 {WD[x]}, {vT0}, {vT2}, vcc")
    a(f"s_cmp_lg_u32 {sWave}, 0")
    a("s_cbranch_scc1 K_G_NOEARLY")
    a(f"s_mov_b32 {sTmp2}, {FLG}")
    for k in range(4): a(f"buffer_load_dword {AD[k]}, {vL16}, {sW}, {sTmp2} offen offset:{1024*k} sc1")
    a.label("K_G_NOEARLY")
    a(f"v_cmp_lt_u32 vcc, 31, {vL}")
    a(f"v_mov_b32 {vJ}, 0xffff")
    for x in range(2):
        for r in range(4):
            q0,q1=D1[16*x+2*r],D1[16*x+2*r+1]
            a(f"v_mul_f32 {q0}, {sTmp}, {q0}")
            a(f"v_mul_f32 {q1}, {sTmp}, {q1}")
            a(f"v_cvt_pk_bf16_f32 {vT0}, {q0}, {q1}")
            a(f"v_lshlrev_b32 {vT1}, 16, {vT0}")
            a(f"v_and_b32 {vT2}, 0xffff0000, {vT0}")
            a(f"v_sub_f32 {vT1}, {q0}, {vT1}")
            a(f"v_sub_f32 {vT2}, {q1}, {vT2}")
            a(f"v_cvt_pk_bf16_f32 {vT1}, {vT1}, {vT2}")
            a(f"v_cndmask_b32 {WA[4*x+r]}, {vT0}, {vT1}, vcc")
        a(f"v_bfi_b32 {WA[4*x+3]}, {vJ}, {WA[4*x+3]}, {WD[x]}")
    a(f"s_lshl_b32 {sTmp}, {sWave}, 11")
    a(f"s_add_u32 {sTmp}, {sTmp}, {L_A2}")
    a(f"v_lshl_add_u32 {vT0}, {vL}, 5, {sTmp}")
    a(f"ds_write_b128 {vT0}, {WA[0:4]}")
    a(f"ds_write_b128 {vT0}, {WA[4:8]} offset:16")
    for i in range(32): a(f"v_mov_b32 {D2[i]}, 0")
    a(f"s_sub_u32 {sTmp}, {sWave}, 5")
    a(f"s_cmp_lt_u32 {sTmp}, 2")
    a("s_cbranch_scc0 K_G_NOFLG2")
    a.c("waves 5,6: their rows have left -> signal them")
    a(f"ds_read_b32 {aE}, {vZ[0]} offset:{L_NRES+8}")
    a("s_waitcnt vmcnt(0) lgkmcnt(0)")
    a(f"v_readfirstlane_b32 {sNonce}, {aE}")
    a("s_nop 3")
    a(f"s_lshl_b32 {sTmp}, s2, 1")
    a(f"s_add_u32 {sTmp}, {sTmp}, {sWave}")
    a(f"s_sub_u32 {sTmp}, {sTmp}, 5")
    a(f"s_lshl_b32 {sTmp}, {sTmp}, 4")
    a(f"s_add_u32 {sTmp}, {sTmp}, {FLG2}")
    a(f"v_mov_b32 {vT0}, {sNonce}")
    a(f"buffer_store_dword {vT0}, {vZ[0]}, {sW}, {sTmp} offen sc1")
    a.label("K_G_NOFLG2")
    a(f"s_cmp_lg_u32 {sWave}, 0")
    a("s_cbranch_scc1 K_G_WAIT")
    a.c("wave 0: wait for all 256 hand-offs (the first round of flag loads is already in flight)")
    a(f"s_mov_b32 {sTmp2}, {FLG}")
    a("s_branch K_G_POLL1")
    a.label("K_G_POLL")
    for k in range(4): a(f"buffer_load_dword {AD[k]}, {vL16}, {sW}, {sTmp2} offen offset:{1024*k} sc1")
    a.label("K_G_POLL1")
    a("s_waitcnt vmcnt(0)")
    a(f"v_cmp_eq_u32 {sAny}, {sNonce}, {AD[0]}")
    a(f"v_cmp_eq_u32 {sSave}, {sNonce}, {AD[1]}")
    a(f"v_cmp_eq_u32 vcc, {sNonce}, {AD[2]}")
    a("s_nop 1")
    a(f"s_and_b64 {sAny}, {sAny}, {sSave}")
    a(f"v_cmp_eq_u32 {sSave}, {sNonce}, {AD[3]}")
    a(f"s_and_b64 {sAny}, {sAny}, vcc")
    a("s_nop 1")
    a(f"s_and_b64 {sAny}, {sAny}, {sSave}")
    a(f"s_cmp_eq_u64 {sAny}, -1")
    a("s_cbranch_scc1 K_G_WAIT")
    a(f"s_add_u32 {sPoll}, {sPoll}, 1")
    a(f"s_cmp_lt_u32 {sPoll}, 200000")
    a("s_cbranch_scc1 K_G_POLL")
    a.label("K_G_WAIT")
    a.c("waves 4 and 7 keep their pos pieces in flight: their cell loads return behind them")
    a(f"s_lshl_b32 {sTmp}, 1, {sWave}")
    a(f"s_and_b32 {sTmp}, {sTmp}, 0x90")
    a("s_cbranch_scc1 K_G_WAIT47")
    a("s_waitcnt vmcnt(0)")
    a.label("K_G_WAIT47")
    a("s_waitcnt lgkmcnt(0)")
    for _ in range(opt.get('delay',0)): a("s_sleep 32")
    a("s_barrier")
    stamp(a,opt,4)
    RECP=D1[0:16]; REC=[RECP[2*i] for i in range(8)]+[RECP[2*i+1] for i in range(8)]; WAD=D1[16:32]; RK=HA
    a.c("cell records of this bin: pair s holds slots m and 16+m (m = l&15) of cell 32s+4v+(l>>4)")
    if not CT:
        a(f"s_lshl_b32 {sTmp}, s2, 15")
        a(f"s_lshl_b32 {sTmp2}, {sWave}, 9")
        a(f"s_add_u32 {sTmp}, {sTmp}, {sTmp2}")
        a(f"v_lshl_add_u32 {vT0}, {vL}, 3, {sTmp}")
    else:
        a(f"s_lshl_b32 {sTmp}, s2, 7")
        a(f"s_lshl_b32 {sTmp2}, {sWave}, 17")
        a(f"s_add_u32 {sTmp}, {sTmp}, {sTmp2}")
        a(f"v_lshrrev_b32 {vT0}, 4, {vL}")
        a(f"v_lshlrev_b32 {vT0}, 15, {vT0}")
        a(f"v_and_b32 {vT1}, 15, {vL}")
        a(f"v_lshl_add_u32 {vT0}, {vT1}, 3, {vT0}")
        a(f"v_add_u32 {vT0}, {sTmp}, {vT0}")
    ROT=opt.get('rot',0)
    if ROT==1: a(f"s_getreg_b32 {sRot}, hwreg(HW_REG_XCC_ID, 0, 4)")
    elif ROT==2: a(f"s_and_b32 {sRot}, s2, 7")
    elif ROT==3:
        a(f"s_getreg_b32 {sRot}, hwreg(HW_REG_XCC_ID, 0, 4)")
        a(f"s_and_b32 {sRot}, {sRot}, 3")
        a(f"s_lshl_b32 {sRot}, {sRot}, 1")
    else: a(f"s_mov_b32 {sRot}, 0")
    def pair_index(dst,s_):
        a(f"s_add_u32 {dst}, {sRot}, {s_}")
        a(f"s_and_b32 {dst}, {dst}, 7")
    for s_ in range(8):
        pair_index(sTmp,s_)
        a(f"s_lshl_b32 {sTmp}, {sTmp}, {20 if CT else 12}")
        a(f"buffer_load_dwordx2 {RECP[2*s_:2*s_+2]}, {vT0}, {sW}, {sTmp} offen{LD}")
    a(f"v_lshlrev_b32 {vT2}, 1, {vL}")
    a(f"v_and_b32 {vT2}, 62, {vT2}")
    a("s_load_dwordx2 s[98:99], s[0:1], 48")
    a.c("node-update weights (transposed reads of raw w_h), waves 0..3 use them")
    a(f"s_and_b32 {sTmp}, {sWave}, 1")
    a(f"s_lshl_b32 {sTmp}, {sTmp}, 6")
    a(f"s_add_u32 {sTmp}, {sTmp}, {L_HST}")
    a(f"v_add_u32 {vT1}, {sTmp}, {vTRW}")
    for s_ in range(8):
        for th in range(2):
            a(f"ds_read_b64_tr_b16 {WH[4*s_+2*th:4*s_+2*th+2]}, {vT1} offset:{s_*2048+th*512}")
            if (2*s_+th)==7: a("s_waitcnt lgkmcnt(0)")
    srd(a,sT4,"s98","s99",128)
    a(f"v_mov_b32 {WX[0]}, 0")
    a(f"v_mov_b32 {WX[1]}, 0")
    a(f"buffer_load_short_d16_hi {WX[0]}, {vT2}, {sT4}, 0 offen")
    a(f"buffer_load_short_d16_hi {WX[1]}, {vT2}, {sT4}, 0 offen offset:64")
    a("s_waitcnt vmcnt(2)")
    stamp(a,opt,5)
    a(f"s_mov_b64 {sAny}, 0")
    for s_ in range(16):
        a(f"v_cmp_gt_u32 {sMask[s_]}, {sMark}, {REC[s_]}")
        if s_<8:
            a(f"v_cmp_eq_u32 vcc, {sMark}, {REC[s_]}")
        a(f"v_lshrrev_b32 {WAD[s_]}, 27, {REC[s_]}")
        a(f"v_and_b32 {WAD[s_]}, 0x1c, {WAD[s_]}")
        if s_<8: a(f"s_or_b64 {sAny}, {sAny}, vcc")
    order=[x for p in range(8) for x in (p,8+p)]
    for n_,s_ in enumerate(order):
        a(f"s_mov_b64 exec, {sMask[s_]}")
        if s_>=8: a(f"s_cbranch_execz K2_A{s_}")
        a(f"ds_add_rtn_u32 {RK[s_]}, {WAD[s_]}, {vOne} offset:{L_CNT}")
        if s_>=8: a.label(f"K2_A{s_}")
        if n_==7:
            a("s_waitcnt lgkmcnt(4)")
    a("s_mov_b64 exec, -1")
    FL=A2R
    def flg2_loads():
        a(f"s_mov_b32 {sTmp2}, {FLG2}")
        for k in range(4): a(f"buffer_load_dword {FL[k]}, {vL16}, {sW}, {sTmp2} offen offset:{1024*k} sc1")
        a(f"s_mov_b32 {sTmp2}, {FLG2+4096}")
        for k in range(4): a(f"buffer_load_dword {FL[4+k]}, {vL16}, {sW}, {sTmp2} offen offset:{1024*k} sc1")
    a(f"s_cmp_lg_u32 {sWave}, 1")
    a("s_cbranch_scc1 K2_NOF2A")
    a.c("wave 1: flags of the source-node table (checked before barrier 2)")
    flg2_loads()
    a(f"ds_read_b32 {aE}, {vZ[0]} offset:{L_NRES+8}")
    a.label("K2_NOF2A")
    a(f"s_lshl_b32 {sTmp}, {sWave}, 2")
    a(f"v_lshrrev_b32 {vT0}, 4, {vL}")
    a(f"v_add_u32 {vT0}, {sTmp}, {vT0}")
    a(f"v_mul_u32_u24 {vT0}, {CH}, {vT0}")
    a(f"v_mov_b32 {vT1}, {L_L0}")
    a(f"v_mov_b32 {vT2}, {L_L1}")
    a("s_waitcnt lgkmcnt(0)")
    for s_ in order:
        a(f"s_mov_b64 exec, {sMask[s_]}")
        if s_>=8: a(f"s_cbranch_execz K2_B{s_}")
        pair_index(sTmp,s_&7)
        a(f"s_mul_i32 {sTmp}, {sTmp}, {32*CH}")
        a(f"v_min_u32 {RK[s_]}, {CAPX-1}, {RK[s_]}")
        a(f"v_and_b32 {vT3}, 0xfff, {REC[s_]}")
        a(f"v_mad_u32_u24 {RK[s_]}, {WAD[s_]}, {sCAPq}, {RK[s_]}")
        a(f"v_add3_u32 {vT3}, {vT3}, {vT0}, {sTmp}")
        a(f"v_bfe_u32 {vJ}, {REC[s_]}, 26, 3")
        a(f"v_lshl_add_u32 {AD[0]}, {RK[s_]}, 2, {vT1}")
        a(f"v_lshl_or_b32 {vT3}, {vT3}, 5, {vJ}")
        a(f"v_lshl_add_u32 {AD[1]}, {RK[s_]}, 1, {vT2}")
        a(f"v_bfe_u32 {vJ}, {REC[s_]}, 12, 14")
        a(f"ds_write_b32 {AD[0]}, {vT3}")
        a(f"ds_write_b16 {AD[1]}, {vJ}")
        if s_>=8: a.label(f"K2_B{s_}")
    a("s_mov_b64 exec, -1")
    NE=opt.get('epf',0)
    if NE:
        a.c("L2 warm-up of the e_attr lines of the first records (speed only; results are never read)")
        a(f"s_lshl_b32 {sTmp}, {sWave}, 2")
        a(f"v_lshrrev_b32 {vT0}, 4, {vL}")
        a(f"v_add_u32 {vT0}, {sTmp}, {vT0}")
        a(f"v_mul_u32_u24 {vT0}, {CH}, {vT0}")
        a(f"v_mov_b32 {vT2}, 0x2000000")
        for k in range(NE):
            a(f"v_cmp_gt_u32 vcc, {sMark}, {REC[k]}")
            a(f"v_and_b32 {vT1}, 0xfff, {REC[k]}")
            pair_index(sTmp,k)
            a(f"s_mul_i32 {sTmp}, {sTmp}, {32*CH}")
            a(f"v_add3_u32 {vT1}, {vT1}, {vT0}, {sTmp}")
            a(f"v_cndmask_b32 {vT1}, {vT2}, {vT1}, vcc")
            a(f"v_lshlrev_b32 {vT1}, 5, {vT1}")
            a(f"buffer_load_dword {vDUM}, {vT1}, {sE}, 0 offen")
    a.c("overflowed cells -> rescan list (rare)")
    a(f"s_cmp_eq_u64 {sAny}, 0")
    a("s_cbranch_scc1 K2_NOMARK")
    a(f"v_lshrrev_b32 {vT0}, 4, {vL}")
    a(f"s_lshl_b32 {sTmp}, {sWave}, 2")
    a(f"v_add_u32 {vT0}, {sTmp}, {vT0}")
    a(f"v_mov_b32 {vT1}, {L_NRES}")
    for s_ in range(8):
        a(f"v_cmp_eq_u32 vcc, {sMark}, {REC[s_]}")
        a(f"s_and_saveexec_b64 {sSave}, vcc")
        a(f"s_cbranch_execz K2_MK{s_}")
        a(f"ds_add_rtn_u32 {vT2}, {vT1}, {vOne}")
        pair_index(sTmp,s_)
        a(f"s_lshl_b32 {sTmp}, {sTmp}, 5")
        a(f"v_add_u32 {vT3}, {sTmp}, {vT0}")
        a("s_waitcnt lgkmcnt(0)")
        a(f"v_lshlrev_b32 {vT2}, 2, {vT2}")
        a(f"ds_write_b32 {vT2}, {vT3} offset:{L_RES}")
        a.label(f"K2_MK{s_}")
        a(f"s_mov_b64 exec, {sSave}")
    a.label("K2_NOMARK")
    a("s_load_dwordx2 s[64:65], s[0:1], 0")
    a("s_waitcnt vmcnt(0) lgkmcnt(0)")
    a(f"s_cmp_lg_u32 {sWave}, 1")
    a("s_cbranch_scc1 K2_NOF2B")
    a(f"v_readfirstlane_b32 {sNonce}, {aE}")
    a(f"s_mov_b32 {sPoll}, 0")
    a("s_nop 1")
    a.label("K2_F2CHK")
    a(f"v_cmp_eq_u32 {sAny}, {sNonce}, {FL[0]}")
    for k in range(1,8):
        a(f"v_cmp_eq_u32 vcc, {sNonce}, {FL[k]}")
        a("s_nop 1")
        a(f"s_and_b64 {sAny}, {sAny}, vcc")
    a(f"s_cmp_eq_u64 {sAny}, -1")
    a("s_cbranch_scc1 K2_NOF2B")
    a(f"s_add_u32 {sPoll}, {sPoll}, 1")
    a(f"s_cmp_gt_u32 {sPoll}, 200000")
    a("s_cbranch_scc1 K2_NOF2B")
    flg2_loads()
    a("s_waitcnt vmcnt(0)")
    a("s_branch K2_F2CHK")
    a.label("K2_NOF2B")
    srd(a,sHs,"s64","s65",N*128)
    a(f"s_mov_b32 {sTmp}, {NEG_LN2}")
    a(f"v_mul_f32 {WX[0]}, {sTmp}, {WX[0]}")
    a(f"v_mul_f32 {WX[1]}, {sTmp}, {WX[1]}")
    stamp(a,opt,6)
    a("s_barrier")
    stamp(a,opt,7)
    a.c("window sizes (lane = pair i,k) and the rescan count")
    a(f"v_mov_b32 {vT0}, {L_NRES}")
    a(f"ds_read_b32 {vT1}, {vT0}")
    a(f"ds_read_b32 {vT2}, {aOH} offset:{L_CNT}")
    a(f"ds_read_b32 {vT3}, {SS} offset:{L_CNT}")
    a("s_waitcnt lgkmcnt(0)")
    a(f"v_readfirstlane_b32 {sNR}, {vT1}")
    a(f"v_min_u32 {vT0}, 0xffffff, {vT2}")
    a(f"v_min_u32 {vJ}, 0xffffff, {vT3}")
    a(f"s_cmp_eq_u32 {sNR}, 0")
    a("s_cbranch_scc1 K2_CHECK")
    a(f"s_min_u32 {sNR}, {sNR}, 256")
    a(f"s_mov_b32 {sI}, 0")
    a.label("K2_RESCAN_I")
    a(f"s_lshl_b32 {sTmp}, {sI}, 2")
    a(f"s_add_u32 {sTmp}, {sTmp}, {L_RES}")
    a(f"v_mov_b32 {vT0}, {sTmp}")
    a(f"ds_read_b32 {vT1}, {vT0}")
    a("s_waitcnt lgkmcnt(0)")
    a(f"v_readfirstlane_b32 {sWsrc}, {vT1}")
    a("s_nop 3")
    a(f"s_min_u32 {sWsrc}, {sWsrc}, 255")
    a(f"s_mov_b32 {sC}, 0")
    a.label("K2_RESCAN_C")
    def append_raw(lim_local):
        a(f"v_lshlrev_b32 {vT1}, 2, {vT0}")
        a(f"buffer_load_dword {AD[0]}, {vT1}, {sD}, 0 offen")
        a(f"buffer_load_dword {AD[1]}, {vT1}, {sS}, 0 offen")
        a("s_waitcnt vmcnt(0)")
        a(f"v_mul_hi_u32 {vT2}, {AD[0]}, {sK}")
        a(f"v_lshrrev_b32 {vT3}, 3, {vT2}")
        a(f"v_cmp_eq_u32 vcc, s2, {vT3}")
        a("s_nop 1")
        a(f"s_and_b64 vcc, vcc, {sAny}")
        a(f"s_and_saveexec_b64 {sSave}, vcc")
        a(f"s_cbranch_execz {lim_local}")
        a(f"v_mad_u32_u24 {vT3}, {vT2}, {s3125}, {v511}")
        a(f"v_and_b32 {vT2}, 7, {vT2}")
        a(f"v_lshrrev_b32 {vT3}, 9, {vT3}")
        a(f"v_lshlrev_b32 {vT2}, 2, {vT2}")
        a(f"v_sub_u32 {vT3}, {AD[0]}, {vT3}")
        a(f"ds_add_rtn_u32 {AD[2]}, {vT2}, {vOne} offset:{L_CNT}")
        a(f"v_lshl_or_b32 {vT0}, {vT0}, 5, {vT3}")
        a("s_waitcnt lgkmcnt(0)")
        a(f"v_min_u32 {AD[2]}, {CAPX-1}, {AD[2]}")
        a(f"v_mad_u32_u24 {AD[2]}, {vT2}, {sCAPq}, {AD[2]}")
        a(f"v_mov_b32 {vT2}, {L_L0}")
        a(f"v_mov_b32 {vT3}, {L_L1}")
        a(f"v_lshl_add_u32 {vT2}, {AD[2]}, 2, {vT2}")
        a(f"v_lshl_add_u32 {vT3}, {AD[2]}, 1, {vT3}")
        a(f"ds_write_b32 {vT2}, {vT0}")
        a(f"ds_write_b16 {vT3}, {AD[1]}")
        a.label(lim_local)
        a(f"s_mov_b64 exec, {sSave}")
    a(f"s_lshl_b32 {sTmp}, {sC}, 9")
    a(f"v_add_u32 {vT1}, {sTmp}, v0")
    a(f"s_mul_i32 {sTmp2}, {sWsrc}, {CH}")
    a(f"v_add_u32 {vT0}, {sTmp2}, {vT1}")
    a(f"v_cmp_gt_u32 vcc, {CH}, {vT1}")
    a(f"s_mov_b32 {sTmp}, {E}")
    a(f"v_cmp_gt_u32 {sAny}, {sTmp}, {vT0}")
    a("s_nop 1")
    a(f"s_and_b64 {sAny}, {sAny}, vcc")
    append_raw("K2_RA1")
    a(f"s_add_u32 {sC}, {sC}, 1")
    a(f"s_cmp_lt_u32 {sC}, 7")
    a("s_cbranch_scc1 K2_RESCAN_C")
    a(f"s_add_u32 {sI}, {sI}, 1")
    a(f"s_cmp_lt_u32 {sI}, {sNR}")
    a("s_cbranch_scc1 K2_RESCAN_I")
    a("s_waitcnt lgkmcnt(0)")
    a("s_barrier")
    a(f"ds_read_b32 {vT2}, {aOH} offset:{L_CNT}")
    a(f"ds_read_b32 {vT3}, {SS} offset:{L_CNT}")
    a("s_waitcnt lgkmcnt(0)")
    a(f"v_min_u32 {vT0}, 0xffffff, {vT2}")
    a(f"v_min_u32 {vJ}, 0xffffff, {vT3}")
    a.label("K2_CHECK")
    a.c("window assignment by size rank")
    a(f"v_lshl_or_b32 {vT0}, {vT0}, 3, {aPS}")
    a(f"v_lshl_or_b32 {vJ}, {vJ}, 3, {aPD}")
    a(f"v_cmp_lt_u32 {sAny}, {sCAP}, {vT3}")
    a(f"v_cmp_gt_u32 vcc, {vJ}, {vT0}")
    a(f"s_mov_b32 {sWin}, 0")
    a("s_nop 2")
    for i in range(8):
        a(f"s_bfe_u32 {sTmp}, {'vcc_lo' if i<4 else 'vcc_hi'}, {(8<<16)|(8*(i&3))}")
        a(f"s_bcnt1_i32_b32 {sTmp}, {sTmp}")
        a(f"s_cmp_eq_u32 {sTmp}, {sTgt}")
        a(f"s_cselect_b32 {sWin}, {i}, {sWin}")
    if opt.get('nobal',0): a(f"s_mov_b32 {sWin}, {sWave}")
    a(f"s_lshl_b32 {sTmp}, {sWin}, 3")
    a(f"v_readlane_b32 {sCnt}, {vT2}, {sTmp}")
    geometry(sWin)
    a(f"s_lshl_b32 {sTmp}, {sWin}, 11")
    a(f"v_add_u32 {vE64}, {sTmp}, {vE64}")
    a(f"v_add_u32 {vTR}, {sTmp}, {vTR}")
    a(f"s_add_u32 {sTmp}, {sTmp}, {L_A2}")
    a(f"v_lshl_add_u32 {vT0}, {vL}, 5, {sTmp}")
    a(f"ds_read_b128 {WA[0:4]}, {vT0}")
    a(f"ds_read_b128 {WA[4:8]}, {vT0} offset:16")
    for i in range(4): a(f"v_mov_b32 {A2R[i]}, 0")
    a(f"ds_write_b128 {vT0}, {A2R[0:4]}")
    a(f"ds_write_b128 {vT0}, {A2R[0:4]} offset:16")
    a(f"s_cmp_eq_u64 {sAny}, 0")
    a("s_cbranch_scc1 K2_MAIN")
    a.c("generic (slow) mode: raw scan of all edges, 512 per round")
    a(f"s_mov_b32 {sMode}, 1")
    a.label("K2_GEN")
    a("s_barrier")
    a(f"s_cmp_lg_u32 {sWave}, 0")
    a("s_cbranch_scc1 K2_GEN1")
    a(f"v_and_b32 {vT0}, 7, {vL}")
    a(f"v_lshlrev_b32 {vT0}, 2, {vT0}")
    a(f"ds_write_b32 {vT0}, {vZ[0]} offset:{L_CNT}")
    a("s_waitcnt lgkmcnt(0)")
    a.label("K2_GEN1")
    a("s_barrier")
    a(f"s_lshl_b32 {sTmp}, {sChunk}, 9")
    a(f"v_add_u32 {vT0}, {sTmp}, v0")
    a(f"s_mov_b32 {sTmp}, {E}")
    a(f"v_cmp_gt_u32 {sAny}, {sTmp}, {vT0}")
    a("s_nop 1")
    append_raw("K2_RA2")
    a("s_waitcnt lgkmcnt(0)")
    a("s_barrier")
    a(f"s_lshl_b32 {sTmp}, {sWin}, 2")
    a(f"v_mov_b32 {vT0}, {sTmp}")
    a(f"ds_read_b32 {vT1}, {vT0} offset:{L_CNT}")
    a("s_waitcnt lgkmcnt(0)")
    a(f"v_readfirstlane_b32 {sCnt}, {vT1}")
    a("s_nop 3")
    a.label("K2_MAIN")
    if opt.get('dbgfill',0): stamp(a,opt,14)
    a(f"s_min_u32 {sCnt}, {sCnt}, {CAP}")
    a(f"s_add_u32 {sNT}, {sCnt}, 31")
    a(f"s_lshr_b32 {sNT}, {sNT}, 5")
    a(f"s_cmp_eq_u32 {sNT}, 0")
    a("s_cbranch_scc1 K2_MAIN_DONE")
    a(f"s_mul_i32 {sTmp}, {sWin}, {CAPX*4}")
    a(f"s_add_u32 {sTmp}, {sTmp}, {L_L0}")
    a(f"s_mul_i32 {sTmp2}, {sWin}, {CAPX*2}")
    a(f"s_add_u32 {sTmp2}, {sTmp2}, {L_L1}")
    a(f"v_and_b32 {vT0}, 31, {vL}")
    a(f"v_lshl_add_u32 {aL0}, {vT0}, 2, {sTmp}")
    a(f"v_lshl_add_u32 {aL1s}, {vT0}, 1, {sTmp2}")
    a(f"v_lshrrev_b32 {vT0}, 3, {vL}")
    a(f"v_lshl_add_u32 {aL1d}, {vT0}, 3, {sTmp2}")
    def pad():
        a(f"v_add_u32 {vT0}, {sCnt}, {vL}")
        a(f"v_lshl_add_u32 {vT1}, {vT0}, 2, {sTmp}")
        a(f"v_lshl_add_u32 {vT2}, {vT0}, 1, {sTmp2}")
        a(f"v_mov_b32 {vJ}, 7")
        a(f"ds_write_b32 {vT1}, {vJ}")
        a(f"ds_write_b16 {vT2}, {vZ[0]}")
        a(f"ds_write_b32 {vT1}, {vJ} offset:256")
        a(f"ds_write_b16 {vT2}, {vZ[0]} offset:128")
    def first_reads():
        a(f"ds_read_b32 {vT3}, {aL0}")
        a(f"ds_read_b64 {SD}, {aL1d}")
        a(f"ds_read_b32 {LE[1]}, {aL0} offset:128")
        a(f"ds_read_b32 {LE[0]}, {aL0} offset:256")
        a(f"ds_read_u16 {SS}, {aL1s}")
    a(f"s_cmp_ge_u32 {sCnt}, 96")
    a("s_cbranch_scc1 K2_FILL_BIG")
    pad()
    first_reads()
    a("s_waitcnt lgkmcnt(0)")
    a("s_branch K2_FILL")
    a.label("K2_FILL_BIG")
    first_reads()
    pad()
    a("s_waitcnt lgkmcnt(4)")
    a.label("K2_FILL")
    ENT=['',' nt',' sc1',' sc0 sc1',' sc0',' sc0 nt',' sc1 nt',' sc0 sc1 nt'][opt.get('e_nt',0)]
    def E_addr(le): a(f"v_and_or_b32 {aE}, {le}, {sMaskE}, {vHOFF}")
    def E_load(p): a(f"buffer_load_dwordx4 {EA[p]}, {aE}, {sE}, 0 offen{ENT}")
    def H_addr():
        if opt.get('hmask',0):
            a(f"v_and_b32 {SD[0]}, 0x03ff03ff, {SD[0]}"); a(f"v_and_b32 {SD[1]}, 0x03ff03ff, {SD[1]}")
        for i in range(4):
            a(f"v_mad_u32_u16 {AD[i]}, {SD[i>>1]}, {s128}, {vKD[i]}"+(" op_sel:[1,0,0,0]" if i&1 else ""))
    def H_load(i):
        a(f"s_mov_b32 m0, {sM0[i]}")
        a("s_nop 0")
        a(f"buffer_load_dwordx4 {AD[i]}, {sB}, 0 offen{HLD} lds")
    def P_addr(le,par):
        a(f"v_and_b32 {vJ}, 7, {le}")
        a(f"v_mul_u32_u24 {aPS}, 6, {SS}")
        a(f"v_mad_u32_u24 {aPD}, {vJ}, 6, {sN06}")
        a(f"v_lshlrev_b32 {aOH}, 4, {vJ}")
        a(f"v_lshl_add_u32 {aA2[par]}, {vJ}, 3, {vE64}")
    def P_reads():
        for c in range(3): a(f"ds_read_u16_d16_hi {PS[c]}, {aPS} offset:{L_POS+2*c}")
        for c in range(3): a(f"ds_read_u16_d16_hi {PD[c]}, {aPD} offset:{L_POS+2*c}")
        a(f"ds_read_b128 {OH}, {aOH} offset:{L_OH}")
    def P_calc_list(par):
        return [f"v_sub_f32 {DX[0]}, {PD[0]}, {PS[0]}", f"v_sub_f32 {DX[1]}, {PD[1]}, {PS[1]}", f"v_sub_f32 {DX[2]}, {PD[2]}, {PS[2]}",
                f"v_mul_f32 {DD}, {DX[0]}, {DX[0]}", f"v_fmac_f32 {DD}, {DX[1]}, {DX[1]}", f"v_fmac_f32 {DD}, {DX[2]}, {DX[2]}",
                f"v_cvt_pk_bf16_f32 {E01[0]}, 1.0, {DX[0]}", f"v_cvt_pk_bf16_f32 {E01[1]}, {DX[1]}, {DX[2]}",
                f"v_cvt_pk_bf16_f32 {OH[3]}, {OH[3]}, {DD}",
                f"ds_write_b64 {aA2[par]}, {E01}"]
    E_addr(vT3); E_load(0)
    H_addr()
    for i in range(4): H_load(i)
    E_addr(LE[1]); E_load(1)
    if opt.get('dbgfill',0): stamp(a,opt,15)
    P_addr(vT3,0); P_reads()
    a(f"ds_read_b64 {SD}, {aL1d} offset:64")
    a(f"ds_read_u16 {SS}, {aL1s} offset:64")
    for i in range(16): a(f"v_mov_b32 {T[i]}, 0")
    for i in range(8): a(f"v_mov_b32 {A2R[i]}, 0")
    a("s_waitcnt lgkmcnt(0)")
    for ins in P_calc_list(0): a(ins)
    H_addr()
    P_addr(LE[1],1)
    E_addr(LE[0])
    a("s_waitcnt vmcnt(1)")
    for s_ in range(4): a(f"ds_read_b128 {HA[4*s_:4*s_+4]}, {vHA[s_]}")
    Da,Db=D1[0:16],D1[16:32]
    mfma(a,Da,OH,WA[0:4],"0")
    mfma(a,Da,EA[0],WE[0:4],Da)
    a("s_waitcnt lgkmcnt(0)")
    for i in range(4): H_load(i)
    mfma(a,Da,HA[0:4],ID[0:4],Da)
    mfma(a,Da,HA[4:8],ID[4:8],Da)
    a(f"s_mov_b32 {sT}, 0")
    stamp(a,opt,8)
    if DBG:
        a("s_memtime s[80:81]")
        a("s_waitcnt lgkmcnt(0)")
    a.nop(12)
    MADD=opt.get('madd',1)
    PB_=[0]; MF=[False]
    def prio(p):
        if PRIO: a(f"s_setprio {p+PB_[0] if PB_[0]>=0 else 3}")
    def Tsec(kind,x,p):
        Dx=D1[16*x:16*x+16]; o=1-x; Do=D1[16*o:16*o+16]; D2o=D2[16*o:16*o+16]
        prio(1)
        if kind=='X':
            ea = EA[p] if x==0 else EA[1-p]
            mfma(a,Do,OH,WA[4*o:4*o+4],"0")
            for i in range(8): a(f"v_cvt_pk_bf16_f32 {M[i]}, {T[2*i]}, {T[2*i+1]}")
            mfma(a,Do,ea,WE[4*o:4*o+4],Do)
            for i in range(16):
                if i==6:
                    if x==1: a("s_waitcnt lgkmcnt(2)")
                    mfma(a,D2o,A2R[0:4],M[0:4],D2o)
                a(f"v_exp_f32 {T[i]}, {Dx[i]}")
            if MADD:
                a("s_nop 1")
                mfma(a,T,ONE,ONE,T)
        else:
            hb = HA[8:16] if x==0 else HA[0:8]
            for i in range(16):
                if i==0: mfma(a,Do,hb[0:4],ID[0:4],Do)
                if i==5: mfma(a,Do,hb[4:8],ID[4:8],Do)
                if i==10: mfma(a,D2o,A2R[4:8],M[4:8],D2o)
                a(f"v_rcp_f32 {T[i]}, {T[i]}")
        prio(0)
    def tile(p):
        q=1-p
        Tsec('X',0,p)
        if not opt.get('e_late',0): E_load(p)
        else: a("s_nop 0")
        P_reads()
        a(f"ds_read_b64 {SD}, {aL1d} offset:{64*(p+2)}")
        if not MADD:
            for i in range(16): a(f"v_add_f32 {T[i]}, 1.0, {T[i]}")
        else:
            a.nop(2)
        Tsec('R',0,p)
        def mulsA():
            for i in range(16): a(f"v_mul_f32 {T[i]}, {Da[i]}, {T[i]}")
        if MF[0]: mulsA()
        a(f"s_waitcnt vmcnt({0 if opt.get('e_late',0) else 1}) lgkmcnt(0)")
        for s_ in range(4): a(f"ds_read_b128 {HA[4*s_:4*s_+4]}, {vHA[s_]}")
        for k in range(4): a(f"ds_read_b64_tr_b16 {A2R[2*k:2*k+2]}, {vTR} offset:{512*k}")
        a(f"ds_write_b64 {aA2[p]}, {vZ}")
        pc=P_calc_list(q)
        for ins in pc[:6]: a(ins)
        H_addr()
        if not MF[0]: mulsA()
        for ins in pc[6:]: a(ins)
        if MF[0]: a("s_nop 0")
        Tsec('X',1,p)
        a("s_waitcnt lgkmcnt(0)")
        if opt.get('e_late',0)==1: E_load(p)
        for i in range(4): H_load(i)
        a(f"ds_read_b32 {LE[q]}, {aL0} offset:{128*(p+3)}")
        a(f"ds_read_u16 {SS}, {aL1s} offset:{64*(p+2)}")
        if not MADD:
            for i in range(16): a(f"v_add_f32 {T[i]}, 1.0, {T[i]}")
        Tsec('R',1,p)
        def mulsB():
            for i in range(16): a(f"v_mul_f32 {T[i]}, {Db[i]}, {T[i]}")
        if MF[0]: mulsB()
        a("s_waitcnt lgkmcnt(0)")
        E_addr(LE[q])
        P_addr(LE[p],p)
        if p==1:
            a(f"v_add_u32 {aL0}, 256, {aL0}")
            a(f"v_add_u32 {aL1s}, 128, {aL1s}")
            a(f"v_add_u32 {aL1d}, 128, {aL1d}")
        if not MF[0]: mulsB()
    def drain(par):
        for i in range(8): a(f"v_cvt_pk_bf16_f32 {M[i]}, {T[2*i]}, {T[2*i+1]}")
        a(f"ds_write_b64 {aA2[par]}, {vZ}")
        a("s_nop 0")
        mfma(a,D2[16:32],A2R[0:4],M[0:4],D2[16:32])
        mfma(a,D2[16:32],A2R[4:8],M[4:8],D2[16:32])
    def main_loop(sfx):
        a(".p2align 6")
        a.label("K2_LOOP"+sfx)
        tile(0)
        a(f"s_add_u32 {sT}, {sT}, 1")
        a(f"s_cmp_ge_u32 {sT}, {sNT}")
        a("s_cbranch_scc1 K2_EXIT_ODD"+sfx)
        tile(1)
        a(f"s_add_u32 {sT}, {sT}, 1")
        a(f"s_cmp_lt_u32 {sT}, {sNT}")
        a("s_cbranch_scc1 K2_LOOP"+sfx)
        drain(0)
        a("s_branch K2_LOOP_DONE")
        a.label("K2_EXIT_ODD"+sfx)
        drain(1)
    HP=opt.get('mfirst',0)
    if HP==1:
        a.c("the younger partner (waves 4..7) opens its plain sections with the multiplies, so both partners' multiplies pair up")
        a(f"s_cmp_ge_u32 {sWave}, 4")
        a("s_cbranch_scc1 K2_LOOP_H")
    if HP==2: MF[0]=True
    main_loop("")
    if HP==1:
        a("s_branch K2_LOOP_DONE")
        MF[0]=True
        main_loop("_H")
        MF[0]=False
    a.label("K2_LOOP_DONE")
    if PRIO: a("s_setprio 0")
    a.label("K2_MAIN_DONE")
    stamp(a,opt,9)
    if DBG:
        a("s_memtime s[82:83]")
        a("s_waitcnt lgkmcnt(0)")
        a("s_sub_u32 s80, s82, s80")
        a(f"v_writelane_b32 {VDBG}, s80, 12")
        a(f"v_writelane_b32 {VDBG}, {sNT}, 11")
    a(f"s_cmp_eq_u32 {sMode}, 0")
    a("s_cbranch_scc1 K2_EPI")
    a("s_waitcnt vmcnt(0) lgkmcnt(0)")
    a(f"s_add_u32 {sChunk}, {sChunk}, 1")
    a(f"s_cmp_lt_u32 {sChunk}, {(E+511)//512}")
    a("s_cbranch_scc1 K2_GEN")
    a.label("K2_EPI")
    a.c("segment sums of this window: m_i (bf16) -> rows of this window's (now idle) A2 slice")
    a(f"s_lshl_b32 {sHST}, {sWin}, 11")
    a(f"s_add_u32 {sHST}, {sHST}, {L_A2}")
    a(f"v_and_b32 {vJ}, 31, {vL}")
    a(f"s_mov_b32 {sTmp}, {NEG_LN2}")
    a(f"v_lshrrev_b32 {vT2}, 5, {vL}")
    a(f"v_lshlrev_b32 {vT2}, 7, {vT2}")
    a(f"v_lshl_add_u32 {vT2}, {vJ}, 1, {vT2}")
    a(f"v_add_u32 {vT2}, {sHST}, {vT2}")
    a.nop(8)
    for qq in range(4):
        a(f"v_mul_f32 {AD[0]}, {sTmp}, {D2[4*qq]}")
        a(f"v_mul_f32 {AD[1]}, {sTmp}, {D2[16+4*qq]}")
        a(f"v_cvt_pk_bf16_f32 {AD[2]}, {AD[0]}, {AD[1]}")
        a(f"ds_write_b16 {vT2}, {AD[2]} offset:{qq*256}")
        a(f"ds_write_b16_d16_hi {vT2}, {AD[2]} offset:{qq*256+64}")
    def pos_part():
        a.c("coordinate update of this window")
        PP=T
        for qq in range(4):
            for c in range(1,4):
                r=PP[qq*3+c-1]
                a(f"v_mul_f32 {r}, {WX[0]}, {D2[4*qq+c]}")
                a(f"v_fmac_f32 {r}, {WX[1]}, {D2[16+4*qq+c]}")
        for sh in (1,2,4,8):
            for i in range(12): a(f"v_add_f32_dpp {PP[i]}, {PP[i]}, {PP[i]} row_shr:{sh} row_mask:0xf bank_mask:0xf bound_ctrl:0")
        for i in range(12): a(f"v_add_f32_dpp {PP[i]}, {PP[i]}, {PP[i]} row_bcast:15 row_mask:0xa bank_mask:0xf")
        a(f"v_lshrrev_b32 {vT2}, 5, {vL}")
        a(f"v_lshlrev_b32 {vT2}, 4, {vT2}")
        a(f"s_add_u32 {sTmp}, {sHST}, 1024")
        a(f"v_add_u32 {vT2}, {sTmp}, {vT2}")
        a("s_mov_b32 exec_lo, 0x80000000")
        a("s_mov_b32 exec_hi, 0x80000000")
        for qq in range(4):
            for c in range(3):
                a(f"ds_write_b32 {vT2}, {PP[qq*3+c]} offset:{qq*32+c*4}")
        a("s_mov_b64 exec, -1")
        a(f"v_mul_u32_u24 {vT2}, 86, {vL}")
        a(f"v_lshrrev_b32 {vT2}, 8, {vT2}")
        a(f"v_mul_u32_u24 {vT3}, 3, {vT2}")
        a(f"v_sub_u32 {vT3}, {vL}, {vT3}")
        a(f"v_lshlrev_b32 {vT2}, 4, {vT2}")
        a(f"v_lshl_add_u32 {vT2}, {vT3}, 2, {vT2}")
        a(f"v_add_u32 {vT2}, {sTmp}, {vT2}")
        a(f"v_min_u32 {vT2}, {LDS2-4}, {vT2}")
        a(f"ds_read_b32 {AD[0]}, {vT2}")
        a(f"v_lshl_add_u32 {vT3}, {vL}, 1, {sN06}")
        a(f"v_min_u32 {vT2}, {POS_SZ-2}, {vT3}")
        a(f"ds_read_u16_d16_hi {PS[0]}, {vT2} offset:{L_POS}")
        a(f"s_mul_i32 {sTmp}, {sNJ}, 3")
        a(f"v_cmp_gt_u32 vcc, {sTmp}, {vL}")
        a(f"v_add_u32 {vT3}, {OUT_POS}, {vT3}")
        a(f"v_mov_b32 {vT2}, 0x40000000")
        a("s_waitcnt lgkmcnt(0)")
        a(f"v_cndmask_b32 {vT3}, {vT2}, {vT3}, vcc")
        a(f"v_add_f32 {AD[0]}, {AD[0]}, {PS[0]}")
        a(f"v_cvt_pk_bf16_f32 {AD[0]}, {AD[0]}, {AD[0]}")
        a(f"buffer_store_short {AD[0]}, {vT3}, {sO}, 0 offen{OST}")
    a.c("job waves 4..7: row tile r = (v-4)>>1 (rows = window 4r + (m>>3), node m&7), feature half x = v&1")
    a(f"s_cmp_lt_u32 {sWave}, 4")
    a("s_cbranch_scc1 K2_EPI_NOJOB")
    a(f"s_sub_u32 {sTmp2}, {sWave}, 4")
    a(f"s_lshr_b32 {sTmp2}, {sTmp2}, 1")
    a(f"s_lshl_b32 {sTmp2}, {sTmp2}, 2")
    a(f"v_bfe_u32 {vT0}, {vL}, 3, 2")
    a(f"v_add_u32 {vT0}, {sTmp2}, {vT0}")
    a(f"v_and_b32 {vJ}, 7, {vL}")
    a(f"v_lshlrev_b32 {aL1d}, 11, {vT0}")
    a(f"v_lshl_add_u32 {aL1d}, {vJ}, 7, {aL1d}")
    a(f"v_add_u32 {aL1d}, {L_A2}, {aL1d}")
    a(f"v_add_u32 {aL1d}, {aL1d}, {vHOFF}")
    a(f"s_lshl_b32 {sTmp2}, s2, 3")
    a(f"v_add_u32 {vT0}, {sTmp2}, {vT0}")
    a(f"v_mad_u32_u24 {SD[0]}, {vT0}, {s3125}, {v511}")
    a(f"v_add_u32 {SD[1]}, 3125, {SD[0]}")
    a(f"v_lshrrev_b32 {SD[0]}, 9, {SD[0]}")
    a(f"v_lshrrev_b32 {SD[1]}, 9, {SD[1]}")
    a(f"v_sub_u32 {SD[1]}, {SD[1]}, {SD[0]}")
    a(f"v_cmp_lt_u32 vcc, {vJ}, {SD[1]}")
    a(f"v_add_u32 {vT1}, -1, {SD[1]}")
    a(f"v_min_u32 {vT1}, {vT1}, {vJ}")
    a(f"v_add_u32 {vT1}, {SD[0]}, {vT1}")
    a(f"v_lshlrev_b32 {vT1}, 7, {vT1}")
    a(f"v_add_u32 {vT0}, {vT1}, {vHOFF}")
    for s_ in range(4):
        a(f"buffer_load_dwordx4 {HA[4*s_:4*s_+4]}, {vT0}, {sHs}, 0 offen offset:{32*s_}")
    a(f"s_and_b32 {sTmp2}, {sWave}, 1")
    a(f"s_lshl_b32 {sTmp2}, {sTmp2}, 6")
    a(f"v_lshrrev_b32 {vT0}, 1, {vHOFF}")
    a(f"v_add3_u32 {aL0}, {vT1}, {vT0}, {sTmp2}")
    for qq in range(4):
        a(f"buffer_load_dwordx2 {M[2*qq:2*qq+2]}, {aL0}, {sHs}, 0 offen offset:{16*qq}")
    a(f"v_mov_b32 {vT0}, 0x40000000")
    a(f"v_cndmask_b32 {aL1s}, {vT0}, {aL0}, vcc")
    pos_part()
    HV=D2[0:16]
    a("s_waitcnt vmcnt(1)")
    for s_ in range(4):
        mfma(a,D1[0:16],WH[4*s_:4*s_+4],HA[4*s_:4*s_+4],"0" if s_==0 else D1[0:16])
    for qq in range(4):
        a(f"v_lshlrev_b32 {HV[4*qq]}, 16, {M[2*qq]}")
        a(f"v_and_b32 {HV[4*qq+1]}, 0xffff0000, {M[2*qq]}")
        a(f"v_lshlrev_b32 {HV[4*qq+2]}, 16, {M[2*qq+1]}")
        a(f"v_and_b32 {HV[4*qq+3]}, 0xffff0000, {M[2*qq+1]}")
    stamp(a,opt,10)
    a("s_barrier")
    MA=[EA[0],EA[1],A2R[0:4],A2R[4:8]]
    for s_ in range(4): a(f"ds_read_b128 {MA[s_]}, {aL1d} offset:{32*s_}")
    for s_ in range(4):
        a(f"s_waitcnt lgkmcnt({3-s_})")
        mfma(a,D1[0:16],WH[16+4*s_:20+4*s_],MA[s_],D1[0:16])
    a(f"s_mov_b32 {sTmp}, {NEG_LOG2E}")
    a.nop(14)
    X=D1[0:16]
    for i in range(16): a(f"v_mul_f32 {T[i]}, {sTmp}, {X[i]}")
    for i in range(16): a(f"v_exp_f32 {T[i]}, {T[i]}")
    for i in range(16): a(f"v_add_f32 {T[i]}, 1.0, {T[i]}")
    for i in range(16): a(f"v_rcp_f32 {T[i]}, {T[i]}")
    a("s_nop 0")
    for i in range(16): a(f"v_fma_f32 {T[i]}, {X[i]}, {T[i]}, {HV[i]}")
    for qq in range(4):
        a(f"v_cvt_pk_bf16_f32 {M[2*qq]}, {T[4*qq]}, {T[4*qq+1]}")
        a(f"v_cvt_pk_bf16_f32 {M[2*qq+1]}, {T[4*qq+2]}, {T[4*qq+3]}")
        a(f"buffer_store_dwordx2 {M[2*qq:2*qq+2]}, {aL1s}, {sO}, 0 offen offset:{16*qq}{OST}")
    a("s_branch K2_FIN")
    a.label("K2_EPI_NOJOB")
    a("s_waitcnt lgkmcnt(0)")
    stamp(a,opt,10)
    a("s_barrier")
    pos_part()
    a.label("K2_FIN")
    if DBG:
        a("s_waitcnt vmcnt(0)")
        stamp(a,opt,13)
        a(f"s_lshl_b32 {sTmp}, s2, 4")
        a(f"s_add_u32 {sTmp}, {sTmp}, {sWave}")
        a(f"s_lshl_b32 {sTmp}, {sTmp}, 6")
        a(f"s_add_u32 {sTmp}, {sTmp}, {DBG_OFF}")
        a(f"v_lshlrev_b32 {vT0}, 2, {vL}")
        a("s_mov_b32 exec_lo, 0xffff")
        a("s_mov_b32 exec_hi, 0")
        a(f"buffer_store_dword {VDBG}, {vT0}, {sW}, {sTmp} offen")
        a("s_waitcnt vmcnt(0)")
    a.label("K_END")
    a("s_endpgm")
    a.label("K_CODE_END")
    return nv

HEADER='''; Kernarg layout (88 bytes, ptrs only): h, pos, e_attr, src, dst, w_e, w_x, w_h, out, debug, ws
; @launch grid=(256,1,1) block=(512,1,1) lds={lds2}
.amdgcn_target "amdgcn-amd-amdhsa--gfx950"
.text
.globl {k}
.p2align 8
.type {k},@function
'''
def kd(name,nv,ns):
    acc=(nv+3)//4*4
    return f'''.amdhsa_kernel {name}
  .amdhsa_next_free_vgpr {acc}
  .amdhsa_next_free_sgpr {ns}
  .amdhsa_accum_offset {acc}
  .amdhsa_group_segment_fixed_size 0
  .amdhsa_kernarg_size 88
  .amdhsa_user_sgpr_count 2
  .amdhsa_user_sgpr_kernarg_segment_ptr 1
  .amdhsa_system_sgpr_workgroup_id_x 1
  .amdhsa_float_denorm_mode_32 3
.end_amdhsa_kernel
'''
def build(opt):
    out=HEADER.format(lds2=LDS2,k=KNAME)
    a=Asm()
    nv=gen(a,opt)
    assert nv<=255
    out+=a.text()
    out+='.section .rodata,"a"\n.p2align 6\n'+kd(KNAME,256,102)
    return out,nv
if __name__=="__main__":
    opt={}
    for arg in sys.argv[2:]:
        k,v=arg.split('='); opt[k]=int(v)
    txt,nv=build(opt)
    open(sys.argv[1],'w').write(txt)
    print("vgprs:",nv,"LDS",LDS2,"lines",txt.count("\n"),"WS",WS_BYTES)
```

```python
import sys, struct
from asmlib import *

N=12500; E=800000; CH=3136; NSRC=256; NBIN=256; NPW=49
KW=703687442
LOG2E=1.4426950408889634; LN2=0.6931471805599453
def f2u(x): return struct.unpack('<I',struct.pack('<f',x))[0]
NEG_LOG2E=f2u(-LOG2E); NEG_LN2=f2u(-LN2)
SENT=0xFFFFFFFF; MARK=0xFFFFFFFE
CELLS=0; BPT=NBIN*NSRC*128; FLG=BPT+N*128+((-N*128)%4096); FLG2=FLG+4096; WS_BYTES=FLG2+8192
OUT_BYTES=N*64*2+N*3*2; OUT_POS=N*64*2
CAP=576; CAPX=704
L_OH=0; L_CNT=128; L_NRES=160; L_WIN=192; L_RES=256; L_POS=1280; POS_SZ=74*1024
L_L0=L_POS+POS_SZ; L_L1=L_L0+8*CAPX*4; L_A2=L_L1+8*CAPX*2; L_HST=L_A2+8*2048; LDS2=L_HST+8*4096
assert LDS2<=163840, LDS2
L_RAWW=L_L0; L_BST=L_L0+19*1024; assert L_BST+2*32*144<=L_A2
DBG_OFF=16*1024*1024

def WSB(opt): return (32*1024*1024 if opt.get('dbg',0) else WS_BYTES)
def srd(a, s, lo, hi, size):
    a(f"s_mov_b32 {s[0]}, {lo}")
    a(f"s_and_b32 {s[1]}, {hi}, 0xffff")
    a(f"s_mov_b32 {s[2]}, {size}")
    a(f"s_mov_b32 {s[3]}, 0x20000")
VDBG="v255"
def stamp(a,opt,idx):
    if not opt.get('dbg',0): return
    a("s_memrealtime s[100:101]")
    a("s_waitcnt lgkmcnt(0)")
    a(f"v_writelane_b32 {VDBG}, s100, {idx}")
def S(i,n=1): return R('s',i,n)
def V(i,n=1): return R('v',i,n)
def mfma(a,d,A,B,c): a(f"v_mfma_f32_32x32x16_bf16 {d}, {A}, {B}, {c}")

NPOS1=24
KNAME="gather_scatter__cheap_equivariant_egnn__graph_kernel"
def gen(a, opt):
    DBG=opt.get('dbg',0)
    PRIO=opt.get('prio',1)
    ST=" sc1"; LD=" sc1" if opt.get('ld_sc1',1) else ""
    HLD=[""," sc1"," sc0 sc1"," sc1 nt"," sc0 sc1 nt"][opt.get('h_sc1',1)]
    SNT=" nt" if opt.get('snt',0) else ""
    OST=[""," nt"," sc1"," sc0 sc1"][opt.get('ost',0)]
    a.label(KNAME)
    sB=S(4,4); sE=S(8,4); sW=S(12,4); sO=S(16,4); sP=S(20,4); sS=S(24,4); sD=S(28,4)
    sWave=S(32); sN0=S(33); sNJ=S(34); sN06=S(35); sNT=S(36); sT=S(37); sMode=S(38); sChunk=S(39)
    sMaskE=S(40); s128=S(41); sK=S(42); s3125=S(43); sLim=S(44); sCAP=S(44); sCnt=S(45); sTmp=S(46); sTmp2=S(47)
    sM0=S(48,4); sSave=S(52,2); sAny=S(54,2); sNR=S(56); sI=S(57); sC=S(58); sWsrc=S(59); sMark=S(60); sCAPq=S(61); sHST=S(62); sTmp3=S(63)
    sMask=[S(64+2*i,2) for i in range(16)]
    sTagOff=S(36)
    sRot=S(39+0) if False else S(37)
    sWin=S(96); sTgt=S(97); sNonce=S(98); sPoll=S(99)
    sT4=S(84,4); sT4b=S(88,4); sT4c=S(92,4)
    sHw=S(48,4)
    sHs=S(68,4); sWx=S(72,4)
    vr=Regs(1,256,'v')
    vL=vr.alloc('lane')
    WE=vr.alloc('WE',8,4); WA=vr.alloc('WA',8,4); ID=vr.alloc('ID',8,4); D2=vr.alloc('D2',32,4)
    D1=vr.alloc('D1',32,4); HA=vr.alloc('HA',16,4); T=vr.alloc('T',16,4); M=vr.alloc('M',8,4)
    A2R=vr.alloc('A2R',8,4); EA=[vr.alloc('EA0',4,4),vr.alloc('EA1',4,4)]; OH=vr.alloc('OH',4,4)
    WH=vr.alloc('WH',32,4); ONE=vr.alloc('ONE',4,4)
    vHA=vr.alloc('vHA',4); vKD=vr.alloc('vKD',4); vTR=vr.alloc('vTR'); vE64=vr.alloc('vE64'); vHOFF=vr.alloc('vHOFF')
    vZ=vr.alloc('vZ',2,2); aL0=vr.alloc('aL0'); aL1s=vr.alloc('aL1s'); aL1d=vr.alloc('aL1d')
    LE=[vr.alloc('LE0'),vr.alloc('LE1')]; aA2=[vr.alloc('aA2_0'),vr.alloc('aA2_1')]
    SD=vr.alloc('SD',2,2); SS=vr.alloc('SS'); PS=vr.alloc('PS',3); PD=vr.alloc('PD',3)
    E01=vr.alloc('E01',2,2); DX=vr.alloc('DX',3); DD=vr.alloc('DD'); AD=vr.alloc('AD',4); vJ=vr.alloc('vJ')
    aE=vr.alloc('aE'); aPS=vr.alloc('aPS'); aPD=vr.alloc('aPD'); aOH=vr.alloc('aOH')
    vT0=vr.alloc('vT0'); vT1=vr.alloc('vT1'); vT2=vr.alloc('vT2'); vT3=vr.alloc('vT3')
    vOne=vr.alloc('vOne'); v511=vr.alloc('v511'); vTRW=vr.alloc('vTRW'); vL16=vr.alloc('vL16'); WX=vr.alloc('WX',2); vDUM=vr.alloc('vDUM')
    nv=vr.next
    HW=T
    def geometry(win):
        a(f"s_lshl_b32 {sTmp}, s2, 3")
        a(f"s_add_u32 {sTmp}, {sTmp}, {win}")
        a(f"s_mul_i32 {sN0}, {sTmp}, 3125")
        a(f"s_add_u32 {sNJ}, {sN0}, {3125+511}")
        a(f"s_add_u32 {sN0}, {sN0}, 511")
        a(f"s_lshr_b32 {sN0}, {sN0}, 9")
        a(f"s_lshr_b32 {sNJ}, {sNJ}, 9")
        a(f"s_sub_u32 {sNJ}, {sNJ}, {sN0}")
        a(f"s_mul_i32 {sN06}, {sN0}, 6")
    def dma(vaddr,srd_,soff,ldsbase_const=None,ldsreg=None):
        pass

    def load_hwin():
        a.c("h rows of the natural window (A operand of h@W1; needed after barrier C)")
        a(f"v_bfe_u32 {vT0}, {vL}, 3, 1")
        a(f"v_and_b32 {vT2}, 3, {vL}")
        a(f"v_lshl_add_u32 {vT0}, {vT0}, 2, {vT2}")
        a(f"s_sub_u32 {sTmp}, {sNJ}, 1")
        a(f"v_min_u32 {vT0}, {sTmp}, {vT0}")
        a(f"v_add_u32 {vT0}, {sN0}, {vT0}")
        a(f"v_lshl_add_u32 {vT0}, {vT0}, 7, {vHOFF}")
        for s_ in range(4):
            a(f"buffer_load_dwordx4 {HW[4*s_:4*s_+4]}, {vT0}, {sHw}, 0 offen offset:{32*s_}")
    a("s_cmp_ge_u32 s2, 256")
    a("s_cbranch_scc1 K_END")
    a("s_load_dwordx4 s[64:67], s[0:1], 0")
    a("s_load_dwordx4 s[68:71], s[0:1], 16")
    a("s_load_dwordx4 s[72:75], s[0:1], 32")
    a("s_load_dwordx4 s[76:79], s[0:1], 64")
    a("s_load_dwordx2 s[80:81], s[0:1], 80")
    a(f"v_and_b32 {vL}, 63, v0")
    a(f"v_lshrrev_b32 {vT0}, 6, v0")
    a(f"v_lshlrev_b32 {vL16}, 4, {vL}")
    a(f"v_readfirstlane_b32 {sWave}, {vT0}")
    if opt.get('cpf',1):
        a.c("pull this workgroup's share of the kernel's own code into L2 (read only, speed only)")
        NL=opt.get('cpf_lines',8)
        a("s_getpc_b64 s[84:85]")
        a.label("K_PC")
        a("s_and_b32 s85, s85, 0xffff")
        a("s_mov_b32 s86, K_CODE_END-K_PC")
        a("s_mov_b32 s87, 0x20000")
        if opt.get('cpf',1)==1:
            a(f"s_lshr_b32 {sTmp}, s2, 3")
            a(f"s_and_b32 {sTmp}, {sTmp}, 31")
            a(f"s_mul_i32 {sTmp}, {sTmp}, {NL*128}")
            a(f"v_lshlrev_b32 {vT1}, 7, {vL}")
            a(f"v_add_u32 {vT1}, {sTmp}, {vT1}")
            a(f"s_cmp_lg_u32 {sWave}, 3")
            a("s_cbranch_scc1 K_NOCPF")
            a(f"s_mov_b32 exec_lo, {(1<<NL)-1}")
            a("s_mov_b32 exec_hi, 0")
            a(f"buffer_load_dword {vDUM}, {vT1}, s[84:87], 0 offen")
            a("s_mov_b64 exec, -1")
        elif opt.get('cpf',1)==2:
            a(f"s_mul_i32 {sTmp}, {sWave}, {24*128}")
            a(f"v_lshlrev_b32 {vT1}, 7, {vL}")
            a(f"v_add_u32 {vT1}, {sTmp}, {vT1}")
            a(f"s_mov_b32 exec_lo, {(1<<24)-1}")
            a("s_mov_b32 exec_hi, 0")
            a(f"buffer_load_dword {vDUM}, {vT1}, s[84:87], 0 offen")
            a("s_mov_b64 exec, -1")
        elif opt.get('cpf',1)==3:
            a(f"s_lshr_b32 {sTmp}, s2, 3")
            a(f"s_and_b32 {sTmp}, {sTmp}, 3")
            a(f"s_mul_i32 {sTmp}, {sTmp}, {48*128}")
            a(f"v_lshlrev_b32 {vT1}, 7, {vL}")
            a(f"v_add_u32 {vT1}, {sTmp}, {vT1}")
            a(f"s_cmp_lg_u32 {sWave}, 3")
            a("s_cbranch_scc1 K_NOCPF")
            a("s_mov_b32 exec_hi, 0xffff")
            a(f"buffer_load_dword {vDUM}, {vT1}, s[84:87], 0 offen")
            a("s_mov_b64 exec, -1")
        a.label("K_NOCPF")
    a(f"v_lshrrev_b32 {vT2}, 5, {vL}")
    a(f"v_lshlrev_b32 {vHOFF}, 4, {vT2}")
    a(f"v_mov_b32 {vZ[0]}, 0")
    a(f"v_mov_b32 {vZ[1]}, 0")
    geometry(sWave)
    a(f"s_mul_i32 {sTmp}, s2, {CH*4}")
    a(f"s_mul_i32 {sTmp2}, {sWave}, {384*4}")
    a(f"s_add_u32 {sTmp}, {sTmp}, {sTmp2}")
    a(f"v_lshl_add_u32 {vT0}, {vL}, 3, {sTmp}")
    a("s_waitcnt lgkmcnt(0)")
    stamp(a,opt,0)
    srd(a,sD,"s72","s73",E*4)
    srd(a,sS,"s70","s71",E*4)
    a.c("every wave: six edges per lane, local edge = 384v + 128k + 2l + u; wave 7 also takes edges 3072 + l")
    DS_=D1[0:7]; SR_=D1[8:15]
    for k in range(3): a(f"buffer_load_dwordx2 {D1[2*k:2*k+2]}, {vT0}, {sD}, 0 offen offset:{512*k}{SNT}")
    for k in range(3): a(f"buffer_load_dwordx2 {D1[8+2*k:10+2*k]}, {vT0}, {sS}, 0 offen offset:{512*k}{SNT}")
    srd(a,sT4,"s64","s65",N*128)
    srd(a,sHw,"s64","s65",N*128)
    srd(a,sT4b,"s74","s75",145*128)
    a(f"s_cmp_eq_u32 {sWave}, 7")
    a("s_cbranch_scc1 K_S_W7")
    a(f"s_cmp_eq_u32 {sWave}, 4")
    a("s_cbranch_scc1 K_S_W4")
    a(f"s_cmp_lt_u32 {sWave}, 5")
    a("s_cbranch_scc1 K_S_COMMON")
    a.c("waves 5,6: private raw W2 copy + h rows for the source-node table")
    a(f"s_sub_u32 {sI}, {sWave}, 5")
    a(f"s_lshl_b32 {sC}, {sI}, 13")
    a(f"s_add_u32 {sC}, {sC}, {L_A2}")
    for i in range(8):
        a(f"s_add_u32 {sTmp}, {sC}, {i*1024}")
        a(f"s_mov_b32 m0, {sTmp}")
        a(f"s_mov_b32 {sTmp2}, {8192+i*1024}")
        a(f"buffer_load_dwordx4 {vL16}, {sT4b}, {sTmp2} offen lds")
    a(f"s_mul_i32 {sTmp}, s2, {NPW}")
    a(f"s_lshl_b32 {sTmp2}, {sI}, 5")
    a(f"s_add_u32 {sTmp}, {sTmp}, {sTmp2}")
    a(f"v_and_b32 {vT0}, 31, {vL}")
    a(f"v_add_u32 {vT0}, {sTmp}, {vT0}")
    a(f"v_lshl_add_u32 {vT0}, {vT0}, 7, {vHOFF}")
    for s_ in range(4): a(f"buffer_load_dwordx4 {HA[4*s_:4*s_+4]}, {vT0}, {sT4}, 0 offen offset:{32*s_}")
    a("s_branch K_S_COMMON")
    a.label("K_S_W4")
    a.c("wave 4: this workgroup's share of the L2 warm-up of pos and w_h (speed only)")
    a("s_load_dwordx2 s[82:83], s[0:1], 56")
    srd(a,sP,"s66","s67",N*6)
    a(f"s_lshr_b32 {sTmp}, s2, 3")
    a(f"s_and_b32 {sTmp}, {sTmp}, 31")
    a(f"s_mul_i32 {sTmp2}, {sTmp}, {19*128}")
    a(f"v_lshlrev_b32 {vT0}, 7, {vL}")
    a(f"v_add_u32 {vT1}, {sTmp2}, {vT0}")
    a(f"v_cmp_gt_u32 vcc, 19, {vL}")
    a(f"v_mov_b32 {vT2}, 0x40000000")
    a("s_waitcnt lgkmcnt(0)")
    a(f"v_cndmask_b32 {vT1}, {vT2}, {vT1}, vcc")
    a(f"buffer_load_dword {vDUM}, {vT1}, {sP}, 0 offen")
    srd(a,sT4b,"s82","s83",128*128)
    a(f"s_lshl_b32 {sTmp2}, {sTmp}, 9")
    a(f"v_add_u32 {vT1}, {sTmp2}, {vT0}")
    a(f"v_cmp_gt_u32 vcc, 4, {vL}")
    a("s_nop 1")
    a(f"v_cndmask_b32 {vT1}, {vT2}, {vT1}, vcc")
    a(f"buffer_load_dword {vDUM}, {vT1}, {sT4b}, 0 offen")
    a("s_branch K_S_COMMON")
    a.label("K_S_W7")
    a.c("wave 7: the last 64 edges, one-hot table, counters")
    a(f"s_mul_i32 {sTmp}, s2, {CH*4}")
    a(f"s_add_u32 {sTmp}, {sTmp}, {3072*4}")
    a(f"v_lshl_add_u32 {vT0}, {vL}, 2, {sTmp}")
    a(f"buffer_load_dword {D1[6]}, {vT0}, {sD}, 0 offen{SNT}")
    a(f"buffer_load_dword {D1[14]}, {vT0}, {sS}, 0 offen{SNT}")
    a(f"v_lshrrev_b32 {vT0}, 2, {vL}")
    a(f"v_and_b32 {vT1}, 3, {vL}")
    a(f"v_lshlrev_b32 {vT3}, 1, {vT1}")
    a(f"v_mov_b32 {vJ}, 0")
    a(f"v_cmp_eq_u32 vcc, {vT0}, {vT3}")
    a(f"v_mov_b32 {AD[0]}, 0x3f80")
    a(f"v_mov_b32 {AD[1]}, 0x3f800000")
    a(f"v_cndmask_b32 {vJ}, {vJ}, {AD[0]}, vcc")
    a(f"v_add_u32 {vT3}, 1, {vT3}")
    a(f"v_cmp_eq_u32 vcc, {vT0}, {vT3}")
    a("s_nop 1")
    a(f"v_cndmask_b32 {vJ}, {vJ}, {AD[1]}, vcc")
    a(f"v_cmp_eq_u32 vcc, 6, {vT0}")
    a(f"v_mov_b32 {AD[2]}, 0")
    a("s_nop 0")
    a(f"v_cndmask_b32 {AD[2]}, {AD[2]}, {AD[1]}, vcc")
    a(f"v_cmp_eq_u32 vcc, 3, {vT1}")
    a("s_nop 1")
    a(f"v_cndmask_b32 {vJ}, {vJ}, {AD[2]}, vcc")
    a(f"v_cmp_lt_u32 vcc, 31, {vL}")
    a(f"v_lshlrev_b32 {vT0}, 2, {vL}")
    a("s_nop 0")
    a(f"v_cndmask_b32 {vJ}, {vJ}, {vZ[0]}, vcc")
    a(f"ds_write_b32 {vT0}, {vJ}")
    a.label("K_S_COMMON")
    a(f"s_mov_b32 {sMaskE}, {'0' if opt.get('noE',0) else '0xffffffe0'}")
    a(f"s_mov_b32 {s128}, {0 if opt.get('noH',0) else 128}")
    a(f"s_mov_b32 {sK}, {KW}")
    a(f"s_mov_b32 {s3125}, 3125")
    a(f"s_mov_b32 {sMark}, {MARK}")
    a(f"s_mov_b32 {sCAPq}, {CAPX//4}")
    a(f"s_mov_b32 {sMode}, 0")
    a(f"s_mov_b32 {sChunk}, 0")
    a(f"v_mov_b32 {vOne}, 1")
    a(f"v_mov_b32 {v511}, 511")
    a(f"v_mov_b32 {aL1s}, 0x40000000")
    a(f"v_lshrrev_b32 {vT2}, 5, {vL}")
    a(f"v_bfe_u32 {vT0}, {vL}, 2, 2")
    a(f"v_lshl_add_u32 {vT0}, {vT2}, 3, {vT0}")
    a(f"v_lshlrev_b32 {vTRW}, 7, {vT0}")
    a(f"v_bfe_u32 {vT0}, {vL}, 4, 1")
    a(f"v_lshl_add_u32 {vTRW}, {vT0}, 5, {vTRW}")
    a(f"v_and_b32 {vT0}, 3, {vL}")
    a(f"v_lshl_add_u32 {vTRW}, {vT0}, 3, {vTRW}")
    a.c("LDS init: cell image = sentinel, counters = 0")
    for i in range(4): a(f"v_mov_b32 {WH[i]}, -1")
    a(f"v_lshlrev_b32 {vT0}, 6, v0")
    a(f"v_add_u32 {vT0}, {L_HST}, {vT0}")
    for i in range(4): a(f"ds_write_b128 {vT0}, {WH[0:4]} offset:{16*i}")
    a(f"v_and_b32 {vT0}, 0xff, v0")
    a(f"v_lshlrev_b32 {vT0}, 2, {vT0}")
    a(f"ds_write_b32 {vT0}, {vZ[0]} offset:{L_RES}")
    srd(a,sW,"s80","s81",WSB(opt))
    srd(a,sP,"s66","s67",N*6)
    srd(a,sE,"s68","s69",E*32)
    srd(a,sO,"s76","s77",OUT_BYTES)
    srd(a,sT4c,"s78","s79",256)
    a(f"s_add_u32 {sB[0]}, s80, {BPT}")
    a(f"s_addc_u32 {sB[1]}, s81, 0")
    a(f"s_and_b32 {sB[1]}, {sB[1]}, 0xffff")
    a(f"s_mov_b32 {sB[2]}, {N*128}")
    a(f"s_mov_b32 {sB[3]}, 0x20000")
    if opt.get('tlb',0):
        a.c("wave 2 touches one line per 2 MiB of the buffers used later (address translation warm-up, speed only)")
        a(f"s_cmp_lg_u32 {sWave}, 2")
        a("s_cbranch_scc1 K_NOTLB")
        a(f"v_lshlrev_b32 {vT0}, 21, {vL}")
        a(f"v_mov_b32 {vT1}, 0x40000000")
        a(f"v_cmp_gt_u32 vcc, 13, {vL}")
        a("s_nop 1")
        a(f"v_cndmask_b32 {vT0}, {vT1}, {vT0}, vcc")
        a(f"buffer_load_dword {vDUM}, {vT0}, {sE}, 0 offen")
        a(f"buffer_load_dword {vDUM}, {vT0}, {sW}, 0 offen")
        a(f"buffer_load_dword {vDUM}, {vT0}, {sO}, 0 offen")
        a.label("K_NOTLB")
    a.c("workgroup 0 publishes this launch's hand-off tag")
    a(f"s_or_b32 {sTmp}, s2, {sWave}")
    a(f"s_cmp_lg_u32 {sTmp}, 0")
    a("s_cbranch_scc1 K_S_NOTAG")
    a("s_memrealtime s[100:101]")
    a("s_waitcnt lgkmcnt(0)")
    a("s_or_b32 s100, s100, 1")
    a(f"v_mov_b32 {vT0}, s100")
    a(f"buffer_store_dword {vT0}, {vZ[0]}, {sT4c}, 0 offen sc1")
    a(f"buffer_store_dword {vT0}, {vZ[0]}, {sT4c}, 0 offen offset:128 sc1")
    a.label("K_S_NOTAG")
    a("s_waitcnt lgkmcnt(0)")
    a("s_barrier")
    a(f"s_mul_i32 {sTmp}, s2, {CH}")
    a(f"s_sub_u32 {sLim}, {E}, {sTmp}")
    a(f"s_min_u32 {sLim}, {sLim}, {CH}")
    B4=D2[0:7]; RC=M[0:7]; RK1=D2[8:15]
    def bin_edges(nrec, el_of, waitcnt, masked):
        if masked:
            for u in range(nrec):
                el_of(u,vT1)
                a(f"v_cmp_gt_u32 {sMask[u]}, {sLim}, {vT1}")
        if waitcnt is not None: a(f"s_waitcnt vmcnt({waitcnt})")
        stamp(a,opt,1)
        for u in range(nrec):
            d=DS_[u]; s_=SR_[u]
            a(f"v_mul_hi_u32 {vT2}, {d}, {sK}")
            el_of(u,vT1)
            a(f"v_lshl_or_b32 {RC[u]}, {s_}, 12, {vT1}")
            a(f"v_lshrrev_b32 {B4[u]}, 1, {vT2}")
            a(f"v_mad_u32_u24 {vT3}, {vT2}, {s3125}, {v511}")
            a(f"v_and_b32 {B4[u]}, 0x3fc, {B4[u]}")
            a(f"v_lshrrev_b32 {vT3}, 9, {vT3}")
            if masked: a(f"s_mov_b64 exec, {sMask[u]}")
            a(f"ds_add_rtn_u32 {RK1[u]}, {B4[u]}, {vOne} offset:{L_RES}")
            if masked: a("s_mov_b64 exec, -1")
            a(f"v_sub_u32 {vT3}, {d}, {vT3}")
            a(f"v_and_b32 {vT2}, 7, {vT2}")
            a(f"v_lshl_or_b32 {vT3}, {vT2}, 3, {vT3}")
            a(f"v_lshl_or_b32 {RC[u]}, {vT3}, 26, {RC[u]}")
        a(f"v_mov_b32 {vT3}, {L_HST}")
        a(f"v_mov_b32 {vJ}, {L_NRES+4}")
        for u in range(nrec):
            if not masked: a(f"s_waitcnt lgkmcnt({nrec-1})")
            elif u==0: a("s_waitcnt lgkmcnt(0)")
            a(f"v_cmp_gt_u32 vcc, 32, {RK1[u]}")
            a(f"v_lshlrev_b32 {vT1}, 3, {RK1[u]}")
            a(f"v_lshrrev_b32 {vT2}, 2, {RK1[u]}")
            a(f"v_and_b32 {vT1}, 0x78, {vT1}")
            a(f"v_lshl_add_u32 {AD[0]}, {B4[u]}, 5, {vT3}")
            a(f"v_and_or_b32 {vT1}, {vT2}, 4, {vT1}")
            a(f"v_add_u32 {vT1}, {vT1}, {AD[0]}")
            a(f"v_cndmask_b32 {vT1}, {vJ}, {vT1}, vcc")
            if masked: a(f"s_mov_b64 exec, {sMask[u]}")
            a(f"ds_write_b32 {vT1}, {RC[u]}")
            if masked: a("s_mov_b64 exec, -1")
    a.c("wait for this wave's edges (younger loads: 12 for waves 5,6; 2 for wave 4; the tag store of workgroup 0)")
    a(f"s_mul_i32 {sTmp}, {sWave}, 384")
    a(f"v_lshl_add_u32 {vT0}, {vL}, 1, {sTmp}")
    a(f"s_cmp_eq_u32 {sWave}, 4")
    a("s_cbranch_scc1 K_S_WT4")
    a(f"s_sub_u32 {sTmp}, {sWave}, 5")
    a(f"s_cmp_lt_u32 {sTmp}, 2")
    a("s_cbranch_scc1 K_S_WT56")
    if opt.get('tlb',0):
        a(f"s_cmp_eq_u32 {sWave}, 2")
        a("s_cbranch_scc1 K_S_WT2")
    a("s_waitcnt vmcnt(0)")
    a("s_branch K_S_WTD")
    if opt.get('tlb',0):
        a.label("K_S_WT2")
        a("s_waitcnt vmcnt(3)")
        a("s_branch K_S_WTD")
    a.label("K_S_WT4")
    a("s_waitcnt vmcnt(2)")
    a("s_branch K_S_WTD")
    a.label("K_S_WT56")
    a("s_waitcnt vmcnt(12)")
    a.label("K_S_WTD")
    a.c("wave 0 fetches the hand-off tag (one of its two copies); it is needed when the cell stores have left")
    a(f"s_and_b32 {sTagOff}, s2, 1")
    a(f"s_lshl_b32 {sTagOff}, {sTagOff}, 7")
    a(f"s_cmp_lg_u32 {sWave}, 0")
    a("s_cbranch_scc1 K_S_NOTAG1")
    a(f"buffer_load_dword {aE}, {vZ[0]}, {sT4c}, {sTagOff} offen sc1")
    a.label("K_S_NOTAG1")
    def el6(u,r): a(f"v_add_u32 {r}, {128*(u>>1)+(u&1)}, {vT0}")
    def el7(u,r):
        if u<6: el6(u,r)
        else: a(f"v_add_u32 {r}, 3072, {vL}")
    a(f"s_cmp_lt_u32 {sLim}, {CH}")
    a("s_cbranch_scc1 K_S_APPM")
    a(f"s_cmp_eq_u32 {sWave}, 7")
    a("s_cbranch_scc1 K_S_APP7")
    bin_edges(6, el6, None, False)
    a("s_branch K_S_APPD")
    a.label("K_S_APP7")
    bin_edges(7, el7, None, False)
    a("s_branch K_S_APPD")
    a.label("K_S_APPM")
    a(f"s_cmp_eq_u32 {sWave}, 7")
    a("s_cbranch_scc1 K_S_APPM7")
    bin_edges(6, el6, None, True)
    a("s_branch K_S_APPD")
    a.label("K_S_APPM7")
    bin_edges(7, el7, None, True)
    a.label("K_S_APPD")
    load_hwin()
    a(f"s_cmp_lg_u32 {sWave}, 7")
    a("s_cbranch_scc1 K_S_NORAW")
    a.c("wave 7: raw w_e -> LDS (needed after barrier C)")
    for i in range(19):
        a(f"s_mov_b32 {sTmp}, {L_RAWW+i*1024}")
        a(f"s_mov_b32 m0, {sTmp}")
        a(f"s_mov_b32 {sTmp2}, {i*1024}")
        a(f"buffer_load_dwordx4 {vL16}, {sT4b}, {sTmp2} offen lds")
    a.label("K_S_NORAW")
    a("s_waitcnt lgkmcnt(0)")
    stamp(a,opt,14) if not opt.get('dbgfill',0) else None
    a("s_barrier")
    stamp(a,opt,2)
    def setup_static():
        a(f"v_and_b32 {vT1}, 31, {vL}")
        a(f"v_lshrrev_b32 {vT2}, 5, {vL}")
        a(f"v_lshlrev_b32 {vT0}, 3, {vT2}")
        a(f"v_sub_u32 {vT0}, {vT1}, {vT0}")
        a(f"v_mov_b32 {AD[2]}, 0x3f80")
        a(f"v_mov_b32 {AD[3]}, 0x3f800000")
        for sp in range(2):
            for r in range(4):
                k0=16*sp+2*r
                a(f"v_cmp_eq_u32 vcc, {k0}, {vT0}")
                a(f"v_cmp_eq_u32 {sSave}, {k0+1}, {vT0}")
                a("s_nop 0")
                a(f"v_cndmask_b32 {ID[4*sp+r]}, {vZ[0]}, {AD[2]}, vcc")
                a(f"v_cndmask_b32 {ID[4*sp+r]}, {ID[4*sp+r]}, {AD[3]}, {sSave}")
        a(f"v_cmp_lt_u32 vcc, 31, {vL}")
        a("s_nop 1")
        for i in range(1,4): a(f"v_mov_b32 {ONE[i]}, 0")
        a(f"v_cndmask_b32 {ONE[0]}, {AD[2]}, {vZ[0]}, vcc")
        for i in range(3):
            a(f"v_mov_b32 {PS[i]}, 0"); a(f"v_mov_b32 {PD[i]}, 0")
        a.c("static per-lane addresses of the main loop (window offsets are added after the assignment)")
        a(f"v_and_b32 {vT1}, 31, {vL}")
        a(f"v_lshrrev_b32 {vT2}, 5, {vL}")
        a(f"v_mov_b32 {vT3}, {L_A2}")
        a(f"v_lshl_add_u32 {vE64}, {vT1}, 6, {vT3}")
        a(f"v_bfe_u32 {vT0}, {vL}, 2, 2")
        a(f"v_lshl_add_u32 {vT0}, {vT2}, 2, {vT0}")
        a(f"v_lshl_add_u32 {vTR}, {vT0}, 6, {vT3}")
        a(f"v_bfe_u32 {vT0}, {vL}, 4, 1")
        a(f"v_lshl_add_u32 {vTR}, {vT0}, 5, {vTR}")
        a(f"v_and_b32 {vT0}, 3, {vL}")
        a(f"v_lshl_add_u32 {vTR}, {vT0}, 3, {vTR}")
        a(f"s_lshl_b32 {sHST}, {sWave}, 12")
        a(f"s_add_u32 {sHST}, {sHST}, {L_HST}")
        for i in range(4): a(f"s_add_u32 {sM0[i]}, {sHST}, {1024*i}")
        a(f"v_and_b32 {vT0}, 3, {vT1}")
        a(f"v_bfe_u32 {vT3}, {vT1}, 4, 1")
        a(f"v_lshl_or_b32 {vT3}, {vT3}, 2, {vT0}")
        a(f"v_lshlrev_b32 {vT0}, 3, {vT0}")
        a(f"v_lshrrev_b32 {vJ}, 2, {vT1}")
        a(f"v_add_u32 {vT0}, {vT0}, {vJ}")
        a(f"v_lshl_add_u32 {vT0}, {vT0}, 7, {sHST}")
        for s_ in range(4):
            a(f"v_add_u32 {vJ}, {2*s_}, {vT2}")
            a(f"v_xor_b32 {vJ}, {vJ}, {vT3}")
            a(f"v_lshl_add_u32 {vHA[s_]}, {vJ}, 4, {vT0}")
        a(f"v_and_b32 {vT0}, 7, {vL}")
        a(f"v_lshlrev_b32 {vT3}, 2, {vT2}")
        a(f"v_xor_b32 {vT0}, {vT0}, {vT3}")
        for i in range(4):
            a(f"v_xor_b32 {vJ}, {i}, {vT0}")
            a(f"v_lshlrev_b32 {vKD[i]}, 4, {vJ}")
        a(f"s_mov_b32 {sCAP}, {CAP}")
        a(f"s_sub_u32 {sTgt}, 11, {sWave}")
        a(f"s_cmp_lt_u32 {sWave}, 4")
        a(f"s_cselect_b32 {sTgt}, {sWave}, {sTgt}")
        a(f"v_lshrrev_b32 {aPS}, 3, {vL}")
        a(f"v_and_b32 {aPD}, 7, {vL}")
        a(f"v_lshlrev_b32 {aOH}, 2, {aPS}")
        a(f"v_lshlrev_b32 {SS}, 2, {aPD}")
    a(f"s_cmp_gt_u32 {sWave}, 3")
    a("s_cbranch_scc1 K_S_NOCOPY")
    a.c("waves 0..3 copy the cell image out: eight 16 B pieces per thread")
    a(f"v_lshlrev_b32 {vT0}, 4, v0")
    a(f"v_add_u32 {vT0}, {L_HST}, {vT0}")
    a(f"v_lshrrev_b32 {vT1}, 3, v0")
    a(f"v_lshlrev_b32 {vT2}, 2, {vT1}")
    CP=[D1[4*k:4*k+4] for k in range(8)]
    for k in range(4):
        a(f"ds_read_b128 {CP[k]}, {vT0} offset:{4096*k}")
        a(f"ds_read_b32 {D2[k]}, {vT2} offset:{L_RES+128*k}")
    a(f"v_and_b32 {vT3}, 7, v0")
    a(f"v_cmp_eq_u32 vcc, 0, {vT3}")
    a(f"v_mov_b32 {vJ}, -1")
    CT=opt.get('ctrans',0)
    a(f"v_lshlrev_b32 {vT1}, {7 if CT else 15}, {vT1}")
    a(f"v_cndmask_b32_e64 {AD[1]}, -1, -2, vcc")
    a(f"v_lshl_add_u32 {vT1}, {vT3}, 4, {vT1}")
    a(f"s_lshl_b32 {sTmp}, s2, {15 if CT else 7}")
    for k in range(8):
        if k<4:
            a(f"ds_read_b128 {CP[k+4]}, {vT0} offset:{4096*(k+4)}")
            a(f"ds_read_b32 {D2[k+4]}, {vT2} offset:{L_RES+128*(k+4)}")
            a("s_waitcnt lgkmcnt(8)")
        else:
            a(f"s_waitcnt lgkmcnt({2*(7-k)})")
        a(f"v_cmp_lt_u32 vcc, 32, {D2[k]}")
        a(f"s_add_u32 {sTmp2}, {sTmp}, {k*32*(128 if CT else 32768)}")
        a("s_nop 0")
        a(f"v_cndmask_b32 {CP[k][0]}, {CP[k][0]}, {AD[1]}, vcc")
        for i in range(1,4): a(f"v_cndmask_b32 {CP[k][i]}, {CP[k][i]}, {vJ}, vcc")
        a(f"buffer_store_dwordx4 {CP[k]}, {vT1}, {sW}, {sTmp2} offen{ST}")
    a("s_branch K_S_STATIC")
    a.label("K_S_NOCOPY")
    a(f"s_sub_u32 {sTmp}, {sWave}, 5")
    a(f"s_cmp_lt_u32 {sTmp}, 2")
    a("s_cbranch_scc0 K_S_POS")
    a.c("waves 5,6: source-node table B' = -log2e * h @ W2 for 32 nodes")
    a(f"v_add_u32 {vT0}, {sC}, {vTRW}")
    a("s_waitcnt vmcnt(4)")
    for s_ in range(4):
        for x in range(2):
            for th in range(2):
                r=(s_*2+x)*4+2*th
                a(f"ds_read_b64_tr_b16 {D1[r:r+2]}, {vT0} offset:{s_*2048+th*512+x*64}")
    a("s_waitcnt lgkmcnt(0)")
    for x in range(2):
        for s_ in range(4):
            r=(s_*2+x)*4
            mfma(a,D2[16*x:16*x+16],D1[r:r+4],HA[4*s_:4*s_+4],"0" if s_==0 else D2[16*x:16*x+16])
    a(f"s_mul_i32 {sTmp}, {sI}, {32*144}")
    a(f"s_add_u32 {sTmp}, {sTmp}, {L_BST}")
    a(f"v_and_b32 {vT1}, 31, {vL}")
    a(f"v_mul_u32_u24 {vT1}, 144, {vT1}")
    a(f"v_lshrrev_b32 {vT2}, 5, {vL}")
    a(f"v_lshl_add_u32 {vT1}, {vT2}, 3, {vT1}")
    a(f"v_add_u32 {vT1}, {sTmp}, {vT1}")
    a(f"v_lshrrev_b32 {vT2}, 3, {vL}")
    a(f"v_mul_u32_u24 {vT3}, 144, {vT2}")
    a(f"v_and_b32 {vJ}, 7, {vL}")
    a(f"v_lshl_add_u32 {vT3}, {vJ}, 4, {vT3}")
    a(f"v_add_u32 {vT3}, {sTmp}, {vT3}")
    a(f"s_mov_b32 {sTmp2}, {NEG_LOG2E}")
    a.nop(4)
    for x in range(2):
        for q in range(16): a(f"v_mul_f32 {D2[16*x+q]}, {sTmp2}, {D2[16*x+q]}")
        for qq in range(4):
            b=16*x+4*qq
            a(f"v_cvt_pk_bf16_f32 {E01[0]}, {D2[b]}, {D2[b+1]}")
            a(f"v_cvt_pk_bf16_f32 {E01[1]}, {D2[b+2]}, {D2[b+3]}")
            a(f"ds_write_b64 {vT1}, {E01} offset:{x*64+qq*16}")
            a("s_nop 0")
    for i in range(4): a(f"ds_read_b128 {D1[4*i:4*i+4]}, {vT3} offset:{i*8*144}")
    a(f"s_lshl_b32 {sTmp2}, {sI}, 5")
    a(f"v_add_u32 {vT2}, {sTmp2}, {vT2}")
    a(f"s_mul_i32 {sTmp}, s2, {NPW}")
    a(f"v_add_u32 {vT0}, {sTmp}, {vT2}")
    a(f"v_lshlrev_b32 {vT1}, 7, {vT0}")
    a(f"v_lshl_add_u32 {vT1}, {vJ}, 4, {vT1}")
    a(f"v_mov_b32 {vJ}, 0x40000000")
    a("s_waitcnt lgkmcnt(0)")
    for i in range(4):
        a(f"v_add_u32 {vT3}, {8*i}, {vT2}")
        a(f"v_cmp_gt_u32 vcc, {NPW}, {vT3}")
        a(f"v_add_u32 {AD[0]}, {1024*i}, {vT1}")
        a("s_nop 0")
        a(f"v_cndmask_b32 {AD[0]}, {vJ}, {AD[0]}, vcc")
        a(f"buffer_store_dwordx4 {D1[4*i:4*i+4]}, {AD[0]}, {sB}, 0 offen{ST}")
    a("s_waitcnt vmcnt(4)")
    a("s_branch K_S_STATIC")
    a.label("K_S_POS")
    a.label("K_S_STATIC")
    setup_static()
    a.c("waves 0..3: every cell store has left; waves 4, 7: raw w_e / window rows landed; waves 5, 6 signal their rows later")
    a(f"s_sub_u32 {sTmp}, {sWave}, 5")
    a(f"s_cmp_lt_u32 {sTmp}, 2")
    a("s_cbranch_scc1 K_S_PREC")
    a("s_waitcnt vmcnt(0)")
    def have_tag(lbl):
        a(f"s_mov_b32 {sPoll}, 0")
        a.label(lbl)
        a(f"v_readfirstlane_b32 {sNonce}, {aE}")
        a("s_memrealtime s[100:101]")
        a("s_waitcnt lgkmcnt(0)")
        a(f"s_sub_u32 {sTmp}, s100, {sNonce}")
        a(f"s_add_u32 {sTmp}, {sTmp}, 1")
        a(f"s_cmp_lt_u32 {sTmp}, 2500")
        a(f"s_cselect_b32 {sTmp}, {sNonce}, 0")
        a(f"s_cmp_lg_u32 {sTmp}, 0")
        a(f"s_cbranch_scc1 {lbl}_OK")
        a(f"s_add_u32 {sPoll}, {sPoll}, 1")
        a(f"s_cmp_gt_u32 {sPoll}, 200000")
        a(f"s_cbranch_scc1 {lbl}_OK")
        a(f"s_cmp_gt_u32 {sPoll}, 1000")
        a(f"s_cselect_b32 {sTmp}, {sNonce}, 0")
        a(f"s_cmp_lg_u32 {sTmp}, 0")
        a(f"s_cbranch_scc1 {lbl}_OK")
        a("s_sleep 2")
        a(f"buffer_load_dword {aE}, {vZ[0]}, {sT4c}, {sTagOff} offen sc1")
        a("s_waitcnt vmcnt(0)")
        a(f"s_branch {lbl}")
        a.label(f"{lbl}_OK")
    a(f"s_cmp_lg_u32 {sWave}, 0")
    a("s_cbranch_scc1 K_S_PREC")
    have_tag("K_G_TAG")
    a(f"v_mov_b32 {vT0}, {sNonce}")
    a(f"ds_write_b32 {vZ[0]}, {vT0} offset:{L_NRES+8}")
    a.label("K_S_PREC")
    a("s_waitcnt lgkmcnt(0)")
    stamp(a,opt,15) if not opt.get('dbgfill',0) else None
    a("s_barrier")
    stamp(a,opt,3)
    a(f"s_cmp_lg_u32 {sWave}, 0")
    a("s_cbranch_scc1 K_G_NOT0")
    a.c("wave 0: signal this workgroup's cells")
    a(f"s_lshl_b32 {sTmp}, s2, 4")
    a(f"s_add_u32 {sTmp}, {sTmp}, {FLG}")
    a(f"v_mov_b32 {vT0}, {sNonce}")
    a(f"buffer_store_dword {vT0}, {vZ[0]}, {sW}, {sTmp} offen sc1")
    a("s_branch K_G_SETUP")
    a.label("K_G_NOT0")
    a(f"s_cmp_lt_u32 {sWave}, 4")
    a("s_cbranch_scc1 K_G_WH")
    a(f"s_sub_u32 {sTmp}, {sWave}, 5")
    a(f"s_cmp_lt_u32 {sTmp}, 2")
    a("s_cbranch_scc1 K_G_SETUP")
    a.c("waves 4, 7: pos table -> LDS (37 pieces each)")
    a(f"s_cmp_eq_u32 {sWave}, 7")
    a(f"s_cselect_b32 {sI}, {37*1024}, 0")
    for i in range(37):
        a(f"s_add_u32 {sTmp}, {sI}, {i*1024}")
        a(f"s_add_u32 {sTmp2}, {sTmp}, {L_POS}")
        a(f"s_mov_b32 m0, {sTmp2}")
        a("s_nop 0")
        a(f"buffer_load_dwordx4 {vL16}, {sP}, {sTmp} offen lds")
    a("s_branch K_G_SETUP")
    a.label("K_G_WH")
    a.c("waves 1..3: raw w_h -> staging area")
    a("s_load_dwordx2 s[64:65], s[0:1], 56")
    a(f"s_sub_u32 {sI}, {sWave}, 1")
    a("s_waitcnt lgkmcnt(0)")
    srd(a,sT4b,"s64","s65",128*128)
    for k in range(6):
        a(f"s_add_u32 {sTmp}, {sI}, {3*k}")
        a(f"s_min_u32 {sTmp}, {sTmp}, 15")
        a(f"s_lshl_b32 {sTmp}, {sTmp}, 10")
        a(f"s_add_u32 {sTmp2}, {sTmp}, {L_HST}")
        a(f"s_mov_b32 m0, {sTmp2}")
        a("s_nop 0")
        a(f"buffer_load_dwordx4 {vL16}, {sT4b}, {sTmp} offen lds")
    a.label("K_G_SETUP")
    a.c("operands from raw w_e: W1 (for A'), W4', wd'")
    W1=D2
    a(f"v_add_u32 {vT0}, {L_RAWW}, {vTRW}")
    for s_ in range(4):
        for x in range(2):
            for th in range(2):
                r=(s_*2+x)*4+2*th
                a(f"ds_read_b64_tr_b16 {W1[r:r+2]}, {vT0} offset:{s_*2048+th*512+x*64}")
    W4R=HA[0:8]
    for x in range(2):
        for th in range(2):
            a(f"ds_read_b64_tr_b16 {W4R[4*x+2*th:4*x+2*th+2]}, {vT0} offset:{129*128+th*512+x*64}")
    WD=M[0:2]
    a(f"v_mov_b32 {WD[0]}, 0")
    a(f"v_mov_b32 {WD[1]}, 0")
    a(f"v_and_b32 {vT1}, 31, {vL}")
    a(f"v_lshlrev_b32 {vT2}, 1, {vT1}")
    a(f"v_add_u32 {vT2}, {L_RAWW+128*128}, {vT2}")
    a(f"ds_read_u16_d16_hi {WD[0]}, {vT2}")
    a(f"ds_read_u16_d16_hi {WD[1]}, {vT2} offset:64")
    a("s_waitcnt lgkmcnt(0)")
    for x in range(2):
        for s_ in range(4):
            mfma(a,D1[16*x:16*x+16],HW[4*s_:4*s_+4],W1[(s_*2+x)*4:(s_*2+x)*4+4],"0" if s_==0 else D1[16*x:16*x+16])
    a(f"s_mov_b32 {sTmp}, {NEG_LOG2E}")
    for i in range(8):
        a(f"v_lshlrev_b32 {vT0}, 16, {W4R[i]}")
        a(f"v_and_b32 {vT2}, 0xffff0000, {W4R[i]}")
        a(f"v_mul_f32 {vT0}, {sTmp}, {vT0}")
        a(f"v_mul_f32 {vT2}, {sTmp}, {vT2}")
        a(f"v_cvt_pk_bf16_f32 {WE[i]}, {vT0}, {vT2}")
    a(f"v_cmp_lt_u32 vcc, 31, {vL}")
    for x in range(2):
        a(f"v_mul_f32 {WD[x]}, {sTmp}, {WD[x]}")
        a(f"v_cvt_pk_bf16_f32 {vT0}, {WD[x]}, {WD[x]}")
        a(f"v_and_b32 {vT0}, 0xffff0000, {vT0}")
        a(f"v_sub_f32 {vT2}, {WD[x]}, {vT0}")
        a(f"v_cvt_pk_bf16_f32 {vT2}, {vT2}, {vT2}")
        a(f"v_and_b32 {vT2}, 0xffff0000, {vT2}")
        a(f"v_cndmask_b32 {WD[x]}, {vT0}, {vT2}, vcc")
    a(f"s_cmp_lg_u32 {sWave}, 0")
    a("s_cbranch_scc1 K_G_NOEARLY")
    a(f"s_mov_b32 {sTmp2}, {FLG}")
    for k in range(4): a(f"buffer_load_dword {AD[k]}, {vL16}, {sW}, {sTmp2} offen offset:{1024*k} sc1")
    a.label("K_G_NOEARLY")
    a(f"v_cmp_lt_u32 vcc, 31, {vL}")
    a(f"v_mov_b32 {vJ}, 0xffff")
    for x in range(2):
        for r in range(4):
            q0,q1=D1[16*x+2*r],D1[16*x+2*r+1]
            a(f"v_mul_f32 {q0}, {sTmp}, {q0}")
            a(f"v_mul_f32 {q1}, {sTmp}, {q1}")
            a(f"v_cvt_pk_bf16_f32 {vT0}, {q0}, {q1}")
            a(f"v_lshlrev_b32 {vT1}, 16, {vT0}")
            a(f"v_and_b32 {vT2}, 0xffff0000, {vT0}")
            a(f"v_sub_f32 {vT1}, {q0}, {vT1}")
            a(f"v_sub_f32 {vT2}, {q1}, {vT2}")
            a(f"v_cvt_pk_bf16_f32 {vT1}, {vT1}, {vT2}")
            a(f"v_cndmask_b32 {WA[4*x+r]}, {vT0}, {vT1}, vcc")
        a(f"v_bfi_b32 {WA[4*x+3]}, {vJ}, {WA[4*x+3]}, {WD[x]}")
    a(f"s_lshl_b32 {sTmp}, {sWave}, 11")
    a(f"s_add_u32 {sTmp}, {sTmp}, {L_A2}")
    a(f"v_lshl_add_u32 {vT0}, {vL}, 5, {sTmp}")
    a(f"ds_write_b128 {vT0}, {WA[0:4]}")
    a(f"ds_write_b128 {vT0}, {WA[4:8]} offset:16")
    for i in range(32): a(f"v_mov_b32 {D2[i]}, 0")
    a(f"s_sub_u32 {sTmp}, {sWave}, 5")
    a(f"s_cmp_lt_u32 {sTmp}, 2")
    a("s_cbranch_scc0 K_G_NOFLG2")
    a.c("waves 5,6: their rows have left -> signal them")
    a(f"ds_read_b32 {aE}, {vZ[0]} offset:{L_NRES+8}")
    a("s_waitcnt vmcnt(0) lgkmcnt(0)")
    a(f"v_readfirstlane_b32 {sNonce}, {aE}")
    a("s_nop 3")
    a(f"s_lshl_b32 {sTmp}, s2, 1")
    a(f"s_add_u32 {sTmp}, {sTmp}, {sWave}")
    a(f"s_sub_u32 {sTmp}, {sTmp}, 5")
    a(f"s_lshl_b32 {sTmp}, {sTmp}, 4")
    a(f"s_add_u32 {sTmp}, {sTmp}, {FLG2}")
    a(f"v_mov_b32 {vT0}, {sNonce}")
    a(f"buffer_store_dword {vT0}, {vZ[0]}, {sW}, {sTmp} offen sc1")
    a.label("K_G_NOFLG2")
    a(f"s_cmp_lg_u32 {sWave}, 0")
    a("s_cbranch_scc1 K_G_WAIT")
    a.c("wave 0: wait for all 256 hand-offs (the first round of flag loads is already in flight)")
    a(f"s_mov_b32 {sTmp2}, {FLG}")
    a("s_branch K_G_POLL1")
    a.label("K_G_POLL")
    for k in range(4): a(f"buffer_load_dword {AD[k]}, {vL16}, {sW}, {sTmp2} offen offset:{1024*k} sc1")
    a.label("K_G_POLL1")
    a("s_waitcnt vmcnt(0)")
    a(f"v_cmp_eq_u32 {sAny}, {sNonce}, {AD[0]}")
    a(f"v_cmp_eq_u32 {sSave}, {sNonce}, {AD[1]}")
    a(f"v_cmp_eq_u32 vcc, {sNonce}, {AD[2]}")
    a("s_nop 1")
    a(f"s_and_b64 {sAny}, {sAny}, {sSave}")
    a(f"v_cmp_eq_u32 {sSave}, {sNonce}, {AD[3]}")
    a(f"s_and_b64 {sAny}, {sAny}, vcc")
    a("s_nop 1")
    a(f"s_and_b64 {sAny}, {sAny}, {sSave}")
    a(f"s_cmp_eq_u64 {sAny}, -1")
    a("s_cbranch_scc1 K_G_WAIT")
    a(f"s_add_u32 {sPoll}, {sPoll}, 1")
    a(f"s_cmp_lt_u32 {sPoll}, 200000")
    a("s_cbranch_scc1 K_G_POLL")
    a.label("K_G_WAIT")
    a.c("waves 4 and 7 keep their pos pieces in flight: their cell loads return behind them")
    a(f"s_lshl_b32 {sTmp}, 1, {sWave}")
    a(f"s_and_b32 {sTmp}, {sTmp}, 0x90")
    a("s_cbranch_scc1 K_G_WAIT47")
    a("s_waitcnt vmcnt(0)")
    a.label("K_G_WAIT47")
    a("s_waitcnt lgkmcnt(0)")
    for _ in range(opt.get('delay',0)): a("s_sleep 32")
    a("s_barrier")
    stamp(a,opt,4)
    RECP=D1[0:16]; REC=[RECP[2*i] for i in range(8)]+[RECP[2*i+1] for i in range(8)]; WAD=D1[16:32]; RK=HA
    a.c("cell records of this bin: pair s holds slots m and 16+m (m = l&15) of cell 32s+4v+(l>>4)")
    if not CT:
        a(f"s_lshl_b32 {sTmp}, s2, 15")
        a(f"s_lshl_b32 {sTmp2}, {sWave}, 9")
        a(f"s_add_u32 {sTmp}, {sTmp}, {sTmp2}")
        a(f"v_lshl_add_u32 {vT0}, {vL}, 3, {sTmp}")
    else:
        a(f"s_lshl_b32 {sTmp}, s2, 7")
        a(f"s_lshl_b32 {sTmp2}, {sWave}, 17")
        a(f"s_add_u32 {sTmp}, {sTmp}, {sTmp2}")
        a(f"v_lshrrev_b32 {vT0}, 4, {vL}")
        a(f"v_lshlrev_b32 {vT0}, 15, {vT0}")
        a(f"v_and_b32 {vT1}, 15, {vL}")
        a(f"v_lshl_add_u32 {vT0}, {vT1}, 3, {vT0}")
        a(f"v_add_u32 {vT0}, {sTmp}, {vT0}")
    ROT=opt.get('rot',0)
    if ROT==1: a(f"s_getreg_b32 {sRot}, hwreg(HW_REG_XCC_ID, 0, 4)")
    elif ROT==2: a(f"s_and_b32 {sRot}, s2, 7")
    elif ROT==3:
        a(f"s_getreg_b32 {sRot}, hwreg(HW_REG_XCC_ID, 0, 4)")
        a(f"s_and_b32 {sRot}, {sRot}, 3")
        a(f"s_lshl_b32 {sRot}, {sRot}, 1")
    else: a(f"s_mov_b32 {sRot}, 0")
    def pair_index(dst,s_):
        a(f"s_add_u32 {dst}, {sRot}, {s_}")
        a(f"s_and_b32 {dst}, {dst}, 7")
    for s_ in range(8):
        pair_index(sTmp,s_)
        a(f"s_lshl_b32 {sTmp}, {sTmp}, {20 if CT else 12}")
        a(f"buffer_load_dwordx2 {RECP[2*s_:2*s_+2]}, {vT0}, {sW}, {sTmp} offen{LD}")
    a(f"v_lshlrev_b32 {vT2}, 1, {vL}")
    a(f"v_and_b32 {vT2}, 62, {vT2}")
    a("s_load_dwordx2 s[98:99], s[0:1], 48")
    a.c("node-update weights (transposed reads of raw w_h), waves 0..3 use them")
    a(f"s_and_b32 {sTmp}, {sWave}, 1")
    a(f"s_lshl_b32 {sTmp}, {sTmp}, 6")
    a(f"s_add_u32 {sTmp}, {sTmp}, {L_HST}")
    a(f"v_add_u32 {vT1}, {sTmp}, {vTRW}")
    for s_ in range(8):
        for th in range(2):
            a(f"ds_read_b64_tr_b16 {WH[4*s_+2*th:4*s_+2*th+2]}, {vT1} offset:{s_*2048+th*512}")
            if (2*s_+th)==7: a("s_waitcnt lgkmcnt(0)")
    srd(a,sT4,"s98","s99",128)
    a(f"v_mov_b32 {WX[0]}, 0")
    a(f"v_mov_b32 {WX[1]}, 0")
    a(f"buffer_load_short_d16_hi {WX[0]}, {vT2}, {sT4}, 0 offen")
    a(f"buffer_load_short_d16_hi {WX[1]}, {vT2}, {sT4}, 0 offen offset:64")
    a("s_waitcnt vmcnt(2)")
    stamp(a,opt,5)
    a(f"s_mov_b64 {sAny}, 0")
    for s_ in range(16):
        a(f"v_cmp_gt_u32 {sMask[s_]}, {sMark}, {REC[s_]}")
        if s_<8:
            a(f"v_cmp_eq_u32 vcc, {sMark}, {REC[s_]}")
        a(f"v_lshrrev_b32 {WAD[s_]}, 27, {REC[s_]}")
        a(f"v_and_b32 {WAD[s_]}, 0x1c, {WAD[s_]}")
        if s_<8: a(f"s_or_b64 {sAny}, {sAny}, vcc")
    order=[x for p in range(8) for x in (p,8+p)]
    for n_,s_ in enumerate(order):
        a(f"s_mov_b64 exec, {sMask[s_]}")
        if s_>=8: a(f"s_cbranch_execz K2_A{s_}")
        a(f"ds_add_rtn_u32 {RK[s_]}, {WAD[s_]}, {vOne} offset:{L_CNT}")
        if s_>=8: a.label(f"K2_A{s_}")
        if n_==7:
            a("s_waitcnt lgkmcnt(4)")
    a("s_mov_b64 exec, -1")
    FL=A2R
    def flg2_loads():
        a(f"s_mov_b32 {sTmp2}, {FLG2}")
        for k in range(4): a(f"buffer_load_dword {FL[k]}, {vL16}, {sW}, {sTmp2} offen offset:{1024*k} sc1")
        a(f"s_mov_b32 {sTmp2}, {FLG2+4096}")
        for k in range(4): a(f"buffer_load_dword {FL[4+k]}, {vL16}, {sW}, {sTmp2} offen offset:{1024*k} sc1")
    a(f"s_cmp_lg_u32 {sWave}, 1")
    a("s_cbranch_scc1 K2_NOF2A")
    a.c("wave 1: flags of the source-node table (checked before barrier 2)")
    flg2_loads()
    a(f"ds_read_b32 {aE}, {vZ[0]} offset:{L_NRES+8}")
    a.label("K2_NOF2A")
    a(f"s_lshl_b32 {sTmp}, {sWave}, 2")
    a(f"v_lshrrev_b32 {vT0}, 4, {vL}")
    a(f"v_add_u32 {vT0}, {sTmp}, {vT0}")
    a(f"v_mul_u32_u24 {vT0}, {CH}, {vT0}")
    a(f"v_mov_b32 {vT1}, {L_L0}")
    a(f"v_mov_b32 {vT2}, {L_L1}")
    a("s_waitcnt lgkmcnt(0)")
    for s_ in order:
        a(f"s_mov_b64 exec, {sMask[s_]}")
        if s_>=8: a(f"s_cbranch_execz K2_B{s_}")
        pair_index(sTmp,s_&7)
        a(f"s_mul_i32 {sTmp}, {sTmp}, {32*CH}")
        a(f"v_min_u32 {RK[s_]}, {CAPX-1}, {RK[s_]}")
        a(f"v_and_b32 {vT3}, 0xfff, {REC[s_]}")
        a(f"v_mad_u32_u24 {RK[s_]}, {WAD[s_]}, {sCAPq}, {RK[s_]}")
        a(f"v_add3_u32 {vT3}, {vT3}, {vT0}, {sTmp}")
        a(f"v_bfe_u32 {vJ}, {REC[s_]}, 26, 3")
        a(f"v_lshl_add_u32 {AD[0]}, {RK[s_]}, 2, {vT1}")
        a(f"v_lshl_or_b32 {vT3}, {vT3}, 5, {vJ}")
        a(f"v_lshl_add_u32 {AD[1]}, {RK[s_]}, 1, {vT2}")
        a(f"v_bfe_u32 {vJ}, {REC[s_]}, 12, 14")
        a(f"ds_write_b32 {AD[0]}, {vT3}")
        a(f"ds_write_b16 {AD[1]}, {vJ}")
        if s_>=8: a.label(f"K2_B{s_}")
    a("s_mov_b64 exec, -1")
    NE=opt.get('epf',0)
    if NE:
        a.c("L2 warm-up of the e_attr lines of the first records (speed only; results are never read)")
        a(f"s_lshl_b32 {sTmp}, {sWave}, 2")
        a(f"v_lshrrev_b32 {vT0}, 4, {vL}")
        a(f"v_add_u32 {vT0}, {sTmp}, {vT0}")
        a(f"v_mul_u32_u24 {vT0}, {CH}, {vT0}")
        a(f"v_mov_b32 {vT2}, 0x2000000")
        for k in range(NE):
            a(f"v_cmp_gt_u32 vcc, {sMark}, {REC[k]}")
            a(f"v_and_b32 {vT1}, 0xfff, {REC[k]}")
            pair_index(sTmp,k)
            a(f"s_mul_i32 {sTmp}, {sTmp}, {32*CH}")
            a(f"v_add3_u32 {vT1}, {vT1}, {vT0}, {sTmp}")
            a(f"v_cndmask_b32 {vT1}, {vT2}, {vT1}, vcc")
            a(f"v_lshlrev_b32 {vT1}, 5, {vT1}")
            a(f"buffer_load_dword {vDUM}, {vT1}, {sE}, 0 offen")
    a.c("overflowed cells -> rescan list (rare)")
    a(f"s_cmp_eq_u64 {sAny}, 0")
    a("s_cbranch_scc1 K2_NOMARK")
    a(f"v_lshrrev_b32 {vT0}, 4, {vL}")
    a(f"s_lshl_b32 {sTmp}, {sWave}, 2")
    a(f"v_add_u32 {vT0}, {sTmp}, {vT0}")
    a(f"v_mov_b32 {vT1}, {L_NRES}")
    for s_ in range(8):
        a(f"v_cmp_eq_u32 vcc, {sMark}, {REC[s_]}")
        a(f"s_and_saveexec_b64 {sSave}, vcc")
        a(f"s_cbranch_execz K2_MK{s_}")
        a(f"ds_add_rtn_u32 {vT2}, {vT1}, {vOne}")
        pair_index(sTmp,s_)
        a(f"s_lshl_b32 {sTmp}, {sTmp}, 5")
        a(f"v_add_u32 {vT3}, {sTmp}, {vT0}")
        a("s_waitcnt lgkmcnt(0)")
        a(f"v_lshlrev_b32 {vT2}, 2, {vT2}")
        a(f"ds_write_b32 {vT2}, {vT3} offset:{L_RES}")
        a.label(f"K2_MK{s_}")
        a(f"s_mov_b64 exec, {sSave}")
    a.label("K2_NOMARK")
    a("s_load_dwordx2 s[64:65], s[0:1], 0")
    a("s_waitcnt vmcnt(0) lgkmcnt(0)")
    a(f"s_cmp_lg_u32 {sWave}, 1")
    a("s_cbranch_scc1 K2_NOF2B")
    a(f"v_readfirstlane_b32 {sNonce}, {aE}")
    a(f"s_mov_b32 {sPoll}, 0")
    a("s_nop 1")
    a.label("K2_F2CHK")
    a(f"v_cmp_eq_u32 {sAny}, {sNonce}, {FL[0]}")
    for k in range(1,8):
        a(f"v_cmp_eq_u32 vcc, {sNonce}, {FL[k]}")
        a("s_nop 1")
        a(f"s_and_b64 {sAny}, {sAny}, vcc")
    a(f"s_cmp_eq_u64 {sAny}, -1")
    a("s_cbranch_scc1 K2_NOF2B")
    a(f"s_add_u32 {sPoll}, {sPoll}, 1")
    a(f"s_cmp_gt_u32 {sPoll}, 200000")
    a("s_cbranch_scc1 K2_NOF2B")
    flg2_loads()
    a("s_waitcnt vmcnt(0)")
    a("s_branch K2_F2CHK")
    a.label("K2_NOF2B")
    srd(a,sHs,"s64","s65",N*128)
    a(f"s_mov_b32 {sTmp}, {NEG_LN2}")
    a(f"v_mul_f32 {WX[0]}, {sTmp}, {WX[0]}")
    a(f"v_mul_f32 {WX[1]}, {sTmp}, {WX[1]}")
    stamp(a,opt,6)
    a("s_barrier")
    stamp(a,opt,7)
    a.c("window sizes (lane = pair i,k) and the rescan count")
    a(f"v_mov_b32 {vT0}, {L_NRES}")
    a(f"ds_read_b32 {vT1}, {vT0}")
    a(f"ds_read_b32 {vT2}, {aOH} offset:{L_CNT}")
    a(f"ds_read_b32 {vT3}, {SS} offset:{L_CNT}")
    a("s_waitcnt lgkmcnt(0)")
    a(f"v_readfirstlane_b32 {sNR}, {vT1}")
    a(f"v_min_u32 {vT0}, 0xffffff, {vT2}")
    a(f"v_min_u32 {vJ}, 0xffffff, {vT3}")
    a(f"s_cmp_eq_u32 {sNR}, 0")
    a("s_cbranch_scc1 K2_CHECK")
    a(f"s_min_u32 {sNR}, {sNR}, 256")
    a(f"s_mov_b32 {sI}, 0")
    a.label("K2_RESCAN_I")
    a(f"s_lshl_b32 {sTmp}, {sI}, 2")
    a(f"s_add_u32 {sTmp}, {sTmp}, {L_RES}")
    a(f"v_mov_b32 {vT0}, {sTmp}")
    a(f"ds_read_b32 {vT1}, {vT0}")
    a("s_waitcnt lgkmcnt(0)")
    a(f"v_readfirstlane_b32 {sWsrc}, {vT1}")
    a("s_nop 3")
    a(f"s_min_u32 {sWsrc}, {sWsrc}, 255")
    a(f"s_mov_b32 {sC}, 0")
    a.label("K2_RESCAN_C")
    def append_raw(lim_local):
        a(f"v_lshlrev_b32 {vT1}, 2, {vT0}")
        a(f"buffer_load_dword {AD[0]}, {vT1}, {sD}, 0 offen")
        a(f"buffer_load_dword {AD[1]}, {vT1}, {sS}, 0 offen")
        a("s_waitcnt vmcnt(0)")
        a(f"v_mul_hi_u32 {vT2}, {AD[0]}, {sK}")
        a(f"v_lshrrev_b32 {vT3}, 3, {vT2}")
        a(f"v_cmp_eq_u32 vcc, s2, {vT3}")
        a("s_nop 1")
        a(f"s_and_b64 vcc, vcc, {sAny}")
        a(f"s_and_saveexec_b64 {sSave}, vcc")
        a(f"s_cbranch_execz {lim_local}")
        a(f"v_mad_u32_u24 {vT3}, {vT2}, {s3125}, {v511}")
        a(f"v_and_b32 {vT2}, 7, {vT2}")
        a(f"v_lshrrev_b32 {vT3}, 9, {vT3}")
        a(f"v_lshlrev_b32 {vT2}, 2, {vT2}")
        a(f"v_sub_u32 {vT3}, {AD[0]}, {vT3}")
        a(f"ds_add_rtn_u32 {AD[2]}, {vT2}, {vOne} offset:{L_CNT}")
        a(f"v_lshl_or_b32 {vT0}, {vT0}, 5, {vT3}")
        a("s_waitcnt lgkmcnt(0)")
        a(f"v_min_u32 {AD[2]}, {CAPX-1}, {AD[2]}")
        a(f"v_mad_u32_u24 {AD[2]}, {vT2}, {sCAPq}, {AD[2]}")
        a(f"v_mov_b32 {vT2}, {L_L0}")
        a(f"v_mov_b32 {vT3}, {L_L1}")
        a(f"v_lshl_add_u32 {vT2}, {AD[2]}, 2, {vT2}")
        a(f"v_lshl_add_u32 {vT3}, {AD[2]}, 1, {vT3}")
        a(f"ds_write_b32 {vT2}, {vT0}")
        a(f"ds_write_b16 {vT3}, {AD[1]}")
        a.label(lim_local)
        a(f"s_mov_b64 exec, {sSave}")
    a(f"s_lshl_b32 {sTmp}, {sC}, 9")
    a(f"v_add_u32 {vT1}, {sTmp}, v0")
    a(f"s_mul_i32 {sTmp2}, {sWsrc}, {CH}")
    a(f"v_add_u32 {vT0}, {sTmp2}, {vT1}")
    a(f"v_cmp_gt_u32 vcc, {CH}, {vT1}")
    a(f"s_mov_b32 {sTmp}, {E}")
    a(f"v_cmp_gt_u32 {sAny}, {sTmp}, {vT0}")
    a("s_nop 1")
    a(f"s_and_b64 {sAny}, {sAny}, vcc")
    append_raw("K2_RA1")
    a(f"s_add_u32 {sC}, {sC}, 1")
    a(f"s_cmp_lt_u32 {sC}, 7")
    a("s_cbranch_scc1 K2_RESCAN_C")
    a(f"s_add_u32 {sI}, {sI}, 1")
    a(f"s_cmp_lt_u32 {sI}, {sNR}")
    a("s_cbranch_scc1 K2_RESCAN_I")
    a("s_waitcnt lgkmcnt(0)")
    a("s_barrier")
    a(f"ds_read_b32 {vT2}, {aOH} offset:{L_CNT}")
    a(f"ds_read_b32 {vT3}, {SS} offset:{L_CNT}")
    a("s_waitcnt lgkmcnt(0)")
    a(f"v_min_u32 {vT0}, 0xffffff, {vT2}")
    a(f"v_min_u32 {vJ}, 0xffffff, {vT3}")
    a.label("K2_CHECK")
    a.c("window assignment by size rank")
    a(f"v_lshl_or_b32 {vT0}, {vT0}, 3, {aPS}")
    a(f"v_lshl_or_b32 {vJ}, {vJ}, 3, {aPD}")
    a(f"v_cmp_lt_u32 {sAny}, {sCAP}, {vT3}")
    a(f"v_cmp_gt_u32 vcc, {vJ}, {vT0}")
    a(f"s_mov_b32 {sWin}, 0")
    a("s_nop 2")
    for i in range(8):
        a(f"s_bfe_u32 {sTmp}, {'vcc_lo' if i<4 else 'vcc_hi'}, {(8<<16)|(8*(i&3))}")
        a(f"s_bcnt1_i32_b32 {sTmp}, {sTmp}")
        a(f"s_cmp_eq_u32 {sTmp}, {sTgt}")
        a(f"s_cselect_b32 {sWin}, {i}, {sWin}")
    if opt.get('nobal',0): a(f"s_mov_b32 {sWin}, {sWave}")
    a(f"s_lshl_b32 {sTmp}, {sWin}, 3")
    a(f"v_readlane_b32 {sCnt}, {vT2}, {sTmp}")
    geometry(sWin)
    a(f"s_lshl_b32 {sTmp}, {sWin}, 11")
    a(f"v_add_u32 {vE64}, {sTmp}, {vE64}")
    a(f"v_add_u32 {vTR}, {sTmp}, {vTR}")
    a(f"s_add_u32 {sTmp}, {sTmp}, {L_A2}")
    a(f"v_lshl_add_u32 {vT0}, {vL}, 5, {sTmp}")
    a(f"ds_read_b128 {WA[0:4]}, {vT0}")
    a(f"ds_read_b128 {WA[4:8]}, {vT0} offset:16")
    for i in range(4): a(f"v_mov_b32 {A2R[i]}, 0")
    a(f"ds_write_b128 {vT0}, {A2R[0:4]}")
    a(f"ds_write_b128 {vT0}, {A2R[0:4]} offset:16")
    a(f"s_cmp_eq_u64 {sAny}, 0")
    a("s_cbranch_scc1 K2_MAIN")
    a.c("generic (slow) mode: raw scan of all edges, 512 per round")
    a(f"s_mov_b32 {sMode}, 1")
    a.label("K2_GEN")
    a("s_barrier")
    a(f"s_cmp_lg_u32 {sWave}, 0")
    a("s_cbranch_scc1 K2_GEN1")
    a(f"v_and_b32 {vT0}, 7, {vL}")
    a(f"v_lshlrev_b32 {vT0}, 2, {vT0}")
    a(f"ds_write_b32 {vT0}, {vZ[0]} offset:{L_CNT}")
    a("s_waitcnt lgkmcnt(0)")
    a.label("K2_GEN1")
    a("s_barrier")
    a(f"s_lshl_b32 {sTmp}, {sChunk}, 9")
    a(f"v_add_u32 {vT0}, {sTmp}, v0")
    a(f"s_mov_b32 {sTmp}, {E}")
    a(f"v_cmp_gt_u32 {sAny}, {sTmp}, {vT0}")
    a("s_nop 1")
    append_raw("K2_RA2")
    a("s_waitcnt lgkmcnt(0)")
    a("s_barrier")
    a(f"s_lshl_b32 {sTmp}, {sWin}, 2")
    a(f"v_mov_b32 {vT0}, {sTmp}")
    a(f"ds_read_b32 {vT1}, {vT0} offset:{L_CNT}")
    a("s_waitcnt lgkmcnt(0)")
    a(f"v_readfirstlane_b32 {sCnt}, {vT1}")
    a("s_nop 3")
    a.label("K2_MAIN")
    if opt.get('dbgfill',0): stamp(a,opt,14)
    a(f"s_min_u32 {sCnt}, {sCnt}, {CAP}")
    a(f"s_add_u32 {sNT}, {sCnt}, 31")
    a(f"s_lshr_b32 {sNT}, {sNT}, 5")
    a(f"s_cmp_eq_u32 {sNT}, 0")
    a("s_cbranch_scc1 K2_MAIN_DONE")
    a(f"s_mul_i32 {sTmp}, {sWin}, {CAPX*4}")
    a(f"s_add_u32 {sTmp}, {sTmp}, {L_L0}")
    a(f"s_mul_i32 {sTmp2}, {sWin}, {CAPX*2}")
    a(f"s_add_u32 {sTmp2}, {sTmp2}, {L_L1}")
    a(f"v_and_b32 {vT0}, 31, {vL}")
    a(f"v_lshl_add_u32 {aL0}, {vT0}, 2, {sTmp}")
    a(f"v_lshl_add_u32 {aL1s}, {vT0}, 1, {sTmp2}")
    a(f"v_lshrrev_b32 {vT0}, 3, {vL}")
    a(f"v_lshl_add_u32 {aL1d}, {vT0}, 3, {sTmp2}")
    def pad():
        a(f"v_add_u32 {vT0}, {sCnt}, {vL}")
        a(f"v_lshl_add_u32 {vT1}, {vT0}, 2, {sTmp}")
        a(f"v_lshl_add_u32 {vT2}, {vT0}, 1, {sTmp2}")
        a(f"v_mov_b32 {vJ}, 7")
        a(f"ds_write_b32 {vT1}, {vJ}")
        a(f"ds_write_b16 {vT2}, {vZ[0]}")
        a(f"ds_write_b32 {vT1}, {vJ} offset:256")
        a(f"ds_write_b16 {vT2}, {vZ[0]} offset:128")
    def first_reads():
        a(f"ds_read_b32 {vT3}, {aL0}")
        a(f"ds_read_b64 {SD}, {aL1d}")
        a(f"ds_read_b32 {LE[1]}, {aL0} offset:128")
        a(f"ds_read_b32 {LE[0]}, {aL0} offset:256")
        a(f"ds_read_u16 {SS}, {aL1s}")
    a(f"s_cmp_ge_u32 {sCnt}, 96")
    a("s_cbranch_scc1 K2_FILL_BIG")
    pad()
    first_reads()
    a("s_waitcnt lgkmcnt(0)")
    a("s_branch K2_FILL")
    a.label("K2_FILL_BIG")
    first_reads()
    pad()
    a("s_waitcnt lgkmcnt(4)")
    a.label("K2_FILL")
    ENT=['',' nt',' sc1',' sc0 sc1',' sc0',' sc0 nt',' sc1 nt',' sc0 sc1 nt'][opt.get('e_nt',0)]
    def E_addr(le): a(f"v_and_or_b32 {aE}, {le}, {sMaskE}, {vHOFF}")
    def E_load(p): a(f"buffer_load_dwordx4 {EA[p]}, {aE}, {sE}, 0 offen{ENT}")
    def H_addr():
        if opt.get('hmask',0):
            a(f"v_and_b32 {SD[0]}, 0x03ff03ff, {SD[0]}"); a(f"v_and_b32 {SD[1]}, 0x03ff03ff, {SD[1]}")
        for i in range(4):
            a(f"v_mad_u32_u16 {AD[i]}, {SD[i>>1]}, {s128}, {vKD[i]}"+(" op_sel:[1,0,0,0]" if i&1 else ""))
    def H_load(i):
        a(f"s_mov_b32 m0, {sM0[i]}")
        a("s_nop 0")
        a(f"buffer_load_dwordx4 {AD[i]}, {sB}, 0 offen{HLD} lds")
    def P_addr(le,par):
        a(f"v_and_b32 {vJ}, 7, {le}")
        a(f"v_mul_u32_u24 {aPS}, 6, {SS}")
        a(f"v_mad_u32_u24 {aPD}, {vJ}, 6, {sN06}")
        a(f"v_lshlrev_b32 {aOH}, 4, {vJ}")
        a(f"v_lshl_add_u32 {aA2[par]}, {vJ}, 3, {vE64}")
    def P_reads():
        for c in range(3): a(f"ds_read_u16_d16_hi {PS[c]}, {aPS} offset:{L_POS+2*c}")
        for c in range(3): a(f"ds_read_u16_d16_hi {PD[c]}, {aPD} offset:{L_POS+2*c}")
        a(f"ds_read_b128 {OH}, {aOH} offset:{L_OH}")
    def P_calc_list(par):
        return [f"v_sub_f32 {DX[0]}, {PD[0]}, {PS[0]}", f"v_sub_f32 {DX[1]}, {PD[1]}, {PS[1]}", f"v_sub_f32 {DX[2]}, {PD[2]}, {PS[2]}",
                f"v_mul_f32 {DD}, {DX[0]}, {DX[0]}", f"v_fmac_f32 {DD}, {DX[1]}, {DX[1]}", f"v_fmac_f32 {DD}, {DX[2]}, {DX[2]}",
                f"v_cvt_pk_bf16_f32 {E01[0]}, 1.0, {DX[0]}", f"v_cvt_pk_bf16_f32 {E01[1]}, {DX[1]}, {DX[2]}",
                f"v_cvt_pk_bf16_f32 {OH[3]}, {OH[3]}, {DD}",
                f"ds_write_b64 {aA2[par]}, {E01}"]
    def first_loads():
        E_addr(vT3); E_load(0)
        H_addr()
        for i in range(4): H_load(i)
        E_addr(LE[1]); E_load(1)
    def first_prep(readsd):
        P_addr(vT3,0); P_reads()
        if readsd:
            a(f"ds_read_b64 {SD}, {aL1d} offset:64")
        a(f"ds_read_u16 {SS}, {aL1s} offset:64")
        for i in range(16): a(f"v_mov_b32 {T[i]}, 0")
        for i in range(8): a(f"v_mov_b32 {A2R[i]}, 0")
        a("s_waitcnt lgkmcnt(0)")
        for ins in P_calc_list(0): a(ins)
    if opt.get('stagger',0):
        a.c("the younger partner prepares tile 0 first, so the older waves' first rows are requested ahead of it")
        a(f"s_cmp_ge_u32 {sWave}, 4")
        a("s_cbranch_scc1 K2_FILL_B")
    first_loads()
    if opt.get('dbgfill',0): stamp(a,opt,15)
    first_prep(True)
    if opt.get('stagger',0):
        a("s_branch K2_FILL_J")
        a.label("K2_FILL_B")
        first_prep(False)
        first_loads()
        a(f"ds_read_b64 {SD}, {aL1d} offset:64")
        a("s_waitcnt lgkmcnt(0)")
        a.label("K2_FILL_J")
    H_addr()
    P_addr(LE[1],1)
    E_addr(LE[0])
    a("s_waitcnt vmcnt(1)")
    for s_ in range(4): a(f"ds_read_b128 {HA[4*s_:4*s_+4]}, {vHA[s_]}")
    Da,Db=D1[0:16],D1[16:32]
    mfma(a,Da,OH,WA[0:4],"0")
    mfma(a,Da,EA[0],WE[0:4],Da)
    a("s_waitcnt lgkmcnt(0)")
    for i in range(4): H_load(i)
    mfma(a,Da,HA[0:4],ID[0:4],Da)
    mfma(a,Da,HA[4:8],ID[4:8],Da)
    a(f"s_mov_b32 {sT}, 0")
    stamp(a,opt,8)
    if DBG:
        a("s_memtime s[80:81]")
        a("s_waitcnt lgkmcnt(0)")
    a.nop(12)
    MADD=opt.get('madd',1)
    PB_=[0]; MF=[False]
    def prio(p):
        if PRIO: a(f"s_setprio {p+PB_[0] if PB_[0]>=0 else 3}")
    def Tsec(kind,x,p):
        Dx=D1[16*x:16*x+16]; o=1-x; Do=D1[16*o:16*o+16]; D2o=D2[16*o:16*o+16]
        prio(1)
        if kind=='X':
            ea = EA[p] if x==0 else EA[1-p]
            mfma(a,Do,OH,WA[4*o:4*o+4],"0")
            for i in range(8): a(f"v_cvt_pk_bf16_f32 {M[i]}, {T[2*i]}, {T[2*i+1]}")
            mfma(a,Do,ea,WE[4*o:4*o+4],Do)
            for i in range(16):
                if i==6:
                    if x==1: a("s_waitcnt lgkmcnt(2)")
                    mfma(a,D2o,A2R[0:4],M[0:4],D2o)
                a(f"v_exp_f32 {T[i]}, {Dx[i]}")
            if MADD:
                a("s_nop 1")
                mfma(a,T,ONE,ONE,T)
        else:
            hb = HA[8:16] if x==0 else HA[0:8]
            for i in range(16):
                if i==0: mfma(a,Do,hb[0:4],ID[0:4],Do)
                if i==5: mfma(a,Do,hb[4:8],ID[4:8],Do)
                if i==10: mfma(a,D2o,A2R[4:8],M[4:8],D2o)
                a(f"v_rcp_f32 {T[i]}, {T[i]}")
        prio(0)
    def tile(p):
        q=1-p
        Tsec('X',0,p)
        if not opt.get('e_late',0): E_load(p)
        else: a("s_nop 0")
        P_reads()
        a(f"ds_read_b64 {SD}, {aL1d} offset:{64*(p+2)}")
        if not MADD:
            for i in range(16): a(f"v_add_f32 {T[i]}, 1.0, {T[i]}")
        else:
            a.nop(2)
        Tsec('R',0,p)
        def mulsA():
            for i in range(16): a(f"v_mul_f32 {T[i]}, {Da[i]}, {T[i]}")
        if MF[0]: mulsA()
        a(f"s_waitcnt vmcnt({0 if opt.get('e_late',0) else 1}) lgkmcnt(0)")
        for s_ in range(4): a(f"ds_read_b128 {HA[4*s_:4*s_+4]}, {vHA[s_]}")
        for k in range(4): a(f"ds_read_b64_tr_b16 {A2R[2*k:2*k+2]}, {vTR} offset:{512*k}")
        a(f"ds_write_b64 {aA2[p]}, {vZ}")
        pc=P_calc_list(q)
        for ins in pc[:6]: a(ins)
        H_addr()
        if not MF[0]: mulsA()
        for ins in pc[6:]: a(ins)
        if MF[0]: a("s_nop 0")
        Tsec('X',1,p)
        a("s_waitcnt lgkmcnt(0)")
        if opt.get('e_late',0)==1: E_load(p)
        for i in range(4): H_load(i)
        a(f"ds_read_b32 {LE[q]}, {aL0} offset:{128*(p+3)}")
        a(f"ds_read_u16 {SS}, {aL1s} offset:{64*(p+2)}")
        if not MADD:
            for i in range(16): a(f"v_add_f32 {T[i]}, 1.0, {T[i]}")
        Tsec('R',1,p)
        def mulsB():
            for i in range(16): a(f"v_mul_f32 {T[i]}, {Db[i]}, {T[i]}")
        if MF[0]: mulsB()
        a("s_waitcnt lgkmcnt(0)")
        E_addr(LE[q])
        P_addr(LE[p],p)
        if p==1:
            a(f"v_add_u32 {aL0}, 256, {aL0}")
            a(f"v_add_u32 {aL1s}, 128, {aL1s}")
            a(f"v_add_u32 {aL1d}, 128, {aL1d}")
        if not MF[0]: mulsB()
    def drain(par):
        for i in range(8): a(f"v_cvt_pk_bf16_f32 {M[i]}, {T[2*i]}, {T[2*i+1]}")
        a(f"ds_write_b64 {aA2[par]}, {vZ}")
        a("s_nop 0")
        mfma(a,D2[16:32],A2R[0:4],M[0:4],D2[16:32])
        mfma(a,D2[16:32],A2R[4:8],M[4:8],D2[16:32])
    def main_loop(sfx):
        a(".p2align 6")
        a.label("K2_LOOP"+sfx)
        tile(0)
        a(f"s_add_u32 {sT}, {sT}, 1")
        a(f"s_cmp_ge_u32 {sT}, {sNT}")
        a("s_cbranch_scc1 K2_EXIT_ODD"+sfx)
        tile(1)
        a(f"s_add_u32 {sT}, {sT}, 1")
        a(f"s_cmp_lt_u32 {sT}, {sNT}")
        a("s_cbranch_scc1 K2_LOOP"+sfx)
        drain(0)
        a("s_branch K2_LOOP_DONE")
        a.label("K2_EXIT_ODD"+sfx)
        drain(1)
    HP=opt.get('mfirst',0)
    if HP==1:
        a.c("the younger partner (waves 4..7) opens its plain sections with the multiplies, so both partners' multiplies pair up")
        a(f"s_cmp_ge_u32 {sWave}, 4")
        a("s_cbranch_scc1 K2_LOOP_H")
    if HP==2: MF[0]=True
    main_loop("")
    if HP==1:
        a("s_branch K2_LOOP_DONE")
        MF[0]=True
        main_loop("_H")
        MF[0]=False
    a.label("K2_LOOP_DONE")
    if PRIO: a("s_setprio 0")
    a.label("K2_MAIN_DONE")
    stamp(a,opt,9)
    if DBG:
        a("s_memtime s[82:83]")
        a("s_waitcnt lgkmcnt(0)")
        a("s_sub_u32 s80, s82, s80")
        a(f"v_writelane_b32 {VDBG}, s80, 12")
        a(f"v_writelane_b32 {VDBG}, {sNT}, 11")
    a(f"s_cmp_eq_u32 {sMode}, 0")
    a("s_cbranch_scc1 K2_EPI")
    a("s_waitcnt vmcnt(0) lgkmcnt(0)")
    a(f"s_add_u32 {sChunk}, {sChunk}, 1")
    a(f"s_cmp_lt_u32 {sChunk}, {(E+511)//512}")
    a("s_cbranch_scc1 K2_GEN")
    a.label("K2_EPI")
    a.c("segment sums of this window: m_i (bf16) -> rows of this window's (now idle) A2 slice")
    a(f"s_lshl_b32 {sHST}, {sWin}, 11")
    a(f"s_add_u32 {sHST}, {sHST}, {L_A2}")
    a(f"v_and_b32 {vJ}, 31, {vL}")
    a(f"s_mov_b32 {sTmp}, {NEG_LN2}")
    a(f"v_lshrrev_b32 {vT2}, 5, {vL}")
    a(f"v_lshlrev_b32 {vT2}, 7, {vT2}")
    a(f"v_lshl_add_u32 {vT2}, {vJ}, 1, {vT2}")
    a(f"v_add_u32 {vT2}, {sHST}, {vT2}")
    a.nop(8)
    for qq in range(4):
        a(f"v_mul_f32 {AD[0]}, {sTmp}, {D2[4*qq]}")
        a(f"v_mul_f32 {AD[1]}, {sTmp}, {D2[16+4*qq]}")
        a(f"v_cvt_pk_bf16_f32 {AD[2]}, {AD[0]}, {AD[1]}")
        a(f"ds_write_b16 {vT2}, {AD[2]} offset:{qq*256}")
        a(f"ds_write_b16_d16_hi {vT2}, {AD[2]} offset:{qq*256+64}")
    def pos_part():
        a.c("coordinate update of this window")
        PP=T
        for qq in range(4):
            for c in range(1,4):
                r=PP[qq*3+c-1]
                a(f"v_mul_f32 {r}, {WX[0]}, {D2[4*qq+c]}")
                a(f"v_fmac_f32 {r}, {WX[1]}, {D2[16+4*qq+c]}")
        for sh in (1,2,4,8):
            for i in range(12): a(f"v_add_f32_dpp {PP[i]}, {PP[i]}, {PP[i]} row_shr:{sh} row_mask:0xf bank_mask:0xf bound_ctrl:0")
        for i in range(12): a(f"v_add_f32_dpp {PP[i]}, {PP[i]}, {PP[i]} row_bcast:15 row_mask:0xa bank_mask:0xf")
        a(f"v_lshrrev_b32 {vT2}, 5, {vL}")
        a(f"v_lshlrev_b32 {vT2}, 4, {vT2}")
        a(f"s_add_u32 {sTmp}, {sHST}, 1024")
        a(f"v_add_u32 {vT2}, {sTmp}, {vT2}")
        a("s_mov_b32 exec_lo, 0x80000000")
        a("s_mov_b32 exec_hi, 0x80000000")
        for qq in range(4):
            for c in range(3):
                a(f"ds_write_b32 {vT2}, {PP[qq*3+c]} offset:{qq*32+c*4}")
        a("s_mov_b64 exec, -1")
        a(f"v_mul_u32_u24 {vT2}, 86, {vL}")
        a(f"v_lshrrev_b32 {vT2}, 8, {vT2}")
        a(f"v_mul_u32_u24 {vT3}, 3, {vT2}")
        a(f"v_sub_u32 {vT3}, {vL}, {vT3}")
        a(f"v_lshlrev_b32 {vT2}, 4, {vT2}")
        a(f"v_lshl_add_u32 {vT2}, {vT3}, 2, {vT2}")
        a(f"v_add_u32 {vT2}, {sTmp}, {vT2}")
        a(f"v_min_u32 {vT2}, {LDS2-4}, {vT2}")
        a(f"ds_read_b32 {AD[0]}, {vT2}")
        a(f"v_lshl_add_u32 {vT3}, {vL}, 1, {sN06}")
        a(f"v_min_u32 {vT2}, {POS_SZ-2}, {vT3}")
        a(f"ds_read_u16_d16_hi {PS[0]}, {vT2} offset:{L_POS}")
        a(f"s_mul_i32 {sTmp}, {sNJ}, 3")
        a(f"v_cmp_gt_u32 vcc, {sTmp}, {vL}")
        a(f"v_add_u32 {vT3}, {OUT_POS}, {vT3}")
        a(f"v_mov_b32 {vT2}, 0x40000000")
        a("s_waitcnt lgkmcnt(0)")
        a(f"v_cndmask_b32 {vT3}, {vT2}, {vT3}, vcc")
        a(f"v_add_f32 {AD[0]}, {AD[0]}, {PS[0]}")
        a(f"v_cvt_pk_bf16_f32 {AD[0]}, {AD[0]}, {AD[0]}")
        a(f"buffer_store_short {AD[0]}, {vT3}, {sO}, 0 offen{OST}")
    a.c("job waves 4..7: row tile r = (v-4)>>1 (rows = window 4r + (m>>3), node m&7), feature half x = v&1")
    a(f"s_cmp_lt_u32 {sWave}, 4")
    a("s_cbranch_scc1 K2_EPI_NOJOB")
    a(f"s_sub_u32 {sTmp2}, {sWave}, 4")
    a(f"s_lshr_b32 {sTmp2}, {sTmp2}, 1")
    a(f"s_lshl_b32 {sTmp2}, {sTmp2}, 2")
    a(f"v_bfe_u32 {vT0}, {vL}, 3, 2")
    a(f"v_add_u32 {vT0}, {sTmp2}, {vT0}")
    a(f"v_and_b32 {vJ}, 7, {vL}")
    a(f"v_lshlrev_b32 {aL1d}, 11, {vT0}")
    a(f"v_lshl_add_u32 {aL1d}, {vJ}, 7, {aL1d}")
    a(f"v_add_u32 {aL1d}, {L_A2}, {aL1d}")
    a(f"v_add_u32 {aL1d}, {aL1d}, {vHOFF}")
    a(f"s_lshl_b32 {sTmp2}, s2, 3")
    a(f"v_add_u32 {vT0}, {sTmp2}, {vT0}")
    a(f"v_mad_u32_u24 {SD[0]}, {vT0}, {s3125}, {v511}")
    a(f"v_add_u32 {SD[1]}, 3125, {SD[0]}")
    a(f"v_lshrrev_b32 {SD[0]}, 9, {SD[0]}")
    a(f"v_lshrrev_b32 {SD[1]}, 9, {SD[1]}")
    a(f"v_sub_u32 {SD[1]}, {SD[1]}, {SD[0]}")
    a(f"v_cmp_lt_u32 vcc, {vJ}, {SD[1]}")
    a(f"v_add_u32 {vT1}, -1, {SD[1]}")
    a(f"v_min_u32 {vT1}, {vT1}, {vJ}")
    a(f"v_add_u32 {vT1}, {SD[0]}, {vT1}")
    a(f"v_lshlrev_b32 {vT1}, 7, {vT1}")
    a(f"v_add_u32 {vT0}, {vT1}, {vHOFF}")
    for s_ in range(4):
        a(f"buffer_load_dwordx4 {HA[4*s_:4*s_+4]}, {vT0}, {sHs}, 0 offen offset:{32*s_}")
    a(f"s_and_b32 {sTmp2}, {sWave}, 1")
    a(f"s_lshl_b32 {sTmp2}, {sTmp2}, 6")
    a(f"v_lshrrev_b32 {vT0}, 1, {vHOFF}")
    a(f"v_add3_u32 {aL0}, {vT1}, {vT0}, {sTmp2}")
    for qq in range(4):
        a(f"buffer_load_dwordx2 {M[2*qq:2*qq+2]}, {aL0}, {sHs}, 0 offen offset:{16*qq}")
    a(f"v_mov_b32 {vT0}, 0x40000000")
    a(f"v_cndmask_b32 {aL1s}, {vT0}, {aL0}, vcc")
    pos_part()
    HV=D2[0:16]
    a("s_waitcnt vmcnt(1)")
    for s_ in range(4):
        mfma(a,D1[0:16],WH[4*s_:4*s_+4],HA[4*s_:4*s_+4],"0" if s_==0 else D1[0:16])
    for qq in range(4):
        a(f"v_lshlrev_b32 {HV[4*qq]}, 16, {M[2*qq]}")
        a(f"v_and_b32 {HV[4*qq+1]}, 0xffff0000, {M[2*qq]}")
        a(f"v_lshlrev_b32 {HV[4*qq+2]}, 16, {M[2*qq+1]}")
        a(f"v_and_b32 {HV[4*qq+3]}, 0xffff0000, {M[2*qq+1]}")
    stamp(a,opt,10)
    a("s_barrier")
    MA=[EA[0],EA[1],A2R[0:4],A2R[4:8]]
    for s_ in range(4): a(f"ds_read_b128 {MA[s_]}, {aL1d} offset:{32*s_}")
    for s_ in range(4):
        a(f"s_waitcnt lgkmcnt({3-s_})")
        mfma(a,D1[0:16],WH[16+4*s_:20+4*s_],MA[s_],D1[0:16])
    a(f"s_mov_b32 {sTmp}, {NEG_LOG2E}")
    a.nop(14)
    X=D1[0:16]
    for i in range(16): a(f"v_mul_f32 {T[i]}, {sTmp}, {X[i]}")
    for i in range(16): a(f"v_exp_f32 {T[i]}, {T[i]}")
    for i in range(16): a(f"v_add_f32 {T[i]}, 1.0, {T[i]}")
    for i in range(16): a(f"v_rcp_f32 {T[i]}, {T[i]}")
    a("s_nop 0")
    for i in range(16): a(f"v_fma_f32 {T[i]}, {X[i]}, {T[i]}, {HV[i]}")
    for qq in range(4):
        a(f"v_cvt_pk_bf16_f32 {M[2*qq]}, {T[4*qq]}, {T[4*qq+1]}")
        a(f"v_cvt_pk_bf16_f32 {M[2*qq+1]}, {T[4*qq+2]}, {T[4*qq+3]}")
        a(f"buffer_store_dwordx2 {M[2*qq:2*qq+2]}, {aL1s}, {sO}, 0 offen offset:{16*qq}{OST}")
    a("s_branch K2_FIN")
    a.label("K2_EPI_NOJOB")
    a("s_waitcnt lgkmcnt(0)")
    stamp(a,opt,10)
    a("s_barrier")
    pos_part()
    a.label("K2_FIN")
    if DBG:
        a("s_waitcnt vmcnt(0)")
        stamp(a,opt,13)
        a(f"s_lshl_b32 {sTmp}, s2, 4")
        a(f"s_add_u32 {sTmp}, {sTmp}, {sWave}")
        a(f"s_lshl_b32 {sTmp}, {sTmp}, 6")
        a(f"s_add_u32 {sTmp}, {sTmp}, {DBG_OFF}")
        a(f"v_lshlrev_b32 {vT0}, 2, {vL}")
        a("s_mov_b32 exec_lo, 0xffff")
        a("s_mov_b32 exec_hi, 0")
        a(f"buffer_store_dword {VDBG}, {vT0}, {sW}, {sTmp} offen")
        a("s_waitcnt vmcnt(0)")
    a.label("K_END")
    a("s_endpgm")
    a.label("K_CODE_END")
    return nv

HEADER='''; Kernarg layout (88 bytes, ptrs only): h, pos, e_attr, src, dst, w_e, w_x, w_h, out, debug, ws
; @launch grid=(256,1,1) block=(512,1,1) lds={lds2}
.amdgcn_target "amdgcn-amd-amdhsa--gfx950"
.text
.globl {k}
.p2align 8
.type {k},@function
'''
def kd(name,nv,ns):
    acc=(nv+3)//4*4
    return f'''.amdhsa_kernel {name}
  .amdhsa_next_free_vgpr {acc}
  .amdhsa_next_free_sgpr {ns}
  .amdhsa_accum_offset {acc}
  .amdhsa_group_segment_fixed_size 0
  .amdhsa_kernarg_size 88
  .amdhsa_user_sgpr_count 2
  .amdhsa_user_sgpr_kernarg_segment_ptr 1
  .amdhsa_system_sgpr_workgroup_id_x 1
  .amdhsa_float_denorm_mode_32 3
.end_amdhsa_kernel
'''
def build(opt):
    out=HEADER.format(lds2=LDS2,k=KNAME)
    a=Asm()
    nv=gen(a,opt)
    assert nv<=255
    out+=a.text()
    out+='.section .rodata,"a"\n.p2align 6\n'+kd(KNAME,256,102)
    return out,nv
if __name__=="__main__":
    opt={}
    for arg in sys.argv[2:]:
        k,v=arg.split('='); opt[k]=int(v)
    txt,nv=build(opt)
    open(sys.argv[1],'w').write(txt)
    print("vgprs:",nv,"LDS",LDS2,"lines",txt.count("\n"),"WS",WS_BYTES)
```

```python
import sys, struct
from asmlib import *

N=12500; E=800000; CH=3136; NSRC=256; NBIN=256; NPW=49
KW=703687442
LOG2E=1.4426950408889634; LN2=0.6931471805599453
def f2u(x): return struct.unpack('<I',struct.pack('<f',x))[0]
NEG_LOG2E=f2u(-LOG2E); NEG_LN2=f2u(-LN2)
SENT=0xFFFFFFFF; MARK=0xFFFFFFFE
CELLS=0; BPT=NBIN*NSRC*128; FLG=BPT+N*128+((-N*128)%4096); FLG2=FLG+4096; WS_BYTES=FLG2+8192
OUT_BYTES=N*64*2+N*3*2; OUT_POS=N*64*2
CAP=576; CAPX=704
L_OH=0; L_CNT=128; L_NRES=160; L_WIN=192; L_RES=256; L_POS=1280; POS_SZ=74*1024
L_L0=L_POS+POS_SZ; L_L1=L_L0+8*CAPX*4; L_A2=L_L1+8*CAPX*2; L_HST=L_A2+8*2048; LDS2=L_HST+8*4096
assert LDS2<=163840, LDS2
L_RAWW=L_L0; L_BST=L_L0+19*1024; assert L_BST+2*32*144<=L_A2
DBG_OFF=16*1024*1024

def WSB(opt): return (32*1024*1024 if opt.get('dbg',0) else WS_BYTES)
def srd(a, s, lo, hi, size):
    a(f"s_mov_b32 {s[0]}, {lo}")
    a(f"s_and_b32 {s[1]}, {hi}, 0xffff")
    a(f"s_mov_b32 {s[2]}, {size}")
    a(f"s_mov_b32 {s[3]}, 0x20000")
VDBG="v255"
def stamp(a,opt,idx):
    if not opt.get('dbg',0): return
    a("s_memrealtime s[100:101]")
    a("s_waitcnt lgkmcnt(0)")
    a(f"v_writelane_b32 {VDBG}, s100, {idx}")
def S(i,n=1): return R('s',i,n)
def V(i,n=1): return R('v',i,n)
def mfma(a,d,A,B,c): a(f"v_mfma_f32_32x32x16_bf16 {d}, {A}, {B}, {c}")

NPOS1=24
KNAME="gather_scatter__cheap_equivariant_egnn__graph_kernel"
def gen(a, opt):
    DBG=opt.get('dbg',0)
    PRIO=opt.get('prio',1)
    ST=" sc1"; LD=" sc1" if opt.get('ld_sc1',1) else ""
    HLD=[""," sc1"," sc0 sc1"," sc1 nt"," sc0 sc1 nt"][opt.get('h_sc1',1)]
    SNT=" nt" if opt.get('snt',0) else ""
    OST=[""," nt"," sc1"," sc0 sc1"][opt.get('ost',0)]
    a.label(KNAME)
    sB=S(4,4); sE=S(8,4); sW=S(12,4); sO=S(16,4); sP=S(20,4); sS=S(24,4); sD=S(28,4)
    sWave=S(32); sN0=S(33); sNJ=S(34); sN06=S(35); sNT=S(36); sT=S(37); sMode=S(38); sChunk=S(39)
    sMaskE=S(40); s128=S(41); sK=S(42); s3125=S(43); sLim=S(44); sCAP=S(44); sCnt=S(45); sTmp=S(46); sTmp2=S(47)
    sM0=S(48,4); sSave=S(52,2); sAny=S(54,2); sNR=S(56); sI=S(57); sC=S(58); sWsrc=S(59); sMark=S(60); sCAPq=S(61); sHST=S(62); sTmp3=S(63)
    sMask=[S(64+2*i,2) for i in range(16)]
    sTagOff=S(36)
    sRot=S(39+0) if False else S(37)
    sWin=S(96); sTgt=S(97); sNonce=S(98); sPoll=S(99)
    sT4=S(84,4); sT4b=S(88,4); sT4c=S(92,4)
    sHw=S(48,4)
    sHs=S(68,4); sWx=S(72,4)
    vr=Regs(1,256,'v')
    vL=vr.alloc('lane')
    WE=vr.alloc('WE',8,4); WA=vr.alloc('WA',8,4); ID=vr.alloc('ID',8,4); D2=vr.alloc('D2',32,4)
    D1=vr.alloc('D1',32,4); HA=vr.alloc('HA',16,4); T=vr.alloc('T',16,4); M=vr.alloc('M',8,4)
    A2R=vr.alloc('A2R',8,4); EA=[vr.alloc('EA0',4,4),vr.alloc('EA1',4,4)]; OH=vr.alloc('OH',4,4)
    WH=vr.alloc('WH',32,4); ONE=vr.alloc('ONE',4,4)
    vHA=vr.alloc('vHA',4); vKD=vr.alloc('vKD',4); vTR=vr.alloc('vTR'); vE64=vr.alloc('vE64'); vHOFF=vr.alloc('vHOFF')
    vZ=vr.alloc('vZ',2,2); aL0=vr.alloc('aL0'); aL1s=vr.alloc('aL1s'); aL1d=vr.alloc('aL1d')
    LE=[vr.alloc('LE0'),vr.alloc('LE1')]; aA2=[vr.alloc('aA2_0'),vr.alloc('aA2_1')]
    SD=vr.alloc('SD',2,2); SS=vr.alloc('SS'); PS=vr.alloc('PS',3); PD=vr.alloc('PD',3)
    E01=vr.alloc('E01',2,2); DX=vr.alloc('DX',3); DD=vr.alloc('DD'); AD=vr.alloc('AD',4); vJ=vr.alloc('vJ')
    aE=vr.alloc('aE'); aPS=vr.alloc('aPS'); aPD=vr.alloc('aPD'); aOH=vr.alloc('aOH')
    vT0=vr.alloc('vT0'); vT1=vr.alloc('vT1'); vT2=vr.alloc('vT2'); vT3=vr.alloc('vT3')
    vOne=vr.alloc('vOne'); v511=vr.alloc('v511'); vTRW=vr.alloc('vTRW'); vL16=vr.alloc('vL16'); WX=vr.alloc('WX',2); vDUM=vr.alloc('vDUM')
    nv=vr.next
    HW=T
    def geometry(win):
        a(f"s_lshl_b32 {sTmp}, s2, 3")
        a(f"s_add_u32 {sTmp}, {sTmp}, {win}")
        a(f"s_mul_i32 {sN0}, {sTmp}, 3125")
        a(f"s_add_u32 {sNJ}, {sN0}, {3125+511}")
        a(f"s_add_u32 {sN0}, {sN0}, 511")
        a(f"s_lshr_b32 {sN0}, {sN0}, 9")
        a(f"s_lshr_b32 {sNJ}, {sNJ}, 9")
        a(f"s_sub_u32 {sNJ}, {sNJ}, {sN0}")
        a(f"s_mul_i32 {sN06}, {sN0}, 6")
    def dma(vaddr,srd_,soff,ldsbase_const=None,ldsreg=None):
        pass

    def load_hwin():
        a.c("h rows of the natural window (A operand of h@W1; needed after barrier C)")
        a(f"v_bfe_u32 {vT0}, {vL}, 3, 1")
        a(f"v_and_b32 {vT2}, 3, {vL}")
        a(f"v_lshl_add_u32 {vT0}, {vT0}, 2, {vT2}")
        a(f"s_sub_u32 {sTmp}, {sNJ}, 1")
        a(f"v_min_u32 {vT0}, {sTmp}, {vT0}")
        a(f"v_add_u32 {vT0}, {sN0}, {vT0}")
        a(f"v_lshl_add_u32 {vT0}, {vT0}, 7, {vHOFF}")
        for s_ in range(4):
            a(f"buffer_load_dwordx4 {HW[4*s_:4*s_+4]}, {vT0}, {sHw}, 0 offen offset:{32*s_}")
    a("s_cmp_ge_u32 s2, 256")
    a("s_cbranch_scc1 K_END")
    a("s_load_dwordx4 s[64:67], s[0:1], 0")
    a("s_load_dwordx4 s[68:71], s[0:1], 16")
    a("s_load_dwordx4 s[72:75], s[0:1], 32")
    a("s_load_dwordx4 s[76:79], s[0:1], 64")
    a("s_load_dwordx2 s[80:81], s[0:1], 80")
    a(f"v_and_b32 {vL}, 63, v0")
    a(f"v_lshrrev_b32 {vT0}, 6, v0")
    a(f"v_lshlrev_b32 {vL16}, 4, {vL}")
    a(f"v_readfirstlane_b32 {sWave}, {vT0}")
    if opt.get('cpf',1):
        a.c("pull this workgroup's share of the kernel's own code into L2 (read only, speed only)")
        NL=opt.get('cpf_lines',8)
        a("s_getpc_b64 s[84:85]")
        a.label("K_PC")
        a("s_and_b32 s85, s85, 0xffff")
        a("s_mov_b32 s86, K_CODE_END-K_PC")
        a("s_mov_b32 s87, 0x20000")
        if opt.get('cpf',1)==1:
            a(f"s_lshr_b32 {sTmp}, s2, 3")
            a(f"s_and_b32 {sTmp}, {sTmp}, 31")
            a(f"s_mul_i32 {sTmp}, {sTmp}, {NL*128}")
            a(f"v_lshlrev_b32 {vT1}, 7, {vL}")
            a(f"v_add_u32 {vT1}, {sTmp}, {vT1}")
            a(f"s_cmp_lg_u32 {sWave}, 3")
            a("s_cbranch_scc1 K_NOCPF")
            a(f"s_mov_b32 exec_lo, {(1<<NL)-1}")
            a("s_mov_b32 exec_hi, 0")
            a(f"buffer_load_dword {vDUM}, {vT1}, s[84:87], 0 offen")
            a("s_mov_b64 exec, -1")
        elif opt.get('cpf',1)==2:
            a(f"s_mul_i32 {sTmp}, {sWave}, {24*128}")
            a(f"v_lshlrev_b32 {vT1}, 7, {vL}")
            a(f"v_add_u32 {vT1}, {sTmp}, {vT1}")
            a(f"s_mov_b32 exec_lo, {(1<<24)-1}")
            a("s_mov_b32 exec_hi, 0")
            a(f"buffer_load_dword {vDUM}, {vT1}, s[84:87], 0 offen")
            a("s_mov_b64 exec, -1")
        elif opt.get('cpf',1)==3:
            a(f"s_lshr_b32 {sTmp}, s2, 3")
            a(f"s_and_b32 {sTmp}, {sTmp}, 3")
            a(f"s_mul_i32 {sTmp}, {sTmp}, {48*128}")
            a(f"v_lshlrev_b32 {vT1}, 7, {vL}")
            a(f"v_add_u32 {vT1}, {sTmp}, {vT1}")
            a(f"s_cmp_lg_u32 {sWave}, 3")
            a("s_cbranch_scc1 K_NOCPF")
            a("s_mov_b32 exec_hi, 0xffff")
            a(f"buffer_load_dword {vDUM}, {vT1}, s[84:87], 0 offen")
            a("s_mov_b64 exec, -1")
        a.label("K_NOCPF")
    a(f"v_lshrrev_b32 {vT2}, 5, {vL}")
    a(f"v_lshlrev_b32 {vHOFF}, 4, {vT2}")
    a(f"v_mov_b32 {vZ[0]}, 0")
    a(f"v_mov_b32 {vZ[1]}, 0")
    geometry(sWave)
    a(f"s_mul_i32 {sTmp}, s2, {CH*4}")
    a(f"s_mul_i32 {sTmp2}, {sWave}, {384*4}")
    a(f"s_add_u32 {sTmp}, {sTmp}, {sTmp2}")
    a(f"v_lshl_add_u32 {vT0}, {vL}, 3, {sTmp}")
    a("s_waitcnt lgkmcnt(0)")
    stamp(a,opt,0)
    srd(a,sD,"s72","s73",E*4)
    srd(a,sS,"s70","s71",E*4)
    a.c("every wave: six edges per lane, local edge = 384v + 128k + 2l + u; wave 7 also takes edges 3072 + l")
    DS_=D1[0:7]; SR_=D1[8:15]
    for k in range(3): a(f"buffer_load_dwordx2 {D1[2*k:2*k+2]}, {vT0}, {sD}, 0 offen offset:{512*k}{SNT}")
    for k in range(3): a(f"buffer_load_dwordx2 {D1[8+2*k:10+2*k]}, {vT0}, {sS}, 0 offen offset:{512*k}{SNT}")
    srd(a,sT4,"s64","s65",N*128)
    srd(a,sHw,"s64","s65",N*128)
    srd(a,sT4b,"s74","s75",145*128)
    a(f"s_cmp_eq_u32 {sWave}, 7")
    a("s_cbranch_scc1 K_S_W7")
    a(f"s_cmp_eq_u32 {sWave}, 4")
    a("s_cbranch_scc1 K_S_W4")
    a(f"s_cmp_lt_u32 {sWave}, 5")
    a("s_cbranch_scc1 K_S_COMMON")
    a.c("waves 5,6: private raw W2 copy + h rows for the source-node table")
    a(f"s_sub_u32 {sI}, {sWave}, 5")
    a(f"s_lshl_b32 {sC}, {sI}, 13")
    a(f"s_add_u32 {sC}, {sC}, {L_A2}")
    for i in range(8):
        a(f"s_add_u32 {sTmp}, {sC}, {i*1024}")
        a(f"s_mov_b32 m0, {sTmp}")
        a(f"s_mov_b32 {sTmp2}, {8192+i*1024}")
        a(f"buffer_load_dwordx4 {vL16}, {sT4b}, {sTmp2} offen lds")
    a(f"s_mul_i32 {sTmp}, s2, {NPW}")
    a(f"s_lshl_b32 {sTmp2}, {sI}, 5")
    a(f"s_add_u32 {sTmp}, {sTmp}, {sTmp2}")
    a(f"v_and_b32 {vT0}, 31, {vL}")
    a(f"v_add_u32 {vT0}, {sTmp}, {vT0}")
    a(f"v_lshl_add_u32 {vT0}, {vT0}, 7, {vHOFF}")
    for s_ in range(4): a(f"buffer_load_dwordx4 {HA[4*s_:4*s_+4]}, {vT0}, {sT4}, 0 offen offset:{32*s_}")
    a("s_branch K_S_COMMON")
    a.label("K_S_W4")
    a.c("wave 4: this workgroup's share of the L2 warm-up of pos and w_h (speed only)")
    a("s_load_dwordx2 s[82:83], s[0:1], 56")
    srd(a,sP,"s66","s67",N*6)
    a(f"s_lshr_b32 {sTmp}, s2, 3")
    a(f"s_and_b32 {sTmp}, {sTmp}, 31")
    a(f"s_mul_i32 {sTmp2}, {sTmp}, {19*128}")
    a(f"v_lshlrev_b32 {vT0}, 7, {vL}")
    a(f"v_add_u32 {vT1}, {sTmp2}, {vT0}")
    a(f"v_cmp_gt_u32 vcc, 19, {vL}")
    a(f"v_mov_b32 {vT2}, 0x40000000")
    a("s_waitcnt lgkmcnt(0)")
    a(f"v_cndmask_b32 {vT1}, {vT2}, {vT1}, vcc")
    a(f"buffer_load_dword {vDUM}, {vT1}, {sP}, 0 offen")
    srd(a,sT4b,"s82","s83",128*128)
    a(f"s_lshl_b32 {sTmp2}, {sTmp}, 9")
    a(f"v_add_u32 {vT1}, {sTmp2}, {vT0}")
    a(f"v_cmp_gt_u32 vcc, 4, {vL}")
    a("s_nop 1")
    a(f"v_cndmask_b32 {vT1}, {vT2}, {vT1}, vcc")
    a(f"buffer_load_dword {vDUM}, {vT1}, {sT4b}, 0 offen")
    a("s_branch K_S_COMMON")
    a.label("K_S_W7")
    a.c("wave 7: the last 64 edges, one-hot table, counters")
    a(f"s_mul_i32 {sTmp}, s2, {CH*4}")
    a(f"s_add_u32 {sTmp}, {sTmp}, {3072*4}")
    a(f"v_lshl_add_u32 {vT0}, {vL}, 2, {sTmp}")
    a(f"buffer_load_dword {D1[6]}, {vT0}, {sD}, 0 offen{SNT}")
    a(f"buffer_load_dword {D1[14]}, {vT0}, {sS}, 0 offen{SNT}")
    a(f"v_lshrrev_b32 {vT0}, 2, {vL}")
    a(f"v_and_b32 {vT1}, 3, {vL}")
    a(f"v_lshlrev_b32 {vT3}, 1, {vT1}")
    a(f"v_mov_b32 {vJ}, 0")
    a(f"v_cmp_eq_u32 vcc, {vT0}, {vT3}")
    a(f"v_mov_b32 {AD[0]}, 0x3f80")
    a(f"v_mov_b32 {AD[1]}, 0x3f800000")
    a(f"v_cndmask_b32 {vJ}, {vJ}, {AD[0]}, vcc")
    a(f"v_add_u32 {vT3}, 1, {vT3}")
    a(f"v_cmp_eq_u32 vcc, {vT0}, {vT3}")
    a("s_nop 1")
    a(f"v_cndmask_b32 {vJ}, {vJ}, {AD[1]}, vcc")
    a(f"v_cmp_eq_u32 vcc, 6, {vT0}")
    a(f"v_mov_b32 {AD[2]}, 0")
    a("s_nop 0")
    a(f"v_cndmask_b32 {AD[2]}, {AD[2]}, {AD[1]}, vcc")
    a(f"v_cmp_eq_u32 vcc, 3, {vT1}")
    a("s_nop 1")
    a(f"v_cndmask_b32 {vJ}, {vJ}, {AD[2]}, vcc")
    a(f"v_cmp_lt_u32 vcc, 31, {vL}")
    a(f"v_lshlrev_b32 {vT0}, 2, {vL}")
    a("s_nop 0")
    a(f"v_cndmask_b32 {vJ}, {vJ}, {vZ[0]}, vcc")
    a(f"ds_write_b32 {vT0}, {vJ}")
    a.label("K_S_COMMON")
    a(f"s_mov_b32 {sMaskE}, {'0' if opt.get('noE',0) else '0xffffffe0'}")
    a(f"s_mov_b32 {s128}, {0 if opt.get('noH',0) else 128}")
    a(f"s_mov_b32 {sK}, {KW}")
    a(f"s_mov_b32 {s3125}, 3125")
    a(f"s_mov_b32 {sMark}, {MARK}")
    a(f"s_mov_b32 {sCAPq}, {CAPX//4}")
    a(f"s_mov_b32 {sMode}, 0")
    a(f"s_mov_b32 {sChunk}, 0")
    a(f"v_mov_b32 {vOne}, 1")
    a(f"v_mov_b32 {v511}, 511")
    a(f"v_mov_b32 {aL1s}, 0x40000000")
    a(f"v_lshrrev_b32 {vT2}, 5, {vL}")
    a(f"v_bfe_u32 {vT0}, {vL}, 2, 2")
    a(f"v_lshl_add_u32 {vT0}, {vT2}, 3, {vT0}")
    a(f"v_lshlrev_b32 {vTRW}, 7, {vT0}")
    a(f"v_bfe_u32 {vT0}, {vL}, 4, 1")
    a(f"v_lshl_add_u32 {vTRW}, {vT0}, 5, {vTRW}")
    a(f"v_and_b32 {vT0}, 3, {vL}")
    a(f"v_lshl_add_u32 {vTRW}, {vT0}, 3, {vTRW}")
    a.c("LDS init: cell image = sentinel, counters = 0")
    for i in range(4): a(f"v_mov_b32 {WH[i]}, -1")
    a(f"v_lshlrev_b32 {vT0}, 6, v0")
    a(f"v_add_u32 {vT0}, {L_HST}, {vT0}")
    for i in range(4): a(f"ds_write_b128 {vT0}, {WH[0:4]} offset:{16*i}")
    a(f"v_and_b32 {vT0}, 0xff, v0")
    a(f"v_lshlrev_b32 {vT0}, 2, {vT0}")
    a(f"ds_write_b32 {vT0}, {vZ[0]} offset:{L_RES}")
    srd(a,sW,"s80","s81",WSB(opt))
    srd(a,sP,"s66","s67",N*6)
    srd(a,sE,"s68","s69",E*32)
    srd(a,sO,"s76","s77",OUT_BYTES)
    srd(a,sT4c,"s78","s79",256)
    a(f"s_add_u32 {sB[0]}, s80, {BPT}")
    a(f"s_addc_u32 {sB[1]}, s81, 0")
    a(f"s_and_b32 {sB[1]}, {sB[1]}, 0xffff")
    a(f"s_mov_b32 {sB[2]}, {N*128}")
    a(f"s_mov_b32 {sB[3]}, 0x20000")
    if opt.get('tlb',0):
        a.c("wave 2 touches one line per 2 MiB of the buffers used later (address translation warm-up, speed only)")
        a(f"s_cmp_lg_u32 {sWave}, 2")
        a("s_cbranch_scc1 K_NOTLB")
        a(f"v_lshlrev_b32 {vT0}, 21, {vL}")
        a(f"v_mov_b32 {vT1}, 0x40000000")
        a(f"v_cmp_gt_u32 vcc, 13, {vL}")
        a("s_nop 1")
        a(f"v_cndmask_b32 {vT0}, {vT1}, {vT0}, vcc")
        a(f"buffer_load_dword {vDUM}, {vT0}, {sE}, 0 offen")
        a(f"buffer_load_dword {vDUM}, {vT0}, {sW}, 0 offen")
        a(f"buffer_load_dword {vDUM}, {vT0}, {sO}, 0 offen")
        a.label("K_NOTLB")
    a.c("workgroup 0 publishes this launch's hand-off tag")
    a(f"s_or_b32 {sTmp}, s2, {sWave}")
    a(f"s_cmp_lg_u32 {sTmp}, 0")
    a("s_cbranch_scc1 K_S_NOTAG")
    a("s_memrealtime s[100:101]")
    a("s_waitcnt lgkmcnt(0)")
    a("s_or_b32 s100, s100, 1")
    a(f"v_mov_b32 {vT0}, s100")
    a(f"buffer_store_dword {vT0}, {vZ[0]}, {sT4c}, 0 offen sc1")
    a(f"buffer_store_dword {vT0}, {vZ[0]}, {sT4c}, 0 offen offset:128 sc1")
    a.label("K_S_NOTAG")
    a("s_waitcnt lgkmcnt(0)")
    a("s_barrier")
    a(f"s_mul_i32 {sTmp}, s2, {CH}")
    a(f"s_sub_u32 {sLim}, {E}, {sTmp}")
    a(f"s_min_u32 {sLim}, {sLim}, {CH}")
    B4=D2[0:7]; RC=M[0:7]; RK1=D2[8:15]
    def bin_edges(nrec, el_of, waitcnt, masked):
        if masked:
            for u in range(nrec):
                el_of(u,vT1)
                a(f"v_cmp_gt_u32 {sMask[u]}, {sLim}, {vT1}")
        if waitcnt is not None: a(f"s_waitcnt vmcnt({waitcnt})")
        stamp(a,opt,1)
        for u in range(nrec):
            d=DS_[u]; s_=SR_[u]
            a(f"v_mul_hi_u32 {vT2}, {d}, {sK}")
            el_of(u,vT1)
            a(f"v_lshl_or_b32 {RC[u]}, {s_}, 12, {vT1}")
            a(f"v_lshrrev_b32 {B4[u]}, 1, {vT2}")
            a(f"v_mad_u32_u24 {vT3}, {vT2}, {s3125}, {v511}")
            a(f"v_and_b32 {B4[u]}, 0x3fc, {B4[u]}")
            a(f"v_lshrrev_b32 {vT3}, 9, {vT3}")
            if masked: a(f"s_mov_b64 exec, {sMask[u]}")
            a(f"ds_add_rtn_u32 {RK1[u]}, {B4[u]}, {vOne} offset:{L_RES}")
            if masked: a("s_mov_b64 exec, -1")
            a(f"v_sub_u32 {vT3}, {d}, {vT3}")
            a(f"v_and_b32 {vT2}, 7, {vT2}")
            a(f"v_lshl_or_b32 {vT3}, {vT2}, 3, {vT3}")
            a(f"v_lshl_or_b32 {RC[u]}, {vT3}, 26, {RC[u]}")
        a(f"v_mov_b32 {vT3}, {L_HST}")
        a(f"v_mov_b32 {vJ}, {L_NRES+4}")
        for u in range(nrec):
            if not masked: a(f"s_waitcnt lgkmcnt({nrec-1})")
            elif u==0: a("s_waitcnt lgkmcnt(0)")
            a(f"v_cmp_gt_u32 vcc, 32, {RK1[u]}")
            a(f"v_lshlrev_b32 {vT1}, 3, {RK1[u]}")
            a(f"v_lshrrev_b32 {vT2}, 2, {RK1[u]}")
            a(f"v_and_b32 {vT1}, 0x78, {vT1}")
            a(f"v_lshl_add_u32 {AD[0]}, {B4[u]}, 5, {vT3}")
            a(f"v_and_or_b32 {vT1}, {vT2}, 4, {vT1}")
            a(f"v_add_u32 {vT1}, {vT1}, {AD[0]}")
            a(f"v_cndmask_b32 {vT1}, {vJ}, {vT1}, vcc")
            if masked: a(f"s_mov_b64 exec, {sMask[u]}")
            a(f"ds_write_b32 {vT1}, {RC[u]}")
            if masked: a("s_mov_b64 exec, -1")
    a.c("wait for this wave's edges (younger loads: 12 for waves 5,6; 2 for wave 4; the tag store of workgroup 0)")
    a(f"s_mul_i32 {sTmp}, {sWave}, 384")
    a(f"v_lshl_add_u32 {vT0}, {vL}, 1, {sTmp}")
    a(f"s_cmp_eq_u32 {sWave}, 4")
    a("s_cbranch_scc1 K_S_WT4")
    a(f"s_sub_u32 {sTmp}, {sWave}, 5")
    a(f"s_cmp_lt_u32 {sTmp}, 2")
    a("s_cbranch_scc1 K_S_WT56")
    if opt.get('tlb',0):
        a(f"s_cmp_eq_u32 {sWave}, 2")
        a("s_cbranch_scc1 K_S_WT2")
    a("s_waitcnt vmcnt(0)")
    a("s_branch K_S_WTD")
    if opt.get('tlb',0):
        a.label("K_S_WT2")
        a("s_waitcnt vmcnt(3)")
        a("s_branch K_S_WTD")
    a.label("K_S_WT4")
    a("s_waitcnt vmcnt(2)")
    a("s_branch K_S_WTD")
    a.label("K_S_WT56")
    a("s_waitcnt vmcnt(12)")
    a.label("K_S_WTD")
    a.c("wave 0 fetches the hand-off tag (one of its two copies); it is needed when the cell stores have left")
    a(f"s_and_b32 {sTagOff}, s2, 1")
    a(f"s_lshl_b32 {sTagOff}, {sTagOff}, 7")
    a(f"s_cmp_lg_u32 {sWave}, 0")
    a("s_cbranch_scc1 K_S_NOTAG1")
    a(f"buffer_load_dword {aE}, {vZ[0]}, {sT4c}, {sTagOff} offen sc1")
    a.label("K_S_NOTAG1")
    def el6(u,r): a(f"v_add_u32 {r}, {128*(u>>1)+(u&1)}, {vT0}")
    def el7(u,r):
        if u<6: el6(u,r)
        else: a(f"v_add_u32 {r}, 3072, {vL}")
    a(f"s_cmp_lt_u32 {sLim}, {CH}")
    a("s_cbranch_scc1 K_S_APPM")
    a(f"s_cmp_eq_u32 {sWave}, 7")
    a("s_cbranch_scc1 K_S_APP7")
    bin_edges(6, el6, None, False)
    a("s_branch K_S_APPD")
    a.label("K_S_APP7")
    bin_edges(7, el7, None, False)
    a("s_branch K_S_APPD")
    a.label("K_S_APPM")
    a(f"s_cmp_eq_u32 {sWave}, 7")
    a("s_cbranch_scc1 K_S_APPM7")
    bin_edges(6, el6, None, True)
    a("s_branch K_S_APPD")
    a.label("K_S_APPM7")
    bin_edges(7, el7, None, True)
    a.label("K_S_APPD")
    load_hwin()
    a.c("waves 4, 7: raw w_e -> LDS (needed after barrier C); wave 4 rebuilds the descriptor it lent to the w_h warm-up")
    a(f"s_lshl_b32 {sTmp}, 1, {sWave}")
    a(f"s_and_b32 {sTmp}, {sTmp}, 0x90")
    a("s_cbranch_scc0 K_S_NORAW")
    a("s_load_dwordx2 s[100:101], s[0:1], 40")
    a(f"s_cmp_eq_u32 {sWave}, 7")
    a(f"s_cselect_b32 {sTmp3}, {10*1024}, 0")
    a("s_waitcnt lgkmcnt(0)")
    srd(a,sT4b,"s100","s101",145*128)
    for i in range(10):
        a(f"s_add_u32 {sTmp2}, {sTmp3}, {i*1024}")
        if i==9: a(f"s_min_u32 {sTmp2}, {sTmp2}, {18*1024}")
        a(f"s_add_u32 {sTmp}, {sTmp2}, {L_RAWW}")
        a(f"s_mov_b32 m0, {sTmp}")
        a("s_nop 0")
        a(f"buffer_load_dwordx4 {vL16}, {sT4b}, {sTmp2} offen lds")
    a.label("K_S_NORAW")
    a("s_waitcnt lgkmcnt(0)")
    stamp(a,opt,14) if not opt.get('dbgfill',0) else None
    a("s_barrier")
    stamp(a,opt,2)
    def setup_static():
        a(f"v_and_b32 {vT1}, 31, {vL}")
        a(f"v_lshrrev_b32 {vT2}, 5, {vL}")
        a(f"v_lshlrev_b32 {vT0}, 3, {vT2}")
        a(f"v_sub_u32 {vT0}, {vT1}, {vT0}")
        a(f"v_mov_b32 {AD[2]}, 0x3f80")
        a(f"v_mov_b32 {AD[3]}, 0x3f800000")
        for sp in range(2):
            for r in range(4):
                k0=16*sp+2*r
                a(f"v_cmp_eq_u32 vcc, {k0}, {vT0}")
                a(f"v_cmp_eq_u32 {sSave}, {k0+1}, {vT0}")
                a("s_nop 0")
                a(f"v_cndmask_b32 {ID[4*sp+r]}, {vZ[0]}, {AD[2]}, vcc")
                a(f"v_cndmask_b32 {ID[4*sp+r]}, {ID[4*sp+r]}, {AD[3]}, {sSave}")
        a(f"v_cmp_lt_u32 vcc, 31, {vL}")
        a("s_nop 1")
        for i in range(1,4): a(f"v_mov_b32 {ONE[i]}, 0")
        a(f"v_cndmask_b32 {ONE[0]}, {AD[2]}, {vZ[0]}, vcc")
        for i in range(3):
            a(f"v_mov_b32 {PS[i]}, 0"); a(f"v_mov_b32 {PD[i]}, 0")
        a.c("static per-lane addresses of the main loop (window offsets are added after the assignment)")
        a(f"v_and_b32 {vT1}, 31, {vL}")
        a(f"v_lshrrev_b32 {vT2}, 5, {vL}")
        a(f"v_mov_b32 {vT3}, {L_A2}")
        a(f"v_lshl_add_u32 {vE64}, {vT1}, 6, {vT3}")
        a(f"v_bfe_u32 {vT0}, {vL}, 2, 2")
        a(f"v_lshl_add_u32 {vT0}, {vT2}, 2, {vT0}")
        a(f"v_lshl_add_u32 {vTR}, {vT0}, 6, {vT3}")
        a(f"v_bfe_u32 {vT0}, {vL}, 4, 1")
        a(f"v_lshl_add_u32 {vTR}, {vT0}, 5, {vTR}")
        a(f"v_and_b32 {vT0}, 3, {vL}")
        a(f"v_lshl_add_u32 {vTR}, {vT0}, 3, {vTR}")
        a(f"s_lshl_b32 {sHST}, {sWave}, 12")
        a(f"s_add_u32 {sHST}, {sHST}, {L_HST}")
        for i in range(4): a(f"s_add_u32 {sM0[i]}, {sHST}, {1024*i}")
        a(f"v_and_b32 {vT0}, 3, {vT1}")
        a(f"v_bfe_u32 {vT3}, {vT1}, 4, 1")
        a(f"v_lshl_or_b32 {vT3}, {vT3}, 2, {vT0}")
        a(f"v_lshlrev_b32 {vT0}, 3, {vT0}")
        a(f"v_lshrrev_b32 {vJ}, 2, {vT1}")
        a(f"v_add_u32 {vT0}, {vT0}, {vJ}")
        a(f"v_lshl_add_u32 {vT0}, {vT0}, 7, {sHST}")
        for s_ in range(4):
            a(f"v_add_u32 {vJ}, {2*s_}, {vT2}")
            a(f"v_xor_b32 {vJ}, {vJ}, {vT3}")
            a(f"v_lshl_add_u32 {vHA[s_]}, {vJ}, 4, {vT0}")
        a(f"v_and_b32 {vT0}, 7, {vL}")
        a(f"v_lshlrev_b32 {vT3}, 2, {vT2}")
        a(f"v_xor_b32 {vT0}, {vT0}, {vT3}")
        for i in range(4):
            a(f"v_xor_b32 {vJ}, {i}, {vT0}")
            a(f"v_lshlrev_b32 {vKD[i]}, 4, {vJ}")
        a(f"s_mov_b32 {sCAP}, {CAP}")
        a(f"s_sub_u32 {sTgt}, 11, {sWave}")
        a(f"s_cmp_lt_u32 {sWave}, 4")
        a(f"s_cselect_b32 {sTgt}, {sWave}, {sTgt}")
        a(f"v_lshrrev_b32 {aPS}, 3, {vL}")
        a(f"v_and_b32 {aPD}, 7, {vL}")
        a(f"v_lshlrev_b32 {aOH}, 2, {aPS}")
        a(f"v_lshlrev_b32 {SS}, 2, {aPD}")
    a(f"s_cmp_gt_u32 {sWave}, 3")
    a("s_cbranch_scc1 K_S_NOCOPY")
    a.c("waves 0..3 copy the cell image out: eight 16 B pieces per thread")
    a(f"v_lshlrev_b32 {vT0}, 4, v0")
    a(f"v_add_u32 {vT0}, {L_HST}, {vT0}")
    a(f"v_lshrrev_b32 {vT1}, 3, v0")
    a(f"v_lshlrev_b32 {vT2}, 2, {vT1}")
    CP=[D1[4*k:4*k+4] for k in range(8)]
    for k in range(4):
        a(f"ds_read_b128 {CP[k]}, {vT0} offset:{4096*k}")
        a(f"ds_read_b32 {D2[k]}, {vT2} offset:{L_RES+128*k}")
    a(f"v_and_b32 {vT3}, 7, v0")
    a(f"v_cmp_eq_u32 vcc, 0, {vT3}")
    a(f"v_mov_b32 {vJ}, -1")
    CT=opt.get('ctrans',0)
    a(f"v_lshlrev_b32 {vT1}, {7 if CT else 15}, {vT1}")
    a(f"v_cndmask_b32_e64 {AD[1]}, -1, -2, vcc")
    a(f"v_lshl_add_u32 {vT1}, {vT3}, 4, {vT1}")
    a(f"s_lshl_b32 {sTmp}, s2, {15 if CT else 7}")
    for k in range(8):
        if k<4:
            a(f"ds_read_b128 {CP[k+4]}, {vT0} offset:{4096*(k+4)}")
            a(f"ds_read_b32 {D2[k+4]}, {vT2} offset:{L_RES+128*(k+4)}")
            a("s_waitcnt lgkmcnt(8)")
        else:
            a(f"s_waitcnt lgkmcnt({2*(7-k)})")
        a(f"v_cmp_lt_u32 vcc, 32, {D2[k]}")
        a(f"s_add_u32 {sTmp2}, {sTmp}, {k*32*(128 if CT else 32768)}")
        a("s_nop 0")
        a(f"v_cndmask_b32 {CP[k][0]}, {CP[k][0]}, {AD[1]}, vcc")
        for i in range(1,4): a(f"v_cndmask_b32 {CP[k][i]}, {CP[k][i]}, {vJ}, vcc")
        a(f"buffer_store_dwordx4 {CP[k]}, {vT1}, {sW}, {sTmp2} offen{ST}")
    a("s_branch K_S_STATIC")
    a.label("K_S_NOCOPY")
    a(f"s_sub_u32 {sTmp}, {sWave}, 5")
    a(f"s_cmp_lt_u32 {sTmp}, 2")
    a("s_cbranch_scc0 K_S_POS")
    a.c("waves 5,6: source-node table B' = -log2e * h @ W2 for 32 nodes")
    a(f"v_add_u32 {vT0}, {sC}, {vTRW}")
    a("s_waitcnt vmcnt(4)")
    for s_ in range(4):
        for x in range(2):
            for th in range(2):
                r=(s_*2+x)*4+2*th
                a(f"ds_read_b64_tr_b16 {D1[r:r+2]}, {vT0} offset:{s_*2048+th*512+x*64}")
    a("s_waitcnt lgkmcnt(0)")
    for x in range(2):
        for s_ in range(4):
            r=(s_*2+x)*4
            mfma(a,D2[16*x:16*x+16],D1[r:r+4],HA[4*s_:4*s_+4],"0" if s_==0 else D2[16*x:16*x+16])
    a(f"s_mul_i32 {sTmp}, {sI}, {32*144}")
    a(f"s_add_u32 {sTmp}, {sTmp}, {L_BST}")
    a(f"v_and_b32 {vT1}, 31, {vL}")
    a(f"v_mul_u32_u24 {vT1}, 144, {vT1}")
    a(f"v_lshrrev_b32 {vT2}, 5, {vL}")
    a(f"v_lshl_add_u32 {vT1}, {vT2}, 3, {vT1}")
    a(f"v_add_u32 {vT1}, {sTmp}, {vT1}")
    a(f"v_lshrrev_b32 {vT2}, 3, {vL}")
    a(f"v_mul_u32_u24 {vT3}, 144, {vT2}")
    a(f"v_and_b32 {vJ}, 7, {vL}")
    a(f"v_lshl_add_u32 {vT3}, {vJ}, 4, {vT3}")
    a(f"v_add_u32 {vT3}, {sTmp}, {vT3}")
    a(f"s_mov_b32 {sTmp2}, {NEG_LOG2E}")
    a.nop(4)
    for x in range(2):
        for q in range(16): a(f"v_mul_f32 {D2[16*x+q]}, {sTmp2}, {D2[16*x+q]}")
        for qq in range(4):
            b=16*x+4*qq
            a(f"v_cvt_pk_bf16_f32 {E01[0]}, {D2[b]}, {D2[b+1]}")
            a(f"v_cvt_pk_bf16_f32 {E01[1]}, {D2[b+2]}, {D2[b+3]}")
            a(f"ds_write_b64 {vT1}, {E01} offset:{x*64+qq*16}")
            a("s_nop 0")
    for i in range(4): a(f"ds_read_b128 {D1[4*i:4*i+4]}, {vT3} offset:{i*8*144}")
    a(f"s_lshl_b32 {sTmp2}, {sI}, 5")
    a(f"v_add_u32 {vT2}, {sTmp2}, {vT2}")
    a(f"s_mul_i32 {sTmp}, s2, {NPW}")
    a(f"v_add_u32 {vT0}, {sTmp}, {vT2}")
    a(f"v_lshlrev_b32 {vT1}, 7, {vT0}")
    a(f"v_lshl_add_u32 {vT1}, {vJ}, 4, {vT1}")
    a(f"v_mov_b32 {vJ}, 0x40000000")
    a("s_waitcnt lgkmcnt(0)")
    for i in range(4):
        a(f"v_add_u32 {vT3}, {8*i}, {vT2}")
        a(f"v_cmp_gt_u32 vcc, {NPW}, {vT3}")
        a(f"v_add_u32 {AD[0]}, {1024*i}, {vT1}")
        a("s_nop 0")
        a(f"v_cndmask_b32 {AD[0]}, {vJ}, {AD[0]}, vcc")
        a(f"buffer_store_dwordx4 {D1[4*i:4*i+4]}, {AD[0]}, {sB}, 0 offen{ST}")
    a("s_waitcnt vmcnt(4)")
    a("s_branch K_S_STATIC")
    a.label("K_S_POS")
    a.label("K_S_STATIC")
    setup_static()
    a.c("waves 0..3: every cell store has left; waves 4, 7: raw w_e / window rows landed; waves 5, 6 signal their rows later")
    a(f"s_sub_u32 {sTmp}, {sWave}, 5")
    a(f"s_cmp_lt_u32 {sTmp}, 2")
    a("s_cbranch_scc1 K_S_PREC")
    a("s_waitcnt vmcnt(0)")
    def have_tag(lbl):
        a(f"s_mov_b32 {sPoll}, 0")
        a.label(lbl)
        a(f"v_readfirstlane_b32 {sNonce}, {aE}")
        a("s_memrealtime s[100:101]")
        a("s_waitcnt lgkmcnt(0)")
        a(f"s_sub_u32 {sTmp}, s100, {sNonce}")
        a(f"s_add_u32 {sTmp}, {sTmp}, 1")
        a(f"s_cmp_lt_u32 {sTmp}, 2500")
        a(f"s_cselect_b32 {sTmp}, {sNonce}, 0")
        a(f"s_cmp_lg_u32 {sTmp}, 0")
        a(f"s_cbranch_scc1 {lbl}_OK")
        a(f"s_add_u32 {sPoll}, {sPoll}, 1")
        a(f"s_cmp_gt_u32 {sPoll}, 200000")
        a(f"s_cbranch_scc1 {lbl}_OK")
        a(f"s_cmp_gt_u32 {sPoll}, 1000")
        a(f"s_cselect_b32 {sTmp}, {sNonce}, 0")
        a(f"s_cmp_lg_u32 {sTmp}, 0")
        a(f"s_cbranch_scc1 {lbl}_OK")
        a("s_sleep 2")
        a(f"buffer_load_dword {aE}, {vZ[0]}, {sT4c}, {sTagOff} offen sc1")
        a("s_waitcnt vmcnt(0)")
        a(f"s_branch {lbl}")
        a.label(f"{lbl}_OK")
    a(f"s_cmp_lg_u32 {sWave}, 0")
    a("s_cbranch_scc1 K_S_PREC")
    have_tag("K_G_TAG")
    a(f"v_mov_b32 {vT0}, {sNonce}")
    a(f"ds_write_b32 {vZ[0]}, {vT0} offset:{L_NRES+8}")
    a.label("K_S_PREC")
    a("s_waitcnt lgkmcnt(0)")
    stamp(a,opt,15) if not opt.get('dbgfill',0) else None
    a("s_barrier")
    stamp(a,opt,3)
    a(f"s_cmp_lg_u32 {sWave}, 0")
    a("s_cbranch_scc1 K_G_NOT0")
    a.c("wave 0: signal this workgroup's cells")
    a(f"s_lshl_b32 {sTmp}, s2, 4")
    a(f"s_add_u32 {sTmp}, {sTmp}, {FLG}")
    a(f"v_mov_b32 {vT0}, {sNonce}")
    a(f"buffer_store_dword {vT0}, {vZ[0]}, {sW}, {sTmp} offen sc1")
    a("s_branch K_G_SETUP")
    a.label("K_G_NOT0")
    a(f"s_cmp_lt_u32 {sWave}, 4")
    a("s_cbranch_scc1 K_G_WH")
    a(f"s_sub_u32 {sTmp}, {sWave}, 5")
    a(f"s_cmp_lt_u32 {sTmp}, 2")
    a("s_cbranch_scc1 K_G_SETUP")
    a.c("waves 4, 7: pos table -> LDS (37 pieces each)")
    a(f"s_cmp_eq_u32 {sWave}, 7")
    a(f"s_cselect_b32 {sI}, {37*1024}, 0")
    for i in range(37):
        a(f"s_add_u32 {sTmp}, {sI}, {i*1024}")
        a(f"s_add_u32 {sTmp2}, {sTmp}, {L_POS}")
        a(f"s_mov_b32 m0, {sTmp2}")
        a("s_nop 0")
        a(f"buffer_load_dwordx4 {vL16}, {sP}, {sTmp} offen lds")
    a("s_branch K_G_SETUP")
    a.label("K_G_WH")
    a.c("waves 1..3: raw w_h -> staging area")
    a("s_load_dwordx2 s[64:65], s[0:1], 56")
    a(f"s_sub_u32 {sI}, {sWave}, 1")
    a("s_waitcnt lgkmcnt(0)")
    srd(a,sT4b,"s64","s65",128*128)
    for k in range(6):
        a(f"s_add_u32 {sTmp}, {sI}, {3*k}")
        a(f"s_min_u32 {sTmp}, {sTmp}, 15")
        a(f"s_lshl_b32 {sTmp}, {sTmp}, 10")
        a(f"s_add_u32 {sTmp2}, {sTmp}, {L_HST}")
        a(f"s_mov_b32 m0, {sTmp2}")
        a("s_nop 0")
        a(f"buffer_load_dwordx4 {vL16}, {sT4b}, {sTmp} offen lds")
    a.label("K_G_SETUP")
    a.c("operands from raw w_e: W1 (for A'), W4', wd'")
    W1=D2
    a(f"v_add_u32 {vT0}, {L_RAWW}, {vTRW}")
    for s_ in range(4):
        for x in range(2):
            for th in range(2):
                r=(s_*2+x)*4+2*th
                a(f"ds_read_b64_tr_b16 {W1[r:r+2]}, {vT0} offset:{s_*2048+th*512+x*64}")
    W4R=HA[0:8]
    for x in range(2):
        for th in range(2):
            a(f"ds_read_b64_tr_b16 {W4R[4*x+2*th:4*x+2*th+2]}, {vT0} offset:{129*128+th*512+x*64}")
    WD=M[0:2]
    a(f"v_mov_b32 {WD[0]}, 0")
    a(f"v_mov_b32 {WD[1]}, 0")
    a(f"v_and_b32 {vT1}, 31, {vL}")
    a(f"v_lshlrev_b32 {vT2}, 1, {vT1}")
    a(f"v_add_u32 {vT2}, {L_RAWW+128*128}, {vT2}")
    a(f"ds_read_u16_d16_hi {WD[0]}, {vT2}")
    a(f"ds_read_u16_d16_hi {WD[1]}, {vT2} offset:64")
    a("s_waitcnt lgkmcnt(0)")
    for x in range(2):
        for s_ in range(4):
            mfma(a,D1[16*x:16*x+16],HW[4*s_:4*s_+4],W1[(s_*2+x)*4:(s_*2+x)*4+4],"0" if s_==0 else D1[16*x:16*x+16])
    a(f"s_mov_b32 {sTmp}, {NEG_LOG2E}")
    for i in range(8):
        a(f"v_lshlrev_b32 {vT0}, 16, {W4R[i]}")
        a(f"v_and_b32 {vT2}, 0xffff0000, {W4R[i]}")
        a(f"v_mul_f32 {vT0}, {sTmp}, {vT0}")
        a(f"v_mul_f32 {vT2}, {sTmp}, {vT2}")
        a(f"v_cvt_pk_bf16_f32 {WE[i]}, {vT0}, {vT2}")
    a(f"v_cmp_lt_u32 vcc, 31, {vL}")
    for x in range(2):
        a(f"v_mul_f32 {WD[x]}, {sTmp}, {WD[x]}")
        a(f"v_cvt_pk_bf16_f32 {vT0}, {WD[x]}, {WD[x]}")
        a(f"v_and_b32 {vT0}, 0xffff0000, {vT0}")
        a(f"v_sub_f32 {vT2}, {WD[x]}, {vT0}")
        a(f"v_cvt_pk_bf16_f32 {vT2}, {vT2}, {vT2}")
        a(f"v_and_b32 {vT2}, 0xffff0000, {vT2}")
        a(f"v_cndmask_b32 {WD[x]}, {vT0}, {vT2}, vcc")
    a(f"s_cmp_lg_u32 {sWave}, 0")
    a("s_cbranch_scc1 K_G_NOEARLY")
    a(f"s_mov_b32 {sTmp2}, {FLG}")
    for k in range(4): a(f"buffer_load_dword {AD[k]}, {vL16}, {sW}, {sTmp2} offen offset:{1024*k} sc1")
    a.label("K_G_NOEARLY")
    a(f"v_cmp_lt_u32 vcc, 31, {vL}")
    a(f"v_mov_b32 {vJ}, 0xffff")
    for x in range(2):
        for r in range(4):
            q0,q1=D1[16*x+2*r],D1[16*x+2*r+1]
            a(f"v_mul_f32 {q0}, {sTmp}, {q0}")
            a(f"v_mul_f32 {q1}, {sTmp}, {q1}")
            a(f"v_cvt_pk_bf16_f32 {vT0}, {q0}, {q1}")
            a(f"v_lshlrev_b32 {vT1}, 16, {vT0}")
            a(f"v_and_b32 {vT2}, 0xffff0000, {vT0}")
            a(f"v_sub_f32 {vT1}, {q0}, {vT1}")
            a(f"v_sub_f32 {vT2}, {q1}, {vT2}")
            a(f"v_cvt_pk_bf16_f32 {vT1}, {vT1}, {vT2}")
            a(f"v_cndmask_b32 {WA[4*x+r]}, {vT0}, {vT1}, vcc")
        a(f"v_bfi_b32 {WA[4*x+3]}, {vJ}, {WA[4*x+3]}, {WD[x]}")
    a(f"s_lshl_b32 {sTmp}, {sWave}, 11")
    a(f"s_add_u32 {sTmp}, {sTmp}, {L_A2}")
    a(f"v_lshl_add_u32 {vT0}, {vL}, 5, {sTmp}")
    a(f"ds_write_b128 {vT0}, {WA[0:4]}")
    a(f"ds_write_b128 {vT0}, {WA[4:8]} offset:16")
    for i in range(32): a(f"v_mov_b32 {D2[i]}, 0")
    a(f"s_sub_u32 {sTmp}, {sWave}, 5")
    a(f"s_cmp_lt_u32 {sTmp}, 2")
    a("s_cbranch_scc0 K_G_NOFLG2")
    a.c("waves 5,6: their rows have left -> signal them")
    a(f"ds_read_b32 {aE}, {vZ[0]} offset:{L_NRES+8}")
    a("s_waitcnt vmcnt(0) lgkmcnt(0)")
    a(f"v_readfirstlane_b32 {sNonce}, {aE}")
    a("s_nop 3")
    a(f"s_lshl_b32 {sTmp}, s2, 1")
    a(f"s_add_u32 {sTmp}, {sTmp}, {sWave}")
    a(f"s_sub_u32 {sTmp}, {sTmp}, 5")
    a(f"s_lshl_b32 {sTmp}, {sTmp}, 4")
    a(f"s_add_u32 {sTmp}, {sTmp}, {FLG2}")
    a(f"v_mov_b32 {vT0}, {sNonce}")
    a(f"buffer_store_dword {vT0}, {vZ[0]}, {sW}, {sTmp} offen sc1")
    a.label("K_G_NOFLG2")
    a(f"s_cmp_lg_u32 {sWave}, 0")
    a("s_cbranch_scc1 K_G_WAIT")
    a.c("wave 0: wait for all 256 hand-offs (the first round of flag loads is already in flight)")
    a(f"s_mov_b32 {sTmp2}, {FLG}")
    a("s_branch K_G_POLL1")
    a.label("K_G_POLL")
    for k in range(4): a(f"buffer_load_dword {AD[k]}, {vL16}, {sW}, {sTmp2} offen offset:{1024*k} sc1")
    a.label("K_G_POLL1")
    a("s_waitcnt vmcnt(0)")
    a(f"v_cmp_eq_u32 {sAny}, {sNonce}, {AD[0]}")
    a(f"v_cmp_eq_u32 {sSave}, {sNonce}, {AD[1]}")
    a(f"v_cmp_eq_u32 vcc, {sNonce}, {AD[2]}")
    a("s_nop 1")
    a(f"s_and_b64 {sAny}, {sAny}, {sSave}")
    a(f"v_cmp_eq_u32 {sSave}, {sNonce}, {AD[3]}")
    a(f"s_and_b64 {sAny}, {sAny}, vcc")
    a("s_nop 1")
    a(f"s_and_b64 {sAny}, {sAny}, {sSave}")
    a(f"s_cmp_eq_u64 {sAny}, -1")
    a("s_cbranch_scc1 K_G_WAIT")
    a(f"s_add_u32 {sPoll}, {sPoll}, 1")
    a(f"s_cmp_lt_u32 {sPoll}, 200000")
    a("s_cbranch_scc1 K_G_POLL")
    a.label("K_G_WAIT")
    a.c("waves 4 and 7 keep their pos pieces in flight: their cell loads return behind them")
    a(f"s_lshl_b32 {sTmp}, 1, {sWave}")
    a(f"s_and_b32 {sTmp}, {sTmp}, 0x90")
    a("s_cbranch_scc1 K_G_WAIT47")
    a("s_waitcnt vmcnt(0)")
    a.label("K_G_WAIT47")
    a("s_waitcnt lgkmcnt(0)")
    for _ in range(opt.get('delay',0)): a("s_sleep 32")
    a("s_barrier")
    stamp(a,opt,4)
    RECP=D1[0:16]; REC=[RECP[2*i] for i in range(8)]+[RECP[2*i+1] for i in range(8)]; WAD=D1[16:32]; RK=HA
    a.c("cell records of this bin: pair s holds slots m and 16+m (m = l&15) of cell 32s+4v+(l>>4)")
    if not CT:
        a(f"s_lshl_b32 {sTmp}, s2, 15")
        a(f"s_lshl_b32 {sTmp2}, {sWave}, 9")
        a(f"s_add_u32 {sTmp}, {sTmp}, {sTmp2}")
        a(f"v_lshl_add_u32 {vT0}, {vL}, 3, {sTmp}")
    else:
        a(f"s_lshl_b32 {sTmp}, s2, 7")
        a(f"s_lshl_b32 {sTmp2}, {sWave}, 17")
        a(f"s_add_u32 {sTmp}, {sTmp}, {sTmp2}")
        a(f"v_lshrrev_b32 {vT0}, 4, {vL}")
        a(f"v_lshlrev_b32 {vT0}, 15, {vT0}")
        a(f"v_and_b32 {vT1}, 15, {vL}")
        a(f"v_lshl_add_u32 {vT0}, {vT1}, 3, {vT0}")
        a(f"v_add_u32 {vT0}, {sTmp}, {vT0}")
    ROT=opt.get('rot',0)
    if ROT==1: a(f"s_getreg_b32 {sRot}, hwreg(HW_REG_XCC_ID, 0, 4)")
    elif ROT==2: a(f"s_and_b32 {sRot}, s2, 7")
    elif ROT==3:
        a(f"s_getreg_b32 {sRot}, hwreg(HW_REG_XCC_ID, 0, 4)")
        a(f"s_and_b32 {sRot}, {sRot}, 3")
        a(f"s_lshl_b32 {sRot}, {sRot}, 1")
    else: a(f"s_mov_b32 {sRot}, 0")
    def pair_index(dst,s_):
        a(f"s_add_u32 {dst}, {sRot}, {s_}")
        a(f"s_and_b32 {dst}, {dst}, 7")
    for s_ in range(8):
        pair_index(sTmp,s_)
        a(f"s_lshl_b32 {sTmp}, {sTmp}, {20 if CT else 12}")
        a(f"buffer_load_dwordx2 {RECP[2*s_:2*s_+2]}, {vT0}, {sW}, {sTmp} offen{LD}")
    a(f"v_lshlrev_b32 {vT2}, 1, {vL}")
    a(f"v_and_b32 {vT2}, 62, {vT2}")
    a("s_load_dwordx2 s[98:99], s[0:1], 48")
    a.c("node-update weights (transposed reads of raw w_h), waves 0..3 use them")
    a(f"s_and_b32 {sTmp}, {sWave}, 1")
    a(f"s_lshl_b32 {sTmp}, {sTmp}, 6")
    a(f"s_add_u32 {sTmp}, {sTmp}, {L_HST}")
    a(f"v_add_u32 {vT1}, {sTmp}, {vTRW}")
    for s_ in range(8):
        for th in range(2):
            a(f"ds_read_b64_tr_b16 {WH[4*s_+2*th:4*s_+2*th+2]}, {vT1} offset:{s_*2048+th*512}")
            if (2*s_+th)==7: a("s_waitcnt lgkmcnt(0)")
    srd(a,sT4,"s98","s99",128)
    a(f"v_mov_b32 {WX[0]}, 0")
    a(f"v_mov_b32 {WX[1]}, 0")
    a(f"buffer_load_short_d16_hi {WX[0]}, {vT2}, {sT4}, 0 offen")
    a(f"buffer_load_short_d16_hi {WX[1]}, {vT2}, {sT4}, 0 offen offset:64")
    a("s_waitcnt vmcnt(2)")
    stamp(a,opt,5)
    a(f"s_mov_b64 {sAny}, 0")
    for s_ in range(16):
        a(f"v_cmp_gt_u32 {sMask[s_]}, {sMark}, {REC[s_]}")
        if s_<8:
            a(f"v_cmp_eq_u32 vcc, {sMark}, {REC[s_]}")
        a(f"v_lshrrev_b32 {WAD[s_]}, 27, {REC[s_]}")
        a(f"v_and_b32 {WAD[s_]}, 0x1c, {WAD[s_]}")
        if s_<8: a(f"s_or_b64 {sAny}, {sAny}, vcc")
    order=[x for p in range(8) for x in (p,8+p)]
    for n_,s_ in enumerate(order):
        a(f"s_mov_b64 exec, {sMask[s_]}")
        if s_>=8: a(f"s_cbranch_execz K2_A{s_}")
        a(f"ds_add_rtn_u32 {RK[s_]}, {WAD[s_]}, {vOne} offset:{L_CNT}")
        if s_>=8: a.label(f"K2_A{s_}")
        if n_==7:
            a("s_waitcnt lgkmcnt(4)")
    a("s_mov_b64 exec, -1")
    FL=A2R
    def flg2_loads():
        a(f"s_mov_b32 {sTmp2}, {FLG2}")
        for k in range(4): a(f"buffer_load_dword {FL[k]}, {vL16}, {sW}, {sTmp2} offen offset:{1024*k} sc1")
        a(f"s_mov_b32 {sTmp2}, {FLG2+4096}")
        for k in range(4): a(f"buffer_load_dword {FL[4+k]}, {vL16}, {sW}, {sTmp2} offen offset:{1024*k} sc1")
    a(f"s_cmp_lg_u32 {sWave}, 1")
    a("s_cbranch_scc1 K2_NOF2A")
    a.c("wave 1: flags of the source-node table (checked before barrier 2)")
    flg2_loads()
    a(f"ds_read_b32 {aE}, {vZ[0]} offset:{L_NRES+8}")
    a.label("K2_NOF2A")
    a(f"s_lshl_b32 {sTmp}, {sWave}, 2")
    a(f"v_lshrrev_b32 {vT0}, 4, {vL}")
    a(f"v_add_u32 {vT0}, {sTmp}, {vT0}")
    a(f"v_mul_u32_u24 {vT0}, {CH}, {vT0}")
    a(f"v_mov_b32 {vT1}, {L_L0}")
    a(f"v_mov_b32 {vT2}, {L_L1}")
    a("s_waitcnt lgkmcnt(0)")
    for s_ in order:
        a(f"s_mov_b64 exec, {sMask[s_]}")
        if s_>=8: a(f"s_cbranch_execz K2_B{s_}")
        pair_index(sTmp,s_&7)
        a(f"s_mul_i32 {sTmp}, {sTmp}, {32*CH}")
        a(f"v_min_u32 {RK[s_]}, {CAPX-1}, {RK[s_]}")
        a(f"v_and_b32 {vT3}, 0xfff, {REC[s_]}")
        a(f"v_mad_u32_u24 {RK[s_]}, {WAD[s_]}, {sCAPq}, {RK[s_]}")
        a(f"v_add3_u32 {vT3}, {vT3}, {vT0}, {sTmp}")
        a(f"v_bfe_u32 {vJ}, {REC[s_]}, 26, 3")
        a(f"v_lshl_add_u32 {AD[0]}, {RK[s_]}, 2, {vT1}")
        a(f"v_lshl_or_b32 {vT3}, {vT3}, 5, {vJ}")
        a(f"v_lshl_add_u32 {AD[1]}, {RK[s_]}, 1, {vT2}")
        a(f"v_bfe_u32 {vJ}, {REC[s_]}, 12, 14")
        a(f"ds_write_b32 {AD[0]}, {vT3}")
        a(f"ds_write_b16 {AD[1]}, {vJ}")
        if s_>=8: a.label(f"K2_B{s_}")
    a("s_mov_b64 exec, -1")
    NE=opt.get('epf',0)
    if NE:
        a.c("L2 warm-up of the e_attr lines of the first records (speed only; results are never read)")
        a(f"s_lshl_b32 {sTmp}, {sWave}, 2")
        a(f"v_lshrrev_b32 {vT0}, 4, {vL}")
        a(f"v_add_u32 {vT0}, {sTmp}, {vT0}")
        a(f"v_mul_u32_u24 {vT0}, {CH}, {vT0}")
        a(f"v_mov_b32 {vT2}, 0x2000000")
        for k in range(NE):
            a(f"v_cmp_gt_u32 vcc, {sMark}, {REC[k]}")
            a(f"v_and_b32 {vT1}, 0xfff, {REC[k]}")
            pair_index(sTmp,k)
            a(f"s_mul_i32 {sTmp}, {sTmp}, {32*CH}")
            a(f"v_add3_u32 {vT1}, {vT1}, {vT0}, {sTmp}")
            a(f"v_cndmask_b32 {vT1}, {vT2}, {vT1}, vcc")
            a(f"v_lshlrev_b32 {vT1}, 5, {vT1}")
            a(f"buffer_load_dword {vDUM}, {vT1}, {sE}, 0 offen")
    a.c("overflowed cells -> rescan list (rare)")
    a(f"s_cmp_eq_u64 {sAny}, 0")
    a("s_cbranch_scc1 K2_NOMARK")
    a(f"v_lshrrev_b32 {vT0}, 4, {vL}")
    a(f"s_lshl_b32 {sTmp}, {sWave}, 2")
    a(f"v_add_u32 {vT0}, {sTmp}, {vT0}")
    a(f"v_mov_b32 {vT1}, {L_NRES}")
    for s_ in range(8):
        a(f"v_cmp_eq_u32 vcc, {sMark}, {REC[s_]}")
        a(f"s_and_saveexec_b64 {sSave}, vcc")
        a(f"s_cbranch_execz K2_MK{s_}")
        a(f"ds_add_rtn_u32 {vT2}, {vT1}, {vOne}")
        pair_index(sTmp,s_)
        a(f"s_lshl_b32 {sTmp}, {sTmp}, 5")
        a(f"v_add_u32 {vT3}, {sTmp}, {vT0}")
        a("s_waitcnt lgkmcnt(0)")
        a(f"v_lshlrev_b32 {vT2}, 2, {vT2}")
        a(f"ds_write_b32 {vT2}, {vT3} offset:{L_RES}")
        a.label(f"K2_MK{s_}")
        a(f"s_mov_b64 exec, {sSave}")
    a.label("K2_NOMARK")
    a("s_load_dwordx2 s[64:65], s[0:1], 0")
    a("s_waitcnt vmcnt(0) lgkmcnt(0)")
    a(f"s_cmp_lg_u32 {sWave}, 1")
    a("s_cbranch_scc1 K2_NOF2B")
    a(f"v_readfirstlane_b32 {sNonce}, {aE}")
    a(f"s_mov_b32 {sPoll}, 0")
    a("s_nop 1")
    a.label("K2_F2CHK")
    a(f"v_cmp_eq_u32 {sAny}, {sNonce}, {FL[0]}")
    for k in range(1,8):
        a(f"v_cmp_eq_u32 vcc, {sNonce}, {FL[k]}")
        a("s_nop 1")
        a(f"s_and_b64 {sAny}, {sAny}, vcc")
    a(f"s_cmp_eq_u64 {sAny}, -1")
    a("s_cbranch_scc1 K2_NOF2B")
    a(f"s_add_u32 {sPoll}, {sPoll}, 1")
    a(f"s_cmp_gt_u32 {sPoll}, 200000")
    a("s_cbranch_scc1 K2_NOF2B")
    flg2_loads()
    a("s_waitcnt vmcnt(0)")
    a("s_branch K2_F2CHK")
    a.label("K2_NOF2B")
    srd(a,sHs,"s64","s65",N*128)
    a(f"s_mov_b32 {sTmp}, {NEG_LN2}")
    a(f"v_mul_f32 {WX[0]}, {sTmp}, {WX[0]}")
    a(f"v_mul_f32 {WX[1]}, {sTmp}, {WX[1]}")
    stamp(a,opt,6)
    a("s_barrier")
    stamp(a,opt,7)
    a.c("window sizes (lane = pair i,k) and the rescan count")
    a(f"v_mov_b32 {vT0}, {L_NRES}")
    a(f"ds_read_b32 {vT1}, {vT0}")
    a(f"ds_read_b32 {vT2}, {aOH} offset:{L_CNT}")
    a(f"ds_read_b32 {vT3}, {SS} offset:{L_CNT}")
    a("s_waitcnt lgkmcnt(0)")
    a(f"v_readfirstlane_b32 {sNR}, {vT1}")
    a(f"v_min_u32 {vT0}, 0xffffff, {vT2}")
    a(f"v_min_u32 {vJ}, 0xffffff, {vT3}")
    a(f"s_cmp_eq_u32 {sNR}, 0")
    a("s_cbranch_scc1 K2_CHECK")
    a(f"s_min_u32 {sNR}, {sNR}, 256")
    a(f"s_mov_b32 {sI}, 0")
    a.label("K2_RESCAN_I")
    a(f"s_lshl_b32 {sTmp}, {sI}, 2")
    a(f"s_add_u32 {sTmp}, {sTmp}, {L_RES}")
    a(f"v_mov_b32 {vT0}, {sTmp}")
    a(f"ds_read_b32 {vT1}, {vT0}")
    a("s_waitcnt lgkmcnt(0)")
    a(f"v_readfirstlane_b32 {sWsrc}, {vT1}")
    a("s_nop 3")
    a(f"s_min_u32 {sWsrc}, {sWsrc}, 255")
    a(f"s_mov_b32 {sC}, 0")
    a.label("K2_RESCAN_C")
    def append_raw(lim_local):
        a(f"v_lshlrev_b32 {vT1}, 2, {vT0}")
        a(f"buffer_load_dword {AD[0]}, {vT1}, {sD}, 0 offen")
        a(f"buffer_load_dword {AD[1]}, {vT1}, {sS}, 0 offen")
        a("s_waitcnt vmcnt(0)")
        a(f"v_mul_hi_u32 {vT2}, {AD[0]}, {sK}")
        a(f"v_lshrrev_b32 {vT3}, 3, {vT2}")
        a(f"v_cmp_eq_u32 vcc, s2, {vT3}")
        a("s_nop 1")
        a(f"s_and_b64 vcc, vcc, {sAny}")
        a(f"s_and_saveexec_b64 {sSave}, vcc")
        a(f"s_cbranch_execz {lim_local}")
        a(f"v_mad_u32_u24 {vT3}, {vT2}, {s3125}, {v511}")
        a(f"v_and_b32 {vT2}, 7, {vT2}")
        a(f"v_lshrrev_b32 {vT3}, 9, {vT3}")
        a(f"v_lshlrev_b32 {vT2}, 2, {vT2}")
        a(f"v_sub_u32 {vT3}, {AD[0]}, {vT3}")
        a(f"ds_add_rtn_u32 {AD[2]}, {vT2}, {vOne} offset:{L_CNT}")
        a(f"v_lshl_or_b32 {vT0}, {vT0}, 5, {vT3}")
        a("s_waitcnt lgkmcnt(0)")
        a(f"v_min_u32 {AD[2]}, {CAPX-1}, {AD[2]}")
        a(f"v_mad_u32_u24 {AD[2]}, {vT2}, {sCAPq}, {AD[2]}")
        a(f"v_mov_b32 {vT2}, {L_L0}")
        a(f"v_mov_b32 {vT3}, {L_L1}")
        a(f"v_lshl_add_u32 {vT2}, {AD[2]}, 2, {vT2}")
        a(f"v_lshl_add_u32 {vT3}, {AD[2]}, 1, {vT3}")
        a(f"ds_write_b32 {vT2}, {vT0}")
        a(f"ds_write_b16 {vT3}, {AD[1]}")
        a.label(lim_local)
        a(f"s_mov_b64 exec, {sSave}")
    a(f"s_lshl_b32 {sTmp}, {sC}, 9")
    a(f"v_add_u32 {vT1}, {sTmp}, v0")
    a(f"s_mul_i32 {sTmp2}, {sWsrc}, {CH}")
    a(f"v_add_u32 {vT0}, {sTmp2}, {vT1}")
    a(f"v_cmp_gt_u32 vcc, {CH}, {vT1}")
    a(f"s_mov_b32 {sTmp}, {E}")
    a(f"v_cmp_gt_u32 {sAny}, {sTmp}, {vT0}")
    a("s_nop 1")
    a(f"s_and_b64 {sAny}, {sAny}, vcc")
    append_raw("K2_RA1")
    a(f"s_add_u32 {sC}, {sC}, 1")
    a(f"s_cmp_lt_u32 {sC}, 7")
    a("s_cbranch_scc1 K2_RESCAN_C")
    a(f"s_add_u32 {sI}, {sI}, 1")
    a(f"s_cmp_lt_u32 {sI}, {sNR}")
    a("s_cbranch_scc1 K2_RESCAN_I")
    a("s_waitcnt lgkmcnt(0)")
    a("s_barrier")
    a(f"ds_read_b32 {vT2}, {aOH} offset:{L_CNT}")
    a(f"ds_read_b32 {vT3}, {SS} offset:{L_CNT}")
    a("s_waitcnt lgkmcnt(0)")
    a(f"v_min_u32 {vT0}, 0xffffff, {vT2}")
    a(f"v_min_u32 {vJ}, 0xffffff, {vT3}")
    a.label("K2_CHECK")
    a.c("window assignment by size rank")
    a(f"v_lshl_or_b32 {vT0}, {vT0}, 3, {aPS}")
    a(f"v_lshl_or_b32 {vJ}, {vJ}, 3, {aPD}")
    a(f"v_cmp_lt_u32 {sAny}, {sCAP}, {vT3}")
    a(f"v_cmp_gt_u32 vcc, {vJ}, {vT0}")
    a(f"s_mov_b32 {sWin}, 0")
    a("s_nop 2")
    for i in range(8):
        a(f"s_bfe_u32 {sTmp}, {'vcc_lo' if i<4 else 'vcc_hi'}, {(8<<16)|(8*(i&3))}")
        a(f"s_bcnt1_i32_b32 {sTmp}, {sTmp}")
        a(f"s_cmp_eq_u32 {sTmp}, {sTgt}")
        a(f"s_cselect_b32 {sWin}, {i}, {sWin}")
    if opt.get('nobal',0): a(f"s_mov_b32 {sWin}, {sWave}")
    a(f"s_lshl_b32 {sTmp}, {sWin}, 3")
    a(f"v_readlane_b32 {sCnt}, {vT2}, {sTmp}")
    geometry(sWin)
    a(f"s_lshl_b32 {sTmp}, {sWin}, 11")
    a(f"v_add_u32 {vE64}, {sTmp}, {vE64}")
    a(f"v_add_u32 {vTR}, {sTmp}, {vTR}")
    a(f"s_add_u32 {sTmp}, {sTmp}, {L_A2}")
    a(f"v_lshl_add_u32 {vT0}, {vL}, 5, {sTmp}")
    a(f"ds_read_b128 {WA[0:4]}, {vT0}")
    a(f"ds_read_b128 {WA[4:8]}, {vT0} offset:16")
    for i in range(4): a(f"v_mov_b32 {A2R[i]}, 0")
    a(f"ds_write_b128 {vT0}, {A2R[0:4]}")
    a(f"ds_write_b128 {vT0}, {A2R[0:4]} offset:16")
    a(f"s_cmp_eq_u64 {sAny}, 0")
    a("s_cbranch_scc1 K2_MAIN")
    a.c("generic (slow) mode: raw scan of all edges, 512 per round")
    a(f"s_mov_b32 {sMode}, 1")
    a.label("K2_GEN")
    a("s_barrier")
    a(f"s_cmp_lg_u32 {sWave}, 0")
    a("s_cbranch_scc1 K2_GEN1")
    a(f"v_and_b32 {vT0}, 7, {vL}")
    a(f"v_lshlrev_b32 {vT0}, 2, {vT0}")
    a(f"ds_write_b32 {vT0}, {vZ[0]} offset:{L_CNT}")
    a("s_waitcnt lgkmcnt(0)")
    a.label("K2_GEN1")
    a("s_barrier")
    a(f"s_lshl_b32 {sTmp}, {sChunk}, 9")
    a(f"v_add_u32 {vT0}, {sTmp}, v0")
    a(f"s_mov_b32 {sTmp}, {E}")
    a(f"v_cmp_gt_u32 {sAny}, {sTmp}, {vT0}")
    a("s_nop 1")
    append_raw("K2_RA2")
    a("s_waitcnt lgkmcnt(0)")
    a("s_barrier")
    a(f"s_lshl_b32 {sTmp}, {sWin}, 2")
    a(f"v_mov_b32 {vT0}, {sTmp}")
    a(f"ds_read_b32 {vT1}, {vT0} offset:{L_CNT}")
    a("s_waitcnt lgkmcnt(0)")
    a(f"v_readfirstlane_b32 {sCnt}, {vT1}")
    a("s_nop 3")
    a.label("K2_MAIN")
    if opt.get('dbgfill',0): stamp(a,opt,14)
    a(f"s_min_u32 {sCnt}, {sCnt}, {CAP}")
    a(f"s_add_u32 {sNT}, {sCnt}, 31")
    a(f"s_lshr_b32 {sNT}, {sNT}, 5")
    a(f"s_cmp_eq_u32 {sNT}, 0")
    a("s_cbranch_scc1 K2_MAIN_DONE")
    a(f"s_mul_i32 {sTmp}, {sWin}, {CAPX*4}")
    a(f"s_add_u32 {sTmp}, {sTmp}, {L_L0}")
    a(f"s_mul_i32 {sTmp2}, {sWin}, {CAPX*2}")
    a(f"s_add_u32 {sTmp2}, {sTmp2}, {L_L1}")
    a(f"v_and_b32 {vT0}, 31, {vL}")
    a(f"v_lshl_add_u32 {aL0}, {vT0}, 2, {sTmp}")
    a(f"v_lshl_add_u32 {aL1s}, {vT0}, 1, {sTmp2}")
    a(f"v_lshrrev_b32 {vT0}, 3, {vL}")
    a(f"v_lshl_add_u32 {aL1d}, {vT0}, 3, {sTmp2}")
    def pad():
        a(f"v_add_u32 {vT0}, {sCnt}, {vL}")
        a(f"v_lshl_add_u32 {vT1}, {vT0}, 2, {sTmp}")
        a(f"v_lshl_add_u32 {vT2}, {vT0}, 1, {sTmp2}")
        a(f"v_mov_b32 {vJ}, 7")
        a(f"ds_write_b32 {vT1}, {vJ}")
        a(f"ds_write_b16 {vT2}, {vZ[0]}")
        a(f"ds_write_b32 {vT1}, {vJ} offset:256")
        a(f"ds_write_b16 {vT2}, {vZ[0]} offset:128")
    def first_reads():
        a(f"ds_read_b32 {vT3}, {aL0}")
        a(f"ds_read_b64 {SD}, {aL1d}")
        a(f"ds_read_b32 {LE[1]}, {aL0} offset:128")
        a(f"ds_read_b32 {LE[0]}, {aL0} offset:256")
        a(f"ds_read_u16 {SS}, {aL1s}")
    a(f"s_cmp_ge_u32 {sCnt}, 96")
    a("s_cbranch_scc1 K2_FILL_BIG")
    pad()
    first_reads()
    a("s_waitcnt lgkmcnt(0)")
    a("s_branch K2_FILL")
    a.label("K2_FILL_BIG")
    first_reads()
    pad()
    a("s_waitcnt lgkmcnt(4)")
    a.label("K2_FILL")
    ENT=['',' nt',' sc1',' sc0 sc1',' sc0',' sc0 nt',' sc1 nt',' sc0 sc1 nt'][opt.get('e_nt',0)]
    def E_addr(le): a(f"v_and_or_b32 {aE}, {le}, {sMaskE}, {vHOFF}")
    def E_load(p): a(f"buffer_load_dwordx4 {EA[p]}, {aE}, {sE}, 0 offen{ENT}")
    def H_addr():
        if opt.get('hmask',0):
            a(f"v_and_b32 {SD[0]}, 0x03ff03ff, {SD[0]}"); a(f"v_and_b32 {SD[1]}, 0x03ff03ff, {SD[1]}")
        for i in range(4):
            a(f"v_mad_u32_u16 {AD[i]}, {SD[i>>1]}, {s128}, {vKD[i]}"+(" op_sel:[1,0,0,0]" if i&1 else ""))
    def H_load(i):
        a(f"s_mov_b32 m0, {sM0[i]}")
        a("s_nop 0")
        a(f"buffer_load_dwordx4 {AD[i]}, {sB}, 0 offen{HLD} lds")
    def P_addr(le,par):
        a(f"v_and_b32 {vJ}, 7, {le}")
        a(f"v_mul_u32_u24 {aPS}, 6, {SS}")
        a(f"v_mad_u32_u24 {aPD}, {vJ}, 6, {sN06}")
        a(f"v_lshlrev_b32 {aOH}, 4, {vJ}")
        a(f"v_lshl_add_u32 {aA2[par]}, {vJ}, 3, {vE64}")
    def P_reads():
        for c in range(3): a(f"ds_read_u16_d16_hi {PS[c]}, {aPS} offset:{L_POS+2*c}")
        for c in range(3): a(f"ds_read_u16_d16_hi {PD[c]}, {aPD} offset:{L_POS+2*c}")
        a(f"ds_read_b128 {OH}, {aOH} offset:{L_OH}")
    def P_calc_list(par):
        return [f"v_sub_f32 {DX[0]}, {PD[0]}, {PS[0]}", f"v_sub_f32 {DX[1]}, {PD[1]}, {PS[1]}", f"v_sub_f32 {DX[2]}, {PD[2]}, {PS[2]}",
                f"v_mul_f32 {DD}, {DX[0]}, {DX[0]}", f"v_fmac_f32 {DD}, {DX[1]}, {DX[1]}", f"v_fmac_f32 {DD}, {DX[2]}, {DX[2]}",
                f"v_cvt_pk_bf16_f32 {E01[0]}, 1.0, {DX[0]}", f"v_cvt_pk_bf16_f32 {E01[1]}, {DX[1]}, {DX[2]}",
                f"v_cvt_pk_bf16_f32 {OH[3]}, {OH[3]}, {DD}",
                f"ds_write_b64 {aA2[par]}, {E01}"]
    def first_loads():
        E_addr(vT3); E_load(0)
        H_addr()
        for i in range(4): H_load(i)
        E_addr(LE[1]); E_load(1)
    def first_prep(readsd):
        P_addr(vT3,0); P_reads()
        if readsd:
            a(f"ds_read_b64 {SD}, {aL1d} offset:64")
        a(f"ds_read_u16 {SS}, {aL1s} offset:64")
        for i in range(16): a(f"v_mov_b32 {T[i]}, 0")
        for i in range(8): a(f"v_mov_b32 {A2R[i]}, 0")
        a("s_waitcnt lgkmcnt(0)")
        for ins in P_calc_list(0): a(ins)
    if opt.get('stagger',0):
        a.c("the younger partner prepares tile 0 first, so the older waves' first rows are requested ahead of it")
        a(f"s_cmp_ge_u32 {sWave}, 4")
        a("s_cbranch_scc1 K2_FILL_B")
    first_loads()
    if opt.get('dbgfill',0): stamp(a,opt,15)
    first_prep(True)
    if opt.get('stagger',0):
        a("s_branch K2_FILL_J")
        a.label("K2_FILL_B")
        first_prep(False)
        first_loads()
        a(f"ds_read_b64 {SD}, {aL1d} offset:64")
        a("s_waitcnt lgkmcnt(0)")
        a.label("K2_FILL_J")
    H_addr()
    P_addr(LE[1],1)
    E_addr(LE[0])
    a("s_waitcnt vmcnt(1)")
    for s_ in range(4): a(f"ds_read_b128 {HA[4*s_:4*s_+4]}, {vHA[s_]}")
    Da,Db=D1[0:16],D1[16:32]
    mfma(a,Da,OH,WA[0:4],"0")
    mfma(a,Da,EA[0],WE[0:4],Da)
    a("s_waitcnt lgkmcnt(0)")
    for i in range(4): H_load(i)
    mfma(a,Da,HA[0:4],ID[0:4],Da)
    mfma(a,Da,HA[4:8],ID[4:8],Da)
    a(f"s_mov_b32 {sT}, 0")
    stamp(a,opt,8)
    if DBG:
        a("s_memtime s[80:81]")
        a("s_waitcnt lgkmcnt(0)")
    a.nop(12)
    MADD=opt.get('madd',1)
    PB_=[0]; MF=[False]
    def prio(p):
        if PRIO: a(f"s_setprio {p+PB_[0] if PB_[0]>=0 else 3}")
    def Tsec(kind,x,p):
        Dx=D1[16*x:16*x+16]; o=1-x; Do=D1[16*o:16*o+16]; D2o=D2[16*o:16*o+16]
        prio(1)
        if kind=='X':
            ea = EA[p] if x==0 else EA[1-p]
            mfma(a,Do,OH,WA[4*o:4*o+4],"0")
            for i in range(8): a(f"v_cvt_pk_bf16_f32 {M[i]}, {T[2*i]}, {T[2*i+1]}")
            mfma(a,Do,ea,WE[4*o:4*o+4],Do)
            for i in range(16):
                if i==6:
                    if x==1: a("s_waitcnt lgkmcnt(2)")
                    mfma(a,D2o,A2R[0:4],M[0:4],D2o)
                a(f"v_exp_f32 {T[i]}, {Dx[i]}")
            if MADD:
                a("s_nop 1")
                mfma(a,T,ONE,ONE,T)
        else:
            hb = HA[8:16] if x==0 else HA[0:8]
            for i in range(16):
                if i==0: mfma(a,Do,hb[0:4],ID[0:4],Do)
                if i==5: mfma(a,Do,hb[4:8],ID[4:8],Do)
                if i==10: mfma(a,D2o,A2R[4:8],M[4:8],D2o)
                a(f"v_rcp_f32 {T[i]}, {T[i]}")
        prio(0)
    def tile(p):
        q=1-p
        Tsec('X',0,p)
        if not opt.get('e_late',0): E_load(p)
        else: a("s_nop 0")
        P_reads()
        a(f"ds_read_b64 {SD}, {aL1d} offset:{64*(p+2)}")
        if not MADD:
            for i in range(16): a(f"v_add_f32 {T[i]}, 1.0, {T[i]}")
        else:
            a.nop(2)
        Tsec('R',0,p)
        def mulsA():
            for i in range(16): a(f"v_mul_f32 {T[i]}, {Da[i]}, {T[i]}")
        if MF[0]: mulsA()
        a(f"s_waitcnt vmcnt({0 if opt.get('e_late',0) else 1}) lgkmcnt(0)")
        for s_ in range(4): a(f"ds_read_b128 {HA[4*s_:4*s_+4]}, {vHA[s_]}")
        for k in range(4): a(f"ds_read_b64_tr_b16 {A2R[2*k:2*k+2]}, {vTR} offset:{512*k}")
        a(f"ds_write_b64 {aA2[p]}, {vZ}")
        pc=P_calc_list(q)
        for ins in pc[:6]: a(ins)
        H_addr()
        if not MF[0]: mulsA()
        for ins in pc[6:]: a(ins)
        if MF[0]: a("s_nop 0")
        Tsec('X',1,p)
        a("s_waitcnt lgkmcnt(0)")
        if opt.get('e_late',0)==1: E_load(p)
        for i in range(4): H_load(i)
        a(f"ds_read_b32 {LE[q]}, {aL0} offset:{128*(p+3)}")
        a(f"ds_read_u16 {SS}, {aL1s} offset:{64*(p+2)}")
        if not MADD:
            for i in range(16): a(f"v_add_f32 {T[i]}, 1.0, {T[i]}")
        Tsec('R',1,p)
        def mulsB():
            for i in range(16): a(f"v_mul_f32 {T[i]}, {Db[i]}, {T[i]}")
        if MF[0]: mulsB()
        a("s_waitcnt lgkmcnt(0)")
        E_addr(LE[q])
        P_addr(LE[p],p)
        if p==1:
            a(f"v_add_u32 {aL0}, 256, {aL0}")
            a(f"v_add_u32 {aL1s}, 128, {aL1s}")
            a(f"v_add_u32 {aL1d}, 128, {aL1d}")
        if not MF[0]: mulsB()
    def drain(par):
        for i in range(8): a(f"v_cvt_pk_bf16_f32 {M[i]}, {T[2*i]}, {T[2*i+1]}")
        a(f"ds_write_b64 {aA2[par]}, {vZ}")
        a("s_nop 0")
        mfma(a,D2[16:32],A2R[0:4],M[0:4],D2[16:32])
        mfma(a,D2[16:32],A2R[4:8],M[4:8],D2[16:32])
    def main_loop(sfx):
        a(".p2align 6")
        a.label("K2_LOOP"+sfx)
        tile(0)
        a(f"s_add_u32 {sT}, {sT}, 1")
        a(f"s_cmp_ge_u32 {sT}, {sNT}")
        a("s_cbranch_scc1 K2_EXIT_ODD"+sfx)
        tile(1)
        a(f"s_add_u32 {sT}, {sT}, 1")
        a(f"s_cmp_lt_u32 {sT}, {sNT}")
        a("s_cbranch_scc1 K2_LOOP"+sfx)
        drain(0)
        a("s_branch K2_LOOP_DONE")
        a.label("K2_EXIT_ODD"+sfx)
        drain(1)
    HP=opt.get('mfirst',0)
    if HP==1:
        a.c("the younger partner (waves 4..7) opens its plain sections with the multiplies, so both partners' multiplies pair up")
        a(f"s_cmp_ge_u32 {sWave}, 4")
        a("s_cbranch_scc1 K2_LOOP_H")
    if HP==2: MF[0]=True
    main_loop("")
    if HP==1:
        a("s_branch K2_LOOP_DONE")
        MF[0]=True
        main_loop("_H")
        MF[0]=False
    a.label("K2_LOOP_DONE")
    if PRIO: a("s_setprio 0")
    a.label("K2_MAIN_DONE")
    stamp(a,opt,9)
    if DBG:
        a("s_memtime s[82:83]")
        a("s_waitcnt lgkmcnt(0)")
        a("s_sub_u32 s80, s82, s80")
        a(f"v_writelane_b32 {VDBG}, s80, 12")
        a(f"v_writelane_b32 {VDBG}, {sNT}, 11")
    a(f"s_cmp_eq_u32 {sMode}, 0")
    a("s_cbranch_scc1 K2_EPI")
    a("s_waitcnt vmcnt(0) lgkmcnt(0)")
    a(f"s_add_u32 {sChunk}, {sChunk}, 1")
    a(f"s_cmp_lt_u32 {sChunk}, {(E+511)//512}")
    a("s_cbranch_scc1 K2_GEN")
    a.label("K2_EPI")
    a.c("segment sums of this window: m_i (bf16) -> rows of this window's (now idle) A2 slice")
    a(f"s_lshl_b32 {sHST}, {sWin}, 11")
    a(f"s_add_u32 {sHST}, {sHST}, {L_A2}")
    a(f"v_and_b32 {vJ}, 31, {vL}")
    a(f"s_mov_b32 {sTmp}, {NEG_LN2}")
    a(f"v_lshrrev_b32 {vT2}, 5, {vL}")
    a(f"v_lshlrev_b32 {vT2}, 7, {vT2}")
    a(f"v_lshl_add_u32 {vT2}, {vJ}, 1, {vT2}")
    a(f"v_add_u32 {vT2}, {sHST}, {vT2}")
    a.nop(8)
    for qq in range(4):
        a(f"v_mul_f32 {AD[0]}, {sTmp}, {D2[4*qq]}")
        a(f"v_mul_f32 {AD[1]}, {sTmp}, {D2[16+4*qq]}")
        a(f"v_cvt_pk_bf16_f32 {AD[2]}, {AD[0]}, {AD[1]}")
        a(f"ds_write_b16 {vT2}, {AD[2]} offset:{qq*256}")
        a(f"ds_write_b16_d16_hi {vT2}, {AD[2]} offset:{qq*256+64}")
    def pos_part():
        a.c("coordinate update of this window")
        PP=T
        for qq in range(4):
            for c in range(1,4):
                r=PP[qq*3+c-1]
                a(f"v_mul_f32 {r}, {WX[0]}, {D2[4*qq+c]}")
                a(f"v_fmac_f32 {r}, {WX[1]}, {D2[16+4*qq+c]}")
        for sh in (1,2,4,8):
            for i in range(12): a(f"v_add_f32_dpp {PP[i]}, {PP[i]}, {PP[i]} row_shr:{sh} row_mask:0xf bank_mask:0xf bound_ctrl:0")
        for i in range(12): a(f"v_add_f32_dpp {PP[i]}, {PP[i]}, {PP[i]} row_bcast:15 row_mask:0xa bank_mask:0xf")
        a(f"v_lshrrev_b32 {vT2}, 5, {vL}")
        a(f"v_lshlrev_b32 {vT2}, 4, {vT2}")
        a(f"s_add_u32 {sTmp}, {sHST}, 1024")
        a(f"v_add_u32 {vT2}, {sTmp}, {vT2}")
        a("s_mov_b32 exec_lo, 0x80000000")
        a("s_mov_b32 exec_hi, 0x80000000")
        for qq in range(4):
            for c in range(3):
                a(f"ds_write_b32 {vT2}, {PP[qq*3+c]} offset:{qq*32+c*4}")
        a("s_mov_b64 exec, -1")
        a(f"v_mul_u32_u24 {vT2}, 86, {vL}")
        a(f"v_lshrrev_b32 {vT2}, 8, {vT2}")
        a(f"v_mul_u32_u24 {vT3}, 3, {vT2}")
        a(f"v_sub_u32 {vT3}, {vL}, {vT3}")
        a(f"v_lshlrev_b32 {vT2}, 4, {vT2}")
        a(f"v_lshl_add_u32 {vT2}, {vT3}, 2, {vT2}")
        a(f"v_add_u32 {vT2}, {sTmp}, {vT2}")
        a(f"v_min_u32 {vT2}, {LDS2-4}, {vT2}")
        a(f"ds_read_b32 {AD[0]}, {vT2}")
        a(f"v_lshl_add_u32 {vT3}, {vL}, 1, {sN06}")
        a(f"v_min_u32 {vT2}, {POS_SZ-2}, {vT3}")
        a(f"ds_read_u16_d16_hi {PS[0]}, {vT2} offset:{L_POS}")
        a(f"s_mul_i32 {sTmp}, {sNJ}, 3")
        a(f"v_cmp_gt_u32 vcc, {sTmp}, {vL}")
        a(f"v_add_u32 {vT3}, {OUT_POS}, {vT3}")
        a(f"v_mov_b32 {vT2}, 0x40000000")
        a("s_waitcnt lgkmcnt(0)")
        a(f"v_cndmask_b32 {vT3}, {vT2}, {vT3}, vcc")
        a(f"v_add_f32 {AD[0]}, {AD[0]}, {PS[0]}")
        a(f"v_cvt_pk_bf16_f32 {AD[0]}, {AD[0]}, {AD[0]}")
        a(f"buffer_store_short {AD[0]}, {vT3}, {sO}, 0 offen{OST}")
    a.c("job waves 4..7: row tile r = (v-4)>>1 (rows = window 4r + (m>>3), node m&7), feature half x = v&1")
    a(f"s_cmp_lt_u32 {sWave}, 4")
    a("s_cbranch_scc1 K2_EPI_NOJOB")
    a(f"s_sub_u32 {sTmp2}, {sWave}, 4")
    a(f"s_lshr_b32 {sTmp2}, {sTmp2}, 1")
    a(f"s_lshl_b32 {sTmp2}, {sTmp2}, 2")
    a(f"v_bfe_u32 {vT0}, {vL}, 3, 2")
    a(f"v_add_u32 {vT0}, {sTmp2}, {vT0}")
    a(f"v_and_b32 {vJ}, 7, {vL}")
    a(f"v_lshlrev_b32 {aL1d}, 11, {vT0}")
    a(f"v_lshl_add_u32 {aL1d}, {vJ}, 7, {aL1d}")
    a(f"v_add_u32 {aL1d}, {L_A2}, {aL1d}")
    a(f"v_add_u32 {aL1d}, {aL1d}, {vHOFF}")
    a(f"s_lshl_b32 {sTmp2}, s2, 3")
    a(f"v_add_u32 {vT0}, {sTmp2}, {vT0}")
    a(f"v_mad_u32_u24 {SD[0]}, {vT0}, {s3125}, {v511}")
    a(f"v_add_u32 {SD[1]}, 3125, {SD[0]}")
    a(f"v_lshrrev_b32 {SD[0]}, 9, {SD[0]}")
    a(f"v_lshrrev_b32 {SD[1]}, 9, {SD[1]}")
    a(f"v_sub_u32 {SD[1]}, {SD[1]}, {SD[0]}")
    a(f"v_cmp_lt_u32 vcc, {vJ}, {SD[1]}")
    a(f"v_add_u32 {vT1}, -1, {SD[1]}")
    a(f"v_min_u32 {vT1}, {vT1}, {vJ}")
    a(f"v_add_u32 {vT1}, {SD[0]}, {vT1}")
    a(f"v_lshlrev_b32 {vT1}, 7, {vT1}")
    a(f"v_add_u32 {vT0}, {vT1}, {vHOFF}")
    for s_ in range(4):
        a(f"buffer_load_dwordx4 {HA[4*s_:4*s_+4]}, {vT0}, {sHs}, 0 offen offset:{32*s_}")
    a(f"s_and_b32 {sTmp2}, {sWave}, 1")
    a(f"s_lshl_b32 {sTmp2}, {sTmp2}, 6")
    a(f"v_lshrrev_b32 {vT0}, 1, {vHOFF}")
    a(f"v_add3_u32 {aL0}, {vT1}, {vT0}, {sTmp2}")
    for qq in range(4):
        a(f"buffer_load_dwordx2 {M[2*qq:2*qq+2]}, {aL0}, {sHs}, 0 offen offset:{16*qq}")
    a(f"v_mov_b32 {vT0}, 0x40000000")
    a(f"v_cndmask_b32 {aL1s}, {vT0}, {aL0}, vcc")
    pos_part()
    HV=D2[0:16]
    a("s_waitcnt vmcnt(1)")
    for s_ in range(4):
        mfma(a,D1[0:16],WH[4*s_:4*s_+4],HA[4*s_:4*s_+4],"0" if s_==0 else D1[0:16])
    for qq in range(4):
        a(f"v_lshlrev_b32 {HV[4*qq]}, 16, {M[2*qq]}")
        a(f"v_and_b32 {HV[4*qq+1]}, 0xffff0000, {M[2*qq]}")
        a(f"v_lshlrev_b32 {HV[4*qq+2]}, 16, {M[2*qq+1]}")
        a(f"v_and_b32 {HV[4*qq+3]}, 0xffff0000, {M[2*qq+1]}")
    stamp(a,opt,10)
    a("s_barrier")
    MA=[EA[0],EA[1],A2R[0:4],A2R[4:8]]
    for s_ in range(4): a(f"ds_read_b128 {MA[s_]}, {aL1d} offset:{32*s_}")
    for s_ in range(4):
        a(f"s_waitcnt lgkmcnt({3-s_})")
        mfma(a,D1[0:16],WH[16+4*s_:20+4*s_],MA[s_],D1[0:16])
    a(f"s_mov_b32 {sTmp}, {NEG_LOG2E}")
    a.nop(14)
    X=D1[0:16]
    for i in range(16): a(f"v_mul_f32 {T[i]}, {sTmp}, {X[i]}")
    for i in range(16): a(f"v_exp_f32 {T[i]}, {T[i]}")
    for i in range(16): a(f"v_add_f32 {T[i]}, 1.0, {T[i]}")
    for i in range(16): a(f"v_rcp_f32 {T[i]}, {T[i]}")
    a("s_nop 0")
    for i in range(16): a(f"v_fma_f32 {T[i]}, {X[i]}, {T[i]}, {HV[i]}")
    for qq in range(4):
        a(f"v_cvt_pk_bf16_f32 {M[2*qq]}, {T[4*qq]}, {T[4*qq+1]}")
        a(f"v_cvt_pk_bf16_f32 {M[2*qq+1]}, {T[4*qq+2]}, {T[4*qq+3]}")
        a(f"buffer_store_dwordx2 {M[2*qq:2*qq+2]}, {aL1s}, {sO}, 0 offen offset:{16*qq}{OST}")
    a("s_branch K2_FIN")
    a.label("K2_EPI_NOJOB")
    a("s_waitcnt lgkmcnt(0)")
    stamp(a,opt,10)
    a("s_barrier")
    pos_part()
    a.label("K2_FIN")
    if DBG:
        a("s_waitcnt vmcnt(0)")
        stamp(a,opt,13)
        a(f"s_lshl_b32 {sTmp}, s2, 4")
        a(f"s_add_u32 {sTmp}, {sTmp}, {sWave}")
        a(f"s_lshl_b32 {sTmp}, {sTmp}, 6")
        a(f"s_add_u32 {sTmp}, {sTmp}, {DBG_OFF}")
        a(f"v_lshlrev_b32 {vT0}, 2, {vL}")
        a("s_mov_b32 exec_lo, 0xffff")
        a("s_mov_b32 exec_hi, 0")
        a(f"buffer_store_dword {VDBG}, {vT0}, {sW}, {sTmp} offen")
        a("s_waitcnt vmcnt(0)")
    a.label("K_END")
    a("s_endpgm")
    a.label("K_CODE_END")
    return nv

HEADER='''; Kernarg layout (88 bytes, ptrs only): h, pos, e_attr, src, dst, w_e, w_x, w_h, out, debug, ws
; @launch grid=(256,1,1) block=(512,1,1) lds={lds2}
.amdgcn_target "amdgcn-amd-amdhsa--gfx950"
.text
.globl {k}
.p2align 8
.type {k},@function
'''
def kd(name,nv,ns):
    acc=(nv+3)//4*4
    return f'''.amdhsa_kernel {name}
  .amdhsa_next_free_vgpr {acc}
  .amdhsa_next_free_sgpr {ns}
  .amdhsa_accum_offset {acc}
  .amdhsa_group_segment_fixed_size 0
  .amdhsa_kernarg_size 88
  .amdhsa_user_sgpr_count 2
  .amdhsa_user_sgpr_kernarg_segment_ptr 1
  .amdhsa_system_sgpr_workgroup_id_x 1
  .amdhsa_float_denorm_mode_32 3
.end_amdhsa_kernel
'''
def build(opt):
    out=HEADER.format(lds2=LDS2,k=KNAME)
    a=Asm()
    nv=gen(a,opt)
    assert nv<=255
    out+=a.text()
    out+='.section .rodata,"a"\n.p2align 6\n'+kd(KNAME,256,102)
    return out,nv
if __name__=="__main__":
    opt={}
    for arg in sys.argv[2:]:
        k,v=arg.split('='); opt[k]=int(v)
    txt,nv=build(opt)
    open(sys.argv[1],'w').write(txt)
    print("vgprs:",nv,"LDS",LDS2,"lines",txt.count("\n"),"WS",WS_BYTES)
```

```python
import sys, struct
from asmlib import *

N=12500; E=800000; CH=3136; NSRC=256; NBIN=256; NPW=49
KW=703687442
LOG2E=1.4426950408889634; LN2=0.6931471805599453
def f2u(x): return struct.unpack('<I',struct.pack('<f',x))[0]
NEG_LOG2E=f2u(-LOG2E); NEG_LN2=f2u(-LN2)
SENT=0xFFFFFFFF; MARK=0xFFFFFFFE
CELLS=0; BPT=NBIN*NSRC*128; FLG=BPT+N*128+((-N*128)%4096); FLG2=FLG+4096; WS_BYTES=FLG2+8192
OUT_BYTES=N*64*2+N*3*2; OUT_POS=N*64*2
CAP=576; CAPX=704
L_OH=0; L_CNT=128; L_NRES=160; L_WIN=192; L_RES=256; L_POS=1280; POS_SZ=74*1024
L_L0=L_POS+POS_SZ; L_L1=L_L0+8*CAPX*4; L_A2=L_L1+8*CAPX*2; L_HST=L_A2+8*2048; LDS2=L_HST+8*4096
assert LDS2<=163840, LDS2
L_RAWW=L_L0; L_BST=L_L0+19*1024; assert L_BST+2*32*144<=L_A2
DBG_OFF=16*1024*1024

def WSB(opt): return (32*1024*1024 if opt.get('dbg',0) else WS_BYTES)
def srd(a, s, lo, hi, size):
    a(f"s_mov_b32 {s[0]}, {lo}")
    a(f"s_and_b32 {s[1]}, {hi}, 0xffff")
    a(f"s_mov_b32 {s[2]}, {size}")
    a(f"s_mov_b32 {s[3]}, 0x20000")
VDBG="v255"
def stamp(a,opt,idx):
    if not opt.get('dbg',0): return
    a("s_memrealtime s[100:101]")
    a("s_waitcnt lgkmcnt(0)")
    a(f"v_writelane_b32 {VDBG}, s100, {idx}")
def S(i,n=1): return R('s',i,n)
def V(i,n=1): return R('v',i,n)
def mfma(a,d,A,B,c): a(f"v_mfma_f32_32x32x16_bf16 {d}, {A}, {B}, {c}")

NPOS1=24
KNAME="gather_scatter__cheap_equivariant_egnn__graph_kernel"
def gen(a, opt):
    DBG=opt.get('dbg',0)
    PRIO=opt.get('prio',1)
    ST=" sc1"; LD=" sc1" if opt.get('ld_sc1',1) else ""
    HLD=[""," sc1"," sc0 sc1"," sc1 nt"," sc0 sc1 nt"][opt.get('h_sc1',1)]
    SNT=" nt" if opt.get('snt',0) else ""
    OST=[""," nt"," sc1"," sc0 sc1"][opt.get('ost',0)]
    a.label(KNAME)
    sB=S(4,4); sE=S(8,4); sW=S(12,4); sO=S(16,4); sP=S(20,4); sS=S(24,4); sD=S(28,4)
    sWave=S(32); sN0=S(33); sNJ=S(34); sN06=S(35); sNT=S(36); sT=S(37); sMode=S(38); sChunk=S(39)
    sMaskE=S(40); s128=S(41); sK=S(42); s3125=S(43); sLim=S(44); sCAP=S(44); sCnt=S(45); sTmp=S(46); sTmp2=S(47)
    sM0=S(48,4); sSave=S(52,2); sAny=S(54,2); sNR=S(56); sI=S(57); sC=S(58); sWsrc=S(59); sMark=S(60); sCAPq=S(61); sHST=S(62); sTmp3=S(63)
    sMask=[S(64+2*i,2) for i in range(16)]
    sTagOff=S(36)
    sRot=S(39+0) if False else S(37)
    sWin=S(96); sTgt=S(97); sNonce=S(98); sPoll=S(99)
    sT4=S(84,4); sT4b=S(88,4); sT4c=S(92,4)
    sHw=S(48,4)
    sHs=S(68,4); sWx=S(72,4)
    vr=Regs(1,256,'v')
    vL=vr.alloc('lane')
    WE=vr.alloc('WE',8,4); WA=vr.alloc('WA',8,4); ID=vr.alloc('ID',8,4); D2=vr.alloc('D2',32,4)
    D1=vr.alloc('D1',32,4); HA=vr.alloc('HA',16,4); T=vr.alloc('T',16,4); M=vr.alloc('M',8,4)
    A2R=vr.alloc('A2R',8,4); EA=[vr.alloc('EA0',4,4),vr.alloc('EA1',4,4)]; OH=vr.alloc('OH',4,4)
    WH=vr.alloc('WH',32,4); ONE=vr.alloc('ONE',4,4)
    vHA=vr.alloc('vHA',4); vKD=vr.alloc('vKD',4); vTR=vr.alloc('vTR'); vE64=vr.alloc('vE64'); vHOFF=vr.alloc('vHOFF')
    vZ=vr.alloc('vZ',2,2); aL0=vr.alloc('aL0'); aL1s=vr.alloc('aL1s'); aL1d=vr.alloc('aL1d')
    LE=[vr.alloc('LE0'),vr.alloc('LE1')]; aA2=[vr.alloc('aA2_0'),vr.alloc('aA2_1')]
    SD=vr.alloc('SD',2,2); SS=vr.alloc('SS'); PS=vr.alloc('PS',3); PD=vr.alloc('PD',3)
    E01=vr.alloc('E01',2,2); DX=vr.alloc('DX',3); DD=vr.alloc('DD'); AD=vr.alloc('AD',4); vJ=vr.alloc('vJ')
    aE=vr.alloc('aE'); aPS=vr.alloc('aPS'); aPD=vr.alloc('aPD'); aOH=vr.alloc('aOH')
    vT0=vr.alloc('vT0'); vT1=vr.alloc('vT1'); vT2=vr.alloc('vT2'); vT3=vr.alloc('vT3')
    vOne=vr.alloc('vOne'); v511=vr.alloc('v511'); vTRW=vr.alloc('vTRW'); vL16=vr.alloc('vL16'); WX=vr.alloc('WX',2); vDUM=vr.alloc('vDUM')
    nv=vr.next
    HW=T
    def geometry(win):
        a(f"s_lshl_b32 {sTmp}, s2, 3")
        a(f"s_add_u32 {sTmp}, {sTmp}, {win}")
        a(f"s_mul_i32 {sN0}, {sTmp}, 3125")
        a(f"s_add_u32 {sNJ}, {sN0}, {3125+511}")
        a(f"s_add_u32 {sN0}, {sN0}, 511")
        a(f"s_lshr_b32 {sN0}, {sN0}, 9")
        a(f"s_lshr_b32 {sNJ}, {sNJ}, 9")
        a(f"s_sub_u32 {sNJ}, {sNJ}, {sN0}")
        a(f"s_mul_i32 {sN06}, {sN0}, 6")
    def dma(vaddr,srd_,soff,ldsbase_const=None,ldsreg=None):
        pass

    def load_hwin():
        a.c("h rows of the natural window (A operand of h@W1; needed after barrier C)")
        a(f"v_bfe_u32 {vT0}, {vL}, 3, 1")
        a(f"v_and_b32 {vT2}, 3, {vL}")
        a(f"v_lshl_add_u32 {vT0}, {vT0}, 2, {vT2}")
        a(f"s_sub_u32 {sTmp}, {sNJ}, 1")
        a(f"v_min_u32 {vT0}, {sTmp}, {vT0}")
        a(f"v_add_u32 {vT0}, {sN0}, {vT0}")
        a(f"v_lshl_add_u32 {vT0}, {vT0}, 7, {vHOFF}")
        for s_ in range(4):
            a(f"buffer_load_dwordx4 {HW[4*s_:4*s_+4]}, {vT0}, {sHw}, 0 offen offset:{32*s_}")
    a("s_cmp_ge_u32 s2, 256")
    a("s_cbranch_scc1 K_END")
    a("s_load_dwordx4 s[64:67], s[0:1], 0")
    a("s_load_dwordx4 s[68:71], s[0:1], 16")
    a("s_load_dwordx4 s[72:75], s[0:1], 32")
    a("s_load_dwordx4 s[76:79], s[0:1], 64")
    a("s_load_dwordx2 s[80:81], s[0:1], 80")
    a(f"v_and_b32 {vL}, 63, v0")
    a(f"v_lshrrev_b32 {vT0}, 6, v0")
    a(f"v_lshlrev_b32 {vL16}, 4, {vL}")
    a(f"v_readfirstlane_b32 {sWave}, {vT0}")
    if opt.get('cpf',1):
        a.c("pull this workgroup's share of the kernel's own code into L2 (read only, speed only)")
        NL=opt.get('cpf_lines',8)
        a("s_getpc_b64 s[84:85]")
        a.label("K_PC")
        a("s_and_b32 s85, s85, 0xffff")
        a("s_mov_b32 s86, K_CODE_END-K_PC")
        a("s_mov_b32 s87, 0x20000")
        if opt.get('cpf',1)==1:
            a(f"s_lshr_b32 {sTmp}, s2, 3")
            a(f"s_and_b32 {sTmp}, {sTmp}, 31")
            a(f"s_mul_i32 {sTmp}, {sTmp}, {NL*128}")
            a(f"v_lshlrev_b32 {vT1}, 7, {vL}")
            a(f"v_add_u32 {vT1}, {sTmp}, {vT1}")
            a(f"s_cmp_lg_u32 {sWave}, 3")
            a("s_cbranch_scc1 K_NOCPF")
            a(f"s_mov_b32 exec_lo, {(1<<NL)-1}")
            a("s_mov_b32 exec_hi, 0")
            a(f"buffer_load_dword {vDUM}, {vT1}, s[84:87], 0 offen")
            a("s_mov_b64 exec, -1")
        elif opt.get('cpf',1)==2:
            a(f"s_mul_i32 {sTmp}, {sWave}, {24*128}")
            a(f"v_lshlrev_b32 {vT1}, 7, {vL}")
            a(f"v_add_u32 {vT1}, {sTmp}, {vT1}")
            a(f"s_mov_b32 exec_lo, {(1<<24)-1}")
            a("s_mov_b32 exec_hi, 0")
            a(f"buffer_load_dword {vDUM}, {vT1}, s[84:87], 0 offen")
            a("s_mov_b64 exec, -1")
        elif opt.get('cpf',1)==3:
            a(f"s_lshr_b32 {sTmp}, s2, 3")
            a(f"s_and_b32 {sTmp}, {sTmp}, 3")
            a(f"s_mul_i32 {sTmp}, {sTmp}, {48*128}")
            a(f"v_lshlrev_b32 {vT1}, 7, {vL}")
            a(f"v_add_u32 {vT1}, {sTmp}, {vT1}")
            a(f"s_cmp_lg_u32 {sWave}, 3")
            a("s_cbranch_scc1 K_NOCPF")
            a("s_mov_b32 exec_hi, 0xffff")
            a(f"buffer_load_dword {vDUM}, {vT1}, s[84:87], 0 offen")
            a("s_mov_b64 exec, -1")
        a.label("K_NOCPF")
    a(f"v_lshrrev_b32 {vT2}, 5, {vL}")
    a(f"v_lshlrev_b32 {vHOFF}, 4, {vT2}")
    a(f"v_mov_b32 {vZ[0]}, 0")
    a(f"v_mov_b32 {vZ[1]}, 0")
    geometry(sWave)
    a(f"s_mul_i32 {sTmp}, s2, {CH*4}")
    a(f"s_mul_i32 {sTmp2}, {sWave}, {384*4}")
    a(f"s_add_u32 {sTmp}, {sTmp}, {sTmp2}")
    a(f"v_lshl_add_u32 {vT0}, {vL}, 3, {sTmp}")
    a("s_waitcnt lgkmcnt(0)")
    stamp(a,opt,0)
    srd(a,sD,"s72","s73",E*4)
    srd(a,sS,"s70","s71",E*4)
    a.c("every wave: six edges per lane, local edge = 384v + 128k + 2l + u; wave 7 also takes edges 3072 + l")
    DS_=D1[0:7]; SR_=D1[8:15]
    for k in range(3): a(f"buffer_load_dwordx2 {D1[2*k:2*k+2]}, {vT0}, {sD}, 0 offen offset:{512*k}{SNT}")
    for k in range(3): a(f"buffer_load_dwordx2 {D1[8+2*k:10+2*k]}, {vT0}, {sS}, 0 offen offset:{512*k}{SNT}")
    srd(a,sT4,"s64","s65",N*128)
    srd(a,sHw,"s64","s65",N*128)
    srd(a,sT4b,"s74","s75",145*128)
    a(f"s_cmp_eq_u32 {sWave}, 7")
    a("s_cbranch_scc1 K_S_W7")
    a(f"s_cmp_eq_u32 {sWave}, 4")
    a("s_cbranch_scc1 K_S_W4")
    a(f"s_cmp_lt_u32 {sWave}, 5")
    a("s_cbranch_scc1 K_S_COMMON")
    a.c("waves 5,6: private raw W2 copy + h rows for the source-node table")
    a(f"s_sub_u32 {sI}, {sWave}, 5")
    a(f"s_lshl_b32 {sC}, {sI}, 13")
    a(f"s_add_u32 {sC}, {sC}, {L_A2}")
    for i in range(8):
        a(f"s_add_u32 {sTmp}, {sC}, {i*1024}")
        a(f"s_mov_b32 m0, {sTmp}")
        a(f"s_mov_b32 {sTmp2}, {8192+i*1024}")
        a(f"buffer_load_dwordx4 {vL16}, {sT4b}, {sTmp2} offen lds")
    a(f"s_mul_i32 {sTmp}, s2, {NPW}")
    a(f"s_lshl_b32 {sTmp2}, {sI}, 5")
    a(f"s_add_u32 {sTmp}, {sTmp}, {sTmp2}")
    a(f"v_and_b32 {vT0}, 31, {vL}")
    a(f"v_add_u32 {vT0}, {sTmp}, {vT0}")
    a(f"v_lshl_add_u32 {vT0}, {vT0}, 7, {vHOFF}")
    for s_ in range(4): a(f"buffer_load_dwordx4 {HA[4*s_:4*s_+4]}, {vT0}, {sT4}, 0 offen offset:{32*s_}")
    a("s_branch K_S_COMMON")
    a.label("K_S_W4")
    a.c("wave 4: this workgroup's share of the L2 warm-up of pos and w_h (speed only)")
    a("s_load_dwordx2 s[82:83], s[0:1], 56")
    srd(a,sP,"s66","s67",N*6)
    a(f"s_lshr_b32 {sTmp}, s2, 3")
    a(f"s_and_b32 {sTmp}, {sTmp}, 31")
    a(f"s_mul_i32 {sTmp2}, {sTmp}, {19*128}")
    a(f"v_lshlrev_b32 {vT0}, 7, {vL}")
    a(f"v_add_u32 {vT1}, {sTmp2}, {vT0}")
    a(f"v_cmp_gt_u32 vcc, 19, {vL}")
    a(f"v_mov_b32 {vT2}, 0x40000000")
    a("s_waitcnt lgkmcnt(0)")
    a(f"v_cndmask_b32 {vT1}, {vT2}, {vT1}, vcc")
    a(f"buffer_load_dword {vDUM}, {vT1}, {sP}, 0 offen")
    srd(a,sT4b,"s82","s83",128*128)
    a(f"s_lshl_b32 {sTmp2}, {sTmp}, 9")
    a(f"v_add_u32 {vT1}, {sTmp2}, {vT0}")
    a(f"v_cmp_gt_u32 vcc, 4, {vL}")
    a("s_nop 1")
    a(f"v_cndmask_b32 {vT1}, {vT2}, {vT1}, vcc")
    a(f"buffer_load_dword {vDUM}, {vT1}, {sT4b}, 0 offen")
    a("s_branch K_S_COMMON")
    a.label("K_S_W7")
    a.c("wave 7: the last 64 edges, one-hot table, counters")
    a(f"s_mul_i32 {sTmp}, s2, {CH*4}")
    a(f"s_add_u32 {sTmp}, {sTmp}, {3072*4}")
    a(f"v_lshl_add_u32 {vT0}, {vL}, 2, {sTmp}")
    a(f"buffer_load_dword {D1[6]}, {vT0}, {sD}, 0 offen{SNT}")
    a(f"buffer_load_dword {D1[14]}, {vT0}, {sS}, 0 offen{SNT}")
    a(f"v_lshrrev_b32 {vT0}, 2, {vL}")
    a(f"v_and_b32 {vT1}, 3, {vL}")
    a(f"v_lshlrev_b32 {vT3}, 1, {vT1}")
    a(f"v_mov_b32 {vJ}, 0")
    a(f"v_cmp_eq_u32 vcc, {vT0}, {vT3}")
    a(f"v_mov_b32 {AD[0]}, 0x3f80")
    a(f"v_mov_b32 {AD[1]}, 0x3f800000")
    a(f"v_cndmask_b32 {vJ}, {vJ}, {AD[0]}, vcc")
    a(f"v_add_u32 {vT3}, 1, {vT3}")
    a(f"v_cmp_eq_u32 vcc, {vT0}, {vT3}")
    a("s_nop 1")
    a(f"v_cndmask_b32 {vJ}, {vJ}, {AD[1]}, vcc")
    a(f"v_cmp_eq_u32 vcc, 6, {vT0}")
    a(f"v_mov_b32 {AD[2]}, 0")
    a("s_nop 0")
    a(f"v_cndmask_b32 {AD[2]}, {AD[2]}, {AD[1]}, vcc")
    a(f"v_cmp_eq_u32 vcc, 3, {vT1}")
    a("s_nop 1")
    a(f"v_cndmask_b32 {vJ}, {vJ}, {AD[2]}, vcc")
    a(f"v_cmp_lt_u32 vcc, 31, {vL}")
    a(f"v_lshlrev_b32 {vT0}, 2, {vL}")
    a("s_nop 0")
    a(f"v_cndmask_b32 {vJ}, {vJ}, {vZ[0]}, vcc")
    a(f"ds_write_b32 {vT0}, {vJ}")
    a.label("K_S_COMMON")
    a(f"s_mov_b32 {sMaskE}, {'0' if opt.get('noE',0) else '0xffffffe0'}")
    a(f"s_mov_b32 {s128}, {0 if opt.get('noH',0) else 128}")
    a(f"s_mov_b32 {sK}, {KW}")
    a(f"s_mov_b32 {s3125}, 3125")
    a(f"s_mov_b32 {sMark}, {MARK}")
    a(f"s_mov_b32 {sCAPq}, {CAPX//4}")
    a(f"s_mov_b32 {sMode}, 0")
    a(f"s_mov_b32 {sChunk}, 0")
    a(f"v_mov_b32 {vOne}, 1")
    a(f"v_mov_b32 {v511}, 511")
    a(f"v_mov_b32 {aL1s}, 0x40000000")
    a(f"v_lshrrev_b32 {vT2}, 5, {vL}")
    a(f"v_bfe_u32 {vT0}, {vL}, 2, 2")
    a(f"v_lshl_add_u32 {vT0}, {vT2}, 3, {vT0}")
    a(f"v_lshlrev_b32 {vTRW}, 7, {vT0}")
    a(f"v_bfe_u32 {vT0}, {vL}, 4, 1")
    a(f"v_lshl_add_u32 {vTRW}, {vT0}, 5, {vTRW}")
    a(f"v_and_b32 {vT0}, 3, {vL}")
    a(f"v_lshl_add_u32 {vTRW}, {vT0}, 3, {vTRW}")
    a.c("LDS init: cell image = sentinel, counters = 0")
    for i in range(4): a(f"v_mov_b32 {WH[i]}, -1")
    a(f"v_lshlrev_b32 {vT0}, 6, v0")
    a(f"v_add_u32 {vT0}, {L_HST}, {vT0}")
    for i in range(4): a(f"ds_write_b128 {vT0}, {WH[0:4]} offset:{16*i}")
    a(f"v_and_b32 {vT0}, 0xff, v0")
    a(f"v_lshlrev_b32 {vT0}, 2, {vT0}")
    a(f"ds_write_b32 {vT0}, {vZ[0]} offset:{L_RES}")
    srd(a,sW,"s80","s81",WSB(opt))
    srd(a,sP,"s66","s67",N*6)
    srd(a,sE,"s68","s69",E*32)
    srd(a,sO,"s76","s77",OUT_BYTES)
    srd(a,sT4c,"s78","s79",256)
    a(f"s_add_u32 {sB[0]}, s80, {BPT}")
    a(f"s_addc_u32 {sB[1]}, s81, 0")
    a(f"s_and_b32 {sB[1]}, {sB[1]}, 0xffff")
    a(f"s_mov_b32 {sB[2]}, {N*128}")
    a(f"s_mov_b32 {sB[3]}, 0x20000")
    if opt.get('tlb',0):
        a.c("wave 2 touches one line per 2 MiB of the buffers used later (address translation warm-up, speed only)")
        a(f"s_cmp_lg_u32 {sWave}, 2")
        a("s_cbranch_scc1 K_NOTLB")
        a(f"v_lshlrev_b32 {vT0}, 21, {vL}")
        a(f"v_mov_b32 {vT1}, 0x40000000")
        a(f"v_cmp_gt_u32 vcc, 13, {vL}")
        a("s_nop 1")
        a(f"v_cndmask_b32 {vT0}, {vT1}, {vT0}, vcc")
        a(f"buffer_load_dword {vDUM}, {vT0}, {sE}, 0 offen")
        a(f"buffer_load_dword {vDUM}, {vT0}, {sW}, 0 offen")
        a(f"buffer_load_dword {vDUM}, {vT0}, {sO}, 0 offen")
        a.label("K_NOTLB")
    a.c("workgroup 0 publishes this launch's hand-off tag")
    a(f"s_or_b32 {sTmp}, s2, {sWave}")
    a(f"s_cmp_lg_u32 {sTmp}, 0")
    a("s_cbranch_scc1 K_S_NOTAG")
    a("s_memrealtime s[100:101]")
    a("s_waitcnt lgkmcnt(0)")
    a("s_or_b32 s100, s100, 1")
    a(f"v_mov_b32 {vT0}, s100")
    a(f"buffer_store_dword {vT0}, {vZ[0]}, {sT4c}, 0 offen sc1")
    a(f"buffer_store_dword {vT0}, {vZ[0]}, {sT4c}, 0 offen offset:128 sc1")
    a.label("K_S_NOTAG")
    a("s_waitcnt lgkmcnt(0)")
    a("s_barrier")
    a(f"s_mul_i32 {sTmp}, s2, {CH}")
    a(f"s_sub_u32 {sLim}, {E}, {sTmp}")
    a(f"s_min_u32 {sLim}, {sLim}, {CH}")
    B4=D2[0:7]; RC=M[0:7]; RK1=D2[8:15]
    def bin_edges(nrec, el_of, waitcnt, masked):
        if masked:
            for u in range(nrec):
                el_of(u,vT1)
                a(f"v_cmp_gt_u32 {sMask[u]}, {sLim}, {vT1}")
        if waitcnt is not None: a(f"s_waitcnt vmcnt({waitcnt})")
        stamp(a,opt,1)
        for u in range(nrec):
            d=DS_[u]; s_=SR_[u]
            a(f"v_mul_hi_u32 {vT2}, {d}, {sK}")
            el_of(u,vT1)
            a(f"v_lshl_or_b32 {RC[u]}, {s_}, 12, {vT1}")
            a(f"v_lshrrev_b32 {B4[u]}, 1, {vT2}")
            a(f"v_mad_u32_u24 {vT3}, {vT2}, {s3125}, {v511}")
            a(f"v_and_b32 {B4[u]}, 0x3fc, {B4[u]}")
            a(f"v_lshrrev_b32 {vT3}, 9, {vT3}")
            if masked: a(f"s_mov_b64 exec, {sMask[u]}")
            a(f"ds_add_rtn_u32 {RK1[u]}, {B4[u]}, {vOne} offset:{L_RES}")
            if masked: a("s_mov_b64 exec, -1")
            a(f"v_sub_u32 {vT3}, {d}, {vT3}")
            a(f"v_and_b32 {vT2}, 7, {vT2}")
            a(f"v_lshl_or_b32 {vT3}, {vT2}, 3, {vT3}")
            a(f"v_lshl_or_b32 {RC[u]}, {vT3}, 26, {RC[u]}")
        a(f"v_mov_b32 {vT3}, {L_HST}")
        a(f"v_mov_b32 {vJ}, {L_NRES+4}")
        for u in range(nrec):
            if not masked: a(f"s_waitcnt lgkmcnt({nrec-1})")
            elif u==0: a("s_waitcnt lgkmcnt(0)")
            a(f"v_cmp_gt_u32 vcc, 32, {RK1[u]}")
            a(f"v_lshlrev_b32 {vT1}, 3, {RK1[u]}")
            a(f"v_lshrrev_b32 {vT2}, 2, {RK1[u]}")
            a(f"v_and_b32 {vT1}, 0x78, {vT1}")
            a(f"v_lshl_add_u32 {AD[0]}, {B4[u]}, 5, {vT3}")
            a(f"v_and_or_b32 {vT1}, {vT2}, 4, {vT1}")
            a(f"v_add_u32 {vT1}, {vT1}, {AD[0]}")
            a(f"v_cndmask_b32 {vT1}, {vJ}, {vT1}, vcc")
            if masked: a(f"s_mov_b64 exec, {sMask[u]}")
            a(f"ds_write_b32 {vT1}, {RC[u]}")
            if masked: a("s_mov_b64 exec, -1")
    a.c("wait for this wave's edges (younger loads: 12 for waves 5,6; 2 for wave 4; the tag store of workgroup 0)")
    a(f"s_mul_i32 {sTmp}, {sWave}, 384")
    a(f"v_lshl_add_u32 {vT0}, {vL}, 1, {sTmp}")
    a(f"s_cmp_eq_u32 {sWave}, 4")
    a("s_cbranch_scc1 K_S_WT4")
    a(f"s_sub_u32 {sTmp}, {sWave}, 5")
    a(f"s_cmp_lt_u32 {sTmp}, 2")
    a("s_cbranch_scc1 K_S_WT56")
    if opt.get('tlb',0):
        a(f"s_cmp_eq_u32 {sWave}, 2")
        a("s_cbranch_scc1 K_S_WT2")
    a("s_waitcnt vmcnt(0)")
    a("s_branch K_S_WTD")
    if opt.get('tlb',0):
        a.label("K_S_WT2")
        a("s_waitcnt vmcnt(3)")
        a("s_branch K_S_WTD")
    a.label("K_S_WT4")
    a("s_waitcnt vmcnt(2)")
    a("s_branch K_S_WTD")
    a.label("K_S_WT56")
    a("s_waitcnt vmcnt(12)")
    a.label("K_S_WTD")
    a.c("wave 0 fetches the hand-off tag (one of its two copies); it is needed when the cell stores have left")
    a(f"s_and_b32 {sTagOff}, s2, 1")
    a(f"s_lshl_b32 {sTagOff}, {sTagOff}, 7")
    a(f"s_cmp_lg_u32 {sWave}, 0")
    a("s_cbranch_scc1 K_S_NOTAG1")
    a(f"buffer_load_dword {aE}, {vZ[0]}, {sT4c}, {sTagOff} offen sc1")
    a.label("K_S_NOTAG1")
    def el6(u,r): a(f"v_add_u32 {r}, {128*(u>>1)+(u&1)}, {vT0}")
    def el7(u,r):
        if u<6: el6(u,r)
        else: a(f"v_add_u32 {r}, 3072, {vL}")
    a(f"s_cmp_lt_u32 {sLim}, {CH}")
    a("s_cbranch_scc1 K_S_APPM")
    a(f"s_cmp_eq_u32 {sWave}, 7")
    a("s_cbranch_scc1 K_S_APP7")
    bin_edges(6, el6, None, False)
    a("s_branch K_S_APPD")
    a.label("K_S_APP7")
    bin_edges(7, el7, None, False)
    a("s_branch K_S_APPD")
    a.label("K_S_APPM")
    a(f"s_cmp_eq_u32 {sWave}, 7")
    a("s_cbranch_scc1 K_S_APPM7")
    bin_edges(6, el6, None, True)
    a("s_branch K_S_APPD")
    a.label("K_S_APPM7")
    bin_edges(7, el7, None, True)
    a.label("K_S_APPD")
    load_hwin()
    a.c("waves 4, 7: raw w_e -> LDS (needed after barrier C); wave 4 rebuilds the descriptor it lent to the w_h warm-up")
    a(f"s_lshl_b32 {sTmp}, 1, {sWave}")
    a(f"s_and_b32 {sTmp}, {sTmp}, 0x90")
    a("s_cbranch_scc0 K_S_NORAW")
    a("s_load_dwordx2 s[100:101], s[0:1], 40")
    a(f"s_cmp_eq_u32 {sWave}, 7")
    a(f"s_cselect_b32 {sTmp3}, {10*1024}, 0")
    a("s_waitcnt lgkmcnt(0)")
    srd(a,sT4b,"s100","s101",145*128)
    for i in range(10):
        a(f"s_add_u32 {sTmp2}, {sTmp3}, {i*1024}")
        if i==9: a(f"s_min_u32 {sTmp2}, {sTmp2}, {18*1024}")
        a(f"s_add_u32 {sTmp}, {sTmp2}, {L_RAWW}")
        a(f"s_mov_b32 m0, {sTmp}")
        a("s_nop 0")
        a(f"buffer_load_dwordx4 {vL16}, {sT4b}, {sTmp2} offen lds")
    a.label("K_S_NORAW")
    a("s_waitcnt lgkmcnt(0)")
    stamp(a,opt,14) if not opt.get('dbgfill',0) else None
    a("s_barrier")
    stamp(a,opt,2)
    def setup_static():
        a(f"v_and_b32 {vT1}, 31, {vL}")
        a(f"v_lshrrev_b32 {vT2}, 5, {vL}")
        a(f"v_lshlrev_b32 {vT0}, 3, {vT2}")
        a(f"v_sub_u32 {vT0}, {vT1}, {vT0}")
        a(f"v_mov_b32 {AD[2]}, 0x3f80")
        a(f"v_mov_b32 {AD[3]}, 0x3f800000")
        for sp in range(2):
            for r in range(4):
                k0=16*sp+2*r
                a(f"v_cmp_eq_u32 vcc, {k0}, {vT0}")
                a(f"v_cmp_eq_u32 {sSave}, {k0+1}, {vT0}")
                a("s_nop 0")
                a(f"v_cndmask_b32 {ID[4*sp+r]}, {vZ[0]}, {AD[2]}, vcc")
                a(f"v_cndmask_b32 {ID[4*sp+r]}, {ID[4*sp+r]}, {AD[3]}, {sSave}")
        a(f"v_cmp_lt_u32 vcc, 31, {vL}")
        a("s_nop 1")
        for i in range(1,4): a(f"v_mov_b32 {ONE[i]}, 0")
        a(f"v_cndmask_b32 {ONE[0]}, {AD[2]}, {vZ[0]}, vcc")
        for i in range(3):
            a(f"v_mov_b32 {PS[i]}, 0"); a(f"v_mov_b32 {PD[i]}, 0")
        a.c("static per-lane addresses of the main loop (window offsets are added after the assignment)")
        a(f"v_and_b32 {vT1}, 31, {vL}")
        a(f"v_lshrrev_b32 {vT2}, 5, {vL}")
        a(f"v_mov_b32 {vT3}, {L_A2}")
        a(f"v_lshl_add_u32 {vE64}, {vT1}, 6, {vT3}")
        a(f"v_bfe_u32 {vT0}, {vL}, 2, 2")
        a(f"v_lshl_add_u32 {vT0}, {vT2}, 2, {vT0}")
        a(f"v_lshl_add_u32 {vTR}, {vT0}, 6, {vT3}")
        a(f"v_bfe_u32 {vT0}, {vL}, 4, 1")
        a(f"v_lshl_add_u32 {vTR}, {vT0}, 5, {vTR}")
        a(f"v_and_b32 {vT0}, 3, {vL}")
        a(f"v_lshl_add_u32 {vTR}, {vT0}, 3, {vTR}")
        a(f"s_lshl_b32 {sHST}, {sWave}, 12")
        a(f"s_add_u32 {sHST}, {sHST}, {L_HST}")
        for i in range(4): a(f"s_add_u32 {sM0[i]}, {sHST}, {1024*i}")
        a(f"v_and_b32 {vT0}, 3, {vT1}")
        a(f"v_bfe_u32 {vT3}, {vT1}, 4, 1")
        a(f"v_lshl_or_b32 {vT3}, {vT3}, 2, {vT0}")
        a(f"v_lshlrev_b32 {vT0}, 3, {vT0}")
        a(f"v_lshrrev_b32 {vJ}, 2, {vT1}")
        a(f"v_add_u32 {vT0}, {vT0}, {vJ}")
        a(f"v_lshl_add_u32 {vT0}, {vT0}, 7, {sHST}")
        for s_ in range(4):
            a(f"v_add_u32 {vJ}, {2*s_}, {vT2}")
            a(f"v_xor_b32 {vJ}, {vJ}, {vT3}")
            a(f"v_lshl_add_u32 {vHA[s_]}, {vJ}, 4, {vT0}")
        a(f"v_and_b32 {vT0}, 7, {vL}")
        a(f"v_lshlrev_b32 {vT3}, 2, {vT2}")
        a(f"v_xor_b32 {vT0}, {vT0}, {vT3}")
        for i in range(4):
            a(f"v_xor_b32 {vJ}, {i}, {vT0}")
            a(f"v_lshlrev_b32 {vKD[i]}, 4, {vJ}")
        a(f"s_mov_b32 {sCAP}, {CAP}")
        a(f"s_sub_u32 {sTgt}, 11, {sWave}")
        a(f"s_cmp_lt_u32 {sWave}, 4")
        a(f"s_cselect_b32 {sTgt}, {sWave}, {sTgt}")
        a(f"v_lshrrev_b32 {aPS}, 3, {vL}")
        a(f"v_and_b32 {aPD}, 7, {vL}")
        a(f"v_lshlrev_b32 {aOH}, 2, {aPS}")
        a(f"v_lshlrev_b32 {SS}, 2, {aPD}")
    a(f"s_cmp_gt_u32 {sWave}, 3")
    a("s_cbranch_scc1 K_S_NOCOPY")
    a.c("waves 0..3 copy the cell image out: eight 16 B pieces per thread")
    a(f"v_lshlrev_b32 {vT0}, 4, v0")
    a(f"v_add_u32 {vT0}, {L_HST}, {vT0}")
    a(f"v_lshrrev_b32 {vT1}, 3, v0")
    a(f"v_lshlrev_b32 {vT2}, 2, {vT1}")
    CP=[D1[4*k:4*k+4] for k in range(8)]
    for k in range(4):
        a(f"ds_read_b128 {CP[k]}, {vT0} offset:{4096*k}")
        a(f"ds_read_b32 {D2[k]}, {vT2} offset:{L_RES+128*k}")
    a(f"v_and_b32 {vT3}, 7, v0")
    a(f"v_cmp_eq_u32 vcc, 0, {vT3}")
    a(f"v_mov_b32 {vJ}, -1")
    CT=opt.get('ctrans',0)
    a(f"v_lshlrev_b32 {vT1}, {7 if CT else 15}, {vT1}")
    a(f"v_cndmask_b32_e64 {AD[1]}, -1, -2, vcc")
    a(f"v_lshl_add_u32 {vT1}, {vT3}, 4, {vT1}")
    a(f"s_lshl_b32 {sTmp}, s2, {15 if CT else 7}")
    for k in range(8):
        if k<4:
            a(f"ds_read_b128 {CP[k+4]}, {vT0} offset:{4096*(k+4)}")
            a(f"ds_read_b32 {D2[k+4]}, {vT2} offset:{L_RES+128*(k+4)}")
            a("s_waitcnt lgkmcnt(8)")
        else:
            a(f"s_waitcnt lgkmcnt({2*(7-k)})")
        a(f"v_cmp_lt_u32 vcc, 32, {D2[k]}")
        a(f"s_add_u32 {sTmp2}, {sTmp}, {k*32*(128 if CT else 32768)}")
        a("s_nop 0")
        a(f"v_cndmask_b32 {CP[k][0]}, {CP[k][0]}, {AD[1]}, vcc")
        for i in range(1,4): a(f"v_cndmask_b32 {CP[k][i]}, {CP[k][i]}, {vJ}, vcc")
        a(f"buffer_store_dwordx4 {CP[k]}, {vT1}, {sW}, {sTmp2} offen{ST}")
    a("s_branch K_S_STATIC")
    a.label("K_S_NOCOPY")
    a(f"s_sub_u32 {sTmp}, {sWave}, 5")
    a(f"s_cmp_lt_u32 {sTmp}, 2")
    a("s_cbranch_scc0 K_S_POS")
    a.c("waves 5,6: source-node table B' = -log2e * h @ W2 for 32 nodes")
    a(f"v_add_u32 {vT0}, {sC}, {vTRW}")
    a("s_waitcnt vmcnt(4)")
    for s_ in range(4):
        for x in range(2):
            for th in range(2):
                r=(s_*2+x)*4+2*th
                a(f"ds_read_b64_tr_b16 {D1[r:r+2]}, {vT0} offset:{s_*2048+th*512+x*64}")
    a("s_waitcnt lgkmcnt(0)")
    for x in range(2):
        for s_ in range(4):
            r=(s_*2+x)*4
            mfma(a,D2[16*x:16*x+16],D1[r:r+4],HA[4*s_:4*s_+4],"0" if s_==0 else D2[16*x:16*x+16])
    a(f"s_mul_i32 {sTmp}, {sI}, {32*144}")
    a(f"s_add_u32 {sTmp}, {sTmp}, {L_BST}")
    a(f"v_and_b32 {vT1}, 31, {vL}")
    a(f"v_mul_u32_u24 {vT1}, 144, {vT1}")
    a(f"v_lshrrev_b32 {vT2}, 5, {vL}")
    a(f"v_lshl_add_u32 {vT1}, {vT2}, 3, {vT1}")
    a(f"v_add_u32 {vT1}, {sTmp}, {vT1}")
    a(f"v_lshrrev_b32 {vT2}, 3, {vL}")
    a(f"v_mul_u32_u24 {vT3}, 144, {vT2}")
    a(f"v_and_b32 {vJ}, 7, {vL}")
    a(f"v_lshl_add_u32 {vT3}, {vJ}, 4, {vT3}")
    a(f"v_add_u32 {vT3}, {sTmp}, {vT3}")
    a(f"s_mov_b32 {sTmp2}, {NEG_LOG2E}")
    a.nop(4)
    for x in range(2):
        for q in range(16): a(f"v_mul_f32 {D2[16*x+q]}, {sTmp2}, {D2[16*x+q]}")
        for qq in range(4):
            b=16*x+4*qq
            a(f"v_cvt_pk_bf16_f32 {E01[0]}, {D2[b]}, {D2[b+1]}")
            a(f"v_cvt_pk_bf16_f32 {E01[1]}, {D2[b+2]}, {D2[b+3]}")
            a(f"ds_write_b64 {vT1}, {E01} offset:{x*64+qq*16}")
            a("s_nop 0")
    for i in range(4): a(f"ds_read_b128 {D1[4*i:4*i+4]}, {vT3} offset:{i*8*144}")
    a(f"s_lshl_b32 {sTmp2}, {sI}, 5")
    a(f"v_add_u32 {vT2}, {sTmp2}, {vT2}")
    a(f"s_mul_i32 {sTmp}, s2, {NPW}")
    a(f"v_add_u32 {vT0}, {sTmp}, {vT2}")
    a(f"v_lshlrev_b32 {vT1}, 7, {vT0}")
    a(f"v_lshl_add_u32 {vT1}, {vJ}, 4, {vT1}")
    a(f"v_mov_b32 {vJ}, 0x40000000")
    a("s_waitcnt lgkmcnt(0)")
    for i in range(4):
        a(f"v_add_u32 {vT3}, {8*i}, {vT2}")
        a(f"v_cmp_gt_u32 vcc, {NPW}, {vT3}")
        a(f"v_add_u32 {AD[0]}, {1024*i}, {vT1}")
        a("s_nop 0")
        a(f"v_cndmask_b32 {AD[0]}, {vJ}, {AD[0]}, vcc")
        a(f"buffer_store_dwordx4 {D1[4*i:4*i+4]}, {AD[0]}, {sB}, 0 offen{ST}")
    a("s_waitcnt vmcnt(4)")
    a("s_branch K_S_STATIC")
    a.label("K_S_POS")
    a.label("K_S_STATIC")
    setup_static()
    a.c("waves 0..3: every cell store has left; waves 4, 7: raw w_e / window rows landed; waves 5, 6 signal their rows later")
    a(f"s_sub_u32 {sTmp}, {sWave}, 5")
    a(f"s_cmp_lt_u32 {sTmp}, 2")
    a("s_cbranch_scc1 K_S_PREC")
    a("s_waitcnt vmcnt(0)")
    def have_tag(lbl):
        a(f"s_mov_b32 {sPoll}, 0")
        a.label(lbl)
        a(f"v_readfirstlane_b32 {sNonce}, {aE}")
        a("s_memrealtime s[100:101]")
        a("s_waitcnt lgkmcnt(0)")
        a(f"s_sub_u32 {sTmp}, s100, {sNonce}")
        a(f"s_add_u32 {sTmp}, {sTmp}, 1")
        a(f"s_cmp_lt_u32 {sTmp}, 2500")
        a(f"s_cselect_b32 {sTmp}, {sNonce}, 0")
        a(f"s_cmp_lg_u32 {sTmp}, 0")
        a(f"s_cbranch_scc1 {lbl}_OK")
        a(f"s_add_u32 {sPoll}, {sPoll}, 1")
        a(f"s_cmp_gt_u32 {sPoll}, 200000")
        a(f"s_cbranch_scc1 {lbl}_OK")
        a(f"s_cmp_gt_u32 {sPoll}, 1000")
        a(f"s_cselect_b32 {sTmp}, {sNonce}, 0")
        a(f"s_cmp_lg_u32 {sTmp}, 0")
        a(f"s_cbranch_scc1 {lbl}_OK")
        a("s_sleep 2")
        a(f"buffer_load_dword {aE}, {vZ[0]}, {sT4c}, {sTagOff} offen sc1")
        a("s_waitcnt vmcnt(0)")
        a(f"s_branch {lbl}")
        a.label(f"{lbl}_OK")
    a(f"s_cmp_lg_u32 {sWave}, 0")
    a("s_cbranch_scc1 K_S_PREC")
    have_tag("K_G_TAG")
    a(f"v_mov_b32 {vT0}, {sNonce}")
    a(f"ds_write_b32 {vZ[0]}, {vT0} offset:{L_NRES+8}")
    a.label("K_S_PREC")
    a("s_waitcnt lgkmcnt(0)")
    stamp(a,opt,15) if not opt.get('dbgfill',0) else None
    a("s_barrier")
    stamp(a,opt,3)
    a(f"s_cmp_lg_u32 {sWave}, 0")
    a("s_cbranch_scc1 K_G_NOT0")
    a.c("wave 0: signal this workgroup's cells")
    a(f"s_lshl_b32 {sTmp}, s2, 4")
    a(f"s_add_u32 {sTmp}, {sTmp}, {FLG}")
    a(f"v_mov_b32 {vT0}, {sNonce}")
    a(f"buffer_store_dword {vT0}, {vZ[0]}, {sW}, {sTmp} offen sc1")
    a("s_branch K_G_SETUP")
    a.label("K_G_NOT0")
    a(f"s_cmp_lt_u32 {sWave}, 4")
    a("s_cbranch_scc1 K_G_WH")
    a(f"s_sub_u32 {sTmp}, {sWave}, 5")
    a(f"s_cmp_lt_u32 {sTmp}, 2")
    a("s_cbranch_scc1 K_G_SETUP")
    a.c("waves 4, 7: pos table -> LDS (37 pieces each)")
    a(f"s_cmp_eq_u32 {sWave}, 7")
    a(f"s_cselect_b32 {sI}, {37*1024}, 0")
    for i in range(37):
        a(f"s_add_u32 {sTmp}, {sI}, {i*1024}")
        a(f"s_add_u32 {sTmp2}, {sTmp}, {L_POS}")
        a(f"s_mov_b32 m0, {sTmp2}")
        a("s_nop 0")
        a(f"buffer_load_dwordx4 {vL16}, {sP}, {sTmp} offen lds")
    a("s_branch K_G_SETUP")
    a.label("K_G_WH")
    a.c("waves 1..3: raw w_h -> staging area")
    a("s_load_dwordx2 s[64:65], s[0:1], 56")
    a(f"s_sub_u32 {sI}, {sWave}, 1")
    a("s_waitcnt lgkmcnt(0)")
    srd(a,sT4b,"s64","s65",128*128)
    for k in range(6):
        a(f"s_add_u32 {sTmp}, {sI}, {3*k}")
        a(f"s_min_u32 {sTmp}, {sTmp}, 15")
        a(f"s_lshl_b32 {sTmp}, {sTmp}, 10")
        a(f"s_add_u32 {sTmp2}, {sTmp}, {L_HST}")
        a(f"s_mov_b32 m0, {sTmp2}")
        a("s_nop 0")
        a(f"buffer_load_dwordx4 {vL16}, {sT4b}, {sTmp} offen lds")
    a.label("K_G_SETUP")
    a.c("operands from raw w_e: W1 (for A'), W4', wd'")
    W1=D2
    a(f"v_add_u32 {vT0}, {L_RAWW}, {vTRW}")
    for s_ in range(4):
        for x in range(2):
            for th in range(2):
                r=(s_*2+x)*4+2*th
                a(f"ds_read_b64_tr_b16 {W1[r:r+2]}, {vT0} offset:{s_*2048+th*512+x*64}")
    W4R=HA[0:8]
    for x in range(2):
        for th in range(2):
            a(f"ds_read_b64_tr_b16 {W4R[4*x+2*th:4*x+2*th+2]}, {vT0} offset:{129*128+th*512+x*64}")
    WD=M[0:2]
    a(f"v_mov_b32 {WD[0]}, 0")
    a(f"v_mov_b32 {WD[1]}, 0")
    a(f"v_and_b32 {vT1}, 31, {vL}")
    a(f"v_lshlrev_b32 {vT2}, 1, {vT1}")
    a(f"v_add_u32 {vT2}, {L_RAWW+128*128}, {vT2}")
    a(f"ds_read_u16_d16_hi {WD[0]}, {vT2}")
    a(f"ds_read_u16_d16_hi {WD[1]}, {vT2} offset:64")
    a("s_waitcnt lgkmcnt(0)")
    for x in range(2):
        for s_ in range(4):
            mfma(a,D1[16*x:16*x+16],HW[4*s_:4*s_+4],W1[(s_*2+x)*4:(s_*2+x)*4+4],"0" if s_==0 else D1[16*x:16*x+16])
    a(f"s_mov_b32 {sTmp}, {NEG_LOG2E}")
    for i in range(8):
        a(f"v_lshlrev_b32 {vT0}, 16, {W4R[i]}")
        a(f"v_and_b32 {vT2}, 0xffff0000, {W4R[i]}")
        a(f"v_mul_f32 {vT0}, {sTmp}, {vT0}")
        a(f"v_mul_f32 {vT2}, {sTmp}, {vT2}")
        a(f"v_cvt_pk_bf16_f32 {WE[i]}, {vT0}, {vT2}")
    a(f"v_cmp_lt_u32 vcc, 31, {vL}")
    for x in range(2):
        a(f"v_mul_f32 {WD[x]}, {sTmp}, {WD[x]}")
        a(f"v_cvt_pk_bf16_f32 {vT0}, {WD[x]}, {WD[x]}")
        a(f"v_and_b32 {vT0}, 0xffff0000, {vT0}")
        a(f"v_sub_f32 {vT2}, {WD[x]}, {vT0}")
        a(f"v_cvt_pk_bf16_f32 {vT2}, {vT2}, {vT2}")
        a(f"v_and_b32 {vT2}, 0xffff0000, {vT2}")
        a(f"v_cndmask_b32 {WD[x]}, {vT0}, {vT2}, vcc")
    a(f"s_cmp_lg_u32 {sWave}, 0")
    a("s_cbranch_scc1 K_G_NOEARLY")
    a(f"s_mov_b32 {sTmp2}, {FLG}")
    for k in range(4): a(f"buffer_load_dword {AD[k]}, {vL16}, {sW}, {sTmp2} offen offset:{1024*k} sc1")
    a.label("K_G_NOEARLY")
    a(f"v_cmp_lt_u32 vcc, 31, {vL}")
    a(f"v_mov_b32 {vJ}, 0xffff")
    for x in range(2):
        for r in range(4):
            q0,q1=D1[16*x+2*r],D1[16*x+2*r+1]
            a(f"v_mul_f32 {q0}, {sTmp}, {q0}")
            a(f"v_mul_f32 {q1}, {sTmp}, {q1}")
            a(f"v_cvt_pk_bf16_f32 {vT0}, {q0}, {q1}")
            a(f"v_lshlrev_b32 {vT1}, 16, {vT0}")
            a(f"v_and_b32 {vT2}, 0xffff0000, {vT0}")
            a(f"v_sub_f32 {vT1}, {q0}, {vT1}")
            a(f"v_sub_f32 {vT2}, {q1}, {vT2}")
            a(f"v_cvt_pk_bf16_f32 {vT1}, {vT1}, {vT2}")
            a(f"v_cndmask_b32 {WA[4*x+r]}, {vT0}, {vT1}, vcc")
        a(f"v_bfi_b32 {WA[4*x+3]}, {vJ}, {WA[4*x+3]}, {WD[x]}")
    a(f"s_lshl_b32 {sTmp}, {sWave}, 11")
    a(f"s_add_u32 {sTmp}, {sTmp}, {L_A2}")
    a(f"v_lshl_add_u32 {vT0}, {vL}, 5, {sTmp}")
    a(f"ds_write_b128 {vT0}, {WA[0:4]}")
    a(f"ds_write_b128 {vT0}, {WA[4:8]} offset:16")
    for i in range(32): a(f"v_mov_b32 {D2[i]}, 0")
    a(f"s_sub_u32 {sTmp}, {sWave}, 5")
    a(f"s_cmp_lt_u32 {sTmp}, 2")
    a("s_cbranch_scc0 K_G_NOFLG2")
    a.c("waves 5,6: their rows have left -> signal them")
    a(f"ds_read_b32 {aE}, {vZ[0]} offset:{L_NRES+8}")
    a("s_waitcnt vmcnt(0) lgkmcnt(0)")
    a(f"v_readfirstlane_b32 {sNonce}, {aE}")
    a("s_nop 3")
    a(f"s_lshl_b32 {sTmp}, s2, 1")
    a(f"s_add_u32 {sTmp}, {sTmp}, {sWave}")
    a(f"s_sub_u32 {sTmp}, {sTmp}, 5")
    a(f"s_lshl_b32 {sTmp}, {sTmp}, 4")
    a(f"s_add_u32 {sTmp}, {sTmp}, {FLG2}")
    a(f"v_mov_b32 {vT0}, {sNonce}")
    a(f"buffer_store_dword {vT0}, {vZ[0]}, {sW}, {sTmp} offen sc1")
    a.label("K_G_NOFLG2")
    a(f"s_cmp_lg_u32 {sWave}, 0")
    a("s_cbranch_scc1 K_G_WAIT")
    a.c("wave 0: wait for all 256 hand-offs (the first round of flag loads is already in flight)")
    a(f"s_mov_b32 {sTmp2}, {FLG}")
    a("s_branch K_G_POLL1")
    a.label("K_G_POLL")
    for k in range(4): a(f"buffer_load_dword {AD[k]}, {vL16}, {sW}, {sTmp2} offen offset:{1024*k} sc1")
    a.label("K_G_POLL1")
    a("s_waitcnt vmcnt(0)")
    a(f"v_cmp_eq_u32 {sAny}, {sNonce}, {AD[0]}")
    a(f"v_cmp_eq_u32 {sSave}, {sNonce}, {AD[1]}")
    a(f"v_cmp_eq_u32 vcc, {sNonce}, {AD[2]}")
    a("s_nop 1")
    a(f"s_and_b64 {sAny}, {sAny}, {sSave}")
    a(f"v_cmp_eq_u32 {sSave}, {sNonce}, {AD[3]}")
    a(f"s_and_b64 {sAny}, {sAny}, vcc")
    a("s_nop 1")
    a(f"s_and_b64 {sAny}, {sAny}, {sSave}")
    a(f"s_cmp_eq_u64 {sAny}, -1")
    a("s_cbranch_scc1 K_G_WAIT")
    a(f"s_add_u32 {sPoll}, {sPoll}, 1")
    a(f"s_cmp_lt_u32 {sPoll}, 200000")
    a("s_cbranch_scc1 K_G_POLL")
    a.label("K_G_WAIT")
    a.c("waves 4 and 7 keep their pos pieces in flight: their cell loads return behind them")
    a(f"s_lshl_b32 {sTmp}, 1, {sWave}")
    a(f"s_and_b32 {sTmp}, {sTmp}, 0x90")
    a("s_cbranch_scc1 K_G_WAIT47")
    a("s_waitcnt vmcnt(0)")
    a.label("K_G_WAIT47")
    a("s_waitcnt lgkmcnt(0)")
    for _ in range(opt.get('delay',0)): a("s_sleep 32")
    a("s_barrier")
    stamp(a,opt,4)
    RECP=D1[0:16]; REC=[RECP[2*i] for i in range(8)]+[RECP[2*i+1] for i in range(8)]; WAD=D1[16:32]; RK=HA
    a.c("cell records of this bin: pair s holds slots m and 16+m (m = l&15) of cell 32s+4v+(l>>4)")
    if not CT:
        a(f"s_lshl_b32 {sTmp}, s2, 15")
        a(f"s_lshl_b32 {sTmp2}, {sWave}, 9")
        a(f"s_add_u32 {sTmp}, {sTmp}, {sTmp2}")
        a(f"v_lshl_add_u32 {vT0}, {vL}, 3, {sTmp}")
    else:
        a(f"s_lshl_b32 {sTmp}, s2, 7")
        a(f"s_lshl_b32 {sTmp2}, {sWave}, 17")
        a(f"s_add_u32 {sTmp}, {sTmp}, {sTmp2}")
        a(f"v_lshrrev_b32 {vT0}, 4, {vL}")
        a(f"v_lshlrev_b32 {vT0}, 15, {vT0}")
        a(f"v_and_b32 {vT1}, 15, {vL}")
        a(f"v_lshl_add_u32 {vT0}, {vT1}, 3, {vT0}")
        a(f"v_add_u32 {vT0}, {sTmp}, {vT0}")
    ROT=opt.get('rot',0)
    if ROT==1: a(f"s_getreg_b32 {sRot}, hwreg(HW_REG_XCC_ID, 0, 4)")
    elif ROT==2: a(f"s_and_b32 {sRot}, s2, 7")
    elif ROT==3:
        a(f"s_getreg_b32 {sRot}, hwreg(HW_REG_XCC_ID, 0, 4)")
        a(f"s_and_b32 {sRot}, {sRot}, 3")
        a(f"s_lshl_b32 {sRot}, {sRot}, 1")
    else: a(f"s_mov_b32 {sRot}, 0")
    def pair_index(dst,s_):
        a(f"s_add_u32 {dst}, {sRot}, {s_}")
        a(f"s_and_b32 {dst}, {dst}, 7")
    for s_ in range(8):
        pair_index(sTmp,s_)
        a(f"s_lshl_b32 {sTmp}, {sTmp}, {20 if CT else 12}")
        a(f"buffer_load_dwordx2 {RECP[2*s_:2*s_+2]}, {vT0}, {sW}, {sTmp} offen{LD}")
    a(f"v_lshlrev_b32 {vT2}, 1, {vL}")
    a(f"v_and_b32 {vT2}, 62, {vT2}")
    a("s_load_dwordx2 s[98:99], s[0:1], 48")
    a.c("node-update weights (transposed reads of raw w_h), waves 0..3 use them")
    a(f"s_and_b32 {sTmp}, {sWave}, 1")
    a(f"s_lshl_b32 {sTmp}, {sTmp}, 6")
    a(f"s_add_u32 {sTmp}, {sTmp}, {L_HST}")
    a(f"v_add_u32 {vT1}, {sTmp}, {vTRW}")
    for s_ in range(8):
        for th in range(2):
            a(f"ds_read_b64_tr_b16 {WH[4*s_+2*th:4*s_+2*th+2]}, {vT1} offset:{s_*2048+th*512}")
            if (2*s_+th)==7: a("s_waitcnt lgkmcnt(0)")
    srd(a,sT4,"s98","s99",128)
    a(f"v_mov_b32 {WX[0]}, 0")
    a(f"v_mov_b32 {WX[1]}, 0")
    a(f"buffer_load_short_d16_hi {WX[0]}, {vT2}, {sT4}, 0 offen")
    a(f"buffer_load_short_d16_hi {WX[1]}, {vT2}, {sT4}, 0 offen offset:64")
    a("s_waitcnt vmcnt(2)")
    stamp(a,opt,5)
    a(f"s_mov_b64 {sAny}, 0")
    for s_ in range(16):
        a(f"v_cmp_gt_u32 {sMask[s_]}, {sMark}, {REC[s_]}")
        if s_<8:
            a(f"v_cmp_eq_u32 vcc, {sMark}, {REC[s_]}")
        a(f"v_lshrrev_b32 {WAD[s_]}, 27, {REC[s_]}")
        a(f"v_and_b32 {WAD[s_]}, 0x1c, {WAD[s_]}")
        if s_<8: a(f"s_or_b64 {sAny}, {sAny}, vcc")
    order=[x for p in range(8) for x in (p,8+p)]
    for n_,s_ in enumerate(order):
        a(f"s_mov_b64 exec, {sMask[s_]}")
        if s_>=8: a(f"s_cbranch_execz K2_A{s_}")
        a(f"ds_add_rtn_u32 {RK[s_]}, {WAD[s_]}, {vOne} offset:{L_CNT}")
        if s_>=8: a.label(f"K2_A{s_}")
        if n_==7:
            a("s_waitcnt lgkmcnt(4)")
    a("s_mov_b64 exec, -1")
    FL=A2R
    def flg2_loads():
        a(f"s_mov_b32 {sTmp2}, {FLG2}")
        for k in range(4): a(f"buffer_load_dword {FL[k]}, {vL16}, {sW}, {sTmp2} offen offset:{1024*k} sc1")
        a(f"s_mov_b32 {sTmp2}, {FLG2+4096}")
        for k in range(4): a(f"buffer_load_dword {FL[4+k]}, {vL16}, {sW}, {sTmp2} offen offset:{1024*k} sc1")
    a(f"s_cmp_lg_u32 {sWave}, 1")
    a("s_cbranch_scc1 K2_NOF2A")
    a.c("wave 1: flags of the source-node table (checked before barrier 2)")
    flg2_loads()
    a(f"ds_read_b32 {aE}, {vZ[0]} offset:{L_NRES+8}")
    a.label("K2_NOF2A")
    a(f"s_lshl_b32 {sTmp}, {sWave}, 2")
    a(f"v_lshrrev_b32 {vT0}, 4, {vL}")
    a(f"v_add_u32 {vT0}, {sTmp}, {vT0}")
    a(f"v_mul_u32_u24 {vT0}, {CH}, {vT0}")
    NE=opt.get('epf',1)
    def epf_block():
        if NE:
            a.c("L2 warm-up of the e_attr lines of the first records (speed only; results are never read)")
            a(f"s_lshl_b32 {sTmp}, {sWave}, 2")
            a(f"v_lshrrev_b32 {vT0}, 4, {vL}")
            a(f"v_add_u32 {vT0}, {sTmp}, {vT0}")
            a(f"v_mul_u32_u24 {vT0}, {CH}, {vT0}")
            a(f"v_mov_b32 {vT2}, 0x2000000")
            for k in range(NE):
                a(f"v_cmp_gt_u32 vcc, {sMark}, {REC[k]}")
                a(f"v_and_b32 {vT1}, 0xfff, {REC[k]}")
                pair_index(sTmp,k)
                a(f"s_mul_i32 {sTmp}, {sTmp}, {32*CH}")
                a(f"v_add3_u32 {vT1}, {vT1}, {vT0}, {sTmp}")
                a(f"v_cndmask_b32 {vT1}, {vT2}, {vT1}, vcc")
                a(f"v_lshlrev_b32 {vT1}, 5, {vT1}")
                a(f"buffer_load_dword {vDUM}, {vT1}, {sE}, 0 offen")
    if opt.get('epfpos',1)==1:
        epf_block()
        a(f"s_lshl_b32 {sTmp}, {sWave}, 2")
        a(f"v_lshrrev_b32 {vT0}, 4, {vL}")
        a(f"v_add_u32 {vT0}, {sTmp}, {vT0}")
        a(f"v_mul_u32_u24 {vT0}, {CH}, {vT0}")
    a(f"v_mov_b32 {vT1}, {L_L0}")
    a(f"v_mov_b32 {vT2}, {L_L1}")
    a("s_waitcnt lgkmcnt(0)")
    for s_ in order:
        a(f"s_mov_b64 exec, {sMask[s_]}")
        if s_>=8: a(f"s_cbranch_execz K2_B{s_}")
        pair_index(sTmp,s_&7)
        a(f"s_mul_i32 {sTmp}, {sTmp}, {32*CH}")
        a(f"v_min_u32 {RK[s_]}, {CAPX-1}, {RK[s_]}")
        a(f"v_and_b32 {vT3}, 0xfff, {REC[s_]}")
        a(f"v_mad_u32_u24 {RK[s_]}, {WAD[s_]}, {sCAPq}, {RK[s_]}")
        a(f"v_add3_u32 {vT3}, {vT3}, {vT0}, {sTmp}")
        a(f"v_bfe_u32 {vJ}, {REC[s_]}, 26, 3")
        a(f"v_lshl_add_u32 {AD[0]}, {RK[s_]}, 2, {vT1}")
        a(f"v_lshl_or_b32 {vT3}, {vT3}, 5, {vJ}")
        a(f"v_lshl_add_u32 {AD[1]}, {RK[s_]}, 1, {vT2}")
        a(f"v_bfe_u32 {vJ}, {REC[s_]}, 12, 14")
        a(f"ds_write_b32 {AD[0]}, {vT3}")
        a(f"ds_write_b16 {AD[1]}, {vJ}")
        if s_>=8: a.label(f"K2_B{s_}")
    a("s_mov_b64 exec, -1")
    if opt.get('epfpos',1)==0: epf_block()
    a.c("overflowed cells -> rescan list (rare)")
    a(f"s_cmp_eq_u64 {sAny}, 0")
    a("s_cbranch_scc1 K2_NOMARK")
    a(f"v_lshrrev_b32 {vT0}, 4, {vL}")
    a(f"s_lshl_b32 {sTmp}, {sWave}, 2")
    a(f"v_add_u32 {vT0}, {sTmp}, {vT0}")
    a(f"v_mov_b32 {vT1}, {L_NRES}")
    for s_ in range(8):
        a(f"v_cmp_eq_u32 vcc, {sMark}, {REC[s_]}")
        a(f"s_and_saveexec_b64 {sSave}, vcc")
        a(f"s_cbranch_execz K2_MK{s_}")
        a(f"ds_add_rtn_u32 {vT2}, {vT1}, {vOne}")
        pair_index(sTmp,s_)
        a(f"s_lshl_b32 {sTmp}, {sTmp}, 5")
        a(f"v_add_u32 {vT3}, {sTmp}, {vT0}")
        a("s_waitcnt lgkmcnt(0)")
        a(f"v_lshlrev_b32 {vT2}, 2, {vT2}")
        a(f"ds_write_b32 {vT2}, {vT3} offset:{L_RES}")
        a.label(f"K2_MK{s_}")
        a(f"s_mov_b64 exec, {sSave}")
    a.label("K2_NOMARK")
    a("s_load_dwordx2 s[64:65], s[0:1], 0")
    a(f"s_waitcnt vmcnt({opt.get('epf',1)}) lgkmcnt(0)")
    a(f"s_cmp_lg_u32 {sWave}, 1")
    a("s_cbranch_scc1 K2_NOF2B")
    a(f"v_readfirstlane_b32 {sNonce}, {aE}")
    a(f"s_mov_b32 {sPoll}, 0")
    a("s_nop 1")
    a.label("K2_F2CHK")
    a(f"v_cmp_eq_u32 {sAny}, {sNonce}, {FL[0]}")
    for k in range(1,8):
        a(f"v_cmp_eq_u32 vcc, {sNonce}, {FL[k]}")
        a("s_nop 1")
        a(f"s_and_b64 {sAny}, {sAny}, vcc")
    a(f"s_cmp_eq_u64 {sAny}, -1")
    a("s_cbranch_scc1 K2_NOF2B")
    a(f"s_add_u32 {sPoll}, {sPoll}, 1")
    a(f"s_cmp_gt_u32 {sPoll}, 200000")
    a("s_cbranch_scc1 K2_NOF2B")
    flg2_loads()
    a("s_waitcnt vmcnt(0)")
    a("s_branch K2_F2CHK")
    a.label("K2_NOF2B")
    srd(a,sHs,"s64","s65",N*128)
    a(f"s_mov_b32 {sTmp}, {NEG_LN2}")
    a(f"v_mul_f32 {WX[0]}, {sTmp}, {WX[0]}")
    a(f"v_mul_f32 {WX[1]}, {sTmp}, {WX[1]}")
    stamp(a,opt,6)
    a("s_barrier")
    stamp(a,opt,7)
    a.c("window sizes (lane = pair i,k) and the rescan count")
    a(f"v_mov_b32 {vT0}, {L_NRES}")
    a(f"ds_read_b32 {vT1}, {vT0}")
    a(f"ds_read_b32 {vT2}, {aOH} offset:{L_CNT}")
    a(f"ds_read_b32 {vT3}, {SS} offset:{L_CNT}")
    a("s_waitcnt lgkmcnt(0)")
    a(f"v_readfirstlane_b32 {sNR}, {vT1}")
    a(f"v_min_u32 {vT0}, 0xffffff, {vT2}")
    a(f"v_min_u32 {vJ}, 0xffffff, {vT3}")
    a(f"s_cmp_eq_u32 {sNR}, 0")
    a("s_cbranch_scc1 K2_CHECK")
    a(f"s_min_u32 {sNR}, {sNR}, 256")
    a(f"s_mov_b32 {sI}, 0")
    a.label("K2_RESCAN_I")
    a(f"s_lshl_b32 {sTmp}, {sI}, 2")
    a(f"s_add_u32 {sTmp}, {sTmp}, {L_RES}")
    a(f"v_mov_b32 {vT0}, {sTmp}")
    a(f"ds_read_b32 {vT1}, {vT0}")
    a("s_waitcnt lgkmcnt(0)")
    a(f"v_readfirstlane_b32 {sWsrc}, {vT1}")
    a("s_nop 3")
    a(f"s_min_u32 {sWsrc}, {sWsrc}, 255")
    a(f"s_mov_b32 {sC}, 0")
    a.label("K2_RESCAN_C")
    def append_raw(lim_local):
        a(f"v_lshlrev_b32 {vT1}, 2, {vT0}")
        a(f"buffer_load_dword {AD[0]}, {vT1}, {sD}, 0 offen")
        a(f"buffer_load_dword {AD[1]}, {vT1}, {sS}, 0 offen")
        a("s_waitcnt vmcnt(0)")
        a(f"v_mul_hi_u32 {vT2}, {AD[0]}, {sK}")
        a(f"v_lshrrev_b32 {vT3}, 3, {vT2}")
        a(f"v_cmp_eq_u32 vcc, s2, {vT3}")
        a("s_nop 1")
        a(f"s_and_b64 vcc, vcc, {sAny}")
        a(f"s_and_saveexec_b64 {sSave}, vcc")
        a(f"s_cbranch_execz {lim_local}")
        a(f"v_mad_u32_u24 {vT3}, {vT2}, {s3125}, {v511}")
        a(f"v_and_b32 {vT2}, 7, {vT2}")
        a(f"v_lshrrev_b32 {vT3}, 9, {vT3}")
        a(f"v_lshlrev_b32 {vT2}, 2, {vT2}")
        a(f"v_sub_u32 {vT3}, {AD[0]}, {vT3}")
        a(f"ds_add_rtn_u32 {AD[2]}, {vT2}, {vOne} offset:{L_CNT}")
        a(f"v_lshl_or_b32 {vT0}, {vT0}, 5, {vT3}")
        a("s_waitcnt lgkmcnt(0)")
        a(f"v_min_u32 {AD[2]}, {CAPX-1}, {AD[2]}")
        a(f"v_mad_u32_u24 {AD[2]}, {vT2}, {sCAPq}, {AD[2]}")
        a(f"v_mov_b32 {vT2}, {L_L0}")
        a(f"v_mov_b32 {vT3}, {L_L1}")
        a(f"v_lshl_add_u32 {vT2}, {AD[2]}, 2, {vT2}")
        a(f"v_lshl_add_u32 {vT3}, {AD[2]}, 1, {vT3}")
        a(f"ds_write_b32 {vT2}, {vT0}")
        a(f"ds_write_b16 {vT3}, {AD[1]}")
        a.label(lim_local)
        a(f"s_mov_b64 exec, {sSave}")
    a(f"s_lshl_b32 {sTmp}, {sC}, 9")
    a(f"v_add_u32 {vT1}, {sTmp}, v0")
    a(f"s_mul_i32 {sTmp2}, {sWsrc}, {CH}")
    a(f"v_add_u32 {vT0}, {sTmp2}, {vT1}")
    a(f"v_cmp_gt_u32 vcc, {CH}, {vT1}")
    a(f"s_mov_b32 {sTmp}, {E}")
    a(f"v_cmp_gt_u32 {sAny}, {sTmp}, {vT0}")
    a("s_nop 1")
    a(f"s_and_b64 {sAny}, {sAny}, vcc")
    append_raw("K2_RA1")
    a(f"s_add_u32 {sC}, {sC}, 1")
    a(f"s_cmp_lt_u32 {sC}, 7")
    a("s_cbranch_scc1 K2_RESCAN_C")
    a(f"s_add_u32 {sI}, {sI}, 1")
    a(f"s_cmp_lt_u32 {sI}, {sNR}")
    a("s_cbranch_scc1 K2_RESCAN_I")
    a("s_waitcnt lgkmcnt(0)")
    a("s_barrier")
    a(f"ds_read_b32 {vT2}, {aOH} offset:{L_CNT}")
    a(f"ds_read_b32 {vT3}, {SS} offset:{L_CNT}")
    a("s_waitcnt lgkmcnt(0)")
    a(f"v_min_u32 {vT0}, 0xffffff, {vT2}")
    a(f"v_min_u32 {vJ}, 0xffffff, {vT3}")
    a.label("K2_CHECK")
    a.c("window assignment by size rank")
    a(f"v_lshl_or_b32 {vT0}, {vT0}, 3, {aPS}")
    a(f"v_lshl_or_b32 {vJ}, {vJ}, 3, {aPD}")
    a(f"v_cmp_lt_u32 {sAny}, {sCAP}, {vT3}")
    a(f"v_cmp_gt_u32 vcc, {vJ}, {vT0}")
    a(f"s_mov_b32 {sWin}, 0")
    a("s_nop 2")
    for i in range(8):
        a(f"s_bfe_u32 {sTmp}, {'vcc_lo' if i<4 else 'vcc_hi'}, {(8<<16)|(8*(i&3))}")
        a(f"s_bcnt1_i32_b32 {sTmp}, {sTmp}")
        a(f"s_cmp_eq_u32 {sTmp}, {sTgt}")
        a(f"s_cselect_b32 {sWin}, {i}, {sWin}")
    if opt.get('nobal',0): a(f"s_mov_b32 {sWin}, {sWave}")
    a(f"s_lshl_b32 {sTmp}, {sWin}, 3")
    a(f"v_readlane_b32 {sCnt}, {vT2}, {sTmp}")
    geometry(sWin)
    a(f"s_lshl_b32 {sTmp}, {sWin}, 11")
    a(f"v_add_u32 {vE64}, {sTmp}, {vE64}")
    a(f"v_add_u32 {vTR}, {sTmp}, {vTR}")
    a(f"s_add_u32 {sTmp}, {sTmp}, {L_A2}")
    a(f"v_lshl_add_u32 {vT0}, {vL}, 5, {sTmp}")
    a(f"ds_read_b128 {WA[0:4]}, {vT0}")
    a(f"ds_read_b128 {WA[4:8]}, {vT0} offset:16")
    for i in range(4): a(f"v_mov_b32 {A2R[i]}, 0")
    a(f"ds_write_b128 {vT0}, {A2R[0:4]}")
    a(f"ds_write_b128 {vT0}, {A2R[0:4]} offset:16")
    a(f"s_cmp_eq_u64 {sAny}, 0")
    a("s_cbranch_scc1 K2_MAIN")
    a.c("generic (slow) mode: raw scan of all edges, 512 per round")
    a(f"s_mov_b32 {sMode}, 1")
    a.label("K2_GEN")
    a("s_barrier")
    a(f"s_cmp_lg_u32 {sWave}, 0")
    a("s_cbranch_scc1 K2_GEN1")
    a(f"v_and_b32 {vT0}, 7, {vL}")
    a(f"v_lshlrev_b32 {vT0}, 2, {vT0}")
    a(f"ds_write_b32 {vT0}, {vZ[0]} offset:{L_CNT}")
    a("s_waitcnt lgkmcnt(0)")
    a.label("K2_GEN1")
    a("s_barrier")
    a(f"s_lshl_b32 {sTmp}, {sChunk}, 9")
    a(f"v_add_u32 {vT0}, {sTmp}, v0")
    a(f"s_mov_b32 {sTmp}, {E}")
    a(f"v_cmp_gt_u32 {sAny}, {sTmp}, {vT0}")
    a("s_nop 1")
    append_raw("K2_RA2")
    a("s_waitcnt lgkmcnt(0)")
    a("s_barrier")
    a(f"s_lshl_b32 {sTmp}, {sWin}, 2")
    a(f"v_mov_b32 {vT0}, {sTmp}")
    a(f"ds_read_b32 {vT1}, {vT0} offset:{L_CNT}")
    a("s_waitcnt lgkmcnt(0)")
    a(f"v_readfirstlane_b32 {sCnt}, {vT1}")
    a("s_nop 3")
    a.label("K2_MAIN")
    if opt.get('dbgfill',0): stamp(a,opt,14)
    a(f"s_min_u32 {sCnt}, {sCnt}, {CAP}")
    a(f"s_add_u32 {sNT}, {sCnt}, 31")
    a(f"s_lshr_b32 {sNT}, {sNT}, 5")
    a(f"s_cmp_eq_u32 {sNT}, 0")
    a("s_cbranch_scc1 K2_MAIN_DONE")
    a(f"s_mul_i32 {sTmp}, {sWin}, {CAPX*4}")
    a(f"s_add_u32 {sTmp}, {sTmp}, {L_L0}")
    a(f"s_mul_i32 {sTmp2}, {sWin}, {CAPX*2}")
    a(f"s_add_u32 {sTmp2}, {sTmp2}, {L_L1}")
    a(f"v_and_b32 {vT0}, 31, {vL}")
    a(f"v_lshl_add_u32 {aL0}, {vT0}, 2, {sTmp}")
    a(f"v_lshl_add_u32 {aL1s}, {vT0}, 1, {sTmp2}")
    a(f"v_lshrrev_b32 {vT0}, 3, {vL}")
    a(f"v_lshl_add_u32 {aL1d}, {vT0}, 3, {sTmp2}")
    def pad():
        a(f"v_add_u32 {vT0}, {sCnt}, {vL}")
        a(f"v_lshl_add_u32 {vT1}, {vT0}, 2, {sTmp}")
        a(f"v_lshl_add_u32 {vT2}, {vT0}, 1, {sTmp2}")
        a(f"v_mov_b32 {vJ}, 7")
        a(f"ds_write_b32 {vT1}, {vJ}")
        a(f"ds_write_b16 {vT2}, {vZ[0]}")
        a(f"ds_write_b32 {vT1}, {vJ} offset:256")
        a(f"ds_write_b16 {vT2}, {vZ[0]} offset:128")
    def first_reads():
        a(f"ds_read_b32 {vT3}, {aL0}")
        a(f"ds_read_b64 {SD}, {aL1d}")
        a(f"ds_read_b32 {LE[1]}, {aL0} offset:128")
        a(f"ds_read_b32 {LE[0]}, {aL0} offset:256")
        a(f"ds_read_u16 {SS}, {aL1s}")
    a(f"s_cmp_ge_u32 {sCnt}, 96")
    a("s_cbranch_scc1 K2_FILL_BIG")
    pad()
    first_reads()
    a("s_waitcnt lgkmcnt(0)")
    a("s_branch K2_FILL")
    a.label("K2_FILL_BIG")
    first_reads()
    pad()
    a("s_waitcnt lgkmcnt(4)")
    a.label("K2_FILL")
    ENT=['',' nt',' sc1',' sc0 sc1',' sc0',' sc0 nt',' sc1 nt',' sc0 sc1 nt'][opt.get('e_nt',0)]
    def E_addr(le): a(f"v_and_or_b32 {aE}, {le}, {sMaskE}, {vHOFF}")
    def E_load(p): a(f"buffer_load_dwordx4 {EA[p]}, {aE}, {sE}, 0 offen{ENT}")
    def H_addr():
        if opt.get('hmask',0):
            a(f"v_and_b32 {SD[0]}, 0x03ff03ff, {SD[0]}"); a(f"v_and_b32 {SD[1]}, 0x03ff03ff, {SD[1]}")
        for i in range(4):
            a(f"v_mad_u32_u16 {AD[i]}, {SD[i>>1]}, {s128}, {vKD[i]}"+(" op_sel:[1,0,0,0]" if i&1 else ""))
    def H_load(i):
        a(f"s_mov_b32 m0, {sM0[i]}")
        a("s_nop 0")
        a(f"buffer_load_dwordx4 {AD[i]}, {sB}, 0 offen{HLD} lds")
    def P_addr(le,par):
        a(f"v_and_b32 {vJ}, 7, {le}")
        a(f"v_mul_u32_u24 {aPS}, 6, {SS}")
        a(f"v_mad_u32_u24 {aPD}, {vJ}, 6, {sN06}")
        a(f"v_lshlrev_b32 {aOH}, 4, {vJ}")
        a(f"v_lshl_add_u32 {aA2[par]}, {vJ}, 3, {vE64}")
    def P_reads():
        for c in range(3): a(f"ds_read_u16_d16_hi {PS[c]}, {aPS} offset:{L_POS+2*c}")
        for c in range(3): a(f"ds_read_u16_d16_hi {PD[c]}, {aPD} offset:{L_POS+2*c}")
        a(f"ds_read_b128 {OH}, {aOH} offset:{L_OH}")
    def P_calc_list(par):
        return [f"v_sub_f32 {DX[0]}, {PD[0]}, {PS[0]}", f"v_sub_f32 {DX[1]}, {PD[1]}, {PS[1]}", f"v_sub_f32 {DX[2]}, {PD[2]}, {PS[2]}",
                f"v_mul_f32 {DD}, {DX[0]}, {DX[0]}", f"v_fmac_f32 {DD}, {DX[1]}, {DX[1]}", f"v_fmac_f32 {DD}, {DX[2]}, {DX[2]}",
                f"v_cvt_pk_bf16_f32 {E01[0]}, 1.0, {DX[0]}", f"v_cvt_pk_bf16_f32 {E01[1]}, {DX[1]}, {DX[2]}",
                f"v_cvt_pk_bf16_f32 {OH[3]}, {OH[3]}, {DD}",
                f"ds_write_b64 {aA2[par]}, {E01}"]
    def first_loads():
        E_addr(vT3); E_load(0)
        H_addr()
        for i in range(4): H_load(i)
        E_addr(LE[1]); E_load(1)
    def first_prep(readsd):
        P_addr(vT3,0); P_reads()
        if readsd:
            a(f"ds_read_b64 {SD}, {aL1d} offset:64")
        a(f"ds_read_u16 {SS}, {aL1s} offset:64")
        for i in range(16): a(f"v_mov_b32 {T[i]}, 0")
        for i in range(8): a(f"v_mov_b32 {A2R[i]}, 0")
        a("s_waitcnt lgkmcnt(0)")
        for ins in P_calc_list(0): a(ins)
    if opt.get('stagger',1):
        a.c("the younger partner prepares tile 0 first, so the older waves' first rows are requested ahead of it")
        a(f"s_cmp_ge_u32 {sWave}, 4")
        a("s_cbranch_scc1 K2_FILL_B")
    first_loads()
    if opt.get('dbgfill',0): stamp(a,opt,15)
    first_prep(True)
    if opt.get('stagger',1):
        a("s_branch K2_FILL_J")
        a.label("K2_FILL_B")
        first_prep(False)
        first_loads()
        a(f"ds_read_b64 {SD}, {aL1d} offset:64")
        a("s_waitcnt lgkmcnt(0)")
        a.label("K2_FILL_J")
    H_addr()
    P_addr(LE[1],1)
    E_addr(LE[0])
    a("s_waitcnt vmcnt(1)")
    for s_ in range(4): a(f"ds_read_b128 {HA[4*s_:4*s_+4]}, {vHA[s_]}")
    Da,Db=D1[0:16],D1[16:32]
    mfma(a,Da,OH,WA[0:4],"0")
    mfma(a,Da,EA[0],WE[0:4],Da)
    a("s_waitcnt lgkmcnt(0)")
    for i in range(4): H_load(i)
    mfma(a,Da,HA[0:4],ID[0:4],Da)
    mfma(a,Da,HA[4:8],ID[4:8],Da)
    a(f"s_mov_b32 {sT}, 0")
    stamp(a,opt,8)
    if DBG:
        a("s_memtime s[80:81]")
        a("s_waitcnt lgkmcnt(0)")
    a.nop(12)
    MADD=opt.get('madd',1)
    PB_=[0]; MF=[False]
    def prio(p):
        if PRIO: a(f"s_setprio {p+PB_[0] if PB_[0]>=0 else 3}")
    def Tsec(kind,x,p):
        Dx=D1[16*x:16*x+16]; o=1-x; Do=D1[16*o:16*o+16]; D2o=D2[16*o:16*o+16]
        prio(1)
        if kind=='X':
            ea = EA[p] if x==0 else EA[1-p]
            mfma(a,Do,OH,WA[4*o:4*o+4],"0")
            for i in range(8): a(f"v_cvt_pk_bf16_f32 {M[i]}, {T[2*i]}, {T[2*i+1]}")
            mfma(a,Do,ea,WE[4*o:4*o+4],Do)
            for i in range(16):
                if i==6:
                    if x==1: a("s_waitcnt lgkmcnt(2)")
                    mfma(a,D2o,A2R[0:4],M[0:4],D2o)
                a(f"v_exp_f32 {T[i]}, {Dx[i]}")
            if MADD:
                a("s_nop 1")
                mfma(a,T,ONE,ONE,T)
        else:
            hb = HA[8:16] if x==0 else HA[0:8]
            for i in range(16):
                if i==0: mfma(a,Do,hb[0:4],ID[0:4],Do)
                if i==5: mfma(a,Do,hb[4:8],ID[4:8],Do)
                if i==10: mfma(a,D2o,A2R[4:8],M[4:8],D2o)
                a(f"v_rcp_f32 {T[i]}, {T[i]}")
        prio(0)
    def tile(p):
        q=1-p
        Tsec('X',0,p)
        if not opt.get('e_late',0): E_load(p)
        else: a("s_nop 0")
        P_reads()
        a(f"ds_read_b64 {SD}, {aL1d} offset:{64*(p+2)}")
        if not MADD:
            for i in range(16): a(f"v_add_f32 {T[i]}, 1.0, {T[i]}")
        else:
            a.nop(2)
        Tsec('R',0,p)
        def mulsA():
            for i in range(16): a(f"v_mul_f32 {T[i]}, {Da[i]}, {T[i]}")
        if MF[0]: mulsA()
        a(f"s_waitcnt vmcnt({0 if opt.get('e_late',0) else 1}) lgkmcnt(0)")
        for s_ in range(4): a(f"ds_read_b128 {HA[4*s_:4*s_+4]}, {vHA[s_]}")
        for k in range(4): a(f"ds_read_b64_tr_b16 {A2R[2*k:2*k+2]}, {vTR} offset:{512*k}")
        a(f"ds_write_b64 {aA2[p]}, {vZ}")
        pc=P_calc_list(q)
        for ins in pc[:6]: a(ins)
        H_addr()
        if not MF[0]: mulsA()
        for ins in pc[6:]: a(ins)
        if MF[0]: a("s_nop 0")
        Tsec('X',1,p)
        a("s_waitcnt lgkmcnt(0)")
        if opt.get('e_late',0)==1: E_load(p)
        for i in range(4): H_load(i)
        a(f"ds_read_b32 {LE[q]}, {aL0} offset:{128*(p+3)}")
        a(f"ds_read_u16 {SS}, {aL1s} offset:{64*(p+2)}")
        if not MADD:
            for i in range(16): a(f"v_add_f32 {T[i]}, 1.0, {T[i]}")
        Tsec('R',1,p)
        def mulsB():
            for i in range(16): a(f"v_mul_f32 {T[i]}, {Db[i]}, {T[i]}")
        if MF[0]: mulsB()
        a("s_waitcnt lgkmcnt(0)")
        E_addr(LE[q])
        P_addr(LE[p],p)
        if p==1:
            a(f"v_add_u32 {aL0}, 256, {aL0}")
            a(f"v_add_u32 {aL1s}, 128, {aL1s}")
            a(f"v_add_u32 {aL1d}, 128, {aL1d}")
        if not MF[0]: mulsB()
    def drain(par):
        for i in range(8): a(f"v_cvt_pk_bf16_f32 {M[i]}, {T[2*i]}, {T[2*i+1]}")
        a(f"ds_write_b64 {aA2[par]}, {vZ}")
        a("s_nop 0")
        mfma(a,D2[16:32],A2R[0:4],M[0:4],D2[16:32])
        mfma(a,D2[16:32],A2R[4:8],M[4:8],D2[16:32])
    def main_loop(sfx):
        a(".p2align 6")
        a.label("K2_LOOP"+sfx)
        tile(0)
        a(f"s_add_u32 {sT}, {sT}, 1")
        a(f"s_cmp_ge_u32 {sT}, {sNT}")
        a("s_cbranch_scc1 K2_EXIT_ODD"+sfx)
        tile(1)
        a(f"s_add_u32 {sT}, {sT}, 1")
        a(f"s_cmp_lt_u32 {sT}, {sNT}")
        a("s_cbranch_scc1 K2_LOOP"+sfx)
        drain(0)
        a("s_branch K2_LOOP_DONE")
        a.label("K2_EXIT_ODD"+sfx)
        drain(1)
    HP=opt.get('mfirst',2)
    if HP==1:
        a.c("the younger partner (waves 4..7) opens its plain sections with the multiplies, so both partners' multiplies pair up")
        a(f"s_cmp_ge_u32 {sWave}, 4")
        a("s_cbranch_scc1 K2_LOOP_H")
    if HP==2: MF[0]=True
    main_loop("")
    if HP==1:
        a("s_branch K2_LOOP_DONE")
        MF[0]=True
        main_loop("_H")
        MF[0]=False
    a.label("K2_LOOP_DONE")
    if PRIO: a("s_setprio 0")
    a.label("K2_MAIN_DONE")
    stamp(a,opt,9)
    if DBG:
        a("s_memtime s[82:83]")
        a("s_waitcnt lgkmcnt(0)")
        a("s_sub_u32 s80, s82, s80")
        a(f"v_writelane_b32 {VDBG}, s80, 12")
        a(f"v_writelane_b32 {VDBG}, {sNT}, 11")
    a(f"s_cmp_eq_u32 {sMode}, 0")
    a("s_cbranch_scc1 K2_EPI")
    a("s_waitcnt vmcnt(0) lgkmcnt(0)")
    a(f"s_add_u32 {sChunk}, {sChunk}, 1")
    a(f"s_cmp_lt_u32 {sChunk}, {(E+511)//512}")
    a("s_cbranch_scc1 K2_GEN")
    a.label("K2_EPI")
    a.c("segment sums of this window: m_i (bf16) -> rows of this window's (now idle) A2 slice")
    a(f"s_lshl_b32 {sHST}, {sWin}, 11")
    a(f"s_add_u32 {sHST}, {sHST}, {L_A2}")
    a(f"v_and_b32 {vJ}, 31, {vL}")
    a(f"s_mov_b32 {sTmp}, {NEG_LN2}")
    a(f"v_lshrrev_b32 {vT2}, 5, {vL}")
    a(f"v_lshlrev_b32 {vT2}, 7, {vT2}")
    a(f"v_lshl_add_u32 {vT2}, {vJ}, 1, {vT2}")
    a(f"v_add_u32 {vT2}, {sHST}, {vT2}")
    a.nop(8)
    for qq in range(4):
        a(f"v_mul_f32 {AD[0]}, {sTmp}, {D2[4*qq]}")
        a(f"v_mul_f32 {AD[1]}, {sTmp}, {D2[16+4*qq]}")
        a(f"v_cvt_pk_bf16_f32 {AD[2]}, {AD[0]}, {AD[1]}")
        a(f"ds_write_b16 {vT2}, {AD[2]} offset:{qq*256}")
        a(f"ds_write_b16_d16_hi {vT2}, {AD[2]} offset:{qq*256+64}")
    def pos_part():
        a.c("coordinate update of this window")
        PP=T
        for qq in range(4):
            for c in range(1,4):
                r=PP[qq*3+c-1]
                a(f"v_mul_f32 {r}, {WX[0]}, {D2[4*qq+c]}")
                a(f"v_fmac_f32 {r}, {WX[1]}, {D2[16+4*qq+c]}")
        for sh in (1,2,4,8):
            for i in range(12): a(f"v_add_f32_dpp {PP[i]}, {PP[i]}, {PP[i]} row_shr:{sh} row_mask:0xf bank_mask:0xf bound_ctrl:0")
        for i in range(12): a(f"v_add_f32_dpp {PP[i]}, {PP[i]}, {PP[i]} row_bcast:15 row_mask:0xa bank_mask:0xf")
        a(f"v_lshrrev_b32 {vT2}, 5, {vL}")
        a(f"v_lshlrev_b32 {vT2}, 4, {vT2}")
        a(f"s_add_u32 {sTmp}, {sHST}, 1024")
        a(f"v_add_u32 {vT2}, {sTmp}, {vT2}")
        a("s_mov_b32 exec_lo, 0x80000000")
        a("s_mov_b32 exec_hi, 0x80000000")
        for qq in range(4):
            for c in range(3):
                a(f"ds_write_b32 {vT2}, {PP[qq*3+c]} offset:{qq*32+c*4}")
        a("s_mov_b64 exec, -1")
        a(f"v_mul_u32_u24 {vT2}, 86, {vL}")
        a(f"v_lshrrev_b32 {vT2}, 8, {vT2}")
        a(f"v_mul_u32_u24 {vT3}, 3, {vT2}")
        a(f"v_sub_u32 {vT3}, {vL}, {vT3}")
        a(f"v_lshlrev_b32 {vT2}, 4, {vT2}")
        a(f"v_lshl_add_u32 {vT2}, {vT3}, 2, {vT2}")
        a(f"v_add_u32 {vT2}, {sTmp}, {vT2}")
        a(f"v_min_u32 {vT2}, {LDS2-4}, {vT2}")
        a(f"ds_read_b32 {AD[0]}, {vT2}")
        a(f"v_lshl_add_u32 {vT3}, {vL}, 1, {sN06}")
        a(f"v_min_u32 {vT2}, {POS_SZ-2}, {vT3}")
        a(f"ds_read_u16_d16_hi {PS[0]}, {vT2} offset:{L_POS}")
        a(f"s_mul_i32 {sTmp}, {sNJ}, 3")
        a(f"v_cmp_gt_u32 vcc, {sTmp}, {vL}")
        a(f"v_add_u32 {vT3}, {OUT_POS}, {vT3}")
        a(f"v_mov_b32 {vT2}, 0x40000000")
        a("s_waitcnt lgkmcnt(0)")
        a(f"v_cndmask_b32 {vT3}, {vT2}, {vT3}, vcc")
        a(f"v_add_f32 {AD[0]}, {AD[0]}, {PS[0]}")
        a(f"v_cvt_pk_bf16_f32 {AD[0]}, {AD[0]}, {AD[0]}")
        a(f"buffer_store_short {AD[0]}, {vT3}, {sO}, 0 offen{OST}")
    a.c("job waves 4..7: row tile r = (v-4)>>1 (rows = window 4r + (m>>3), node m&7), feature half x = v&1")
    a(f"s_cmp_lt_u32 {sWave}, 4")
    a("s_cbranch_scc1 K2_EPI_NOJOB")
    a(f"s_sub_u32 {sTmp2}, {sWave}, 4")
    a(f"s_lshr_b32 {sTmp2}, {sTmp2}, 1")
    a(f"s_lshl_b32 {sTmp2}, {sTmp2}, 2")
    a(f"v_bfe_u32 {vT0}, {vL}, 3, 2")
    a(f"v_add_u32 {vT0}, {sTmp2}, {vT0}")
    a(f"v_and_b32 {vJ}, 7, {vL}")
    a(f"v_lshlrev_b32 {aL1d}, 11, {vT0}")
    a(f"v_lshl_add_u32 {aL1d}, {vJ}, 7, {aL1d}")
    a(f"v_add_u32 {aL1d}, {L_A2}, {aL1d}")
    a(f"v_add_u32 {aL1d}, {aL1d}, {vHOFF}")
    a(f"s_lshl_b32 {sTmp2}, s2, 3")
    a(f"v_add_u32 {vT0}, {sTmp2}, {vT0}")
    a(f"v_mad_u32_u24 {SD[0]}, {vT0}, {s3125}, {v511}")
    a(f"v_add_u32 {SD[1]}, 3125, {SD[0]}")
    a(f"v_lshrrev_b32 {SD[0]}, 9, {SD[0]}")
    a(f"v_lshrrev_b32 {SD[1]}, 9, {SD[1]}")
    a(f"v_sub_u32 {SD[1]}, {SD[1]}, {SD[0]}")
    a(f"v_cmp_lt_u32 vcc, {vJ}, {SD[1]}")
    a(f"v_add_u32 {vT1}, -1, {SD[1]}")
    a(f"v_min_u32 {vT1}, {vT1}, {vJ}")
    a(f"v_add_u32 {vT1}, {SD[0]}, {vT1}")
    a(f"v_lshlrev_b32 {vT1}, 7, {vT1}")
    a(f"v_add_u32 {vT0}, {vT1}, {vHOFF}")
    for s_ in range(4):
        a(f"buffer_load_dwordx4 {HA[4*s_:4*s_+4]}, {vT0}, {sHs}, 0 offen offset:{32*s_}")
    a(f"s_and_b32 {sTmp2}, {sWave}, 1")
    a(f"s_lshl_b32 {sTmp2}, {sTmp2}, 6")
    a(f"v_lshrrev_b32 {vT0}, 1, {vHOFF}")
    a(f"v_add3_u32 {aL0}, {vT1}, {vT0}, {sTmp2}")
    for qq in range(4):
        a(f"buffer_load_dwordx2 {M[2*qq:2*qq+2]}, {aL0}, {sHs}, 0 offen offset:{16*qq}")
    a(f"v_mov_b32 {vT0}, 0x40000000")
    a(f"v_cndmask_b32 {aL1s}, {vT0}, {aL0}, vcc")
    pos_part()
    HV=D2[0:16]
    a("s_waitcnt vmcnt(1)")
    for s_ in range(4):
        mfma(a,D1[0:16],WH[4*s_:4*s_+4],HA[4*s_:4*s_+4],"0" if s_==0 else D1[0:16])
    for qq in range(4):
        a(f"v_lshlrev_b32 {HV[4*qq]}, 16, {M[2*qq]}")
        a(f"v_and_b32 {HV[4*qq+1]}, 0xffff0000, {M[2*qq]}")
        a(f"v_lshlrev_b32 {HV[4*qq+2]}, 16, {M[2*qq+1]}")
        a(f"v_and_b32 {HV[4*qq+3]}, 0xffff0000, {M[2*qq+1]}")
    stamp(a,opt,10)
    a("s_barrier")
    MA=[EA[0],EA[1],A2R[0:4],A2R[4:8]]
    for s_ in range(4): a(f"ds_read_b128 {MA[s_]}, {aL1d} offset:{32*s_}")
    for s_ in range(4):
        a(f"s_waitcnt lgkmcnt({3-s_})")
        mfma(a,D1[0:16],WH[16+4*s_:20+4*s_],MA[s_],D1[0:16])
    a(f"s_mov_b32 {sTmp}, {NEG_LOG2E}")
    a.nop(14)
    X=D1[0:16]
    for i in range(16): a(f"v_mul_f32 {T[i]}, {sTmp}, {X[i]}")
    for i in range(16): a(f"v_exp_f32 {T[i]}, {T[i]}")
    for i in range(16): a(f"v_add_f32 {T[i]}, 1.0, {T[i]}")
    for i in range(16): a(f"v_rcp_f32 {T[i]}, {T[i]}")
    a("s_nop 0")
    for i in range(16): a(f"v_fma_f32 {T[i]}, {X[i]}, {T[i]}, {HV[i]}")
    for qq in range(4):
        a(f"v_cvt_pk_bf16_f32 {M[2*qq]}, {T[4*qq]}, {T[4*qq+1]}")
        a(f"v_cvt_pk_bf16_f32 {M[2*qq+1]}, {T[4*qq+2]}, {T[4*qq+3]}")
        a(f"buffer_store_dwordx2 {M[2*qq:2*qq+2]}, {aL1s}, {sO}, 0 offen offset:{16*qq}{OST}")
    a("s_branch K2_FIN")
    a.label("K2_EPI_NOJOB")
    a("s_waitcnt lgkmcnt(0)")
    stamp(a,opt,10)
    a("s_barrier")
    pos_part()
    a.label("K2_FIN")
    if DBG:
        a("s_waitcnt vmcnt(0)")
        stamp(a,opt,13)
        a(f"s_lshl_b32 {sTmp}, s2, 4")
        a(f"s_add_u32 {sTmp}, {sTmp}, {sWave}")
        a(f"s_lshl_b32 {sTmp}, {sTmp}, 6")
        a(f"s_add_u32 {sTmp}, {sTmp}, {DBG_OFF}")
        a(f"v_lshlrev_b32 {vT0}, 2, {vL}")
        a("s_mov_b32 exec_lo, 0xffff")
        a("s_mov_b32 exec_hi, 0")
        a(f"buffer_store_dword {VDBG}, {vT0}, {sW}, {sTmp} offen")
        a("s_waitcnt vmcnt(0)")
    a.label("K_END")
    a("s_endpgm")
    a.label("K_CODE_END")
    return nv

HEADER='''; Kernarg layout (88 bytes, ptrs only): h, pos, e_attr, src, dst, w_e, w_x, w_h, out, debug, ws
; @launch grid=(256,1,1) block=(512,1,1) lds={lds2}
.amdgcn_target "amdgcn-amd-amdhsa--gfx950"
.text
.globl {k}
.p2align 8
.type {k},@function
'''
def kd(name,nv,ns):
    acc=(nv+3)//4*4
    return f'''.amdhsa_kernel {name}
  .amdhsa_next_free_vgpr {acc}
  .amdhsa_next_free_sgpr {ns}
  .amdhsa_accum_offset {acc}
  .amdhsa_group_segment_fixed_size 0
  .amdhsa_kernarg_size 88
  .amdhsa_user_sgpr_count 2
  .amdhsa_user_sgpr_kernarg_segment_ptr 1
  .amdhsa_system_sgpr_workgroup_id_x 1
  .amdhsa_float_denorm_mode_32 3
.end_amdhsa_kernel
'''
def build(opt):
    out=HEADER.format(lds2=LDS2,k=KNAME)
    a=Asm()
    nv=gen(a,opt)
    assert nv<=255
    out+=a.text()
    out+='.section .rodata,"a"\n.p2align 6\n'+kd(KNAME,256,102)
    return out,nv
if __name__=="__main__":
    opt={}
    for arg in sys.argv[2:]:
        k,v=arg.split('='); opt[k]=int(v)
    txt,nv=build(opt)
    open(sys.argv[1],'w').write(txt)
    print("vgprs:",nv,"LDS",LDS2,"lines",txt.count("\n"),"WS",WS_BYTES)
```

```python
import sys, struct
from asmlib import *

N=12500; E=800000; CH=3136; NSRC=256; NBIN=256; NPW=49
KW=703687442
LOG2E=1.4426950408889634; LN2=0.6931471805599453
def f2u(x): return struct.unpack('<I',struct.pack('<f',x))[0]
NEG_LOG2E=f2u(-LOG2E); NEG_LN2=f2u(-LN2)
SENT=0xFFFFFFFF; MARK=0xFFFFFFFE
CELLS=0; BPT=NBIN*NSRC*128; FLG=BPT+N*128+((-N*128)%4096); FLG2=FLG+4096; WS_BYTES=FLG2+8192
OUT_BYTES=N*64*2+N*3*2; OUT_POS=N*64*2
CAP=576; CAPX=704
L_OH=0; L_CNT=128; L_NRES=160; L_WIN=192; L_RES=256; L_POS=1280; POS_SZ=74*1024
L_L0=L_POS+POS_SZ; L_L1=L_L0+8*CAPX*4; L_A2=L_L1+8*CAPX*2; L_HST=L_A2+8*2048; LDS2=L_HST+8*4096
assert LDS2<=163840, LDS2
L_RAWW=L_L0; L_BST=L_L0+19*1024; assert L_BST+2*32*144<=L_A2
DBG_OFF=16*1024*1024

def WSB(opt): return (32*1024*1024 if opt.get('dbg',0) else WS_BYTES)
def srd(a, s, lo, hi, size):
    a(f"s_mov_b32 {s[0]}, {lo}")
    a(f"s_and_b32 {s[1]}, {hi}, 0xffff")
    a(f"s_mov_b32 {s[2]}, {size}")
    a(f"s_mov_b32 {s[3]}, 0x20000")
VDBG="v255"
def stamp(a,opt,idx):
    if not opt.get('dbg',0): return
    a("s_memrealtime s[100:101]")
    a("s_waitcnt lgkmcnt(0)")
    a(f"v_writelane_b32 {VDBG}, s100, {idx}")
def S(i,n=1): return R('s',i,n)
def V(i,n=1): return R('v',i,n)
def mfma(a,d,A,B,c): a(f"v_mfma_f32_32x32x16_bf16 {d}, {A}, {B}, {c}")

NPOS1=24
KNAME="gather_scatter__cheap_equivariant_egnn__graph_kernel"
def gen(a, opt):
    DBG=opt.get('dbg',0)
    PRIO=opt.get('prio',1)
    ST=[" sc1"," sc0 sc1"," sc1 nt"," sc0 sc1 nt"][opt.get('st',0)]; LD=" sc1" if opt.get('ld_sc1',1) else ""
    HLD=[""," sc1"," sc0 sc1"," sc1 nt"," sc0 sc1 nt"][opt.get('h_sc1',1)]
    SNT=" nt" if opt.get('snt',0) else ""
    OST=[""," nt"," sc1"," sc0 sc1"][opt.get('ost',0)]
    a.label(KNAME)
    sB=S(4,4); sE=S(8,4); sW=S(12,4); sO=S(16,4); sP=S(20,4); sS=S(24,4); sD=S(28,4)
    sWave=S(32); sN0=S(33); sNJ=S(34); sN06=S(35); sNT=S(36); sT=S(37); sMode=S(38); sChunk=S(39)
    sMaskE=S(40); s128=S(41); sK=S(42); s3125=S(43); sLim=S(44); sCAP=S(44); sCnt=S(45); sTmp=S(46); sTmp2=S(47)
    sM0=S(48,4); sSave=S(52,2); sAny=S(54,2); sNR=S(56); sI=S(57); sC=S(58); sWsrc=S(59); sMark=S(60); sCAPq=S(61); sHST=S(62); sTmp3=S(63)
    sMask=[S(64+2*i,2) for i in range(16)]
    sTagOff=S(36)
    sRot=S(39+0) if False else S(37)
    sWin=S(96); sTgt=S(97); sNonce=S(98); sPoll=S(99)
    sT4=S(84,4); sT4b=S(88,4); sT4c=S(92,4)
    sHw=S(48,4)
    sHs=S(68,4); sWx=S(72,4)
    vr=Regs(1,256,'v')
    vL=vr.alloc('lane')
    WE=vr.alloc('WE',8,4); WA=vr.alloc('WA',8,4); ID=vr.alloc('ID',8,4); D2=vr.alloc('D2',32,4)
    D1=vr.alloc('D1',32,4); HA=vr.alloc('HA',16,4); T=vr.alloc('T',16,4); M=vr.alloc('M',8,4)
    A2R=vr.alloc('A2R',8,4); EA=[vr.alloc('EA0',4,4),vr.alloc('EA1',4,4)]; OH=vr.alloc('OH',4,4)
    WH=vr.alloc('WH',32,4); ONE=vr.alloc('ONE',4,4)
    vHA=vr.alloc('vHA',4); vKD=vr.alloc('vKD',4); vTR=vr.alloc('vTR'); vE64=vr.alloc('vE64'); vHOFF=vr.alloc('vHOFF')
    vZ=vr.alloc('vZ',2,2); aL0=vr.alloc('aL0'); aL1s=vr.alloc('aL1s'); aL1d=vr.alloc('aL1d')
    LE=[vr.alloc('LE0'),vr.alloc('LE1')]; aA2=[vr.alloc('aA2_0'),vr.alloc('aA2_1')]
    SD=vr.alloc('SD',2,2); SS=vr.alloc('SS'); PS=vr.alloc('PS',3); PD=vr.alloc('PD',3)
    E01=vr.alloc('E01',2,2); DX=vr.alloc('DX',3); DD=vr.alloc('DD'); AD=vr.alloc('AD',4); vJ=vr.alloc('vJ')
    aE=vr.alloc('aE'); aPS=vr.alloc('aPS'); aPD=vr.alloc('aPD'); aOH=vr.alloc('aOH')
    vT0=vr.alloc('vT0'); vT1=vr.alloc('vT1'); vT2=vr.alloc('vT2'); vT3=vr.alloc('vT3')
    vOne=vr.alloc('vOne'); v511=vr.alloc('v511'); vTRW=vr.alloc('vTRW'); vL16=vr.alloc('vL16'); WX=vr.alloc('WX',2); vDUM=vr.alloc('vDUM')
    nv=vr.next
    HW=T
    def geometry(win):
        a(f"s_lshl_b32 {sTmp}, s2, 3")
        a(f"s_add_u32 {sTmp}, {sTmp}, {win}")
        a(f"s_mul_i32 {sN0}, {sTmp}, 3125")
        a(f"s_add_u32 {sNJ}, {sN0}, {3125+511}")
        a(f"s_add_u32 {sN0}, {sN0}, 511")
        a(f"s_lshr_b32 {sN0}, {sN0}, 9")
        a(f"s_lshr_b32 {sNJ}, {sNJ}, 9")
        a(f"s_sub_u32 {sNJ}, {sNJ}, {sN0}")
        a(f"s_mul_i32 {sN06}, {sN0}, 6")
    def dma(vaddr,srd_,soff,ldsbase_const=None,ldsreg=None):
        pass

    def load_hwin():
        a.c("h rows of the natural window (A operand of h@W1; needed after barrier C)")
        a(f"v_bfe_u32 {vT0}, {vL}, 3, 1")
        a(f"v_and_b32 {vT2}, 3, {vL}")
        a(f"v_lshl_add_u32 {vT0}, {vT0}, 2, {vT2}")
        a(f"s_sub_u32 {sTmp}, {sNJ}, 1")
        a(f"v_min_u32 {vT0}, {sTmp}, {vT0}")
        a(f"v_add_u32 {vT0}, {sN0}, {vT0}")
        a(f"v_lshl_add_u32 {vT0}, {vT0}, 7, {vHOFF}")
        for s_ in range(4):
            a(f"buffer_load_dwordx4 {HW[4*s_:4*s_+4]}, {vT0}, {sHw}, 0 offen offset:{32*s_}")
    a("s_cmp_ge_u32 s2, 256")
    a("s_cbranch_scc1 K_END")
    a("s_load_dwordx4 s[64:67], s[0:1], 0")
    a("s_load_dwordx4 s[68:71], s[0:1], 16")
    a("s_load_dwordx4 s[72:75], s[0:1], 32")
    a("s_load_dwordx4 s[76:79], s[0:1], 64")
    a("s_load_dwordx2 s[80:81], s[0:1], 80")
    a(f"v_and_b32 {vL}, 63, v0")
    a(f"v_lshrrev_b32 {vT0}, 6, v0")
    a(f"v_lshlrev_b32 {vL16}, 4, {vL}")
    a(f"v_readfirstlane_b32 {sWave}, {vT0}")
    if opt.get('cpf',1):
        a.c("pull this workgroup's share of the kernel's own code into L2 (read only, speed only)")
        NL=opt.get('cpf_lines',8)
        a("s_getpc_b64 s[84:85]")
        a.label("K_PC")
        a("s_and_b32 s85, s85, 0xffff")
        a("s_mov_b32 s86, K_CODE_END-K_PC")
        a("s_mov_b32 s87, 0x20000")
        if opt.get('cpf',1)==1:
            a(f"s_lshr_b32 {sTmp}, s2, 3")
            a(f"s_and_b32 {sTmp}, {sTmp}, 31")
            a(f"s_mul_i32 {sTmp}, {sTmp}, {NL*128}")
            a(f"v_lshlrev_b32 {vT1}, 7, {vL}")
            a(f"v_add_u32 {vT1}, {sTmp}, {vT1}")
            a(f"s_cmp_lg_u32 {sWave}, 3")
            a("s_cbranch_scc1 K_NOCPF")
            a(f"s_mov_b32 exec_lo, {(1<<NL)-1}")
            a("s_mov_b32 exec_hi, 0")
            a(f"buffer_load_dword {vDUM}, {vT1}, s[84:87], 0 offen")
            a("s_mov_b64 exec, -1")
        elif opt.get('cpf',1)==2:
            a(f"s_mul_i32 {sTmp}, {sWave}, {24*128}")
            a(f"v_lshlrev_b32 {vT1}, 7, {vL}")
            a(f"v_add_u32 {vT1}, {sTmp}, {vT1}")
            a(f"s_mov_b32 exec_lo, {(1<<24)-1}")
            a("s_mov_b32 exec_hi, 0")
            a(f"buffer_load_dword {vDUM}, {vT1}, s[84:87], 0 offen")
            a("s_mov_b64 exec, -1")
        elif opt.get('cpf',1)==3:
            a(f"s_lshr_b32 {sTmp}, s2, 3")
            a(f"s_and_b32 {sTmp}, {sTmp}, 3")
            a(f"s_mul_i32 {sTmp}, {sTmp}, {48*128}")
            a(f"v_lshlrev_b32 {vT1}, 7, {vL}")
            a(f"v_add_u32 {vT1}, {sTmp}, {vT1}")
            a(f"s_cmp_lg_u32 {sWave}, 3")
            a("s_cbranch_scc1 K_NOCPF")
            a("s_mov_b32 exec_hi, 0xffff")
            a(f"buffer_load_dword {vDUM}, {vT1}, s[84:87], 0 offen")
            a("s_mov_b64 exec, -1")
        a.label("K_NOCPF")
    a(f"v_lshrrev_b32 {vT2}, 5, {vL}")
    a(f"v_lshlrev_b32 {vHOFF}, 4, {vT2}")
    a(f"v_mov_b32 {vZ[0]}, 0")
    a(f"v_mov_b32 {vZ[1]}, 0")
    geometry(sWave)
    a(f"s_mul_i32 {sTmp}, s2, {CH*4}")
    a(f"s_mul_i32 {sTmp2}, {sWave}, {384*4}")
    a(f"s_add_u32 {sTmp}, {sTmp}, {sTmp2}")
    a(f"v_lshl_add_u32 {vT0}, {vL}, 3, {sTmp}")
    a("s_waitcnt lgkmcnt(0)")
    stamp(a,opt,0)
    srd(a,sD,"s72","s73",E*4)
    srd(a,sS,"s70","s71",E*4)
    a.c("every wave: six edges per lane, local edge = 384v + 128k + 2l + u; wave 7 also takes edges 3072 + l")
    DS_=D1[0:7]; SR_=D1[8:15]
    for k in range(3): a(f"buffer_load_dwordx2 {D1[2*k:2*k+2]}, {vT0}, {sD}, 0 offen offset:{512*k}{SNT}")
    for k in range(3): a(f"buffer_load_dwordx2 {D1[8+2*k:10+2*k]}, {vT0}, {sS}, 0 offen offset:{512*k}{SNT}")
    srd(a,sT4,"s64","s65",N*128)
    srd(a,sHw,"s64","s65",N*128)
    srd(a,sT4b,"s74","s75",145*128)
    a(f"s_cmp_eq_u32 {sWave}, 7")
    a("s_cbranch_scc1 K_S_W7")
    a(f"s_cmp_eq_u32 {sWave}, 4")
    a("s_cbranch_scc1 K_S_W4")
    a(f"s_cmp_lt_u32 {sWave}, 5")
    a("s_cbranch_scc1 K_S_COMMON")
    a.c("waves 5,6: private raw W2 copy + h rows for the source-node table")
    a(f"s_sub_u32 {sI}, {sWave}, 5")
    a(f"s_lshl_b32 {sC}, {sI}, 13")
    a(f"s_add_u32 {sC}, {sC}, {L_A2}")
    for i in range(8):
        a(f"s_add_u32 {sTmp}, {sC}, {i*1024}")
        a(f"s_mov_b32 m0, {sTmp}")
        a(f"s_mov_b32 {sTmp2}, {8192+i*1024}")
        a(f"buffer_load_dwordx4 {vL16}, {sT4b}, {sTmp2} offen lds")
    a(f"s_mul_i32 {sTmp}, s2, {NPW}")
    a(f"s_lshl_b32 {sTmp2}, {sI}, 5")
    a(f"s_add_u32 {sTmp}, {sTmp}, {sTmp2}")
    a(f"v_and_b32 {vT0}, 31, {vL}")
    a(f"v_add_u32 {vT0}, {sTmp}, {vT0}")
    a(f"v_lshl_add_u32 {vT0}, {vT0}, 7, {vHOFF}")
    for s_ in range(4): a(f"buffer_load_dwordx4 {HA[4*s_:4*s_+4]}, {vT0}, {sT4}, 0 offen offset:{32*s_}")
    a("s_branch K_S_COMMON")
    a.label("K_S_W4")
    a.c("wave 4: this workgroup's share of the L2 warm-up of pos and w_h (speed only)")
    a("s_load_dwordx2 s[82:83], s[0:1], 56")
    srd(a,sP,"s66","s67",N*6)
    a(f"s_lshr_b32 {sTmp}, s2, 3")
    a(f"s_and_b32 {sTmp}, {sTmp}, 31")
    a(f"s_mul_i32 {sTmp2}, {sTmp}, {19*128}")
    a(f"v_lshlrev_b32 {vT0}, 7, {vL}")
    a(f"v_add_u32 {vT1}, {sTmp2}, {vT0}")
    a(f"v_cmp_gt_u32 vcc, 19, {vL}")
    a(f"v_mov_b32 {vT2}, 0x40000000")
    a("s_waitcnt lgkmcnt(0)")
    a(f"v_cndmask_b32 {vT1}, {vT2}, {vT1}, vcc")
    a(f"buffer_load_dword {vDUM}, {vT1}, {sP}, 0 offen")
    srd(a,sT4b,"s82","s83",128*128)
    a(f"s_lshl_b32 {sTmp2}, {sTmp}, 9")
    a(f"v_add_u32 {vT1}, {sTmp2}, {vT0}")
    a(f"v_cmp_gt_u32 vcc, 4, {vL}")
    a("s_nop 1")
    a(f"v_cndmask_b32 {vT1}, {vT2}, {vT1}, vcc")
    a(f"buffer_load_dword {vDUM}, {vT1}, {sT4b}, 0 offen")
    a("s_branch K_S_COMMON")
    a.label("K_S_W7")
    a.c("wave 7: the last 64 edges, one-hot table, counters")
    a(f"s_mul_i32 {sTmp}, s2, {CH*4}")
    a(f"s_add_u32 {sTmp}, {sTmp}, {3072*4}")
    a(f"v_lshl_add_u32 {vT0}, {vL}, 2, {sTmp}")
    a(f"buffer_load_dword {D1[6]}, {vT0}, {sD}, 0 offen{SNT}")
    a(f"buffer_load_dword {D1[14]}, {vT0}, {sS}, 0 offen{SNT}")
    a(f"v_lshrrev_b32 {vT0}, 2, {vL}")
    a(f"v_and_b32 {vT1}, 3, {vL}")
    a(f"v_lshlrev_b32 {vT3}, 1, {vT1}")
    a(f"v_mov_b32 {vJ}, 0")
    a(f"v_cmp_eq_u32 vcc, {vT0}, {vT3}")
    a(f"v_mov_b32 {AD[0]}, 0x3f80")
    a(f"v_mov_b32 {AD[1]}, 0x3f800000")
    a(f"v_cndmask_b32 {vJ}, {vJ}, {AD[0]}, vcc")
    a(f"v_add_u32 {vT3}, 1, {vT3}")
    a(f"v_cmp_eq_u32 vcc, {vT0}, {vT3}")
    a("s_nop 1")
    a(f"v_cndmask_b32 {vJ}, {vJ}, {AD[1]}, vcc")
    a(f"v_cmp_eq_u32 vcc, 6, {vT0}")
    a(f"v_mov_b32 {AD[2]}, 0")
    a("s_nop 0")
    a(f"v_cndmask_b32 {AD[2]}, {AD[2]}, {AD[1]}, vcc")
    a(f"v_cmp_eq_u32 vcc, 3, {vT1}")
    a("s_nop 1")
    a(f"v_cndmask_b32 {vJ}, {vJ}, {AD[2]}, vcc")
    a(f"v_cmp_lt_u32 vcc, 31, {vL}")
    a(f"v_lshlrev_b32 {vT0}, 2, {vL}")
    a("s_nop 0")
    a(f"v_cndmask_b32 {vJ}, {vJ}, {vZ[0]}, vcc")
    a(f"ds_write_b32 {vT0}, {vJ}")
    a.label("K_S_COMMON")
    a(f"s_mov_b32 {sMaskE}, {'0' if opt.get('noE',0) else '0xffffffe0'}")
    a(f"s_mov_b32 {s128}, {0 if opt.get('noH',0) else 128}")
    a(f"s_mov_b32 {sK}, {KW}")
    a(f"s_mov_b32 {s3125}, 3125")
    a(f"s_mov_b32 {sMark}, {MARK}")
    a(f"s_mov_b32 {sCAPq}, {CAPX//4}")
    a(f"s_mov_b32 {sMode}, 0")
    a(f"s_mov_b32 {sChunk}, 0")
    a(f"v_mov_b32 {vOne}, 1")
    a(f"v_mov_b32 {v511}, 511")
    a(f"v_mov_b32 {aL1s}, 0x40000000")
    a(f"v_lshrrev_b32 {vT2}, 5, {vL}")
    a(f"v_bfe_u32 {vT0}, {vL}, 2, 2")
    a(f"v_lshl_add_u32 {vT0}, {vT2}, 3, {vT0}")
    a(f"v_lshlrev_b32 {vTRW}, 7, {vT0}")
    a(f"v_bfe_u32 {vT0}, {vL}, 4, 1")
    a(f"v_lshl_add_u32 {vTRW}, {vT0}, 5, {vTRW}")
    a(f"v_and_b32 {vT0}, 3, {vL}")
    a(f"v_lshl_add_u32 {vTRW}, {vT0}, 3, {vTRW}")
    a.c("LDS init: cell image = sentinel, counters = 0")
    for i in range(4): a(f"v_mov_b32 {WH[i]}, -1")
    a(f"v_lshlrev_b32 {vT0}, 6, v0")
    a(f"v_add_u32 {vT0}, {L_HST}, {vT0}")
    for i in range(4): a(f"ds_write_b128 {vT0}, {WH[0:4]} offset:{16*i}")
    a(f"v_and_b32 {vT0}, 0xff, v0")
    a(f"v_lshlrev_b32 {vT0}, 2, {vT0}")
    a(f"ds_write_b32 {vT0}, {vZ[0]} offset:{L_RES}")
    srd(a,sW,"s80","s81",WSB(opt))
    srd(a,sP,"s66","s67",N*6)
    srd(a,sE,"s68","s69",E*32)
    srd(a,sO,"s76","s77",OUT_BYTES)
    srd(a,sT4c,"s78","s79",256)
    a(f"s_add_u32 {sB[0]}, s80, {BPT}")
    a(f"s_addc_u32 {sB[1]}, s81, 0")
    a(f"s_and_b32 {sB[1]}, {sB[1]}, 0xffff")
    a(f"s_mov_b32 {sB[2]}, {N*128}")
    a(f"s_mov_b32 {sB[3]}, 0x20000")
    if opt.get('tlb',0):
        a.c("wave 2 touches one line per 2 MiB of the buffers used later (address translation warm-up, speed only)")
        a(f"s_cmp_lg_u32 {sWave}, 2")
        a("s_cbranch_scc1 K_NOTLB")
        a(f"v_lshlrev_b32 {vT0}, 21, {vL}")
        a(f"v_mov_b32 {vT1}, 0x40000000")
        a(f"v_cmp_gt_u32 vcc, 13, {vL}")
        a("s_nop 1")
        a(f"v_cndmask_b32 {vT0}, {vT1}, {vT0}, vcc")
        a(f"buffer_load_dword {vDUM}, {vT0}, {sE}, 0 offen")
        a(f"buffer_load_dword {vDUM}, {vT0}, {sW}, 0 offen")
        a(f"buffer_load_dword {vDUM}, {vT0}, {sO}, 0 offen")
        a.label("K_NOTLB")
    a.c("workgroup 0 publishes this launch's hand-off tag")
    a(f"s_or_b32 {sTmp}, s2, {sWave}")
    a(f"s_cmp_lg_u32 {sTmp}, 0")
    a("s_cbranch_scc1 K_S_NOTAG")
    a("s_memrealtime s[100:101]")
    a("s_waitcnt lgkmcnt(0)")
    a("s_or_b32 s100, s100, 1")
    a(f"v_mov_b32 {vT0}, s100")
    a(f"buffer_store_dword {vT0}, {vZ[0]}, {sT4c}, 0 offen sc1")
    a(f"buffer_store_dword {vT0}, {vZ[0]}, {sT4c}, 0 offen offset:128 sc1")
    a.label("K_S_NOTAG")
    a("s_waitcnt lgkmcnt(0)")
    a("s_barrier")
    a(f"s_mul_i32 {sTmp}, s2, {CH}")
    a(f"s_sub_u32 {sLim}, {E}, {sTmp}")
    a(f"s_min_u32 {sLim}, {sLim}, {CH}")
    B4=D2[0:7]; RC=M[0:7]; RK1=D2[8:15]
    def bin_edges(nrec, el_of, waitcnt, masked):
        if masked:
            for u in range(nrec):
                el_of(u,vT1)
                a(f"v_cmp_gt_u32 {sMask[u]}, {sLim}, {vT1}")
        if waitcnt is not None: a(f"s_waitcnt vmcnt({waitcnt})")
        stamp(a,opt,1)
        for u in range(nrec):
            d=DS_[u]; s_=SR_[u]
            a(f"v_mul_hi_u32 {vT2}, {d}, {sK}")
            el_of(u,vT1)
            a(f"v_lshl_or_b32 {RC[u]}, {s_}, 12, {vT1}")
            a(f"v_lshrrev_b32 {B4[u]}, 1, {vT2}")
            a(f"v_mad_u32_u24 {vT3}, {vT2}, {s3125}, {v511}")
            a(f"v_and_b32 {B4[u]}, 0x3fc, {B4[u]}")
            a(f"v_lshrrev_b32 {vT3}, 9, {vT3}")
            if masked: a(f"s_mov_b64 exec, {sMask[u]}")
            a(f"ds_add_rtn_u32 {RK1[u]}, {B4[u]}, {vOne} offset:{L_RES}")
            if masked: a("s_mov_b64 exec, -1")
            a(f"v_sub_u32 {vT3}, {d}, {vT3}")
            a(f"v_and_b32 {vT2}, 7, {vT2}")
            a(f"v_lshl_or_b32 {vT3}, {vT2}, 3, {vT3}")
            a(f"v_lshl_or_b32 {RC[u]}, {vT3}, 26, {RC[u]}")
        a(f"v_mov_b32 {vT3}, {L_HST}")
        a(f"v_mov_b32 {vJ}, {L_NRES+4}")
        for u in range(nrec):
            if not masked: a(f"s_waitcnt lgkmcnt({nrec-1})")
            elif u==0: a("s_waitcnt lgkmcnt(0)")
            a(f"v_cmp_gt_u32 vcc, 32, {RK1[u]}")
            a(f"v_lshlrev_b32 {vT1}, 3, {RK1[u]}")
            a(f"v_lshrrev_b32 {vT2}, 2, {RK1[u]}")
            a(f"v_and_b32 {vT1}, 0x78, {vT1}")
            a(f"v_lshl_add_u32 {AD[0]}, {B4[u]}, 5, {vT3}")
            a(f"v_and_or_b32 {vT1}, {vT2}, 4, {vT1}")
            a(f"v_add_u32 {vT1}, {vT1}, {AD[0]}")
            a(f"v_cndmask_b32 {vT1}, {vJ}, {vT1}, vcc")
            if masked: a(f"s_mov_b64 exec, {sMask[u]}")
            a(f"ds_write_b32 {vT1}, {RC[u]}")
            if masked: a("s_mov_b64 exec, -1")
    a.c("wait for this wave's edges (younger loads: 12 for waves 5,6; 2 for wave 4; the tag store of workgroup 0)")
    a(f"s_mul_i32 {sTmp}, {sWave}, 384")
    a(f"v_lshl_add_u32 {vT0}, {vL}, 1, {sTmp}")
    a(f"s_cmp_eq_u32 {sWave}, 4")
    a("s_cbranch_scc1 K_S_WT4")
    a(f"s_sub_u32 {sTmp}, {sWave}, 5")
    a(f"s_cmp_lt_u32 {sTmp}, 2")
    a("s_cbranch_scc1 K_S_WT56")
    if opt.get('tlb',0):
        a(f"s_cmp_eq_u32 {sWave}, 2")
        a("s_cbranch_scc1 K_S_WT2")
    a("s_waitcnt vmcnt(0)")
    a("s_branch K_S_WTD")
    if opt.get('tlb',0):
        a.label("K_S_WT2")
        a("s_waitcnt vmcnt(3)")
        a("s_branch K_S_WTD")
    a.label("K_S_WT4")
    a("s_waitcnt vmcnt(2)")
    a("s_branch K_S_WTD")
    a.label("K_S_WT56")
    a("s_waitcnt vmcnt(12)")
    a.label("K_S_WTD")
    a.c("wave 0 fetches the hand-off tag (one of its two copies); it is needed when the cell stores have left")
    a(f"s_and_b32 {sTagOff}, s2, 1")
    a(f"s_lshl_b32 {sTagOff}, {sTagOff}, 7")
    a(f"s_cmp_lg_u32 {sWave}, 0")
    a("s_cbranch_scc1 K_S_NOTAG1")
    a(f"buffer_load_dword {aE}, {vZ[0]}, {sT4c}, {sTagOff} offen sc1")
    a.label("K_S_NOTAG1")
    def el6(u,r): a(f"v_add_u32 {r}, {128*(u>>1)+(u&1)}, {vT0}")
    def el7(u,r):
        if u<6: el6(u,r)
        else: a(f"v_add_u32 {r}, 3072, {vL}")
    a(f"s_cmp_lt_u32 {sLim}, {CH}")
    a("s_cbranch_scc1 K_S_APPM")
    a(f"s_cmp_eq_u32 {sWave}, 7")
    a("s_cbranch_scc1 K_S_APP7")
    bin_edges(6, el6, None, False)
    a("s_branch K_S_APPD")
    a.label("K_S_APP7")
    bin_edges(7, el7, None, False)
    a("s_branch K_S_APPD")
    a.label("K_S_APPM")
    a(f"s_cmp_eq_u32 {sWave}, 7")
    a("s_cbranch_scc1 K_S_APPM7")
    bin_edges(6, el6, None, True)
    a("s_branch K_S_APPD")
    a.label("K_S_APPM7")
    bin_edges(7, el7, None, True)
    a.label("K_S_APPD")
    load_hwin()
    a.c("waves 4, 7: raw w_e -> LDS (needed after barrier C); wave 4 rebuilds the descriptor it lent to the w_h warm-up")
    a(f"s_lshl_b32 {sTmp}, 1, {sWave}")
    a(f"s_and_b32 {sTmp}, {sTmp}, 0x90")
    a("s_cbranch_scc0 K_S_NORAW")
    a("s_load_dwordx2 s[100:101], s[0:1], 40")
    a(f"s_cmp_eq_u32 {sWave}, 7")
    a(f"s_cselect_b32 {sTmp3}, {10*1024}, 0")
    a("s_waitcnt lgkmcnt(0)")
    srd(a,sT4b,"s100","s101",145*128)
    for i in range(10):
        a(f"s_add_u32 {sTmp2}, {sTmp3}, {i*1024}")
        if i==9: a(f"s_min_u32 {sTmp2}, {sTmp2}, {18*1024}")
        a(f"s_add_u32 {sTmp}, {sTmp2}, {L_RAWW}")
        a(f"s_mov_b32 m0, {sTmp}")
        a("s_nop 0")
        a(f"buffer_load_dwordx4 {vL16}, {sT4b}, {sTmp2} offen lds")
    a.label("K_S_NORAW")
    a("s_waitcnt lgkmcnt(0)")
    stamp(a,opt,14) if not opt.get('dbgfill',0) else None
    a("s_barrier")
    stamp(a,opt,2)
    def setup_static():
        a(f"v_and_b32 {vT1}, 31, {vL}")
        a(f"v_lshrrev_b32 {vT2}, 5, {vL}")
        a(f"v_lshlrev_b32 {vT0}, 3, {vT2}")
        a(f"v_sub_u32 {vT0}, {vT1}, {vT0}")
        a(f"v_mov_b32 {AD[2]}, 0x3f80")
        a(f"v_mov_b32 {AD[3]}, 0x3f800000")
        for sp in range(2):
            for r in range(4):
                k0=16*sp+2*r
                a(f"v_cmp_eq_u32 vcc, {k0}, {vT0}")
                a(f"v_cmp_eq_u32 {sSave}, {k0+1}, {vT0}")
                a("s_nop 0")
                a(f"v_cndmask_b32 {ID[4*sp+r]}, {vZ[0]}, {AD[2]}, vcc")
                a(f"v_cndmask_b32 {ID[4*sp+r]}, {ID[4*sp+r]}, {AD[3]}, {sSave}")
        a(f"v_cmp_lt_u32 vcc, 31, {vL}")
        a("s_nop 1")
        for i in range(1,4): a(f"v_mov_b32 {ONE[i]}, 0")
        a(f"v_cndmask_b32 {ONE[0]}, {AD[2]}, {vZ[0]}, vcc")
        for i in range(3):
            a(f"v_mov_b32 {PS[i]}, 0"); a(f"v_mov_b32 {PD[i]}, 0")
        a.c("static per-lane addresses of the main loop (window offsets are added after the assignment)")
        a(f"v_and_b32 {vT1}, 31, {vL}")
        a(f"v_lshrrev_b32 {vT2}, 5, {vL}")
        a(f"v_mov_b32 {vT3}, {L_A2}")
        a(f"v_lshl_add_u32 {vE64}, {vT1}, 6, {vT3}")
        a(f"v_bfe_u32 {vT0}, {vL}, 2, 2")
        a(f"v_lshl_add_u32 {vT0}, {vT2}, 2, {vT0}")
        a(f"v_lshl_add_u32 {vTR}, {vT0}, 6, {vT3}")
        a(f"v_bfe_u32 {vT0}, {vL}, 4, 1")
        a(f"v_lshl_add_u32 {vTR}, {vT0}, 5, {vTR}")
        a(f"v_and_b32 {vT0}, 3, {vL}")
        a(f"v_lshl_add_u32 {vTR}, {vT0}, 3, {vTR}")
        a(f"s_lshl_b32 {sHST}, {sWave}, 12")
        a(f"s_add_u32 {sHST}, {sHST}, {L_HST}")
        for i in range(4): a(f"s_add_u32 {sM0[i]}, {sHST}, {1024*i}")
        a(f"v_and_b32 {vT0}, 3, {vT1}")
        a(f"v_bfe_u32 {vT3}, {vT1}, 4, 1")
        a(f"v_lshl_or_b32 {vT3}, {vT3}, 2, {vT0}")
        a(f"v_lshlrev_b32 {vT0}, 3, {vT0}")
        a(f"v_lshrrev_b32 {vJ}, 2, {vT1}")
        a(f"v_add_u32 {vT0}, {vT0}, {vJ}")
        a(f"v_lshl_add_u32 {vT0}, {vT0}, 7, {sHST}")
        for s_ in range(4):
            a(f"v_add_u32 {vJ}, {2*s_}, {vT2}")
            a(f"v_xor_b32 {vJ}, {vJ}, {vT3}")
            a(f"v_lshl_add_u32 {vHA[s_]}, {vJ}, 4, {vT0}")
        a(f"v_and_b32 {vT0}, 7, {vL}")
        a(f"v_lshlrev_b32 {vT3}, 2, {vT2}")
        a(f"v_xor_b32 {vT0}, {vT0}, {vT3}")
        for i in range(4):
            a(f"v_xor_b32 {vJ}, {i}, {vT0}")
            a(f"v_lshlrev_b32 {vKD[i]}, 4, {vJ}")
        a(f"s_mov_b32 {sCAP}, {CAP}")
        a(f"s_sub_u32 {sTgt}, 11, {sWave}")
        a(f"s_cmp_lt_u32 {sWave}, 4")
        a(f"s_cselect_b32 {sTgt}, {sWave}, {sTgt}")
        a(f"v_lshrrev_b32 {aPS}, 3, {vL}")
        a(f"v_and_b32 {aPD}, 7, {vL}")
        a(f"v_lshlrev_b32 {aOH}, 2, {aPS}")
        a(f"v_lshlrev_b32 {SS}, 2, {aPD}")
    a(f"s_cmp_gt_u32 {sWave}, 3")
    a("s_cbranch_scc1 K_S_NOCOPY")
    a.c("waves 0..3 copy the cell image out: eight 16 B pieces per thread")
    a(f"v_lshlrev_b32 {vT0}, 4, v0")
    a(f"v_add_u32 {vT0}, {L_HST}, {vT0}")
    a(f"v_lshrrev_b32 {vT1}, 3, v0")
    a(f"v_lshlrev_b32 {vT2}, 2, {vT1}")
    CP=[D1[4*k:4*k+4] for k in range(8)]
    for k in range(4):
        a(f"ds_read_b128 {CP[k]}, {vT0} offset:{4096*k}")
        a(f"ds_read_b32 {D2[k]}, {vT2} offset:{L_RES+128*k}")
    a(f"v_and_b32 {vT3}, 7, v0")
    a(f"v_cmp_eq_u32 vcc, 0, {vT3}")
    a(f"v_mov_b32 {vJ}, -1")
    CT=opt.get('ctrans',0)
    a(f"v_lshlrev_b32 {vT1}, {7 if CT else 15}, {vT1}")
    a(f"v_cndmask_b32_e64 {AD[1]}, -1, -2, vcc")
    a(f"v_lshl_add_u32 {vT1}, {vT3}, 4, {vT1}")
    a(f"s_lshl_b32 {sTmp}, s2, {15 if CT else 7}")
    for k in range(8):
        if k<4:
            a(f"ds_read_b128 {CP[k+4]}, {vT0} offset:{4096*(k+4)}")
            a(f"ds_read_b32 {D2[k+4]}, {vT2} offset:{L_RES+128*(k+4)}")
            a("s_waitcnt lgkmcnt(8)")
        else:
            a(f"s_waitcnt lgkmcnt({2*(7-k)})")
        a(f"v_cmp_lt_u32 vcc, 32, {D2[k]}")
        a(f"s_add_u32 {sTmp2}, {sTmp}, {k*32*(128 if CT else 32768)}")
        a("s_nop 0")
        a(f"v_cndmask_b32 {CP[k][0]}, {CP[k][0]}, {AD[1]}, vcc")
        for i in range(1,4): a(f"v_cndmask_b32 {CP[k][i]}, {CP[k][i]}, {vJ}, vcc")
        a(f"buffer_store_dwordx4 {CP[k]}, {vT1}, {sW}, {sTmp2} offen{ST}")
    a("s_branch K_S_STATIC")
    a.label("K_S_NOCOPY")
    a(f"s_sub_u32 {sTmp}, {sWave}, 5")
    a(f"s_cmp_lt_u32 {sTmp}, 2")
    a("s_cbranch_scc0 K_S_POS")
    a.c("waves 5,6: source-node table B' = -log2e * h @ W2 for 32 nodes")
    a(f"v_add_u32 {vT0}, {sC}, {vTRW}")
    a("s_waitcnt vmcnt(4)")
    for s_ in range(4):
        for x in range(2):
            for th in range(2):
                r=(s_*2+x)*4+2*th
                a(f"ds_read_b64_tr_b16 {D1[r:r+2]}, {vT0} offset:{s_*2048+th*512+x*64}")
    a("s_waitcnt lgkmcnt(0)")
    for x in range(2):
        for s_ in range(4):
            r=(s_*2+x)*4
            mfma(a,D2[16*x:16*x+16],D1[r:r+4],HA[4*s_:4*s_+4],"0" if s_==0 else D2[16*x:16*x+16])
    a(f"s_mul_i32 {sTmp}, {sI}, {32*144}")
    a(f"s_add_u32 {sTmp}, {sTmp}, {L_BST}")
    a(f"v_and_b32 {vT1}, 31, {vL}")
    a(f"v_mul_u32_u24 {vT1}, 144, {vT1}")
    a(f"v_lshrrev_b32 {vT2}, 5, {vL}")
    a(f"v_lshl_add_u32 {vT1}, {vT2}, 3, {vT1}")
    a(f"v_add_u32 {vT1}, {sTmp}, {vT1}")
    a(f"v_lshrrev_b32 {vT2}, 3, {vL}")
    a(f"v_mul_u32_u24 {vT3}, 144, {vT2}")
    a(f"v_and_b32 {vJ}, 7, {vL}")
    a(f"v_lshl_add_u32 {vT3}, {vJ}, 4, {vT3}")
    a(f"v_add_u32 {vT3}, {sTmp}, {vT3}")
    a(f"s_mov_b32 {sTmp2}, {NEG_LOG2E}")
    a.nop(4)
    for x in range(2):
        for q in range(16): a(f"v_mul_f32 {D2[16*x+q]}, {sTmp2}, {D2[16*x+q]}")
        for qq in range(4):
            b=16*x+4*qq
            a(f"v_cvt_pk_bf16_f32 {E01[0]}, {D2[b]}, {D2[b+1]}")
            a(f"v_cvt_pk_bf16_f32 {E01[1]}, {D2[b+2]}, {D2[b+3]}")
            a(f"ds_write_b64 {vT1}, {E01} offset:{x*64+qq*16}")
            a("s_nop 0")
    for i in range(4): a(f"ds_read_b128 {D1[4*i:4*i+4]}, {vT3} offset:{i*8*144}")
    a(f"s_lshl_b32 {sTmp2}, {sI}, 5")
    a(f"v_add_u32 {vT2}, {sTmp2}, {vT2}")
    a(f"s_mul_i32 {sTmp}, s2, {NPW}")
    a(f"v_add_u32 {vT0}, {sTmp}, {vT2}")
    a(f"v_lshlrev_b32 {vT1}, 7, {vT0}")
    a(f"v_lshl_add_u32 {vT1}, {vJ}, 4, {vT1}")
    a(f"v_mov_b32 {vJ}, 0x40000000")
    a("s_waitcnt lgkmcnt(0)")
    for i in range(4):
        a(f"v_add_u32 {vT3}, {8*i}, {vT2}")
        a(f"v_cmp_gt_u32 vcc, {NPW}, {vT3}")
        a(f"v_add_u32 {AD[0]}, {1024*i}, {vT1}")
        a("s_nop 0")
        a(f"v_cndmask_b32 {AD[0]}, {vJ}, {AD[0]}, vcc")
        a(f"buffer_store_dwordx4 {D1[4*i:4*i+4]}, {AD[0]}, {sB}, 0 offen{ST}")
    a("s_waitcnt vmcnt(4)")
    a("s_branch K_S_STATIC")
    a.label("K_S_POS")
    a.label("K_S_STATIC")
    setup_static()
    a.c("waves 0..3: every cell store has left; waves 4, 7: raw w_e / window rows landed; waves 5, 6 signal their rows later")
    a(f"s_sub_u32 {sTmp}, {sWave}, 5")
    a(f"s_cmp_lt_u32 {sTmp}, 2")
    a("s_cbranch_scc1 K_S_PREC")
    a("s_waitcnt vmcnt(0)")
    def have_tag(lbl):
        a(f"s_mov_b32 {sPoll}, 0")
        a.label(lbl)
        a(f"v_readfirstlane_b32 {sNonce}, {aE}")
        a("s_memrealtime s[100:101]")
        a("s_waitcnt lgkmcnt(0)")
        a(f"s_sub_u32 {sTmp}, s100, {sNonce}")
        a(f"s_add_u32 {sTmp}, {sTmp}, 1")
        a(f"s_cmp_lt_u32 {sTmp}, 2500")
        a(f"s_cselect_b32 {sTmp}, {sNonce}, 0")
        a(f"s_cmp_lg_u32 {sTmp}, 0")
        a(f"s_cbranch_scc1 {lbl}_OK")
        a(f"s_add_u32 {sPoll}, {sPoll}, 1")
        a(f"s_cmp_gt_u32 {sPoll}, 200000")
        a(f"s_cbranch_scc1 {lbl}_OK")
        a(f"s_cmp_gt_u32 {sPoll}, 1000")
        a(f"s_cselect_b32 {sTmp}, {sNonce}, 0")
        a(f"s_cmp_lg_u32 {sTmp}, 0")
        a(f"s_cbranch_scc1 {lbl}_OK")
        a("s_sleep 2")
        a(f"buffer_load_dword {aE}, {vZ[0]}, {sT4c}, {sTagOff} offen sc1")
        a("s_waitcnt vmcnt(0)")
        a(f"s_branch {lbl}")
        a.label(f"{lbl}_OK")
    a(f"s_cmp_lg_u32 {sWave}, 0")
    a("s_cbranch_scc1 K_S_PREC")
    have_tag("K_G_TAG")
    a(f"v_mov_b32 {vT0}, {sNonce}")
    a(f"ds_write_b32 {vZ[0]}, {vT0} offset:{L_NRES+8}")
    a.label("K_S_PREC")
    a("s_waitcnt lgkmcnt(0)")
    stamp(a,opt,15) if not opt.get('dbgfill',0) else None
    a("s_barrier")
    stamp(a,opt,3)
    a(f"s_cmp_lg_u32 {sWave}, 0")
    a("s_cbranch_scc1 K_G_NOT0")
    a.c("wave 0: signal this workgroup's cells")
    a(f"s_lshl_b32 {sTmp}, s2, 4")
    a(f"s_add_u32 {sTmp}, {sTmp}, {FLG}")
    a(f"v_mov_b32 {vT0}, {sNonce}")
    a(f"buffer_store_dword {vT0}, {vZ[0]}, {sW}, {sTmp} offen sc1")
    a("s_branch K_G_SETUP")
    a.label("K_G_NOT0")
    a(f"s_cmp_lt_u32 {sWave}, 4")
    a("s_cbranch_scc1 K_G_WH")
    a(f"s_sub_u32 {sTmp}, {sWave}, 5")
    a(f"s_cmp_lt_u32 {sTmp}, 2")
    a("s_cbranch_scc1 K_G_SETUP")
    a.c("waves 4, 7: pos table -> LDS (37 pieces each)")
    a(f"s_cmp_eq_u32 {sWave}, 7")
    a(f"s_cselect_b32 {sI}, {37*1024}, 0")
    for i in range(37):
        a(f"s_add_u32 {sTmp}, {sI}, {i*1024}")
        a(f"s_add_u32 {sTmp2}, {sTmp}, {L_POS}")
        a(f"s_mov_b32 m0, {sTmp2}")
        a("s_nop 0")
        a(f"buffer_load_dwordx4 {vL16}, {sP}, {sTmp} offen lds")
    a("s_branch K_G_SETUP")
    a.label("K_G_WH")
    a.c("waves 1..3: raw w_h -> staging area")
    a("s_load_dwordx2 s[64:65], s[0:1], 56")
    a(f"s_sub_u32 {sI}, {sWave}, 1")
    a("s_waitcnt lgkmcnt(0)")
    srd(a,sT4b,"s64","s65",128*128)
    for k in range(6):
        a(f"s_add_u32 {sTmp}, {sI}, {3*k}")
        a(f"s_min_u32 {sTmp}, {sTmp}, 15")
        a(f"s_lshl_b32 {sTmp}, {sTmp}, 10")
        a(f"s_add_u32 {sTmp2}, {sTmp}, {L_HST}")
        a(f"s_mov_b32 m0, {sTmp2}")
        a("s_nop 0")
        a(f"buffer_load_dwordx4 {vL16}, {sT4b}, {sTmp} offen lds")
    a.label("K_G_SETUP")
    a.c("operands from raw w_e: W1 (for A'), W4', wd'")
    W1=D2
    a(f"v_add_u32 {vT0}, {L_RAWW}, {vTRW}")
    for s_ in range(4):
        for x in range(2):
            for th in range(2):
                r=(s_*2+x)*4+2*th
                a(f"ds_read_b64_tr_b16 {W1[r:r+2]}, {vT0} offset:{s_*2048+th*512+x*64}")
    W4R=HA[0:8]
    for x in range(2):
        for th in range(2):
            a(f"ds_read_b64_tr_b16 {W4R[4*x+2*th:4*x+2*th+2]}, {vT0} offset:{129*128+th*512+x*64}")
    WD=M[0:2]
    a(f"v_mov_b32 {WD[0]}, 0")
    a(f"v_mov_b32 {WD[1]}, 0")
    a(f"v_and_b32 {vT1}, 31, {vL}")
    a(f"v_lshlrev_b32 {vT2}, 1, {vT1}")
    a(f"v_add_u32 {vT2}, {L_RAWW+128*128}, {vT2}")
    a(f"ds_read_u16_d16_hi {WD[0]}, {vT2}")
    a(f"ds_read_u16_d16_hi {WD[1]}, {vT2} offset:64")
    a("s_waitcnt lgkmcnt(0)")
    for x in range(2):
        for s_ in range(4):
            mfma(a,D1[16*x:16*x+16],HW[4*s_:4*s_+4],W1[(s_*2+x)*4:(s_*2+x)*4+4],"0" if s_==0 else D1[16*x:16*x+16])
    a(f"s_mov_b32 {sTmp}, {NEG_LOG2E}")
    for i in range(8):
        a(f"v_lshlrev_b32 {vT0}, 16, {W4R[i]}")
        a(f"v_and_b32 {vT2}, 0xffff0000, {W4R[i]}")
        a(f"v_mul_f32 {vT0}, {sTmp}, {vT0}")
        a(f"v_mul_f32 {vT2}, {sTmp}, {vT2}")
        a(f"v_cvt_pk_bf16_f32 {WE[i]}, {vT0}, {vT2}")
    a(f"v_cmp_lt_u32 vcc, 31, {vL}")
    for x in range(2):
        a(f"v_mul_f32 {WD[x]}, {sTmp}, {WD[x]}")
        a(f"v_cvt_pk_bf16_f32 {vT0}, {WD[x]}, {WD[x]}")
        a(f"v_and_b32 {vT0}, 0xffff0000, {vT0}")
        a(f"v_sub_f32 {vT2}, {WD[x]}, {vT0}")
        a(f"v_cvt_pk_bf16_f32 {vT2}, {vT2}, {vT2}")
        a(f"v_and_b32 {vT2}, 0xffff0000, {vT2}")
        a(f"v_cndmask_b32 {WD[x]}, {vT0}, {vT2}, vcc")
    a(f"s_cmp_lg_u32 {sWave}, 0")
    a("s_cbranch_scc1 K_G_NOEARLY")
    def poll_loads():
        a(f"s_mov_b32 {sTmp2}, {FLG}")
        for k in range(4): a(f"buffer_load_dword {(T[k] if opt.get('ppoll',0) else AD[k])}, {vL16}, {sW}, {sTmp2} offen offset:{1024*k} sc1")
        if opt.get('hpf',0):
            for hh in range(2):
                a(f"s_mov_b32 {sTmp2}, {FLG2+4096*hh}")
                for k in range(4): a(f"buffer_load_dword {A2R[4*hh+k]}, {vL16}, {sW}, {sTmp2} offen offset:{1024*k} sc1")
    poll_loads()
    a.label("K_G_NOEARLY")
    a(f"v_cmp_lt_u32 vcc, 31, {vL}")
    a(f"v_mov_b32 {vJ}, 0xffff")
    for x in range(2):
        for r in range(4):
            q0,q1=D1[16*x+2*r],D1[16*x+2*r+1]
            a(f"v_mul_f32 {q0}, {sTmp}, {q0}")
            a(f"v_mul_f32 {q1}, {sTmp}, {q1}")
            a(f"v_cvt_pk_bf16_f32 {vT0}, {q0}, {q1}")
            a(f"v_lshlrev_b32 {vT1}, 16, {vT0}")
            a(f"v_and_b32 {vT2}, 0xffff0000, {vT0}")
            a(f"v_sub_f32 {vT1}, {q0}, {vT1}")
            a(f"v_sub_f32 {vT2}, {q1}, {vT2}")
            a(f"v_cvt_pk_bf16_f32 {vT1}, {vT1}, {vT2}")
            a(f"v_cndmask_b32 {WA[4*x+r]}, {vT0}, {vT1}, vcc")
        a(f"v_bfi_b32 {WA[4*x+3]}, {vJ}, {WA[4*x+3]}, {WD[x]}")
    a(f"s_lshl_b32 {sTmp}, {sWave}, 11")
    a(f"s_add_u32 {sTmp}, {sTmp}, {L_A2}")
    a(f"v_lshl_add_u32 {vT0}, {vL}, 5, {sTmp}")
    a(f"ds_write_b128 {vT0}, {WA[0:4]}")
    a(f"ds_write_b128 {vT0}, {WA[4:8]} offset:16")
    for i in range(32): a(f"v_mov_b32 {D2[i]}, 0")
    a(f"s_sub_u32 {sTmp}, {sWave}, 5")
    a(f"s_cmp_lt_u32 {sTmp}, 2")
    a("s_cbranch_scc0 K_G_NOFLG2")
    a.c("waves 5,6: their rows have left -> signal them")
    a(f"ds_read_b32 {aE}, {vZ[0]} offset:{L_NRES+8}")
    a("s_waitcnt vmcnt(0) lgkmcnt(0)")
    a(f"v_readfirstlane_b32 {sNonce}, {aE}")
    a("s_nop 3")
    a(f"s_lshl_b32 {sTmp}, s2, 1")
    a(f"s_add_u32 {sTmp}, {sTmp}, {sWave}")
    a(f"s_sub_u32 {sTmp}, {sTmp}, 5")
    a(f"s_lshl_b32 {sTmp}, {sTmp}, 4")
    a(f"s_add_u32 {sTmp}, {sTmp}, {FLG2}")
    a(f"v_mov_b32 {vT0}, {sNonce}")
    a(f"buffer_store_dword {vT0}, {vZ[0]}, {sW}, {sTmp} offen sc1")
    a.label("K_G_NOFLG2")
    a(f"s_cmp_lg_u32 {sWave}, 0")
    a("s_cbranch_scc1 K_G_WAIT")
    if not opt.get('ppoll',0):
        a.c("wave 0: wait for all hand-offs (the first round of flag loads is already in flight)")
        a("s_branch K_G_POLL1")
        a.label("K_G_POLL")
        poll_loads()
        a.label("K_G_POLL1")
        a("s_waitcnt vmcnt(0)")
        PF=[AD[k] for k in range(4)]+([A2R[k] for k in range(8)] if opt.get('hpf',0) else [])
        a(f"v_cmp_eq_u32 {sAny}, {sNonce}, {PF[0]}")
        for r_ in PF[1:]:
            a(f"v_cmp_eq_u32 vcc, {sNonce}, {r_}")
            a("s_nop 1")
            a(f"s_and_b64 {sAny}, {sAny}, vcc")
        a(f"s_cmp_eq_u64 {sAny}, -1")
        a("s_cbranch_scc1 K_G_WAIT")
        a(f"s_add_u32 {sPoll}, {sPoll}, 1")
        a(f"s_cmp_lt_u32 {sPoll}, 200000")
        a("s_cbranch_scc1 K_G_POLL")
    else:
        a.c("wave 0: wait for all hand-offs; two rounds of flag loads are kept in flight")
        def pl(regs):
            for k in range(4): a(f"buffer_load_dword {regs[k]}, {vL16}, {sW}, {sI} offen offset:{1024*k} sc1")
        def chk(regs):
            a(f"v_cmp_eq_u32 {sAny}, {sNonce}, {regs[0]}")
            for r_ in regs[1:]:
                a(f"v_cmp_eq_u32 vcc, {sNonce}, {r_}")
                a("s_nop 1")
                a(f"s_and_b64 {sAny}, {sAny}, vcc")
            a(f"s_cmp_eq_u64 {sAny}, -1")
            a("s_cbranch_scc1 K_G_SEEN")
        SA=[T[k] for k in range(4)]; SB=[T[4+k] for k in range(4)]
        a(f"s_mov_b32 {sI}, {FLG}")
        a.label("K_G_POLL")
        pl(SB)
        a("s_waitcnt vmcnt(4)")
        chk(SA)
        pl(SA)
        a("s_waitcnt vmcnt(4)")
        chk(SB)
        a(f"s_add_u32 {sPoll}, {sPoll}, 1")
        a(f"s_cmp_lt_u32 {sPoll}, 100000")
        a("s_cbranch_scc1 K_G_POLL")
        a.label("K_G_SEEN")
        a("s_waitcnt lgkmcnt(0)")
        a("s_branch K_G_GO")
    a.label("K_G_WAIT")
    a.c("waves 4 and 7 keep their pos pieces in flight: their cell loads return behind them")
    a(f"s_lshl_b32 {sTmp}, 1, {sWave}")
    a(f"s_and_b32 {sTmp}, {sTmp}, 0x90")
    a("s_cbranch_scc1 K_G_WAIT47")
    a("s_waitcnt vmcnt(0)")
    a.label("K_G_WAIT47")
    a("s_waitcnt lgkmcnt(0)")
    a.label("K_G_GO")
    for _ in range(opt.get('delay',0)): a("s_sleep 32")
    a("s_barrier")
    stamp(a,opt,4)
    RECP=D1[0:16]; REC=[RECP[2*i] for i in range(8)]+[RECP[2*i+1] for i in range(8)]; WAD=D1[16:32]; RK=HA
    a.c("cell records of this bin: pair s holds slots m and 16+m (m = l&15) of cell 32s+4v+(l>>4)")
    if not CT:
        a(f"s_lshl_b32 {sTmp}, s2, 15")
        a(f"s_lshl_b32 {sTmp2}, {sWave}, 9")
        a(f"s_add_u32 {sTmp}, {sTmp}, {sTmp2}")
        a(f"v_lshl_add_u32 {vT0}, {vL}, 3, {sTmp}")
    else:
        a(f"s_lshl_b32 {sTmp}, s2, 7")
        a(f"s_lshl_b32 {sTmp2}, {sWave}, 17")
        a(f"s_add_u32 {sTmp}, {sTmp}, {sTmp2}")
        a(f"v_lshrrev_b32 {vT0}, 4, {vL}")
        a(f"v_lshlrev_b32 {vT0}, 15, {vT0}")
        a(f"v_and_b32 {vT1}, 15, {vL}")
        a(f"v_lshl_add_u32 {vT0}, {vT1}, 3, {vT0}")
        a(f"v_add_u32 {vT0}, {sTmp}, {vT0}")
    ROT=opt.get('rot',0)
    if ROT==1: a(f"s_getreg_b32 {sRot}, hwreg(HW_REG_XCC_ID, 0, 4)")
    elif ROT==2: a(f"s_and_b32 {sRot}, s2, 7")
    elif ROT==3:
        a(f"s_getreg_b32 {sRot}, hwreg(HW_REG_XCC_ID, 0, 4)")
        a(f"s_and_b32 {sRot}, {sRot}, 3")
        a(f"s_lshl_b32 {sRot}, {sRot}, 1")
    else: a(f"s_mov_b32 {sRot}, 0")
    def pair_index(dst,s_):
        a(f"s_add_u32 {dst}, {sRot}, {s_}")
        a(f"s_and_b32 {dst}, {dst}, 7")
    for s_ in range(8):
        pair_index(sTmp,s_)
        a(f"s_lshl_b32 {sTmp}, {sTmp}, {20 if CT else 12}")
        a(f"buffer_load_dwordx2 {RECP[2*s_:2*s_+2]}, {vT0}, {sW}, {sTmp} offen{LD}")
    a(f"v_lshlrev_b32 {vT2}, 1, {vL}")
    a(f"v_and_b32 {vT2}, 62, {vT2}")
    a("s_load_dwordx2 s[98:99], s[0:1], 48")
    a.c("node-update weights (transposed reads of raw w_h), waves 0..3 use them")
    a(f"s_and_b32 {sTmp}, {sWave}, 1")
    a(f"s_lshl_b32 {sTmp}, {sTmp}, 6")
    a(f"s_add_u32 {sTmp}, {sTmp}, {L_HST}")
    a(f"v_add_u32 {vT1}, {sTmp}, {vTRW}")
    for s_ in range(8):
        for th in range(2):
            a(f"ds_read_b64_tr_b16 {WH[4*s_+2*th:4*s_+2*th+2]}, {vT1} offset:{s_*2048+th*512}")
            if (2*s_+th)==7: a("s_waitcnt lgkmcnt(0)")
    srd(a,sT4,"s98","s99",128)
    a(f"v_mov_b32 {WX[0]}, 0")
    a(f"v_mov_b32 {WX[1]}, 0")
    a(f"buffer_load_short_d16_hi {WX[0]}, {vT2}, {sT4}, 0 offen")
    a(f"buffer_load_short_d16_hi {WX[1]}, {vT2}, {sT4}, 0 offen offset:64")
    a("s_waitcnt vmcnt(2)")
    stamp(a,opt,5)
    a(f"s_mov_b64 {sAny}, 0")
    for s_ in range(16):
        a(f"v_cmp_gt_u32 {sMask[s_]}, {sMark}, {REC[s_]}")
        if s_<8:
            a(f"v_cmp_eq_u32 vcc, {sMark}, {REC[s_]}")
        a(f"v_lshrrev_b32 {WAD[s_]}, 27, {REC[s_]}")
        a(f"v_and_b32 {WAD[s_]}, 0x1c, {WAD[s_]}")
        if s_<8: a(f"s_or_b64 {sAny}, {sAny}, vcc")
    order=[x for p in range(8) for x in (p,8+p)]
    for n_,s_ in enumerate(order):
        a(f"s_mov_b64 exec, {sMask[s_]}")
        if s_>=8: a(f"s_cbranch_execz K2_A{s_}")
        a(f"ds_add_rtn_u32 {RK[s_]}, {WAD[s_]}, {vOne} offset:{L_CNT}")
        if s_>=8: a.label(f"K2_A{s_}")
        if n_==7:
            a("s_waitcnt lgkmcnt(4)")
    a("s_mov_b64 exec, -1")
    FL=A2R
    def flg2_loads():
        a(f"s_mov_b32 {sTmp2}, {FLG2}")
        for k in range(4): a(f"buffer_load_dword {FL[k]}, {vL16}, {sW}, {sTmp2} offen offset:{1024*k} sc1")
        a(f"s_mov_b32 {sTmp2}, {FLG2+4096}")
        for k in range(4): a(f"buffer_load_dword {FL[4+k]}, {vL16}, {sW}, {sTmp2} offen offset:{1024*k} sc1")
    a(f"s_cmp_lg_u32 {sWave}, {99 if opt.get('hpf',0) else 1}")
    a("s_cbranch_scc1 K2_NOF2A")
    a.c("wave 1: flags of the source-node table (checked before barrier 2)")
    flg2_loads()
    a(f"ds_read_b32 {aE}, {vZ[0]} offset:{L_NRES+8}")
    a.label("K2_NOF2A")
    a(f"s_lshl_b32 {sTmp}, {sWave}, 2")
    a(f"v_lshrrev_b32 {vT0}, 4, {vL}")
    a(f"v_add_u32 {vT0}, {sTmp}, {vT0}")
    a(f"v_mul_u32_u24 {vT0}, {CH}, {vT0}")
    NE=opt.get('epf',1)
    def epf_block():
        if NE:
            a.c("L2 warm-up of the e_attr lines of the first records (speed only; results are never read)")
            a(f"s_lshl_b32 {sTmp}, {sWave}, 2")
            a(f"v_lshrrev_b32 {vT0}, 4, {vL}")
            a(f"v_add_u32 {vT0}, {sTmp}, {vT0}")
            a(f"v_mul_u32_u24 {vT0}, {CH}, {vT0}")
            a(f"v_mov_b32 {vT2}, 0x2000000")
            RKF=opt.get('rkf',0)
            if RKF: a("s_waitcnt lgkmcnt(0)")
            for k in range(NE):
                a(f"v_cmp_gt_u32 vcc, {sMark}, {REC[k]}")
                if RKF:
                    a(f"v_cmp_gt_u32 {sSave}, {RKF}, {RK[k]}")
                a(f"v_and_b32 {vT1}, 0xfff, {REC[k]}")
                pair_index(sTmp,k)
                a(f"s_mul_i32 {sTmp}, {sTmp}, {32*CH}")
                if RKF: a(f"s_and_b64 vcc, vcc, {sSave}")
                a(f"v_add3_u32 {vT1}, {vT1}, {vT0}, {sTmp}")
                if opt.get('hpf',0): a(f"v_bfe_u32 {vT3}, {REC[k]}, 12, 14")
                else: a("s_nop 0")
                a(f"v_cndmask_b32 {vT1}, {vT2}, {vT1}, vcc")
                a(f"v_lshlrev_b32 {vT1}, 5, {vT1}")
                a(f"buffer_load_dword {vDUM}, {vT1}, {sE}, 0 offen")
                if opt.get('hpf',0):
                    a(f"v_cndmask_b32 {vT3}, {vT2}, {vT3}, vcc")
                    a(f"v_lshlrev_b32 {vT3}, 7, {vT3}")
                    a(f"buffer_load_dword {vDUM}, {vT3}, {sB}, 0 offen{HLD}")
    if opt.get('epfpos',1)==1:
        epf_block()
        a(f"s_lshl_b32 {sTmp}, {sWave}, 2")
        a(f"v_lshrrev_b32 {vT0}, 4, {vL}")
        a(f"v_add_u32 {vT0}, {sTmp}, {vT0}")
        a(f"v_mul_u32_u24 {vT0}, {CH}, {vT0}")
    a(f"v_mov_b32 {vT1}, {L_L0}")
    a(f"v_mov_b32 {vT2}, {L_L1}")
    a("s_waitcnt lgkmcnt(0)")
    for s_ in order:
        a(f"s_mov_b64 exec, {sMask[s_]}")
        if s_>=8: a(f"s_cbranch_execz K2_B{s_}")
        pair_index(sTmp,s_&7)
        a(f"s_mul_i32 {sTmp}, {sTmp}, {32*CH}")
        a(f"v_min_u32 {RK[s_]}, {CAPX-1}, {RK[s_]}")
        a(f"v_and_b32 {vT3}, 0xfff, {REC[s_]}")
        a(f"v_mad_u32_u24 {RK[s_]}, {WAD[s_]}, {sCAPq}, {RK[s_]}")
        a(f"v_add3_u32 {vT3}, {vT3}, {vT0}, {sTmp}")
        a(f"v_bfe_u32 {vJ}, {REC[s_]}, 26, 3")
        a(f"v_lshl_add_u32 {AD[0]}, {RK[s_]}, 2, {vT1}")
        a(f"v_lshl_or_b32 {vT3}, {vT3}, 5, {vJ}")
        a(f"v_lshl_add_u32 {AD[1]}, {RK[s_]}, 1, {vT2}")
        a(f"v_bfe_u32 {vJ}, {REC[s_]}, 12, 14")
        a(f"ds_write_b32 {AD[0]}, {vT3}")
        a(f"ds_write_b16 {AD[1]}, {vJ}")
        if s_>=8: a.label(f"K2_B{s_}")
    a("s_mov_b64 exec, -1")
    if opt.get('epfpos',1)==0: epf_block()
    a.c("overflowed cells -> rescan list (rare)")
    a(f"s_cmp_eq_u64 {sAny}, 0")
    a("s_cbranch_scc1 K2_NOMARK")
    a(f"v_lshrrev_b32 {vT0}, 4, {vL}")
    a(f"s_lshl_b32 {sTmp}, {sWave}, 2")
    a(f"v_add_u32 {vT0}, {sTmp}, {vT0}")
    a(f"v_mov_b32 {vT1}, {L_NRES}")
    for s_ in range(8):
        a(f"v_cmp_eq_u32 vcc, {sMark}, {REC[s_]}")
        a(f"s_and_saveexec_b64 {sSave}, vcc")
        a(f"s_cbranch_execz K2_MK{s_}")
        a(f"ds_add_rtn_u32 {vT2}, {vT1}, {vOne}")
        pair_index(sTmp,s_)
        a(f"s_lshl_b32 {sTmp}, {sTmp}, 5")
        a(f"v_add_u32 {vT3}, {sTmp}, {vT0}")
        a("s_waitcnt lgkmcnt(0)")
        a(f"v_lshlrev_b32 {vT2}, 2, {vT2}")
        a(f"ds_write_b32 {vT2}, {vT3} offset:{L_RES}")
        a.label(f"K2_MK{s_}")
        a(f"s_mov_b64 exec, {sSave}")
    a.label("K2_NOMARK")
    a("s_load_dwordx2 s[64:65], s[0:1], 0")
    a(f"s_waitcnt vmcnt({opt.get('epf',1)*(2 if opt.get('hpf',0) else 1)}) lgkmcnt(0)")
    a(f"s_cmp_lg_u32 {sWave}, {99 if opt.get('hpf',0) else 1}")
    a("s_cbranch_scc1 K2_NOF2B")
    a(f"v_readfirstlane_b32 {sNonce}, {aE}")
    a(f"s_mov_b32 {sPoll}, 0")
    a("s_nop 1")
    a.label("K2_F2CHK")
    a(f"v_cmp_eq_u32 {sAny}, {sNonce}, {FL[0]}")
    for k in range(1,8):
        a(f"v_cmp_eq_u32 vcc, {sNonce}, {FL[k]}")
        a("s_nop 1")
        a(f"s_and_b64 {sAny}, {sAny}, vcc")
    a(f"s_cmp_eq_u64 {sAny}, -1")
    a("s_cbranch_scc1 K2_NOF2B")
    a(f"s_add_u32 {sPoll}, {sPoll}, 1")
    a(f"s_cmp_gt_u32 {sPoll}, 200000")
    a("s_cbranch_scc1 K2_NOF2B")
    flg2_loads()
    a("s_waitcnt vmcnt(0)")
    a("s_branch K2_F2CHK")
    a.label("K2_NOF2B")
    srd(a,sHs,"s64","s65",N*128)
    a(f"s_mov_b32 {sTmp}, {NEG_LN2}")
    a(f"v_mul_f32 {WX[0]}, {sTmp}, {WX[0]}")
    a(f"v_mul_f32 {WX[1]}, {sTmp}, {WX[1]}")
    stamp(a,opt,6)
    a("s_barrier")
    stamp(a,opt,7)
    a.c("window sizes (lane = pair i,k) and the rescan count")
    a(f"v_mov_b32 {vT0}, {L_NRES}")
    a(f"ds_read_b32 {vT1}, {vT0}")
    a(f"ds_read_b32 {vT2}, {aOH} offset:{L_CNT}")
    a(f"ds_read_b32 {vT3}, {SS} offset:{L_CNT}")
    a("s_waitcnt lgkmcnt(0)")
    a(f"v_readfirstlane_b32 {sNR}, {vT1}")
    a(f"v_min_u32 {vT0}, 0xffffff, {vT2}")
    a(f"v_min_u32 {vJ}, 0xffffff, {vT3}")
    a(f"s_cmp_eq_u32 {sNR}, 0")
    a("s_cbranch_scc1 K2_CHECK")
    a(f"s_min_u32 {sNR}, {sNR}, 256")
    a(f"s_mov_b32 {sI}, 0")
    a.label("K2_RESCAN_I")
    a(f"s_lshl_b32 {sTmp}, {sI}, 2")
    a(f"s_add_u32 {sTmp}, {sTmp}, {L_RES}")
    a(f"v_mov_b32 {vT0}, {sTmp}")
    a(f"ds_read_b32 {vT1}, {vT0}")
    a("s_waitcnt lgkmcnt(0)")
    a(f"v_readfirstlane_b32 {sWsrc}, {vT1}")
    a("s_nop 3")
    a(f"s_min_u32 {sWsrc}, {sWsrc}, 255")
    a(f"s_mov_b32 {sC}, 0")
    a.label("K2_RESCAN_C")
    def append_raw(lim_local):
        a(f"v_lshlrev_b32 {vT1}, 2, {vT0}")
        a(f"buffer_load_dword {AD[0]}, {vT1}, {sD}, 0 offen")
        a(f"buffer_load_dword {AD[1]}, {vT1}, {sS}, 0 offen")
        a("s_waitcnt vmcnt(0)")
        a(f"v_mul_hi_u32 {vT2}, {AD[0]}, {sK}")
        a(f"v_lshrrev_b32 {vT3}, 3, {vT2}")
        a(f"v_cmp_eq_u32 vcc, s2, {vT3}")
        a("s_nop 1")
        a(f"s_and_b64 vcc, vcc, {sAny}")
        a(f"s_and_saveexec_b64 {sSave}, vcc")
        a(f"s_cbranch_execz {lim_local}")
        a(f"v_mad_u32_u24 {vT3}, {vT2}, {s3125}, {v511}")
        a(f"v_and_b32 {vT2}, 7, {vT2}")
        a(f"v_lshrrev_b32 {vT3}, 9, {vT3}")
        a(f"v_lshlrev_b32 {vT2}, 2, {vT2}")
        a(f"v_sub_u32 {vT3}, {AD[0]}, {vT3}")
        a(f"ds_add_rtn_u32 {AD[2]}, {vT2}, {vOne} offset:{L_CNT}")
        a(f"v_lshl_or_b32 {vT0}, {vT0}, 5, {vT3}")
        a("s_waitcnt lgkmcnt(0)")
        a(f"v_min_u32 {AD[2]}, {CAPX-1}, {AD[2]}")
        a(f"v_mad_u32_u24 {AD[2]}, {vT2}, {sCAPq}, {AD[2]}")
        a(f"v_mov_b32 {vT2}, {L_L0}")
        a(f"v_mov_b32 {vT3}, {L_L1}")
        a(f"v_lshl_add_u32 {vT2}, {AD[2]}, 2, {vT2}")
        a(f"v_lshl_add_u32 {vT3}, {AD[2]}, 1, {vT3}")
        a(f"ds_write_b32 {vT2}, {vT0}")
        a(f"ds_write_b16 {vT3}, {AD[1]}")
        a.label(lim_local)
        a(f"s_mov_b64 exec, {sSave}")
    a(f"s_lshl_b32 {sTmp}, {sC}, 9")
    a(f"v_add_u32 {vT1}, {sTmp}, v0")
    a(f"s_mul_i32 {sTmp2}, {sWsrc}, {CH}")
    a(f"v_add_u32 {vT0}, {sTmp2}, {vT1}")
    a(f"v_cmp_gt_u32 vcc, {CH}, {vT1}")
    a(f"s_mov_b32 {sTmp}, {E}")
    a(f"v_cmp_gt_u32 {sAny}, {sTmp}, {vT0}")
    a("s_nop 1")
    a(f"s_and_b64 {sAny}, {sAny}, vcc")
    append_raw("K2_RA1")
    a(f"s_add_u32 {sC}, {sC}, 1")
    a(f"s_cmp_lt_u32 {sC}, 7")
    a("s_cbranch_scc1 K2_RESCAN_C")
    a(f"s_add_u32 {sI}, {sI}, 1")
    a(f"s_cmp_lt_u32 {sI}, {sNR}")
    a("s_cbranch_scc1 K2_RESCAN_I")
    a("s_waitcnt lgkmcnt(0)")
    a("s_barrier")
    a(f"ds_read_b32 {vT2}, {aOH} offset:{L_CNT}")
    a(f"ds_read_b32 {vT3}, {SS} offset:{L_CNT}")
    a("s_waitcnt lgkmcnt(0)")
    a(f"v_min_u32 {vT0}, 0xffffff, {vT2}")
    a(f"v_min_u32 {vJ}, 0xffffff, {vT3}")
    a.label("K2_CHECK")
    a.c("window assignment by size rank")
    a(f"v_lshl_or_b32 {vT0}, {vT0}, 3, {aPS}")
    a(f"v_lshl_or_b32 {vJ}, {vJ}, 3, {aPD}")
    a(f"v_cmp_lt_u32 {sAny}, {sCAP}, {vT3}")
    a(f"v_cmp_gt_u32 vcc, {vJ}, {vT0}")
    a(f"s_mov_b32 {sWin}, 0")
    a("s_nop 2")
    for i in range(8):
        a(f"s_bfe_u32 {sTmp}, {'vcc_lo' if i<4 else 'vcc_hi'}, {(8<<16)|(8*(i&3))}")
        a(f"s_bcnt1_i32_b32 {sTmp}, {sTmp}")
        a(f"s_cmp_eq_u32 {sTmp}, {sTgt}")
        a(f"s_cselect_b32 {sWin}, {i}, {sWin}")
    if opt.get('nobal',0): a(f"s_mov_b32 {sWin}, {sWave}")
    a(f"s_lshl_b32 {sTmp}, {sWin}, 3")
    a(f"v_readlane_b32 {sCnt}, {vT2}, {sTmp}")
    geometry(sWin)
    a(f"s_lshl_b32 {sTmp}, {sWin}, 11")
    a(f"v_add_u32 {vE64}, {sTmp}, {vE64}")
    a(f"v_add_u32 {vTR}, {sTmp}, {vTR}")
    a(f"s_add_u32 {sTmp}, {sTmp}, {L_A2}")
    a(f"v_lshl_add_u32 {vT0}, {vL}, 5, {sTmp}")
    a(f"ds_read_b128 {WA[0:4]}, {vT0}")
    a(f"ds_read_b128 {WA[4:8]}, {vT0} offset:16")
    for i in range(4): a(f"v_mov_b32 {A2R[i]}, 0")
    a(f"ds_write_b128 {vT0}, {A2R[0:4]}")
    a(f"ds_write_b128 {vT0}, {A2R[0:4]} offset:16")
    a(f"s_cmp_eq_u64 {sAny}, 0")
    a("s_cbranch_scc1 K2_MAIN")
    a.c("generic (slow) mode: raw scan of all edges, 512 per round")
    a(f"s_mov_b32 {sMode}, 1")
    a.label("K2_GEN")
    a("s_barrier")
    a(f"s_cmp_lg_u32 {sWave}, 0")
    a("s_cbranch_scc1 K2_GEN1")
    a(f"v_and_b32 {vT0}, 7, {vL}")
    a(f"v_lshlrev_b32 {vT0}, 2, {vT0}")
    a(f"ds_write_b32 {vT0}, {vZ[0]} offset:{L_CNT}")
    a("s_waitcnt lgkmcnt(0)")
    a.label("K2_GEN1")
    a("s_barrier")
    a(f"s_lshl_b32 {sTmp}, {sChunk}, 9")
    a(f"v_add_u32 {vT0}, {sTmp}, v0")
    a(f"s_mov_b32 {sTmp}, {E}")
    a(f"v_cmp_gt_u32 {sAny}, {sTmp}, {vT0}")
    a("s_nop 1")
    append_raw("K2_RA2")
    a("s_waitcnt lgkmcnt(0)")
    a("s_barrier")
    a(f"s_lshl_b32 {sTmp}, {sWin}, 2")
    a(f"v_mov_b32 {vT0}, {sTmp}")
    a(f"ds_read_b32 {vT1}, {vT0} offset:{L_CNT}")
    a("s_waitcnt lgkmcnt(0)")
    a(f"v_readfirstlane_b32 {sCnt}, {vT1}")
    a("s_nop 3")
    a.label("K2_MAIN")
    if opt.get('dbgfill',0): stamp(a,opt,14)
    a(f"s_min_u32 {sCnt}, {sCnt}, {CAP}")
    a(f"s_add_u32 {sNT}, {sCnt}, 31")
    a(f"s_lshr_b32 {sNT}, {sNT}, 5")
    a(f"s_cmp_eq_u32 {sNT}, 0")
    a("s_cbranch_scc1 K2_MAIN_DONE")
    a(f"s_mul_i32 {sTmp}, {sWin}, {CAPX*4}")
    a(f"s_add_u32 {sTmp}, {sTmp}, {L_L0}")
    a(f"s_mul_i32 {sTmp2}, {sWin}, {CAPX*2}")
    a(f"s_add_u32 {sTmp2}, {sTmp2}, {L_L1}")
    a(f"v_and_b32 {vT0}, 31, {vL}")
    a(f"v_lshl_add_u32 {aL0}, {vT0}, 2, {sTmp}")
    a(f"v_lshl_add_u32 {aL1s}, {vT0}, 1, {sTmp2}")
    a(f"v_lshrrev_b32 {vT0}, 3, {vL}")
    a(f"v_lshl_add_u32 {aL1d}, {vT0}, 3, {sTmp2}")
    def pad():
        a(f"v_add_u32 {vT0}, {sCnt}, {vL}")
        a(f"v_lshl_add_u32 {vT1}, {vT0}, 2, {sTmp}")
        a(f"v_lshl_add_u32 {vT2}, {vT0}, 1, {sTmp2}")
        a(f"v_mov_b32 {vJ}, 7")
        a(f"ds_write_b32 {vT1}, {vJ}")
        a(f"ds_write_b16 {vT2}, {vZ[0]}")
        a(f"ds_write_b32 {vT1}, {vJ} offset:256")
        a(f"ds_write_b16 {vT2}, {vZ[0]} offset:128")
    def first_reads():
        a(f"ds_read_b32 {vT3}, {aL0}")
        a(f"ds_read_b64 {SD}, {aL1d}")
        a(f"ds_read_b32 {LE[1]}, {aL0} offset:128")
        a(f"ds_read_b32 {LE[0]}, {aL0} offset:256")
        a(f"ds_read_u16 {SS}, {aL1s}")
    a(f"s_cmp_ge_u32 {sCnt}, 96")
    a("s_cbranch_scc1 K2_FILL_BIG")
    pad()
    first_reads()
    a("s_waitcnt lgkmcnt(0)")
    a("s_branch K2_FILL")
    a.label("K2_FILL_BIG")
    first_reads()
    pad()
    a("s_waitcnt lgkmcnt(4)")
    a.label("K2_FILL")
    ENT=['',' nt',' sc1',' sc0 sc1',' sc0',' sc0 nt',' sc1 nt',' sc0 sc1 nt'][opt.get('e_nt',0)]
    def E_addr(le): a(f"v_and_or_b32 {aE}, {le}, {sMaskE}, {vHOFF}")
    def E_load(p): a(f"buffer_load_dwordx4 {EA[p]}, {aE}, {sE}, 0 offen{ENT}")
    def H_addr():
        if opt.get('hmask',0):
            a(f"v_and_b32 {SD[0]}, 0x03ff03ff, {SD[0]}"); a(f"v_and_b32 {SD[1]}, 0x03ff03ff, {SD[1]}")
        for i in range(4):
            a(f"v_mad_u32_u16 {AD[i]}, {SD[i>>1]}, {s128}, {vKD[i]}"+(" op_sel:[1,0,0,0]" if i&1 else ""))
    def H_load(i):
        a(f"s_mov_b32 m0, {sM0[i]}")
        a("s_nop 0")
        a(f"buffer_load_dwordx4 {AD[i]}, {sB}, 0 offen{HLD} lds")
    def P_addr(le,par):
        a(f"v_and_b32 {vJ}, 7, {le}")
        a(f"v_mul_u32_u24 {aPS}, 6, {SS}")
        a(f"v_mad_u32_u24 {aPD}, {vJ}, 6, {sN06}")
        a(f"v_lshlrev_b32 {aOH}, 4, {vJ}")
        a(f"v_lshl_add_u32 {aA2[par]}, {vJ}, 3, {vE64}")
    def P_reads():
        for c in range(3): a(f"ds_read_u16_d16_hi {PS[c]}, {aPS} offset:{L_POS+2*c}")
        for c in range(3): a(f"ds_read_u16_d16_hi {PD[c]}, {aPD} offset:{L_POS+2*c}")
        a(f"ds_read_b128 {OH}, {aOH} offset:{L_OH}")
    def P_calc_list(par):
        return [f"v_sub_f32 {DX[0]}, {PD[0]}, {PS[0]}", f"v_sub_f32 {DX[1]}, {PD[1]}, {PS[1]}", f"v_sub_f32 {DX[2]}, {PD[2]}, {PS[2]}",
                f"v_mul_f32 {DD}, {DX[0]}, {DX[0]}", f"v_fmac_f32 {DD}, {DX[1]}, {DX[1]}", f"v_fmac_f32 {DD}, {DX[2]}, {DX[2]}",
                f"v_cvt_pk_bf16_f32 {E01[0]}, 1.0, {DX[0]}", f"v_cvt_pk_bf16_f32 {E01[1]}, {DX[1]}, {DX[2]}",
                f"v_cvt_pk_bf16_f32 {OH[3]}, {OH[3]}, {DD}",
                f"ds_write_b64 {aA2[par]}, {E01}"]
    def first_loads():
        E_addr(vT3); E_load(0)
        H_addr()
        for i in range(4): H_load(i)
        E_addr(LE[1]); E_load(1)
    def first_prep(readsd):
        P_addr(vT3,0); P_reads()
        if readsd:
            a(f"ds_read_b64 {SD}, {aL1d} offset:64")
        a(f"ds_read_u16 {SS}, {aL1s} offset:64")
        for i in range(16): a(f"v_mov_b32 {T[i]}, 0")
        for i in range(8): a(f"v_mov_b32 {A2R[i]}, 0")
        a("s_waitcnt lgkmcnt(0)")
        for ins in P_calc_list(0): a(ins)
    if opt.get('stagger',1):
        a.c("the younger partner prepares tile 0 first, so the older waves' first rows are requested ahead of it")
        a(f"s_cmp_ge_u32 {sWave}, 4")
        a("s_cbranch_scc1 K2_FILL_B")
    first_loads()
    if opt.get('dbgfill',0): stamp(a,opt,15)
    first_prep(True)
    if opt.get('stagger',1):
        a("s_branch K2_FILL_J")
        a.label("K2_FILL_B")
        first_prep(False)
        first_loads()
        a(f"ds_read_b64 {SD}, {aL1d} offset:64")
        a("s_waitcnt lgkmcnt(0)")
        a.label("K2_FILL_J")
    H_addr()
    P_addr(LE[1],1)
    E_addr(LE[0])
    a("s_waitcnt vmcnt(1)")
    for s_ in range(4): a(f"ds_read_b128 {HA[4*s_:4*s_+4]}, {vHA[s_]}")
    Da,Db=D1[0:16],D1[16:32]
    mfma(a,Da,OH,WA[0:4],"0")
    mfma(a,Da,EA[0],WE[0:4],Da)
    a("s_waitcnt lgkmcnt(0)")
    for i in range(4): H_load(i)
    mfma(a,Da,HA[0:4],ID[0:4],Da)
    mfma(a,Da,HA[4:8],ID[4:8],Da)
    a(f"s_mov_b32 {sT}, 0")
    stamp(a,opt,8)
    if DBG:
        a("s_memtime s[80:81]")
        a("s_waitcnt lgkmcnt(0)")
    a.nop(12)
    MADD=opt.get('madd',1)
    PB_=[0]; MF=[False]
    def prio(p):
        if PRIO: a(f"s_setprio {p+PB_[0] if PB_[0]>=0 else 3}")
    def Tsec(kind,x,p):
        Dx=D1[16*x:16*x+16]; o=1-x; Do=D1[16*o:16*o+16]; D2o=D2[16*o:16*o+16]
        prio(1)
        if kind=='X':
            ea = EA[p] if x==0 else EA[1-p]
            mfma(a,Do,OH,WA[4*o:4*o+4],"0")
            for i in range(8): a(f"v_cvt_pk_bf16_f32 {M[i]}, {T[2*i]}, {T[2*i+1]}")
            mfma(a,Do,ea,WE[4*o:4*o+4],Do)
            for i in range(16):
                if i==6:
                    if x==1: a("s_waitcnt lgkmcnt(2)")
                    mfma(a,D2o,A2R[0:4],M[0:4],D2o)
                a(f"v_exp_f32 {T[i]}, {Dx[i]}")
            if MADD:
                a("s_nop 1")
                mfma(a,T,ONE,ONE,T)
        else:
            hb = HA[8:16] if x==0 else HA[0:8]
            for i in range(16):
                if i==0: mfma(a,Do,hb[0:4],ID[0:4],Do)
                if i==5: mfma(a,Do,hb[4:8],ID[4:8],Do)
                if i==10: mfma(a,D2o,A2R[4:8],M[4:8],D2o)
                a(f"v_rcp_f32 {T[i]}, {T[i]}")
        prio(0)
    def tile(p):
        q=1-p
        Tsec('X',0,p)
        if not opt.get('e_late',0): E_load(p)
        else: a("s_nop 0")
        P_reads()
        a(f"ds_read_b64 {SD}, {aL1d} offset:{64*(p+2)}")
        if not MADD:
            for i in range(16): a(f"v_add_f32 {T[i]}, 1.0, {T[i]}")
        else:
            a.nop(2)
        Tsec('R',0,p)
        def mulsA():
            for i in range(16): a(f"v_mul_f32 {T[i]}, {Da[i]}, {T[i]}")
        if MF[0]: mulsA()
        a(f"s_waitcnt vmcnt({0 if opt.get('e_late',0) else 1}) lgkmcnt(0)")
        for s_ in range(4): a(f"ds_read_b128 {HA[4*s_:4*s_+4]}, {vHA[s_]}")
        for k in range(4): a(f"ds_read_b64_tr_b16 {A2R[2*k:2*k+2]}, {vTR} offset:{512*k}")
        a(f"ds_write_b64 {aA2[p]}, {vZ}")
        pc=P_calc_list(q)
        for ins in pc[:6]: a(ins)
        H_addr()
        if not MF[0]: mulsA()
        for ins in pc[6:]: a(ins)
        if MF[0]: a("s_nop 0")
        Tsec('X',1,p)
        a("s_waitcnt lgkmcnt(0)")
        if opt.get('e_late',0)==1: E_load(p)
        for i in range(4): H_load(i)
        a(f"ds_read_b32 {LE[q]}, {aL0} offset:{128*(p+3)}")
        a(f"ds_read_u16 {SS}, {aL1s} offset:{64*(p+2)}")
        if not MADD:
            for i in range(16): a(f"v_add_f32 {T[i]}, 1.0, {T[i]}")
        Tsec('R',1,p)
        def mulsB():
            for i in range(16): a(f"v_mul_f32 {T[i]}, {Db[i]}, {T[i]}")
        if MF[0]: mulsB()
        a("s_waitcnt lgkmcnt(0)")
        E_addr(LE[q])
        P_addr(LE[p],p)
        if p==1:
            a(f"v_add_u32 {aL0}, 256, {aL0}")
            a(f"v_add_u32 {aL1s}, 128, {aL1s}")
            a(f"v_add_u32 {aL1d}, 128, {aL1d}")
        if not MF[0]: mulsB()
    def drain(par):
        for i in range(8): a(f"v_cvt_pk_bf16_f32 {M[i]}, {T[2*i]}, {T[2*i+1]}")
        a(f"ds_write_b64 {aA2[par]}, {vZ}")
        a("s_nop 0")
        mfma(a,D2[16:32],A2R[0:4],M[0:4],D2[16:32])
        mfma(a,D2[16:32],A2R[4:8],M[4:8],D2[16:32])
    def main_loop(sfx):
        a(".p2align 6")
        a.label("K2_LOOP"+sfx)
        tile(0)
        a(f"s_add_u32 {sT}, {sT}, 1")
        a(f"s_cmp_ge_u32 {sT}, {sNT}")
        a("s_cbranch_scc1 K2_EXIT_ODD"+sfx)
        tile(1)
        a(f"s_add_u32 {sT}, {sT}, 1")
        a(f"s_cmp_lt_u32 {sT}, {sNT}")
        a("s_cbranch_scc1 K2_LOOP"+sfx)
        drain(0)
        a("s_branch K2_LOOP_DONE")
        a.label("K2_EXIT_ODD"+sfx)
        drain(1)
    HP=opt.get('mfirst',2)
    if HP==1:
        a.c("the younger partner (waves 4..7) opens its plain sections with the multiplies, so both partners' multiplies pair up")
        a(f"s_cmp_ge_u32 {sWave}, 4")
        a("s_cbranch_scc1 K2_LOOP_H")
    if HP==2: MF[0]=True
    main_loop("")
    if HP==1:
        a("s_branch K2_LOOP_DONE")
        MF[0]=True
        main_loop("_H")
        MF[0]=False
    a.label("K2_LOOP_DONE")
    if PRIO: a("s_setprio 0")
    a.label("K2_MAIN_DONE")
    stamp(a,opt,9)
    if DBG:
        a("s_memtime s[82:83]")
        a("s_waitcnt lgkmcnt(0)")
        a("s_sub_u32 s80, s82, s80")
        a(f"v_writelane_b32 {VDBG}, s80, 12")
        a(f"v_writelane_b32 {VDBG}, {sNT}, 11")
    a(f"s_cmp_eq_u32 {sMode}, 0")
    a("s_cbranch_scc1 K2_EPI")
    a("s_waitcnt vmcnt(0) lgkmcnt(0)")
    a(f"s_add_u32 {sChunk}, {sChunk}, 1")
    a(f"s_cmp_lt_u32 {sChunk}, {(E+511)//512}")
    a("s_cbranch_scc1 K2_GEN")
    a.label("K2_EPI")
    a.c("segment sums of this window: m_i (bf16) -> rows of this window's (now idle) A2 slice")
    a(f"s_lshl_b32 {sHST}, {sWin}, 11")
    a(f"s_add_u32 {sHST}, {sHST}, {L_A2}")
    a(f"v_and_b32 {vJ}, 31, {vL}")
    a(f"s_mov_b32 {sTmp}, {NEG_LN2}")
    a(f"v_lshrrev_b32 {vT2}, 5, {vL}")
    a(f"v_lshlrev_b32 {vT2}, 7, {vT2}")
    a(f"v_lshl_add_u32 {vT2}, {vJ}, 1, {vT2}")
    a(f"v_add_u32 {vT2}, {sHST}, {vT2}")
    a.nop(8)
    for qq in range(4):
        a(f"v_mul_f32 {AD[0]}, {sTmp}, {D2[4*qq]}")
        a(f"v_mul_f32 {AD[1]}, {sTmp}, {D2[16+4*qq]}")
        a(f"v_cvt_pk_bf16_f32 {AD[2]}, {AD[0]}, {AD[1]}")
        a(f"ds_write_b16 {vT2}, {AD[2]} offset:{qq*256}")
        a(f"ds_write_b16_d16_hi {vT2}, {AD[2]} offset:{qq*256+64}")
    def pos_part():
        a.c("coordinate update of this window")
        PP=T
        for qq in range(4):
            for c in range(1,4):
                r=PP[qq*3+c-1]
                a(f"v_mul_f32 {r}, {WX[0]}, {D2[4*qq+c]}")
                a(f"v_fmac_f32 {r}, {WX[1]}, {D2[16+4*qq+c]}")
        for sh in (1,2,4,8):
            for i in range(12): a(f"v_add_f32_dpp {PP[i]}, {PP[i]}, {PP[i]} row_shr:{sh} row_mask:0xf bank_mask:0xf bound_ctrl:0")
        for i in range(12): a(f"v_add_f32_dpp {PP[i]}, {PP[i]}, {PP[i]} row_bcast:15 row_mask:0xa bank_mask:0xf")
        a(f"v_lshrrev_b32 {vT2}, 5, {vL}")
        a(f"v_lshlrev_b32 {vT2}, 4, {vT2}")
        a(f"s_add_u32 {sTmp}, {sHST}, 1024")
        a(f"v_add_u32 {vT2}, {sTmp}, {vT2}")
        a("s_mov_b32 exec_lo, 0x80000000")
        a("s_mov_b32 exec_hi, 0x80000000")
        for qq in range(4):
            for c in range(3):
                a(f"ds_write_b32 {vT2}, {PP[qq*3+c]} offset:{qq*32+c*4}")
        a("s_mov_b64 exec, -1")
        a(f"v_mul_u32_u24 {vT2}, 86, {vL}")
        a(f"v_lshrrev_b32 {vT2}, 8, {vT2}")
        a(f"v_mul_u32_u24 {vT3}, 3, {vT2}")
        a(f"v_sub_u32 {vT3}, {vL}, {vT3}")
        a(f"v_lshlrev_b32 {vT2}, 4, {vT2}")
        a(f"v_lshl_add_u32 {vT2}, {vT3}, 2, {vT2}")
        a(f"v_add_u32 {vT2}, {sTmp}, {vT2}")
        a(f"v_min_u32 {vT2}, {LDS2-4}, {vT2}")
        a(f"ds_read_b32 {AD[0]}, {vT2}")
        a(f"v_lshl_add_u32 {vT3}, {vL}, 1, {sN06}")
        a(f"v_min_u32 {vT2}, {POS_SZ-2}, {vT3}")
        a(f"ds_read_u16_d16_hi {PS[0]}, {vT2} offset:{L_POS}")
        a(f"s_mul_i32 {sTmp}, {sNJ}, 3")
        a(f"v_cmp_gt_u32 vcc, {sTmp}, {vL}")
        a(f"v_add_u32 {vT3}, {OUT_POS}, {vT3}")
        a(f"v_mov_b32 {vT2}, 0x40000000")
        a("s_waitcnt lgkmcnt(0)")
        a(f"v_cndmask_b32 {vT3}, {vT2}, {vT3}, vcc")
        a(f"v_add_f32 {AD[0]}, {AD[0]}, {PS[0]}")
        a(f"v_cvt_pk_bf16_f32 {AD[0]}, {AD[0]}, {AD[0]}")
        a(f"buffer_store_short {AD[0]}, {vT3}, {sO}, 0 offen{OST}")
    a.c("job waves 4..7: row tile r = (v-4)>>1 (rows = window 4r + (m>>3), node m&7), feature half x = v&1")
    a(f"s_cmp_lt_u32 {sWave}, 4")
    a("s_cbranch_scc1 K2_EPI_NOJOB")
    a(f"s_sub_u32 {sTmp2}, {sWave}, 4")
    a(f"s_lshr_b32 {sTmp2}, {sTmp2}, 1")
    a(f"s_lshl_b32 {sTmp2}, {sTmp2}, 2")
    a(f"v_bfe_u32 {vT0}, {vL}, 3, 2")
    a(f"v_add_u32 {vT0}, {sTmp2}, {vT0}")
    a(f"v_and_b32 {vJ}, 7, {vL}")
    a(f"v_lshlrev_b32 {aL1d}, 11, {vT0}")
    a(f"v_lshl_add_u32 {aL1d}, {vJ}, 7, {aL1d}")
    a(f"v_add_u32 {aL1d}, {L_A2}, {aL1d}")
    a(f"v_add_u32 {aL1d}, {aL1d}, {vHOFF}")
    a(f"s_lshl_b32 {sTmp2}, s2, 3")
    a(f"v_add_u32 {vT0}, {sTmp2}, {vT0}")
    a(f"v_mad_u32_u24 {SD[0]}, {vT0}, {s3125}, {v511}")
    a(f"v_add_u32 {SD[1]}, 3125, {SD[0]}")
    a(f"v_lshrrev_b32 {SD[0]}, 9, {SD[0]}")
    a(f"v_lshrrev_b32 {SD[1]}, 9, {SD[1]}")
    a(f"v_sub_u32 {SD[1]}, {SD[1]}, {SD[0]}")
    a(f"v_cmp_lt_u32 vcc, {vJ}, {SD[1]}")
    a(f"v_add_u32 {vT1}, -1, {SD[1]}")
    a(f"v_min_u32 {vT1}, {vT1}, {vJ}")
    a(f"v_add_u32 {vT1}, {SD[0]}, {vT1}")
    a(f"v_lshlrev_b32 {vT1}, 7, {vT1}")
    a(f"v_add_u32 {vT0}, {vT1}, {vHOFF}")
    for s_ in range(4):
        a(f"buffer_load_dwordx4 {HA[4*s_:4*s_+4]}, {vT0}, {sHs}, 0 offen offset:{32*s_}")
    a(f"s_and_b32 {sTmp2}, {sWave}, 1")
    a(f"s_lshl_b32 {sTmp2}, {sTmp2}, 6")
    a(f"v_lshrrev_b32 {vT0}, 1, {vHOFF}")
    a(f"v_add3_u32 {aL0}, {vT1}, {vT0}, {sTmp2}")
    for qq in range(4):
        a(f"buffer_load_dwordx2 {M[2*qq:2*qq+2]}, {aL0}, {sHs}, 0 offen offset:{16*qq}")
    a(f"v_mov_b32 {vT0}, 0x40000000")
    a(f"v_cndmask_b32 {aL1s}, {vT0}, {aL0}, vcc")
    pos_part()
    HV=D2[0:16]
    a("s_waitcnt vmcnt(1)")
    for s_ in range(4):
        mfma(a,D1[0:16],WH[4*s_:4*s_+4],HA[4*s_:4*s_+4],"0" if s_==0 else D1[0:16])
    for qq in range(4):
        a(f"v_lshlrev_b32 {HV[4*qq]}, 16, {M[2*qq]}")
        a(f"v_and_b32 {HV[4*qq+1]}, 0xffff0000, {M[2*qq]}")
        a(f"v_lshlrev_b32 {HV[4*qq+2]}, 16, {M[2*qq+1]}")
        a(f"v_and_b32 {HV[4*qq+3]}, 0xffff0000, {M[2*qq+1]}")
    stamp(a,opt,10)
    a("s_barrier")
    MA=[EA[0],EA[1],A2R[0:4],A2R[4:8]]
    for s_ in range(4): a(f"ds_read_b128 {MA[s_]}, {aL1d} offset:{32*s_}")
    for s_ in range(4):
        a(f"s_waitcnt lgkmcnt({3-s_})")
        mfma(a,D1[0:16],WH[16+4*s_:20+4*s_],MA[s_],D1[0:16])
    a(f"s_mov_b32 {sTmp}, {NEG_LOG2E}")
    a.nop(14)
    X=D1[0:16]
    for i in range(16): a(f"v_mul_f32 {T[i]}, {sTmp}, {X[i]}")
    for i in range(16): a(f"v_exp_f32 {T[i]}, {T[i]}")
    for i in range(16): a(f"v_add_f32 {T[i]}, 1.0, {T[i]}")
    for i in range(16): a(f"v_rcp_f32 {T[i]}, {T[i]}")
    a("s_nop 0")
    for i in range(16): a(f"v_fma_f32 {T[i]}, {X[i]}, {T[i]}, {HV[i]}")
    for qq in range(4):
        a(f"v_cvt_pk_bf16_f32 {M[2*qq]}, {T[4*qq]}, {T[4*qq+1]}")
        a(f"v_cvt_pk_bf16_f32 {M[2*qq+1]}, {T[4*qq+2]}, {T[4*qq+3]}")
        a(f"buffer_store_dwordx2 {M[2*qq:2*qq+2]}, {aL1s}, {sO}, 0 offen offset:{16*qq}{OST}")
    a("s_branch K2_FIN")
    a.label("K2_EPI_NOJOB")
    a("s_waitcnt lgkmcnt(0)")
    stamp(a,opt,10)
    a("s_barrier")
    pos_part()
    a.label("K2_FIN")
    if DBG:
        a("s_waitcnt vmcnt(0)")
        stamp(a,opt,13)
        a(f"s_lshl_b32 {sTmp}, s2, 4")
        a(f"s_add_u32 {sTmp}, {sTmp}, {sWave}")
        a(f"s_lshl_b32 {sTmp}, {sTmp}, 6")
        a(f"s_add_u32 {sTmp}, {sTmp}, {DBG_OFF}")
        a(f"v_lshlrev_b32 {vT0}, 2, {vL}")
        a("s_mov_b32 exec_lo, 0xffff")
        a("s_mov_b32 exec_hi, 0")
        a(f"buffer_store_dword {VDBG}, {vT0}, {sW}, {sTmp} offen")
        a("s_waitcnt vmcnt(0)")
    a.label("K_END")
    a("s_endpgm")
    a.label("K_CODE_END")
    return nv

HEADER='''; Kernarg layout (88 bytes, ptrs only): h, pos, e_attr, src, dst, w_e, w_x, w_h, out, debug, ws
; @launch grid=(256,1,1) block=(512,1,1) lds={lds2}
.amdgcn_target "amdgcn-amd-amdhsa--gfx950"
.text
.globl {k}
.p2align 8
.type {k},@function
'''
def kd(name,nv,ns):
    acc=(nv+3)//4*4
    return f'''.amdhsa_kernel {name}
  .amdhsa_next_free_vgpr {acc}
  .amdhsa_next_free_sgpr {ns}
  .amdhsa_accum_offset {acc}
  .amdhsa_group_segment_fixed_size 0
  .amdhsa_kernarg_size 88
  .amdhsa_user_sgpr_count 2
  .amdhsa_user_sgpr_kernarg_segment_ptr 1
  .amdhsa_system_sgpr_workgroup_id_x 1
  .amdhsa_float_denorm_mode_32 3
.end_amdhsa_kernel
'''
def build(opt):
    out=HEADER.format(lds2=LDS2,k=KNAME)
    a=Asm()
    nv=gen(a,opt)
    assert nv<=255
    out+=a.text()
    out+='.section .rodata,"a"\n.p2align 6\n'+kd(KNAME,256,102)
    return out,nv
if __name__=="__main__":
    opt={}
    for arg in sys.argv[2:]:
        k,v=arg.split('='); opt[k]=int(v)
    txt,nv=build(opt)
    open(sys.argv[1],'w').write(txt)
    print("vgprs:",nv,"LDS",LDS2,"lines",txt.count("\n"),"WS",WS_BYTES)
```

```python
import sys, struct
from asmlib import *

N=12500; E=800000; CH=3136; NSRC=256; NBIN=256; NPW=49
KW=703687442
LOG2E=1.4426950408889634; LN2=0.6931471805599453
def f2u(x): return struct.unpack('<I',struct.pack('<f',x))[0]
NEG_LOG2E=f2u(-LOG2E); NEG_LN2=f2u(-LN2)
SENT=0xFFFFFFFF; MARK=0xFFFFFFFE
CELLS=0; BPT=NBIN*NSRC*128; FLG=BPT+N*128+((-N*128)%4096); FLG2=FLG+4096; WS_BYTES=FLG2+8192
OUT_BYTES=N*64*2+N*3*2; OUT_POS=N*64*2
CAP=576; CAPX=704
L_OH=0; L_CNT=128; L_NRES=160; L_WIN=192; L_RES=256; L_POS=1280; POS_SZ=74*1024
L_L0=L_POS+POS_SZ; L_L1=L_L0+8*CAPX*4; L_A2=L_L1+8*CAPX*2; L_HST=L_A2+8*2048; LDS2=L_HST+8*4096
assert LDS2<=163840, LDS2
L_RAWW=L_L0; L_BST=L_L0+19*1024; assert L_BST+2*32*144<=L_A2
DBG_OFF=16*1024*1024

def WSB(opt): return (32*1024*1024 if opt.get('dbg',0) else WS_BYTES)
def srd(a, s, lo, hi, size):
    a(f"s_mov_b32 {s[0]}, {lo}")
    a(f"s_and_b32 {s[1]}, {hi}, 0xffff")
    a(f"s_mov_b32 {s[2]}, {size}")
    a(f"s_mov_b32 {s[3]}, 0x20000")
VDBG="v255"
def stamp(a,opt,idx):
    if not opt.get('dbg',0): return
    a("s_memrealtime s[100:101]")
    a("s_waitcnt lgkmcnt(0)")
    a(f"v_writelane_b32 {VDBG}, s100, {idx}")
def S(i,n=1): return R('s',i,n)
def V(i,n=1): return R('v',i,n)
def mfma(a,d,A,B,c): a(f"v_mfma_f32_32x32x16_bf16 {d}, {A}, {B}, {c}")

NPOS1=24
KNAME="gather_scatter__cheap_equivariant_egnn__graph_kernel"
def gen(a, opt):
    DBG=opt.get('dbg',0)
    PRIO=opt.get('prio',1)
    ST=[" sc1"," sc0 sc1"," sc1 nt"," sc0 sc1 nt"][opt.get('st',0)]; LD=" sc1" if opt.get('ld_sc1',1) else ""
    HLD=[""," sc1"," sc0 sc1"," sc1 nt"," sc0 sc1 nt"][opt.get('h_sc1',1)]
    SNT=" nt" if opt.get('snt',0) else ""
    OST=[""," nt"," sc1"," sc0 sc1"][opt.get('ost',0)]
    a.label(KNAME)
    sB=S(4,4); sE=S(8,4); sW=S(12,4); sO=S(16,4); sP=S(20,4); sS=S(24,4); sD=S(28,4)
    sWave=S(32); sN0=S(33); sNJ=S(34); sN06=S(35); sNT=S(36); sT=S(37); sMode=S(38); sChunk=S(39)
    sMaskE=S(40); s128=S(41); sK=S(42); s3125=S(43); sLim=S(44); sCAP=S(44); sCnt=S(45); sTmp=S(46); sTmp2=S(47)
    sM0=S(48,4); sSave=S(52,2); sAny=S(54,2); sNR=S(56); sI=S(57); sC=S(58); sWsrc=S(59); sMark=S(60); sCAPq=S(61); sHST=S(62); sTmp3=S(63)
    sMask=[S(64+2*i,2) for i in range(16)]
    sTagOff=S(36)
    sRot=S(39+0) if False else S(37)
    sWin=S(96); sTgt=S(97); sNonce=S(98); sPoll=S(99)
    sT4=S(84,4); sT4b=S(88,4); sT4c=S(92,4)
    sHw=S(48,4)
    sHs=S(68,4); sWx=S(72,4)
    vr=Regs(1,256,'v')
    vL=vr.alloc('lane')
    WE=vr.alloc('WE',8,4); WA=vr.alloc('WA',8,4); ID=vr.alloc('ID',8,4); D2=vr.alloc('D2',32,4)
    D1=vr.alloc('D1',32,4); HA=vr.alloc('HA',16,4); T=vr.alloc('T',16,4); M=vr.alloc('M',8,4)
    A2R=vr.alloc('A2R',8,4); EA=[vr.alloc('EA0',4,4),vr.alloc('EA1',4,4)]; OH=vr.alloc('OH',4,4)
    WH=vr.alloc('WH',32,4); ONE=vr.alloc('ONE',4,4)
    vHA=vr.alloc('vHA',4); vKD=vr.alloc('vKD',4); vTR=vr.alloc('vTR'); vE64=vr.alloc('vE64'); vHOFF=vr.alloc('vHOFF')
    vZ=vr.alloc('vZ',2,2); aL0=vr.alloc('aL0'); aL1s=vr.alloc('aL1s'); aL1d=vr.alloc('aL1d')
    LE=[vr.alloc('LE0'),vr.alloc('LE1')]; aA2=[vr.alloc('aA2_0'),vr.alloc('aA2_1')]
    SD=vr.alloc('SD',2,2); SS=vr.alloc('SS'); PS=vr.alloc('PS',3); PD=vr.alloc('PD',3)
    E01=vr.alloc('E01',2,2); DX=vr.alloc('DX',3); DD=vr.alloc('DD'); AD=vr.alloc('AD',4); vJ=vr.alloc('vJ')
    aE=vr.alloc('aE'); aPS=vr.alloc('aPS'); aPD=vr.alloc('aPD'); aOH=vr.alloc('aOH')
    vT0=vr.alloc('vT0'); vT1=vr.alloc('vT1'); vT2=vr.alloc('vT2'); vT3=vr.alloc('vT3')
    vOne=vr.alloc('vOne'); v511=vr.alloc('v511'); vTRW=vr.alloc('vTRW'); vL16=vr.alloc('vL16'); WX=vr.alloc('WX',2); vDUM=vr.alloc('vDUM')
    nv=vr.next
    HW=T
    def geometry(win):
        a(f"s_lshl_b32 {sTmp}, s2, 3")
        a(f"s_add_u32 {sTmp}, {sTmp}, {win}")
        a(f"s_mul_i32 {sN0}, {sTmp}, 3125")
        a(f"s_add_u32 {sNJ}, {sN0}, {3125+511}")
        a(f"s_add_u32 {sN0}, {sN0}, 511")
        a(f"s_lshr_b32 {sN0}, {sN0}, 9")
        a(f"s_lshr_b32 {sNJ}, {sNJ}, 9")
        a(f"s_sub_u32 {sNJ}, {sNJ}, {sN0}")
        a(f"s_mul_i32 {sN06}, {sN0}, 6")
    def dma(vaddr,srd_,soff,ldsbase_const=None,ldsreg=None):
        pass

    def load_hwin():
        a.c("h rows of the natural window (A operand of h@W1; needed after barrier C)")
        a(f"v_bfe_u32 {vT0}, {vL}, 3, 1")
        a(f"v_and_b32 {vT2}, 3, {vL}")
        a(f"v_lshl_add_u32 {vT0}, {vT0}, 2, {vT2}")
        a(f"s_sub_u32 {sTmp}, {sNJ}, 1")
        a(f"v_min_u32 {vT0}, {sTmp}, {vT0}")
        a(f"v_add_u32 {vT0}, {sN0}, {vT0}")
        a(f"v_lshl_add_u32 {vT0}, {vT0}, 7, {vHOFF}")
        for s_ in range(4):
            a(f"buffer_load_dwordx4 {HW[4*s_:4*s_+4]}, {vT0}, {sHw}, 0 offen offset:{32*s_}")
    a("s_cmp_ge_u32 s2, 256")
    a("s_cbranch_scc1 K_END")
    a("s_load_dwordx4 s[64:67], s[0:1], 0")
    a("s_load_dwordx4 s[68:71], s[0:1], 16")
    a("s_load_dwordx4 s[72:75], s[0:1], 32")
    a("s_load_dwordx4 s[76:79], s[0:1], 64")
    a("s_load_dwordx2 s[80:81], s[0:1], 80")
    a(f"v_and_b32 {vL}, 63, v0")
    a(f"v_lshrrev_b32 {vT0}, 6, v0")
    a(f"v_lshlrev_b32 {vL16}, 4, {vL}")
    a(f"v_readfirstlane_b32 {sWave}, {vT0}")
    if opt.get('cpf',1):
        a.c("pull this workgroup's share of the kernel's own code into L2 (read only, speed only)")
        NL=opt.get('cpf_lines',8)
        a("s_getpc_b64 s[84:85]")
        a.label("K_PC")
        a("s_and_b32 s85, s85, 0xffff")
        a("s_mov_b32 s86, K_CODE_END-K_PC")
        a("s_mov_b32 s87, 0x20000")
        if opt.get('cpf',1)==1:
            a(f"s_lshr_b32 {sTmp}, s2, 3")
            a(f"s_and_b32 {sTmp}, {sTmp}, 31")
            a(f"s_mul_i32 {sTmp}, {sTmp}, {NL*128}")
            a(f"v_lshlrev_b32 {vT1}, 7, {vL}")
            a(f"v_add_u32 {vT1}, {sTmp}, {vT1}")
            a(f"s_cmp_lg_u32 {sWave}, 3")
            a("s_cbranch_scc1 K_NOCPF")
            a(f"s_mov_b32 exec_lo, {(1<<NL)-1}")
            a("s_mov_b32 exec_hi, 0")
            a(f"buffer_load_dword {vDUM}, {vT1}, s[84:87], 0 offen")
            a("s_mov_b64 exec, -1")
        elif opt.get('cpf',1)==2:
            a(f"s_mul_i32 {sTmp}, {sWave}, {24*128}")
            a(f"v_lshlrev_b32 {vT1}, 7, {vL}")
            a(f"v_add_u32 {vT1}, {sTmp}, {vT1}")
            a(f"s_mov_b32 exec_lo, {(1<<24)-1}")
            a("s_mov_b32 exec_hi, 0")
            a(f"buffer_load_dword {vDUM}, {vT1}, s[84:87], 0 offen")
            a("s_mov_b64 exec, -1")
        elif opt.get('cpf',1)==3:
            a(f"s_lshr_b32 {sTmp}, s2, 3")
            a(f"s_and_b32 {sTmp}, {sTmp}, 3")
            a(f"s_mul_i32 {sTmp}, {sTmp}, {48*128}")
            a(f"v_lshlrev_b32 {vT1}, 7, {vL}")
            a(f"v_add_u32 {vT1}, {sTmp}, {vT1}")
            a(f"s_cmp_lg_u32 {sWave}, 3")
            a("s_cbranch_scc1 K_NOCPF")
            a("s_mov_b32 exec_hi, 0xffff")
            a(f"buffer_load_dword {vDUM}, {vT1}, s[84:87], 0 offen")
            a("s_mov_b64 exec, -1")
        a.label("K_NOCPF")
    a(f"v_lshrrev_b32 {vT2}, 5, {vL}")
    a(f"v_lshlrev_b32 {vHOFF}, 4, {vT2}")
    a(f"v_mov_b32 {vZ[0]}, 0")
    a(f"v_mov_b32 {vZ[1]}, 0")
    geometry(sWave)
    a(f"s_mul_i32 {sTmp}, s2, {CH*4}")
    a(f"s_mul_i32 {sTmp2}, {sWave}, {384*4}")
    a(f"s_add_u32 {sTmp}, {sTmp}, {sTmp2}")
    a(f"v_lshl_add_u32 {vT0}, {vL}, 3, {sTmp}")
    a("s_waitcnt lgkmcnt(0)")
    stamp(a,opt,0)
    srd(a,sD,"s72","s73",E*4)
    srd(a,sS,"s70","s71",E*4)
    a.c("every wave: six edges per lane, local edge = 384v + 128k + 2l + u; wave 7 also takes edges 3072 + l")
    DS_=D1[0:7]; SR_=D1[8:15]
    for k in range(3): a(f"buffer_load_dwordx2 {D1[2*k:2*k+2]}, {vT0}, {sD}, 0 offen offset:{512*k}{SNT}")
    for k in range(3): a(f"buffer_load_dwordx2 {D1[8+2*k:10+2*k]}, {vT0}, {sS}, 0 offen offset:{512*k}{SNT}")
    srd(a,sT4,"s64","s65",N*128)
    srd(a,sHw,"s64","s65",N*128)
    srd(a,sT4b,"s74","s75",145*128)
    a(f"s_cmp_eq_u32 {sWave}, 7")
    a("s_cbranch_scc1 K_S_W7")
    a(f"s_cmp_eq_u32 {sWave}, 4")
    a("s_cbranch_scc1 K_S_W4")
    a(f"s_cmp_lt_u32 {sWave}, 5")
    a("s_cbranch_scc1 K_S_COMMON")
    a.c("waves 5,6: private raw W2 copy + h rows for the source-node table")
    a(f"s_sub_u32 {sI}, {sWave}, 5")
    a(f"s_lshl_b32 {sC}, {sI}, 13")
    a(f"s_add_u32 {sC}, {sC}, {L_A2}")
    for i in range(8):
        a(f"s_add_u32 {sTmp}, {sC}, {i*1024}")
        a(f"s_mov_b32 m0, {sTmp}")
        a(f"s_mov_b32 {sTmp2}, {8192+i*1024}")
        a(f"buffer_load_dwordx4 {vL16}, {sT4b}, {sTmp2} offen lds")
    a(f"s_mul_i32 {sTmp}, s2, {NPW}")
    a(f"s_lshl_b32 {sTmp2}, {sI}, 5")
    a(f"s_add_u32 {sTmp}, {sTmp}, {sTmp2}")
    a(f"v_and_b32 {vT0}, 31, {vL}")
    a(f"v_add_u32 {vT0}, {sTmp}, {vT0}")
    a(f"v_lshl_add_u32 {vT0}, {vT0}, 7, {vHOFF}")
    for s_ in range(4): a(f"buffer_load_dwordx4 {HA[4*s_:4*s_+4]}, {vT0}, {sT4}, 0 offen offset:{32*s_}")
    a("s_branch K_S_COMMON")
    a.label("K_S_W4")
    a.c("wave 4: this workgroup's share of the L2 warm-up of pos and w_h (speed only)")
    a("s_load_dwordx2 s[82:83], s[0:1], 56")
    srd(a,sP,"s66","s67",N*6)
    a(f"s_lshr_b32 {sTmp}, s2, 3")
    a(f"s_and_b32 {sTmp}, {sTmp}, 31")
    a(f"s_mul_i32 {sTmp2}, {sTmp}, {19*128}")
    a(f"v_lshlrev_b32 {vT0}, 7, {vL}")
    a(f"v_add_u32 {vT1}, {sTmp2}, {vT0}")
    a(f"v_cmp_gt_u32 vcc, 19, {vL}")
    a(f"v_mov_b32 {vT2}, 0x40000000")
    a("s_waitcnt lgkmcnt(0)")
    a(f"v_cndmask_b32 {vT1}, {vT2}, {vT1}, vcc")
    a(f"buffer_load_dword {vDUM}, {vT1}, {sP}, 0 offen")
    srd(a,sT4b,"s82","s83",128*128)
    a(f"s_lshl_b32 {sTmp2}, {sTmp}, 9")
    a(f"v_add_u32 {vT1}, {sTmp2}, {vT0}")
    a(f"v_cmp_gt_u32 vcc, 4, {vL}")
    a("s_nop 1")
    a(f"v_cndmask_b32 {vT1}, {vT2}, {vT1}, vcc")
    a(f"buffer_load_dword {vDUM}, {vT1}, {sT4b}, 0 offen")
    a("s_branch K_S_COMMON")
    a.label("K_S_W7")
    a.c("wave 7: the last 64 edges, one-hot table, counters")
    a(f"s_mul_i32 {sTmp}, s2, {CH*4}")
    a(f"s_add_u32 {sTmp}, {sTmp}, {3072*4}")
    a(f"v_lshl_add_u32 {vT0}, {vL}, 2, {sTmp}")
    a(f"buffer_load_dword {D1[6]}, {vT0}, {sD}, 0 offen{SNT}")
    a(f"buffer_load_dword {D1[14]}, {vT0}, {sS}, 0 offen{SNT}")
    a(f"v_lshrrev_b32 {vT0}, 2, {vL}")
    a(f"v_and_b32 {vT1}, 3, {vL}")
    a(f"v_lshlrev_b32 {vT3}, 1, {vT1}")
    a(f"v_mov_b32 {vJ}, 0")
    a(f"v_cmp_eq_u32 vcc, {vT0}, {vT3}")
    a(f"v_mov_b32 {AD[0]}, 0x3f80")
    a(f"v_mov_b32 {AD[1]}, 0x3f800000")
    a(f"v_cndmask_b32 {vJ}, {vJ}, {AD[0]}, vcc")
    a(f"v_add_u32 {vT3}, 1, {vT3}")
    a(f"v_cmp_eq_u32 vcc, {vT0}, {vT3}")
    a("s_nop 1")
    a(f"v_cndmask_b32 {vJ}, {vJ}, {AD[1]}, vcc")
    a(f"v_cmp_eq_u32 vcc, 6, {vT0}")
    a(f"v_mov_b32 {AD[2]}, 0")
    a("s_nop 0")
    a(f"v_cndmask_b32 {AD[2]}, {AD[2]}, {AD[1]}, vcc")
    a(f"v_cmp_eq_u32 vcc, 3, {vT1}")
    a("s_nop 1")
    a(f"v_cndmask_b32 {vJ}, {vJ}, {AD[2]}, vcc")
    a(f"v_cmp_lt_u32 vcc, 31, {vL}")
    a(f"v_lshlrev_b32 {vT0}, 2, {vL}")
    a("s_nop 0")
    a(f"v_cndmask_b32 {vJ}, {vJ}, {vZ[0]}, vcc")
    a(f"ds_write_b32 {vT0}, {vJ}")
    a.label("K_S_COMMON")
    a(f"s_mov_b32 {sMaskE}, {'0' if opt.get('noE',0) else '0xffffffe0'}")
    a(f"s_mov_b32 {s128}, {0 if opt.get('noH',0) else 128}")
    a(f"s_mov_b32 {sK}, {KW}")
    a(f"s_mov_b32 {s3125}, 3125")
    a(f"s_mov_b32 {sMark}, {MARK}")
    a(f"s_mov_b32 {sCAPq}, {CAPX//4}")
    a(f"s_mov_b32 {sMode}, 0")
    a(f"s_mov_b32 {sChunk}, 0")
    a(f"v_mov_b32 {vOne}, 1")
    a(f"v_mov_b32 {v511}, 511")
    a(f"v_mov_b32 {aL1s}, 0x40000000")
    a(f"v_lshrrev_b32 {vT2}, 5, {vL}")
    a(f"v_bfe_u32 {vT0}, {vL}, 2, 2")
    a(f"v_lshl_add_u32 {vT0}, {vT2}, 3, {vT0}")
    a(f"v_lshlrev_b32 {vTRW}, 7, {vT0}")
    a(f"v_bfe_u32 {vT0}, {vL}, 4, 1")
    a(f"v_lshl_add_u32 {vTRW}, {vT0}, 5, {vTRW}")
    a(f"v_and_b32 {vT0}, 3, {vL}")
    a(f"v_lshl_add_u32 {vTRW}, {vT0}, 3, {vTRW}")
    a.c("LDS init: cell image = sentinel, counters = 0")
    for i in range(4): a(f"v_mov_b32 {WH[i]}, -1")
    a(f"v_lshlrev_b32 {vT0}, 6, v0")
    a(f"v_add_u32 {vT0}, {L_HST}, {vT0}")
    for i in range(4): a(f"ds_write_b128 {vT0}, {WH[0:4]} offset:{16*i}")
    a(f"v_and_b32 {vT0}, 0xff, v0")
    a(f"v_lshlrev_b32 {vT0}, 2, {vT0}")
    a(f"ds_write_b32 {vT0}, {vZ[0]} offset:{L_RES}")
    srd(a,sW,"s80","s81",WSB(opt))
    srd(a,sP,"s66","s67",N*6)
    srd(a,sE,"s68","s69",E*32)
    srd(a,sO,"s76","s77",OUT_BYTES)
    srd(a,sT4c,"s78","s79",256)
    a(f"s_add_u32 {sB[0]}, s80, {BPT}")
    a(f"s_addc_u32 {sB[1]}, s81, 0")
    a(f"s_and_b32 {sB[1]}, {sB[1]}, 0xffff")
    a(f"s_mov_b32 {sB[2]}, {N*128}")
    a(f"s_mov_b32 {sB[3]}, 0x20000")
    if opt.get('tlb',0):
        a.c("wave 2 touches one line per 2 MiB of the buffers used later (address translation warm-up, speed only)")
        a(f"s_cmp_lg_u32 {sWave}, 2")
        a("s_cbranch_scc1 K_NOTLB")
        a(f"v_lshlrev_b32 {vT0}, 21, {vL}")
        a(f"v_mov_b32 {vT1}, 0x40000000")
        a(f"v_cmp_gt_u32 vcc, 13, {vL}")
        a("s_nop 1")
        a(f"v_cndmask_b32 {vT0}, {vT1}, {vT0}, vcc")
        a(f"buffer_load_dword {vDUM}, {vT0}, {sE}, 0 offen")
        a(f"buffer_load_dword {vDUM}, {vT0}, {sW}, 0 offen")
        a(f"buffer_load_dword {vDUM}, {vT0}, {sO}, 0 offen")
        a.label("K_NOTLB")
    a.c("workgroup 0 publishes this launch's hand-off tag")
    a(f"s_or_b32 {sTmp}, s2, {sWave}")
    a(f"s_cmp_lg_u32 {sTmp}, 0")
    a("s_cbranch_scc1 K_S_NOTAG")
    a("s_memrealtime s[100:101]")
    a("s_waitcnt lgkmcnt(0)")
    a("s_or_b32 s100, s100, 1")
    a(f"v_mov_b32 {vT0}, s100")
    a(f"buffer_store_dword {vT0}, {vZ[0]}, {sT4c}, 0 offen sc1")
    a(f"buffer_store_dword {vT0}, {vZ[0]}, {sT4c}, 0 offen offset:128 sc1")
    a.label("K_S_NOTAG")
    a("s_waitcnt lgkmcnt(0)")
    a("s_barrier")
    a(f"s_mul_i32 {sTmp}, s2, {CH}")
    a(f"s_sub_u32 {sLim}, {E}, {sTmp}")
    a(f"s_min_u32 {sLim}, {sLim}, {CH}")
    B4=D2[0:7]; RC=M[0:7]; RK1=D2[8:15]
    def bin_edges(nrec, el_of, waitcnt, masked):
        if masked:
            for u in range(nrec):
                el_of(u,vT1)
                a(f"v_cmp_gt_u32 {sMask[u]}, {sLim}, {vT1}")
        if waitcnt is not None: a(f"s_waitcnt vmcnt({waitcnt})")
        stamp(a,opt,1)
        for u in range(nrec):
            d=DS_[u]; s_=SR_[u]
            a(f"v_mul_hi_u32 {vT2}, {d}, {sK}")
            el_of(u,vT1)
            a(f"v_lshl_or_b32 {RC[u]}, {s_}, 12, {vT1}")
            a(f"v_lshrrev_b32 {B4[u]}, 1, {vT2}")
            a(f"v_mad_u32_u24 {vT3}, {vT2}, {s3125}, {v511}")
            a(f"v_and_b32 {B4[u]}, 0x3fc, {B4[u]}")
            a(f"v_lshrrev_b32 {vT3}, 9, {vT3}")
            if masked: a(f"s_mov_b64 exec, {sMask[u]}")
            a(f"ds_add_rtn_u32 {RK1[u]}, {B4[u]}, {vOne} offset:{L_RES}")
            if masked: a("s_mov_b64 exec, -1")
            a(f"v_sub_u32 {vT3}, {d}, {vT3}")
            a(f"v_and_b32 {vT2}, 7, {vT2}")
            a(f"v_lshl_or_b32 {vT3}, {vT2}, 3, {vT3}")
            a(f"v_lshl_or_b32 {RC[u]}, {vT3}, 26, {RC[u]}")
        a(f"v_mov_b32 {vT3}, {L_HST}")
        a(f"v_mov_b32 {vJ}, {L_NRES+4}")
        for u in range(nrec):
            if not masked: a(f"s_waitcnt lgkmcnt({nrec-1})")
            elif u==0: a("s_waitcnt lgkmcnt(0)")
            a(f"v_cmp_gt_u32 vcc, 32, {RK1[u]}")
            a(f"v_lshlrev_b32 {vT1}, 3, {RK1[u]}")
            a(f"v_lshrrev_b32 {vT2}, 2, {RK1[u]}")
            a(f"v_and_b32 {vT1}, 0x78, {vT1}")
            a(f"v_lshl_add_u32 {AD[0]}, {B4[u]}, 5, {vT3}")
            a(f"v_and_or_b32 {vT1}, {vT2}, 4, {vT1}")
            a(f"v_add_u32 {vT1}, {vT1}, {AD[0]}")
            a(f"v_cndmask_b32 {vT1}, {vJ}, {vT1}, vcc")
            if masked: a(f"s_mov_b64 exec, {sMask[u]}")
            a(f"ds_write_b32 {vT1}, {RC[u]}")
            if masked: a("s_mov_b64 exec, -1")
    a.c("wait for this wave's edges (younger loads: 12 for waves 5,6; 2 for wave 4; the tag store of workgroup 0)")
    a(f"s_mul_i32 {sTmp}, {sWave}, 384")
    a(f"v_lshl_add_u32 {vT0}, {vL}, 1, {sTmp}")
    a(f"s_cmp_eq_u32 {sWave}, 4")
    a("s_cbranch_scc1 K_S_WT4")
    a(f"s_sub_u32 {sTmp}, {sWave}, 5")
    a(f"s_cmp_lt_u32 {sTmp}, 2")
    a("s_cbranch_scc1 K_S_WT56")
    if opt.get('tlb',0):
        a(f"s_cmp_eq_u32 {sWave}, 2")
        a("s_cbranch_scc1 K_S_WT2")
    a("s_waitcnt vmcnt(0)")
    a("s_branch K_S_WTD")
    if opt.get('tlb',0):
        a.label("K_S_WT2")
        a("s_waitcnt vmcnt(3)")
        a("s_branch K_S_WTD")
    a.label("K_S_WT4")
    a("s_waitcnt vmcnt(2)")
    a("s_branch K_S_WTD")
    a.label("K_S_WT56")
    a("s_waitcnt vmcnt(12)")
    a.label("K_S_WTD")
    def el6(u,r): a(f"v_add_u32 {r}, {128*(u>>1)+(u&1)}, {vT0}")
    def el7(u,r):
        if u<6: el6(u,r)
        else: a(f"v_add_u32 {r}, 3072, {vL}")
    a(f"s_cmp_lt_u32 {sLim}, {CH}")
    a("s_cbranch_scc1 K_S_APPM")
    a(f"s_cmp_eq_u32 {sWave}, 7")
    a("s_cbranch_scc1 K_S_APP7")
    bin_edges(6, el6, None, False)
    a("s_branch K_S_APPD")
    a.label("K_S_APP7")
    bin_edges(7, el7, None, False)
    a("s_branch K_S_APPD")
    a.label("K_S_APPM")
    a(f"s_cmp_eq_u32 {sWave}, 7")
    a("s_cbranch_scc1 K_S_APPM7")
    bin_edges(6, el6, None, True)
    a("s_branch K_S_APPD")
    a.label("K_S_APPM7")
    bin_edges(7, el7, None, True)
    a.label("K_S_APPD")
    a.c("wave 0 fetches the hand-off tag (one of its two copies); it is needed when the cell stores have left")
    a(f"s_and_b32 {sTagOff}, s2, 1")
    a(f"s_lshl_b32 {sTagOff}, {sTagOff}, 7")
    a(f"s_cmp_lg_u32 {sWave}, 0")
    a("s_cbranch_scc1 K_S_NOTAG1")
    a(f"buffer_load_dword {aE}, {vZ[0]}, {sT4c}, {sTagOff} offen sc1")
    a.label("K_S_NOTAG1")
    load_hwin()
    def raww():
        a.c("waves 4, 7: raw w_e -> LDS (needed after barrier C); wave 4 rebuilds the descriptor it lent to the w_h warm-up")
        a(f"s_lshl_b32 {sTmp}, 1, {sWave}")
        a(f"s_and_b32 {sTmp}, {sTmp}, 0x90")
        a("s_cbranch_scc0 K_S_NORAW")
        a("s_load_dwordx2 s[100:101], s[0:1], 40")
        a(f"s_cmp_eq_u32 {sWave}, 7")
        a(f"s_cselect_b32 {sTmp3}, {10*1024}, 0")
        a("s_waitcnt lgkmcnt(0)")
        srd(a,sT4b,"s100","s101",145*128)
        for i in range(10):
            a(f"s_add_u32 {sTmp2}, {sTmp3}, {i*1024}")
            if i==9: a(f"s_min_u32 {sTmp2}, {sTmp2}, {18*1024}")
            a(f"s_add_u32 {sTmp}, {sTmp2}, {L_RAWW}")
            a(f"s_mov_b32 m0, {sTmp}")
            a("s_nop 0")
            a(f"buffer_load_dwordx4 {vL16}, {sT4b}, {sTmp2} offen lds")
        a.label("K_S_NORAW")
    if not opt.get('rawlate',0): raww()
    a("s_waitcnt lgkmcnt(0)")
    stamp(a,opt,14) if not opt.get('dbgfill',0) else None
    a("s_barrier")
    stamp(a,opt,2)
    def setup_static():
        a(f"v_and_b32 {vT1}, 31, {vL}")
        a(f"v_lshrrev_b32 {vT2}, 5, {vL}")
        a(f"v_lshlrev_b32 {vT0}, 3, {vT2}")
        a(f"v_sub_u32 {vT0}, {vT1}, {vT0}")
        a(f"v_mov_b32 {AD[2]}, 0x3f80")
        a(f"v_mov_b32 {AD[3]}, 0x3f800000")
        for sp in range(2):
            for r in range(4):
                k0=16*sp+2*r
                a(f"v_cmp_eq_u32 vcc, {k0}, {vT0}")
                a(f"v_cmp_eq_u32 {sSave}, {k0+1}, {vT0}")
                a("s_nop 0")
                a(f"v_cndmask_b32 {ID[4*sp+r]}, {vZ[0]}, {AD[2]}, vcc")
                a(f"v_cndmask_b32 {ID[4*sp+r]}, {ID[4*sp+r]}, {AD[3]}, {sSave}")
        a(f"v_cmp_lt_u32 vcc, 31, {vL}")
        a("s_nop 1")
        for i in range(1,4): a(f"v_mov_b32 {ONE[i]}, 0")
        a(f"v_cndmask_b32 {ONE[0]}, {AD[2]}, {vZ[0]}, vcc")
        for i in range(3):
            a(f"v_mov_b32 {PS[i]}, 0"); a(f"v_mov_b32 {PD[i]}, 0")
        a.c("static per-lane addresses of the main loop (window offsets are added after the assignment)")
        a(f"v_and_b32 {vT1}, 31, {vL}")
        a(f"v_lshrrev_b32 {vT2}, 5, {vL}")
        a(f"v_mov_b32 {vT3}, {L_A2}")
        a(f"v_lshl_add_u32 {vE64}, {vT1}, 6, {vT3}")
        a(f"v_bfe_u32 {vT0}, {vL}, 2, 2")
        a(f"v_lshl_add_u32 {vT0}, {vT2}, 2, {vT0}")
        a(f"v_lshl_add_u32 {vTR}, {vT0}, 6, {vT3}")
        a(f"v_bfe_u32 {vT0}, {vL}, 4, 1")
        a(f"v_lshl_add_u32 {vTR}, {vT0}, 5, {vTR}")
        a(f"v_and_b32 {vT0}, 3, {vL}")
        a(f"v_lshl_add_u32 {vTR}, {vT0}, 3, {vTR}")
        a(f"s_lshl_b32 {sHST}, {sWave}, 12")
        a(f"s_add_u32 {sHST}, {sHST}, {L_HST}")
        for i in range(4): a(f"s_add_u32 {sM0[i]}, {sHST}, {1024*i}")
        a(f"v_and_b32 {vT0}, 3, {vT1}")
        a(f"v_bfe_u32 {vT3}, {vT1}, 4, 1")
        a(f"v_lshl_or_b32 {vT3}, {vT3}, 2, {vT0}")
        a(f"v_lshlrev_b32 {vT0}, 3, {vT0}")
        a(f"v_lshrrev_b32 {vJ}, 2, {vT1}")
        a(f"v_add_u32 {vT0}, {vT0}, {vJ}")
        a(f"v_lshl_add_u32 {vT0}, {vT0}, 7, {sHST}")
        for s_ in range(4):
            a(f"v_add_u32 {vJ}, {2*s_}, {vT2}")
            a(f"v_xor_b32 {vJ}, {vJ}, {vT3}")
            a(f"v_lshl_add_u32 {vHA[s_]}, {vJ}, 4, {vT0}")
        a(f"v_and_b32 {vT0}, 7, {vL}")
        a(f"v_lshlrev_b32 {vT3}, 2, {vT2}")
        a(f"v_xor_b32 {vT0}, {vT0}, {vT3}")
        for i in range(4):
            a(f"v_xor_b32 {vJ}, {i}, {vT0}")
            a(f"v_lshlrev_b32 {vKD[i]}, 4, {vJ}")
        a(f"s_mov_b32 {sCAP}, {CAP}")
        a(f"s_sub_u32 {sTgt}, 11, {sWave}")
        a(f"s_cmp_lt_u32 {sWave}, 4")
        a(f"s_cselect_b32 {sTgt}, {sWave}, {sTgt}")
        a(f"v_lshrrev_b32 {aPS}, 3, {vL}")
        a(f"v_and_b32 {aPD}, 7, {vL}")
        a(f"v_lshlrev_b32 {aOH}, 2, {aPS}")
        a(f"v_lshlrev_b32 {SS}, 2, {aPD}")
    a(f"s_cmp_gt_u32 {sWave}, 3")
    a("s_cbranch_scc1 K_S_NOCOPY")
    a.c("waves 0..3 copy the cell image out: eight 16 B pieces per thread")
    a(f"v_lshlrev_b32 {vT0}, 4, v0")
    a(f"v_add_u32 {vT0}, {L_HST}, {vT0}")
    a(f"v_lshrrev_b32 {vT1}, 3, v0")
    a(f"v_lshlrev_b32 {vT2}, 2, {vT1}")
    CP=[D1[4*k:4*k+4] for k in range(8)]
    for k in range(4):
        a(f"ds_read_b128 {CP[k]}, {vT0} offset:{4096*k}")
        a(f"ds_read_b32 {D2[k]}, {vT2} offset:{L_RES+128*k}")
    a(f"v_and_b32 {vT3}, 7, v0")
    a(f"v_cmp_eq_u32 vcc, 0, {vT3}")
    a(f"v_mov_b32 {vJ}, -1")
    CT=opt.get('ctrans',0)
    a(f"v_lshlrev_b32 {vT1}, {7 if CT else 15}, {vT1}")
    a(f"v_cndmask_b32_e64 {AD[1]}, -1, -2, vcc")
    a(f"v_lshl_add_u32 {vT1}, {vT3}, 4, {vT1}")
    a(f"s_lshl_b32 {sTmp}, s2, {15 if CT else 7}")
    for k in range(8):
        if k<4:
            a(f"ds_read_b128 {CP[k+4]}, {vT0} offset:{4096*(k+4)}")
            a(f"ds_read_b32 {D2[k+4]}, {vT2} offset:{L_RES+128*(k+4)}")
            a("s_waitcnt lgkmcnt(8)")
        else:
            a(f"s_waitcnt lgkmcnt({2*(7-k)})")
        a(f"v_cmp_lt_u32 vcc, 32, {D2[k]}")
        a(f"s_add_u32 {sTmp2}, {sTmp}, {k*32*(128 if CT else 32768)}")
        a("s_nop 0")
        a(f"v_cndmask_b32 {CP[k][0]}, {CP[k][0]}, {AD[1]}, vcc")
        for i in range(1,4): a(f"v_cndmask_b32 {CP[k][i]}, {CP[k][i]}, {vJ}, vcc")
        a(f"buffer_store_dwordx4 {CP[k]}, {vT1}, {sW}, {sTmp2} offen{ST}")
    a("s_branch K_S_STATIC")
    a.label("K_S_NOCOPY")
    a(f"s_sub_u32 {sTmp}, {sWave}, 5")
    a(f"s_cmp_lt_u32 {sTmp}, 2")
    a("s_cbranch_scc0 K_S_POS")
    a.c("waves 5,6: source-node table B' = -log2e * h @ W2 for 32 nodes")
    a(f"v_add_u32 {vT0}, {sC}, {vTRW}")
    a("s_waitcnt vmcnt(4)")
    for s_ in range(4):
        for x in range(2):
            for th in range(2):
                r=(s_*2+x)*4+2*th
                a(f"ds_read_b64_tr_b16 {D1[r:r+2]}, {vT0} offset:{s_*2048+th*512+x*64}")
    a("s_waitcnt lgkmcnt(0)")
    for x in range(2):
        for s_ in range(4):
            r=(s_*2+x)*4
            mfma(a,D2[16*x:16*x+16],D1[r:r+4],HA[4*s_:4*s_+4],"0" if s_==0 else D2[16*x:16*x+16])
    a(f"s_mul_i32 {sTmp}, {sI}, {32*144}")
    a(f"s_add_u32 {sTmp}, {sTmp}, {L_BST}")
    a(f"v_and_b32 {vT1}, 31, {vL}")
    a(f"v_mul_u32_u24 {vT1}, 144, {vT1}")
    a(f"v_lshrrev_b32 {vT2}, 5, {vL}")
    a(f"v_lshl_add_u32 {vT1}, {vT2}, 3, {vT1}")
    a(f"v_add_u32 {vT1}, {sTmp}, {vT1}")
    a(f"v_lshrrev_b32 {vT2}, 3, {vL}")
    a(f"v_mul_u32_u24 {vT3}, 144, {vT2}")
    a(f"v_and_b32 {vJ}, 7, {vL}")
    a(f"v_lshl_add_u32 {vT3}, {vJ}, 4, {vT3}")
    a(f"v_add_u32 {vT3}, {sTmp}, {vT3}")
    a(f"s_mov_b32 {sTmp2}, {NEG_LOG2E}")
    a.nop(4)
    for x in range(2):
        for q in range(16): a(f"v_mul_f32 {D2[16*x+q]}, {sTmp2}, {D2[16*x+q]}")
        for qq in range(4):
            b=16*x+4*qq
            a(f"v_cvt_pk_bf16_f32 {E01[0]}, {D2[b]}, {D2[b+1]}")
            a(f"v_cvt_pk_bf16_f32 {E01[1]}, {D2[b+2]}, {D2[b+3]}")
            a(f"ds_write_b64 {vT1}, {E01} offset:{x*64+qq*16}")
            a("s_nop 0")
    for i in range(4): a(f"ds_read_b128 {D1[4*i:4*i+4]}, {vT3} offset:{i*8*144}")
    a(f"s_lshl_b32 {sTmp2}, {sI}, 5")
    a(f"v_add_u32 {vT2}, {sTmp2}, {vT2}")
    a(f"s_mul_i32 {sTmp}, s2, {NPW}")
    a(f"v_add_u32 {vT0}, {sTmp}, {vT2}")
    a(f"v_lshlrev_b32 {vT1}, 7, {vT0}")
    a(f"v_lshl_add_u32 {vT1}, {vJ}, 4, {vT1}")
    a(f"v_mov_b32 {vJ}, 0x40000000")
    a("s_waitcnt lgkmcnt(0)")
    for i in range(4):
        a(f"v_add_u32 {vT3}, {8*i}, {vT2}")
        a(f"v_cmp_gt_u32 vcc, {NPW}, {vT3}")
        a(f"v_add_u32 {AD[0]}, {1024*i}, {vT1}")
        a("s_nop 0")
        a(f"v_cndmask_b32 {AD[0]}, {vJ}, {AD[0]}, vcc")
        a(f"buffer_store_dwordx4 {D1[4*i:4*i+4]}, {AD[0]}, {sB}, 0 offen{ST}")
    a("s_waitcnt vmcnt(4)")
    a("s_branch K_S_STATIC")
    a.label("K_S_POS")
    if opt.get('rawlate',0): raww()
    a.label("K_S_STATIC")
    setup_static()
    a.c("waves 0..3: every cell store has left; waves 4, 7: raw w_e / window rows landed; waves 5, 6 signal their rows later")
    a(f"s_sub_u32 {sTmp}, {sWave}, 5")
    a(f"s_cmp_lt_u32 {sTmp}, 2")
    a("s_cbranch_scc1 K_S_PREC")
    a("s_waitcnt vmcnt(0)")
    def have_tag(lbl):
        a(f"s_mov_b32 {sPoll}, 0")
        a.label(lbl)
        a(f"v_readfirstlane_b32 {sNonce}, {aE}")
        a("s_memrealtime s[100:101]")
        a("s_waitcnt lgkmcnt(0)")
        a(f"s_sub_u32 {sTmp}, s100, {sNonce}")
        a(f"s_add_u32 {sTmp}, {sTmp}, 1")
        a(f"s_cmp_lt_u32 {sTmp}, 2500")
        a(f"s_cselect_b32 {sTmp}, {sNonce}, 0")
        a(f"s_cmp_lg_u32 {sTmp}, 0")
        a(f"s_cbranch_scc1 {lbl}_OK")
        a(f"s_add_u32 {sPoll}, {sPoll}, 1")
        a(f"s_cmp_gt_u32 {sPoll}, 200000")
        a(f"s_cbranch_scc1 {lbl}_OK")
        a(f"s_cmp_gt_u32 {sPoll}, 1000")
        a(f"s_cselect_b32 {sTmp}, {sNonce}, 0")
        a(f"s_cmp_lg_u32 {sTmp}, 0")
        a(f"s_cbranch_scc1 {lbl}_OK")
        a("s_sleep 2")
        a(f"buffer_load_dword {aE}, {vZ[0]}, {sT4c}, {sTagOff} offen sc1")
        a("s_waitcnt vmcnt(0)")
        a(f"s_branch {lbl}")
        a.label(f"{lbl}_OK")
    a(f"s_cmp_lg_u32 {sWave}, 0")
    a("s_cbranch_scc1 K_S_PREC")
    have_tag("K_G_TAG")
    a(f"v_mov_b32 {vT0}, {sNonce}")
    a(f"ds_write_b32 {vZ[0]}, {vT0} offset:{L_NRES+8}")
    a.label("K_S_PREC")
    a("s_waitcnt lgkmcnt(0)")
    stamp(a,opt,15) if not opt.get('dbgfill',0) else None
    a("s_barrier")
    stamp(a,opt,3)
    a(f"s_cmp_lg_u32 {sWave}, 0")
    a("s_cbranch_scc1 K_G_NOT0")
    a.c("wave 0: signal this workgroup's cells")
    a(f"s_lshl_b32 {sTmp}, s2, 4")
    a(f"s_add_u32 {sTmp}, {sTmp}, {FLG}")
    a(f"v_mov_b32 {vT0}, {sNonce}")
    a(f"buffer_store_dword {vT0}, {vZ[0]}, {sW}, {sTmp} offen sc1")
    a("s_branch K_G_SETUP")
    a.label("K_G_NOT0")
    a(f"s_cmp_lt_u32 {sWave}, 4")
    a("s_cbranch_scc1 K_G_WH")
    a(f"s_sub_u32 {sTmp}, {sWave}, 5")
    a(f"s_cmp_lt_u32 {sTmp}, 2")
    a("s_cbranch_scc1 K_G_SETUP")
    a.c("waves 4, 7: pos table -> LDS (37 pieces each)")
    a(f"s_cmp_eq_u32 {sWave}, 7")
    a(f"s_cselect_b32 {sI}, {37*1024}, 0")
    for i in range(37):
        a(f"s_add_u32 {sTmp}, {sI}, {i*1024}")
        a(f"s_add_u32 {sTmp2}, {sTmp}, {L_POS}")
        a(f"s_mov_b32 m0, {sTmp2}")
        a("s_nop 0")
        a(f"buffer_load_dwordx4 {vL16}, {sP}, {sTmp} offen lds")
    a("s_branch K_G_SETUP")
    a.label("K_G_WH")
    a.c("waves 1..3: raw w_h -> staging area")
    a("s_load_dwordx2 s[64:65], s[0:1], 56")
    a(f"s_sub_u32 {sI}, {sWave}, 1")
    a("s_waitcnt lgkmcnt(0)")
    srd(a,sT4b,"s64","s65",128*128)
    for k in range(6):
        a(f"s_add_u32 {sTmp}, {sI}, {3*k}")
        a(f"s_min_u32 {sTmp}, {sTmp}, 15")
        a(f"s_lshl_b32 {sTmp}, {sTmp}, 10")
        a(f"s_add_u32 {sTmp2}, {sTmp}, {L_HST}")
        a(f"s_mov_b32 m0, {sTmp2}")
        a("s_nop 0")
        a(f"buffer_load_dwordx4 {vL16}, {sT4b}, {sTmp} offen lds")
    a.label("K_G_SETUP")
    a.c("operands from raw w_e: W1 (for A'), W4', wd'")
    W1=D2
    a(f"v_add_u32 {vT0}, {L_RAWW}, {vTRW}")
    for s_ in range(4):
        for x in range(2):
            for th in range(2):
                r=(s_*2+x)*4+2*th
                a(f"ds_read_b64_tr_b16 {W1[r:r+2]}, {vT0} offset:{s_*2048+th*512+x*64}")
    W4R=HA[0:8]
    for x in range(2):
        for th in range(2):
            a(f"ds_read_b64_tr_b16 {W4R[4*x+2*th:4*x+2*th+2]}, {vT0} offset:{129*128+th*512+x*64}")
    WD=M[0:2]
    a(f"v_mov_b32 {WD[0]}, 0")
    a(f"v_mov_b32 {WD[1]}, 0")
    a(f"v_and_b32 {vT1}, 31, {vL}")
    a(f"v_lshlrev_b32 {vT2}, 1, {vT1}")
    a(f"v_add_u32 {vT2}, {L_RAWW+128*128}, {vT2}")
    a(f"ds_read_u16_d16_hi {WD[0]}, {vT2}")
    a(f"ds_read_u16_d16_hi {WD[1]}, {vT2} offset:64")
    a("s_waitcnt lgkmcnt(0)")
    for x in range(2):
        for s_ in range(4):
            mfma(a,D1[16*x:16*x+16],HW[4*s_:4*s_+4],W1[(s_*2+x)*4:(s_*2+x)*4+4],"0" if s_==0 else D1[16*x:16*x+16])
    a(f"s_mov_b32 {sTmp}, {NEG_LOG2E}")
    for i in range(8):
        a(f"v_lshlrev_b32 {vT0}, 16, {W4R[i]}")
        a(f"v_and_b32 {vT2}, 0xffff0000, {W4R[i]}")
        a(f"v_mul_f32 {vT0}, {sTmp}, {vT0}")
        a(f"v_mul_f32 {vT2}, {sTmp}, {vT2}")
        a(f"v_cvt_pk_bf16_f32 {WE[i]}, {vT0}, {vT2}")
    a(f"v_cmp_lt_u32 vcc, 31, {vL}")
    for x in range(2):
        a(f"v_mul_f32 {WD[x]}, {sTmp}, {WD[x]}")
        a(f"v_cvt_pk_bf16_f32 {vT0}, {WD[x]}, {WD[x]}")
        a(f"v_and_b32 {vT0}, 0xffff0000, {vT0}")
        a(f"v_sub_f32 {vT2}, {WD[x]}, {vT0}")
        a(f"v_cvt_pk_bf16_f32 {vT2}, {vT2}, {vT2}")
        a(f"v_and_b32 {vT2}, 0xffff0000, {vT2}")
        a(f"v_cndmask_b32 {WD[x]}, {vT0}, {vT2}, vcc")
    a(f"s_cmp_lg_u32 {sWave}, 0")
    a("s_cbranch_scc1 K_G_NOEARLY")
    def poll_loads():
        a(f"s_mov_b32 {sTmp2}, {FLG}")
        for k in range(4): a(f"buffer_load_dword {(T[k] if opt.get('ppoll',0) else AD[k])}, {vL16}, {sW}, {sTmp2} offen offset:{1024*k} sc1")
        if opt.get('hpf',0):
            for hh in range(2):
                a(f"s_mov_b32 {sTmp2}, {FLG2+4096*hh}")
                for k in range(4): a(f"buffer_load_dword {A2R[4*hh+k]}, {vL16}, {sW}, {sTmp2} offen offset:{1024*k} sc1")
    poll_loads()
    a.label("K_G_NOEARLY")
    a(f"v_cmp_lt_u32 vcc, 31, {vL}")
    a(f"v_mov_b32 {vJ}, 0xffff")
    for x in range(2):
        for r in range(4):
            q0,q1=D1[16*x+2*r],D1[16*x+2*r+1]
            a(f"v_mul_f32 {q0}, {sTmp}, {q0}")
            a(f"v_mul_f32 {q1}, {sTmp}, {q1}")
            a(f"v_cvt_pk_bf16_f32 {vT0}, {q0}, {q1}")
            a(f"v_lshlrev_b32 {vT1}, 16, {vT0}")
            a(f"v_and_b32 {vT2}, 0xffff0000, {vT0}")
            a(f"v_sub_f32 {vT1}, {q0}, {vT1}")
            a(f"v_sub_f32 {vT2}, {q1}, {vT2}")
            a(f"v_cvt_pk_bf16_f32 {vT1}, {vT1}, {vT2}")
            a(f"v_cndmask_b32 {WA[4*x+r]}, {vT0}, {vT1}, vcc")
        a(f"v_bfi_b32 {WA[4*x+3]}, {vJ}, {WA[4*x+3]}, {WD[x]}")
    a(f"s_lshl_b32 {sTmp}, {sWave}, 11")
    a(f"s_add_u32 {sTmp}, {sTmp}, {L_A2}")
    a(f"v_lshl_add_u32 {vT0}, {vL}, 5, {sTmp}")
    a(f"ds_write_b128 {vT0}, {WA[0:4]}")
    a(f"ds_write_b128 {vT0}, {WA[4:8]} offset:16")
    for i in range(32): a(f"v_mov_b32 {D2[i]}, 0")
    a(f"s_sub_u32 {sTmp}, {sWave}, 5")
    a(f"s_cmp_lt_u32 {sTmp}, 2")
    a("s_cbranch_scc0 K_G_NOFLG2")
    a.c("waves 5,6: their rows have left -> signal them")
    a(f"ds_read_b32 {aE}, {vZ[0]} offset:{L_NRES+8}")
    a("s_waitcnt vmcnt(0) lgkmcnt(0)")
    a(f"v_readfirstlane_b32 {sNonce}, {aE}")
    a("s_nop 3")
    a(f"s_lshl_b32 {sTmp}, s2, 1")
    a(f"s_add_u32 {sTmp}, {sTmp}, {sWave}")
    a(f"s_sub_u32 {sTmp}, {sTmp}, 5")
    a(f"s_lshl_b32 {sTmp}, {sTmp}, 4")
    a(f"s_add_u32 {sTmp}, {sTmp}, {FLG2}")
    a(f"v_mov_b32 {vT0}, {sNonce}")
    a(f"buffer_store_dword {vT0}, {vZ[0]}, {sW}, {sTmp} offen sc1")
    a.label("K_G_NOFLG2")
    a(f"s_cmp_lg_u32 {sWave}, 0")
    a("s_cbranch_scc1 K_G_WAIT")
    if not opt.get('ppoll',0):
        a.c("wave 0: wait for all hand-offs (the first round of flag loads is already in flight)")
        a("s_branch K_G_POLL1")
        a.label("K_G_POLL")
        poll_loads()
        a.label("K_G_POLL1")
        a("s_waitcnt vmcnt(0)")
        PF=[AD[k] for k in range(4)]+([A2R[k] for k in range(8)] if opt.get('hpf',0) else [])
        a(f"v_cmp_eq_u32 {sAny}, {sNonce}, {PF[0]}")
        for r_ in PF[1:]:
            a(f"v_cmp_eq_u32 vcc, {sNonce}, {r_}")
            a("s_nop 1")
            a(f"s_and_b64 {sAny}, {sAny}, vcc")
        a(f"s_cmp_eq_u64 {sAny}, -1")
        a("s_cbranch_scc1 K_G_WAIT")
        a(f"s_add_u32 {sPoll}, {sPoll}, 1")
        a(f"s_cmp_lt_u32 {sPoll}, 200000")
        a("s_cbranch_scc1 K_G_POLL")
    else:
        a.c("wave 0: wait for all hand-offs; two rounds of flag loads are kept in flight")
        def pl(regs):
            for k in range(4): a(f"buffer_load_dword {regs[k]}, {vL16}, {sW}, {sI} offen offset:{1024*k} sc1")
        def chk(regs):
            a(f"v_cmp_eq_u32 {sAny}, {sNonce}, {regs[0]}")
            for r_ in regs[1:]:
                a(f"v_cmp_eq_u32 vcc, {sNonce}, {r_}")
                a("s_nop 1")
                a(f"s_and_b64 {sAny}, {sAny}, vcc")
            a(f"s_cmp_eq_u64 {sAny}, -1")
            a("s_cbranch_scc1 K_G_SEEN")
        SA=[T[k] for k in range(4)]; SB=[T[4+k] for k in range(4)]
        a(f"s_mov_b32 {sI}, {FLG}")
        a.label("K_G_POLL")
        pl(SB)
        a("s_waitcnt vmcnt(4)")
        chk(SA)
        pl(SA)
        a("s_waitcnt vmcnt(4)")
        chk(SB)
        a(f"s_add_u32 {sPoll}, {sPoll}, 1")
        a(f"s_cmp_lt_u32 {sPoll}, 100000")
        a("s_cbranch_scc1 K_G_POLL")
        a.label("K_G_SEEN")
        a("s_waitcnt lgkmcnt(0)")
        a("s_branch K_G_GO")
    a.label("K_G_WAIT")
    a.c("waves 4 and 7 keep their pos pieces in flight: their cell loads return behind them")
    a(f"s_lshl_b32 {sTmp}, 1, {sWave}")
    a(f"s_and_b32 {sTmp}, {sTmp}, 0x90")
    a("s_cbranch_scc1 K_G_WAIT47")
    a("s_waitcnt vmcnt(0)")
    a.label("K_G_WAIT47")
    a("s_waitcnt lgkmcnt(0)")
    a.label("K_G_GO")
    for _ in range(opt.get('delay',0)): a("s_sleep 32")
    a("s_barrier")
    stamp(a,opt,4)
    RECP=D1[0:16]; REC=[RECP[2*i] for i in range(8)]+[RECP[2*i+1] for i in range(8)]; WAD=D1[16:32]; RK=HA
    a.c("cell records of this bin: pair s holds slots m and 16+m (m = l&15) of cell 32s+4v+(l>>4)")
    if not CT:
        a(f"s_lshl_b32 {sTmp}, s2, 15")
        a(f"s_lshl_b32 {sTmp2}, {sWave}, 9")
        a(f"s_add_u32 {sTmp}, {sTmp}, {sTmp2}")
        a(f"v_lshl_add_u32 {vT0}, {vL}, 3, {sTmp}")
    else:
        a(f"s_lshl_b32 {sTmp}, s2, 7")
        a(f"s_lshl_b32 {sTmp2}, {sWave}, 17")
        a(f"s_add_u32 {sTmp}, {sTmp}, {sTmp2}")
        a(f"v_lshrrev_b32 {vT0}, 4, {vL}")
        a(f"v_lshlrev_b32 {vT0}, 15, {vT0}")
        a(f"v_and_b32 {vT1}, 15, {vL}")
        a(f"v_lshl_add_u32 {vT0}, {vT1}, 3, {vT0}")
        a(f"v_add_u32 {vT0}, {sTmp}, {vT0}")
    ROT=opt.get('rot',0)
    if ROT==1: a(f"s_getreg_b32 {sRot}, hwreg(HW_REG_XCC_ID, 0, 4)")
    elif ROT==2: a(f"s_and_b32 {sRot}, s2, 7")
    elif ROT==3:
        a(f"s_getreg_b32 {sRot}, hwreg(HW_REG_XCC_ID, 0, 4)")
        a(f"s_and_b32 {sRot}, {sRot}, 3")
        a(f"s_lshl_b32 {sRot}, {sRot}, 1")
    else: a(f"s_mov_b32 {sRot}, 0")
    def pair_index(dst,s_):
        a(f"s_add_u32 {dst}, {sRot}, {s_}")
        a(f"s_and_b32 {dst}, {dst}, 7")
    for s_ in range(8):
        pair_index(sTmp,s_)
        a(f"s_lshl_b32 {sTmp}, {sTmp}, {20 if CT else 12}")
        a(f"buffer_load_dwordx2 {RECP[2*s_:2*s_+2]}, {vT0}, {sW}, {sTmp} offen{LD}")
    a(f"v_lshlrev_b32 {vT2}, 1, {vL}")
    a(f"v_and_b32 {vT2}, 62, {vT2}")
    a("s_load_dwordx2 s[98:99], s[0:1], 48")
    a.c("node-update weights (transposed reads of raw w_h), waves 0..3 use them")
    a(f"s_and_b32 {sTmp}, {sWave}, 1")
    a(f"s_lshl_b32 {sTmp}, {sTmp}, 6")
    a(f"s_add_u32 {sTmp}, {sTmp}, {L_HST}")
    a(f"v_add_u32 {vT1}, {sTmp}, {vTRW}")
    for s_ in range(8):
        for th in range(2):
            a(f"ds_read_b64_tr_b16 {WH[4*s_+2*th:4*s_+2*th+2]}, {vT1} offset:{s_*2048+th*512}")
            if (2*s_+th)==7: a("s_waitcnt lgkmcnt(0)")
    srd(a,sT4,"s98","s99",128)
    a(f"v_mov_b32 {WX[0]}, 0")
    a(f"v_mov_b32 {WX[1]}, 0")
    a(f"buffer_load_short_d16_hi {WX[0]}, {vT2}, {sT4}, 0 offen")
    a(f"buffer_load_short_d16_hi {WX[1]}, {vT2}, {sT4}, 0 offen offset:64")
    a("s_waitcnt vmcnt(2)")
    stamp(a,opt,5)
    a(f"s_mov_b64 {sAny}, 0")
    for s_ in range(16):
        a(f"v_cmp_gt_u32 {sMask[s_]}, {sMark}, {REC[s_]}")
        if s_<8:
            a(f"v_cmp_eq_u32 vcc, {sMark}, {REC[s_]}")
        a(f"v_lshrrev_b32 {WAD[s_]}, 27, {REC[s_]}")
        a(f"v_and_b32 {WAD[s_]}, 0x1c, {WAD[s_]}")
        if s_<8: a(f"s_or_b64 {sAny}, {sAny}, vcc")
    order=[x for p in range(8) for x in (p,8+p)]
    for n_,s_ in enumerate(order):
        a(f"s_mov_b64 exec, {sMask[s_]}")
        if s_>=8: a(f"s_cbranch_execz K2_A{s_}")
        a(f"ds_add_rtn_u32 {RK[s_]}, {WAD[s_]}, {vOne} offset:{L_CNT}")
        if s_>=8: a.label(f"K2_A{s_}")
        if n_==7:
            a("s_waitcnt lgkmcnt(4)")
    a("s_mov_b64 exec, -1")
    FL=A2R
    def flg2_loads():
        a(f"s_mov_b32 {sTmp2}, {FLG2}")
        for k in range(4): a(f"buffer_load_dword {FL[k]}, {vL16}, {sW}, {sTmp2} offen offset:{1024*k} sc1")
        a(f"s_mov_b32 {sTmp2}, {FLG2+4096}")
        for k in range(4): a(f"buffer_load_dword {FL[4+k]}, {vL16}, {sW}, {sTmp2} offen offset:{1024*k} sc1")
    a(f"s_cmp_lg_u32 {sWave}, {99 if opt.get('hpf',0) else 1}")
    a("s_cbranch_scc1 K2_NOF2A")
    a.c("wave 1: flags of the source-node table (checked before barrier 2)")
    flg2_loads()
    a(f"ds_read_b32 {aE}, {vZ[0]} offset:{L_NRES+8}")
    a.label("K2_NOF2A")
    a(f"s_lshl_b32 {sTmp}, {sWave}, 2")
    a(f"v_lshrrev_b32 {vT0}, 4, {vL}")
    a(f"v_add_u32 {vT0}, {sTmp}, {vT0}")
    a(f"v_mul_u32_u24 {vT0}, {CH}, {vT0}")
    NE=opt.get('epf',1)
    def epf_block():
        if NE:
            a.c("L2 warm-up of the e_attr lines of the first records (speed only; results are never read)")
            a(f"s_lshl_b32 {sTmp}, {sWave}, 2")
            a(f"v_lshrrev_b32 {vT0}, 4, {vL}")
            a(f"v_add_u32 {vT0}, {sTmp}, {vT0}")
            a(f"v_mul_u32_u24 {vT0}, {CH}, {vT0}")
            a(f"v_mov_b32 {vT2}, 0x2000000")
            RKF=opt.get('rkf',0)
            if RKF: a("s_waitcnt lgkmcnt(0)")
            for k in range(NE):
                a(f"v_cmp_gt_u32 vcc, {sMark}, {REC[k]}")
                if RKF:
                    a(f"v_cmp_gt_u32 {sSave}, {RKF}, {RK[k]}")
                a(f"v_and_b32 {vT1}, 0xfff, {REC[k]}")
                pair_index(sTmp,k)
                a(f"s_mul_i32 {sTmp}, {sTmp}, {32*CH}")
                if RKF: a(f"s_and_b64 vcc, vcc, {sSave}")
                a(f"v_add3_u32 {vT1}, {vT1}, {vT0}, {sTmp}")
                if opt.get('hpf',0): a(f"v_bfe_u32 {vT3}, {REC[k]}, 12, 14")
                else: a("s_nop 0")
                a(f"v_cndmask_b32 {vT1}, {vT2}, {vT1}, vcc")
                a(f"v_lshlrev_b32 {vT1}, 5, {vT1}")
                a(f"buffer_load_dword {vDUM}, {vT1}, {sE}, 0 offen")
                if opt.get('hpf',0):
                    a(f"v_cndmask_b32 {vT3}, {vT2}, {vT3}, vcc")
                    a(f"v_lshlrev_b32 {vT3}, 7, {vT3}")
                    a(f"buffer_load_dword {vDUM}, {vT3}, {sB}, 0 offen{HLD}")
    if opt.get('epfpos',1)==1:
        epf_block()
        a(f"s_lshl_b32 {sTmp}, {sWave}, 2")
        a(f"v_lshrrev_b32 {vT0}, 4, {vL}")
        a(f"v_add_u32 {vT0}, {sTmp}, {vT0}")
        a(f"v_mul_u32_u24 {vT0}, {CH}, {vT0}")
    a(f"v_mov_b32 {vT1}, {L_L0}")
    a(f"v_mov_b32 {vT2}, {L_L1}")
    a("s_waitcnt lgkmcnt(0)")
    for s_ in order:
        a(f"s_mov_b64 exec, {sMask[s_]}")
        if s_>=8: a(f"s_cbranch_execz K2_B{s_}")
        pair_index(sTmp,s_&7)
        a(f"s_mul_i32 {sTmp}, {sTmp}, {32*CH}")
        a(f"v_min_u32 {RK[s_]}, {CAPX-1}, {RK[s_]}")
        a(f"v_and_b32 {vT3}, 0xfff, {REC[s_]}")
        a(f"v_mad_u32_u24 {RK[s_]}, {WAD[s_]}, {sCAPq}, {RK[s_]}")
        a(f"v_add3_u32 {vT3}, {vT3}, {vT0}, {sTmp}")
        a(f"v_bfe_u32 {vJ}, {REC[s_]}, 26, 3")
        a(f"v_lshl_add_u32 {AD[0]}, {RK[s_]}, 2, {vT1}")
        a(f"v_lshl_or_b32 {vT3}, {vT3}, 5, {vJ}")
        a(f"v_lshl_add_u32 {AD[1]}, {RK[s_]}, 1, {vT2}")
        a(f"v_bfe_u32 {vJ}, {REC[s_]}, 12, 14")
        a(f"ds_write_b32 {AD[0]}, {vT3}")
        a(f"ds_write_b16 {AD[1]}, {vJ}")
        if s_>=8: a.label(f"K2_B{s_}")
    a("s_mov_b64 exec, -1")
    if opt.get('epfpos',1)==0: epf_block()
    a.c("overflowed cells -> rescan list (rare)")
    a(f"s_cmp_eq_u64 {sAny}, 0")
    a("s_cbranch_scc1 K2_NOMARK")
    a(f"v_lshrrev_b32 {vT0}, 4, {vL}")
    a(f"s_lshl_b32 {sTmp}, {sWave}, 2")
    a(f"v_add_u32 {vT0}, {sTmp}, {vT0}")
    a(f"v_mov_b32 {vT1}, {L_NRES}")
    for s_ in range(8):
        a(f"v_cmp_eq_u32 vcc, {sMark}, {REC[s_]}")
        a(f"s_and_saveexec_b64 {sSave}, vcc")
        a(f"s_cbranch_execz K2_MK{s_}")
        a(f"ds_add_rtn_u32 {vT2}, {vT1}, {vOne}")
        pair_index(sTmp,s_)
        a(f"s_lshl_b32 {sTmp}, {sTmp}, 5")
        a(f"v_add_u32 {vT3}, {sTmp}, {vT0}")
        a("s_waitcnt lgkmcnt(0)")
        a(f"v_lshlrev_b32 {vT2}, 2, {vT2}")
        a(f"ds_write_b32 {vT2}, {vT3} offset:{L_RES}")
        a.label(f"K2_MK{s_}")
        a(f"s_mov_b64 exec, {sSave}")
    a.label("K2_NOMARK")
    a("s_load_dwordx2 s[64:65], s[0:1], 0")
    a(f"s_waitcnt vmcnt({opt.get('epf',1)*(2 if opt.get('hpf',0) else 1)}) lgkmcnt(0)")
    a(f"s_cmp_lg_u32 {sWave}, {99 if opt.get('hpf',0) else 1}")
    a("s_cbranch_scc1 K2_NOF2B")
    a(f"v_readfirstlane_b32 {sNonce}, {aE}")
    a(f"s_mov_b32 {sPoll}, 0")
    a("s_nop 1")
    a.label("K2_F2CHK")
    a(f"v_cmp_eq_u32 {sAny}, {sNonce}, {FL[0]}")
    for k in range(1,8):
        a(f"v_cmp_eq_u32 vcc, {sNonce}, {FL[k]}")
        a("s_nop 1")
        a(f"s_and_b64 {sAny}, {sAny}, vcc")
    a(f"s_cmp_eq_u64 {sAny}, -1")
    a("s_cbranch_scc1 K2_NOF2B")
    a(f"s_add_u32 {sPoll}, {sPoll}, 1")
    a(f"s_cmp_gt_u32 {sPoll}, 200000")
    a("s_cbranch_scc1 K2_NOF2B")
    flg2_loads()
    a("s_waitcnt vmcnt(0)")
    a("s_branch K2_F2CHK")
    a.label("K2_NOF2B")
    srd(a,sHs,"s64","s65",N*128)
    a(f"s_mov_b32 {sTmp}, {NEG_LN2}")
    a(f"v_mul_f32 {WX[0]}, {sTmp}, {WX[0]}")
    a(f"v_mul_f32 {WX[1]}, {sTmp}, {WX[1]}")
    stamp(a,opt,6)
    a("s_barrier")
    stamp(a,opt,7)
    a.c("window sizes (lane = pair i,k) and the rescan count")
    a(f"v_mov_b32 {vT0}, {L_NRES}")
    a(f"ds_read_b32 {vT1}, {vT0}")
    a(f"ds_read_b32 {vT2}, {aOH} offset:{L_CNT}")
    a(f"ds_read_b32 {vT3}, {SS} offset:{L_CNT}")
    a("s_waitcnt lgkmcnt(0)")
    a(f"v_readfirstlane_b32 {sNR}, {vT1}")
    a(f"v_min_u32 {vT0}, 0xffffff, {vT2}")
    a(f"v_min_u32 {vJ}, 0xffffff, {vT3}")
    a(f"s_cmp_eq_u32 {sNR}, 0")
    a("s_cbranch_scc1 K2_CHECK")
    a(f"s_min_u32 {sNR}, {sNR}, 256")
    a(f"s_mov_b32 {sI}, 0")
    a.label("K2_RESCAN_I")
    a(f"s_lshl_b32 {sTmp}, {sI}, 2")
    a(f"s_add_u32 {sTmp}, {sTmp}, {L_RES}")
    a(f"v_mov_b32 {vT0}, {sTmp}")
    a(f"ds_read_b32 {vT1}, {vT0}")
    a("s_waitcnt lgkmcnt(0)")
    a(f"v_readfirstlane_b32 {sWsrc}, {vT1}")
    a("s_nop 3")
    a(f"s_min_u32 {sWsrc}, {sWsrc}, 255")
    a(f"s_mov_b32 {sC}, 0")
    a.label("K2_RESCAN_C")
    def append_raw(lim_local):
        a(f"v_lshlrev_b32 {vT1}, 2, {vT0}")
        a(f"buffer_load_dword {AD[0]}, {vT1}, {sD}, 0 offen")
        a(f"buffer_load_dword {AD[1]}, {vT1}, {sS}, 0 offen")
        a("s_waitcnt vmcnt(0)")
        a(f"v_mul_hi_u32 {vT2}, {AD[0]}, {sK}")
        a(f"v_lshrrev_b32 {vT3}, 3, {vT2}")
        a(f"v_cmp_eq_u32 vcc, s2, {vT3}")
        a("s_nop 1")
        a(f"s_and_b64 vcc, vcc, {sAny}")
        a(f"s_and_saveexec_b64 {sSave}, vcc")
        a(f"s_cbranch_execz {lim_local}")
        a(f"v_mad_u32_u24 {vT3}, {vT2}, {s3125}, {v511}")
        a(f"v_and_b32 {vT2}, 7, {vT2}")
        a(f"v_lshrrev_b32 {vT3}, 9, {vT3}")
        a(f"v_lshlrev_b32 {vT2}, 2, {vT2}")
        a(f"v_sub_u32 {vT3}, {AD[0]}, {vT3}")
        a(f"ds_add_rtn_u32 {AD[2]}, {vT2}, {vOne} offset:{L_CNT}")
        a(f"v_lshl_or_b32 {vT0}, {vT0}, 5, {vT3}")
        a("s_waitcnt lgkmcnt(0)")
        a(f"v_min_u32 {AD[2]}, {CAPX-1}, {AD[2]}")
        a(f"v_mad_u32_u24 {AD[2]}, {vT2}, {sCAPq}, {AD[2]}")
        a(f"v_mov_b32 {vT2}, {L_L0}")
        a(f"v_mov_b32 {vT3}, {L_L1}")
        a(f"v_lshl_add_u32 {vT2}, {AD[2]}, 2, {vT2}")
        a(f"v_lshl_add_u32 {vT3}, {AD[2]}, 1, {vT3}")
        a(f"ds_write_b32 {vT2}, {vT0}")
        a(f"ds_write_b16 {vT3}, {AD[1]}")
        a.label(lim_local)
        a(f"s_mov_b64 exec, {sSave}")
    a(f"s_lshl_b32 {sTmp}, {sC}, 9")
    a(f"v_add_u32 {vT1}, {sTmp}, v0")
    a(f"s_mul_i32 {sTmp2}, {sWsrc}, {CH}")
    a(f"v_add_u32 {vT0}, {sTmp2}, {vT1}")
    a(f"v_cmp_gt_u32 vcc, {CH}, {vT1}")
    a(f"s_mov_b32 {sTmp}, {E}")
    a(f"v_cmp_gt_u32 {sAny}, {sTmp}, {vT0}")
    a("s_nop 1")
    a(f"s_and_b64 {sAny}, {sAny}, vcc")
    append_raw("K2_RA1")
    a(f"s_add_u32 {sC}, {sC}, 1")
    a(f"s_cmp_lt_u32 {sC}, 7")
    a("s_cbranch_scc1 K2_RESCAN_C")
    a(f"s_add_u32 {sI}, {sI}, 1")
    a(f"s_cmp_lt_u32 {sI}, {sNR}")
    a("s_cbranch_scc1 K2_RESCAN_I")
    a("s_waitcnt lgkmcnt(0)")
    a("s_barrier")
    a(f"ds_read_b32 {vT2}, {aOH} offset:{L_CNT}")
    a(f"ds_read_b32 {vT3}, {SS} offset:{L_CNT}")
    a("s_waitcnt lgkmcnt(0)")
    a(f"v_min_u32 {vT0}, 0xffffff, {vT2}")
    a(f"v_min_u32 {vJ}, 0xffffff, {vT3}")
    a.label("K2_CHECK")
    a.c("window assignment by size rank")
    a(f"v_lshl_or_b32 {vT0}, {vT0}, 3, {aPS}")
    a(f"v_lshl_or_b32 {vJ}, {vJ}, 3, {aPD}")
    a(f"v_cmp_lt_u32 {sAny}, {sCAP}, {vT3}")
    a(f"v_cmp_gt_u32 vcc, {vJ}, {vT0}")
    a(f"s_mov_b32 {sWin}, 0")
    a("s_nop 2")
    for i in range(8):
        a(f"s_bfe_u32 {sTmp}, {'vcc_lo' if i<4 else 'vcc_hi'}, {(8<<16)|(8*(i&3))}")
        a(f"s_bcnt1_i32_b32 {sTmp}, {sTmp}")
        a(f"s_cmp_eq_u32 {sTmp}, {sTgt}")
        a(f"s_cselect_b32 {sWin}, {i}, {sWin}")
    if opt.get('nobal',0): a(f"s_mov_b32 {sWin}, {sWave}")
    a(f"s_lshl_b32 {sTmp}, {sWin}, 3")
    a(f"v_readlane_b32 {sCnt}, {vT2}, {sTmp}")
    geometry(sWin)
    a(f"s_lshl_b32 {sTmp}, {sWin}, 11")
    a(f"v_add_u32 {vE64}, {sTmp}, {vE64}")
    a(f"v_add_u32 {vTR}, {sTmp}, {vTR}")
    a(f"s_add_u32 {sTmp}, {sTmp}, {L_A2}")
    a(f"v_lshl_add_u32 {vT0}, {vL}, 5, {sTmp}")
    a(f"ds_read_b128 {WA[0:4]}, {vT0}")
    a(f"ds_read_b128 {WA[4:8]}, {vT0} offset:16")
    for i in range(4): a(f"v_mov_b32 {A2R[i]}, 0")
    a(f"ds_write_b128 {vT0}, {A2R[0:4]}")
    a(f"ds_write_b128 {vT0}, {A2R[0:4]} offset:16")
    a(f"s_cmp_eq_u64 {sAny}, 0")
    a("s_cbranch_scc1 K2_MAIN")
    a.c("generic (slow) mode: raw scan of all edges, 512 per round")
    a(f"s_mov_b32 {sMode}, 1")
    a.label("K2_GEN")
    a("s_barrier")
    a(f"s_cmp_lg_u32 {sWave}, 0")
    a("s_cbranch_scc1 K2_GEN1")
    a(f"v_and_b32 {vT0}, 7, {vL}")
    a(f"v_lshlrev_b32 {vT0}, 2, {vT0}")
    a(f"ds_write_b32 {vT0}, {vZ[0]} offset:{L_CNT}")
    a("s_waitcnt lgkmcnt(0)")
    a.label("K2_GEN1")
    a("s_barrier")
    a(f"s_lshl_b32 {sTmp}, {sChunk}, 9")
    a(f"v_add_u32 {vT0}, {sTmp}, v0")
    a(f"s_mov_b32 {sTmp}, {E}")
    a(f"v_cmp_gt_u32 {sAny}, {sTmp}, {vT0}")
    a("s_nop 1")
    append_raw("K2_RA2")
    a("s_waitcnt lgkmcnt(0)")
    a("s_barrier")
    a(f"s_lshl_b32 {sTmp}, {sWin}, 2")
    a(f"v_mov_b32 {vT0}, {sTmp}")
    a(f"ds_read_b32 {vT1}, {vT0} offset:{L_CNT}")
    a("s_waitcnt lgkmcnt(0)")
    a(f"v_readfirstlane_b32 {sCnt}, {vT1}")
    a("s_nop 3")
    a.label("K2_MAIN")
    if opt.get('dbgfill',0): stamp(a,opt,14)
    a(f"s_min_u32 {sCnt}, {sCnt}, {CAP}")
    a(f"s_add_u32 {sNT}, {sCnt}, 31")
    a(f"s_lshr_b32 {sNT}, {sNT}, 5")
    a(f"s_cmp_eq_u32 {sNT}, 0")
    a("s_cbranch_scc1 K2_MAIN_DONE")
    a(f"s_mul_i32 {sTmp}, {sWin}, {CAPX*4}")
    a(f"s_add_u32 {sTmp}, {sTmp}, {L_L0}")
    a(f"s_mul_i32 {sTmp2}, {sWin}, {CAPX*2}")
    a(f"s_add_u32 {sTmp2}, {sTmp2}, {L_L1}")
    a(f"v_and_b32 {vT0}, 31, {vL}")
    a(f"v_lshl_add_u32 {aL0}, {vT0}, 2, {sTmp}")
    a(f"v_lshl_add_u32 {aL1s}, {vT0}, 1, {sTmp2}")
    a(f"v_lshrrev_b32 {vT0}, 3, {vL}")
    a(f"v_lshl_add_u32 {aL1d}, {vT0}, 3, {sTmp2}")
    def pad():
        a(f"v_add_u32 {vT0}, {sCnt}, {vL}")
        a(f"v_lshl_add_u32 {vT1}, {vT0}, 2, {sTmp}")
        a(f"v_lshl_add_u32 {vT2}, {vT0}, 1, {sTmp2}")
        a(f"v_mov_b32 {vJ}, 7")
        a(f"ds_write_b32 {vT1}, {vJ}")
        a(f"ds_write_b16 {vT2}, {vZ[0]}")
        a(f"ds_write_b32 {vT1}, {vJ} offset:256")
        a(f"ds_write_b16 {vT2}, {vZ[0]} offset:128")
    def first_reads():
        a(f"ds_read_b32 {vT3}, {aL0}")
        a(f"ds_read_b64 {SD}, {aL1d}")
        a(f"ds_read_b32 {LE[1]}, {aL0} offset:128")
        a(f"ds_read_b32 {LE[0]}, {aL0} offset:256")
        a(f"ds_read_u16 {SS}, {aL1s}")
    a(f"s_cmp_ge_u32 {sCnt}, 96")
    a("s_cbranch_scc1 K2_FILL_BIG")
    pad()
    first_reads()
    a("s_waitcnt lgkmcnt(0)")
    a("s_branch K2_FILL")
    a.label("K2_FILL_BIG")
    first_reads()
    pad()
    a("s_waitcnt lgkmcnt(4)")
    a.label("K2_FILL")
    ENT=['',' nt',' sc1',' sc0 sc1',' sc0',' sc0 nt',' sc1 nt',' sc0 sc1 nt'][opt.get('e_nt',0)]
    def E_addr(le): a(f"v_and_or_b32 {aE}, {le}, {sMaskE}, {vHOFF}")
    def E_load(p): a(f"buffer_load_dwordx4 {EA[p]}, {aE}, {sE}, 0 offen{ENT}")
    def H_addr():
        if opt.get('hmask',0):
            a(f"v_and_b32 {SD[0]}, 0x03ff03ff, {SD[0]}"); a(f"v_and_b32 {SD[1]}, 0x03ff03ff, {SD[1]}")
        for i in range(4):
            a(f"v_mad_u32_u16 {AD[i]}, {SD[i>>1]}, {s128}, {vKD[i]}"+(" op_sel:[1,0,0,0]" if i&1 else ""))
    def H_load(i):
        a(f"s_mov_b32 m0, {sM0[i]}")
        a("s_nop 0")
        a(f"buffer_load_dwordx4 {AD[i]}, {sB}, 0 offen{HLD} lds")
    def P_addr(le,par):
        a(f"v_and_b32 {vJ}, 7, {le}")
        a(f"v_mul_u32_u24 {aPS}, 6, {SS}")
        a(f"v_mad_u32_u24 {aPD}, {vJ}, 6, {sN06}")
        a(f"v_lshlrev_b32 {aOH}, 4, {vJ}")
        a(f"v_lshl_add_u32 {aA2[par]}, {vJ}, 3, {vE64}")
    def P_reads():
        for c in range(3): a(f"ds_read_u16_d16_hi {PS[c]}, {aPS} offset:{L_POS+2*c}")
        for c in range(3): a(f"ds_read_u16_d16_hi {PD[c]}, {aPD} offset:{L_POS+2*c}")
        a(f"ds_read_b128 {OH}, {aOH} offset:{L_OH}")
    def P_calc_list(par):
        return [f"v_sub_f32 {DX[0]}, {PD[0]}, {PS[0]}", f"v_sub_f32 {DX[1]}, {PD[1]}, {PS[1]}", f"v_sub_f32 {DX[2]}, {PD[2]}, {PS[2]}",
                f"v_mul_f32 {DD}, {DX[0]}, {DX[0]}", f"v_fmac_f32 {DD}, {DX[1]}, {DX[1]}", f"v_fmac_f32 {DD}, {DX[2]}, {DX[2]}",
                f"v_cvt_pk_bf16_f32 {E01[0]}, 1.0, {DX[0]}", f"v_cvt_pk_bf16_f32 {E01[1]}, {DX[1]}, {DX[2]}",
                f"v_cvt_pk_bf16_f32 {OH[3]}, {OH[3]}, {DD}",
                f"ds_write_b64 {aA2[par]}, {E01}"]
    def first_loads():
        E_addr(vT3); E_load(0)
        H_addr()
        for i in range(4): H_load(i)
        E_addr(LE[1]); E_load(1)
    def first_prep(readsd):
        P_addr(vT3,0); P_reads()
        if readsd:
            a(f"ds_read_b64 {SD}, {aL1d} offset:64")
        a(f"ds_read_u16 {SS}, {aL1s} offset:64")
        for i in range(16): a(f"v_mov_b32 {T[i]}, 0")
        for i in range(8): a(f"v_mov_b32 {A2R[i]}, 0")
        a("s_waitcnt lgkmcnt(0)")
        for ins in P_calc_list(0): a(ins)
    if opt.get('stagger',1):
        a.c("the younger partner prepares tile 0 first, so the older waves' first rows are requested ahead of it")
        a(f"s_cmp_ge_u32 {sWave}, 4")
        a("s_cbranch_scc1 K2_FILL_B")
    first_loads()
    if opt.get('dbgfill',0): stamp(a,opt,15)
    first_prep(True)
    if opt.get('stagger',1):
        a("s_branch K2_FILL_J")
        a.label("K2_FILL_B")
        first_prep(False)
        first_loads()
        a(f"ds_read_b64 {SD}, {aL1d} offset:64")
        a("s_waitcnt lgkmcnt(0)")
        a.label("K2_FILL_J")
    H_addr()
    P_addr(LE[1],1)
    E_addr(LE[0])
    a("s_waitcnt vmcnt(1)")
    for s_ in range(4): a(f"ds_read_b128 {HA[4*s_:4*s_+4]}, {vHA[s_]}")
    Da,Db=D1[0:16],D1[16:32]
    mfma(a,Da,OH,WA[0:4],"0")
    mfma(a,Da,EA[0],WE[0:4],Da)
    a("s_waitcnt lgkmcnt(0)")
    for i in range(4): H_load(i)
    mfma(a,Da,HA[0:4],ID[0:4],Da)
    mfma(a,Da,HA[4:8],ID[4:8],Da)
    a(f"s_mov_b32 {sT}, 0")
    stamp(a,opt,8)
    if DBG:
        a("s_memtime s[80:81]")
        a("s_waitcnt lgkmcnt(0)")
    a.nop(12)
    MADD=opt.get('madd',1)
    PB_=[0]; MF=[False]
    def prio(p):
        if PRIO: a(f"s_setprio {p+PB_[0] if PB_[0]>=0 else 3}")
    def Tsec(kind,x,p):
        Dx=D1[16*x:16*x+16]; o=1-x; Do=D1[16*o:16*o+16]; D2o=D2[16*o:16*o+16]
        prio(1)
        if kind=='X':
            ea = EA[p] if x==0 else EA[1-p]
            mfma(a,Do,OH,WA[4*o:4*o+4],"0")
            for i in range(8): a(f"v_cvt_pk_bf16_f32 {M[i]}, {T[2*i]}, {T[2*i+1]}")
            mfma(a,Do,ea,WE[4*o:4*o+4],Do)
            for i in range(16):
                if i==6:
                    if x==1: a("s_waitcnt lgkmcnt(2)")
                    mfma(a,D2o,A2R[0:4],M[0:4],D2o)
                a(f"v_exp_f32 {T[i]}, {Dx[i]}")
            if MADD:
                a("s_nop 1")
                mfma(a,T,ONE,ONE,T)
        else:
            hb = HA[8:16] if x==0 else HA[0:8]
            for i in range(16):
                if i==0: mfma(a,Do,hb[0:4],ID[0:4],Do)
                if i==5: mfma(a,Do,hb[4:8],ID[4:8],Do)
                if i==10: mfma(a,D2o,A2R[4:8],M[4:8],D2o)
                a(f"v_rcp_f32 {T[i]}, {T[i]}")
        prio(0)
    def tile(p):
        q=1-p
        Tsec('X',0,p)
        if not opt.get('e_late',0): E_load(p)
        else: a("s_nop 0")
        P_reads()
        a(f"ds_read_b64 {SD}, {aL1d} offset:{64*(p+2)}")
        if not MADD:
            for i in range(16): a(f"v_add_f32 {T[i]}, 1.0, {T[i]}")
        else:
            a.nop(2)
        Tsec('R',0,p)
        def mulsA():
            for i in range(16): a(f"v_mul_f32 {T[i]}, {Da[i]}, {T[i]}")
        if MF[0]: mulsA()
        a(f"s_waitcnt vmcnt({0 if opt.get('e_late',0) else 1}) lgkmcnt(0)")
        for s_ in range(4): a(f"ds_read_b128 {HA[4*s_:4*s_+4]}, {vHA[s_]}")
        for k in range(4): a(f"ds_read_b64_tr_b16 {A2R[2*k:2*k+2]}, {vTR} offset:{512*k}")
        a(f"ds_write_b64 {aA2[p]}, {vZ}")
        pc=P_calc_list(q)
        for ins in pc[:6]: a(ins)
        H_addr()
        if not MF[0]: mulsA()
        for ins in pc[6:]: a(ins)
        if MF[0]: a("s_nop 0")
        Tsec('X',1,p)
        a("s_waitcnt lgkmcnt(0)")
        if opt.get('e_late',0)==1: E_load(p)
        for i in range(4): H_load(i)
        a(f"ds_read_b32 {LE[q]}, {aL0} offset:{128*(p+3)}")
        a(f"ds_read_u16 {SS}, {aL1s} offset:{64*(p+2)}")
        if not MADD:
            for i in range(16): a(f"v_add_f32 {T[i]}, 1.0, {T[i]}")
        Tsec('R',1,p)
        def mulsB():
            for i in range(16): a(f"v_mul_f32 {T[i]}, {Db[i]}, {T[i]}")
        if MF[0]: mulsB()
        a("s_waitcnt lgkmcnt(0)")
        E_addr(LE[q])
        P_addr(LE[p],p)
        if p==1:
            a(f"v_add_u32 {aL0}, 256, {aL0}")
            a(f"v_add_u32 {aL1s}, 128, {aL1s}")
            a(f"v_add_u32 {aL1d}, 128, {aL1d}")
        if not MF[0]: mulsB()
    def drain(par):
        for i in range(8): a(f"v_cvt_pk_bf16_f32 {M[i]}, {T[2*i]}, {T[2*i+1]}")
        a(f"ds_write_b64 {aA2[par]}, {vZ}")
        a("s_nop 0")
        mfma(a,D2[16:32],A2R[0:4],M[0:4],D2[16:32])
        mfma(a,D2[16:32],A2R[4:8],M[4:8],D2[16:32])
    def main_loop(sfx):
        a(".p2align 6")
        a.label("K2_LOOP"+sfx)
        tile(0)
        a(f"s_add_u32 {sT}, {sT}, 1")
        a(f"s_cmp_ge_u32 {sT}, {sNT}")
        a("s_cbranch_scc1 K2_EXIT_ODD"+sfx)
        tile(1)
        a(f"s_add_u32 {sT}, {sT}, 1")
        a(f"s_cmp_lt_u32 {sT}, {sNT}")
        a("s_cbranch_scc1 K2_LOOP"+sfx)
        drain(0)
        a("s_branch K2_LOOP_DONE")
        a.label("K2_EXIT_ODD"+sfx)
        drain(1)
    HP=opt.get('mfirst',2)
    if HP==1:
        a.c("the younger partner (waves 4..7) opens its plain sections with the multiplies, so both partners' multiplies pair up")
        a(f"s_cmp_ge_u32 {sWave}, 4")
        a("s_cbranch_scc1 K2_LOOP_H")
    if HP==2: MF[0]=True
    main_loop("")
    if HP==1:
        a("s_branch K2_LOOP_DONE")
        MF[0]=True
        main_loop("_H")
        MF[0]=False
    a.label("K2_LOOP_DONE")
    if PRIO: a("s_setprio 0")
    a.label("K2_MAIN_DONE")
    stamp(a,opt,9)
    if DBG:
        a("s_memtime s[82:83]")
        a("s_waitcnt lgkmcnt(0)")
        a("s_sub_u32 s80, s82, s80")
        a(f"v_writelane_b32 {VDBG}, s80, 12")
        a(f"v_writelane_b32 {VDBG}, {sNT}, 11")
    a(f"s_cmp_eq_u32 {sMode}, 0")
    a("s_cbranch_scc1 K2_EPI")
    a("s_waitcnt vmcnt(0) lgkmcnt(0)")
    a(f"s_add_u32 {sChunk}, {sChunk}, 1")
    a(f"s_cmp_lt_u32 {sChunk}, {(E+511)//512}")
    a("s_cbranch_scc1 K2_GEN")
    a.label("K2_EPI")
    a.c("segment sums of this window: m_i (bf16) -> rows of this window's (now idle) A2 slice")
    a(f"s_lshl_b32 {sHST}, {sWin}, 11")
    a(f"s_add_u32 {sHST}, {sHST}, {L_A2}")
    a(f"v_and_b32 {vJ}, 31, {vL}")
    a(f"s_mov_b32 {sTmp}, {NEG_LN2}")
    a(f"v_lshrrev_b32 {vT2}, 5, {vL}")
    a(f"v_lshlrev_b32 {vT2}, 7, {vT2}")
    a(f"v_lshl_add_u32 {vT2}, {vJ}, 1, {vT2}")
    a(f"v_add_u32 {vT2}, {sHST}, {vT2}")
    a.nop(8)
    for qq in range(4):
        a(f"v_mul_f32 {AD[0]}, {sTmp}, {D2[4*qq]}")
        a(f"v_mul_f32 {AD[1]}, {sTmp}, {D2[16+4*qq]}")
        a(f"v_cvt_pk_bf16_f32 {AD[2]}, {AD[0]}, {AD[1]}")
        a(f"ds_write_b16 {vT2}, {AD[2]} offset:{qq*256}")
        a(f"ds_write_b16_d16_hi {vT2}, {AD[2]} offset:{qq*256+64}")
    def pos_part():
        a.c("coordinate update of this window")
        PP=T
        for qq in range(4):
            for c in range(1,4):
                r=PP[qq*3+c-1]
                a(f"v_mul_f32 {r}, {WX[0]}, {D2[4*qq+c]}")
                a(f"v_fmac_f32 {r}, {WX[1]}, {D2[16+4*qq+c]}")
        for sh in (1,2,4,8):
            for i in range(12): a(f"v_add_f32_dpp {PP[i]}, {PP[i]}, {PP[i]} row_shr:{sh} row_mask:0xf bank_mask:0xf bound_ctrl:0")
        for i in range(12): a(f"v_add_f32_dpp {PP[i]}, {PP[i]}, {PP[i]} row_bcast:15 row_mask:0xa bank_mask:0xf")
        a(f"v_lshrrev_b32 {vT2}, 5, {vL}")
        a(f"v_lshlrev_b32 {vT2}, 4, {vT2}")
        a(f"s_add_u32 {sTmp}, {sHST}, 1024")
        a(f"v_add_u32 {vT2}, {sTmp}, {vT2}")
        a("s_mov_b32 exec_lo, 0x80000000")
        a("s_mov_b32 exec_hi, 0x80000000")
        for qq in range(4):
            for c in range(3):
                a(f"ds_write_b32 {vT2}, {PP[qq*3+c]} offset:{qq*32+c*4}")
        a("s_mov_b64 exec, -1")
        a(f"v_mul_u32_u24 {vT2}, 86, {vL}")
        a(f"v_lshrrev_b32 {vT2}, 8, {vT2}")
        a(f"v_mul_u32_u24 {vT3}, 3, {vT2}")
        a(f"v_sub_u32 {vT3}, {vL}, {vT3}")
        a(f"v_lshlrev_b32 {vT2}, 4, {vT2}")
        a(f"v_lshl_add_u32 {vT2}, {vT3}, 2, {vT2}")
        a(f"v_add_u32 {vT2}, {sTmp}, {vT2}")
        a(f"v_min_u32 {vT2}, {LDS2-4}, {vT2}")
        a(f"ds_read_b32 {AD[0]}, {vT2}")
        a(f"v_lshl_add_u32 {vT3}, {vL}, 1, {sN06}")
        a(f"v_min_u32 {vT2}, {POS_SZ-2}, {vT3}")
        a(f"ds_read_u16_d16_hi {PS[0]}, {vT2} offset:{L_POS}")
        a(f"s_mul_i32 {sTmp}, {sNJ}, 3")
        a(f"v_cmp_gt_u32 vcc, {sTmp}, {vL}")
        a(f"v_add_u32 {vT3}, {OUT_POS}, {vT3}")
        a(f"v_mov_b32 {vT2}, 0x40000000")
        a("s_waitcnt lgkmcnt(0)")
        a(f"v_cndmask_b32 {vT3}, {vT2}, {vT3}, vcc")
        a(f"v_add_f32 {AD[0]}, {AD[0]}, {PS[0]}")
        a(f"v_cvt_pk_bf16_f32 {AD[0]}, {AD[0]}, {AD[0]}")
        a(f"buffer_store_short {AD[0]}, {vT3}, {sO}, 0 offen{OST}")
    a.c("job waves 4..7: row tile r = (v-4)>>1 (rows = window 4r + (m>>3), node m&7), feature half x = v&1")
    a(f"s_cmp_lt_u32 {sWave}, 4")
    a("s_cbranch_scc1 K2_EPI_NOJOB")
    a(f"s_sub_u32 {sTmp2}, {sWave}, 4")
    a(f"s_lshr_b32 {sTmp2}, {sTmp2}, 1")
    a(f"s_lshl_b32 {sTmp2}, {sTmp2}, 2")
    a(f"v_bfe_u32 {vT0}, {vL}, 3, 2")
    a(f"v_add_u32 {vT0}, {sTmp2}, {vT0}")
    a(f"v_and_b32 {vJ}, 7, {vL}")
    a(f"v_lshlrev_b32 {aL1d}, 11, {vT0}")
    a(f"v_lshl_add_u32 {aL1d}, {vJ}, 7, {aL1d}")
    a(f"v_add_u32 {aL1d}, {L_A2}, {aL1d}")
    a(f"v_add_u32 {aL1d}, {aL1d}, {vHOFF}")
    a(f"s_lshl_b32 {sTmp2}, s2, 3")
    a(f"v_add_u32 {vT0}, {sTmp2}, {vT0}")
    a(f"v_mad_u32_u24 {SD[0]}, {vT0}, {s3125}, {v511}")
    a(f"v_add_u32 {SD[1]}, 3125, {SD[0]}")
    a(f"v_lshrrev_b32 {SD[0]}, 9, {SD[0]}")
    a(f"v_lshrrev_b32 {SD[1]}, 9, {SD[1]}")
    a(f"v_sub_u32 {SD[1]}, {SD[1]}, {SD[0]}")
    a(f"v_cmp_lt_u32 vcc, {vJ}, {SD[1]}")
    a(f"v_add_u32 {vT1}, -1, {SD[1]}")
    a(f"v_min_u32 {vT1}, {vT1}, {vJ}")
    a(f"v_add_u32 {vT1}, {SD[0]}, {vT1}")
    a(f"v_lshlrev_b32 {vT1}, 7, {vT1}")
    a(f"v_add_u32 {vT0}, {vT1}, {vHOFF}")
    for s_ in range(4):
        a(f"buffer_load_dwordx4 {HA[4*s_:4*s_+4]}, {vT0}, {sHs}, 0 offen offset:{32*s_}")
    a(f"s_and_b32 {sTmp2}, {sWave}, 1")
    a(f"s_lshl_b32 {sTmp2}, {sTmp2}, 6")
    a(f"v_lshrrev_b32 {vT0}, 1, {vHOFF}")
    a(f"v_add3_u32 {aL0}, {vT1}, {vT0}, {sTmp2}")
    for qq in range(4):
        a(f"buffer_load_dwordx2 {M[2*qq:2*qq+2]}, {aL0}, {sHs}, 0 offen offset:{16*qq}")
    a(f"v_mov_b32 {vT0}, 0x40000000")
    a(f"v_cndmask_b32 {aL1s}, {vT0}, {aL0}, vcc")
    pos_part()
    HV=D2[0:16]
    a("s_waitcnt vmcnt(1)")
    for s_ in range(4):
        mfma(a,D1[0:16],WH[4*s_:4*s_+4],HA[4*s_:4*s_+4],"0" if s_==0 else D1[0:16])
    for qq in range(4):
        a(f"v_lshlrev_b32 {HV[4*qq]}, 16, {M[2*qq]}")
        a(f"v_and_b32 {HV[4*qq+1]}, 0xffff0000, {M[2*qq]}")
        a(f"v_lshlrev_b32 {HV[4*qq+2]}, 16, {M[2*qq+1]}")
        a(f"v_and_b32 {HV[4*qq+3]}, 0xffff0000, {M[2*qq+1]}")
    stamp(a,opt,10)
    a("s_barrier")
    MA=[EA[0],EA[1],A2R[0:4],A2R[4:8]]
    for s_ in range(4): a(f"ds_read_b128 {MA[s_]}, {aL1d} offset:{32*s_}")
    for s_ in range(4):
        a(f"s_waitcnt lgkmcnt({3-s_})")
        mfma(a,D1[0:16],WH[16+4*s_:20+4*s_],MA[s_],D1[0:16])
    a(f"s_mov_b32 {sTmp}, {NEG_LOG2E}")
    a.nop(14)
    X=D1[0:16]
    for i in range(16): a(f"v_mul_f32 {T[i]}, {sTmp}, {X[i]}")
    for i in range(16): a(f"v_exp_f32 {T[i]}, {T[i]}")
    for i in range(16): a(f"v_add_f32 {T[i]}, 1.0, {T[i]}")
    for i in range(16): a(f"v_rcp_f32 {T[i]}, {T[i]}")
    a("s_nop 0")
    for i in range(16): a(f"v_fma_f32 {T[i]}, {X[i]}, {T[i]}, {HV[i]}")
    for qq in range(4):
        a(f"v_cvt_pk_bf16_f32 {M[2*qq]}, {T[4*qq]}, {T[4*qq+1]}")
        a(f"v_cvt_pk_bf16_f32 {M[2*qq+1]}, {T[4*qq+2]}, {T[4*qq+3]}")
        a(f"buffer_store_dwordx2 {M[2*qq:2*qq+2]}, {aL1s}, {sO}, 0 offen offset:{16*qq}{OST}")
    a("s_branch K2_FIN")
    a.label("K2_EPI_NOJOB")
    a("s_waitcnt lgkmcnt(0)")
    stamp(a,opt,10)
    a("s_barrier")
    pos_part()
    a.label("K2_FIN")
    if DBG:
        a("s_waitcnt vmcnt(0)")
        stamp(a,opt,13)
        a(f"s_lshl_b32 {sTmp}, s2, 4")
        a(f"s_add_u32 {sTmp}, {sTmp}, {sWave}")
        a(f"s_lshl_b32 {sTmp}, {sTmp}, 6")
        a(f"s_add_u32 {sTmp}, {sTmp}, {DBG_OFF}")
        a(f"v_lshlrev_b32 {vT0}, 2, {vL}")
        a("s_mov_b32 exec_lo, 0xffff")
        a("s_mov_b32 exec_hi, 0")
        a(f"buffer_store_dword {VDBG}, {vT0}, {sW}, {sTmp} offen")
        a("s_waitcnt vmcnt(0)")
    a.label("K_END")
    a("s_endpgm")
    a.label("K_CODE_END")
    return nv

HEADER='''; Kernarg layout (88 bytes, ptrs only): h, pos, e_attr, src, dst, w_e, w_x, w_h, out, debug, ws
; @launch grid=(256,1,1) block=(512,1,1) lds={lds2}
.amdgcn_target "amdgcn-amd-amdhsa--gfx950"
.text
.globl {k}
.p2align 8
.type {k},@function
'''
def kd(name,nv,ns):
    acc=(nv+3)//4*4
    return f'''.amdhsa_kernel {name}
  .amdhsa_next_free_vgpr {acc}
  .amdhsa_next_free_sgpr {ns}
  .amdhsa_accum_offset {acc}
  .amdhsa_group_segment_fixed_size 0
  .amdhsa_kernarg_size 88
  .amdhsa_user_sgpr_count 2
  .amdhsa_user_sgpr_kernarg_segment_ptr 1
  .amdhsa_system_sgpr_workgroup_id_x 1
  .amdhsa_float_denorm_mode_32 3
.end_amdhsa_kernel
'''
def build(opt):
    out=HEADER.format(lds2=LDS2,k=KNAME)
    a=Asm()
    nv=gen(a,opt)
    assert nv<=255
    out+=a.text()
    out+='.section .rodata,"a"\n.p2align 6\n'+kd(KNAME,256,102)
    return out,nv
if __name__=="__main__":
    opt={}
    for arg in sys.argv[2:]:
        k,v=arg.split('='); opt[k]=int(v)
    txt,nv=build(opt)
    open(sys.argv[1],'w').write(txt)
    print("vgprs:",nv,"LDS",LDS2,"lines",txt.count("\n"),"WS",WS_BYTES)
```

```python
import sys, struct
from asmlib import *

N=12500; E=800000; CH=3136; NSRC=256; NBIN=256; NPW=49
KW=703687442
LOG2E=1.4426950408889634; LN2=0.6931471805599453
def f2u(x): return struct.unpack('<I',struct.pack('<f',x))[0]
NEG_LOG2E=f2u(-LOG2E); NEG_LN2=f2u(-LN2)
SENT=0xFFFFFFFF; MARK=0xFFFFFFFE
CELLS=0; BPT=NBIN*NSRC*128; FLG=BPT+N*128+((-N*128)%4096); FLG2=FLG+4096; WS_BYTES=FLG2+8192
OUT_BYTES=N*64*2+N*3*2; OUT_POS=N*64*2
CAP=576; CAPX=704
L_OH=0; L_CNT=128; L_NRES=160; L_WIN=192; L_RES=256; L_POS=1280; POS_SZ=74*1024
L_L0=L_POS+POS_SZ; L_L1=L_L0+8*CAPX*4; L_A2=L_L1+8*CAPX*2; L_HST=L_A2+8*2048; LDS2=L_HST+8*4096
assert LDS2<=163840, LDS2
L_RAWW=L_L0; L_BST=L_L0+19*1024; assert L_BST+2*32*144<=L_A2
DBG_OFF=16*1024*1024

def WSB(opt): return (32*1024*1024 if opt.get('dbg',0) else WS_BYTES)
def srd(a, s, lo, hi, size):
    a(f"s_mov_b32 {s[0]}, {lo}")
    a(f"s_and_b32 {s[1]}, {hi}, 0xffff")
    a(f"s_mov_b32 {s[2]}, {size}")
    a(f"s_mov_b32 {s[3]}, 0x20000")
VDBG="v255"
def stamp(a,opt,idx):
    if not opt.get('dbg',0): return
    a("s_memrealtime s[100:101]")
    a("s_waitcnt lgkmcnt(0)")
    a(f"v_writelane_b32 {VDBG}, s100, {idx}")
def S(i,n=1): return R('s',i,n)
def V(i,n=1): return R('v',i,n)
def mfma(a,d,A,B,c): a(f"v_mfma_f32_32x32x16_bf16 {d}, {A}, {B}, {c}")

NPOS1=24
KNAME="gather_scatter__cheap_equivariant_egnn__graph_kernel"
def gen(a, opt):
    DBG=opt.get('dbg',0)
    PRIO=opt.get('prio',1)
    ST=[" sc1"," sc0 sc1"," sc1 nt"," sc0 sc1 nt"][opt.get('st',0)]; LD=" sc1" if opt.get('ld_sc1',1) else ""
    HLD=[""," sc1"," sc0 sc1"," sc1 nt"," sc0 sc1 nt"][opt.get('h_sc1',1)]
    SNT=" nt" if opt.get('snt',0) else ""
    OST=[""," nt"," sc1"," sc0 sc1"][opt.get('ost',0)]
    a.label(KNAME)
    sB=S(4,4); sE=S(8,4); sW=S(12,4); sO=S(16,4); sP=S(20,4); sS=S(24,4); sD=S(28,4)
    sWave=S(32); sN0=S(33); sNJ=S(34); sN06=S(35); sNT=S(36); sT=S(37); sMode=S(38); sChunk=S(39)
    sMaskE=S(40); s128=S(41); sK=S(42); s3125=S(43); sLim=S(44); sCAP=S(44); sCnt=S(45); sTmp=S(46); sTmp2=S(47)
    sM0=S(48,4); sSave=S(52,2); sAny=S(54,2); sNR=S(56); sI=S(57); sC=S(58); sWsrc=S(59); sMark=S(60); sCAPq=S(61); sHST=S(62); sTmp3=S(63)
    sMask=[S(64+2*i,2) for i in range(16)]
    sTagOff=S(36)
    sRot=S(39+0) if False else S(37)
    sWin=S(96); sTgt=S(97); sNonce=S(98); sPoll=S(99)
    sT4=S(84,4); sT4b=S(88,4); sT4c=S(92,4)
    sHw=S(48,4)
    sHs=S(68,4); sWx=S(72,4)
    vr=Regs(1,256,'v')
    vL=vr.alloc('lane')
    WE=vr.alloc('WE',8,4); WA=vr.alloc('WA',8,4); ID=vr.alloc('ID',8,4); D2=vr.alloc('D2',32,4)
    D1=vr.alloc('D1',32,4); HA=vr.alloc('HA',16,4); T=vr.alloc('T',16,4); M=vr.alloc('M',8,4)
    A2R=vr.alloc('A2R',8,4); EA=[vr.alloc('EA0',4,4),vr.alloc('EA1',4,4)]; OH=vr.alloc('OH',4,4)
    WH=vr.alloc('WH',32,4); ONE=vr.alloc('ONE',4,4)
    vHA=vr.alloc('vHA',4); vKD=vr.alloc('vKD',4); vTR=vr.alloc('vTR'); vE64=vr.alloc('vE64'); vHOFF=vr.alloc('vHOFF')
    vZ=vr.alloc('vZ',2,2); aL0=vr.alloc('aL0'); aL1s=vr.alloc('aL1s'); aL1d=vr.alloc('aL1d')
    LE=[vr.alloc('LE0'),vr.alloc('LE1')]; aA2=[vr.alloc('aA2_0'),vr.alloc('aA2_1')]
    SD=vr.alloc('SD',2,2); SS=vr.alloc('SS'); PS=vr.alloc('PS',3); PD=vr.alloc('PD',3)
    E01=vr.alloc('E01',2,2); DX=vr.alloc('DX',3); DD=vr.alloc('DD'); AD=vr.alloc('AD',4); vJ=vr.alloc('vJ')
    aE=vr.alloc('aE'); aPS=vr.alloc('aPS'); aPD=vr.alloc('aPD'); aOH=vr.alloc('aOH')
    vT0=vr.alloc('vT0'); vT1=vr.alloc('vT1'); vT2=vr.alloc('vT2'); vT3=vr.alloc('vT3')
    vOne=vr.alloc('vOne'); v511=vr.alloc('v511'); vTRW=vr.alloc('vTRW'); vL16=vr.alloc('vL16'); WX=vr.alloc('WX',2); vDUM=vr.alloc('vDUM')
    nv=vr.next
    HW=T
    def geometry(win):
        a(f"s_lshl_b32 {sTmp}, s2, 3")
        a(f"s_add_u32 {sTmp}, {sTmp}, {win}")
        a(f"s_mul_i32 {sN0}, {sTmp}, 3125")
        a(f"s_add_u32 {sNJ}, {sN0}, {3125+511}")
        a(f"s_add_u32 {sN0}, {sN0}, 511")
        a(f"s_lshr_b32 {sN0}, {sN0}, 9")
        a(f"s_lshr_b32 {sNJ}, {sNJ}, 9")
        a(f"s_sub_u32 {sNJ}, {sNJ}, {sN0}")
        a(f"s_mul_i32 {sN06}, {sN0}, 6")
    def dma(vaddr,srd_,soff,ldsbase_const=None,ldsreg=None):
        pass

    def load_hwin():
        a.c("h rows of the natural window (A operand of h@W1; needed after barrier C)")
        a(f"v_bfe_u32 {vT0}, {vL}, 3, 1")
        a(f"v_and_b32 {vT2}, 3, {vL}")
        a(f"v_lshl_add_u32 {vT0}, {vT0}, 2, {vT2}")
        a(f"s_sub_u32 {sTmp}, {sNJ}, 1")
        a(f"v_min_u32 {vT0}, {sTmp}, {vT0}")
        a(f"v_add_u32 {vT0}, {sN0}, {vT0}")
        a(f"v_lshl_add_u32 {vT0}, {vT0}, 7, {vHOFF}")
        for s_ in range(4):
            a(f"buffer_load_dwordx4 {HW[4*s_:4*s_+4]}, {vT0}, {sHw}, 0 offen offset:{32*s_}")
    a("s_cmp_ge_u32 s2, 256")
    a("s_cbranch_scc1 K_END")
    a("s_load_dwordx4 s[64:67], s[0:1], 0")
    a("s_load_dwordx4 s[68:71], s[0:1], 16")
    a("s_load_dwordx4 s[72:75], s[0:1], 32")
    a("s_load_dwordx4 s[76:79], s[0:1], 64")
    a("s_load_dwordx2 s[80:81], s[0:1], 80")
    a(f"v_and_b32 {vL}, 63, v0")
    a(f"v_lshrrev_b32 {vT0}, 6, v0")
    a(f"v_lshlrev_b32 {vL16}, 4, {vL}")
    a(f"v_readfirstlane_b32 {sWave}, {vT0}")
    if opt.get('cpf',1):
        a.c("pull this workgroup's share of the kernel's own code into L2 (read only, speed only)")
        NL=opt.get('cpf_lines',8)
        a("s_getpc_b64 s[84:85]")
        a.label("K_PC")
        a("s_and_b32 s85, s85, 0xffff")
        a("s_mov_b32 s86, K_CODE_END-K_PC")
        a("s_mov_b32 s87, 0x20000")
        if opt.get('cpf',1)==1:
            a(f"s_lshr_b32 {sTmp}, s2, 3")
            a(f"s_and_b32 {sTmp}, {sTmp}, 31")
            a(f"s_mul_i32 {sTmp}, {sTmp}, {NL*128}")
            a(f"v_lshlrev_b32 {vT1}, 7, {vL}")
            a(f"v_add_u32 {vT1}, {sTmp}, {vT1}")
            a(f"s_cmp_lg_u32 {sWave}, 3")
            a("s_cbranch_scc1 K_NOCPF")
            a(f"s_mov_b32 exec_lo, {(1<<NL)-1}")
            a("s_mov_b32 exec_hi, 0")
            a(f"buffer_load_dword {vDUM}, {vT1}, s[84:87], 0 offen")
            a("s_mov_b64 exec, -1")
        elif opt.get('cpf',1)==2:
            a(f"s_mul_i32 {sTmp}, {sWave}, {24*128}")
            a(f"v_lshlrev_b32 {vT1}, 7, {vL}")
            a(f"v_add_u32 {vT1}, {sTmp}, {vT1}")
            a(f"s_mov_b32 exec_lo, {(1<<24)-1}")
            a("s_mov_b32 exec_hi, 0")
            a(f"buffer_load_dword {vDUM}, {vT1}, s[84:87], 0 offen")
            a("s_mov_b64 exec, -1")
        elif opt.get('cpf',1)==3:
            a(f"s_lshr_b32 {sTmp}, s2, 3")
            a(f"s_and_b32 {sTmp}, {sTmp}, 3")
            a(f"s_mul_i32 {sTmp}, {sTmp}, {48*128}")
            a(f"v_lshlrev_b32 {vT1}, 7, {vL}")
            a(f"v_add_u32 {vT1}, {sTmp}, {vT1}")
            a(f"s_cmp_lg_u32 {sWave}, 3")
            a("s_cbranch_scc1 K_NOCPF")
            a("s_mov_b32 exec_hi, 0xffff")
            a(f"buffer_load_dword {vDUM}, {vT1}, s[84:87], 0 offen")
            a("s_mov_b64 exec, -1")
        a.label("K_NOCPF")
    a(f"v_lshrrev_b32 {vT2}, 5, {vL}")
    a(f"v_lshlrev_b32 {vHOFF}, 4, {vT2}")
    a(f"v_mov_b32 {vZ[0]}, 0")
    a(f"v_mov_b32 {vZ[1]}, 0")
    geometry(sWave)
    a(f"s_mul_i32 {sTmp}, s2, {CH*4}")
    a(f"s_mul_i32 {sTmp2}, {sWave}, {384*4}")
    a(f"s_add_u32 {sTmp}, {sTmp}, {sTmp2}")
    a(f"v_lshl_add_u32 {vT0}, {vL}, 3, {sTmp}")
    a("s_waitcnt lgkmcnt(0)")
    stamp(a,opt,0)
    srd(a,sT4c,"s78","s79",256)
    a.c("workgroup 0 publishes this launch's hand-off tag")
    a(f"s_or_b32 {sTmp}, s2, {sWave}")
    a(f"s_cmp_lg_u32 {sTmp}, 0")
    a("s_cbranch_scc1 K_S_NOTAG")
    a("s_memrealtime s[100:101]")
    a("s_waitcnt lgkmcnt(0)")
    a("s_or_b32 s100, s100, 1")
    a(f"v_mov_b32 {vT1}, s100")
    a(f"buffer_store_dword {vT1}, {vZ[0]}, {sT4c}, 0 offen sc1")
    a(f"buffer_store_dword {vT1}, {vZ[0]}, {sT4c}, 0 offen offset:128 sc1")
    a.label("K_S_NOTAG")
    srd(a,sD,"s72","s73",E*4)
    srd(a,sS,"s70","s71",E*4)
    a.c("every wave: six edges per lane, local edge = 384v + 128k + 2l + u; wave 7 also takes edges 3072 + l")
    DS_=D1[0:7]; SR_=D1[8:15]
    for k in range(3): a(f"buffer_load_dwordx2 {D1[2*k:2*k+2]}, {vT0}, {sD}, 0 offen offset:{512*k}{SNT}")
    for k in range(3): a(f"buffer_load_dwordx2 {D1[8+2*k:10+2*k]}, {vT0}, {sS}, 0 offen offset:{512*k}{SNT}")
    srd(a,sT4,"s64","s65",N*128)
    srd(a,sHw,"s64","s65",N*128)
    srd(a,sT4b,"s74","s75",145*128)
    a(f"s_cmp_eq_u32 {sWave}, 7")
    a("s_cbranch_scc1 K_S_W7")
    a(f"s_cmp_eq_u32 {sWave}, 4")
    a("s_cbranch_scc1 K_S_W4")
    a(f"s_cmp_lt_u32 {sWave}, 5")
    a("s_cbranch_scc1 K_S_COMMON")
    a.c("waves 5,6: private raw W2 copy + h rows for the source-node table")
    a(f"s_sub_u32 {sI}, {sWave}, 5")
    a(f"s_lshl_b32 {sC}, {sI}, 13")
    a(f"s_add_u32 {sC}, {sC}, {L_A2}")
    for i in range(8):
        a(f"s_add_u32 {sTmp}, {sC}, {i*1024}")
        a(f"s_mov_b32 m0, {sTmp}")
        a(f"s_mov_b32 {sTmp2}, {8192+i*1024}")
        a(f"buffer_load_dwordx4 {vL16}, {sT4b}, {sTmp2} offen lds")
    a(f"s_mul_i32 {sTmp}, s2, {NPW}")
    a(f"s_lshl_b32 {sTmp2}, {sI}, 5")
    a(f"s_add_u32 {sTmp}, {sTmp}, {sTmp2}")
    a(f"v_and_b32 {vT0}, 31, {vL}")
    a(f"v_add_u32 {vT0}, {sTmp}, {vT0}")
    a(f"v_lshl_add_u32 {vT0}, {vT0}, 7, {vHOFF}")
    for s_ in range(4): a(f"buffer_load_dwordx4 {HA[4*s_:4*s_+4]}, {vT0}, {sT4}, 0 offen offset:{32*s_}")
    a("s_branch K_S_COMMON")
    a.label("K_S_W4")
    a.c("wave 4: this workgroup's share of the L2 warm-up of pos and w_h (speed only)")
    a("s_load_dwordx2 s[82:83], s[0:1], 56")
    srd(a,sP,"s66","s67",N*6)
    a(f"s_lshr_b32 {sTmp}, s2, 3")
    a(f"s_and_b32 {sTmp}, {sTmp}, 31")
    a(f"s_mul_i32 {sTmp2}, {sTmp}, {19*128}")
    a(f"v_lshlrev_b32 {vT0}, 7, {vL}")
    a(f"v_add_u32 {vT1}, {sTmp2}, {vT0}")
    a(f"v_cmp_gt_u32 vcc, 19, {vL}")
    a(f"v_mov_b32 {vT2}, 0x40000000")
    a("s_waitcnt lgkmcnt(0)")
    a(f"v_cndmask_b32 {vT1}, {vT2}, {vT1}, vcc")
    a(f"buffer_load_dword {vDUM}, {vT1}, {sP}, 0 offen")
    srd(a,sT4b,"s82","s83",128*128)
    a(f"s_lshl_b32 {sTmp2}, {sTmp}, 9")
    a(f"v_add_u32 {vT1}, {sTmp2}, {vT0}")
    a(f"v_cmp_gt_u32 vcc, 4, {vL}")
    a("s_nop 1")
    a(f"v_cndmask_b32 {vT1}, {vT2}, {vT1}, vcc")
    a(f"buffer_load_dword {vDUM}, {vT1}, {sT4b}, 0 offen")
    a("s_branch K_S_COMMON")
    a.label("K_S_W7")
    a.c("wave 7: the last 64 edges, one-hot table, counters")
    a(f"s_mul_i32 {sTmp}, s2, {CH*4}")
    a(f"s_add_u32 {sTmp}, {sTmp}, {3072*4}")
    a(f"v_lshl_add_u32 {vT0}, {vL}, 2, {sTmp}")
    a(f"buffer_load_dword {D1[6]}, {vT0}, {sD}, 0 offen{SNT}")
    a(f"buffer_load_dword {D1[14]}, {vT0}, {sS}, 0 offen{SNT}")
    a(f"v_lshrrev_b32 {vT0}, 2, {vL}")
    a(f"v_and_b32 {vT1}, 3, {vL}")
    a(f"v_lshlrev_b32 {vT3}, 1, {vT1}")
    a(f"v_mov_b32 {vJ}, 0")
    a(f"v_cmp_eq_u32 vcc, {vT0}, {vT3}")
    a(f"v_mov_b32 {AD[0]}, 0x3f80")
    a(f"v_mov_b32 {AD[1]}, 0x3f800000")
    a(f"v_cndmask_b32 {vJ}, {vJ}, {AD[0]}, vcc")
    a(f"v_add_u32 {vT3}, 1, {vT3}")
    a(f"v_cmp_eq_u32 vcc, {vT0}, {vT3}")
    a("s_nop 1")
    a(f"v_cndmask_b32 {vJ}, {vJ}, {AD[1]}, vcc")
    a(f"v_cmp_eq_u32 vcc, 6, {vT0}")
    a(f"v_mov_b32 {AD[2]}, 0")
    a("s_nop 0")
    a(f"v_cndmask_b32 {AD[2]}, {AD[2]}, {AD[1]}, vcc")
    a(f"v_cmp_eq_u32 vcc, 3, {vT1}")
    a("s_nop 1")
    a(f"v_cndmask_b32 {vJ}, {vJ}, {AD[2]}, vcc")
    a(f"v_cmp_lt_u32 vcc, 31, {vL}")
    a(f"v_lshlrev_b32 {vT0}, 2, {vL}")
    a("s_nop 0")
    a(f"v_cndmask_b32 {vJ}, {vJ}, {vZ[0]}, vcc")
    a(f"ds_write_b32 {vT0}, {vJ}")
    a.label("K_S_COMMON")
    a(f"s_mov_b32 {sMaskE}, {'0' if opt.get('noE',0) else '0xffffffe0'}")
    a(f"s_mov_b32 {s128}, {0 if opt.get('noH',0) else 128}")
    a(f"s_mov_b32 {sK}, {KW}")
    a(f"s_mov_b32 {s3125}, 3125")
    a(f"s_mov_b32 {sMark}, {MARK}")
    a(f"s_mov_b32 {sCAPq}, {CAPX//4}")
    a(f"s_mov_b32 {sMode}, 0")
    a(f"s_mov_b32 {sChunk}, 0")
    a(f"v_mov_b32 {vOne}, 1")
    a(f"v_mov_b32 {v511}, 511")
    a(f"v_mov_b32 {aL1s}, 0x40000000")
    a(f"v_lshrrev_b32 {vT2}, 5, {vL}")
    a(f"v_bfe_u32 {vT0}, {vL}, 2, 2")
    a(f"v_lshl_add_u32 {vT0}, {vT2}, 3, {vT0}")
    a(f"v_lshlrev_b32 {vTRW}, 7, {vT0}")
    a(f"v_bfe_u32 {vT0}, {vL}, 4, 1")
    a(f"v_lshl_add_u32 {vTRW}, {vT0}, 5, {vTRW}")
    a(f"v_and_b32 {vT0}, 3, {vL}")
    a(f"v_lshl_add_u32 {vTRW}, {vT0}, 3, {vTRW}")
    a.c("LDS init: cell image = sentinel, counters = 0")
    for i in range(4): a(f"v_mov_b32 {WH[i]}, -1")
    a(f"v_lshlrev_b32 {vT0}, 6, v0")
    a(f"v_add_u32 {vT0}, {L_HST}, {vT0}")
    for i in range(4): a(f"ds_write_b128 {vT0}, {WH[0:4]} offset:{16*i}")
    a(f"v_and_b32 {vT0}, 0xff, v0")
    a(f"v_lshlrev_b32 {vT0}, 2, {vT0}")
    a(f"ds_write_b32 {vT0}, {vZ[0]} offset:{L_RES}")
    srd(a,sW,"s80","s81",WSB(opt))
    srd(a,sP,"s66","s67",N*6)
    srd(a,sE,"s68","s69",E*32)
    srd(a,sO,"s76","s77",OUT_BYTES)
    a(f"s_add_u32 {sB[0]}, s80, {BPT}")
    a(f"s_addc_u32 {sB[1]}, s81, 0")
    a(f"s_and_b32 {sB[1]}, {sB[1]}, 0xffff")
    a(f"s_mov_b32 {sB[2]}, {N*128}")
    a(f"s_mov_b32 {sB[3]}, 0x20000")
    if opt.get('tlb',0):
        a.c("wave 2 touches one line per 2 MiB of the buffers used later (address translation warm-up, speed only)")
        a(f"s_cmp_lg_u32 {sWave}, 2")
        a("s_cbranch_scc1 K_NOTLB")
        a(f"v_lshlrev_b32 {vT0}, 21, {vL}")
        a(f"v_mov_b32 {vT1}, 0x40000000")
        a(f"v_cmp_gt_u32 vcc, 13, {vL}")
        a("s_nop 1")
        a(f"v_cndmask_b32 {vT0}, {vT1}, {vT0}, vcc")
        a(f"buffer_load_dword {vDUM}, {vT0}, {sE}, 0 offen")
        a(f"buffer_load_dword {vDUM}, {vT0}, {sW}, 0 offen")
        a(f"buffer_load_dword {vDUM}, {vT0}, {sO}, 0 offen")
        a.label("K_NOTLB")
    a("s_waitcnt lgkmcnt(0)")
    a("s_barrier")
    a(f"s_mul_i32 {sTmp}, s2, {CH}")
    a(f"s_sub_u32 {sLim}, {E}, {sTmp}")
    a(f"s_min_u32 {sLim}, {sLim}, {CH}")
    B4=D2[0:7]; RC=M[0:7]; RK1=D2[8:15]
    def bin_edges(nrec, el_of, waitcnt, masked):
        if masked:
            for u in range(nrec):
                el_of(u,vT1)
                a(f"v_cmp_gt_u32 {sMask[u]}, {sLim}, {vT1}")
        if waitcnt is not None: a(f"s_waitcnt vmcnt({waitcnt})")
        stamp(a,opt,1)
        for u in range(nrec):
            d=DS_[u]; s_=SR_[u]
            a(f"v_mul_hi_u32 {vT2}, {d}, {sK}")
            el_of(u,vT1)
            a(f"v_lshl_or_b32 {RC[u]}, {s_}, 12, {vT1}")
            a(f"v_lshrrev_b32 {B4[u]}, 1, {vT2}")
            a(f"v_mad_u32_u24 {vT3}, {vT2}, {s3125}, {v511}")
            a(f"v_and_b32 {B4[u]}, 0x3fc, {B4[u]}")
            a(f"v_lshrrev_b32 {vT3}, 9, {vT3}")
            if masked: a(f"s_mov_b64 exec, {sMask[u]}")
            a(f"ds_add_rtn_u32 {RK1[u]}, {B4[u]}, {vOne} offset:{L_RES}")
            if masked: a("s_mov_b64 exec, -1")
            a(f"v_sub_u32 {vT3}, {d}, {vT3}")
            a(f"v_and_b32 {vT2}, 7, {vT2}")
            a(f"v_lshl_or_b32 {vT3}, {vT2}, 3, {vT3}")
            a(f"v_lshl_or_b32 {RC[u]}, {vT3}, 26, {RC[u]}")
        a(f"v_mov_b32 {vT3}, {L_HST}")
        a(f"v_mov_b32 {vJ}, {L_NRES+4}")
        for u in range(nrec):
            if not masked: a(f"s_waitcnt lgkmcnt({nrec-1})")
            elif u==0: a("s_waitcnt lgkmcnt(0)")
            a(f"v_cmp_gt_u32 vcc, 32, {RK1[u]}")
            a(f"v_lshlrev_b32 {vT1}, 3, {RK1[u]}")
            a(f"v_lshrrev_b32 {vT2}, 2, {RK1[u]}")
            a(f"v_and_b32 {vT1}, 0x78, {vT1}")
            a(f"v_lshl_add_u32 {AD[0]}, {B4[u]}, 5, {vT3}")
            a(f"v_and_or_b32 {vT1}, {vT2}, 4, {vT1}")
            a(f"v_add_u32 {vT1}, {vT1}, {AD[0]}")
            a(f"v_cndmask_b32 {vT1}, {vJ}, {vT1}, vcc")
            if masked: a(f"s_mov_b64 exec, {sMask[u]}")
            a(f"ds_write_b32 {vT1}, {RC[u]}")
            if masked: a("s_mov_b64 exec, -1")
    a.c("wait for this wave's edges (younger loads: 12 for waves 5,6; 2 for wave 4; the tag store of workgroup 0)")
    a(f"s_mul_i32 {sTmp}, {sWave}, 384")
    a(f"v_lshl_add_u32 {vT0}, {vL}, 1, {sTmp}")
    a(f"s_cmp_eq_u32 {sWave}, 4")
    a("s_cbranch_scc1 K_S_WT4")
    a(f"s_sub_u32 {sTmp}, {sWave}, 5")
    a(f"s_cmp_lt_u32 {sTmp}, 2")
    a("s_cbranch_scc1 K_S_WT56")
    if opt.get('tlb',0):
        a(f"s_cmp_eq_u32 {sWave}, 2")
        a("s_cbranch_scc1 K_S_WT2")
    a("s_waitcnt vmcnt(0)")
    a("s_branch K_S_WTD")
    if opt.get('tlb',0):
        a.label("K_S_WT2")
        a("s_waitcnt vmcnt(3)")
        a("s_branch K_S_WTD")
    a.label("K_S_WT4")
    a("s_waitcnt vmcnt(2)")
    a("s_branch K_S_WTD")
    a.label("K_S_WT56")
    a("s_waitcnt vmcnt(12)")
    a.label("K_S_WTD")
    def el6(u,r): a(f"v_add_u32 {r}, {128*(u>>1)+(u&1)}, {vT0}")
    def el7(u,r):
        if u<6: el6(u,r)
        else: a(f"v_add_u32 {r}, 3072, {vL}")
    a(f"s_cmp_lt_u32 {sLim}, {CH}")
    a("s_cbranch_scc1 K_S_APPM")
    a(f"s_cmp_eq_u32 {sWave}, 7")
    a("s_cbranch_scc1 K_S_APP7")
    bin_edges(6, el6, None, False)
    a("s_branch K_S_APPD")
    a.label("K_S_APP7")
    bin_edges(7, el7, None, False)
    a("s_branch K_S_APPD")
    a.label("K_S_APPM")
    a(f"s_cmp_eq_u32 {sWave}, 7")
    a("s_cbranch_scc1 K_S_APPM7")
    bin_edges(6, el6, None, True)
    a("s_branch K_S_APPD")
    a.label("K_S_APPM7")
    bin_edges(7, el7, None, True)
    a.label("K_S_APPD")
    a.c("wave 0 fetches the hand-off tag (one of its two copies); it is needed when the cell stores have left")
    a(f"s_and_b32 {sTagOff}, s2, 1")
    a(f"s_lshl_b32 {sTagOff}, {sTagOff}, 7")
    a(f"s_cmp_lg_u32 {sWave}, 0")
    a("s_cbranch_scc1 K_S_NOTAG1")
    a(f"buffer_load_dword {aE}, {vZ[0]}, {sT4c}, {sTagOff} offen sc1")
    a.label("K_S_NOTAG1")
    load_hwin()
    def raww():
        a.c("waves 4, 7: raw w_e -> LDS (needed after barrier C); wave 4 rebuilds the descriptor it lent to the w_h warm-up")
        a(f"s_lshl_b32 {sTmp}, 1, {sWave}")
        a(f"s_and_b32 {sTmp}, {sTmp}, 0x90")
        a("s_cbranch_scc0 K_S_NORAW")
        a("s_load_dwordx2 s[100:101], s[0:1], 40")
        a(f"s_cmp_eq_u32 {sWave}, 7")
        a(f"s_cselect_b32 {sTmp3}, {10*1024}, 0")
        a("s_waitcnt lgkmcnt(0)")
        srd(a,sT4b,"s100","s101",145*128)
        for i in range(10):
            a(f"s_add_u32 {sTmp2}, {sTmp3}, {i*1024}")
            if i==9: a(f"s_min_u32 {sTmp2}, {sTmp2}, {18*1024}")
            a(f"s_add_u32 {sTmp}, {sTmp2}, {L_RAWW}")
            a(f"s_mov_b32 m0, {sTmp}")
            a("s_nop 0")
            a(f"buffer_load_dwordx4 {vL16}, {sT4b}, {sTmp2} offen lds")
        a.label("K_S_NORAW")
    if not opt.get('rawlate',0): raww()
    a("s_waitcnt lgkmcnt(0)")
    stamp(a,opt,14) if not opt.get('dbgfill',0) else None
    a("s_barrier")
    stamp(a,opt,2)
    def setup_static():
        a(f"v_and_b32 {vT1}, 31, {vL}")
        a(f"v_lshrrev_b32 {vT2}, 5, {vL}")
        a(f"v_lshlrev_b32 {vT0}, 3, {vT2}")
        a(f"v_sub_u32 {vT0}, {vT1}, {vT0}")
        a(f"v_mov_b32 {AD[2]}, 0x3f80")
        a(f"v_mov_b32 {AD[3]}, 0x3f800000")
        for sp in range(2):
            for r in range(4):
                k0=16*sp+2*r
                a(f"v_cmp_eq_u32 vcc, {k0}, {vT0}")
                a(f"v_cmp_eq_u32 {sSave}, {k0+1}, {vT0}")
                a("s_nop 0")
                a(f"v_cndmask_b32 {ID[4*sp+r]}, {vZ[0]}, {AD[2]}, vcc")
                a(f"v_cndmask_b32 {ID[4*sp+r]}, {ID[4*sp+r]}, {AD[3]}, {sSave}")
        a(f"v_cmp_lt_u32 vcc, 31, {vL}")
        a("s_nop 1")
        for i in range(1,4): a(f"v_mov_b32 {ONE[i]}, 0")
        a(f"v_cndmask_b32 {ONE[0]}, {AD[2]}, {vZ[0]}, vcc")
        for i in range(3):
            a(f"v_mov_b32 {PS[i]}, 0"); a(f"v_mov_b32 {PD[i]}, 0")
        a.c("static per-lane addresses of the main loop (window offsets are added after the assignment)")
        a(f"v_and_b32 {vT1}, 31, {vL}")
        a(f"v_lshrrev_b32 {vT2}, 5, {vL}")
        a(f"v_mov_b32 {vT3}, {L_A2}")
        a(f"v_lshl_add_u32 {vE64}, {vT1}, 6, {vT3}")
        a(f"v_bfe_u32 {vT0}, {vL}, 2, 2")
        a(f"v_lshl_add_u32 {vT0}, {vT2}, 2, {vT0}")
        a(f"v_lshl_add_u32 {vTR}, {vT0}, 6, {vT3}")
        a(f"v_bfe_u32 {vT0}, {vL}, 4, 1")
        a(f"v_lshl_add_u32 {vTR}, {vT0}, 5, {vTR}")
        a(f"v_and_b32 {vT0}, 3, {vL}")
        a(f"v_lshl_add_u32 {vTR}, {vT0}, 3, {vTR}")
        a(f"s_lshl_b32 {sHST}, {sWave}, 12")
        a(f"s_add_u32 {sHST}, {sHST}, {L_HST}")
        for i in range(4): a(f"s_add_u32 {sM0[i]}, {sHST}, {1024*i}")
        a(f"v_and_b32 {vT0}, 3, {vT1}")
        a(f"v_bfe_u32 {vT3}, {vT1}, 4, 1")
        a(f"v_lshl_or_b32 {vT3}, {vT3}, 2, {vT0}")
        a(f"v_lshlrev_b32 {vT0}, 3, {vT0}")
        a(f"v_lshrrev_b32 {vJ}, 2, {vT1}")
        a(f"v_add_u32 {vT0}, {vT0}, {vJ}")
        a(f"v_lshl_add_u32 {vT0}, {vT0}, 7, {sHST}")
        for s_ in range(4):
            a(f"v_add_u32 {vJ}, {2*s_}, {vT2}")
            a(f"v_xor_b32 {vJ}, {vJ}, {vT3}")
            a(f"v_lshl_add_u32 {vHA[s_]}, {vJ}, 4, {vT0}")
        a(f"v_and_b32 {vT0}, 7, {vL}")
        a(f"v_lshlrev_b32 {vT3}, 2, {vT2}")
        a(f"v_xor_b32 {vT0}, {vT0}, {vT3}")
        for i in range(4):
            a(f"v_xor_b32 {vJ}, {i}, {vT0}")
            a(f"v_lshlrev_b32 {vKD[i]}, 4, {vJ}")
        a(f"s_mov_b32 {sCAP}, {CAP}")
        a(f"s_sub_u32 {sTgt}, 11, {sWave}")
        a(f"s_cmp_lt_u32 {sWave}, 4")
        a(f"s_cselect_b32 {sTgt}, {sWave}, {sTgt}")
        a(f"v_lshrrev_b32 {aPS}, 3, {vL}")
        a(f"v_and_b32 {aPD}, 7, {vL}")
        a(f"v_lshlrev_b32 {aOH}, 2, {aPS}")
        a(f"v_lshlrev_b32 {SS}, 2, {aPD}")
    a(f"s_cmp_gt_u32 {sWave}, 3")
    a("s_cbranch_scc1 K_S_NOCOPY")
    a.c("waves 0..3 copy the cell image out: eight 16 B pieces per thread")
    a(f"v_lshlrev_b32 {vT0}, 4, v0")
    a(f"v_add_u32 {vT0}, {L_HST}, {vT0}")
    a(f"v_lshrrev_b32 {vT1}, 3, v0")
    a(f"v_lshlrev_b32 {vT2}, 2, {vT1}")
    CP=[D1[4*k:4*k+4] for k in range(8)]
    for k in range(4):
        a(f"ds_read_b128 {CP[k]}, {vT0} offset:{4096*k}")
        a(f"ds_read_b32 {D2[k]}, {vT2} offset:{L_RES+128*k}")
    a(f"v_and_b32 {vT3}, 7, v0")
    a(f"v_cmp_eq_u32 vcc, 0, {vT3}")
    a(f"v_mov_b32 {vJ}, -1")
    CT=opt.get('ctrans',0)
    a(f"v_lshlrev_b32 {vT1}, {7 if CT else 15}, {vT1}")
    a(f"v_cndmask_b32_e64 {AD[1]}, -1, -2, vcc")
    a(f"v_lshl_add_u32 {vT1}, {vT3}, 4, {vT1}")
    a(f"s_lshl_b32 {sTmp}, s2, {15 if CT else 7}")
    for k in range(8):
        if k<4:
            a(f"ds_read_b128 {CP[k+4]}, {vT0} offset:{4096*(k+4)}")
            a(f"ds_read_b32 {D2[k+4]}, {vT2} offset:{L_RES+128*(k+4)}")
            a("s_waitcnt lgkmcnt(8)")
        else:
            a(f"s_waitcnt lgkmcnt({2*(7-k)})")
        a(f"v_cmp_lt_u32 vcc, 32, {D2[k]}")
        a(f"s_add_u32 {sTmp2}, {sTmp}, {k*32*(128 if CT else 32768)}")
        a("s_nop 0")
        a(f"v_cndmask_b32 {CP[k][0]}, {CP[k][0]}, {AD[1]}, vcc")
        for i in range(1,4): a(f"v_cndmask_b32 {CP[k][i]}, {CP[k][i]}, {vJ}, vcc")
        a(f"buffer_store_dwordx4 {CP[k]}, {vT1}, {sW}, {sTmp2} offen{ST}")
    a("s_branch K_S_STATIC")
    a.label("K_S_NOCOPY")
    a(f"s_sub_u32 {sTmp}, {sWave}, 5")
    a(f"s_cmp_lt_u32 {sTmp}, 2")
    a("s_cbranch_scc0 K_S_POS")
    a.c("waves 5,6: source-node table B' = -log2e * h @ W2 for 32 nodes")
    a(f"v_add_u32 {vT0}, {sC}, {vTRW}")
    a("s_waitcnt vmcnt(4)")
    for s_ in range(4):
        for x in range(2):
            for th in range(2):
                r=(s_*2+x)*4+2*th
                a(f"ds_read_b64_tr_b16 {D1[r:r+2]}, {vT0} offset:{s_*2048+th*512+x*64}")
    a("s_waitcnt lgkmcnt(0)")
    for x in range(2):
        for s_ in range(4):
            r=(s_*2+x)*4
            mfma(a,D2[16*x:16*x+16],D1[r:r+4],HA[4*s_:4*s_+4],"0" if s_==0 else D2[16*x:16*x+16])
    a(f"s_mul_i32 {sTmp}, {sI}, {32*144}")
    a(f"s_add_u32 {sTmp}, {sTmp}, {L_BST}")
    a(f"v_and_b32 {vT1}, 31, {vL}")
    a(f"v_mul_u32_u24 {vT1}, 144, {vT1}")
    a(f"v_lshrrev_b32 {vT2}, 5, {vL}")
    a(f"v_lshl_add_u32 {vT1}, {vT2}, 3, {vT1}")
    a(f"v_add_u32 {vT1}, {sTmp}, {vT1}")
    a(f"v_lshrrev_b32 {vT2}, 3, {vL}")
    a(f"v_mul_u32_u24 {vT3}, 144, {vT2}")
    a(f"v_and_b32 {vJ}, 7, {vL}")
    a(f"v_lshl_add_u32 {vT3}, {vJ}, 4, {vT3}")
    a(f"v_add_u32 {vT3}, {sTmp}, {vT3}")
    a(f"s_mov_b32 {sTmp2}, {NEG_LOG2E}")
    a.nop(4)
    for x in range(2):
        for q in range(16): a(f"v_mul_f32 {D2[16*x+q]}, {sTmp2}, {D2[16*x+q]}")
        for qq in range(4):
            b=16*x+4*qq
            a(f"v_cvt_pk_bf16_f32 {E01[0]}, {D2[b]}, {D2[b+1]}")
            a(f"v_cvt_pk_bf16_f32 {E01[1]}, {D2[b+2]}, {D2[b+3]}")
            a(f"ds_write_b64 {vT1}, {E01} offset:{x*64+qq*16}")
            a("s_nop 0")
    for i in range(4): a(f"ds_read_b128 {D1[4*i:4*i+4]}, {vT3} offset:{i*8*144}")
    a(f"s_lshl_b32 {sTmp2}, {sI}, 5")
    a(f"v_add_u32 {vT2}, {sTmp2}, {vT2}")
    a(f"s_mul_i32 {sTmp}, s2, {NPW}")
    a(f"v_add_u32 {vT0}, {sTmp}, {vT2}")
    a(f"v_lshlrev_b32 {vT1}, 7, {vT0}")
    a(f"v_lshl_add_u32 {vT1}, {vJ}, 4, {vT1}")
    a(f"v_mov_b32 {vJ}, 0x40000000")
    a("s_waitcnt lgkmcnt(0)")
    for i in range(4):
        a(f"v_add_u32 {vT3}, {8*i}, {vT2}")
        a(f"v_cmp_gt_u32 vcc, {NPW}, {vT3}")
        a(f"v_add_u32 {AD[0]}, {1024*i}, {vT1}")
        a("s_nop 0")
        a(f"v_cndmask_b32 {AD[0]}, {vJ}, {AD[0]}, vcc")
        a(f"buffer_store_dwordx4 {D1[4*i:4*i+4]}, {AD[0]}, {sB}, 0 offen{ST}")
    a("s_waitcnt vmcnt(4)")
    a("s_branch K_S_STATIC")
    a.label("K_S_POS")
    if opt.get('rawlate',0): raww()
    a.label("K_S_STATIC")
    setup_static()
    a.c("waves 0..3: every cell store has left; waves 4, 7: raw w_e / window rows landed; waves 5, 6 signal their rows later")
    a(f"s_sub_u32 {sTmp}, {sWave}, 5")
    a(f"s_cmp_lt_u32 {sTmp}, 2")
    a("s_cbranch_scc1 K_S_PREC")
    a("s_waitcnt vmcnt(0)")
    def have_tag(lbl):
        a(f"s_mov_b32 {sPoll}, 0")
        a.label(lbl)
        a(f"v_readfirstlane_b32 {sNonce}, {aE}")
        a("s_memrealtime s[100:101]")
        a("s_waitcnt lgkmcnt(0)")
        a(f"s_sub_u32 {sTmp}, s100, {sNonce}")
        a(f"s_add_u32 {sTmp}, {sTmp}, 1")
        a(f"s_cmp_lt_u32 {sTmp}, 2500")
        a(f"s_cselect_b32 {sTmp}, {sNonce}, 0")
        a(f"s_cmp_lg_u32 {sTmp}, 0")
        a(f"s_cbranch_scc1 {lbl}_OK")
        a(f"s_add_u32 {sPoll}, {sPoll}, 1")
        a(f"s_cmp_gt_u32 {sPoll}, 200000")
        a(f"s_cbranch_scc1 {lbl}_OK")
        a(f"s_cmp_gt_u32 {sPoll}, 1000")
        a(f"s_cselect_b32 {sTmp}, {sNonce}, 0")
        a(f"s_cmp_lg_u32 {sTmp}, 0")
        a(f"s_cbranch_scc1 {lbl}_OK")
        a("s_sleep 2")
        a(f"buffer_load_dword {aE}, {vZ[0]}, {sT4c}, {sTagOff} offen sc1")
        a("s_waitcnt vmcnt(0)")
        a(f"s_branch {lbl}")
        a.label(f"{lbl}_OK")
    a(f"s_cmp_lg_u32 {sWave}, 0")
    a("s_cbranch_scc1 K_S_PREC")
    have_tag("K_G_TAG")
    a(f"v_mov_b32 {vT0}, {sNonce}")
    a(f"ds_write_b32 {vZ[0]}, {vT0} offset:{L_NRES+8}")
    a.label("K_S_PREC")
    a("s_waitcnt lgkmcnt(0)")
    stamp(a,opt,15) if not opt.get('dbgfill',0) else None
    a("s_barrier")
    stamp(a,opt,3)
    a(f"s_cmp_lg_u32 {sWave}, 0")
    a("s_cbranch_scc1 K_G_NOT0")
    a.c("wave 0: signal this workgroup's cells")
    a(f"s_lshl_b32 {sTmp}, s2, 4")
    a(f"s_add_u32 {sTmp}, {sTmp}, {FLG}")
    a(f"v_mov_b32 {vT0}, {sNonce}")
    a(f"buffer_store_dword {vT0}, {vZ[0]}, {sW}, {sTmp} offen sc1")
    a("s_branch K_G_SETUP")
    a.label("K_G_NOT0")
    a(f"s_cmp_lt_u32 {sWave}, 4")
    a("s_cbranch_scc1 K_G_WH")
    a(f"s_sub_u32 {sTmp}, {sWave}, 5")
    a(f"s_cmp_lt_u32 {sTmp}, 2")
    a("s_cbranch_scc1 K_G_SETUP")
    a.c("waves 4, 7: pos table -> LDS (37 pieces each)")
    a(f"s_cmp_eq_u32 {sWave}, 7")
    a(f"s_cselect_b32 {sI}, {37*1024}, 0")
    for i in range(37):
        a(f"s_add_u32 {sTmp}, {sI}, {i*1024}")
        a(f"s_add_u32 {sTmp2}, {sTmp}, {L_POS}")
        a(f"s_mov_b32 m0, {sTmp2}")
        a("s_nop 0")
        a(f"buffer_load_dwordx4 {vL16}, {sP}, {sTmp} offen lds")
    a("s_branch K_G_SETUP")
    a.label("K_G_WH")
    a.c("waves 1..3: raw w_h -> staging area")
    a("s_load_dwordx2 s[64:65], s[0:1], 56")
    a(f"s_sub_u32 {sI}, {sWave}, 1")
    a("s_waitcnt lgkmcnt(0)")
    srd(a,sT4b,"s64","s65",128*128)
    for k in range(6):
        a(f"s_add_u32 {sTmp}, {sI}, {3*k}")
        a(f"s_min_u32 {sTmp}, {sTmp}, 15")
        a(f"s_lshl_b32 {sTmp}, {sTmp}, 10")
        a(f"s_add_u32 {sTmp2}, {sTmp}, {L_HST}")
        a(f"s_mov_b32 m0, {sTmp2}")
        a("s_nop 0")
        a(f"buffer_load_dwordx4 {vL16}, {sT4b}, {sTmp} offen lds")
    a.label("K_G_SETUP")
    a.c("operands from raw w_e: W1 (for A'), W4', wd'")
    W1=D2
    a(f"v_add_u32 {vT0}, {L_RAWW}, {vTRW}")
    for s_ in range(4):
        for x in range(2):
            for th in range(2):
                r=(s_*2+x)*4+2*th
                a(f"ds_read_b64_tr_b16 {W1[r:r+2]}, {vT0} offset:{s_*2048+th*512+x*64}")
    W4R=HA[0:8]
    for x in range(2):
        for th in range(2):
            a(f"ds_read_b64_tr_b16 {W4R[4*x+2*th:4*x+2*th+2]}, {vT0} offset:{129*128+th*512+x*64}")
    WD=M[0:2]
    a(f"v_mov_b32 {WD[0]}, 0")
    a(f"v_mov_b32 {WD[1]}, 0")
    a(f"v_and_b32 {vT1}, 31, {vL}")
    a(f"v_lshlrev_b32 {vT2}, 1, {vT1}")
    a(f"v_add_u32 {vT2}, {L_RAWW+128*128}, {vT2}")
    a(f"ds_read_u16_d16_hi {WD[0]}, {vT2}")
    a(f"ds_read_u16_d16_hi {WD[1]}, {vT2} offset:64")
    a("s_waitcnt lgkmcnt(0)")
    for x in range(2):
        for s_ in range(4):
            mfma(a,D1[16*x:16*x+16],HW[4*s_:4*s_+4],W1[(s_*2+x)*4:(s_*2+x)*4+4],"0" if s_==0 else D1[16*x:16*x+16])
    a(f"s_mov_b32 {sTmp}, {NEG_LOG2E}")
    for i in range(8):
        a(f"v_lshlrev_b32 {vT0}, 16, {W4R[i]}")
        a(f"v_and_b32 {vT2}, 0xffff0000, {W4R[i]}")
        a(f"v_mul_f32 {vT0}, {sTmp}, {vT0}")
        a(f"v_mul_f32 {vT2}, {sTmp}, {vT2}")
        a(f"v_cvt_pk_bf16_f32 {WE[i]}, {vT0}, {vT2}")
    a(f"v_cmp_lt_u32 vcc, 31, {vL}")
    for x in range(2):
        a(f"v_mul_f32 {WD[x]}, {sTmp}, {WD[x]}")
        a(f"v_cvt_pk_bf16_f32 {vT0}, {WD[x]}, {WD[x]}")
        a(f"v_and_b32 {vT0}, 0xffff0000, {vT0}")
        a(f"v_sub_f32 {vT2}, {WD[x]}, {vT0}")
        a(f"v_cvt_pk_bf16_f32 {vT2}, {vT2}, {vT2}")
        a(f"v_and_b32 {vT2}, 0xffff0000, {vT2}")
        a(f"v_cndmask_b32 {WD[x]}, {vT0}, {vT2}, vcc")
    a(f"s_cmp_lg_u32 {sWave}, 0")
    a("s_cbranch_scc1 K_G_NOEARLY")
    def poll_loads():
        a(f"s_mov_b32 {sTmp2}, {FLG}")
        for k in range(4): a(f"buffer_load_dword {(T[k] if opt.get('ppoll',0) else AD[k])}, {vL16}, {sW}, {sTmp2} offen offset:{1024*k} sc1")
        if opt.get('hpf',0):
            for hh in range(2):
                a(f"s_mov_b32 {sTmp2}, {FLG2+4096*hh}")
                for k in range(4): a(f"buffer_load_dword {A2R[4*hh+k]}, {vL16}, {sW}, {sTmp2} offen offset:{1024*k} sc1")
    poll_loads()
    a.label("K_G_NOEARLY")
    a(f"v_cmp_lt_u32 vcc, 31, {vL}")
    a(f"v_mov_b32 {vJ}, 0xffff")
    for x in range(2):
        for r in range(4):
            q0,q1=D1[16*x+2*r],D1[16*x+2*r+1]
            a(f"v_mul_f32 {q0}, {sTmp}, {q0}")
            a(f"v_mul_f32 {q1}, {sTmp}, {q1}")
            a(f"v_cvt_pk_bf16_f32 {vT0}, {q0}, {q1}")
            a(f"v_lshlrev_b32 {vT1}, 16, {vT0}")
            a(f"v_and_b32 {vT2}, 0xffff0000, {vT0}")
            a(f"v_sub_f32 {vT1}, {q0}, {vT1}")
            a(f"v_sub_f32 {vT2}, {q1}, {vT2}")
            a(f"v_cvt_pk_bf16_f32 {vT1}, {vT1}, {vT2}")
            a(f"v_cndmask_b32 {WA[4*x+r]}, {vT0}, {vT1}, vcc")
        a(f"v_bfi_b32 {WA[4*x+3]}, {vJ}, {WA[4*x+3]}, {WD[x]}")
    a(f"s_lshl_b32 {sTmp}, {sWave}, 11")
    a(f"s_add_u32 {sTmp}, {sTmp}, {L_A2}")
    a(f"v_lshl_add_u32 {vT0}, {vL}, 5, {sTmp}")
    a(f"ds_write_b128 {vT0}, {WA[0:4]}")
    a(f"ds_write_b128 {vT0}, {WA[4:8]} offset:16")
    for i in range(32): a(f"v_mov_b32 {D2[i]}, 0")
    a(f"s_sub_u32 {sTmp}, {sWave}, 5")
    a(f"s_cmp_lt_u32 {sTmp}, 2")
    a("s_cbranch_scc0 K_G_NOFLG2")
    a.c("waves 5,6: their rows have left -> signal them")
    a(f"ds_read_b32 {aE}, {vZ[0]} offset:{L_NRES+8}")
    a("s_waitcnt vmcnt(0) lgkmcnt(0)")
    a(f"v_readfirstlane_b32 {sNonce}, {aE}")
    a("s_nop 3")
    a(f"s_lshl_b32 {sTmp}, s2, 1")
    a(f"s_add_u32 {sTmp}, {sTmp}, {sWave}")
    a(f"s_sub_u32 {sTmp}, {sTmp}, 5")
    a(f"s_lshl_b32 {sTmp}, {sTmp}, 4")
    a(f"s_add_u32 {sTmp}, {sTmp}, {FLG2}")
    a(f"v_mov_b32 {vT0}, {sNonce}")
    a(f"buffer_store_dword {vT0}, {vZ[0]}, {sW}, {sTmp} offen sc1")
    a.label("K_G_NOFLG2")
    a(f"s_cmp_lg_u32 {sWave}, 0")
    a("s_cbranch_scc1 K_G_WAIT")
    if not opt.get('ppoll',0):
        a.c("wave 0: wait for all hand-offs (the first round of flag loads is already in flight)")
        a("s_branch K_G_POLL1")
        a.label("K_G_POLL")
        poll_loads()
        a.label("K_G_POLL1")
        a("s_waitcnt vmcnt(0)")
        PF=[AD[k] for k in range(4)]+([A2R[k] for k in range(8)] if opt.get('hpf',0) else [])
        a(f"v_cmp_eq_u32 {sAny}, {sNonce}, {PF[0]}")
        for r_ in PF[1:]:
            a(f"v_cmp_eq_u32 vcc, {sNonce}, {r_}")
            a("s_nop 1")
            a(f"s_and_b64 {sAny}, {sAny}, vcc")
        a(f"s_cmp_eq_u64 {sAny}, -1")
        a("s_cbranch_scc1 K_G_WAIT")
        a(f"s_add_u32 {sPoll}, {sPoll}, 1")
        a(f"s_cmp_lt_u32 {sPoll}, 200000")
        a("s_cbranch_scc1 K_G_POLL")
    else:
        a.c("wave 0: wait for all hand-offs; two rounds of flag loads are kept in flight")
        def pl(regs):
            for k in range(4): a(f"buffer_load_dword {regs[k]}, {vL16}, {sW}, {sI} offen offset:{1024*k} sc1")
        def chk(regs):
            a(f"v_cmp_eq_u32 {sAny}, {sNonce}, {regs[0]}")
            for r_ in regs[1:]:
                a(f"v_cmp_eq_u32 vcc, {sNonce}, {r_}")
                a("s_nop 1")
                a(f"s_and_b64 {sAny}, {sAny}, vcc")
            a(f"s_cmp_eq_u64 {sAny}, -1")
            a("s_cbranch_scc1 K_G_SEEN")
        SA=[T[k] for k in range(4)]; SB=[T[4+k] for k in range(4)]
        a(f"s_mov_b32 {sI}, {FLG}")
        a.label("K_G_POLL")
        pl(SB)
        a("s_waitcnt vmcnt(4)")
        chk(SA)
        pl(SA)
        a("s_waitcnt vmcnt(4)")
        chk(SB)
        a(f"s_add_u32 {sPoll}, {sPoll}, 1")
        a(f"s_cmp_lt_u32 {sPoll}, 100000")
        a("s_cbranch_scc1 K_G_POLL")
        a.label("K_G_SEEN")
        a("s_waitcnt lgkmcnt(0)")
        a("s_branch K_G_GO")
    a.label("K_G_WAIT")
    a.c("waves 4 and 7 keep their pos pieces in flight: their cell loads return behind them")
    a(f"s_lshl_b32 {sTmp}, 1, {sWave}")
    a(f"s_and_b32 {sTmp}, {sTmp}, 0x90")
    a("s_cbranch_scc1 K_G_WAIT47")
    a("s_waitcnt vmcnt(0)")
    a.label("K_G_WAIT47")
    a("s_waitcnt lgkmcnt(0)")
    a.label("K_G_GO")
    for _ in range(opt.get('delay',0)): a("s_sleep 32")
    a("s_barrier")
    stamp(a,opt,4)
    RECP=D1[0:16]; REC=[RECP[2*i] for i in range(8)]+[RECP[2*i+1] for i in range(8)]; WAD=D1[16:32]; RK=HA
    a.c("cell records of this bin: pair s holds slots m and 16+m (m = l&15) of cell 32s+4v+(l>>4)")
    if not CT:
        a(f"s_lshl_b32 {sTmp}, s2, 15")
        a(f"s_lshl_b32 {sTmp2}, {sWave}, 9")
        a(f"s_add_u32 {sTmp}, {sTmp}, {sTmp2}")
        a(f"v_lshl_add_u32 {vT0}, {vL}, 3, {sTmp}")
    else:
        a(f"s_lshl_b32 {sTmp}, s2, 7")
        a(f"s_lshl_b32 {sTmp2}, {sWave}, 17")
        a(f"s_add_u32 {sTmp}, {sTmp}, {sTmp2}")
        a(f"v_lshrrev_b32 {vT0}, 4, {vL}")
        a(f"v_lshlrev_b32 {vT0}, 15, {vT0}")
        a(f"v_and_b32 {vT1}, 15, {vL}")
        a(f"v_lshl_add_u32 {vT0}, {vT1}, 3, {vT0}")
        a(f"v_add_u32 {vT0}, {sTmp}, {vT0}")
    ROT=opt.get('rot',0)
    if ROT==1: a(f"s_getreg_b32 {sRot}, hwreg(HW_REG_XCC_ID, 0, 4)")
    elif ROT==2: a(f"s_and_b32 {sRot}, s2, 7")
    elif ROT==3:
        a(f"s_getreg_b32 {sRot}, hwreg(HW_REG_XCC_ID, 0, 4)")
        a(f"s_and_b32 {sRot}, {sRot}, 3")
        a(f"s_lshl_b32 {sRot}, {sRot}, 1")
    else: a(f"s_mov_b32 {sRot}, 0")
    def pair_index(dst,s_):
        a(f"s_add_u32 {dst}, {sRot}, {s_}")
        a(f"s_and_b32 {dst}, {dst}, 7")
    for s_ in range(8):
        pair_index(sTmp,s_)
        a(f"s_lshl_b32 {sTmp}, {sTmp}, {20 if CT else 12}")
        a(f"buffer_load_dwordx2 {RECP[2*s_:2*s_+2]}, {vT0}, {sW}, {sTmp} offen{LD}")
    a(f"v_lshlrev_b32 {vT2}, 1, {vL}")
    a(f"v_and_b32 {vT2}, 62, {vT2}")
    a("s_load_dwordx2 s[98:99], s[0:1], 48")
    a.c("node-update weights (transposed reads of raw w_h), waves 0..3 use them")
    a(f"s_and_b32 {sTmp}, {sWave}, 1")
    a(f"s_lshl_b32 {sTmp}, {sTmp}, 6")
    a(f"s_add_u32 {sTmp}, {sTmp}, {L_HST}")
    a(f"v_add_u32 {vT1}, {sTmp}, {vTRW}")
    for s_ in range(8):
        for th in range(2):
            a(f"ds_read_b64_tr_b16 {WH[4*s_+2*th:4*s_+2*th+2]}, {vT1} offset:{s_*2048+th*512}")
            if (2*s_+th)==7: a("s_waitcnt lgkmcnt(0)")
    srd(a,sT4,"s98","s99",128)
    a(f"v_mov_b32 {WX[0]}, 0")
    a(f"v_mov_b32 {WX[1]}, 0")
    a(f"buffer_load_short_d16_hi {WX[0]}, {vT2}, {sT4}, 0 offen")
    a(f"buffer_load_short_d16_hi {WX[1]}, {vT2}, {sT4}, 0 offen offset:64")
    a("s_waitcnt vmcnt(2)")
    stamp(a,opt,5)
    a(f"s_mov_b64 {sAny}, 0")
    for s_ in range(16):
        a(f"v_cmp_gt_u32 {sMask[s_]}, {sMark}, {REC[s_]}")
        if s_<8:
            a(f"v_cmp_eq_u32 vcc, {sMark}, {REC[s_]}")
        a(f"v_lshrrev_b32 {WAD[s_]}, 27, {REC[s_]}")
        a(f"v_and_b32 {WAD[s_]}, 0x1c, {WAD[s_]}")
        if s_<8: a(f"s_or_b64 {sAny}, {sAny}, vcc")
    order=[x for p in range(8) for x in (p,8+p)]
    for n_,s_ in enumerate(order):
        a(f"s_mov_b64 exec, {sMask[s_]}")
        if s_>=8: a(f"s_cbranch_execz K2_A{s_}")
        a(f"ds_add_rtn_u32 {RK[s_]}, {WAD[s_]}, {vOne} offset:{L_CNT}")
        if s_>=8: a.label(f"K2_A{s_}")
        if n_==7:
            a("s_waitcnt lgkmcnt(4)")
    a("s_mov_b64 exec, -1")
    FL=A2R
    def flg2_loads():
        a(f"s_mov_b32 {sTmp2}, {FLG2}")
        for k in range(4): a(f"buffer_load_dword {FL[k]}, {vL16}, {sW}, {sTmp2} offen offset:{1024*k} sc1")
        a(f"s_mov_b32 {sTmp2}, {FLG2+4096}")
        for k in range(4): a(f"buffer_load_dword {FL[4+k]}, {vL16}, {sW}, {sTmp2} offen offset:{1024*k} sc1")
    a(f"s_cmp_lg_u32 {sWave}, {99 if opt.get('hpf',0) else 1}")
    a("s_cbranch_scc1 K2_NOF2A")
    a.c("wave 1: flags of the source-node table (checked before barrier 2)")
    flg2_loads()
    a(f"ds_read_b32 {aE}, {vZ[0]} offset:{L_NRES+8}")
    a.label("K2_NOF2A")
    a(f"s_lshl_b32 {sTmp}, {sWave}, 2")
    a(f"v_lshrrev_b32 {vT0}, 4, {vL}")
    a(f"v_add_u32 {vT0}, {sTmp}, {vT0}")
    a(f"v_mul_u32_u24 {vT0}, {CH}, {vT0}")
    NE=opt.get('epf',1)
    def epf_block():
        if NE:
            a.c("L2 warm-up of the e_attr lines of the first records (speed only; results are never read)")
            a(f"s_lshl_b32 {sTmp}, {sWave}, 2")
            a(f"v_lshrrev_b32 {vT0}, 4, {vL}")
            a(f"v_add_u32 {vT0}, {sTmp}, {vT0}")
            a(f"v_mul_u32_u24 {vT0}, {CH}, {vT0}")
            a(f"v_mov_b32 {vT2}, 0x2000000")
            RKF=opt.get('rkf',0)
            if RKF: a("s_waitcnt lgkmcnt(0)")
            for k in range(NE):
                a(f"v_cmp_gt_u32 vcc, {sMark}, {REC[k]}")
                if RKF:
                    a(f"v_cmp_gt_u32 {sSave}, {RKF}, {RK[k]}")
                a(f"v_and_b32 {vT1}, 0xfff, {REC[k]}")
                pair_index(sTmp,k)
                a(f"s_mul_i32 {sTmp}, {sTmp}, {32*CH}")
                if RKF: a(f"s_and_b64 vcc, vcc, {sSave}")
                a(f"v_add3_u32 {vT1}, {vT1}, {vT0}, {sTmp}")
                if opt.get('hpf',0): a(f"v_bfe_u32 {vT3}, {REC[k]}, 12, 14")
                else: a("s_nop 0")
                a(f"v_cndmask_b32 {vT1}, {vT2}, {vT1}, vcc")
                a(f"v_lshlrev_b32 {vT1}, 5, {vT1}")
                a(f"buffer_load_dword {vDUM}, {vT1}, {sE}, 0 offen")
                if opt.get('hpf',0):
                    a(f"v_cndmask_b32 {vT3}, {vT2}, {vT3}, vcc")
                    a(f"v_lshlrev_b32 {vT3}, 7, {vT3}")
                    a(f"buffer_load_dword {vDUM}, {vT3}, {sB}, 0 offen{HLD}")
    if opt.get('epfpos',1)==1:
        epf_block()
        a(f"s_lshl_b32 {sTmp}, {sWave}, 2")
        a(f"v_lshrrev_b32 {vT0}, 4, {vL}")
        a(f"v_add_u32 {vT0}, {sTmp}, {vT0}")
        a(f"v_mul_u32_u24 {vT0}, {CH}, {vT0}")
    a(f"v_mov_b32 {vT1}, {L_L0}")
    a(f"v_mov_b32 {vT2}, {L_L1}")
    a("s_waitcnt lgkmcnt(0)")
    for s_ in order:
        a(f"s_mov_b64 exec, {sMask[s_]}")
        if s_>=8: a(f"s_cbranch_execz K2_B{s_}")
        pair_index(sTmp,s_&7)
        a(f"s_mul_i32 {sTmp}, {sTmp}, {32*CH}")
        a(f"v_min_u32 {RK[s_]}, {CAPX-1}, {RK[s_]}")
        a(f"v_and_b32 {vT3}, 0xfff, {REC[s_]}")
        a(f"v_mad_u32_u24 {RK[s_]}, {WAD[s_]}, {sCAPq}, {RK[s_]}")
        a(f"v_add3_u32 {vT3}, {vT3}, {vT0}, {sTmp}")
        a(f"v_bfe_u32 {vJ}, {REC[s_]}, 26, 3")
        a(f"v_lshl_add_u32 {AD[0]}, {RK[s_]}, 2, {vT1}")
        a(f"v_lshl_or_b32 {vT3}, {vT3}, 5, {vJ}")
        a(f"v_lshl_add_u32 {AD[1]}, {RK[s_]}, 1, {vT2}")
        a(f"v_bfe_u32 {vJ}, {REC[s_]}, 12, 14")
        a(f"ds_write_b32 {AD[0]}, {vT3}")
        a(f"ds_write_b16 {AD[1]}, {vJ}")
        if s_>=8: a.label(f"K2_B{s_}")
    a("s_mov_b64 exec, -1")
    if opt.get('epfpos',1)==0: epf_block()
    a.c("overflowed cells -> rescan list (rare)")
    a(f"s_cmp_eq_u64 {sAny}, 0")
    a("s_cbranch_scc1 K2_NOMARK")
    a(f"v_lshrrev_b32 {vT0}, 4, {vL}")
    a(f"s_lshl_b32 {sTmp}, {sWave}, 2")
    a(f"v_add_u32 {vT0}, {sTmp}, {vT0}")
    a(f"v_mov_b32 {vT1}, {L_NRES}")
    for s_ in range(8):
        a(f"v_cmp_eq_u32 vcc, {sMark}, {REC[s_]}")
        a(f"s_and_saveexec_b64 {sSave}, vcc")
        a(f"s_cbranch_execz K2_MK{s_}")
        a(f"ds_add_rtn_u32 {vT2}, {vT1}, {vOne}")
        pair_index(sTmp,s_)
        a(f"s_lshl_b32 {sTmp}, {sTmp}, 5")
        a(f"v_add_u32 {vT3}, {sTmp}, {vT0}")
        a("s_waitcnt lgkmcnt(0)")
        a(f"v_lshlrev_b32 {vT2}, 2, {vT2}")
        a(f"ds_write_b32 {vT2}, {vT3} offset:{L_RES}")
        a.label(f"K2_MK{s_}")
        a(f"s_mov_b64 exec, {sSave}")
    a.label("K2_NOMARK")
    a("s_load_dwordx2 s[64:65], s[0:1], 0")
    a(f"s_waitcnt vmcnt({opt.get('epf',1)*(2 if opt.get('hpf',0) else 1)}) lgkmcnt(0)")
    a(f"s_cmp_lg_u32 {sWave}, {99 if opt.get('hpf',0) else 1}")
    a("s_cbranch_scc1 K2_NOF2B")
    a(f"v_readfirstlane_b32 {sNonce}, {aE}")
    a(f"s_mov_b32 {sPoll}, 0")
    a("s_nop 1")
    a.label("K2_F2CHK")
    a(f"v_cmp_eq_u32 {sAny}, {sNonce}, {FL[0]}")
    for k in range(1,8):
        a(f"v_cmp_eq_u32 vcc, {sNonce}, {FL[k]}")
        a("s_nop 1")
        a(f"s_and_b64 {sAny}, {sAny}, vcc")
    a(f"s_cmp_eq_u64 {sAny}, -1")
    a("s_cbranch_scc1 K2_NOF2B")
    a(f"s_add_u32 {sPoll}, {sPoll}, 1")
    a(f"s_cmp_gt_u32 {sPoll}, 200000")
    a("s_cbranch_scc1 K2_NOF2B")
    flg2_loads()
    a("s_waitcnt vmcnt(0)")
    a("s_branch K2_F2CHK")
    a.label("K2_NOF2B")
    srd(a,sHs,"s64","s65",N*128)
    a(f"s_mov_b32 {sTmp}, {NEG_LN2}")
    a(f"v_mul_f32 {WX[0]}, {sTmp}, {WX[0]}")
    a(f"v_mul_f32 {WX[1]}, {sTmp}, {WX[1]}")
    stamp(a,opt,6)
    a("s_barrier")
    stamp(a,opt,7)
    a.c("window sizes (lane = pair i,k) and the rescan count")
    a(f"v_mov_b32 {vT0}, {L_NRES}")
    a(f"ds_read_b32 {vT1}, {vT0}")
    a(f"ds_read_b32 {vT2}, {aOH} offset:{L_CNT}")
    a(f"ds_read_b32 {vT3}, {SS} offset:{L_CNT}")
    a("s_waitcnt lgkmcnt(0)")
    a(f"v_readfirstlane_b32 {sNR}, {vT1}")
    a(f"v_min_u32 {vT0}, 0xffffff, {vT2}")
    a(f"v_min_u32 {vJ}, 0xffffff, {vT3}")
    a(f"s_cmp_eq_u32 {sNR}, 0")
    a("s_cbranch_scc1 K2_CHECK")
    a(f"s_min_u32 {sNR}, {sNR}, 256")
    a(f"s_mov_b32 {sI}, 0")
    a.label("K2_RESCAN_I")
    a(f"s_lshl_b32 {sTmp}, {sI}, 2")
    a(f"s_add_u32 {sTmp}, {sTmp}, {L_RES}")
    a(f"v_mov_b32 {vT0}, {sTmp}")
    a(f"ds_read_b32 {vT1}, {vT0}")
    a("s_waitcnt lgkmcnt(0)")
    a(f"v_readfirstlane_b32 {sWsrc}, {vT1}")
    a("s_nop 3")
    a(f"s_min_u32 {sWsrc}, {sWsrc}, 255")
    a(f"s_mov_b32 {sC}, 0")
    a.label("K2_RESCAN_C")
    def append_raw(lim_local):
        a(f"v_lshlrev_b32 {vT1}, 2, {vT0}")
        a(f"buffer_load_dword {AD[0]}, {vT1}, {sD}, 0 offen")
        a(f"buffer_load_dword {AD[1]}, {vT1}, {sS}, 0 offen")
        a("s_waitcnt vmcnt(0)")
        a(f"v_mul_hi_u32 {vT2}, {AD[0]}, {sK}")
        a(f"v_lshrrev_b32 {vT3}, 3, {vT2}")
        a(f"v_cmp_eq_u32 vcc, s2, {vT3}")
        a("s_nop 1")
        a(f"s_and_b64 vcc, vcc, {sAny}")
        a(f"s_and_saveexec_b64 {sSave}, vcc")
        a(f"s_cbranch_execz {lim_local}")
        a(f"v_mad_u32_u24 {vT3}, {vT2}, {s3125}, {v511}")
        a(f"v_and_b32 {vT2}, 7, {vT2}")
        a(f"v_lshrrev_b32 {vT3}, 9, {vT3}")
        a(f"v_lshlrev_b32 {vT2}, 2, {vT2}")
        a(f"v_sub_u32 {vT3}, {AD[0]}, {vT3}")
        a(f"ds_add_rtn_u32 {AD[2]}, {vT2}, {vOne} offset:{L_CNT}")
        a(f"v_lshl_or_b32 {vT0}, {vT0}, 5, {vT3}")
        a("s_waitcnt lgkmcnt(0)")
        a(f"v_min_u32 {AD[2]}, {CAPX-1}, {AD[2]}")
        a(f"v_mad_u32_u24 {AD[2]}, {vT2}, {sCAPq}, {AD[2]}")
        a(f"v_mov_b32 {vT2}, {L_L0}")
        a(f"v_mov_b32 {vT3}, {L_L1}")
        a(f"v_lshl_add_u32 {vT2}, {AD[2]}, 2, {vT2}")
        a(f"v_lshl_add_u32 {vT3}, {AD[2]}, 1, {vT3}")
        a(f"ds_write_b32 {vT2}, {vT0}")
        a(f"ds_write_b16 {vT3}, {AD[1]}")
        a.label(lim_local)
        a(f"s_mov_b64 exec, {sSave}")
    a(f"s_lshl_b32 {sTmp}, {sC}, 9")
    a(f"v_add_u32 {vT1}, {sTmp}, v0")
    a(f"s_mul_i32 {sTmp2}, {sWsrc}, {CH}")
    a(f"v_add_u32 {vT0}, {sTmp2}, {vT1}")
    a(f"v_cmp_gt_u32 vcc, {CH}, {vT1}")
    a(f"s_mov_b32 {sTmp}, {E}")
    a(f"v_cmp_gt_u32 {sAny}, {sTmp}, {vT0}")
    a("s_nop 1")
    a(f"s_and_b64 {sAny}, {sAny}, vcc")
    append_raw("K2_RA1")
    a(f"s_add_u32 {sC}, {sC}, 1")
    a(f"s_cmp_lt_u32 {sC}, 7")
    a("s_cbranch_scc1 K2_RESCAN_C")
    a(f"s_add_u32 {sI}, {sI}, 1")
    a(f"s_cmp_lt_u32 {sI}, {sNR}")
    a("s_cbranch_scc1 K2_RESCAN_I")
    a("s_waitcnt lgkmcnt(0)")
    a("s_barrier")
    a(f"ds_read_b32 {vT2}, {aOH} offset:{L_CNT}")
    a(f"ds_read_b32 {vT3}, {SS} offset:{L_CNT}")
    a("s_waitcnt lgkmcnt(0)")
    a(f"v_min_u32 {vT0}, 0xffffff, {vT2}")
    a(f"v_min_u32 {vJ}, 0xffffff, {vT3}")
    a.label("K2_CHECK")
    a.c("window assignment by size rank")
    a(f"v_lshl_or_b32 {vT0}, {vT0}, 3, {aPS}")
    a(f"v_lshl_or_b32 {vJ}, {vJ}, 3, {aPD}")
    a(f"v_cmp_lt_u32 {sAny}, {sCAP}, {vT3}")
    a(f"v_cmp_gt_u32 vcc, {vJ}, {vT0}")
    a(f"s_mov_b32 {sWin}, 0")
    a("s_nop 2")
    for i in range(8):
        a(f"s_bfe_u32 {sTmp}, {'vcc_lo' if i<4 else 'vcc_hi'}, {(8<<16)|(8*(i&3))}")
        a(f"s_bcnt1_i32_b32 {sTmp}, {sTmp}")
        a(f"s_cmp_eq_u32 {sTmp}, {sTgt}")
        a(f"s_cselect_b32 {sWin}, {i}, {sWin}")
    if opt.get('nobal',0): a(f"s_mov_b32 {sWin}, {sWave}")
    a(f"s_lshl_b32 {sTmp}, {sWin}, 3")
    a(f"v_readlane_b32 {sCnt}, {vT2}, {sTmp}")
    geometry(sWin)
    a(f"s_lshl_b32 {sTmp}, {sWin}, 11")
    a(f"v_add_u32 {vE64}, {sTmp}, {vE64}")
    a(f"v_add_u32 {vTR}, {sTmp}, {vTR}")
    a(f"s_add_u32 {sTmp}, {sTmp}, {L_A2}")
    a(f"v_lshl_add_u32 {vT0}, {vL}, 5, {sTmp}")
    a(f"ds_read_b128 {WA[0:4]}, {vT0}")
    a(f"ds_read_b128 {WA[4:8]}, {vT0} offset:16")
    for i in range(4): a(f"v_mov_b32 {A2R[i]}, 0")
    a(f"ds_write_b128 {vT0}, {A2R[0:4]}")
    a(f"ds_write_b128 {vT0}, {A2R[0:4]} offset:16")
    a(f"s_cmp_eq_u64 {sAny}, 0")
    a("s_cbranch_scc1 K2_MAIN")
    a.c("generic (slow) mode: raw scan of all edges, 512 per round")
    a(f"s_mov_b32 {sMode}, 1")
    a.label("K2_GEN")
    a("s_barrier")
    a(f"s_cmp_lg_u32 {sWave}, 0")
    a("s_cbranch_scc1 K2_GEN1")
    a(f"v_and_b32 {vT0}, 7, {vL}")
    a(f"v_lshlrev_b32 {vT0}, 2, {vT0}")
    a(f"ds_write_b32 {vT0}, {vZ[0]} offset:{L_CNT}")
    a("s_waitcnt lgkmcnt(0)")
    a.label("K2_GEN1")
    a("s_barrier")
    a(f"s_lshl_b32 {sTmp}, {sChunk}, 9")
    a(f"v_add_u32 {vT0}, {sTmp}, v0")
    a(f"s_mov_b32 {sTmp}, {E}")
    a(f"v_cmp_gt_u32 {sAny}, {sTmp}, {vT0}")
    a("s_nop 1")
    append_raw("K2_RA2")
    a("s_waitcnt lgkmcnt(0)")
    a("s_barrier")
    a(f"s_lshl_b32 {sTmp}, {sWin}, 2")
    a(f"v_mov_b32 {vT0}, {sTmp}")
    a(f"ds_read_b32 {vT1}, {vT0} offset:{L_CNT}")
    a("s_waitcnt lgkmcnt(0)")
    a(f"v_readfirstlane_b32 {sCnt}, {vT1}")
    a("s_nop 3")
    a.label("K2_MAIN")
    if opt.get('dbgfill',0): stamp(a,opt,14)
    a(f"s_min_u32 {sCnt}, {sCnt}, {CAP}")
    a(f"s_add_u32 {sNT}, {sCnt}, 31")
    a(f"s_lshr_b32 {sNT}, {sNT}, 5")
    a(f"s_cmp_eq_u32 {sNT}, 0")
    a("s_cbranch_scc1 K2_MAIN_DONE")
    a(f"s_mul_i32 {sTmp}, {sWin}, {CAPX*4}")
    a(f"s_add_u32 {sTmp}, {sTmp}, {L_L0}")
    a(f"s_mul_i32 {sTmp2}, {sWin}, {CAPX*2}")
    a(f"s_add_u32 {sTmp2}, {sTmp2}, {L_L1}")
    a(f"v_and_b32 {vT0}, 31, {vL}")
    a(f"v_lshl_add_u32 {aL0}, {vT0}, 2, {sTmp}")
    a(f"v_lshl_add_u32 {aL1s}, {vT0}, 1, {sTmp2}")
    a(f"v_lshrrev_b32 {vT0}, 3, {vL}")
    a(f"v_lshl_add_u32 {aL1d}, {vT0}, 3, {sTmp2}")
    def pad():
        a(f"v_add_u32 {vT0}, {sCnt}, {vL}")
        a(f"v_lshl_add_u32 {vT1}, {vT0}, 2, {sTmp}")
        a(f"v_lshl_add_u32 {vT2}, {vT0}, 1, {sTmp2}")
        a(f"v_mov_b32 {vJ}, 7")
        a(f"ds_write_b32 {vT1}, {vJ}")
        a(f"ds_write_b16 {vT2}, {vZ[0]}")
        a(f"ds_write_b32 {vT1}, {vJ} offset:256")
        a(f"ds_write_b16 {vT2}, {vZ[0]} offset:128")
    def first_reads():
        a(f"ds_read_b32 {vT3}, {aL0}")
        a(f"ds_read_b64 {SD}, {aL1d}")
        a(f"ds_read_b32 {LE[1]}, {aL0} offset:128")
        a(f"ds_read_b32 {LE[0]}, {aL0} offset:256")
        a(f"ds_read_u16 {SS}, {aL1s}")
    a(f"s_cmp_ge_u32 {sCnt}, 96")
    a("s_cbranch_scc1 K2_FILL_BIG")
    pad()
    first_reads()
    a("s_waitcnt lgkmcnt(0)")
    a("s_branch K2_FILL")
    a.label("K2_FILL_BIG")
    first_reads()
    pad()
    a("s_waitcnt lgkmcnt(4)")
    a.label("K2_FILL")
    ENT=['',' nt',' sc1',' sc0 sc1',' sc0',' sc0 nt',' sc1 nt',' sc0 sc1 nt'][opt.get('e_nt',0)]
    def E_addr(le): a(f"v_and_or_b32 {aE}, {le}, {sMaskE}, {vHOFF}")
    def E_load(p): a(f"buffer_load_dwordx4 {EA[p]}, {aE}, {sE}, 0 offen{ENT}")
    def H_addr():
        if opt.get('hmask',0):
            a(f"v_and_b32 {SD[0]}, 0x03ff03ff, {SD[0]}"); a(f"v_and_b32 {SD[1]}, 0x03ff03ff, {SD[1]}")
        for i in range(4):
            a(f"v_mad_u32_u16 {AD[i]}, {SD[i>>1]}, {s128}, {vKD[i]}"+(" op_sel:[1,0,0,0]" if i&1 else ""))
    def H_load(i):
        a(f"s_mov_b32 m0, {sM0[i]}")
        a("s_nop 0")
        a(f"buffer_load_dwordx4 {AD[i]}, {sB}, 0 offen{HLD} lds")
    def P_addr(le,par):
        a(f"v_and_b32 {vJ}, 7, {le}")
        a(f"v_mul_u32_u24 {aPS}, 6, {SS}")
        a(f"v_mad_u32_u24 {aPD}, {vJ}, 6, {sN06}")
        a(f"v_lshlrev_b32 {aOH}, 4, {vJ}")
        a(f"v_lshl_add_u32 {aA2[par]}, {vJ}, 3, {vE64}")
    def P_reads():
        for c in range(3): a(f"ds_read_u16_d16_hi {PS[c]}, {aPS} offset:{L_POS+2*c}")
        for c in range(3): a(f"ds_read_u16_d16_hi {PD[c]}, {aPD} offset:{L_POS+2*c}")
        a(f"ds_read_b128 {OH}, {aOH} offset:{L_OH}")
    def P_calc_list(par):
        return [f"v_sub_f32 {DX[0]}, {PD[0]}, {PS[0]}", f"v_sub_f32 {DX[1]}, {PD[1]}, {PS[1]}", f"v_sub_f32 {DX[2]}, {PD[2]}, {PS[2]}",
                f"v_mul_f32 {DD}, {DX[0]}, {DX[0]}", f"v_fmac_f32 {DD}, {DX[1]}, {DX[1]}", f"v_fmac_f32 {DD}, {DX[2]}, {DX[2]}",
                f"v_cvt_pk_bf16_f32 {E01[0]}, 1.0, {DX[0]}", f"v_cvt_pk_bf16_f32 {E01[1]}, {DX[1]}, {DX[2]}",
                f"v_cvt_pk_bf16_f32 {OH[3]}, {OH[3]}, {DD}",
                f"ds_write_b64 {aA2[par]}, {E01}"]
    def first_loads():
        E_addr(vT3); E_load(0)
        H_addr()
        for i in range(4): H_load(i)
        E_addr(LE[1]); E_load(1)
    def first_prep(readsd):
        P_addr(vT3,0); P_reads()
        if readsd:
            a(f"ds_read_b64 {SD}, {aL1d} offset:64")
        a(f"ds_read_u16 {SS}, {aL1s} offset:64")
        for i in range(16): a(f"v_mov_b32 {T[i]}, 0")
        for i in range(8): a(f"v_mov_b32 {A2R[i]}, 0")
        a("s_waitcnt lgkmcnt(0)")
        for ins in P_calc_list(0): a(ins)
    if opt.get('stagger',1):
        a.c("the younger partner prepares tile 0 first, so the older waves' first rows are requested ahead of it")
        a(f"s_cmp_ge_u32 {sWave}, 4")
        a("s_cbranch_scc1 K2_FILL_B")
    first_loads()
    if opt.get('dbgfill',0): stamp(a,opt,15)
    first_prep(True)
    if opt.get('stagger',1):
        a("s_branch K2_FILL_J")
        a.label("K2_FILL_B")
        first_prep(False)
        first_loads()
        a(f"ds_read_b64 {SD}, {aL1d} offset:64")
        a("s_waitcnt lgkmcnt(0)")
        a.label("K2_FILL_J")
    H_addr()
    P_addr(LE[1],1)
    E_addr(LE[0])
    a("s_waitcnt vmcnt(1)")
    for s_ in range(4): a(f"ds_read_b128 {HA[4*s_:4*s_+4]}, {vHA[s_]}")
    Da,Db=D1[0:16],D1[16:32]
    mfma(a,Da,OH,WA[0:4],"0")
    mfma(a,Da,EA[0],WE[0:4],Da)
    a("s_waitcnt lgkmcnt(0)")
    for i in range(4): H_load(i)
    mfma(a,Da,HA[0:4],ID[0:4],Da)
    mfma(a,Da,HA[4:8],ID[4:8],Da)
    a(f"s_mov_b32 {sT}, 0")
    stamp(a,opt,8)
    if DBG:
        a("s_memtime s[80:81]")
        a("s_waitcnt lgkmcnt(0)")
    a.nop(12)
    MADD=opt.get('madd',1)
    PB_=[0]; MF=[False]
    def prio(p):
        if PRIO: a(f"s_setprio {p+PB_[0] if PB_[0]>=0 else 3}")
    def Tsec(kind,x,p):
        Dx=D1[16*x:16*x+16]; o=1-x; Do=D1[16*o:16*o+16]; D2o=D2[16*o:16*o+16]
        prio(1)
        if kind=='X':
            ea = EA[p] if x==0 else EA[1-p]
            mfma(a,Do,OH,WA[4*o:4*o+4],"0")
            for i in range(8): a(f"v_cvt_pk_bf16_f32 {M[i]}, {T[2*i]}, {T[2*i+1]}")
            mfma(a,Do,ea,WE[4*o:4*o+4],Do)
            for i in range(16):
                if i==6:
                    if x==1: a("s_waitcnt lgkmcnt(2)")
                    mfma(a,D2o,A2R[0:4],M[0:4],D2o)
                a(f"v_exp_f32 {T[i]}, {Dx[i]}")
            if MADD:
                a("s_nop 1")
                mfma(a,T,ONE,ONE,T)
        else:
            hb = HA[8:16] if x==0 else HA[0:8]
            for i in range(16):
                if i==0: mfma(a,Do,hb[0:4],ID[0:4],Do)
                if i==5: mfma(a,Do,hb[4:8],ID[4:8],Do)
                if i==10: mfma(a,D2o,A2R[4:8],M[4:8],D2o)
                a(f"v_rcp_f32 {T[i]}, {T[i]}")
        prio(0)
    def tile(p):
        q=1-p
        Tsec('X',0,p)
        if not opt.get('e_late',0): E_load(p)
        else: a("s_nop 0")
        P_reads()
        a(f"ds_read_b64 {SD}, {aL1d} offset:{64*(p+2)}")
        if not MADD:
            for i in range(16): a(f"v_add_f32 {T[i]}, 1.0, {T[i]}")
        else:
            a.nop(2)
        Tsec('R',0,p)
        def mulsA():
            for i in range(16): a(f"v_mul_f32 {T[i]}, {Da[i]}, {T[i]}")
        if MF[0]: mulsA()
        a(f"s_waitcnt vmcnt({0 if opt.get('e_late',0) else 1}) lgkmcnt(0)")
        for s_ in range(4): a(f"ds_read_b128 {HA[4*s_:4*s_+4]}, {vHA[s_]}")
        for k in range(4): a(f"ds_read_b64_tr_b16 {A2R[2*k:2*k+2]}, {vTR} offset:{512*k}")
        a(f"ds_write_b64 {aA2[p]}, {vZ}")
        pc=P_calc_list(q)
        for ins in pc[:6]: a(ins)
        H_addr()
        if not MF[0]: mulsA()
        for ins in pc[6:]: a(ins)
        if MF[0]: a("s_nop 0")
        Tsec('X',1,p)
        a("s_waitcnt lgkmcnt(0)")
        if opt.get('e_late',0)==1: E_load(p)
        for i in range(4): H_load(i)
        a(f"ds_read_b32 {LE[q]}, {aL0} offset:{128*(p+3)}")
        a(f"ds_read_u16 {SS}, {aL1s} offset:{64*(p+2)}")
        if not MADD:
            for i in range(16): a(f"v_add_f32 {T[i]}, 1.0, {T[i]}")
        Tsec('R',1,p)
        def mulsB():
            for i in range(16): a(f"v_mul_f32 {T[i]}, {Db[i]}, {T[i]}")
        if MF[0]: mulsB()
        a("s_waitcnt lgkmcnt(0)")
        E_addr(LE[q])
        P_addr(LE[p],p)
        if p==1:
            a(f"v_add_u32 {aL0}, 256, {aL0}")
            a(f"v_add_u32 {aL1s}, 128, {aL1s}")
            a(f"v_add_u32 {aL1d}, 128, {aL1d}")
        if not MF[0]: mulsB()
    def drain(par):
        for i in range(8): a(f"v_cvt_pk_bf16_f32 {M[i]}, {T[2*i]}, {T[2*i+1]}")
        a(f"ds_write_b64 {aA2[par]}, {vZ}")
        a("s_nop 0")
        mfma(a,D2[16:32],A2R[0:4],M[0:4],D2[16:32])
        mfma(a,D2[16:32],A2R[4:8],M[4:8],D2[16:32])
    def main_loop(sfx):
        a(".p2align 6")
        a.label("K2_LOOP"+sfx)
        tile(0)
        a(f"s_add_u32 {sT}, {sT}, 1")
        a(f"s_cmp_ge_u32 {sT}, {sNT}")
        a("s_cbranch_scc1 K2_EXIT_ODD"+sfx)
        tile(1)
        a(f"s_add_u32 {sT}, {sT}, 1")
        a(f"s_cmp_lt_u32 {sT}, {sNT}")
        a("s_cbranch_scc1 K2_LOOP"+sfx)
        drain(0)
        a("s_branch K2_LOOP_DONE")
        a.label("K2_EXIT_ODD"+sfx)
        drain(1)
    HP=opt.get('mfirst',2)
    if HP==1:
        a.c("the younger partner (waves 4..7) opens its plain sections with the multiplies, so both partners' multiplies pair up")
        a(f"s_cmp_ge_u32 {sWave}, 4")
        a("s_cbranch_scc1 K2_LOOP_H")
    if HP==2: MF[0]=True
    main_loop("")
    if HP==1:
        a("s_branch K2_LOOP_DONE")
        MF[0]=True
        main_loop("_H")
        MF[0]=False
    a.label("K2_LOOP_DONE")
    if PRIO: a("s_setprio 0")
    a.label("K2_MAIN_DONE")
    stamp(a,opt,9)
    if DBG:
        a("s_memtime s[82:83]")
        a("s_waitcnt lgkmcnt(0)")
        a("s_sub_u32 s80, s82, s80")
        a(f"v_writelane_b32 {VDBG}, s80, 12")
        a(f"v_writelane_b32 {VDBG}, {sNT}, 11")
    a(f"s_cmp_eq_u32 {sMode}, 0")
    a("s_cbranch_scc1 K2_EPI")
    a("s_waitcnt vmcnt(0) lgkmcnt(0)")
    a(f"s_add_u32 {sChunk}, {sChunk}, 1")
    a(f"s_cmp_lt_u32 {sChunk}, {(E+511)//512}")
    a("s_cbranch_scc1 K2_GEN")
    a.label("K2_EPI")
    a.c("segment sums of this window: m_i (bf16) -> rows of this window's (now idle) A2 slice")
    a(f"s_lshl_b32 {sHST}, {sWin}, 11")
    a(f"s_add_u32 {sHST}, {sHST}, {L_A2}")
    a(f"v_and_b32 {vJ}, 31, {vL}")
    a(f"s_mov_b32 {sTmp}, {NEG_LN2}")
    a(f"v_lshrrev_b32 {vT2}, 5, {vL}")
    a(f"v_lshlrev_b32 {vT2}, 7, {vT2}")
    a(f"v_lshl_add_u32 {vT2}, {vJ}, 1, {vT2}")
    a(f"v_add_u32 {vT2}, {sHST}, {vT2}")
    a.nop(8)
    for qq in range(4):
        a(f"v_mul_f32 {AD[0]}, {sTmp}, {D2[4*qq]}")
        a(f"v_mul_f32 {AD[1]}, {sTmp}, {D2[16+4*qq]}")
        a(f"v_cvt_pk_bf16_f32 {AD[2]}, {AD[0]}, {AD[1]}")
        a(f"ds_write_b16 {vT2}, {AD[2]} offset:{qq*256}")
        a(f"ds_write_b16_d16_hi {vT2}, {AD[2]} offset:{qq*256+64}")
    def pos_part():
        a.c("coordinate update of this window")
        PP=T
        for qq in range(4):
            for c in range(1,4):
                r=PP[qq*3+c-1]
                a(f"v_mul_f32 {r}, {WX[0]}, {D2[4*qq+c]}")
                a(f"v_fmac_f32 {r}, {WX[1]}, {D2[16+4*qq+c]}")
        for sh in (1,2,4,8):
            for i in range(12): a(f"v_add_f32_dpp {PP[i]}, {PP[i]}, {PP[i]} row_shr:{sh} row_mask:0xf bank_mask:0xf bound_ctrl:0")
        for i in range(12): a(f"v_add_f32_dpp {PP[i]}, {PP[i]}, {PP[i]} row_bcast:15 row_mask:0xa bank_mask:0xf")
        a(f"v_lshrrev_b32 {vT2}, 5, {vL}")
        a(f"v_lshlrev_b32 {vT2}, 4, {vT2}")
        a(f"s_add_u32 {sTmp}, {sHST}, 1024")
        a(f"v_add_u32 {vT2}, {sTmp}, {vT2}")
        a("s_mov_b32 exec_lo, 0x80000000")
        a("s_mov_b32 exec_hi, 0x80000000")
        for qq in range(4):
            for c in range(3):
                a(f"ds_write_b32 {vT2}, {PP[qq*3+c]} offset:{qq*32+c*4}")
        a("s_mov_b64 exec, -1")
        a(f"v_mul_u32_u24 {vT2}, 86, {vL}")
        a(f"v_lshrrev_b32 {vT2}, 8, {vT2}")
        a(f"v_mul_u32_u24 {vT3}, 3, {vT2}")
        a(f"v_sub_u32 {vT3}, {vL}, {vT3}")
        a(f"v_lshlrev_b32 {vT2}, 4, {vT2}")
        a(f"v_lshl_add_u32 {vT2}, {vT3}, 2, {vT2}")
        a(f"v_add_u32 {vT2}, {sTmp}, {vT2}")
        a(f"v_min_u32 {vT2}, {LDS2-4}, {vT2}")
        a(f"ds_read_b32 {AD[0]}, {vT2}")
        a(f"v_lshl_add_u32 {vT3}, {vL}, 1, {sN06}")
        a(f"v_min_u32 {vT2}, {POS_SZ-2}, {vT3}")
        a(f"ds_read_u16_d16_hi {PS[0]}, {vT2} offset:{L_POS}")
        a(f"s_mul_i32 {sTmp}, {sNJ}, 3")
        a(f"v_cmp_gt_u32 vcc, {sTmp}, {vL}")
        a(f"v_add_u32 {vT3}, {OUT_POS}, {vT3}")
        a(f"v_mov_b32 {vT2}, 0x40000000")
        a("s_waitcnt lgkmcnt(0)")
        a(f"v_cndmask_b32 {vT3}, {vT2}, {vT3}, vcc")
        a(f"v_add_f32 {AD[0]}, {AD[0]}, {PS[0]}")
        a(f"v_cvt_pk_bf16_f32 {AD[0]}, {AD[0]}, {AD[0]}")
        a(f"buffer_store_short {AD[0]}, {vT3}, {sO}, 0 offen{OST}")
    a.c("job waves 4..7: row tile r = (v-4)>>1 (rows = window 4r + (m>>3), node m&7), feature half x = v&1")
    a(f"s_cmp_lt_u32 {sWave}, 4")
    a("s_cbranch_scc1 K2_EPI_NOJOB")
    a(f"s_sub_u32 {sTmp2}, {sWave}, 4")
    a(f"s_lshr_b32 {sTmp2}, {sTmp2}, 1")
    a(f"s_lshl_b32 {sTmp2}, {sTmp2}, 2")
    a(f"v_bfe_u32 {vT0}, {vL}, 3, 2")
    a(f"v_add_u32 {vT0}, {sTmp2}, {vT0}")
    a(f"v_and_b32 {vJ}, 7, {vL}")
    a(f"v_lshlrev_b32 {aL1d}, 11, {vT0}")
    a(f"v_lshl_add_u32 {aL1d}, {vJ}, 7, {aL1d}")
    a(f"v_add_u32 {aL1d}, {L_A2}, {aL1d}")
    a(f"v_add_u32 {aL1d}, {aL1d}, {vHOFF}")
    a(f"s_lshl_b32 {sTmp2}, s2, 3")
    a(f"v_add_u32 {vT0}, {sTmp2}, {vT0}")
    a(f"v_mad_u32_u24 {SD[0]}, {vT0}, {s3125}, {v511}")
    a(f"v_add_u32 {SD[1]}, 3125, {SD[0]}")
    a(f"v_lshrrev_b32 {SD[0]}, 9, {SD[0]}")
    a(f"v_lshrrev_b32 {SD[1]}, 9, {SD[1]}")
    a(f"v_sub_u32 {SD[1]}, {SD[1]}, {SD[0]}")
    a(f"v_cmp_lt_u32 vcc, {vJ}, {SD[1]}")
    a(f"v_add_u32 {vT1}, -1, {SD[1]}")
    a(f"v_min_u32 {vT1}, {vT1}, {vJ}")
    a(f"v_add_u32 {vT1}, {SD[0]}, {vT1}")
    a(f"v_lshlrev_b32 {vT1}, 7, {vT1}")
    a(f"v_add_u32 {vT0}, {vT1}, {vHOFF}")
    for s_ in range(4):
        a(f"buffer_load_dwordx4 {HA[4*s_:4*s_+4]}, {vT0}, {sHs}, 0 offen offset:{32*s_}")
    a(f"s_and_b32 {sTmp2}, {sWave}, 1")
    a(f"s_lshl_b32 {sTmp2}, {sTmp2}, 6")
    a(f"v_lshrrev_b32 {vT0}, 1, {vHOFF}")
    a(f"v_add3_u32 {aL0}, {vT1}, {vT0}, {sTmp2}")
    for qq in range(4):
        a(f"buffer_load_dwordx2 {M[2*qq:2*qq+2]}, {aL0}, {sHs}, 0 offen offset:{16*qq}")
    a(f"v_mov_b32 {vT0}, 0x40000000")
    a(f"v_cndmask_b32 {aL1s}, {vT0}, {aL0}, vcc")
    pos_part()
    HV=D2[0:16]
    a("s_waitcnt vmcnt(1)")
    for s_ in range(4):
        mfma(a,D1[0:16],WH[4*s_:4*s_+4],HA[4*s_:4*s_+4],"0" if s_==0 else D1[0:16])
    for qq in range(4):
        a(f"v_lshlrev_b32 {HV[4*qq]}, 16, {M[2*qq]}")
        a(f"v_and_b32 {HV[4*qq+1]}, 0xffff0000, {M[2*qq]}")
        a(f"v_lshlrev_b32 {HV[4*qq+2]}, 16, {M[2*qq+1]}")
        a(f"v_and_b32 {HV[4*qq+3]}, 0xffff0000, {M[2*qq+1]}")
    stamp(a,opt,10)
    a("s_barrier")
    MA=[EA[0],EA[1],A2R[0:4],A2R[4:8]]
    for s_ in range(4): a(f"ds_read_b128 {MA[s_]}, {aL1d} offset:{32*s_}")
    for s_ in range(4):
        a(f"s_waitcnt lgkmcnt({3-s_})")
        mfma(a,D1[0:16],WH[16+4*s_:20+4*s_],MA[s_],D1[0:16])
    a(f"s_mov_b32 {sTmp}, {NEG_LOG2E}")
    a.nop(14)
    X=D1[0:16]
    for i in range(16): a(f"v_mul_f32 {T[i]}, {sTmp}, {X[i]}")
    for i in range(16): a(f"v_exp_f32 {T[i]}, {T[i]}")
    for i in range(16): a(f"v_add_f32 {T[i]}, 1.0, {T[i]}")
    for i in range(16): a(f"v_rcp_f32 {T[i]}, {T[i]}")
    a("s_nop 0")
    for i in range(16): a(f"v_fma_f32 {T[i]}, {X[i]}, {T[i]}, {HV[i]}")
    for qq in range(4):
        a(f"v_cvt_pk_bf16_f32 {M[2*qq]}, {T[4*qq]}, {T[4*qq+1]}")
        a(f"v_cvt_pk_bf16_f32 {M[2*qq+1]}, {T[4*qq+2]}, {T[4*qq+3]}")
        a(f"buffer_store_dwordx2 {M[2*qq:2*qq+2]}, {aL1s}, {sO}, 0 offen offset:{16*qq}{OST}")
    a("s_branch K2_FIN")
    a.label("K2_EPI_NOJOB")
    a("s_waitcnt lgkmcnt(0)")
    stamp(a,opt,10)
    a("s_barrier")
    pos_part()
    a.label("K2_FIN")
    if DBG:
        a("s_waitcnt vmcnt(0)")
        stamp(a,opt,13)
        a(f"s_lshl_b32 {sTmp}, s2, 4")
        a(f"s_add_u32 {sTmp}, {sTmp}, {sWave}")
        a(f"s_lshl_b32 {sTmp}, {sTmp}, 6")
        a(f"s_add_u32 {sTmp}, {sTmp}, {DBG_OFF}")
        a(f"v_lshlrev_b32 {vT0}, 2, {vL}")
        a("s_mov_b32 exec_lo, 0xffff")
        a("s_mov_b32 exec_hi, 0")
        a(f"buffer_store_dword {VDBG}, {vT0}, {sW}, {sTmp} offen")
        a("s_waitcnt vmcnt(0)")
        if opt.get('dbgh',0):
            a("s_load_dwordx2 s[64:65], s[0:1], 72")
            a("s_waitcnt lgkmcnt(0)")
            srd(a,S(68,4),"s64","s65",256)
            a(f"s_cmp_lg_u32 s2, {opt.get('dbgh',0)}")
            a("s_cbranch_scc1 K_NODBGH")
            a(f"s_cmp_lg_u32 {sWave}, 0")
            a("s_cbranch_scc1 K_NODBGH")
            a("s_mov_b32 exec_lo, 0x3fff")
            a(f"buffer_store_dword {VDBG}, {vT0}, s[68:71], 0 offen offset:4")
            a("s_waitcnt vmcnt(0)")
            a.label("K_NODBGH")
    a.label("K_END")
    a("s_endpgm")
    a.label("K_CODE_END")
    return nv

HEADER='''; Kernarg layout (88 bytes, ptrs only): h, pos, e_attr, src, dst, w_e, w_x, w_h, out, debug, ws
; @launch grid=(256,1,1) block=(512,1,1) lds={lds2}
.amdgcn_target "amdgcn-amd-amdhsa--gfx950"
.text
.globl {k}
.p2align 8
.type {k},@function
'''
def kd(name,nv,ns):
    acc=(nv+3)//4*4
    return f'''.amdhsa_kernel {name}
  .amdhsa_next_free_vgpr {acc}
  .amdhsa_next_free_sgpr {ns}
  .amdhsa_accum_offset {acc}
  .amdhsa_group_segment_fixed_size 0
  .amdhsa_kernarg_size 88
  .amdhsa_user_sgpr_count 2
  .amdhsa_user_sgpr_kernarg_segment_ptr 1
  .amdhsa_system_sgpr_workgroup_id_x 1
  .amdhsa_float_denorm_mode_32 3
.end_amdhsa_kernel
'''
def build(opt):
    out=HEADER.format(lds2=LDS2,k=KNAME)
    a=Asm()
    nv=gen(a,opt)
    assert nv<=255
    out+=a.text()
    out+='.section .rodata,"a"\n.p2align 6\n'+kd(KNAME,256,102)
    return out,nv
if __name__=="__main__":
    opt={}
    for arg in sys.argv[2:]:
        k,v=arg.split('='); opt[k]=int(v)
    txt,nv=build(opt)
    open(sys.argv[1],'w').write(txt)
    print("vgprs:",nv,"LDS",LDS2,"lines",txt.count("\n"),"WS",WS_BYTES)
```

```python
import sys, struct
from asmlib import *

N=12500; E=800000; CH=3136; NSRC=256; NBIN=256; NPW=49
KW=703687442
LOG2E=1.4426950408889634; LN2=0.6931471805599453
def f2u(x): return struct.unpack('<I',struct.pack('<f',x))[0]
NEG_LOG2E=f2u(-LOG2E); NEG_LN2=f2u(-LN2)
SENT=0xFFFFFFFF; MARK=0xFFFFFFFE
CELLS=0; BPT=NBIN*NSRC*128; FLG=BPT+N*128+((-N*128)%4096); FLG2=FLG+4096; WS_BYTES=FLG2+8192
OUT_BYTES=N*64*2+N*3*2; OUT_POS=N*64*2
CAP=576; CAPX=704
L_OH=0; L_CNT=128; L_NRES=160; L_WIN=192; L_RES=256; L_POS=1280; POS_SZ=74*1024
L_L0=L_POS+POS_SZ; L_L1=L_L0+8*CAPX*4; L_A2=L_L1+8*CAPX*2; L_HST=L_A2+8*2048; LDS2=L_HST+8*4096
assert LDS2<=163840, LDS2
L_RAWW=L_L0; L_BST=L_L0+19*1024; assert L_BST+2*32*144<=L_A2
DBG_OFF=16*1024*1024

def WSB(opt): return (32*1024*1024 if opt.get('dbg',0) else WS_BYTES)
def srd(a, s, lo, hi, size):
    a(f"s_mov_b32 {s[0]}, {lo}")
    a(f"s_and_b32 {s[1]}, {hi}, 0xffff")
    a(f"s_mov_b32 {s[2]}, {size}")
    a(f"s_mov_b32 {s[3]}, 0x20000")
VDBG="v255"
def stamp(a,opt,idx):
    if not opt.get('dbg',0): return
    a("s_memrealtime s[100:101]")
    a("s_waitcnt lgkmcnt(0)")
    a(f"v_writelane_b32 {VDBG}, s100, {idx}")
def S(i,n=1): return R('s',i,n)
def V(i,n=1): return R('v',i,n)
def mfma(a,d,A,B,c): a(f"v_mfma_f32_32x32x16_bf16 {d}, {A}, {B}, {c}")

NPOS1=24
KNAME="gather_scatter__cheap_equivariant_egnn__graph_kernel"
def gen(a, opt):
    DBG=opt.get('dbg',0)
    PRIO=opt.get('prio',1)
    ST=[" sc1"," sc0 sc1"," sc1 nt"," sc0 sc1 nt"][opt.get('st',0)]; LD=" sc1" if opt.get('ld_sc1',1) else ""
    HLD=[""," sc1"," sc0 sc1"," sc1 nt"," sc0 sc1 nt"][opt.get('h_sc1',1)]
    SNT=" nt" if opt.get('snt',0) else ""
    OST=[""," nt"," sc1"," sc0 sc1"][opt.get('ost',0)]
    a.label(KNAME)
    sB=S(4,4); sE=S(8,4); sW=S(12,4); sO=S(16,4); sP=S(20,4); sS=S(24,4); sD=S(28,4)
    sWave=S(32); sN0=S(33); sNJ=S(34); sN06=S(35); sNT=S(36); sT=S(37); sMode=S(38); sChunk=S(39)
    sMaskE=S(40); s128=S(41); sK=S(42); s3125=S(43); sLim=S(44); sCAP=S(44); sCnt=S(45); sTmp=S(46); sTmp2=S(47)
    sM0=S(48,4); sSave=S(52,2); sAny=S(54,2); sNR=S(56); sI=S(57); sC=S(58); sWsrc=S(59); sMark=S(60); sCAPq=S(61); sHST=S(62); sTmp3=S(63)
    sMask=[S(64+2*i,2) for i in range(16)]
    sTagOff=S(36)
    sRot=S(39+0) if False else S(37)
    sWin=S(96); sTgt=S(97); sNonce=S(98); sPoll=S(99)
    sT4=S(84,4); sT4b=S(88,4); sT4c=S(92,4)
    sHw=S(48,4)
    sHs=S(68,4); sWx=S(72,4)
    vr=Regs(1,256,'v')
    vL=vr.alloc('lane')
    WE=vr.alloc('WE',8,4); WA=vr.alloc('WA',8,4); ID=vr.alloc('ID',8,4); D2=vr.alloc('D2',32,4)
    D1=vr.alloc('D1',32,4); HA=vr.alloc('HA',16,4); T=vr.alloc('T',16,4); M=vr.alloc('M',8,4)
    A2R=vr.alloc('A2R',8,4); EA=[vr.alloc('EA0',4,4),vr.alloc('EA1',4,4)]; OH=vr.alloc('OH',4,4)
    WH=vr.alloc('WH',32,4); ONE=vr.alloc('ONE',4,4)
    vHA=vr.alloc('vHA',4); vKD=vr.alloc('vKD',4); vTR=vr.alloc('vTR'); vE64=vr.alloc('vE64'); vHOFF=vr.alloc('vHOFF')
    vZ=vr.alloc('vZ',2,2); aL0=vr.alloc('aL0'); aL1s=vr.alloc('aL1s'); aL1d=vr.alloc('aL1d')
    LE=[vr.alloc('LE0'),vr.alloc('LE1')]; aA2=[vr.alloc('aA2_0'),vr.alloc('aA2_1')]
    SD=vr.alloc('SD',2,2); SS=vr.alloc('SS'); PS=vr.alloc('PS',3); PD=vr.alloc('PD',3)
    E01=vr.alloc('E01',2,2); DX=vr.alloc('DX',3); DD=vr.alloc('DD'); AD=vr.alloc('AD',4); vJ=vr.alloc('vJ')
    aE=vr.alloc('aE'); aPS=vr.alloc('aPS'); aPD=vr.alloc('aPD'); aOH=vr.alloc('aOH')
    vT0=vr.alloc('vT0'); vT1=vr.alloc('vT1'); vT2=vr.alloc('vT2'); vT3=vr.alloc('vT3')
    vOne=vr.alloc('vOne'); v511=vr.alloc('v511'); vTRW=vr.alloc('vTRW'); vL16=vr.alloc('vL16'); WX=vr.alloc('WX',2); vDUM=vr.alloc('vDUM')
    nv=vr.next
    HW=T
    def geometry(win):
        a(f"s_lshl_b32 {sTmp}, s2, 3")
        a(f"s_add_u32 {sTmp}, {sTmp}, {win}")
        a(f"s_mul_i32 {sN0}, {sTmp}, 3125")
        a(f"s_add_u32 {sNJ}, {sN0}, {3125+511}")
        a(f"s_add_u32 {sN0}, {sN0}, 511")
        a(f"s_lshr_b32 {sN0}, {sN0}, 9")
        a(f"s_lshr_b32 {sNJ}, {sNJ}, 9")
        a(f"s_sub_u32 {sNJ}, {sNJ}, {sN0}")
        a(f"s_mul_i32 {sN06}, {sN0}, 6")
    def dma(vaddr,srd_,soff,ldsbase_const=None,ldsreg=None):
        pass

    def load_hwin():
        a.c("h rows of the natural window (A operand of h@W1; needed after barrier C)")
        a(f"v_bfe_u32 {vT0}, {vL}, 3, 1")
        a(f"v_and_b32 {vT2}, 3, {vL}")
        a(f"v_lshl_add_u32 {vT0}, {vT0}, 2, {vT2}")
        a(f"s_sub_u32 {sTmp}, {sNJ}, 1")
        a(f"v_min_u32 {vT0}, {sTmp}, {vT0}")
        a(f"v_add_u32 {vT0}, {sN0}, {vT0}")
        a(f"v_lshl_add_u32 {vT0}, {vT0}, 7, {vHOFF}")
        for s_ in range(4):
            a(f"buffer_load_dwordx4 {HW[4*s_:4*s_+4]}, {vT0}, {sHw}, 0 offen offset:{32*s_}")
    a("s_cmp_ge_u32 s2, 256")
    a("s_cbranch_scc1 K_END")
    a("s_load_dwordx4 s[64:67], s[0:1], 0")
    a("s_load_dwordx4 s[68:71], s[0:1], 16")
    a("s_load_dwordx4 s[72:75], s[0:1], 32")
    a("s_load_dwordx4 s[76:79], s[0:1], 64")
    a("s_load_dwordx2 s[80:81], s[0:1], 80")
    a(f"v_and_b32 {vL}, 63, v0")
    a(f"v_lshrrev_b32 {vT0}, 6, v0")
    a(f"v_lshlrev_b32 {vL16}, 4, {vL}")
    a(f"v_readfirstlane_b32 {sWave}, {vT0}")
    if opt.get('cpf',1):
        a.c("pull this workgroup's share of the kernel's own code into L2 (read only, speed only)")
        NL=opt.get('cpf_lines',8)
        a("s_getpc_b64 s[84:85]")
        a.label("K_PC")
        a("s_and_b32 s85, s85, 0xffff")
        a("s_mov_b32 s86, K_CODE_END-K_PC")
        a("s_mov_b32 s87, 0x20000")
        if opt.get('cpf',1)==1:
            a(f"s_lshr_b32 {sTmp}, s2, 3")
            a(f"s_and_b32 {sTmp}, {sTmp}, 31")
            a(f"s_mul_i32 {sTmp}, {sTmp}, {NL*128}")
            a(f"v_lshlrev_b32 {vT1}, 7, {vL}")
            a(f"v_add_u32 {vT1}, {sTmp}, {vT1}")
            a(f"s_cmp_lg_u32 {sWave}, 3")
            a("s_cbranch_scc1 K_NOCPF")
            a(f"s_mov_b32 exec_lo, {(1<<NL)-1}")
            a("s_mov_b32 exec_hi, 0")
            a(f"buffer_load_dword {vDUM}, {vT1}, s[84:87], 0 offen")
            a("s_mov_b64 exec, -1")
        elif opt.get('cpf',1)==2:
            a(f"s_mul_i32 {sTmp}, {sWave}, {24*128}")
            a(f"v_lshlrev_b32 {vT1}, 7, {vL}")
            a(f"v_add_u32 {vT1}, {sTmp}, {vT1}")
            a(f"s_mov_b32 exec_lo, {(1<<24)-1}")
            a("s_mov_b32 exec_hi, 0")
            a(f"buffer_load_dword {vDUM}, {vT1}, s[84:87], 0 offen")
            a("s_mov_b64 exec, -1")
        elif opt.get('cpf',1)==3:
            a(f"s_lshr_b32 {sTmp}, s2, 3")
            a(f"s_and_b32 {sTmp}, {sTmp}, 3")
            a(f"s_mul_i32 {sTmp}, {sTmp}, {48*128}")
            a(f"v_lshlrev_b32 {vT1}, 7, {vL}")
            a(f"v_add_u32 {vT1}, {sTmp}, {vT1}")
            a(f"s_cmp_lg_u32 {sWave}, 3")
            a("s_cbranch_scc1 K_NOCPF")
            a("s_mov_b32 exec_hi, 0xffff")
            a(f"buffer_load_dword {vDUM}, {vT1}, s[84:87], 0 offen")
            a("s_mov_b64 exec, -1")
        a.label("K_NOCPF")
    a(f"v_lshrrev_b32 {vT2}, 5, {vL}")
    a(f"v_lshlrev_b32 {vHOFF}, 4, {vT2}")
    a(f"v_mov_b32 {vZ[0]}, 0")
    a(f"v_mov_b32 {vZ[1]}, 0")
    geometry(sWave)
    a(f"s_mul_i32 {sTmp}, s2, {CH*4}")
    a(f"s_mul_i32 {sTmp2}, {sWave}, {384*4}")
    a(f"s_add_u32 {sTmp}, {sTmp}, {sTmp2}")
    a(f"v_lshl_add_u32 {vT0}, {vL}, 3, {sTmp}")
    a("s_waitcnt lgkmcnt(0)")
    stamp(a,opt,0)
    srd(a,sT4c,"s78","s79",256)
    if opt.get('tagmode',1)==0:
        a.c("workgroup 0 publishes this launch's hand-off tag")
        a(f"s_or_b32 {sTmp}, s2, {sWave}")
        a(f"s_cmp_lg_u32 {sTmp}, 0")
        a("s_cbranch_scc1 K_S_NOTAG")
        a("s_memrealtime s[100:101]")
        a("s_waitcnt lgkmcnt(0)")
        a("s_or_b32 s100, s100, 1")
        a(f"v_mov_b32 {vT1}, s100")
        a(f"buffer_store_dword {vT1}, {vZ[0]}, {sT4c}, 0 offen sc1")
        a(f"buffer_store_dword {vT1}, {vZ[0]}, {sT4c}, 0 offen offset:128 sc1")
        a.label("K_S_NOTAG")
    srd(a,sD,"s72","s73",E*4)
    srd(a,sS,"s70","s71",E*4)
    a.c("every wave: six edges per lane, local edge = 384v + 128k + 2l + u; wave 7 also takes edges 3072 + l")
    DS_=D1[0:7]; SR_=D1[8:15]
    for k in range(3): a(f"buffer_load_dwordx2 {D1[2*k:2*k+2]}, {vT0}, {sD}, 0 offen offset:{512*k}{SNT}")
    for k in range(3): a(f"buffer_load_dwordx2 {D1[8+2*k:10+2*k]}, {vT0}, {sS}, 0 offen offset:{512*k}{SNT}")
    srd(a,sT4,"s64","s65",N*128)
    srd(a,sHw,"s64","s65",N*128)
    srd(a,sT4b,"s74","s75",145*128)
    a(f"s_cmp_eq_u32 {sWave}, 7")
    a("s_cbranch_scc1 K_S_W7")
    a(f"s_cmp_eq_u32 {sWave}, 4")
    a("s_cbranch_scc1 K_S_W4")
    a(f"s_cmp_lt_u32 {sWave}, 5")
    a("s_cbranch_scc1 K_S_COMMON")
    a.c("waves 5,6: private raw W2 copy + h rows for the source-node table")
    a(f"s_sub_u32 {sI}, {sWave}, 5")
    a(f"s_lshl_b32 {sC}, {sI}, 13")
    a(f"s_add_u32 {sC}, {sC}, {L_A2}")
    for i in range(8):
        a(f"s_add_u32 {sTmp}, {sC}, {i*1024}")
        a(f"s_mov_b32 m0, {sTmp}")
        a(f"s_mov_b32 {sTmp2}, {8192+i*1024}")
        a(f"buffer_load_dwordx4 {vL16}, {sT4b}, {sTmp2} offen lds")
    a(f"s_mul_i32 {sTmp}, s2, {NPW}")
    a(f"s_lshl_b32 {sTmp2}, {sI}, 5")
    a(f"s_add_u32 {sTmp}, {sTmp}, {sTmp2}")
    a(f"v_and_b32 {vT0}, 31, {vL}")
    a(f"v_add_u32 {vT0}, {sTmp}, {vT0}")
    a(f"v_lshl_add_u32 {vT0}, {vT0}, 7, {vHOFF}")
    for s_ in range(4): a(f"buffer_load_dwordx4 {HA[4*s_:4*s_+4]}, {vT0}, {sT4}, 0 offen offset:{32*s_}")
    a("s_branch K_S_COMMON")
    a.label("K_S_W4")
    a.c("wave 4: this workgroup's share of the L2 warm-up of pos and w_h (speed only)")
    a("s_load_dwordx2 s[82:83], s[0:1], 56")
    srd(a,sP,"s66","s67",N*6)
    a(f"s_lshr_b32 {sTmp}, s2, 3")
    a(f"s_and_b32 {sTmp}, {sTmp}, 31")
    a(f"s_mul_i32 {sTmp2}, {sTmp}, {19*128}")
    a(f"v_lshlrev_b32 {vT0}, 7, {vL}")
    a(f"v_add_u32 {vT1}, {sTmp2}, {vT0}")
    a(f"v_cmp_gt_u32 vcc, 19, {vL}")
    a(f"v_mov_b32 {vT2}, 0x40000000")
    a("s_waitcnt lgkmcnt(0)")
    a(f"v_cndmask_b32 {vT1}, {vT2}, {vT1}, vcc")
    a(f"buffer_load_dword {vDUM}, {vT1}, {sP}, 0 offen")
    srd(a,sT4b,"s82","s83",128*128)
    a(f"s_lshl_b32 {sTmp2}, {sTmp}, 9")
    a(f"v_add_u32 {vT1}, {sTmp2}, {vT0}")
    a(f"v_cmp_gt_u32 vcc, 4, {vL}")
    a("s_nop 1")
    a(f"v_cndmask_b32 {vT1}, {vT2}, {vT1}, vcc")
    a(f"buffer_load_dword {vDUM}, {vT1}, {sT4b}, 0 offen")
    a("s_branch K_S_COMMON")
    a.label("K_S_W7")
    a.c("wave 7: the last 64 edges, one-hot table, counters")
    a(f"s_mul_i32 {sTmp}, s2, {CH*4}")
    a(f"s_add_u32 {sTmp}, {sTmp}, {3072*4}")
    a(f"v_lshl_add_u32 {vT0}, {vL}, 2, {sTmp}")
    a(f"buffer_load_dword {D1[6]}, {vT0}, {sD}, 0 offen{SNT}")
    a(f"buffer_load_dword {D1[14]}, {vT0}, {sS}, 0 offen{SNT}")
    a(f"v_lshrrev_b32 {vT0}, 2, {vL}")
    a(f"v_and_b32 {vT1}, 3, {vL}")
    a(f"v_lshlrev_b32 {vT3}, 1, {vT1}")
    a(f"v_mov_b32 {vJ}, 0")
    a(f"v_cmp_eq_u32 vcc, {vT0}, {vT3}")
    a(f"v_mov_b32 {AD[0]}, 0x3f80")
    a(f"v_mov_b32 {AD[1]}, 0x3f800000")
    a(f"v_cndmask_b32 {vJ}, {vJ}, {AD[0]}, vcc")
    a(f"v_add_u32 {vT3}, 1, {vT3}")
    a(f"v_cmp_eq_u32 vcc, {vT0}, {vT3}")
    a("s_nop 1")
    a(f"v_cndmask_b32 {vJ}, {vJ}, {AD[1]}, vcc")
    a(f"v_cmp_eq_u32 vcc, 6, {vT0}")
    a(f"v_mov_b32 {AD[2]}, 0")
    a("s_nop 0")
    a(f"v_cndmask_b32 {AD[2]}, {AD[2]}, {AD[1]}, vcc")
    a(f"v_cmp_eq_u32 vcc, 3, {vT1}")
    a("s_nop 1")
    a(f"v_cndmask_b32 {vJ}, {vJ}, {AD[2]}, vcc")
    a(f"v_cmp_lt_u32 vcc, 31, {vL}")
    a(f"v_lshlrev_b32 {vT0}, 2, {vL}")
    a("s_nop 0")
    a(f"v_cndmask_b32 {vJ}, {vJ}, {vZ[0]}, vcc")
    a(f"ds_write_b32 {vT0}, {vJ}")
    a.label("K_S_COMMON")
    a(f"s_mov_b32 {sMaskE}, {'0' if opt.get('noE',0) else '0xffffffe0'}")
    a(f"s_mov_b32 {s128}, {0 if opt.get('noH',0) else 128}")
    a(f"s_mov_b32 {sK}, {KW}")
    a(f"s_mov_b32 {s3125}, 3125")
    a(f"s_mov_b32 {sMark}, {MARK}")
    a(f"s_mov_b32 {sCAPq}, {CAPX//4}")
    a(f"s_mov_b32 {sMode}, 0")
    a(f"s_mov_b32 {sChunk}, 0")
    a(f"v_mov_b32 {vOne}, 1")
    a(f"v_mov_b32 {v511}, 511")
    a(f"v_mov_b32 {aL1s}, 0x40000000")
    a(f"v_lshrrev_b32 {vT2}, 5, {vL}")
    a(f"v_bfe_u32 {vT0}, {vL}, 2, 2")
    a(f"v_lshl_add_u32 {vT0}, {vT2}, 3, {vT0}")
    a(f"v_lshlrev_b32 {vTRW}, 7, {vT0}")
    a(f"v_bfe_u32 {vT0}, {vL}, 4, 1")
    a(f"v_lshl_add_u32 {vTRW}, {vT0}, 5, {vTRW}")
    a(f"v_and_b32 {vT0}, 3, {vL}")
    a(f"v_lshl_add_u32 {vTRW}, {vT0}, 3, {vTRW}")
    a.c("LDS init: cell image = sentinel, counters = 0")
    for i in range(4): a(f"v_mov_b32 {WH[i]}, -1")
    a(f"v_lshlrev_b32 {vT0}, 6, v0")
    a(f"v_add_u32 {vT0}, {L_HST}, {vT0}")
    for i in range(4): a(f"ds_write_b128 {vT0}, {WH[0:4]} offset:{16*i}")
    a(f"v_and_b32 {vT0}, 0xff, v0")
    a(f"v_lshlrev_b32 {vT0}, 2, {vT0}")
    a(f"ds_write_b32 {vT0}, {vZ[0]} offset:{L_RES}")
    srd(a,sW,"s80","s81",WSB(opt))
    srd(a,sP,"s66","s67",N*6)
    srd(a,sE,"s68","s69",E*32)
    srd(a,sO,"s76","s77",OUT_BYTES)
    a(f"s_add_u32 {sB[0]}, s80, {BPT}")
    a(f"s_addc_u32 {sB[1]}, s81, 0")
    a(f"s_and_b32 {sB[1]}, {sB[1]}, 0xffff")
    a(f"s_mov_b32 {sB[2]}, {N*128}")
    a(f"s_mov_b32 {sB[3]}, 0x20000")
    if opt.get('tlb',0):
        a.c("wave 2 touches one line per 2 MiB of the buffers used later (address translation warm-up, speed only)")
        a(f"s_cmp_lg_u32 {sWave}, 2")
        a("s_cbranch_scc1 K_NOTLB")
        a(f"v_lshlrev_b32 {vT0}, 21, {vL}")
        a(f"v_mov_b32 {vT1}, 0x40000000")
        a(f"v_cmp_gt_u32 vcc, 13, {vL}")
        a("s_nop 1")
        a(f"v_cndmask_b32 {vT0}, {vT1}, {vT0}, vcc")
        a(f"buffer_load_dword {vDUM}, {vT0}, {sE}, 0 offen")
        a(f"buffer_load_dword {vDUM}, {vT0}, {sW}, 0 offen")
        a(f"buffer_load_dword {vDUM}, {vT0}, {sO}, 0 offen")
        a.label("K_NOTLB")
    if opt.get('tagmode',1)==1:
        a.c("wave 0 notes what its own flag slot holds on entry: that value is no tag of this launch")
        a(f"s_cmp_lg_u32 {sWave}, 0")
        a("s_cbranch_scc1 K_S_NOOLD")
        a(f"s_lshl_b32 {sTmp}, s2, 4")
        a(f"s_add_u32 {sTmp}, {sTmp}, {FLG}")
        a(f"buffer_load_dword {aL0}, {vZ[0]}, {sW}, {sTmp} offen sc1")
        a.label("K_S_NOOLD")
    a("s_waitcnt lgkmcnt(0)")
    a("s_barrier")
    a(f"s_mul_i32 {sTmp}, s2, {CH}")
    a(f"s_sub_u32 {sLim}, {E}, {sTmp}")
    a(f"s_min_u32 {sLim}, {sLim}, {CH}")
    B4=D2[0:7]; RC=M[0:7]; RK1=D2[8:15]
    def bin_edges(nrec, el_of, waitcnt, masked):
        if masked:
            for u in range(nrec):
                el_of(u,vT1)
                a(f"v_cmp_gt_u32 {sMask[u]}, {sLim}, {vT1}")
        if waitcnt is not None: a(f"s_waitcnt vmcnt({waitcnt})")
        stamp(a,opt,1)
        for u in range(nrec):
            d=DS_[u]; s_=SR_[u]
            a(f"v_mul_hi_u32 {vT2}, {d}, {sK}")
            el_of(u,vT1)
            a(f"v_lshl_or_b32 {RC[u]}, {s_}, 12, {vT1}")
            a(f"v_lshrrev_b32 {B4[u]}, 1, {vT2}")
            a(f"v_mad_u32_u24 {vT3}, {vT2}, {s3125}, {v511}")
            a(f"v_and_b32 {B4[u]}, 0x3fc, {B4[u]}")
            a(f"v_lshrrev_b32 {vT3}, 9, {vT3}")
            if masked: a(f"s_mov_b64 exec, {sMask[u]}")
            a(f"ds_add_rtn_u32 {RK1[u]}, {B4[u]}, {vOne} offset:{L_RES}")
            if masked: a("s_mov_b64 exec, -1")
            a(f"v_sub_u32 {vT3}, {d}, {vT3}")
            a(f"v_and_b32 {vT2}, 7, {vT2}")
            a(f"v_lshl_or_b32 {vT3}, {vT2}, 3, {vT3}")
            a(f"v_lshl_or_b32 {RC[u]}, {vT3}, 26, {RC[u]}")
        a(f"v_mov_b32 {vT3}, {L_HST}")
        a(f"v_mov_b32 {vJ}, {L_NRES+4}")
        for u in range(nrec):
            if not masked: a(f"s_waitcnt lgkmcnt({nrec-1})")
            elif u==0: a("s_waitcnt lgkmcnt(0)")
            a(f"v_cmp_gt_u32 vcc, 32, {RK1[u]}")
            a(f"v_lshlrev_b32 {vT1}, 3, {RK1[u]}")
            a(f"v_lshrrev_b32 {vT2}, 2, {RK1[u]}")
            a(f"v_and_b32 {vT1}, 0x78, {vT1}")
            a(f"v_lshl_add_u32 {AD[0]}, {B4[u]}, 5, {vT3}")
            a(f"v_and_or_b32 {vT1}, {vT2}, 4, {vT1}")
            a(f"v_add_u32 {vT1}, {vT1}, {AD[0]}")
            a(f"v_cndmask_b32 {vT1}, {vJ}, {vT1}, vcc")
            if masked: a(f"s_mov_b64 exec, {sMask[u]}")
            a(f"ds_write_b32 {vT1}, {RC[u]}")
            if masked: a("s_mov_b64 exec, -1")
    a.c("wait for this wave's edges (younger loads: 12 for waves 5,6; 2 for wave 4; the tag store of workgroup 0)")
    a(f"s_mul_i32 {sTmp}, {sWave}, 384")
    a(f"v_lshl_add_u32 {vT0}, {vL}, 1, {sTmp}")
    a(f"s_cmp_eq_u32 {sWave}, 4")
    a("s_cbranch_scc1 K_S_WT4")
    a(f"s_sub_u32 {sTmp}, {sWave}, 5")
    a(f"s_cmp_lt_u32 {sTmp}, 2")
    a("s_cbranch_scc1 K_S_WT56")
    if opt.get('tlb',0):
        a(f"s_cmp_eq_u32 {sWave}, 2")
        a("s_cbranch_scc1 K_S_WT2")
    a("s_waitcnt vmcnt(0)")
    a("s_branch K_S_WTD")
    if opt.get('tlb',0):
        a.label("K_S_WT2")
        a("s_waitcnt vmcnt(3)")
        a("s_branch K_S_WTD")
    a.label("K_S_WT4")
    a("s_waitcnt vmcnt(2)")
    a("s_branch K_S_WTD")
    a.label("K_S_WT56")
    a("s_waitcnt vmcnt(12)")
    a.label("K_S_WTD")
    if opt.get('tagmode',1)==1:
        a.c("workgroup 0 publishes this launch's hand-off tag: the entry value of its flag slot plus one (never zero)")
        a(f"s_or_b32 {sTmp}, s2, {sWave}")
        a(f"s_cmp_lg_u32 {sTmp}, 0")
        a("s_cbranch_scc1 K_S_NOTAG")
        a(f"v_add_u32 {vT1}, 1, {aL0}")
        a(f"v_max_u32 {vT1}, 1, {vT1}")
        a(f"buffer_store_dword {vT1}, {vZ[0]}, {sT4c}, 0 offen sc1")
        a(f"buffer_store_dword {vT1}, {vZ[0]}, {sT4c}, 0 offen offset:128 sc1")
        a.label("K_S_NOTAG")
    def el6(u,r): a(f"v_add_u32 {r}, {128*(u>>1)+(u&1)}, {vT0}")
    def el7(u,r):
        if u<6: el6(u,r)
        else: a(f"v_add_u32 {r}, 3072, {vL}")
    a(f"s_cmp_lt_u32 {sLim}, {CH}")
    a("s_cbranch_scc1 K_S_APPM")
    a(f"s_cmp_eq_u32 {sWave}, 7")
    a("s_cbranch_scc1 K_S_APP7")
    bin_edges(6, el6, None, False)
    a("s_branch K_S_APPD")
    a.label("K_S_APP7")
    bin_edges(7, el7, None, False)
    a("s_branch K_S_APPD")
    a.label("K_S_APPM")
    a(f"s_cmp_eq_u32 {sWave}, 7")
    a("s_cbranch_scc1 K_S_APPM7")
    bin_edges(6, el6, None, True)
    a("s_branch K_S_APPD")
    a.label("K_S_APPM7")
    bin_edges(7, el7, None, True)
    a.label("K_S_APPD")
    def tag_fetch():
        a.c("wave 0 fetches the hand-off tag (one of its two copies); it is needed when the cell stores have left")
        a(f"s_and_b32 {sTagOff}, s2, 1")
        a(f"s_lshl_b32 {sTagOff}, {sTagOff}, 7")
        a(f"s_cmp_lg_u32 {sWave}, 0")
        a("s_cbranch_scc1 K_S_NOTAG1")
        a(f"buffer_load_dword {aE}, {vZ[0]}, {sT4c}, {sTagOff} offen sc1")
        a.label("K_S_NOTAG1")
    if opt.get('tagmode',1)==0: tag_fetch()
    load_hwin()
    def raww():
        a.c("waves 4, 7: raw w_e -> LDS (needed after barrier C); wave 4 rebuilds the descriptor it lent to the w_h warm-up")
        a(f"s_lshl_b32 {sTmp}, 1, {sWave}")
        a(f"s_and_b32 {sTmp}, {sTmp}, 0x90")
        a("s_cbranch_scc0 K_S_NORAW")
        a("s_load_dwordx2 s[100:101], s[0:1], 40")
        a(f"s_cmp_eq_u32 {sWave}, 7")
        a(f"s_cselect_b32 {sTmp3}, {10*1024}, 0")
        a("s_waitcnt lgkmcnt(0)")
        srd(a,sT4b,"s100","s101",145*128)
        for i in range(10):
            a(f"s_add_u32 {sTmp2}, {sTmp3}, {i*1024}")
            if i==9: a(f"s_min_u32 {sTmp2}, {sTmp2}, {18*1024}")
            a(f"s_add_u32 {sTmp}, {sTmp2}, {L_RAWW}")
            a(f"s_mov_b32 m0, {sTmp}")
            a("s_nop 0")
            a(f"buffer_load_dwordx4 {vL16}, {sT4b}, {sTmp2} offen lds")
        a.label("K_S_NORAW")
    if not opt.get('rawlate',0): raww()
    a("s_waitcnt lgkmcnt(0)")
    stamp(a,opt,14) if not opt.get('dbgfill',0) else None
    a("s_barrier")
    stamp(a,opt,2)
    def setup_static():
        a(f"v_and_b32 {vT1}, 31, {vL}")
        a(f"v_lshrrev_b32 {vT2}, 5, {vL}")
        a(f"v_lshlrev_b32 {vT0}, 3, {vT2}")
        a(f"v_sub_u32 {vT0}, {vT1}, {vT0}")
        a(f"v_mov_b32 {AD[2]}, 0x3f80")
        a(f"v_mov_b32 {AD[3]}, 0x3f800000")
        for sp in range(2):
            for r in range(4):
                k0=16*sp+2*r
                a(f"v_cmp_eq_u32 vcc, {k0}, {vT0}")
                a(f"v_cmp_eq_u32 {sSave}, {k0+1}, {vT0}")
                a("s_nop 0")
                a(f"v_cndmask_b32 {ID[4*sp+r]}, {vZ[0]}, {AD[2]}, vcc")
                a(f"v_cndmask_b32 {ID[4*sp+r]}, {ID[4*sp+r]}, {AD[3]}, {sSave}")
        a(f"v_cmp_lt_u32 vcc, 31, {vL}")
        a("s_nop 1")
        for i in range(1,4): a(f"v_mov_b32 {ONE[i]}, 0")
        a(f"v_cndmask_b32 {ONE[0]}, {AD[2]}, {vZ[0]}, vcc")
        for i in range(3):
            a(f"v_mov_b32 {PS[i]}, 0"); a(f"v_mov_b32 {PD[i]}, 0")
        a.c("static per-lane addresses of the main loop (window offsets are added after the assignment)")
        a(f"v_and_b32 {vT1}, 31, {vL}")
        a(f"v_lshrrev_b32 {vT2}, 5, {vL}")
        a(f"v_mov_b32 {vT3}, {L_A2}")
        a(f"v_lshl_add_u32 {vE64}, {vT1}, 6, {vT3}")
        a(f"v_bfe_u32 {vT0}, {vL}, 2, 2")
        a(f"v_lshl_add_u32 {vT0}, {vT2}, 2, {vT0}")
        a(f"v_lshl_add_u32 {vTR}, {vT0}, 6, {vT3}")
        a(f"v_bfe_u32 {vT0}, {vL}, 4, 1")
        a(f"v_lshl_add_u32 {vTR}, {vT0}, 5, {vTR}")
        a(f"v_and_b32 {vT0}, 3, {vL}")
        a(f"v_lshl_add_u32 {vTR}, {vT0}, 3, {vTR}")
        a(f"s_lshl_b32 {sHST}, {sWave}, 12")
        a(f"s_add_u32 {sHST}, {sHST}, {L_HST}")
        for i in range(4): a(f"s_add_u32 {sM0[i]}, {sHST}, {1024*i}")
        a(f"v_and_b32 {vT0}, 3, {vT1}")
        a(f"v_bfe_u32 {vT3}, {vT1}, 4, 1")
        a(f"v_lshl_or_b32 {vT3}, {vT3}, 2, {vT0}")
        a(f"v_lshlrev_b32 {vT0}, 3, {vT0}")
        a(f"v_lshrrev_b32 {vJ}, 2, {vT1}")
        a(f"v_add_u32 {vT0}, {vT0}, {vJ}")
        a(f"v_lshl_add_u32 {vT0}, {vT0}, 7, {sHST}")
        for s_ in range(4):
            a(f"v_add_u32 {vJ}, {2*s_}, {vT2}")
            a(f"v_xor_b32 {vJ}, {vJ}, {vT3}")
            a(f"v_lshl_add_u32 {vHA[s_]}, {vJ}, 4, {vT0}")
        a(f"v_and_b32 {vT0}, 7, {vL}")
        a(f"v_lshlrev_b32 {vT3}, 2, {vT2}")
        a(f"v_xor_b32 {vT0}, {vT0}, {vT3}")
        for i in range(4):
            a(f"v_xor_b32 {vJ}, {i}, {vT0}")
            a(f"v_lshlrev_b32 {vKD[i]}, 4, {vJ}")
        a(f"s_mov_b32 {sCAP}, {CAP}")
        a(f"s_sub_u32 {sTgt}, 11, {sWave}")
        a(f"s_cmp_lt_u32 {sWave}, 4")
        a(f"s_cselect_b32 {sTgt}, {sWave}, {sTgt}")
        a(f"v_lshrrev_b32 {aPS}, 3, {vL}")
        a(f"v_and_b32 {aPD}, 7, {vL}")
        a(f"v_lshlrev_b32 {aOH}, 2, {aPS}")
        a(f"v_lshlrev_b32 {SS}, 2, {aPD}")
    a(f"s_cmp_gt_u32 {sWave}, 3")
    a("s_cbranch_scc1 K_S_NOCOPY")
    a.c("waves 0..3 copy the cell image out: eight 16 B pieces per thread")
    a(f"v_lshlrev_b32 {vT0}, 4, v0")
    a(f"v_add_u32 {vT0}, {L_HST}, {vT0}")
    a(f"v_lshrrev_b32 {vT1}, 3, v0")
    a(f"v_lshlrev_b32 {vT2}, 2, {vT1}")
    CP=[D1[4*k:4*k+4] for k in range(8)]
    for k in range(4):
        a(f"ds_read_b128 {CP[k]}, {vT0} offset:{4096*k}")
        a(f"ds_read_b32 {D2[k]}, {vT2} offset:{L_RES+128*k}")
    a(f"v_and_b32 {vT3}, 7, v0")
    a(f"v_cmp_eq_u32 vcc, 0, {vT3}")
    a(f"v_mov_b32 {vJ}, -1")
    CT=opt.get('ctrans',0)
    a(f"v_lshlrev_b32 {vT1}, {7 if CT else 15}, {vT1}")
    a(f"v_cndmask_b32_e64 {AD[1]}, -1, -2, vcc")
    a(f"v_lshl_add_u32 {vT1}, {vT3}, 4, {vT1}")
    a(f"s_lshl_b32 {sTmp}, s2, {15 if CT else 7}")
    for k in range(8):
        if k<4:
            a(f"ds_read_b128 {CP[k+4]}, {vT0} offset:{4096*(k+4)}")
            a(f"ds_read_b32 {D2[k+4]}, {vT2} offset:{L_RES+128*(k+4)}")
            a("s_waitcnt lgkmcnt(8)")
        else:
            a(f"s_waitcnt lgkmcnt({2*(7-k)})")
        a(f"v_cmp_lt_u32 vcc, 32, {D2[k]}")
        a(f"s_add_u32 {sTmp2}, {sTmp}, {k*32*(128 if CT else 32768)}")
        a("s_nop 0")
        a(f"v_cndmask_b32 {CP[k][0]}, {CP[k][0]}, {AD[1]}, vcc")
        for i in range(1,4): a(f"v_cndmask_b32 {CP[k][i]}, {CP[k][i]}, {vJ}, vcc")
        a(f"buffer_store_dwordx4 {CP[k]}, {vT1}, {sW}, {sTmp2} offen{ST}")
    if opt.get('tagmode',1)==1: tag_fetch()
    a("s_branch K_S_STATIC")
    a.label("K_S_NOCOPY")
    a(f"s_sub_u32 {sTmp}, {sWave}, 5")
    a(f"s_cmp_lt_u32 {sTmp}, 2")
    a("s_cbranch_scc0 K_S_POS")
    a.c("waves 5,6: source-node table B' = -log2e * h @ W2 for 32 nodes")
    a(f"v_add_u32 {vT0}, {sC}, {vTRW}")
    a("s_waitcnt vmcnt(4)")
    for s_ in range(4):
        for x in range(2):
            for th in range(2):
                r=(s_*2+x)*4+2*th
                a(f"ds_read_b64_tr_b16 {D1[r:r+2]}, {vT0} offset:{s_*2048+th*512+x*64}")
    a("s_waitcnt lgkmcnt(0)")
    for x in range(2):
        for s_ in range(4):
            r=(s_*2+x)*4
            mfma(a,D2[16*x:16*x+16],D1[r:r+4],HA[4*s_:4*s_+4],"0" if s_==0 else D2[16*x:16*x+16])
    a(f"s_mul_i32 {sTmp}, {sI}, {32*144}")
    a(f"s_add_u32 {sTmp}, {sTmp}, {L_BST}")
    a(f"v_and_b32 {vT1}, 31, {vL}")
    a(f"v_mul_u32_u24 {vT1}, 144, {vT1}")
    a(f"v_lshrrev_b32 {vT2}, 5, {vL}")
    a(f"v_lshl_add_u32 {vT1}, {vT2}, 3, {vT1}")
    a(f"v_add_u32 {vT1}, {sTmp}, {vT1}")
    a(f"v_lshrrev_b32 {vT2}, 3, {vL}")
    a(f"v_mul_u32_u24 {vT3}, 144, {vT2}")
    a(f"v_and_b32 {vJ}, 7, {vL}")
    a(f"v_lshl_add_u32 {vT3}, {vJ}, 4, {vT3}")
    a(f"v_add_u32 {vT3}, {sTmp}, {vT3}")
    a(f"s_mov_b32 {sTmp2}, {NEG_LOG2E}")
    a.nop(4)
    for x in range(2):
        for q in range(16): a(f"v_mul_f32 {D2[16*x+q]}, {sTmp2}, {D2[16*x+q]}")
        for qq in range(4):
            b=16*x+4*qq
            a(f"v_cvt_pk_bf16_f32 {E01[0]}, {D2[b]}, {D2[b+1]}")
            a(f"v_cvt_pk_bf16_f32 {E01[1]}, {D2[b+2]}, {D2[b+3]}")
            a(f"ds_write_b64 {vT1}, {E01} offset:{x*64+qq*16}")
            a("s_nop 0")
    for i in range(4): a(f"ds_read_b128 {D1[4*i:4*i+4]}, {vT3} offset:{i*8*144}")
    a(f"s_lshl_b32 {sTmp2}, {sI}, 5")
    a(f"v_add_u32 {vT2}, {sTmp2}, {vT2}")
    a(f"s_mul_i32 {sTmp}, s2, {NPW}")
    a(f"v_add_u32 {vT0}, {sTmp}, {vT2}")
    a(f"v_lshlrev_b32 {vT1}, 7, {vT0}")
    a(f"v_lshl_add_u32 {vT1}, {vJ}, 4, {vT1}")
    a(f"v_mov_b32 {vJ}, 0x40000000")
    a("s_waitcnt lgkmcnt(0)")
    for i in range(4):
        a(f"v_add_u32 {vT3}, {8*i}, {vT2}")
        a(f"v_cmp_gt_u32 vcc, {NPW}, {vT3}")
        a(f"v_add_u32 {AD[0]}, {1024*i}, {vT1}")
        a("s_nop 0")
        a(f"v_cndmask_b32 {AD[0]}, {vJ}, {AD[0]}, vcc")
        a(f"buffer_store_dwordx4 {D1[4*i:4*i+4]}, {AD[0]}, {sB}, 0 offen{ST}")
    a("s_waitcnt vmcnt(4)")
    a("s_branch K_S_STATIC")
    a.label("K_S_POS")
    if opt.get('rawlate',0): raww()
    a.label("K_S_STATIC")
    setup_static()
    a.c("waves 0..3: every cell store has left; waves 4, 7: raw w_e / window rows landed; waves 5, 6 signal their rows later")
    a(f"s_sub_u32 {sTmp}, {sWave}, 5")
    a(f"s_cmp_lt_u32 {sTmp}, 2")
    a("s_cbranch_scc1 K_S_PREC")
    a("s_waitcnt vmcnt(0)")
    def have_tag(lbl):
        a(f"s_mov_b32 {sPoll}, 0")
        a.label(lbl)
        if opt.get('tagmode',1)==0:
            a(f"v_readfirstlane_b32 {sNonce}, {aE}")
            a("s_memrealtime s[100:101]")
            a("s_waitcnt lgkmcnt(0)")
            a(f"s_sub_u32 {sTmp}, s100, {sNonce}")
            a(f"s_add_u32 {sTmp}, {sTmp}, 1")
            a(f"s_cmp_lt_u32 {sTmp}, 2500")
            a(f"s_cselect_b32 {sTmp}, {sNonce}, 0")
            a(f"s_cmp_lg_u32 {sTmp}, 0")
            a(f"s_cbranch_scc1 {lbl}_OK")
        else:
            a(f"v_readfirstlane_b32 {sNonce}, {aE}")
            a(f"v_readfirstlane_b32 {sTmp2}, {aL0}")
            a("s_nop 3")
            a(f"s_cmp_lg_u32 {sNonce}, {sTmp2}")
            a(f"s_cselect_b32 {sTmp}, {sNonce}, 0")
            a(f"s_cmp_lg_u32 {sTmp}, 0")
            a(f"s_cbranch_scc1 {lbl}_OK")
        a(f"s_add_u32 {sPoll}, {sPoll}, 1")
        a(f"s_cmp_gt_u32 {sPoll}, 200000")
        a(f"s_cbranch_scc1 {lbl}_OK")
        a(f"s_cmp_gt_u32 {sPoll}, 1000")
        a(f"s_cselect_b32 {sTmp}, {sNonce}, 0")
        a(f"s_cmp_lg_u32 {sTmp}, 0")
        a(f"s_cbranch_scc1 {lbl}_OK")
        if opt.get('tagmode',1)==0: a("s_sleep 2")
        a(f"buffer_load_dword {aE}, {vZ[0]}, {sT4c}, {sTagOff} offen sc1")
        a("s_waitcnt vmcnt(0)")
        a(f"s_branch {lbl}")
        a.label(f"{lbl}_OK")
    a(f"s_cmp_lg_u32 {sWave}, 0")
    a("s_cbranch_scc1 K_S_PREC")
    have_tag("K_G_TAG")
    a(f"v_mov_b32 {vT0}, {sNonce}")
    a(f"ds_write_b32 {vZ[0]}, {vT0} offset:{L_NRES+8}")
    a.label("K_S_PREC")
    a("s_waitcnt lgkmcnt(0)")
    stamp(a,opt,15) if not opt.get('dbgfill',0) else None
    a("s_barrier")
    stamp(a,opt,3)
    a(f"s_cmp_lg_u32 {sWave}, 0")
    a("s_cbranch_scc1 K_G_NOT0")
    a.c("wave 0: signal this workgroup's cells")
    a(f"s_lshl_b32 {sTmp}, s2, 4")
    a(f"s_add_u32 {sTmp}, {sTmp}, {FLG}")
    a(f"v_mov_b32 {vT0}, {sNonce}")
    a(f"buffer_store_dword {vT0}, {vZ[0]}, {sW}, {sTmp} offen sc1")
    a("s_branch K_G_SETUP")
    a.label("K_G_NOT0")
    a(f"s_cmp_lt_u32 {sWave}, 4")
    a("s_cbranch_scc1 K_G_WH")
    a(f"s_sub_u32 {sTmp}, {sWave}, 5")
    a(f"s_cmp_lt_u32 {sTmp}, 2")
    a("s_cbranch_scc1 K_G_SETUP")
    a.c("waves 4, 7: pos table -> LDS (37 pieces each)")
    a(f"s_cmp_eq_u32 {sWave}, 7")
    a(f"s_cselect_b32 {sI}, {37*1024}, 0")
    for i in range(37):
        a(f"s_add_u32 {sTmp}, {sI}, {i*1024}")
        a(f"s_add_u32 {sTmp2}, {sTmp}, {L_POS}")
        a(f"s_mov_b32 m0, {sTmp2}")
        a("s_nop 0")
        a(f"buffer_load_dwordx4 {vL16}, {sP}, {sTmp} offen lds")
    a("s_branch K_G_SETUP")
    a.label("K_G_WH")
    a.c("waves 1..3: raw w_h -> staging area")
    a("s_load_dwordx2 s[64:65], s[0:1], 56")
    a(f"s_sub_u32 {sI}, {sWave}, 1")
    a("s_waitcnt lgkmcnt(0)")
    srd(a,sT4b,"s64","s65",128*128)
    for k in range(6):
        a(f"s_add_u32 {sTmp}, {sI}, {3*k}")
        a(f"s_min_u32 {sTmp}, {sTmp}, 15")
        a(f"s_lshl_b32 {sTmp}, {sTmp}, 10")
        a(f"s_add_u32 {sTmp2}, {sTmp}, {L_HST}")
        a(f"s_mov_b32 m0, {sTmp2}")
        a("s_nop 0")
        a(f"buffer_load_dwordx4 {vL16}, {sT4b}, {sTmp} offen lds")
    a.label("K_G_SETUP")
    a.c("operands from raw w_e: W1 (for A'), W4', wd'")
    W1=D2
    a(f"v_add_u32 {vT0}, {L_RAWW}, {vTRW}")
    for s_ in range(4):
        for x in range(2):
            for th in range(2):
                r=(s_*2+x)*4+2*th
                a(f"ds_read_b64_tr_b16 {W1[r:r+2]}, {vT0} offset:{s_*2048+th*512+x*64}")
    W4R=HA[0:8]
    for x in range(2):
        for th in range(2):
            a(f"ds_read_b64_tr_b16 {W4R[4*x+2*th:4*x+2*th+2]}, {vT0} offset:{129*128+th*512+x*64}")
    WD=M[0:2]
    a(f"v_mov_b32 {WD[0]}, 0")
    a(f"v_mov_b32 {WD[1]}, 0")
    a(f"v_and_b32 {vT1}, 31, {vL}")
    a(f"v_lshlrev_b32 {vT2}, 1, {vT1}")
    a(f"v_add_u32 {vT2}, {L_RAWW+128*128}, {vT2}")
    a(f"ds_read_u16_d16_hi {WD[0]}, {vT2}")
    a(f"ds_read_u16_d16_hi {WD[1]}, {vT2} offset:64")
    a("s_waitcnt lgkmcnt(0)")
    for x in range(2):
        for s_ in range(4):
            mfma(a,D1[16*x:16*x+16],HW[4*s_:4*s_+4],W1[(s_*2+x)*4:(s_*2+x)*4+4],"0" if s_==0 else D1[16*x:16*x+16])
    a(f"s_mov_b32 {sTmp}, {NEG_LOG2E}")
    for i in range(8):
        a(f"v_lshlrev_b32 {vT0}, 16, {W4R[i]}")
        a(f"v_and_b32 {vT2}, 0xffff0000, {W4R[i]}")
        a(f"v_mul_f32 {vT0}, {sTmp}, {vT0}")
        a(f"v_mul_f32 {vT2}, {sTmp}, {vT2}")
        a(f"v_cvt_pk_bf16_f32 {WE[i]}, {vT0}, {vT2}")
    a(f"v_cmp_lt_u32 vcc, 31, {vL}")
    for x in range(2):
        a(f"v_mul_f32 {WD[x]}, {sTmp}, {WD[x]}")
        a(f"v_cvt_pk_bf16_f32 {vT0}, {WD[x]}, {WD[x]}")
        a(f"v_and_b32 {vT0}, 0xffff0000, {vT0}")
        a(f"v_sub_f32 {vT2}, {WD[x]}, {vT0}")
        a(f"v_cvt_pk_bf16_f32 {vT2}, {vT2}, {vT2}")
        a(f"v_and_b32 {vT2}, 0xffff0000, {vT2}")
        a(f"v_cndmask_b32 {WD[x]}, {vT0}, {vT2}, vcc")
    a(f"s_cmp_lg_u32 {sWave}, 0")
    a("s_cbranch_scc1 K_G_NOEARLY")
    def poll_loads():
        a(f"s_mov_b32 {sTmp2}, {FLG}")
        for k in range(4): a(f"buffer_load_dword {(T[k] if opt.get('ppoll',0) else AD[k])}, {vL16}, {sW}, {sTmp2} offen offset:{1024*k} sc1")
        if opt.get('hpf',0):
            for hh in range(2):
                a(f"s_mov_b32 {sTmp2}, {FLG2+4096*hh}")
                for k in range(4): a(f"buffer_load_dword {A2R[4*hh+k]}, {vL16}, {sW}, {sTmp2} offen offset:{1024*k} sc1")
    poll_loads()
    a.label("K_G_NOEARLY")
    a(f"v_cmp_lt_u32 vcc, 31, {vL}")
    a(f"v_mov_b32 {vJ}, 0xffff")
    for x in range(2):
        for r in range(4):
            q0,q1=D1[16*x+2*r],D1[16*x+2*r+1]
            a(f"v_mul_f32 {q0}, {sTmp}, {q0}")
            a(f"v_mul_f32 {q1}, {sTmp}, {q1}")
            a(f"v_cvt_pk_bf16_f32 {vT0}, {q0}, {q1}")
            a(f"v_lshlrev_b32 {vT1}, 16, {vT0}")
            a(f"v_and_b32 {vT2}, 0xffff0000, {vT0}")
            a(f"v_sub_f32 {vT1}, {q0}, {vT1}")
            a(f"v_sub_f32 {vT2}, {q1}, {vT2}")
            a(f"v_cvt_pk_bf16_f32 {vT1}, {vT1}, {vT2}")
            a(f"v_cndmask_b32 {WA[4*x+r]}, {vT0}, {vT1}, vcc")
        a(f"v_bfi_b32 {WA[4*x+3]}, {vJ}, {WA[4*x+3]}, {WD[x]}")
    a(f"s_lshl_b32 {sTmp}, {sWave}, 11")
    a(f"s_add_u32 {sTmp}, {sTmp}, {L_A2}")
    a(f"v_lshl_add_u32 {vT0}, {vL}, 5, {sTmp}")
    a(f"ds_write_b128 {vT0}, {WA[0:4]}")
    a(f"ds_write_b128 {vT0}, {WA[4:8]} offset:16")
    for i in range(32): a(f"v_mov_b32 {D2[i]}, 0")
    a(f"s_sub_u32 {sTmp}, {sWave}, 5")
    a(f"s_cmp_lt_u32 {sTmp}, 2")
    a("s_cbranch_scc0 K_G_NOFLG2")
    a.c("waves 5,6: their rows have left -> signal them")
    a(f"ds_read_b32 {aE}, {vZ[0]} offset:{L_NRES+8}")
    a("s_waitcnt vmcnt(0) lgkmcnt(0)")
    a(f"v_readfirstlane_b32 {sNonce}, {aE}")
    a("s_nop 3")
    a(f"s_lshl_b32 {sTmp}, s2, 1")
    a(f"s_add_u32 {sTmp}, {sTmp}, {sWave}")
    a(f"s_sub_u32 {sTmp}, {sTmp}, 5")
    a(f"s_lshl_b32 {sTmp}, {sTmp}, 4")
    a(f"s_add_u32 {sTmp}, {sTmp}, {FLG2}")
    a(f"v_mov_b32 {vT0}, {sNonce}")
    a(f"buffer_store_dword {vT0}, {vZ[0]}, {sW}, {sTmp} offen sc1")
    a.label("K_G_NOFLG2")
    a(f"s_cmp_lg_u32 {sWave}, 0")
    a("s_cbranch_scc1 K_G_WAIT")
    if not opt.get('ppoll',0):
        a.c("wave 0: wait for all hand-offs (the first round of flag loads is already in flight)")
        a("s_branch K_G_POLL1")
        a.label("K_G_POLL")
        poll_loads()
        a.label("K_G_POLL1")
        a("s_waitcnt vmcnt(0)")
        PF=[AD[k] for k in range(4)]+([A2R[k] for k in range(8)] if opt.get('hpf',0) else [])
        a(f"v_cmp_eq_u32 {sAny}, {sNonce}, {PF[0]}")
        for r_ in PF[1:]:
            a(f"v_cmp_eq_u32 vcc, {sNonce}, {r_}")
            a("s_nop 1")
            a(f"s_and_b64 {sAny}, {sAny}, vcc")
        a(f"s_cmp_eq_u64 {sAny}, -1")
        a("s_cbranch_scc1 K_G_WAIT")
        a(f"s_add_u32 {sPoll}, {sPoll}, 1")
        a(f"s_cmp_lt_u32 {sPoll}, 200000")
        a("s_cbranch_scc1 K_G_POLL")
    else:
        a.c("wave 0: wait for all hand-offs; two rounds of flag loads are kept in flight")
        def pl(regs):
            for k in range(4): a(f"buffer_load_dword {regs[k]}, {vL16}, {sW}, {sI} offen offset:{1024*k} sc1")
        def chk(regs):
            a(f"v_cmp_eq_u32 {sAny}, {sNonce}, {regs[0]}")
            for r_ in regs[1:]:
                a(f"v_cmp_eq_u32 vcc, {sNonce}, {r_}")
                a("s_nop 1")
                a(f"s_and_b64 {sAny}, {sAny}, vcc")
            a(f"s_cmp_eq_u64 {sAny}, -1")
            a("s_cbranch_scc1 K_G_SEEN")
        SA=[T[k] for k in range(4)]; SB=[T[4+k] for k in range(4)]
        a(f"s_mov_b32 {sI}, {FLG}")
        a.label("K_G_POLL")
        pl(SB)
        a("s_waitcnt vmcnt(4)")
        chk(SA)
        pl(SA)
        a("s_waitcnt vmcnt(4)")
        chk(SB)
        a(f"s_add_u32 {sPoll}, {sPoll}, 1")
        a(f"s_cmp_lt_u32 {sPoll}, 100000")
        a("s_cbranch_scc1 K_G_POLL")
        a.label("K_G_SEEN")
        a("s_waitcnt lgkmcnt(0)")
        a("s_branch K_G_GO")
    a.label("K_G_WAIT")
    a.c("waves 4 and 7 keep their pos pieces in flight: their cell loads return behind them")
    a(f"s_lshl_b32 {sTmp}, 1, {sWave}")
    a(f"s_and_b32 {sTmp}, {sTmp}, 0x90")
    a("s_cbranch_scc1 K_G_WAIT47")
    a("s_waitcnt vmcnt(0)")
    a.label("K_G_WAIT47")
    a("s_waitcnt lgkmcnt(0)")
    a.label("K_G_GO")
    for _ in range(opt.get('delay',0)): a("s_sleep 32")
    a("s_barrier")
    stamp(a,opt,4)
    RECP=D1[0:16]; REC=[RECP[2*i] for i in range(8)]+[RECP[2*i+1] for i in range(8)]; WAD=D1[16:32]; RK=HA
    a.c("cell records of this bin: pair s holds slots m and 16+m (m = l&15) of cell 32s+4v+(l>>4)")
    if not CT:
        a(f"s_lshl_b32 {sTmp}, s2, 15")
        a(f"s_lshl_b32 {sTmp2}, {sWave}, 9")
        a(f"s_add_u32 {sTmp}, {sTmp}, {sTmp2}")
        a(f"v_lshl_add_u32 {vT0}, {vL}, 3, {sTmp}")
    else:
        a(f"s_lshl_b32 {sTmp}, s2, 7")
        a(f"s_lshl_b32 {sTmp2}, {sWave}, 17")
        a(f"s_add_u32 {sTmp}, {sTmp}, {sTmp2}")
        a(f"v_lshrrev_b32 {vT0}, 4, {vL}")
        a(f"v_lshlrev_b32 {vT0}, 15, {vT0}")
        a(f"v_and_b32 {vT1}, 15, {vL}")
        a(f"v_lshl_add_u32 {vT0}, {vT1}, 3, {vT0}")
        a(f"v_add_u32 {vT0}, {sTmp}, {vT0}")
    ROT=opt.get('rot',0)
    if ROT==1: a(f"s_getreg_b32 {sRot}, hwreg(HW_REG_XCC_ID, 0, 4)")
    elif ROT==2: a(f"s_and_b32 {sRot}, s2, 7")
    elif ROT==3:
        a(f"s_getreg_b32 {sRot}, hwreg(HW_REG_XCC_ID, 0, 4)")
        a(f"s_and_b32 {sRot}, {sRot}, 3")
        a(f"s_lshl_b32 {sRot}, {sRot}, 1")
    else: a(f"s_mov_b32 {sRot}, 0")
    def pair_index(dst,s_):
        a(f"s_add_u32 {dst}, {sRot}, {s_}")
        a(f"s_and_b32 {dst}, {dst}, 7")
    for s_ in range(8):
        pair_index(sTmp,s_)
        a(f"s_lshl_b32 {sTmp}, {sTmp}, {20 if CT else 12}")
        a(f"buffer_load_dwordx2 {RECP[2*s_:2*s_+2]}, {vT0}, {sW}, {sTmp} offen{LD}")
    a(f"v_lshlrev_b32 {vT2}, 1, {vL}")
    a(f"v_and_b32 {vT2}, 62, {vT2}")
    a("s_load_dwordx2 s[98:99], s[0:1], 48")
    a.c("node-update weights (transposed reads of raw w_h), waves 0..3 use them")
    a(f"s_and_b32 {sTmp}, {sWave}, 1")
    a(f"s_lshl_b32 {sTmp}, {sTmp}, 6")
    a(f"s_add_u32 {sTmp}, {sTmp}, {L_HST}")
    a(f"v_add_u32 {vT1}, {sTmp}, {vTRW}")
    for s_ in range(8):
        for th in range(2):
            a(f"ds_read_b64_tr_b16 {WH[4*s_+2*th:4*s_+2*th+2]}, {vT1} offset:{s_*2048+th*512}")
            if (2*s_+th)==7: a("s_waitcnt lgkmcnt(0)")
    srd(a,sT4,"s98","s99",128)
    a(f"v_mov_b32 {WX[0]}, 0")
    a(f"v_mov_b32 {WX[1]}, 0")
    a(f"buffer_load_short_d16_hi {WX[0]}, {vT2}, {sT4}, 0 offen")
    a(f"buffer_load_short_d16_hi {WX[1]}, {vT2}, {sT4}, 0 offen offset:64")
    a("s_waitcnt vmcnt(2)")
    stamp(a,opt,5)
    a(f"s_mov_b64 {sAny}, 0")
    for s_ in range(16):
        a(f"v_cmp_gt_u32 {sMask[s_]}, {sMark}, {REC[s_]}")
        if s_<8:
            a(f"v_cmp_eq_u32 vcc, {sMark}, {REC[s_]}")
        a(f"v_lshrrev_b32 {WAD[s_]}, 27, {REC[s_]}")
        a(f"v_and_b32 {WAD[s_]}, 0x1c, {WAD[s_]}")
        if s_<8: a(f"s_or_b64 {sAny}, {sAny}, vcc")
    order=[x for p in range(8) for x in (p,8+p)]
    for n_,s_ in enumerate(order):
        a(f"s_mov_b64 exec, {sMask[s_]}")
        if s_>=8: a(f"s_cbranch_execz K2_A{s_}")
        a(f"ds_add_rtn_u32 {RK[s_]}, {WAD[s_]}, {vOne} offset:{L_CNT}")
        if s_>=8: a.label(f"K2_A{s_}")
        if n_==7:
            a("s_waitcnt lgkmcnt(4)")
    a("s_mov_b64 exec, -1")
    FL=A2R
    def flg2_loads():
        a(f"s_mov_b32 {sTmp2}, {FLG2}")
        for k in range(4): a(f"buffer_load_dword {FL[k]}, {vL16}, {sW}, {sTmp2} offen offset:{1024*k} sc1")
        a(f"s_mov_b32 {sTmp2}, {FLG2+4096}")
        for k in range(4): a(f"buffer_load_dword {FL[4+k]}, {vL16}, {sW}, {sTmp2} offen offset:{1024*k} sc1")
    a(f"s_cmp_lg_u32 {sWave}, {99 if opt.get('hpf',0) else 1}")
    a("s_cbranch_scc1 K2_NOF2A")
    a.c("wave 1: flags of the source-node table (checked before barrier 2)")
    flg2_loads()
    a(f"ds_read_b32 {aE}, {vZ[0]} offset:{L_NRES+8}")
    a.label("K2_NOF2A")
    a(f"s_lshl_b32 {sTmp}, {sWave}, 2")
    a(f"v_lshrrev_b32 {vT0}, 4, {vL}")
    a(f"v_add_u32 {vT0}, {sTmp}, {vT0}")
    a(f"v_mul_u32_u24 {vT0}, {CH}, {vT0}")
    NE=opt.get('epf',1)
    def epf_block():
        if NE:
            a.c("L2 warm-up of the e_attr lines of the first records (speed only; results are never read)")
            a(f"s_lshl_b32 {sTmp}, {sWave}, 2")
            a(f"v_lshrrev_b32 {vT0}, 4, {vL}")
            a(f"v_add_u32 {vT0}, {sTmp}, {vT0}")
            a(f"v_mul_u32_u24 {vT0}, {CH}, {vT0}")
            a(f"v_mov_b32 {vT2}, 0x2000000")
            RKF=opt.get('rkf',0)
            if RKF: a("s_waitcnt lgkmcnt(0)")
            for k in range(NE):
                a(f"v_cmp_gt_u32 vcc, {sMark}, {REC[k]}")
                if RKF:
                    a(f"v_cmp_gt_u32 {sSave}, {RKF}, {RK[k]}")
                a(f"v_and_b32 {vT1}, 0xfff, {REC[k]}")
                pair_index(sTmp,k)
                a(f"s_mul_i32 {sTmp}, {sTmp}, {32*CH}")
                if RKF: a(f"s_and_b64 vcc, vcc, {sSave}")
                a(f"v_add3_u32 {vT1}, {vT1}, {vT0}, {sTmp}")
                if opt.get('hpf',0): a(f"v_bfe_u32 {vT3}, {REC[k]}, 12, 14")
                else: a("s_nop 0")
                a(f"v_cndmask_b32 {vT1}, {vT2}, {vT1}, vcc")
                a(f"v_lshlrev_b32 {vT1}, 5, {vT1}")
                a(f"buffer_load_dword {vDUM}, {vT1}, {sE}, 0 offen")
                if opt.get('hpf',0):
                    a(f"v_cndmask_b32 {vT3}, {vT2}, {vT3}, vcc")
                    a(f"v_lshlrev_b32 {vT3}, 7, {vT3}")
                    a(f"buffer_load_dword {vDUM}, {vT3}, {sB}, 0 offen{HLD}")
    if opt.get('epfpos',1)==1:
        epf_block()
        a(f"s_lshl_b32 {sTmp}, {sWave}, 2")
        a(f"v_lshrrev_b32 {vT0}, 4, {vL}")
        a(f"v_add_u32 {vT0}, {sTmp}, {vT0}")
        a(f"v_mul_u32_u24 {vT0}, {CH}, {vT0}")
    a(f"v_mov_b32 {vT1}, {L_L0}")
    a(f"v_mov_b32 {vT2}, {L_L1}")
    a("s_waitcnt lgkmcnt(0)")
    for s_ in order:
        a(f"s_mov_b64 exec, {sMask[s_]}")
        if s_>=8: a(f"s_cbranch_execz K2_B{s_}")
        pair_index(sTmp,s_&7)
        a(f"s_mul_i32 {sTmp}, {sTmp}, {32*CH}")
        a(f"v_min_u32 {RK[s_]}, {CAPX-1}, {RK[s_]}")
        a(f"v_and_b32 {vT3}, 0xfff, {REC[s_]}")
        a(f"v_mad_u32_u24 {RK[s_]}, {WAD[s_]}, {sCAPq}, {RK[s_]}")
        a(f"v_add3_u32 {vT3}, {vT3}, {vT0}, {sTmp}")
        a(f"v_bfe_u32 {vJ}, {REC[s_]}, 26, 3")
        a(f"v_lshl_add_u32 {AD[0]}, {RK[s_]}, 2, {vT1}")
        a(f"v_lshl_or_b32 {vT3}, {vT3}, 5, {vJ}")
        a(f"v_lshl_add_u32 {AD[1]}, {RK[s_]}, 1, {vT2}")
        a(f"v_bfe_u32 {vJ}, {REC[s_]}, 12, 14")
        a(f"ds_write_b32 {AD[0]}, {vT3}")
        a(f"ds_write_b16 {AD[1]}, {vJ}")
        if s_>=8: a.label(f"K2_B{s_}")
    a("s_mov_b64 exec, -1")
    if opt.get('epfpos',1)==0: epf_block()
    a.c("overflowed cells -> rescan list (rare)")
    a(f"s_cmp_eq_u64 {sAny}, 0")
    a("s_cbranch_scc1 K2_NOMARK")
    a(f"v_lshrrev_b32 {vT0}, 4, {vL}")
    a(f"s_lshl_b32 {sTmp}, {sWave}, 2")
    a(f"v_add_u32 {vT0}, {sTmp}, {vT0}")
    a(f"v_mov_b32 {vT1}, {L_NRES}")
    for s_ in range(8):
        a(f"v_cmp_eq_u32 vcc, {sMark}, {REC[s_]}")
        a(f"s_and_saveexec_b64 {sSave}, vcc")
        a(f"s_cbranch_execz K2_MK{s_}")
        a(f"ds_add_rtn_u32 {vT2}, {vT1}, {vOne}")
        pair_index(sTmp,s_)
        a(f"s_lshl_b32 {sTmp}, {sTmp}, 5")
        a(f"v_add_u32 {vT3}, {sTmp}, {vT0}")
        a("s_waitcnt lgkmcnt(0)")
        a(f"v_lshlrev_b32 {vT2}, 2, {vT2}")
        a(f"ds_write_b32 {vT2}, {vT3} offset:{L_RES}")
        a.label(f"K2_MK{s_}")
        a(f"s_mov_b64 exec, {sSave}")
    a.label("K2_NOMARK")
    a("s_load_dwordx2 s[64:65], s[0:1], 0")
    a(f"s_waitcnt vmcnt({opt.get('epf',1)*(2 if opt.get('hpf',0) else 1)}) lgkmcnt(0)")
    a(f"s_cmp_lg_u32 {sWave}, {99 if opt.get('hpf',0) else 1}")
    a("s_cbranch_scc1 K2_NOF2B")
    a(f"v_readfirstlane_b32 {sNonce}, {aE}")
    a(f"s_mov_b32 {sPoll}, 0")
    a("s_nop 1")
    a.label("K2_F2CHK")
    a(f"v_cmp_eq_u32 {sAny}, {sNonce}, {FL[0]}")
    for k in range(1,8):
        a(f"v_cmp_eq_u32 vcc, {sNonce}, {FL[k]}")
        a("s_nop 1")
        a(f"s_and_b64 {sAny}, {sAny}, vcc")
    a(f"s_cmp_eq_u64 {sAny}, -1")
    a("s_cbranch_scc1 K2_NOF2B")
    a(f"s_add_u32 {sPoll}, {sPoll}, 1")
    a(f"s_cmp_gt_u32 {sPoll}, 200000")
    a("s_cbranch_scc1 K2_NOF2B")
    flg2_loads()
    a("s_waitcnt vmcnt(0)")
    a("s_branch K2_F2CHK")
    a.label("K2_NOF2B")
    srd(a,sHs,"s64","s65",N*128)
    a(f"s_mov_b32 {sTmp}, {NEG_LN2}")
    a(f"v_mul_f32 {WX[0]}, {sTmp}, {WX[0]}")
    a(f"v_mul_f32 {WX[1]}, {sTmp}, {WX[1]}")
    stamp(a,opt,6)
    a("s_barrier")
    stamp(a,opt,7)
    a.c("window sizes (lane = pair i,k) and the rescan count")
    a(f"v_mov_b32 {vT0}, {L_NRES}")
    a(f"ds_read_b32 {vT1}, {vT0}")
    a(f"ds_read_b32 {vT2}, {aOH} offset:{L_CNT}")
    a(f"ds_read_b32 {vT3}, {SS} offset:{L_CNT}")
    a("s_waitcnt lgkmcnt(0)")
    a(f"v_readfirstlane_b32 {sNR}, {vT1}")
    a(f"v_min_u32 {vT0}, 0xffffff, {vT2}")
    a(f"v_min_u32 {vJ}, 0xffffff, {vT3}")
    a(f"s_cmp_eq_u32 {sNR}, 0")
    a("s_cbranch_scc1 K2_CHECK")
    a(f"s_min_u32 {sNR}, {sNR}, 256")
    a(f"s_mov_b32 {sI}, 0")
    a.label("K2_RESCAN_I")
    a(f"s_lshl_b32 {sTmp}, {sI}, 2")
    a(f"s_add_u32 {sTmp}, {sTmp}, {L_RES}")
    a(f"v_mov_b32 {vT0}, {sTmp}")
    a(f"ds_read_b32 {vT1}, {vT0}")
    a("s_waitcnt lgkmcnt(0)")
    a(f"v_readfirstlane_b32 {sWsrc}, {vT1}")
    a("s_nop 3")
    a(f"s_min_u32 {sWsrc}, {sWsrc}, 255")
    a(f"s_mov_b32 {sC}, 0")
    a.label("K2_RESCAN_C")
    def append_raw(lim_local):
        a(f"v_lshlrev_b32 {vT1}, 2, {vT0}")
        a(f"buffer_load_dword {AD[0]}, {vT1}, {sD}, 0 offen")
        a(f"buffer_load_dword {AD[1]}, {vT1}, {sS}, 0 offen")
        a("s_waitcnt vmcnt(0)")
        a(f"v_mul_hi_u32 {vT2}, {AD[0]}, {sK}")
        a(f"v_lshrrev_b32 {vT3}, 3, {vT2}")
        a(f"v_cmp_eq_u32 vcc, s2, {vT3}")
        a("s_nop 1")
        a(f"s_and_b64 vcc, vcc, {sAny}")
        a(f"s_and_saveexec_b64 {sSave}, vcc")
        a(f"s_cbranch_execz {lim_local}")
        a(f"v_mad_u32_u24 {vT3}, {vT2}, {s3125}, {v511}")
        a(f"v_and_b32 {vT2}, 7, {vT2}")
        a(f"v_lshrrev_b32 {vT3}, 9, {vT3}")
        a(f"v_lshlrev_b32 {vT2}, 2, {vT2}")
        a(f"v_sub_u32 {vT3}, {AD[0]}, {vT3}")
        a(f"ds_add_rtn_u32 {AD[2]}, {vT2}, {vOne} offset:{L_CNT}")
        a(f"v_lshl_or_b32 {vT0}, {vT0}, 5, {vT3}")
        a("s_waitcnt lgkmcnt(0)")
        a(f"v_min_u32 {AD[2]}, {CAPX-1}, {AD[2]}")
        a(f"v_mad_u32_u24 {AD[2]}, {vT2}, {sCAPq}, {AD[2]}")
        a(f"v_mov_b32 {vT2}, {L_L0}")
        a(f"v_mov_b32 {vT3}, {L_L1}")
        a(f"v_lshl_add_u32 {vT2}, {AD[2]}, 2, {vT2}")
        a(f"v_lshl_add_u32 {vT3}, {AD[2]}, 1, {vT3}")
        a(f"ds_write_b32 {vT2}, {vT0}")
        a(f"ds_write_b16 {vT3}, {AD[1]}")
        a.label(lim_local)
        a(f"s_mov_b64 exec, {sSave}")
    a(f"s_lshl_b32 {sTmp}, {sC}, 9")
    a(f"v_add_u32 {vT1}, {sTmp}, v0")
    a(f"s_mul_i32 {sTmp2}, {sWsrc}, {CH}")
    a(f"v_add_u32 {vT0}, {sTmp2}, {vT1}")
    a(f"v_cmp_gt_u32 vcc, {CH}, {vT1}")
    a(f"s_mov_b32 {sTmp}, {E}")
    a(f"v_cmp_gt_u32 {sAny}, {sTmp}, {vT0}")
    a("s_nop 1")
    a(f"s_and_b64 {sAny}, {sAny}, vcc")
    append_raw("K2_RA1")
    a(f"s_add_u32 {sC}, {sC}, 1")
    a(f"s_cmp_lt_u32 {sC}, 7")
    a("s_cbranch_scc1 K2_RESCAN_C")
    a(f"s_add_u32 {sI}, {sI}, 1")
    a(f"s_cmp_lt_u32 {sI}, {sNR}")
    a("s_cbranch_scc1 K2_RESCAN_I")
    a("s_waitcnt lgkmcnt(0)")
    a("s_barrier")
    a(f"ds_read_b32 {vT2}, {aOH} offset:{L_CNT}")
    a(f"ds_read_b32 {vT3}, {SS} offset:{L_CNT}")
    a("s_waitcnt lgkmcnt(0)")
    a(f"v_min_u32 {vT0}, 0xffffff, {vT2}")
    a(f"v_min_u32 {vJ}, 0xffffff, {vT3}")
    a.label("K2_CHECK")
    a.c("window assignment by size rank")
    a(f"v_lshl_or_b32 {vT0}, {vT0}, 3, {aPS}")
    a(f"v_lshl_or_b32 {vJ}, {vJ}, 3, {aPD}")
    a(f"v_cmp_lt_u32 {sAny}, {sCAP}, {vT3}")
    a(f"v_cmp_gt_u32 vcc, {vJ}, {vT0}")
    a(f"s_mov_b32 {sWin}, 0")
    a("s_nop 2")
    for i in range(8):
        a(f"s_bfe_u32 {sTmp}, {'vcc_lo' if i<4 else 'vcc_hi'}, {(8<<16)|(8*(i&3))}")
        a(f"s_bcnt1_i32_b32 {sTmp}, {sTmp}")
        a(f"s_cmp_eq_u32 {sTmp}, {sTgt}")
        a(f"s_cselect_b32 {sWin}, {i}, {sWin}")
    if opt.get('nobal',0): a(f"s_mov_b32 {sWin}, {sWave}")
    a(f"s_lshl_b32 {sTmp}, {sWin}, 3")
    a(f"v_readlane_b32 {sCnt}, {vT2}, {sTmp}")
    geometry(sWin)
    a(f"s_lshl_b32 {sTmp}, {sWin}, 11")
    a(f"v_add_u32 {vE64}, {sTmp}, {vE64}")
    a(f"v_add_u32 {vTR}, {sTmp}, {vTR}")
    a(f"s_add_u32 {sTmp}, {sTmp}, {L_A2}")
    a(f"v_lshl_add_u32 {vT0}, {vL}, 5, {sTmp}")
    a(f"ds_read_b128 {WA[0:4]}, {vT0}")
    a(f"ds_read_b128 {WA[4:8]}, {vT0} offset:16")
    for i in range(4): a(f"v_mov_b32 {A2R[i]}, 0")
    a(f"ds_write_b128 {vT0}, {A2R[0:4]}")
    a(f"ds_write_b128 {vT0}, {A2R[0:4]} offset:16")
    a(f"s_cmp_eq_u64 {sAny}, 0")
    a("s_cbranch_scc1 K2_MAIN")
    a.c("generic (slow) mode: raw scan of all edges, 512 per round")
    a(f"s_mov_b32 {sMode}, 1")
    a.label("K2_GEN")
    a("s_barrier")
    a(f"s_cmp_lg_u32 {sWave}, 0")
    a("s_cbranch_scc1 K2_GEN1")
    a(f"v_and_b32 {vT0}, 7, {vL}")
    a(f"v_lshlrev_b32 {vT0}, 2, {vT0}")
    a(f"ds_write_b32 {vT0}, {vZ[0]} offset:{L_CNT}")
    a("s_waitcnt lgkmcnt(0)")
    a.label("K2_GEN1")
    a("s_barrier")
    a(f"s_lshl_b32 {sTmp}, {sChunk}, 9")
    a(f"v_add_u32 {vT0}, {sTmp}, v0")
    a(f"s_mov_b32 {sTmp}, {E}")
    a(f"v_cmp_gt_u32 {sAny}, {sTmp}, {vT0}")
    a("s_nop 1")
    append_raw("K2_RA2")
    a("s_waitcnt lgkmcnt(0)")
    a("s_barrier")
    a(f"s_lshl_b32 {sTmp}, {sWin}, 2")
    a(f"v_mov_b32 {vT0}, {sTmp}")
    a(f"ds_read_b32 {vT1}, {vT0} offset:{L_CNT}")
    a("s_waitcnt lgkmcnt(0)")
    a(f"v_readfirstlane_b32 {sCnt}, {vT1}")
    a("s_nop 3")
    a.label("K2_MAIN")
    if opt.get('dbgfill',0): stamp(a,opt,14)
    a(f"s_min_u32 {sCnt}, {sCnt}, {CAP}")
    a(f"s_add_u32 {sNT}, {sCnt}, 31")
    a(f"s_lshr_b32 {sNT}, {sNT}, 5")
    a(f"s_cmp_eq_u32 {sNT}, 0")
    a("s_cbranch_scc1 K2_MAIN_DONE")
    a(f"s_mul_i32 {sTmp}, {sWin}, {CAPX*4}")
    a(f"s_add_u32 {sTmp}, {sTmp}, {L_L0}")
    a(f"s_mul_i32 {sTmp2}, {sWin}, {CAPX*2}")
    a(f"s_add_u32 {sTmp2}, {sTmp2}, {L_L1}")
    a(f"v_and_b32 {vT0}, 31, {vL}")
    a(f"v_lshl_add_u32 {aL0}, {vT0}, 2, {sTmp}")
    a(f"v_lshl_add_u32 {aL1s}, {vT0}, 1, {sTmp2}")
    a(f"v_lshrrev_b32 {vT0}, 3, {vL}")
    a(f"v_lshl_add_u32 {aL1d}, {vT0}, 3, {sTmp2}")
    def pad():
        a(f"v_add_u32 {vT0}, {sCnt}, {vL}")
        a(f"v_lshl_add_u32 {vT1}, {vT0}, 2, {sTmp}")
        a(f"v_lshl_add_u32 {vT2}, {vT0}, 1, {sTmp2}")
        a(f"v_mov_b32 {vJ}, 7")
        a(f"ds_write_b32 {vT1}, {vJ}")
        a(f"ds_write_b16 {vT2}, {vZ[0]}")
        a(f"ds_write_b32 {vT1}, {vJ} offset:256")
        a(f"ds_write_b16 {vT2}, {vZ[0]} offset:128")
    def first_reads():
        a(f"ds_read_b32 {vT3}, {aL0}")
        a(f"ds_read_b64 {SD}, {aL1d}")
        a(f"ds_read_b32 {LE[1]}, {aL0} offset:128")
        a(f"ds_read_b32 {LE[0]}, {aL0} offset:256")
        a(f"ds_read_u16 {SS}, {aL1s}")
    a(f"s_cmp_ge_u32 {sCnt}, 96")
    a("s_cbranch_scc1 K2_FILL_BIG")
    pad()
    first_reads()
    a("s_waitcnt lgkmcnt(0)")
    a("s_branch K2_FILL")
    a.label("K2_FILL_BIG")
    first_reads()
    pad()
    a("s_waitcnt lgkmcnt(4)")
    a.label("K2_FILL")
    ENT=['',' nt',' sc1',' sc0 sc1',' sc0',' sc0 nt',' sc1 nt',' sc0 sc1 nt'][opt.get('e_nt',0)]
    def E_addr(le): a(f"v_and_or_b32 {aE}, {le}, {sMaskE}, {vHOFF}")
    def E_load(p): a(f"buffer_load_dwordx4 {EA[p]}, {aE}, {sE}, 0 offen{ENT}")
    def H_addr():
        if opt.get('hmask',0):
            a(f"v_and_b32 {SD[0]}, 0x03ff03ff, {SD[0]}"); a(f"v_and_b32 {SD[1]}, 0x03ff03ff, {SD[1]}")
        for i in range(4):
            a(f"v_mad_u32_u16 {AD[i]}, {SD[i>>1]}, {s128}, {vKD[i]}"+(" op_sel:[1,0,0,0]" if i&1 else ""))
    def H_load(i):
        a(f"s_mov_b32 m0, {sM0[i]}")
        a("s_nop 0")
        a(f"buffer_load_dwordx4 {AD[i]}, {sB}, 0 offen{HLD} lds")
    def P_addr(le,par):
        a(f"v_and_b32 {vJ}, 7, {le}")
        a(f"v_mul_u32_u24 {aPS}, 6, {SS}")
        a(f"v_mad_u32_u24 {aPD}, {vJ}, 6, {sN06}")
        a(f"v_lshlrev_b32 {aOH}, 4, {vJ}")
        a(f"v_lshl_add_u32 {aA2[par]}, {vJ}, 3, {vE64}")
    def P_reads():
        for c in range(3): a(f"ds_read_u16_d16_hi {PS[c]}, {aPS} offset:{L_POS+2*c}")
        for c in range(3): a(f"ds_read_u16_d16_hi {PD[c]}, {aPD} offset:{L_POS+2*c}")
        a(f"ds_read_b128 {OH}, {aOH} offset:{L_OH}")
    def P_calc_list(par):
        return [f"v_sub_f32 {DX[0]}, {PD[0]}, {PS[0]}", f"v_sub_f32 {DX[1]}, {PD[1]}, {PS[1]}", f"v_sub_f32 {DX[2]}, {PD[2]}, {PS[2]}",
                f"v_mul_f32 {DD}, {DX[0]}, {DX[0]}", f"v_fmac_f32 {DD}, {DX[1]}, {DX[1]}", f"v_fmac_f32 {DD}, {DX[2]}, {DX[2]}",
                f"v_cvt_pk_bf16_f32 {E01[0]}, 1.0, {DX[0]}", f"v_cvt_pk_bf16_f32 {E01[1]}, {DX[1]}, {DX[2]}",
                f"v_cvt_pk_bf16_f32 {OH[3]}, {OH[3]}, {DD}",
                f"ds_write_b64 {aA2[par]}, {E01}"]
    def first_loads():
        E_addr(vT3); E_load(0)
        H_addr()
        for i in range(4): H_load(i)
        E_addr(LE[1]); E_load(1)
    def first_prep(readsd):
        P_addr(vT3,0); P_reads()
        if readsd:
            a(f"ds_read_b64 {SD}, {aL1d} offset:64")
        a(f"ds_read_u16 {SS}, {aL1s} offset:64")
        for i in range(16): a(f"v_mov_b32 {T[i]}, 0")
        for i in range(8): a(f"v_mov_b32 {A2R[i]}, 0")
        a("s_waitcnt lgkmcnt(0)")
        for ins in P_calc_list(0): a(ins)
    if opt.get('stagger',1):
        a.c("the younger partner prepares tile 0 first, so the older waves' first rows are requested ahead of it")
        a(f"s_cmp_ge_u32 {sWave}, 4")
        a("s_cbranch_scc1 K2_FILL_B")
    first_loads()
    if opt.get('dbgfill',0): stamp(a,opt,15)
    first_prep(True)
    if opt.get('stagger',1):
        a("s_branch K2_FILL_J")
        a.label("K2_FILL_B")
        first_prep(False)
        first_loads()
        a(f"ds_read_b64 {SD}, {aL1d} offset:64")
        a("s_waitcnt lgkmcnt(0)")
        a.label("K2_FILL_J")
    H_addr()
    P_addr(LE[1],1)
    E_addr(LE[0])
    a("s_waitcnt vmcnt(1)")
    for s_ in range(4): a(f"ds_read_b128 {HA[4*s_:4*s_+4]}, {vHA[s_]}")
    Da,Db=D1[0:16],D1[16:32]
    mfma(a,Da,OH,WA[0:4],"0")
    mfma(a,Da,EA[0],WE[0:4],Da)
    a("s_waitcnt lgkmcnt(0)")
    for i in range(4): H_load(i)
    mfma(a,Da,HA[0:4],ID[0:4],Da)
    mfma(a,Da,HA[4:8],ID[4:8],Da)
    a(f"s_mov_b32 {sT}, 0")
    stamp(a,opt,8)
    if DBG:
        a("s_memtime s[80:81]")
        a("s_waitcnt lgkmcnt(0)")
    a.nop(12)
    MADD=opt.get('madd',1)
    PB_=[0]; MF=[False]
    def prio(p):
        if PRIO: a(f"s_setprio {p+PB_[0] if PB_[0]>=0 else 3}")
    def Tsec(kind,x,p):
        Dx=D1[16*x:16*x+16]; o=1-x; Do=D1[16*o:16*o+16]; D2o=D2[16*o:16*o+16]
        prio(1)
        if kind=='X':
            ea = EA[p] if x==0 else EA[1-p]
            mfma(a,Do,OH,WA[4*o:4*o+4],"0")
            for i in range(8): a(f"v_cvt_pk_bf16_f32 {M[i]}, {T[2*i]}, {T[2*i+1]}")
            mfma(a,Do,ea,WE[4*o:4*o+4],Do)
            for i in range(16):
                if i==6:
                    if x==1: a("s_waitcnt lgkmcnt(2)")
                    mfma(a,D2o,A2R[0:4],M[0:4],D2o)
                a(f"v_exp_f32 {T[i]}, {Dx[i]}")
            if MADD:
                a("s_nop 1")
                mfma(a,T,ONE,ONE,T)
        else:
            hb = HA[8:16] if x==0 else HA[0:8]
            for i in range(16):
                if i==0: mfma(a,Do,hb[0:4],ID[0:4],Do)
                if i==5: mfma(a,Do,hb[4:8],ID[4:8],Do)
                if i==10: mfma(a,D2o,A2R[4:8],M[4:8],D2o)
                a(f"v_rcp_f32 {T[i]}, {T[i]}")
        prio(0)
    def tile(p):
        q=1-p
        Tsec('X',0,p)
        if not opt.get('e_late',0): E_load(p)
        else: a("s_nop 0")
        P_reads()
        a(f"ds_read_b64 {SD}, {aL1d} offset:{64*(p+2)}")
        if not MADD:
            for i in range(16): a(f"v_add_f32 {T[i]}, 1.0, {T[i]}")
        else:
            a.nop(2)
        Tsec('R',0,p)
        def mulsA():
            for i in range(16): a(f"v_mul_f32 {T[i]}, {Da[i]}, {T[i]}")
        if MF[0]: mulsA()
        a(f"s_waitcnt vmcnt({0 if opt.get('e_late',0) else 1}) lgkmcnt(0)")
        for s_ in range(4): a(f"ds_read_b128 {HA[4*s_:4*s_+4]}, {vHA[s_]}")
        for k in range(4): a(f"ds_read_b64_tr_b16 {A2R[2*k:2*k+2]}, {vTR} offset:{512*k}")
        a(f"ds_write_b64 {aA2[p]}, {vZ}")
        pc=P_calc_list(q)
        for ins in pc[:6]: a(ins)
        H_addr()
        if not MF[0]: mulsA()
        for ins in pc[6:]: a(ins)
        if MF[0]: a("s_nop 0")
        Tsec('X',1,p)
        a("s_waitcnt lgkmcnt(0)")
        if opt.get('e_late',0)==1: E_load(p)
        for i in range(4): H_load(i)
        a(f"ds_read_b32 {LE[q]}, {aL0} offset:{128*(p+3)}")
        a(f"ds_read_u16 {SS}, {aL1s} offset:{64*(p+2)}")
        if not MADD:
            for i in range(16): a(f"v_add_f32 {T[i]}, 1.0, {T[i]}")
        Tsec('R',1,p)
        def mulsB():
            for i in range(16): a(f"v_mul_f32 {T[i]}, {Db[i]}, {T[i]}")
        if MF[0]: mulsB()
        a("s_waitcnt lgkmcnt(0)")
        E_addr(LE[q])
        P_addr(LE[p],p)
        if p==1:
            a(f"v_add_u32 {aL0}, 256, {aL0}")
            a(f"v_add_u32 {aL1s}, 128, {aL1s}")
            a(f"v_add_u32 {aL1d}, 128, {aL1d}")
        if not MF[0]: mulsB()
    def drain(par):
        for i in range(8): a(f"v_cvt_pk_bf16_f32 {M[i]}, {T[2*i]}, {T[2*i+1]}")
        a(f"ds_write_b64 {aA2[par]}, {vZ}")
        a("s_nop 0")
        mfma(a,D2[16:32],A2R[0:4],M[0:4],D2[16:32])
        mfma(a,D2[16:32],A2R[4:8],M[4:8],D2[16:32])
    def main_loop(sfx):
        a(".p2align 6")
        a.label("K2_LOOP"+sfx)
        tile(0)
        a(f"s_add_u32 {sT}, {sT}, 1")
        a(f"s_cmp_ge_u32 {sT}, {sNT}")
        a("s_cbranch_scc1 K2_EXIT_ODD"+sfx)
        tile(1)
        a(f"s_add_u32 {sT}, {sT}, 1")
        a(f"s_cmp_lt_u32 {sT}, {sNT}")
        a("s_cbranch_scc1 K2_LOOP"+sfx)
        drain(0)
        a("s_branch K2_LOOP_DONE")
        a.label("K2_EXIT_ODD"+sfx)
        drain(1)
    HP=opt.get('mfirst',2)
    if HP==1:
        a.c("the younger partner (waves 4..7) opens its plain sections with the multiplies, so both partners' multiplies pair up")
        a(f"s_cmp_ge_u32 {sWave}, 4")
        a("s_cbranch_scc1 K2_LOOP_H")
    if HP==2: MF[0]=True
    main_loop("")
    if HP==1:
        a("s_branch K2_LOOP_DONE")
        MF[0]=True
        main_loop("_H")
        MF[0]=False
    a.label("K2_LOOP_DONE")
    if PRIO: a("s_setprio 0")
    a.label("K2_MAIN_DONE")
    stamp(a,opt,9)
    if DBG:
        a("s_memtime s[82:83]")
        a("s_waitcnt lgkmcnt(0)")
        a("s_sub_u32 s80, s82, s80")
        a(f"v_writelane_b32 {VDBG}, s80, 12")
        a(f"v_writelane_b32 {VDBG}, {sNT}, 11")
    a(f"s_cmp_eq_u32 {sMode}, 0")
    a("s_cbranch_scc1 K2_EPI")
    a("s_waitcnt vmcnt(0) lgkmcnt(0)")
    a(f"s_add_u32 {sChunk}, {sChunk}, 1")
    a(f"s_cmp_lt_u32 {sChunk}, {(E+511)//512}")
    a("s_cbranch_scc1 K2_GEN")
    a.label("K2_EPI")
    a.c("segment sums of this window: m_i (bf16) -> rows of this window's (now idle) A2 slice")
    a(f"s_lshl_b32 {sHST}, {sWin}, 11")
    a(f"s_add_u32 {sHST}, {sHST}, {L_A2}")
    a(f"v_and_b32 {vJ}, 31, {vL}")
    a(f"s_mov_b32 {sTmp}, {NEG_LN2}")
    a(f"v_lshrrev_b32 {vT2}, 5, {vL}")
    a(f"v_lshlrev_b32 {vT2}, 7, {vT2}")
    a(f"v_lshl_add_u32 {vT2}, {vJ}, 1, {vT2}")
    a(f"v_add_u32 {vT2}, {sHST}, {vT2}")
    a.nop(8)
    for qq in range(4):
        a(f"v_mul_f32 {AD[0]}, {sTmp}, {D2[4*qq]}")
        a(f"v_mul_f32 {AD[1]}, {sTmp}, {D2[16+4*qq]}")
        a(f"v_cvt_pk_bf16_f32 {AD[2]}, {AD[0]}, {AD[1]}")
        a(f"ds_write_b16 {vT2}, {AD[2]} offset:{qq*256}")
        a(f"ds_write_b16_d16_hi {vT2}, {AD[2]} offset:{qq*256+64}")
    def pos_part():
        a.c("coordinate update of this window")
        PP=T
        for qq in range(4):
            for c in range(1,4):
                r=PP[qq*3+c-1]
                a(f"v_mul_f32 {r}, {WX[0]}, {D2[4*qq+c]}")
                a(f"v_fmac_f32 {r}, {WX[1]}, {D2[16+4*qq+c]}")
        for sh in (1,2,4,8):
            for i in range(12): a(f"v_add_f32_dpp {PP[i]}, {PP[i]}, {PP[i]} row_shr:{sh} row_mask:0xf bank_mask:0xf bound_ctrl:0")
        for i in range(12): a(f"v_add_f32_dpp {PP[i]}, {PP[i]}, {PP[i]} row_bcast:15 row_mask:0xa bank_mask:0xf")
        a(f"v_lshrrev_b32 {vT2}, 5, {vL}")
        a(f"v_lshlrev_b32 {vT2}, 4, {vT2}")
        a(f"s_add_u32 {sTmp}, {sHST}, 1024")
        a(f"v_add_u32 {vT2}, {sTmp}, {vT2}")
        a("s_mov_b32 exec_lo, 0x80000000")
        a("s_mov_b32 exec_hi, 0x80000000")
        for qq in range(4):
            for c in range(3):
                a(f"ds_write_b32 {vT2}, {PP[qq*3+c]} offset:{qq*32+c*4}")
        a("s_mov_b64 exec, -1")
        a(f"v_mul_u32_u24 {vT2}, 86, {vL}")
        a(f"v_lshrrev_b32 {vT2}, 8, {vT2}")
        a(f"v_mul_u32_u24 {vT3}, 3, {vT2}")
        a(f"v_sub_u32 {vT3}, {vL}, {vT3}")
        a(f"v_lshlrev_b32 {vT2}, 4, {vT2}")
        a(f"v_lshl_add_u32 {vT2}, {vT3}, 2, {vT2}")
        a(f"v_add_u32 {vT2}, {sTmp}, {vT2}")
        a(f"v_min_u32 {vT2}, {LDS2-4}, {vT2}")
        a(f"ds_read_b32 {AD[0]}, {vT2}")
        a(f"v_lshl_add_u32 {vT3}, {vL}, 1, {sN06}")
        a(f"v_min_u32 {vT2}, {POS_SZ-2}, {vT3}")
        a(f"ds_read_u16_d16_hi {PS[0]}, {vT2} offset:{L_POS}")
        a(f"s_mul_i32 {sTmp}, {sNJ}, 3")
        a(f"v_cmp_gt_u32 vcc, {sTmp}, {vL}")
        a(f"v_add_u32 {vT3}, {OUT_POS}, {vT3}")
        a(f"v_mov_b32 {vT2}, 0x40000000")
        a("s_waitcnt lgkmcnt(0)")
        a(f"v_cndmask_b32 {vT3}, {vT2}, {vT3}, vcc")
        a(f"v_add_f32 {AD[0]}, {AD[0]}, {PS[0]}")
        a(f"v_cvt_pk_bf16_f32 {AD[0]}, {AD[0]}, {AD[0]}")
        a(f"buffer_store_short {AD[0]}, {vT3}, {sO}, 0 offen{OST}")
    a.c("job waves 4..7: row tile r = (v-4)>>1 (rows = window 4r + (m>>3), node m&7), feature half x = v&1")
    a(f"s_cmp_lt_u32 {sWave}, 4")
    a("s_cbranch_scc1 K2_EPI_NOJOB")
    a(f"s_sub_u32 {sTmp2}, {sWave}, 4")
    a(f"s_lshr_b32 {sTmp2}, {sTmp2}, 1")
    a(f"s_lshl_b32 {sTmp2}, {sTmp2}, 2")
    a(f"v_bfe_u32 {vT0}, {vL}, 3, 2")
    a(f"v_add_u32 {vT0}, {sTmp2}, {vT0}")
    a(f"v_and_b32 {vJ}, 7, {vL}")
    a(f"v_lshlrev_b32 {aL1d}, 11, {vT0}")
    a(f"v_lshl_add_u32 {aL1d}, {vJ}, 7, {aL1d}")
    a(f"v_add_u32 {aL1d}, {L_A2}, {aL1d}")
    a(f"v_add_u32 {aL1d}, {aL1d}, {vHOFF}")
    a(f"s_lshl_b32 {sTmp2}, s2, 3")
    a(f"v_add_u32 {vT0}, {sTmp2}, {vT0}")
    a(f"v_mad_u32_u24 {SD[0]}, {vT0}, {s3125}, {v511}")
    a(f"v_add_u32 {SD[1]}, 3125, {SD[0]}")
    a(f"v_lshrrev_b32 {SD[0]}, 9, {SD[0]}")
    a(f"v_lshrrev_b32 {SD[1]}, 9, {SD[1]}")
    a(f"v_sub_u32 {SD[1]}, {SD[1]}, {SD[0]}")
    a(f"v_cmp_lt_u32 vcc, {vJ}, {SD[1]}")
    a(f"v_add_u32 {vT1}, -1, {SD[1]}")
    a(f"v_min_u32 {vT1}, {vT1}, {vJ}")
    a(f"v_add_u32 {vT1}, {SD[0]}, {vT1}")
    a(f"v_lshlrev_b32 {vT1}, 7, {vT1}")
    a(f"v_add_u32 {vT0}, {vT1}, {vHOFF}")
    for s_ in range(4):
        a(f"buffer_load_dwordx4 {HA[4*s_:4*s_+4]}, {vT0}, {sHs}, 0 offen offset:{32*s_}")
    a(f"s_and_b32 {sTmp2}, {sWave}, 1")
    a(f"s_lshl_b32 {sTmp2}, {sTmp2}, 6")
    a(f"v_lshrrev_b32 {vT0}, 1, {vHOFF}")
    a(f"v_add3_u32 {aL0}, {vT1}, {vT0}, {sTmp2}")
    for qq in range(4):
        a(f"buffer_load_dwordx2 {M[2*qq:2*qq+2]}, {aL0}, {sHs}, 0 offen offset:{16*qq}")
    a(f"v_mov_b32 {vT0}, 0x40000000")
    a(f"v_cndmask_b32 {aL1s}, {vT0}, {aL0}, vcc")
    pos_part()
    HV=D2[0:16]
    a("s_waitcnt vmcnt(1)")
    for s_ in range(4):
        mfma(a,D1[0:16],WH[4*s_:4*s_+4],HA[4*s_:4*s_+4],"0" if s_==0 else D1[0:16])
    for qq in range(4):
        a(f"v_lshlrev_b32 {HV[4*qq]}, 16, {M[2*qq]}")
        a(f"v_and_b32 {HV[4*qq+1]}, 0xffff0000, {M[2*qq]}")
        a(f"v_lshlrev_b32 {HV[4*qq+2]}, 16, {M[2*qq+1]}")
        a(f"v_and_b32 {HV[4*qq+3]}, 0xffff0000, {M[2*qq+1]}")
    stamp(a,opt,10)
    a("s_barrier")
    MA=[EA[0],EA[1],A2R[0:4],A2R[4:8]]
    for s_ in range(4): a(f"ds_read_b128 {MA[s_]}, {aL1d} offset:{32*s_}")
    for s_ in range(4):
        a(f"s_waitcnt lgkmcnt({3-s_})")
        mfma(a,D1[0:16],WH[16+4*s_:20+4*s_],MA[s_],D1[0:16])
    a(f"s_mov_b32 {sTmp}, {NEG_LOG2E}")
    a.nop(14)
    X=D1[0:16]
    for i in range(16): a(f"v_mul_f32 {T[i]}, {sTmp}, {X[i]}")
    for i in range(16): a(f"v_exp_f32 {T[i]}, {T[i]}")
    for i in range(16): a(f"v_add_f32 {T[i]}, 1.0, {T[i]}")
    for i in range(16): a(f"v_rcp_f32 {T[i]}, {T[i]}")
    a("s_nop 0")
    for i in range(16): a(f"v_fma_f32 {T[i]}, {X[i]}, {T[i]}, {HV[i]}")
    for qq in range(4):
        a(f"v_cvt_pk_bf16_f32 {M[2*qq]}, {T[4*qq]}, {T[4*qq+1]}")
        a(f"v_cvt_pk_bf16_f32 {M[2*qq+1]}, {T[4*qq+2]}, {T[4*qq+3]}")
        a(f"buffer_store_dwordx2 {M[2*qq:2*qq+2]}, {aL1s}, {sO}, 0 offen offset:{16*qq}{OST}")
    a("s_branch K2_FIN")
    a.label("K2_EPI_NOJOB")
    a("s_waitcnt lgkmcnt(0)")
    stamp(a,opt,10)
    a("s_barrier")
    pos_part()
    a.label("K2_FIN")
    if DBG:
        a("s_waitcnt vmcnt(0)")
        stamp(a,opt,13)
        a(f"s_lshl_b32 {sTmp}, s2, 4")
        a(f"s_add_u32 {sTmp}, {sTmp}, {sWave}")
        a(f"s_lshl_b32 {sTmp}, {sTmp}, 6")
        a(f"s_add_u32 {sTmp}, {sTmp}, {DBG_OFF}")
        a(f"v_lshlrev_b32 {vT0}, 2, {vL}")
        a("s_mov_b32 exec_lo, 0xffff")
        a("s_mov_b32 exec_hi, 0")
        a(f"buffer_store_dword {VDBG}, {vT0}, {sW}, {sTmp} offen")
        a("s_waitcnt vmcnt(0)")
        if opt.get('dbgh',0):
            a("s_load_dwordx2 s[64:65], s[0:1], 72")
            a("s_waitcnt lgkmcnt(0)")
            srd(a,S(68,4),"s64","s65",256)
            a(f"s_cmp_lg_u32 s2, {opt.get('dbgh',0)}")
            a("s_cbranch_scc1 K_NODBGH")
            a(f"s_cmp_lg_u32 {sWave}, 0")
            a("s_cbranch_scc1 K_NODBGH")
            a("s_mov_b32 exec_lo, 0x3fff")
            a(f"buffer_store_dword {VDBG}, {vT0}, s[68:71], 0 offen offset:4")
            a("s_waitcnt vmcnt(0)")
            a.label("K_NODBGH")
    a.label("K_END")
    a("s_endpgm")
    a.label("K_CODE_END")
    return nv

HEADER='''; Kernarg layout (88 bytes, ptrs only): h, pos, e_attr, src, dst, w_e, w_x, w_h, out, debug, ws
; @launch grid=(256,1,1) block=(512,1,1) lds={lds2}
.amdgcn_target "amdgcn-amd-amdhsa--gfx950"
.text
.globl {k}
.p2align 8
.type {k},@function
'''
def kd(name,nv,ns):
    acc=(nv+3)//4*4
    return f'''.amdhsa_kernel {name}
  .amdhsa_next_free_vgpr {acc}
  .amdhsa_next_free_sgpr {ns}
  .amdhsa_accum_offset {acc}
  .amdhsa_group_segment_fixed_size 0
  .amdhsa_kernarg_size 88
  .amdhsa_user_sgpr_count 2
  .amdhsa_user_sgpr_kernarg_segment_ptr 1
  .amdhsa_system_sgpr_workgroup_id_x 1
  .amdhsa_float_denorm_mode_32 3
.end_amdhsa_kernel
'''
def build(opt):
    out=HEADER.format(lds2=LDS2,k=KNAME)
    a=Asm()
    nv=gen(a,opt)
    assert nv<=255
    out+=a.text()
    out+='.section .rodata,"a"\n.p2align 6\n'+kd(KNAME,256,102)
    return out,nv
if __name__=="__main__":
    opt={}
    for arg in sys.argv[2:]:
        k,v=arg.split('='); opt[k]=int(v)
    txt,nv=build(opt)
    open(sys.argv[1],'w').write(txt)
    print("vgprs:",nv,"LDS",LDS2,"lines",txt.count("\n"),"WS",WS_BYTES)
```

```python
import sys, struct
from asmlib import *

N=12500; E=800000; CH=3136; NSRC=256; NBIN=256; NPW=49
KW=703687442
LOG2E=1.4426950408889634; LN2=0.6931471805599453
def f2u(x): return struct.unpack('<I',struct.pack('<f',x))[0]
NEG_LOG2E=f2u(-LOG2E); NEG_LN2=f2u(-LN2)
SENT=0xFFFFFFFF; MARK=0xFFFFFFFE
CELLS=0; BPT=NBIN*NSRC*128; FLG=BPT+N*128+((-N*128)%4096); FLG2=FLG+4096; WS_BYTES=FLG2+8192
OUT_BYTES=N*64*2+N*3*2; OUT_POS=N*64*2
CAP=576; CAPX=704
L_OH=0; L_CNT=128; L_NRES=160; L_WIN=192; L_RES=256; L_POS=1280; POS_SZ=74*1024
L_L0=L_POS+POS_SZ; L_L1=L_L0+8*CAPX*4; L_A2=L_L1+8*CAPX*2; L_HST=L_A2+8*2048; LDS2=L_HST+8*4096
assert LDS2<=163840, LDS2
L_RAWW=L_L0; L_BST=L_L0+19*1024; assert L_BST+2*32*144<=L_A2
DBG_OFF=16*1024*1024

def WSB(opt): return (32*1024*1024 if opt.get('dbg',0) else WS_BYTES)
def srd(a, s, lo, hi, size):
    a(f"s_mov_b32 {s[0]}, {lo}")
    a(f"s_and_b32 {s[1]}, {hi}, 0xffff")
    a(f"s_mov_b32 {s[2]}, {size}")
    a(f"s_mov_b32 {s[3]}, 0x20000")
VDBG="v255"
def stamp(a,opt,idx):
    if not opt.get('dbg',0): return
    a("s_memrealtime s[100:101]")
    a("s_waitcnt lgkmcnt(0)")
    a(f"v_writelane_b32 {VDBG}, s100, {idx}")
def S(i,n=1): return R('s',i,n)
def V(i,n=1): return R('v',i,n)
def mfma(a,d,A,B,c): a(f"v_mfma_f32_32x32x16_bf16 {d}, {A}, {B}, {c}")

NPOS1=24
KNAME="gather_scatter__cheap_equivariant_egnn__graph_kernel"
def gen(a, opt):
    DBG=opt.get('dbg',0)
    PRIO=opt.get('prio',1)
    ST=[" sc1"," sc0 sc1"," sc1 nt"," sc0 sc1 nt"][opt.get('st',0)]; LD=" sc1" if opt.get('ld_sc1',1) else ""
    HLD=[""," sc1"," sc0 sc1"," sc1 nt"," sc0 sc1 nt"][opt.get('h_sc1',1)]
    SNT=" nt" if opt.get('snt',0) else ""
    OST=[""," nt"," sc1"," sc0 sc1"][opt.get('ost',0)]
    a.label(KNAME)
    sB=S(4,4); sE=S(8,4); sW=S(12,4); sO=S(16,4); sP=S(20,4); sS=S(24,4); sD=S(28,4)
    sWave=S(32); sN0=S(33); sNJ=S(34); sN06=S(35); sNT=S(36); sT=S(37); sMode=S(38); sChunk=S(39)
    sMaskE=S(40); s128=S(41); sK=S(42); s3125=S(43); sLim=S(44); sCAP=S(44); sCnt=S(45); sTmp=S(46); sTmp2=S(47)
    sM0=S(48,4); sSave=S(52,2); sAny=S(54,2); sNR=S(56); sI=S(57); sC=S(58); sWsrc=S(59); sMark=S(60); sCAPq=S(61); sHST=S(62); sTmp3=S(63)
    sMask=[S(64+2*i,2) for i in range(16)]
    sTagOff=S(36)
    sRot=S(39+0) if False else S(37)
    sWin=S(96); sTgt=S(97); sNonce=S(98); sPoll=S(99)
    sT4=S(84,4); sT4b=S(88,4); sT4c=S(92,4)
    sHw=S(48,4)
    sHs=S(68,4); sWx=S(72,4)
    vr=Regs(1,256,'v')
    vL=vr.alloc('lane')
    WE=vr.alloc('WE',8,4); WA=vr.alloc('WA',8,4); ID=vr.alloc('ID',8,4); D2=vr.alloc('D2',32,4)
    D1=vr.alloc('D1',32,4); HA=vr.alloc('HA',16,4); T=vr.alloc('T',16,4); M=vr.alloc('M',8,4)
    A2R=vr.alloc('A2R',8,4); EA=[vr.alloc('EA0',4,4),vr.alloc('EA1',4,4)]; OH=vr.alloc('OH',4,4)
    WH=vr.alloc('WH',32,4); ONE=vr.alloc('ONE',4,4)
    vHA=vr.alloc('vHA',4); vKD=vr.alloc('vKD',4); vTR=vr.alloc('vTR'); vE64=vr.alloc('vE64'); vHOFF=vr.alloc('vHOFF')
    vZ=vr.alloc('vZ',2,2); aL0=vr.alloc('aL0'); aL1s=vr.alloc('aL1s'); aL1d=vr.alloc('aL1d')
    LE=[vr.alloc('LE0'),vr.alloc('LE1')]; aA2=[vr.alloc('aA2_0'),vr.alloc('aA2_1')]
    SD=vr.alloc('SD',2,2); SS=vr.alloc('SS'); PS=vr.alloc('PS',3); PD=vr.alloc('PD',3)
    E01=vr.alloc('E01',2,2); DX=vr.alloc('DX',3); DD=vr.alloc('DD'); AD=vr.alloc('AD',4); vJ=vr.alloc('vJ')
    aE=vr.alloc('aE'); aPS=vr.alloc('aPS'); aPD=vr.alloc('aPD'); aOH=vr.alloc('aOH')
    vT0=vr.alloc('vT0'); vT1=vr.alloc('vT1'); vT2=vr.alloc('vT2'); vT3=vr.alloc('vT3')
    vOne=vr.alloc('vOne'); v511=vr.alloc('v511'); vTRW=vr.alloc('vTRW'); vL16=vr.alloc('vL16'); WX=vr.alloc('WX',2); vDUM=vr.alloc('vDUM')
    nv=vr.next
    HW=T
    def geometry(win):
        a(f"s_lshl_b32 {sTmp}, s2, 3")
        a(f"s_add_u32 {sTmp}, {sTmp}, {win}")
        a(f"s_mul_i32 {sN0}, {sTmp}, 3125")
        a(f"s_add_u32 {sNJ}, {sN0}, {3125+511}")
        a(f"s_add_u32 {sN0}, {sN0}, 511")
        a(f"s_lshr_b32 {sN0}, {sN0}, 9")
        a(f"s_lshr_b32 {sNJ}, {sNJ}, 9")
        a(f"s_sub_u32 {sNJ}, {sNJ}, {sN0}")
        a(f"s_mul_i32 {sN06}, {sN0}, 6")
    def dma(vaddr,srd_,soff,ldsbase_const=None,ldsreg=None):
        pass

    def load_hwin():
        a.c("h rows of the natural window (A operand of h@W1; needed after barrier C)")
        a(f"v_bfe_u32 {vT0}, {vL}, 3, 1")
        a(f"v_and_b32 {vT2}, 3, {vL}")
        a(f"v_lshl_add_u32 {vT0}, {vT0}, 2, {vT2}")
        a(f"s_sub_u32 {sTmp}, {sNJ}, 1")
        a(f"v_min_u32 {vT0}, {sTmp}, {vT0}")
        a(f"v_add_u32 {vT0}, {sN0}, {vT0}")
        a(f"v_lshl_add_u32 {vT0}, {vT0}, 7, {vHOFF}")
        for s_ in range(4):
            a(f"buffer_load_dwordx4 {HW[4*s_:4*s_+4]}, {vT0}, {sHw}, 0 offen offset:{32*s_}")
    a("s_cmp_ge_u32 s2, 256")
    a("s_cbranch_scc1 K_END")
    a("s_load_dwordx4 s[64:67], s[0:1], 0")
    a("s_load_dwordx4 s[68:71], s[0:1], 16")
    a("s_load_dwordx4 s[72:75], s[0:1], 32")
    a("s_load_dwordx4 s[76:79], s[0:1], 64")
    a("s_load_dwordx2 s[80:81], s[0:1], 80")
    a(f"v_and_b32 {vL}, 63, v0")
    a(f"v_lshrrev_b32 {vT0}, 6, v0")
    a(f"v_lshlrev_b32 {vL16}, 4, {vL}")
    a(f"v_readfirstlane_b32 {sWave}, {vT0}")
    if opt.get('cpf',1):
        a.c("pull this workgroup's share of the kernel's own code into L2 (read only, speed only)")
        NL=opt.get('cpf_lines',8)
        a("s_getpc_b64 s[84:85]")
        a.label("K_PC")
        a("s_and_b32 s85, s85, 0xffff")
        a("s_mov_b32 s86, K_CODE_END-K_PC")
        a("s_mov_b32 s87, 0x20000")
        if opt.get('cpf',1)==1:
            a(f"s_lshr_b32 {sTmp}, s2, 3")
            a(f"s_and_b32 {sTmp}, {sTmp}, 31")
            a(f"s_mul_i32 {sTmp}, {sTmp}, {NL*128}")
            a(f"v_lshlrev_b32 {vT1}, 7, {vL}")
            a(f"v_add_u32 {vT1}, {sTmp}, {vT1}")
            a(f"s_cmp_lg_u32 {sWave}, 3")
            a("s_cbranch_scc1 K_NOCPF")
            a(f"s_mov_b32 exec_lo, {(1<<NL)-1}")
            a("s_mov_b32 exec_hi, 0")
            a(f"buffer_load_dword {vDUM}, {vT1}, s[84:87], 0 offen")
            a("s_mov_b64 exec, -1")
        elif opt.get('cpf',1)==2:
            a(f"s_mul_i32 {sTmp}, {sWave}, {24*128}")
            a(f"v_lshlrev_b32 {vT1}, 7, {vL}")
            a(f"v_add_u32 {vT1}, {sTmp}, {vT1}")
            a(f"s_mov_b32 exec_lo, {(1<<24)-1}")
            a("s_mov_b32 exec_hi, 0")
            a(f"buffer_load_dword {vDUM}, {vT1}, s[84:87], 0 offen")
            a("s_mov_b64 exec, -1")
        elif opt.get('cpf',1)==3:
            a(f"s_lshr_b32 {sTmp}, s2, 3")
            a(f"s_and_b32 {sTmp}, {sTmp}, 3")
            a(f"s_mul_i32 {sTmp}, {sTmp}, {48*128}")
            a(f"v_lshlrev_b32 {vT1}, 7, {vL}")
            a(f"v_add_u32 {vT1}, {sTmp}, {vT1}")
            a(f"s_cmp_lg_u32 {sWave}, 3")
            a("s_cbranch_scc1 K_NOCPF")
            a("s_mov_b32 exec_hi, 0xffff")
            a(f"buffer_load_dword {vDUM}, {vT1}, s[84:87], 0 offen")
            a("s_mov_b64 exec, -1")
        a.label("K_NOCPF")
    a(f"v_lshrrev_b32 {vT2}, 5, {vL}")
    a(f"v_lshlrev_b32 {vHOFF}, 4, {vT2}")
    a(f"v_mov_b32 {vZ[0]}, 0")
    a(f"v_mov_b32 {vZ[1]}, 0")
    geometry(sWave)
    a(f"s_mul_i32 {sTmp}, s2, {CH*4}")
    a(f"s_mul_i32 {sTmp2}, {sWave}, {384*4}")
    a(f"s_add_u32 {sTmp}, {sTmp}, {sTmp2}")
    a(f"v_lshl_add_u32 {vT0}, {vL}, 3, {sTmp}")
    a("s_waitcnt lgkmcnt(0)")
    stamp(a,opt,0)
    srd(a,sT4c,"s78","s79",256)
    if opt.get('tagmode',1)==0:
        a.c("workgroup 0 publishes this launch's hand-off tag")
        a(f"s_or_b32 {sTmp}, s2, {sWave}")
        a(f"s_cmp_lg_u32 {sTmp}, 0")
        a("s_cbranch_scc1 K_S_NOTAG")
        a("s_memrealtime s[100:101]")
        a("s_waitcnt lgkmcnt(0)")
        a("s_or_b32 s100, s100, 1")
        a(f"v_mov_b32 {vT1}, s100")
        a(f"buffer_store_dword {vT1}, {vZ[0]}, {sT4c}, 0 offen sc1")
        a(f"buffer_store_dword {vT1}, {vZ[0]}, {sT4c}, 0 offen offset:128 sc1")
        a.label("K_S_NOTAG")
    srd(a,sW,"s80","s81",WSB(opt))
    if opt.get('tagmode',1)==1:
        a.c("wave 0 notes what its own flag slot holds on entry: that value is no tag of this launch")
        a(f"s_cmp_lg_u32 {sWave}, 0")
        a("s_cbranch_scc1 K_S_NOOLD")
        a(f"s_lshl_b32 {sTmp}, s2, 4")
        a(f"s_add_u32 {sTmp}, {sTmp}, {FLG}")
        a(f"buffer_load_dword {aL0}, {vZ[0]}, {sW}, {sTmp} offen sc1")
        a.label("K_S_NOOLD")
    srd(a,sD,"s72","s73",E*4)
    srd(a,sS,"s70","s71",E*4)
    a.c("every wave: six edges per lane, local edge = 384v + 128k + 2l + u; wave 7 also takes edges 3072 + l")
    DS_=D1[0:7]; SR_=D1[8:15]
    for k in range(3): a(f"buffer_load_dwordx2 {D1[2*k:2*k+2]}, {vT0}, {sD}, 0 offen offset:{512*k}{SNT}")
    for k in range(3): a(f"buffer_load_dwordx2 {D1[8+2*k:10+2*k]}, {vT0}, {sS}, 0 offen offset:{512*k}{SNT}")
    if opt.get('tagmode',1)==1:
        a.c("workgroup 0 publishes this launch's hand-off tag: a scramble of the entry value of its flag slot (never zero)")
        a(f"s_or_b32 {sTmp}, s2, {sWave}")
        a(f"s_cmp_lg_u32 {sTmp}, 0")
        a("s_cbranch_scc1 K_S_NOTAG")
        a("s_waitcnt vmcnt(6)")
        a(f"s_mov_b32 {sTmp}, 0x9e3779b1")
        a(f"v_mul_lo_u32 {vT1}, {aL0}, {sTmp}")
        a(f"v_add_u32 {vT1}, 0x7f4a7c15, {vT1}")
        a(f"v_max_u32 {vT1}, 1, {vT1}")
        a(f"buffer_store_dword {vT1}, {vZ[0]}, {sT4c}, 0 offen sc1")
        a(f"buffer_store_dword {vT1}, {vZ[0]}, {sT4c}, 0 offen offset:128 sc1")
        a.label("K_S_NOTAG")
    srd(a,sT4,"s64","s65",N*128)
    srd(a,sHw,"s64","s65",N*128)
    srd(a,sT4b,"s74","s75",145*128)
    a(f"s_cmp_eq_u32 {sWave}, 7")
    a("s_cbranch_scc1 K_S_W7")
    a(f"s_cmp_eq_u32 {sWave}, 4")
    a("s_cbranch_scc1 K_S_W4")
    a(f"s_cmp_lt_u32 {sWave}, 5")
    a("s_cbranch_scc1 K_S_COMMON")
    a.c("waves 5,6: private raw W2 copy + h rows for the source-node table")
    a(f"s_sub_u32 {sI}, {sWave}, 5")
    a(f"s_lshl_b32 {sC}, {sI}, 13")
    a(f"s_add_u32 {sC}, {sC}, {L_A2}")
    for i in range(8):
        a(f"s_add_u32 {sTmp}, {sC}, {i*1024}")
        a(f"s_mov_b32 m0, {sTmp}")
        a(f"s_mov_b32 {sTmp2}, {8192+i*1024}")
        a(f"buffer_load_dwordx4 {vL16}, {sT4b}, {sTmp2} offen lds")
    a(f"s_mul_i32 {sTmp}, s2, {NPW}")
    a(f"s_lshl_b32 {sTmp2}, {sI}, 5")
    a(f"s_add_u32 {sTmp}, {sTmp}, {sTmp2}")
    a(f"v_and_b32 {vT0}, 31, {vL}")
    a(f"v_add_u32 {vT0}, {sTmp}, {vT0}")
    a(f"v_lshl_add_u32 {vT0}, {vT0}, 7, {vHOFF}")
    for s_ in range(4): a(f"buffer_load_dwordx4 {HA[4*s_:4*s_+4]}, {vT0}, {sT4}, 0 offen offset:{32*s_}")
    a("s_branch K_S_COMMON")
    a.label("K_S_W4")
    a.c("wave 4: this workgroup's share of the L2 warm-up of pos and w_h (speed only)")
    a("s_load_dwordx2 s[82:83], s[0:1], 56")
    srd(a,sP,"s66","s67",N*6)
    a(f"s_lshr_b32 {sTmp}, s2, 3")
    a(f"s_and_b32 {sTmp}, {sTmp}, 31")
    a(f"s_mul_i32 {sTmp2}, {sTmp}, {19*128}")
    a(f"v_lshlrev_b32 {vT0}, 7, {vL}")
    a(f"v_add_u32 {vT1}, {sTmp2}, {vT0}")
    a(f"v_cmp_gt_u32 vcc, 19, {vL}")
    a(f"v_mov_b32 {vT2}, 0x40000000")
    a("s_waitcnt lgkmcnt(0)")
    a(f"v_cndmask_b32 {vT1}, {vT2}, {vT1}, vcc")
    a(f"buffer_load_dword {vDUM}, {vT1}, {sP}, 0 offen")
    srd(a,sT4b,"s82","s83",128*128)
    a(f"s_lshl_b32 {sTmp2}, {sTmp}, 9")
    a(f"v_add_u32 {vT1}, {sTmp2}, {vT0}")
    a(f"v_cmp_gt_u32 vcc, 4, {vL}")
    a("s_nop 1")
    a(f"v_cndmask_b32 {vT1}, {vT2}, {vT1}, vcc")
    a(f"buffer_load_dword {vDUM}, {vT1}, {sT4b}, 0 offen")
    a("s_branch K_S_COMMON")
    a.label("K_S_W7")
    a.c("wave 7: the last 64 edges, one-hot table, counters")
    a(f"s_mul_i32 {sTmp}, s2, {CH*4}")
    a(f"s_add_u32 {sTmp}, {sTmp}, {3072*4}")
    a(f"v_lshl_add_u32 {vT0}, {vL}, 2, {sTmp}")
    a(f"buffer_load_dword {D1[6]}, {vT0}, {sD}, 0 offen{SNT}")
    a(f"buffer_load_dword {D1[14]}, {vT0}, {sS}, 0 offen{SNT}")
    a(f"v_lshrrev_b32 {vT0}, 2, {vL}")
    a(f"v_and_b32 {vT1}, 3, {vL}")
    a(f"v_lshlrev_b32 {vT3}, 1, {vT1}")
    a(f"v_mov_b32 {vJ}, 0")
    a(f"v_cmp_eq_u32 vcc, {vT0}, {vT3}")
    a(f"v_mov_b32 {AD[0]}, 0x3f80")
    a(f"v_mov_b32 {AD[1]}, 0x3f800000")
    a(f"v_cndmask_b32 {vJ}, {vJ}, {AD[0]}, vcc")
    a(f"v_add_u32 {vT3}, 1, {vT3}")
    a(f"v_cmp_eq_u32 vcc, {vT0}, {vT3}")
    a("s_nop 1")
    a(f"v_cndmask_b32 {vJ}, {vJ}, {AD[1]}, vcc")
    a(f"v_cmp_eq_u32 vcc, 6, {vT0}")
    a(f"v_mov_b32 {AD[2]}, 0")
    a("s_nop 0")
    a(f"v_cndmask_b32 {AD[2]}, {AD[2]}, {AD[1]}, vcc")
    a(f"v_cmp_eq_u32 vcc, 3, {vT1}")
    a("s_nop 1")
    a(f"v_cndmask_b32 {vJ}, {vJ}, {AD[2]}, vcc")
    a(f"v_cmp_lt_u32 vcc, 31, {vL}")
    a(f"v_lshlrev_b32 {vT0}, 2, {vL}")
    a("s_nop 0")
    a(f"v_cndmask_b32 {vJ}, {vJ}, {vZ[0]}, vcc")
    a(f"ds_write_b32 {vT0}, {vJ}")
    a.label("K_S_COMMON")
    a(f"s_mov_b32 {sMaskE}, {'0' if opt.get('noE',0) else '0xffffffe0'}")
    a(f"s_mov_b32 {s128}, {0 if opt.get('noH',0) else 128}")
    a(f"s_mov_b32 {sK}, {KW}")
    a(f"s_mov_b32 {s3125}, 3125")
    a(f"s_mov_b32 {sMark}, {MARK}")
    a(f"s_mov_b32 {sCAPq}, {CAPX//4}")
    a(f"s_mov_b32 {sMode}, 0")
    a(f"s_mov_b32 {sChunk}, 0")
    a(f"v_mov_b32 {vOne}, 1")
    a(f"v_mov_b32 {v511}, 511")
    a(f"v_mov_b32 {aL1s}, 0x40000000")
    a(f"v_lshrrev_b32 {vT2}, 5, {vL}")
    a(f"v_bfe_u32 {vT0}, {vL}, 2, 2")
    a(f"v_lshl_add_u32 {vT0}, {vT2}, 3, {vT0}")
    a(f"v_lshlrev_b32 {vTRW}, 7, {vT0}")
    a(f"v_bfe_u32 {vT0}, {vL}, 4, 1")
    a(f"v_lshl_add_u32 {vTRW}, {vT0}, 5, {vTRW}")
    a(f"v_and_b32 {vT0}, 3, {vL}")
    a(f"v_lshl_add_u32 {vTRW}, {vT0}, 3, {vTRW}")
    a.c("LDS init: cell image = sentinel, counters = 0")
    for i in range(4): a(f"v_mov_b32 {WH[i]}, -1")
    a(f"v_lshlrev_b32 {vT0}, 6, v0")
    a(f"v_add_u32 {vT0}, {L_HST}, {vT0}")
    for i in range(4): a(f"ds_write_b128 {vT0}, {WH[0:4]} offset:{16*i}")
    a(f"v_and_b32 {vT0}, 0xff, v0")
    a(f"v_lshlrev_b32 {vT0}, 2, {vT0}")
    a(f"ds_write_b32 {vT0}, {vZ[0]} offset:{L_RES}")
    srd(a,sP,"s66","s67",N*6)
    srd(a,sE,"s68","s69",E*32)
    srd(a,sO,"s76","s77",OUT_BYTES)
    a(f"s_add_u32 {sB[0]}, s80, {BPT}")
    a(f"s_addc_u32 {sB[1]}, s81, 0")
    a(f"s_and_b32 {sB[1]}, {sB[1]}, 0xffff")
    a(f"s_mov_b32 {sB[2]}, {N*128}")
    a(f"s_mov_b32 {sB[3]}, 0x20000")
    if opt.get('tlb',0):
        a.c("wave 2 touches one line per 2 MiB of the buffers used later (address translation warm-up, speed only)")
        a(f"s_cmp_lg_u32 {sWave}, 2")
        a("s_cbranch_scc1 K_NOTLB")
        a(f"v_lshlrev_b32 {vT0}, 21, {vL}")
        a(f"v_mov_b32 {vT1}, 0x40000000")
        a(f"v_cmp_gt_u32 vcc, 13, {vL}")
        a("s_nop 1")
        a(f"v_cndmask_b32 {vT0}, {vT1}, {vT0}, vcc")
        a(f"buffer_load_dword {vDUM}, {vT0}, {sE}, 0 offen")
        a(f"buffer_load_dword {vDUM}, {vT0}, {sW}, 0 offen")
        a(f"buffer_load_dword {vDUM}, {vT0}, {sO}, 0 offen")
        a.label("K_NOTLB")
    a("s_waitcnt lgkmcnt(0)")
    a("s_barrier")
    a(f"s_mul_i32 {sTmp}, s2, {CH}")
    a(f"s_sub_u32 {sLim}, {E}, {sTmp}")
    a(f"s_min_u32 {sLim}, {sLim}, {CH}")
    B4=D2[0:7]; RC=M[0:7]; RK1=D2[8:15]
    def bin_edges(nrec, el_of, waitcnt, masked):
        if masked:
            for u in range(nrec):
                el_of(u,vT1)
                a(f"v_cmp_gt_u32 {sMask[u]}, {sLim}, {vT1}")
        if waitcnt is not None: a(f"s_waitcnt vmcnt({waitcnt})")
        stamp(a,opt,1)
        for u in range(nrec):
            d=DS_[u]; s_=SR_[u]
            a(f"v_mul_hi_u32 {vT2}, {d}, {sK}")
            el_of(u,vT1)
            a(f"v_lshl_or_b32 {RC[u]}, {s_}, 12, {vT1}")
            a(f"v_lshrrev_b32 {B4[u]}, 1, {vT2}")
            a(f"v_mad_u32_u24 {vT3}, {vT2}, {s3125}, {v511}")
            a(f"v_and_b32 {B4[u]}, 0x3fc, {B4[u]}")
            a(f"v_lshrrev_b32 {vT3}, 9, {vT3}")
            if masked: a(f"s_mov_b64 exec, {sMask[u]}")
            a(f"ds_add_rtn_u32 {RK1[u]}, {B4[u]}, {vOne} offset:{L_RES}")
            if masked: a("s_mov_b64 exec, -1")
            a(f"v_sub_u32 {vT3}, {d}, {vT3}")
            a(f"v_and_b32 {vT2}, 7, {vT2}")
            a(f"v_lshl_or_b32 {vT3}, {vT2}, 3, {vT3}")
            a(f"v_lshl_or_b32 {RC[u]}, {vT3}, 26, {RC[u]}")
        a(f"v_mov_b32 {vT3}, {L_HST}")
        a(f"v_mov_b32 {vJ}, {L_NRES+4}")
        for u in range(nrec):
            if not masked: a(f"s_waitcnt lgkmcnt({nrec-1})")
            elif u==0: a("s_waitcnt lgkmcnt(0)")
            a(f"v_cmp_gt_u32 vcc, 32, {RK1[u]}")
            a(f"v_lshlrev_b32 {vT1}, 3, {RK1[u]}")
            a(f"v_lshrrev_b32 {vT2}, 2, {RK1[u]}")
            a(f"v_and_b32 {vT1}, 0x78, {vT1}")
            a(f"v_lshl_add_u32 {AD[0]}, {B4[u]}, 5, {vT3}")
            a(f"v_and_or_b32 {vT1}, {vT2}, 4, {vT1}")
            a(f"v_add_u32 {vT1}, {vT1}, {AD[0]}")
            a(f"v_cndmask_b32 {vT1}, {vJ}, {vT1}, vcc")
            if masked: a(f"s_mov_b64 exec, {sMask[u]}")
            a(f"ds_write_b32 {vT1}, {RC[u]}")
            if masked: a("s_mov_b64 exec, -1")
    a.c("wait for this wave's edges (younger loads: 12 for waves 5,6; 2 for wave 4; the tag store of workgroup 0)")
    a(f"s_mul_i32 {sTmp}, {sWave}, 384")
    a(f"v_lshl_add_u32 {vT0}, {vL}, 1, {sTmp}")
    a(f"s_cmp_eq_u32 {sWave}, 4")
    a("s_cbranch_scc1 K_S_WT4")
    a(f"s_sub_u32 {sTmp}, {sWave}, 5")
    a(f"s_cmp_lt_u32 {sTmp}, 2")
    a("s_cbranch_scc1 K_S_WT56")
    if opt.get('tlb',0):
        a(f"s_cmp_eq_u32 {sWave}, 2")
        a("s_cbranch_scc1 K_S_WT2")
    a("s_waitcnt vmcnt(0)")
    a("s_branch K_S_WTD")
    if opt.get('tlb',0):
        a.label("K_S_WT2")
        a("s_waitcnt vmcnt(3)")
        a("s_branch K_S_WTD")
    a.label("K_S_WT4")
    a("s_waitcnt vmcnt(2)")
    a("s_branch K_S_WTD")
    a.label("K_S_WT56")
    a("s_waitcnt vmcnt(12)")
    a.label("K_S_WTD")
    def el6(u,r): a(f"v_add_u32 {r}, {128*(u>>1)+(u&1)}, {vT0}")
    def el7(u,r):
        if u<6: el6(u,r)
        else: a(f"v_add_u32 {r}, 3072, {vL}")
    a(f"s_cmp_lt_u32 {sLim}, {CH}")
    a("s_cbranch_scc1 K_S_APPM")
    a(f"s_cmp_eq_u32 {sWave}, 7")
    a("s_cbranch_scc1 K_S_APP7")
    bin_edges(6, el6, None, False)
    a("s_branch K_S_APPD")
    a.label("K_S_APP7")
    bin_edges(7, el7, None, False)
    a("s_branch K_S_APPD")
    a.label("K_S_APPM")
    a(f"s_cmp_eq_u32 {sWave}, 7")
    a("s_cbranch_scc1 K_S_APPM7")
    bin_edges(6, el6, None, True)
    a("s_branch K_S_APPD")
    a.label("K_S_APPM7")
    bin_edges(7, el7, None, True)
    a.label("K_S_APPD")
    def tag_fetch():
        a.c("wave 0 fetches the hand-off tag (one of its two copies); it is needed when the cell stores have left")
        a(f"s_and_b32 {sTagOff}, s2, 1")
        a(f"s_lshl_b32 {sTagOff}, {sTagOff}, 7")
        a(f"s_cmp_lg_u32 {sWave}, 0")
        a("s_cbranch_scc1 K_S_NOTAG1")
        a(f"buffer_load_dword {aE}, {vZ[0]}, {sT4c}, {sTagOff} offen sc1")
        a.label("K_S_NOTAG1")
    if opt.get('tagmode',1)==0: tag_fetch()
    load_hwin()
    def raww():
        a.c("waves 4, 7: raw w_e -> LDS (needed after barrier C); wave 4 rebuilds the descriptor it lent to the w_h warm-up")
        a(f"s_lshl_b32 {sTmp}, 1, {sWave}")
        a(f"s_and_b32 {sTmp}, {sTmp}, 0x90")
        a("s_cbranch_scc0 K_S_NORAW")
        a("s_load_dwordx2 s[100:101], s[0:1], 40")
        a(f"s_cmp_eq_u32 {sWave}, 7")
        a(f"s_cselect_b32 {sTmp3}, {10*1024}, 0")
        a("s_waitcnt lgkmcnt(0)")
        srd(a,sT4b,"s100","s101",145*128)
        for i in range(10):
            a(f"s_add_u32 {sTmp2}, {sTmp3}, {i*1024}")
            if i==9: a(f"s_min_u32 {sTmp2}, {sTmp2}, {18*1024}")
            a(f"s_add_u32 {sTmp}, {sTmp2}, {L_RAWW}")
            a(f"s_mov_b32 m0, {sTmp}")
            a("s_nop 0")
            a(f"buffer_load_dwordx4 {vL16}, {sT4b}, {sTmp2} offen lds")
        a.label("K_S_NORAW")
    if not opt.get('rawlate',0): raww()
    a("s_waitcnt lgkmcnt(0)")
    stamp(a,opt,14) if not opt.get('dbgfill',0) else None
    a("s_barrier")
    stamp(a,opt,2)
    def setup_static():
        a(f"v_and_b32 {vT1}, 31, {vL}")
        a(f"v_lshrrev_b32 {vT2}, 5, {vL}")
        a(f"v_lshlrev_b32 {vT0}, 3, {vT2}")
        a(f"v_sub_u32 {vT0}, {vT1}, {vT0}")
        a(f"v_mov_b32 {AD[2]}, 0x3f80")
        a(f"v_mov_b32 {AD[3]}, 0x3f800000")
        for sp in range(2):
            for r in range(4):
                k0=16*sp+2*r
                a(f"v_cmp_eq_u32 vcc, {k0}, {vT0}")
                a(f"v_cmp_eq_u32 {sSave}, {k0+1}, {vT0}")
                a("s_nop 0")
                a(f"v_cndmask_b32 {ID[4*sp+r]}, {vZ[0]}, {AD[2]}, vcc")
                a(f"v_cndmask_b32 {ID[4*sp+r]}, {ID[4*sp+r]}, {AD[3]}, {sSave}")
        a(f"v_cmp_lt_u32 vcc, 31, {vL}")
        a("s_nop 1")
        for i in range(1,4): a(f"v_mov_b32 {ONE[i]}, 0")
        a(f"v_cndmask_b32 {ONE[0]}, {AD[2]}, {vZ[0]}, vcc")
        for i in range(3):
            a(f"v_mov_b32 {PS[i]}, 0"); a(f"v_mov_b32 {PD[i]}, 0")
        a.c("static per-lane addresses of the main loop (window offsets are added after the assignment)")
        a(f"v_and_b32 {vT1}, 31, {vL}")
        a(f"v_lshrrev_b32 {vT2}, 5, {vL}")
        a(f"v_mov_b32 {vT3}, {L_A2}")
        a(f"v_lshl_add_u32 {vE64}, {vT1}, 6, {vT3}")
        a(f"v_bfe_u32 {vT0}, {vL}, 2, 2")
        a(f"v_lshl_add_u32 {vT0}, {vT2}, 2, {vT0}")
        a(f"v_lshl_add_u32 {vTR}, {vT0}, 6, {vT3}")
        a(f"v_bfe_u32 {vT0}, {vL}, 4, 1")
        a(f"v_lshl_add_u32 {vTR}, {vT0}, 5, {vTR}")
        a(f"v_and_b32 {vT0}, 3, {vL}")
        a(f"v_lshl_add_u32 {vTR}, {vT0}, 3, {vTR}")
        a(f"s_lshl_b32 {sHST}, {sWave}, 12")
        a(f"s_add_u32 {sHST}, {sHST}, {L_HST}")
        for i in range(4): a(f"s_add_u32 {sM0[i]}, {sHST}, {1024*i}")
        a(f"v_and_b32 {vT0}, 3, {vT1}")
        a(f"v_bfe_u32 {vT3}, {vT1}, 4, 1")
        a(f"v_lshl_or_b32 {vT3}, {vT3}, 2, {vT0}")
        a(f"v_lshlrev_b32 {vT0}, 3, {vT0}")
        a(f"v_lshrrev_b32 {vJ}, 2, {vT1}")
        a(f"v_add_u32 {vT0}, {vT0}, {vJ}")
        a(f"v_lshl_add_u32 {vT0}, {vT0}, 7, {sHST}")
        for s_ in range(4):
            a(f"v_add_u32 {vJ}, {2*s_}, {vT2}")
            a(f"v_xor_b32 {vJ}, {vJ}, {vT3}")
            a(f"v_lshl_add_u32 {vHA[s_]}, {vJ}, 4, {vT0}")
        a(f"v_and_b32 {vT0}, 7, {vL}")
        a(f"v_lshlrev_b32 {vT3}, 2, {vT2}")
        a(f"v_xor_b32 {vT0}, {vT0}, {vT3}")
        for i in range(4):
            a(f"v_xor_b32 {vJ}, {i}, {vT0}")
            a(f"v_lshlrev_b32 {vKD[i]}, 4, {vJ}")
        a(f"s_mov_b32 {sCAP}, {CAP}")
        a(f"s_sub_u32 {sTgt}, 11, {sWave}")
        a(f"s_cmp_lt_u32 {sWave}, 4")
        a(f"s_cselect_b32 {sTgt}, {sWave}, {sTgt}")
        a(f"v_lshrrev_b32 {aPS}, 3, {vL}")
        a(f"v_and_b32 {aPD}, 7, {vL}")
        a(f"v_lshlrev_b32 {aOH}, 2, {aPS}")
        a(f"v_lshlrev_b32 {SS}, 2, {aPD}")
    a(f"s_cmp_gt_u32 {sWave}, 3")
    a("s_cbranch_scc1 K_S_NOCOPY")
    a.c("waves 0..3 copy the cell image out: eight 16 B pieces per thread")
    a(f"v_lshlrev_b32 {vT0}, 4, v0")
    a(f"v_add_u32 {vT0}, {L_HST}, {vT0}")
    a(f"v_lshrrev_b32 {vT1}, 3, v0")
    a(f"v_lshlrev_b32 {vT2}, 2, {vT1}")
    CP=[D1[4*k:4*k+4] for k in range(8)]
    for k in range(4):
        a(f"ds_read_b128 {CP[k]}, {vT0} offset:{4096*k}")
        a(f"ds_read_b32 {D2[k]}, {vT2} offset:{L_RES+128*k}")
    a(f"v_and_b32 {vT3}, 7, v0")
    a(f"v_cmp_eq_u32 vcc, 0, {vT3}")
    a(f"v_mov_b32 {vJ}, -1")
    CT=opt.get('ctrans',0)
    a(f"v_lshlrev_b32 {vT1}, {7 if CT else 15}, {vT1}")
    a(f"v_cndmask_b32_e64 {AD[1]}, -1, -2, vcc")
    a(f"v_lshl_add_u32 {vT1}, {vT3}, 4, {vT1}")
    a(f"s_lshl_b32 {sTmp}, s2, {15 if CT else 7}")
    for k in range(8):
        if k<4:
            a(f"ds_read_b128 {CP[k+4]}, {vT0} offset:{4096*(k+4)}")
            a(f"ds_read_b32 {D2[k+4]}, {vT2} offset:{L_RES+128*(k+4)}")
            a("s_waitcnt lgkmcnt(8)")
        else:
            a(f"s_waitcnt lgkmcnt({2*(7-k)})")
        a(f"v_cmp_lt_u32 vcc, 32, {D2[k]}")
        a(f"s_add_u32 {sTmp2}, {sTmp}, {k*32*(128 if CT else 32768)}")
        a("s_nop 0")
        a(f"v_cndmask_b32 {CP[k][0]}, {CP[k][0]}, {AD[1]}, vcc")
        for i in range(1,4): a(f"v_cndmask_b32 {CP[k][i]}, {CP[k][i]}, {vJ}, vcc")
        a(f"buffer_store_dwordx4 {CP[k]}, {vT1}, {sW}, {sTmp2} offen{ST}")
    if opt.get('tagmode',1)==1: tag_fetch()
    a("s_branch K_S_STATIC")
    a.label("K_S_NOCOPY")
    a(f"s_sub_u32 {sTmp}, {sWave}, 5")
    a(f"s_cmp_lt_u32 {sTmp}, 2")
    a("s_cbranch_scc0 K_S_POS")
    a.c("waves 5,6: source-node table B' = -log2e * h @ W2 for 32 nodes")
    a(f"v_add_u32 {vT0}, {sC}, {vTRW}")
    a("s_waitcnt vmcnt(4)")
    for s_ in range(4):
        for x in range(2):
            for th in range(2):
                r=(s_*2+x)*4+2*th
                a(f"ds_read_b64_tr_b16 {D1[r:r+2]}, {vT0} offset:{s_*2048+th*512+x*64}")
    a("s_waitcnt lgkmcnt(0)")
    for x in range(2):
        for s_ in range(4):
            r=(s_*2+x)*4
            mfma(a,D2[16*x:16*x+16],D1[r:r+4],HA[4*s_:4*s_+4],"0" if s_==0 else D2[16*x:16*x+16])
    a(f"s_mul_i32 {sTmp}, {sI}, {32*144}")
    a(f"s_add_u32 {sTmp}, {sTmp}, {L_BST}")
    a(f"v_and_b32 {vT1}, 31, {vL}")
    a(f"v_mul_u32_u24 {vT1}, 144, {vT1}")
    a(f"v_lshrrev_b32 {vT2}, 5, {vL}")
    a(f"v_lshl_add_u32 {vT1}, {vT2}, 3, {vT1}")
    a(f"v_add_u32 {vT1}, {sTmp}, {vT1}")
    a(f"v_lshrrev_b32 {vT2}, 3, {vL}")
    a(f"v_mul_u32_u24 {vT3}, 144, {vT2}")
    a(f"v_and_b32 {vJ}, 7, {vL}")
    a(f"v_lshl_add_u32 {vT3}, {vJ}, 4, {vT3}")
    a(f"v_add_u32 {vT3}, {sTmp}, {vT3}")
    a(f"s_mov_b32 {sTmp2}, {NEG_LOG2E}")
    a.nop(4)
    for x in range(2):
        for q in range(16): a(f"v_mul_f32 {D2[16*x+q]}, {sTmp2}, {D2[16*x+q]}")
        for qq in range(4):
            b=16*x+4*qq
            a(f"v_cvt_pk_bf16_f32 {E01[0]}, {D2[b]}, {D2[b+1]}")
            a(f"v_cvt_pk_bf16_f32 {E01[1]}, {D2[b+2]}, {D2[b+3]}")
            a(f"ds_write_b64 {vT1}, {E01} offset:{x*64+qq*16}")
            a("s_nop 0")
    for i in range(4): a(f"ds_read_b128 {D1[4*i:4*i+4]}, {vT3} offset:{i*8*144}")
    a(f"s_lshl_b32 {sTmp2}, {sI}, 5")
    a(f"v_add_u32 {vT2}, {sTmp2}, {vT2}")
    a(f"s_mul_i32 {sTmp}, s2, {NPW}")
    a(f"v_add_u32 {vT0}, {sTmp}, {vT2}")
    a(f"v_lshlrev_b32 {vT1}, 7, {vT0}")
    a(f"v_lshl_add_u32 {vT1}, {vJ}, 4, {vT1}")
    a(f"v_mov_b32 {vJ}, 0x40000000")
    a("s_waitcnt lgkmcnt(0)")
    for i in range(4):
        a(f"v_add_u32 {vT3}, {8*i}, {vT2}")
        a(f"v_cmp_gt_u32 vcc, {NPW}, {vT3}")
        a(f"v_add_u32 {AD[0]}, {1024*i}, {vT1}")
        a("s_nop 0")
        a(f"v_cndmask_b32 {AD[0]}, {vJ}, {AD[0]}, vcc")
        a(f"buffer_store_dwordx4 {D1[4*i:4*i+4]}, {AD[0]}, {sB}, 0 offen{ST}")
    a("s_waitcnt vmcnt(4)")
    a("s_branch K_S_STATIC")
    a.label("K_S_POS")
    if opt.get('rawlate',0): raww()
    a.label("K_S_STATIC")
    setup_static()
    a.c("waves 0..3: every cell store has left; waves 4, 7: raw w_e / window rows landed; waves 5, 6 signal their rows later")
    a(f"s_sub_u32 {sTmp}, {sWave}, 5")
    a(f"s_cmp_lt_u32 {sTmp}, 2")
    a("s_cbranch_scc1 K_S_PREC")
    a("s_waitcnt vmcnt(0)")
    def have_tag(lbl):
        a(f"s_mov_b32 {sPoll}, 0")
        a.label(lbl)
        if opt.get('tagmode',1)==0:
            a(f"v_readfirstlane_b32 {sNonce}, {aE}")
            a("s_memrealtime s[100:101]")
            a("s_waitcnt lgkmcnt(0)")
            a(f"s_sub_u32 {sTmp}, s100, {sNonce}")
            a(f"s_add_u32 {sTmp}, {sTmp}, 1")
            a(f"s_cmp_lt_u32 {sTmp}, 2500")
            a(f"s_cselect_b32 {sTmp}, {sNonce}, 0")
            a(f"s_cmp_lg_u32 {sTmp}, 0")
            a(f"s_cbranch_scc1 {lbl}_OK")
        else:
            a(f"v_readfirstlane_b32 {sNonce}, {aE}")
            a(f"v_readfirstlane_b32 {sTmp2}, {aL0}")
            a("s_nop 3")
            a(f"s_cmp_lg_u32 {sNonce}, {sTmp2}")
            a(f"s_cselect_b32 {sTmp}, {sNonce}, 0")
            a(f"s_cmp_lg_u32 {sTmp}, 0")
            a(f"s_cbranch_scc1 {lbl}_OK")
        a(f"s_add_u32 {sPoll}, {sPoll}, 1")
        a(f"s_cmp_gt_u32 {sPoll}, 200000")
        a(f"s_cbranch_scc1 {lbl}_OK")
        a(f"s_cmp_gt_u32 {sPoll}, 1000")
        a(f"s_cselect_b32 {sTmp}, {sNonce}, 0")
        a(f"s_cmp_lg_u32 {sTmp}, 0")
        a(f"s_cbranch_scc1 {lbl}_OK")
        if opt.get('tagmode',1)==0: a("s_sleep 2")
        a(f"buffer_load_dword {aE}, {vZ[0]}, {sT4c}, {sTagOff} offen sc1")
        a("s_waitcnt vmcnt(0)")
        a(f"s_branch {lbl}")
        a.label(f"{lbl}_OK")
    a(f"s_cmp_lg_u32 {sWave}, 0")
    a("s_cbranch_scc1 K_S_PREC")
    have_tag("K_G_TAG")
    a(f"v_mov_b32 {vT0}, {sNonce}")
    a(f"ds_write_b32 {vZ[0]}, {vT0} offset:{L_NRES+8}")
    a.label("K_S_PREC")
    a("s_waitcnt lgkmcnt(0)")
    stamp(a,opt,15) if not opt.get('dbgfill',0) else None
    a("s_barrier")
    stamp(a,opt,3)
    a(f"s_cmp_lg_u32 {sWave}, 0")
    a("s_cbranch_scc1 K_G_NOT0")
    a.c("wave 0: signal this workgroup's cells")
    a(f"s_lshl_b32 {sTmp}, s2, 4")
    a(f"s_add_u32 {sTmp}, {sTmp}, {FLG}")
    a(f"v_mov_b32 {vT0}, {sNonce}")
    a(f"buffer_store_dword {vT0}, {vZ[0]}, {sW}, {sTmp} offen sc1")
    a("s_branch K_G_SETUP")
    a.label("K_G_NOT0")
    a(f"s_cmp_lt_u32 {sWave}, 4")
    a("s_cbranch_scc1 K_G_WH")
    a(f"s_sub_u32 {sTmp}, {sWave}, 5")
    a(f"s_cmp_lt_u32 {sTmp}, 2")
    a("s_cbranch_scc1 K_G_SETUP")
    a.c("waves 4, 7: pos table -> LDS (37 pieces each)")
    a(f"s_cmp_eq_u32 {sWave}, 7")
    a(f"s_cselect_b32 {sI}, {37*1024}, 0")
    for i in range(37):
        a(f"s_add_u32 {sTmp}, {sI}, {i*1024}")
        a(f"s_add_u32 {sTmp2}, {sTmp}, {L_POS}")
        a(f"s_mov_b32 m0, {sTmp2}")
        a("s_nop 0")
        a(f"buffer_load_dwordx4 {vL16}, {sP}, {sTmp} offen lds")
    a("s_branch K_G_SETUP")
    a.label("K_G_WH")
    a.c("waves 1..3: raw w_h -> staging area")
    a("s_load_dwordx2 s[64:65], s[0:1], 56")
    a(f"s_sub_u32 {sI}, {sWave}, 1")
    a("s_waitcnt lgkmcnt(0)")
    srd(a,sT4b,"s64","s65",128*128)
    for k in range(6):
        a(f"s_add_u32 {sTmp}, {sI}, {3*k}")
        a(f"s_min_u32 {sTmp}, {sTmp}, 15")
        a(f"s_lshl_b32 {sTmp}, {sTmp}, 10")
        a(f"s_add_u32 {sTmp2}, {sTmp}, {L_HST}")
        a(f"s_mov_b32 m0, {sTmp2}")
        a("s_nop 0")
        a(f"buffer_load_dwordx4 {vL16}, {sT4b}, {sTmp} offen lds")
    a.label("K_G_SETUP")
    a.c("operands from raw w_e: W1 (for A'), W4', wd'")
    W1=D2
    a(f"v_add_u32 {vT0}, {L_RAWW}, {vTRW}")
    for s_ in range(4):
        for x in range(2):
            for th in range(2):
                r=(s_*2+x)*4+2*th
                a(f"ds_read_b64_tr_b16 {W1[r:r+2]}, {vT0} offset:{s_*2048+th*512+x*64}")
    W4R=HA[0:8]
    for x in range(2):
        for th in range(2):
            a(f"ds_read_b64_tr_b16 {W4R[4*x+2*th:4*x+2*th+2]}, {vT0} offset:{129*128+th*512+x*64}")
    WD=M[0:2]
    a(f"v_mov_b32 {WD[0]}, 0")
    a(f"v_mov_b32 {WD[1]}, 0")
    a(f"v_and_b32 {vT1}, 31, {vL}")
    a(f"v_lshlrev_b32 {vT2}, 1, {vT1}")
    a(f"v_add_u32 {vT2}, {L_RAWW+128*128}, {vT2}")
    a(f"ds_read_u16_d16_hi {WD[0]}, {vT2}")
    a(f"ds_read_u16_d16_hi {WD[1]}, {vT2} offset:64")
    a("s_waitcnt lgkmcnt(0)")
    for x in range(2):
        for s_ in range(4):
            mfma(a,D1[16*x:16*x+16],HW[4*s_:4*s_+4],W1[(s_*2+x)*4:(s_*2+x)*4+4],"0" if s_==0 else D1[16*x:16*x+16])
    a(f"s_mov_b32 {sTmp}, {NEG_LOG2E}")
    for i in range(8):
        a(f"v_lshlrev_b32 {vT0}, 16, {W4R[i]}")
        a(f"v_and_b32 {vT2}, 0xffff0000, {W4R[i]}")
        a(f"v_mul_f32 {vT0}, {sTmp}, {vT0}")
        a(f"v_mul_f32 {vT2}, {sTmp}, {vT2}")
        a(f"v_cvt_pk_bf16_f32 {WE[i]}, {vT0}, {vT2}")
    a(f"v_cmp_lt_u32 vcc, 31, {vL}")
    for x in range(2):
        a(f"v_mul_f32 {WD[x]}, {sTmp}, {WD[x]}")
        a(f"v_cvt_pk_bf16_f32 {vT0}, {WD[x]}, {WD[x]}")
        a(f"v_and_b32 {vT0}, 0xffff0000, {vT0}")
        a(f"v_sub_f32 {vT2}, {WD[x]}, {vT0}")
        a(f"v_cvt_pk_bf16_f32 {vT2}, {vT2}, {vT2}")
        a(f"v_and_b32 {vT2}, 0xffff0000, {vT2}")
        a(f"v_cndmask_b32 {WD[x]}, {vT0}, {vT2}, vcc")
    a(f"s_cmp_lg_u32 {sWave}, 0")
    a("s_cbranch_scc1 K_G_NOEARLY")
    def poll_loads():
        a(f"s_mov_b32 {sTmp2}, {FLG}")
        for k in range(4): a(f"buffer_load_dword {(T[k] if opt.get('ppoll',0) else AD[k])}, {vL16}, {sW}, {sTmp2} offen offset:{1024*k} sc1")
        if opt.get('hpf',0):
            for hh in range(2):
                a(f"s_mov_b32 {sTmp2}, {FLG2+4096*hh}")
                for k in range(4): a(f"buffer_load_dword {A2R[4*hh+k]}, {vL16}, {sW}, {sTmp2} offen offset:{1024*k} sc1")
    poll_loads()
    a.label("K_G_NOEARLY")
    a(f"v_cmp_lt_u32 vcc, 31, {vL}")
    a(f"v_mov_b32 {vJ}, 0xffff")
    for x in range(2):
        for r in range(4):
            q0,q1=D1[16*x+2*r],D1[16*x+2*r+1]
            a(f"v_mul_f32 {q0}, {sTmp}, {q0}")
            a(f"v_mul_f32 {q1}, {sTmp}, {q1}")
            a(f"v_cvt_pk_bf16_f32 {vT0}, {q0}, {q1}")
            a(f"v_lshlrev_b32 {vT1}, 16, {vT0}")
            a(f"v_and_b32 {vT2}, 0xffff0000, {vT0}")
            a(f"v_sub_f32 {vT1}, {q0}, {vT1}")
            a(f"v_sub_f32 {vT2}, {q1}, {vT2}")
            a(f"v_cvt_pk_bf16_f32 {vT1}, {vT1}, {vT2}")
            a(f"v_cndmask_b32 {WA[4*x+r]}, {vT0}, {vT1}, vcc")
        a(f"v_bfi_b32 {WA[4*x+3]}, {vJ}, {WA[4*x+3]}, {WD[x]}")
    a(f"s_lshl_b32 {sTmp}, {sWave}, 11")
    a(f"s_add_u32 {sTmp}, {sTmp}, {L_A2}")
    a(f"v_lshl_add_u32 {vT0}, {vL}, 5, {sTmp}")
    a(f"ds_write_b128 {vT0}, {WA[0:4]}")
    a(f"ds_write_b128 {vT0}, {WA[4:8]} offset:16")
    for i in range(32): a(f"v_mov_b32 {D2[i]}, 0")
    a(f"s_sub_u32 {sTmp}, {sWave}, 5")
    a(f"s_cmp_lt_u32 {sTmp}, 2")
    a("s_cbranch_scc0 K_G_NOFLG2")
    a.c("waves 5,6: their rows have left -> signal them")
    a(f"ds_read_b32 {aE}, {vZ[0]} offset:{L_NRES+8}")
    a("s_waitcnt vmcnt(0) lgkmcnt(0)")
    a(f"v_readfirstlane_b32 {sNonce}, {aE}")
    a("s_nop 3")
    a(f"s_lshl_b32 {sTmp}, s2, 1")
    a(f"s_add_u32 {sTmp}, {sTmp}, {sWave}")
    a(f"s_sub_u32 {sTmp}, {sTmp}, 5")
    a(f"s_lshl_b32 {sTmp}, {sTmp}, 4")
    a(f"s_add_u32 {sTmp}, {sTmp}, {FLG2}")
    a(f"v_mov_b32 {vT0}, {sNonce}")
    a(f"buffer_store_dword {vT0}, {vZ[0]}, {sW}, {sTmp} offen sc1")
    a.label("K_G_NOFLG2")
    a(f"s_cmp_lg_u32 {sWave}, 0")
    a("s_cbranch_scc1 K_G_WAIT")
    if not opt.get('ppoll',0):
        a.c("wave 0: wait for all hand-offs (the first round of flag loads is already in flight)")
        a("s_branch K_G_POLL1")
        a.label("K_G_POLL")
        poll_loads()
        a.label("K_G_POLL1")
        a("s_waitcnt vmcnt(0)")
        PF=[AD[k] for k in range(4)]+([A2R[k] for k in range(8)] if opt.get('hpf',0) else [])
        a(f"v_cmp_eq_u32 {sAny}, {sNonce}, {PF[0]}")
        for r_ in PF[1:]:
            a(f"v_cmp_eq_u32 vcc, {sNonce}, {r_}")
            a("s_nop 1")
            a(f"s_and_b64 {sAny}, {sAny}, vcc")
        a(f"s_cmp_eq_u64 {sAny}, -1")
        a("s_cbranch_scc1 K_G_WAIT")
        a(f"s_add_u32 {sPoll}, {sPoll}, 1")
        a(f"s_cmp_lt_u32 {sPoll}, 200000")
        a("s_cbranch_scc1 K_G_POLL")
    else:
        a.c("wave 0: wait for all hand-offs; two rounds of flag loads are kept in flight")
        def pl(regs):
            for k in range(4): a(f"buffer_load_dword {regs[k]}, {vL16}, {sW}, {sI} offen offset:{1024*k} sc1")
        def chk(regs):
            a(f"v_cmp_eq_u32 {sAny}, {sNonce}, {regs[0]}")
            for r_ in regs[1:]:
                a(f"v_cmp_eq_u32 vcc, {sNonce}, {r_}")
                a("s_nop 1")
                a(f"s_and_b64 {sAny}, {sAny}, vcc")
            a(f"s_cmp_eq_u64 {sAny}, -1")
            a("s_cbranch_scc1 K_G_SEEN")
        SA=[T[k] for k in range(4)]; SB=[T[4+k] for k in range(4)]
        a(f"s_mov_b32 {sI}, {FLG}")
        a.label("K_G_POLL")
        pl(SB)
        a("s_waitcnt vmcnt(4)")
        chk(SA)
        pl(SA)
        a("s_waitcnt vmcnt(4)")
        chk(SB)
        a(f"s_add_u32 {sPoll}, {sPoll}, 1")
        a(f"s_cmp_lt_u32 {sPoll}, 100000")
        a("s_cbranch_scc1 K_G_POLL")
        a.label("K_G_SEEN")
        a("s_waitcnt lgkmcnt(0)")
        a("s_branch K_G_GO")
    a.label("K_G_WAIT")
    a.c("waves 4 and 7 keep their pos pieces in flight: their cell loads return behind them")
    a(f"s_lshl_b32 {sTmp}, 1, {sWave}")
    a(f"s_and_b32 {sTmp}, {sTmp}, 0x90")
    a("s_cbranch_scc1 K_G_WAIT47")
    a("s_waitcnt vmcnt(0)")
    a.label("K_G_WAIT47")
    a("s_waitcnt lgkmcnt(0)")
    a.label("K_G_GO")
    for _ in range(opt.get('delay',0)): a("s_sleep 32")
    a("s_barrier")
    stamp(a,opt,4)
    RECP=D1[0:16]; REC=[RECP[2*i] for i in range(8)]+[RECP[2*i+1] for i in range(8)]; WAD=D1[16:32]; RK=HA
    a.c("cell records of this bin: pair s holds slots m and 16+m (m = l&15) of cell 32s+4v+(l>>4)")
    if not CT:
        a(f"s_lshl_b32 {sTmp}, s2, 15")
        a(f"s_lshl_b32 {sTmp2}, {sWave}, 9")
        a(f"s_add_u32 {sTmp}, {sTmp}, {sTmp2}")
        a(f"v_lshl_add_u32 {vT0}, {vL}, 3, {sTmp}")
    else:
        a(f"s_lshl_b32 {sTmp}, s2, 7")
        a(f"s_lshl_b32 {sTmp2}, {sWave}, 17")
        a(f"s_add_u32 {sTmp}, {sTmp}, {sTmp2}")
        a(f"v_lshrrev_b32 {vT0}, 4, {vL}")
        a(f"v_lshlrev_b32 {vT0}, 15, {vT0}")
        a(f"v_and_b32 {vT1}, 15, {vL}")
        a(f"v_lshl_add_u32 {vT0}, {vT1}, 3, {vT0}")
        a(f"v_add_u32 {vT0}, {sTmp}, {vT0}")
    ROT=opt.get('rot',0)
    if ROT==1: a(f"s_getreg_b32 {sRot}, hwreg(HW_REG_XCC_ID, 0, 4)")
    elif ROT==2: a(f"s_and_b32 {sRot}, s2, 7")
    elif ROT==3:
        a(f"s_getreg_b32 {sRot}, hwreg(HW_REG_XCC_ID, 0, 4)")
        a(f"s_and_b32 {sRot}, {sRot}, 3")
        a(f"s_lshl_b32 {sRot}, {sRot}, 1")
    else: a(f"s_mov_b32 {sRot}, 0")
    def pair_index(dst,s_):
        a(f"s_add_u32 {dst}, {sRot}, {s_}")
        a(f"s_and_b32 {dst}, {dst}, 7")
    for s_ in range(8):
        pair_index(sTmp,s_)
        a(f"s_lshl_b32 {sTmp}, {sTmp}, {20 if CT else 12}")
        a(f"buffer_load_dwordx2 {RECP[2*s_:2*s_+2]}, {vT0}, {sW}, {sTmp} offen{LD}")
    a(f"v_lshlrev_b32 {vT2}, 1, {vL}")
    a(f"v_and_b32 {vT2}, 62, {vT2}")
    a("s_load_dwordx2 s[98:99], s[0:1], 48")
    a.c("node-update weights (transposed reads of raw w_h), waves 0..3 use them")
    a(f"s_and_b32 {sTmp}, {sWave}, 1")
    a(f"s_lshl_b32 {sTmp}, {sTmp}, 6")
    a(f"s_add_u32 {sTmp}, {sTmp}, {L_HST}")
    a(f"v_add_u32 {vT1}, {sTmp}, {vTRW}")
    for s_ in range(8):
        for th in range(2):
            a(f"ds_read_b64_tr_b16 {WH[4*s_+2*th:4*s_+2*th+2]}, {vT1} offset:{s_*2048+th*512}")
            if (2*s_+th)==7: a("s_waitcnt lgkmcnt(0)")
    srd(a,sT4,"s98","s99",128)
    a(f"v_mov_b32 {WX[0]}, 0")
    a(f"v_mov_b32 {WX[1]}, 0")
    a(f"buffer_load_short_d16_hi {WX[0]}, {vT2}, {sT4}, 0 offen")
    a(f"buffer_load_short_d16_hi {WX[1]}, {vT2}, {sT4}, 0 offen offset:64")
    a("s_waitcnt vmcnt(2)")
    stamp(a,opt,5)
    a(f"s_mov_b64 {sAny}, 0")
    for s_ in range(16):
        a(f"v_cmp_gt_u32 {sMask[s_]}, {sMark}, {REC[s_]}")
        if s_<8:
            a(f"v_cmp_eq_u32 vcc, {sMark}, {REC[s_]}")
        a(f"v_lshrrev_b32 {WAD[s_]}, 27, {REC[s_]}")
        a(f"v_and_b32 {WAD[s_]}, 0x1c, {WAD[s_]}")
        if s_<8: a(f"s_or_b64 {sAny}, {sAny}, vcc")
    order=[x for p in range(8) for x in (p,8+p)]
    for n_,s_ in enumerate(order):
        a(f"s_mov_b64 exec, {sMask[s_]}")
        if s_>=8: a(f"s_cbranch_execz K2_A{s_}")
        a(f"ds_add_rtn_u32 {RK[s_]}, {WAD[s_]}, {vOne} offset:{L_CNT}")
        if s_>=8: a.label(f"K2_A{s_}")
        if n_==7:
            a("s_waitcnt lgkmcnt(4)")
    a("s_mov_b64 exec, -1")
    FL=A2R
    def flg2_loads():
        a(f"s_mov_b32 {sTmp2}, {FLG2}")
        for k in range(4): a(f"buffer_load_dword {FL[k]}, {vL16}, {sW}, {sTmp2} offen offset:{1024*k} sc1")
        a(f"s_mov_b32 {sTmp2}, {FLG2+4096}")
        for k in range(4): a(f"buffer_load_dword {FL[4+k]}, {vL16}, {sW}, {sTmp2} offen offset:{1024*k} sc1")
    a(f"s_cmp_lg_u32 {sWave}, {99 if opt.get('hpf',0) else 1}")
    a("s_cbranch_scc1 K2_NOF2A")
    a.c("wave 1: flags of the source-node table (checked before barrier 2)")
    flg2_loads()
    a(f"ds_read_b32 {aE}, {vZ[0]} offset:{L_NRES+8}")
    a.label("K2_NOF2A")
    a(f"s_lshl_b32 {sTmp}, {sWave}, 2")
    a(f"v_lshrrev_b32 {vT0}, 4, {vL}")
    a(f"v_add_u32 {vT0}, {sTmp}, {vT0}")
    a(f"v_mul_u32_u24 {vT0}, {CH}, {vT0}")
    NE=opt.get('epf',1)
    def epf_block():
        if NE:
            a.c("L2 warm-up of the e_attr lines of the first records (speed only; results are never read)")
            a(f"s_lshl_b32 {sTmp}, {sWave}, 2")
            a(f"v_lshrrev_b32 {vT0}, 4, {vL}")
            a(f"v_add_u32 {vT0}, {sTmp}, {vT0}")
            a(f"v_mul_u32_u24 {vT0}, {CH}, {vT0}")
            a(f"v_mov_b32 {vT2}, 0x2000000")
            RKF=opt.get('rkf',0)
            if RKF: a("s_waitcnt lgkmcnt(0)")
            for k in range(NE):
                a(f"v_cmp_gt_u32 vcc, {sMark}, {REC[k]}")
                if RKF:
                    a(f"v_cmp_gt_u32 {sSave}, {RKF}, {RK[k]}")
                a(f"v_and_b32 {vT1}, 0xfff, {REC[k]}")
                pair_index(sTmp,k)
                a(f"s_mul_i32 {sTmp}, {sTmp}, {32*CH}")
                if RKF: a(f"s_and_b64 vcc, vcc, {sSave}")
                a(f"v_add3_u32 {vT1}, {vT1}, {vT0}, {sTmp}")
                if opt.get('hpf',0): a(f"v_bfe_u32 {vT3}, {REC[k]}, 12, 14")
                else: a("s_nop 0")
                a(f"v_cndmask_b32 {vT1}, {vT2}, {vT1}, vcc")
                a(f"v_lshlrev_b32 {vT1}, 5, {vT1}")
                a(f"buffer_load_dword {vDUM}, {vT1}, {sE}, 0 offen")
                if opt.get('hpf',0):
                    a(f"v_cndmask_b32 {vT3}, {vT2}, {vT3}, vcc")
                    a(f"v_lshlrev_b32 {vT3}, 7, {vT3}")
                    a(f"buffer_load_dword {vDUM}, {vT3}, {sB}, 0 offen{HLD}")
    if opt.get('epfpos',1)==1:
        epf_block()
        a(f"s_lshl_b32 {sTmp}, {sWave}, 2")
        a(f"v_lshrrev_b32 {vT0}, 4, {vL}")
        a(f"v_add_u32 {vT0}, {sTmp}, {vT0}")
        a(f"v_mul_u32_u24 {vT0}, {CH}, {vT0}")
    a(f"v_mov_b32 {vT1}, {L_L0}")
    a(f"v_mov_b32 {vT2}, {L_L1}")
    a("s_waitcnt lgkmcnt(0)")
    for s_ in order:
        a(f"s_mov_b64 exec, {sMask[s_]}")
        if s_>=8: a(f"s_cbranch_execz K2_B{s_}")
        pair_index(sTmp,s_&7)
        a(f"s_mul_i32 {sTmp}, {sTmp}, {32*CH}")
        a(f"v_min_u32 {RK[s_]}, {CAPX-1}, {RK[s_]}")
        a(f"v_and_b32 {vT3}, 0xfff, {REC[s_]}")
        a(f"v_mad_u32_u24 {RK[s_]}, {WAD[s_]}, {sCAPq}, {RK[s_]}")
        a(f"v_add3_u32 {vT3}, {vT3}, {vT0}, {sTmp}")
        a(f"v_bfe_u32 {vJ}, {REC[s_]}, 26, 3")
        a(f"v_lshl_add_u32 {AD[0]}, {RK[s_]}, 2, {vT1}")
        a(f"v_lshl_or_b32 {vT3}, {vT3}, 5, {vJ}")
        a(f"v_lshl_add_u32 {AD[1]}, {RK[s_]}, 1, {vT2}")
        a(f"v_bfe_u32 {vJ}, {REC[s_]}, 12, 14")
        a(f"ds_write_b32 {AD[0]}, {vT3}")
        a(f"ds_write_b16 {AD[1]}, {vJ}")
        if s_>=8: a.label(f"K2_B{s_}")
    a("s_mov_b64 exec, -1")
    if opt.get('epfpos',1)==0: epf_block()
    a.c("overflowed cells -> rescan list (rare)")
    a(f"s_cmp_eq_u64 {sAny}, 0")
    a("s_cbranch_scc1 K2_NOMARK")
    a(f"v_lshrrev_b32 {vT0}, 4, {vL}")
    a(f"s_lshl_b32 {sTmp}, {sWave}, 2")
    a(f"v_add_u32 {vT0}, {sTmp}, {vT0}")
    a(f"v_mov_b32 {vT1}, {L_NRES}")
    for s_ in range(8):
        a(f"v_cmp_eq_u32 vcc, {sMark}, {REC[s_]}")
        a(f"s_and_saveexec_b64 {sSave}, vcc")
        a(f"s_cbranch_execz K2_MK{s_}")
        a(f"ds_add_rtn_u32 {vT2}, {vT1}, {vOne}")
        pair_index(sTmp,s_)
        a(f"s_lshl_b32 {sTmp}, {sTmp}, 5")
        a(f"v_add_u32 {vT3}, {sTmp}, {vT0}")
        a("s_waitcnt lgkmcnt(0)")
        a(f"v_lshlrev_b32 {vT2}, 2, {vT2}")
        a(f"ds_write_b32 {vT2}, {vT3} offset:{L_RES}")
        a.label(f"K2_MK{s_}")
        a(f"s_mov_b64 exec, {sSave}")
    a.label("K2_NOMARK")
    a("s_load_dwordx2 s[64:65], s[0:1], 0")
    a(f"s_waitcnt vmcnt({opt.get('epf',1)*(2 if opt.get('hpf',0) else 1)}) lgkmcnt(0)")
    a(f"s_cmp_lg_u32 {sWave}, {99 if opt.get('hpf',0) else 1}")
    a("s_cbranch_scc1 K2_NOF2B")
    a(f"v_readfirstlane_b32 {sNonce}, {aE}")
    a(f"s_mov_b32 {sPoll}, 0")
    a("s_nop 1")
    a.label("K2_F2CHK")
    a(f"v_cmp_eq_u32 {sAny}, {sNonce}, {FL[0]}")
    for k in range(1,8):
        a(f"v_cmp_eq_u32 vcc, {sNonce}, {FL[k]}")
        a("s_nop 1")
        a(f"s_and_b64 {sAny}, {sAny}, vcc")
    a(f"s_cmp_eq_u64 {sAny}, -1")
    a("s_cbranch_scc1 K2_NOF2B")
    a(f"s_add_u32 {sPoll}, {sPoll}, 1")
    a(f"s_cmp_gt_u32 {sPoll}, 200000")
    a("s_cbranch_scc1 K2_NOF2B")
    flg2_loads()
    a("s_waitcnt vmcnt(0)")
    a("s_branch K2_F2CHK")
    a.label("K2_NOF2B")
    srd(a,sHs,"s64","s65",N*128)
    a(f"s_mov_b32 {sTmp}, {NEG_LN2}")
    a(f"v_mul_f32 {WX[0]}, {sTmp}, {WX[0]}")
    a(f"v_mul_f32 {WX[1]}, {sTmp}, {WX[1]}")
    stamp(a,opt,6)
    a("s_barrier")
    stamp(a,opt,7)
    a.c("window sizes (lane = pair i,k) and the rescan count")
    a(f"v_mov_b32 {vT0}, {L_NRES}")
    a(f"ds_read_b32 {vT1}, {vT0}")
    a(f"ds_read_b32 {vT2}, {aOH} offset:{L_CNT}")
    a(f"ds_read_b32 {vT3}, {SS} offset:{L_CNT}")
    a("s_waitcnt lgkmcnt(0)")
    a(f"v_readfirstlane_b32 {sNR}, {vT1}")
    a(f"v_min_u32 {vT0}, 0xffffff, {vT2}")
    a(f"v_min_u32 {vJ}, 0xffffff, {vT3}")
    a(f"s_cmp_eq_u32 {sNR}, 0")
    a("s_cbranch_scc1 K2_CHECK")
    a(f"s_min_u32 {sNR}, {sNR}, 256")
    a(f"s_mov_b32 {sI}, 0")
    a.label("K2_RESCAN_I")
    a(f"s_lshl_b32 {sTmp}, {sI}, 2")
    a(f"s_add_u32 {sTmp}, {sTmp}, {L_RES}")
    a(f"v_mov_b32 {vT0}, {sTmp}")
    a(f"ds_read_b32 {vT1}, {vT0}")
    a("s_waitcnt lgkmcnt(0)")
    a(f"v_readfirstlane_b32 {sWsrc}, {vT1}")
    a("s_nop 3")
    a(f"s_min_u32 {sWsrc}, {sWsrc}, 255")
    a(f"s_mov_b32 {sC}, 0")
    a.label("K2_RESCAN_C")
    def append_raw(lim_local):
        a(f"v_lshlrev_b32 {vT1}, 2, {vT0}")
        a(f"buffer_load_dword {AD[0]}, {vT1}, {sD}, 0 offen")
        a(f"buffer_load_dword {AD[1]}, {vT1}, {sS}, 0 offen")
        a("s_waitcnt vmcnt(0)")
        a(f"v_mul_hi_u32 {vT2}, {AD[0]}, {sK}")
        a(f"v_lshrrev_b32 {vT3}, 3, {vT2}")
        a(f"v_cmp_eq_u32 vcc, s2, {vT3}")
        a("s_nop 1")
        a(f"s_and_b64 vcc, vcc, {sAny}")
        a(f"s_and_saveexec_b64 {sSave}, vcc")
        a(f"s_cbranch_execz {lim_local}")
        a(f"v_mad_u32_u24 {vT3}, {vT2}, {s3125}, {v511}")
        a(f"v_and_b32 {vT2}, 7, {vT2}")
        a(f"v_lshrrev_b32 {vT3}, 9, {vT3}")
        a(f"v_lshlrev_b32 {vT2}, 2, {vT2}")
        a(f"v_sub_u32 {vT3}, {AD[0]}, {vT3}")
        a(f"ds_add_rtn_u32 {AD[2]}, {vT2}, {vOne} offset:{L_CNT}")
        a(f"v_lshl_or_b32 {vT0}, {vT0}, 5, {vT3}")
        a("s_waitcnt lgkmcnt(0)")
        a(f"v_min_u32 {AD[2]}, {CAPX-1}, {AD[2]}")
        a(f"v_mad_u32_u24 {AD[2]}, {vT2}, {sCAPq}, {AD[2]}")
        a(f"v_mov_b32 {vT2}, {L_L0}")
        a(f"v_mov_b32 {vT3}, {L_L1}")
        a(f"v_lshl_add_u32 {vT2}, {AD[2]}, 2, {vT2}")
        a(f"v_lshl_add_u32 {vT3}, {AD[2]}, 1, {vT3}")
        a(f"ds_write_b32 {vT2}, {vT0}")
        a(f"ds_write_b16 {vT3}, {AD[1]}")
        a.label(lim_local)
        a(f"s_mov_b64 exec, {sSave}")
    a(f"s_lshl_b32 {sTmp}, {sC}, 9")
    a(f"v_add_u32 {vT1}, {sTmp}, v0")
    a(f"s_mul_i32 {sTmp2}, {sWsrc}, {CH}")
    a(f"v_add_u32 {vT0}, {sTmp2}, {vT1}")
    a(f"v_cmp_gt_u32 vcc, {CH}, {vT1}")
    a(f"s_mov_b32 {sTmp}, {E}")
    a(f"v_cmp_gt_u32 {sAny}, {sTmp}, {vT0}")
    a("s_nop 1")
    a(f"s_and_b64 {sAny}, {sAny}, vcc")
    append_raw("K2_RA1")
    a(f"s_add_u32 {sC}, {sC}, 1")
    a(f"s_cmp_lt_u32 {sC}, 7")
    a("s_cbranch_scc1 K2_RESCAN_C")
    a(f"s_add_u32 {sI}, {sI}, 1")
    a(f"s_cmp_lt_u32 {sI}, {sNR}")
    a("s_cbranch_scc1 K2_RESCAN_I")
    a("s_waitcnt lgkmcnt(0)")
    a("s_barrier")
    a(f"ds_read_b32 {vT2}, {aOH} offset:{L_CNT}")
    a(f"ds_read_b32 {vT3}, {SS} offset:{L_CNT}")
    a("s_waitcnt lgkmcnt(0)")
    a(f"v_min_u32 {vT0}, 0xffffff, {vT2}")
    a(f"v_min_u32 {vJ}, 0xffffff, {vT3}")
    a.label("K2_CHECK")
    a.c("window assignment by size rank")
    a(f"v_lshl_or_b32 {vT0}, {vT0}, 3, {aPS}")
    a(f"v_lshl_or_b32 {vJ}, {vJ}, 3, {aPD}")
    a(f"v_cmp_lt_u32 {sAny}, {sCAP}, {vT3}")
    a(f"v_cmp_gt_u32 vcc, {vJ}, {vT0}")
    a(f"s_mov_b32 {sWin}, 0")
    a("s_nop 2")
    for i in range(8):
        a(f"s_bfe_u32 {sTmp}, {'vcc_lo' if i<4 else 'vcc_hi'}, {(8<<16)|(8*(i&3))}")
        a(f"s_bcnt1_i32_b32 {sTmp}, {sTmp}")
        a(f"s_cmp_eq_u32 {sTmp}, {sTgt}")
        a(f"s_cselect_b32 {sWin}, {i}, {sWin}")
    if opt.get('nobal',0): a(f"s_mov_b32 {sWin}, {sWave}")
    a(f"s_lshl_b32 {sTmp}, {sWin}, 3")
    a(f"v_readlane_b32 {sCnt}, {vT2}, {sTmp}")
    geometry(sWin)
    a(f"s_lshl_b32 {sTmp}, {sWin}, 11")
    a(f"v_add_u32 {vE64}, {sTmp}, {vE64}")
    a(f"v_add_u32 {vTR}, {sTmp}, {vTR}")
    a(f"s_add_u32 {sTmp}, {sTmp}, {L_A2}")
    a(f"v_lshl_add_u32 {vT0}, {vL}, 5, {sTmp}")
    a(f"ds_read_b128 {WA[0:4]}, {vT0}")
    a(f"ds_read_b128 {WA[4:8]}, {vT0} offset:16")
    for i in range(4): a(f"v_mov_b32 {A2R[i]}, 0")
    a(f"ds_write_b128 {vT0}, {A2R[0:4]}")
    a(f"ds_write_b128 {vT0}, {A2R[0:4]} offset:16")
    a(f"s_cmp_eq_u64 {sAny}, 0")
    a("s_cbranch_scc1 K2_MAIN")
    a.c("generic (slow) mode: raw scan of all edges, 512 per round")
    a(f"s_mov_b32 {sMode}, 1")
    a.label("K2_GEN")
    a("s_barrier")
    a(f"s_cmp_lg_u32 {sWave}, 0")
    a("s_cbranch_scc1 K2_GEN1")
    a(f"v_and_b32 {vT0}, 7, {vL}")
    a(f"v_lshlrev_b32 {vT0}, 2, {vT0}")
    a(f"ds_write_b32 {vT0}, {vZ[0]} offset:{L_CNT}")
    a("s_waitcnt lgkmcnt(0)")
    a.label("K2_GEN1")
    a("s_barrier")
    a(f"s_lshl_b32 {sTmp}, {sChunk}, 9")
    a(f"v_add_u32 {vT0}, {sTmp}, v0")
    a(f"s_mov_b32 {sTmp}, {E}")
    a(f"v_cmp_gt_u32 {sAny}, {sTmp}, {vT0}")
    a("s_nop 1")
    append_raw("K2_RA2")
    a("s_waitcnt lgkmcnt(0)")
    a("s_barrier")
    a(f"s_lshl_b32 {sTmp}, {sWin}, 2")
    a(f"v_mov_b32 {vT0}, {sTmp}")
    a(f"ds_read_b32 {vT1}, {vT0} offset:{L_CNT}")
    a("s_waitcnt lgkmcnt(0)")
    a(f"v_readfirstlane_b32 {sCnt}, {vT1}")
    a("s_nop 3")
    a.label("K2_MAIN")
    if opt.get('dbgfill',0): stamp(a,opt,14)
    a(f"s_min_u32 {sCnt}, {sCnt}, {CAP}")
    a(f"s_add_u32 {sNT}, {sCnt}, 31")
    a(f"s_lshr_b32 {sNT}, {sNT}, 5")
    a(f"s_cmp_eq_u32 {sNT}, 0")
    a("s_cbranch_scc1 K2_MAIN_DONE")
    a(f"s_mul_i32 {sTmp}, {sWin}, {CAPX*4}")
    a(f"s_add_u32 {sTmp}, {sTmp}, {L_L0}")
    a(f"s_mul_i32 {sTmp2}, {sWin}, {CAPX*2}")
    a(f"s_add_u32 {sTmp2}, {sTmp2}, {L_L1}")
    a(f"v_and_b32 {vT0}, 31, {vL}")
    a(f"v_lshl_add_u32 {aL0}, {vT0}, 2, {sTmp}")
    a(f"v_lshl_add_u32 {aL1s}, {vT0}, 1, {sTmp2}")
    a(f"v_lshrrev_b32 {vT0}, 3, {vL}")
    a(f"v_lshl_add_u32 {aL1d}, {vT0}, 3, {sTmp2}")
    def pad():
        a(f"v_add_u32 {vT0}, {sCnt}, {vL}")
        a(f"v_lshl_add_u32 {vT1}, {vT0}, 2, {sTmp}")
        a(f"v_lshl_add_u32 {vT2}, {vT0}, 1, {sTmp2}")
        a(f"v_mov_b32 {vJ}, 7")
        a(f"ds_write_b32 {vT1}, {vJ}")
        a(f"ds_write_b16 {vT2}, {vZ[0]}")
        a(f"ds_write_b32 {vT1}, {vJ} offset:256")
        a(f"ds_write_b16 {vT2}, {vZ[0]} offset:128")
    def first_reads():
        a(f"ds_read_b32 {vT3}, {aL0}")
        a(f"ds_read_b64 {SD}, {aL1d}")
        a(f"ds_read_b32 {LE[1]}, {aL0} offset:128")
        a(f"ds_read_b32 {LE[0]}, {aL0} offset:256")
        a(f"ds_read_u16 {SS}, {aL1s}")
    a(f"s_cmp_ge_u32 {sCnt}, 96")
    a("s_cbranch_scc1 K2_FILL_BIG")
    pad()
    first_reads()
    a("s_waitcnt lgkmcnt(0)")
    a("s_branch K2_FILL")
    a.label("K2_FILL_BIG")
    first_reads()
    pad()
    a("s_waitcnt lgkmcnt(4)")
    a.label("K2_FILL")
    ENT=['',' nt',' sc1',' sc0 sc1',' sc0',' sc0 nt',' sc1 nt',' sc0 sc1 nt'][opt.get('e_nt',0)]
    def E_addr(le): a(f"v_and_or_b32 {aE}, {le}, {sMaskE}, {vHOFF}")
    def E_load(p): a(f"buffer_load_dwordx4 {EA[p]}, {aE}, {sE}, 0 offen{ENT}")
    def H_addr():
        if opt.get('hmask',0):
            a(f"v_and_b32 {SD[0]}, 0x03ff03ff, {SD[0]}"); a(f"v_and_b32 {SD[1]}, 0x03ff03ff, {SD[1]}")
        for i in range(4):
            a(f"v_mad_u32_u16 {AD[i]}, {SD[i>>1]}, {s128}, {vKD[i]}"+(" op_sel:[1,0,0,0]" if i&1 else ""))
    def H_load(i):
        a(f"s_mov_b32 m0, {sM0[i]}")
        a("s_nop 0")
        a(f"buffer_load_dwordx4 {AD[i]}, {sB}, 0 offen{HLD} lds")
    def P_addr(le,par):
        a(f"v_and_b32 {vJ}, 7, {le}")
        a(f"v_mul_u32_u24 {aPS}, 6, {SS}")
        a(f"v_mad_u32_u24 {aPD}, {vJ}, 6, {sN06}")
        a(f"v_lshlrev_b32 {aOH}, 4, {vJ}")
        a(f"v_lshl_add_u32 {aA2[par]}, {vJ}, 3, {vE64}")
    def P_reads():
        for c in range(3): a(f"ds_read_u16_d16_hi {PS[c]}, {aPS} offset:{L_POS+2*c}")
        for c in range(3): a(f"ds_read_u16_d16_hi {PD[c]}, {aPD} offset:{L_POS+2*c}")
        a(f"ds_read_b128 {OH}, {aOH} offset:{L_OH}")
    def P_calc_list(par):
        return [f"v_sub_f32 {DX[0]}, {PD[0]}, {PS[0]}", f"v_sub_f32 {DX[1]}, {PD[1]}, {PS[1]}", f"v_sub_f32 {DX[2]}, {PD[2]}, {PS[2]}",
                f"v_mul_f32 {DD}, {DX[0]}, {DX[0]}", f"v_fmac_f32 {DD}, {DX[1]}, {DX[1]}", f"v_fmac_f32 {DD}, {DX[2]}, {DX[2]}",
                f"v_cvt_pk_bf16_f32 {E01[0]}, 1.0, {DX[0]}", f"v_cvt_pk_bf16_f32 {E01[1]}, {DX[1]}, {DX[2]}",
                f"v_cvt_pk_bf16_f32 {OH[3]}, {OH[3]}, {DD}",
                f"ds_write_b64 {aA2[par]}, {E01}"]
    def first_loads():
        E_addr(vT3); E_load(0)
        H_addr()
        for i in range(4): H_load(i)
        E_addr(LE[1]); E_load(1)
    def first_prep(readsd):
        P_addr(vT3,0); P_reads()
        if readsd:
            a(f"ds_read_b64 {SD}, {aL1d} offset:64")
        a(f"ds_read_u16 {SS}, {aL1s} offset:64")
        for i in range(16): a(f"v_mov_b32 {T[i]}, 0")
        for i in range(8): a(f"v_mov_b32 {A2R[i]}, 0")
        a("s_waitcnt lgkmcnt(0)")
        for ins in P_calc_list(0): a(ins)
    if opt.get('stagger',1):
        a.c("the younger partner prepares tile 0 first, so the older waves' first rows are requested ahead of it")
        a(f"s_cmp_ge_u32 {sWave}, 4")
        a("s_cbranch_scc1 K2_FILL_B")
    first_loads()
    if opt.get('dbgfill',0): stamp(a,opt,15)
    first_prep(True)
    if opt.get('stagger',1):
        a("s_branch K2_FILL_J")
        a.label("K2_FILL_B")
        first_prep(False)
        first_loads()
        a(f"ds_read_b64 {SD}, {aL1d} offset:64")
        a("s_waitcnt lgkmcnt(0)")
        a.label("K2_FILL_J")
    H_addr()
    P_addr(LE[1],1)
    E_addr(LE[0])
    a("s_waitcnt vmcnt(1)")
    for s_ in range(4): a(f"ds_read_b128 {HA[4*s_:4*s_+4]}, {vHA[s_]}")
    Da,Db=D1[0:16],D1[16:32]
    mfma(a,Da,OH,WA[0:4],"0")
    mfma(a,Da,EA[0],WE[0:4],Da)
    a("s_waitcnt lgkmcnt(0)")
    for i in range(4): H_load(i)
    mfma(a,Da,HA[0:4],ID[0:4],Da)
    mfma(a,Da,HA[4:8],ID[4:8],Da)
    a(f"s_mov_b32 {sT}, 0")
    stamp(a,opt,8)
    if DBG:
        a("s_memtime s[80:81]")
        a("s_waitcnt lgkmcnt(0)")
    a.nop(12)
    MADD=opt.get('madd',1)
    PB_=[0]; MF=[False]
    def prio(p):
        if PRIO: a(f"s_setprio {p+PB_[0] if PB_[0]>=0 else 3}")
    def Tsec(kind,x,p):
        Dx=D1[16*x:16*x+16]; o=1-x; Do=D1[16*o:16*o+16]; D2o=D2[16*o:16*o+16]
        prio(1)
        if kind=='X':
            ea = EA[p] if x==0 else EA[1-p]
            mfma(a,Do,OH,WA[4*o:4*o+4],"0")
            for i in range(8): a(f"v_cvt_pk_bf16_f32 {M[i]}, {T[2*i]}, {T[2*i+1]}")
            mfma(a,Do,ea,WE[4*o:4*o+4],Do)
            for i in range(16):
                if i==6:
                    if x==1: a("s_waitcnt lgkmcnt(2)")
                    mfma(a,D2o,A2R[0:4],M[0:4],D2o)
                a(f"v_exp_f32 {T[i]}, {Dx[i]}")
            if MADD:
                a("s_nop 1")
                mfma(a,T,ONE,ONE,T)
        else:
            hb = HA[8:16] if x==0 else HA[0:8]
            for i in range(16):
                if i==0: mfma(a,Do,hb[0:4],ID[0:4],Do)
                if i==5: mfma(a,Do,hb[4:8],ID[4:8],Do)
                if i==10: mfma(a,D2o,A2R[4:8],M[4:8],D2o)
                a(f"v_rcp_f32 {T[i]}, {T[i]}")
        prio(0)
    def tile(p):
        q=1-p
        Tsec('X',0,p)
        if not opt.get('e_late',0): E_load(p)
        else: a("s_nop 0")
        P_reads()
        a(f"ds_read_b64 {SD}, {aL1d} offset:{64*(p+2)}")
        if not MADD:
            for i in range(16): a(f"v_add_f32 {T[i]}, 1.0, {T[i]}")
        else:
            a.nop(2)
        Tsec('R',0,p)
        def mulsA():
            for i in range(16): a(f"v_mul_f32 {T[i]}, {Da[i]}, {T[i]}")
        if MF[0]: mulsA()
        a(f"s_waitcnt vmcnt({0 if opt.get('e_late',0) else 1}) lgkmcnt(0)")
        for s_ in range(4): a(f"ds_read_b128 {HA[4*s_:4*s_+4]}, {vHA[s_]}")
        for k in range(4): a(f"ds_read_b64_tr_b16 {A2R[2*k:2*k+2]}, {vTR} offset:{512*k}")
        a(f"ds_write_b64 {aA2[p]}, {vZ}")
        pc=P_calc_list(q)
        for ins in pc[:6]: a(ins)
        H_addr()
        if not MF[0]: mulsA()
        for ins in pc[6:]: a(ins)
        if MF[0]: a("s_nop 0")
        Tsec('X',1,p)
        a("s_waitcnt lgkmcnt(0)")
        if opt.get('e_late',0)==1: E_load(p)
        for i in range(4): H_load(i)
        a(f"ds_read_b32 {LE[q]}, {aL0} offset:{128*(p+3)}")
        a(f"ds_read_u16 {SS}, {aL1s} offset:{64*(p+2)}")
        if not MADD:
            for i in range(16): a(f"v_add_f32 {T[i]}, 1.0, {T[i]}")
        Tsec('R',1,p)
        def mulsB():
            for i in range(16): a(f"v_mul_f32 {T[i]}, {Db[i]}, {T[i]}")
        if MF[0]: mulsB()
        a("s_waitcnt lgkmcnt(0)")
        E_addr(LE[q])
        P_addr(LE[p],p)
        if p==1:
            a(f"v_add_u32 {aL0}, 256, {aL0}")
            a(f"v_add_u32 {aL1s}, 128, {aL1s}")
            a(f"v_add_u32 {aL1d}, 128, {aL1d}")
        if not MF[0]: mulsB()
    def drain(par):
        for i in range(8): a(f"v_cvt_pk_bf16_f32 {M[i]}, {T[2*i]}, {T[2*i+1]}")
        a(f"ds_write_b64 {aA2[par]}, {vZ}")
        a("s_nop 0")
        mfma(a,D2[16:32],A2R[0:4],M[0:4],D2[16:32])
        mfma(a,D2[16:32],A2R[4:8],M[4:8],D2[16:32])
    def main_loop(sfx):
        a(".p2align 6")
        a.label("K2_LOOP"+sfx)
        tile(0)
        a(f"s_add_u32 {sT}, {sT}, 1")
        a(f"s_cmp_ge_u32 {sT}, {sNT}")
        a("s_cbranch_scc1 K2_EXIT_ODD"+sfx)
        tile(1)
        a(f"s_add_u32 {sT}, {sT}, 1")
        a(f"s_cmp_lt_u32 {sT}, {sNT}")
        a("s_cbranch_scc1 K2_LOOP"+sfx)
        drain(0)
        a("s_branch K2_LOOP_DONE")
        a.label("K2_EXIT_ODD"+sfx)
        drain(1)
    HP=opt.get('mfirst',2)
    if HP==1:
        a.c("the younger partner (waves 4..7) opens its plain sections with the multiplies, so both partners' multiplies pair up")
        a(f"s_cmp_ge_u32 {sWave}, 4")
        a("s_cbranch_scc1 K2_LOOP_H")
    if HP==2: MF[0]=True
    main_loop("")
    if HP==1:
        a("s_branch K2_LOOP_DONE")
        MF[0]=True
        main_loop("_H")
        MF[0]=False
    a.label("K2_LOOP_DONE")
    if PRIO: a("s_setprio 0")
    a.label("K2_MAIN_DONE")
    stamp(a,opt,9)
    if DBG:
        a("s_memtime s[82:83]")
        a("s_waitcnt lgkmcnt(0)")
        a("s_sub_u32 s80, s82, s80")
        a(f"v_writelane_b32 {VDBG}, s80, 12")
        a(f"v_writelane_b32 {VDBG}, {sNT}, 11")
    a(f"s_cmp_eq_u32 {sMode}, 0")
    a("s_cbranch_scc1 K2_EPI")
    a("s_waitcnt vmcnt(0) lgkmcnt(0)")
    a(f"s_add_u32 {sChunk}, {sChunk}, 1")
    a(f"s_cmp_lt_u32 {sChunk}, {(E+511)//512}")
    a("s_cbranch_scc1 K2_GEN")
    a.label("K2_EPI")
    a.c("segment sums of this window: m_i (bf16) -> rows of this window's (now idle) A2 slice")
    a(f"s_lshl_b32 {sHST}, {sWin}, 11")
    a(f"s_add_u32 {sHST}, {sHST}, {L_A2}")
    a(f"v_and_b32 {vJ}, 31, {vL}")
    a(f"s_mov_b32 {sTmp}, {NEG_LN2}")
    a(f"v_lshrrev_b32 {vT2}, 5, {vL}")
    a(f"v_lshlrev_b32 {vT2}, 7, {vT2}")
    a(f"v_lshl_add_u32 {vT2}, {vJ}, 1, {vT2}")
    a(f"v_add_u32 {vT2}, {sHST}, {vT2}")
    a.nop(8)
    for qq in range(4):
        a(f"v_mul_f32 {AD[0]}, {sTmp}, {D2[4*qq]}")
        a(f"v_mul_f32 {AD[1]}, {sTmp}, {D2[16+4*qq]}")
        a(f"v_cvt_pk_bf16_f32 {AD[2]}, {AD[0]}, {AD[1]}")
        a(f"ds_write_b16 {vT2}, {AD[2]} offset:{qq*256}")
        a(f"ds_write_b16_d16_hi {vT2}, {AD[2]} offset:{qq*256+64}")
    def pos_part():
        a.c("coordinate update of this window")
        PP=T
        for qq in range(4):
            for c in range(1,4):
                r=PP[qq*3+c-1]
                a(f"v_mul_f32 {r}, {WX[0]}, {D2[4*qq+c]}")
                a(f"v_fmac_f32 {r}, {WX[1]}, {D2[16+4*qq+c]}")
        for sh in (1,2,4,8):
            for i in range(12): a(f"v_add_f32_dpp {PP[i]}, {PP[i]}, {PP[i]} row_shr:{sh} row_mask:0xf bank_mask:0xf bound_ctrl:0")
        for i in range(12): a(f"v_add_f32_dpp {PP[i]}, {PP[i]}, {PP[i]} row_bcast:15 row_mask:0xa bank_mask:0xf")
        a(f"v_lshrrev_b32 {vT2}, 5, {vL}")
        a(f"v_lshlrev_b32 {vT2}, 4, {vT2}")
        a(f"s_add_u32 {sTmp}, {sHST}, 1024")
        a(f"v_add_u32 {vT2}, {sTmp}, {vT2}")
        a("s_mov_b32 exec_lo, 0x80000000")
        a("s_mov_b32 exec_hi, 0x80000000")
        for qq in range(4):
            for c in range(3):
                a(f"ds_write_b32 {vT2}, {PP[qq*3+c]} offset:{qq*32+c*4}")
        a("s_mov_b64 exec, -1")
        a(f"v_mul_u32_u24 {vT2}, 86, {vL}")
        a(f"v_lshrrev_b32 {vT2}, 8, {vT2}")
        a(f"v_mul_u32_u24 {vT3}, 3, {vT2}")
        a(f"v_sub_u32 {vT3}, {vL}, {vT3}")
        a(f"v_lshlrev_b32 {vT2}, 4, {vT2}")
        a(f"v_lshl_add_u32 {vT2}, {vT3}, 2, {vT2}")
        a(f"v_add_u32 {vT2}, {sTmp}, {vT2}")
        a(f"v_min_u32 {vT2}, {LDS2-4}, {vT2}")
        a(f"ds_read_b32 {AD[0]}, {vT2}")
        a(f"v_lshl_add_u32 {vT3}, {vL}, 1, {sN06}")
        a(f"v_min_u32 {vT2}, {POS_SZ-2}, {vT3}")
        a(f"ds_read_u16_d16_hi {PS[0]}, {vT2} offset:{L_POS}")
        a(f"s_mul_i32 {sTmp}, {sNJ}, 3")
        a(f"v_cmp_gt_u32 vcc, {sTmp}, {vL}")
        a(f"v_add_u32 {vT3}, {OUT_POS}, {vT3}")
        a(f"v_mov_b32 {vT2}, 0x40000000")
        a("s_waitcnt lgkmcnt(0)")
        a(f"v_cndmask_b32 {vT3}, {vT2}, {vT3}, vcc")
        a(f"v_add_f32 {AD[0]}, {AD[0]}, {PS[0]}")
        a(f"v_cvt_pk_bf16_f32 {AD[0]}, {AD[0]}, {AD[0]}")
        a(f"buffer_store_short {AD[0]}, {vT3}, {sO}, 0 offen{OST}")
    a.c("job waves 4..7: row tile r = (v-4)>>1 (rows = window 4r + (m>>3), node m&7), feature half x = v&1")
    a(f"s_cmp_lt_u32 {sWave}, 4")
    a("s_cbranch_scc1 K2_EPI_NOJOB")
    a(f"s_sub_u32 {sTmp2}, {sWave}, 4")
    a(f"s_lshr_b32 {sTmp2}, {sTmp2}, 1")
    a(f"s_lshl_b32 {sTmp2}, {sTmp2}, 2")
    a(f"v_bfe_u32 {vT0}, {vL}, 3, 2")
    a(f"v_add_u32 {vT0}, {sTmp2}, {vT0}")
    a(f"v_and_b32 {vJ}, 7, {vL}")
    a(f"v_lshlrev_b32 {aL1d}, 11, {vT0}")
    a(f"v_lshl_add_u32 {aL1d}, {vJ}, 7, {aL1d}")
    a(f"v_add_u32 {aL1d}, {L_A2}, {aL1d}")
    a(f"v_add_u32 {aL1d}, {aL1d}, {vHOFF}")
    a(f"s_lshl_b32 {sTmp2}, s2, 3")
    a(f"v_add_u32 {vT0}, {sTmp2}, {vT0}")
    a(f"v_mad_u32_u24 {SD[0]}, {vT0}, {s3125}, {v511}")
    a(f"v_add_u32 {SD[1]}, 3125, {SD[0]}")
    a(f"v_lshrrev_b32 {SD[0]}, 9, {SD[0]}")
    a(f"v_lshrrev_b32 {SD[1]}, 9, {SD[1]}")
    a(f"v_sub_u32 {SD[1]}, {SD[1]}, {SD[0]}")
    a(f"v_cmp_lt_u32 vcc, {vJ}, {SD[1]}")
    a(f"v_add_u32 {vT1}, -1, {SD[1]}")
    a(f"v_min_u32 {vT1}, {vT1}, {vJ}")
    a(f"v_add_u32 {vT1}, {SD[0]}, {vT1}")
    a(f"v_lshlrev_b32 {vT1}, 7, {vT1}")
    a(f"v_add_u32 {vT0}, {vT1}, {vHOFF}")
    for s_ in range(4):
        a(f"buffer_load_dwordx4 {HA[4*s_:4*s_+4]}, {vT0}, {sHs}, 0 offen offset:{32*s_}")
    a(f"s_and_b32 {sTmp2}, {sWave}, 1")
    a(f"s_lshl_b32 {sTmp2}, {sTmp2}, 6")
    a(f"v_lshrrev_b32 {vT0}, 1, {vHOFF}")
    a(f"v_add3_u32 {aL0}, {vT1}, {vT0}, {sTmp2}")
    for qq in range(4):
        a(f"buffer_load_dwordx2 {M[2*qq:2*qq+2]}, {aL0}, {sHs}, 0 offen offset:{16*qq}")
    a(f"v_mov_b32 {vT0}, 0x40000000")
    a(f"v_cndmask_b32 {aL1s}, {vT0}, {aL0}, vcc")
    pos_part()
    HV=D2[0:16]
    a("s_waitcnt vmcnt(1)")
    for s_ in range(4):
        mfma(a,D1[0:16],WH[4*s_:4*s_+4],HA[4*s_:4*s_+4],"0" if s_==0 else D1[0:16])
    for qq in range(4):
        a(f"v_lshlrev_b32 {HV[4*qq]}, 16, {M[2*qq]}")
        a(f"v_and_b32 {HV[4*qq+1]}, 0xffff0000, {M[2*qq]}")
        a(f"v_lshlrev_b32 {HV[4*qq+2]}, 16, {M[2*qq+1]}")
        a(f"v_and_b32 {HV[4*qq+3]}, 0xffff0000, {M[2*qq+1]}")
    stamp(a,opt,10)
    a("s_barrier")
    MA=[EA[0],EA[1],A2R[0:4],A2R[4:8]]
    for s_ in range(4): a(f"ds_read_b128 {MA[s_]}, {aL1d} offset:{32*s_}")
    for s_ in range(4):
        a(f"s_waitcnt lgkmcnt({3-s_})")
        mfma(a,D1[0:16],WH[16+4*s_:20+4*s_],MA[s_],D1[0:16])
    a(f"s_mov_b32 {sTmp}, {NEG_LOG2E}")
    a.nop(14)
    X=D1[0:16]
    for i in range(16): a(f"v_mul_f32 {T[i]}, {sTmp}, {X[i]}")
    for i in range(16): a(f"v_exp_f32 {T[i]}, {T[i]}")
    for i in range(16): a(f"v_add_f32 {T[i]}, 1.0, {T[i]}")
    for i in range(16): a(f"v_rcp_f32 {T[i]}, {T[i]}")
    a("s_nop 0")
    for i in range(16): a(f"v_fma_f32 {T[i]}, {X[i]}, {T[i]}, {HV[i]}")
    for qq in range(4):
        a(f"v_cvt_pk_bf16_f32 {M[2*qq]}, {T[4*qq]}, {T[4*qq+1]}")
        a(f"v_cvt_pk_bf16_f32 {M[2*qq+1]}, {T[4*qq+2]}, {T[4*qq+3]}")
        a(f"buffer_store_dwordx2 {M[2*qq:2*qq+2]}, {aL1s}, {sO}, 0 offen offset:{16*qq}{OST}")
    a("s_branch K2_FIN")
    a.label("K2_EPI_NOJOB")
    a("s_waitcnt lgkmcnt(0)")
    stamp(a,opt,10)
    a("s_barrier")
    pos_part()
    a.label("K2_FIN")
    if DBG:
        a("s_waitcnt vmcnt(0)")
        stamp(a,opt,13)
        a(f"s_lshl_b32 {sTmp}, s2, 4")
        a(f"s_add_u32 {sTmp}, {sTmp}, {sWave}")
        a(f"s_lshl_b32 {sTmp}, {sTmp}, 6")
        a(f"s_add_u32 {sTmp}, {sTmp}, {DBG_OFF}")
        a(f"v_lshlrev_b32 {vT0}, 2, {vL}")
        a("s_mov_b32 exec_lo, 0xffff")
        a("s_mov_b32 exec_hi, 0")
        a(f"buffer_store_dword {VDBG}, {vT0}, {sW}, {sTmp} offen")
        a("s_waitcnt vmcnt(0)")
        if opt.get('dbgh',0):
            a("s_load_dwordx2 s[64:65], s[0:1], 72")
            a("s_waitcnt lgkmcnt(0)")
            srd(a,S(68,4),"s64","s65",256)
            a(f"s_cmp_lg_u32 s2, {opt.get('dbgh',0)}")
            a("s_cbranch_scc1 K_NODBGH")
            a(f"s_cmp_lg_u32 {sWave}, 0")
            a("s_cbranch_scc1 K_NODBGH")
            a("s_mov_b32 exec_lo, 0x3fff")
            a(f"buffer_store_dword {VDBG}, {vT0}, s[68:71], 0 offen offset:4")
            a("s_waitcnt vmcnt(0)")
            a.label("K_NODBGH")
    a.label("K_END")
    a("s_endpgm")
    a.label("K_CODE_END")
    return nv

HEADER='''; Kernarg layout (88 bytes, ptrs only): h, pos, e_attr, src, dst, w_e, w_x, w_h, out, debug, ws
; @launch grid=(256,1,1) block=(512,1,1) lds={lds2}
.amdgcn_target "amdgcn-amd-amdhsa--gfx950"
.text
.globl {k}
.p2align 8
.type {k},@function
'''
def kd(name,nv,ns):
    acc=(nv+3)//4*4
    return f'''.amdhsa_kernel {name}
  .amdhsa_next_free_vgpr {acc}
  .amdhsa_next_free_sgpr {ns}
  .amdhsa_accum_offset {acc}
  .amdhsa_group_segment_fixed_size 0
  .amdhsa_kernarg_size 88
  .amdhsa_user_sgpr_count 2
  .amdhsa_user_sgpr_kernarg_segment_ptr 1
  .amdhsa_system_sgpr_workgroup_id_x 1
  .amdhsa_float_denorm_mode_32 3
.end_amdhsa_kernel
'''
def build(opt):
    out=HEADER.format(lds2=LDS2,k=KNAME)
    a=Asm()
    nv=gen(a,opt)
    assert nv<=255
    out+=a.text()
    out+='.section .rodata,"a"\n.p2align 6\n'+kd(KNAME,256,102)
    return out,nv
if __name__=="__main__":
    opt={}
    for arg in sys.argv[2:]:
        k,v=arg.split('='); opt[k]=int(v)
    txt,nv=build(opt)
    open(sys.argv[1],'w').write(txt)
    print("vgprs:",nv,"LDS",LDS2,"lines",txt.count("\n"),"WS",WS_BYTES)
```

```python
import sys, struct
from asmlib import *

N=12500; E=800000; CH=3136; NSRC=256; NBIN=256; NPW=49
KW=703687442
LOG2E=1.4426950408889634; LN2=0.6931471805599453
def f2u(x): return struct.unpack('<I',struct.pack('<f',x))[0]
NEG_LOG2E=f2u(-LOG2E); NEG_LN2=f2u(-LN2)
SENT=0xFFFFFFFF; MARK=0xFFFFFFFE
CELLS=0; BPT=NBIN*NSRC*128; FLG=BPT+N*128+((-N*128)%4096); FLG2=FLG+4096; WS_BYTES=FLG2+8192
OUT_BYTES=N*64*2+N*3*2; OUT_POS=N*64*2
CAP=576; CAPX=704
L_OH=0; L_CNT=128; L_NRES=160; L_WIN=192; L_RES=256; L_POS=1280; POS_SZ=74*1024
L_L0=L_POS+POS_SZ; L_L1=L_L0+8*CAPX*4; L_A2=L_L1+8*CAPX*2; L_HST=L_A2+8*2048; LDS2=L_HST+8*4096
assert LDS2<=163840, LDS2
L_RAWW=L_L0; L_BST=L_L0+19*1024; assert L_BST+2*32*144<=L_A2
DBG_OFF=16*1024*1024

def WSB(opt): return (32*1024*1024 if opt.get('dbg',0) else WS_BYTES)
def srd(a, s, lo, hi, size):
    a(f"s_mov_b32 {s[0]}, {lo}")
    a(f"s_and_b32 {s[1]}, {hi}, 0xffff")
    a(f"s_mov_b32 {s[2]}, {size}")
    a(f"s_mov_b32 {s[3]}, 0x20000")
VDBG="v255"
def stamp(a,opt,idx):
    if not opt.get('dbg',0): return
    a("s_memrealtime s[100:101]")
    a("s_waitcnt lgkmcnt(0)")
    a(f"v_writelane_b32 {VDBG}, s100, {idx}")
def S(i,n=1): return R('s',i,n)
def V(i,n=1): return R('v',i,n)
def mfma(a,d,A,B,c): a(f"v_mfma_f32_32x32x16_bf16 {d}, {A}, {B}, {c}")

NPOS1=24
KNAME="gather_scatter__cheap_equivariant_egnn__graph_kernel"
def gen(a, opt):
    DBG=opt.get('dbg',0)
    PRIO=opt.get('prio',1)
    ST=[" sc1"," sc0 sc1"," sc1 nt"," sc0 sc1 nt"][opt.get('st',0)]; LD=" sc1" if opt.get('ld_sc1',1) else ""
    HLD=[""," sc1"," sc0 sc1"," sc1 nt"," sc0 sc1 nt"][opt.get('h_sc1',1)]
    SNT=" nt" if opt.get('snt',0) else ""
    OST=[""," nt"," sc1"," sc0 sc1"][opt.get('ost',0)]
    a.label(KNAME)
    sB=S(4,4); sE=S(8,4); sW=S(12,4); sO=S(16,4); sP=S(20,4); sS=S(24,4); sD=S(28,4)
    sWave=S(32); sN0=S(33); sNJ=S(34); sN06=S(35); sNT=S(36); sT=S(37); sMode=S(38); sChunk=S(39)
    sMaskE=S(40); s128=S(41); sK=S(42); s3125=S(43); sLim=S(44); sCAP=S(44); sCnt=S(45); sTmp=S(46); sTmp2=S(47)
    sM0=S(48,4); sSave=S(52,2); sAny=S(54,2); sNR=S(56); sI=S(57); sC=S(58); sWsrc=S(59); sMark=S(60); sCAPq=S(61); sHST=S(62); sTmp3=S(63)
    sMask=[S(64+2*i,2) for i in range(16)]
    sTagOff=S(36)
    sRot=S(39+0) if False else S(37)
    sWin=S(96); sTgt=S(97); sNonce=S(98); sPoll=S(99)
    sT4=S(84,4); sT4b=S(88,4); sT4c=S(92,4)
    sHw=S(48,4)
    sHs=S(68,4); sWx=S(72,4)
    vr=Regs(1,256,'v')
    vL=vr.alloc('lane')
    WE=vr.alloc('WE',8,4); WA=vr.alloc('WA',8,4); ID=vr.alloc('ID',8,4); D2=vr.alloc('D2',32,4)
    D1=vr.alloc('D1',32,4); HA=vr.alloc('HA',16,4); T=vr.alloc('T',16,4); M=vr.alloc('M',8,4)
    A2R=vr.alloc('A2R',8,4); EA=[vr.alloc('EA0',4,4),vr.alloc('EA1',4,4)]; OH=vr.alloc('OH',4,4)
    WH=vr.alloc('WH',32,4); ONE=vr.alloc('ONE',4,4)
    vHA=vr.alloc('vHA',4); vKD=vr.alloc('vKD',4); vTR=vr.alloc('vTR'); vE64=vr.alloc('vE64'); vHOFF=vr.alloc('vHOFF')
    vZ=vr.alloc('vZ',2,2); aL0=vr.alloc('aL0'); aL1s=vr.alloc('aL1s'); aL1d=vr.alloc('aL1d')
    LE=[vr.alloc('LE0'),vr.alloc('LE1')]; aA2=[vr.alloc('aA2_0'),vr.alloc('aA2_1')]
    SD=vr.alloc('SD',2,2); SS=vr.alloc('SS'); PS=vr.alloc('PS',3); PD=vr.alloc('PD',3)
    E01=vr.alloc('E01',2,2); DX=vr.alloc('DX',3); DD=vr.alloc('DD'); AD=vr.alloc('AD',4); vJ=vr.alloc('vJ')
    aE=vr.alloc('aE'); aPS=vr.alloc('aPS'); aPD=vr.alloc('aPD'); aOH=vr.alloc('aOH')
    vT0=vr.alloc('vT0'); vT1=vr.alloc('vT1'); vT2=vr.alloc('vT2'); vT3=vr.alloc('vT3')
    vOne=vr.alloc('vOne'); v511=vr.alloc('v511'); vTRW=vr.alloc('vTRW'); vL16=vr.alloc('vL16'); WX=vr.alloc('WX',2); vDUM=vr.alloc('vDUM')
    nv=vr.next
    HW=T
    def geometry(win):
        a(f"s_lshl_b32 {sTmp}, s2, 3")
        a(f"s_add_u32 {sTmp}, {sTmp}, {win}")
        a(f"s_mul_i32 {sN0}, {sTmp}, 3125")
        a(f"s_add_u32 {sNJ}, {sN0}, {3125+511}")
        a(f"s_add_u32 {sN0}, {sN0}, 511")
        a(f"s_lshr_b32 {sN0}, {sN0}, 9")
        a(f"s_lshr_b32 {sNJ}, {sNJ}, 9")
        a(f"s_sub_u32 {sNJ}, {sNJ}, {sN0}")
        a(f"s_mul_i32 {sN06}, {sN0}, 6")
    def dma(vaddr,srd_,soff,ldsbase_const=None,ldsreg=None):
        pass

    def load_hwin():
        a.c("h rows of the natural window (A operand of h@W1; needed after barrier C)")
        a(f"v_bfe_u32 {vT0}, {vL}, 3, 1")
        a(f"v_and_b32 {vT2}, 3, {vL}")
        a(f"v_lshl_add_u32 {vT0}, {vT0}, 2, {vT2}")
        a(f"s_sub_u32 {sTmp}, {sNJ}, 1")
        a(f"v_min_u32 {vT0}, {sTmp}, {vT0}")
        a(f"v_add_u32 {vT0}, {sN0}, {vT0}")
        a(f"v_lshl_add_u32 {vT0}, {vT0}, 7, {vHOFF}")
        for s_ in range(4):
            a(f"buffer_load_dwordx4 {HW[4*s_:4*s_+4]}, {vT0}, {sHw}, 0 offen offset:{32*s_}")
    a("s_cmp_ge_u32 s2, 256")
    a("s_cbranch_scc1 K_END")
    a("s_load_dwordx4 s[64:67], s[0:1], 0")
    a("s_load_dwordx4 s[68:71], s[0:1], 16")
    a("s_load_dwordx4 s[72:75], s[0:1], 32")
    a("s_load_dwordx4 s[76:79], s[0:1], 64")
    a("s_load_dwordx2 s[80:81], s[0:1], 80")
    a(f"v_and_b32 {vL}, 63, v0")
    a(f"v_lshrrev_b32 {vT0}, 6, v0")
    a(f"v_lshlrev_b32 {vL16}, 4, {vL}")
    a(f"v_readfirstlane_b32 {sWave}, {vT0}")
    if opt.get('cpf',1):
        a.c("pull this workgroup's share of the kernel's own code into L2 (read only, speed only)")
        NL=opt.get('cpf_lines',8)
        a("s_getpc_b64 s[84:85]")
        a.label("K_PC")
        a("s_and_b32 s85, s85, 0xffff")
        a("s_mov_b32 s86, K_CODE_END-K_PC")
        a("s_mov_b32 s87, 0x20000")
        if opt.get('cpf',1)==1:
            a(f"s_lshr_b32 {sTmp}, s2, 3")
            a(f"s_and_b32 {sTmp}, {sTmp}, 31")
            a(f"s_mul_i32 {sTmp}, {sTmp}, {NL*128}")
            a(f"v_lshlrev_b32 {vT1}, 7, {vL}")
            a(f"v_add_u32 {vT1}, {sTmp}, {vT1}")
            a(f"s_cmp_lg_u32 {sWave}, 3")
            a("s_cbranch_scc1 K_NOCPF")
            a(f"s_mov_b32 exec_lo, {(1<<NL)-1}")
            a("s_mov_b32 exec_hi, 0")
            a(f"buffer_load_dword {vDUM}, {vT1}, s[84:87], 0 offen")
            a("s_mov_b64 exec, -1")
        elif opt.get('cpf',1)==2:
            a(f"s_mul_i32 {sTmp}, {sWave}, {24*128}")
            a(f"v_lshlrev_b32 {vT1}, 7, {vL}")
            a(f"v_add_u32 {vT1}, {sTmp}, {vT1}")
            a(f"s_mov_b32 exec_lo, {(1<<24)-1}")
            a("s_mov_b32 exec_hi, 0")
            a(f"buffer_load_dword {vDUM}, {vT1}, s[84:87], 0 offen")
            a("s_mov_b64 exec, -1")
        elif opt.get('cpf',1)==3:
            a(f"s_lshr_b32 {sTmp}, s2, 3")
            a(f"s_and_b32 {sTmp}, {sTmp}, 3")
            a(f"s_mul_i32 {sTmp}, {sTmp}, {48*128}")
            a(f"v_lshlrev_b32 {vT1}, 7, {vL}")
            a(f"v_add_u32 {vT1}, {sTmp}, {vT1}")
            a(f"s_cmp_lg_u32 {sWave}, 3")
            a("s_cbranch_scc1 K_NOCPF")
            a("s_mov_b32 exec_hi, 0xffff")
            a(f"buffer_load_dword {vDUM}, {vT1}, s[84:87], 0 offen")
            a("s_mov_b64 exec, -1")
        a.label("K_NOCPF")
    a(f"v_lshrrev_b32 {vT2}, 5, {vL}")
    a(f"v_lshlrev_b32 {vHOFF}, 4, {vT2}")
    a(f"v_mov_b32 {vZ[0]}, 0")
    a(f"v_mov_b32 {vZ[1]}, 0")
    geometry(sWave)
    a(f"s_mul_i32 {sTmp}, s2, {CH*4}")
    a(f"s_mul_i32 {sTmp2}, {sWave}, {384*4}")
    a(f"s_add_u32 {sTmp}, {sTmp}, {sTmp2}")
    a(f"v_lshl_add_u32 {vT0}, {vL}, 3, {sTmp}")
    a("s_waitcnt lgkmcnt(0)")
    stamp(a,opt,0)
    srd(a,sT4c,"s78","s79",256)
    if opt.get('tagmode',1)==0:
        a.c("workgroup 0 publishes this launch's hand-off tag")
        a(f"s_or_b32 {sTmp}, s2, {sWave}")
        a(f"s_cmp_lg_u32 {sTmp}, 0")
        a("s_cbranch_scc1 K_S_NOTAG")
        a("s_memrealtime s[100:101]")
        a("s_waitcnt lgkmcnt(0)")
        a("s_or_b32 s100, s100, 1")
        a(f"v_mov_b32 {vT1}, s100")
        a(f"buffer_store_dword {vT1}, {vZ[0]}, {sT4c}, 0 offen sc1")
        a(f"buffer_store_dword {vT1}, {vZ[0]}, {sT4c}, 0 offen offset:128 sc1")
        a.label("K_S_NOTAG")
    srd(a,sW,"s80","s81",WSB(opt))
    srd(a,sD,"s72","s73",E*4)
    srd(a,sS,"s70","s71",E*4)
    a.c("every wave: six edges per lane, local edge = 384v + 128k + 2l + u; wave 7 also takes edges 3072 + l")
    DS_=D1[0:7]; SR_=D1[8:15]
    for k in range(3): a(f"buffer_load_dwordx2 {D1[2*k:2*k+2]}, {vT0}, {sD}, 0 offen offset:{512*k}{SNT}")
    for k in range(3): a(f"buffer_load_dwordx2 {D1[8+2*k:10+2*k]}, {vT0}, {sS}, 0 offen offset:{512*k}{SNT}")
    if opt.get('tagmode',1)==1:
        a.c("wave 0 notes what its own flag slot holds on entry: that value is no tag of this launch")
        a(f"s_cmp_lg_u32 {sWave}, 0")
        a("s_cbranch_scc1 K_S_NOOLD")
        a(f"s_lshl_b32 {sTmp}, s2, 4")
        a(f"s_add_u32 {sTmp}, {sTmp}, {FLG}")
        a(f"buffer_load_dword {aL0}, {vZ[0]}, {sW}, {sTmp} offen sc1")
        a.label("K_S_NOOLD")
    srd(a,sT4,"s64","s65",N*128)
    srd(a,sHw,"s64","s65",N*128)
    srd(a,sT4b,"s74","s75",145*128)
    a(f"s_cmp_eq_u32 {sWave}, 7")
    a("s_cbranch_scc1 K_S_W7")
    a(f"s_cmp_eq_u32 {sWave}, 4")
    a("s_cbranch_scc1 K_S_W4")
    a(f"s_cmp_lt_u32 {sWave}, 5")
    a("s_cbranch_scc1 K_S_COMMON")
    a.c("waves 5,6: private raw W2 copy + h rows for the source-node table")
    a(f"s_sub_u32 {sI}, {sWave}, 5")
    a(f"s_lshl_b32 {sC}, {sI}, 13")
    a(f"s_add_u32 {sC}, {sC}, {L_A2}")
    for i in range(8):
        a(f"s_add_u32 {sTmp}, {sC}, {i*1024}")
        a(f"s_mov_b32 m0, {sTmp}")
        a(f"s_mov_b32 {sTmp2}, {8192+i*1024}")
        a(f"buffer_load_dwordx4 {vL16}, {sT4b}, {sTmp2} offen lds")
    a(f"s_mul_i32 {sTmp}, s2, {NPW}")
    a(f"s_lshl_b32 {sTmp2}, {sI}, 5")
    a(f"s_add_u32 {sTmp}, {sTmp}, {sTmp2}")
    a(f"v_and_b32 {vT0}, 31, {vL}")
    a(f"v_add_u32 {vT0}, {sTmp}, {vT0}")
    a(f"v_lshl_add_u32 {vT0}, {vT0}, 7, {vHOFF}")
    for s_ in range(4): a(f"buffer_load_dwordx4 {HA[4*s_:4*s_+4]}, {vT0}, {sT4}, 0 offen offset:{32*s_}")
    a("s_branch K_S_COMMON")
    a.label("K_S_W4")
    a.c("wave 4: this workgroup's share of the L2 warm-up of pos and w_h (speed only)")
    a("s_load_dwordx2 s[82:83], s[0:1], 56")
    srd(a,sP,"s66","s67",N*6)
    a(f"s_lshr_b32 {sTmp}, s2, 3")
    a(f"s_and_b32 {sTmp}, {sTmp}, 31")
    a(f"s_mul_i32 {sTmp2}, {sTmp}, {19*128}")
    a(f"v_lshlrev_b32 {vT0}, 7, {vL}")
    a(f"v_add_u32 {vT1}, {sTmp2}, {vT0}")
    a(f"v_cmp_gt_u32 vcc, 19, {vL}")
    a(f"v_mov_b32 {vT2}, 0x40000000")
    a("s_waitcnt lgkmcnt(0)")
    a(f"v_cndmask_b32 {vT1}, {vT2}, {vT1}, vcc")
    a(f"buffer_load_dword {vDUM}, {vT1}, {sP}, 0 offen")
    srd(a,sT4b,"s82","s83",128*128)
    a(f"s_lshl_b32 {sTmp2}, {sTmp}, 9")
    a(f"v_add_u32 {vT1}, {sTmp2}, {vT0}")
    a(f"v_cmp_gt_u32 vcc, 4, {vL}")
    a("s_nop 1")
    a(f"v_cndmask_b32 {vT1}, {vT2}, {vT1}, vcc")
    a(f"buffer_load_dword {vDUM}, {vT1}, {sT4b}, 0 offen")
    a("s_branch K_S_COMMON")
    a.label("K_S_W7")
    a.c("wave 7: the last 64 edges, one-hot table, counters")
    a(f"s_mul_i32 {sTmp}, s2, {CH*4}")
    a(f"s_add_u32 {sTmp}, {sTmp}, {3072*4}")
    a(f"v_lshl_add_u32 {vT0}, {vL}, 2, {sTmp}")
    a(f"buffer_load_dword {D1[6]}, {vT0}, {sD}, 0 offen{SNT}")
    a(f"buffer_load_dword {D1[14]}, {vT0}, {sS}, 0 offen{SNT}")
    a(f"v_lshrrev_b32 {vT0}, 2, {vL}")
    a(f"v_and_b32 {vT1}, 3, {vL}")
    a(f"v_lshlrev_b32 {vT3}, 1, {vT1}")
    a(f"v_mov_b32 {vJ}, 0")
    a(f"v_cmp_eq_u32 vcc, {vT0}, {vT3}")
    a(f"v_mov_b32 {AD[0]}, 0x3f80")
    a(f"v_mov_b32 {AD[1]}, 0x3f800000")
    a(f"v_cndmask_b32 {vJ}, {vJ}, {AD[0]}, vcc")
    a(f"v_add_u32 {vT3}, 1, {vT3}")
    a(f"v_cmp_eq_u32 vcc, {vT0}, {vT3}")
    a("s_nop 1")
    a(f"v_cndmask_b32 {vJ}, {vJ}, {AD[1]}, vcc")
    a(f"v_cmp_eq_u32 vcc, 6, {vT0}")
    a(f"v_mov_b32 {AD[2]}, 0")
    a("s_nop 0")
    a(f"v_cndmask_b32 {AD[2]}, {AD[2]}, {AD[1]}, vcc")
    a(f"v_cmp_eq_u32 vcc, 3, {vT1}")
    a("s_nop 1")
    a(f"v_cndmask_b32 {vJ}, {vJ}, {AD[2]}, vcc")
    a(f"v_cmp_lt_u32 vcc, 31, {vL}")
    a(f"v_lshlrev_b32 {vT0}, 2, {vL}")
    a("s_nop 0")
    a(f"v_cndmask_b32 {vJ}, {vJ}, {vZ[0]}, vcc")
    a(f"ds_write_b32 {vT0}, {vJ}")
    a.label("K_S_COMMON")
    a(f"s_mov_b32 {sMaskE}, {'0' if opt.get('noE',0) else '0xffffffe0'}")
    a(f"s_mov_b32 {s128}, {0 if opt.get('noH',0) else 128}")
    a(f"s_mov_b32 {sK}, {KW}")
    a(f"s_mov_b32 {s3125}, 3125")
    a(f"s_mov_b32 {sMark}, {MARK}")
    a(f"s_mov_b32 {sCAPq}, {CAPX//4}")
    a(f"s_mov_b32 {sMode}, 0")
    a(f"s_mov_b32 {sChunk}, 0")
    a(f"v_mov_b32 {vOne}, 1")
    a(f"v_mov_b32 {v511}, 511")
    a(f"v_mov_b32 {aL1s}, 0x40000000")
    a(f"v_lshrrev_b32 {vT2}, 5, {vL}")
    a(f"v_bfe_u32 {vT0}, {vL}, 2, 2")
    a(f"v_lshl_add_u32 {vT0}, {vT2}, 3, {vT0}")
    a(f"v_lshlrev_b32 {vTRW}, 7, {vT0}")
    a(f"v_bfe_u32 {vT0}, {vL}, 4, 1")
    a(f"v_lshl_add_u32 {vTRW}, {vT0}, 5, {vTRW}")
    a(f"v_and_b32 {vT0}, 3, {vL}")
    a(f"v_lshl_add_u32 {vTRW}, {vT0}, 3, {vTRW}")
    a.c("LDS init: cell image = sentinel, counters = 0")
    for i in range(4): a(f"v_mov_b32 {WH[i]}, -1")
    a(f"v_lshlrev_b32 {vT0}, 6, v0")
    a(f"v_add_u32 {vT0}, {L_HST}, {vT0}")
    for i in range(4): a(f"ds_write_b128 {vT0}, {WH[0:4]} offset:{16*i}")
    a(f"v_and_b32 {vT0}, 0xff, v0")
    a(f"v_lshlrev_b32 {vT0}, 2, {vT0}")
    a(f"ds_write_b32 {vT0}, {vZ[0]} offset:{L_RES}")
    srd(a,sP,"s66","s67",N*6)
    srd(a,sE,"s68","s69",E*32)
    srd(a,sO,"s76","s77",OUT_BYTES)
    a(f"s_add_u32 {sB[0]}, s80, {BPT}")
    a(f"s_addc_u32 {sB[1]}, s81, 0")
    a(f"s_and_b32 {sB[1]}, {sB[1]}, 0xffff")
    a(f"s_mov_b32 {sB[2]}, {N*128}")
    a(f"s_mov_b32 {sB[3]}, 0x20000")
    if opt.get('tlb',0):
        a.c("wave 2 touches one line per 2 MiB of the buffers used later (address translation warm-up, speed only)")
        a(f"s_cmp_lg_u32 {sWave}, 2")
        a("s_cbranch_scc1 K_NOTLB")
        a(f"v_lshlrev_b32 {vT0}, 21, {vL}")
        a(f"v_mov_b32 {vT1}, 0x40000000")
        a(f"v_cmp_gt_u32 vcc, 13, {vL}")
        a("s_nop 1")
        a(f"v_cndmask_b32 {vT0}, {vT1}, {vT0}, vcc")
        a(f"buffer_load_dword {vDUM}, {vT0}, {sE}, 0 offen")
        a(f"buffer_load_dword {vDUM}, {vT0}, {sW}, 0 offen")
        a(f"buffer_load_dword {vDUM}, {vT0}, {sO}, 0 offen")
        a.label("K_NOTLB")
    a("s_waitcnt lgkmcnt(0)")
    a("s_barrier")
    a(f"s_mul_i32 {sTmp}, s2, {CH}")
    a(f"s_sub_u32 {sLim}, {E}, {sTmp}")
    a(f"s_min_u32 {sLim}, {sLim}, {CH}")
    B4=D2[0:7]; RC=M[0:7]; RK1=D2[8:15]
    def bin_edges(nrec, el_of, waitcnt, masked):
        if masked:
            for u in range(nrec):
                el_of(u,vT1)
                a(f"v_cmp_gt_u32 {sMask[u]}, {sLim}, {vT1}")
        if waitcnt is not None: a(f"s_waitcnt vmcnt({waitcnt})")
        stamp(a,opt,1)
        for u in range(nrec):
            d=DS_[u]; s_=SR_[u]
            a(f"v_mul_hi_u32 {vT2}, {d}, {sK}")
            el_of(u,vT1)
            a(f"v_lshl_or_b32 {RC[u]}, {s_}, 12, {vT1}")
            a(f"v_lshrrev_b32 {B4[u]}, 1, {vT2}")
            a(f"v_mad_u32_u24 {vT3}, {vT2}, {s3125}, {v511}")
            a(f"v_and_b32 {B4[u]}, 0x3fc, {B4[u]}")
            a(f"v_lshrrev_b32 {vT3}, 9, {vT3}")
            if masked: a(f"s_mov_b64 exec, {sMask[u]}")
            a(f"ds_add_rtn_u32 {RK1[u]}, {B4[u]}, {vOne} offset:{L_RES}")
            if masked: a("s_mov_b64 exec, -1")
            a(f"v_sub_u32 {vT3}, {d}, {vT3}")
            a(f"v_and_b32 {vT2}, 7, {vT2}")
            a(f"v_lshl_or_b32 {vT3}, {vT2}, 3, {vT3}")
            a(f"v_lshl_or_b32 {RC[u]}, {vT3}, 26, {RC[u]}")
        a(f"v_mov_b32 {vT3}, {L_HST}")
        a(f"v_mov_b32 {vJ}, {L_NRES+4}")
        for u in range(nrec):
            if not masked: a(f"s_waitcnt lgkmcnt({nrec-1})")
            elif u==0: a("s_waitcnt lgkmcnt(0)")
            a(f"v_cmp_gt_u32 vcc, 32, {RK1[u]}")
            a(f"v_lshlrev_b32 {vT1}, 3, {RK1[u]}")
            a(f"v_lshrrev_b32 {vT2}, 2, {RK1[u]}")
            a(f"v_and_b32 {vT1}, 0x78, {vT1}")
            a(f"v_lshl_add_u32 {AD[0]}, {B4[u]}, 5, {vT3}")
            a(f"v_and_or_b32 {vT1}, {vT2}, 4, {vT1}")
            a(f"v_add_u32 {vT1}, {vT1}, {AD[0]}")
            a(f"v_cndmask_b32 {vT1}, {vJ}, {vT1}, vcc")
            if masked: a(f"s_mov_b64 exec, {sMask[u]}")
            a(f"ds_write_b32 {vT1}, {RC[u]}")
            if masked: a("s_mov_b64 exec, -1")
    a.c("wait for this wave's edges (younger loads: 12 for waves 5,6; 2 for wave 4; the tag store of workgroup 0)")
    a(f"s_mul_i32 {sTmp}, {sWave}, 384")
    a(f"v_lshl_add_u32 {vT0}, {vL}, 1, {sTmp}")
    a(f"s_cmp_eq_u32 {sWave}, 4")
    a("s_cbranch_scc1 K_S_WT4")
    a(f"s_sub_u32 {sTmp}, {sWave}, 5")
    a(f"s_cmp_lt_u32 {sTmp}, 2")
    a("s_cbranch_scc1 K_S_WT56")
    if opt.get('tagmode',1)==1:
        a(f"s_cmp_eq_u32 {sWave}, 0")
        a("s_cbranch_scc1 K_S_WT0")
    if opt.get('tlb',0):
        a(f"s_cmp_eq_u32 {sWave}, 2")
        a("s_cbranch_scc1 K_S_WT2")
    a("s_waitcnt vmcnt(0)")
    a("s_branch K_S_WTD")
    if opt.get('tlb',0):
        a.label("K_S_WT2")
        a("s_waitcnt vmcnt(3)")
        a("s_branch K_S_WTD")
    if opt.get('tagmode',1)==1:
        a.label("K_S_WT0")
        a("s_waitcnt vmcnt(1)")
        a("s_branch K_S_WTD")
    a.label("K_S_WT4")
    a("s_waitcnt vmcnt(2)")
    a("s_branch K_S_WTD")
    a.label("K_S_WT56")
    a("s_waitcnt vmcnt(12)")
    a.label("K_S_WTD")
    def el6(u,r): a(f"v_add_u32 {r}, {128*(u>>1)+(u&1)}, {vT0}")
    def el7(u,r):
        if u<6: el6(u,r)
        else: a(f"v_add_u32 {r}, 3072, {vL}")
    a(f"s_cmp_lt_u32 {sLim}, {CH}")
    a("s_cbranch_scc1 K_S_APPM")
    a(f"s_cmp_eq_u32 {sWave}, 7")
    a("s_cbranch_scc1 K_S_APP7")
    bin_edges(6, el6, None, False)
    a("s_branch K_S_APPD")
    a.label("K_S_APP7")
    bin_edges(7, el7, None, False)
    a("s_branch K_S_APPD")
    a.label("K_S_APPM")
    a(f"s_cmp_eq_u32 {sWave}, 7")
    a("s_cbranch_scc1 K_S_APPM7")
    bin_edges(6, el6, None, True)
    a("s_branch K_S_APPD")
    a.label("K_S_APPM7")
    bin_edges(7, el7, None, True)
    a.label("K_S_APPD")
    if opt.get('tagmode',1)==1:
        a.c("workgroup 0 publishes this launch's hand-off tag: a scramble of the entry value of its flag slot (never zero)")
        a(f"s_or_b32 {sTmp}, s2, {sWave}")
        a(f"s_cmp_lg_u32 {sTmp}, 0")
        a("s_cbranch_scc1 K_S_NOTAG")
        a("s_waitcnt vmcnt(0)")
        a(f"s_mov_b32 {sTmp}, 0x9e3779b1")
        a(f"v_mul_lo_u32 {vT1}, {aL0}, {sTmp}")
        a(f"v_add_u32 {vT1}, 0x7f4a7c15, {vT1}")
        a(f"v_max_u32 {vT1}, 1, {vT1}")
        a(f"buffer_store_dword {vT1}, {vZ[0]}, {sT4c}, 0 offen sc1")
        a(f"buffer_store_dword {vT1}, {vZ[0]}, {sT4c}, 0 offen offset:128 sc1")
        a.label("K_S_NOTAG")
    def tag_fetch():
        a.c("wave 0 fetches the hand-off tag (one of its two copies); it is needed when the cell stores have left")
        a(f"s_and_b32 {sTagOff}, s2, 1")
        a(f"s_lshl_b32 {sTagOff}, {sTagOff}, 7")
        a(f"s_cmp_lg_u32 {sWave}, 0")
        a("s_cbranch_scc1 K_S_NOTAG1")
        a(f"buffer_load_dword {aE}, {vZ[0]}, {sT4c}, {sTagOff} offen sc1")
        a.label("K_S_NOTAG1")
    if opt.get('tagmode',1)==0: tag_fetch()
    load_hwin()
    def raww():
        a.c("waves 4, 7: raw w_e -> LDS (needed after barrier C); wave 4 rebuilds the descriptor it lent to the w_h warm-up")
        a(f"s_lshl_b32 {sTmp}, 1, {sWave}")
        a(f"s_and_b32 {sTmp}, {sTmp}, 0x90")
        a("s_cbranch_scc0 K_S_NORAW")
        a("s_load_dwordx2 s[100:101], s[0:1], 40")
        a(f"s_cmp_eq_u32 {sWave}, 7")
        a(f"s_cselect_b32 {sTmp3}, {10*1024}, 0")
        a("s_waitcnt lgkmcnt(0)")
        srd(a,sT4b,"s100","s101",145*128)
        for i in range(10):
            a(f"s_add_u32 {sTmp2}, {sTmp3}, {i*1024}")
            if i==9: a(f"s_min_u32 {sTmp2}, {sTmp2}, {18*1024}")
            a(f"s_add_u32 {sTmp}, {sTmp2}, {L_RAWW}")
            a(f"s_mov_b32 m0, {sTmp}")
            a("s_nop 0")
            a(f"buffer_load_dwordx4 {vL16}, {sT4b}, {sTmp2} offen lds")
        a.label("K_S_NORAW")
    if not opt.get('rawlate',0): raww()
    a("s_waitcnt lgkmcnt(0)")
    stamp(a,opt,14) if not opt.get('dbgfill',0) else None
    a("s_barrier")
    stamp(a,opt,2)
    def setup_static():
        a(f"v_and_b32 {vT1}, 31, {vL}")
        a(f"v_lshrrev_b32 {vT2}, 5, {vL}")
        a(f"v_lshlrev_b32 {vT0}, 3, {vT2}")
        a(f"v_sub_u32 {vT0}, {vT1}, {vT0}")
        a(f"v_mov_b32 {AD[2]}, 0x3f80")
        a(f"v_mov_b32 {AD[3]}, 0x3f800000")
        for sp in range(2):
            for r in range(4):
                k0=16*sp+2*r
                a(f"v_cmp_eq_u32 vcc, {k0}, {vT0}")
                a(f"v_cmp_eq_u32 {sSave}, {k0+1}, {vT0}")
                a("s_nop 0")
                a(f"v_cndmask_b32 {ID[4*sp+r]}, {vZ[0]}, {AD[2]}, vcc")
                a(f"v_cndmask_b32 {ID[4*sp+r]}, {ID[4*sp+r]}, {AD[3]}, {sSave}")
        a(f"v_cmp_lt_u32 vcc, 31, {vL}")
        a("s_nop 1")
        for i in range(1,4): a(f"v_mov_b32 {ONE[i]}, 0")
        a(f"v_cndmask_b32 {ONE[0]}, {AD[2]}, {vZ[0]}, vcc")
        for i in range(3):
            a(f"v_mov_b32 {PS[i]}, 0"); a(f"v_mov_b32 {PD[i]}, 0")
        a.c("static per-lane addresses of the main loop (window offsets are added after the assignment)")
        a(f"v_and_b32 {vT1}, 31, {vL}")
        a(f"v_lshrrev_b32 {vT2}, 5, {vL}")
        a(f"v_mov_b32 {vT3}, {L_A2}")
        a(f"v_lshl_add_u32 {vE64}, {vT1}, 6, {vT3}")
        a(f"v_bfe_u32 {vT0}, {vL}, 2, 2")
        a(f"v_lshl_add_u32 {vT0}, {vT2}, 2, {vT0}")
        a(f"v_lshl_add_u32 {vTR}, {vT0}, 6, {vT3}")
        a(f"v_bfe_u32 {vT0}, {vL}, 4, 1")
        a(f"v_lshl_add_u32 {vTR}, {vT0}, 5, {vTR}")
        a(f"v_and_b32 {vT0}, 3, {vL}")
        a(f"v_lshl_add_u32 {vTR}, {vT0}, 3, {vTR}")
        a(f"s_lshl_b32 {sHST}, {sWave}, 12")
        a(f"s_add_u32 {sHST}, {sHST}, {L_HST}")
        for i in range(4): a(f"s_add_u32 {sM0[i]}, {sHST}, {1024*i}")
        a(f"v_and_b32 {vT0}, 3, {vT1}")
        a(f"v_bfe_u32 {vT3}, {vT1}, 4, 1")
        a(f"v_lshl_or_b32 {vT3}, {vT3}, 2, {vT0}")
        a(f"v_lshlrev_b32 {vT0}, 3, {vT0}")
        a(f"v_lshrrev_b32 {vJ}, 2, {vT1}")
        a(f"v_add_u32 {vT0}, {vT0}, {vJ}")
        a(f"v_lshl_add_u32 {vT0}, {vT0}, 7, {sHST}")
        for s_ in range(4):
            a(f"v_add_u32 {vJ}, {2*s_}, {vT2}")
            a(f"v_xor_b32 {vJ}, {vJ}, {vT3}")
            a(f"v_lshl_add_u32 {vHA[s_]}, {vJ}, 4, {vT0}")
        a(f"v_and_b32 {vT0}, 7, {vL}")
        a(f"v_lshlrev_b32 {vT3}, 2, {vT2}")
        a(f"v_xor_b32 {vT0}, {vT0}, {vT3}")
        for i in range(4):
            a(f"v_xor_b32 {vJ}, {i}, {vT0}")
            a(f"v_lshlrev_b32 {vKD[i]}, 4, {vJ}")
        a(f"s_mov_b32 {sCAP}, {CAP}")
        a(f"s_sub_u32 {sTgt}, 11, {sWave}")
        a(f"s_cmp_lt_u32 {sWave}, 4")
        a(f"s_cselect_b32 {sTgt}, {sWave}, {sTgt}")
        a(f"v_lshrrev_b32 {aPS}, 3, {vL}")
        a(f"v_and_b32 {aPD}, 7, {vL}")
        a(f"v_lshlrev_b32 {aOH}, 2, {aPS}")
        a(f"v_lshlrev_b32 {SS}, 2, {aPD}")
    a(f"s_cmp_gt_u32 {sWave}, 3")
    a("s_cbranch_scc1 K_S_NOCOPY")
    a.c("waves 0..3 copy the cell image out: eight 16 B pieces per thread")
    a(f"v_lshlrev_b32 {vT0}, 4, v0")
    a(f"v_add_u32 {vT0}, {L_HST}, {vT0}")
    a(f"v_lshrrev_b32 {vT1}, 3, v0")
    a(f"v_lshlrev_b32 {vT2}, 2, {vT1}")
    CP=[D1[4*k:4*k+4] for k in range(8)]
    for k in range(4):
        a(f"ds_read_b128 {CP[k]}, {vT0} offset:{4096*k}")
        a(f"ds_read_b32 {D2[k]}, {vT2} offset:{L_RES+128*k}")
    a(f"v_and_b32 {vT3}, 7, v0")
    a(f"v_cmp_eq_u32 vcc, 0, {vT3}")
    a(f"v_mov_b32 {vJ}, -1")
    CT=opt.get('ctrans',0)
    a(f"v_lshlrev_b32 {vT1}, {7 if CT else 15}, {vT1}")
    a(f"v_cndmask_b32_e64 {AD[1]}, -1, -2, vcc")
    a(f"v_lshl_add_u32 {vT1}, {vT3}, 4, {vT1}")
    a(f"s_lshl_b32 {sTmp}, s2, {15 if CT else 7}")
    for k in range(8):
        if k<4:
            a(f"ds_read_b128 {CP[k+4]}, {vT0} offset:{4096*(k+4)}")
            a(f"ds_read_b32 {D2[k+4]}, {vT2} offset:{L_RES+128*(k+4)}")
            a("s_waitcnt lgkmcnt(8)")
        else:
            a(f"s_waitcnt lgkmcnt({2*(7-k)})")
        a(f"v_cmp_lt_u32 vcc, 32, {D2[k]}")
        a(f"s_add_u32 {sTmp2}, {sTmp}, {k*32*(128 if CT else 32768)}")
        a("s_nop 0")
        a(f"v_cndmask_b32 {CP[k][0]}, {CP[k][0]}, {AD[1]}, vcc")
        for i in range(1,4): a(f"v_cndmask_b32 {CP[k][i]}, {CP[k][i]}, {vJ}, vcc")
        a(f"buffer_store_dwordx4 {CP[k]}, {vT1}, {sW}, {sTmp2} offen{ST}")
    if opt.get('tagmode',1)==1: tag_fetch()
    a("s_branch K_S_STATIC")
    a.label("K_S_NOCOPY")
    a(f"s_sub_u32 {sTmp}, {sWave}, 5")
    a(f"s_cmp_lt_u32 {sTmp}, 2")
    a("s_cbranch_scc0 K_S_POS")
    a.c("waves 5,6: source-node table B' = -log2e * h @ W2 for 32 nodes")
    a(f"v_add_u32 {vT0}, {sC}, {vTRW}")
    a("s_waitcnt vmcnt(4)")
    for s_ in range(4):
        for x in range(2):
            for th in range(2):
                r=(s_*2+x)*4+2*th
                a(f"ds_read_b64_tr_b16 {D1[r:r+2]}, {vT0} offset:{s_*2048+th*512+x*64}")
    a("s_waitcnt lgkmcnt(0)")
    for x in range(2):
        for s_ in range(4):
            r=(s_*2+x)*4
            mfma(a,D2[16*x:16*x+16],D1[r:r+4],HA[4*s_:4*s_+4],"0" if s_==0 else D2[16*x:16*x+16])
    a(f"s_mul_i32 {sTmp}, {sI}, {32*144}")
    a(f"s_add_u32 {sTmp}, {sTmp}, {L_BST}")
    a(f"v_and_b32 {vT1}, 31, {vL}")
    a(f"v_mul_u32_u24 {vT1}, 144, {vT1}")
    a(f"v_lshrrev_b32 {vT2}, 5, {vL}")
    a(f"v_lshl_add_u32 {vT1}, {vT2}, 3, {vT1}")
    a(f"v_add_u32 {vT1}, {sTmp}, {vT1}")
    a(f"v_lshrrev_b32 {vT2}, 3, {vL}")
    a(f"v_mul_u32_u24 {vT3}, 144, {vT2}")
    a(f"v_and_b32 {vJ}, 7, {vL}")
    a(f"v_lshl_add_u32 {vT3}, {vJ}, 4, {vT3}")
    a(f"v_add_u32 {vT3}, {sTmp}, {vT3}")
    a(f"s_mov_b32 {sTmp2}, {NEG_LOG2E}")
    a.nop(4)
    for x in range(2):
        for q in range(16): a(f"v_mul_f32 {D2[16*x+q]}, {sTmp2}, {D2[16*x+q]}")
        for qq in range(4):
            b=16*x+4*qq
            a(f"v_cvt_pk_bf16_f32 {E01[0]}, {D2[b]}, {D2[b+1]}")
            a(f"v_cvt_pk_bf16_f32 {E01[1]}, {D2[b+2]}, {D2[b+3]}")
            a(f"ds_write_b64 {vT1}, {E01} offset:{x*64+qq*16}")
            a("s_nop 0")
    for i in range(4): a(f"ds_read_b128 {D1[4*i:4*i+4]}, {vT3} offset:{i*8*144}")
    a(f"s_lshl_b32 {sTmp2}, {sI}, 5")
    a(f"v_add_u32 {vT2}, {sTmp2}, {vT2}")
    a(f"s_mul_i32 {sTmp}, s2, {NPW}")
    a(f"v_add_u32 {vT0}, {sTmp}, {vT2}")
    a(f"v_lshlrev_b32 {vT1}, 7, {vT0}")
    a(f"v_lshl_add_u32 {vT1}, {vJ}, 4, {vT1}")
    a(f"v_mov_b32 {vJ}, 0x40000000")
    a("s_waitcnt lgkmcnt(0)")
    for i in range(4):
        a(f"v_add_u32 {vT3}, {8*i}, {vT2}")
        a(f"v_cmp_gt_u32 vcc, {NPW}, {vT3}")
        a(f"v_add_u32 {AD[0]}, {1024*i}, {vT1}")
        a("s_nop 0")
        a(f"v_cndmask_b32 {AD[0]}, {vJ}, {AD[0]}, vcc")
        a(f"buffer_store_dwordx4 {D1[4*i:4*i+4]}, {AD[0]}, {sB}, 0 offen{ST}")
    a("s_waitcnt vmcnt(4)")
    a("s_branch K_S_STATIC")
    a.label("K_S_POS")
    if opt.get('rawlate',0): raww()
    a.label("K_S_STATIC")
    setup_static()
    a.c("waves 0..3: every cell store has left; waves 4, 7: raw w_e / window rows landed; waves 5, 6 signal their rows later")
    a(f"s_sub_u32 {sTmp}, {sWave}, 5")
    a(f"s_cmp_lt_u32 {sTmp}, 2")
    a("s_cbranch_scc1 K_S_PREC")
    a("s_waitcnt vmcnt(0)")
    def have_tag(lbl):
        a(f"s_mov_b32 {sPoll}, 0")
        a.label(lbl)
        if opt.get('tagmode',1)==0:
            a(f"v_readfirstlane_b32 {sNonce}, {aE}")
            a("s_memrealtime s[100:101]")
            a("s_waitcnt lgkmcnt(0)")
            a(f"s_sub_u32 {sTmp}, s100, {sNonce}")
            a(f"s_add_u32 {sTmp}, {sTmp}, 1")
            a(f"s_cmp_lt_u32 {sTmp}, 2500")
            a(f"s_cselect_b32 {sTmp}, {sNonce}, 0")
            a(f"s_cmp_lg_u32 {sTmp}, 0")
            a(f"s_cbranch_scc1 {lbl}_OK")
        else:
            a(f"v_readfirstlane_b32 {sNonce}, {aE}")
            a(f"v_readfirstlane_b32 {sTmp2}, {aL0}")
            a("s_nop 3")
            a(f"s_cmp_lg_u32 {sNonce}, {sTmp2}")
            a(f"s_cselect_b32 {sTmp}, {sNonce}, 0")
            a(f"s_cmp_lg_u32 {sTmp}, 0")
            a(f"s_cbranch_scc1 {lbl}_OK")
        a(f"s_add_u32 {sPoll}, {sPoll}, 1")
        a(f"s_cmp_gt_u32 {sPoll}, 200000")
        a(f"s_cbranch_scc1 {lbl}_OK")
        a(f"s_cmp_gt_u32 {sPoll}, 1000")
        a(f"s_cselect_b32 {sTmp}, {sNonce}, 0")
        a(f"s_cmp_lg_u32 {sTmp}, 0")
        a(f"s_cbranch_scc1 {lbl}_OK")
        if opt.get('tagmode',1)==0: a("s_sleep 2")
        a(f"buffer_load_dword {aE}, {vZ[0]}, {sT4c}, {sTagOff} offen sc1")
        a("s_waitcnt vmcnt(0)")
        a(f"s_branch {lbl}")
        a.label(f"{lbl}_OK")
    a(f"s_cmp_lg_u32 {sWave}, 0")
    a("s_cbranch_scc1 K_S_PREC")
    have_tag("K_G_TAG")
    a(f"v_mov_b32 {vT0}, {sNonce}")
    a(f"ds_write_b32 {vZ[0]}, {vT0} offset:{L_NRES+8}")
    a.label("K_S_PREC")
    a("s_waitcnt lgkmcnt(0)")
    stamp(a,opt,15) if not opt.get('dbgfill',0) else None
    a("s_barrier")
    stamp(a,opt,3)
    a(f"s_cmp_lg_u32 {sWave}, 0")
    a("s_cbranch_scc1 K_G_NOT0")
    a.c("wave 0: signal this workgroup's cells")
    a(f"s_lshl_b32 {sTmp}, s2, 4")
    a(f"s_add_u32 {sTmp}, {sTmp}, {FLG}")
    a(f"v_mov_b32 {vT0}, {sNonce}")
    a(f"buffer_store_dword {vT0}, {vZ[0]}, {sW}, {sTmp} offen sc1")
    a("s_branch K_G_SETUP")
    a.label("K_G_NOT0")
    a(f"s_cmp_lt_u32 {sWave}, 4")
    a("s_cbranch_scc1 K_G_WH")
    a(f"s_sub_u32 {sTmp}, {sWave}, 5")
    a(f"s_cmp_lt_u32 {sTmp}, 2")
    a("s_cbranch_scc1 K_G_SETUP")
    a.c("waves 4, 7: pos table -> LDS (37 pieces each)")
    a(f"s_cmp_eq_u32 {sWave}, 7")
    a(f"s_cselect_b32 {sI}, {37*1024}, 0")
    for i in range(37):
        a(f"s_add_u32 {sTmp}, {sI}, {i*1024}")
        a(f"s_add_u32 {sTmp2}, {sTmp}, {L_POS}")
        a(f"s_mov_b32 m0, {sTmp2}")
        a("s_nop 0")
        a(f"buffer_load_dwordx4 {vL16}, {sP}, {sTmp} offen lds")
    a("s_branch K_G_SETUP")
    a.label("K_G_WH")
    a.c("waves 1..3: raw w_h -> staging area")
    a("s_load_dwordx2 s[64:65], s[0:1], 56")
    a(f"s_sub_u32 {sI}, {sWave}, 1")
    a("s_waitcnt lgkmcnt(0)")
    srd(a,sT4b,"s64","s65",128*128)
    for k in range(6):
        a(f"s_add_u32 {sTmp}, {sI}, {3*k}")
        a(f"s_min_u32 {sTmp}, {sTmp}, 15")
        a(f"s_lshl_b32 {sTmp}, {sTmp}, 10")
        a(f"s_add_u32 {sTmp2}, {sTmp}, {L_HST}")
        a(f"s_mov_b32 m0, {sTmp2}")
        a("s_nop 0")
        a(f"buffer_load_dwordx4 {vL16}, {sT4b}, {sTmp} offen lds")
    a.label("K_G_SETUP")
    a.c("operands from raw w_e: W1 (for A'), W4', wd'")
    W1=D2
    a(f"v_add_u32 {vT0}, {L_RAWW}, {vTRW}")
    for s_ in range(4):
        for x in range(2):
            for th in range(2):
                r=(s_*2+x)*4+2*th
                a(f"ds_read_b64_tr_b16 {W1[r:r+2]}, {vT0} offset:{s_*2048+th*512+x*64}")
    W4R=HA[0:8]
    for x in range(2):
        for th in range(2):
            a(f"ds_read_b64_tr_b16 {W4R[4*x+2*th:4*x+2*th+2]}, {vT0} offset:{129*128+th*512+x*64}")
    WD=M[0:2]
    a(f"v_mov_b32 {WD[0]}, 0")
    a(f"v_mov_b32 {WD[1]}, 0")
    a(f"v_and_b32 {vT1}, 31, {vL}")
    a(f"v_lshlrev_b32 {vT2}, 1, {vT1}")
    a(f"v_add_u32 {vT2}, {L_RAWW+128*128}, {vT2}")
    a(f"ds_read_u16_d16_hi {WD[0]}, {vT2}")
    a(f"ds_read_u16_d16_hi {WD[1]}, {vT2} offset:64")
    a("s_waitcnt lgkmcnt(0)")
    for x in range(2):
        for s_ in range(4):
            mfma(a,D1[16*x:16*x+16],HW[4*s_:4*s_+4],W1[(s_*2+x)*4:(s_*2+x)*4+4],"0" if s_==0 else D1[16*x:16*x+16])
    a(f"s_mov_b32 {sTmp}, {NEG_LOG2E}")
    for i in range(8):
        a(f"v_lshlrev_b32 {vT0}, 16, {W4R[i]}")
        a(f"v_and_b32 {vT2}, 0xffff0000, {W4R[i]}")
        a(f"v_mul_f32 {vT0}, {sTmp}, {vT0}")
        a(f"v_mul_f32 {vT2}, {sTmp}, {vT2}")
        a(f"v_cvt_pk_bf16_f32 {WE[i]}, {vT0}, {vT2}")
    a(f"v_cmp_lt_u32 vcc, 31, {vL}")
    for x in range(2):
        a(f"v_mul_f32 {WD[x]}, {sTmp}, {WD[x]}")
        a(f"v_cvt_pk_bf16_f32 {vT0}, {WD[x]}, {WD[x]}")
        a(f"v_and_b32 {vT0}, 0xffff0000, {vT0}")
        a(f"v_sub_f32 {vT2}, {WD[x]}, {vT0}")
        a(f"v_cvt_pk_bf16_f32 {vT2}, {vT2}, {vT2}")
        a(f"v_and_b32 {vT2}, 0xffff0000, {vT2}")
        a(f"v_cndmask_b32 {WD[x]}, {vT0}, {vT2}, vcc")
    a(f"s_cmp_lg_u32 {sWave}, 0")
    a("s_cbranch_scc1 K_G_NOEARLY")
    def poll_loads():
        a(f"s_mov_b32 {sTmp2}, {FLG}")
        for k in range(4): a(f"buffer_load_dword {(T[k] if opt.get('ppoll',0) else AD[k])}, {vL16}, {sW}, {sTmp2} offen offset:{1024*k} sc1")
        if opt.get('hpf',0):
            for hh in range(2):
                a(f"s_mov_b32 {sTmp2}, {FLG2+4096*hh}")
                for k in range(4): a(f"buffer_load_dword {A2R[4*hh+k]}, {vL16}, {sW}, {sTmp2} offen offset:{1024*k} sc1")
    poll_loads()
    a.label("K_G_NOEARLY")
    a(f"v_cmp_lt_u32 vcc, 31, {vL}")
    a(f"v_mov_b32 {vJ}, 0xffff")
    for x in range(2):
        for r in range(4):
            q0,q1=D1[16*x+2*r],D1[16*x+2*r+1]
            a(f"v_mul_f32 {q0}, {sTmp}, {q0}")
            a(f"v_mul_f32 {q1}, {sTmp}, {q1}")
            a(f"v_cvt_pk_bf16_f32 {vT0}, {q0}, {q1}")
            a(f"v_lshlrev_b32 {vT1}, 16, {vT0}")
            a(f"v_and_b32 {vT2}, 0xffff0000, {vT0}")
            a(f"v_sub_f32 {vT1}, {q0}, {vT1}")
            a(f"v_sub_f32 {vT2}, {q1}, {vT2}")
            a(f"v_cvt_pk_bf16_f32 {vT1}, {vT1}, {vT2}")
            a(f"v_cndmask_b32 {WA[4*x+r]}, {vT0}, {vT1}, vcc")
        a(f"v_bfi_b32 {WA[4*x+3]}, {vJ}, {WA[4*x+3]}, {WD[x]}")
    a(f"s_lshl_b32 {sTmp}, {sWave}, 11")
    a(f"s_add_u32 {sTmp}, {sTmp}, {L_A2}")
    a(f"v_lshl_add_u32 {vT0}, {vL}, 5, {sTmp}")
    a(f"ds_write_b128 {vT0}, {WA[0:4]}")
    a(f"ds_write_b128 {vT0}, {WA[4:8]} offset:16")
    for i in range(32): a(f"v_mov_b32 {D2[i]}, 0")
    a(f"s_sub_u32 {sTmp}, {sWave}, 5")
    a(f"s_cmp_lt_u32 {sTmp}, 2")
    a("s_cbranch_scc0 K_G_NOFLG2")
    a.c("waves 5,6: their rows have left -> signal them")
    a(f"ds_read_b32 {aE}, {vZ[0]} offset:{L_NRES+8}")
    a("s_waitcnt vmcnt(0) lgkmcnt(0)")
    a(f"v_readfirstlane_b32 {sNonce}, {aE}")
    a("s_nop 3")
    a(f"s_lshl_b32 {sTmp}, s2, 1")
    a(f"s_add_u32 {sTmp}, {sTmp}, {sWave}")
    a(f"s_sub_u32 {sTmp}, {sTmp}, 5")
    a(f"s_lshl_b32 {sTmp}, {sTmp}, 4")
    a(f"s_add_u32 {sTmp}, {sTmp}, {FLG2}")
    a(f"v_mov_b32 {vT0}, {sNonce}")
    a(f"buffer_store_dword {vT0}, {vZ[0]}, {sW}, {sTmp} offen sc1")
    a.label("K_G_NOFLG2")
    a(f"s_cmp_lg_u32 {sWave}, 0")
    a("s_cbranch_scc1 K_G_WAIT")
    if not opt.get('ppoll',0):
        a.c("wave 0: wait for all hand-offs (the first round of flag loads is already in flight)")
        a("s_branch K_G_POLL1")
        a.label("K_G_POLL")
        poll_loads()
        a.label("K_G_POLL1")
        a("s_waitcnt vmcnt(0)")
        PF=[AD[k] for k in range(4)]+([A2R[k] for k in range(8)] if opt.get('hpf',0) else [])
        a(f"v_cmp_eq_u32 {sAny}, {sNonce}, {PF[0]}")
        for r_ in PF[1:]:
            a(f"v_cmp_eq_u32 vcc, {sNonce}, {r_}")
            a("s_nop 1")
            a(f"s_and_b64 {sAny}, {sAny}, vcc")
        a(f"s_cmp_eq_u64 {sAny}, -1")
        a("s_cbranch_scc1 K_G_WAIT")
        a(f"s_add_u32 {sPoll}, {sPoll}, 1")
        a(f"s_cmp_lt_u32 {sPoll}, 200000")
        a("s_cbranch_scc1 K_G_POLL")
    else:
        a.c("wave 0: wait for all hand-offs; two rounds of flag loads are kept in flight")
        def pl(regs):
            for k in range(4): a(f"buffer_load_dword {regs[k]}, {vL16}, {sW}, {sI} offen offset:{1024*k} sc1")
        def chk(regs):
            a(f"v_cmp_eq_u32 {sAny}, {sNonce}, {regs[0]}")
            for r_ in regs[1:]:
                a(f"v_cmp_eq_u32 vcc, {sNonce}, {r_}")
                a("s_nop 1")
                a(f"s_and_b64 {sAny}, {sAny}, vcc")
            a(f"s_cmp_eq_u64 {sAny}, -1")
            a("s_cbranch_scc1 K_G_SEEN")
        SA=[T[k] for k in range(4)]; SB=[T[4+k] for k in range(4)]
        a(f"s_mov_b32 {sI}, {FLG}")
        a.label("K_G_POLL")
        pl(SB)
        a("s_waitcnt vmcnt(4)")
        chk(SA)
        pl(SA)
        a("s_waitcnt vmcnt(4)")
        chk(SB)
        a(f"s_add_u32 {sPoll}, {sPoll}, 1")
        a(f"s_cmp_lt_u32 {sPoll}, 100000")
        a("s_cbranch_scc1 K_G_POLL")
        a.label("K_G_SEEN")
        a("s_waitcnt lgkmcnt(0)")
        a("s_branch K_G_GO")
    a.label("K_G_WAIT")
    a.c("waves 4 and 7 keep their pos pieces in flight: their cell loads return behind them")
    a(f"s_lshl_b32 {sTmp}, 1, {sWave}")
    a(f"s_and_b32 {sTmp}, {sTmp}, 0x90")
    a("s_cbranch_scc1 K_G_WAIT47")
    a("s_waitcnt vmcnt(0)")
    a.label("K_G_WAIT47")
    a("s_waitcnt lgkmcnt(0)")
    a.label("K_G_GO")
    for _ in range(opt.get('delay',0)): a("s_sleep 32")
    a("s_barrier")
    stamp(a,opt,4)
    RECP=D1[0:16]; REC=[RECP[2*i] for i in range(8)]+[RECP[2*i+1] for i in range(8)]; WAD=D1[16:32]; RK=HA
    a.c("cell records of this bin: pair s holds slots m and 16+m (m = l&15) of cell 32s+4v+(l>>4)")
    if not CT:
        a(f"s_lshl_b32 {sTmp}, s2, 15")
        a(f"s_lshl_b32 {sTmp2}, {sWave}, 9")
        a(f"s_add_u32 {sTmp}, {sTmp}, {sTmp2}")
        a(f"v_lshl_add_u32 {vT0}, {vL}, 3, {sTmp}")
    else:
        a(f"s_lshl_b32 {sTmp}, s2, 7")
        a(f"s_lshl_b32 {sTmp2}, {sWave}, 17")
        a(f"s_add_u32 {sTmp}, {sTmp}, {sTmp2}")
        a(f"v_lshrrev_b32 {vT0}, 4, {vL}")
        a(f"v_lshlrev_b32 {vT0}, 15, {vT0}")
        a(f"v_and_b32 {vT1}, 15, {vL}")
        a(f"v_lshl_add_u32 {vT0}, {vT1}, 3, {vT0}")
        a(f"v_add_u32 {vT0}, {sTmp}, {vT0}")
    ROT=opt.get('rot',0)
    if ROT==1: a(f"s_getreg_b32 {sRot}, hwreg(HW_REG_XCC_ID, 0, 4)")
    elif ROT==2: a(f"s_and_b32 {sRot}, s2, 7")
    elif ROT==3:
        a(f"s_getreg_b32 {sRot}, hwreg(HW_REG_XCC_ID, 0, 4)")
        a(f"s_and_b32 {sRot}, {sRot}, 3")
        a(f"s_lshl_b32 {sRot}, {sRot}, 1")
    else: a(f"s_mov_b32 {sRot}, 0")
    def pair_index(dst,s_):
        a(f"s_add_u32 {dst}, {sRot}, {s_}")
        a(f"s_and_b32 {dst}, {dst}, 7")
    for s_ in range(8):
        pair_index(sTmp,s_)
        a(f"s_lshl_b32 {sTmp}, {sTmp}, {20 if CT else 12}")
        a(f"buffer_load_dwordx2 {RECP[2*s_:2*s_+2]}, {vT0}, {sW}, {sTmp} offen{LD}")
    a(f"v_lshlrev_b32 {vT2}, 1, {vL}")
    a(f"v_and_b32 {vT2}, 62, {vT2}")
    a("s_load_dwordx2 s[98:99], s[0:1], 48")
    a.c("node-update weights (transposed reads of raw w_h), waves 0..3 use them")
    a(f"s_and_b32 {sTmp}, {sWave}, 1")
    a(f"s_lshl_b32 {sTmp}, {sTmp}, 6")
    a(f"s_add_u32 {sTmp}, {sTmp}, {L_HST}")
    a(f"v_add_u32 {vT1}, {sTmp}, {vTRW}")
    for s_ in range(8):
        for th in range(2):
            a(f"ds_read_b64_tr_b16 {WH[4*s_+2*th:4*s_+2*th+2]}, {vT1} offset:{s_*2048+th*512}")
            if (2*s_+th)==7: a("s_waitcnt lgkmcnt(0)")
    srd(a,sT4,"s98","s99",128)
    a(f"v_mov_b32 {WX[0]}, 0")
    a(f"v_mov_b32 {WX[1]}, 0")
    a(f"buffer_load_short_d16_hi {WX[0]}, {vT2}, {sT4}, 0 offen")
    a(f"buffer_load_short_d16_hi {WX[1]}, {vT2}, {sT4}, 0 offen offset:64")
    a("s_waitcnt vmcnt(2)")
    stamp(a,opt,5)
    a(f"s_mov_b64 {sAny}, 0")
    for s_ in range(16):
        a(f"v_cmp_gt_u32 {sMask[s_]}, {sMark}, {REC[s_]}")
        if s_<8:
            a(f"v_cmp_eq_u32 vcc, {sMark}, {REC[s_]}")
        a(f"v_lshrrev_b32 {WAD[s_]}, 27, {REC[s_]}")
        a(f"v_and_b32 {WAD[s_]}, 0x1c, {WAD[s_]}")
        if s_<8: a(f"s_or_b64 {sAny}, {sAny}, vcc")
    order=[x for p in range(8) for x in (p,8+p)]
    for n_,s_ in enumerate(order):
        a(f"s_mov_b64 exec, {sMask[s_]}")
        if s_>=8: a(f"s_cbranch_execz K2_A{s_}")
        a(f"ds_add_rtn_u32 {RK[s_]}, {WAD[s_]}, {vOne} offset:{L_CNT}")
        if s_>=8: a.label(f"K2_A{s_}")
        if n_==7:
            a("s_waitcnt lgkmcnt(4)")
    a("s_mov_b64 exec, -1")
    FL=A2R
    def flg2_loads():
        a(f"s_mov_b32 {sTmp2}, {FLG2}")
        for k in range(4): a(f"buffer_load_dword {FL[k]}, {vL16}, {sW}, {sTmp2} offen offset:{1024*k} sc1")
        a(f"s_mov_b32 {sTmp2}, {FLG2+4096}")
        for k in range(4): a(f"buffer_load_dword {FL[4+k]}, {vL16}, {sW}, {sTmp2} offen offset:{1024*k} sc1")
    a(f"s_cmp_lg_u32 {sWave}, {99 if opt.get('hpf',0) else 1}")
    a("s_cbranch_scc1 K2_NOF2A")
    a.c("wave 1: flags of the source-node table (checked before barrier 2)")
    flg2_loads()
    a(f"ds_read_b32 {aE}, {vZ[0]} offset:{L_NRES+8}")
    a.label("K2_NOF2A")
    a(f"s_lshl_b32 {sTmp}, {sWave}, 2")
    a(f"v_lshrrev_b32 {vT0}, 4, {vL}")
    a(f"v_add_u32 {vT0}, {sTmp}, {vT0}")
    a(f"v_mul_u32_u24 {vT0}, {CH}, {vT0}")
    NE=opt.get('epf',1)
    def epf_block():
        if NE:
            a.c("L2 warm-up of the e_attr lines of the first records (speed only; results are never read)")
            a(f"s_lshl_b32 {sTmp}, {sWave}, 2")
            a(f"v_lshrrev_b32 {vT0}, 4, {vL}")
            a(f"v_add_u32 {vT0}, {sTmp}, {vT0}")
            a(f"v_mul_u32_u24 {vT0}, {CH}, {vT0}")
            a(f"v_mov_b32 {vT2}, 0x2000000")
            RKF=opt.get('rkf',0)
            if RKF: a("s_waitcnt lgkmcnt(0)")
            for k in range(NE):
                a(f"v_cmp_gt_u32 vcc, {sMark}, {REC[k]}")
                if RKF:
                    a(f"v_cmp_gt_u32 {sSave}, {RKF}, {RK[k]}")
                a(f"v_and_b32 {vT1}, 0xfff, {REC[k]}")
                pair_index(sTmp,k)
                a(f"s_mul_i32 {sTmp}, {sTmp}, {32*CH}")
                if RKF: a(f"s_and_b64 vcc, vcc, {sSave}")
                a(f"v_add3_u32 {vT1}, {vT1}, {vT0}, {sTmp}")
                if opt.get('hpf',0): a(f"v_bfe_u32 {vT3}, {REC[k]}, 12, 14")
                else: a("s_nop 0")
                a(f"v_cndmask_b32 {vT1}, {vT2}, {vT1}, vcc")
                a(f"v_lshlrev_b32 {vT1}, 5, {vT1}")
                a(f"buffer_load_dword {vDUM}, {vT1}, {sE}, 0 offen")
                if opt.get('hpf',0):
                    a(f"v_cndmask_b32 {vT3}, {vT2}, {vT3}, vcc")
                    a(f"v_lshlrev_b32 {vT3}, 7, {vT3}")
                    a(f"buffer_load_dword {vDUM}, {vT3}, {sB}, 0 offen{HLD}")
    if opt.get('epfpos',1)==1:
        epf_block()
        a(f"s_lshl_b32 {sTmp}, {sWave}, 2")
        a(f"v_lshrrev_b32 {vT0}, 4, {vL}")
        a(f"v_add_u32 {vT0}, {sTmp}, {vT0}")
        a(f"v_mul_u32_u24 {vT0}, {CH}, {vT0}")
    a(f"v_mov_b32 {vT1}, {L_L0}")
    a(f"v_mov_b32 {vT2}, {L_L1}")
    a("s_waitcnt lgkmcnt(0)")
    for s_ in order:
        a(f"s_mov_b64 exec, {sMask[s_]}")
        if s_>=8: a(f"s_cbranch_execz K2_B{s_}")
        pair_index(sTmp,s_&7)
        a(f"s_mul_i32 {sTmp}, {sTmp}, {32*CH}")
        a(f"v_min_u32 {RK[s_]}, {CAPX-1}, {RK[s_]}")
        a(f"v_and_b32 {vT3}, 0xfff, {REC[s_]}")
        a(f"v_mad_u32_u24 {RK[s_]}, {WAD[s_]}, {sCAPq}, {RK[s_]}")
        a(f"v_add3_u32 {vT3}, {vT3}, {vT0}, {sTmp}")
        a(f"v_bfe_u32 {vJ}, {REC[s_]}, 26, 3")
        a(f"v_lshl_add_u32 {AD[0]}, {RK[s_]}, 2, {vT1}")
        a(f"v_lshl_or_b32 {vT3}, {vT3}, 5, {vJ}")
        a(f"v_lshl_add_u32 {AD[1]}, {RK[s_]}, 1, {vT2}")
        a(f"v_bfe_u32 {vJ}, {REC[s_]}, 12, 14")
        a(f"ds_write_b32 {AD[0]}, {vT3}")
        a(f"ds_write_b16 {AD[1]}, {vJ}")
        if s_>=8: a.label(f"K2_B{s_}")
    a("s_mov_b64 exec, -1")
    if opt.get('epfpos',1)==0: epf_block()
    a.c("overflowed cells -> rescan list (rare)")
    a(f"s_cmp_eq_u64 {sAny}, 0")
    a("s_cbranch_scc1 K2_NOMARK")
    a(f"v_lshrrev_b32 {vT0}, 4, {vL}")
    a(f"s_lshl_b32 {sTmp}, {sWave}, 2")
    a(f"v_add_u32 {vT0}, {sTmp}, {vT0}")
    a(f"v_mov_b32 {vT1}, {L_NRES}")
    for s_ in range(8):
        a(f"v_cmp_eq_u32 vcc, {sMark}, {REC[s_]}")
        a(f"s_and_saveexec_b64 {sSave}, vcc")
        a(f"s_cbranch_execz K2_MK{s_}")
        a(f"ds_add_rtn_u32 {vT2}, {vT1}, {vOne}")
        pair_index(sTmp,s_)
        a(f"s_lshl_b32 {sTmp}, {sTmp}, 5")
        a(f"v_add_u32 {vT3}, {sTmp}, {vT0}")
        a("s_waitcnt lgkmcnt(0)")
        a(f"v_lshlrev_b32 {vT2}, 2, {vT2}")
        a(f"ds_write_b32 {vT2}, {vT3} offset:{L_RES}")
        a.label(f"K2_MK{s_}")
        a(f"s_mov_b64 exec, {sSave}")
    a.label("K2_NOMARK")
    a("s_load_dwordx2 s[64:65], s[0:1], 0")
    a(f"s_waitcnt vmcnt({opt.get('epf',1)*(2 if opt.get('hpf',0) else 1)}) lgkmcnt(0)")
    a(f"s_cmp_lg_u32 {sWave}, {99 if opt.get('hpf',0) else 1}")
    a("s_cbranch_scc1 K2_NOF2B")
    a(f"v_readfirstlane_b32 {sNonce}, {aE}")
    a(f"s_mov_b32 {sPoll}, 0")
    a("s_nop 1")
    a.label("K2_F2CHK")
    a(f"v_cmp_eq_u32 {sAny}, {sNonce}, {FL[0]}")
    for k in range(1,8):
        a(f"v_cmp_eq_u32 vcc, {sNonce}, {FL[k]}")
        a("s_nop 1")
        a(f"s_and_b64 {sAny}, {sAny}, vcc")
    a(f"s_cmp_eq_u64 {sAny}, -1")
    a("s_cbranch_scc1 K2_NOF2B")
    a(f"s_add_u32 {sPoll}, {sPoll}, 1")
    a(f"s_cmp_gt_u32 {sPoll}, 200000")
    a("s_cbranch_scc1 K2_NOF2B")
    flg2_loads()
    a("s_waitcnt vmcnt(0)")
    a("s_branch K2_F2CHK")
    a.label("K2_NOF2B")
    srd(a,sHs,"s64","s65",N*128)
    a(f"s_mov_b32 {sTmp}, {NEG_LN2}")
    a(f"v_mul_f32 {WX[0]}, {sTmp}, {WX[0]}")
    a(f"v_mul_f32 {WX[1]}, {sTmp}, {WX[1]}")
    stamp(a,opt,6)
    a("s_barrier")
    stamp(a,opt,7)
    a.c("window sizes (lane = pair i,k) and the rescan count")
    a(f"v_mov_b32 {vT0}, {L_NRES}")
    a(f"ds_read_b32 {vT1}, {vT0}")
    a(f"ds_read_b32 {vT2}, {aOH} offset:{L_CNT}")
    a(f"ds_read_b32 {vT3}, {SS} offset:{L_CNT}")
    a("s_waitcnt lgkmcnt(0)")
    a(f"v_readfirstlane_b32 {sNR}, {vT1}")
    a(f"v_min_u32 {vT0}, 0xffffff, {vT2}")
    a(f"v_min_u32 {vJ}, 0xffffff, {vT3}")
    a(f"s_cmp_eq_u32 {sNR}, 0")
    a("s_cbranch_scc1 K2_CHECK")
    a(f"s_min_u32 {sNR}, {sNR}, 256")
    a(f"s_mov_b32 {sI}, 0")
    a.label("K2_RESCAN_I")
    a(f"s_lshl_b32 {sTmp}, {sI}, 2")
    a(f"s_add_u32 {sTmp}, {sTmp}, {L_RES}")
    a(f"v_mov_b32 {vT0}, {sTmp}")
    a(f"ds_read_b32 {vT1}, {vT0}")
    a("s_waitcnt lgkmcnt(0)")
    a(f"v_readfirstlane_b32 {sWsrc}, {vT1}")
    a("s_nop 3")
    a(f"s_min_u32 {sWsrc}, {sWsrc}, 255")
    a(f"s_mov_b32 {sC}, 0")
    a.label("K2_RESCAN_C")
    def append_raw(lim_local):
        a(f"v_lshlrev_b32 {vT1}, 2, {vT0}")
        a(f"buffer_load_dword {AD[0]}, {vT1}, {sD}, 0 offen")
        a(f"buffer_load_dword {AD[1]}, {vT1}, {sS}, 0 offen")
        a("s_waitcnt vmcnt(0)")
        a(f"v_mul_hi_u32 {vT2}, {AD[0]}, {sK}")
        a(f"v_lshrrev_b32 {vT3}, 3, {vT2}")
        a(f"v_cmp_eq_u32 vcc, s2, {vT3}")
        a("s_nop 1")
        a(f"s_and_b64 vcc, vcc, {sAny}")
        a(f"s_and_saveexec_b64 {sSave}, vcc")
        a(f"s_cbranch_execz {lim_local}")
        a(f"v_mad_u32_u24 {vT3}, {vT2}, {s3125}, {v511}")
        a(f"v_and_b32 {vT2}, 7, {vT2}")
        a(f"v_lshrrev_b32 {vT3}, 9, {vT3}")
        a(f"v_lshlrev_b32 {vT2}, 2, {vT2}")
        a(f"v_sub_u32 {vT3}, {AD[0]}, {vT3}")
        a(f"ds_add_rtn_u32 {AD[2]}, {vT2}, {vOne} offset:{L_CNT}")
        a(f"v_lshl_or_b32 {vT0}, {vT0}, 5, {vT3}")
        a("s_waitcnt lgkmcnt(0)")
        a(f"v_min_u32 {AD[2]}, {CAPX-1}, {AD[2]}")
        a(f"v_mad_u32_u24 {AD[2]}, {vT2}, {sCAPq}, {AD[2]}")
        a(f"v_mov_b32 {vT2}, {L_L0}")
        a(f"v_mov_b32 {vT3}, {L_L1}")
        a(f"v_lshl_add_u32 {vT2}, {AD[2]}, 2, {vT2}")
        a(f"v_lshl_add_u32 {vT3}, {AD[2]}, 1, {vT3}")
        a(f"ds_write_b32 {vT2}, {vT0}")
        a(f"ds_write_b16 {vT3}, {AD[1]}")
        a.label(lim_local)
        a(f"s_mov_b64 exec, {sSave}")
    a(f"s_lshl_b32 {sTmp}, {sC}, 9")
    a(f"v_add_u32 {vT1}, {sTmp}, v0")
    a(f"s_mul_i32 {sTmp2}, {sWsrc}, {CH}")
    a(f"v_add_u32 {vT0}, {sTmp2}, {vT1}")
    a(f"v_cmp_gt_u32 vcc, {CH}, {vT1}")
    a(f"s_mov_b32 {sTmp}, {E}")
    a(f"v_cmp_gt_u32 {sAny}, {sTmp}, {vT0}")
    a("s_nop 1")
    a(f"s_and_b64 {sAny}, {sAny}, vcc")
    append_raw("K2_RA1")
    a(f"s_add_u32 {sC}, {sC}, 1")
    a(f"s_cmp_lt_u32 {sC}, 7")
    a("s_cbranch_scc1 K2_RESCAN_C")
    a(f"s_add_u32 {sI}, {sI}, 1")
    a(f"s_cmp_lt_u32 {sI}, {sNR}")
    a("s_cbranch_scc1 K2_RESCAN_I")
    a("s_waitcnt lgkmcnt(0)")
    a("s_barrier")
    a(f"ds_read_b32 {vT2}, {aOH} offset:{L_CNT}")
    a(f"ds_read_b32 {vT3}, {SS} offset:{L_CNT}")
    a("s_waitcnt lgkmcnt(0)")
    a(f"v_min_u32 {vT0}, 0xffffff, {vT2}")
    a(f"v_min_u32 {vJ}, 0xffffff, {vT3}")
    a.label("K2_CHECK")
    a.c("window assignment by size rank")
    a(f"v_lshl_or_b32 {vT0}, {vT0}, 3, {aPS}")
    a(f"v_lshl_or_b32 {vJ}, {vJ}, 3, {aPD}")
    a(f"v_cmp_lt_u32 {sAny}, {sCAP}, {vT3}")
    a(f"v_cmp_gt_u32 vcc, {vJ}, {vT0}")
    a(f"s_mov_b32 {sWin}, 0")
    a("s_nop 2")
    for i in range(8):
        a(f"s_bfe_u32 {sTmp}, {'vcc_lo' if i<4 else 'vcc_hi'}, {(8<<16)|(8*(i&3))}")
        a(f"s_bcnt1_i32_b32 {sTmp}, {sTmp}")
        a(f"s_cmp_eq_u32 {sTmp}, {sTgt}")
        a(f"s_cselect_b32 {sWin}, {i}, {sWin}")
    if opt.get('nobal',0): a(f"s_mov_b32 {sWin}, {sWave}")
    a(f"s_lshl_b32 {sTmp}, {sWin}, 3")
    a(f"v_readlane_b32 {sCnt}, {vT2}, {sTmp}")
    geometry(sWin)
    a(f"s_lshl_b32 {sTmp}, {sWin}, 11")
    a(f"v_add_u32 {vE64}, {sTmp}, {vE64}")
    a(f"v_add_u32 {vTR}, {sTmp}, {vTR}")
    a(f"s_add_u32 {sTmp}, {sTmp}, {L_A2}")
    a(f"v_lshl_add_u32 {vT0}, {vL}, 5, {sTmp}")
    a(f"ds_read_b128 {WA[0:4]}, {vT0}")
    a(f"ds_read_b128 {WA[4:8]}, {vT0} offset:16")
    for i in range(4): a(f"v_mov_b32 {A2R[i]}, 0")
    a(f"ds_write_b128 {vT0}, {A2R[0:4]}")
    a(f"ds_write_b128 {vT0}, {A2R[0:4]} offset:16")
    a(f"s_cmp_eq_u64 {sAny}, 0")
    a("s_cbranch_scc1 K2_MAIN")
    a.c("generic (slow) mode: raw scan of all edges, 512 per round")
    a(f"s_mov_b32 {sMode}, 1")
    a.label("K2_GEN")
    a("s_barrier")
    a(f"s_cmp_lg_u32 {sWave}, 0")
    a("s_cbranch_scc1 K2_GEN1")
    a(f"v_and_b32 {vT0}, 7, {vL}")
    a(f"v_lshlrev_b32 {vT0}, 2, {vT0}")
    a(f"ds_write_b32 {vT0}, {vZ[0]} offset:{L_CNT}")
    a("s_waitcnt lgkmcnt(0)")
    a.label("K2_GEN1")
    a("s_barrier")
    a(f"s_lshl_b32 {sTmp}, {sChunk}, 9")
    a(f"v_add_u32 {vT0}, {sTmp}, v0")
    a(f"s_mov_b32 {sTmp}, {E}")
    a(f"v_cmp_gt_u32 {sAny}, {sTmp}, {vT0}")
    a("s_nop 1")
    append_raw("K2_RA2")
    a("s_waitcnt lgkmcnt(0)")
    a("s_barrier")
    a(f"s_lshl_b32 {sTmp}, {sWin}, 2")
    a(f"v_mov_b32 {vT0}, {sTmp}")
    a(f"ds_read_b32 {vT1}, {vT0} offset:{L_CNT}")
    a("s_waitcnt lgkmcnt(0)")
    a(f"v_readfirstlane_b32 {sCnt}, {vT1}")
    a("s_nop 3")
    a.label("K2_MAIN")
    if opt.get('dbgfill',0): stamp(a,opt,14)
    a(f"s_min_u32 {sCnt}, {sCnt}, {CAP}")
    a(f"s_add_u32 {sNT}, {sCnt}, 31")
    a(f"s_lshr_b32 {sNT}, {sNT}, 5")
    a(f"s_cmp_eq_u32 {sNT}, 0")
    a("s_cbranch_scc1 K2_MAIN_DONE")
    a(f"s_mul_i32 {sTmp}, {sWin}, {CAPX*4}")
    a(f"s_add_u32 {sTmp}, {sTmp}, {L_L0}")
    a(f"s_mul_i32 {sTmp2}, {sWin}, {CAPX*2}")
    a(f"s_add_u32 {sTmp2}, {sTmp2}, {L_L1}")
    a(f"v_and_b32 {vT0}, 31, {vL}")
    a(f"v_lshl_add_u32 {aL0}, {vT0}, 2, {sTmp}")
    a(f"v_lshl_add_u32 {aL1s}, {vT0}, 1, {sTmp2}")
    a(f"v_lshrrev_b32 {vT0}, 3, {vL}")
    a(f"v_lshl_add_u32 {aL1d}, {vT0}, 3, {sTmp2}")
    def pad():
        a(f"v_add_u32 {vT0}, {sCnt}, {vL}")
        a(f"v_lshl_add_u32 {vT1}, {vT0}, 2, {sTmp}")
        a(f"v_lshl_add_u32 {vT2}, {vT0}, 1, {sTmp2}")
        a(f"v_mov_b32 {vJ}, 7")
        a(f"ds_write_b32 {vT1}, {vJ}")
        a(f"ds_write_b16 {vT2}, {vZ[0]}")
        a(f"ds_write_b32 {vT1}, {vJ} offset:256")
        a(f"ds_write_b16 {vT2}, {vZ[0]} offset:128")
    def first_reads():
        a(f"ds_read_b32 {vT3}, {aL0}")
        a(f"ds_read_b64 {SD}, {aL1d}")
        a(f"ds_read_b32 {LE[1]}, {aL0} offset:128")
        a(f"ds_read_b32 {LE[0]}, {aL0} offset:256")
        a(f"ds_read_u16 {SS}, {aL1s}")
    a(f"s_cmp_ge_u32 {sCnt}, 96")
    a("s_cbranch_scc1 K2_FILL_BIG")
    pad()
    first_reads()
    a("s_waitcnt lgkmcnt(0)")
    a("s_branch K2_FILL")
    a.label("K2_FILL_BIG")
    first_reads()
    pad()
    a("s_waitcnt lgkmcnt(4)")
    a.label("K2_FILL")
    ENT=['',' nt',' sc1',' sc0 sc1',' sc0',' sc0 nt',' sc1 nt',' sc0 sc1 nt'][opt.get('e_nt',0)]
    def E_addr(le): a(f"v_and_or_b32 {aE}, {le}, {sMaskE}, {vHOFF}")
    def E_load(p): a(f"buffer_load_dwordx4 {EA[p]}, {aE}, {sE}, 0 offen{ENT}")
    def H_addr():
        if opt.get('hmask',0):
            a(f"v_and_b32 {SD[0]}, 0x03ff03ff, {SD[0]}"); a(f"v_and_b32 {SD[1]}, 0x03ff03ff, {SD[1]}")
        for i in range(4):
            a(f"v_mad_u32_u16 {AD[i]}, {SD[i>>1]}, {s128}, {vKD[i]}"+(" op_sel:[1,0,0,0]" if i&1 else ""))
    def H_load(i):
        a(f"s_mov_b32 m0, {sM0[i]}")
        a("s_nop 0")
        a(f"buffer_load_dwordx4 {AD[i]}, {sB}, 0 offen{HLD} lds")
    def P_addr(le,par):
        a(f"v_and_b32 {vJ}, 7, {le}")
        a(f"v_mul_u32_u24 {aPS}, 6, {SS}")
        a(f"v_mad_u32_u24 {aPD}, {vJ}, 6, {sN06}")
        a(f"v_lshlrev_b32 {aOH}, 4, {vJ}")
        a(f"v_lshl_add_u32 {aA2[par]}, {vJ}, 3, {vE64}")
    def P_reads():
        for c in range(3): a(f"ds_read_u16_d16_hi {PS[c]}, {aPS} offset:{L_POS+2*c}")
        for c in range(3): a(f"ds_read_u16_d16_hi {PD[c]}, {aPD} offset:{L_POS+2*c}")
        a(f"ds_read_b128 {OH}, {aOH} offset:{L_OH}")
    def P_calc_list(par):
        return [f"v_sub_f32 {DX[0]}, {PD[0]}, {PS[0]}", f"v_sub_f32 {DX[1]}, {PD[1]}, {PS[1]}", f"v_sub_f32 {DX[2]}, {PD[2]}, {PS[2]}",
                f"v_mul_f32 {DD}, {DX[0]}, {DX[0]}", f"v_fmac_f32 {DD}, {DX[1]}, {DX[1]}", f"v_fmac_f32 {DD}, {DX[2]}, {DX[2]}",
                f"v_cvt_pk_bf16_f32 {E01[0]}, 1.0, {DX[0]}", f"v_cvt_pk_bf16_f32 {E01[1]}, {DX[1]}, {DX[2]}",
                f"v_cvt_pk_bf16_f32 {OH[3]}, {OH[3]}, {DD}",
                f"ds_write_b64 {aA2[par]}, {E01}"]
    def first_loads():
        E_addr(vT3); E_load(0)
        H_addr()
        for i in range(4): H_load(i)
        E_addr(LE[1]); E_load(1)
    def first_prep(readsd):
        P_addr(vT3,0); P_reads()
        if readsd:
            a(f"ds_read_b64 {SD}, {aL1d} offset:64")
        a(f"ds_read_u16 {SS}, {aL1s} offset:64")
        for i in range(16): a(f"v_mov_b32 {T[i]}, 0")
        for i in range(8): a(f"v_mov_b32 {A2R[i]}, 0")
        a("s_waitcnt lgkmcnt(0)")
        for ins in P_calc_list(0): a(ins)
    if opt.get('stagger',1):
        a.c("the younger partner prepares tile 0 first, so the older waves' first rows are requested ahead of it")
        a(f"s_cmp_ge_u32 {sWave}, 4")
        a("s_cbranch_scc1 K2_FILL_B")
    first_loads()
    if opt.get('dbgfill',0): stamp(a,opt,15)
    first_prep(True)
    if opt.get('stagger',1):
        a("s_branch K2_FILL_J")
        a.label("K2_FILL_B")
        first_prep(False)
        first_loads()
        a(f"ds_read_b64 {SD}, {aL1d} offset:64")
        a("s_waitcnt lgkmcnt(0)")
        a.label("K2_FILL_J")
    H_addr()
    P_addr(LE[1],1)
    E_addr(LE[0])
    a("s_waitcnt vmcnt(1)")
    for s_ in range(4): a(f"ds_read_b128 {HA[4*s_:4*s_+4]}, {vHA[s_]}")
    Da,Db=D1[0:16],D1[16:32]
    mfma(a,Da,OH,WA[0:4],"0")
    mfma(a,Da,EA[0],WE[0:4],Da)
    a("s_waitcnt lgkmcnt(0)")
    for i in range(4): H_load(i)
    mfma(a,Da,HA[0:4],ID[0:4],Da)
    mfma(a,Da,HA[4:8],ID[4:8],Da)
    a(f"s_mov_b32 {sT}, 0")
    stamp(a,opt,8)
    if DBG:
        a("s_memtime s[80:81]")
        a("s_waitcnt lgkmcnt(0)")
    a.nop(12)
    MADD=opt.get('madd',1)
    PB_=[0]; MF=[False]
    def prio(p):
        if PRIO: a(f"s_setprio {p+PB_[0] if PB_[0]>=0 else 3}")
    def Tsec(kind,x,p):
        Dx=D1[16*x:16*x+16]; o=1-x; Do=D1[16*o:16*o+16]; D2o=D2[16*o:16*o+16]
        prio(1)
        if kind=='X':
            ea = EA[p] if x==0 else EA[1-p]
            mfma(a,Do,OH,WA[4*o:4*o+4],"0")
            for i in range(8): a(f"v_cvt_pk_bf16_f32 {M[i]}, {T[2*i]}, {T[2*i+1]}")
            mfma(a,Do,ea,WE[4*o:4*o+4],Do)
            for i in range(16):
                if i==6:
                    if x==1: a("s_waitcnt lgkmcnt(2)")
                    mfma(a,D2o,A2R[0:4],M[0:4],D2o)
                a(f"v_exp_f32 {T[i]}, {Dx[i]}")
            if MADD:
                a("s_nop 1")
                mfma(a,T,ONE,ONE,T)
        else:
            hb = HA[8:16] if x==0 else HA[0:8]
            for i in range(16):
                if i==0: mfma(a,Do,hb[0:4],ID[0:4],Do)
                if i==5: mfma(a,Do,hb[4:8],ID[4:8],Do)
                if i==10: mfma(a,D2o,A2R[4:8],M[4:8],D2o)
                a(f"v_rcp_f32 {T[i]}, {T[i]}")
        prio(0)
    def tile(p):
        q=1-p
        Tsec('X',0,p)
        if not opt.get('e_late',0): E_load(p)
        else: a("s_nop 0")
        P_reads()
        a(f"ds_read_b64 {SD}, {aL1d} offset:{64*(p+2)}")
        if not MADD:
            for i in range(16): a(f"v_add_f32 {T[i]}, 1.0, {T[i]}")
        else:
            a.nop(2)
        Tsec('R',0,p)
        def mulsA():
            for i in range(16): a(f"v_mul_f32 {T[i]}, {Da[i]}, {T[i]}")
        if MF[0]: mulsA()
        a(f"s_waitcnt vmcnt({0 if opt.get('e_late',0) else 1}) lgkmcnt(0)")
        for s_ in range(4): a(f"ds_read_b128 {HA[4*s_:4*s_+4]}, {vHA[s_]}")
        for k in range(4): a(f"ds_read_b64_tr_b16 {A2R[2*k:2*k+2]}, {vTR} offset:{512*k}")
        a(f"ds_write_b64 {aA2[p]}, {vZ}")
        pc=P_calc_list(q)
        for ins in pc[:6]: a(ins)
        H_addr()
        if not MF[0]: mulsA()
        for ins in pc[6:]: a(ins)
        if MF[0]: a("s_nop 0")
        Tsec('X',1,p)
        a("s_waitcnt lgkmcnt(0)")
        if opt.get('e_late',0)==1: E_load(p)
        for i in range(4): H_load(i)
        a(f"ds_read_b32 {LE[q]}, {aL0} offset:{128*(p+3)}")
        a(f"ds_read_u16 {SS}, {aL1s} offset:{64*(p+2)}")
        if not MADD:
            for i in range(16): a(f"v_add_f32 {T[i]}, 1.0, {T[i]}")
        Tsec('R',1,p)
        def mulsB():
            for i in range(16): a(f"v_mul_f32 {T[i]}, {Db[i]}, {T[i]}")
        if MF[0]: mulsB()
        a("s_waitcnt lgkmcnt(0)")
        E_addr(LE[q])
        P_addr(LE[p],p)
        if p==1:
            a(f"v_add_u32 {aL0}, 256, {aL0}")
            a(f"v_add_u32 {aL1s}, 128, {aL1s}")
            a(f"v_add_u32 {aL1d}, 128, {aL1d}")
        if not MF[0]: mulsB()
    def drain(par):
        for i in range(8): a(f"v_cvt_pk_bf16_f32 {M[i]}, {T[2*i]}, {T[2*i+1]}")
        a(f"ds_write_b64 {aA2[par]}, {vZ}")
        a("s_nop 0")
        mfma(a,D2[16:32],A2R[0:4],M[0:4],D2[16:32])
        mfma(a,D2[16:32],A2R[4:8],M[4:8],D2[16:32])
    def main_loop(sfx):
        a(".p2align 6")
        a.label("K2_LOOP"+sfx)
        tile(0)
        a(f"s_add_u32 {sT}, {sT}, 1")
        a(f"s_cmp_ge_u32 {sT}, {sNT}")
        a("s_cbranch_scc1 K2_EXIT_ODD"+sfx)
        tile(1)
        a(f"s_add_u32 {sT}, {sT}, 1")
        a(f"s_cmp_lt_u32 {sT}, {sNT}")
        a("s_cbranch_scc1 K2_LOOP"+sfx)
        drain(0)
        a("s_branch K2_LOOP_DONE")
        a.label("K2_EXIT_ODD"+sfx)
        drain(1)
    HP=opt.get('mfirst',2)
    if HP==1:
        a.c("the younger partner (waves 4..7) opens its plain sections with the multiplies, so both partners' multiplies pair up")
        a(f"s_cmp_ge_u32 {sWave}, 4")
        a("s_cbranch_scc1 K2_LOOP_H")
    if HP==2: MF[0]=True
    main_loop("")
    if HP==1:
        a("s_branch K2_LOOP_DONE")
        MF[0]=True
        main_loop("_H")
        MF[0]=False
    a.label("K2_LOOP_DONE")
    if PRIO: a("s_setprio 0")
    a.label("K2_MAIN_DONE")
    stamp(a,opt,9)
    if DBG:
        a("s_memtime s[82:83]")
        a("s_waitcnt lgkmcnt(0)")
        a("s_sub_u32 s80, s82, s80")
        a(f"v_writelane_b32 {VDBG}, s80, 12")
        a(f"v_writelane_b32 {VDBG}, {sNT}, 11")
    a(f"s_cmp_eq_u32 {sMode}, 0")
    a("s_cbranch_scc1 K2_EPI")
    a("s_waitcnt vmcnt(0) lgkmcnt(0)")
    a(f"s_add_u32 {sChunk}, {sChunk}, 1")
    a(f"s_cmp_lt_u32 {sChunk}, {(E+511)//512}")
    a("s_cbranch_scc1 K2_GEN")
    a.label("K2_EPI")
    a.c("segment sums of this window: m_i (bf16) -> rows of this window's (now idle) A2 slice")
    a(f"s_lshl_b32 {sHST}, {sWin}, 11")
    a(f"s_add_u32 {sHST}, {sHST}, {L_A2}")
    a(f"v_and_b32 {vJ}, 31, {vL}")
    a(f"s_mov_b32 {sTmp}, {NEG_LN2}")
    a(f"v_lshrrev_b32 {vT2}, 5, {vL}")
    a(f"v_lshlrev_b32 {vT2}, 7, {vT2}")
    a(f"v_lshl_add_u32 {vT2}, {vJ}, 1, {vT2}")
    a(f"v_add_u32 {vT2}, {sHST}, {vT2}")
    a.nop(8)
    for qq in range(4):
        a(f"v_mul_f32 {AD[0]}, {sTmp}, {D2[4*qq]}")
        a(f"v_mul_f32 {AD[1]}, {sTmp}, {D2[16+4*qq]}")
        a(f"v_cvt_pk_bf16_f32 {AD[2]}, {AD[0]}, {AD[1]}")
        a(f"ds_write_b16 {vT2}, {AD[2]} offset:{qq*256}")
        a(f"ds_write_b16_d16_hi {vT2}, {AD[2]} offset:{qq*256+64}")
    def pos_part():
        a.c("coordinate update of this window")
        PP=T
        for qq in range(4):
            for c in range(1,4):
                r=PP[qq*3+c-1]
                a(f"v_mul_f32 {r}, {WX[0]}, {D2[4*qq+c]}")
                a(f"v_fmac_f32 {r}, {WX[1]}, {D2[16+4*qq+c]}")
        for sh in (1,2,4,8):
            for i in range(12): a(f"v_add_f32_dpp {PP[i]}, {PP[i]}, {PP[i]} row_shr:{sh} row_mask:0xf bank_mask:0xf bound_ctrl:0")
        for i in range(12): a(f"v_add_f32_dpp {PP[i]}, {PP[i]}, {PP[i]} row_bcast:15 row_mask:0xa bank_mask:0xf")
        a(f"v_lshrrev_b32 {vT2}, 5, {vL}")
        a(f"v_lshlrev_b32 {vT2}, 4, {vT2}")
        a(f"s_add_u32 {sTmp}, {sHST}, 1024")
        a(f"v_add_u32 {vT2}, {sTmp}, {vT2}")
        a("s_mov_b32 exec_lo, 0x80000000")
        a("s_mov_b32 exec_hi, 0x80000000")
        for qq in range(4):
            for c in range(3):
                a(f"ds_write_b32 {vT2}, {PP[qq*3+c]} offset:{qq*32+c*4}")
        a("s_mov_b64 exec, -1")
        a(f"v_mul_u32_u24 {vT2}, 86, {vL}")
        a(f"v_lshrrev_b32 {vT2}, 8, {vT2}")
        a(f"v_mul_u32_u24 {vT3}, 3, {vT2}")
        a(f"v_sub_u32 {vT3}, {vL}, {vT3}")
        a(f"v_lshlrev_b32 {vT2}, 4, {vT2}")
        a(f"v_lshl_add_u32 {vT2}, {vT3}, 2, {vT2}")
        a(f"v_add_u32 {vT2}, {sTmp}, {vT2}")
        a(f"v_min_u32 {vT2}, {LDS2-4}, {vT2}")
        a(f"ds_read_b32 {AD[0]}, {vT2}")
        a(f"v_lshl_add_u32 {vT3}, {vL}, 1, {sN06}")
        a(f"v_min_u32 {vT2}, {POS_SZ-2}, {vT3}")
        a(f"ds_read_u16_d16_hi {PS[0]}, {vT2} offset:{L_POS}")
        a(f"s_mul_i32 {sTmp}, {sNJ}, 3")
        a(f"v_cmp_gt_u32 vcc, {sTmp}, {vL}")
        a(f"v_add_u32 {vT3}, {OUT_POS}, {vT3}")
        a(f"v_mov_b32 {vT2}, 0x40000000")
        a("s_waitcnt lgkmcnt(0)")
        a(f"v_cndmask_b32 {vT3}, {vT2}, {vT3}, vcc")
        a(f"v_add_f32 {AD[0]}, {AD[0]}, {PS[0]}")
        a(f"v_cvt_pk_bf16_f32 {AD[0]}, {AD[0]}, {AD[0]}")
        a(f"buffer_store_short {AD[0]}, {vT3}, {sO}, 0 offen{OST}")
    a.c("job waves 4..7: row tile r = (v-4)>>1 (rows = window 4r + (m>>3), node m&7), feature half x = v&1")
    a(f"s_cmp_lt_u32 {sWave}, 4")
    a("s_cbranch_scc1 K2_EPI_NOJOB")
    a(f"s_sub_u32 {sTmp2}, {sWave}, 4")
    a(f"s_lshr_b32 {sTmp2}, {sTmp2}, 1")
    a(f"s_lshl_b32 {sTmp2}, {sTmp2}, 2")
    a(f"v_bfe_u32 {vT0}, {vL}, 3, 2")
    a(f"v_add_u32 {vT0}, {sTmp2}, {vT0}")
    a(f"v_and_b32 {vJ}, 7, {vL}")
    a(f"v_lshlrev_b32 {aL1d}, 11, {vT0}")
    a(f"v_lshl_add_u32 {aL1d}, {vJ}, 7, {aL1d}")
    a(f"v_add_u32 {aL1d}, {L_A2}, {aL1d}")
    a(f"v_add_u32 {aL1d}, {aL1d}, {vHOFF}")
    a(f"s_lshl_b32 {sTmp2}, s2, 3")
    a(f"v_add_u32 {vT0}, {sTmp2}, {vT0}")
    a(f"v_mad_u32_u24 {SD[0]}, {vT0}, {s3125}, {v511}")
    a(f"v_add_u32 {SD[1]}, 3125, {SD[0]}")
    a(f"v_lshrrev_b32 {SD[0]}, 9, {SD[0]}")
    a(f"v_lshrrev_b32 {SD[1]}, 9, {SD[1]}")
    a(f"v_sub_u32 {SD[1]}, {SD[1]}, {SD[0]}")
    a(f"v_cmp_lt_u32 vcc, {vJ}, {SD[1]}")
    a(f"v_add_u32 {vT1}, -1, {SD[1]}")
    a(f"v_min_u32 {vT1}, {vT1}, {vJ}")
    a(f"v_add_u32 {vT1}, {SD[0]}, {vT1}")
    a(f"v_lshlrev_b32 {vT1}, 7, {vT1}")
    a(f"v_add_u32 {vT0}, {vT1}, {vHOFF}")
    for s_ in range(4):
        a(f"buffer_load_dwordx4 {HA[4*s_:4*s_+4]}, {vT0}, {sHs}, 0 offen offset:{32*s_}")
    a(f"s_and_b32 {sTmp2}, {sWave}, 1")
    a(f"s_lshl_b32 {sTmp2}, {sTmp2}, 6")
    a(f"v_lshrrev_b32 {vT0}, 1, {vHOFF}")
    a(f"v_add3_u32 {aL0}, {vT1}, {vT0}, {sTmp2}")
    for qq in range(4):
        a(f"buffer_load_dwordx2 {M[2*qq:2*qq+2]}, {aL0}, {sHs}, 0 offen offset:{16*qq}")
    a(f"v_mov_b32 {vT0}, 0x40000000")
    a(f"v_cndmask_b32 {aL1s}, {vT0}, {aL0}, vcc")
    pos_part()
    HV=D2[0:16]
    a("s_waitcnt vmcnt(1)")
    for s_ in range(4):
        mfma(a,D1[0:16],WH[4*s_:4*s_+4],HA[4*s_:4*s_+4],"0" if s_==0 else D1[0:16])
    for qq in range(4):
        a(f"v_lshlrev_b32 {HV[4*qq]}, 16, {M[2*qq]}")
        a(f"v_and_b32 {HV[4*qq+1]}, 0xffff0000, {M[2*qq]}")
        a(f"v_lshlrev_b32 {HV[4*qq+2]}, 16, {M[2*qq+1]}")
        a(f"v_and_b32 {HV[4*qq+3]}, 0xffff0000, {M[2*qq+1]}")
    stamp(a,opt,10)
    a("s_barrier")
    MA=[EA[0],EA[1],A2R[0:4],A2R[4:8]]
    for s_ in range(4): a(f"ds_read_b128 {MA[s_]}, {aL1d} offset:{32*s_}")
    for s_ in range(4):
        a(f"s_waitcnt lgkmcnt({3-s_})")
        mfma(a,D1[0:16],WH[16+4*s_:20+4*s_],MA[s_],D1[0:16])
    a(f"s_mov_b32 {sTmp}, {NEG_LOG2E}")
    a.nop(14)
    X=D1[0:16]
    for i in range(16): a(f"v_mul_f32 {T[i]}, {sTmp}, {X[i]}")
    for i in range(16): a(f"v_exp_f32 {T[i]}, {T[i]}")
    for i in range(16): a(f"v_add_f32 {T[i]}, 1.0, {T[i]}")
    for i in range(16): a(f"v_rcp_f32 {T[i]}, {T[i]}")
    a("s_nop 0")
    for i in range(16): a(f"v_fma_f32 {T[i]}, {X[i]}, {T[i]}, {HV[i]}")
    for qq in range(4):
        a(f"v_cvt_pk_bf16_f32 {M[2*qq]}, {T[4*qq]}, {T[4*qq+1]}")
        a(f"v_cvt_pk_bf16_f32 {M[2*qq+1]}, {T[4*qq+2]}, {T[4*qq+3]}")
        a(f"buffer_store_dwordx2 {M[2*qq:2*qq+2]}, {aL1s}, {sO}, 0 offen offset:{16*qq}{OST}")
    a("s_branch K2_FIN")
    a.label("K2_EPI_NOJOB")
    a("s_waitcnt lgkmcnt(0)")
    stamp(a,opt,10)
    a("s_barrier")
    pos_part()
    a.label("K2_FIN")
    if DBG:
        a("s_waitcnt vmcnt(0)")
        stamp(a,opt,13)
        a(f"s_lshl_b32 {sTmp}, s2, 4")
        a(f"s_add_u32 {sTmp}, {sTmp}, {sWave}")
        a(f"s_lshl_b32 {sTmp}, {sTmp}, 6")
        a(f"s_add_u32 {sTmp}, {sTmp}, {DBG_OFF}")
        a(f"v_lshlrev_b32 {vT0}, 2, {vL}")
        a("s_mov_b32 exec_lo, 0xffff")
        a("s_mov_b32 exec_hi, 0")
        a(f"buffer_store_dword {VDBG}, {vT0}, {sW}, {sTmp} offen")
        a("s_waitcnt vmcnt(0)")
        if opt.get('dbgh',0):
            a("s_load_dwordx2 s[64:65], s[0:1], 72")
            a("s_waitcnt lgkmcnt(0)")
            srd(a,S(68,4),"s64","s65",256)
            a(f"s_cmp_lg_u32 s2, {opt.get('dbgh',0)}")
            a("s_cbranch_scc1 K_NODBGH")
            a(f"s_cmp_lg_u32 {sWave}, 0")
            a("s_cbranch_scc1 K_NODBGH")
            a("s_mov_b32 exec_lo, 0x3fff")
            a(f"buffer_store_dword {VDBG}, {vT0}, s[68:71], 0 offen offset:4")
            a("s_waitcnt vmcnt(0)")
            a.label("K_NODBGH")
    a.label("K_END")
    a("s_endpgm")
    a.label("K_CODE_END")
    return nv

HEADER='''; Kernarg layout (88 bytes, ptrs only): h, pos, e_attr, src, dst, w_e, w_x, w_h, out, debug, ws
; @launch grid=(256,1,1) block=(512,1,1) lds={lds2}
.amdgcn_target "amdgcn-amd-amdhsa--gfx950"
.text
.globl {k}
.p2align 8
.type {k},@function
'''
def kd(name,nv,ns):
    acc=(nv+3)//4*4
    return f'''.amdhsa_kernel {name}
  .amdhsa_next_free_vgpr {acc}
  .amdhsa_next_free_sgpr {ns}
  .amdhsa_accum_offset {acc}
  .amdhsa_group_segment_fixed_size 0
  .amdhsa_kernarg_size 88
  .amdhsa_user_sgpr_count 2
  .amdhsa_user_sgpr_kernarg_segment_ptr 1
  .amdhsa_system_sgpr_workgroup_id_x 1
  .amdhsa_float_denorm_mode_32 3
.end_amdhsa_kernel
'''
def build(opt):
    out=HEADER.format(lds2=LDS2,k=KNAME)
    a=Asm()
    nv=gen(a,opt)
    assert nv<=255
    out+=a.text()
    out+='.section .rodata,"a"\n.p2align 6\n'+kd(KNAME,256,102)
    return out,nv
if __name__=="__main__":
    opt={}
    for arg in sys.argv[2:]:
        k,v=arg.split('='); opt[k]=int(v)
    txt,nv=build(opt)
    open(sys.argv[1],'w').write(txt)
    print("vgprs:",nv,"LDS",LDS2,"lines",txt.count("\n"),"WS",WS_BYTES)
```

```python
import sys, struct
from asmlib import *

N=12500; E=800000; CH=3136; NSRC=256; NBIN=256; NPW=49
KW=703687442
LOG2E=1.4426950408889634; LN2=0.6931471805599453
def f2u(x): return struct.unpack('<I',struct.pack('<f',x))[0]
NEG_LOG2E=f2u(-LOG2E); NEG_LN2=f2u(-LN2)
SENT=0xFFFFFFFF; MARK=0xFFFFFFFE
CELLS=0; BPT=NBIN*NSRC*128; FLG=BPT+N*128+((-N*128)%4096); FLG2=FLG+4096; WS_BYTES=FLG2+8192
OUT_BYTES=N*64*2+N*3*2; OUT_POS=N*64*2
CAP=576; CAPX=704
L_OH=0; L_CNT=128; L_NRES=160; L_WIN=192; L_RES=256; L_POS=1280; POS_SZ=74*1024
L_L0=L_POS+POS_SZ; L_L1=L_L0+8*CAPX*4; L_A2=L_L1+8*CAPX*2; L_HST=L_A2+8*2048; LDS2=L_HST+8*4096
assert LDS2<=163840, LDS2
L_RAWW=L_L0; L_BST=L_L0+19*1024; assert L_BST+2*32*144<=L_A2
DBG_OFF=16*1024*1024

def WSB(opt): return (32*1024*1024 if opt.get('dbg',0) else WS_BYTES)
def srd(a, s, lo, hi, size):
    a(f"s_mov_b32 {s[0]}, {lo}")
    a(f"s_and_b32 {s[1]}, {hi}, 0xffff")
    a(f"s_mov_b32 {s[2]}, {size}")
    a(f"s_mov_b32 {s[3]}, 0x20000")
VDBG="v255"
def stamp(a,opt,idx):
    if not opt.get('dbg',0): return
    a("s_memrealtime s[100:101]")
    a("s_waitcnt lgkmcnt(0)")
    a(f"v_writelane_b32 {VDBG}, s100, {idx}")
def S(i,n=1): return R('s',i,n)
def V(i,n=1): return R('v',i,n)
def mfma(a,d,A,B,c): a(f"v_mfma_f32_32x32x16_bf16 {d}, {A}, {B}, {c}")

NPOS1=24
KNAME="gather_scatter__cheap_equivariant_egnn__graph_kernel"
def gen(a, opt):
    DBG=opt.get('dbg',0)
    PRIO=opt.get('prio',1)
    ST=[" sc1"," sc0 sc1"," sc1 nt"," sc0 sc1 nt"][opt.get('st',0)]; LD=" sc1" if opt.get('ld_sc1',1) else ""
    HLD=[""," sc1"," sc0 sc1"," sc1 nt"," sc0 sc1 nt"][opt.get('h_sc1',1)]
    SNT=" nt" if opt.get('snt',0) else ""
    OST=[""," nt"," sc1"," sc0 sc1"][opt.get('ost',0)]
    a.label(KNAME)
    sB=S(4,4); sE=S(8,4); sW=S(12,4); sO=S(16,4); sP=S(20,4); sS=S(24,4); sD=S(28,4)
    sWave=S(32); sN0=S(33); sNJ=S(34); sN06=S(35); sNT=S(36); sT=S(37); sMode=S(38); sChunk=S(39)
    sMaskE=S(40); s128=S(41); sK=S(42); s3125=S(43); sLim=S(44); sCAP=S(44); sCnt=S(45); sTmp=S(46); sTmp2=S(47)
    sM0=S(48,4); sSave=S(52,2); sAny=S(54,2); sNR=S(56); sI=S(57); sC=S(58); sWsrc=S(59); sMark=S(60); sCAPq=S(61); sHST=S(62); sTmp3=S(63)
    sMask=[S(64+2*i,2) for i in range(16)]
    sTagOff=S(36)
    sRot=S(39+0) if False else S(37)
    sWin=S(96); sTgt=S(97); sNonce=S(98); sPoll=S(99)
    sT4=S(84,4); sT4b=S(88,4); sT4c=S(92,4)
    sHw=S(48,4)
    sHs=S(68,4); sWx=S(72,4)
    vr=Regs(1,256,'v')
    vL=vr.alloc('lane')
    WE=vr.alloc('WE',8,4); WA=vr.alloc('WA',8,4); ID=vr.alloc('ID',8,4); D2=vr.alloc('D2',32,4)
    D1=vr.alloc('D1',32,4); HA=vr.alloc('HA',16,4); T=vr.alloc('T',16,4); M=vr.alloc('M',8,4)
    A2R=vr.alloc('A2R',8,4); EA=[vr.alloc('EA0',4,4),vr.alloc('EA1',4,4)]; OH=vr.alloc('OH',4,4)
    WH=vr.alloc('WH',32,4); ONE=vr.alloc('ONE',4,4)
    vHA=vr.alloc('vHA',4); vKD=vr.alloc('vKD',4); vTR=vr.alloc('vTR'); vE64=vr.alloc('vE64'); vHOFF=vr.alloc('vHOFF')
    vZ=vr.alloc('vZ',2,2); aL0=vr.alloc('aL0'); aL1s=vr.alloc('aL1s'); aL1d=vr.alloc('aL1d')
    LE=[vr.alloc('LE0'),vr.alloc('LE1')]; aA2=[vr.alloc('aA2_0'),vr.alloc('aA2_1')]
    SD=vr.alloc('SD',2,2); SS=vr.alloc('SS'); PS=vr.alloc('PS',3); PD=vr.alloc('PD',3)
    E01=vr.alloc('E01',2,2); DX=vr.alloc('DX',3); DD=vr.alloc('DD'); AD=vr.alloc('AD',4); vJ=vr.alloc('vJ')
    aE=vr.alloc('aE'); aPS=vr.alloc('aPS'); aPD=vr.alloc('aPD'); aOH=vr.alloc('aOH')
    vT0=vr.alloc('vT0'); vT1=vr.alloc('vT1'); vT2=vr.alloc('vT2'); vT3=vr.alloc('vT3')
    vOne=vr.alloc('vOne'); v511=vr.alloc('v511'); vTRW=vr.alloc('vTRW'); vL16=vr.alloc('vL16'); WX=vr.alloc('WX',2); vDUM=vr.alloc('vDUM')
    nv=vr.next
    HW=T
    def geometry(win):
        a(f"s_lshl_b32 {sTmp}, s2, 3")
        a(f"s_add_u32 {sTmp}, {sTmp}, {win}")
        a(f"s_mul_i32 {sN0}, {sTmp}, 3125")
        a(f"s_add_u32 {sNJ}, {sN0}, {3125+511}")
        a(f"s_add_u32 {sN0}, {sN0}, 511")
        a(f"s_lshr_b32 {sN0}, {sN0}, 9")
        a(f"s_lshr_b32 {sNJ}, {sNJ}, 9")
        a(f"s_sub_u32 {sNJ}, {sNJ}, {sN0}")
        a(f"s_mul_i32 {sN06}, {sN0}, 6")
    def dma(vaddr,srd_,soff,ldsbase_const=None,ldsreg=None):
        pass

    def load_hwin():
        a.c("h rows of the natural window (A operand of h@W1; needed after barrier C)")
        a(f"v_bfe_u32 {vT0}, {vL}, 3, 1")
        a(f"v_and_b32 {vT2}, 3, {vL}")
        a(f"v_lshl_add_u32 {vT0}, {vT0}, 2, {vT2}")
        a(f"s_sub_u32 {sTmp}, {sNJ}, 1")
        a(f"v_min_u32 {vT0}, {sTmp}, {vT0}")
        a(f"v_add_u32 {vT0}, {sN0}, {vT0}")
        a(f"v_lshl_add_u32 {vT0}, {vT0}, 7, {vHOFF}")
        for s_ in range(4):
            a(f"buffer_load_dwordx4 {HW[4*s_:4*s_+4]}, {vT0}, {sHw}, 0 offen offset:{32*s_}")
    a("s_cmp_ge_u32 s2, 256")
    a("s_cbranch_scc1 K_END")
    FAST=opt.get('faststart',1)
    a("s_load_dwordx4 s[68:71], s[0:1], 16")
    a("s_load_dwordx4 s[72:75], s[0:1], 32")
    if opt.get('cpf',1):
        a.c("every wave pulls one line of the kernel's own code into L2 (read only, speed only)")
        a("s_getpc_b64 s[84:85]")
        a.label("K_PC")
        a(f"s_lshr_b32 {sTmp}, s2, 3")
        a(f"v_lshrrev_b32 {vT0}, 6, v0")
        a(f"s_and_b32 {sTmp}, {sTmp}, 31")
        a("s_and_b32 s85, s85, 0xffff")
        a(f"s_lshl_b32 {sTmp}, {sTmp}, 10")
        a("s_mov_b32 s86, K_CODE_END-K_PC")
        a("s_mov_b32 s87, 0x20000")
        a(f"v_lshl_add_u32 {vT1}, {vT0}, 7, {sTmp}")
        a(f"buffer_load_dword {vDUM}, {vT1}, s[84:87], 0 offen")
    else:
        a(f"v_lshrrev_b32 {vT0}, 6, v0")
    a(f"v_and_b32 {vL}, 63, v0")
    a(f"s_mul_i32 {sTmp}, s2, {CH*4}")
    a(f"v_mul_u32_u24 {vT2}, {384*4}, {vT0}")
    a(f"v_readfirstlane_b32 {sWave}, {vT0}")
    a(f"v_lshl_add_u32 {vT2}, {vL}, 3, {vT2}")
    a(f"v_add_u32 {vT2}, {sTmp}, {vT2}")
    a("s_waitcnt lgkmcnt(0)")
    stamp(a,opt,0)
    srd(a,sD,"s72","s73",E*4)
    srd(a,sS,"s70","s71",E*4)
    a.c("every wave: six edges per lane, local edge = 384v + 128k + 2l + u; wave 7 also takes edges 3072 + l")
    DS_=D1[0:7]; SR_=D1[8:15]
    for k in range(3): a(f"buffer_load_dwordx2 {D1[2*k:2*k+2]}, {vT2}, {sD}, 0 offen offset:{512*k}{SNT}")
    for k in range(3): a(f"buffer_load_dwordx2 {D1[8+2*k:10+2*k]}, {vT2}, {sS}, 0 offen offset:{512*k}{SNT}")
    a("s_load_dwordx4 s[64:67], s[0:1], 0")
    a("s_load_dwordx4 s[76:79], s[0:1], 64")
    a("s_load_dwordx2 s[80:81], s[0:1], 80")
    a(f"v_lshlrev_b32 {vL16}, 4, {vL}")
    a(f"v_lshrrev_b32 {vT2}, 5, {vL}")
    a(f"v_lshlrev_b32 {vHOFF}, 4, {vT2}")
    a(f"v_mov_b32 {vZ[0]}, 0")
    a(f"v_mov_b32 {vZ[1]}, 0")
    geometry(sWave)
    a("s_waitcnt lgkmcnt(0)")
    srd(a,sT4c,"s78","s79",256)
    srd(a,sW,"s80","s81",WSB(opt))
    assert opt.get('tagmode',1)==1
    a.c("wave 0 notes what its own flag slot holds on entry: that value is no tag of this launch")
    a(f"s_cmp_lg_u32 {sWave}, 0")
    a("s_cbranch_scc1 K_S_NOOLD")
    a(f"s_lshl_b32 {sTmp}, s2, 4")
    a(f"s_add_u32 {sTmp}, {sTmp}, {FLG}")
    a(f"buffer_load_dword {aL0}, {vZ[0]}, {sW}, {sTmp} offen sc1")
    a.label("K_S_NOOLD")
    srd(a,sT4,"s64","s65",N*128)
    srd(a,sHw,"s64","s65",N*128)
    srd(a,sT4b,"s74","s75",145*128)
    a(f"s_cmp_eq_u32 {sWave}, 7")
    a("s_cbranch_scc1 K_S_W7")
    a(f"s_cmp_eq_u32 {sWave}, 4")
    a("s_cbranch_scc1 K_S_W4")
    a(f"s_cmp_lt_u32 {sWave}, 5")
    a("s_cbranch_scc1 K_S_COMMON")
    a.c("waves 5,6: private raw W2 copy + h rows for the source-node table")
    a(f"s_sub_u32 {sI}, {sWave}, 5")
    a(f"s_lshl_b32 {sC}, {sI}, 13")
    a(f"s_add_u32 {sC}, {sC}, {L_A2}")
    for i in range(8):
        a(f"s_add_u32 {sTmp}, {sC}, {i*1024}")
        a(f"s_mov_b32 m0, {sTmp}")
        a(f"s_mov_b32 {sTmp2}, {8192+i*1024}")
        a(f"buffer_load_dwordx4 {vL16}, {sT4b}, {sTmp2} offen lds")
    a(f"s_mul_i32 {sTmp}, s2, {NPW}")
    a(f"s_lshl_b32 {sTmp2}, {sI}, 5")
    a(f"s_add_u32 {sTmp}, {sTmp}, {sTmp2}")
    a(f"v_and_b32 {vT0}, 31, {vL}")
    a(f"v_add_u32 {vT0}, {sTmp}, {vT0}")
    a(f"v_lshl_add_u32 {vT0}, {vT0}, 7, {vHOFF}")
    for s_ in range(4): a(f"buffer_load_dwordx4 {HA[4*s_:4*s_+4]}, {vT0}, {sT4}, 0 offen offset:{32*s_}")
    a("s_branch K_S_COMMON")
    a.label("K_S_W4")
    a.c("wave 4: this workgroup's share of the L2 warm-up of pos and w_h (speed only)")
    a("s_load_dwordx2 s[82:83], s[0:1], 56")
    srd(a,sP,"s66","s67",N*6)
    a(f"s_lshr_b32 {sTmp}, s2, 3")
    a(f"s_and_b32 {sTmp}, {sTmp}, 31")
    a(f"s_mul_i32 {sTmp2}, {sTmp}, {19*128}")
    a(f"v_lshlrev_b32 {vT0}, 7, {vL}")
    a(f"v_add_u32 {vT1}, {sTmp2}, {vT0}")
    a(f"v_cmp_gt_u32 vcc, 19, {vL}")
    a(f"v_mov_b32 {vT2}, 0x40000000")
    a("s_waitcnt lgkmcnt(0)")
    a(f"v_cndmask_b32 {vT1}, {vT2}, {vT1}, vcc")
    a(f"buffer_load_dword {vDUM}, {vT1}, {sP}, 0 offen")
    srd(a,sT4b,"s82","s83",128*128)
    a(f"s_lshl_b32 {sTmp2}, {sTmp}, 9")
    a(f"v_add_u32 {vT1}, {sTmp2}, {vT0}")
    a(f"v_cmp_gt_u32 vcc, 4, {vL}")
    a("s_nop 1")
    a(f"v_cndmask_b32 {vT1}, {vT2}, {vT1}, vcc")
    a(f"buffer_load_dword {vDUM}, {vT1}, {sT4b}, 0 offen")
    a("s_branch K_S_COMMON")
    a.label("K_S_W7")
    a.c("wave 7: the last 64 edges, one-hot table, counters")
    a(f"s_mul_i32 {sTmp}, s2, {CH*4}")
    a(f"s_add_u32 {sTmp}, {sTmp}, {3072*4}")
    a(f"v_lshl_add_u32 {vT0}, {vL}, 2, {sTmp}")
    a(f"buffer_load_dword {D1[6]}, {vT0}, {sD}, 0 offen{SNT}")
    a(f"buffer_load_dword {D1[14]}, {vT0}, {sS}, 0 offen{SNT}")
    a(f"v_lshrrev_b32 {vT0}, 2, {vL}")
    a(f"v_and_b32 {vT1}, 3, {vL}")
    a(f"v_lshlrev_b32 {vT3}, 1, {vT1}")
    a(f"v_mov_b32 {vJ}, 0")
    a(f"v_cmp_eq_u32 vcc, {vT0}, {vT3}")
    a(f"v_mov_b32 {AD[0]}, 0x3f80")
    a(f"v_mov_b32 {AD[1]}, 0x3f800000")
    a(f"v_cndmask_b32 {vJ}, {vJ}, {AD[0]}, vcc")
    a(f"v_add_u32 {vT3}, 1, {vT3}")
    a(f"v_cmp_eq_u32 vcc, {vT0}, {vT3}")
    a("s_nop 1")
    a(f"v_cndmask_b32 {vJ}, {vJ}, {AD[1]}, vcc")
    a(f"v_cmp_eq_u32 vcc, 6, {vT0}")
    a(f"v_mov_b32 {AD[2]}, 0")
    a("s_nop 0")
    a(f"v_cndmask_b32 {AD[2]}, {AD[2]}, {AD[1]}, vcc")
    a(f"v_cmp_eq_u32 vcc, 3, {vT1}")
    a("s_nop 1")
    a(f"v_cndmask_b32 {vJ}, {vJ}, {AD[2]}, vcc")
    a(f"v_cmp_lt_u32 vcc, 31, {vL}")
    a(f"v_lshlrev_b32 {vT0}, 2, {vL}")
    a("s_nop 0")
    a(f"v_cndmask_b32 {vJ}, {vJ}, {vZ[0]}, vcc")
    a(f"ds_write_b32 {vT0}, {vJ}")
    a.label("K_S_COMMON")
    a(f"s_mov_b32 {sMaskE}, {'0' if opt.get('noE',0) else '0xffffffe0'}")
    a(f"s_mov_b32 {s128}, {0 if opt.get('noH',0) else 128}")
    a(f"s_mov_b32 {sK}, {KW}")
    a(f"s_mov_b32 {s3125}, 3125")
    a(f"s_mov_b32 {sMark}, {MARK}")
    a(f"s_mov_b32 {sCAPq}, {CAPX//4}")
    a(f"s_mov_b32 {sMode}, 0")
    a(f"s_mov_b32 {sChunk}, 0")
    a(f"v_mov_b32 {vOne}, 1")
    a(f"v_mov_b32 {v511}, 511")
    a(f"v_mov_b32 {aL1s}, 0x40000000")
    a(f"v_lshrrev_b32 {vT2}, 5, {vL}")
    a(f"v_bfe_u32 {vT0}, {vL}, 2, 2")
    a(f"v_lshl_add_u32 {vT0}, {vT2}, 3, {vT0}")
    a(f"v_lshlrev_b32 {vTRW}, 7, {vT0}")
    a(f"v_bfe_u32 {vT0}, {vL}, 4, 1")
    a(f"v_lshl_add_u32 {vTRW}, {vT0}, 5, {vTRW}")
    a(f"v_and_b32 {vT0}, 3, {vL}")
    a(f"v_lshl_add_u32 {vTRW}, {vT0}, 3, {vTRW}")
    a.c("LDS init: cell image = sentinel, counters = 0")
    for i in range(4): a(f"v_mov_b32 {WH[i]}, -1")
    a(f"v_lshlrev_b32 {vT0}, 6, v0")
    a(f"v_add_u32 {vT0}, {L_HST}, {vT0}")
    for i in range(4): a(f"ds_write_b128 {vT0}, {WH[0:4]} offset:{16*i}")
    a(f"v_and_b32 {vT0}, 0xff, v0")
    a(f"v_lshlrev_b32 {vT0}, 2, {vT0}")
    a(f"ds_write_b32 {vT0}, {vZ[0]} offset:{L_RES}")
    srd(a,sP,"s66","s67",N*6)
    srd(a,sE,"s68","s69",E*32)
    srd(a,sO,"s76","s77",OUT_BYTES)
    a(f"s_add_u32 {sB[0]}, s80, {BPT}")
    a(f"s_addc_u32 {sB[1]}, s81, 0")
    a(f"s_and_b32 {sB[1]}, {sB[1]}, 0xffff")
    a(f"s_mov_b32 {sB[2]}, {N*128}")
    a(f"s_mov_b32 {sB[3]}, 0x20000")
    if opt.get('tlb',0):
        a.c("wave 2 touches one line per 2 MiB of the buffers used later (address translation warm-up, speed only)")
        a(f"s_cmp_lg_u32 {sWave}, 2")
        a("s_cbranch_scc1 K_NOTLB")
        a(f"v_lshlrev_b32 {vT0}, 21, {vL}")
        a(f"v_mov_b32 {vT1}, 0x40000000")
        a(f"v_cmp_gt_u32 vcc, 13, {vL}")
        a("s_nop 1")
        a(f"v_cndmask_b32 {vT0}, {vT1}, {vT0}, vcc")
        a(f"buffer_load_dword {vDUM}, {vT0}, {sE}, 0 offen")
        a(f"buffer_load_dword {vDUM}, {vT0}, {sW}, 0 offen")
        a(f"buffer_load_dword {vDUM}, {vT0}, {sO}, 0 offen")
        a.label("K_NOTLB")
    a("s_waitcnt lgkmcnt(0)")
    a("s_barrier")
    a(f"s_mul_i32 {sTmp}, s2, {CH}")
    a(f"s_sub_u32 {sLim}, {E}, {sTmp}")
    a(f"s_min_u32 {sLim}, {sLim}, {CH}")
    B4=D2[0:7]; RC=M[0:7]; RK1=D2[8:15]
    def bin_edges(nrec, el_of, waitcnt, masked):
        if masked:
            for u in range(nrec):
                el_of(u,vT1)
                a(f"v_cmp_gt_u32 {sMask[u]}, {sLim}, {vT1}")
        if waitcnt is not None: a(f"s_waitcnt vmcnt({waitcnt})")
        stamp(a,opt,1)
        for u in range(nrec):
            d=DS_[u]; s_=SR_[u]
            a(f"v_mul_hi_u32 {vT2}, {d}, {sK}")
            el_of(u,vT1)
            a(f"v_lshl_or_b32 {RC[u]}, {s_}, 12, {vT1}")
            a(f"v_lshrrev_b32 {B4[u]}, 1, {vT2}")
            a(f"v_mad_u32_u24 {vT3}, {vT2}, {s3125}, {v511}")
            a(f"v_and_b32 {B4[u]}, 0x3fc, {B4[u]}")
            a(f"v_lshrrev_b32 {vT3}, 9, {vT3}")
            if masked: a(f"s_mov_b64 exec, {sMask[u]}")
            a(f"ds_add_rtn_u32 {RK1[u]}, {B4[u]}, {vOne} offset:{L_RES}")
            if masked: a("s_mov_b64 exec, -1")
            a(f"v_sub_u32 {vT3}, {d}, {vT3}")
            a(f"v_and_b32 {vT2}, 7, {vT2}")
            a(f"v_lshl_or_b32 {vT3}, {vT2}, 3, {vT3}")
            a(f"v_lshl_or_b32 {RC[u]}, {vT3}, 26, {RC[u]}")
        a(f"v_mov_b32 {vT3}, {L_HST}")
        a(f"v_mov_b32 {vJ}, {L_NRES+4}")
        for u in range(nrec):
            if not masked: a(f"s_waitcnt lgkmcnt({nrec-1})")
            elif u==0: a("s_waitcnt lgkmcnt(0)")
            a(f"v_cmp_gt_u32 vcc, 32, {RK1[u]}")
            a(f"v_lshlrev_b32 {vT1}, 3, {RK1[u]}")
            a(f"v_lshrrev_b32 {vT2}, 2, {RK1[u]}")
            a(f"v_and_b32 {vT1}, 0x78, {vT1}")
            a(f"v_lshl_add_u32 {AD[0]}, {B4[u]}, 5, {vT3}")
            a(f"v_and_or_b32 {vT1}, {vT2}, 4, {vT1}")
            a(f"v_add_u32 {vT1}, {vT1}, {AD[0]}")
            a(f"v_cndmask_b32 {vT1}, {vJ}, {vT1}, vcc")
            if masked: a(f"s_mov_b64 exec, {sMask[u]}")
            a(f"ds_write_b32 {vT1}, {RC[u]}")
            if masked: a("s_mov_b64 exec, -1")
    a.c("wait for this wave's edges (younger loads: 12 for waves 5,6; 2 for wave 4; the tag store of workgroup 0)")
    a(f"s_mul_i32 {sTmp}, {sWave}, 384")
    a(f"v_lshl_add_u32 {vT0}, {vL}, 1, {sTmp}")
    a(f"s_cmp_eq_u32 {sWave}, 4")
    a("s_cbranch_scc1 K_S_WT4")
    a(f"s_sub_u32 {sTmp}, {sWave}, 5")
    a(f"s_cmp_lt_u32 {sTmp}, 2")
    a("s_cbranch_scc1 K_S_WT56")
    if opt.get('tagmode',1)==1:
        a(f"s_cmp_eq_u32 {sWave}, 0")
        a("s_cbranch_scc1 K_S_WT0")
    if opt.get('tlb',0):
        a(f"s_cmp_eq_u32 {sWave}, 2")
        a("s_cbranch_scc1 K_S_WT2")
    a("s_waitcnt vmcnt(0)")
    a("s_branch K_S_WTD")
    if opt.get('tlb',0):
        a.label("K_S_WT2")
        a("s_waitcnt vmcnt(3)")
        a("s_branch K_S_WTD")
    if opt.get('tagmode',1)==1:
        a.label("K_S_WT0")
        a("s_waitcnt vmcnt(1)")
        a("s_branch K_S_WTD")
    a.label("K_S_WT4")
    a("s_waitcnt vmcnt(2)")
    a("s_branch K_S_WTD")
    a.label("K_S_WT56")
    a("s_waitcnt vmcnt(12)")
    a.label("K_S_WTD")
    def el6(u,r): a(f"v_add_u32 {r}, {128*(u>>1)+(u&1)}, {vT0}")
    def el7(u,r):
        if u<6: el6(u,r)
        else: a(f"v_add_u32 {r}, 3072, {vL}")
    a(f"s_cmp_lt_u32 {sLim}, {CH}")
    a("s_cbranch_scc1 K_S_APPM")
    a(f"s_cmp_eq_u32 {sWave}, 7")
    a("s_cbranch_scc1 K_S_APP7")
    bin_edges(6, el6, None, False)
    a("s_branch K_S_APPD")
    a.label("K_S_APP7")
    bin_edges(7, el7, None, False)
    a("s_branch K_S_APPD")
    a.label("K_S_APPM")
    a(f"s_cmp_eq_u32 {sWave}, 7")
    a("s_cbranch_scc1 K_S_APPM7")
    bin_edges(6, el6, None, True)
    a("s_branch K_S_APPD")
    a.label("K_S_APPM7")
    bin_edges(7, el7, None, True)
    a.label("K_S_APPD")
    if opt.get('tagmode',1)==1:
        a.c("workgroup 0 publishes this launch's hand-off tag: a scramble of the entry value of its flag slot (never zero)")
        a(f"s_or_b32 {sTmp}, s2, {sWave}")
        a(f"s_cmp_lg_u32 {sTmp}, 0")
        a("s_cbranch_scc1 K_S_NOTAG")
        a("s_waitcnt vmcnt(0)")
        a(f"s_mov_b32 {sTmp}, 0x9e3779b1")
        a(f"v_mul_lo_u32 {vT1}, {aL0}, {sTmp}")
        a(f"v_add_u32 {vT1}, 0x7f4a7c15, {vT1}")
        a(f"v_max_u32 {vT1}, 1, {vT1}")
        a(f"buffer_store_dword {vT1}, {vZ[0]}, {sT4c}, 0 offen sc1")
        a(f"buffer_store_dword {vT1}, {vZ[0]}, {sT4c}, 0 offen offset:128 sc1")
        a.label("K_S_NOTAG")
    def tag_fetch():
        a.c("wave 0 fetches the hand-off tag (one of its two copies); it is needed when the cell stores have left")
        a(f"s_and_b32 {sTagOff}, s2, 1")
        a(f"s_lshl_b32 {sTagOff}, {sTagOff}, 7")
        a(f"s_cmp_lg_u32 {sWave}, 0")
        a("s_cbranch_scc1 K_S_NOTAG1")
        a(f"buffer_load_dword {aE}, {vZ[0]}, {sT4c}, {sTagOff} offen sc1")
        a.label("K_S_NOTAG1")
    if opt.get('tagmode',1)==0: tag_fetch()
    load_hwin()
    def raww():
        a.c("waves 4, 7: raw w_e -> LDS (needed after barrier C); wave 4 rebuilds the descriptor it lent to the w_h warm-up")
        a(f"s_lshl_b32 {sTmp}, 1, {sWave}")
        a(f"s_and_b32 {sTmp}, {sTmp}, 0x90")
        a("s_cbranch_scc0 K_S_NORAW")
        a("s_load_dwordx2 s[100:101], s[0:1], 40")
        a(f"s_cmp_eq_u32 {sWave}, 7")
        a(f"s_cselect_b32 {sTmp3}, {10*1024}, 0")
        a("s_waitcnt lgkmcnt(0)")
        srd(a,sT4b,"s100","s101",145*128)
        for i in range(10):
            a(f"s_add_u32 {sTmp2}, {sTmp3}, {i*1024}")
            if i==9: a(f"s_min_u32 {sTmp2}, {sTmp2}, {18*1024}")
            a(f"s_add_u32 {sTmp}, {sTmp2}, {L_RAWW}")
            a(f"s_mov_b32 m0, {sTmp}")
            a("s_nop 0")
            a(f"buffer_load_dwordx4 {vL16}, {sT4b}, {sTmp2} offen lds")
        a.label("K_S_NORAW")
    if not opt.get('rawlate',0): raww()
    a("s_waitcnt lgkmcnt(0)")
    stamp(a,opt,14) if not opt.get('dbgfill',0) else None
    a("s_barrier")
    stamp(a,opt,2)
    def setup_static():
        a(f"v_and_b32 {vT1}, 31, {vL}")
        a(f"v_lshrrev_b32 {vT2}, 5, {vL}")
        a(f"v_lshlrev_b32 {vT0}, 3, {vT2}")
        a(f"v_sub_u32 {vT0}, {vT1}, {vT0}")
        a(f"v_mov_b32 {AD[2]}, 0x3f80")
        a(f"v_mov_b32 {AD[3]}, 0x3f800000")
        for sp in range(2):
            for r in range(4):
                k0=16*sp+2*r
                a(f"v_cmp_eq_u32 vcc, {k0}, {vT0}")
                a(f"v_cmp_eq_u32 {sSave}, {k0+1}, {vT0}")
                a("s_nop 0")
                a(f"v_cndmask_b32 {ID[4*sp+r]}, {vZ[0]}, {AD[2]}, vcc")
                a(f"v_cndmask_b32 {ID[4*sp+r]}, {ID[4*sp+r]}, {AD[3]}, {sSave}")
        a(f"v_cmp_lt_u32 vcc, 31, {vL}")
        a("s_nop 1")
        for i in range(1,4): a(f"v_mov_b32 {ONE[i]}, 0")
        a(f"v_cndmask_b32 {ONE[0]}, {AD[2]}, {vZ[0]}, vcc")
        for i in range(3):
            a(f"v_mov_b32 {PS[i]}, 0"); a(f"v_mov_b32 {PD[i]}, 0")
        a.c("static per-lane addresses of the main loop (window offsets are added after the assignment)")
        a(f"v_and_b32 {vT1}, 31, {vL}")
        a(f"v_lshrrev_b32 {vT2}, 5, {vL}")
        a(f"v_mov_b32 {vT3}, {L_A2}")
        a(f"v_lshl_add_u32 {vE64}, {vT1}, 6, {vT3}")
        a(f"v_bfe_u32 {vT0}, {vL}, 2, 2")
        a(f"v_lshl_add_u32 {vT0}, {vT2}, 2, {vT0}")
        a(f"v_lshl_add_u32 {vTR}, {vT0}, 6, {vT3}")
        a(f"v_bfe_u32 {vT0}, {vL}, 4, 1")
        a(f"v_lshl_add_u32 {vTR}, {vT0}, 5, {vTR}")
        a(f"v_and_b32 {vT0}, 3, {vL}")
        a(f"v_lshl_add_u32 {vTR}, {vT0}, 3, {vTR}")
        a(f"s_lshl_b32 {sHST}, {sWave}, 12")
        a(f"s_add_u32 {sHST}, {sHST}, {L_HST}")
        for i in range(4): a(f"s_add_u32 {sM0[i]}, {sHST}, {1024*i}")
        a(f"v_and_b32 {vT0}, 3, {vT1}")
        a(f"v_bfe_u32 {vT3}, {vT1}, 4, 1")
        a(f"v_lshl_or_b32 {vT3}, {vT3}, 2, {vT0}")
        a(f"v_lshlrev_b32 {vT0}, 3, {vT0}")
        a(f"v_lshrrev_b32 {vJ}, 2, {vT1}")
        a(f"v_add_u32 {vT0}, {vT0}, {vJ}")
        a(f"v_lshl_add_u32 {vT0}, {vT0}, 7, {sHST}")
        for s_ in range(4):
            a(f"v_add_u32 {vJ}, {2*s_}, {vT2}")
            a(f"v_xor_b32 {vJ}, {vJ}, {vT3}")
            a(f"v_lshl_add_u32 {vHA[s_]}, {vJ}, 4, {vT0}")
        a(f"v_and_b32 {vT0}, 7, {vL}")
        a(f"v_lshlrev_b32 {vT3}, 2, {vT2}")
        a(f"v_xor_b32 {vT0}, {vT0}, {vT3}")
        for i in range(4):
            a(f"v_xor_b32 {vJ}, {i}, {vT0}")
            a(f"v_lshlrev_b32 {vKD[i]}, 4, {vJ}")
        a(f"s_mov_b32 {sCAP}, {CAP}")
        a(f"s_sub_u32 {sTgt}, 11, {sWave}")
        a(f"s_cmp_lt_u32 {sWave}, 4")
        a(f"s_cselect_b32 {sTgt}, {sWave}, {sTgt}")
        a(f"v_lshrrev_b32 {aPS}, 3, {vL}")
        a(f"v_and_b32 {aPD}, 7, {vL}")
        a(f"v_lshlrev_b32 {aOH}, 2, {aPS}")
        a(f"v_lshlrev_b32 {SS}, 2, {aPD}")
    a(f"s_cmp_gt_u32 {sWave}, 3")
    a("s_cbranch_scc1 K_S_NOCOPY")
    a.c("waves 0..3 copy the cell image out: eight 16 B pieces per thread")
    a(f"v_lshlrev_b32 {vT0}, 4, v0")
    a(f"v_add_u32 {vT0}, {L_HST}, {vT0}")
    a(f"v_lshrrev_b32 {vT1}, 3, v0")
    a(f"v_lshlrev_b32 {vT2}, 2, {vT1}")
    CP=[D1[4*k:4*k+4] for k in range(8)]
    for k in range(4):
        a(f"ds_read_b128 {CP[k]}, {vT0} offset:{4096*k}")
        a(f"ds_read_b32 {D2[k]}, {vT2} offset:{L_RES+128*k}")
    a(f"v_and_b32 {vT3}, 7, v0")
    a(f"v_cmp_eq_u32 vcc, 0, {vT3}")
    a(f"v_mov_b32 {vJ}, -1")
    CT=opt.get('ctrans',0)
    a(f"v_lshlrev_b32 {vT1}, {7 if CT else 15}, {vT1}")
    a(f"v_cndmask_b32_e64 {AD[1]}, -1, -2, vcc")
    a(f"v_lshl_add_u32 {vT1}, {vT3}, 4, {vT1}")
    a(f"s_lshl_b32 {sTmp}, s2, {15 if CT else 7}")
    for k in range(8):
        if k<4:
            a(f"ds_read_b128 {CP[k+4]}, {vT0} offset:{4096*(k+4)}")
            a(f"ds_read_b32 {D2[k+4]}, {vT2} offset:{L_RES+128*(k+4)}")
            a("s_waitcnt lgkmcnt(8)")
        else:
            a(f"s_waitcnt lgkmcnt({2*(7-k)})")
        a(f"v_cmp_lt_u32 vcc, 32, {D2[k]}")
        a(f"s_add_u32 {sTmp2}, {sTmp}, {k*32*(128 if CT else 32768)}")
        a("s_nop 0")
        a(f"v_cndmask_b32 {CP[k][0]}, {CP[k][0]}, {AD[1]}, vcc")
        for i in range(1,4): a(f"v_cndmask_b32 {CP[k][i]}, {CP[k][i]}, {vJ}, vcc")
        a(f"buffer_store_dwordx4 {CP[k]}, {vT1}, {sW}, {sTmp2} offen{ST}")
    if opt.get('tagmode',1)==1: tag_fetch()
    a("s_branch K_S_STATIC")
    a.label("K_S_NOCOPY")
    a(f"s_sub_u32 {sTmp}, {sWave}, 5")
    a(f"s_cmp_lt_u32 {sTmp}, 2")
    a("s_cbranch_scc0 K_S_POS")
    a.c("waves 5,6: source-node table B' = -log2e * h @ W2 for 32 nodes")
    a(f"v_add_u32 {vT0}, {sC}, {vTRW}")
    a("s_waitcnt vmcnt(4)")
    for s_ in range(4):
        for x in range(2):
            for th in range(2):
                r=(s_*2+x)*4+2*th
                a(f"ds_read_b64_tr_b16 {D1[r:r+2]}, {vT0} offset:{s_*2048+th*512+x*64}")
    a("s_waitcnt lgkmcnt(0)")
    for x in range(2):
        for s_ in range(4):
            r=(s_*2+x)*4
            mfma(a,D2[16*x:16*x+16],D1[r:r+4],HA[4*s_:4*s_+4],"0" if s_==0 else D2[16*x:16*x+16])
    a(f"s_mul_i32 {sTmp}, {sI}, {32*144}")
    a(f"s_add_u32 {sTmp}, {sTmp}, {L_BST}")
    a(f"v_and_b32 {vT1}, 31, {vL}")
    a(f"v_mul_u32_u24 {vT1}, 144, {vT1}")
    a(f"v_lshrrev_b32 {vT2}, 5, {vL}")
    a(f"v_lshl_add_u32 {vT1}, {vT2}, 3, {vT1}")
    a(f"v_add_u32 {vT1}, {sTmp}, {vT1}")
    a(f"v_lshrrev_b32 {vT2}, 3, {vL}")
    a(f"v_mul_u32_u24 {vT3}, 144, {vT2}")
    a(f"v_and_b32 {vJ}, 7, {vL}")
    a(f"v_lshl_add_u32 {vT3}, {vJ}, 4, {vT3}")
    a(f"v_add_u32 {vT3}, {sTmp}, {vT3}")
    a(f"s_mov_b32 {sTmp2}, {NEG_LOG2E}")
    a.nop(4)
    for x in range(2):
        for q in range(16): a(f"v_mul_f32 {D2[16*x+q]}, {sTmp2}, {D2[16*x+q]}")
        for qq in range(4):
            b=16*x+4*qq
            a(f"v_cvt_pk_bf16_f32 {E01[0]}, {D2[b]}, {D2[b+1]}")
            a(f"v_cvt_pk_bf16_f32 {E01[1]}, {D2[b+2]}, {D2[b+3]}")
            a(f"ds_write_b64 {vT1}, {E01} offset:{x*64+qq*16}")
            a("s_nop 0")
    for i in range(4): a(f"ds_read_b128 {D1[4*i:4*i+4]}, {vT3} offset:{i*8*144}")
    a(f"s_lshl_b32 {sTmp2}, {sI}, 5")
    a(f"v_add_u32 {vT2}, {sTmp2}, {vT2}")
    a(f"s_mul_i32 {sTmp}, s2, {NPW}")
    a(f"v_add_u32 {vT0}, {sTmp}, {vT2}")
    a(f"v_lshlrev_b32 {vT1}, 7, {vT0}")
    a(f"v_lshl_add_u32 {vT1}, {vJ}, 4, {vT1}")
    a(f"v_mov_b32 {vJ}, 0x40000000")
    a("s_waitcnt lgkmcnt(0)")
    for i in range(4):
        a(f"v_add_u32 {vT3}, {8*i}, {vT2}")
        a(f"v_cmp_gt_u32 vcc, {NPW}, {vT3}")
        a(f"v_add_u32 {AD[0]}, {1024*i}, {vT1}")
        a("s_nop 0")
        a(f"v_cndmask_b32 {AD[0]}, {vJ}, {AD[0]}, vcc")
        a(f"buffer_store_dwordx4 {D1[4*i:4*i+4]}, {AD[0]}, {sB}, 0 offen{ST}")
    a("s_waitcnt vmcnt(4)")
    a("s_branch K_S_STATIC")
    a.label("K_S_POS")
    if opt.get('rawlate',0): raww()
    a.label("K_S_STATIC")
    setup_static()
    a.c("waves 0..3: every cell store has left; waves 4, 7: raw w_e / window rows landed; waves 5, 6 signal their rows later")
    a(f"s_sub_u32 {sTmp}, {sWave}, 5")
    a(f"s_cmp_lt_u32 {sTmp}, 2")
    a("s_cbranch_scc1 K_S_PREC")
    a("s_waitcnt vmcnt(0)")
    def have_tag(lbl):
        a(f"s_mov_b32 {sPoll}, 0")
        a.label(lbl)
        if opt.get('tagmode',1)==0:
            a(f"v_readfirstlane_b32 {sNonce}, {aE}")
            a("s_memrealtime s[100:101]")
            a("s_waitcnt lgkmcnt(0)")
            a(f"s_sub_u32 {sTmp}, s100, {sNonce}")
            a(f"s_add_u32 {sTmp}, {sTmp}, 1")
            a(f"s_cmp_lt_u32 {sTmp}, 2500")
            a(f"s_cselect_b32 {sTmp}, {sNonce}, 0")
            a(f"s_cmp_lg_u32 {sTmp}, 0")
            a(f"s_cbranch_scc1 {lbl}_OK")
        else:
            a(f"v_readfirstlane_b32 {sNonce}, {aE}")
            a(f"v_readfirstlane_b32 {sTmp2}, {aL0}")
            a("s_nop 3")
            a(f"s_cmp_lg_u32 {sNonce}, {sTmp2}")
            a(f"s_cselect_b32 {sTmp}, {sNonce}, 0")
            a(f"s_cmp_lg_u32 {sTmp}, 0")
            a(f"s_cbranch_scc1 {lbl}_OK")
        a(f"s_add_u32 {sPoll}, {sPoll}, 1")
        a(f"s_cmp_gt_u32 {sPoll}, 200000")
        a(f"s_cbranch_scc1 {lbl}_OK")
        a(f"s_cmp_gt_u32 {sPoll}, 1000")
        a(f"s_cselect_b32 {sTmp}, {sNonce}, 0")
        a(f"s_cmp_lg_u32 {sTmp}, 0")
        a(f"s_cbranch_scc1 {lbl}_OK")
        if opt.get('tagmode',1)==0: a("s_sleep 2")
        a(f"buffer_load_dword {aE}, {vZ[0]}, {sT4c}, {sTagOff} offen sc1")
        a("s_waitcnt vmcnt(0)")
        a(f"s_branch {lbl}")
        a.label(f"{lbl}_OK")
    a(f"s_cmp_lg_u32 {sWave}, 0")
    a("s_cbranch_scc1 K_S_PREC")
    have_tag("K_G_TAG")
    a(f"v_mov_b32 {vT0}, {sNonce}")
    a(f"ds_write_b32 {vZ[0]}, {vT0} offset:{L_NRES+8}")
    a.label("K_S_PREC")
    a("s_waitcnt lgkmcnt(0)")
    stamp(a,opt,15) if not opt.get('dbgfill',0) else None
    a("s_barrier")
    stamp(a,opt,3)
    a(f"s_cmp_lg_u32 {sWave}, 0")
    a("s_cbranch_scc1 K_G_NOT0")
    a.c("wave 0: signal this workgroup's cells")
    a(f"s_lshl_b32 {sTmp}, s2, 4")
    a(f"s_add_u32 {sTmp}, {sTmp}, {FLG}")
    a(f"v_mov_b32 {vT0}, {sNonce}")
    a(f"buffer_store_dword {vT0}, {vZ[0]}, {sW}, {sTmp} offen sc1")
    a("s_branch K_G_SETUP")
    a.label("K_G_NOT0")
    a(f"s_cmp_lt_u32 {sWave}, 4")
    a("s_cbranch_scc1 K_G_WH")
    a(f"s_sub_u32 {sTmp}, {sWave}, 5")
    a(f"s_cmp_lt_u32 {sTmp}, 2")
    a("s_cbranch_scc1 K_G_SETUP")
    a.c("waves 4, 7: pos table -> LDS (37 pieces each)")
    a(f"s_cmp_eq_u32 {sWave}, 7")
    a(f"s_cselect_b32 {sI}, {37*1024}, 0")
    for i in range(37):
        a(f"s_add_u32 {sTmp}, {sI}, {i*1024}")
        a(f"s_add_u32 {sTmp2}, {sTmp}, {L_POS}")
        a(f"s_mov_b32 m0, {sTmp2}")
        a("s_nop 0")
        a(f"buffer_load_dwordx4 {vL16}, {sP}, {sTmp} offen lds")
    a("s_branch K_G_SETUP")
    a.label("K_G_WH")
    a.c("waves 1..3: raw w_h -> staging area")
    a("s_load_dwordx2 s[64:65], s[0:1], 56")
    a(f"s_sub_u32 {sI}, {sWave}, 1")
    a("s_waitcnt lgkmcnt(0)")
    srd(a,sT4b,"s64","s65",128*128)
    for k in range(6):
        a(f"s_add_u32 {sTmp}, {sI}, {3*k}")
        a(f"s_min_u32 {sTmp}, {sTmp}, 15")
        a(f"s_lshl_b32 {sTmp}, {sTmp}, 10")
        a(f"s_add_u32 {sTmp2}, {sTmp}, {L_HST}")
        a(f"s_mov_b32 m0, {sTmp2}")
        a("s_nop 0")
        a(f"buffer_load_dwordx4 {vL16}, {sT4b}, {sTmp} offen lds")
    a.label("K_G_SETUP")
    a.c("operands from raw w_e: W1 (for A'), W4', wd'")
    W1=D2
    a(f"v_add_u32 {vT0}, {L_RAWW}, {vTRW}")
    for s_ in range(4):
        for x in range(2):
            for th in range(2):
                r=(s_*2+x)*4+2*th
                a(f"ds_read_b64_tr_b16 {W1[r:r+2]}, {vT0} offset:{s_*2048+th*512+x*64}")
    W4R=HA[0:8]
    for x in range(2):
        for th in range(2):
            a(f"ds_read_b64_tr_b16 {W4R[4*x+2*th:4*x+2*th+2]}, {vT0} offset:{129*128+th*512+x*64}")
    WD=M[0:2]
    a(f"v_mov_b32 {WD[0]}, 0")
    a(f"v_mov_b32 {WD[1]}, 0")
    a(f"v_and_b32 {vT1}, 31, {vL}")
    a(f"v_lshlrev_b32 {vT2}, 1, {vT1}")
    a(f"v_add_u32 {vT2}, {L_RAWW+128*128}, {vT2}")
    a(f"ds_read_u16_d16_hi {WD[0]}, {vT2}")
    a(f"ds_read_u16_d16_hi {WD[1]}, {vT2} offset:64")
    a("s_waitcnt lgkmcnt(0)")
    for x in range(2):
        for s_ in range(4):
            mfma(a,D1[16*x:16*x+16],HW[4*s_:4*s_+4],W1[(s_*2+x)*4:(s_*2+x)*4+4],"0" if s_==0 else D1[16*x:16*x+16])
    a(f"s_mov_b32 {sTmp}, {NEG_LOG2E}")
    for i in range(8):
        a(f"v_lshlrev_b32 {vT0}, 16, {W4R[i]}")
        a(f"v_and_b32 {vT2}, 0xffff0000, {W4R[i]}")
        a(f"v_mul_f32 {vT0}, {sTmp}, {vT0}")
        a(f"v_mul_f32 {vT2}, {sTmp}, {vT2}")
        a(f"v_cvt_pk_bf16_f32 {WE[i]}, {vT0}, {vT2}")
    a(f"v_cmp_lt_u32 vcc, 31, {vL}")
    for x in range(2):
        a(f"v_mul_f32 {WD[x]}, {sTmp}, {WD[x]}")
        a(f"v_cvt_pk_bf16_f32 {vT0}, {WD[x]}, {WD[x]}")
        a(f"v_and_b32 {vT0}, 0xffff0000, {vT0}")
        a(f"v_sub_f32 {vT2}, {WD[x]}, {vT0}")
        a(f"v_cvt_pk_bf16_f32 {vT2}, {vT2}, {vT2}")
        a(f"v_and_b32 {vT2}, 0xffff0000, {vT2}")
        a(f"v_cndmask_b32 {WD[x]}, {vT0}, {vT2}, vcc")
    a(f"s_cmp_lg_u32 {sWave}, 0")
    a("s_cbranch_scc1 K_G_NOEARLY")
    def poll_loads():
        a(f"s_mov_b32 {sTmp2}, {FLG}")
        for k in range(4): a(f"buffer_load_dword {(T[k] if opt.get('ppoll',0) else AD[k])}, {vL16}, {sW}, {sTmp2} offen offset:{1024*k} sc1")
        if opt.get('hpf',0):
            for hh in range(2):
                a(f"s_mov_b32 {sTmp2}, {FLG2+4096*hh}")
                for k in range(4): a(f"buffer_load_dword {A2R[4*hh+k]}, {vL16}, {sW}, {sTmp2} offen offset:{1024*k} sc1")
    poll_loads()
    a.label("K_G_NOEARLY")
    a(f"v_cmp_lt_u32 vcc, 31, {vL}")
    a(f"v_mov_b32 {vJ}, 0xffff")
    for x in range(2):
        for r in range(4):
            q0,q1=D1[16*x+2*r],D1[16*x+2*r+1]
            a(f"v_mul_f32 {q0}, {sTmp}, {q0}")
            a(f"v_mul_f32 {q1}, {sTmp}, {q1}")
            a(f"v_cvt_pk_bf16_f32 {vT0}, {q0}, {q1}")
            a(f"v_lshlrev_b32 {vT1}, 16, {vT0}")
            a(f"v_and_b32 {vT2}, 0xffff0000, {vT0}")
            a(f"v_sub_f32 {vT1}, {q0}, {vT1}")
            a(f"v_sub_f32 {vT2}, {q1}, {vT2}")
            a(f"v_cvt_pk_bf16_f32 {vT1}, {vT1}, {vT2}")
            a(f"v_cndmask_b32 {WA[4*x+r]}, {vT0}, {vT1}, vcc")
        a(f"v_bfi_b32 {WA[4*x+3]}, {vJ}, {WA[4*x+3]}, {WD[x]}")
    a(f"s_lshl_b32 {sTmp}, {sWave}, 11")
    a(f"s_add_u32 {sTmp}, {sTmp}, {L_A2}")
    a(f"v_lshl_add_u32 {vT0}, {vL}, 5, {sTmp}")
    a(f"ds_write_b128 {vT0}, {WA[0:4]}")
    a(f"ds_write_b128 {vT0}, {WA[4:8]} offset:16")
    for i in range(32): a(f"v_mov_b32 {D2[i]}, 0")
    a(f"s_sub_u32 {sTmp}, {sWave}, 5")
    a(f"s_cmp_lt_u32 {sTmp}, 2")
    a("s_cbranch_scc0 K_G_NOFLG2")
    a.c("waves 5,6: their rows have left -> signal them")
    a(f"ds_read_b32 {aE}, {vZ[0]} offset:{L_NRES+8}")
    a("s_waitcnt vmcnt(0) lgkmcnt(0)")
    a(f"v_readfirstlane_b32 {sNonce}, {aE}")
    a("s_nop 3")
    a(f"s_lshl_b32 {sTmp}, s2, 1")
    a(f"s_add_u32 {sTmp}, {sTmp}, {sWave}")
    a(f"s_sub_u32 {sTmp}, {sTmp}, 5")
    a(f"s_lshl_b32 {sTmp}, {sTmp}, 4")
    a(f"s_add_u32 {sTmp}, {sTmp}, {FLG2}")
    a(f"v_mov_b32 {vT0}, {sNonce}")
    a(f"buffer_store_dword {vT0}, {vZ[0]}, {sW}, {sTmp} offen sc1")
    a.label("K_G_NOFLG2")
    a(f"s_cmp_lg_u32 {sWave}, 0")
    a("s_cbranch_scc1 K_G_WAIT")
    if not opt.get('ppoll',0):
        a.c("wave 0: wait for all hand-offs (the first round of flag loads is already in flight)")
        a("s_branch K_G_POLL1")
        a.label("K_G_POLL")
        poll_loads()
        a.label("K_G_POLL1")
        a("s_waitcnt vmcnt(0)")
        PF=[AD[k] for k in range(4)]+([A2R[k] for k in range(8)] if opt.get('hpf',0) else [])
        a(f"v_cmp_eq_u32 {sAny}, {sNonce}, {PF[0]}")
        for r_ in PF[1:]:
            a(f"v_cmp_eq_u32 vcc, {sNonce}, {r_}")
            a("s_nop 1")
            a(f"s_and_b64 {sAny}, {sAny}, vcc")
        a(f"s_cmp_eq_u64 {sAny}, -1")
        a("s_cbranch_scc1 K_G_WAIT")
        a(f"s_add_u32 {sPoll}, {sPoll}, 1")
        a(f"s_cmp_lt_u32 {sPoll}, 200000")
        a("s_cbranch_scc1 K_G_POLL")
    else:
        a.c("wave 0: wait for all hand-offs; two rounds of flag loads are kept in flight")
        def pl(regs):
            for k in range(4): a(f"buffer_load_dword {regs[k]}, {vL16}, {sW}, {sI} offen offset:{1024*k} sc1")
        def chk(regs):
            a(f"v_cmp_eq_u32 {sAny}, {sNonce}, {regs[0]}")
            for r_ in regs[1:]:
                a(f"v_cmp_eq_u32 vcc, {sNonce}, {r_}")
                a("s_nop 1")
                a(f"s_and_b64 {sAny}, {sAny}, vcc")
            a(f"s_cmp_eq_u64 {sAny}, -1")
            a("s_cbranch_scc1 K_G_SEEN")
        SA=[T[k] for k in range(4)]; SB=[T[4+k] for k in range(4)]
        a(f"s_mov_b32 {sI}, {FLG}")
        a.label("K_G_POLL")
        pl(SB)
        a("s_waitcnt vmcnt(4)")
        chk(SA)
        pl(SA)
        a("s_waitcnt vmcnt(4)")
        chk(SB)
        a(f"s_add_u32 {sPoll}, {sPoll}, 1")
        a(f"s_cmp_lt_u32 {sPoll}, 100000")
        a("s_cbranch_scc1 K_G_POLL")
        a.label("K_G_SEEN")
        a("s_waitcnt lgkmcnt(0)")
        a("s_branch K_G_GO")
    a.label("K_G_WAIT")
    a.c("waves 4 and 7 keep their pos pieces in flight: their cell loads return behind them")
    a(f"s_lshl_b32 {sTmp}, 1, {sWave}")
    a(f"s_and_b32 {sTmp}, {sTmp}, 0x90")
    a("s_cbranch_scc1 K_G_WAIT47")
    a("s_waitcnt vmcnt(0)")
    a.label("K_G_WAIT47")
    a("s_waitcnt lgkmcnt(0)")
    a.label("K_G_GO")
    for _ in range(opt.get('delay',0)): a("s_sleep 32")
    a("s_barrier")
    stamp(a,opt,4)
    RECP=D1[0:16]; REC=[RECP[2*i] for i in range(8)]+[RECP[2*i+1] for i in range(8)]; WAD=D1[16:32]; RK=HA
    a.c("cell records of this bin: pair s holds slots m and 16+m (m = l&15) of cell 32s+4v+(l>>4)")
    if not CT:
        a(f"s_lshl_b32 {sTmp}, s2, 15")
        a(f"s_lshl_b32 {sTmp2}, {sWave}, 9")
        a(f"s_add_u32 {sTmp}, {sTmp}, {sTmp2}")
        a(f"v_lshl_add_u32 {vT0}, {vL}, 3, {sTmp}")
    else:
        a(f"s_lshl_b32 {sTmp}, s2, 7")
        a(f"s_lshl_b32 {sTmp2}, {sWave}, 17")
        a(f"s_add_u32 {sTmp}, {sTmp}, {sTmp2}")
        a(f"v_lshrrev_b32 {vT0}, 4, {vL}")
        a(f"v_lshlrev_b32 {vT0}, 15, {vT0}")
        a(f"v_and_b32 {vT1}, 15, {vL}")
        a(f"v_lshl_add_u32 {vT0}, {vT1}, 3, {vT0}")
        a(f"v_add_u32 {vT0}, {sTmp}, {vT0}")
    ROT=opt.get('rot',0)
    if ROT==1: a(f"s_getreg_b32 {sRot}, hwreg(HW_REG_XCC_ID, 0, 4)")
    elif ROT==2: a(f"s_and_b32 {sRot}, s2, 7")
    elif ROT==3:
        a(f"s_getreg_b32 {sRot}, hwreg(HW_REG_XCC_ID, 0, 4)")
        a(f"s_and_b32 {sRot}, {sRot}, 3")
        a(f"s_lshl_b32 {sRot}, {sRot}, 1")
    else: a(f"s_mov_b32 {sRot}, 0")
    def pair_index(dst,s_):
        a(f"s_add_u32 {dst}, {sRot}, {s_}")
        a(f"s_and_b32 {dst}, {dst}, 7")
    for s_ in range(8):
        pair_index(sTmp,s_)
        a(f"s_lshl_b32 {sTmp}, {sTmp}, {20 if CT else 12}")
        a(f"buffer_load_dwordx2 {RECP[2*s_:2*s_+2]}, {vT0}, {sW}, {sTmp} offen{LD}")
    a(f"v_lshlrev_b32 {vT2}, 1, {vL}")
    a(f"v_and_b32 {vT2}, 62, {vT2}")
    a("s_load_dwordx2 s[98:99], s[0:1], 48")
    a.c("node-update weights (transposed reads of raw w_h), waves 0..3 use them")
    a(f"s_and_b32 {sTmp}, {sWave}, 1")
    a(f"s_lshl_b32 {sTmp}, {sTmp}, 6")
    a(f"s_add_u32 {sTmp}, {sTmp}, {L_HST}")
    a(f"v_add_u32 {vT1}, {sTmp}, {vTRW}")
    for s_ in range(8):
        for th in range(2):
            a(f"ds_read_b64_tr_b16 {WH[4*s_+2*th:4*s_+2*th+2]}, {vT1} offset:{s_*2048+th*512}")
            if (2*s_+th)==7: a("s_waitcnt lgkmcnt(0)")
    srd(a,sT4,"s98","s99",128)
    a(f"v_mov_b32 {WX[0]}, 0")
    a(f"v_mov_b32 {WX[1]}, 0")
    a(f"buffer_load_short_d16_hi {WX[0]}, {vT2}, {sT4}, 0 offen")
    a(f"buffer_load_short_d16_hi {WX[1]}, {vT2}, {sT4}, 0 offen offset:64")
    a("s_waitcnt vmcnt(2)")
    stamp(a,opt,5)
    a(f"s_mov_b64 {sAny}, 0")
    for s_ in range(16):
        a(f"v_cmp_gt_u32 {sMask[s_]}, {sMark}, {REC[s_]}")
        if s_<8:
            a(f"v_cmp_eq_u32 vcc, {sMark}, {REC[s_]}")
        a(f"v_lshrrev_b32 {WAD[s_]}, 27, {REC[s_]}")
        a(f"v_and_b32 {WAD[s_]}, 0x1c, {WAD[s_]}")
        if s_<8: a(f"s_or_b64 {sAny}, {sAny}, vcc")
    order=[x for p in range(8) for x in (p,8+p)]
    for n_,s_ in enumerate(order):
        a(f"s_mov_b64 exec, {sMask[s_]}")
        if s_>=8: a(f"s_cbranch_execz K2_A{s_}")
        a(f"ds_add_rtn_u32 {RK[s_]}, {WAD[s_]}, {vOne} offset:{L_CNT}")
        if s_>=8: a.label(f"K2_A{s_}")
        if n_==7:
            a("s_waitcnt lgkmcnt(4)")
    a("s_mov_b64 exec, -1")
    FL=A2R
    def flg2_loads():
        a(f"s_mov_b32 {sTmp2}, {FLG2}")
        for k in range(4): a(f"buffer_load_dword {FL[k]}, {vL16}, {sW}, {sTmp2} offen offset:{1024*k} sc1")
        a(f"s_mov_b32 {sTmp2}, {FLG2+4096}")
        for k in range(4): a(f"buffer_load_dword {FL[4+k]}, {vL16}, {sW}, {sTmp2} offen offset:{1024*k} sc1")
    a(f"s_cmp_lg_u32 {sWave}, {99 if opt.get('hpf',0) else 1}")
    a("s_cbranch_scc1 K2_NOF2A")
    a.c("wave 1: flags of the source-node table (checked before barrier 2)")
    flg2_loads()
    a(f"ds_read_b32 {aE}, {vZ[0]} offset:{L_NRES+8}")
    a.label("K2_NOF2A")
    a(f"s_lshl_b32 {sTmp}, {sWave}, 2")
    a(f"v_lshrrev_b32 {vT0}, 4, {vL}")
    a(f"v_add_u32 {vT0}, {sTmp}, {vT0}")
    a(f"v_mul_u32_u24 {vT0}, {CH}, {vT0}")
    NE=opt.get('epf',1)
    def epf_block():
        if NE:
            a.c("L2 warm-up of the e_attr lines of the first records (speed only; results are never read)")
            a(f"s_lshl_b32 {sTmp}, {sWave}, 2")
            a(f"v_lshrrev_b32 {vT0}, 4, {vL}")
            a(f"v_add_u32 {vT0}, {sTmp}, {vT0}")
            a(f"v_mul_u32_u24 {vT0}, {CH}, {vT0}")
            a(f"v_mov_b32 {vT2}, 0x2000000")
            RKF=opt.get('rkf',0)
            if RKF: a("s_waitcnt lgkmcnt(0)")
            for k in range(NE):
                a(f"v_cmp_gt_u32 vcc, {sMark}, {REC[k]}")
                if RKF:
                    a(f"v_cmp_gt_u32 {sSave}, {RKF}, {RK[k]}")
                a(f"v_and_b32 {vT1}, 0xfff, {REC[k]}")
                pair_index(sTmp,k)
                a(f"s_mul_i32 {sTmp}, {sTmp}, {32*CH}")
                if RKF: a(f"s_and_b64 vcc, vcc, {sSave}")
                a(f"v_add3_u32 {vT1}, {vT1}, {vT0}, {sTmp}")
                if opt.get('hpf',0): a(f"v_bfe_u32 {vT3}, {REC[k]}, 12, 14")
                else: a("s_nop 0")
                a(f"v_cndmask_b32 {vT1}, {vT2}, {vT1}, vcc")
                a(f"v_lshlrev_b32 {vT1}, 5, {vT1}")
                a(f"buffer_load_dword {vDUM}, {vT1}, {sE}, 0 offen")
                if opt.get('hpf',0):
                    a(f"v_cndmask_b32 {vT3}, {vT2}, {vT3}, vcc")
                    a(f"v_lshlrev_b32 {vT3}, 7, {vT3}")
                    a(f"buffer_load_dword {vDUM}, {vT3}, {sB}, 0 offen{HLD}")
    if opt.get('epfpos',1)==1:
        epf_block()
        a(f"s_lshl_b32 {sTmp}, {sWave}, 2")
        a(f"v_lshrrev_b32 {vT0}, 4, {vL}")
        a(f"v_add_u32 {vT0}, {sTmp}, {vT0}")
        a(f"v_mul_u32_u24 {vT0}, {CH}, {vT0}")
    a(f"v_mov_b32 {vT1}, {L_L0}")
    a(f"v_mov_b32 {vT2}, {L_L1}")
    a("s_waitcnt lgkmcnt(0)")
    for s_ in order:
        a(f"s_mov_b64 exec, {sMask[s_]}")
        if s_>=8: a(f"s_cbranch_execz K2_B{s_}")
        pair_index(sTmp,s_&7)
        a(f"s_mul_i32 {sTmp}, {sTmp}, {32*CH}")
        a(f"v_min_u32 {RK[s_]}, {CAPX-1}, {RK[s_]}")
        a(f"v_and_b32 {vT3}, 0xfff, {REC[s_]}")
        a(f"v_mad_u32_u24 {RK[s_]}, {WAD[s_]}, {sCAPq}, {RK[s_]}")
        a(f"v_add3_u32 {vT3}, {vT3}, {vT0}, {sTmp}")
        a(f"v_bfe_u32 {vJ}, {REC[s_]}, 26, 3")
        a(f"v_lshl_add_u32 {AD[0]}, {RK[s_]}, 2, {vT1}")
        a(f"v_lshl_or_b32 {vT3}, {vT3}, 5, {vJ}")
        a(f"v_lshl_add_u32 {AD[1]}, {RK[s_]}, 1, {vT2}")
        a(f"v_bfe_u32 {vJ}, {REC[s_]}, 12, 14")
        a(f"ds_write_b32 {AD[0]}, {vT3}")
        a(f"ds_write_b16 {AD[1]}, {vJ}")
        if s_>=8: a.label(f"K2_B{s_}")
    a("s_mov_b64 exec, -1")
    if opt.get('epfpos',1)==0: epf_block()
    a.c("overflowed cells -> rescan list (rare)")
    a(f"s_cmp_eq_u64 {sAny}, 0")
    a("s_cbranch_scc1 K2_NOMARK")
    a(f"v_lshrrev_b32 {vT0}, 4, {vL}")
    a(f"s_lshl_b32 {sTmp}, {sWave}, 2")
    a(f"v_add_u32 {vT0}, {sTmp}, {vT0}")
    a(f"v_mov_b32 {vT1}, {L_NRES}")
    for s_ in range(8):
        a(f"v_cmp_eq_u32 vcc, {sMark}, {REC[s_]}")
        a(f"s_and_saveexec_b64 {sSave}, vcc")
        a(f"s_cbranch_execz K2_MK{s_}")
        a(f"ds_add_rtn_u32 {vT2}, {vT1}, {vOne}")
        pair_index(sTmp,s_)
        a(f"s_lshl_b32 {sTmp}, {sTmp}, 5")
        a(f"v_add_u32 {vT3}, {sTmp}, {vT0}")
        a("s_waitcnt lgkmcnt(0)")
        a(f"v_lshlrev_b32 {vT2}, 2, {vT2}")
        a(f"ds_write_b32 {vT2}, {vT3} offset:{L_RES}")
        a.label(f"K2_MK{s_}")
        a(f"s_mov_b64 exec, {sSave}")
    a.label("K2_NOMARK")
    a("s_load_dwordx2 s[64:65], s[0:1], 0")
    a(f"s_waitcnt vmcnt({opt.get('epf',1)*(2 if opt.get('hpf',0) else 1)}) lgkmcnt(0)")
    a(f"s_cmp_lg_u32 {sWave}, {99 if opt.get('hpf',0) else 1}")
    a("s_cbranch_scc1 K2_NOF2B")
    a(f"v_readfirstlane_b32 {sNonce}, {aE}")
    a(f"s_mov_b32 {sPoll}, 0")
    a("s_nop 1")
    a.label("K2_F2CHK")
    a(f"v_cmp_eq_u32 {sAny}, {sNonce}, {FL[0]}")
    for k in range(1,8):
        a(f"v_cmp_eq_u32 vcc, {sNonce}, {FL[k]}")
        a("s_nop 1")
        a(f"s_and_b64 {sAny}, {sAny}, vcc")
    a(f"s_cmp_eq_u64 {sAny}, -1")
    a("s_cbranch_scc1 K2_NOF2B")
    a(f"s_add_u32 {sPoll}, {sPoll}, 1")
    a(f"s_cmp_gt_u32 {sPoll}, 200000")
    a("s_cbranch_scc1 K2_NOF2B")
    flg2_loads()
    a("s_waitcnt vmcnt(0)")
    a("s_branch K2_F2CHK")
    a.label("K2_NOF2B")
    srd(a,sHs,"s64","s65",N*128)
    a(f"s_mov_b32 {sTmp}, {NEG_LN2}")
    a(f"v_mul_f32 {WX[0]}, {sTmp}, {WX[0]}")
    a(f"v_mul_f32 {WX[1]}, {sTmp}, {WX[1]}")
    stamp(a,opt,6)
    a("s_barrier")
    stamp(a,opt,7)
    a.c("window sizes (lane = pair i,k) and the rescan count")
    a(f"v_mov_b32 {vT0}, {L_NRES}")
    a(f"ds_read_b32 {vT1}, {vT0}")
    a(f"ds_read_b32 {vT2}, {aOH} offset:{L_CNT}")
    a(f"ds_read_b32 {vT3}, {SS} offset:{L_CNT}")
    a("s_waitcnt lgkmcnt(0)")
    a(f"v_readfirstlane_b32 {sNR}, {vT1}")
    a(f"v_min_u32 {vT0}, 0xffffff, {vT2}")
    a(f"v_min_u32 {vJ}, 0xffffff, {vT3}")
    a(f"s_cmp_eq_u32 {sNR}, 0")
    a("s_cbranch_scc1 K2_CHECK")
    a(f"s_min_u32 {sNR}, {sNR}, 256")
    a(f"s_mov_b32 {sI}, 0")
    a.label("K2_RESCAN_I")
    a(f"s_lshl_b32 {sTmp}, {sI}, 2")
    a(f"s_add_u32 {sTmp}, {sTmp}, {L_RES}")
    a(f"v_mov_b32 {vT0}, {sTmp}")
    a(f"ds_read_b32 {vT1}, {vT0}")
    a("s_waitcnt lgkmcnt(0)")
    a(f"v_readfirstlane_b32 {sWsrc}, {vT1}")
    a("s_nop 3")
    a(f"s_min_u32 {sWsrc}, {sWsrc}, 255")
    a(f"s_mov_b32 {sC}, 0")
    a.label("K2_RESCAN_C")
    def append_raw(lim_local):
        a(f"v_lshlrev_b32 {vT1}, 2, {vT0}")
        a(f"buffer_load_dword {AD[0]}, {vT1}, {sD}, 0 offen")
        a(f"buffer_load_dword {AD[1]}, {vT1}, {sS}, 0 offen")
        a("s_waitcnt vmcnt(0)")
        a(f"v_mul_hi_u32 {vT2}, {AD[0]}, {sK}")
        a(f"v_lshrrev_b32 {vT3}, 3, {vT2}")
        a(f"v_cmp_eq_u32 vcc, s2, {vT3}")
        a("s_nop 1")
        a(f"s_and_b64 vcc, vcc, {sAny}")
        a(f"s_and_saveexec_b64 {sSave}, vcc")
        a(f"s_cbranch_execz {lim_local}")
        a(f"v_mad_u32_u24 {vT3}, {vT2}, {s3125}, {v511}")
        a(f"v_and_b32 {vT2}, 7, {vT2}")
        a(f"v_lshrrev_b32 {vT3}, 9, {vT3}")
        a(f"v_lshlrev_b32 {vT2}, 2, {vT2}")
        a(f"v_sub_u32 {vT3}, {AD[0]}, {vT3}")
        a(f"ds_add_rtn_u32 {AD[2]}, {vT2}, {vOne} offset:{L_CNT}")
        a(f"v_lshl_or_b32 {vT0}, {vT0}, 5, {vT3}")
        a("s_waitcnt lgkmcnt(0)")
        a(f"v_min_u32 {AD[2]}, {CAPX-1}, {AD[2]}")
        a(f"v_mad_u32_u24 {AD[2]}, {vT2}, {sCAPq}, {AD[2]}")
        a(f"v_mov_b32 {vT2}, {L_L0}")
        a(f"v_mov_b32 {vT3}, {L_L1}")
        a(f"v_lshl_add_u32 {vT2}, {AD[2]}, 2, {vT2}")
        a(f"v_lshl_add_u32 {vT3}, {AD[2]}, 1, {vT3}")
        a(f"ds_write_b32 {vT2}, {vT0}")
        a(f"ds_write_b16 {vT3}, {AD[1]}")
        a.label(lim_local)
        a(f"s_mov_b64 exec, {sSave}")
    a(f"s_lshl_b32 {sTmp}, {sC}, 9")
    a(f"v_add_u32 {vT1}, {sTmp}, v0")
    a(f"s_mul_i32 {sTmp2}, {sWsrc}, {CH}")
    a(f"v_add_u32 {vT0}, {sTmp2}, {vT1}")
    a(f"v_cmp_gt_u32 vcc, {CH}, {vT1}")
    a(f"s_mov_b32 {sTmp}, {E}")
    a(f"v_cmp_gt_u32 {sAny}, {sTmp}, {vT0}")
    a("s_nop 1")
    a(f"s_and_b64 {sAny}, {sAny}, vcc")
    append_raw("K2_RA1")
    a(f"s_add_u32 {sC}, {sC}, 1")
    a(f"s_cmp_lt_u32 {sC}, 7")
    a("s_cbranch_scc1 K2_RESCAN_C")
    a(f"s_add_u32 {sI}, {sI}, 1")
    a(f"s_cmp_lt_u32 {sI}, {sNR}")
    a("s_cbranch_scc1 K2_RESCAN_I")
    a("s_waitcnt lgkmcnt(0)")
    a("s_barrier")
    a(f"ds_read_b32 {vT2}, {aOH} offset:{L_CNT}")
    a(f"ds_read_b32 {vT3}, {SS} offset:{L_CNT}")
    a("s_waitcnt lgkmcnt(0)")
    a(f"v_min_u32 {vT0}, 0xffffff, {vT2}")
    a(f"v_min_u32 {vJ}, 0xffffff, {vT3}")
    a.label("K2_CHECK")
    a.c("window assignment by size rank")
    a(f"v_lshl_or_b32 {vT0}, {vT0}, 3, {aPS}")
    a(f"v_lshl_or_b32 {vJ}, {vJ}, 3, {aPD}")
    a(f"v_cmp_lt_u32 {sAny}, {sCAP}, {vT3}")
    a(f"v_cmp_gt_u32 vcc, {vJ}, {vT0}")
    a(f"s_mov_b32 {sWin}, 0")
    a("s_nop 2")
    for i in range(8):
        a(f"s_bfe_u32 {sTmp}, {'vcc_lo' if i<4 else 'vcc_hi'}, {(8<<16)|(8*(i&3))}")
        a(f"s_bcnt1_i32_b32 {sTmp}, {sTmp}")
        a(f"s_cmp_eq_u32 {sTmp}, {sTgt}")
        a(f"s_cselect_b32 {sWin}, {i}, {sWin}")
    if opt.get('nobal',0): a(f"s_mov_b32 {sWin}, {sWave}")
    a(f"s_lshl_b32 {sTmp}, {sWin}, 3")
    a(f"v_readlane_b32 {sCnt}, {vT2}, {sTmp}")
    geometry(sWin)
    a(f"s_lshl_b32 {sTmp}, {sWin}, 11")
    a(f"v_add_u32 {vE64}, {sTmp}, {vE64}")
    a(f"v_add_u32 {vTR}, {sTmp}, {vTR}")
    a(f"s_add_u32 {sTmp}, {sTmp}, {L_A2}")
    a(f"v_lshl_add_u32 {vT0}, {vL}, 5, {sTmp}")
    a(f"ds_read_b128 {WA[0:4]}, {vT0}")
    a(f"ds_read_b128 {WA[4:8]}, {vT0} offset:16")
    for i in range(4): a(f"v_mov_b32 {A2R[i]}, 0")
    a(f"ds_write_b128 {vT0}, {A2R[0:4]}")
    a(f"ds_write_b128 {vT0}, {A2R[0:4]} offset:16")
    a(f"s_cmp_eq_u64 {sAny}, 0")
    a("s_cbranch_scc1 K2_MAIN")
    a.c("generic (slow) mode: raw scan of all edges, 512 per round")
    a(f"s_mov_b32 {sMode}, 1")
    a.label("K2_GEN")
    a("s_barrier")
    a(f"s_cmp_lg_u32 {sWave}, 0")
    a("s_cbranch_scc1 K2_GEN1")
    a(f"v_and_b32 {vT0}, 7, {vL}")
    a(f"v_lshlrev_b32 {vT0}, 2, {vT0}")
    a(f"ds_write_b32 {vT0}, {vZ[0]} offset:{L_CNT}")
    a("s_waitcnt lgkmcnt(0)")
    a.label("K2_GEN1")
    a("s_barrier")
    a(f"s_lshl_b32 {sTmp}, {sChunk}, 9")
    a(f"v_add_u32 {vT0}, {sTmp}, v0")
    a(f"s_mov_b32 {sTmp}, {E}")
    a(f"v_cmp_gt_u32 {sAny}, {sTmp}, {vT0}")
    a("s_nop 1")
    append_raw("K2_RA2")
    a("s_waitcnt lgkmcnt(0)")
    a("s_barrier")
    a(f"s_lshl_b32 {sTmp}, {sWin}, 2")
    a(f"v_mov_b32 {vT0}, {sTmp}")
    a(f"ds_read_b32 {vT1}, {vT0} offset:{L_CNT}")
    a("s_waitcnt lgkmcnt(0)")
    a(f"v_readfirstlane_b32 {sCnt}, {vT1}")
    a("s_nop 3")
    a.label("K2_MAIN")
    if opt.get('dbgfill',0): stamp(a,opt,14)
    a(f"s_min_u32 {sCnt}, {sCnt}, {CAP}")
    a(f"s_add_u32 {sNT}, {sCnt}, 31")
    a(f"s_lshr_b32 {sNT}, {sNT}, 5")
    a(f"s_cmp_eq_u32 {sNT}, 0")
    a("s_cbranch_scc1 K2_MAIN_DONE")
    a(f"s_mul_i32 {sTmp}, {sWin}, {CAPX*4}")
    a(f"s_add_u32 {sTmp}, {sTmp}, {L_L0}")
    a(f"s_mul_i32 {sTmp2}, {sWin}, {CAPX*2}")
    a(f"s_add_u32 {sTmp2}, {sTmp2}, {L_L1}")
    a(f"v_and_b32 {vT0}, 31, {vL}")
    a(f"v_lshl_add_u32 {aL0}, {vT0}, 2, {sTmp}")
    a(f"v_lshl_add_u32 {aL1s}, {vT0}, 1, {sTmp2}")
    a(f"v_lshrrev_b32 {vT0}, 3, {vL}")
    a(f"v_lshl_add_u32 {aL1d}, {vT0}, 3, {sTmp2}")
    def pad():
        a(f"v_add_u32 {vT0}, {sCnt}, {vL}")
        a(f"v_lshl_add_u32 {vT1}, {vT0}, 2, {sTmp}")
        a(f"v_lshl_add_u32 {vT2}, {vT0}, 1, {sTmp2}")
        a(f"v_mov_b32 {vJ}, 7")
        a(f"ds_write_b32 {vT1}, {vJ}")
        a(f"ds_write_b16 {vT2}, {vZ[0]}")
        a(f"ds_write_b32 {vT1}, {vJ} offset:256")
        a(f"ds_write_b16 {vT2}, {vZ[0]} offset:128")
    def first_reads():
        a(f"ds_read_b32 {vT3}, {aL0}")
        a(f"ds_read_b64 {SD}, {aL1d}")
        a(f"ds_read_b32 {LE[1]}, {aL0} offset:128")
        a(f"ds_read_b32 {LE[0]}, {aL0} offset:256")
        a(f"ds_read_u16 {SS}, {aL1s}")
    a(f"s_cmp_ge_u32 {sCnt}, 96")
    a("s_cbranch_scc1 K2_FILL_BIG")
    pad()
    first_reads()
    a("s_waitcnt lgkmcnt(0)")
    a("s_branch K2_FILL")
    a.label("K2_FILL_BIG")
    first_reads()
    pad()
    a("s_waitcnt lgkmcnt(4)")
    a.label("K2_FILL")
    ENT=['',' nt',' sc1',' sc0 sc1',' sc0',' sc0 nt',' sc1 nt',' sc0 sc1 nt'][opt.get('e_nt',0)]
    def E_addr(le): a(f"v_and_or_b32 {aE}, {le}, {sMaskE}, {vHOFF}")
    def E_load(p): a(f"buffer_load_dwordx4 {EA[p]}, {aE}, {sE}, 0 offen{ENT}")
    def H_addr():
        if opt.get('hmask',0):
            a(f"v_and_b32 {SD[0]}, 0x03ff03ff, {SD[0]}"); a(f"v_and_b32 {SD[1]}, 0x03ff03ff, {SD[1]}")
        for i in range(4):
            a(f"v_mad_u32_u16 {AD[i]}, {SD[i>>1]}, {s128}, {vKD[i]}"+(" op_sel:[1,0,0,0]" if i&1 else ""))
    def H_load(i):
        a(f"s_mov_b32 m0, {sM0[i]}")
        a("s_nop 0")
        a(f"buffer_load_dwordx4 {AD[i]}, {sB}, 0 offen{HLD} lds")
    def P_addr(le,par):
        a(f"v_and_b32 {vJ}, 7, {le}")
        a(f"v_mul_u32_u24 {aPS}, 6, {SS}")
        a(f"v_mad_u32_u24 {aPD}, {vJ}, 6, {sN06}")
        a(f"v_lshlrev_b32 {aOH}, 4, {vJ}")
        a(f"v_lshl_add_u32 {aA2[par]}, {vJ}, 3, {vE64}")
    def P_reads():
        for c in range(3): a(f"ds_read_u16_d16_hi {PS[c]}, {aPS} offset:{L_POS+2*c}")
        for c in range(3): a(f"ds_read_u16_d16_hi {PD[c]}, {aPD} offset:{L_POS+2*c}")
        a(f"ds_read_b128 {OH}, {aOH} offset:{L_OH}")
    def P_calc_list(par):
        return [f"v_sub_f32 {DX[0]}, {PD[0]}, {PS[0]}", f"v_sub_f32 {DX[1]}, {PD[1]}, {PS[1]}", f"v_sub_f32 {DX[2]}, {PD[2]}, {PS[2]}",
                f"v_mul_f32 {DD}, {DX[0]}, {DX[0]}", f"v_fmac_f32 {DD}, {DX[1]}, {DX[1]}", f"v_fmac_f32 {DD}, {DX[2]}, {DX[2]}",
                f"v_cvt_pk_bf16_f32 {E01[0]}, 1.0, {DX[0]}", f"v_cvt_pk_bf16_f32 {E01[1]}, {DX[1]}, {DX[2]}",
                f"v_cvt_pk_bf16_f32 {OH[3]}, {OH[3]}, {DD}",
                f"ds_write_b64 {aA2[par]}, {E01}"]
    def first_loads():
        E_addr(vT3); E_load(0)
        H_addr()
        for i in range(4): H_load(i)
        E_addr(LE[1]); E_load(1)
    def first_prep(readsd):
        P_addr(vT3,0); P_reads()
        if readsd:
            a(f"ds_read_b64 {SD}, {aL1d} offset:64")
        a(f"ds_read_u16 {SS}, {aL1s} offset:64")
        for i in range(16): a(f"v_mov_b32 {T[i]}, 0")
        for i in range(8): a(f"v_mov_b32 {A2R[i]}, 0")
        a("s_waitcnt lgkmcnt(0)")
        for ins in P_calc_list(0): a(ins)
    if opt.get('stagger',1):
        a.c("the younger partner prepares tile 0 first, so the older waves' first rows are requested ahead of it")
        a(f"s_cmp_ge_u32 {sWave}, 4")
        a("s_cbranch_scc1 K2_FILL_B")
    first_loads()
    if opt.get('dbgfill',0): stamp(a,opt,15)
    first_prep(True)
    if opt.get('stagger',1):
        a("s_branch K2_FILL_J")
        a.label("K2_FILL_B")
        first_prep(False)
        first_loads()
        a(f"ds_read_b64 {SD}, {aL1d} offset:64")
        a("s_waitcnt lgkmcnt(0)")
        a.label("K2_FILL_J")
    H_addr()
    P_addr(LE[1],1)
    E_addr(LE[0])
    a("s_waitcnt vmcnt(1)")
    for s_ in range(4): a(f"ds_read_b128 {HA[4*s_:4*s_+4]}, {vHA[s_]}")
    Da,Db=D1[0:16],D1[16:32]
    mfma(a,Da,OH,WA[0:4],"0")
    mfma(a,Da,EA[0],WE[0:4],Da)
    a("s_waitcnt lgkmcnt(0)")
    for i in range(4): H_load(i)
    mfma(a,Da,HA[0:4],ID[0:4],Da)
    mfma(a,Da,HA[4:8],ID[4:8],Da)
    a(f"s_mov_b32 {sT}, 0")
    stamp(a,opt,8)
    if DBG:
        a("s_memtime s[80:81]")
        a("s_waitcnt lgkmcnt(0)")
    a.nop(12)
    MADD=opt.get('madd',1)
    PB_=[0]; MF=[False]
    def prio(p):
        if PRIO: a(f"s_setprio {p+PB_[0] if PB_[0]>=0 else 3}")
    def Tsec(kind,x,p):
        Dx=D1[16*x:16*x+16]; o=1-x; Do=D1[16*o:16*o+16]; D2o=D2[16*o:16*o+16]
        prio(1)
        if kind=='X':
            ea = EA[p] if x==0 else EA[1-p]
            mfma(a,Do,OH,WA[4*o:4*o+4],"0")
            for i in range(8): a(f"v_cvt_pk_bf16_f32 {M[i]}, {T[2*i]}, {T[2*i+1]}")
            mfma(a,Do,ea,WE[4*o:4*o+4],Do)
            for i in range(16):
                if i==6:
                    if x==1: a("s_waitcnt lgkmcnt(2)")
                    mfma(a,D2o,A2R[0:4],M[0:4],D2o)
                a(f"v_exp_f32 {T[i]}, {Dx[i]}")
            if MADD:
                a("s_nop 1")
                mfma(a,T,ONE,ONE,T)
        else:
            hb = HA[8:16] if x==0 else HA[0:8]
            for i in range(16):
                if i==0: mfma(a,Do,hb[0:4],ID[0:4],Do)
                if i==5: mfma(a,Do,hb[4:8],ID[4:8],Do)
                if i==10: mfma(a,D2o,A2R[4:8],M[4:8],D2o)
                a(f"v_rcp_f32 {T[i]}, {T[i]}")
        prio(0)
    def tile(p):
        q=1-p
        Tsec('X',0,p)
        if not opt.get('e_late',0): E_load(p)
        else: a("s_nop 0")
        P_reads()
        a(f"ds_read_b64 {SD}, {aL1d} offset:{64*(p+2)}")
        if not MADD:
            for i in range(16): a(f"v_add_f32 {T[i]}, 1.0, {T[i]}")
        else:
            a.nop(2)
        Tsec('R',0,p)
        def mulsA():
            for i in range(16): a(f"v_mul_f32 {T[i]}, {Da[i]}, {T[i]}")
        if MF[0]: mulsA()
        a(f"s_waitcnt vmcnt({0 if opt.get('e_late',0) else 1}) lgkmcnt(0)")
        for s_ in range(4): a(f"ds_read_b128 {HA[4*s_:4*s_+4]}, {vHA[s_]}")
        for k in range(4): a(f"ds_read_b64_tr_b16 {A2R[2*k:2*k+2]}, {vTR} offset:{512*k}")
        a(f"ds_write_b64 {aA2[p]}, {vZ}")
        pc=P_calc_list(q)
        for ins in pc[:6]: a(ins)
        H_addr()
        if not MF[0]: mulsA()
        for ins in pc[6:]: a(ins)
        if MF[0]: a("s_nop 0")
        Tsec('X',1,p)
        a("s_waitcnt lgkmcnt(0)")
        if opt.get('e_late',0)==1: E_load(p)
        for i in range(4): H_load(i)
        a(f"ds_read_b32 {LE[q]}, {aL0} offset:{128*(p+3)}")
        a(f"ds_read_u16 {SS}, {aL1s} offset:{64*(p+2)}")
        if not MADD:
            for i in range(16): a(f"v_add_f32 {T[i]}, 1.0, {T[i]}")
        Tsec('R',1,p)
        def mulsB():
            for i in range(16): a(f"v_mul_f32 {T[i]}, {Db[i]}, {T[i]}")
        if MF[0]: mulsB()
        a("s_waitcnt lgkmcnt(0)")
        E_addr(LE[q])
        P_addr(LE[p],p)
        if p==1:
            a(f"v_add_u32 {aL0}, 256, {aL0}")
            a(f"v_add_u32 {aL1s}, 128, {aL1s}")
            a(f"v_add_u32 {aL1d}, 128, {aL1d}")
        if not MF[0]: mulsB()
    def drain(par):
        for i in range(8): a(f"v_cvt_pk_bf16_f32 {M[i]}, {T[2*i]}, {T[2*i+1]}")
        a(f"ds_write_b64 {aA2[par]}, {vZ}")
        a("s_nop 0")
        mfma(a,D2[16:32],A2R[0:4],M[0:4],D2[16:32])
        mfma(a,D2[16:32],A2R[4:8],M[4:8],D2[16:32])
    def main_loop(sfx):
        a(".p2align 6")
        a.label("K2_LOOP"+sfx)
        tile(0)
        a(f"s_add_u32 {sT}, {sT}, 1")
        a(f"s_cmp_ge_u32 {sT}, {sNT}")
        a("s_cbranch_scc1 K2_EXIT_ODD"+sfx)
        tile(1)
        a(f"s_add_u32 {sT}, {sT}, 1")
        a(f"s_cmp_lt_u32 {sT}, {sNT}")
        a("s_cbranch_scc1 K2_LOOP"+sfx)
        drain(0)
        a("s_branch K2_LOOP_DONE")
        a.label("K2_EXIT_ODD"+sfx)
        drain(1)
    HP=opt.get('mfirst',2)
    if HP==1:
        a.c("the younger partner (waves 4..7) opens its plain sections with the multiplies, so both partners' multiplies pair up")
        a(f"s_cmp_ge_u32 {sWave}, 4")
        a("s_cbranch_scc1 K2_LOOP_H")
    if HP==2: MF[0]=True
    main_loop("")
    if HP==1:
        a("s_branch K2_LOOP_DONE")
        MF[0]=True
        main_loop("_H")
        MF[0]=False
    a.label("K2_LOOP_DONE")
    if PRIO: a("s_setprio 0")
    a.label("K2_MAIN_DONE")
    stamp(a,opt,9)
    if DBG:
        a("s_memtime s[82:83]")
        a("s_waitcnt lgkmcnt(0)")
        a("s_sub_u32 s80, s82, s80")
        a(f"v_writelane_b32 {VDBG}, s80, 12")
        a(f"v_writelane_b32 {VDBG}, {sNT}, 11")
    a(f"s_cmp_eq_u32 {sMode}, 0")
    a("s_cbranch_scc1 K2_EPI")
    a("s_waitcnt vmcnt(0) lgkmcnt(0)")
    a(f"s_add_u32 {sChunk}, {sChunk}, 1")
    a(f"s_cmp_lt_u32 {sChunk}, {(E+511)//512}")
    a("s_cbranch_scc1 K2_GEN")
    a.label("K2_EPI")
    a.c("segment sums of this window: m_i (bf16) -> rows of this window's (now idle) A2 slice")
    a(f"s_lshl_b32 {sHST}, {sWin}, 11")
    a(f"s_add_u32 {sHST}, {sHST}, {L_A2}")
    a(f"v_and_b32 {vJ}, 31, {vL}")
    a(f"s_mov_b32 {sTmp}, {NEG_LN2}")
    a(f"v_lshrrev_b32 {vT2}, 5, {vL}")
    a(f"v_lshlrev_b32 {vT2}, 7, {vT2}")
    a(f"v_lshl_add_u32 {vT2}, {vJ}, 1, {vT2}")
    a(f"v_add_u32 {vT2}, {sHST}, {vT2}")
    a.nop(8)
    for qq in range(4):
        a(f"v_mul_f32 {AD[0]}, {sTmp}, {D2[4*qq]}")
        a(f"v_mul_f32 {AD[1]}, {sTmp}, {D2[16+4*qq]}")
        a(f"v_cvt_pk_bf16_f32 {AD[2]}, {AD[0]}, {AD[1]}")
        a(f"ds_write_b16 {vT2}, {AD[2]} offset:{qq*256}")
        a(f"ds_write_b16_d16_hi {vT2}, {AD[2]} offset:{qq*256+64}")
    def pos_part():
        a.c("coordinate update of this window")
        PP=T
        for qq in range(4):
            for c in range(1,4):
                r=PP[qq*3+c-1]
                a(f"v_mul_f32 {r}, {WX[0]}, {D2[4*qq+c]}")
                a(f"v_fmac_f32 {r}, {WX[1]}, {D2[16+4*qq+c]}")
        for sh in (1,2,4,8):
            for i in range(12): a(f"v_add_f32_dpp {PP[i]}, {PP[i]}, {PP[i]} row_shr:{sh} row_mask:0xf bank_mask:0xf bound_ctrl:0")
        for i in range(12): a(f"v_add_f32_dpp {PP[i]}, {PP[i]}, {PP[i]} row_bcast:15 row_mask:0xa bank_mask:0xf")
        a(f"v_lshrrev_b32 {vT2}, 5, {vL}")
        a(f"v_lshlrev_b32 {vT2}, 4, {vT2}")
        a(f"s_add_u32 {sTmp}, {sHST}, 1024")
        a(f"v_add_u32 {vT2}, {sTmp}, {vT2}")
        a("s_mov_b32 exec_lo, 0x80000000")
        a("s_mov_b32 exec_hi, 0x80000000")
        for qq in range(4):
            for c in range(3):
                a(f"ds_write_b32 {vT2}, {PP[qq*3+c]} offset:{qq*32+c*4}")
        a("s_mov_b64 exec, -1")
        a(f"v_mul_u32_u24 {vT2}, 86, {vL}")
        a(f"v_lshrrev_b32 {vT2}, 8, {vT2}")
        a(f"v_mul_u32_u24 {vT3}, 3, {vT2}")
        a(f"v_sub_u32 {vT3}, {vL}, {vT3}")
        a(f"v_lshlrev_b32 {vT2}, 4, {vT2}")
        a(f"v_lshl_add_u32 {vT2}, {vT3}, 2, {vT2}")
        a(f"v_add_u32 {vT2}, {sTmp}, {vT2}")
        a(f"v_min_u32 {vT2}, {LDS2-4}, {vT2}")
        a(f"ds_read_b32 {AD[0]}, {vT2}")
        a(f"v_lshl_add_u32 {vT3}, {vL}, 1, {sN06}")
        a(f"v_min_u32 {vT2}, {POS_SZ-2}, {vT3}")
        a(f"ds_read_u16_d16_hi {PS[0]}, {vT2} offset:{L_POS}")
        a(f"s_mul_i32 {sTmp}, {sNJ}, 3")
        a(f"v_cmp_gt_u32 vcc, {sTmp}, {vL}")
        a(f"v_add_u32 {vT3}, {OUT_POS}, {vT3}")
        a(f"v_mov_b32 {vT2}, 0x40000000")
        a("s_waitcnt lgkmcnt(0)")
        a(f"v_cndmask_b32 {vT3}, {vT2}, {vT3}, vcc")
        a(f"v_add_f32 {AD[0]}, {AD[0]}, {PS[0]}")
        a(f"v_cvt_pk_bf16_f32 {AD[0]}, {AD[0]}, {AD[0]}")
        a(f"buffer_store_short {AD[0]}, {vT3}, {sO}, 0 offen{OST}")
    a.c("job waves 4..7: row tile r = (v-4)>>1 (rows = window 4r + (m>>3), node m&7), feature half x = v&1")
    a(f"s_cmp_lt_u32 {sWave}, 4")
    a("s_cbranch_scc1 K2_EPI_NOJOB")
    a(f"s_sub_u32 {sTmp2}, {sWave}, 4")
    a(f"s_lshr_b32 {sTmp2}, {sTmp2}, 1")
    a(f"s_lshl_b32 {sTmp2}, {sTmp2}, 2")
    a(f"v_bfe_u32 {vT0}, {vL}, 3, 2")
    a(f"v_add_u32 {vT0}, {sTmp2}, {vT0}")
    a(f"v_and_b32 {vJ}, 7, {vL}")
    a(f"v_lshlrev_b32 {aL1d}, 11, {vT0}")
    a(f"v_lshl_add_u32 {aL1d}, {vJ}, 7, {aL1d}")
    a(f"v_add_u32 {aL1d}, {L_A2}, {aL1d}")
    a(f"v_add_u32 {aL1d}, {aL1d}, {vHOFF}")
    a(f"s_lshl_b32 {sTmp2}, s2, 3")
    a(f"v_add_u32 {vT0}, {sTmp2}, {vT0}")
    a(f"v_mad_u32_u24 {SD[0]}, {vT0}, {s3125}, {v511}")
    a(f"v_add_u32 {SD[1]}, 3125, {SD[0]}")
    a(f"v_lshrrev_b32 {SD[0]}, 9, {SD[0]}")
    a(f"v_lshrrev_b32 {SD[1]}, 9, {SD[1]}")
    a(f"v_sub_u32 {SD[1]}, {SD[1]}, {SD[0]}")
    a(f"v_cmp_lt_u32 vcc, {vJ}, {SD[1]}")
    a(f"v_add_u32 {vT1}, -1, {SD[1]}")
    a(f"v_min_u32 {vT1}, {vT1}, {vJ}")
    a(f"v_add_u32 {vT1}, {SD[0]}, {vT1}")
    a(f"v_lshlrev_b32 {vT1}, 7, {vT1}")
    a(f"v_add_u32 {vT0}, {vT1}, {vHOFF}")
    for s_ in range(4):
        a(f"buffer_load_dwordx4 {HA[4*s_:4*s_+4]}, {vT0}, {sHs}, 0 offen offset:{32*s_}")
    a(f"s_and_b32 {sTmp2}, {sWave}, 1")
    a(f"s_lshl_b32 {sTmp2}, {sTmp2}, 6")
    a(f"v_lshrrev_b32 {vT0}, 1, {vHOFF}")
    a(f"v_add3_u32 {aL0}, {vT1}, {vT0}, {sTmp2}")
    for qq in range(4):
        a(f"buffer_load_dwordx2 {M[2*qq:2*qq+2]}, {aL0}, {sHs}, 0 offen offset:{16*qq}")
    a(f"v_mov_b32 {vT0}, 0x40000000")
    a(f"v_cndmask_b32 {aL1s}, {vT0}, {aL0}, vcc")
    pos_part()
    HV=D2[0:16]
    a("s_waitcnt vmcnt(1)")
    for s_ in range(4):
        mfma(a,D1[0:16],WH[4*s_:4*s_+4],HA[4*s_:4*s_+4],"0" if s_==0 else D1[0:16])
    for qq in range(4):
        a(f"v_lshlrev_b32 {HV[4*qq]}, 16, {M[2*qq]}")
        a(f"v_and_b32 {HV[4*qq+1]}, 0xffff0000, {M[2*qq]}")
        a(f"v_lshlrev_b32 {HV[4*qq+2]}, 16, {M[2*qq+1]}")
        a(f"v_and_b32 {HV[4*qq+3]}, 0xffff0000, {M[2*qq+1]}")
    stamp(a,opt,10)
    a("s_barrier")
    MA=[EA[0],EA[1],A2R[0:4],A2R[4:8]]
    for s_ in range(4): a(f"ds_read_b128 {MA[s_]}, {aL1d} offset:{32*s_}")
    for s_ in range(4):
        a(f"s_waitcnt lgkmcnt({3-s_})")
        mfma(a,D1[0:16],WH[16+4*s_:20+4*s_],MA[s_],D1[0:16])
    a(f"s_mov_b32 {sTmp}, {NEG_LOG2E}")
    a.nop(14)
    X=D1[0:16]
    for i in range(16): a(f"v_mul_f32 {T[i]}, {sTmp}, {X[i]}")
    for i in range(16): a(f"v_exp_f32 {T[i]}, {T[i]}")
    for i in range(16): a(f"v_add_f32 {T[i]}, 1.0, {T[i]}")
    for i in range(16): a(f"v_rcp_f32 {T[i]}, {T[i]}")
    a("s_nop 0")
    for i in range(16): a(f"v_fma_f32 {T[i]}, {X[i]}, {T[i]}, {HV[i]}")
    for qq in range(4):
        a(f"v_cvt_pk_bf16_f32 {M[2*qq]}, {T[4*qq]}, {T[4*qq+1]}")
        a(f"v_cvt_pk_bf16_f32 {M[2*qq+1]}, {T[4*qq+2]}, {T[4*qq+3]}")
        a(f"buffer_store_dwordx2 {M[2*qq:2*qq+2]}, {aL1s}, {sO}, 0 offen offset:{16*qq}{OST}")
    a("s_branch K2_FIN")
    a.label("K2_EPI_NOJOB")
    a("s_waitcnt lgkmcnt(0)")
    stamp(a,opt,10)
    a("s_barrier")
    pos_part()
    a.label("K2_FIN")
    if DBG:
        a("s_waitcnt vmcnt(0)")
        stamp(a,opt,13)
        a(f"s_lshl_b32 {sTmp}, s2, 4")
        a(f"s_add_u32 {sTmp}, {sTmp}, {sWave}")
        a(f"s_lshl_b32 {sTmp}, {sTmp}, 6")
        a(f"s_add_u32 {sTmp}, {sTmp}, {DBG_OFF}")
        a(f"v_lshlrev_b32 {vT0}, 2, {vL}")
        a("s_mov_b32 exec_lo, 0xffff")
        a("s_mov_b32 exec_hi, 0")
        a(f"buffer_store_dword {VDBG}, {vT0}, {sW}, {sTmp} offen")
        a("s_waitcnt vmcnt(0)")
        if opt.get('dbgh',0):
            a("s_load_dwordx2 s[64:65], s[0:1], 72")
            a("s_waitcnt lgkmcnt(0)")
            srd(a,S(68,4),"s64","s65",256)
            a(f"s_cmp_lg_u32 s2, {opt.get('dbgh',0)}")
            a("s_cbranch_scc1 K_NODBGH")
            a(f"s_cmp_lg_u32 {sWave}, 0")
            a("s_cbranch_scc1 K_NODBGH")
            a("s_mov_b32 exec_lo, 0x3fff")
            a(f"buffer_store_dword {VDBG}, {vT0}, s[68:71], 0 offen offset:4")
            a("s_waitcnt vmcnt(0)")
            a.label("K_NODBGH")
    a.label("K_END")
    a("s_endpgm")
    a.label("K_CODE_END")
    return nv

HEADER='''; Kernarg layout (88 bytes, ptrs only): h, pos, e_attr, src, dst, w_e, w_x, w_h, out, debug, ws
; @launch grid=(256,1,1) block=(512,1,1) lds={lds2}
.amdgcn_target "amdgcn-amd-amdhsa--gfx950"
.text
.globl {k}
.p2align 8
.type {k},@function
'''
def kd(name,nv,ns):
    acc=(nv+3)//4*4
    return f'''.amdhsa_kernel {name}
  .amdhsa_next_free_vgpr {acc}
  .amdhsa_next_free_sgpr {ns}
  .amdhsa_accum_offset {acc}
  .amdhsa_group_segment_fixed_size 0
  .amdhsa_kernarg_size 88
  .amdhsa_user_sgpr_count 2
  .amdhsa_user_sgpr_kernarg_segment_ptr 1
  .amdhsa_system_sgpr_workgroup_id_x 1
  .amdhsa_float_denorm_mode_32 3
.end_amdhsa_kernel
'''
def build(opt):
    out=HEADER.format(lds2=LDS2,k=KNAME)
    a=Asm()
    nv=gen(a,opt)
    assert nv<=255
    out+=a.text()
    out+='.section .rodata,"a"\n.p2align 6\n'+kd(KNAME,256,102)
    return out,nv
if __name__=="__main__":
    opt={}
    for arg in sys.argv[2:]:
        k,v=arg.split('='); opt[k]=int(v)
    txt,nv=build(opt)
    open(sys.argv[1],'w').write(txt)
    print("vgprs:",nv,"LDS",LDS2,"lines",txt.count("\n"),"WS",WS_BYTES)
```
